```python
import torch

def _softmax(x, axis=-1):
    return torch.softmax(x, dim=axis)
def _gelu(x):
    return torch.nn.functional.gelu(x, approximate="tanh")
def _silu(x):
    return torch.nn.functional.silu(x)
def _sigmoid(x):
    return torch.sigmoid(x)
def _layernorm(x, axis=-1, eps=1e-5):
    m = x.mean(dim=axis, keepdim=True)
    v = x.var(dim=axis, keepdim=True, unbiased=False)
    return (x - m) / torch.sqrt(v + eps)
def _scatter_add(tgt, idx, src, axis=0):
    return tgt.clone().index_add_(axis, idx, src)
def _segment_sum(src, seg, n):
    out = torch.zeros((n,) + src.shape[1:], dtype=src.dtype)
    return out.index_add_(0, seg, src)
def _pad(x, pw):
    flat = tuple(v for pair in reversed(pw) for v in pair)
    return torch.nn.functional.pad(x, flat)

kernel_name = 'interleave_layers__linear_kernel_hedgehog__geglu_ffn__prompt'

def setup_inputs():

    _w = (lambda a: (lambda t: t.to(torch.bfloat16) if t.is_floating_point() else t)(torch.as_tensor(a)))
    def _A_setup():
        B, S, D, H = 1, 2048, 512, 32
        Dh = D // H
        return {
            "x": _w((lambda *s: torch.randn(*s, dtype=torch.bfloat16) * 0.05)(B, S, D)),
            "wqkv": _w((lambda *s: torch.randn(*s, dtype=torch.bfloat16) * 0.2)(D, 3 * D)),
            "w_phi": _w((lambda *s: torch.randn(*s, dtype=torch.bfloat16) * 0.2)(H, Dh, Dh) * (Dh ** -0.5)),
            "wo": _w((lambda *s: torch.randn(*s, dtype=torch.bfloat16) * 0.05)(D, D)),
        }
    _A_in = _A_setup()

    def _B_setup():
        B, S, D, F = 1, 2048, 512, 1376
        return {
            "x": _w((lambda *s: torch.randn(*s, dtype=torch.bfloat16) * 0.05)(B, S, D)),
            "w_gate": _w((lambda *s: torch.randn(*s, dtype=torch.bfloat16) * 0.05)(D, F)),
            "w_up": _w((lambda *s: torch.randn(*s, dtype=torch.bfloat16) * 0.05)(D, F)),
            "w_down": _w((lambda *s: torch.randn(*s, dtype=torch.bfloat16) * 0.05)(F, D)),
        }
    _B_in = _B_setup()

    return {
        "A_x": _A_in["x"],
        "A_wqkv": _A_in["wqkv"],
        "A_w_phi": _A_in["w_phi"],
        "A_wo": _A_in["wo"],
        "B_x": _B_in["x"],
        "B_w_gate": _B_in["w_gate"],
        "B_w_up": _B_in["w_up"],
        "B_w_down": _B_in["w_down"],
    }

def reference(A_x, A_wqkv, A_w_phi, A_wo, B_x, B_w_gate, B_w_up, B_w_down):
    def _A_ref(x, wqkv, w_phi, wo):
        B, S, D = x.shape
        H = 32; Dh = D // H
        qkv = (lambda x, *d: x.permute(*d))((x @ wqkv).reshape(B, S, 3, H, Dh), 2, 0, 3, 1, 4)
        q, k, v = qkv[0], qkv[1], qkv[2]
        pq = torch.einsum("bhsd,hdf->bhsf", q, w_phi)
        pk = torch.einsum("bhsd,hdf->bhsf", k, w_phi)
        phi_q = torch.concatenate([_softmax(pq, axis=-1), _softmax(-pq, axis=-1)], axis=-1)
        phi_k = torch.concatenate([_softmax(pk, axis=-1), _softmax(-pk, axis=-1)], axis=-1)
        kv = torch.einsum("bhsf,bhsd->bhfd", phi_k, v)
        z  = torch.einsum("bhsf->bhf", phi_k)
        num = torch.einsum("bhqf,bhfd->bhqd", phi_q, kv)
        den = torch.einsum("bhqf,bhf->bhq", phi_q, z)[..., None] + 1e-6
        o = num / den
        return (lambda x, *d: x.permute(*d))(o, 0, 2, 1, 3).reshape(B, S, D) @ wo

    def _B_ref(x, w_gate, w_up, w_down):
        return (_gelu(x @ w_gate) * (x @ w_up)) @ w_down

    x = A_x
    x = x + _A_ref(_layernorm(x, axis=-1), A_wqkv, A_w_phi, A_wo)
    x = x + _B_ref(_layernorm(x, axis=-1), B_w_gate, B_w_up, B_w_down)
    x = x + _A_ref(_layernorm(x, axis=-1), A_wqkv, A_w_phi, A_wo)
    x = x + _B_ref(_layernorm(x, axis=-1), B_w_gate, B_w_up, B_w_down)
    return x
```

```python
import re

def v(i, n=1):
    return f"v{i}" if n == 1 else f"v[{i}:{i+n-1}]"
def s(i, n=1):
    return f"s{i}" if n == 1 else f"s[{i}:{i+n-1}]"

_REG = re.compile(r"^(-|abs\()?([vs])(?:(\d+)|\[(\d+):(\d+)\])\)?$")
def regs_of(opnd):
    o = opnd.strip()
    if o == "vcc": return {("s", 106), ("s", 107)}
    if o == "exec": return {("s", 126), ("s", 127)}
    if o == "m0": return {("s", 124)}
    m = _REG.match(o)
    if not m: return set()
    k = m.group(2)
    if m.group(3) is not None: return {(k, int(m.group(3)))}
    return {(k, i) for i in range(int(m.group(4)), int(m.group(5)) + 1)}

TRANS = ("v_exp_f32", "v_log_f32", "v_rcp_f32", "v_rsq_f32", "v_sqrt_f32", "v_sin_f32", "v_cos_f32")

class Ins:
    __slots__ = ("name", "ops", "mods", "kind", "dst", "src", "passes", "srcC", "srcAB", "raw", "wide_store", "comment")
    def __init__(self, name, ops=(), mods="", raw=None, comment="", tset=None, tneed=None):
        self._init(name, ops, mods, raw, comment)
        if tset: self.dst = self.dst | {("t", tset)}
        if tneed:
            for x in (tneed if isinstance(tneed, (list, tuple)) else [tneed]): self.src = self.src | {("t", x)}
    def _init(self, name, ops=(), mods="", raw=None, comment=""):
        self.name, self.ops, self.mods, self.raw, self.comment = name, list(ops), mods, raw, comment
        self.dst, self.src = set(), set()
        self.passes = 0; self.srcC = set(); self.srcAB = set(); self.wide_store = False
        n = name
        R = [regs_of(o) for o in self.ops]
        allr = lambda l: set().union(*l) if l else set()
        if raw is not None:
            self.kind = "raw"
        elif n.startswith("v_mfma"):
            self.kind = "mfma"; self.dst = R[0]; self.srcAB = R[1] | R[2]; self.srcC = R[3]
            self.src = self.srcAB | self.srcC
            self.passes = 8 if "32x32x16" in n else 4 if "16x16x32" in n else None
            assert self.passes
        elif n.startswith("v_"):
            self.kind = "valu"
            if n.startswith("v_permlane"):
                self.dst = R[0] | R[1]; self.src = R[0] | R[1]
            elif n.startswith("v_cmp"):
                self.dst = R[0]; self.src = allr(R[1:])
            elif n.startswith(("v_fmac", "v_pk_fmac", "v_dot2c")):
                self.dst = R[0]; self.src = allr(R)
            else:
                self.dst = R[0]; self.src = allr(R[1:])
        elif n.startswith("ds_read") or n.startswith("ds_bpermute") or n.startswith("ds_swizzle"):
            self.kind = "ds"; self.dst = R[0]; self.src = allr(R[1:])
        elif n.startswith("ds_"):
            self.kind = "ds"; self.src = allr(R)
        elif n.startswith(("buffer_load", "global_load")):
            self.kind = "vmem"
            if " lds" in (" " + mods) or "_lds_" in n:
                self.src = allr(R) | {("s", 124)}
            else:
                self.dst = R[0]; self.src = allr(R[1:])
                if "d16" in n: self.src |= R[0]
        elif n.startswith(("buffer_store", "global_store")):
            self.kind = "vmem"; self.src = allr(R)
            self.wide_store = n.endswith("x4") or n.endswith("x3")
        elif n.startswith(("buffer_atomic", "global_atomic")):
            self.kind = "vmem"; self.src = allr(R)
            if "sc0" in mods: self.dst = R[0]
        elif n.startswith("s_load") or n.startswith("s_memtime") or n.startswith("s_memrealtime"):
            self.kind = "smem"; self.dst = R[0]; self.src = allr(R[1:])
        elif n in ("s_waitcnt", "s_nop", "s_barrier", "s_endpgm", "s_sleep", "s_setprio") or n.startswith("s_cbranch") or n == "s_branch":
            self.kind = "ctl"
        elif n.startswith("s_cmp") or n.startswith("s_bitcmp"):
            self.kind = "salu"; self.src = allr(R)
        elif n.startswith("s_"):
            self.kind = "salu"; self.dst = R[0]; self.src = allr(R[1:])
            if n in ("s_addk_i32", "s_mulk_i32"): self.src |= R[0]
            if "saveexec" in n: self.dst |= regs_of("exec")
        else:
            raise ValueError("unknown instr " + n)
    def text(self):
        if self.raw is not None: return self.raw
        t = "    " + self.name
        if self.ops: t += " " + ", ".join(self.ops)
        if self.mods: t += " " + self.mods
        if self.comment: t += "    ; " + self.comment
        return t

class Stream:
    def __init__(self): self.l = []
    def op(self, name, *ops, mods="", c="", tset=None, tneed=None):
        self.l.append(Ins(name, [str(o) for o in ops], mods, comment=c, tset=tset, tneed=tneed)); return self
    def __getattr__(self, name):
        if name.startswith(("v_", "s_", "ds_", "buffer_", "global_")):
            return lambda *ops, mods="", c="", tset=None, tneed=None: self.op(name, *ops, mods=mods, c=c, tset=tset, tneed=tneed)
        raise AttributeError(name)
    def raw(self, text): self.l.append(Ins("raw", raw=text)); return self
    def label(self, name): return self.raw(name + ":")
    def cmt(self, t): return self.raw("    ; " + t)
    def wait(self, vm=None, lgkm=None):
        p = []
        if vm is not None: p.append(f"vmcnt({vm})")
        if lgkm is not None: p.append(f"lgkmcnt({lgkm})")
        i = Ins("s_waitcnt", [" ".join(p)]); self.l.append(i); return self
    def mark(self, what, *args): self.l.append(Ins("raw", raw=f"    ;@{what} " + " ".join(map(str, args)))); return self
    def extend(self, other): self.l.extend(other.l if isinstance(other, Stream) else other); return self

def interleave(main, filler, per_gap, start=0):
    out = Stream(); f = list(filler.l); k = 0; nm = 0
    for ins in main.l:
        out.l.append(ins)
        if ins.kind == "mfma":
            nm += 1
            if nm > start:
                budget = per_gap if not callable(per_gap) else per_gap(nm)
                while k < len(f) and budget > 0:
                    cost = 2 if f[k].name in TRANS else (0 if f[k].kind == "raw" else 1)
                    out.l.append(f[k]); budget -= cost; k += 1
    out.l.extend(f[k:])
    return out

def cost(i):
    if i.kind == "raw": return 0
    if i.name in TRANS: return 8
    if i.name.startswith("v_dot2"): return 8
    if i.kind == "mfma": return 8
    if i.kind == "vmem": return 8
    if i.kind == "salu" or i.name == "s_waitcnt": return 2
    return 4

class Filler:
    def __init__(self): self.q = []
    def add(self, st): self.q.extend(st.l)
    def take(self, out, budget):
        while self.q and budget > 0:
            i = self.q[0]
            c = cost(i)
            if c > budget and budget < 4: break
            out.l.append(self.q.pop(0)); budget -= c
    def flush(self, out):
        out.l.extend(self.q); self.q = []

VM_MAX, LGKM_MAX = 63, 15

def finalize(stream, verbose=False):
    out = []
    vm, lg = {}, {}
    smem_pending = set()
    saved = {}
    hist = []
    def age(n):
        for h in hist: h[1] += n
        while hist and hist[0][1] > 24: hist.pop(0)
    def emit(i, states=1):
        out.append(i)
        if i.kind != "raw":
            age(states); hist.append([i, 0])
    def do_wait(vmn, lgn):
        nonlocal vm, lg
        p = []
        if vmn is not None: p.append(f"vmcnt({vmn})"); vm = {r: c for r, c in vm.items() if c < vmn}
        if lgn is not None:
            p.append(f"lgkmcnt({lgn})"); lg = {r: c for r, c in lg.items() if c < lgn}
            if lgn == 0: smem_pending.clear()
        emit(Ins("s_waitcnt", [" ".join(p)]))
    for ins in stream.l:
        if ins.kind == "raw":
            t = ins.raw.strip()
            if t.startswith(";@save"): saved[t.split()[1]] = (dict(vm), dict(lg), [list(h) for h in hist])
            elif t.startswith(";@merge"):
                a, b, hh = saved[t.split()[1]]
                for r, c in a.items(): vm[r] = min(vm.get(r, 999), c)
                for r, c in b.items(): lg[r] = min(lg.get(r, 999), c)
                hist[:0] = [[h[0], h[1] + 1] for h in hh]
                hist.sort(key=lambda h: -h[1])
            elif t.startswith(";@restore"):
                a, b, hh = saved[t.split()[1]]
                vm, lg = dict(a), dict(b); hist[:] = [[h[0], h[1] + 1] for h in hh]
            elif t.startswith(";@reset"):
                vm, lg = {}, {}; smem_pending.clear(); hist.clear()
            out.append(ins); continue
        if ins.name == "s_waitcnt":
            t = ins.ops[0]
            m1 = re.search(r"vmcnt\((\d+)\)", t); m2 = re.search(r"lgkmcnt\((\d+)\)", t)
            do_wait(int(m1.group(1)) if m1 else None, int(m2.group(1)) if m2 else None)
            continue
        if ins.name == "s_nop":
            emit(ins, int(ins.ops[0]) + 1); continue
        touched = ins.src | ins.dst
        need_vm = min([vm[r] for r in touched if r in vm], default=None)
        need_lg = min([lg[r] for r in touched if r in lg], default=None)
        if touched & smem_pending: need_lg = 0
        if need_vm is not None or need_lg is not None:
            do_wait(None if need_vm is None else min(need_vm, VM_MAX), None if need_lg is None else min(need_lg, LGKM_MAX))
        need = 0
        for p, d in hist:
            req = 0
            vsrc = {r for r in ins.src if r[0] == "v"}
            if p.kind == "mfma":
                big = p.passes == 8
                if ins.kind == "mfma":
                    if p.dst & ins.srcAB: req = max(req, 12 if big else 8)
                    if p.dst & ins.srcC and not (p.dst == ins.srcC and p.passes == ins.passes): req = max(req, 10 if big else 6)
                    if p.dst & ins.dst and not (p.dst == ins.srcC and p.passes == ins.passes): req = max(req, 10 if big else 6)
                elif ins.kind in ("valu", "vmem", "ds"):
                    if p.dst & touched: req = max(req, 12 if big else 8)
                    if ins.kind == "valu" and (p.srcC & ins.dst): req = max(req, 7 if big else 3)
            elif p.kind == "valu":
                pv = {r for r in p.dst if r[0] == "v"}; ps = {r for r in p.dst if r[0] == "s"}
                if ins.kind == "mfma" and pv & ins.src: req = max(req, 2)
                if p.name.startswith("v_dot") and pv & touched:
                    same_c = ins.name == p.name and len(ins.ops) == 4 and not (pv & (regs_of(ins.ops[1]) | regs_of(ins.ops[2])))
                    if not same_c: req = max(req, 3)
                if ins.name.startswith("v_permlane") and pv & ins.src: req = max(req, 2)
                if ins.name.startswith(("v_readfirstlane", "v_readlane")) and pv & ins.src: req = max(req, 1)
                if "dpp" in ins.mods or "row_" in ins.mods or "quad_perm" in ins.mods:
                    if pv & ins.src: req = max(req, 2)
                if p.name in TRANS and ins.kind == "valu" and ins.name not in TRANS and pv & ins.src: req = max(req, 1)
                if p.name in TRANS and ins.kind != "valu" and pv & ins.src: req = max(req, 1)
                if ps & ins.src:
                    if ins.kind == "vmem": req = max(req, 5)
                    elif ins.kind == "valu": req = max(req, 2)
                    elif ins.kind in ("salu", "smem"): req = max(req, 1)
                if ("op_sel" in p.mods or "sdwa" in p.mods) and ins.kind == "valu" and pv & touched and not p.name.startswith("v_pk_"): req = max(req, 1)
            elif p.kind == "vmem" and p.wide_store:
                data = regs_of(p.ops[0]) if p.name.startswith("buffer") else regs_of(p.ops[1])
                if data & ins.dst: req = max(req, 2 if ins.kind in ("valu", "mfma") else 1)
            elif p.kind == "salu":
                if ("s", 124) in p.dst and ("s", 124) in ins.src and ins.kind in ("vmem", "ds"): req = max(req, 1)
                if regs_of("exec") & p.dst and ins.kind == "mfma": req = max(req, 0)
            need = max(need, req - d)
        while need > 0:
            k = min(need, 16); emit(Ins("s_nop", [str(k - 1)]), k); need -= k
        if ins.kind == "vmem":
            for r in vm: vm[r] += 1
            for r in ins.dst: vm[r] = 0
        elif ins.kind == "ds":
            for r in lg: lg[r] += 1
            for r in ins.dst: lg[r] = 0
        elif ins.kind == "smem":
            smem_pending |= ins.dst
            for r in lg: lg[r] = 0
        emit(ins)
    return "\n".join(i.text() for i in out) + "\n"

def kd(name, vgpr=256, sgpr=102):
    acc = (vgpr + 3) // 4 * 4
    return f""".section .rodata,"a"
.p2align 6
.amdhsa_kernel {name}
  .amdhsa_next_free_vgpr {vgpr}
  .amdhsa_next_free_sgpr {sgpr}
  .amdhsa_accum_offset {acc}
  .amdhsa_group_segment_fixed_size 0
  .amdhsa_kernarg_size 88
  .amdhsa_user_sgpr_count 2
  .amdhsa_user_sgpr_kernarg_segment_ptr 1
  .amdhsa_system_sgpr_workgroup_id_x 1
.end_amdhsa_kernel
"""
def khead(name):
    return f""".text
.globl {name}
.p2align 8
.type {name},@function
{name}:
"""
```

```python
KB = 1024; MB = 1 << 20
EPOCH   = 0
XCCTAB  = 1024
FX      = 64 * KB
FO      = FX + 4 * 64 * 256
FH      = FO + 2 * 64 * 256
FKV     = FH + 2 * 64 * 512
FPREP   = FKV + 2 * 16 * 256
XB      = 1 * MB
ST      = XB + 8 * MB
OB      = ST + 512 * KB
HB_TB   = 43 * KB
HB_C    = 8 * HB_TB
HB_P    = 16 * HB_C
HB      = OB + 4 * MB
KV_REC  = 4608
KV_J    = 16 * KV_REC
KV_P    = 16 * KV_J
KVP     = HB + 2 * HB_P
WQKV_S  = (KVP + 2 * KV_P + 4095) // 4096 * 4096
WO_S    = WQKV_S + 16 * 96 * KB
WGU_S   = WO_S + 8 * 64 * KB
WD_CG   = 172 * KB
WD_S    = WGU_S + 88 * 32 * KB
CSP_QKV = WD_S + 8 * WD_CG + 32 * KB
CSP_GU  = CSP_QKV + 8 * 6144
WS_END  = CSP_GU + 16 * 96 * 128
STAMP   = (WS_END + 4095) // 4096 * 4096
WS_SIZE = 268435456
assert WS_END < 64 * MB
RING    = 0
L_PH    = 131072
L_VB    = L_PH + 128 * 144
L_KVB   = L_VB + 128 * 80
L_CS    = L_KVB + 4 * 576
L_END   = L_CS + 9 * 128
assert L_END <= 163840, L_END
LDS_BYTES = 163840
```

```python
import sys, os, math, struct
sys.path.insert(0, os.path.dirname(os.path.abspath(__file__)))
from asmlib import *
from layout import *

NAME = "interleave_layers__linear_kernel_hedgehog__geglu_ffn__prompt"
OPT = dict(stop=None, stamps=False, sc="sc1")
for a in sys.argv[2:]:
    k, _, val = a.partition("=")
    OPT[k] = val if val != "" else True
SC = OPT["sc"]
SCL = "sc1"
def f2u(x): return "0x%08x" % struct.unpack("<I", struct.pack("<f", x))[0]
LOG2E = 1.4426950408889634

WS, X_, OUT, WQ, WP, WO_, WG, WU, WD, DBG = [s(4 + 4 * i, 4) for i in range(10)]
sC, sJ, sHF, sCG, sM, sNONCE, sCNT, sPAIR = [s(66 + i) for i in range(8)]
sW = s(3)
sXLD, sSTLD, sFXLD, sXST, sSTST, sFXST = [s(74 + i) for i in range(6)]
sOLD, sOST, sFOLD, sFOST = [s(80 + i) for i in range(4)]
sHLD, sHST, sFHLD, sFHST = [s(84 + i) for i in range(4)]
sKVST, sKVLD, sFKVST, sFKVLD = [s(88 + i) for i in range(4)]
sT0, sT1, sT2, sT3 = [s(92 + i) for i in range(4)]
sL2E, sONE = s(96), s(97)
sOUTO = s(98)
sT6 = s(99)
sSTMP = s(100, 2)
vL, vL16, vRING, vFL = v(0), v(1), v(2), v(3)
RES = 4
vNON = v(12); vT = v(13); vU = v(14); vV = v(15)
XF = 128

lab_n = [0]
def newlab(p):
    lab_n[0] += 1
    return f".L{p}_{lab_n[0]}"

def poll(st, addrs, soff):
    L = newlab("poll"); D = newlab("pdone")
    tmps = [vT, vU]
    st.label(L)
    for a, t in zip(addrs, tmps):
        st.buffer_load_dword(t, a, WS, soff, mods=f"offen {SCL}")
    st.wait(vm=0)
    if len(addrs) == 2:
        st.v_xor_b32(vT, sNONCE, vT); st.v_xor_b32(vU, sNONCE, vU); st.v_or_b32(vT, vT, vU)
        st.v_cmp_ne_u32("vcc", 0, vT)
    else:
        st.v_cmp_ne_u32("vcc", sNONCE, vT)
    st.s_cbranch_vccz(D)
    st.s_sub_u32(sCNT, sCNT, 1)
    st.s_cbranch_scc0(L)
    st.s_mov_b32(sCNT, 0)
    st.label(D)

stamp_n = [0]
def stamp(st, idx):
    if not OPT["stamps"]: return
    st.s_memtime(sSTMP)
    st.wait(lgkm=0)
    st.v_mov_b32(v(127), s(100))
    st.s_lshl_b32(sT3, sPAIR, 7)
    st.s_add_u32(sT3, sT3, s(65))
    st.buffer_store_dword(v(127), "off", WS, sT3, mods=f"offset:{idx*4}")

def ring_next(st):
    st.v_add_u32(vRING, 0x8000, vRING)
    st.v_and_b32(vRING, 0x1ffff, vRING)

def barrier(st, adv=True):
    st.wait(lgkm=0)
    st.s_barrier()
    if adv: ring_next(st)

def gemm(st, items, af, nslots, depth, fill=None, budget=20, pre_bar=2, tail_barrier=False, hooks=None):
    n = len(items)
    def rd(i):
        it = items[i]
        st.ds_read_b128(v(af + 4 * (i % nslots), 4), vRING, mods=f"offset:{it['off']}")
    nr = 0
    hold = 0
    def pump(upto):
        nonlocal nr, hold
        while nr < n and nr <= upto:
            if nr > 0 and items[nr]["chunk"] != items[nr - 1]["chunk"] and hold >= 0:
                return
            rd(nr); nr += 1
            if hold < 0: hold = 0
    pump(depth - 1)
    tail_done = not tail_barrier
    for i in range(n):
        it = items[i]
        if hooks and i in hooks: hooks[i](st)
        assert nr > i, (nr, i)
        acc = v(it["acc"], 16 if it["big"] else 4)
        name = "v_mfma_f32_32x32x16_bf16" if it["big"] else "v_mfma_f32_16x16x32_bf16"
        st.op(name, acc, v(af + 4 * (i % nslots), 4), v(it["b"], 4), "0" if it["first"] else acc)
        if nr < n and items[nr]["chunk"] != items[nr - 1]["chunk"]:
            hold += 1
            if hold > pre_bar or nr <= i + 1:
                barrier(st); hold = -1
        elif nr >= n and not tail_done:
            hold += 1
            if hold > pre_bar or i == n - 1:
                barrier(st); tail_done = True
        pump(i + depth)
        if fill is not None: fill.take(st, budget)

def entry(st):
    st.s_cmp_ge_u32(s(2), 256)
    st.s_cbranch_scc1(".Lend")
    st.s_load_dwordx16(s(44, 16), s(0, 2), 0)
    st.s_load_dwordx4(s(60, 4), s(0, 2), 64)
    st.s_load_dwordx2(s(64, 2), s(0, 2), 80)
    st.v_lshrrev_b32(vT, 6, v(0))
    st.v_and_b32(vL, 63, v(0))
    st.v_readfirstlane_b32(sW, vT)
    st.v_lshlrev_b32(vL16, 4, vL)
    st.v_mov_b32(vRING, vL16)
    st.v_and_b32(vFL, 15, vL)
    st.v_lshlrev_b32(vFL, 2, vFL)
    st.s_and_b32(sT0, s(2), 7)
    st.s_lshr_b32(sT1, s(2), 3)
    st.s_lshr_b32(sC, sT1, 4)
    st.s_lshl_b32(sT0, sT0, 1)
    st.s_add_u32(sC, sC, sT0)
    st.s_and_b32(sJ, sT1, 15)
    st.s_lshr_b32(sHF, sJ, 3)
    st.s_and_b32(sCG, sJ, 7)
    st.s_and_b32(sM, sW, 3)
    st.s_mov_b32(sCNT, 1 << 18)
    st.s_mov_b32(sPAIR, 0)
    st.s_cmp_lt_u32(sJ, 6)
    st.s_cselect_b32(sT6, 1, 0)
    def srd(dst, src, size):
        b = int(dst[2:dst.index(":")])
        st.s_mov_b32(s(b), s(src)); st.s_and_b32(s(b + 1), s(src + 1), 0xffff)
        st.s_mov_b32(s(b + 2), size); st.s_mov_b32(s(b + 3), 0x20000)
    srd(WS, 64, WS_SIZE)
    st.buffer_load_dword(vNON, "off", WS, 0, mods=f"offset:{EPOCH} sc1")
    srd(X_, 44, 2048 * 1024); srd(WQ, 46, 512 * 3072); srd(WP, 48, 32 * 512); srd(WO_, 50, 512 * 1024)
    srd(WG, 54, 512 * 2752); srd(WU, 56, 512 * 2752); srd(WD, 58, 1376 * 1024)
    srd(OUT, 60, 2048 * 1024); srd(DBG, 62, 256)
    if OPT["stamps"]:
        st.s_lshl_b32(s(65), s(2), 3); st.s_add_u32(s(65), s(65), sW); st.s_lshl_b32(s(65), s(65), 8)
        st.s_add_u32(s(65), s(65), STAMP)
    st.s_cmp_ge_u32(sW, 4)
    st.s_cbranch_scc1(".Lloader")

def get_nonce(st):
    st.v_add_u32(vNON, 1, vNON)
    st.v_readfirstlane_b32(sNONCE, vNON)

def p0(st):
    A, B = 16, 20
    a0, a1, a2, a3 = v(32), v(33), v(34), v(35)
    st.v_and_b32(a0, 7, vL); st.v_lshrrev_b32(a1, 3, vL)
    st.v_lshlrev_b32(a2, 10, a0); st.v_lshl_add_u32(a2, a1, 4, a2)
    st.s_lshl_b32(sT0, sC, 17); st.s_lshl_b32(sT1, sJ, 13); st.s_add_u32(sT0, sT0, sT1)
    st.s_lshl_b32(sT1, sM, 8); st.s_add_u32(sT0, sT0, sT1)
    st.buffer_load_dwordx4(v(A, 4), a2, X_, sT0, mods="offen")
    st.buffer_load_dwordx4(v(B, 4), a2, X_, sT0, mods="offen offset:128")
    st.v_and_b32(a3, 15, vL); st.v_lshlrev_b32(a3, 10, a3); st.v_lshrrev_b32(vT, 4, vL); st.v_lshl_add_u32(a3, vT, 4, a3)
    st.s_lshl_b32(sOUTO, sC, 17); st.s_lshl_b32(sT1, sHF, 16); st.s_add_u32(sOUTO, sOUTO, sT1)
    st.s_lshl_b32(sT1, sM, 14); st.s_add_u32(sOUTO, sOUTO, sT1); st.s_lshl_b32(sT1, sCG, 7); st.s_add_u32(sOUTO, sOUTO, sT1)
    st.buffer_load_dwordx4(v(RES, 4), a3, X_, sOUTO, mods="offen")
    st.buffer_load_dwordx4(v(RES + 4, 4), a3, X_, sOUTO, mods="offen offset:64")
    st.s_mov_b32(sL2E, f2u(LOG2E)); st.s_mov_b32(sONE, 0x3f803f80)
    st.s_lshl_b32(sT0, sC, 2); st.s_add_u32(sT1, sT0, sM)
    st.s_lshl_b32(sXLD, sT1, 15); st.s_add_u32(sXLD, sXLD, XB)
    st.s_lshl_b32(sSTLD, sT1, 11); st.s_add_u32(sSTLD, sSTLD, ST)
    st.s_lshl_b32(sFXLD, sT1, 8); st.s_add_u32(sFXLD, sFXLD, FX)
    st.s_lshl_b32(sFOST, sT1, 8); st.s_lshl_b32(sT2, sJ, 2); st.s_add_u32(sFOST, sFOST, sT2); st.s_add_u32(sFOST, sFOST, FO)
    st.s_lshl_b32(sFHST, sT1, 9); st.s_add_u32(sFHST, sFHST, sT2); st.s_add_u32(sFHST, sFHST, FH)
    st.s_lshl_b32(sT1, sHF, 1); st.s_add_u32(sT1, sT1, sT0); st.s_lshr_b32(sT2, sM, 1); st.s_add_u32(sT1, sT1, sT2)
    st.s_and_b32(sT3, sM, 1)
    st.s_lshl_b32(sXST, sT1, 15); st.s_lshl_b32(sT2, sCG, 12); st.s_add_u32(sXST, sXST, sT2)
    st.s_lshl_b32(sT2, sT3, 8); st.s_add_u32(sXST, sXST, sT2); st.s_add_u32(sXST, sXST, XB + 2 * MB)
    st.s_lshl_b32(sSTST, sT1, 11); st.s_lshl_b32(sT2, sCG, 8); st.s_add_u32(sSTST, sSTST, sT2)
    st.s_lshl_b32(sT2, sT3, 7); st.s_add_u32(sSTST, sSTST, sT2); st.s_add_u32(sSTST, sSTST, ST + 128 * KB)
    st.s_lshl_b32(sFXST, sT1, 8); st.s_lshl_b32(sT2, sCG, 3); st.s_add_u32(sFXST, sFXST, sT2)
    st.s_lshl_b32(sT2, sT3, 2); st.s_add_u32(sFXST, sFXST, sT2); st.s_add_u32(sFXST, sFXST, FX + 64 * 256)
    st.s_lshl_b32(sFOLD, sT1, 8); st.s_add_u32(sFOLD, sFOLD, FO)
    st.s_lshl_b32(sFHLD, sT1, 9); st.s_add_u32(sFHLD, sFHLD, FH)
    st.s_lshl_b32(sT0, sC, 3); st.s_lshl_b32(sT1, sM, 1); st.s_add_u32(sT1, sT1, sT0)
    st.s_lshl_b32(sOST, sT1, 14); st.s_lshl_b32(sT2, sJ, 10); st.s_add_u32(sOST, sOST, sT2); st.s_add_u32(sOST, sOST, OB)
    st.s_mul_i32(sHST, sT1, HB_TB); st.s_lshl_b32(sT2, sJ, 9); st.s_add_u32(sHST, sHST, sT2); st.s_add_u32(sHST, sHST, HB)
    st.s_lshl_b32(sT1, sHF, 2); st.s_add_u32(sT1, sT1, sT0); st.s_add_u32(sT1, sT1, sM)
    st.s_lshl_b32(sOLD, sT1, 14); st.s_add_u32(sOLD, sOLD, OB)
    st.s_mul_i32(sHLD, sT1, HB_TB); st.s_add_u32(sHLD, sHLD, HB)
    st.s_mul_i32(sKVLD, sJ, KV_J); st.s_add_u32(sKVLD, sKVLD, KVP)
    st.s_mul_i32(sKVST, sC, KV_REC); st.s_add_u32(sKVST, sKVST, sKVLD)
    st.s_lshl_b32(sFKVLD, sJ, 8); st.s_add_u32(sFKVLD, sFKVLD, FKV)
    st.s_lshl_b32(sT1, sC, 4); st.s_lshl_b32(sT2, sM, 2); st.s_add_u32(sFKVST, sT1, sT2); st.s_add_u32(sFKVST, sFKVST, sFKVLD)
    for i in range(4): st.v_mov_b32(v(24 + i), 0)
    st.v_and_b32(vT, 3, vL); st.v_mul_u32_u24(vT, 576, vT)
    st.v_add_u32(vT, L_KVB + 544, vT)
    st.ds_write_b128(vT, v(24, 4))
    st.v_lshlrev_b32(a2, 9, a1); st.v_lshl_add_u32(a2, a0, 4, a2)
    st.s_lshr_b32(sT0, sJ, 2); st.s_lshl_b32(sT1, sC, 2); st.s_add_u32(sT0, sT0, sT1)
    st.s_and_b32(sT3, sJ, 3)
    st.s_lshl_b32(sT1, sT0, 15); st.s_lshl_b32(sT2, sM, 13); st.s_add_u32(sT1, sT1, sT2)
    st.s_lshl_b32(sT2, sT3, 7); st.s_add_u32(sT1, sT1, sT2); st.s_add_u32(sT1, sT1, XB)
    st.buffer_store_dwordx4(v(A, 4), a2, WS, sT1, mods=f"offen {SC}")
    st.s_add_u32(sT1, sT1, 4096)
    st.buffer_store_dwordx4(v(B, 4), a2, WS, sT1, mods=f"offen {SC}")
    S0, Q0, S1, Q1 = v(24), v(25), v(26), v(27)
    for i in range(4):
        st.v_dot2_f32_bf16(S0, v(A + i), sONE, S0); st.v_dot2_f32_bf16(Q0, v(A + i), v(A + i), Q0)
        st.v_dot2_f32_bf16(S1, v(B + i), sONE, S1); st.v_dot2_f32_bf16(Q1, v(B + i), v(B + i), Q1)
    st.v_permlane32_swap_b32(S0, S1); st.v_permlane32_swap_b32(Q0, Q1)
    st.v_add_f32(S0, S0, S1); st.v_add_f32(Q0, Q0, Q1)
    st.v_permlane16_swap_b32(S0, Q0)
    st.v_add_f32(S0, S0, Q0)
    st.v_add_f32(S0, S0, S0, mods="row_ror:8 row_mask:0xf bank_mask:0xf")
    st.v_lshrrev_b32(a2, 5, vL); st.v_lshlrev_b32(a2, 8, a2); st.v_lshl_add_u32(a2, a0, 3, a2)
    st.v_bfe_u32(vT, vL, 4, 1); st.v_lshl_add_u32(a2, vT, 2, a2)
    st.s_lshl_b32(sT1, sT0, 11); st.s_lshl_b32(sT2, sM, 9); st.s_add_u32(sT1, sT1, sT2)
    st.s_lshl_b32(sT2, sT3, 6); st.s_add_u32(sT1, sT1, sT2); st.s_add_u32(sT1, sT1, ST)
    st.buffer_store_dword(S0, a2, WS, sT1, mods=f"offen {SC}")
    get_nonce(st)
    st.s_lshl_b32(sT1, sT0, 8); st.s_lshl_b32(sT2, sT3, 4); st.s_add_u32(sT1, sT1, sT2)
    st.s_lshl_b32(sT2, sM, 2); st.s_add_u32(sT1, sT1, sT2); st.s_add_u32(sT1, sT1, FX)
    st.wait(vm=0)
    st.buffer_store_dword(vNON, "off", WS, sT1, mods=SC)

def load_x(st, stt):
    a = vV
    st.v_lshrrev_b32(a, 5, vL); st.v_lshlrev_b32(a, 10, a); st.v_and_b32(vU, 31, vL); st.v_lshl_add_u32(a, vU, 3, a)
    st.s_mov_b32(sT0, sXLD)
    for q in range(8):
        for i in range(4):
            st.buffer_load_dwordx4(v(XF + 16 * q + 4 * i, 4), vL16, WS, sT0, mods=f"offen offset:{1024*i} {SCL}")
        if q < 7: st.s_add_u32(sT0, sT0, 4096)
    for i in range(4):
        st.buffer_load_dwordx2(v(stt + 2 * i, 2), a, WS, sSTLD, mods=f"offen offset:{256*i} {SCL}")
    st.s_add_u32(sXLD, sXLD, 2 * MB); st.s_add_u32(sSTLD, sSTLD, 128 * KB); st.s_add_u32(sFXLD, sFXLD, 64 * 256)

def stats(st, stt, negmean, rstd, vare):
    S, Q = v(stt), v(stt + 1)
    st.v_add_f32(S, S, v(stt + 2)); st.v_add_f32(Q, Q, v(stt + 3))
    st.v_add_f32(v(stt + 4), v(stt + 4), v(stt + 6)); st.v_add_f32(v(stt + 5), v(stt + 5), v(stt + 7))
    st.v_add_f32(S, S, v(stt + 4)); st.v_add_f32(Q, Q, v(stt + 5))
    st.v_mov_b32(v(stt + 2), S); st.v_mov_b32(v(stt + 3), Q)
    st.v_permlane32_swap_b32(S, v(stt + 2)); st.v_permlane32_swap_b32(Q, v(stt + 3))
    st.v_add_f32(S, S, v(stt + 2)); st.v_add_f32(Q, Q, v(stt + 3))
    st.v_mul_f32(negmean, f2u(-1.0 / 512), S)
    st.v_mul_f32(Q, f2u(1.0 / 512), Q)
    st.v_fma_f32(vare, "-" + negmean, negmean, Q)
    st.v_max_f32(vare, 0, vare)
    st.v_add_f32(vare, f2u(1e-5), vare)
    st.v_rsq_f32(rstd, vare)

def featmap(st, acc, kb, wp, e1, e2, lr, mid=None):
    for i in range(8): st.v_cvt_pk_bf16_f32(v(kb + i), v(acc + 2 * i), v(acc + 2 * i + 1))
    st.v_mfma_f32_32x32x16_bf16(v(acc, 16), v(wp, 4), v(kb, 4), "0")
    st.v_mfma_f32_32x32x16_bf16(v(acc, 16), v(wp + 4, 4), v(kb + 4, 4), v(acc, 16))
    if mid: mid(st)
    mx, mn = v(kb), v(kb + 1)
    p = lambda i: v(acc + i)
    st.v_max3_f32(mx, p(0), p(1), p(2)); st.v_min3_f32(mn, p(0), p(1), p(2))
    for i in range(3, 15, 2):
        st.v_max3_f32(mx, mx, p(i), p(i + 1)); st.v_min3_f32(mn, mn, p(i), p(i + 1))
    st.v_max_f32(mx, mx, p(15)); st.v_min_f32(mn, mn, p(15))
    st.v_mul_f32(mx, lr, mx); st.v_mul_f32(mn, lr, mn)
    for i in range(16):
        st.v_fma_f32(v(e1 + i), p(i), lr, "-" + mx); st.v_fma_f32(v(e2 + i), "-" + p(i), lr, mn)
    for i in range(16):
        st.v_exp_f32(v(e1 + i), v(e1 + i)); st.v_exp_f32(v(e2 + i), v(e2 + i))
    s1, s2, s3, s4 = v(kb + 2), v(kb + 3), v(kb + 4), v(kb + 5)
    st.v_add_f32(s1, v(e1), v(e1 + 1)); st.v_add_f32(s2, v(e2), v(e2 + 1))
    st.v_add_f32(s3, v(e1 + 2), v(e1 + 3)); st.v_add_f32(s4, v(e2 + 2), v(e2 + 3))
    for i in range(4, 16, 2):
        st.v_add_f32(s1, s1, v(e1 + i)); st.v_add_f32(s2, s2, v(e2 + i))
        st.v_add_f32(s3, s3, v(e1 + i + 1)); st.v_add_f32(s4, s4, v(e2 + i + 1))
    st.v_add_f32(s1, s1, s3); st.v_add_f32(s2, s2, s4)
    st.v_rcp_f32(s1, s1); st.v_rcp_f32(s2, s2)
    for i in range(16):
        st.v_mul_f32(v(e1 + i), s1, v(e1 + i)); st.v_mul_f32(v(e2 + i), s2, v(e2 + i))
    for i in range(8):
        st.v_cvt_pk_bf16_f32(v(e1 + i), v(e1 + 2 * i), v(e1 + 2 * i + 1))
        st.v_cvt_pk_bf16_f32(v(e2 + i), v(e2 + 2 * i), v(e2 + 2 * i + 1))

def p1(st):
    aK, aV, aQ, AF, WPH, STT, CS = 16, 32, 48, 64, 88, 96, 108
    NM, RS, VE, LR = v(104), v(105), v(106), v(107)
    aCS, aA, aB = v(124), v(125), v(126)
    st.v_bfe_u32(vT, vL, 2, 1); st.v_lshrrev_b32(vU, 5, vL)
    st.v_cmp_eq_u32("vcc", vT, vU)
    st.v_bfe_u32(vV, vL, 3, 2); st.v_lshlrev_b32(vV, 3, vV); st.v_lshl_add_u32(vV, vT, 9, vV)
    st.v_and_b32(vT, 3, vL); st.v_lshl_add_u32(vV, vT, 1, vV)
    st.v_mov_b32(vT, 0x80000000)
    st.v_cndmask_b32(vV, vT, vV, "vcc")
    st.s_lshl_b32(sT0, sJ, 10)
    for e in range(16):
        st.buffer_load_ushort(v(aQ + e), vV, WP, sT0, mods=f"offen offset:{32*e}")
    st.v_lshlrev_b32(aCS, 6, vU); st.v_add_u32(aCS, L_CS, aCS)
    barrier(st, adv=False)
    stamp(st, 1)
    poll(st, [vFL], sFXLD)
    stamp(st, 2)
    load_x(st, STT)
    for i in range(8): st.v_lshl_or_b32(v(WPH + i), v(aQ + 2 * i + 1), 16, v(aQ + 2 * i))
    items = []
    for sidx in range(32):
        for t, acc in ((0, aK), (1, aV)):
            items.append(dict(chunk=sidx // 16, off=t * 16384 + (sidx % 16) * 1024, acc=acc, b=XF + 4 * sidx, big=True, first=sidx == 0))
    gemm(st, items, AF, 6, 5)
    stamp(st, 3)
    for i in range(4): st.ds_read_b128(v(CS + 4 * i, 4), aCS, mods=f"offset:{16*i}")
    stats(st, STT, NM, RS, VE)
    st.v_mul_f32(LR, sL2E, RS)
    for i in range(16): st.v_fma_f32(v(aK + i), v(CS + i), NM, v(aK + i))
    for i in range(4): st.ds_read_b128(v(CS + 4 * i, 4), aCS, mods=f"offset:{128+16*i}")
    def vpart(st):
        for i in range(16): st.v_fma_f32(v(aV + i), v(CS + i), NM, v(aV + i))
        for i in range(16): st.v_mul_f32(v(aV + i), RS, v(aV + i))
        for i in range(8): st.v_cvt_pk_bf16_f32(v(aV + i), v(aV + 2 * i), v(aV + 2 * i + 1))
        st.v_and_b32(vT, 31, vL); st.s_lshl_b32(sT0, sM, 5); st.v_add_u32(vT, sT0, vT)
        st.v_lshrrev_b32(vU, 5, vL)
        st.v_mul_u32_u24(aA, 144, vT); st.v_lshl_add_u32(aA, vU, 6, aA); st.v_add_u32(aA, L_PH, aA)
        st.v_mul_u32_u24(aB, 80, vT); st.v_lshl_add_u32(aB, vU, 5, aB); st.v_add_u32(aB, L_VB, aB)
        st.ds_write_b128(aB, v(aV, 4)); st.ds_write_b128(aB, v(aV + 4, 4), mods="offset:16")
    featmap(st, aK, AF, WPH, CS, aQ, LR, mid=vpart)
    st.ds_write_b128(aA, v(CS, 4)); st.ds_write_b128(aA, v(CS + 4, 4), mods="offset:16")
    st.ds_write_b128(aA, v(aQ, 4), mods="offset:32"); st.ds_write_b128(aA, v(aQ + 4, 4), mods="offset:48")
    st.v_lshrrev_b32(vT, 4, vL); st.v_lshlrev_b32(vT, 3, vT); st.v_bfe_u32(vU, vL, 2, 2); st.v_add_u32(vT, vT, vU)
    st.v_and_b32(vU, 3, vL); st.v_lshlrev_b32(vU, 3, vU)
    st.s_lshl_b32(sT0, sM, 5); st.s_add_u32(sT0, sT0, L_PH)
    st.v_mul_u32_u24(aA, 144, vT); st.v_add_u32(aA, aA, vU); st.v_add_u32(aA, sT0, aA)
    st.s_lshr_b32(sT0, sM, 1); st.s_lshl_b32(sT0, sT0, 5); st.s_add_u32(sT0, sT0, L_VB)
    st.v_mul_u32_u24(aB, 80, vT); st.v_add_u32(aB, aB, vU); st.v_add_u32(aB, sT0, aB)
    barrier(st)
    stamp(st, 4)
    TA, TB, ONE, AKV, AZ = 16, 32, 108, 112, 116
    for sidx in range(4):
        for q in range(2):
            st.ds_read_b64_tr_b16(v(TA + 4 * sidx + 2 * q, 2), aA, mods=f"offset:{(32*sidx+4*q)*144}")
            st.ds_read_b64_tr_b16(v(TB + 4 * sidx + 2 * q, 2), aB, mods=f"offset:{(32*sidx+4*q)*80}")
    for i in range(4): st.v_mov_b32(v(ONE + i), sONE)
    st.v_lshrrev_b32(vT, 4, vL); st.v_lshlrev_b32(aA, 9, vT)
    st.v_bfe_u32(vU, vL, 2, 2); st.v_lshl_add_u32(aA, vU, 7, aA); st.v_and_b32(vU, 3, vL); st.v_lshl_add_u32(aA, vU, 4, aA)
    st.v_lshrrev_b32(aB, 5, vL); st.v_lshlrev_b32(aB, 6, aB); st.v_bfe_u32(vU, vL, 4, 1); st.v_lshl_add_u32(aB, vU, 4, aB)
    st.s_and_b32(sT0, sM, 1); st.s_lshr_b32(sT1, sM, 1)
    st.s_lshl_b32(sT2, sT0, 11); st.s_add_u32(sT2, sT2, sKVST); st.s_lshl_b32(sT3, sT1, 6); st.s_add_u32(sT2, sT2, sT3)
    st.s_lshl_b32(sT0, sT0, 7); st.s_lshl_b32(sT1, sT1, 5); st.s_add_u32(sT0, sT0, sT1); st.s_add_u32(sT0, sT0, sKVST)
    st.s_add_u32(sT0, sT0, 4096)
    for sidx in range(4):
        st.v_mfma_f32_16x16x32_bf16(v(AKV, 4), v(TA + 4 * sidx, 4), v(TB + 4 * sidx, 4), "0" if sidx == 0 else v(AKV, 4))
        st.v_mfma_f32_16x16x32_bf16(v(AZ, 4), v(TA + 4 * sidx, 4), v(ONE, 4), "0" if sidx == 0 else v(AZ, 4))
    st.buffer_store_dwordx4(v(AKV, 4), aA, WS, sT2, mods=f"offen sc1")
    st.buffer_store_dwordx4(v(AZ, 4), aB, WS, sT0, mods=f"offen sc1", tset="kv")
    items = [dict(chunk=0, off=sidx * 1024, acc=aQ, b=XF + 4 * sidx, big=True, first=sidx == 0) for sidx in range(32)]
    def kvflag(st): st.buffer_store_dword(vNON, "off", WS, sFKVST, mods="sc1", tneed="kv")
    gemm(st, items, AF, 6, 5, hooks={int(OPT.get("kvflag", 24)): kvflag})
    for i in range(4): st.ds_read_b128(v(CS + 4 * i, 4), aCS, mods=f"offset:{256+16*i}")
    for i in range(16): st.v_fma_f32(v(aQ + i), v(CS + i), NM, v(aQ + i))
    featmap(st, aQ, AF, WPH, aK, aV, LR)
    PHQ = [aK, aK + 4, aV, aV + 4]
    st.v_lshlrev_b32(vV, 2, vL)
    st.v_lshrrev_b32(aA, 4, vL); st.v_mul_u32_u24(aA, KV_REC, aA); st.v_add_u32(aA, aA, vFL)
    stamp(st, 5)
    poll(st, [vV], sFKVLD)
    stamp(st, 6)
    G, Z = XF, XF + 64
    st.s_lshl_b32(sT0, sM, 10); st.s_add_u32(sT0, sT0, sKVLD)
    st.s_lshl_b32(sT1, sM, 6); st.s_add_u32(sT1, sT1, sKVLD); st.s_add_u32(sT1, sT1, 4096)
    for cc in range(16):
        st.buffer_load_dwordx4(v(G + 4 * cc, 4), vL16, WS, sT0, mods="offen sc1")
        if cc < 15: st.s_add_u32(sT0, sT0, KV_REC)
    for i in range(4):
        st.buffer_load_dword(v(Z + i), aA, WS, sT1, mods="offen sc1")
        if i < 3: st.s_add_u32(sT1, sT1, 4 * KV_REC)
    st.s_mul_i32(sT0, sM, 576); st.s_add_u32(sT0, sT0, L_KVB)
    st.v_and_b32(vT, 31, vL); st.v_lshlrev_b32(vT, 4, vT)
    st.v_lshrrev_b32(vU, 5, vL)
    st.v_lshl_add_u32(aA, vU, 3, vT); st.v_add_u32(aA, sT0, aA)
    st.v_lshrrev_b32(aB, 1, vFL); st.v_add_u32(aB, sT0, aB)
    st.v_bfe_u32(vV, vL, 2, 1); st.v_cmp_eq_u32("vcc", vV, vU)
    st.v_mov_b32(vV, 544); st.v_cndmask_b32(vT, vV, vT, "vcc"); st.v_add_u32(v(120), L_KVB, vT)
    st.v_lshlrev_b32(vU, 4, vU); st.v_add_u32(v(121), L_KVB + 512, vU)
    for cc in range(1, 16):
        d = G + 4 * (cc & 1) if cc > 1 else None
        if cc == 1: continue
        for i in range(4): st.v_add_f32(v(d + i), v(d + i), v(G + 4 * cc + i))
    for i in range(4): st.v_add_f32(v(G + i), v(G + i), v(G + 4 + i))
    st.v_cvt_pk_bf16_f32(v(G), v(G), v(G + 1)); st.v_cvt_pk_bf16_f32(v(G + 1), v(G + 2), v(G + 3))
    st.ds_write_b64(aA, v(G, 2))
    st.v_add_f32(v(Z), v(Z), v(Z + 1)); st.v_add_f32(v(Z + 2), v(Z + 2), v(Z + 3)); st.v_add_f32(v(Z), v(Z), v(Z + 2))
    st.v_mov_b32(v(Z + 1), v(Z)); st.v_permlane32_swap_b32(v(Z), v(Z + 1)); st.v_add_f32(v(Z), v(Z), v(Z + 1))
    st.v_mov_b32(v(Z + 1), v(Z)); st.v_permlane16_swap_b32(v(Z), v(Z + 1)); st.v_add_f32(v(Z), v(Z), v(Z + 1))
    st.v_cvt_pk_bf16_f32(v(Z), v(Z), v(Z))
    st.ds_write_b16(aB, v(Z), mods="offset:512")
    barrier(st)
    stamp(st, 7)
    KA, ZA, NUM, DEN = XF, XF + 16, 48, v(64)
    for u in range(4): st.ds_read_b128(v(KA + 4 * u, 4), v(120), mods=f"offset:{576*u}")
    for u in range(4): st.ds_read_b128(v(ZA + 4 * u, 4), v(121), mods=f"offset:{576*u}")
    st.v_mov_b32(DEN, f2u(1e-6)); st.v_mov_b32(v(65), 0)
    st.v_bfe_u32(aA, vL, 4, 1); st.v_lshlrev_b32(aA, 14, aA); st.v_lshrrev_b32(vU, 5, vL); st.v_lshl_add_u32(aA, vU, 9, aA)
    st.v_lshl_add_u32(aA, vFL, 2, aA)
    for u in range(4):
        st.v_mfma_f32_32x32x16_bf16(v(NUM, 16), v(KA + 4 * u, 4), v(PHQ[u], 4), "0" if u == 0 else v(NUM, 16))
        for i in range(4):
            dd = DEN if i % 2 == 0 else v(65)
            st.v_dot2_f32_bf16(dd, v(PHQ[u] + i), v(ZA + 4 * u + i), dd)
    st.v_add_f32(DEN, DEN, v(65))
    st.v_rcp_f32(DEN, DEN)
    for i in range(16): st.v_mul_f32(v(NUM + i), DEN, v(NUM + i))
    for i in range(8): st.v_cvt_pk_bf16_f32(v(NUM + i), v(NUM + 2 * i), v(NUM + 2 * i + 1))
    st.buffer_store_dwordx4(v(NUM, 4), aA, WS, sOST, mods=f"offen {SC}")
    st.buffer_store_dwordx4(v(NUM + 4, 4), aA, WS, sOST, mods=f"offen offset:256 {SC}", tset="o")
    st.buffer_store_dword(vNON, "off", WS, sFOST, mods=SC, tneed="o")
    st.s_add_u32(sKVST, sKVST, KV_P); st.s_add_u32(sKVLD, sKVLD, KV_P)
    st.s_add_u32(sFKVST, sFKVST, 16 * 256); st.s_add_u32(sFKVLD, sFKVLD, 16 * 256)
    st.s_add_u32(sOST, sOST, 2 * MB); st.s_add_u32(sFOST, sFOST, 64 * 256)

def xepi(st, ACC, last):
    T = 32
    aX, aS = v(48), v(49)
    for p in range(2):
        for i in range(4):
            r = RES + 4 * p + i
            lo, hi = v(T + 8 * p + 2 * i), v(T + 8 * p + 2 * i + 1)
            st.v_lshlrev_b32(lo, 16, v(r)); st.v_and_b32(hi, 0xffff0000, v(r))
    for p in range(2):
        for k in range(8):
            st.v_add_f32(v(T + 8 * p + k), v(T + 8 * p + k), v(ACC + 8 * p + k))
    for p in range(2):
        for i in range(4): st.v_cvt_pk_bf16_f32(v(RES + 4 * p + i), v(T + 8 * p + 2 * i), v(T + 8 * p + 2 * i + 1))
    LF = newlab("fin"); LJ = newlab("join")
    if last:
        st.mark("save", LF)
        st.s_cmp_eq_u32(sPAIR, 1); st.s_cbranch_scc1(LF)
    st.v_lshrrev_b32(aX, 4, vL); st.v_lshlrev_b32(aX, 9, aX); st.v_lshl_add_u32(aX, vFL, 2, aX)
    st.buffer_store_dwordx4(v(RES, 4), aX, WS, sXST, mods=f"offen {SC}")
    st.buffer_store_dwordx4(v(RES + 4, 4), aX, WS, sXST, mods=f"offen offset:2048 {SC}")
    S, Q, S2, Q2 = v(T), v(T + 1), v(T + 2), v(T + 3)
    st.v_dot2_f32_bf16(S, v(RES), sONE, 0); st.v_dot2_f32_bf16(Q, v(RES), v(RES), 0)
    st.v_dot2_f32_bf16(S2, v(RES + 1), sONE, 0); st.v_dot2_f32_bf16(Q2, v(RES + 1), v(RES + 1), 0)
    for i in range(2, 8, 2):
        st.v_dot2_f32_bf16(S, v(RES + i), sONE, S); st.v_dot2_f32_bf16(Q, v(RES + i), v(RES + i), Q)
        st.v_dot2_f32_bf16(S2, v(RES + i + 1), sONE, S2); st.v_dot2_f32_bf16(Q2, v(RES + i + 1), v(RES + i + 1), Q2)
    st.v_lshrrev_b32(aS, 5, vL); st.v_lshlrev_b32(aS, 2, aS); st.v_lshl_add_u32(aS, vFL, 1, aS)
    st.v_add_f32(S, S, S2); st.v_add_f32(Q, Q, Q2)
    st.v_permlane32_swap_b32(S, Q); st.v_add_f32(S, S, Q)
    st.v_mov_b32(Q, S); st.v_permlane16_swap_b32(S, Q); st.v_add_f32(S, S, Q)
    st.buffer_store_dword(S, aS, WS, sSTST, mods=f"offen {SC}", tset="x")
    st.buffer_store_dword(vNON, "off", WS, sFXST, mods=SC, tneed="x")
    st.s_add_u32(sXST, sXST, 2 * MB); st.s_add_u32(sSTST, sSTST, 128 * KB); st.s_add_u32(sFXST, sFXST, 64 * 256)
    if last:
        st.s_mov_b32(sPAIR, 1)
        st.s_branch(".Lpair")
        st.label(LF); st.mark("restore", LF)
        st.v_lshlrev_b32(aX, 8, vFL); st.v_lshrrev_b32(vT, 4, vL); st.v_lshl_add_u32(aX, vT, 4, aX)
        st.buffer_store_dwordx4(v(RES, 4), aX, OUT, sOUTO, mods="offen")
        st.buffer_store_dwordx4(v(RES + 4, 4), aX, OUT, sOUTO, mods="offen offset:64")

def small_items(nsteps, breg, ACC):
    items = []
    for sidx in range(nsteps):
        for t in range(4):
            items.append(dict(chunk=sidx // 8, off=(sidx % 8) * 4096 + t * 1024, acc=ACC + 4 * t, b=breg(sidx), big=False, first=sidx == 0))
    return items

def p2(st):
    ACC, AF = 16, 64
    stamp(st, 8)
    poll(st, [vFL], sFOLD)
    stamp(st, 9)
    st.s_mov_b32(sT0, sOLD)
    for q in range(4):
        for i in range(4):
            st.buffer_load_dwordx4(v(XF + 16 * q + 4 * i, 4), vL16, WS, sT0, mods=f"offen offset:{1024*i} {SCL}")
        if q < 3: st.s_add_u32(sT0, sT0, 4096)
    st.s_add_u32(sOLD, sOLD, 2 * MB); st.s_add_u32(sFOLD, sFOLD, 64 * 256)
    gemm(st, small_items(16, lambda k: XF + 4 * k, ACC), AF, 12, 11, pre_bar=4, tail_barrier=True)
    stamp(st, 10)
    xepi(st, ACC, False)

def p3(st):
    ACCS = [16, 32, 48]; AF = 64; STT = 96; CS = 96; TM = 112
    NM, K1, K3, VE = v(88), v(89), v(90), v(91)
    aCS, aH = v(92), v(93)
    st.v_lshrrev_b32(vU, 5, vL); st.v_lshlrev_b32(aCS, 6, vU); st.v_add_u32(aCS, L_CS + 3 * 128, aCS)
    st.v_bfe_u32(aH, vL, 4, 1); st.v_mul_u32_u24(aH, HB_TB, aH); st.v_lshl_add_u32(aH, vU, 8, aH); st.v_lshl_add_u32(aH, vFL, 2, aH)
    stamp(st, 11)
    poll(st, [vFL], sFXLD)
    stamp(st, 12)
    load_x(st, STT)
    C1 = -2.0 * math.sqrt(2.0 / math.pi) * LOG2E
    def epi(r):
        f = Stream(); a = ACCS[r % 3]
        for i in range(4): f.ds_read_b128(v(CS + 4 * i, 4), aCS, mods=f"offset:{128*r+16*i}")
        for i in range(16): f.v_fma_f32(v(a + i), v(CS + i), NM, v(a + i))
        for i in range(8): f.v_mul_f32(v(TM + i), v(a + i), v(a + i))
        for i in range(8): f.v_fma_f32(v(TM + i), v(TM + i), K3, K1)
        for i in range(8): f.v_mul_f32(v(TM + i), v(TM + i), v(a + i))
        for i in range(8):
            f.v_exp_f32(v(TM + i), v(TM + i)); f.v_mul_f32(v(a + i), v(a + i), v(a + 8 + i))
        for i in range(8): f.v_fma_f32(v(TM + i), v(TM + i), VE, VE)
        for i in range(8): f.v_rcp_f32(v(TM + i), v(TM + i))
        for i in range(8): f.v_mul_f32(v(TM + i), v(TM + i), v(a + i))
        for i in range(4): f.v_cvt_pk_bf16_f32(v(TM + 8 + i), v(TM + 2 * i), v(TM + 2 * i + 1))
        f.s_add_u32(sT1, sHST, 8192 * r)
        f.buffer_store_dwordx4(v(TM + 8, 4), aH, WS, sT1, mods=f"offen {SC}", tset=f"h{r}")
        return f
    def flag(r):
        f = Stream(); f.buffer_store_dword(vNON, "off", WS, sFHST, mods=f"offset:{64*r} {SC}", tneed=f"h{r}"); return f
    def tile(r, chunk):
        return [dict(chunk=chunk, off=k * 1024, acc=ACCS[r % 3], b=XF + 4 * k, big=True, first=k == 0) for k in range(32)]
    items = []
    for k in range(32):
        for t in range(2):
            items.append(dict(chunk=k // 16, off=t * 16384 + (k % 16) * 1024, acc=ACCS[t], b=XF + 4 * k, big=True, first=k == 0))
    fill = Filler()
    def h_stats(st):
        f = Stream()
        stats(f, STT, NM, K1, VE)
        f.v_mul_f32(K3, K1, K1); f.v_mul_f32(K1, f2u(C1), K1); f.v_mul_f32(K3, f2u(0.044715), K3); f.v_mul_f32(K3, K3, K1)
        fill.add(f)
    def h_add(*parts):
        def h(st):
            for p in parts: fill.add(p)
        return h
    items += tile(2, 2) + tile(3, 3) + tile(4, 4)
    hooks = {62: h_stats, 65: h_add(epi(0), epi(1)), 97: h_add(epi(2), flag(0), flag(1)), 129: h_add(epi(3), flag(2))}
    gemm(st, items, AF, 6, 5, fill=fill, hooks=hooks, tail_barrier=True)
    fill.flush(st)
    L5 = newlab("t5"); LJ = newlab("tj")
    st.mark("save", L5)
    st.s_cmp_eq_u32(sT6, 0); st.s_cbranch_scc1(L5)
    gemm(st, tile(5, 0), AF, 6, 5, fill=fill, hooks={1: h_add(epi(4), flag(3))}, tail_barrier=True)
    fill.flush(st)
    st.extend(epi(5)); st.extend(flag(4)); st.extend(flag(5))
    st.s_branch(LJ)
    st.mark("save", LJ)
    st.label(L5); st.mark("restore", L5)
    st.extend(epi(4)); st.extend(flag(3)); st.extend(flag(4))
    st.mark("merge", LJ)
    st.label(LJ)
    st.s_add_u32(sHST, sHST, HB_P); st.s_add_u32(sFHST, sFHST, 64 * 512)

def p4(st):
    ACC, AF, HI = 16, 32, 80
    aP = v(124)
    st.v_lshlrev_b32(vV, 2, vL)
    st.v_bfe_u32(vT, vL, 4, 1); st.v_cmp_eq_u32("vcc", 0, vT)
    st.v_min_u32(vU, 20, vFL); st.v_add_u32(vU, 64, vU); st.v_cndmask_b32(aP, vU, vFL, "vcc"); st.v_add_u32(aP, 256, aP)
    stamp(st, 13)
    poll(st, [vV], sFHLD)
    stamp(st, 14)
    st.s_mov_b32(sT0, sHLD)
    for q in range(8):
        for i in range(4):
            st.buffer_load_dwordx4(v(XF + 16 * q + 4 * i, 4), vL16, WS, sT0, mods=f"offen offset:{1024*i} {SCL}")
        st.s_add_u32(sT0, sT0, 4096)
    def late(st):
        stamp(st, 15)
        poll(st, [aP], sFHLD)
        stamp(st, 16)
        st.s_add_u32(sT0, sHLD, 32768)
        for k in range(11):
            st.buffer_load_dwordx4(v(HI + 4 * k, 4), vL16, WS, sT0, mods=f"offen offset:{1024*(k%4)} {SCL}")
            if k % 4 == 3: st.s_add_u32(sT0, sT0, 4096)
        st.s_add_u32(sHLD, sHLD, HB_P); st.s_add_u32(sFHLD, sFHLD, 64 * 512)
    breg = lambda k: XF + 4 * k if k < 32 else HI + 4 * (k - 32)
    gemm(st, small_items(43, breg, ACC), AF, 12, 11, pre_bar=4, hooks={int(OPT.get("late", 64)): late})
    ring_next(st)
    stamp(st, 17)
    xepi(st, ACC, True)

def compute(st):
    stamp(st, 0)
    p0(st)
    stop = OPT["stop"]
    if stop == "p0": st.s_branch(".Lend"); return
    st.wait(vm=0, lgkm=0)
    st.label(".Lpair"); st.mark("reset")
    p1(st)
    if stop == "p1": st.s_branch(".Lend"); return
    p2(st)
    if stop == "p2": st.s_branch(".Lend"); return
    p3(st)
    if stop == "p3": st.s_branch(".Lend"); return
    p4(st)
    stamp(st, 18)
    st.s_or_b32(sT0, s(2), sW); st.s_cmp_lg_u32(sT0, 0); st.s_cbranch_scc1(".Lend")
    st.buffer_store_dword(vNON, "off", WS, 0, mods=f"offset:{EPOCH} sc1")
    st.s_branch(".Lend")

sU, sB1, sB2, sSCR = s(74), s(75), s(76), s(77)
sKV, sQ, sWO, sG01, sG, sWD, sW8 = [s(78 + i) for i in range(7)]

def prep_common_dma(st, srd, stride, n, lds_off, soff):
    for i in range(n):
        st.s_add_u32("m0", sSCR, lds_off + 1024 * i)
        st.buffer_load_dwordx4(v(16), srd, soff, mods="offen lds")
        if i < n - 1: st.s_add_u32(soff, soff, 8 * stride)

def prep(st):
    F = 32
    ACC = 64
    a = v(17)
    st.s_lshl_b32(sU, sM, 8); st.s_add_u32(sU, sU, s(2))
    st.s_lshl_b32(sSCR, sM, 13); st.s_add_u32(sSCR, sSCR, 3 * 32768)
    for i in range(4): st.v_mov_b32(v(20 + i), 0x3f803f80)
    st.v_lshrrev_b32(v(18), 3, vL); st.v_and_b32(v(19), 7, vL); st.v_lshlrev_b32(v(19), 4, v(19))
    st.mark("save", "prep")
    st.s_cmp_lt_u32(sU, 192); st.s_cbranch_scc1(".Lu_qkv")
    st.s_cmp_lt_u32(sU, 256); st.s_cbranch_scc1(".Lu_wo")
    st.s_cmp_lt_u32(sU, 608); st.s_cbranch_scc1(".Lu_gu")
    st.s_cmp_lt_u32(sU, 784); st.s_cbranch_scc1(".Lu_wd")
    get_nonce(st)
    st.s_branch(".Lu_done")
    rr = lambda: None
    def cs_store(acc, soff):
        for i in range(4):
            st.buffer_store_dwordx4(v(acc + 4 * i, 4), v(24), WS, soff, mods=f"offen offset:{16*i} sc1")
    def cs_addr():
        st.v_and_b32(vT, 31, vL); st.v_cmp_eq_u32("vcc", 0, vT)
        st.v_lshlrev_b32(v(24), 1, vL); st.v_mov_b32(vT, 0x80000000); st.v_cndmask_b32(v(24), vT, v(24), "vcc")
    def finish():
        get_nonce(st)
        st.s_lshl_b32(sT0, sU, 2); st.s_add_u32(sT0, sT0, FPREP)
        st.wait(vm=0)
        st.buffer_store_dword(vNON, "off", WS, sT0, mods="sc1")
        st.s_branch(".Lu_done")
    st.label(".Lu_qkv"); st.mark("restore", "prep")
    st.s_lshr_b32(sB1, sU, 3); st.s_and_b32(sB2, sU, 7)
    st.v_mul_u32_u24(v(16), 3072, v(18)); st.v_add_u32(v(16), v(16), v(19))
    st.s_mul_i32(sT0, sB2, 64 * 3072); st.s_lshl_b32(sT1, sB1, 7); st.s_add_u32(sT0, sT0, sT1)
    prep_common_dma(st, WQ, 3072, 8, 0, sT0)
    st.v_lshrrev_b32(vT, 5, vL); st.v_lshlrev_b32(vT, 3, vT); st.v_bfe_u32(vU, vL, 2, 2); st.v_add_u32(vT, vT, vU)
    st.v_lshlrev_b32(a, 7, vT)
    st.v_and_b32(vT, 1, vL); st.v_lshl_add_u32(a, vT, 5, a)
    st.v_bfe_u32(vT, vL, 1, 1); st.v_lshl_add_u32(a, vT, 3, a)
    st.v_bfe_u32(vT, vL, 4, 1); st.v_lshl_add_u32(a, vT, 4, a)
    st.v_add_u32(a, sSCR, a)
    cs_addr()
    st.s_lshr_b32(sT0, sB1, 3); st.s_add_u32(sT0, sT0, 2); st.s_cmp_ge_u32(sT0, 3); st.s_cselect_b32(sT1, 3, 0); st.s_sub_u32(sT0, sT0, sT1)
    st.s_and_b32(sT1, sB1, 7); st.s_lshl_b32(sT1, sT1, 1)
    st.s_mul_i32(sT2, sT1, 96 * KB); st.s_lshl_b32(sT3, sT0, 15); st.s_add_u32(sT2, sT2, sT3)
    st.s_lshl_b32(sT3, sB2, 12); st.s_add_u32(sT2, sT2, sT3); st.s_add_u32(sT2, sT2, WQKV_S)
    st.s_mul_i32(sT1, sT1, 384); st.s_lshl_b32(sT0, sT0, 7); st.s_add_u32(sT1, sT1, sT0)
    st.s_mul_i32(sT0, sB2, 6144); st.s_add_u32(sT1, sT1, sT0); st.s_add_u32(sT1, sT1, CSP_QKV)
    st.wait(vm=0)
    for tt in range(2):
        for ss in range(4):
            for u in range(2):
                st.ds_read_b64_tr_b16(v(F + 16 * tt + 4 * ss + 2 * u, 2), a, mods=f"offset:{ss*2048+u*512+tt*64}")
    for tt in range(2):
        for ss in range(4):
            fr = v(F + 16 * tt + 4 * ss, 4)
            st.buffer_store_dwordx4(fr, vL16, WS, sT2, mods=f"offen offset:{1024*ss} sc1")
            st.v_mfma_f32_32x32x16_bf16(v(ACC + 16 * tt, 16), fr, v(20, 4), "0" if ss == 0 else v(ACC + 16 * tt, 16))
        if tt == 0: st.s_add_u32(sT2, sT2, 96 * KB)
    cs_store(ACC, sT1); st.s_add_u32(sT1, sT1, 384); cs_store(ACC + 16, sT1)
    finish()
    st.label(".Lu_gu"); st.mark("restore", "prep")
    st.s_sub_u32(sT0, sU, 256); st.s_lshr_b32(sB1, sT0, 4); st.s_and_b32(sB2, sT0, 15)
    st.v_mul_u32_u24(v(16), 2752, v(18)); st.v_add_u32(v(16), v(16), v(19))
    st.s_cmp_eq_u32(sB1, 21); st.s_cselect_b32(sT1, 64, 128)
    st.v_cmp_gt_u32("vcc", sT1, v(19)); st.v_mov_b32(vT, 0x80000000); st.v_cndmask_b32(v(16), vT, v(16), "vcc")
    st.s_mul_i32(sT0, sB2, 32 * 2752); st.s_lshl_b32(sT1, sB1, 7); st.s_add_u32(sT0, sT0, sT1); st.s_mov_b32(sT2, sT0)
    prep_common_dma(st, WG, 2752, 4, 0, sT0)
    prep_common_dma(st, WU, 2752, 4, 4096, sT2)
    st.v_lshrrev_b32(vT, 5, vL); st.v_lshlrev_b32(vT, 3, vT); st.v_bfe_u32(vU, vL, 2, 2); st.v_add_u32(vT, vT, vU)
    st.v_lshlrev_b32(a, 7, vT)
    st.v_and_b32(vT, 1, vL); st.v_lshl_add_u32(a, vT, 4, a)
    st.v_bfe_u32(vT, vL, 1, 1); st.v_lshl_add_u32(a, vT, 3, a)
    st.v_bfe_u32(vT, vL, 4, 1); st.v_lshl_add_u32(a, vT, 12, a)
    st.v_add_u32(a, sSCR, a)
    cs_addr()
    st.s_lshl_b32(sT2, sB1, 17); st.s_lshl_b32(sT3, sB2, 11); st.s_add_u32(sT2, sT2, sT3); st.s_add_u32(sT2, sT2, WGU_S)
    st.s_lshl_b32(sT1, sB1, 9); st.s_mul_i32(sT0, sB2, 96 * 128); st.s_add_u32(sT1, sT1, sT0); st.s_add_u32(sT1, sT1, CSP_GU)
    st.wait(vm=0)
    for tt in range(4):
        for ss in range(2):
            for u in range(2):
                st.ds_read_b64_tr_b16(v(F + 8 * tt + 4 * ss + 2 * u, 2), a, mods=f"offset:{ss*2048+u*512+tt*32}")
    for tt in range(4):
        for ss in range(2):
            fr = v(F + 8 * tt + 4 * ss, 4)
            st.buffer_store_dwordx4(fr, vL16, WS, sT2, mods=f"offen offset:{1024*ss} sc1")
            st.v_mfma_f32_32x32x16_bf16(v(ACC + 16 * tt, 16), fr, v(20, 4), "0" if ss == 0 else v(ACC + 16 * tt, 16))
        if tt < 3: st.s_add_u32(sT2, sT2, 32 * KB)
    for tt in range(4):
        cs_store(ACC + 16 * tt, sT1)
        if tt < 3: st.s_add_u32(sT1, sT1, 128)
    finish()
    def small(lab, srd, isd):
        st.label(lab); st.mark("restore", "prep")
        if isd:
            st.s_sub_u32(sT0, sU, 608); st.s_lshr_b32(sB2, sT0, 3); st.s_and_b32(sB1, sT0, 7)
        else:
            st.s_sub_u32(sT0, sU, 192); st.s_lshr_b32(sB1, sT0, 3); st.s_and_b32(sB2, sT0, 7)
        st.v_lshl_add_u32(v(16), v(18), 10, v(19))
        st.s_lshl_b32(sT0, sB2, 16); st.s_lshl_b32(sT1, sB1, 7); st.s_add_u32(sT0, sT0, sT1)
        prep_common_dma(st, srd, 1024, 4, 0, sT0)
        LS = newlab("half")
        if isd:
            st.s_cmp_eq_u32(sB2, 21); st.s_cbranch_scc1(LS)
        st.s_add_u32(sT0, sT0, 8192)
        prep_common_dma(st, srd, 1024, 4, 4096, sT0)
        if isd: st.label(LS)
        st.v_lshrrev_b32(vT, 4, vL); st.v_lshlrev_b32(vT, 3, vT); st.v_bfe_u32(vU, vL, 2, 2); st.v_add_u32(vT, vT, vU)
        st.v_lshlrev_b32(a, 7, vT); st.v_and_b32(vT, 3, vL); st.v_lshl_add_u32(a, vT, 4, a); st.v_add_u32(a, sSCR, a)
        st.s_mul_i32(sT2, sB1, WD_CG if isd else 64 * KB); st.s_lshl_b32(sT3, sB2, 13); st.s_add_u32(sT2, sT2, sT3)
        st.s_add_u32(sT2, sT2, WD_S if isd else WO_S)
        st.wait(vm=0)
        for ss in range(2):
            for t in range(4):
                for u in range(2):
                    st.ds_read_b64_tr_b16(v(F + 16 * ss + 4 * t + 2 * u, 2), a, mods=f"offset:{ss*4096+u*512+(t>>1)*64+(t&1)*8}")
        for t in range(4): st.buffer_store_dwordx4(v(F + 4 * t, 4), vL16, WS, sT2, mods=f"offen offset:{1024*t} sc1")
        LS2 = newlab("half")
        if isd:
            st.wait(lgkm=0)
            st.s_cmp_eq_u32(sB2, 21); st.s_cbranch_scc1(LS2)
        st.s_add_u32(sT2, sT2, 4096)
        for t in range(4): st.buffer_store_dwordx4(v(F + 16 + 4 * t, 4), vL16, WS, sT2, mods=f"offen offset:{1024*t} sc1")
        if isd: st.label(LS2)
        finish()
    small(".Lu_wo", WO_, False)
    small(".Lu_wd", WD, True)
    st.label(".Lu_done"); st.mark("reset")

def loader(st):
    st.label(".Lloader"); st.mark("reset")
    st.wait(lgkm=0)
    st.l.append(Ins("buffer_load_dword", [vNON, "off", WS, "0"], f"offset:{EPOCH} sc1"))
    prep(st)
    stamp(st, 1)
    st.s_lshl_b32(sW8, sM, 13)
    st.s_lshr_b32(sT0, sM, 1); st.s_and_b32(sT1, sM, 1); st.s_lshl_b32(sT1, sT1, 13)
    st.s_mul_i32(sQ, sJ, 96 * KB); st.s_add_u32(sQ, sQ, WQKV_S)
    st.s_lshl_b32(sT2, sT0, 15); st.s_add_u32(sKV, sQ, sT2); st.s_add_u32(sKV, sKV, sT1)
    st.s_add_u32(sQ, sQ, sW8); st.s_add_u32(sQ, sQ, 64 * KB)
    st.s_lshl_b32(sWO, sCG, 16); st.s_add_u32(sWO, sWO, sW8); st.s_add_u32(sWO, sWO, WO_S)
    st.s_lshl_b32(sG, sJ, 15); st.s_add_u32(sG, sG, WGU_S)
    st.s_lshl_b32(sT2, sT0, 19); st.s_add_u32(sG01, sG, sT2); st.s_add_u32(sG01, sG01, sT1)
    st.s_add_u32(sG, sG, sW8)
    st.s_mul_i32(sWD, sCG, WD_CG); st.s_add_u32(sWD, sWD, sW8); st.s_add_u32(sWD, sWD, WD_S)
    st.s_mov_b32(sT3, FPREP)
    st.v_bfe_u32(vV, vL, 3, 2); st.v_min_u32(vV, 2, vV); st.v_lshlrev_b32(vV, 8, vV)
    st.v_and_b32(vU, 7, vL); st.v_lshl_add_u32(vV, vU, 2, vV)
    st.s_lshr_b32(sT0, sJ, 1); st.s_lshl_b32(sT0, sT0, 5); st.s_add_u32(sT0, sT0, FPREP)
    poll(st, [vV], sT0)
    stamp(st, 2)
    st.v_min_u32(v(16), 23 * 16, vL16)
    st.s_mul_i32(sT0, sJ, 384); st.s_add_u32(sT0, sT0, CSP_QKV)
    for kb in range(8):
        st.buffer_load_dwordx4(v(32 + 4 * kb, 4), v(16), WS, sT0, mods="offen sc1")
        if kb < 7: st.s_add_u32(sT0, sT0, 6144)
    st.s_cmp_eq_u32(sT6, 0); st.s_cbranch_scc1(".Lld5")
    st.mark("save", "ld")
    for T in (6, 5):
        if T == 5: st.label(".Lld5"); st.mark("restore", "ld")
        chunks = []
        for pair in range(2):
            chunks += [(sKV, 0, 8), (sKV, 16 * KB, 8), (sQ, 0, 8), (sWO, 0, 8), (sWO, 32 * KB, 8), (sG01, 0, 8), (sG01, 16 * KB, 8)]
            chunks += [(sG, 16 * r * 32 * KB, 8) for r in range(2, T)]
            chunks += [(sWD, 32 * KB * r, 8) for r in range(5)] + [(sWD, 160 * KB, 3)]
        N = len(chunks)
        def issue(n):
            base, off, cnt = chunks[n]
            slot = (n % 4) * 32768
            if cnt == 3:
                st.s_mul_i32(sT1, sM, 3072); st.s_sub_u32(sT0, base, sW8); st.s_add_u32(sT0, sT0, sT1); st.s_add_u32(sT0, sT0, off)
                st.s_add_u32("m0", sT1, slot)
                for i in range(3):
                    st.buffer_load_dwordx4(vL16, WS, sT0, mods=f"offen offset:{1024*i} {SCL} lds", tset=f"c{n}" if i == 2 else None)
                return
            for hh in range(2):
                st.s_add_u32(sT0, base, off + 4096 * hh)
                st.s_add_u32("m0", sW8, slot + 4096 * hh)
                for i in range(4):
                    st.buffer_load_dwordx4(vL16, WS, sT0, mods=f"offen offset:{1024*i} {SCL} lds", tset=f"c{n}" if (hh, i) == (1, 3) else None)
        def bar(n):
            st.l.append(Ins("s_barrier", [], tneed=f"c{n}"))
        for n in range(3): issue(n)
        for kb in range(1, 8):
            for i in range(4): st.v_add_f32(v(32 + i), v(32 + i), v(32 + 4 * kb + i))
        st.v_add_u32(v(16), L_CS, v(16))
        st.ds_write_b128(v(16), v(32, 4))
        st.wait(lgkm=0)
        for n in range(N):
            bar(n)
            k = n + 3
            if k >= N: continue
            if k == 3:
                st.v_and_b32(vV, 7, vL); st.v_lshlrev_b32(vV, 2, vV)
                st.s_lshl_b32(sT0, sCG, 5); st.s_add_u32(sT0, sT0, FPREP + 192 * 4)
                poll(st, [vV], sT0)
            if k == 5:
                st.v_lshrrev_b32(vV, 4, vL); st.v_lshlrev_b32(vV, 8, vV); st.v_add_u32(vV, vV, vFL)
                st.v_bfe_u32(v(16), vL, 4, 1); st.v_add_u32(v(16), 4, v(16)); st.v_min_u32(v(16), T - 1, v(16))
                st.v_lshlrev_b32(v(16), 8, v(16)); st.v_add_u32(v(16), v(16), vFL)
                st.s_lshr_b32(sT0, sJ, 2); st.s_lshl_b32(sT0, sT0, 6); st.s_add_u32(sT0, sT0, FPREP + 256 * 4)
                poll(st, [vV, v(16)], sT0)
                st.v_lshrrev_b32(vV, 3, vL); st.v_min_u32(vV, T - 1, vV)
                st.v_and_b32(vU, 7, vL); st.v_lshlrev_b32(vU, 4, vU)
                st.v_lshl_add_u32(v(16), vV, 11, vU); st.v_lshl_add_u32(v(17), vV, 7, vU); st.v_add_u32(v(17), L_CS + 384, v(17))
                st.s_lshl_b32(sT0, sJ, 7); st.s_add_u32(sT0, sT0, CSP_GU)
                for kb in range(16):
                    st.buffer_load_dwordx4(v(32 + 4 * kb, 4), v(16), WS, sT0, mods="offen sc1")
                    if kb < 15: st.s_add_u32(sT0, sT0, 96 * 128)
                issue(k)
                for kb in range(1, 16):
                    for i in range(4): st.v_add_f32(v(32 + i), v(32 + i), v(32 + 4 * kb + i))
                st.ds_write_b128(v(17), v(32, 4))
                st.wait(lgkm=0)
                continue
            if k == 5 + T:
                st.v_and_b32(vV, 31, vL); st.v_min_u32(vV, 21, vV); st.v_lshlrev_b32(vV, 5, vV)
                st.s_lshl_b32(sT0, sCG, 2); st.s_add_u32(sT0, sT0, FPREP + 608 * 4)
                poll(st, [vV], sT0)
            issue(k)
        st.s_branch(".Lend")

def main():
    st = Stream()
    entry(st)
    compute(st)
    loader(st)
    st.label(".Lend")
    st.s_endpgm()
    body = finalize(st)
    ref = open(f"cdna_kernels/{NAME}.s.ref").read().split("\n")
    head = [l for l in ref if l.startswith(";") and "@launch" not in l]
    out = "\n".join(head) + f"\n; @launch grid=(256,1,1) block=(512,1,1) lds={LDS_BYTES}\n"
    out += '.amdgcn_target "amdgcn-amd-amdhsa--gfx950"\n' + khead(NAME + "_kernel") + body + kd(NAME + "_kernel")
    path = sys.argv[1] if len(sys.argv) > 1 else f"cdna_kernels/{NAME}.s"
    open(path, "w").write(out)
    n = sum(1 for l in body.split("\n") if l.startswith("    ") and not l.strip().startswith(";"))
    print("wrote", path, "instructions:", n)

main()
```

```python
import re

def v(i, n=1):
    return f"v{i}" if n == 1 else f"v[{i}:{i+n-1}]"
def s(i, n=1):
    return f"s{i}" if n == 1 else f"s[{i}:{i+n-1}]"

_REG = re.compile(r"^(-|abs\()?([vs])(?:(\d+)|\[(\d+):(\d+)\])\)?$")
def regs_of(opnd):
    o = opnd.strip()
    if o == "vcc": return {("s", 106), ("s", 107)}
    if o == "exec": return {("s", 126), ("s", 127)}
    if o == "m0": return {("s", 124)}
    m = _REG.match(o)
    if not m: return set()
    k = m.group(2)
    if m.group(3) is not None: return {(k, int(m.group(3)))}
    return {(k, i) for i in range(int(m.group(4)), int(m.group(5)) + 1)}

TRANS = ("v_exp_f32", "v_log_f32", "v_rcp_f32", "v_rsq_f32", "v_sqrt_f32", "v_sin_f32", "v_cos_f32")

class Ins:
    __slots__ = ("name", "ops", "mods", "kind", "dst", "src", "passes", "srcC", "srcAB", "raw", "wide_store", "comment")
    def __init__(self, name, ops=(), mods="", raw=None, comment="", tset=None, tneed=None):
        self._init(name, ops, mods, raw, comment)
        if tset: self.dst = self.dst | {("t", tset)}
        if tneed:
            for x in (tneed if isinstance(tneed, (list, tuple)) else [tneed]): self.src = self.src | {("t", x)}
    def _init(self, name, ops=(), mods="", raw=None, comment=""):
        self.name, self.ops, self.mods, self.raw, self.comment = name, list(ops), mods, raw, comment
        self.dst, self.src = set(), set()
        self.passes = 0; self.srcC = set(); self.srcAB = set(); self.wide_store = False
        n = name
        R = [regs_of(o) for o in self.ops]
        allr = lambda l: set().union(*l) if l else set()
        if raw is not None:
            self.kind = "raw"
        elif n.startswith("v_mfma"):
            self.kind = "mfma"; self.dst = R[0]; self.srcAB = R[1] | R[2]; self.srcC = R[3]
            self.src = self.srcAB | self.srcC
            self.passes = 8 if "32x32x16" in n else 4 if "16x16x32" in n else None
            assert self.passes
        elif n.startswith("v_"):
            self.kind = "valu"
            if n.startswith("v_permlane"):
                self.dst = R[0] | R[1]; self.src = R[0] | R[1]
            elif n.startswith("v_cmp"):
                self.dst = R[0]; self.src = allr(R[1:])
            elif n.startswith(("v_fmac", "v_pk_fmac", "v_dot2c")):
                self.dst = R[0]; self.src = allr(R)
            else:
                self.dst = R[0]; self.src = allr(R[1:])
        elif n.startswith("ds_read") or n.startswith("ds_bpermute") or n.startswith("ds_swizzle"):
            self.kind = "ds"; self.dst = R[0]; self.src = allr(R[1:])
        elif n.startswith("ds_"):
            self.kind = "ds"; self.src = allr(R)
        elif n.startswith(("buffer_load", "global_load")):
            self.kind = "vmem"
            if " lds" in (" " + mods) or "_lds_" in n:
                self.src = allr(R) | {("s", 124)}
            else:
                self.dst = R[0]; self.src = allr(R[1:])
                if "d16" in n: self.src |= R[0]
        elif n.startswith(("buffer_store", "global_store")):
            self.kind = "vmem"; self.src = allr(R)
            self.wide_store = n.endswith("x4") or n.endswith("x3")
        elif n.startswith(("buffer_atomic", "global_atomic")):
            self.kind = "vmem"; self.src = allr(R)
            if "sc0" in mods: self.dst = R[0]
        elif n.startswith("s_load") or n.startswith("s_memtime") or n.startswith("s_memrealtime"):
            self.kind = "smem"; self.dst = R[0]; self.src = allr(R[1:])
        elif n in ("s_waitcnt", "s_nop", "s_barrier", "s_endpgm", "s_sleep", "s_setprio") or n.startswith("s_cbranch") or n == "s_branch":
            self.kind = "ctl"
        elif n.startswith("s_cmp") or n.startswith("s_bitcmp"):
            self.kind = "salu"; self.src = allr(R)
        elif n.startswith("s_"):
            self.kind = "salu"; self.dst = R[0]; self.src = allr(R[1:])
            if n in ("s_addk_i32", "s_mulk_i32"): self.src |= R[0]
            if "saveexec" in n: self.dst |= regs_of("exec")
        else:
            raise ValueError("unknown instr " + n)
    def text(self):
        if self.raw is not None: return self.raw
        t = "    " + self.name
        if self.ops: t += " " + ", ".join(self.ops)
        if self.mods: t += " " + self.mods
        if self.comment: t += "    ; " + self.comment
        return t

class Stream:
    def __init__(self): self.l = []
    def op(self, name, *ops, mods="", c="", tset=None, tneed=None):
        self.l.append(Ins(name, [str(o) for o in ops], mods, comment=c, tset=tset, tneed=tneed)); return self
    def __getattr__(self, name):
        if name.startswith(("v_", "s_", "ds_", "buffer_", "global_")):
            return lambda *ops, mods="", c="", tset=None, tneed=None: self.op(name, *ops, mods=mods, c=c, tset=tset, tneed=tneed)
        raise AttributeError(name)
    def raw(self, text): self.l.append(Ins("raw", raw=text)); return self
    def label(self, name): return self.raw(name + ":")
    def cmt(self, t): return self.raw("    ; " + t)
    def wait(self, vm=None, lgkm=None):
        p = []
        if vm is not None: p.append(f"vmcnt({vm})")
        if lgkm is not None: p.append(f"lgkmcnt({lgkm})")
        i = Ins("s_waitcnt", [" ".join(p)]); self.l.append(i); return self
    def mark(self, what, *args): self.l.append(Ins("raw", raw=f"    ;@{what} " + " ".join(map(str, args)))); return self
    def extend(self, other): self.l.extend(other.l if isinstance(other, Stream) else other); return self

def interleave(main, filler, per_gap, start=0):
    out = Stream(); f = list(filler.l); k = 0; nm = 0
    for ins in main.l:
        out.l.append(ins)
        if ins.kind == "mfma":
            nm += 1
            if nm > start:
                budget = per_gap if not callable(per_gap) else per_gap(nm)
                while k < len(f) and budget > 0:
                    cost = 2 if f[k].name in TRANS else (0 if f[k].kind == "raw" else 1)
                    out.l.append(f[k]); budget -= cost; k += 1
    out.l.extend(f[k:])
    return out

def cost(i):
    if i.kind == "raw": return 0
    if i.name in TRANS: return 8
    if i.name.startswith("v_dot2"): return 8
    if i.kind == "mfma": return 8
    if i.kind == "vmem": return 8
    if i.kind == "salu" or i.name == "s_waitcnt": return 2
    return 4

class Filler:
    def __init__(self): self.q = []
    def add(self, st): self.q.extend(st.l)
    def take(self, out, budget):
        while self.q and budget > 0:
            i = self.q[0]
            c = cost(i)
            if c > budget and budget < 4: break
            out.l.append(self.q.pop(0)); budget -= c
    def flush(self, out):
        out.l.extend(self.q); self.q = []
    def drain_until(self, out, stream):
        if stream is None: return
        ids = {id(i) for i in stream.l}
        last = max((k for k, i in enumerate(self.q) if id(i) in ids), default=-1)
        out.l.extend(self.q[:last + 1]); self.q = self.q[last + 1:]

VM_MAX, LGKM_MAX = 63, 15

def finalize(stream, verbose=False):
    out = []
    vm, lg = {}, {}
    smem_pending = set()
    saved = {}
    hist = []
    def age(n):
        for h in hist: h[1] += n
        while hist and hist[0][1] > 24: hist.pop(0)
    def emit(i, states=1):
        out.append(i)
        if i.kind != "raw":
            age(states); hist.append([i, 0])
    def do_wait(vmn, lgn):
        nonlocal vm, lg
        p = []
        if vmn is not None: p.append(f"vmcnt({vmn})"); vm = {r: c for r, c in vm.items() if c < vmn}
        if lgn is not None:
            p.append(f"lgkmcnt({lgn})"); lg = {r: c for r, c in lg.items() if c < lgn}
            if lgn == 0: smem_pending.clear()
        emit(Ins("s_waitcnt", [" ".join(p)]))
    for ins in stream.l:
        if ins.kind == "raw":
            t = ins.raw.strip()
            if t.startswith(";@save"): saved[t.split()[1]] = (dict(vm), dict(lg), [list(h) for h in hist])
            elif t.startswith(";@merge"):
                a, b, hh = saved[t.split()[1]]
                for r, c in a.items(): vm[r] = min(vm.get(r, 999), c)
                for r, c in b.items(): lg[r] = min(lg.get(r, 999), c)
                hist[:0] = [[h[0], h[1] + 1] for h in hh]
                hist.sort(key=lambda h: -h[1])
            elif t.startswith(";@restore"):
                a, b, hh = saved[t.split()[1]]
                vm, lg = dict(a), dict(b); hist[:] = [[h[0], h[1] + 1] for h in hh]
            elif t.startswith(";@reset"):
                vm, lg = {}, {}; smem_pending.clear(); hist.clear()
            out.append(ins); continue
        if ins.name == "s_waitcnt":
            t = ins.ops[0]
            m1 = re.search(r"vmcnt\((\d+)\)", t); m2 = re.search(r"lgkmcnt\((\d+)\)", t)
            do_wait(int(m1.group(1)) if m1 else None, int(m2.group(1)) if m2 else None)
            continue
        if ins.name == "s_nop" and not ins.src:
            emit(ins, int(ins.ops[0]) + 1); continue
        touched = ins.src | ins.dst
        need_vm = min([vm[r] for r in touched if r in vm], default=None)
        need_lg = min([lg[r] for r in touched if r in lg], default=None)
        if touched & smem_pending: need_lg = 0
        if need_vm is not None or need_lg is not None:
            do_wait(None if need_vm is None else min(need_vm, VM_MAX), None if need_lg is None else min(need_lg, LGKM_MAX))
        need = 0
        for p, d in hist:
            req = 0
            vsrc = {r for r in ins.src if r[0] == "v"}
            if p.kind == "mfma":
                big = p.passes == 8
                if ins.kind == "mfma":
                    if p.dst & ins.srcAB: req = max(req, 12 if big else 8)
                    if p.dst & ins.srcC and not (p.dst == ins.srcC and p.passes == ins.passes): req = max(req, 10 if big else 6)
                    if p.dst & ins.dst and not (p.dst == ins.srcC and p.passes == ins.passes): req = max(req, 10 if big else 6)
                elif ins.kind in ("valu", "vmem", "ds"):
                    if p.dst & touched: req = max(req, 12 if big else 8)
                    if ins.kind == "valu" and (p.srcC & ins.dst): req = max(req, 7 if big else 3)
            elif p.kind == "valu":
                pv = {r for r in p.dst if r[0] == "v"}; ps = {r for r in p.dst if r[0] == "s"}
                if ins.kind == "mfma" and pv & ins.src: req = max(req, 2)
                if p.name.startswith("v_dot") and pv & touched:
                    same_c = ins.name == p.name and len(ins.ops) == 4 and not (pv & (regs_of(ins.ops[1]) | regs_of(ins.ops[2])))
                    if not same_c: req = max(req, 3)
                if ins.name.startswith("v_permlane") and pv & ins.src: req = max(req, 2)
                if ins.name.startswith(("v_readfirstlane", "v_readlane")) and pv & ins.src: req = max(req, 1)
                if "dpp" in ins.mods or "row_" in ins.mods or "quad_perm" in ins.mods:
                    if pv & ins.src: req = max(req, 2)
                if p.name in TRANS and ins.kind == "valu" and ins.name not in TRANS and pv & ins.src: req = max(req, 1)
                if p.name in TRANS and ins.kind != "valu" and pv & ins.src: req = max(req, 1)
                if ps & ins.src:
                    if ins.kind == "vmem": req = max(req, 5)
                    elif ins.kind == "valu": req = max(req, 2)
                    elif ins.kind in ("salu", "smem"): req = max(req, 1)
                if ("op_sel" in p.mods or "sdwa" in p.mods) and ins.kind == "valu" and pv & touched and not p.name.startswith("v_pk_"): req = max(req, 1)
            elif p.kind == "vmem" and p.wide_store:
                data = regs_of(p.ops[0]) if p.name.startswith("buffer") else regs_of(p.ops[1])
                if data & ins.dst: req = max(req, 2 if ins.kind in ("valu", "mfma") else 1)
            elif p.kind == "salu":
                if ("s", 124) in p.dst and ("s", 124) in ins.src and ins.kind in ("vmem", "ds"): req = max(req, 1)
                if regs_of("exec") & p.dst and ins.kind == "mfma": req = max(req, 0)
            need = max(need, req - d)
        while need > 0:
            k = min(need, 16); emit(Ins("s_nop", [str(k - 1)]), k); need -= k
        if ins.kind == "vmem":
            for r in vm: vm[r] += 1
            for r in ins.dst: vm[r] = 0
        elif ins.kind == "ds":
            for r in lg: lg[r] += 1
            for r in ins.dst: lg[r] = 0
        elif ins.kind == "smem":
            smem_pending |= ins.dst
            for r in lg: lg[r] = 0
        emit(ins)
    return "\n".join(i.text() for i in out) + "\n"

def kd(name, vgpr=256, sgpr=102):
    acc = (vgpr + 3) // 4 * 4
    return f""".section .rodata,"a"
.p2align 6
.amdhsa_kernel {name}
  .amdhsa_next_free_vgpr {vgpr}
  .amdhsa_next_free_sgpr {sgpr}
  .amdhsa_accum_offset {acc}
  .amdhsa_group_segment_fixed_size 0
  .amdhsa_kernarg_size 88
  .amdhsa_user_sgpr_count 2
  .amdhsa_user_sgpr_kernarg_segment_ptr 1
  .amdhsa_system_sgpr_workgroup_id_x 1
.end_amdhsa_kernel
"""
def khead(name):
    return f""".text
.globl {name}
.p2align 8
.type {name},@function
{name}:
"""
```

```python
KB = 1024; MB = 1 << 20
EPOCH   = 0
XCCT    = 4096
FX      = 64 * KB
FO      = FX + 4 * 64 * 256
FH      = FO + 2 * 64 * 256
FKV     = FH + 2 * 64 * 512
DUMMY   = FKV + 2 * 256 * 128
XB      = 1 * MB
ST      = XB + 8 * MB
ST_I    = 256 * KB
OB      = ST + 4 * ST_I
HB_TB   = 86 * KB
HB_P    = 64 * HB_TB
HB      = OB + 4 * MB
KV_REC  = 4608
KV_J    = 16 * KV_REC
KV_P    = 16 * KV_J
KVP     = HB + 2 * HB_P
WS_END  = KVP + 2 * KV_P
STAMP   = (WS_END + 4095) // 4096 * 4096
WS_SIZE = 268435456
assert DUMMY + 128 * KB <= XB
assert STAMP + MB < 64 * MB
RING    = 0
L_PH    = 131072
L_VB    = L_PH + 128 * 144
L_KVB   = L_VB + 128 * 80
L_CS    = L_KVB + 4 * 576
L_END   = L_CS + 9 * 128
assert L_END <= 163840, L_END
LDS_BYTES = 163840
def fstart(j): return 6 * j if j < 6 else 5 * j + 6
```

```python
import sys, os, math, struct, json
sys.path.insert(0, os.path.dirname(os.path.abspath(__file__)))
from asmlib import *
from layout import *

NAME = "interleave_layers__linear_kernel_hedgehog__geglu_ffn__prompt"
OPT = dict(stop=None, stamps=False, sc="sc1")
for a in sys.argv[2:]:
    k, _, val = a.partition("=")
    OPT[k] = val if val != "" else True
def oi(k, d): return int(OPT.get(k, d))
SC = OPT["sc"] if OPT["sc"] != "none" else ""
SCL = "sc1"
def f2u(x): return "0x%08x" % struct.unpack("<I", struct.pack("<f", x))[0]
LOG2E = 1.4426950408889634

WS, X_, OUT, WQ, WP, WO_, WG, WU, WD, DBG = [s(4 + 4 * i, 4) for i in range(10)]
sC, sJ, sHF, sCG, sM, sNONCE, sCNT, sPAIR = [s(66 + i) for i in range(8)]
sW = s(3)
sXLD, sSTLD, sFXLD, sXST, sSTST, sFXST = [s(74 + i) for i in range(6)]
sOLD, sOST, sFOLD, sFOST = [s(80 + i) for i in range(4)]
sHLD, sHST, sFHLD, sFHST = [s(84 + i) for i in range(4)]
sKVST, sKVLD, sFKVST, sFKVLD = [s(88 + i) for i in range(4)]
sT0, sT1, sT2, sT3 = [s(92 + i) for i in range(4)]
sL2E, sONE, sOUTO, sT6 = s(96), s(97), s(98), s(99)
sSTMP = s(100, 2)
sRING, sKH, sTP, sDUM, sLD = s(44), s(45), s(46), s(47), s(48)
vL, vL16, vA0, vFL = v(0), v(1), v(2), v(3)
RES = 4
vNON = v(12); vT = v(13); vU = v(14); vV = v(15)
vA1, vP0, vP1 = v(121), v(122), v(123)
XF = 128

lab_n = [0]
def newlab(p):
    lab_n[0] += 1
    return f".L{p}_{lab_n[0]}"

def poll(st, addr, soff):
    L = newlab("poll"); D = newlab("pdone")
    st.label(L)
    st.buffer_load_dword(vT, addr, WS, soff, mods="offen sc1")
    st.wait(vm=0)
    st.v_cmp_ne_u32("vcc", sNONCE, vT)
    st.s_cbranch_vccz(D)
    st.s_sub_u32(sCNT, sCNT, 1)
    st.s_cbranch_scc0(L)
    st.s_mov_b32(sCNT, 0)
    st.label(D)

def soft_check(st, reg, addr, soff):
    D = newlab("soft")
    st.v_cmp_ne_u32("vcc", sNONCE, reg)
    st.mark("save", D)
    st.s_cbranch_vccz(D)
    poll(st, addr, soff)
    st.mark("merge", D)
    st.label(D)

stamp_names = {"c": [], "l": []}
def stamp(st, name, real=False, who="c"):
    if not OPT["stamps"]: return
    if isinstance(name, int): idx = name
    else:
        if name not in stamp_names[who]: stamp_names[who].append(name)
        idx = stamp_names[who].index(name)
    r = v(127) if who == "c" else v(63)
    if real: st.s_memrealtime(sSTMP)
    else: st.s_memtime(sSTMP)
    st.wait(lgkm=0)
    st.v_mov_b32(r, s(100))
    st.s_lshl_b32(sT3, sPAIR, 8)
    st.s_add_u32(sT3, sT3, s(65))
    st.buffer_store_dword(r, "off", WS, sT3, mods=f"offset:{idx*4}")

def ring_adv(st):
    st.s_add_u32(sRING, sRING, 0x8000); st.s_and_b32(sRING, sRING, 0x1ffff)
def ring_addr(st, mode):
    if mode == "tr":
        st.v_add_u32(vA0, sRING, vP0); st.v_add_u32(vA1, sRING, vP1)
    elif mode == "b128":
        st.v_add_u32(vA0, sRING, vL16)
def barrier(st, mode=None, adv=True):
    st.wait(lgkm=0)
    st.s_barrier()
    if adv:
        ring_adv(st); ring_addr(st, mode)

def lane_tr(st, d0, d1, kind, stride=128, tmp=vT):
    st.v_lshrrev_b32(tmp, 5, vL); st.v_lshlrev_b32(tmp, 3, tmp); st.v_bfe_u32(d0, vL, 2, 2); st.v_add_u32(d0, d0, tmp)
    if stride == 128: st.v_lshlrev_b32(d0, 7, d0)
    else: st.v_mul_u32_u24(d0, stride, d0)
    sh = dict(qkv=(5, 4), nat=(4, 5))[kind]
    st.v_and_b32(tmp, 1, vL); st.v_lshl_add_u32(d0, tmp, sh[0], d0)
    st.v_bfe_u32(tmp, vL, 1, 1); st.v_lshl_add_u32(d0, tmp, 3, d0)
    st.v_bfe_u32(tmp, vL, 4, 1); st.v_lshl_add_u32(d0, tmp, sh[1], d0)
    if stride == 128:
        st.v_bfe_u32(tmp, vL, 3, 1); st.v_lshl_add_u32(d0, tmp, 6, d0)
        st.v_xor_b32(d1, 64, d0)

def gemm(st, items, mode, af, nslots, depth, fill=None, budget=16, pre_bar=1, tail_barrier=False, hooks=None,
         loads=None, pre=10, every=2):
    n = len(items)
    loads = list(loads or [])
    def rd(i):
        it = items[i]; r = af + 4 * (i % nslots)
        if mode == "tr":
            a = vA1 if it["t"] else vA0
            st.ds_read_b64_tr_b16(v(r, 2), a, mods=f"offset:{it['off']}")
            st.ds_read_b64_tr_b16(v(r + 2, 2), a, mods=f"offset:{it['off']+512}")
        else:
            st.ds_read_b128(v(r, 4), vA0, mods=f"offset:{it['off']}")
    nr = 0; hold = 0
    def pump(upto):
        nonlocal nr, hold
        while nr < n and nr <= upto:
            if nr > 0 and items[nr]["chunk"] != items[nr - 1]["chunk"] and hold >= 0: return
            rd(nr); nr += 1
            if hold < 0: hold = 0
    for _ in range(min(pre, len(loads))): loads.pop(0)(st)
    pump(depth - 1)
    tail_done = not tail_barrier
    for i in range(n):
        it = items[i]
        if hooks and i in hooks: hooks[i](st)
        assert nr > i, (nr, i)
        acc = v(it["acc"], 16)
        st.v_mfma_f32_32x32x16_bf16(acc, v(af + 4 * (i % nslots), 4), v(it["b"], 4), "0" if it["first"] else acc)
        if nr < n and items[nr]["chunk"] != items[nr - 1]["chunk"]:
            hold += 1
            if hold > pre_bar or nr <= i + 1:
                barrier(st, mode); hold = -1
        elif nr >= n and not tail_done:
            hold += 1
            if hold > pre_bar or i == n - 1:
                barrier(st, mode); tail_done = True
        pump(i + depth)
        if loads and i % every == every - 1: loads.pop(0)(st)
        if fill is not None: fill.take(st, budget)
    assert not loads

def entry(st):
    st.s_cmp_ge_u32(s(2), 256)
    st.s_cbranch_scc1(".Lend")
    st.s_load_dwordx16(s(44, 16), s(0, 2), 0)
    st.s_load_dwordx4(s(60, 4), s(0, 2), 64)
    st.s_load_dwordx2(s(64, 2), s(0, 2), 80)
    st.v_lshrrev_b32(vT, 6, v(0))
    st.v_and_b32(vL, 63, v(0))
    st.v_readfirstlane_b32(sW, vT)
    st.v_lshlrev_b32(vL16, 4, vL)
    st.v_and_b32(vFL, 15, vL)
    st.v_lshlrev_b32(vFL, 2, vFL)
    st.s_and_b32(sT0, s(2), 7)
    st.s_lshr_b32(sT1, s(2), 3)
    st.s_lshr_b32(sC, sT1, 4)
    st.s_lshl_b32(sT0, sT0, 1)
    st.s_add_u32(sC, sC, sT0)
    st.s_and_b32(sJ, sT1, 15)
    st.s_lshr_b32(sHF, sJ, 3)
    st.s_and_b32(sCG, sJ, 7)
    st.s_and_b32(sM, sW, 3)
    st.s_mov_b32(sCNT, 1 << 18)
    st.s_mov_b32(sPAIR, 0)
    st.s_cmp_lt_u32(sJ, 6)
    st.s_cselect_b32(sT6, 1, 0)
    def srd(dst, src, size):
        b = int(dst[2:dst.index(":")])
        st.s_mov_b32(s(b), s(src)); st.s_and_b32(s(b + 1), s(src + 1), 0xffff)
        st.s_mov_b32(s(b + 2), size); st.s_mov_b32(s(b + 3), 0x20000)
    srd(X_, 44, 2048 * 1024); srd(WQ, 46, 512 * 3072)
    srd(WS, 64, WS_SIZE)
    srd(WP, 48, 32 * 512); srd(WO_, 50, 512 * 1024)
    srd(WG, 54, 512 * 2752); srd(WU, 56, 512 * 2752); srd(WD, 58, 1376 * 1024)
    srd(OUT, 60, 2048 * 1024)
    if OPT["stamps"]:
        st.s_lshl_b32(s(65), s(2), 3); st.s_add_u32(s(65), s(65), sW); st.s_lshl_b32(s(65), s(65), 9)
        st.s_add_u32(s(65), s(65), STAMP)
    st.s_cmp_ge_u32(sW, 4)
    st.s_cbranch_scc1(".Lloader")

def p0(st):
    A, B = 16, 20
    a0, a1, a2, a3 = v(32), v(33), v(34), v(35)
    st.v_and_b32(a0, 7, vL); st.v_lshrrev_b32(a1, 3, vL)
    st.v_lshlrev_b32(a2, 10, a0); st.v_lshl_add_u32(a2, a1, 4, a2)
    st.s_lshl_b32(sT0, sC, 17); st.s_lshl_b32(sT1, sJ, 13); st.s_add_u32(sT0, sT0, sT1)
    st.s_lshl_b32(sT1, sM, 8); st.s_add_u32(sT0, sT0, sT1)
    st.buffer_load_dwordx4(v(A, 4), a2, X_, sT0, mods="offen")
    st.buffer_load_dwordx4(v(B, 4), a2, X_, sT0, mods="offen offset:128")
    st.buffer_load_dword(vNON, "off", WS, 0, mods=f"offset:{EPOCH} sc1")
    st.s_and_b32(sKH, sM, 1); st.s_lshr_b32(sTP, sM, 1); st.s_mov_b32(sRING, 0)
    st.v_and_b32(a3, 31, vL); st.v_lshlrev_b32(a3, 10, a3); st.v_lshrrev_b32(vT, 5, vL); st.v_lshl_add_u32(a3, vT, 4, a3)
    st.s_lshl_b32(sOUTO, sC, 17); st.s_lshl_b32(sT1, sHF, 16); st.s_add_u32(sOUTO, sOUTO, sT1)
    st.s_lshl_b32(sT1, sTP, 15); st.s_add_u32(sOUTO, sOUTO, sT1); st.s_lshl_b32(sT1, sCG, 7); st.s_add_u32(sOUTO, sOUTO, sT1)
    st.s_lshl_b32(sT1, sKH, 6); st.s_add_u32(sOUTO, sOUTO, sT1)
    st.buffer_load_dwordx4(v(RES, 4), a3, X_, sOUTO, mods="offen")
    st.buffer_load_dwordx4(v(RES + 4, 4), a3, X_, sOUTO, mods="offen offset:32")
    st.s_mov_b32(sL2E, f2u(LOG2E)); st.s_mov_b32(sONE, 0x3f803f80)
    st.s_lshl_b32(sT0, sC, 2); st.s_add_u32(sT1, sT0, sM)
    st.s_lshl_b32(sXLD, sT1, 15); st.s_add_u32(sXLD, sXLD, XB)
    st.s_lshl_b32(sSTLD, sT1, 12); st.s_add_u32(sSTLD, sSTLD, ST)
    st.s_lshl_b32(sFXLD, sT1, 8); st.s_add_u32(sFXLD, sFXLD, FX)
    st.s_lshl_b32(sT2, sJ, 2)
    st.s_lshl_b32(sFOST, sT1, 8); st.s_add_u32(sFOST, sFOST, sT2); st.s_add_u32(sFOST, sFOST, FO)
    st.s_lshl_b32(sFHST, sT1, 9); st.s_add_u32(sFHST, sFHST, sT2); st.s_add_u32(sFHST, sFHST, FH)
    st.s_lshl_b32(sOST, sT1, 15); st.s_lshl_b32(sT2, sJ, 11); st.s_add_u32(sOST, sOST, sT2); st.s_add_u32(sOST, sOST, OB)
    st.s_mul_i32(sHST, sT1, HB_TB); st.s_lshl_b32(sT2, sJ, 10); st.s_add_u32(sHST, sHST, sT2); st.s_add_u32(sHST, sHST, HB)
    st.s_lshl_b32(sDUM, sT1, 11); st.s_add_u32(sDUM, sDUM, DUMMY)
    st.s_lshl_b32(sT1, sHF, 1); st.s_add_u32(sT1, sT1, sT0); st.s_add_u32(sT1, sT1, sTP)
    st.s_lshl_b32(sT3, sCG, 1); st.s_add_u32(sT3, sT3, sKH)
    st.s_lshl_b32(sXST, sT1, 15); st.s_lshl_b32(sT2, sT3, 11); st.s_add_u32(sXST, sXST, sT2); st.s_add_u32(sXST, sXST, XB + 2 * MB)
    st.s_lshl_b32(sSTST, sT1, 12); st.s_lshl_b32(sT2, sCG, 9); st.s_add_u32(sSTST, sSTST, sT2)
    st.s_lshl_b32(sT2, sKH, 3); st.s_add_u32(sSTST, sSTST, sT2); st.s_add_u32(sSTST, sSTST, ST + ST_I)
    st.s_lshl_b32(sFXST, sT1, 8); st.s_lshl_b32(sT2, sT3, 2); st.s_add_u32(sFXST, sFXST, sT2); st.s_add_u32(sFXST, sFXST, FX + 64 * 256)
    st.s_lshl_b32(sFOLD, sT1, 8); st.s_add_u32(sFOLD, sFOLD, FO)
    st.s_lshl_b32(sFHLD, sT1, 9); st.s_add_u32(sFHLD, sFHLD, FH)
    st.s_lshl_b32(sT2, sKH, 10)
    st.s_lshl_b32(sOLD, sT1, 15); st.s_add_u32(sOLD, sOLD, sT2); st.s_add_u32(sOLD, sOLD, OB)
    st.s_mul_i32(sHLD, sT1, HB_TB); st.s_add_u32(sHLD, sHLD, sT2); st.s_add_u32(sHLD, sHLD, HB)
    st.s_mul_i32(sKVLD, sJ, KV_J); st.s_add_u32(sKVLD, sKVLD, KVP)
    st.s_mul_i32(sKVST, sC, KV_REC); st.s_add_u32(sKVST, sKVST, sKVLD)
    st.s_lshl_b32(sFKVLD, sJ, 11); st.s_add_u32(sFKVLD, sFKVLD, FKV)
    st.s_lshl_b32(sT1, sC, 7); st.s_lshl_b32(sT2, sM, 2); st.s_add_u32(sFKVST, sT1, sT2); st.s_add_u32(sFKVST, sFKVST, sFKVLD)
    for i in range(4): st.v_mov_b32(v(24 + i), 0)
    st.v_and_b32(vT, 3, vL); st.v_mul_u32_u24(vT, 576, vT); st.v_add_u32(vT, L_KVB + 544, vT)
    st.ds_write_b128(vT, v(24, 4))
    st.v_lshlrev_b32(a2, 9, a1); st.v_lshl_add_u32(a2, a0, 4, a2)
    st.s_lshr_b32(sT0, sJ, 2); st.s_lshl_b32(sT1, sC, 2); st.s_add_u32(sT0, sT0, sT1)
    st.s_and_b32(sT3, sJ, 3)
    st.s_lshl_b32(sT1, sT0, 15); st.s_lshl_b32(sT2, sM, 13); st.s_add_u32(sT1, sT1, sT2)
    st.s_lshl_b32(sT2, sT3, 7); st.s_add_u32(sT1, sT1, sT2); st.s_add_u32(sT1, sT1, XB)
    st.buffer_store_dwordx4(v(A, 4), a2, WS, sT1, mods=f"offen {SC}")
    st.s_add_u32(sT1, sT1, 4096)
    st.buffer_store_dwordx4(v(B, 4), a2, WS, sT1, mods=f"offen {SC}")
    S0, Q0, S1, Q1 = v(24), v(25), v(26), v(27)
    for i in range(4):
        st.v_dot2_f32_bf16(S0, v(A + i), sONE, S0); st.v_dot2_f32_bf16(Q0, v(A + i), v(A + i), Q0)
        st.v_dot2_f32_bf16(S1, v(B + i), sONE, S1); st.v_dot2_f32_bf16(Q1, v(B + i), v(B + i), Q1)
    st.v_lshrrev_b32(a2, 4, vL); st.v_lshlrev_b32(a2, 2, a2); st.v_lshl_add_u32(a2, a0, 4, a2)
    st.v_permlane16_swap_b32(S0, Q0); st.v_permlane16_swap_b32(S1, Q1)
    st.v_add_f32(S0, S0, Q0); st.v_add_f32(S1, S1, Q1)
    st.s_lshl_b32(sT1, sT0, 12); st.s_lshl_b32(sT2, sM, 10); st.s_add_u32(sT1, sT1, sT2)
    st.s_lshl_b32(sT2, sT3, 7); st.s_add_u32(sT1, sT1, sT2); st.s_add_u32(sT1, sT1, ST)
    st.v_add_f32(S0, S0, S0, mods="row_ror:8 row_mask:0xf bank_mask:0xf")
    st.v_add_f32(S1, S1, S1, mods="row_ror:8 row_mask:0xf bank_mask:0xf")
    st.buffer_store_dword(S0, a2, WS, sT1, mods=f"offen {SC}")
    st.buffer_store_dword(S1, a2, WS, sT1, mods=f"offen offset:512 {SC}")
    st.v_add_u32(vNON, 1, vNON)
    st.v_readfirstlane_b32(sNONCE, vNON)
    st.s_lshl_b32(sT1, sT0, 8); st.s_lshl_b32(sT2, sT3, 4); st.s_add_u32(sT1, sT1, sT2)
    st.s_lshl_b32(sT2, sM, 2); st.s_add_u32(sT1, sT1, sT2); st.s_add_u32(sT1, sT1, FX)
    st.wait(vm=0)
    st.buffer_store_dword(vNON, "off", WS, sT1, mods=SC)

def frag_loads(base, regs, stride, per):
    out = []
    for k, r in enumerate(regs):
        def f(st, k=k, r=r):
            if k % per == 0: st.s_add_u32(sLD, base, k * stride)
            st.buffer_load_dwordx4(v(r, 4), vL16, WS, sLD, mods=f"offen offset:{(k % per) * stride} {SCL}")
        out.append(f)
    return out

def x_loads(st, stt):
    st.v_lshrrev_b32(vV, 5, vL); st.v_lshlrev_b32(vV, 11, vV); st.v_and_b32(vU, 31, vL); st.v_lshl_add_u32(vV, vU, 4, vV)
    L = frag_loads(sXLD, [XF + 4 * k for k in range(32)], 1024, 4)
    def stl(st):
        for i in range(4):
            st.buffer_load_dwordx4(v(stt + 4 * i, 4), vV, WS, sSTLD, mods=f"offen offset:{512*i} {SCL}")
        st.s_add_u32(sXLD, sXLD, 2 * MB); st.s_add_u32(sSTLD, sSTLD, ST_I); st.s_add_u32(sFXLD, sFXLD, 64 * 256)
    return L + [stl]

def stats(st, stt, negmean, rstd, vare):
    S, Q = v(stt), v(stt + 1)
    for i in range(4): st.v_add_f32(v(stt + i), v(stt + i), v(stt + 4 + i))
    for i in range(4): st.v_add_f32(v(stt + 8 + i), v(stt + 8 + i), v(stt + 12 + i))
    for i in range(4): st.v_add_f32(v(stt + i), v(stt + i), v(stt + 8 + i))
    st.v_add_f32(S, S, v(stt + 2)); st.v_add_f32(Q, Q, v(stt + 3))
    st.v_mov_b32(v(stt + 2), S); st.v_mov_b32(v(stt + 3), Q)
    st.v_permlane32_swap_b32(S, v(stt + 2)); st.v_permlane32_swap_b32(Q, v(stt + 3))
    st.v_add_f32(S, S, v(stt + 2)); st.v_add_f32(Q, Q, v(stt + 3))
    st.v_mul_f32(negmean, f2u(-1.0 / 512), S)
    st.v_mul_f32(Q, f2u(1.0 / 512), Q)
    st.v_fma_f32(vare, "-" + negmean, negmean, Q)
    st.v_max_f32(vare, 0, vare)
    st.v_add_f32(vare, f2u(1e-5), vare)
    st.v_rsq_f32(rstd, vare)

def featmap(st, acc, kb, wp, e1, e2, lr, mid=None):
    for i in range(8): st.v_cvt_pk_bf16_f32(v(kb + i), v(acc + 2 * i), v(acc + 2 * i + 1))
    st.v_mfma_f32_32x32x16_bf16(v(acc, 16), v(wp, 4), v(kb, 4), "0")
    st.v_mfma_f32_32x32x16_bf16(v(acc, 16), v(wp + 4, 4), v(kb + 4, 4), v(acc, 16))
    if mid: mid(st)
    mx, mn = v(kb), v(kb + 1)
    p = lambda i: v(acc + i)
    st.v_max3_f32(mx, p(0), p(1), p(2)); st.v_min3_f32(mn, p(0), p(1), p(2))
    for i in range(3, 15, 2):
        st.v_max3_f32(mx, mx, p(i), p(i + 1)); st.v_min3_f32(mn, mn, p(i), p(i + 1))
    st.v_max_f32(mx, mx, p(15)); st.v_min_f32(mn, mn, p(15))
    st.v_mul_f32(mx, lr, mx); st.v_mul_f32(mn, lr, mn)
    for i in range(16):
        st.v_fma_f32(v(e1 + i), p(i), lr, "-" + mx); st.v_fma_f32(v(e2 + i), "-" + p(i), lr, mn)
    for i in range(16):
        st.v_exp_f32(v(e1 + i), v(e1 + i)); st.v_exp_f32(v(e2 + i), v(e2 + i))
    s1, s2, s3, s4 = v(kb + 2), v(kb + 3), v(kb + 4), v(kb + 5)
    st.v_add_f32(s1, v(e1), v(e1 + 1)); st.v_add_f32(s2, v(e2), v(e2 + 1))
    st.v_add_f32(s3, v(e1 + 2), v(e1 + 3)); st.v_add_f32(s4, v(e2 + 2), v(e2 + 3))
    for i in range(4, 16, 2):
        st.v_add_f32(s1, s1, v(e1 + i)); st.v_add_f32(s2, s2, v(e2 + i))
        st.v_add_f32(s3, s3, v(e1 + i + 1)); st.v_add_f32(s4, s4, v(e2 + i + 1))
    st.v_add_f32(s1, s1, s3); st.v_add_f32(s2, s2, s4)
    st.v_rcp_f32(s1, s1); st.v_rcp_f32(s2, s2)
    for i in range(16):
        st.v_mul_f32(v(e1 + i), s1, v(e1 + i)); st.v_mul_f32(v(e2 + i), s2, v(e2 + i))
    for i in range(8):
        st.v_cvt_pk_bf16_f32(v(e1 + i), v(e1 + 2 * i), v(e1 + 2 * i + 1))
        st.v_cvt_pk_bf16_f32(v(e2 + i), v(e2 + 2 * i), v(e2 + 2 * i + 1))

def p1(st):
    aK, aV, aQ, AF, WPH, STT = 16, 32, 48, 64, 88, 96
    NM, RS, VE, LR = v(112), v(113), v(114), v(115)
    aCS, aA, aB, aR1, aR2 = v(116), v(117), v(118), v(119), v(120)
    st.v_bfe_u32(vT, vL, 2, 1); st.v_lshrrev_b32(vU, 5, vL)
    st.v_cmp_eq_u32("vcc", vT, vU)
    st.v_bfe_u32(vV, vL, 3, 2); st.v_lshlrev_b32(vV, 3, vV); st.v_lshl_add_u32(vV, vT, 9, vV)
    st.v_and_b32(vT, 3, vL); st.v_lshl_add_u32(vV, vT, 1, vV)
    st.v_mov_b32(vT, 0x80000000)
    st.v_cndmask_b32(vV, vT, vV, "vcc")
    st.s_lshl_b32(sT0, sJ, 10)
    for e in range(16):
        st.buffer_load_ushort(v(aQ + e), vV, WP, sT0, mods=f"offen offset:{32*e}")
    st.v_lshlrev_b32(aCS, 6, vU); st.v_add_u32(aCS, L_CS, aCS)
    lane_tr(st, vP0, vP1, "qkv"); ring_addr(st, "tr")
    L = x_loads(st, STT)
    stamp(st, "p1pre")
    poll(st, vFL, sFXLD)
    stamp(st, "FXpoll")
    pre = oi("pre1", 10)
    for f in L[:pre]: f(st)
    for i in range(8): st.v_lshl_or_b32(v(WPH + i), v(aQ + 2 * i + 1), 16, v(aQ + 2 * i))
    LB = newlab("b0")
    st.mark("save", LB)
    st.s_cmp_lg_u32(sPAIR, 0); st.s_cbranch_scc1(LB)
    st.s_barrier()
    st.mark("merge", LB); st.label(LB)
    stamp(st, "B(c0)")
    items = []
    for k in range(32):
        for t, acc in ((0, aK), (1, aV)):
            items.append(dict(chunk=k // 16, off=(k % 16) * 2048, t=t, acc=acc, b=XF + 4 * k, first=k == 0))
    xb = lambda st: st.s_barrier()
    gemm(st, items, "tr", AF, 6, 5, loads=L[pre:], pre=0, hooks={oi("x1", 52): xb})
    st.s_barrier()
    stamp(st, "KVgemm")
    CK, CV = aQ, AF + 8
    for i in range(4): st.ds_read_b128(v(CK + 4 * i, 4), aCS, mods=f"offset:{16*i}")
    for i in range(4): st.ds_read_b128(v(CV + 4 * i, 4), aCS, mods=f"offset:{128+16*i}")
    stats(st, STT, NM, RS, VE)
    st.v_mul_f32(LR, sL2E, RS)
    for i in range(16): st.v_fma_f32(v(aK + i), v(CK + i), NM, v(aK + i))
    def vpart(st):
        for i in range(16): st.v_fma_f32(v(aV + i), v(CV + i), NM, v(aV + i))
        for i in range(16): st.v_mul_f32(v(aV + i), RS, v(aV + i))
        for i in range(8): st.v_cvt_pk_bf16_f32(v(aV + i), v(aV + 2 * i), v(aV + 2 * i + 1))
        st.v_and_b32(vT, 31, vL); st.s_lshl_b32(sT0, sM, 5); st.v_add_u32(vT, sT0, vT)
        st.v_lshrrev_b32(vU, 5, vL)
        st.v_mul_u32_u24(aA, 144, vT); st.v_lshl_add_u32(aA, vU, 6, aA); st.v_add_u32(aA, L_PH, aA)
        st.v_mul_u32_u24(aB, 80, vT); st.v_lshl_add_u32(aB, vU, 5, aB); st.v_add_u32(aB, L_VB, aB)
        st.ds_write_b128(aB, v(aV, 4)); st.ds_write_b128(aB, v(aV + 4, 4), mods="offset:16")
    featmap(st, aK, AF, WPH, STT, aQ, LR, mid=vpart)
    st.ds_write_b128(aA, v(STT, 4)); st.ds_write_b128(aA, v(STT + 4, 4), mods="offset:16")
    st.ds_write_b128(aA, v(aQ, 4), mods="offset:32"); st.ds_write_b128(aA, v(aQ + 4, 4), mods="offset:48")
    st.v_lshrrev_b32(vT, 4, vL); st.v_lshlrev_b32(vT, 3, vT); st.v_bfe_u32(vU, vL, 2, 2); st.v_add_u32(vT, vT, vU)
    st.v_and_b32(vU, 3, vL); st.v_lshlrev_b32(vU, 3, vU)
    st.s_lshl_b32(sT0, sM, 5); st.s_add_u32(sT0, sT0, L_PH)
    st.v_mul_u32_u24(aR1, 144, vT); st.v_add_u32(aR1, aR1, vU); st.v_add_u32(aR1, sT0, aR1)
    st.s_lshl_b32(sT0, sTP, 5); st.s_add_u32(sT0, sT0, L_VB)
    st.v_mul_u32_u24(aR2, 80, vT); st.v_add_u32(aR2, aR2, vU); st.v_add_u32(aR2, sT0, aR2)
    st.v_lshrrev_b32(vT, 4, vL); st.v_lshlrev_b32(vV, 9, vT)
    st.v_bfe_u32(vU, vL, 2, 2); st.v_lshl_add_u32(vV, vU, 7, vV); st.v_and_b32(vU, 3, vL); st.v_lshl_add_u32(vV, vU, 4, vV)
    st.v_lshrrev_b32(vT, 5, vL); st.v_lshlrev_b32(vT, 6, vT); st.v_bfe_u32(vU, vL, 4, 1); st.v_lshl_add_u32(vT, vU, 4, vT)
    st.s_lshl_b32(sT2, sKH, 11); st.s_add_u32(sT2, sT2, sKVST); st.s_lshl_b32(sT1, sTP, 6); st.s_add_u32(sT2, sT2, sT1)
    st.s_lshl_b32(sT0, sKH, 7); st.s_lshl_b32(sT1, sTP, 5); st.s_add_u32(sT0, sT0, sT1); st.s_add_u32(sT0, sT0, sKVST)
    st.s_add_u32(sT0, sT0, 4096)
    barrier(st, "tr")
    stamp(st, "Kepi+B")
    TA, TB, ONE, AKV, AZ = 16, 32, 96, 100, 104
    for k in range(4):
        for q in range(2):
            st.ds_read_b64_tr_b16(v(TA + 4 * k + 2 * q, 2), aR1, mods=f"offset:{(32*k+4*q)*144}")
            st.ds_read_b64_tr_b16(v(TB + 4 * k + 2 * q, 2), aR2, mods=f"offset:{(32*k+4*q)*80}")
    for i in range(4): st.v_mov_b32(v(ONE + i), sONE)
    for k in range(4):
        st.v_mfma_f32_16x16x32_bf16(v(AKV, 4), v(TA + 4 * k, 4), v(TB + 4 * k, 4), "0" if k == 0 else v(AKV, 4))
        st.v_mfma_f32_16x16x32_bf16(v(AZ, 4), v(TA + 4 * k, 4), v(ONE, 4), "0" if k == 0 else v(AZ, 4))
    st.buffer_store_dwordx4(v(AKV, 4), vV, WS, sT2, mods="offen sc1")
    st.buffer_store_dwordx4(v(AZ, 4), vT, WS, sT0, mods="offen sc1", tset="kv")
    stamp(st, "kv st")
    items = []
    for k in range(16):
        for t in range(2):
            items.append(dict(chunk=0, off=k * 2048, t=t, acc=aQ, b=XF + 4 * (k + 16 * t), first=(k, t) == (0, 0)))
    def kvflag(st): st.buffer_store_dword(vNON, "off", WS, sFKVST, mods="sc1", tneed="kv")
    gemm(st, items, "tr", AF, 6, 5, hooks={oi("kvflag", 24): kvflag})
    stamp(st, "Qgemm")
    CS = 96
    for i in range(4): st.ds_read_b128(v(CS + 4 * i, 4), aCS, mods=f"offset:{256+16*i}")
    for i in range(16): st.v_fma_f32(v(aQ + i), v(CS + i), NM, v(aQ + i))
    featmap(st, aQ, AF, WPH, aK, aV, LR)
    PHQ = [aK, aK + 4, aV, aV + 4]
    st.v_lshrrev_b32(vV, 2, vL); st.v_lshlrev_b32(vV, 7, vV); st.v_and_b32(vU, 3, vL); st.v_lshl_add_u32(vV, vU, 2, vV)
    st.v_lshrrev_b32(aA, 4, vL); st.v_mul_u32_u24(aA, KV_REC, aA); st.v_add_u32(aA, aA, vFL)
    stamp(st, "Q done")
    poll(st, vV, sFKVLD)
    stamp(st, "FKVpoll")
    G, Z = XF, XF + 64
    st.s_lshl_b32(sT0, sM, 10); st.s_add_u32(sT0, sT0, sKVLD)
    st.s_lshl_b32(sT1, sM, 6); st.s_add_u32(sT1, sT1, sKVLD); st.s_add_u32(sT1, sT1, 4096)
    for cc in range(16):
        st.buffer_load_dwordx4(v(G + 4 * cc, 4), vL16, WS, sT0, mods="offen sc1")
        if cc < 15: st.s_add_u32(sT0, sT0, KV_REC)
    for i in range(4):
        st.buffer_load_dword(v(Z + i), aA, WS, sT1, mods="offen sc1")
        if i < 3: st.s_add_u32(sT1, sT1, 4 * KV_REC)
    st.s_mul_i32(sT0, sM, 576); st.s_add_u32(sT0, sT0, L_KVB)
    st.v_and_b32(vT, 31, vL); st.v_lshlrev_b32(vT, 4, vT)
    st.v_lshrrev_b32(vU, 5, vL)
    st.v_lshl_add_u32(aA, vU, 3, vT); st.v_add_u32(aA, sT0, aA)
    st.v_lshrrev_b32(aB, 1, vFL); st.v_add_u32(aB, sT0, aB)
    st.v_bfe_u32(vV, vL, 2, 1); st.v_cmp_eq_u32("vcc", vV, vU)
    st.v_mov_b32(vV, 544); st.v_cndmask_b32(vT, vV, vT, "vcc"); st.v_add_u32(aR1, L_KVB, vT)
    st.v_lshlrev_b32(vU, 4, vU); st.v_add_u32(aR2, L_KVB + 512, vU)
    for cc in range(2, 16):
        d = G + 4 * (cc & 1)
        for i in range(4): st.v_add_f32(v(d + i), v(d + i), v(G + 4 * cc + i))
    for i in range(4): st.v_add_f32(v(G + i), v(G + i), v(G + 4 + i))
    st.v_cvt_pk_bf16_f32(v(G), v(G), v(G + 1)); st.v_cvt_pk_bf16_f32(v(G + 1), v(G + 2), v(G + 3))
    st.ds_write_b64(aA, v(G, 2))
    st.v_add_f32(v(Z), v(Z), v(Z + 1)); st.v_add_f32(v(Z + 2), v(Z + 2), v(Z + 3)); st.v_add_f32(v(Z), v(Z), v(Z + 2))
    st.v_mov_b32(v(Z + 1), v(Z)); st.v_permlane32_swap_b32(v(Z), v(Z + 1)); st.v_add_f32(v(Z), v(Z), v(Z + 1))
    st.v_mov_b32(v(Z + 1), v(Z)); st.v_permlane16_swap_b32(v(Z), v(Z + 1)); st.v_add_f32(v(Z), v(Z), v(Z + 1))
    st.v_cvt_pk_bf16_f32(v(Z), v(Z), v(Z))
    st.ds_write_b16(aB, v(Z), mods="offset:512")
    barrier(st, None)
    stamp(st, "gather+B")
    KA, ZA, NUM, DEN = XF, XF + 16, 48, v(64)
    for u in range(4): st.ds_read_b128(v(KA + 4 * u, 4), aR1, mods=f"offset:{576*u}")
    for u in range(4): st.ds_read_b128(v(ZA + 4 * u, 4), aR2, mods=f"offset:{576*u}")
    st.v_mov_b32(DEN, f2u(1e-6)); st.v_mov_b32(v(65), 0)
    st.v_lshrrev_b32(vU, 5, vL); st.v_lshl_add_u32(aA, vU, 9, vL16)
    for u in range(4):
        st.v_mfma_f32_32x32x16_bf16(v(NUM, 16), v(KA + 4 * u, 4), v(PHQ[u], 4), "0" if u == 0 else v(NUM, 16))
        for i in range(4):
            dd = DEN if i % 2 == 0 else v(65)
            st.v_dot2_f32_bf16(dd, v(PHQ[u] + i), v(ZA + 4 * u + i), dd)
    st.v_add_f32(DEN, DEN, v(65))
    st.v_rcp_f32(DEN, DEN)
    for i in range(16): st.v_mul_f32(v(NUM + i), DEN, v(NUM + i))
    for i in range(8): st.v_cvt_pk_bf16_f32(v(NUM + i), v(NUM + 2 * i), v(NUM + 2 * i + 1))
    st.buffer_store_dwordx4(v(NUM, 4), aA, WS, sOST, mods=f"offen {SC}")
    st.buffer_store_dwordx4(v(NUM + 4, 4), aA, WS, sOST, mods=f"offen offset:512 {SC}", tset="o")
    small_addr(st)
    st.buffer_store_dword(vNON, "off", WS, sFOST, mods=SC, tneed="o")
    st.s_add_u32(sKVST, sKVST, KV_P); st.s_add_u32(sKVLD, sKVLD, KV_P)
    st.s_add_u32(sFKVST, sFKVST, 256 * 128); st.s_add_u32(sFKVLD, sFKVLD, 256 * 128)
    st.s_add_u32(sOST, sOST, 2 * MB); st.s_add_u32(sFOST, sFOST, 64 * 256)

def small_addr(st):
    lane_tr(st, vP0, vP1, "nat")
    st.s_lshl_b32(sT0, sKH, 6); st.s_lshl_b32(sT1, sKH, 11)
    st.v_xor_b32(vP0, sT0, vP0); st.v_xor_b32(vP1, sT0, vP1)
    st.v_add_u32(vP0, sT1, vP0); st.v_add_u32(vP1, sT1, vP1)
    ring_addr(st, "tr")

def small_items(nsteps, breg):
    items = []
    for k in range(nsteps):
        for t in range(2):
            items.append(dict(chunk=k // 8, off=(k % 8) * 4096, t=t, acc=16 + 16 * t, b=breg(k), first=k == 0))
    return items

def xepi(st, last):
    aA_, aB_, T, P = 16, 32, 64, 48
    aX = v(80)
    st.s_lshl_b32(sT0, sM, 12); st.s_add_u32(sT0, sT0, L_PH); st.v_add_u32(aX, sT0, vL16)
    for i in range(8):
        st.v_lshlrev_b32(v(T + 2 * i), 16, v(RES + i)); st.v_and_b32(v(T + 2 * i + 1), 0xffff0000, v(RES + i))
    for i in range(4): st.ds_write_b128(aX, v(aB_ + 4 * i, 4), mods=f"offset:{1024*i}")
    st.v_xor_b32(aX, 4096, aX)
    for k in range(16): st.v_add_f32(v(T + k), v(T + k), v(aA_ + k))
    barrier(st, None)
    for i in range(4): st.ds_read_b128(v(P + 4 * i, 4), aX, mods=f"offset:{1024*i}")
    for k in range(16): st.v_add_f32(v(T + k), v(T + k), v(P + k))
    for i in range(8): st.v_cvt_pk_bf16_f32(v(RES + i), v(T + 2 * i), v(T + 2 * i + 1))
    LF = newlab("fin")
    if last:
        st.mark("save", LF)
        st.s_cmp_eq_u32(sPAIR, 1); st.s_cbranch_scc1(LF)
    st.buffer_store_dwordx4(v(RES, 4), vL16, WS, sXST, mods=f"offen {SC}")
    st.buffer_store_dwordx4(v(RES + 4, 4), vL16, WS, sXST, mods=f"offen offset:1024 {SC}")
    S, Q, S2, Q2 = v(T), v(T + 1), v(T + 2), v(T + 3)
    st.v_dot2_f32_bf16(S, v(RES), sONE, 0); st.v_dot2_f32_bf16(Q, v(RES), v(RES), 0)
    st.v_dot2_f32_bf16(S2, v(RES + 1), sONE, 0); st.v_dot2_f32_bf16(Q2, v(RES + 1), v(RES + 1), 0)
    for i in range(2, 8, 2):
        st.v_dot2_f32_bf16(S, v(RES + i), sONE, S); st.v_dot2_f32_bf16(Q, v(RES + i), v(RES + i), Q)
        st.v_dot2_f32_bf16(S2, v(RES + i + 1), sONE, S2); st.v_dot2_f32_bf16(Q2, v(RES + i + 1), v(RES + i + 1), Q2)
    st.v_and_b32(aX, 31, vL); st.v_lshlrev_b32(aX, 4, aX); st.v_lshrrev_b32(vT, 5, vL); st.v_lshl_add_u32(aX, vT, 2, aX)
    st.v_add_f32(S, S, S2); st.v_add_f32(Q, Q, Q2)
    st.v_permlane32_swap_b32(S, Q); st.v_add_f32(S, S, Q)
    st.buffer_store_dword(S, aX, WS, sSTST, mods=f"offen {SC}", tset="x")
    st.buffer_store_dword(vNON, "off", WS, sFXST, mods=SC, tneed="x")
    st.s_add_u32(sXST, sXST, 2 * MB); st.s_add_u32(sSTST, sSTST, ST_I); st.s_add_u32(sFXST, sFXST, 64 * 256)
    if last:
        st.s_mov_b32(sPAIR, 1)
        st.s_branch(".Lpair")
        st.label(LF); st.mark("restore", LF)
        st.v_and_b32(aX, 31, vL); st.v_lshlrev_b32(aX, 10, aX); st.v_lshrrev_b32(vT, 5, vL); st.v_lshl_add_u32(aX, vT, 4, aX)
        st.buffer_store_dwordx4(v(RES, 4), aX, OUT, sOUTO, mods="offen")
        st.buffer_store_dwordx4(v(RES + 4, 4), aX, OUT, sOUTO, mods="offen offset:32")

def p2(st):
    stamp(st, "o stored")
    poll(st, vFL, sFOLD)
    stamp(st, "FOpoll")
    L = frag_loads(sOLD, [XF + 4 * k for k in range(16)], 2048, 2)
    gemm(st, small_items(16, lambda k: XF + 4 * k), "tr", 48, 6, 5, loads=L, pre=oi("pre2", 10))
    st.s_add_u32(sOLD, sOLD, 2 * MB); st.s_add_u32(sFOLD, sFOLD, 64 * 256)
    stamp(st, "P2gemm")
    xepi(st, False)

def p3(st):
    ACCS = [16, 32, 48]; AF = 64; STT = 96; CS = 96; TM = 112
    NM, K1, K3, VE, aCS = v(88), v(89), v(90), v(91), v(92)
    st.v_lshrrev_b32(vU, 5, vL); st.v_lshlrev_b32(aCS, 6, vU); st.v_add_u32(aCS, L_CS + 3 * 128, aCS)
    ring_addr(st, "b128")
    L = x_loads(st, STT)
    stamp(st, "x stored")
    poll(st, vFL, sFXLD)
    stamp(st, "FXpoll2")
    C1 = -2.0 * math.sqrt(2.0 / math.pi) * LOG2E
    def epi(r):
        f = Stream(); a = ACCS[r % 3]
        for i in range(4): f.ds_read_b128(v(CS + 4 * i, 4), aCS, mods=f"offset:{128*r+16*i}")
        for i in range(16): f.v_fma_f32(v(a + i), v(CS + i), NM, v(a + i))
        for i in range(8): f.v_mul_f32(v(TM + i), v(a + i), v(a + i))
        for i in range(8): f.v_fma_f32(v(TM + i), v(TM + i), K3, K1)
        for i in range(8): f.v_mul_f32(v(TM + i), v(TM + i), v(a + i))
        for i in range(8):
            f.v_exp_f32(v(TM + i), v(TM + i)); f.v_mul_f32(v(a + i), v(a + i), v(a + 8 + i))
        for i in range(8): f.v_fma_f32(v(TM + i), v(TM + i), VE, VE)
        for i in range(8): f.v_rcp_f32(v(TM + i), v(TM + i))
        for i in range(8): f.v_mul_f32(v(TM + i), v(TM + i), v(a + i))
        for i in range(4): f.v_cvt_pk_bf16_f32(v(TM + 8 + i), v(TM + 2 * i), v(TM + 2 * i + 1))
        f.s_add_u32(sT1, sHST, 16384 * r)
        if r == 5:
            f.s_cmp_eq_u32(sT6, 1); f.s_cselect_b32(sT1, sT1, sDUM)
        f.buffer_store_dwordx4(v(TM + 8, 4), vL16, WS, sT1, mods=f"offen {SC}", tset=f"h{r}")
        return f
    def flag(r):
        f = Stream()
        if r == 5:
            f.s_add_u32(sT1, sFHST, 64 * 5); f.s_add_u32(sT2, sDUM, 1024); f.s_cmp_eq_u32(sT6, 1); f.s_cselect_b32(sT1, sT1, sT2)
            f.buffer_store_dword(vNON, "off", WS, sT1, mods=SC, tneed="h5")
        else:
            f.buffer_store_dword(vNON, "off", WS, sFHST, mods=f"offset:{64*r} {SC}", tneed=f"h{r}")
        return f
    items = []
    for k in range(32):
        for t in range(2):
            items.append(dict(chunk=k // 16, off=t * 16384 + (k % 16) * 1024, t=0, acc=ACCS[t], b=XF + 4 * k, first=k == 0))
    for r in range(2, 6):
        items += [dict(chunk=r, off=k * 1024, t=0, acc=ACCS[r % 3], b=XF + 4 * k, first=k == 0) for k in range(32)]
    fill = Filler()
    def h_stats(st):
        f = Stream()
        stats(f, STT, NM, K1, VE)
        f.v_mul_f32(K3, K1, K1); f.v_mul_f32(K1, f2u(C1), K1); f.v_mul_f32(K3, f2u(0.044715), K3); f.v_mul_f32(K3, K3, K1)
        fill.add(f)
    def h_add(name, must, *parts):
        def h(st):
            stamp(st, name)
            fill.drain_until(st, must)
            for p in parts: fill.add(p)
        return h
    e = [epi(r) for r in range(6)]
    hooks = {60: h_stats,
             64: h_add("t01", None, e[0], e[1]),
             96: h_add("t2", e[0], e[2], flag(0)),
             128: h_add("t3", e[1], flag(1), e[3], flag(2)),
             160: h_add("t4", e[2], e[4], flag(3))}
    gemm(st, items, "b128", AF, 6, 5, fill=fill, budget=oi("bud3", 16), hooks=hooks, tail_barrier=True, loads=L, pre=oi("pre3", 10))
    stamp(st, "t5")
    fill.flush(st)
    st.extend(e[5]); st.extend(flag(4))
    small_addr(st)
    st.extend(flag(5))
    st.s_add_u32(sHST, sHST, HB_P); st.s_add_u32(sFHST, sFHST, 64 * 512)

def p4(st):
    HI = 72
    aP, vS = v(116), v(117)
    st.v_lshlrev_b32(vV, 2, vL)
    st.v_bfe_u32(vT, vL, 4, 1); st.v_cmp_eq_u32("vcc", 0, vT)
    st.v_min_u32(vU, 20, vFL); st.v_add_u32(vU, 64, vU); st.v_cndmask_b32(aP, vU, vFL, "vcc"); st.v_add_u32(aP, 256, aP)
    stamp(st, "P3 done")
    poll(st, vV, sFHLD)
    stamp(st, "FH A")
    breg = lambda k: XF + 4 * k if k < 32 else HI + 4 * (k - 32)
    L = frag_loads(sHLD, [breg(k) for k in range(43)], 2048, 2)
    def softi(st): st.buffer_load_dword(vS, aP, WS, sFHLD, mods="offen sc1")
    f32 = L[32]
    def chk(st):
        soft_check(st, vS, aP, sFHLD); f32(st)
    L[32] = chk
    k = oi("soft4", 24)
    fk = L[k]
    L[k] = lambda st: (fk(st), softi(st))
    gemm(st, small_items(43, breg), "tr", 48, 6, 5, loads=L, pre=oi("pre4", 10))
    st.s_add_u32(sHLD, sHLD, HB_P); st.s_add_u32(sFHLD, sFHLD, 64 * 512)
    stamp(st, "P4gemm")
    xepi(st, True)

def compute(st):
    stamp(st, 62, True)
    stamp(st, "start")
    p0(st)
    stop = OPT["stop"]
    if stop == "p0": st.s_branch(".Lend"); return
    st.wait(lgkm=0)
    st.label(".Lpair"); st.mark("reset")
    p1(st)
    if stop == "p1": st.s_branch(".Lend"); return
    p2(st)
    if stop == "p2": st.s_branch(".Lend"); return
    p3(st)
    if stop == "p3": st.s_branch(".Lend"); return
    p4(st)
    stamp(st, "end")
    stamp(st, 63, True)
    st.s_or_b32(sT0, s(2), sW); st.s_cmp_lg_u32(sT0, 0); st.s_cbranch_scc1(".Lend")
    st.buffer_store_dword(vNON, "off", WS, 0, mods=f"offset:{EPOCH} sc1")
    st.s_branch(".Lend")

sW8, sQK, sWOb, sGU, sWD5 = s(74), s(75), s(76), s(77), s(78)
sWDb = [s(80 + i) for i in range(4)]
GU = 64
vKV, vQ, vW, vWR0, vWR1 = v(2), v(4), v(5), v(6), v(7)
vGG = [v(8), v(9), v(10)]; vGL = [v(16), v(17), v(18)]; vGT = v(19)
vC0, vC1, vCW, vCR = v(20), v(21), v(22), v(23)
SEL = 24; CACC = 28; FR = 52
GSTR = 448

def loader(st):
    st.label(".Lloader"); st.mark("reset")
    stamp(st, "start", who="l")
    st.v_lshrrev_b32(vT, 3, vL); st.v_bfe_u32(vU, vL, 4, 1); st.v_lshlrev_b32(vU, 2, vU); st.v_and_b32(vV, 7, vL); st.v_xor_b32(vU, vU, vV)
    st.v_mul_u32_u24(vKV, 3072, vT); st.v_and_b32(vV, 3, vU); st.v_lshl_add_u32(vKV, vV, 4, vKV)
    st.v_lshrrev_b32(vV, 2, vU); st.v_mul_u32_u24(vQ, 256 * 3072, vV); st.v_add_u32(vQ, vQ, vKV)
    st.v_lshl_add_u32(vKV, vV, 10, vKV); st.v_add_u32(vKV, 1024, vKV)
    st.v_lshlrev_b32(vW, 10, vT); st.v_lshl_add_u32(vW, vU, 4, vW)
    st.s_lshl_b32(sW8, sM, 13)
    st.s_mul_i32(sQK, sM, 64 * 3072); st.s_lshl_b32(sT0, sJ, 6); st.s_add_u32(sQK, sQK, sT0)
    chunks = []
    for pair in range(2):
        chunks += [("kv", 0), ("kv", 1), ("q", 0), ("wo", 0), ("wo", 1), ("gp", 0), ("gp", 1)] + [("gs", r) for r in range(2, 6)]
        chunks += [("wd", r) for r in range(6)]
    N = len(chunks)
    def dma(n, addr, srd, offs):
        slot = (n % 4) * 32768
        for i, (base, off, lds) in enumerate(offs):
            st.s_add_u32(sT0, base, off)
            st.s_add_u32("m0", lds[0], slot + lds[1])
            st.buffer_load_dwordx4(addr, srd, sT0, mods="offen lds", tset=f"c{n}" if i == len(offs) - 1 else None)
    def issue(n):
        if n >= N: return
        kind, a = chunks[n]
        if OPT.get("noload") and n >= int(OPT["noload"]) and kind not in ("gp", "gs"): return
        if kind == "kv": dma(n, vKV, WQ, [(sQK, (256 * a + 8 * i) * 3072, (sW8, 1024 * i)) for i in range(8)])
        elif kind == "q": dma(n, vQ, WQ, [(sQK, 8 * i * 3072, (sW8, 1024 * i)) for i in range(8)])
        elif kind == "wo": dma(n, vW, WO_, [(sWOb, (256 * a + 8 * i) * 1024, (sW8, 1024 * i)) for i in range(8)])
        elif kind == "wd" and a < 5: dma(n, vW, WD, [(sWDb[i // 2], (16 * a + 8 * (i % 2)) * 1024, (sW8, 1024 * i)) for i in range(8)])
        elif kind == "wd":
            slot = (n % 4) * 32768
            for e in range(3):
                st.s_mul_i32(sT1, sM, 3); st.s_add_u32(sT1, sT1, e)
                st.s_lshr_b32(sT0, sT1, 1); st.s_mul_i32(sT0, sT0, 96 * 1024); st.s_and_b32(sT2, sT1, 1); st.s_lshl_b32(sT2, sT2, 13)
                st.s_add_u32(sT0, sT0, sT2); st.s_add_u32(sT0, sT0, sWD5)
                st.s_lshl_b32(sT1, sT1, 10); st.s_add_u32("m0", sT1, slot)
                st.buffer_load_dwordx4(vW, WD, sT0, mods="offen lds", tset=f"c{n}" if e == 2 else None)
        else:
            slot = n % 4; wr = vWR1 if slot >= 2 else vWR0; so = (slot & 1) * 32768
            for t in range(2):
                for k in range(4):
                    g, fr = (4 * a + k, t) if kind == "gp" else (4 * t + k, a)
                    st.ds_write_b128(wr, v(GU + 24 * g + 4 * fr, 4), mods=f"offset:{so + t*16384 + k*1024}")
    def bar(n=None):
        st.wait(lgkm=0)
        st.l.append(Ins("s_barrier", [], tneed=f"c{n}" if n is not None else None))
    issue(0); issue(1); issue(2)
    st.s_lshl_b32(sWOb, sM, 16); st.s_lshl_b32(sT0, sCG, 7); st.s_add_u32(sWOb, sWOb, sT0)
    for e in range(4):
        st.s_lshl_b32(sT1, sM, 2); st.s_add_u32(sT1, sT1, e)
        st.s_mul_i32(sT2, sT1, 6); st.s_mul_i32(sT3, sT1, 5); st.s_add_u32(sT3, sT3, 6); st.s_min_u32(sT2, sT2, sT3)
        st.s_lshl_b32(sT2, sT2, 14); st.s_add_u32(sWDb[e], sT2, sT0)
    st.s_add_u32(sWD5, sT0, 80 * 1024)
    st.s_mul_i32(sT2, sJ, 6); st.s_mul_i32(sT3, sJ, 5); st.s_add_u32(sT3, sT3, 6); st.s_min_u32(sT2, sT2, sT3)
    st.s_lshl_b32(sT2, sT2, 5); st.s_mul_i32(sGU, sM, 64 * 2752); st.s_add_u32(sGU, sGU, sT2)
    st.s_cmp_eq_u32(sT6, 1); st.s_cselect_b32(sT1, 12, 10)
    st.s_add_u32(sT2, sW8, 32768)
    for i in range(3):
        st.v_add_u32(vT, 64 * i, vL); st.v_mul_u32_u24(vU, 5462, vT); st.v_lshrrev_b32(vU, 16, vU)
        st.v_mul_u32_u24(vV, 12, vU); st.v_sub_u32(vT, vT, vV)
        st.v_mul_u32_u24(vGG[i], 2752, vU); st.v_lshl_add_u32(vGG[i], vT, 4, vGG[i])
        st.v_cmp_gt_u32("vcc", sT1, vT); st.v_mov_b32(vV, 0x80000000); st.v_cndmask_b32(vGG[i], vV, vGG[i], "vcc")
        st.v_mul_u32_u24(vGL[i], GSTR, vU); st.v_lshrrev_b32(vV, 1, vT); st.v_lshl_add_u32(vGL[i], vV, 6, vGL[i])
        st.v_and_b32(vV, 1, vT); st.v_lshl_add_u32(vGL[i], vV, 4, vGL[i]); st.v_add_u32(vGL[i], sT2, vGL[i])
    lane_tr(st, vGT, None, "nat", stride=GSTR); st.v_add_u32(vGT, sT2, vGT)
    lane_tr(st, vC0, vC1, "qkv"); st.v_add_u32(vC0, sW8, vC0); st.v_add_u32(vC1, sW8, vC1)
    st.s_lshl_b32(sT0, sM, 12); st.v_add_u32(vWR0, sT0, vL16); st.v_add_u32(vWR1, 65536, vWR0)
    st.v_bfe_u32(vT, vL, 4, 1); st.v_and_b32(vU, 1, vL); st.v_cmp_eq_u32("vcc", vT, vU)
    st.v_mov_b32(vV, 0x3f803f80)
    for i in range(4): st.v_cndmask_b32(v(SEL + i), 0, vV, "vcc")
    st.v_lshlrev_b32(vCW, 6, vT); st.v_lshl_add_u32(vCW, vU, 5, vCW); st.v_lshrrev_b32(vT, 5, vL); st.v_lshl_add_u32(vCW, vT, 4, vCW)
    gl = []
    for g in range(8):
        k0 = (16 * (g // 4) + (g % 4)) * 16
        for m_, srd in enumerate((WG, WU)):
            for i in range(3):
                def f(g=g, k0=k0, m_=m_, srd=srd, i=i):
                    if i == 0: st.s_add_u32(sLD, sGU, k0 * 2752)
                    st.buffer_load_dwordx4(v(GU + 24 * g + 12 * m_ + 4 * i, 4), vGG[i], srd, sLD, mods="offen" + (" nt" if OPT.get("gunt") else ""))
                gl.append(f)
    def gu_loads(cnt):
        for _ in range(min(cnt, len(gl))): gl.pop(0)()
    def colsum(n, acc0, acc1, first):
        so = (n % 4) * 32768
        assert so + 3 * 2048 + 512 < 65536 or True
        a0, a1 = vC0, vC1
        if so >= 65536:
            st.v_add_u32(vT, 65536, vC0); st.v_add_u32(vU, 65536, vC1); a0, a1 = vT, vU; so -= 65536
        for k in range(4):
            for t, (a, acc) in enumerate(((a0, acc0), (a1, acc1))):
                r = FR + 4 * t
                i0 = Ins("ds_read_b64_tr_b16", [v(r, 2), a], f"offset:{so + k*2048}", tneed=f"c{n}")
                st.l.append(i0)
                st.ds_read_b64_tr_b16(v(r + 2, 2), a, mods=f"offset:{so + k*2048 + 512}")
                z = first and k == 0 and (acc0 != acc1 or t == 0)
                st.v_mfma_f32_16x16x32_bf16(v(acc, 4), v(r, 4), v(SEL, 4), "0" if z else v(acc, 4))
    def partial_write(base_s, tiles):
        st.v_add_u32(vT, base_s, vCW)
        for i in range(tiles): st.ds_write_b128(vT, v(CACC + 4 * i, 4), mods=f"offset:{128*i}")
    def reduce(base, wstride, tiles, dst):
        st.v_min_u32(vCR, tiles * 128 - 16, vL16)
        st.v_add_u32(vT, base, vCR)
        for w in range(4): st.ds_read_b128(v(CACC + 4 * w, 4), vT, mods=f"offset:{w*wstride}")
        for i in range(4):
            st.v_add_f32(v(CACC + i), v(CACC + i), v(CACC + 4 + i)); st.v_add_f32(v(CACC + 8 + i), v(CACC + 8 + i), v(CACC + 12 + i))
        for i in range(4): st.v_add_f32(v(CACC + i), v(CACC + i), v(CACC + 8 + i))
        st.v_add_u32(vT, dst, vCR)
        st.ds_write_b128(vT, v(CACC, 4))
    def transpose(g, first):
        b = GU + 24 * g
        for m_ in range(2):
            for i in range(3): st.ds_write_b128(vGL[i], v(b + 12 * m_ + 4 * i, 4), mods=f"offset:{32*m_}")
        for t in range(6):
            for u in range(2): st.ds_read_b64_tr_b16(v(b + 4 * t + 2 * u, 2), vGT, mods=f"offset:{u*4*GSTR + t*64}")
        for t in range(6):
            st.v_mfma_f32_16x16x32_bf16(v(CACC + 4 * t, 4), v(b + 4 * t, 4), v(SEL, 4), "0" if first else v(CACC + 4 * t, 4))
    G = [oi("g0", 0), oi("g1", 6), oi("g2", 0), oi("g3", 0), oi("g4", 24)]
    gu_loads(G[0])
    for pair in range(2):
        o = 17 * pair
        if pair == 0:
            bar(0); stamp(st, "B0", who="l")
        issue(o + 3)
        if pair == 0:
            colsum(0, CACC, CACC + 4, True); gu_loads(G[1])
        bar(o + 1)
        issue(o + 4)
        if pair == 0:
            colsum(1, CACC, CACC + 4, False); colsum(2, CACC + 8, CACC + 8, True)
            st.s_mul_i32(sT0, sM, 384); st.s_add_u32(sT0, sT0, L_PH)
            partial_write(sT0, 3); gu_loads(G[2])
        bar()
        if pair == 0:
            reduce(L_PH, 384, 3, L_CS); gu_loads(G[3])
        bar()
        if pair == 0: gu_loads(G[4])
        bar(o + 2)
        if pair == 0:
            stamp(st, "B2", who="l")
            gu_loads(99)
            stamp(st, "guiss", who="l")
            for g in range(8): transpose(g, g == 0)
            st.s_add_u32(sT0, sW8, 32768)
            partial_write(sT0, 6)
            stamp(st, "transp", who="l")
            bar(o + 3)
            reduce(32768, 8192, 6, L_CS + 384)
            issue(o + 6)
            bar(o + 4)
            issue(o + 5); issue(o + 7)
        else:
            issue(o + 5); bar(o + 3); issue(o + 6); bar(o + 4); issue(o + 7)
        for n in range(5, 17):
            bar(o + n); issue(o + n + 3)
        bar(o + 17 if pair == 0 else None)
    st.s_branch(".Lend")

def main():
    st = Stream()
    entry(st)
    compute(st)
    loader(st)
    st.label(".Lend")
    st.s_endpgm()
    body = finalize(st)
    ref = open(f"cdna_kernels/{NAME}.s.ref").read().split("\n")
    head = [l for l in ref if l.startswith(";") and "@launch" not in l]
    out = "\n".join(head) + f"\n; @launch grid=(256,1,1) block=(512,1,1) lds={LDS_BYTES}\n"
    out += '.amdgcn_target "amdgcn-amd-amdhsa--gfx950"\n' + khead(NAME + "_kernel") + body + kd(NAME + "_kernel")
    path = sys.argv[1] if len(sys.argv) > 1 else f"cdna_kernels/{NAME}.s"
    open(path, "w").write(out)
    json.dump(stamp_names, open(path + ".json", "w"))
    n = sum(1 for l in body.split("\n") if l.startswith("    ") and not l.strip().startswith(";"))
    print("wrote", path, "instructions:", n)

main()
```

```python
KB = 1024; MB = 1 << 20
EPOCH   = 0
XCCT    = 4096
FL      = 64 * KB
FKV     = FL + 64 * KB
DUMMY   = FKV + 64 * KB
XB      = 1 * MB
ST      = XB + 2 * MB
HB_TB   = 86 * KB
HB      = ST + 256 * KB
KV_REC  = 4608
KV_J    = 16 * KV_REC
KV_P    = 16 * KV_J
KVP     = HB + 64 * HB_TB
WS_END  = KVP + 2 * KV_P
STAMP   = (WS_END + 4095) // 4096 * 4096
WS_SIZE = 268435456
assert DUMMY + 128 * KB <= XB
RING    = 0
L_PH    = 131072
L_VB    = L_PH + 128 * 144
L_KVB   = L_VB + 128 * 80
L_CS    = L_KVB + 4 * 576
L_SIG   = L_CS + 9 * 128
L_END   = L_SIG + 32
assert L_END <= 163840, L_END
LDS_BYTES = 163840
def fstart(j): return 6 * j if j < 6 else 5 * j + 6
```

```python
import sys, os, math, struct, json
sys.path.insert(0, os.path.dirname(os.path.abspath(__file__)))
from asmlib import *
from layout3 import *

NAME = "interleave_layers__linear_kernel_hedgehog__geglu_ffn__prompt"
OPT = dict(stop=None, stamps=False)
for a in sys.argv[2:]:
    k, _, val = a.partition("=")
    OPT[k] = val if val != "" else True
def oi(k, d): return int(OPT.get(k, d))
def os_(k, d): return str(OPT.get(k, d))
SCL = "sc1"
def f2u(x): return "0x%08x" % struct.unpack("<I", struct.pack("<f", x))[0]
LOG2E = 1.4426950408889634
class G: SC = ""; TAG = "f"; SEQ = None; REC = True

WS, X_, OUT, WQ, WP, WO_, WG, WU, WD = [s(4 + 4 * i, 4) for i in range(9)]
sXC = s(40)
sC, sJ, sHF, sCG, sM, sNONCE, sCNT, sPAIR = [s(66 + i) for i in range(8)]
sW = s(3)
sXLD, sSTLD, sFA, sXST, sSTST, sFXST = [s(74 + i) for i in range(6)]
sOST, sFB, sFJ = s(80), s(81), s(82)
sHLD, sHST = s(84), s(85)
sKVST, sKVLD, sFKVST, sFKVLD = [s(88 + i) for i in range(4)]
sT0, sT1, sT2, sT3 = [s(92 + i) for i in range(4)]
sL2E, sONE, sOUTO, sT6 = s(96), s(97), s(98), s(99)
sSTMP = s(100, 2)
sRING, sKH, sTP, sDUM, sLD = s(44), s(45), s(46), s(47), s(48)
vL, vL16, vA0, vFL = v(0), v(1), v(2), v(3)
RES = 4
vNON = v(12); vT = v(13); vU = v(14); vV = v(15)
vA1, vP0, vP1 = v(121), v(122), v(123)
XF = 128

lab_n = [0]
def newlab(p):
    lab_n[0] += 1
    return f".L{p}_{lab_n[0]}"

def nxt(st):
    st.s_add_u32(sNONCE, sNONCE, 1); st.v_add_u32(vNON, 1, vNON)

def poll(st, addr, soff, off=0):
    L = newlab("poll"); D = newlab("pdone")
    st.label(L)
    st.buffer_load_dword(vT, addr, WS, soff, mods=f"offen offset:{off} sc1")
    st.wait(vm=0)
    st.v_cmp_ne_u32("vcc", sNONCE, vT)
    st.s_cbranch_vccz(D)
    st.s_sub_u32(sCNT, sCNT, 1)
    st.s_cbranch_scc0(L)
    st.s_mov_b32(sCNT, 0)
    st.label(D)

def soft_check(st, reg, addr, soff, off=0):
    D = newlab("soft")
    st.v_cmp_ne_u32("vcc", sNONCE, reg)
    st.mark("save", D)
    st.s_cbranch_vccz(D)
    poll(st, addr, soff, off)
    st.mark("merge", D)
    st.label(D)

stamp_names = {"c": [], "l": []}
def stamp(st, name, real=False, who="c", pair=None):
    if not OPT["stamps"]: return
    only = OPT.get("only")
    if only and who == "c" and not isinstance(name, int) and name not in ("start", "end") and name not in only.split(","): return
    if isinstance(name, int): idx = name
    else:
        if name not in stamp_names[who]: stamp_names[who].append(name)
        idx = stamp_names[who].index(name)
    r = v(127) if who == "c" else v(63)
    if name == 62: st.v_mov_b32(r, s(42))
    elif name == "start" and who == "c": st.v_mov_b32(r, s(86))
    else:
        if real: st.s_memrealtime(sSTMP)
        else: st.s_memtime(sSTMP)
        st.wait(lgkm=0)
        st.v_mov_b32(r, s(100))
    if pair is None:
        st.s_lshl_b32(s(101), sPAIR, 8)
        st.s_add_u32(s(101), s(101), s(65))
    else:
        st.s_add_u32(s(101), s(65), 256 * pair)
    st.buffer_store_dword(r, "off", WS, s(101), mods=f"offset:{idx*4}")

def ring_addr(st, mode):
    if mode == "tr":
        st.v_add_u32(vA0, sRING, vP0); st.v_add_u32(vA1, sRING, vP1)
    elif mode == "b128":
        st.v_add_u32(vA0, sRING, vL16)
def ring_next(st, mode=None):
    st.s_add_u32(sRING, sRING, 0x8000); st.s_and_b32(sRING, sRING, 0x1ffff)
    ring_addr(st, mode)
def barrier(st, name, drain=False):
    if drain: st.wait(lgkm=0)
    st.s_barrier()
    if G.REC: G.SEQ.append(name)

def signal(st, val=None):
    t0, t1 = (v(124), v(125)) if val is None else (vT, vU)
    st.s_lshl_b32(sT3, sW, 2); st.s_add_u32(sT3, sT3, L_SIG); st.v_mov_b32(t0, sT3)
    if val is None: st.v_add_u32(t1, 1, sPAIR)
    else: st.v_mov_b32(t1, val)
    st.ds_write_b32(t0, t1)
def sigwait(st):
    L = newlab("sig"); D = newlab("sigd")
    st.v_and_b32(v(124), 28, vFL); st.v_add_u32(v(124), L_SIG, v(124))
    st.label(L)
    st.ds_read_b32(v(126), v(124))
    st.wait(lgkm=0)
    st.v_cmp_ne_u32("vcc", v(125), v(126))
    st.s_cbranch_vccz(D)
    st.s_sub_u32(sCNT, sCNT, 1)
    st.s_cbranch_scc0(L)
    st.s_mov_b32(sCNT, 0)
    st.label(D)

def lane_tr(st, d0, d1, kind, stride=128, tmp=vT, hstride=None):
    st.v_bfe_u32(d0, vL, 2, 2)
    if stride == 128: st.v_lshlrev_b32(d0, 7, d0)
    else: st.v_mul_u32_u24(d0, stride, d0)
    st.v_lshrrev_b32(tmp, 5, vL)
    st.v_lshl_add_u32(d0, tmp, int(math.log2(hstride or 8 * stride)), d0)
    sh = dict(qkv=(5, 4), nat=(4, 5))[kind]
    st.v_and_b32(tmp, 1, vL); st.v_lshl_add_u32(d0, tmp, sh[0], d0)
    st.v_bfe_u32(tmp, vL, 1, 1); st.v_lshl_add_u32(d0, tmp, 3, d0)
    st.v_bfe_u32(tmp, vL, 4, 1); st.v_lshl_add_u32(d0, tmp, sh[1], d0)
    if stride == 128:
        st.v_bfe_u32(tmp, vL, 3, 1); st.v_lshl_add_u32(d0, tmp, 6, d0)
        st.v_xor_b32(d1, 64, d0)

def gemm(st, items, mode, af, nslots, depth, ready, bars=None, fill=None, budget=16, hooks=None, loads=None, pre=10, every=2):
    n = len(items); loads = list(loads or []); ready = set(ready); bars = bars or {}
    nr = 0
    def pump(upto):
        nonlocal nr
        while nr < n and nr <= upto:
            it = items[nr]; r = af + 4 * (nr % nslots)
            assert it["chunk"] in ready, (nr, it["chunk"])
            if nr > 0 and it["chunk"] != items[nr - 1]["chunk"]: ring_next(st, mode)
            if mode == "tr":
                a = vA1 if it["t"] else vA0
                st.ds_read_b64_tr_b16(v(r, 2), a, mods=f"offset:{it['off']}")
                st.ds_read_b64_tr_b16(v(r + 2, 2), a, mods=f"offset:{it['off']+512}")
            else:
                st.ds_read_b128(v(r, 4), vA0, mods=f"offset:{it['off']}")
            nr += 1
    for _ in range(min(pre, len(loads))): loads.pop(0)(st)
    pump(depth - 1)
    for i in range(n):
        it = items[i]
        if hooks and i in hooks: hooks[i](st)
        acc = v(it["acc"], 16)
        st.v_mfma_f32_32x32x16_bf16(acc, v(af + 4 * (i % nslots), 4), v(it["b"], 4), "0" if it["first"] else acc)
        if i in bars:
            barrier(st, bars[i][0]); ready |= set(bars[i][1])
        pump(i + depth)
        if loads and i % every == every - 1: loads.pop(0)(st)
        if fill is not None: fill.take(st, budget)
    assert not loads

def entry(st):
    st.s_cmp_ge_u32(s(2), 256)
    st.s_cbranch_scc1(".Lend")
    if OPT["stamps"]: st.s_memrealtime(s(42, 2)); st.s_memtime(s(86, 2))
    st.s_load_dwordx16(s(44, 16), s(0, 2), 0)
    st.s_load_dwordx4(s(60, 4), s(0, 2), 64)
    st.s_load_dwordx2(s(64, 2), s(0, 2), 80)
    st.v_lshrrev_b32(vT, 6, v(0))
    st.v_and_b32(vL, 63, v(0))
    st.v_readfirstlane_b32(sW, vT)
    st.v_lshlrev_b32(vL16, 4, vL)
    st.v_and_b32(vFL, 15, vL)
    st.v_lshlrev_b32(vFL, 2, vFL)
    st.s_and_b32(sT0, s(2), 7)
    st.s_lshr_b32(sT1, s(2), 3)
    st.s_lshr_b32(sC, sT1, 4)
    st.s_lshl_b32(sT0, sT0, 1)
    st.s_add_u32(sC, sC, sT0)
    st.s_and_b32(sJ, sT1, 15)
    st.s_lshr_b32(sHF, sJ, 3)
    st.s_and_b32(sCG, sJ, 7)
    st.s_and_b32(sM, sW, 3)
    st.s_mov_b32(sCNT, 1 << 18)
    st.s_mov_b32(sPAIR, 0)
    st.s_cmp_lt_u32(sJ, 6)
    st.s_cselect_b32(sT6, 1, 0)
    st.s_getreg_b32(sXC, "hwreg(HW_REG_XCC_ID, 0, 4)")
    for d in (WS, X_, OUT, WQ, WP, WO_, WG, WU, WD):
        st.s_mov_b32(s(int(d[2:d.index(":")]) + 3), 0x20000)
    for d, size in ((X_, 2048 * 1024), (WQ, 512 * 3072), (WS, WS_SIZE), (WP, 32 * 512), (WO_, 512 * 1024), (WG, 512 * 2752),
                    (WU, 512 * 2752), (WD, 1376 * 1024), (OUT, 2048 * 1024)):
        st.s_mov_b32(s(int(d[2:d.index(":")]) + 2), size)
    if oi("cfirst", 0):
        st.s_cmp_ge_u32(sW, 4); st.s_cbranch_scc1(".Lld0")
        compute(st)
        st.label(".Lld0"); st.mark("reset")
    else:
        st.s_cmp_lt_u32(sW, 4); st.s_cbranch_scc1(".Lcomp")

def srds(st, lst):
    src = {X_: 44, WQ: 46, WP: 48, WO_: 50, WG: 54, WU: 56, WD: 58, OUT: 60, WS: 64}
    for d in lst:
        b = int(d[2:d.index(":")])
        st.s_mov_b32(s(b), s(src[d])); st.s_and_b32(s(b + 1), s(src[d] + 1), 0xffff)

def stamp_base(st):
    if OPT["stamps"]:
        st.s_lshl_b32(s(65), s(2), 3); st.s_add_u32(s(65), s(65), sW); st.s_lshl_b32(s(65), s(65), 9)
        st.s_add_u32(s(65), s(65), STAMP)

aK, aV, aQ, AF1, WPH, STT = 16, 32, 48, 64, 88, 96
NM, RS, VE, LR = v(112), v(113), v(114), v(115)
aCS, aA, aB, aR1, aR2 = v(116), v(117), v(118), v(119), v(120)

def kv_items():
    return [dict(chunk=k // 16, off=(k % 16) * 2048, t=t, acc=acc, b=XF + 4 * k, first=k == 0)
            for k in range(32) for t, acc in ((0, aK), (1, aV))]

def wphi_read(st):
    st.v_lshrrev_b32(vU, 5, vL); st.v_and_b32(vT, 1, vL); st.v_cmp_eq_u32("vcc", vT, vU)
    st.v_lshlrev_b32(aCS, 6, vU); st.v_add_u32(aCS, L_CS, aCS)
    st.v_lshlrev_b32(aA, 7, vU); st.v_and_b32(vT, 12, vL); st.v_lshl_add_u32(aA, vT, 3, aA)
    st.v_and_b32(vT, 16, vL); st.v_add_u32(aA, aA, vT); st.v_and_b32(vT, 2, vL); st.v_lshl_add_u32(aA, vT, 2, aA)
    st.v_mov_b32(vT, 544); st.v_cndmask_b32(aA, vT, aA, "vcc"); st.v_add_u32(aA, L_KVB, aA)
    for q in range(4): st.ds_read_b64_tr_b16(v(WPH + 2 * q, 2), aA, mods=f"offset:{576*q}")

def fin_stats(st, S, Q, t0, t1, negmean, rstd, vare):
    if t0: st.v_mov_b32(t0, S)
    st.v_mov_b32(t1, Q)
    if t0: st.v_permlane32_swap_b32(S, t0)
    st.v_permlane32_swap_b32(Q, t1)
    if t0: st.v_add_f32(S, S, t0)
    st.v_add_f32(Q, Q, t1)
    st.v_mul_f32(negmean, f2u(-1.0 / 512), S)
    st.v_mul_f32(Q, f2u(1.0 / 512), Q)
    st.v_fma_f32(vare, "-" + negmean, negmean, Q)
    st.v_max_f32(vare, 0, vare)
    st.v_add_f32(vare, f2u(1e-5), vare)
    st.v_rsq_f32(rstd, vare)

def stats(st, stt, negmean, rstd, vare):
    S, Q = v(stt), v(stt + 1)
    for i in range(4): st.v_add_f32(v(stt + i), v(stt + i), v(stt + 4 + i))
    for i in range(4): st.v_add_f32(v(stt + 8 + i), v(stt + 8 + i), v(stt + 12 + i))
    for i in range(4): st.v_add_f32(v(stt + i), v(stt + i), v(stt + 8 + i))
    st.v_add_f32(S, S, v(stt + 2)); st.v_add_f32(Q, Q, v(stt + 3))
    fin_stats(st, S, Q, v(stt + 2), v(stt + 3), negmean, rstd, vare)

def p1a0(st):
    g0, g1, aW = v(118), v(119), v(120)
    aRd = [v(88 + i) for i in range(4)]
    QD, SA, SELA = 96, 112, 92
    st.v_lshrrev_b32(vT, 3, vL); st.v_and_b32(vV, 7, vL)
    st.v_lshlrev_b32(g0, 10, vT); st.v_lshl_add_u32(g0, vV, 4, g0)
    st.s_lshl_b32(sT0, sC, 2); st.s_add_u32(sT0, sT0, sM); st.s_lshl_b32(sT0, sT0, 15)
    st.s_add_u32(sT1, sT0, 8192); st.s_add_u32(sT2, sT0, 16384); st.s_add_u32(sT3, sT0, 24576)
    st.wait(lgkm=0)
    srds(st, [X_])
    for q in range(8):
        for g in range(4):
            st.buffer_load_dwordx4(v(XF + 16 * q + 4 * g, 4), g0, X_, [sT0, sT1, sT2, sT3][g], mods=f"offen offset:{128*q}")
    srds(st, [WS, OUT])
    stamp_base(st)
    stamp(st, 62, True)
    stamp(st, "start")
    st.buffer_load_dword(vNON, "off", WS, 0, mods=f"offset:{EPOCH} sc1")
    st.s_and_b32(sKH, sM, 1); st.s_lshr_b32(sTP, sM, 1); st.s_mov_b32(sRING, 0)
    st.v_and_b32(aA, 31, vL); st.v_lshlrev_b32(aA, 10, aA); st.v_lshrrev_b32(vT, 5, vL); st.v_lshl_add_u32(aA, vT, 4, aA)
    st.s_lshl_b32(sOUTO, sC, 17); st.s_lshl_b32(sT1, sHF, 16); st.s_add_u32(sOUTO, sOUTO, sT1)
    st.s_lshl_b32(sT1, sTP, 15); st.s_add_u32(sOUTO, sOUTO, sT1); st.s_lshl_b32(sT1, sCG, 7); st.s_add_u32(sOUTO, sOUTO, sT1)
    st.s_lshl_b32(sT1, sKH, 6); st.s_add_u32(sOUTO, sOUTO, sT1)
    st.s_mov_b32(sL2E, f2u(LOG2E)); st.s_mov_b32(sONE, 0x3f803f80)
    st.s_lshl_b32(sT0, sC, 2); st.s_add_u32(sT1, sT0, sM)
    st.s_lshl_b32(sXLD, sT1, 15); st.s_add_u32(sXLD, sXLD, XB)
    st.s_lshl_b32(sSTLD, sT1, 12); st.s_add_u32(sSTLD, sSTLD, ST)
    st.s_lshl_b32(sFA, sT1, 10); st.s_add_u32(sFA, sFA, FL)
    st.s_lshl_b32(sT2, sJ, 2); st.s_add_u32(sFJ, sFA, sT2)
    st.s_mul_i32(sHST, sT1, HB_TB); st.s_add_u32(sHST, sHST, HB)
    st.s_lshl_b32(sT2, sJ, 11); st.s_add_u32(sOST, sHST, sT2)
    st.s_lshl_b32(sT2, sJ, 10); st.s_add_u32(sHST, sHST, sT2)
    st.s_lshl_b32(sDUM, sT1, 11); st.s_add_u32(sDUM, sDUM, DUMMY)
    st.s_lshl_b32(sT1, sHF, 1); st.s_add_u32(sT1, sT1, sT0); st.s_add_u32(sT1, sT1, sTP)
    st.s_lshl_b32(sT3, sCG, 1); st.s_add_u32(sT3, sT3, sKH)
    st.s_lshl_b32(sXST, sT1, 15); st.s_lshl_b32(sT2, sT3, 11); st.s_add_u32(sXST, sXST, sT2); st.s_add_u32(sXST, sXST, XB)
    st.s_lshl_b32(sSTST, sT1, 12); st.s_lshl_b32(sT2, sCG, 9); st.s_add_u32(sSTST, sSTST, sT2)
    st.s_lshl_b32(sT2, sKH, 3); st.s_add_u32(sSTST, sSTST, sT2); st.s_add_u32(sSTST, sSTST, ST)
    st.s_lshl_b32(sFB, sT1, 10); st.s_add_u32(sFB, sFB, FL)
    st.s_lshl_b32(sT2, sT3, 2); st.s_add_u32(sFXST, sFB, sT2)
    st.s_lshl_b32(sT2, sKH, 10)
    st.s_mul_i32(sHLD, sT1, HB_TB); st.s_add_u32(sHLD, sHLD, sT2); st.s_add_u32(sHLD, sHLD, HB)
    st.s_mul_i32(sKVLD, sJ, KV_J); st.s_add_u32(sKVLD, sKVLD, KVP)
    st.s_mul_i32(sKVST, sC, KV_REC); st.s_add_u32(sKVST, sKVST, sKVLD)
    st.s_lshl_b32(sFKVLD, sJ, 11); st.s_add_u32(sFKVLD, sFKVLD, FKV)
    st.s_lshl_b32(sT1, sC, 7); st.s_lshl_b32(sT2, sM, 2); st.s_add_u32(sFKVST, sT1, sT2); st.s_add_u32(sFKVST, sFKVST, sFKVLD)
    for i in range(4): st.v_mov_b32(v(96 + i), 0)
    st.v_and_b32(vT, 3, vL); st.v_mul_u32_u24(vT, 576, vT); st.v_add_u32(vT, L_KVB + 544, vT)
    st.ds_write_b128(vT, v(96, 4))
    st.v_and_b32(vT, 16, vL16); st.v_add_u32(vT, L_SIG, vT)
    st.ds_write_b128(vT, v(96, 4))
    st.v_bfe_u32(vT, vL, 4, 1); st.v_and_b32(vU, 1, vL); st.v_cmp_eq_u32("vcc", vT, vU)
    st.v_mov_b32(vV, sONE)
    for i in range(4): st.v_cndmask_b32(v(SELA + i), 0, vV, "vcc")
    st.s_lshl_b32(sT0, sM, 12); st.s_add_u32(sT0, sT0, L_PH)
    st.v_and_b32(vT, 48, vL); st.v_xor_b32(vT, vT, vL16); st.v_add_u32(aW, sT0, vT); st.v_xor_b32(g1, 64, aW)
    st.v_and_b32(vT, 31, vL); st.v_lshrrev_b32(vU, 5, vL); st.v_bfe_u32(vV, vL, 1, 3); st.v_xor_b32(vU, vU, vV)
    st.v_lshlrev_b32(vT, 7, vT); st.v_lshl_add_u32(vT, vU, 4, vT); st.v_add_u32(aRd[0], sT0, vT)
    for i in range(1, 4): st.v_xor_b32(aRd[i], 32 * i, aRd[0])
    lane_tr(st, vP0, vP1, "qkv"); ring_addr(st, "tr")
    def rnd(q, st):
        R = XF + 16 * q
        for g in range(4): st.ds_write_b128(g1 if g & 1 else aW, v(R + 4 * g, 4), mods=f"offset:{1024*g}")
        for i in range(4): st.ds_read_b128(v(R + 4 * i, 4), aRd[i])
    def smf(k, st):
        f = v(XF + 4 * k, 4)
        st.v_mfma_f32_32x32x16_bf16(v(QD, 16), f, f, "0" if k == 0 else v(QD, 16))
        st.v_mfma_f32_16x16x32_bf16(v(SA, 4), v(SELA, 4), f, "0" if k == 0 else v(SA, 4))
    def res(st):
        st.buffer_load_dwordx4(v(RES, 4), aA, X_, sOUTO, mods="offen")
        st.buffer_load_dwordx4(v(RES + 4, 4), aA, X_, sOUTO, mods="offen offset:32")
    hooks = {}
    if oi("hoist", 1):
        rnd(0, st)
        for q in range(8):
            if q < 7: rnd(q + 1, st)
            for k in range(4 * q, 4 * q + 4): smf(k, st)
        hooks[oi("res0", 40)] = res
    else:
        rnd(0, st)
        at = oi("rnd0", 3)
        for i in range(1, 64):
            def h(st, i=i):
                if i % 8 == at and i // 8 < 7: rnd(i // 8 + 1, st)
                if i % 2 == 1: smf(i // 2, st)
                if i == 56: res(st)
            hooks[i] = h
    stamp(st, "p1pre")
    barrier(st, "a0", drain=True)
    stamp(st, "B(a0)")
    gemm(st, kv_items(), "tr", AF1, 6, 5, ready=[0], bars={oi("a1", 20): ("a1", [1]), oi("a2_0", 48): ("a2", [])}, hooks=hooks)
    st.v_add_u32(vNON, 1, vNON)
    M = [s(50 + 2 * i, 2) for i in range(5)]
    for i, bit in enumerate((16, 8, 2, 1)):
        st.v_and_b32(vT, bit, vL); st.v_cmp_ne_u32(M[i], 0, vT)
    st.v_bfe_u32(vT, vL, 2, 1); st.v_lshrrev_b32(vU, 5, vL); st.v_cmp_eq_u32(M[4], vT, vU)
    st.v_readfirstlane_b32(sNONCE, vNON)
    st.v_cndmask_b32(v(SA), v(SA), v(SA + 1), M[0])
    for i in range(8): st.v_cndmask_b32(v(QD + i), v(QD + i), v(QD + 8 + i), M[0])
    for i in range(4): st.v_cndmask_b32(v(QD + i), v(QD + i), v(QD + 4 + i), M[1])
    for i in range(2): st.v_cndmask_b32(v(QD + i), v(QD + i), v(QD + 2 + i), M[2])
    st.v_cndmask_b32(v(QD), v(QD), v(QD + 1), M[3])
    st.v_cndmask_b32(v(QD), 0, v(QD), M[4])
    fin_stats(st, v(SA), v(QD), None, v(QD + 1), NM, RS, VE)
    barrier(st, "x2")
    stamp(st, "KVgemm")

def frag_loads(base, regs, stride, per):
    out = []
    for k, r in enumerate(regs):
        def f(st, k=k, r=r):
            if k % per == 0: st.s_add_u32(sLD, base, k * stride)
            st.buffer_load_dwordx4(v(r, 4), vL16, WS, sLD, mods=f"offen offset:{(k % per) * stride} {SCL}")
        out.append(f)
    return out

def x_loads(st, stt):
    st.v_lshrrev_b32(vV, 5, vL); st.v_lshlrev_b32(vV, 11, vV); st.v_and_b32(vU, 31, vL); st.v_lshl_add_u32(vV, vU, 4, vV)
    L = frag_loads(sXLD, [XF + 4 * k for k in range(32)], 1024, 4)
    def stl(st):
        for i in range(4):
            st.buffer_load_dwordx4(v(stt + 4 * i, 4), vV, WS, sSTLD, mods=f"offen offset:{512*i} {SCL}")
    return L + [stl]

def featmap(st, acc, kb, wp, e1, e2, lr, mid=None):
    for i in range(8): st.v_cvt_pk_bf16_f32(v(kb + i), v(acc + 2 * i), v(acc + 2 * i + 1))
    st.v_mfma_f32_32x32x16_bf16(v(acc, 16), v(wp, 4), v(kb, 4), "0")
    st.v_mfma_f32_32x32x16_bf16(v(acc, 16), v(wp + 4, 4), v(kb + 4, 4), v(acc, 16))
    if mid: mid(st)
    mx, mn = v(kb), v(kb + 1)
    p = lambda i: v(acc + i)
    st.v_max3_f32(mx, p(0), p(1), p(2)); st.v_min3_f32(mn, p(0), p(1), p(2))
    for i in range(3, 15, 2):
        st.v_max3_f32(mx, mx, p(i), p(i + 1)); st.v_min3_f32(mn, mn, p(i), p(i + 1))
    st.v_max_f32(mx, mx, p(15)); st.v_min_f32(mn, mn, p(15))
    st.v_mul_f32(mx, lr, mx); st.v_mul_f32(mn, lr, mn)
    for i in range(16):
        st.v_fma_f32(v(e1 + i), p(i), lr, "-" + mx); st.v_fma_f32(v(e2 + i), "-" + p(i), lr, mn)
    for i in range(16):
        st.v_exp_f32(v(e1 + i), v(e1 + i)); st.v_exp_f32(v(e2 + i), v(e2 + i))
    s1, s2, s3, s4 = v(kb + 2), v(kb + 3), v(kb + 4), v(kb + 5)
    st.v_add_f32(s1, v(e1), v(e1 + 1)); st.v_add_f32(s2, v(e2), v(e2 + 1))
    st.v_add_f32(s3, v(e1 + 2), v(e1 + 3)); st.v_add_f32(s4, v(e2 + 2), v(e2 + 3))
    for i in range(4, 16, 2):
        st.v_add_f32(s1, s1, v(e1 + i)); st.v_add_f32(s2, s2, v(e2 + i))
        st.v_add_f32(s3, s3, v(e1 + i + 1)); st.v_add_f32(s4, s4, v(e2 + i + 1))
    st.v_add_f32(s1, s1, s3); st.v_add_f32(s2, s2, s4)
    st.v_rcp_f32(s1, s1); st.v_rcp_f32(s2, s2)
    for i in range(16):
        st.v_mul_f32(v(e1 + i), s1, v(e1 + i)); st.v_mul_f32(v(e2 + i), s2, v(e2 + i))
    for i in range(8):
        st.v_cvt_pk_bf16_f32(v(e1 + i), v(e1 + 2 * i), v(e1 + 2 * i + 1))
        st.v_cvt_pk_bf16_f32(v(e2 + i), v(e2 + 2 * i), v(e2 + 2 * i + 1))

def p1a(st):
    lane_tr(st, vP0, vP1, "qkv"); ring_next(st, "tr")
    L = x_loads(st, STT)
    stamp(st, "p1pre")
    poll(st, vFL, sFA)
    stamp(st, "FXpoll")
    pre = oi("pre1", 10)
    for f in L[:pre]: f(st)
    nxt(st)
    barrier(st, "a0")
    stamp(st, "B(a0)")
    gemm(st, kv_items(), "tr", AF1, 6, 5, ready=[0], bars={oi("a1", 20): ("a1", [1]), oi("a2", 56): ("a2", [])}, loads=L[pre:], pre=0)
    stats(st, STT, NM, RS, VE)
    stamp(st, "KVgemm")

def p1b(st):
    AF = AF1
    CK, CV = aQ, AF + 8
    wphi_read(st)
    for i in range(4): st.ds_read_b128(v(CK + 4 * i, 4), aCS, mods=f"offset:{16*i}")
    for i in range(4): st.ds_read_b128(v(CV + 4 * i, 4), aCS, mods=f"offset:{128+16*i}")
    st.v_mul_f32(LR, sL2E, RS)
    for i in range(16): st.v_fma_f32(v(aK + i), v(CK + i), NM, v(aK + i))
    def vpart(st):
        for i in range(16): st.v_fma_f32(v(aV + i), v(CV + i), NM, v(aV + i))
        for i in range(16): st.v_mul_f32(v(aV + i), RS, v(aV + i))
        for i in range(8): st.v_cvt_pk_bf16_f32(v(aV + i), v(aV + 2 * i), v(aV + 2 * i + 1))
        st.v_and_b32(vT, 31, vL); st.s_lshl_b32(sT0, sM, 5); st.v_add_u32(vT, sT0, vT)
        st.v_lshrrev_b32(vU, 5, vL)
        st.v_mul_u32_u24(aA, 144, vT); st.v_lshl_add_u32(aA, vU, 6, aA); st.v_add_u32(aA, L_PH, aA)
        st.v_mul_u32_u24(aB, 80, vT); st.v_lshl_add_u32(aB, vU, 5, aB); st.v_add_u32(aB, L_VB, aB)
        st.ds_write_b128(aB, v(aV, 4)); st.ds_write_b128(aB, v(aV + 4, 4), mods="offset:16")
    featmap(st, aK, AF, WPH, STT, aQ, LR, mid=vpart)
    st.ds_write_b128(aA, v(STT, 4)); st.ds_write_b128(aA, v(STT + 4, 4), mods="offset:16")
    st.ds_write_b128(aA, v(aQ, 4), mods="offset:32"); st.ds_write_b128(aA, v(aQ + 4, 4), mods="offset:48")
    st.v_lshrrev_b32(vT, 4, vL); st.v_lshlrev_b32(vT, 3, vT); st.v_bfe_u32(vU, vL, 2, 2); st.v_add_u32(vT, vT, vU)
    st.v_and_b32(vU, 3, vL); st.v_lshlrev_b32(vU, 3, vU)
    st.s_lshl_b32(sT0, sM, 5); st.s_add_u32(sT0, sT0, L_PH)
    st.v_mul_u32_u24(aR1, 144, vT); st.v_add_u32(aR1, aR1, vU); st.v_add_u32(aR1, sT0, aR1)
    st.s_lshl_b32(sT0, sTP, 5); st.s_add_u32(sT0, sT0, L_VB)
    st.v_mul_u32_u24(aR2, 80, vT); st.v_add_u32(aR2, aR2, vU); st.v_add_u32(aR2, sT0, aR2)
    st.v_lshrrev_b32(vT, 4, vL); st.v_lshlrev_b32(vV, 9, vT)
    st.v_bfe_u32(vU, vL, 2, 2); st.v_lshl_add_u32(vV, vU, 7, vV); st.v_and_b32(vU, 3, vL); st.v_lshl_add_u32(vV, vU, 4, vV)
    st.v_lshrrev_b32(vT, 5, vL); st.v_lshlrev_b32(vT, 6, vT); st.v_bfe_u32(vU, vL, 4, 1); st.v_lshl_add_u32(vT, vU, 4, vT)
    st.s_lshl_b32(sT2, sKH, 11); st.s_add_u32(sT2, sT2, sKVST); st.s_lshl_b32(sT1, sTP, 6); st.s_add_u32(sT2, sT2, sT1)
    st.s_lshl_b32(sT0, sKH, 7); st.s_lshl_b32(sT1, sTP, 5); st.s_add_u32(sT0, sT0, sT1); st.s_add_u32(sT0, sT0, sKVST)
    st.s_add_u32(sT0, sT0, 4096)
    ring_next(st, "tr")
    signal(st)
    sigwait(st)
    stamp(st, "Kepi+B")
    TA, TB, ONE, AKV, AZ = 16, 32, 96, 100, 104
    for k in range(4):
        for q in range(2):
            st.ds_read_b64_tr_b16(v(TA + 4 * k + 2 * q, 2), aR1, mods=f"offset:{(32*k+4*q)*144}")
            st.ds_read_b64_tr_b16(v(TB + 4 * k + 2 * q, 2), aR2, mods=f"offset:{(32*k+4*q)*80}")
    for i in range(4): st.v_mov_b32(v(ONE + i), sONE)
    for k in range(4):
        st.v_mfma_f32_16x16x32_bf16(v(AKV, 4), v(TA + 4 * k, 4), v(TB + 4 * k, 4), "0" if k == 0 else v(AKV, 4))
        st.v_mfma_f32_16x16x32_bf16(v(AZ, 4), v(TA + 4 * k, 4), v(ONE, 4), "0" if k == 0 else v(AZ, 4))
    st.buffer_store_dwordx4(v(AKV, 4), vV, WS, sT2, mods="offen sc1")
    st.buffer_store_dwordx4(v(AZ, 4), vT, WS, sT0, mods="offen sc1", tset="kv")
    stamp(st, "kv st")
    items = []
    for k in range(16):
        for t in range(2):
            items.append(dict(chunk=0, off=k * 2048, t=t, acc=aQ, b=XF + 4 * (k + 16 * t), first=(k, t) == (0, 0)))
    def kvflag(st): st.buffer_store_dword(vNON, "off", WS, sFKVST, mods="sc1", tneed="kv")
    gemm(st, items, "tr", AF, 6, 5, ready=[0], hooks={oi("kvflag", 24): kvflag})
    stamp(st, "Qgemm")
    CS = 96
    for i in range(4): st.ds_read_b128(v(CS + 4 * i, 4), aCS, mods=f"offset:{256+16*i}")
    for i in range(16): st.v_fma_f32(v(aQ + i), v(CS + i), NM, v(aQ + i))
    featmap(st, aQ, AF, WPH, aK, aV, LR)
    st.v_lshrrev_b32(vV, 2, vL); st.v_lshlrev_b32(vV, 7, vV); st.v_and_b32(vU, 3, vL); st.v_lshl_add_u32(vV, vU, 2, vV)
    st.v_lshrrev_b32(aA, 4, vL); st.v_mul_u32_u24(aA, KV_REC, aA); st.v_add_u32(aA, aA, vFL)
    stamp(st, "Q done")
    poll(st, vV, sFKVLD)
    stamp(st, "FKVpoll")
    Gr, Z = XF, XF + 64
    XT = v(XF + 72)
    st.s_lshl_b32(sT0, sM, 10); st.s_add_u32(sT0, sT0, sKVLD)
    st.s_lshl_b32(sT1, sM, 6); st.s_add_u32(sT1, sT1, sKVLD); st.s_add_u32(sT1, sT1, 4096)
    nt = " nt" if OPT.get("kvnt") else ""
    for cc in range(16):
        st.buffer_load_dwordx4(v(Gr + 4 * cc, 4), vL16, WS, sT0, mods="offen sc1" + nt)
        if cc < 15: st.s_add_u32(sT0, sT0, KV_REC)
    for i in range(4):
        st.buffer_load_dword(v(Z + i), aA, WS, sT1, mods="offen sc1" + nt)
        if i < 3: st.s_add_u32(sT1, sT1, 4 * KV_REC)
    if G.TAG == "f":
        st.s_lshl_b32(sT2, sC, 7); st.s_add_u32(sT2, sT2, XCCT)
        st.buffer_load_dword(XT, vFL, WS, sT2, mods="offen sc1")
    nxt(st)
    st.s_mul_i32(sT0, sM, 576); st.s_add_u32(sT0, sT0, L_KVB)
    st.v_and_b32(vT, 31, vL); st.v_lshlrev_b32(vT, 4, vT)
    st.v_lshrrev_b32(vU, 5, vL)
    st.v_lshl_add_u32(aA, vU, 3, vT); st.v_add_u32(aA, sT0, aA)
    st.v_lshrrev_b32(aB, 1, vFL); st.v_add_u32(aB, sT0, aB)
    st.v_bfe_u32(vV, vL, 2, 1); st.v_cmp_eq_u32("vcc", vV, vU)
    st.v_mov_b32(vV, 544); st.v_cndmask_b32(vT, vV, vT, "vcc"); st.v_add_u32(aR1, L_KVB, vT)
    st.v_lshlrev_b32(vU, 4, vU); st.v_add_u32(aR2, L_KVB + 512, vU)
    for cc in range(2, 16):
        d = Gr + 4 * (cc & 1)
        for i in range(4): st.v_add_f32(v(d + i), v(d + i), v(Gr + 4 * cc + i))
    for i in range(4): st.v_add_f32(v(Gr + i), v(Gr + i), v(Gr + 4 + i))
    st.v_cvt_pk_bf16_f32(v(Gr), v(Gr), v(Gr + 1)); st.v_cvt_pk_bf16_f32(v(Gr + 1), v(Gr + 2), v(Gr + 3))
    st.ds_write_b64(aA, v(Gr, 2))
    st.v_add_f32(v(Z), v(Z), v(Z + 1)); st.v_add_f32(v(Z + 2), v(Z + 2), v(Z + 3)); st.v_add_f32(v(Z), v(Z), v(Z + 2))
    st.v_mov_b32(v(Z + 1), v(Z)); st.v_permlane32_swap_b32(v(Z), v(Z + 1)); st.v_add_f32(v(Z), v(Z), v(Z + 1))
    st.v_mov_b32(v(Z + 1), v(Z)); st.v_permlane16_swap_b32(v(Z), v(Z + 1)); st.v_add_f32(v(Z), v(Z), v(Z + 1))
    st.v_cvt_pk_bf16_f32(v(Z), v(Z), v(Z))
    st.ds_write_b16(aB, v(Z), mods="offset:512")
    if G.TAG == "f":
        OK = newlab("xok"); L = newlab("xpoll"); D = newlab("xdec")
        st.s_cmp_lg_u32(sPAIR, 0)
        st.mark("save", OK)
        st.s_cbranch_scc1(OK)
        st.s_add_u32(sT0, sNONCE, 14); st.s_add_u32(sT1, sT0, sXC)
        st.v_cmp_ne_u32("vcc", sT1, XT)
        if not OPT.get("slow"): st.s_cbranch_vccz(OK)
        st.label(L)
        st.buffer_load_dword(XT, vFL, WS, sT2, mods="offen sc1")
        st.wait(vm=0)
        st.v_subrev_u32(vT, sT0, XT)
        st.v_cmp_le_u32("vcc", 16, vT)
        st.s_cbranch_vccz(D)
        st.s_sub_u32(sCNT, sCNT, 1)
        st.s_cbranch_scc0(L)
        st.s_mov_b32(sCNT, 0)
        st.label(D)
        st.v_cmp_ne_u32("vcc", sT1, XT)
        st.mark("save", "toslow")
        if OPT.get("slow"): st.s_branch(".Lg_s")
        else: st.s_cbranch_vccnz(".Lg_s")
        st.mark("merge", OK)
        st.label(OK)
    else:
        st.mark("merge", "toslow")
        st.label(".Lg_s")
    barrier(st, "g", drain=True)
    stamp(st, "gather+B")

def p1c(st):
    PHQ = [aK, aK + 4, aV, aV + 4]
    KA, ZA, NUM, DEN = XF, XF + 16, 48, v(64)
    for u in range(4): st.ds_read_b128(v(KA + 4 * u, 4), aR1, mods=f"offset:{576*u}")
    for u in range(4): st.ds_read_b128(v(ZA + 4 * u, 4), aR2, mods=f"offset:{576*u}")
    st.v_mov_b32(DEN, f2u(1e-6)); st.v_mov_b32(v(65), 0)
    st.v_lshrrev_b32(vU, 5, vL); st.v_lshl_add_u32(aA, vU, 9, vL16)
    for u in range(4):
        st.v_mfma_f32_32x32x16_bf16(v(NUM, 16), v(KA + 4 * u, 4), v(PHQ[u], 4), "0" if u == 0 else v(NUM, 16))
        for i in range(4):
            dd = DEN if i % 2 == 0 else v(65)
            st.v_dot2_f32_bf16(dd, v(PHQ[u] + i), v(ZA + 4 * u + i), dd)
    st.v_add_f32(DEN, DEN, v(65))
    st.v_rcp_f32(DEN, DEN)
    for i in range(16): st.v_mul_f32(v(NUM + i), DEN, v(NUM + i))
    for i in range(8): st.v_cvt_pk_bf16_f32(v(NUM + i), v(NUM + 2 * i), v(NUM + 2 * i + 1))
    st.buffer_store_dwordx4(v(NUM, 4), aA, WS, sOST, mods=f"offen {G.SC}")
    st.buffer_store_dwordx4(v(NUM + 4, 4), aA, WS, sOST, mods=f"offen offset:512 {G.SC}", tset="o")
    small_addr(st)
    st.buffer_store_dword(vNON, "off", WS, sFJ, mods=f"offset:128 {G.SC}", tneed="o")
    st.s_add_u32(sKVST, sKVST, KV_P); st.s_add_u32(sKVLD, sKVLD, KV_P)
    st.s_add_u32(sFKVST, sFKVST, 256 * 128); st.s_add_u32(sFKVLD, sFKVLD, 256 * 128)

def small_addr(st):
    lane_tr(st, vP0, vP1, "nat")
    st.s_lshl_b32(sT0, sKH, 6); st.s_lshl_b32(sT1, sKH, 11)
    st.v_xor_b32(vP0, sT0, vP0); st.v_xor_b32(vP1, sT0, vP1)
    st.v_add_u32(vP0, sT1, vP0); st.v_add_u32(vP1, sT1, vP1)
    ring_next(st, "tr")

def small_items(nsteps, breg):
    items = []
    for k in range(nsteps):
        for t in range(2):
            items.append(dict(chunk=k // 8, off=(k % 8) * 4096, t=t, acc=16 + 16 * t, b=breg(k), first=k == 0))
    return items

def xepi(st, last):
    aA_, aB_, T, P = 16, 32, 64, 48
    aX = v(80)
    st.s_lshl_b32(sT0, sM, 12); st.s_add_u32(sT0, sT0, L_PH); st.v_add_u32(aX, sT0, vL16)
    for i in range(8):
        st.v_lshlrev_b32(v(T + 2 * i), 16, v(RES + i)); st.v_and_b32(v(T + 2 * i + 1), 0xffff0000, v(RES + i))
    for i in range(4): st.ds_write_b128(aX, v(aB_ + 4 * i, 4), mods=f"offset:{1024*i}")
    st.v_xor_b32(aX, 4096, aX)
    for k in range(16): st.v_add_f32(v(T + k), v(T + k), v(aA_ + k))
    barrier(st, "X4" if last else "X2", drain=True)
    for i in range(4): st.ds_read_b128(v(P + 4 * i, 4), aX, mods=f"offset:{1024*i}")
    for k in range(16): st.v_add_f32(v(T + k), v(T + k), v(P + k))
    for i in range(8): st.v_cvt_pk_bf16_f32(v(RES + i), v(T + 2 * i), v(T + 2 * i + 1))
    LF = newlab("fin")
    if last:
        st.mark("save", LF)
        st.s_cmp_eq_u32(sPAIR, 1); st.s_cbranch_scc1(LF)
    st.buffer_store_dwordx4(v(RES, 4), vL16, WS, sXST, mods=f"offen {G.SC}")
    st.buffer_store_dwordx4(v(RES + 4, 4), vL16, WS, sXST, mods=f"offen offset:1024 {G.SC}")
    S, Q, S2, Q2 = v(T), v(T + 1), v(T + 2), v(T + 3)
    st.v_dot2_f32_bf16(S, v(RES), sONE, 0); st.v_dot2_f32_bf16(Q, v(RES), v(RES), 0)
    st.v_dot2_f32_bf16(S2, v(RES + 1), sONE, 0); st.v_dot2_f32_bf16(Q2, v(RES + 1), v(RES + 1), 0)
    for i in range(2, 8, 2):
        st.v_dot2_f32_bf16(S, v(RES + i), sONE, S); st.v_dot2_f32_bf16(Q, v(RES + i), v(RES + i), Q)
        st.v_dot2_f32_bf16(S2, v(RES + i + 1), sONE, S2); st.v_dot2_f32_bf16(Q2, v(RES + i + 1), v(RES + i + 1), Q2)
    st.v_and_b32(aX, 31, vL); st.v_lshlrev_b32(aX, 4, aX); st.v_lshrrev_b32(vT, 5, vL); st.v_lshl_add_u32(aX, vT, 2, aX)
    st.v_add_f32(S, S, S2); st.v_add_f32(Q, Q, Q2)
    st.v_permlane32_swap_b32(S, Q); st.v_add_f32(S, S, Q)
    st.buffer_store_dword(S, aX, WS, sSTST, mods=f"offen {G.SC}", tset="x")
    st.buffer_store_dword(vNON, "off", WS, sFXST, mods=G.SC, tneed="x")
    if last:
        st.s_mov_b32(sPAIR, 1)
        st.s_branch(f".Lpair_{G.TAG}")
        st.label(LF); st.mark("restore", LF)
        st.v_and_b32(aX, 31, vL); st.v_lshlrev_b32(aX, 10, aX); st.v_lshrrev_b32(vT, 5, vL); st.v_lshl_add_u32(aX, vT, 4, aX)
        st.buffer_store_dwordx4(v(RES, 4), aX, OUT, sOUTO, mods="offen")
        st.buffer_store_dwordx4(v(RES + 4, 4), aX, OUT, sOUTO, mods="offen offset:32")

def p2(st):
    stamp(st, "o stored")
    poll(st, vFL, sFB, 128)
    stamp(st, "FOpoll")
    L = frag_loads(sHLD, [XF + 4 * k for k in range(16)], 2048, 2)
    gemm(st, small_items(16, lambda k: XF + 4 * k), "tr", 48, 6, 5, ready=[0, 1], loads=L, pre=oi("pre2", 10), hooks={1: nxt})
    stamp(st, "P2gemm")
    xepi(st, False)

def p3(st):
    ACCS = [16, 32, 48]; AF = 64; CS = 96; TM = 112
    NM3, K1, K3, VE3, aCS3 = v(88), v(89), v(90), v(91), v(92)
    st.v_lshrrev_b32(vU, 5, vL); st.v_lshlrev_b32(aCS3, 6, vU); st.v_add_u32(aCS3, L_CS + 3 * 128, aCS3)
    ring_next(st, "b128")
    L = x_loads(st, STT)
    stamp(st, "x stored")
    poll(st, vFL, sFA)
    stamp(st, "FXpoll2")
    pre = oi("pre3", 10)
    for f in L[:pre]: f(st)
    nxt(st)
    barrier(st, "30")
    stamp(st, "B(30)")
    C1 = -2.0 * math.sqrt(2.0 / math.pi) * LOG2E
    def epi(r):
        f = Stream(); a = ACCS[r % 3]
        for i in range(4): f.ds_read_b128(v(CS + 4 * i, 4), aCS3, mods=f"offset:{128*r+16*i}")
        for i in range(16): f.v_fma_f32(v(a + i), v(CS + i), NM3, v(a + i))
        for i in range(8): f.v_mul_f32(v(TM + i), v(a + i), v(a + i))
        for i in range(8): f.v_fma_f32(v(TM + i), v(TM + i), K3, K1)
        for i in range(8): f.v_mul_f32(v(TM + i), v(TM + i), v(a + i))
        for i in range(8):
            f.v_exp_f32(v(TM + i), v(TM + i)); f.v_mul_f32(v(a + i), v(a + i), v(a + 8 + i))
        for i in range(8): f.v_fma_f32(v(TM + i), v(TM + i), VE3, VE3)
        for i in range(8): f.v_rcp_f32(v(TM + i), v(TM + i))
        for i in range(8): f.v_mul_f32(v(TM + i), v(TM + i), v(a + i))
        for i in range(4): f.v_cvt_pk_bf16_f32(v(TM + 8 + i), v(TM + 2 * i), v(TM + 2 * i + 1))
        f.s_add_u32(sT1, sHST, 16384 * r)
        if r == 5:
            f.s_cmp_eq_u32(sT6, 1); f.s_cselect_b32(sT1, sT1, sDUM)
        f.buffer_store_dwordx4(v(TM + 8, 4), vL16, WS, sT1, mods=f"offen {G.SC}", tset=f"h{r}")
        return f
    def flag(r):
        f = Stream()
        if r == 5:
            f.s_add_u32(sT2, sDUM, 1024); f.s_cmp_eq_u32(sT6, 1); f.s_cselect_b32(sT1, sFJ, sT2)
            f.buffer_store_dword(vNON, "off", WS, sT1, mods=f"offset:{256+64*5} {G.SC}", tneed="h5")
        else:
            f.buffer_store_dword(vNON, "off", WS, sFJ, mods=f"offset:{256+64*r} {G.SC}", tneed=f"h{r}")
        return f
    items = []
    for k in range(32):
        for t in range(2):
            items.append(dict(chunk=k // 16, off=t * 16384 + (k % 16) * 1024, t=0, acc=ACCS[t], b=XF + 4 * k, first=k == 0))
    for r in range(2, 6):
        items += [dict(chunk=r, off=k * 1024, t=0, acc=ACCS[r % 3], b=XF + 4 * k, first=k == 0) for k in range(32)]
    fill = Filler()
    def h_stats(st):
        f = Stream()
        stats(f, STT, NM3, K1, VE3)
        f.v_mul_f32(K3, K1, K1); f.v_mul_f32(K1, f2u(C1), K1); f.v_mul_f32(K3, f2u(0.044715), K3); f.v_mul_f32(K3, K3, K1)
        fill.add(f)
    def h_add(name, must, *parts):
        def h(st):
            stamp(st, name)
            fill.drain_until(st, must)
            for p in parts: fill.add(p)
        return h
    e = [epi(r) for r in range(6)]
    hooks = {60: h_stats,
             64: h_add("t01", None, e[0], e[1]),
             96: h_add("t2", e[0], e[2]),
             128: h_add("t3", e[1], e[3]),
             160: h_add("t4", e[2], e[4], flag(0), flag(1), flag(2), flag(3))}
    bars = {oi("b3a", 48): ("3a", [2, 3]), 80: ("3b", []), 112: ("3c", [4, 5]), 144: ("3d", []), 176: ("3e", []), 191: ("3f", [])}
    gemm(st, items, "b128", AF, 6, 5, ready=[0, 1], bars=bars, fill=fill, budget=oi("bud3", 16), hooks=hooks, loads=L[pre:], pre=0)
    stamp(st, "t5")
    fill.flush(st)
    st.extend(e[5]); st.extend(flag(4))
    small_addr(st)
    st.extend(flag(5))

def p4(st):
    HI = 72
    aP, vS = v(116), v(117)
    st.v_lshlrev_b32(vV, 2, vL)
    st.v_bfe_u32(vT, vL, 4, 1); st.v_cmp_eq_u32("vcc", 0, vT)
    st.v_min_u32(vU, 20, vFL); st.v_add_u32(vU, 64, vU); st.v_cndmask_b32(aP, vU, vFL, "vcc")
    stamp(st, "P3 done")
    poll(st, vV, sFB, 256)
    stamp(st, "FH A")
    breg = lambda k: XF + 4 * k if k < 32 else HI + 4 * (k - 32)
    L = frag_loads(sHLD, [breg(k) for k in range(43)], 2048, 2)
    def softi(st): st.buffer_load_dword(vS, aP, WS, sFB, mods="offen offset:512 sc1")
    f32 = L[32]
    def chk(st):
        soft_check(st, vS, aP, sFB, 512); nxt(st); f32(st)
    L[32] = chk
    k = oi("soft4", 24)
    fk = L[k]
    L[k] = lambda st: (fk(st), softi(st))
    o = oi("b4", 6)
    bars = {o: ("4a", [1]), 16 + o: ("4b", [2]), 32 + o: ("4c", [3]), 48 + o: ("4d", [4]), 64 + o: ("4e", [5])}
    gemm(st, small_items(43, breg), "tr", 48, 6, 5, ready=[0], bars=bars, loads=L, pre=oi("pre4", 10), every=oi("ev4", 2))
    stamp(st, "P4gemm")
    xepi(st, True)

def body(st, first):
    stop = OPT["stop"]
    T = G.TAG
    st.label(f".Lpair_{T}"); st.mark("reset")
    G.SEQ = SEQA; p1a(st)
    G.SEQ = SEQC
    if first:
        st.mark("merge", "from0"); st.label(".Lk_f")
    p1b(st); p1c(st)
    if stop == "p1": st.s_branch(".Lend"); return
    p2(st)
    if stop == "p2": st.s_branch(".Lend"); return
    p3(st)
    if stop == "p3": st.s_branch(".Lend"); return
    p4(st)
    stamp(st, "end")
    stamp(st, 63, True)
    st.s_or_b32(sT0, s(2), sW); st.s_cmp_lg_u32(sT0, 0); st.s_cbranch_scc1(".Lend")
    st.v_add_u32(vNON, 22, vNON)
    st.buffer_store_dword(vNON, "off", WS, 0, mods=f"offset:{EPOCH} sc1")
    st.s_branch(".Lend")

SEQ0, SEQA, SEQC = [], [], []
def compute(st):
    G.SEQ = SEQ0
    p1a0(st)
    st.mark("save", "from0")
    st.s_branch(".Lk_f")
    G.SC, G.TAG = "", "f"
    body(st, True)

def compute_slow(st):
    G.SC, G.TAG, G.REC = "sc1", "s", False
    body(st, False)

sW8, sQK, sWOb, sGU, sWD5, sWI = s(74), s(75), s(76), s(77), s(78), s(79)
sWDb = [s(80 + i) for i in range(4)]
GU = 64
vKV, vQ, vW, vWR0, vWR1 = v(2), v(4), v(5), v(6), v(7)
vGG = [v(8), v(9), v(10)]; vGL = [v(16), v(17), v(18)]; vGT = v(19)
vC0, vC1, vCW, vCR = v(20), v(21), v(22), v(23)
SEL = 24; CACC = 28
FRS = [36, 40, 44, 48, 52]; WRAW = 56
vDUM = [v(11), v(60), v(61), v(62)]
GSTR = 448

def loader(st):
    st.v_lshrrev_b32(vT, 3, vL); st.v_bfe_u32(vU, vL, 4, 1); st.v_lshlrev_b32(vU, 2, vU); st.v_and_b32(vV, 7, vL); st.v_xor_b32(vU, vU, vV)
    st.v_mul_u32_u24(vKV, 3072, vT); st.v_and_b32(vV, 3, vU); st.v_lshl_add_u32(vKV, vV, 4, vKV)
    st.v_lshrrev_b32(vV, 2, vU); st.v_mul_u32_u24(vQ, 256 * 3072, vV); st.v_add_u32(vQ, vQ, vKV)
    st.v_lshl_add_u32(vKV, vV, 10, vKV); st.v_add_u32(vKV, 1024, vKV)
    st.v_lshlrev_b32(vW, 10, vT); st.v_lshl_add_u32(vW, vU, 4, vW)
    st.s_lshl_b32(sW8, sM, 13)
    st.s_mul_i32(sQK, sM, 64 * 3072); st.s_lshl_b32(sT0, sJ, 6); st.s_add_u32(sQK, sQK, sT0)
    st.wait(lgkm=0)
    srds(st, [WQ])
    chunks = []
    for pair in range(2):
        chunks += [("kv", 0), ("kv", 1), ("q", 0), ("wo", 0), ("wo", 1), ("gp", 0), ("gp", 1)] + [("gs", r) for r in range(2, 6)]
        chunks += [("wd", r) for r in range(6)]
    N = len(chunks)
    issued = set()
    def dma(n, addr, srd, offs):
        slot = (n % 4) * 32768
        for i, (base, off, lds) in enumerate(offs):
            st.s_add_u32(sT0, base, off)
            st.s_add_u32("m0", lds[0], slot + lds[1])
            st.buffer_load_dwordx4(addr, srd, sT0, mods="offen lds" + (" nt" if srd == WQ and OPT.get("qnt") else ""), tset=f"c{n}" if i == len(offs) - 1 else None)
    def issue(n):
        if n >= N: return
        assert n not in issued; issued.add(n)
        kind, a = chunks[n]
        if kind == "kv": dma(n, vKV, WQ, [(sQK, (256 * a + 8 * i) * 3072, (sW8, 1024 * i)) for i in range(8)])
        elif kind == "q": dma(n, vQ, WQ, [(sQK, 8 * i * 3072, (sW8, 1024 * i)) for i in range(8)])
        elif kind == "wo": dma(n, vW, WO_, [(sWOb, (256 * a + 8 * i) * 1024, (sW8, 1024 * i)) for i in range(8)])
        elif kind == "wd" and a < 5: dma(n, vW, WD, [(sWDb[i // 2], (16 * a + 8 * (i % 2)) * 1024, (sW8, 1024 * i)) for i in range(8)])
        elif kind == "wd":
            slot = (n % 4) * 32768
            for e in range(3):
                st.s_mul_i32(sT1, sM, 3); st.s_add_u32(sT1, sT1, e)
                st.s_lshr_b32(sT0, sT1, 1); st.s_mul_i32(sT0, sT0, 96 * 1024); st.s_and_b32(sT2, sT1, 1); st.s_lshl_b32(sT2, sT2, 13)
                st.s_add_u32(sT0, sT0, sT2); st.s_add_u32(sT0, sT0, sWD5)
                st.s_lshl_b32(sT1, sT1, 10); st.s_add_u32("m0", sT1, slot)
                st.buffer_load_dwordx4(vW, WD, sT0, mods="offen lds", tset=f"c{n}" if e == 2 else None)
        else:
            slot = n % 4; wr = vWR1 if slot >= 2 else vWR0; so = (slot & 1) * 32768
            for t in range(2):
                for k in range(4):
                    g, fr = (4 * a + k, t) if kind == "gp" else (4 * t + k, a)
                    st.ds_write_b128(wr, v(GU + 24 * g + 4 * fr, 4), mods=f"offset:{so + t*16384 + k*1024}")
    issue(0)
    if oi("kv1first", 1): issue(1)
    if not oi("cfirst", 0):
        st.mark("save", "ld1"); st.s_branch(".Lloader")
        st.label(".Lcomp"); st.mark("reset")
        compute(st)
        st.label(".Lloader"); st.mark("restore", "ld1")
    if not oi("kv1first", 1): issue(1)
    srds(st, [WS, WP, WO_, WG, WU, WD])
    stamp_base(st)
    stamp(st, "start", who="l", pair=0)
    st.s_lshl_b32(sWOb, sM, 16); st.s_lshl_b32(sT0, sCG, 7); st.s_add_u32(sWOb, sWOb, sT0)
    for e in range(4):
        st.s_lshl_b32(sT1, sM, 2); st.s_add_u32(sT1, sT1, e)
        st.s_mul_i32(sT2, sT1, 6); st.s_mul_i32(sT3, sT1, 5); st.s_add_u32(sT3, sT3, 6); st.s_min_u32(sT2, sT2, sT3)
        st.s_lshl_b32(sT2, sT2, 14); st.s_add_u32(sWDb[e], sT2, sT0)
    st.s_add_u32(sWD5, sT0, 80 * 1024)
    st.s_mul_i32(sT2, sJ, 6); st.s_mul_i32(sT3, sJ, 5); st.s_add_u32(sT3, sT3, 6); st.s_min_u32(sT2, sT2, sT3)
    st.s_lshl_b32(sT2, sT2, 5); st.s_mul_i32(sGU, sM, 64 * 2752); st.s_add_u32(sGU, sGU, sT2)
    st.s_cmp_eq_u32(sT6, 1); st.s_cselect_b32(sT1, 12, 10)
    st.s_lshl_b32(sT2, sM, 12); st.s_add_u32(sT2, sT2, 32768)
    for i in range(3):
        st.v_add_u32(vT, 64 * i, vL); st.v_mul_u32_u24(vU, 5462, vT); st.v_lshrrev_b32(vU, 16, vU)
        st.v_mul_u32_u24(vV, 12, vU); st.v_sub_u32(vT, vT, vV)
        st.v_mul_u32_u24(vGG[i], 2752, vU); st.v_lshl_add_u32(vGG[i], vT, 4, vGG[i])
        st.v_cmp_gt_u32("vcc", sT1, vT); st.v_mov_b32(vV, 0x80000000); st.v_cndmask_b32(vGG[i], vV, vGG[i], "vcc")
        st.v_and_b32(vV, 7, vU); st.v_mul_u32_u24(vGL[i], GSTR, vV); st.v_lshrrev_b32(vV, 3, vU); st.v_lshl_add_u32(vGL[i], vV, 14, vGL[i])
        st.v_lshrrev_b32(vV, 1, vT); st.v_lshl_add_u32(vGL[i], vV, 6, vGL[i])
        st.v_and_b32(vV, 1, vT); st.v_lshl_add_u32(vGL[i], vV, 4, vGL[i]); st.v_add_u32(vGL[i], sT2, vGL[i])
    lane_tr(st, vGT, None, "nat", stride=GSTR, hstride=16384); st.v_add_u32(vGT, sT2, vGT)
    lane_tr(st, vC0, vC1, "qkv")
    st.s_lshl_b32(sT0, sM, 12); st.v_add_u32(vWR0, sT0, vL16); st.v_add_u32(vWR1, 65536, vWR0)
    st.v_bfe_u32(vT, vL, 4, 1); st.v_and_b32(vU, 1, vL); st.v_cmp_eq_u32("vcc", vT, vU)
    st.v_mov_b32(vV, 0x3f803f80)
    for i in range(4): st.v_cndmask_b32(v(SEL + i), 0, vV, "vcc")
    st.v_lshlrev_b32(vCW, 6, vT); st.v_lshl_add_u32(vCW, vU, 5, vCW); st.v_lshrrev_b32(vT, 5, vL); st.v_lshl_add_u32(vCW, vT, 4, vCW)
    st.s_and_b32(sWI, sC, 1); st.s_lshl_b32(sWI, sWI, 4); st.s_add_u32(sWI, sWI, sJ); st.s_lshl_b32(sWI, sWI, 2); st.s_add_u32(sWI, sWI, sM)
    def publish():
        L = newlab("pub")
        st.v_add_u32(vNON, sXC, vNON); st.v_add_u32(vNON, 16, vNON)
        st.s_lshl_b32(sT0, sC, 7); st.s_lshl_b32(sT1, sJ, 2); st.s_add_u32(sT0, sT0, sT1); st.s_add_u32(sT0, sT0, XCCT)
        st.s_cmp_lg_u32(sM, 0); st.mark("save", L); st.s_cbranch_scc1(L)
        st.buffer_store_dword(vNON, "off", WS, sT0, mods="sc1")
        st.mark("merge", L); st.label(L)
    dn = [0]
    def dum():
        dn[0] += 1
        return vDUM[dn[0] % 4]
    def tload(addr, srd, soff):
        i = Ins("buffer_load_dword", [dum(), addr, srd, str(soff)], "offen"); i.dst = set(); st.l.append(i)
    def touch(kind):
        if kind == "wd":
            st.s_mul_i32(sT0, sWI, 86 * 128); st.v_lshlrev_b32(vT, 7, vL); tload(vT, WD, sT0)
            st.v_min_u32(vU, 21, vL); st.v_lshlrev_b32(vU, 7, vU); st.s_add_u32(sT0, sT0, 8192); tload(vU, WD, sT0)
        elif kind == "kv":
            st.v_lshrrev_b32(vT, 4, vL); st.v_mul_u32_u24(vT, 3072, vT); st.v_lshl_add_u32(vT, vFL, 5, vT)
            st.s_mul_i32(sT0, sWI, 4 * 3072); st.s_add_u32(sT0, sT0, 1024); tload(vT, WQ, sT0)
        elif kind == "q":
            st.v_bfe_u32(vT, vL, 3, 2); st.v_mul_u32_u24(vT, 3072, vT); st.v_and_b32(vU, 7, vL); st.v_lshl_add_u32(vT, vU, 7, vT)
            st.s_mul_i32(sT0, sWI, 4 * 3072); tload(vT, WQ, sT0)
        elif kind == "wo":
            st.v_and_b32(vT, 31, vL); st.v_lshlrev_b32(vT, 7, vT); st.s_lshl_b32(sT0, sWI, 12); tload(vT, WO_, sT0)
        elif kind == "h":
            st.s_lshl_b32(sT0, sC, 4); st.s_add_u32(sT0, sT0, sJ); st.s_lshl_b32(sT0, sT0, 2); st.s_add_u32(sT0, sT0, sM)
            st.s_mul_i32(sT0, sT0, 43 * 128); st.s_add_u32(sT0, sT0, HB)
            st.v_min_u32(vT, 42, vL); st.v_lshlrev_b32(vT, 7, vT); tload(vT, WS, sT0)
        elif kind == "x":
            st.s_lshl_b32(sT0, sC, 4); st.s_add_u32(sT0, sT0, sJ); st.s_lshl_b32(sT0, sT0, 2); st.s_add_u32(sT0, sT0, sM)
            st.s_lshl_b32(sT1, sT0, 11); st.s_add_u32(sT1, sT1, XB)
            st.s_lshl_b32(sT2, sT0, 8); st.s_add_u32(sT2, sT2, ST - 16 * 128)
            st.s_lshl_b32(sT3, sC, 2); st.s_add_u32(sT3, sT3, sM); st.s_lshl_b32(sT3, sT3, 10); st.s_add_u32(sT3, sT3, FL - 18 * 128)
            st.v_mov_b32(vU, sT1); st.v_mov_b32(vV, sT2); st.v_cmp_le_u32("vcc", 16, vL); st.v_cndmask_b32(vU, vU, vV, "vcc")
            st.v_mov_b32(vV, sT3); st.v_cmp_le_u32("vcc", 18, vL); st.v_cndmask_b32(vU, vU, vV, "vcc")
            st.v_min_u32(vT, 22, vL); st.v_lshl_add_u32(vT, vT, 7, vU); tload(vT, WS, 0)
        elif kind == "code":
            st.s_getpc_b64(s(100, 2))
            L = newlab("pc")
            st.label(L)
            st.raw(f"    s_sub_u32 s100, s100, {L}-{NAME}_kernel")
            st.raw("    s_subb_u32 s101, s101, 0")
            st.v_lshlrev_b32(vT, 7, vL); st.s_lshl_b32(sT0, sM, 13); st.v_add_u32(vT, sT0, vT)
            i = Ins("global_load_dword", [dum(), vT, s(100, 2)]); i.dst = set(); st.l.append(i)
            st.v_add_u32(vU, 32768, vT); st.v_min_u32(vU, f".Lslow-{NAME}_kernel", vU)
            i = Ins("global_load_dword", [dum(), vU, s(100, 2)]); i.dst = set(); st.l.append(i)
    gl = []
    for g in range(8):
        k0 = (16 * (g // 4) + (g % 4)) * 16
        for m_, srd in enumerate((WG, WU)):
            for i in range(3):
                def f(g=g, k0=k0, m_=m_, srd=srd, i=i):
                    if i == 0: st.s_add_u32(sLD, sGU, k0 * 2752)
                    st.buffer_load_dwordx4(v(GU + 24 * g + 12 * m_ + 4 * i, 4), vGG[i], srd, sLD, mods="offen" + (" nt" if OPT.get("gunt") else ""))
                gl.append(f)
    def gu_loads(cnt):
        for _ in range(min(cnt, len(gl))): gl.pop(0)()
    def colsum(n, steps, first, lo, hi, dst=None):
        L = newlab("cs")
        st.s_sub_u32(sT0, sM, lo); st.s_cmp_ge_u32(sT0, hi - lo); st.mark("save", L); st.s_cbranch_scc1(L)
        nf = len(FRS)
        def rd(k):
            a, off = steps[k]; r = FRS[k % nf]
            st.ds_read_b64_tr_b16(v(r, 2), a, mods=f"offset:{off}"); st.ds_read_b64_tr_b16(v(r + 2, 2), a, mods=f"offset:{off+512}")
        for k in range(nf - 1): rd(k)
        for k in range(len(steps)):
            acc = v(CACC + 4 * (k & 1), 4)
            st.v_mfma_f32_16x16x32_bf16(acc, v(FRS[k % nf], 4), v(SEL, 4), "0" if first and k < 2 else acc)
            if k + nf - 1 < len(steps): rd(k + nf - 1)
        if dst is not None:
            for i in range(4): st.v_add_f32(v(CACC + i), v(CACC + i), v(CACC + 4 + i))
            st.ds_write_b128(dst, v(CACC, 4))
        st.mark("merge", L); st.label(L)
    def transpose(g):
        b = GU + 24 * g
        for m_ in range(2):
            for i in range(3): st.ds_write_b128(vGL[i], v(b + 12 * m_ + 4 * i, 4), mods=f"offset:{32*m_}")
        for t in range(6):
            for u in range(2): st.ds_read_b64_tr_b16(v(b + 4 * t + 2 * u, 2), vGT, mods=f"offset:{u*4*GSTR + t*64}")
    def tsum(g):
        b = GU + 24 * g
        for t in range(6):
            st.v_mfma_f32_16x16x32_bf16(v(CACC + 4 * t, 4), v(b + 4 * t, 4), v(SEL, 4), "0" if g == 0 else v(CACC + 4 * t, 4))
    tr_next = [0]
    def transposes(cnt):
        gs = list(range(tr_next[0], min(8, tr_next[0] + cnt))); tr_next[0] += len(gs)
        for i, g in enumerate(gs):
            transpose(g)
            if i > 0: tsum(gs[i - 1])
        tsum(gs[-1])
    def gu_partial():
        st.s_mul_i32(sT0, sM, 768); st.s_add_u32(sT0, sT0, L_VB); st.v_add_u32(vT, sT0, vCW)
        for i in range(6): st.ds_write_b128(vT, v(CACC + 4 * i, 4), mods=f"offset:{128*i}")
    def gu_reduce():
        st.v_min_u32(vCR, 6 * 128 - 16, vL16)
        st.v_add_u32(vT, L_VB, vCR)
        for w in range(4): st.ds_read_b128(v(CACC + 4 * w, 4), vT, mods=f"offset:{w*768}")
        for i in range(4):
            st.v_add_f32(v(CACC + i), v(CACC + i), v(CACC + 4 + i)); st.v_add_f32(v(CACC + 8 + i), v(CACC + 8 + i), v(CACC + 12 + i))
        for i in range(4): st.v_add_f32(v(CACC + i), v(CACC + i), v(CACC + 8 + i))
        st.v_add_u32(vT, L_CS + 384, vCR)
        st.ds_write_b128(vT, v(CACC, 4))
    def cs_kv(a):
        if a == 0:
            st.s_lshl_b32(sT0, sM, 6); st.v_xor_b32(vCR, sT0, vC0)
        else:
            st.s_lshl_b32(sT0, sM, 7); st.s_add_u32(sT0, sT0, L_CS); st.v_add_u32(vV, sT0, vCW)
        colsum(a, [(vCR, 32768 * a + 2048 * k) for k in range(16)], a == 0, 0, 2, dst=vV if a == 1 else None)
    def cs_q():
        st.v_add_u32(vT, 65536, vC0); st.v_add_u32(vU, 65536, vC1); st.v_add_u32(vV, L_CS + 256, vCW)
        colsum(2, [(a, 2048 * k) for k in range(16) for a in (vT, vU)], True, 2, 3, dst=vV)

    need = {"a0": [0], "a1": [1], "x2": [2], "g": [3, 4], "30": [5, 6], "3a": [7, 8], "3c": [9, 10], "3f": [11],
            "4a": [12], "4b": [13], "4c": [14], "4d": [15], "4e": [16]}
    S0 = os_("s0", "a0:q,non,wld,csk0;a1:csk1;a2:wst,pub;x2:csq,sig,G48,c3,c4,Tx,Th,X4;g:X4,part,c5,c6;X2:c7,c8;30:red,wst;"
                   "3a:c9,Twd;3b:c10;3c:c11;3d:c12;3e:c13;3f:c14;4b:c15;4c:c16;4d:c17;4e:c18")
    S1 = os_("s1", "a2:c2,sig,c3,c4;g:c5,c6;X2:c7,c8;3a:c9,Twd;3b:c10;3c:c11;3d:c12;3e:c13;3f:c14;4b:c15;4c:c16")
    def acts(txt):
        d = {}
        for part in txt.split(";"):
            k, _, l = part.partition(":"); d[k] = l.split(",")
        return d
    def run(lst, o):
        for a in lst:
            if a == "q": issue(2)
            elif a == "pub": publish()
            elif a == "wld": st.s_lshl_b32(sT0, sJ, 10); st.buffer_load_dwordx4(v(WRAW, 4), vL16, WP, sT0, mods="offen")
            elif a == "wst":
                st.v_bfe_u32(vT, vL, 3, 2); st.v_mul_u32_u24(vT, 576, vT); st.v_lshrrev_b32(vU, 5, vL); st.v_lshl_add_u32(vT, vU, 7, vT)
                st.v_and_b32(vU, 112, vL16); st.v_add_u32(vT, vT, vU); st.v_add_u32(vT, L_KVB, vT)
                st.ds_write_b128(vT, v(WRAW, 4))
            elif a == "non": st.buffer_load_dword(vNON, "off", WS, 0, mods=f"offset:{EPOCH} sc1")
            elif a == "sig":
                st.l.append(Ins("s_nop", ["0"], tneed=f"c{o+2}")); signal(st, 1 + o // 17)
            elif a.startswith("csk"): cs_kv(int(a[3]))
            elif a == "csq": cs_q()
            elif a == "part": gu_partial()
            elif a == "red": gu_reduce()
            elif a.endswith("x") and a[0] == "c": pass
            elif a[0] == "c": issue(o + int(a[1:]))
            elif a[0] == "G": gu_loads(int(a[1:]))
            elif a[0] == "X": transposes(int(a[1:]))
            elif a[0] == "T": touch(a[1:])
            else: raise ValueError(a)
    for pair in range(1 if OPT['stop'] else 2):
        o = 17 * pair; A = acts(S0 if pair == 0 else S1)
        run(A.get("start", []), o)
        for b in (SEQ0 if pair == 0 else SEQA) + SEQC:
            tk = []
            for n in need.get(b, []):
                assert o + n in issued, (pair, b, n)
                tk.append(f"c{o+n}")
            stamp(st, "<" + b, who="l", pair=pair)
            st.wait(lgkm=0)
            st.l.append(Ins("s_barrier", [], tneed=tk))
            run(A.get(b, []), o)
    assert OPT['stop'] or (not gl and tr_next[0] == 8)
    st.s_branch(".Lend")

def main():
    st = Stream()
    entry(st)
    loader(st)
    st.label(".Lslow")
    compute_slow(st)
    st.label(".Lend")
    st.s_endpgm()
    bodyt = finalize(st)
    ref = open(f"cdna_kernels/{NAME}.s.ref").read().split("\n")
    head = [l for l in ref if l.startswith(";") and "@launch" not in l]
    out = "\n".join(head) + f"\n; @launch grid=(256,1,1) block=(512,1,1) lds={LDS_BYTES}\n"
    out += '.amdgcn_target "amdgcn-amd-amdhsa--gfx950"\n' + khead(NAME + "_kernel") + bodyt + kd(NAME + "_kernel")
    path = sys.argv[1] if len(sys.argv) > 1 else f"cdna_kernels/{NAME}.s"
    open(path, "w").write(out)
    json.dump(stamp_names, open(path + ".json", "w"))
    n = sum(1 for l in bodyt.split("\n") if l.startswith("    ") and not l.strip().startswith(";"))
    print("wrote", path, "instructions:", n, "barriers:", SEQ0, SEQA, SEQC)

main()
```

```python
import re

def v(i, n=1):
    return f"v{i}" if n == 1 else f"v[{i}:{i+n-1}]"
def s(i, n=1):
    return f"s{i}" if n == 1 else f"s[{i}:{i+n-1}]"

_REG = re.compile(r"^(-|abs\()?([vs])(?:(\d+)|\[(\d+):(\d+)\])\)?$")
def regs_of(opnd):
    o = opnd.strip()
    if o == "vcc": return {("s", 106), ("s", 107)}
    if o == "vcc_lo": return {("s", 106)}
    if o == "exec": return {("s", 126), ("s", 127)}
    if o == "m0": return {("s", 124)}
    m = _REG.match(o)
    if not m: return set()
    k = m.group(2)
    if m.group(3) is not None: return {(k, int(m.group(3)))}
    return {(k, i) for i in range(int(m.group(4)), int(m.group(5)) + 1)}

TRANS = ("v_exp_f32", "v_log_f32", "v_rcp_f32", "v_rsq_f32", "v_sqrt_f32", "v_sin_f32", "v_cos_f32")

class Ins:
    __slots__ = ("name", "ops", "mods", "kind", "dst", "src", "passes", "srcC", "srcAB", "raw", "wide_store", "comment")
    def __init__(self, name, ops=(), mods="", raw=None, comment="", tset=None, tneed=None):
        self._init(name, ops, mods, raw, comment)
        if tset: self.dst = self.dst | {("t", tset)}
        if tneed:
            for x in (tneed if isinstance(tneed, (list, tuple)) else [tneed]): self.src = self.src | {("t", x)}
    def _init(self, name, ops=(), mods="", raw=None, comment=""):
        self.name, self.ops, self.mods, self.raw, self.comment = name, list(ops), mods, raw, comment
        self.dst, self.src = set(), set()
        self.passes = 0; self.srcC = set(); self.srcAB = set(); self.wide_store = False
        n = name
        R = [regs_of(o) for o in self.ops]
        allr = lambda l: set().union(*l) if l else set()
        if raw is not None:
            self.kind = "raw"
        elif n.startswith("v_mfma"):
            self.kind = "mfma"; self.dst = R[0]; self.srcAB = R[1] | R[2]; self.srcC = R[3]
            self.src = self.srcAB | self.srcC
            self.passes = 8 if "32x32x16" in n else 4 if "16x16x32" in n else None
            assert self.passes
        elif n.startswith("v_"):
            self.kind = "valu"
            if n.startswith("v_permlane"):
                self.dst = R[0] | R[1]; self.src = R[0] | R[1]
            elif n.startswith("v_cmp"):
                self.dst = R[0]; self.src = allr(R[1:])
            elif n.startswith(("v_fmac", "v_pk_fmac", "v_dot2c")):
                self.dst = R[0]; self.src = allr(R)
            else:
                self.dst = R[0]; self.src = allr(R[1:])
        elif n.startswith("ds_read") or n.startswith("ds_bpermute") or n.startswith("ds_swizzle"):
            self.kind = "ds"; self.dst = R[0]; self.src = allr(R[1:])
        elif n.startswith("ds_"):
            self.kind = "ds"; self.src = allr(R)
        elif n.startswith(("buffer_load", "global_load")):
            self.kind = "vmem"
            if " lds" in (" " + mods) or "_lds_" in n:
                self.src = allr(R) | {("s", 124)}
            else:
                self.dst = R[0]; self.src = allr(R[1:])
                if "d16" in n: self.src |= R[0]
        elif n.startswith(("buffer_store", "global_store")):
            self.kind = "vmem"; self.src = allr(R)
            self.wide_store = n.endswith("x4") or n.endswith("x3")
        elif n.startswith(("buffer_atomic", "global_atomic")):
            self.kind = "vmem"; self.src = allr(R)
            if "sc0" in mods: self.dst = R[0]
        elif n.startswith("s_load") or n.startswith("s_memtime") or n.startswith("s_memrealtime"):
            self.kind = "smem"; self.dst = R[0]; self.src = allr(R[1:])
        elif n in ("s_waitcnt", "s_nop", "s_barrier", "s_endpgm", "s_sleep", "s_setprio") or n.startswith("s_cbranch") or n == "s_branch":
            self.kind = "ctl"
        elif n.startswith("s_cmp") or n.startswith("s_bitcmp"):
            self.kind = "salu"; self.src = allr(R)
        elif n.startswith("s_"):
            self.kind = "salu"; self.dst = R[0]; self.src = allr(R[1:])
            if n in ("s_addk_i32", "s_mulk_i32"): self.src |= R[0]
            if "saveexec" in n: self.dst |= regs_of("exec")
        else:
            raise ValueError("unknown instr " + n)
    def text(self):
        if self.raw is not None: return self.raw
        t = "    " + self.name
        if self.ops: t += " " + ", ".join(self.ops)
        if self.mods: t += " " + self.mods
        if self.comment: t += "    ; " + self.comment
        return t

class Stream:
    def __init__(self): self.l = []
    def op(self, name, *ops, mods="", c="", tset=None, tneed=None):
        self.l.append(Ins(name, [str(o) for o in ops], mods, comment=c, tset=tset, tneed=tneed)); return self
    def __getattr__(self, name):
        if name.startswith(("v_", "s_", "ds_", "buffer_", "global_")):
            return lambda *ops, mods="", c="", tset=None, tneed=None: self.op(name, *ops, mods=mods, c=c, tset=tset, tneed=tneed)
        raise AttributeError(name)
    def raw(self, text): self.l.append(Ins("raw", raw=text)); return self
    def label(self, name): return self.raw(name + ":")
    def cmt(self, t): return self.raw("    ; " + t)
    def wait(self, vm=None, lgkm=None):
        p = []
        if vm is not None: p.append(f"vmcnt({vm})")
        if lgkm is not None: p.append(f"lgkmcnt({lgkm})")
        i = Ins("s_waitcnt", [" ".join(p)]); self.l.append(i); return self
    def mark(self, what, *args): self.l.append(Ins("raw", raw=f"    ;@{what} " + " ".join(map(str, args)))); return self
    def extend(self, other): self.l.extend(other.l if isinstance(other, Stream) else other); return self

def interleave(main, filler, per_gap, start=0):
    out = Stream(); f = list(filler.l); k = 0; nm = 0
    for ins in main.l:
        out.l.append(ins)
        if ins.kind == "mfma":
            nm += 1
            if nm > start:
                budget = per_gap if not callable(per_gap) else per_gap(nm)
                while k < len(f) and budget > 0:
                    cost = 2 if f[k].name in TRANS else (0 if f[k].kind == "raw" else 1)
                    out.l.append(f[k]); budget -= cost; k += 1
    out.l.extend(f[k:])
    return out

def cost(i):
    if i.kind == "raw": return 0
    if i.name in TRANS: return 8
    if i.name.startswith("v_dot2"): return 8
    if i.kind == "mfma": return 8
    if i.kind == "vmem": return 4
    if i.kind == "salu" or i.name == "s_waitcnt": return 4
    return 4

class Filler:
    strict = True
    def __init__(self): self.q = []
    def add(self, st): self.q.extend(st.l)
    def take(self, out, budget):
        took = False
        while self.q and budget > 0:
            i = self.q[0]
            c = cost(i)
            if c > budget and (budget < 4 or (self.strict and out.l[-1].kind != "mfma" and took)): break
            took = True
            out.l.append(self.q.pop(0)); budget -= c
    def flush(self, out):
        out.l.extend(self.q); self.q = []
    def drain_until(self, out, stream):
        if stream is None: return
        ids = {id(i) for i in stream.l}
        last = max((k for k, i in enumerate(self.q) if id(i) in ids), default=-1)
        out.l.extend(self.q[:last + 1]); self.q = self.q[last + 1:]

VM_MAX, LGKM_MAX = 63, 15

def finalize(stream, verbose=False):
    out = []
    vm, lg = {}, {}
    smem_pending = set()
    saved = {}
    hist = []
    def age(n):
        for h in hist: h[1] += n
        while hist and hist[0][1] > 24: hist.pop(0)
    def emit(i, states=1):
        out.append(i)
        if i.kind != "raw":
            age(states); hist.append([i, 0])
    def do_wait(vmn, lgn):
        nonlocal vm, lg
        p = []
        if vmn is not None: p.append(f"vmcnt({vmn})"); vm = {r: c for r, c in vm.items() if c < vmn}
        if lgn is not None:
            p.append(f"lgkmcnt({lgn})"); lg = {r: c for r, c in lg.items() if c < lgn}
            if lgn == 0: smem_pending.clear()
        emit(Ins("s_waitcnt", [" ".join(p)]))
    for ins in stream.l:
        if ins.kind == "raw":
            t = ins.raw.strip()
            if t.startswith(";@save"): saved[t.split()[1]] = (dict(vm), dict(lg), [list(h) for h in hist])
            elif t.startswith(";@merge"):
                a, b, hh = saved[t.split()[1]]
                for r, c in a.items(): vm[r] = min(vm.get(r, 999), c)
                for r, c in b.items(): lg[r] = min(lg.get(r, 999), c)
                hist[:0] = [[h[0], h[1] + 1] for h in hh]
                hist.sort(key=lambda h: -h[1])
            elif t.startswith(";@restore"):
                a, b, hh = saved[t.split()[1]]
                vm, lg = dict(a), dict(b); hist[:] = [[h[0], h[1] + 1] for h in hh]
            elif t.startswith(";@reset"):
                vm, lg = {}, {}; smem_pending.clear(); hist.clear()
            out.append(ins); continue
        if ins.name == "s_waitcnt":
            t = ins.ops[0]
            m1 = re.search(r"vmcnt\((\d+)\)", t); m2 = re.search(r"lgkmcnt\((\d+)\)", t)
            do_wait(int(m1.group(1)) if m1 else None, int(m2.group(1)) if m2 else None)
            continue
        if ins.name == "s_nop" and not ins.src:
            emit(ins, int(ins.ops[0]) + 1); continue
        touched = ins.src | ins.dst
        need_vm = min([vm[r] for r in touched if r in vm], default=None)
        need_lg = min([lg[r] for r in touched if r in lg], default=None)
        if touched & smem_pending: need_lg = 0
        if need_vm is not None or need_lg is not None:
            do_wait(None if need_vm is None else min(need_vm, VM_MAX), None if need_lg is None else min(need_lg, LGKM_MAX))
        need = 0
        for p, d in hist:
            req = 0
            vsrc = {r for r in ins.src if r[0] == "v"}
            if p.kind == "mfma":
                big = p.passes == 8
                if ins.kind == "mfma":
                    if p.dst & ins.srcAB: req = max(req, 12 if big else 8)
                    if p.dst & ins.srcC and not (p.dst == ins.srcC and p.passes == ins.passes): req = max(req, 10 if big else 6)
                    if p.dst & ins.dst and not (p.dst == ins.srcC and p.passes == ins.passes): req = max(req, 10 if big else 6)
                elif ins.kind in ("valu", "vmem", "ds"):
                    if p.dst & touched: req = max(req, 12 if big else 8)
                    if ins.kind == "valu" and (p.srcC & ins.dst): req = max(req, 7 if big else 3)
            elif p.kind == "valu":
                pv = {r for r in p.dst if r[0] == "v"}; ps = {r for r in p.dst if r[0] == "s"}
                if ins.kind == "mfma" and pv & ins.src: req = max(req, 2)
                if p.name.startswith("v_dot") and pv & touched:
                    same_c = ins.name == p.name and len(ins.ops) == 4 and not (pv & (regs_of(ins.ops[1]) | regs_of(ins.ops[2])))
                    if not same_c: req = max(req, 3)
                if ins.name.startswith("v_permlane") and pv & ins.src: req = max(req, 2)
                if ins.name.startswith(("v_readfirstlane", "v_readlane")) and pv & ins.src: req = max(req, 1)
                if "dpp" in ins.mods or "row_" in ins.mods or "quad_perm" in ins.mods:
                    if pv & ins.src: req = max(req, 2)
                if p.name in TRANS and ins.kind == "valu" and ins.name not in TRANS and pv & ins.src: req = max(req, 1)
                if p.name in TRANS and ins.kind != "valu" and pv & ins.src: req = max(req, 1)
                if ps & ins.src:
                    if ins.kind == "vmem": req = max(req, 5)
                    elif ins.kind == "valu": req = max(req, 2)
                    elif ins.kind in ("salu", "smem"): req = max(req, 1)
                if ("op_sel" in p.mods or "sdwa" in p.mods) and ins.kind == "valu" and pv & touched and not p.name.startswith("v_pk_"): req = max(req, 1)
            elif p.kind == "vmem" and p.wide_store:
                data = regs_of(p.ops[0]) if p.name.startswith("buffer") else regs_of(p.ops[1])
                if data & ins.dst: req = max(req, 2 if ins.kind in ("valu", "mfma") else 1)
            elif p.kind == "salu":
                if ("s", 124) in p.dst and ("s", 124) in ins.src and ins.kind in ("vmem", "ds"): req = max(req, 1)
                if regs_of("exec") & p.dst and ins.kind == "mfma": req = max(req, 0)
            need = max(need, req - d)
        while need > 0:
            k = min(need, 16); emit(Ins("s_nop", [str(k - 1)]), k); need -= k
        if ins.kind == "vmem":
            for r in vm: vm[r] += 1
            for r in ins.dst: vm[r] = 0
        elif ins.kind == "ds":
            for r in lg: lg[r] += 1
            for r in ins.dst: lg[r] = 0
        elif ins.kind == "smem":
            smem_pending |= ins.dst
            for r in lg: lg[r] = 0
        emit(ins)
    return "\n".join(i.text() for i in out) + "\n"

def kd(name, vgpr=256, sgpr=102):
    acc = (vgpr + 3) // 4 * 4
    return f""".section .rodata,"a"
.p2align 6
.amdhsa_kernel {name}
  .amdhsa_next_free_vgpr {vgpr}
  .amdhsa_next_free_sgpr {sgpr}
  .amdhsa_accum_offset {acc}
  .amdhsa_group_segment_fixed_size 0
  .amdhsa_kernarg_size 88
  .amdhsa_user_sgpr_count 2
  .amdhsa_user_sgpr_kernarg_segment_ptr 1
  .amdhsa_system_sgpr_workgroup_id_x 1
.end_amdhsa_kernel
"""
def khead(name):
    return f""".text
.globl {name}
.p2align 8
.type {name},@function
{name}:
"""
```

```python
KB = 1024; MB = 1 << 20
EPOCH   = 0
XCCT    = 4096
FL      = 64 * KB
FKV     = FL + 64 * KB
DUMMY   = FKV + 64 * KB
XB      = 1 * MB
ST      = XB + 2 * MB
HB_TB   = 86 * KB
HB      = ST + 256 * KB
KV_REC  = 2304
KV_J    = 16 * KV_REC
KV_P    = 16 * KV_J
KVP     = HB + 64 * HB_TB
TG_W    = 768
TG_P    = 16 * 64 * TG_W
WS_END  = KVP + 2 * TG_P
STAMP   = (WS_END + 4095) // 4096 * 4096
WS_SIZE = 268435456
assert DUMMY + 128 * KB <= XB
RING    = 0
L_PH    = 131072
L_VB    = L_PH + 128 * 144
L_KVB   = L_VB + 128 * 80
L_CS    = L_KVB + 4 * 576
L_SIG   = L_CS + 9 * 128
L_EV    = L_SIG + 64
L_KH    = L_PH + 16384
L_END   = L_EV + 64
assert L_END <= 163840, L_END
LDS_BYTES = 163840
def fstart(j): return 6 * j if j < 6 else 5 * j + 6
```

```python
import sys, os, math, struct, json
sys.path.insert(0, os.path.dirname(os.path.abspath(__file__)))
from asmlib import *
from layout5 import *

NAME = "interleave_layers__linear_kernel_hedgehog__geglu_ffn__prompt"
OPT = dict(stop=None, stamps=False)
for a in sys.argv[2:]:
    k, _, val = a.partition("=")
    OPT[k] = val if val != "" else True
def oi(k, d): return int(OPT.get(k, d))
def os_(k, d): return str(OPT.get(k, d))
SCL = "sc1"
def f2u(x): return "0x%08x" % struct.unpack("<I", struct.pack("<f", x))[0]
LOG2E = 1.4426950408889634
class G: SC = ""; TAG = "f"; SEQ = None; REC = True

WS, X_, OUT, WQ, WP, WO_, WG, WU, WD = [s(4 + 4 * i, 4) for i in range(9)]
sXC = s(40)
sC, sJ, sHF, sCG, sM, sNONCE, sCNT, sPAIR = [s(66 + i) for i in range(8)]
sW = s(3)
sXLD, sSTLD, sFA, sXST, sSTST, sFXST = [s(74 + i) for i in range(6)]
sOST, sFB, sFJ = s(80), s(81), s(82)
sHLD, sHST = s(84), s(85)
sKVST, sKVLD, sFKVST, sFKVLD = [s(88 + i) for i in range(4)]
sKZ, sGZ, sHALF, sH5, sF5, sHS = s(62), s(63), s(60, 2), s(49), s(83), s(41)
sT0, sT1, sT2, sT3 = [s(92 + i) for i in range(4)]
sL2E, sONE, sOUTO, sT6 = s(96), s(97), s(98), s(99)
sSTMP = s(100, 2)
sRING, sKH, sTP, sDUM, sLD = s(44), s(45), s(46), s(47), s(48)
vL, vL16, vA0, vFL = v(0), v(1), v(2), v(3)
RES = 4
vNON = v(12); vT = v(13); vU = v(14); vV = v(15)
vA1, vP0, vP1 = v(121), v(122), v(123)
aXW = v(126)
XF = 128
cWDb = [s(52 + i) for i in range(4)]; sDM = s(56)
aEW, aER, vEVv, vEVr, aCS3 = v(112), v(113), v(114), v(115), v(120)
aP4, vS4 = v(124), v(125)

class bc:
    def __init__(self, r, neg=False): self.r = int(r[1:]) if isinstance(r, str) else r; self.neg = neg
class ng:
    def __init__(self, r): self.r = r
def pk(st, op, d, *src):
    ops, lo, hi, n = [], [], [], []
    for x in src:
        if isinstance(x, bc): ops.append(v(x.r & ~1, 2)); lo.append(x.r & 1); hi.append(x.r & 1); n.append(int(x.neg))
        elif isinstance(x, ng): ops.append(v(x.r, 2)); lo.append(0); hi.append(1); n.append(1); assert x.r % 2 == 0
        else: ops.append(v(x, 2)); lo.append(0); hi.append(1); n.append(0); assert x % 2 == 0
    assert d % 2 == 0
    f = lambda l: "[" + ",".join(map(str, l)) + "]"
    mods = f"op_sel:{f(lo)} op_sel_hi:{f(hi)}" + (f" neg_lo:{f(n)} neg_hi:{f(n)}" if any(n) else "")
    st.op(f"v_pk_{op}_f32", v(d, 2), *ops, mods=mods)

lab_n = [0]
def newlab(p):
    lab_n[0] += 1
    return f".L{p}_{lab_n[0]}"

def nxt(st):
    st.s_add_u32(sNONCE, sNONCE, 1); st.v_add_u32(vNON, 1, vNON)

def poll(st, addr, soff, off=0):
    L = newlab("poll"); D = newlab("pdone")
    st.label(L)
    st.buffer_load_dword(vT, addr, WS, soff, mods=f"offen offset:{off} sc1")
    st.wait(vm=0)
    st.v_cmp_ne_u32("vcc", sNONCE, vT)
    st.s_cbranch_vccz(D)
    st.s_sub_u32(sCNT, sCNT, 1)
    st.s_cbranch_scc0(L)
    st.s_mov_b32(sCNT, 0)
    st.label(D)

OOL = Stream()
def soft_check(st, reg, addr, soff, off=0):
    D = newlab("soft"); X = newlab("softx")
    st.v_cmp_ne_u32("vcc", sNONCE, reg)
    st.s_cbranch_vccnz(X)
    st.label(D)
    OOL.label(X); OOL.mark("reset")
    poll(OOL, addr, soff, off)
    OOL.s_branch(D)

stamp_names = {"c": [], "l": []}
def stamp(st, name, real=False, who="c", pair=None):
    if not OPT["stamps"]: return
    only = OPT.get("only")
    if only and who == "l" and not OPT.get("lst"): return
    if only and who == "c" and not isinstance(name, int) and name not in ("start", "end") and name not in only.split(","): return
    if isinstance(name, int): idx = name
    else:
        if name not in stamp_names[who]: stamp_names[who].append(name)
        idx = stamp_names[who].index(name)
    r = v(127) if who == "c" else v(63)
    if name == 62: st.v_mov_b32(r, s(42))
    elif name == "start" and who == "c": st.v_mov_b32(r, s(86))
    elif name == "karg": st.wait(lgkm=0); st.v_mov_b32(r, s(0))
    else:
        if real: st.s_memrealtime(sSTMP)
        else: st.s_memtime(sSTMP)
        st.wait(lgkm=0)
        st.v_mov_b32(r, s(100))
    if pair is None:
        st.s_lshl_b32(s(101), sPAIR, 8)
        st.s_add_u32(s(101), s(101), s(65))
    else:
        st.s_add_u32(s(101), s(65), 256 * pair)
    st.buffer_store_dword(r, "off", WS, s(101), mods=f"offset:{idx*4}")

def ring_addr(st, mode):
    if mode in ("trq", "trn"):
        st.v_add_u32(vA0, sRING, vP0 if mode == "trq" else vP1); st.v_xor_b32(vA1, 64, vA0)
    elif mode == "b128":
        st.v_add_u32(vA0, sRING, vL16)
def ring_next(st, mode=None):
    st.s_add_u32(sRING, sRING, 0x8000); st.s_and_b32(sRING, sRING, 0x1ffff)
    ring_addr(st, mode)
def barrier(st, name, drain=False):
    if drain: st.wait(lgkm=0)
    st.s_barrier()
    if G.REC: G.SEQ.append(name)

def signal(st, val=None, off=0):
    t0, t1 = (v(124), v(125)) if val is None else (vT, vU)
    st.s_lshl_b32(sT3, sW, 2); st.s_add_u32(sT3, sT3, L_SIG + off); st.v_mov_b32(t0, sT3)
    if val is None: st.v_add_u32(t1, 1, sPAIR)
    else: st.v_mov_b32(t1, val)
    st.ds_write_b32(t0, t1)
def sigwait(st, mask=28, off=0, regs=(124, 125, 126), cmp="ne", extra=None):
    L = newlab("sig"); D = newlab("sigd")
    a, e, r = [v(x) for x in regs]
    st.v_and_b32(a, mask, vFL); st.v_add_u32(a, L_SIG + off, a)
    if extra:
        st.ds_read_b32(r, a)
        extra(st)
        st.wait(lgkm=0)
        st.op(f"v_cmp_{cmp}_u32", "vcc", e, r)
        st.s_cbranch_vccz(D)
    st.label(L)
    st.ds_read_b32(r, a)
    st.wait(lgkm=0)
    st.op(f"v_cmp_{cmp}_u32", "vcc", e, r)
    st.s_cbranch_vccz(D)
    st.s_sub_u32(sCNT, sCNT, 1)
    st.s_cbranch_scc0(L)
    st.s_mov_b32(sCNT, 0)
    st.label(D)

def lane_tr(st, d0, d1, kind, stride=128, tmp=vT, hstride=None):
    st.v_bfe_u32(d0, vL, 2, 2)
    if stride == 128: st.v_lshlrev_b32(d0, 7, d0)
    else: st.v_mul_u32_u24(d0, stride, d0)
    st.v_lshrrev_b32(tmp, 5, vL)
    st.v_lshl_add_u32(d0, tmp, int(math.log2(hstride or 8 * stride)), d0)
    sh = dict(qkv=(5, 4), nat=(4, 5))[kind]
    st.v_and_b32(tmp, 1, vL); st.v_lshl_add_u32(d0, tmp, sh[0], d0)
    st.v_bfe_u32(tmp, vL, 1, 1); st.v_lshl_add_u32(d0, tmp, 3, d0)
    st.v_bfe_u32(tmp, vL, 4, 1); st.v_lshl_add_u32(d0, tmp, sh[1], d0)
    if stride == 128:
        st.v_bfe_u32(tmp, vL, 3, 1); st.v_lshl_add_u32(d0, tmp, 6, d0)
        if d1: st.v_xor_b32(d1, 64, d0)

gemm_n = [0]
def gemm(st, items, mode, af, nslots, depth, ready, bars=None, fill=None, budget=16, hooks=None, loads=None, pre=10, every=2, pairw=0):
    n = len(items); loads = list(loads or []); ready = set(ready); bars = bars or {}
    nr = 0; gemm_n[0] += 1; tg = f"g{gemm_n[0]}_"
    def pump(upto):
        nonlocal nr
        while nr < n and nr <= upto:
            it = items[nr]; r = af + 4 * (nr % nslots)
            assert it["chunk"] in ready, (nr, it["chunk"])
            if nr > 0 and it["chunk"] != items[nr - 1]["chunk"]: ring_next(st, mode)
            if mode != "b128":
                a = vA1 if it["t"] else vA0
                st.ds_read_b64_tr_b16(v(r, 2), a, mods=f"offset:{it['off']}")
                st.ds_read_b64_tr_b16(v(r + 2, 2), a, mods=f"offset:{it['off']+512}", tset=tg + str(nr))
            else:
                st.ds_read_b128(v(r, 4), vA0, mods=f"offset:{it['off']}", tset=tg + str(nr))
            nr += 1
    for _ in range(min(pre, len(loads))): loads.pop(0)(st)
    pump(depth - 1)
    for i in range(n):
        it = items[i]
        if hooks and i in hooks: hooks[i](st)
        acc = v(it["acc"], 16)
        st.v_mfma_f32_32x32x16_bf16(acc, v(af + 4 * (i % nslots), 4), v(it["b"], 4), "0" if it["first"] else acc,
                                    tneed=tg + str(i + 1) if pairw and i % 2 == 0 and i + 1 < nr else None)
        if i in bars:
            barrier(st, bars[i][0]); ready |= set(bars[i][1])
        pump(i + depth)
        if loads and i % every == every - 1: loads.pop(0)(st)
        if fill is not None: fill.take(st, budget(i) if callable(budget) else budget)
    assert not loads

def entry(st):
    st.s_cmp_ge_u32(s(2), 256)
    st.s_cbranch_scc1(".Lend")
    if OPT["stamps"]: st.s_memrealtime(s(42, 2)); st.s_memtime(s(86, 2))
    st.s_load_dwordx16(s(44, 16), s(0, 2), 0)
    st.s_load_dwordx4(s(60, 4), s(0, 2), 64)
    st.s_load_dwordx2(s(64, 2), s(0, 2), 80)
    st.v_lshrrev_b32(vT, 6, v(0))
    st.v_and_b32(vL, 63, v(0))
    st.v_readfirstlane_b32(sW, vT)
    st.v_lshlrev_b32(vL16, 4, vL)
    st.v_and_b32(vFL, 15, vL)
    st.v_lshlrev_b32(vFL, 2, vFL)
    st.s_and_b32(sT0, s(2), 7)
    st.s_lshr_b32(sT1, s(2), 3)
    st.s_lshr_b32(sC, sT1, 4)
    st.s_lshl_b32(sT0, sT0, 1)
    st.s_add_u32(sC, sC, sT0)
    st.s_and_b32(sJ, sT1, 15)
    st.s_lshr_b32(sHF, sJ, 3)
    st.s_and_b32(sCG, sJ, 7)
    st.s_and_b32(sM, sW, 3)
    st.s_mov_b32(sCNT, 1 << 18)
    st.s_mov_b32(sPAIR, 0)
    st.s_cmp_lt_u32(sJ, 6)
    st.s_cselect_b32(sT6, 1, 0)
    st.s_getreg_b32(sXC, "hwreg(HW_REG_XCC_ID, 0, 4)")
    for d in (WS, X_, OUT, WQ, WP, WO_, WG, WU, WD):
        st.s_mov_b32(s(int(d[2:d.index(":")]) + 3), 0x20000)
    for d, size in ((X_, 2048 * 1024), (WQ, 512 * 3072), (WS, WS_SIZE), (WP, 32 * 512), (WO_, 512 * 1024), (WG, 512 * 2752),
                    (WU, 512 * 2752), (WD, 1376 * 1024), (OUT, 2048 * 1024)):
        st.s_mov_b32(s(int(d[2:d.index(":")]) + 2), size)
    if oi("cfirst", 1):
        st.s_cmp_ge_u32(sW, 4); st.s_cbranch_scc1(".Lld0")
        compute(st)
        st.label(".Lld0"); st.mark("reset")
    else:
        st.s_cmp_lt_u32(sW, 4); st.s_cbranch_scc1(".Lcomp")

def rot(st, d, t):
    if not oi("rot", 0): st.s_mov_b32(d, 0); return
    st.s_and_b32(d, sJ, 1); st.s_and_b32(t, sC, 1); st.s_lshl_b32(t, t, 1); st.s_add_u32(d, d, t); st.s_lshl_b32(d, d, 1)
    st.s_lshr_b32(t, sJ, 1); st.s_add_u32(d, d, t)

def srds(st, lst):
    src = {X_: 44, WQ: 46, WP: 48, WO_: 50, WG: 54, WU: 56, WD: 58, OUT: 60, WS: 64}
    for d in lst:
        b = int(d[2:d.index(":")])
        st.s_mov_b32(s(b), s(src[d])); st.s_and_b32(s(b + 1), s(src[d] + 1), 0xffff)

def stamp_base(st):
    if OPT["stamps"]:
        st.s_lshl_b32(s(65), s(2), 3); st.s_add_u32(s(65), s(65), sW); st.s_lshl_b32(s(65), s(65), 9)
        st.s_add_u32(s(65), s(65), STAMP)

aK, aV, aQ, AF1, WPH, STT = 16, 32, 48, 64, 88, 96
NM, RS, VE, LR = v(112), v(113), v(114), v(115)
aCS, aA, aB, aR1, aR2 = v(116), v(117), v(118), v(119), v(120)

def kv_items():
    return [dict(chunk=k // 16, off=(k % 16) * 2048, t=t, acc=acc, b=XF + 4 * k, first=k == 0)
            for k in range(32) for t, acc in ((0, aK), (1, aV))]

CK, CV = aQ, STT
def k_addr(st):
    st.v_lshrrev_b32(vU, 5, vL); st.v_and_b32(vT, 1, vL); st.v_cmp_eq_u32("vcc", vT, vU)
    st.v_lshlrev_b32(aCS, 6, vU); st.v_add_u32(aCS, L_CS, aCS)
    st.v_lshlrev_b32(aR1, 7, vU); st.v_and_b32(vT, 12, vL); st.v_lshl_add_u32(aR1, vT, 3, aR1)
    st.v_and_b32(vT, 16, vL); st.v_add_u32(aR1, aR1, vT); st.v_and_b32(vT, 2, vL); st.v_lshl_add_u32(aR1, vT, 2, aR1)
    st.v_mov_b32(vT, 544); st.v_cndmask_b32(aR1, vT, aR1, "vcc"); st.v_add_u32(aR1, L_KVB, aR1)
    st.v_and_b32(vT, 31, vL); st.s_lshl_b32(sT0, sM, 5); st.v_add_u32(vT, sT0, vT)
    st.v_mul_u32_u24(aA, 144, vT); st.v_lshl_add_u32(aA, vU, 6, aA); st.v_add_u32(aA, L_PH, aA)
    st.v_mul_u32_u24(aB, 80, vT); st.v_lshl_add_u32(aB, vU, 5, aB); st.v_add_u32(aB, L_VB, aB)
def k_reads(st, which="wkv"):
    if "k" in which:
        for i in range(4): st.ds_read_b128(v(CK + 4 * i, 4), aCS, mods=f"offset:{16*i}")
    if "w" in which:
        for q in range(4): st.ds_read_b64_tr_b16(v(WPH + 2 * q, 2), aR1, mods=f"offset:{576*q}")
    if "v" in which:
        for i in range(4): st.ds_read_b128(v(CV + 4 * i, 4), aCS, mods=f"offset:{128+16*i}")

def fin_stats(st, S, Q, t0, t1, negmean, rstd, vare):
    if t0: st.v_mov_b32(t0, S)
    st.v_mov_b32(t1, Q)
    if t0: st.v_permlane32_swap_b32(S, t0)
    st.v_permlane32_swap_b32(Q, t1)
    if t0: st.v_add_f32(S, S, t0)
    st.v_add_f32(Q, Q, t1)
    st.v_mul_f32(negmean, f2u(-1.0 / 512), S)
    st.v_mul_f32(Q, f2u(1.0 / 512), Q)
    st.v_fma_f32(vare, "-" + negmean, negmean, Q)
    st.v_max_f32(vare, 0, vare)
    st.v_add_f32(vare, f2u(1e-5), vare)
    st.v_rsq_f32(rstd, vare)

def stats(st, stt, negmean, rstd, vare):
    S, Q = v(stt), v(stt + 1)
    for i in range(4): st.v_add_f32(v(stt + i), v(stt + i), v(stt + 4 + i))
    for i in range(4): st.v_add_f32(v(stt + 8 + i), v(stt + 8 + i), v(stt + 12 + i))
    for i in range(4): st.v_add_f32(v(stt + i), v(stt + i), v(stt + 8 + i))
    st.v_add_f32(S, S, v(stt + 2)); st.v_add_f32(Q, Q, v(stt + 3))
    fin_stats(st, S, Q, v(stt + 2), v(stt + 3), negmean, rstd, vare)

def p1a0(st):
    g0, g1, aW = v(118), v(119), v(120)
    aRd = [v(88 + i) for i in range(4)]
    QD, SA, SELA = 96, 112, 92
    st.v_lshrrev_b32(vT, 3, vL); st.v_and_b32(vV, 7, vL)
    st.v_lshlrev_b32(g0, 10, vT); st.v_lshl_add_u32(g0, vV, 4, g0)
    st.s_lshl_b32(sT0, sC, 2); st.s_add_u32(sT0, sT0, sM); st.s_lshl_b32(sT0, sT0, 15)
    GA = [v(48 + g) for g in range(4)]
    st.v_lshlrev_b32(g1, 5, vFL); st.s_lshl_b32(sT1, sJ, 11); st.s_add_u32(sT1, sT1, sT0)
    for g in range(4):
        st.v_add_u32(GA[g], sT0, g0)
        if g < 3: st.s_add_u32(sT0, sT0, 8192)
    sR, sQO = s(41), s(83)
    rot(st, sR, sT0)
    def xl(p, st):
        st.s_add_u32(sQO, sR, p); st.s_and_b32(sQO, sQO, 7); st.s_lshl_b32(sQO, sQO, 7)
        if p == 0:
            st.wait(lgkm=0)
            srds(st, [X_])
            if OPT["stamps"]: st.s_memtime(s(0, 2))
            if oi("tx0", 1):
                i = Ins("buffer_load_dword", [v(126), g1, X_, sT1], "offen"); i.dst = set(); st.l.append(i)
        for g in range(4):
            st.buffer_load_dwordx4(v(XF + 16 * p + 4 * g, 4), GA[g], X_, sQO, mods="offen")
    n0 = oi("xn0", 2); n1 = oi("xn1", 4)
    for p in range(n0): xl(p, st)
    srds(st, [WS, OUT])
    stamp_base(st)
    stamp(st, 62, True)
    stamp(st, "start")
    stamp(st, "karg"); stamp(st, "xissued")
    st.buffer_load_dword(vNON, "off", WS, 0, mods=f"offset:{EPOCH} sc1")
    st.s_and_b32(sKH, sM, 1); st.s_lshr_b32(sTP, sM, 1); st.s_mov_b32(sRING, 0)
    st.v_and_b32(aA, 31, vL); st.v_lshlrev_b32(aA, 10, aA); st.v_lshrrev_b32(vT, 5, vL); st.v_lshl_add_u32(aA, vT, 4, aA)
    st.s_lshl_b32(sOUTO, sC, 17); st.s_lshl_b32(sT1, sHF, 16); st.s_add_u32(sOUTO, sOUTO, sT1)
    st.s_lshl_b32(sT1, sTP, 15); st.s_add_u32(sOUTO, sOUTO, sT1); st.s_lshl_b32(sT1, sCG, 7); st.s_add_u32(sOUTO, sOUTO, sT1)
    st.s_lshl_b32(sT1, sKH, 6); st.s_add_u32(sOUTO, sOUTO, sT1)
    st.s_mov_b32(sL2E, f2u(LOG2E)); st.s_mov_b32(sONE, 0x3f803f80)
    st.s_lshl_b32(sT0, sC, 2); st.s_add_u32(sT1, sT0, sM)
    st.s_lshl_b32(sXLD, sT1, 15); st.s_add_u32(sXLD, sXLD, XB)
    st.s_lshl_b32(sSTLD, sT1, 12); st.s_add_u32(sSTLD, sSTLD, ST)
    st.s_lshl_b32(sFA, sT1, 10); st.s_add_u32(sFA, sFA, FL)
    st.s_lshl_b32(sT2, sJ, 2); st.s_add_u32(sFJ, sFA, sT2)
    st.s_mul_i32(sHST, sT1, HB_TB); st.s_add_u32(sHST, sHST, HB)
    st.s_lshl_b32(sT2, sJ, 11); st.s_add_u32(sOST, sHST, sT2)
    st.s_mov_b32(s(60), 0); st.s_mov_b32(s(61), -1)
    st.s_lshl_b32(sT2, sJ, 10); st.s_add_u32(sHST, sHST, sT2)
    st.s_lshl_b32(sDUM, sT1, 11); st.s_add_u32(sDUM, sDUM, DUMMY)
    st.s_lshl_b32(sT1, sHF, 1); st.s_add_u32(sT1, sT1, sT0); st.s_add_u32(sT1, sT1, sTP)
    st.s_lshl_b32(sT3, sCG, 1); st.s_add_u32(sT3, sT3, sKH)
    st.s_lshl_b32(sXST, sT1, 15); st.s_lshl_b32(sT2, sT3, 11); st.s_add_u32(sXST, sXST, sT2); st.s_add_u32(sXST, sXST, XB)
    st.s_lshl_b32(sSTST, sT1, 12); st.s_lshl_b32(sT2, sCG, 9); st.s_add_u32(sSTST, sSTST, sT2)
    st.s_lshl_b32(sT2, sKH, 3); st.s_add_u32(sSTST, sSTST, sT2); st.s_add_u32(sSTST, sSTST, ST)
    st.s_lshl_b32(sFB, sT1, 10); st.s_add_u32(sFB, sFB, FL)
    st.s_lshl_b32(sT2, sT3, 2); st.s_add_u32(sFXST, sFB, sT2)
    st.s_lshl_b32(sT2, sKH, 10)
    st.s_mul_i32(sHLD, sT1, HB_TB); st.s_add_u32(sHLD, sHLD, sT2); st.s_add_u32(sHLD, sHLD, HB)
    st.s_mul_i32(sKVLD, sJ, KV_J); st.s_add_u32(sKVLD, sKVLD, KVP)
    st.s_mul_i32(sKVST, sC, KV_REC); st.s_add_u32(sKVST, sKVST, sKVLD)
    st.s_lshl_b32(sT1, sKH, 7); st.s_lshl_b32(sT2, sTP, 5); st.s_add_u32(sT1, sT1, sT2); st.s_add_u32(sKZ, sKVST, sT1); st.s_add_u32(sKZ, sKZ, 2048)
    st.s_lshl_b32(sT1, sKH, 10); st.s_lshl_b32(sT2, sTP, 6); st.s_add_u32(sT1, sT1, sT2); st.s_add_u32(sKVST, sKVST, sT1)
    st.s_lshl_b32(sT1, sM, 6); st.s_add_u32(sGZ, sKVLD, sT1); st.s_add_u32(sGZ, sGZ, 2048)
    st.s_lshl_b32(sT1, sM, 9); st.s_add_u32(sKVLD, sKVLD, sT1)
    st.s_lshl_b32(sFKVLD, sJ, 11); st.s_add_u32(sFKVLD, sFKVLD, FKV)
    st.s_lshl_b32(sT1, sC, 7); st.s_lshl_b32(sT2, sM, 2); st.s_add_u32(sFKVST, sT1, sT2); st.s_add_u32(sFKVST, sFKVST, sFKVLD)
    for i in range(4): st.v_mov_b32(v(96 + i), 0)
    st.v_and_b32(vT, 3, vL); st.v_mul_u32_u24(vT, 576, vT); st.v_add_u32(vT, L_KVB + 544, vT)
    st.ds_write_b128(vT, v(96, 4))
    st.v_and_b32(vT, 112, vL16); st.v_add_u32(vT, L_SIG, vT)
    st.ds_write_b128(vT, v(96, 4))
    st.v_bfe_u32(vT, vL, 4, 1); st.v_and_b32(vU, 1, vL); st.v_cmp_eq_u32("vcc", vT, vU)
    st.v_mov_b32(vV, sONE)
    for i in range(4): st.v_cndmask_b32(v(SELA + i), 0, vV, "vcc")
    st.s_lshl_b32(sT0, sM, 12); st.s_add_u32(sT0, sT0, L_PH)
    st.v_and_b32(vT, 48, vL); st.v_xor_b32(vT, vT, vL16); st.v_add_u32(aW, sT0, vT); st.v_xor_b32(g1, 64, aW)
    st.v_and_b32(vT, 31, vL); st.v_lshrrev_b32(vU, 5, vL); st.v_bfe_u32(vV, vL, 1, 3); st.v_xor_b32(vU, vU, vV)
    st.v_lshlrev_b32(vT, 7, vT); st.v_lshl_add_u32(vT, vU, 4, vT); st.v_add_u32(aRd[0], sT0, vT)
    for i in range(1, 4): st.v_xor_b32(aRd[i], 32 * i, aRd[0])
    lane_tr(st, vP0, None, "qkv"); ring_addr(st, "trq")
    def rnd(q, st):
        R = XF + 16 * q
        for g in range(4): st.ds_write_b128(g1 if g & 1 else aW, v(R + 4 * g, 4), mods=f"offset:{1024*g}")
        for i in range(4): st.ds_read_b128(v(R + 4 * i, 4), aRd[i])
    def smf(k, st):
        f = v(XF + 4 * k, 4)
        st.v_mfma_f32_32x32x16_bf16(v(QD, 16), f, f, "0" if k == 0 else v(QD, 16))
        st.v_mfma_f32_16x16x32_bf16(v(SA, 4), v(SELA, 4), f, "0" if k == 0 else v(SA, 4))
    def res(st):
        st.buffer_load_dwordx4(v(RES, 4), aA, X_, sOUTO, mods="offen")
        st.buffer_load_dwordx4(v(RES + 4, 4), aA, X_, sOUTO, mods="offen offset:32")
    hooks = {}
    hq = oi("hq", 8)
    for p in range(n0, n1): xl(p, st)
    nl = n1
    rnd(0, st)
    for q in range(hq):
        if nl < 8: xl(nl, st); nl += 1
        if q < 7: rnd(q + 1, st)
        for k in range(4 * q, 4 * q + 4): smf(k, st)
    while nl < 8: xl(nl, st); nl += 1
    acts = {}
    at = oi("rnd0", 2); gap = oi("rndgap", 8)
    for n, q in enumerate(range(hq, 8)):
        i0 = at + gap * n
        if q < 7: acts.setdefault(i0, []).append(lambda st, q=q: rnd(q + 1, st))
        for u in range(4): acts.setdefault(i0 + 1 + 2 * u, []).append(lambda st, k=4 * q + u: smf(k, st))
        assert i0 < 8 * (q + 1) - 2
    acts.setdefault(oi("res0", 40), []).append(res)
    for i, l in acts.items(): hooks[i] = lambda st, l=l: [f(st) for f in l]
    stamp(st, "p1pre")
    barrier(st, "a0", drain=True)
    stamp(st, "B(a0)")
    bars = {oi("a1", 20): ("a1", [1])}
    f = Stream()
    M = [s(50 + 2 * i, 2) for i in range(5)]
    for i, bit in enumerate((16, 8, 2, 1)):
        f.v_and_b32(vT, bit, vL); f.v_cmp_ne_u32(M[i], 0, vT)
    f.v_bfe_u32(vT, vL, 2, 1); f.v_lshrrev_b32(vU, 5, vL); f.v_cmp_eq_u32(M[4], vT, vU)
    f.v_cndmask_b32(v(SA), v(SA), v(SA + 1), M[0])
    for i in range(8): f.v_cndmask_b32(v(QD + i), v(QD + i), v(QD + 8 + i), M[0])
    for i in range(4): f.v_cndmask_b32(v(QD + i), v(QD + i), v(QD + 4 + i), M[1])
    for i in range(2): f.v_cndmask_b32(v(QD + i), v(QD + i), v(QD + 2 + i), M[2])
    f.v_cndmask_b32(v(QD), v(QD), v(QD + 1), M[3])
    f.v_cndmask_b32(v(QD), 0, v(QD), M[4])
    fin_stats(f, v(SA), v(QD), None, v(QD + 1), NM, RS, VE)
    f.v_mul_f32(LR, sL2E, RS)
    g = Stream(); k_addr(g)
    lane_tr(g, vP1, None, "nat")
    g.s_lshl_b32(sT2, sKH, 6); g.v_xor_b32(vP1, sT2, vP1); g.s_lshl_b32(sT2, sKH, 11); g.v_add_u32(vP1, sT2, vP1)
    fill = Filler()
    assert hq == 8
    r0 = oi("res0", 24)
    hooks = {2: lambda st: fill.add(f), r0: res, r0 + 1: lambda st: fill.add(g)}
    gemm(st, kv_items(), "trq", AF1, 6, 5, ready=[0], bars=bars, hooks=hooks, fill=fill, budget=oi("bud1", 8))
    fill.flush(st)
    st.v_add_u32(vNON, 1, vNON)
    st.v_mov_b32(v(125), 1); sigwait(st, 12, 32, cmp="gt")
    k_reads(st)
    st.v_readfirstlane_b32(sNONCE, vNON)
    signal(st, 2, 32)
    st.s_add_u32(sH5, sHST, 16384 * 5); st.s_add_u32(sF5, sDUM, 1024)
    st.s_cmp_eq_u32(sT6, 1); st.s_cselect_b32(sH5, sH5, sDUM); st.s_cselect_b32(sF5, sFJ, sF5)
    stamp(st, "KVgemm")

def frag_loads(base, regs, stride, per):
    out = []
    for k, r in enumerate(regs):
        def f(st, k=k, r=r):
            if k % per == 0: st.s_add_u32(sLD, base, k * stride)
            st.buffer_load_dwordx4(v(r, 4), vL16, WS, sLD, mods=f"offen offset:{(k % per) * stride} {SCL}")
        out.append(f)
    return out

def x_addr(st):
    st.v_lshrrev_b32(vV, 5, vL); st.v_lshlrev_b32(vV, 11, vV); st.v_and_b32(vU, 31, vL); st.v_lshl_add_u32(vV, vU, 4, vV)
def p1a_pre(st):
    ring_next(st, "trq"); x_addr(st)
def p3_pre(st):
    st.v_and_b32(vU, 31, vL); st.v_lshlrev_b32(aCS3, 2, vU); st.v_add_u32(aCS3, L_CS + 3 * 128, aCS3)
    ring_next(st, "b128"); x_addr(st)
    st.s_add_u32(sT0, sRING, 0x10000); st.s_and_b32(sT0, sT0, 0x1ffff); st.v_add_u32(vA1, sT0, vL16)
    st.s_lshl_b32(sT0, sM, 12); st.s_add_u32(sT0, sT0, L_PH); st.v_add_u32(aXW, sT0, vL16)
def x_loads(st, stt, at=32):
    L = frag_loads(sXLD, [XF + 4 * k for k in range(32)], 1024, 4)
    def stl(st):
        for i in range(4):
            st.buffer_load_dwordx4(v(stt + 4 * i, 4), vV, WS, sSTLD, mods=f"offen offset:{512*i} {SCL}")
    return L[:at] + [stl] + L[at:]

def featmap(st, acc, kb, wp, e1, e2, lr, mid=None):
    for i in range(8): st.v_cvt_pk_bf16_f32(v(kb + i), v(acc + 2 * i), v(acc + 2 * i + 1))
    st.v_mfma_f32_32x32x16_bf16(v(acc, 16), v(wp, 4), v(kb, 4), "0")
    st.v_mfma_f32_32x32x16_bf16(v(acc, 16), v(wp + 4, 4), v(kb + 4, 4), v(acc, 16))
    if mid: mid(st)
    mx, mn = v(kb), v(kb + 1)
    p = lambda i: v(acc + i)
    st.v_max3_f32(mx, p(0), p(1), p(2)); st.v_min3_f32(mn, p(0), p(1), p(2))
    for i in range(3, 15, 2):
        st.v_max3_f32(mx, mx, p(i), p(i + 1)); st.v_min3_f32(mn, mn, p(i), p(i + 1))
    st.v_max_f32(mx, mx, p(15)); st.v_min_f32(mn, mn, p(15))
    pk(st, "mul", kb, bc(lr), kb)
    for i in range(0, 16, 2):
        pk(st, "fma", e1 + i, acc + i, bc(lr), bc(kb, True)); pk(st, "fma", e2 + i, ng(acc + i), bc(lr), bc(kb + 1))
    for i in range(16):
        st.v_exp_f32(v(e1 + i), v(e1 + i)); st.v_exp_f32(v(e2 + i), v(e2 + i))
    s1, s2 = kb + 2, kb + 4
    pk(st, "add", s1, e1, e1 + 2); pk(st, "add", s2, e2, e2 + 2)
    for i in range(4, 16, 2):
        pk(st, "add", s1, s1, e1 + i); pk(st, "add", s2, s2, e2 + i)
    st.v_add_f32(v(s1), v(s1), v(s1 + 1)); st.v_add_f32(v(s2), v(s2), v(s2 + 1))
    st.v_rcp_f32(v(s1), v(s1)); st.v_rcp_f32(v(s2), v(s2))
    for i in range(0, 16, 2):
        pk(st, "mul", e1 + i, bc(s1), e1 + i); pk(st, "mul", e2 + i, bc(s2), e2 + i)
    for i in range(8):
        st.v_cvt_pk_bf16_f32(v(e1 + i), v(e1 + 2 * i), v(e1 + 2 * i + 1))
        st.v_cvt_pk_bf16_f32(v(e2 + i), v(e2 + 2 * i), v(e2 + 2 * i + 1))

def p1a(st):
    at = oi("st1", 22)
    L = x_loads(st, STT, at)
    stamp(st, "p1pre")
    poll(st, vFL, sFA)
    stamp(st, "FXpoll")
    pre = oi("pre1", 10)
    for f in L[:pre]: f(st)
    nxt(st)
    barrier(st, "a0")
    stamp(st, "B(a0)")
    fill = Filler()
    f = Stream(); stats(f, STT, NM, RS, VE); f.v_mul_f32(LR, sL2E, RS); k_reads(f, "v")
    g = Stream(); k_addr(g); k_reads(g, "wk")
    hooks = {2: lambda st: fill.add(g), oi("sth1", 2 * at + 2): lambda st: fill.add(f)}
    gemm(st, kv_items(), "trq", AF1, 6, 5, ready=[0], bars={oi("a1", 20): ("a1", [1]), oi("a2", 56): ("a2", [])}, loads=L[pre:], pre=0,
         hooks=hooks, fill=fill, budget=oi("bud1", 8))
    fill.flush(st)
    stamp(st, "KVgemm")

def p1b(st):
    AF = AF1
    for i in range(0, 16, 2): pk(st, "fma", aK + i, CK + i, bc(NM), aK + i)
    def vpart(st):
        for i in range(0, 16, 2): pk(st, "fma", aV + i, CV + i, bc(NM), aV + i)
        for i in range(0, 16, 2): pk(st, "mul", aV + i, bc(RS), aV + i)
        for i in range(8): st.v_cvt_pk_bf16_f32(v(aV + i), v(aV + 2 * i), v(aV + 2 * i + 1))
        st.ds_write_b128(aB, v(aV, 4)); st.ds_write_b128(aB, v(aV + 4, 4), mods="offset:16")
    featmap(st, aK, AF, WPH, STT, aQ, LR, mid=vpart)
    st.ds_write_b128(aA, v(STT, 4)); st.ds_write_b128(aA, v(STT + 4, 4), mods="offset:16")
    st.ds_write_b128(aA, v(aQ, 4), mods="offset:32"); st.ds_write_b128(aA, v(aQ + 4, 4), mods="offset:48")
    signal(st)
    TA, TB, ONE, AKV, AZ = 16, 32, 96, 100, 104
    def shadow(st):
        st.v_lshrrev_b32(vT, 4, vL); st.v_lshlrev_b32(vT, 3, vT); st.v_bfe_u32(vU, vL, 2, 2); st.v_add_u32(vT, vT, vU)
        st.v_and_b32(vU, 3, vL); st.v_lshlrev_b32(vU, 3, vU)
        st.s_lshl_b32(sT0, sM, 5); st.s_add_u32(sT0, sT0, L_PH)
        st.v_mul_u32_u24(aR1, 144, vT); st.v_add3_u32(aR1, aR1, vU, sT0)
        st.s_lshl_b32(sT0, sTP, 5); st.s_add_u32(sT0, sT0, L_VB)
        st.v_mul_u32_u24(aR2, 80, vT); st.v_add3_u32(aR2, aR2, vU, sT0)
        ring_next(st, "trq")
    sigwait(st, extra=shadow)
    stamp(st, "Kepi+B")
    for k in range(4):
        for q in range(2):
            st.ds_read_b64_tr_b16(v(TA + 4 * k + 2 * q, 2), aR1, mods=f"offset:{(32*k+4*q)*144}")
            st.ds_read_b64_tr_b16(v(TB + 4 * k + 2 * q, 2), aR2, mods=f"offset:{(32*k+4*q)*80}")
    for i in range(4): st.v_mov_b32(v(ONE + i), sONE)
    st.v_lshrrev_b32(vT, 5, vL); st.v_lshlrev_b32(vV, 9, vT); st.v_bfe_u32(vU, vL, 4, 1); st.v_lshl_add_u32(vV, vU, 3, vV)
    st.v_lshlrev_b32(vT, 6, vT); st.v_lshl_add_u32(vT, vU, 4, vT)
    st.v_bfe_u32(vU, vL, 2, 2); st.v_lshl_add_u32(vV, vU, 7, vV); st.v_and_b32(vU, 3, vL); st.v_lshl_add_u32(vV, vU, 4, vV)
    for k in range(4):
        st.v_mfma_f32_16x16x32_bf16(v(AKV, 4), v(TA + 4 * k, 4), v(TB + 4 * k, 4), "0" if k == 0 else v(AKV, 4))
        st.v_mfma_f32_16x16x32_bf16(v(AZ, 4), v(TA + 4 * k, 4), v(ONE, 4), "0" if k == 0 else v(AZ, 4))
    st.v_cvt_pk_bf16_f32(v(AKV), v(AKV), v(AKV + 1)); st.v_cvt_pk_bf16_f32(v(AKV + 1), v(AKV + 2), v(AKV + 3))
    st.buffer_store_dwordx2(v(AKV, 2), vV, WS, sKVST, mods="offen sc1")
    st.buffer_store_dwordx4(v(AZ, 4), vT, WS, sKZ, mods="offen sc1", tset="kv")
    stamp(st, "kv st")
    items = []
    for k in range(16):
        for t in range(2):
            items.append(dict(chunk=0, off=k * 2048, t=t, acc=aQ, b=XF + 4 * (k + 16 * t), first=(k, t) == (0, 0)))
    def kvflag(st): st.buffer_store_dword(vNON, "off", WS, sFKVST, mods="sc1", tneed="kv")
    CS = 16
    aPL, aGZ, aGK = aR1, aR2, aB
    f = Stream()
    for i in range(4): f.ds_read_b128(v(CS + 4 * i, 4), aCS, mods=f"offset:{256+16*i}")
    f.v_lshrrev_b32(aPL, 2, vL); f.v_lshlrev_b32(aPL, 7, aPL); f.v_and_b32(vU, 3, vL); f.v_lshl_add_u32(aPL, vU, 2, aPL)
    f.v_lshrrev_b32(aGZ, 4, vL); f.v_mul_u32_u24(aGZ, KV_REC, aGZ); f.v_add_u32(aGZ, aGZ, vFL)
    f.v_lshrrev_b32(aGK, 5, vL); f.v_mul_u32_u24(aGK, KV_REC - 512, aGK); f.v_add_u32(aGK, aGK, vL16)
    fill = Filler()
    gemm(st, items, "trq", AF, 6, 5, ready=[0], hooks={4: lambda st: fill.add(f), oi("kvflag", 24): kvflag}, fill=fill, budget=8)
    fill.flush(st)
    stamp(st, "Qgemm")
    for i in range(0, 16, 2): pk(st, "fma", aQ + i, CS + i, bc(NM), aQ + i)
    featmap(st, aQ, AF, WPH, aK, aV, LR)
    stamp(st, "Q done")
    poll(st, aPL, sFKVLD)
    stamp(st, "FKVpoll")
    Gr, Z, SG, GA = XF, XF + 64, XF + 32, XF + 48
    XT = v(XF + 72)
    nt = " nt" if OPT.get("kvnt") else ""
    for cc in range(8):
        if cc: st.s_add_u32(sT0, sKVLD, 2 * cc * KV_REC)
        st.buffer_load_dwordx4(v(Gr + 4 * cc, 4), aGK, WS, sT0 if cc else sKVLD, mods="offen sc1" + nt)
    for i in range(4):
        if i: st.s_add_u32(sT1, sGZ, 4 * i * KV_REC)
        st.buffer_load_dword(v(Z + i), aGZ, WS, sT1 if i else sGZ, mods="offen sc1" + nt)
    if G.TAG == "f":
        st.s_lshl_b32(sT2, sC, 7); st.s_add_u32(sT2, sT2, XCCT)
        st.buffer_load_dword(XT, vFL, WS, sT2, mods="offen sc1")
    nxt(st)
    st.s_mul_i32(sT0, sM, 576); st.s_add_u32(sT0, sT0, L_KVB)
    st.v_and_b32(vT, 31, vL)
    st.v_and_b32(vU, 1, vL); st.v_lshlrev_b32(vU, 4, vU); st.v_mov_b32(vV, 0x3f80); st.v_lshlrev_b32(vU, vU, vV); st.v_lshrrev_b32(vV, 1, vT)
    for i in range(4):
        st.v_cmp_eq_u32("vcc", i, vV); st.v_cndmask_b32(v(SG + i), 0, vU, "vcc")
    st.v_lshlrev_b32(vT, 4, vT)
    st.v_lshrrev_b32(vU, 5, vL)
    st.v_lshl_add_u32(aA, vU, 3, vT); st.v_add_u32(aA, sT0, aA)
    st.v_lshrrev_b32(aB, 1, vFL); st.v_add_u32(aB, sT0, aB)
    st.v_bfe_u32(vV, vL, 2, 1); st.v_cmp_eq_u32("vcc", vV, vU)
    st.v_mov_b32(vV, 544); st.v_cndmask_b32(vT, vV, vT, "vcc"); st.v_add_u32(aR1, L_KVB, vT)
    st.v_lshlrev_b32(vU, 4, vU); st.v_add_u32(aR2, L_KVB + 512, vU)
    for cc in range(8):
        st.v_mfma_f32_32x32x16_bf16(v(GA, 16), v(SG, 4), v(Gr + 4 * cc, 4), "0" if cc == 0 else v(GA, 16))
    st.v_add_f32(v(Z), v(Z), v(Z + 1)); st.v_add_f32(v(Z + 2), v(Z + 2), v(Z + 3)); st.v_add_f32(v(Z), v(Z), v(Z + 2))
    st.v_mov_b32(v(Z + 1), v(Z)); st.v_permlane32_swap_b32(v(Z), v(Z + 1)); st.v_add_f32(v(Z), v(Z), v(Z + 1))
    st.v_mov_b32(v(Z + 1), v(Z)); st.v_permlane16_swap_b32(v(Z), v(Z + 1)); st.v_add_f32(v(Z), v(Z), v(Z + 1))
    st.v_cvt_pk_bf16_f32(v(Z), v(Z), v(Z))
    st.ds_write_b16(aB, v(Z), mods="offset:512")
    st.v_cvt_pk_bf16_f32(v(GA), v(GA), v(GA + 1)); st.v_cvt_pk_bf16_f32(v(GA + 1), v(GA + 2), v(GA + 3))
    st.ds_write_b64(aA, v(GA, 2))
    if G.TAG == "f":
        OK = newlab("xok"); L = newlab("xpoll"); D = newlab("xdec")
        st.s_cmp_lg_u32(sPAIR, 0)
        st.mark("save", OK)
        st.s_cbranch_scc1(OK)
        st.s_add_u32(sT0, sNONCE, 14); st.s_add_u32(sT1, sT0, sXC)
        st.v_cmp_ne_u32("vcc", sT1, XT)
        if not OPT.get("slow"): st.s_cbranch_vccz(OK)
        st.label(L)
        st.buffer_load_dword(XT, vFL, WS, sT2, mods="offen sc1")
        st.wait(vm=0)
        st.v_subrev_u32(vT, sT0, XT)
        st.v_cmp_le_u32("vcc", 16, vT)
        st.s_cbranch_vccz(D)
        st.s_sub_u32(sCNT, sCNT, 1)
        st.s_cbranch_scc0(L)
        st.s_mov_b32(sCNT, 0)
        st.label(D)
        st.v_cmp_ne_u32("vcc", sT1, XT)
        st.mark("save", "toslow")
        if OPT.get("slow"): st.s_branch(".Lg_s")
        else: st.s_cbranch_vccnz(".Lg_s")
        st.mark("merge", OK)
        st.label(OK)
    else:
        st.mark("merge", "toslow")
        st.label(".Lg_s")
    barrier(st, "g", drain=True)
    stamp(st, "gather+B")

def p1c(st):
    PHQ = [aK, aK + 4, aV, aV + 4]
    KA, ZA, NUM, DEN = XF, XF + 16, 48, v(64)
    for u in range(4): st.ds_read_b128(v(KA + 4 * u, 4), aR1, mods=f"offset:{576*u}")
    for u in range(4): st.ds_read_b128(v(ZA + 4 * u, 4), aR2, mods=f"offset:{576*u}")
    st.v_mov_b32(DEN, f2u(1e-6)); st.v_mov_b32(v(65), 0)
    st.v_lshrrev_b32(vU, 5, vL); st.v_lshl_add_u32(aA, vU, 9, vL16)
    for u in range(4):
        st.v_mfma_f32_32x32x16_bf16(v(NUM, 16), v(KA + 4 * u, 4), v(PHQ[u], 4), "0" if u == 0 else v(NUM, 16))
        for i in range(4):
            dd = DEN if i % 2 == 0 else v(65)
            st.v_dot2_f32_bf16(dd, v(PHQ[u] + i), v(ZA + 4 * u + i), dd)
    st.v_add_f32(DEN, DEN, v(65))
    st.v_rcp_f32(DEN, DEN)
    for i in range(0, 16, 2): pk(st, "mul", NUM + i, bc(DEN), NUM + i)
    for i in range(8): st.v_cvt_pk_bf16_f32(v(NUM + i), v(NUM + 2 * i), v(NUM + 2 * i + 1))
    st.buffer_store_dwordx4(v(NUM, 4), aA, WS, sOST, mods=f"offen {G.SC}")
    st.buffer_store_dwordx4(v(NUM + 4, 4), aA, WS, sOST, mods=f"offen offset:512 {G.SC}", tset="o")
    ring_next(st, "trn")
    res_init(st, 16)
    st.s_lshl_b32(sT0, sM, 12); st.s_add_u32(sT0, sT0, L_PH); st.v_add_u32(aXW, sT0, vL16)
    st.buffer_store_dword(vNON, "off", WS, sFJ, mods=f"offset:128 {G.SC}", tneed="o")
    for r in (sKVST, sKVLD, sKZ, sGZ): st.s_add_u32(r, r, KV_P)
    st.s_add_u32(sFKVST, sFKVST, 256 * 128); st.s_add_u32(sFKVLD, sFKVLD, 256 * 128)

def small_items(nsteps, breg, accs=(16, 32)):
    items = []
    for k in range(nsteps):
        for t in ((1, 0) if k == nsteps - 1 else (0, 1)):
            items.append(dict(chunk=k // 8, off=(k % 8) * 4096, t=t, acc=accs[t], b=breg(k), first=k == 0 and t == 1))
    return items
def res_init(st, a):
    for i in range(8):
        st.v_lshlrev_b32(v(a + 2 * i), 16, v(RES + i)); st.v_and_b32(v(a + 2 * i + 1), 0xffff0000, v(RES + i))

def xepi(st, last):
    aB_, T, P = (96, 48, 16) if last else (32, 16, 48)
    aX = aXW
    for i in range(4): st.ds_write_b128(aX, v(aB_ + 4 * i, 4), mods=f"offset:{1024*i}")
    st.v_xor_b32(aX, 4096, aX)
    barrier(st, "X4" if last else "X2", drain=True)
    for i in range(4): st.ds_read_b128(v(P + 4 * i, 4), aX, mods=f"offset:{1024*i}")
    st.v_and_b32(aX, 31, vL); st.v_lshlrev_b32(aX, 4, aX); st.v_lshrrev_b32(vT, 5, vL); st.v_lshl_add_u32(aX, vT, 2, aX)
    for i in range(4):
        for k in (4 * i, 4 * i + 2): pk(st, "add", T + k, T + k, P + k)
        for k in (2 * i, 2 * i + 1): st.v_cvt_pk_bf16_f32(v(RES + k), v(T + 2 * k), v(T + 2 * k + 1))
    LF = newlab("fin")
    if last:
        st.mark("save", LF)
        st.s_cmp_eq_u32(sPAIR, 1); st.s_cbranch_scc1(LF)
    st.buffer_store_dwordx4(v(RES, 4), vL16, WS, sXST, mods=f"offen {G.SC}")
    st.buffer_store_dwordx4(v(RES + 4, 4), vL16, WS, sXST, mods=f"offen offset:1024 {G.SC}")
    S, Q, S2, Q2 = v(T), v(T + 1), v(T + 2), v(T + 3)
    st.v_dot2_f32_bf16(S, v(RES), sONE, 0); st.v_dot2_f32_bf16(Q, v(RES), v(RES), 0)
    st.v_dot2_f32_bf16(S2, v(RES + 1), sONE, 0); st.v_dot2_f32_bf16(Q2, v(RES + 1), v(RES + 1), 0)
    for i in range(2, 8, 2):
        st.v_dot2_f32_bf16(S, v(RES + i), sONE, S); st.v_dot2_f32_bf16(Q, v(RES + i), v(RES + i), Q)
        st.v_dot2_f32_bf16(S2, v(RES + i + 1), sONE, S2); st.v_dot2_f32_bf16(Q2, v(RES + i + 1), v(RES + i + 1), Q2)
    pk(st, "add", T, T, T + 2)
    st.v_permlane32_swap_b32(S, Q); st.v_add_f32(S, S, Q)
    st.buffer_store_dword(S, aX, WS, sSTST, mods=f"offen {G.SC}", tset="x")
    (p1a_pre if last else p3_pre)(st)
    st.buffer_store_dword(vNON, "off", WS, sFXST, mods=G.SC, tneed="x")
    if last:
        st.s_mov_b32(sPAIR, 1)
        st.s_branch(f".Lpair_{G.TAG}")
        st.label(LF); st.mark("restore", LF)
        st.v_and_b32(aX, 31, vL); st.v_lshlrev_b32(aX, 10, aX); st.v_lshrrev_b32(vT, 5, vL); st.v_lshl_add_u32(aX, vT, 4, aX)
        st.buffer_store_dwordx4(v(RES, 4), aX, OUT, sOUTO, mods="offen")
        st.buffer_store_dwordx4(v(RES + 4, 4), aX, OUT, sOUTO, mods="offen offset:32")

def p2(st):
    stamp(st, "o stored")
    poll(st, vFL, sFB, 128)
    stamp(st, "FOpoll")
    L = frag_loads(sHLD, [XF + 4 * k for k in range(16)], 2048, 2)
    gemm(st, small_items(16, lambda k: XF + 4 * k), "trn", 48, 6, 5, ready=[0, 1], loads=L, pre=oi("pre2", 10), hooks={1: nxt})
    stamp(st, "P2gemm")
    xepi(st, False)

def stream(st, items, af, nslots, depth, hooks, fill, budget, watch=None):
    n = len(items); nr = 0
    def pump(upto):
        nonlocal nr
        while nr < n and nr <= upto:
            items[nr]["rd"](st, af + 4 * (nr % nslots)); nr += 1
    pump(depth - 1)
    for i in range(n):
        it = items[i]
        acc = v(it["acc"], 16)
        st.v_mfma_f32_32x32x16_bf16(acc, v(af + 4 * (i % nslots), 4), v(it["b"], 4), "0" if it["first"] else acc)
        n0 = len(st.l)
        for h in hooks.get(i, []): h(st)
        pump(i + depth)
        fill.take(st, budget(i))
        if watch: watch(i, st.l[n0:])
    assert not fill.q

C1 = -2.0 * math.sqrt(2.0 / math.pi) * LOG2E
def p34(st):
    A = [16, 32, 48, 96]; AF = 64; NMP = 88; DEPTH = 5
    K1, K3, VE3, NM3 = v(92), v(93), v(94), v(95)
    at = oi("st3", 20)
    L = x_loads(st, STT, at)
    stamp(st, "x stored")
    poll(st, vFL, sFA)
    stamp(st, "FXpoll2")
    pre = oi("pre3", 10)
    for f in L[:pre]: f(st)
    nxt(st)
    barrier(st, "30")
    stamp(st, "B(30)")
    items = []; hooks = {}
    def hk(i, f): hooks.setdefault(i, []).append(f)
    def wide(a, off, step=0):
        def rd(st, r):
            if step:
                st.s_add_u32(sRING, sRING, 0x8000 * step); st.s_and_b32(sRING, sRING, 0x1ffff); st.v_add_u32(vA0, sRING, vL16)
            st.ds_read_b128(v(r, 4), a, mods=f"offset:{off}")
        return rd
    def mean(r):
        return dict(rd=lambda st, q: st.ds_read_b32(v(q), aCS3, mods=f"offset:{128*r}"), acc=A[r % 4], b=NMP, first=False)
    n2 = oi("n2", 10); k2 = 0; end = {}; use = {}
    def t2(k): return dict(rd=wide(vA1, k * 1024), acc=A[2], b=XF + 4 * k, first=k == 0)
    for k in range(32):
        use[k] = len(items)
        for t in range(2):
            items.append(dict(rd=wide(vA0, t * 16384 + (k % 16) * 1024, int(k == 16 and t == 0)), acc=A[t], b=XF + 4 * k, first=k == 0))
        if k == 15: g5 = len(items) - 1
        if (k + 1) * n2 // 32 > k2: items.append(t2(k2)); k2 += 1
    items += [mean(0), mean(1)]; end[0] = len(items) - 2; end[1] = len(items) - 1
    items += [t2(k) for k in range(k2, 32)] + [mean(2)]; end[2] = len(items) - 1
    for r in range(3, 6):
        items += [dict(rd=wide(vA0, k * 1024, (2 if r == 3 else 1) if k == 0 else 0), acc=A[r % 4], b=XF + 4 * k, first=k == 0) for k in range(32)]
        items.append(mean(r)); end[r] = len(items) - 1
    T5 = end[4] + 1; P4 = len(items)
    HI = [16 + 4 * i for i in range(4)] + [116, 88] + [XF + 4 * i for i in range(2)] + [32 + 4 * i for i in range(3)]
    breg = lambda k: XF + 4 * k if k < 32 else HI[k - 32]
    for n, it in enumerate(small_items(43, breg, (48, 96))):
        def rd(st, r, it=it, n=n):
            if n % 16 == 0: ring_next(st, "trn")
            a = vA1 if it["t"] else vA0
            st.ds_read_b64_tr_b16(v(r, 2), a, mods=f"offset:{it['off']}")
            st.ds_read_b64_tr_b16(v(r + 2, 2), a, mods=f"offset:{it['off']+512}")
        items.append(dict(rd=rd, acc=it["acc"], b=it["b"], first=it["first"]))
    for n, f in enumerate(L[pre:]): hk(2 * n + 1, f)
    fill = Filler()
    f = Stream()
    stats(f, STT, NM3, K1, VE3)
    f.v_and_b32(vU, 0xffff0000, NM3); f.v_sub_f32(NM3, NM3, vU); f.v_cndmask_b32(vU, vU, NM3, sHALF)
    f.v_cvt_pk_bf16_f32(v(NMP), vU, vU)
    f.v_mul_f32(K3, K1, K1); f.v_mul_f32(K1, f2u(C1), K1); f.v_mul_f32(K3, f2u(0.044715), K3); f.v_mul_f32(K3, K3, K1)
    z = Stream()
    for i in range(1, 4): z.v_mov_b32(v(NMP + i), 0)
    z.v_min_u32(aP4, 20, vFL)
    hk(2, lambda st: fill.add(z))
    hk(use[min(31, at + oi("sth3", 2))], lambda st: fill.add(f))
    hk(end[0] - 2, lambda st: fill.flush(st))
    TM = 112
    def epi(r):
        f = Stream(); a = A[r % 4]
        g = lambda i: v(a + i)
        u = lambda i: v(a + 8 + i)
        tm = lambda i: v(TM + i % 4)
        for t in range(16):
            ok = lambda d: 0 <= t - d < 8
            if ok(3): f.v_exp_f32(g(t - 3), g(t - 3))
            if ok(0): f.v_mul_f32(tm(t), g(t), g(t))
            if ok(1): f.v_fma_f32(tm(t - 1), tm(t - 1), K3, K1)
            if ok(0): f.v_mul_f32(u(t), g(t), u(t))
            if ok(5): f.v_rcp_f32(g(t - 5), g(t - 5))
            if ok(2): f.v_mul_f32(g(t - 2), tm(t - 2), g(t - 2))
            if ok(4): f.v_fma_f32(g(t - 4), g(t - 4), VE3, VE3)
            if ok(6): f.v_mul_f32(g(t - 6), g(t - 6), u(t - 6))
            if ok(7) and t % 2 == 0: f.v_cvt_pk_bf16_f32(u((t - 8) // 2), g(t - 8), g(t - 7))
            if t == 12 and r < 5: f.s_add_u32(sHS, sHST, 16384 * r)
        f.buffer_store_dwordx4(v(a + 8, 4), vL16, WS, sHS if r < 5 else sH5, mods=f"offen {G.SC}", tset=f"h{r}")
        return f
    def flag(r):
        f = Stream()
        f.buffer_store_dword(vNON, "off", WS, sFJ if r < 5 else sF5, mods=f"offset:{256+64*r} {G.SC}", tneed=f"h{r}")
        return f
    e = [epi(r) for r in range(6)]
    ri = Stream(); res_init(ri, 48)
    lag = oi("lag", 4)
    for r in range(6):
        parts = [e[r]] + ([ri] if r == 3 else [])
        hk(end[max(r, 1)] + lag, lambda st, parts=parts: [fill.add(p) for p in parts])
        hk(end[r], lambda st, r=r: stamp(st, f"t{r}"))
    hk(end[3], lambda st: fill.drain_until(st, e[0])); hk(end[4], lambda st: fill.drain_until(st, e[1]))
    hk(end[5] - 1, lambda st: fill.drain_until(st, ri))
    fd = [int(x) for x in os_("fd", "38,20,20,18,16,12").split(",")]; fpos = {}
    def watch(i, l):
        for r in range(6):
            if any(("t", f"h{r}") in x.dst for x in l): fpos[r] = i + fd[r]; hk(i + fd[r], lambda st, r=r: (stamp(st, f"f{r}a"), st.extend(flag(r)), stamp(st, f"f{r}b")))
    b3, b4 = oi("bud3", 16), oi("bud4", 16)
    def bud(i):
        b = oi("bud0", 12) if i < end[1] else b3 if i < P4 - DEPTH else b4
        if b % 4: b += 2 if i % 2 else -2
        return b - (4 if i in hooks and oi("budh", 1) else 0)
    o = oi("b4", 10)
    for i, name in ((g5 + oi("c1d", 4), "3a"), (end[1], "3b"), (end[2], "3c"), (end[3], "3d"), (end[4], "3f"), (end[5], "3g"),
                    (P4 + o, "4a"), (P4 + 16 + o, "4b"), (P4 + 32 + o, "4c"), (P4 + 48 + o, "4d"), (P4 + 64 + o, "4e")):
        hk(i, lambda st, name=name: (stamp(st, f"{name}a"), barrier(st, name), stamp(st, f"{name}b")))
    for i in (16, 32, 48, 64): hk(P4 + i, lambda st, i=i: stamp(st, f"q{i}"))
    HL = frag_loads(sHLD, [breg(k) for k in range(43)], 2048, 2)
    if OPT.get("noH"): HL = [lambda st: None] * 43
    ne = oi("early4", 12)
    ck = [T5 + oi("chkA", 10), P4 + oi("chk2", 0), P4 + oi("chk3", 16), P4 + oi("chk4", 42), P4 + oi("chk5", 65)]
    sl = oi("sl", 12); ev = float(OPT.get("ev4", 2)); pos = []
    for k in range(43):
        g = max(0, k // 8 - 1)
        p = ck[0] + 1 + k * float(OPT.get("ev3", 2)) if k < ne else pos[-1] + ev
        pos.append(max(p, ck[g]) if k < 40 else ck[4])
    pos = [int(p) for p in pos]
    hk(ck[0] - sl - 1, lambda st: (st.v_and_b32(vV, 31, vL), st.v_lshlrev_b32(vV, 2, vV)))
    for g, (addr, off) in enumerate(((vV, 256), (vFL, 384), (vFL, 448), (vFL, 512), (aP4, 576))):
        assert g == 0 or ck[g] - sl > ck[g - 1]
        if OPT.get("nochk"): continue
        hk(ck[g] - sl, lambda st, addr=addr, off=off: st.buffer_load_dword(vS4, addr, WS, sFB, mods=f"offen offset:{off} sc1"))
        hk(ck[g], lambda st, addr=addr, off=off, g=g: (stamp(st, f"k{g}a"), soft_check(st, vS4, addr, sFB, off), stamp(st, f"k{g}b")))
    def last(st):
        assert 5 in fpos and fpos[5] < ck[4]
        nxt(st)
    hk(ck[4], last)
    for k in range(43):
        assert pos[k] < P4 + 2 * k and (k >= 32 or pos[k] >= T5 + k), (k, pos[k])
        hk(pos[k], HL[k])
    hk(pos[32] - 1, lambda st: fill.drain_until(st, e[4]))
    stream(st, items, AF, 6, DEPTH, hooks, fill, bud, watch)
    if G.TAG == "f": print("T3", end[2] + 1, "T4", end[3] + 1, "T5", T5, "P4", P4, "flags", fpos, "checks", ck, "loads", pos, file=sys.stderr)
    stamp(st, "P4gemm")
    xepi(st, True)

def body(st, first):
    stop = OPT["stop"]
    T = G.TAG
    st.label(f".Lpair_{T}"); st.mark("reset")
    G.SEQ = SEQA; p1a(st)
    G.SEQ = SEQC
    if first:
        st.mark("merge", "from0"); st.label(".Lk_f")
    p1b(st); p1c(st)
    if stop == "p1": st.s_branch(".Lend"); return
    p2(st)
    if stop == "p2": st.s_branch(".Lend"); return
    p34(st)
    stamp(st, "end")
    stamp(st, 63, True)
    st.s_or_b32(sT0, s(2), sW); st.s_cmp_lg_u32(sT0, 0); st.s_cbranch_scc1(".Lend")
    st.v_add_u32(vNON, 22, vNON)
    st.buffer_store_dword(vNON, "off", WS, 0, mods=f"offset:{EPOCH} sc1")
    st.s_branch(".Lend")

SEQ0, SEQA, SEQC = [], [], []
def compute(st):
    G.SEQ = SEQ0
    p1a0(st)
    st.mark("save", "from0")
    st.s_branch(".Lk_f")
    G.SC, G.TAG = "", "f"
    body(st, True)

def compute_slow(st):
    G.SC, G.TAG, G.REC = "sc1", "s", False
    body(st, False)

sW8, sQK, sWOb, sGU, sWD5, sWI = s(74), s(75), s(76), s(77), s(78), s(79)
sWDb = [s(80 + i) for i in range(4)]
GU = 64
vKV, vQ, vW, vWR0, vWR1 = v(2), v(4), v(5), v(6), v(7)
vGG = [v(8), v(9), v(10)]; vGL = [v(16), v(17), v(18)]; vGT = v(19)
vC0, vC1, vCW, vCR = v(20), v(21), v(22), v(23)
SEL = 24; CACC = 28
FRS = [36, 40, 44, 48, 52]; WRAW = 56
vDUM = [v(11), v(60), v(61), v(62)]
GSTR = 448

def LDSW(st):
    for i in reversed(st.l):
        if i.name == "s_barrier" or (i.name == "s_waitcnt" and "lgkmcnt(0)" in i.ops[0]): return False
        if i.kind == "ds": return True
    return False

def loader(st):
    st.v_lshrrev_b32(vT, 3, vL); st.v_bfe_u32(vU, vL, 4, 1); st.v_lshlrev_b32(vU, 2, vU); st.v_and_b32(vV, 7, vL); st.v_xor_b32(vU, vU, vV)
    st.v_mul_u32_u24(vKV, 3072, vT); st.v_and_b32(vV, 3, vU); st.v_lshl_add_u32(vKV, vV, 4, vKV)
    st.v_lshrrev_b32(vV, 2, vU); st.v_mul_u32_u24(vQ, 256 * 3072, vV); st.v_add_u32(vQ, vQ, vKV)
    st.v_lshl_add_u32(vKV, vV, 10, vKV); st.v_add_u32(vKV, 1024, vKV)
    st.v_lshlrev_b32(vW, 10, vT); st.v_lshl_add_u32(vW, vU, 4, vW)
    st.s_lshl_b32(sW8, sM, 13)
    st.s_mul_i32(sQK, sM, 64 * 3072); st.s_lshl_b32(sT0, sJ, 6); st.s_add_u32(sQK, sQK, sT0)
    sKVr = [s(84), s(85)]; sQJ = s(88); vQ0 = v(GU)
    rot(st, s(89), sT1); st.s_add_u32(s(89), s(89), sM)
    st.s_lshl_b32(sQJ, sJ, 6)
    st.s_and_b32(sT1, s(89), 7); st.s_mul_i32(sKVr[0], sT1, 64 * 3072); st.s_add_u32(sKVr[0], sKVr[0], sQJ)
    st.s_and_b32(sWI, sC, 1); st.s_lshl_b32(sWI, sWI, 4); st.s_add_u32(sWI, sWI, sJ); st.s_lshl_b32(sWI, sWI, 2); st.s_add_u32(sWI, sWI, sM)
    if not oi("fast0", 1) or os_("e0", "c0,non,wld"):
        st.wait(lgkm=0)
        srds(st, [WQ])
    chunks = []
    for pair in range(2):
        chunks += [("kv", 0), ("kv", 1), ("q", 0), ("wo", 0), ("wo", 1), ("gp", 0), ("gp", 1)] + [("gs", r) for r in range(2, 6)]
        chunks += [("wd", r) for r in range(6)]
    N = len(chunks)
    issued = set()
    def dma(n, addr, srd, offs):
        slot = (n % 4) * 32768
        for i, (base, off, lds) in enumerate(offs):
            st.s_add_u32("m0", lds[0], slot + lds[1])
            st.s_add_u32(sT0, base, off)
            st.buffer_load_dwordx4(addr, srd, sT0, mods="offen lds" + (" nt" if srd == WQ and OPT.get("qnt") else ""), tset=f"c{n}" if i == len(offs) - 1 else None)
    def issue(n):
        if n >= N: return
        assert n not in issued; issued.add(n)
        kind, a = chunks[n]
        if kind == "kv" and n < 17:
            if a == 1: st.s_xor_b32(sT1, s(89), 4); st.s_and_b32(sT1, sT1, 7); st.s_mul_i32(sKVr[1], sT1, 64 * 3072); st.s_add_u32(sKVr[1], sKVr[1], sQJ)
            dma(n, vKV, WQ, [(sKVr[a], 8 * i * 3072, (sW8, 1024 * i)) for i in range(8)])
        elif kind == "q" and n < 17:
            st.v_add_u32(vT, sKVr[0], vQ); st.v_subrev_u32(vU, 512 * 3072, vT); st.v_min_u32(vQ0, vT, vU)
            dma(n, vQ0, WQ, [("0", 8 * i * 3072, (sW8, 1024 * i)) for i in range(8)])
        elif kind == "kv": dma(n, vKV, WQ, [(sQK, (256 * a + 8 * i) * 3072, (sW8, 1024 * i)) for i in range(8)])
        elif kind == "q": dma(n, vQ, WQ, [(sQK, 8 * i * 3072, (sW8, 1024 * i)) for i in range(8)])
        elif kind == "wo": dma(n, vW, WO_, [(sWOb, (256 * a + 8 * i) * 1024, (sW8, 1024 * i)) for i in range(8)])
        elif kind == "wd" and a < 5: dma(n, vW, WD, [(sWDb[i // 2], (16 * a + 8 * (i % 2)) * 1024, (sW8, 1024 * i)) for i in range(8)])
        elif kind == "wd":
            slot = (n % 4) * 32768
            for e in range(3):
                st.s_mul_i32(sT1, sM, 3); st.s_add_u32(sT1, sT1, e)
                st.s_lshr_b32(sT0, sT1, 1); st.s_mul_i32(sT0, sT0, 96 * 1024); st.s_and_b32(sT2, sT1, 1); st.s_lshl_b32(sT2, sT2, 13)
                st.s_add_u32(sT0, sT0, sT2); st.s_add_u32(sT0, sT0, sWD5)
                st.s_lshl_b32(sT1, sT1, 10); st.s_add_u32("m0", sT1, slot)
                st.buffer_load_dwordx4(vW, WD, sT0, mods="offen lds", tset=f"c{n}" if e == 2 else None)
        else:
            slot = n % 4; wr = vWR1 if slot >= 2 else vWR0; so = (slot & 1) * 32768
            for t in range(2):
                for k in range(4):
                    g, fr = (4 * a + k, t) if kind == "gp" else (4 * t + k, a)
                    st.ds_write_b128(wr, v(GU + 24 * g + 4 * fr, 4), mods=f"offset:{so + t*16384 + k*1024}", tset=f"c{n}" if (t, k) == (1, 3) else None)
    FREE = [GU + 24 * g + 4 * fr for h in (0, 2) for g in range(8) for fr in (h, h + 1)]
    def stg(n):
        a = chunks[n][1]
        if n < 17:
            assert a == 5; return [48, 52, 56]
        o = {3: 0, 4: 8, 2: 16, 5: 24}[a]
        return FREE[o:o + 8]
    def stage(n):
        kind, a = chunks[n]; assert kind == "wd"
        r = stg(n)
        if a < 5:
            for i in range(8):
                st.s_add_u32(sT0, sWDb[i // 2], (16 * a + 8 * (i % 2)) * 1024)
                st.buffer_load_dwordx4(v(r[i], 4), vW, WD, sT0, mods="offen")
        else:
            for e in range(3):
                st.s_mul_i32(sT1, sM, 3); st.s_add_u32(sT1, sT1, e)
                st.s_lshr_b32(sT0, sT1, 1); st.s_mul_i32(sT0, sT0, 96 * 1024); st.s_and_b32(sT2, sT1, 1); st.s_lshl_b32(sT2, sT2, 13)
                st.s_add_u32(sT0, sT0, sT2); st.s_add_u32(sT0, sT0, sWD5)
                st.buffer_load_dwordx4(v(r[e], 4), vW, WD, sT0, mods="offen")
    def unstage(n):
        kind, a = chunks[n]; r = stg(n); slot = (n % 4) * 32768
        assert n not in issued; issued.add(n)
        if a < 5: st.s_add_u32(sT0, sW8, slot)
        else: st.s_mul_i32(sT0, sM, 3072); st.s_add_u32(sT0, sT0, slot)
        st.v_add_u32(vT, sT0, vL16)
        for i in range(8 if a < 5 else 3): st.ds_write_b128(vT, v(r[i], 4), mods=f"offset:{1024*i}")
    def prologue():
        F0 = oi("fast0", 1)
        if F0:
            if os_("e0", "c0,non,wld"):
                srds(st, [WS, WP, WO_, WG, WU, WD])
                run(os_("e0", "c0,non,wld").split(","), 0)
        else:
            issue(0)
            if oi("kv1first", 1): issue(1)
        if not oi("cfirst", 1):
            st.mark("save", "ld1"); st.s_branch(".Lloader")
            st.label(".Lcomp"); st.mark("reset")
            compute(st)
            st.label(".Lloader"); st.mark("restore", "ld1")
        if not F0 and not oi("kv1first", 1): issue(1)
        def late():
            if not (F0 and os_("e0", "c0,non,wld")):
                st.wait(lgkm=0)
                srds(st, [WQ, WS, WP, WO_, WG, WU, WD])
            stamp_base(st)
            stamp(st, "start", who="l", pair=0)
        if not F0 or os_("e0", "c0,non,wld"): late()
        st.s_lshl_b32(sWOb, sM, 16); st.s_lshl_b32(sT0, sCG, 7); st.s_add_u32(sWOb, sWOb, sT0)
        for e in range(4):
            st.s_lshl_b32(sT1, sM, 2); st.s_add_u32(sT1, sT1, e)
            st.s_mul_i32(sT2, sT1, 6); st.s_mul_i32(sT3, sT1, 5); st.s_add_u32(sT3, sT3, 6); st.s_min_u32(sT2, sT2, sT3)
            st.s_lshl_b32(sT2, sT2, 14); st.s_add_u32(sWDb[e], sT2, sT0)
        st.s_add_u32(sWD5, sT0, 80 * 1024)
        st.s_mul_i32(sT2, sJ, 6); st.s_mul_i32(sT3, sJ, 5); st.s_add_u32(sT3, sT3, 6); st.s_min_u32(sT2, sT2, sT3)
        st.s_lshl_b32(sT2, sT2, 5); st.s_mul_i32(sGU, sM, 64 * 2752); st.s_add_u32(sGU, sGU, sT2)
        st.s_cmp_eq_u32(sT6, 1); st.s_cselect_b32(sT1, 12, 10)
        st.s_lshl_b32(sT2, sM, 12); st.s_add_u32(sT2, sT2, 32768)
        for i in range(3):
            st.v_add_u32(vT, 64 * i, vL); st.v_mul_u32_u24(vU, 5462, vT); st.v_lshrrev_b32(vU, 16, vU)
            st.v_mul_u32_u24(vV, 12, vU); st.v_sub_u32(vT, vT, vV)
            st.v_mul_u32_u24(vGG[i], 2752, vU); st.v_lshl_add_u32(vGG[i], vT, 4, vGG[i])
            st.v_cmp_gt_u32("vcc", sT1, vT); st.v_mov_b32(vV, 0x80000000); st.v_cndmask_b32(vGG[i], vV, vGG[i], "vcc")
            st.v_and_b32(vV, 7, vU); st.v_mul_u32_u24(vGL[i], GSTR, vV); st.v_lshrrev_b32(vV, 3, vU); st.v_lshl_add_u32(vGL[i], vV, 14, vGL[i])
            st.v_lshrrev_b32(vV, 1, vT); st.v_lshl_add_u32(vGL[i], vV, 6, vGL[i])
            st.v_and_b32(vV, 1, vT); st.v_lshl_add_u32(vGL[i], vV, 4, vGL[i]); st.v_add_u32(vGL[i], sT2, vGL[i])
        lane_tr(st, vGT, None, "nat", stride=GSTR, hstride=16384); st.v_add_u32(vGT, sT2, vGT)
        lane_tr(st, vC0, vC1, "qkv")
        st.s_lshl_b32(sT0, sM, 12); st.v_add_u32(vWR0, sT0, vL16); st.v_add_u32(vWR1, 65536, vWR0)
        st.v_bfe_u32(vT, vL, 4, 1); st.v_and_b32(vU, 1, vL); st.v_cmp_eq_u32("vcc", vT, vU)
        st.v_mov_b32(vV, 0x3f803f80)
        for i in range(4): st.v_cndmask_b32(v(SEL + i), 0, vV, "vcc")
        st.v_lshlrev_b32(vCW, 6, vT); st.v_lshl_add_u32(vCW, vU, 5, vCW); st.v_lshrrev_b32(vT, 5, vL); st.v_lshl_add_u32(vCW, vT, 4, vCW)
        if F0 and not os_("e0", "c0,non,wld"): late()
    def publish():
        L = newlab("pub")
        st.v_add_u32(vNON, sXC, vNON); st.v_add_u32(vNON, 16, vNON)
        st.s_lshl_b32(sT0, sC, 7); st.s_lshl_b32(sT1, sJ, 2); st.s_add_u32(sT0, sT0, sT1); st.s_add_u32(sT0, sT0, XCCT)
        st.s_cmp_lg_u32(sM, 0); st.mark("save", L); st.s_cbranch_scc1(L)
        st.buffer_store_dword(vNON, "off", WS, sT0, mods="sc1")
        st.mark("merge", L); st.label(L)
    dn = [0]
    def dum():
        dn[0] += 1
        return vDUM[dn[0] % 4]
    def tload(addr, srd, soff):
        i = Ins("buffer_load_dword", [dum(), addr, srd, str(soff)], "offen"); i.dst = set(); st.l.append(i)
    def touch(kind):
        if kind == "wd":
            st.s_mul_i32(sT0, sWI, 86 * 128); st.v_lshlrev_b32(vT, 7, vL); tload(vT, WD, sT0)
            st.v_min_u32(vU, 21, vL); st.v_lshlrev_b32(vU, 7, vU); st.s_add_u32(sT0, sT0, 8192); tload(vU, WD, sT0)
        elif kind == "kv":
            st.v_lshrrev_b32(vT, 4, vL); st.v_mul_u32_u24(vT, 3072, vT); st.v_lshl_add_u32(vT, vFL, 5, vT)
            st.s_mul_i32(sT0, sWI, 4 * 3072); st.s_add_u32(sT0, sT0, 1024); tload(vT, WQ, sT0)
        elif kind == "q":
            st.v_bfe_u32(vT, vL, 3, 2); st.v_mul_u32_u24(vT, 3072, vT); st.v_and_b32(vU, 7, vL); st.v_lshl_add_u32(vT, vU, 7, vT)
            st.s_mul_i32(sT0, sWI, 4 * 3072); tload(vT, WQ, sT0)
        elif kind == "wo":
            st.v_and_b32(vT, 31, vL); st.v_lshlrev_b32(vT, 7, vT); st.s_lshl_b32(sT0, sWI, 12); tload(vT, WO_, sT0)
        elif kind == "h":
            st.s_lshl_b32(sT0, sC, 4); st.s_add_u32(sT0, sT0, sJ); st.s_lshl_b32(sT0, sT0, 2); st.s_add_u32(sT0, sT0, sM)
            st.s_mul_i32(sT0, sT0, 43 * 128); st.s_add_u32(sT0, sT0, HB)
            st.v_min_u32(vT, 42, vL); st.v_lshlrev_b32(vT, 7, vT); tload(vT, WS, sT0)
        elif kind in ("h0", "h1"):
            n, o = (16, 0) if kind == "h0" else (27, 32768)
            st.s_lshl_b32(sT0, sC, 2); st.s_add_u32(sT0, sT0, sM); st.s_mul_i32(sT0, sT0, HB_TB)
            st.s_mul_i32(sT1, sJ, n * 128); st.s_add_u32(sT0, sT0, sT1); st.s_add_u32(sT0, sT0, HB + o)
            st.v_min_u32(vT, n - 1, vL); st.v_lshlrev_b32(vT, 7, vT); tload(vT, WS, sT0)
        elif kind == "x":
            st.s_lshl_b32(sT0, sC, 4); st.s_add_u32(sT0, sT0, sJ); st.s_lshl_b32(sT0, sT0, 2); st.s_add_u32(sT0, sT0, sM)
            st.s_lshl_b32(sT1, sT0, 11); st.s_add_u32(sT1, sT1, XB)
            st.s_lshl_b32(sT2, sT0, 8); st.s_add_u32(sT2, sT2, ST - 16 * 128)
            st.s_lshl_b32(sT3, sC, 2); st.s_add_u32(sT3, sT3, sM); st.s_lshl_b32(sT3, sT3, 10); st.s_add_u32(sT3, sT3, FL - 18 * 128)
            st.v_mov_b32(vU, sT1); st.v_mov_b32(vV, sT2); st.v_cmp_le_u32("vcc", 16, vL); st.v_cndmask_b32(vU, vU, vV, "vcc")
            st.v_mov_b32(vV, sT3); st.v_cmp_le_u32("vcc", 18, vL); st.v_cndmask_b32(vU, vU, vV, "vcc")
            st.v_min_u32(vT, 22, vL); st.v_lshl_add_u32(vT, vT, 7, vU); tload(vT, WS, 0)
        elif kind == "code":
            st.s_getpc_b64(s(100, 2))
            L = newlab("pc")
            st.label(L)
            st.raw(f"    s_sub_u32 s100, s100, {L}-{NAME}_kernel")
            st.raw("    s_subb_u32 s101, s101, 0")
            st.v_lshlrev_b32(vT, 7, vL); st.s_lshl_b32(sT0, sM, 13); st.v_add_u32(vT, sT0, vT)
            i = Ins("global_load_dword", [dum(), vT, s(100, 2)]); i.dst = set(); st.l.append(i)
            st.v_add_u32(vU, 32768, vT); st.v_min_u32(vU, f".Lslow-{NAME}_kernel", vU)
            i = Ins("global_load_dword", [dum(), vU, s(100, 2)]); i.dst = set(); st.l.append(i)
    gl = []
    for g in range(8):
        k0 = (16 * (g // 4) + (g % 4)) * 16
        for m_, srd in enumerate((WG, WU)):
            for i in range(3):
                def f(g=g, k0=k0, m_=m_, srd=srd, i=i):
                    if i == 0: st.s_add_u32(sLD, sGU, k0 * 2752)
                    st.buffer_load_dwordx4(v(GU + 24 * g + 12 * m_ + 4 * i, 4), vGG[i], srd, sLD, mods="offen" + (" nt" if OPT.get("gunt") else ""))
                gl.append(f)
    def gu_loads(cnt):
        for _ in range(min(cnt, len(gl))): gl.pop(0)()
    def colsum(n, steps, first, lo, hi, dst=None):
        L = newlab("cs")
        st.s_sub_u32(sT0, sM, lo); st.s_cmp_ge_u32(sT0, hi - lo); st.mark("save", L); st.s_cbranch_scc1(L)
        nf = len(FRS)
        def rd(k):
            a, off = steps[k]; r = FRS[k % nf]
            st.ds_read_b64_tr_b16(v(r, 2), a, mods=f"offset:{off}"); st.ds_read_b64_tr_b16(v(r + 2, 2), a, mods=f"offset:{off+512}")
        for k in range(nf - 1): rd(k)
        for k in range(len(steps)):
            acc = v(CACC + 4 * (k & 1), 4)
            st.v_mfma_f32_16x16x32_bf16(acc, v(FRS[k % nf], 4), v(SEL, 4), "0" if first and k < 2 else acc)
            if k + nf - 1 < len(steps): rd(k + nf - 1)
        if dst is not None:
            for i in range(4): st.v_add_f32(v(CACC + i), v(CACC + i), v(CACC + 4 + i))
            st.ds_write_b128(dst, v(CACC, 4))
        st.mark("merge", L); st.label(L)
    def transpose(g):
        b = GU + 24 * g
        for m_ in range(2):
            for i in range(3): st.ds_write_b128(vGL[i], v(b + 12 * m_ + 4 * i, 4), mods=f"offset:{32*m_}")
        for t in range(6):
            for u in range(2): st.ds_read_b64_tr_b16(v(b + 4 * t + 2 * u, 2), vGT, mods=f"offset:{u*4*GSTR + t*64}")
    def tsum(g):
        b = GU + 24 * g
        for t in range(6):
            st.v_mfma_f32_16x16x32_bf16(v(CACC + 4 * t, 4), v(b + 4 * t, 4), v(SEL, 4), "0" if g == 0 else v(CACC + 4 * t, 4))
    tr_next = [0]
    def transposes(cnt):
        gs = list(range(tr_next[0], min(8, tr_next[0] + cnt))); tr_next[0] += len(gs)
        for i, g in enumerate(gs):
            transpose(g)
            if i > 0: tsum(gs[i - 1])
        tsum(gs[-1])
    def gu_partial():
        st.s_mul_i32(sT0, sM, 768); st.s_add_u32(sT0, sT0, L_VB); st.v_add_u32(vT, sT0, vCW)
        for i in range(6): st.ds_write_b128(vT, v(CACC + 4 * i, 4), mods=f"offset:{128*i}")
    def gu_reduce():
        st.v_min_u32(vCR, 6 * 128 - 16, vL16)
        st.v_add_u32(vT, L_VB, vCR)
        for w in range(4): st.ds_read_b128(v(CACC + 4 * w, 4), vT, mods=f"offset:{w*768}")
        for i in range(4):
            st.v_add_f32(v(CACC + i), v(CACC + i), v(CACC + 4 + i)); st.v_add_f32(v(CACC + 8 + i), v(CACC + 8 + i), v(CACC + 12 + i))
        for i in range(4): st.v_add_f32(v(CACC + i), v(CACC + i), v(CACC + 8 + i))
        for i in range(4):
            st.v_and_b32(v(CACC + 4 + i), 0xffff0000, v(CACC + i)); st.v_sub_f32(v(CACC + i), v(CACC + i), v(CACC + 4 + i))
            st.v_cvt_pk_bf16_f32(v(CACC + i), v(CACC + 4 + i), v(CACC + i))
        st.v_and_b32(vT, 0x380, vCR); st.v_and_b32(vU, 0x30, vCR); st.v_lshl_add_u32(vT, vU, 1, vT)
        st.v_bfe_u32(vU, vCR, 6, 1); st.v_lshl_add_u32(vT, vU, 4, vT); st.v_add_u32(vT, L_CS + 384, vT)
        st.ds_write_b128(vT, v(CACC, 4))
    def cs_kv(a):
        if a == 0:
            st.s_lshl_b32(sT0, sM, 6); st.v_xor_b32(vCR, sT0, vC0)
        else:
            st.s_lshl_b32(sT0, sM, 7); st.s_add_u32(sT0, sT0, L_CS); st.v_add_u32(vV, sT0, vCW)
        colsum(a, [(vCR, 32768 * a + 2048 * k) for k in range(16)], a == 0, 0, 2, dst=vV if a == 1 else None)
    def cs_q():
        st.v_add_u32(vT, 65536, vC0); st.v_add_u32(vU, 65536, vC1); st.v_add_u32(vV, L_CS + 256, vCW)
        colsum(2, [(a, 2048 * k) for k in range(16) for a in (vT, vU)], True, 2, 3, dst=vV)

    need = {"a0": [0], "a1": [1], "g": [3, 4], "30": [5, 6, 7, 8], "3c": [9], "3d": [10], "3f": [11], "4a": [12], "4b": [13], "4c": [14], "4d": [15], "4e": [16]}
    S0 = os_("s0", "start:c1;a0:c2,csk0;a1:csk1,wst,sigA,pub,G8,sigq,G16,wsig,X2,G12,X2,G12,X2,c3,c4,X2,Th0,Tx;g:part,c5,c6;X2:c7,c8;")
    S0 += os_("s0b", "30:red,wst;3a:c9,Twd,Th1,nd;3b:c10,nd;3d:c11,c12;3f:c13;3g:c14;4b:c15;4c:c16;4e:c17;X4:c18")
    S1 = os_("s1", "a2:c2,sig,c3,c4;g:c5,c6;X2:c7,c8;")
    S1 += os_("s1b", "3a:c9,Twd,nd;3b:c10,nd;3c:c11;3d:c12;3f:c13;3g:c14;4b:c15;4c:c16")
    def acts(txt):
        d = {}
        for part in txt.split(";"):
            k, _, l = part.partition(":"); d[k] = l.split(",")
        return d
    DR = [False]
    def run(lst, o):
        for a in lst:
            DR[0] = False
            if a == "q": issue(2)
            elif a == "pub": publish()
            elif a == "wld": st.s_lshl_b32(sT0, sJ, 10); st.buffer_load_dwordx4(v(WRAW, 4), vL16, WP, sT0, mods="offen")
            elif a == "wst":
                st.v_bfe_u32(vT, vL, 3, 2); st.v_mul_u32_u24(vT, 576, vT); st.v_lshrrev_b32(vU, 5, vL); st.v_lshl_add_u32(vT, vU, 7, vT)
                st.v_and_b32(vU, 112, vL16); st.v_add_u32(vT, vT, vU); st.v_add_u32(vT, L_KVB, vT)
                st.ds_write_b128(vT, v(WRAW, 4))
            elif a == "non": st.buffer_load_dword(vNON, "off", WS, 0, mods=f"offset:{EPOCH} sc1")
            elif a == "sig":
                st.l.append(Ins("s_nop", ["0"], tneed=f"c{o+2}")); signal(st, 1 + o // 17)
            elif a == "sigA": signal(st, 1, 16)
            elif a == "sigq":
                L = newlab("sq")
                st.l.append(Ins("s_nop", ["0"], tneed=f"c{o+2}")); signal(st, 1, 32)
                st.s_cmp_lg_u32(sM, 2); st.mark("save", L); st.s_cbranch_scc1(L)
                st.v_mov_b32(vU, 1); sigwait(st, 12, 48, regs=(13, 14, 15))
                st.mark("merge", L); st.label(L)
                cs_q(); signal(st, 1)
            elif a == "wsig": st.v_mov_b32(vU, 2); sigwait(st, 12, 32, regs=(13, 14, 15))
            elif a.startswith("csk"): cs_kv(int(a[3]))
            elif a == "csq": cs_q()
            elif a == "part": gu_partial()
            elif a == "red": gu_reduce()
            elif a[0] == "P": st.s_setprio(int(a[1:]))
            elif a == "nd": DR[0] = True
            elif a == "wv": st.wait(vm=0)
            elif a[0] == "c": issue(o + int(a[1:]))
            elif a[0] == "r" and a[1:].isdigit(): stage(o + int(a[1:]))
            elif a[0] == "u" and a[1:].isdigit(): unstage(o + int(a[1:]))
            elif a[0] == "@": stamp(st, a, who="l", pair=o // 17)
            elif a[0] == "G": gu_loads(int(a[1:]))
            elif a[0] == "X": transposes(int(a[1:]))
            elif a[0] == "T": touch(a[1:])
            else: raise ValueError(a)
    prologue()
    for pair in range(1 if OPT['stop'] else 2):
        o = 17 * pair; A = acts(S0 if pair == 0 else S1)
        run(A.get("start", []), o)
        for b in (SEQ0 if pair == 0 else SEQA) + SEQC:
            tk = []
            for n in need.get(b, []):
                assert o + n in issued, (pair, b, n)
                tk.append(f"c{o+n}")
            stamp(st, "<" + b, who="l", pair=pair)
            if not DR[0] and LDSW(st): st.wait(lgkm=0)
            DR[0] = False
            st.l.append(Ins("s_barrier", [], tneed=tk))
            run(A.get(b, []), o)
    assert OPT['stop'] or (not gl and tr_next[0] == 8)
    st.s_branch(".Lend")

def main():
    st = Stream()
    entry(st)
    loader(st)
    st.label(".Lslow")
    compute_slow(st)
    st.extend(OOL)
    st.label(".Lend")
    st.s_endpgm()
    bodyt = finalize(st)
    ref = open(f"cdna_kernels/{NAME}.s.ref").read().split("\n")
    head = [l for l in ref if l.startswith(";") and "@launch" not in l]
    out = "\n".join(head) + f"\n; @launch grid=(256,1,1) block=(512,1,1) lds={LDS_BYTES}\n"
    out += '.amdgcn_target "amdgcn-amd-amdhsa--gfx950"\n' + khead(NAME + "_kernel") + bodyt + kd(NAME + "_kernel")
    path = sys.argv[1] if len(sys.argv) > 1 else f"cdna_kernels/{NAME}.s"
    open(path, "w").write(out)
    stamp_names["opt"] = " ".join(a for a in sys.argv[2:] if not a.startswith(("stamps", "only"))); json.dump(stamp_names, open(path + ".json", "w"))
    n = sum(1 for l in bodyt.split("\n") if l.startswith("    ") and not l.strip().startswith(";"))
    print("wrote", path, "instructions:", n, "barriers:", SEQ0, SEQA, SEQC)

main()
```

```python
import sys, os, math, struct, json
sys.path.insert(0, os.path.dirname(os.path.abspath(__file__)))
from asmlib import *
from layout5 import *

NAME = "interleave_layers__linear_kernel_hedgehog__geglu_ffn__prompt"
OPT = dict(stop=None, stamps=False)
for a in sys.argv[2:]:
    k, _, val = a.partition("=")
    OPT[k] = val if val != "" else True
def oi(k, d): return int(OPT.get(k, d))
def os_(k, d): return str(OPT.get(k, d))
SCL = "sc1"
def f2u(x): return "0x%08x" % struct.unpack("<I", struct.pack("<f", x))[0]
LOG2E = 1.4426950408889634
class G: SC = ""; TAG = "f"; SEQ = None; REC = True

WS, X_, OUT, WQ, WP, WO_, WG, WU, WD = [s(4 + 4 * i, 4) for i in range(9)]
sXC = s(40)
sC, sJ, sHF, sCG, sM, sNONCE, sCNT, sPAIR = [s(66 + i) for i in range(8)]
sW = s(3)
sXLD, sSTLD, sFA, sXST, sSTST, sFXST = [s(74 + i) for i in range(6)]
sOST, sFB, sFJ = s(80), s(81), s(82)
sHLD, sHST = s(84), s(85)
sKVST, sKVLD, sFKVST, sFKVLD = [s(88 + i) for i in range(4)]
sKZ, sGZ, sHALF, sH5, sF5, sHS = s(62), s(63), s(60, 2), s(49), s(83), s(41)
sT0, sT1, sT2, sT3 = [s(92 + i) for i in range(4)]
sL2E, sONE, sOUTO, sT6 = s(96), s(97), s(98), s(99)
sSTMP = s(100, 2)
sRING, sKH, sTP, sDUM, sLD = s(44), s(45), s(46), s(47), s(48)
vL, vL16, vA0, vFL = v(0), v(1), v(2), v(3)
RES = 4
vNON = v(12); vT = v(13); vU = v(14); vV = v(15)
vA1, vP0, vP1 = v(121), v(122), v(123)
aXW = v(126)
XF = 128
cWDb = [s(52 + i) for i in range(4)]; sDM = s(56)
aEW, aER, vEVv, vEVr, aCS3 = v(112), v(113), v(114), v(115), v(120)
aP4, vS4 = v(124), v(125)

class bc:
    def __init__(self, r, neg=False): self.r = int(r[1:]) if isinstance(r, str) else r; self.neg = neg
class ng:
    def __init__(self, r): self.r = r
def pk(st, op, d, *src):
    ops, lo, hi, n = [], [], [], []
    for x in src:
        if isinstance(x, bc): ops.append(v(x.r & ~1, 2)); lo.append(x.r & 1); hi.append(x.r & 1); n.append(int(x.neg))
        elif isinstance(x, ng): ops.append(v(x.r, 2)); lo.append(0); hi.append(1); n.append(1); assert x.r % 2 == 0
        else: ops.append(v(x, 2)); lo.append(0); hi.append(1); n.append(0); assert x % 2 == 0
    assert d % 2 == 0
    f = lambda l: "[" + ",".join(map(str, l)) + "]"
    mods = f"op_sel:{f(lo)} op_sel_hi:{f(hi)}" + (f" neg_lo:{f(n)} neg_hi:{f(n)}" if any(n) else "")
    st.op(f"v_pk_{op}_f32", v(d, 2), *ops, mods=mods)

lab_n = [0]
def newlab(p):
    lab_n[0] += 1
    return f".L{p}_{lab_n[0]}"

def nxt(st):
    st.s_add_u32(sNONCE, sNONCE, 1); st.v_add_u32(vNON, 1, vNON)

def poll(st, addr, soff, off=0):
    L = newlab("poll"); D = newlab("pdone")
    st.label(L)
    st.buffer_load_dword(vT, addr, WS, soff, mods=f"offen offset:{off} sc1")
    st.wait(vm=0)
    st.v_cmp_ne_u32("vcc", sNONCE, vT)
    st.s_cbranch_vccz(D)
    st.s_sub_u32(sCNT, sCNT, 1)
    st.s_cbranch_scc0(L)
    st.s_mov_b32(sCNT, 0)
    st.label(D)

OOL = Stream()
def soft_check(st, reg, addr, soff, off=0):
    D = newlab("soft"); X = newlab("softx")
    st.v_cmp_ne_u32("vcc", sNONCE, reg)
    st.s_cbranch_vccnz(X)
    st.label(D)
    OOL.label(X); OOL.mark("reset")
    poll(OOL, addr, soff, off)
    OOL.s_branch(D)

stamp_names = {"c": [], "l": []}
def stamp(st, name, real=False, who="c", pair=None):
    if not OPT["stamps"]: return
    only = OPT.get("only")
    if only and who == "l" and not OPT.get("lst"): return
    if only and who == "c" and not isinstance(name, int) and name not in ("start", "end") and name not in only.split(","): return
    if isinstance(name, int): idx = name
    else:
        if name not in stamp_names[who]: stamp_names[who].append(name)
        idx = stamp_names[who].index(name)
    r = v(127) if who == "c" else v(63)
    if name == 62: st.v_mov_b32(r, s(42))
    elif name == "start" and who == "c": st.v_mov_b32(r, s(86))
    elif name == "karg": st.wait(lgkm=0); st.v_mov_b32(r, s(0))
    else:
        if real: st.s_memrealtime(sSTMP)
        else: st.s_memtime(sSTMP)
        st.wait(lgkm=0)
        st.v_mov_b32(r, s(100))
    if pair is None:
        st.s_lshl_b32(s(101), sPAIR, 8)
        st.s_add_u32(s(101), s(101), s(65))
    else:
        st.s_add_u32(s(101), s(65), 256 * pair)
    st.buffer_store_dword(r, "off", WS, s(101), mods=f"offset:{idx*4}")

def ring_addr(st, mode):
    if mode in ("trq", "trn"):
        st.v_add_u32(vA0, sRING, vP0 if mode == "trq" else vP1); st.v_xor_b32(vA1, 64, vA0)
    elif mode == "b128":
        st.v_add_u32(vA0, sRING, vL16)
def ring_next(st, mode=None):
    st.s_add_u32(sRING, sRING, 0x8000); st.s_and_b32(sRING, sRING, 0x1ffff)
    ring_addr(st, mode)
def barrier(st, name, drain=False):
    if drain: st.wait(lgkm=0)
    st.s_barrier()
    if G.REC: G.SEQ.append(name)

def signal(st, val=None, off=0):
    t0, t1 = (v(124), v(125)) if val is None else (vT, vU)
    st.s_lshl_b32(sT3, sW, 2); st.s_add_u32(sT3, sT3, L_SIG + off); st.v_mov_b32(t0, sT3)
    if val is None: st.v_add_u32(t1, 1, sPAIR)
    else: st.v_mov_b32(t1, val)
    st.ds_write_b32(t0, t1)
def sigwait(st, mask=28, off=0, regs=(124, 125, 126), cmp="ne", extra=None):
    L = newlab("sig"); D = newlab("sigd")
    a, e, r = [v(x) for x in regs]
    st.v_and_b32(a, mask, vFL); st.v_add_u32(a, L_SIG + off, a)
    if extra:
        st.ds_read_b32(r, a)
        extra(st)
        st.wait(lgkm=0)
        st.op(f"v_cmp_{cmp}_u32", "vcc", e, r)
        st.s_cbranch_vccz(D)
    st.label(L)
    st.ds_read_b32(r, a)
    st.wait(lgkm=0)
    st.op(f"v_cmp_{cmp}_u32", "vcc", e, r)
    st.s_cbranch_vccz(D)
    st.s_sub_u32(sCNT, sCNT, 1)
    st.s_cbranch_scc0(L)
    st.s_mov_b32(sCNT, 0)
    st.label(D)

def lane_tr(st, d0, d1, kind, stride=128, tmp=vT, hstride=None):
    st.v_bfe_u32(d0, vL, 2, 2)
    if stride == 128: st.v_lshlrev_b32(d0, 7, d0)
    else: st.v_mul_u32_u24(d0, stride, d0)
    st.v_lshrrev_b32(tmp, 5, vL)
    st.v_lshl_add_u32(d0, tmp, int(math.log2(hstride or 8 * stride)), d0)
    sh = dict(qkv=(5, 4), nat=(4, 5))[kind]
    st.v_and_b32(tmp, 1, vL); st.v_lshl_add_u32(d0, tmp, sh[0], d0)
    st.v_bfe_u32(tmp, vL, 1, 1); st.v_lshl_add_u32(d0, tmp, 3, d0)
    st.v_bfe_u32(tmp, vL, 4, 1); st.v_lshl_add_u32(d0, tmp, sh[1], d0)
    if stride == 128:
        st.v_bfe_u32(tmp, vL, 3, 1); st.v_lshl_add_u32(d0, tmp, 6, d0)
        if d1: st.v_xor_b32(d1, 64, d0)

gemm_n = [0]
def gemm(st, items, mode, af, nslots, depth, ready, bars=None, fill=None, budget=16, hooks=None, loads=None, pre=10, every=2, pairw=0):
    n = len(items); loads = list(loads or []); ready = set(ready); bars = bars or {}
    nr = 0; gemm_n[0] += 1; tg = f"g{gemm_n[0]}_"
    def pump(upto):
        nonlocal nr
        while nr < n and nr <= upto:
            it = items[nr]; r = af + 4 * (nr % nslots)
            assert it["chunk"] in ready, (nr, it["chunk"])
            if nr > 0 and it["chunk"] != items[nr - 1]["chunk"]: ring_next(st, mode)
            if mode != "b128":
                a = vA1 if it["t"] else vA0
                st.ds_read_b64_tr_b16(v(r, 2), a, mods=f"offset:{it['off']}")
                st.ds_read_b64_tr_b16(v(r + 2, 2), a, mods=f"offset:{it['off']+512}", tset=tg + str(nr))
            else:
                st.ds_read_b128(v(r, 4), vA0, mods=f"offset:{it['off']}", tset=tg + str(nr))
            nr += 1
    for _ in range(min(pre, len(loads))): loads.pop(0)(st)
    pump(depth - 1)
    for i in range(n):
        it = items[i]
        if hooks and i in hooks: hooks[i](st)
        acc = v(it["acc"], 16)
        st.v_mfma_f32_32x32x16_bf16(acc, v(af + 4 * (i % nslots), 4), v(it["b"], 4), "0" if it["first"] else acc,
                                    tneed=tg + str(i + 1) if pairw and i % 2 == 0 and i + 1 < nr else None)
        if i in bars:
            barrier(st, bars[i][0]); ready |= set(bars[i][1])
        pump(i + depth)
        if loads and i % every == every - 1: loads.pop(0)(st)
        if fill is not None: fill.take(st, budget(i) if callable(budget) else budget)
    assert not loads

def entry(st):
    st.s_cmp_ge_u32(s(2), 256)
    st.s_cbranch_scc1(".Lend")
    if OPT["stamps"]: st.s_memrealtime(s(42, 2)); st.s_memtime(s(86, 2))
    st.s_load_dwordx16(s(44, 16), s(0, 2), 0)
    st.s_load_dwordx4(s(60, 4), s(0, 2), 64)
    st.s_load_dwordx2(s(64, 2), s(0, 2), 80)
    st.v_lshrrev_b32(vT, 6, v(0))
    st.v_and_b32(vL, 63, v(0))
    st.v_readfirstlane_b32(sW, vT)
    st.v_lshlrev_b32(vL16, 4, vL)
    st.v_and_b32(vFL, 15, vL)
    st.v_lshlrev_b32(vFL, 2, vFL)
    st.s_and_b32(sT0, s(2), 7)
    st.s_lshr_b32(sT1, s(2), 3)
    st.s_lshr_b32(sC, sT1, 4)
    st.s_lshl_b32(sT0, sT0, 1)
    st.s_add_u32(sC, sC, sT0)
    st.s_and_b32(sJ, sT1, 15)
    st.s_lshr_b32(sHF, sJ, 3)
    st.s_and_b32(sCG, sJ, 7)
    st.s_and_b32(sM, sW, 3)
    st.s_mov_b32(sCNT, 1 << 18)
    st.s_mov_b32(sPAIR, 0)
    st.s_cmp_lt_u32(sJ, 6)
    st.s_cselect_b32(sT6, 1, 0)
    st.s_getreg_b32(sXC, "hwreg(HW_REG_XCC_ID, 0, 4)")
    for d in (WS, X_, OUT, WQ, WP, WO_, WG, WU, WD):
        st.s_mov_b32(s(int(d[2:d.index(":")]) + 3), 0x20000)
    for d, size in ((X_, 2048 * 1024), (WQ, 512 * 3072), (WS, WS_SIZE), (WP, 32 * 512), (WO_, 512 * 1024), (WG, 512 * 2752),
                    (WU, 512 * 2752), (WD, 1376 * 1024), (OUT, 2048 * 1024)):
        st.s_mov_b32(s(int(d[2:d.index(":")]) + 2), size)
    if oi("cfirst", 1):
        st.s_cmp_ge_u32(sW, 4); st.s_cbranch_scc1(".Lld0")
        compute(st)
        st.label(".Lld0"); st.mark("reset")
    else:
        st.s_cmp_lt_u32(sW, 4); st.s_cbranch_scc1(".Lcomp")

def rot(st, d, t):
    if not oi("rot", 0): st.s_mov_b32(d, 0); return
    st.s_and_b32(d, sJ, 1); st.s_and_b32(t, sC, 1); st.s_lshl_b32(t, t, 1); st.s_add_u32(d, d, t); st.s_lshl_b32(d, d, 1)
    st.s_lshr_b32(t, sJ, 1); st.s_add_u32(d, d, t)

def srds(st, lst):
    src = {X_: 44, WQ: 46, WP: 48, WO_: 50, WG: 54, WU: 56, WD: 58, OUT: 60, WS: 64}
    for d in lst:
        b = int(d[2:d.index(":")])
        st.s_mov_b32(s(b), s(src[d])); st.s_and_b32(s(b + 1), s(src[d] + 1), 0xffff)

def stamp_base(st):
    if OPT["stamps"]:
        st.s_lshl_b32(s(65), s(2), 3); st.s_add_u32(s(65), s(65), sW); st.s_lshl_b32(s(65), s(65), 9)
        st.s_add_u32(s(65), s(65), STAMP)

aK, aV, aQ, AF1, WPH, STT = 16, 32, 48, 64, 88, 96
NM, RS, VE, LR = v(112), v(113), v(114), v(115)
aCS, aA, aB, aR1, aR2 = v(116), v(117), v(118), v(119), v(120)

def kv_items():
    return [dict(chunk=k // 16, off=(k % 16) * 2048, t=t, acc=acc, b=XF + 4 * k, first=k == 0)
            for k in range(32) for t, acc in ((0, aK), (1, aV))]

CK, CV = aQ, STT
def k_addr(st):
    st.v_lshrrev_b32(vU, 5, vL); st.v_and_b32(vT, 1, vL); st.v_cmp_eq_u32("vcc", vT, vU)
    st.v_lshlrev_b32(aCS, 6, vU); st.v_add_u32(aCS, L_CS, aCS)
    st.v_lshlrev_b32(aR1, 7, vU); st.v_and_b32(vT, 12, vL); st.v_lshl_add_u32(aR1, vT, 3, aR1)
    st.v_and_b32(vT, 16, vL); st.v_add_u32(aR1, aR1, vT); st.v_and_b32(vT, 2, vL); st.v_lshl_add_u32(aR1, vT, 2, aR1)
    st.v_mov_b32(vT, 544); st.v_cndmask_b32(aR1, vT, aR1, "vcc"); st.v_add_u32(aR1, L_KVB, aR1)
    st.v_and_b32(vT, 31, vL); st.s_lshl_b32(sT0, sM, 5); st.v_add_u32(vT, sT0, vT)
    st.v_mul_u32_u24(aA, 144, vT); st.v_lshl_add_u32(aA, vU, 6, aA); st.v_add_u32(aA, L_PH, aA)
    st.v_mul_u32_u24(aB, 80, vT); st.v_lshl_add_u32(aB, vU, 5, aB); st.v_add_u32(aB, L_VB, aB)
def k_reads(st, which="wkv"):
    if "k" in which:
        for i in range(4): st.ds_read_b128(v(CK + 4 * i, 4), aCS, mods=f"offset:{16*i}")
    if "w" in which:
        for q in range(4): st.ds_read_b64_tr_b16(v(WPH + 2 * q, 2), aR1, mods=f"offset:{576*q}")
    if "v" in which:
        for i in range(4): st.ds_read_b128(v(CV + 4 * i, 4), aCS, mods=f"offset:{128+16*i}")

def fin_stats(st, S, Q, t0, t1, negmean, rstd, vare):
    if t0: st.v_mov_b32(t0, S)
    st.v_mov_b32(t1, Q)
    if t0: st.v_permlane32_swap_b32(S, t0)
    st.v_permlane32_swap_b32(Q, t1)
    if t0: st.v_add_f32(S, S, t0)
    st.v_add_f32(Q, Q, t1)
    st.v_mul_f32(negmean, f2u(-1.0 / 512), S)
    st.v_mul_f32(Q, f2u(1.0 / 512), Q)
    st.v_fma_f32(vare, "-" + negmean, negmean, Q)
    st.v_max_f32(vare, 0, vare)
    st.v_add_f32(vare, f2u(1e-5), vare)
    st.v_rsq_f32(rstd, vare)

def stats(st, stt, negmean, rstd, vare):
    S, Q = v(stt), v(stt + 1)
    for i in range(4): st.v_add_f32(v(stt + i), v(stt + i), v(stt + 4 + i))
    for i in range(4): st.v_add_f32(v(stt + 8 + i), v(stt + 8 + i), v(stt + 12 + i))
    for i in range(4): st.v_add_f32(v(stt + i), v(stt + i), v(stt + 8 + i))
    st.v_add_f32(S, S, v(stt + 2)); st.v_add_f32(Q, Q, v(stt + 3))
    fin_stats(st, S, Q, v(stt + 2), v(stt + 3), negmean, rstd, vare)

def p1a0(st):
    g0, g1, aW = v(118), v(119), v(120)
    aRd = [v(88 + i) for i in range(4)]
    QD, SA, SELA = 96, 112, 92
    st.v_lshrrev_b32(vT, 3, vL); st.v_and_b32(vV, 7, vL)
    st.v_lshlrev_b32(g0, 10, vT); st.v_lshl_add_u32(g0, vV, 4, g0)
    st.s_lshl_b32(sT0, sC, 2); st.s_add_u32(sT0, sT0, sM); st.s_lshl_b32(sT0, sT0, 15)
    GA = [v(48 + g) for g in range(4)]
    st.v_lshlrev_b32(g1, 5, vFL); st.s_lshl_b32(sT1, sJ, 11); st.s_add_u32(sT1, sT1, sT0)
    for g in range(4):
        st.v_add_u32(GA[g], sT0, g0)
        if g < 3: st.s_add_u32(sT0, sT0, 8192)
    if oi("tk0", 0):
        st.v_lshrrev_b32(vT, 5, vL); st.v_lshlrev_b32(vT, 8, vT); st.v_bfe_u32(vU, vL, 4, 1); st.v_add_u32(vT, vT, vU)
        st.v_mul_u32_u24(v(124), 3072, vT); st.v_lshl_add_u32(v(124), vFL, 5, v(124))
        st.s_and_b32(sT2, sC, 1); st.s_lshl_b32(sT2, sT2, 4); st.s_add_u32(sT2, sT2, sJ); st.s_lshl_b32(sT2, sT2, 2); st.s_add_u32(sT2, sT2, sM)
        st.s_mul_i32(sT2, sT2, 2 * 3072); st.s_add_u32(sT2, sT2, 1024)
    sR, sQO = s(41), s(83)
    rot(st, sR, sT0)
    def xl(p, st):
        st.s_add_u32(sQO, sR, p); st.s_and_b32(sQO, sQO, 7); st.s_lshl_b32(sQO, sQO, 7)
        if p == 0:
            st.wait(lgkm=0)
            srds(st, [X_])
            if OPT["stamps"]: st.s_memtime(s(0, 2))
            if oi("tx0", 1):
                i = Ins("buffer_load_dword", [v(126), g1, X_, sT1], "offen"); i.dst = set(); st.l.append(i)
            if oi("tk0", 0):
                srds(st, [WQ])
                i = Ins("buffer_load_dword", [v(125), v(124), WQ, sT2], "offen"); i.dst = set(); st.l.append(i)
        for g in range(4):
            st.buffer_load_dwordx4(v(XF + 16 * p + 4 * g, 4), GA[g], X_, sQO, mods="offen")
    n0 = oi("xn0", 2); n1 = oi("xn1", 4)
    for p in range(n0): xl(p, st)
    srds(st, [WS, OUT])
    stamp_base(st)
    stamp(st, 62, True)
    stamp(st, "start")
    stamp(st, "karg"); stamp(st, "xissued")
    st.buffer_load_dword(vNON, "off", WS, 0, mods=f"offset:{EPOCH} sc1")
    st.s_and_b32(sKH, sM, 1); st.s_lshr_b32(sTP, sM, 1); st.s_mov_b32(sRING, 0)
    st.v_and_b32(aA, 31, vL); st.v_lshlrev_b32(aA, 10, aA); st.v_lshrrev_b32(vT, 5, vL); st.v_lshl_add_u32(aA, vT, 4, aA)
    st.s_lshl_b32(sOUTO, sC, 17); st.s_lshl_b32(sT1, sHF, 16); st.s_add_u32(sOUTO, sOUTO, sT1)
    st.s_lshl_b32(sT1, sTP, 15); st.s_add_u32(sOUTO, sOUTO, sT1); st.s_lshl_b32(sT1, sCG, 7); st.s_add_u32(sOUTO, sOUTO, sT1)
    st.s_lshl_b32(sT1, sKH, 6); st.s_add_u32(sOUTO, sOUTO, sT1)
    st.s_mov_b32(sL2E, f2u(LOG2E)); st.s_mov_b32(sONE, 0x3f803f80)
    st.s_lshl_b32(sT0, sC, 2); st.s_add_u32(sT1, sT0, sM)
    st.s_lshl_b32(sXLD, sT1, 15); st.s_add_u32(sXLD, sXLD, XB)
    st.s_lshl_b32(sSTLD, sT1, 12); st.s_add_u32(sSTLD, sSTLD, ST)
    st.s_lshl_b32(sFA, sT1, 10); st.s_add_u32(sFA, sFA, FL)
    st.s_lshl_b32(sT2, sJ, 2); st.s_add_u32(sFJ, sFA, sT2)
    st.s_mul_i32(sHST, sT1, HB_TB); st.s_add_u32(sHST, sHST, HB)
    st.s_lshl_b32(sT2, sJ, 11); st.s_add_u32(sOST, sHST, sT2)
    st.s_mov_b32(s(60), 0); st.s_mov_b32(s(61), -1)
    st.s_lshl_b32(sT2, sJ, 10); st.s_add_u32(sHST, sHST, sT2)
    st.s_lshl_b32(sDUM, sT1, 11); st.s_add_u32(sDUM, sDUM, DUMMY)
    st.s_lshl_b32(sT1, sHF, 1); st.s_add_u32(sT1, sT1, sT0); st.s_add_u32(sT1, sT1, sTP)
    st.s_lshl_b32(sT3, sCG, 1); st.s_add_u32(sT3, sT3, sKH)
    st.s_lshl_b32(sXST, sT1, 15); st.s_lshl_b32(sT2, sT3, 11); st.s_add_u32(sXST, sXST, sT2); st.s_add_u32(sXST, sXST, XB)
    st.s_lshl_b32(sSTST, sT1, 12); st.s_lshl_b32(sT2, sCG, 9); st.s_add_u32(sSTST, sSTST, sT2)
    st.s_lshl_b32(sT2, sKH, 3); st.s_add_u32(sSTST, sSTST, sT2); st.s_add_u32(sSTST, sSTST, ST)
    st.s_lshl_b32(sFB, sT1, 10); st.s_add_u32(sFB, sFB, FL)
    st.s_lshl_b32(sT2, sT3, 2); st.s_add_u32(sFXST, sFB, sT2)
    st.s_lshl_b32(sT2, sKH, 10)
    st.s_mul_i32(sHLD, sT1, HB_TB); st.s_add_u32(sHLD, sHLD, sT2); st.s_add_u32(sHLD, sHLD, HB)
    st.s_mul_i32(sKVLD, sJ, KV_J); st.s_add_u32(sKVLD, sKVLD, KVP)
    st.s_mul_i32(sKVST, sC, KV_REC); st.s_add_u32(sKVST, sKVST, sKVLD)
    st.s_lshl_b32(sT1, sKH, 7); st.s_lshl_b32(sT2, sTP, 5); st.s_add_u32(sT1, sT1, sT2); st.s_add_u32(sKZ, sKVST, sT1); st.s_add_u32(sKZ, sKZ, 2048)
    st.s_lshl_b32(sT1, sKH, 10); st.s_lshl_b32(sT2, sTP, 6); st.s_add_u32(sT1, sT1, sT2); st.s_add_u32(sKVST, sKVST, sT1)
    st.s_lshl_b32(sT1, sM, 6); st.s_add_u32(sGZ, sKVLD, sT1); st.s_add_u32(sGZ, sGZ, 2048)
    st.s_lshl_b32(sT1, sM, 9); st.s_add_u32(sKVLD, sKVLD, sT1)
    st.s_lshl_b32(sFKVLD, sJ, 11); st.s_add_u32(sFKVLD, sFKVLD, FKV)
    st.s_lshl_b32(sT1, sC, 7); st.s_lshl_b32(sT2, sM, 2); st.s_add_u32(sFKVST, sT1, sT2); st.s_add_u32(sFKVST, sFKVST, sFKVLD)
    for i in range(4): st.v_mov_b32(v(96 + i), 0)
    st.v_and_b32(vT, 3, vL); st.v_mul_u32_u24(vT, 576, vT); st.v_add_u32(vT, L_KVB + 544, vT)
    st.ds_write_b128(vT, v(96, 4))
    st.v_and_b32(vT, 112, vL16); st.v_add_u32(vT, L_SIG, vT)
    st.ds_write_b128(vT, v(96, 4))
    st.v_bfe_u32(vT, vL, 4, 1); st.v_and_b32(vU, 1, vL); st.v_cmp_eq_u32("vcc", vT, vU)
    st.v_mov_b32(vV, sONE)
    for i in range(4): st.v_cndmask_b32(v(SELA + i), 0, vV, "vcc")
    st.s_lshl_b32(sT0, sM, 12); st.s_add_u32(sT0, sT0, L_PH)
    st.v_and_b32(vT, 48, vL); st.v_xor_b32(vT, vT, vL16); st.v_add_u32(aW, sT0, vT); st.v_xor_b32(g1, 64, aW)
    st.v_and_b32(vT, 31, vL); st.v_lshrrev_b32(vU, 5, vL); st.v_bfe_u32(vV, vL, 1, 3); st.v_xor_b32(vU, vU, vV)
    st.v_lshlrev_b32(vT, 7, vT); st.v_lshl_add_u32(vT, vU, 4, vT); st.v_add_u32(aRd[0], sT0, vT)
    for i in range(1, 4): st.v_xor_b32(aRd[i], 32 * i, aRd[0])
    lane_tr(st, vP0, None, "qkv"); ring_addr(st, "trq")
    def rnd(q, st):
        R = XF + 16 * q
        for g in range(4): st.ds_write_b128(g1 if g & 1 else aW, v(R + 4 * g, 4), mods=f"offset:{1024*g}")
        for i in range(4): st.ds_read_b128(v(R + 4 * i, 4), aRd[i])
    def smf(k, st):
        f = v(XF + 4 * k, 4)
        st.v_mfma_f32_32x32x16_bf16(v(QD, 16), f, f, "0" if k == 0 else v(QD, 16))
        st.v_mfma_f32_16x16x32_bf16(v(SA, 4), v(SELA, 4), f, "0" if k == 0 else v(SA, 4))
    def res(st):
        st.buffer_load_dwordx4(v(RES, 4), aA, X_, sOUTO, mods="offen")
        st.buffer_load_dwordx4(v(RES + 4, 4), aA, X_, sOUTO, mods="offen offset:32")
    hooks = {}
    hq = oi("hq", 8)
    for p in range(n0, n1): xl(p, st)
    nl = n1
    rnd(0, st)
    for q in range(hq):
        if nl < 8: xl(nl, st); nl += 1
        if q < 7: rnd(q + 1, st)
        for k in range(4 * q, 4 * q + 4): smf(k, st)
    while nl < 8: xl(nl, st); nl += 1
    acts = {}
    at = oi("rnd0", 2); gap = oi("rndgap", 8)
    for n, q in enumerate(range(hq, 8)):
        i0 = at + gap * n
        if q < 7: acts.setdefault(i0, []).append(lambda st, q=q: rnd(q + 1, st))
        for u in range(4): acts.setdefault(i0 + 1 + 2 * u, []).append(lambda st, k=4 * q + u: smf(k, st))
        assert i0 < 8 * (q + 1) - 2
    acts.setdefault(oi("res0", 40), []).append(res)
    for i, l in acts.items(): hooks[i] = lambda st, l=l: [f(st) for f in l]
    stamp(st, "p1pre")
    barrier(st, "a0", drain=True)
    stamp(st, "B(a0)")
    bars = {oi("a1", 20): ("a1", [1])}
    f = Stream()
    M = [s(50 + 2 * i, 2) for i in range(5)]
    for i, bit in enumerate((16, 8, 2, 1)):
        f.v_and_b32(vT, bit, vL); f.v_cmp_ne_u32(M[i], 0, vT)
    f.v_bfe_u32(vT, vL, 2, 1); f.v_lshrrev_b32(vU, 5, vL); f.v_cmp_eq_u32(M[4], vT, vU)
    f.v_cndmask_b32(v(SA), v(SA), v(SA + 1), M[0])
    for i in range(8): f.v_cndmask_b32(v(QD + i), v(QD + i), v(QD + 8 + i), M[0])
    for i in range(4): f.v_cndmask_b32(v(QD + i), v(QD + i), v(QD + 4 + i), M[1])
    for i in range(2): f.v_cndmask_b32(v(QD + i), v(QD + i), v(QD + 2 + i), M[2])
    f.v_cndmask_b32(v(QD), v(QD), v(QD + 1), M[3])
    f.v_cndmask_b32(v(QD), 0, v(QD), M[4])
    fin_stats(f, v(SA), v(QD), None, v(QD + 1), NM, RS, VE)
    f.v_mul_f32(LR, sL2E, RS)
    g = Stream(); k_addr(g)
    lane_tr(g, vP1, None, "nat")
    g.s_lshl_b32(sT2, sKH, 6); g.v_xor_b32(vP1, sT2, vP1); g.s_lshl_b32(sT2, sKH, 11); g.v_add_u32(vP1, sT2, vP1)
    fill = Filler()
    assert hq == 8
    r0 = oi("res0", 24)
    hooks = {2: lambda st: fill.add(f), r0: res, r0 + 1: lambda st: fill.add(g)}
    gemm(st, kv_items(), "trq", AF1, 6, 5, ready=[0], bars=bars, hooks=hooks, fill=fill, budget=oi("bud1", 8))
    fill.flush(st)
    st.v_add_u32(vNON, 1, vNON)
    st.v_mov_b32(v(125), 1); sigwait(st, 12, 32, cmp="gt")
    k_reads(st)
    st.v_readfirstlane_b32(sNONCE, vNON)
    signal(st, 2, 32)
    st.s_add_u32(sH5, sHST, 16384 * 5); st.s_add_u32(sF5, sDUM, 1024)
    st.s_cmp_eq_u32(sT6, 1); st.s_cselect_b32(sH5, sH5, sDUM); st.s_cselect_b32(sF5, sFJ, sF5)
    stamp(st, "KVgemm")

def frag_loads(base, regs, stride, per):
    out = []
    for k, r in enumerate(regs):
        def f(st, k=k, r=r):
            if k % per == 0: st.s_add_u32(sLD, base, k * stride)
            st.buffer_load_dwordx4(v(r, 4), vL16, WS, sLD, mods=f"offen offset:{(k % per) * stride} {SCL}")
        out.append(f)
    return out

def x_addr(st):
    st.v_lshrrev_b32(vV, 5, vL); st.v_lshlrev_b32(vV, 11, vV); st.v_and_b32(vU, 31, vL); st.v_lshl_add_u32(vV, vU, 4, vV)
def p1a_pre(st):
    ring_next(st, "trq"); x_addr(st)
def p3_pre(st):
    st.v_and_b32(vU, 31, vL); st.v_lshlrev_b32(aCS3, 2, vU); st.v_add_u32(aCS3, L_CS + 3 * 128, aCS3)
    ring_next(st, "b128"); x_addr(st)
    st.s_add_u32(sT0, sRING, 0x10000); st.s_and_b32(sT0, sT0, 0x1ffff); st.v_add_u32(vA1, sT0, vL16)
    st.s_lshl_b32(sT0, sM, 12); st.s_add_u32(sT0, sT0, L_PH); st.v_add_u32(aXW, sT0, vL16)
def x_loads(st, stt, at=32):
    L = frag_loads(sXLD, [XF + 4 * k for k in range(32)], 1024, 4)
    def stl(st):
        for i in range(4):
            st.buffer_load_dwordx4(v(stt + 4 * i, 4), vV, WS, sSTLD, mods=f"offen offset:{512*i} {SCL}")
    return L[:at] + [stl] + L[at:]

def featmap(st, acc, kb, wp, e1, e2, lr, mid=None):
    for i in range(8): st.v_cvt_pk_bf16_f32(v(kb + i), v(acc + 2 * i), v(acc + 2 * i + 1))
    st.v_mfma_f32_32x32x16_bf16(v(acc, 16), v(wp, 4), v(kb, 4), "0")
    st.v_mfma_f32_32x32x16_bf16(v(acc, 16), v(wp + 4, 4), v(kb + 4, 4), v(acc, 16))
    if mid: mid(st)
    mx, mn = v(kb), v(kb + 1)
    p = lambda i: v(acc + i)
    st.v_max3_f32(mx, p(0), p(1), p(2)); st.v_min3_f32(mn, p(0), p(1), p(2))
    for i in range(3, 15, 2):
        st.v_max3_f32(mx, mx, p(i), p(i + 1)); st.v_min3_f32(mn, mn, p(i), p(i + 1))
    st.v_max_f32(mx, mx, p(15)); st.v_min_f32(mn, mn, p(15))
    pk(st, "mul", kb, bc(lr), kb)
    for i in range(0, 16, 2):
        pk(st, "fma", e1 + i, acc + i, bc(lr), bc(kb, True)); pk(st, "fma", e2 + i, ng(acc + i), bc(lr), bc(kb + 1))
    for i in range(16):
        st.v_exp_f32(v(e1 + i), v(e1 + i)); st.v_exp_f32(v(e2 + i), v(e2 + i))
    s1, s2 = kb + 2, kb + 4
    pk(st, "add", s1, e1, e1 + 2); pk(st, "add", s2, e2, e2 + 2)
    for i in range(4, 16, 2):
        pk(st, "add", s1, s1, e1 + i); pk(st, "add", s2, s2, e2 + i)
    st.v_add_f32(v(s1), v(s1), v(s1 + 1)); st.v_add_f32(v(s2), v(s2), v(s2 + 1))
    st.v_rcp_f32(v(s1), v(s1)); st.v_rcp_f32(v(s2), v(s2))
    for i in range(0, 16, 2):
        pk(st, "mul", e1 + i, bc(s1), e1 + i); pk(st, "mul", e2 + i, bc(s2), e2 + i)
    for i in range(8):
        st.v_cvt_pk_bf16_f32(v(e1 + i), v(e1 + 2 * i), v(e1 + 2 * i + 1))
        st.v_cvt_pk_bf16_f32(v(e2 + i), v(e2 + 2 * i), v(e2 + 2 * i + 1))

def p1a(st):
    at = oi("st1", 22)
    L = x_loads(st, STT, at)
    stamp(st, "p1pre")
    poll(st, vFL, sFA)
    stamp(st, "FXpoll")
    pre = oi("pre1", 10)
    for f in L[:pre]: f(st)
    nxt(st)
    barrier(st, "a0")
    stamp(st, "B(a0)")
    fill = Filler()
    f = Stream(); stats(f, STT, NM, RS, VE); f.v_mul_f32(LR, sL2E, RS); k_reads(f, "v")
    g = Stream(); k_addr(g); k_reads(g, "wk")
    hooks = {2: lambda st: fill.add(g), oi("sth1", 2 * at + 2): lambda st: fill.add(f)}
    gemm(st, kv_items(), "trq", AF1, 6, 5, ready=[0], bars={oi("a1", 20): ("a1", [1]), oi("a2", 56): ("a2", [])}, loads=L[pre:], pre=0,
         hooks=hooks, fill=fill, budget=oi("bud1", 8))
    fill.flush(st)
    stamp(st, "KVgemm")

def p1b(st):
    AF = AF1
    for i in range(0, 16, 2): pk(st, "fma", aK + i, CK + i, bc(NM), aK + i)
    def vpart(st):
        for i in range(0, 16, 2): pk(st, "fma", aV + i, CV + i, bc(NM), aV + i)
        for i in range(0, 16, 2): pk(st, "mul", aV + i, bc(RS), aV + i)
        for i in range(8): st.v_cvt_pk_bf16_f32(v(aV + i), v(aV + 2 * i), v(aV + 2 * i + 1))
        st.ds_write_b128(aB, v(aV, 4)); st.ds_write_b128(aB, v(aV + 4, 4), mods="offset:16")
    featmap(st, aK, AF, WPH, STT, aQ, LR, mid=vpart)
    st.ds_write_b128(aA, v(STT, 4)); st.ds_write_b128(aA, v(STT + 4, 4), mods="offset:16")
    st.ds_write_b128(aA, v(aQ, 4), mods="offset:32"); st.ds_write_b128(aA, v(aQ + 4, 4), mods="offset:48")
    signal(st)
    TA, TB, ONE, AKV, AZ = 16, 32, 96, 100, 104
    def shadow(st):
        st.v_lshrrev_b32(vT, 4, vL); st.v_lshlrev_b32(vT, 3, vT); st.v_bfe_u32(vU, vL, 2, 2); st.v_add_u32(vT, vT, vU)
        st.v_and_b32(vU, 3, vL); st.v_lshlrev_b32(vU, 3, vU)
        st.s_lshl_b32(sT0, sM, 5); st.s_add_u32(sT0, sT0, L_PH)
        st.v_mul_u32_u24(aR1, 144, vT); st.v_add3_u32(aR1, aR1, vU, sT0)
        st.s_lshl_b32(sT0, sTP, 5); st.s_add_u32(sT0, sT0, L_VB)
        st.v_mul_u32_u24(aR2, 80, vT); st.v_add3_u32(aR2, aR2, vU, sT0)
        ring_next(st, "trq")
    sigwait(st, extra=shadow)
    stamp(st, "Kepi+B")
    for k in range(4):
        for q in range(2):
            st.ds_read_b64_tr_b16(v(TA + 4 * k + 2 * q, 2), aR1, mods=f"offset:{(32*k+4*q)*144}")
            st.ds_read_b64_tr_b16(v(TB + 4 * k + 2 * q, 2), aR2, mods=f"offset:{(32*k+4*q)*80}")
    for i in range(4): st.v_mov_b32(v(ONE + i), sONE)
    st.v_lshrrev_b32(vT, 5, vL); st.v_lshlrev_b32(vV, 9, vT); st.v_bfe_u32(vU, vL, 4, 1); st.v_lshl_add_u32(vV, vU, 3, vV)
    st.v_lshlrev_b32(vT, 6, vT); st.v_lshl_add_u32(vT, vU, 4, vT)
    st.v_bfe_u32(vU, vL, 2, 2); st.v_lshl_add_u32(vV, vU, 7, vV); st.v_and_b32(vU, 3, vL); st.v_lshl_add_u32(vV, vU, 4, vV)
    for k in range(4):
        st.v_mfma_f32_16x16x32_bf16(v(AKV, 4), v(TA + 4 * k, 4), v(TB + 4 * k, 4), "0" if k == 0 else v(AKV, 4))
        st.v_mfma_f32_16x16x32_bf16(v(AZ, 4), v(TA + 4 * k, 4), v(ONE, 4), "0" if k == 0 else v(AZ, 4))
    st.v_cvt_pk_bf16_f32(v(AKV), v(AKV), v(AKV + 1)); st.v_cvt_pk_bf16_f32(v(AKV + 1), v(AKV + 2), v(AKV + 3))
    st.buffer_store_dwordx2(v(AKV, 2), vV, WS, sKVST, mods="offen sc1")
    st.buffer_store_dwordx4(v(AZ, 4), vT, WS, sKZ, mods="offen sc1", tset="kv")
    stamp(st, "kv st")
    items = []
    for k in range(16):
        for t in range(2):
            items.append(dict(chunk=0, off=k * 2048, t=t, acc=aQ, b=XF + 4 * (k + 16 * t), first=(k, t) == (0, 0)))
    def kvflag(st): st.buffer_store_dword(vNON, "off", WS, sFKVST, mods="sc1", tneed="kv")
    CS = 16
    aPL, aGZ, aGK = aR1, aR2, aB
    f = Stream()
    for i in range(4): f.ds_read_b128(v(CS + 4 * i, 4), aCS, mods=f"offset:{256+16*i}")
    f.v_lshrrev_b32(aPL, 2, vL); f.v_lshlrev_b32(aPL, 7, aPL); f.v_and_b32(vU, 3, vL); f.v_lshl_add_u32(aPL, vU, 2, aPL)
    f.v_lshrrev_b32(aGZ, 4, vL); f.v_mul_u32_u24(aGZ, KV_REC, aGZ); f.v_add_u32(aGZ, aGZ, vFL)
    f.v_lshrrev_b32(aGK, 5, vL); f.v_mul_u32_u24(aGK, KV_REC - 512, aGK); f.v_add_u32(aGK, aGK, vL16)
    fill = Filler()
    gemm(st, items, "trq", AF, 6, 5, ready=[0], hooks={4: lambda st: fill.add(f), oi("kvflag", 24): kvflag}, fill=fill, budget=8)
    fill.flush(st)
    stamp(st, "Qgemm")
    for i in range(0, 16, 2): pk(st, "fma", aQ + i, CS + i, bc(NM), aQ + i)
    featmap(st, aQ, AF, WPH, aK, aV, LR)
    stamp(st, "Q done")
    poll(st, aPL, sFKVLD)
    stamp(st, "FKVpoll")
    Gr, Z, SG, GA = XF, XF + 64, XF + 32, XF + 48
    XT = v(XF + 72)
    nt = " nt" if OPT.get("kvnt") else ""
    for cc in range(8):
        if cc: st.s_add_u32(sT0, sKVLD, 2 * cc * KV_REC)
        st.buffer_load_dwordx4(v(Gr + 4 * cc, 4), aGK, WS, sT0 if cc else sKVLD, mods="offen sc1" + nt)
    for i in range(4):
        if i: st.s_add_u32(sT1, sGZ, 4 * i * KV_REC)
        st.buffer_load_dword(v(Z + i), aGZ, WS, sT1 if i else sGZ, mods="offen sc1" + nt)
    if G.TAG == "f":
        st.s_lshl_b32(sT2, sC, 7); st.s_add_u32(sT2, sT2, XCCT)
        st.buffer_load_dword(XT, vFL, WS, sT2, mods="offen sc1")
    nxt(st)
    st.s_mul_i32(sT0, sM, 576); st.s_add_u32(sT0, sT0, L_KVB)
    st.v_and_b32(vT, 31, vL)
    st.v_and_b32(vU, 1, vL); st.v_lshlrev_b32(vU, 4, vU); st.v_mov_b32(vV, 0x3f80); st.v_lshlrev_b32(vU, vU, vV); st.v_lshrrev_b32(vV, 1, vT)
    for i in range(4):
        st.v_cmp_eq_u32("vcc", i, vV); st.v_cndmask_b32(v(SG + i), 0, vU, "vcc")
    st.v_lshlrev_b32(vT, 4, vT)
    st.v_lshrrev_b32(vU, 5, vL)
    st.v_lshl_add_u32(aA, vU, 3, vT); st.v_add_u32(aA, sT0, aA)
    st.v_lshrrev_b32(aB, 1, vFL); st.v_add_u32(aB, sT0, aB)
    st.v_bfe_u32(vV, vL, 2, 1); st.v_cmp_eq_u32("vcc", vV, vU)
    st.v_mov_b32(vV, 544); st.v_cndmask_b32(vT, vV, vT, "vcc"); st.v_add_u32(aR1, L_KVB, vT)
    st.v_lshlrev_b32(vU, 4, vU); st.v_add_u32(aR2, L_KVB + 512, vU)
    for cc in range(8):
        st.v_mfma_f32_32x32x16_bf16(v(GA, 16), v(SG, 4), v(Gr + 4 * cc, 4), "0" if cc == 0 else v(GA, 16))
    st.v_add_f32(v(Z), v(Z), v(Z + 1)); st.v_add_f32(v(Z + 2), v(Z + 2), v(Z + 3)); st.v_add_f32(v(Z), v(Z), v(Z + 2))
    st.v_mov_b32(v(Z + 1), v(Z)); st.v_permlane32_swap_b32(v(Z), v(Z + 1)); st.v_add_f32(v(Z), v(Z), v(Z + 1))
    st.v_mov_b32(v(Z + 1), v(Z)); st.v_permlane16_swap_b32(v(Z), v(Z + 1)); st.v_add_f32(v(Z), v(Z), v(Z + 1))
    st.v_cvt_pk_bf16_f32(v(Z), v(Z), v(Z))
    st.ds_write_b16(aB, v(Z), mods="offset:512")
    st.v_cvt_pk_bf16_f32(v(GA), v(GA), v(GA + 1)); st.v_cvt_pk_bf16_f32(v(GA + 1), v(GA + 2), v(GA + 3))
    st.ds_write_b64(aA, v(GA, 2))
    if G.TAG == "f":
        OK = newlab("xok"); L = newlab("xpoll"); D = newlab("xdec")
        st.s_cmp_lg_u32(sPAIR, 0)
        st.mark("save", OK)
        st.s_cbranch_scc1(OK)
        st.s_add_u32(sT0, sNONCE, 14); st.s_add_u32(sT1, sT0, sXC)
        st.v_cmp_ne_u32("vcc", sT1, XT)
        if not OPT.get("slow"): st.s_cbranch_vccz(OK)
        st.label(L)
        st.buffer_load_dword(XT, vFL, WS, sT2, mods="offen sc1")
        st.wait(vm=0)
        st.v_subrev_u32(vT, sT0, XT)
        st.v_cmp_le_u32("vcc", 16, vT)
        st.s_cbranch_vccz(D)
        st.s_sub_u32(sCNT, sCNT, 1)
        st.s_cbranch_scc0(L)
        st.s_mov_b32(sCNT, 0)
        st.label(D)
        st.v_cmp_ne_u32("vcc", sT1, XT)
        st.mark("save", "toslow")
        if OPT.get("slow"): st.s_branch(".Lg_s")
        else: st.s_cbranch_vccnz(".Lg_s")
        st.mark("merge", OK)
        st.label(OK)
    else:
        st.mark("merge", "toslow")
        st.label(".Lg_s")
    barrier(st, "g", drain=True)
    stamp(st, "gather+B")

def p1c(st):
    PHQ = [aK, aK + 4, aV, aV + 4]
    KA, ZA, NUM, DEN = XF, XF + 16, 48, v(64)
    for u in range(4): st.ds_read_b128(v(KA + 4 * u, 4), aR1, mods=f"offset:{576*u}")
    for u in range(4): st.ds_read_b128(v(ZA + 4 * u, 4), aR2, mods=f"offset:{576*u}")
    st.v_mov_b32(DEN, f2u(1e-6)); st.v_mov_b32(v(65), 0)
    st.v_lshrrev_b32(vU, 5, vL); st.v_lshl_add_u32(aA, vU, 9, vL16)
    for u in range(4):
        st.v_mfma_f32_32x32x16_bf16(v(NUM, 16), v(KA + 4 * u, 4), v(PHQ[u], 4), "0" if u == 0 else v(NUM, 16))
        for i in range(4):
            dd = DEN if i % 2 == 0 else v(65)
            st.v_dot2_f32_bf16(dd, v(PHQ[u] + i), v(ZA + 4 * u + i), dd)
    st.v_add_f32(DEN, DEN, v(65))
    st.v_rcp_f32(DEN, DEN)
    for i in range(0, 16, 2): pk(st, "mul", NUM + i, bc(DEN), NUM + i)
    for i in range(8): st.v_cvt_pk_bf16_f32(v(NUM + i), v(NUM + 2 * i), v(NUM + 2 * i + 1))
    st.buffer_store_dwordx4(v(NUM, 4), aA, WS, sOST, mods=f"offen {G.SC}")
    st.buffer_store_dwordx4(v(NUM + 4, 4), aA, WS, sOST, mods=f"offen offset:512 {G.SC}", tset="o")
    ring_next(st, "trn")
    res_init(st, 16)
    st.s_lshl_b32(sT0, sM, 12); st.s_add_u32(sT0, sT0, L_PH); st.v_add_u32(aXW, sT0, vL16)
    st.buffer_store_dword(vNON, "off", WS, sFJ, mods=f"offset:128 {G.SC}", tneed="o")
    for r in (sKVST, sKVLD, sKZ, sGZ): st.s_add_u32(r, r, KV_P)
    st.s_add_u32(sFKVST, sFKVST, 256 * 128); st.s_add_u32(sFKVLD, sFKVLD, 256 * 128)

def small_items(nsteps, breg, accs=(16, 32)):
    items = []
    for k in range(nsteps):
        for t in ((1, 0) if k == nsteps - 1 else (0, 1)):
            items.append(dict(chunk=k // 8, off=(k % 8) * 4096, t=t, acc=accs[t], b=breg(k), first=k == 0 and t == 1))
    return items
def res_init(st, a):
    for i in range(8):
        st.v_lshlrev_b32(v(a + 2 * i), 16, v(RES + i)); st.v_and_b32(v(a + 2 * i + 1), 0xffff0000, v(RES + i))

def xepi(st, last):
    aB_, T, P = (96, 48, 16) if last else (32, 16, 48)
    aX = aXW
    for i in range(4): st.ds_write_b128(aX, v(aB_ + 4 * i, 4), mods=f"offset:{1024*i}")
    st.v_xor_b32(aX, 4096, aX)
    barrier(st, "X4" if last else "X2", drain=True)
    for i in range(4): st.ds_read_b128(v(P + 4 * i, 4), aX, mods=f"offset:{1024*i}")
    st.v_and_b32(aX, 31, vL); st.v_lshlrev_b32(aX, 4, aX); st.v_lshrrev_b32(vT, 5, vL); st.v_lshl_add_u32(aX, vT, 2, aX)
    for i in range(4):
        for k in (4 * i, 4 * i + 2): pk(st, "add", T + k, T + k, P + k)
        for k in (2 * i, 2 * i + 1): st.v_cvt_pk_bf16_f32(v(RES + k), v(T + 2 * k), v(T + 2 * k + 1))
    LF = newlab("fin")
    if last:
        st.mark("save", LF)
        st.s_cmp_eq_u32(sPAIR, 1); st.s_cbranch_scc1(LF)
    st.buffer_store_dwordx4(v(RES, 4), vL16, WS, sXST, mods=f"offen {G.SC}")
    st.buffer_store_dwordx4(v(RES + 4, 4), vL16, WS, sXST, mods=f"offen offset:1024 {G.SC}")
    S, Q, S2, Q2 = v(T), v(T + 1), v(T + 2), v(T + 3)
    st.v_dot2_f32_bf16(S, v(RES), sONE, 0); st.v_dot2_f32_bf16(Q, v(RES), v(RES), 0)
    st.v_dot2_f32_bf16(S2, v(RES + 1), sONE, 0); st.v_dot2_f32_bf16(Q2, v(RES + 1), v(RES + 1), 0)
    for i in range(2, 8, 2):
        st.v_dot2_f32_bf16(S, v(RES + i), sONE, S); st.v_dot2_f32_bf16(Q, v(RES + i), v(RES + i), Q)
        st.v_dot2_f32_bf16(S2, v(RES + i + 1), sONE, S2); st.v_dot2_f32_bf16(Q2, v(RES + i + 1), v(RES + i + 1), Q2)
    pk(st, "add", T, T, T + 2)
    st.v_permlane32_swap_b32(S, Q); st.v_add_f32(S, S, Q)
    st.buffer_store_dword(S, aX, WS, sSTST, mods=f"offen {G.SC}", tset="x")
    (p1a_pre if last else p3_pre)(st)
    st.buffer_store_dword(vNON, "off", WS, sFXST, mods=G.SC, tneed="x")
    if last:
        st.s_mov_b32(sPAIR, 1)
        st.s_branch(f".Lpair_{G.TAG}")
        st.label(LF); st.mark("restore", LF)
        st.v_and_b32(aX, 31, vL); st.v_lshlrev_b32(aX, 10, aX); st.v_lshrrev_b32(vT, 5, vL); st.v_lshl_add_u32(aX, vT, 4, aX)
        st.buffer_store_dwordx4(v(RES, 4), aX, OUT, sOUTO, mods="offen")
        st.buffer_store_dwordx4(v(RES + 4, 4), aX, OUT, sOUTO, mods="offen offset:32")

def p2(st):
    stamp(st, "o stored")
    poll(st, vFL, sFB, 128)
    stamp(st, "FOpoll")
    L = frag_loads(sHLD, [XF + 4 * k for k in range(16)], 2048, 2)
    gemm(st, small_items(16, lambda k: XF + 4 * k), "trn", 48, 6, 5, ready=[0, 1], loads=L, pre=oi("pre2", 10), hooks={1: nxt})
    stamp(st, "P2gemm")
    xepi(st, False)

def stream(st, items, af, nslots, depth, hooks, fill, budget, watch=None):
    n = len(items); nr = 0
    def pump(upto):
        nonlocal nr
        while nr < n and nr <= upto:
            items[nr]["rd"](st, af + 4 * (nr % nslots)); nr += 1
    pump(depth - 1)
    for i in range(n):
        it = items[i]
        acc = v(it["acc"], 16)
        st.v_mfma_f32_32x32x16_bf16(acc, v(af + 4 * (i % nslots), 4), v(it["b"], 4), "0" if it["first"] else acc)
        n0 = len(st.l)
        for h in hooks.get(i, []): h(st)
        pump(i + depth)
        fill.take(st, budget(i))
        if watch: watch(i, st.l[n0:])
    assert not fill.q

C1 = -2.0 * math.sqrt(2.0 / math.pi) * LOG2E
def p34(st):
    A = [16, 32, 48, 96]; AF = 64; NMP = 88; DEPTH = 5
    K1, K3, VE3, NM3 = v(92), v(93), v(94), v(95)
    at = oi("st3", 20)
    L = x_loads(st, STT, at)
    stamp(st, "x stored")
    poll(st, vFL, sFA)
    stamp(st, "FXpoll2")
    pre = oi("pre3", 10)
    for f in L[:pre]: f(st)
    nxt(st)
    barrier(st, "30")
    stamp(st, "B(30)")
    items = []; hooks = {}
    def hk(i, f): hooks.setdefault(i, []).append(f)
    def wide(a, off, step=0):
        def rd(st, r):
            if step:
                st.s_add_u32(sRING, sRING, 0x8000 * step); st.s_and_b32(sRING, sRING, 0x1ffff); st.v_add_u32(vA0, sRING, vL16)
            st.ds_read_b128(v(r, 4), a, mods=f"offset:{off}")
        return rd
    def mean(r):
        return dict(rd=lambda st, q: st.ds_read_b32(v(q), aCS3, mods=f"offset:{128*r}"), acc=A[r % 4], b=NMP, first=False)
    n2 = oi("n2", 10); k2 = 0; end = {}; use = {}
    def t2(k): return dict(rd=wide(vA1, k * 1024), acc=A[2], b=XF + 4 * k, first=k == 0)
    for k in range(32):
        use[k] = len(items)
        for t in range(2):
            items.append(dict(rd=wide(vA0, t * 16384 + (k % 16) * 1024, int(k == 16 and t == 0)), acc=A[t], b=XF + 4 * k, first=k == 0))
        if k == 15: g5 = len(items) - 1
        if (k + 1) * n2 // 32 > k2: items.append(t2(k2)); k2 += 1
    items += [mean(0), mean(1)]; end[0] = len(items) - 2; end[1] = len(items) - 1
    items += [t2(k) for k in range(k2, 32)] + [mean(2)]; end[2] = len(items) - 1
    for r in range(3, 6):
        items += [dict(rd=wide(vA0, k * 1024, (2 if r == 3 else 1) if k == 0 else 0), acc=A[r % 4], b=XF + 4 * k, first=k == 0) for k in range(32)]
        items.append(mean(r)); end[r] = len(items) - 1
    T5 = end[4] + 1; P4 = len(items)
    HI = [16 + 4 * i for i in range(4)] + [116, 88] + [XF + 4 * i for i in range(2)] + [32 + 4 * i for i in range(3)]
    breg = lambda k: XF + 4 * k if k < 32 else HI[k - 32]
    for n, it in enumerate(small_items(43, breg, (48, 96))):
        def rd(st, r, it=it, n=n):
            if n % 16 == 0: ring_next(st, "trn")
            a = vA1 if it["t"] else vA0
            st.ds_read_b64_tr_b16(v(r, 2), a, mods=f"offset:{it['off']}")
            st.ds_read_b64_tr_b16(v(r + 2, 2), a, mods=f"offset:{it['off']+512}")
        items.append(dict(rd=rd, acc=it["acc"], b=it["b"], first=it["first"]))
    for n, f in enumerate(L[pre:]): hk(2 * n + 1, f)
    fill = Filler()
    f = Stream()
    stats(f, STT, NM3, K1, VE3)
    f.v_and_b32(vU, 0xffff0000, NM3); f.v_sub_f32(NM3, NM3, vU); f.v_cndmask_b32(vU, vU, NM3, sHALF)
    f.v_cvt_pk_bf16_f32(v(NMP), vU, vU)
    f.v_mul_f32(K3, K1, K1); f.v_mul_f32(K1, f2u(C1), K1); f.v_mul_f32(K3, f2u(0.044715), K3); f.v_mul_f32(K3, K3, K1)
    z = Stream()
    for i in range(1, 4): z.v_mov_b32(v(NMP + i), 0)
    z.v_min_u32(aP4, 20, vFL)
    hk(2, lambda st: fill.add(z))
    hk(use[min(31, at + oi("sth3", 2))], lambda st: fill.add(f))
    hk(end[0] - 2, lambda st: fill.flush(st))
    TM = 112
    def epi(r):
        f = Stream(); a = A[r % 4]
        g = lambda i: v(a + i)
        u = lambda i: v(a + 8 + i)
        tm = lambda i: v(TM + i % 4)
        for t in range(16):
            ok = lambda d: 0 <= t - d < 8
            if ok(3): f.v_exp_f32(g(t - 3), g(t - 3))
            if ok(0): f.v_mul_f32(tm(t), g(t), g(t))
            if ok(1): f.v_fma_f32(tm(t - 1), tm(t - 1), K3, K1)
            if ok(0): f.v_mul_f32(u(t), g(t), u(t))
            if ok(5): f.v_rcp_f32(g(t - 5), g(t - 5))
            if ok(2): f.v_mul_f32(g(t - 2), tm(t - 2), g(t - 2))
            if ok(4): f.v_fma_f32(g(t - 4), g(t - 4), VE3, VE3)
            if ok(6): f.v_mul_f32(g(t - 6), g(t - 6), u(t - 6))
            if ok(7) and t % 2 == 0: f.v_cvt_pk_bf16_f32(u((t - 8) // 2), g(t - 8), g(t - 7))
            if t == 12 and r < 5: f.s_add_u32(sHS, sHST, 16384 * r)
        f.buffer_store_dwordx4(v(a + 8, 4), vL16, WS, sHS if r < 5 else sH5, mods=f"offen {G.SC}", tset=f"h{r}")
        return f
    def flag(r):
        f = Stream()
        f.buffer_store_dword(vNON, "off", WS, sFJ if r < 5 else sF5, mods=f"offset:{256+64*r} {G.SC}", tneed=f"h{r}")
        return f
    e = [epi(r) for r in range(6)]
    ri = Stream(); res_init(ri, 48)
    lag = oi("lag", 4)
    for r in range(6):
        parts = [e[r]] + ([ri] if r == 3 else [])
        hk(end[max(r, 1)] + lag, lambda st, parts=parts: [fill.add(p) for p in parts])
        hk(end[r], lambda st, r=r: stamp(st, f"t{r}"))
    hk(end[3], lambda st: fill.drain_until(st, e[0])); hk(end[4], lambda st: fill.drain_until(st, e[1]))
    hk(end[5] - 1, lambda st: fill.drain_until(st, ri))
    fd = [int(x) for x in os_("fd", "38,20,20,18,16,12").split(",")]; fpos = {}
    def watch(i, l):
        for r in range(6):
            if any(("t", f"h{r}") in x.dst for x in l): fpos[r] = i + fd[r]; hk(i + fd[r], lambda st, r=r: (stamp(st, f"f{r}a"), st.extend(flag(r)), stamp(st, f"f{r}b")))
    b3, b4 = oi("bud3", 16), oi("bud4", 16)
    def bud(i):
        b = oi("bud0", 12) if i < end[1] else b3 if i < P4 - DEPTH else b4
        if b % 4: b += 2 if i % 2 else -2
        return b - (4 if i in hooks and oi("budh", 1) else 0)
    o = oi("b4", 10)
    for i, name in ((g5 + oi("c1d", 4), "3a"), (end[1], "3b"), (end[2], "3c"), (end[3], "3d"), (end[4], "3f"), (end[5], "3g"),
                    (P4 + o, "4a"), (P4 + 16 + o, "4b"), (P4 + 32 + o, "4c"), (P4 + 48 + o, "4d"), (P4 + 64 + o, "4e")):
        hk(i, lambda st, name=name: (stamp(st, f"{name}a"), barrier(st, name), stamp(st, f"{name}b")))
    for i in (16, 32, 48, 64): hk(P4 + i, lambda st, i=i: stamp(st, f"q{i}"))
    HL = frag_loads(sHLD, [breg(k) for k in range(43)], 2048, 2)
    if OPT.get("noH"): HL = [lambda st: None] * 43
    ne = oi("early4", 12)
    ck = [T5 + oi("chkA", 10), P4 + oi("chk2", 0), P4 + oi("chk3", 16), P4 + oi("chk4", 42), P4 + oi("chk5", 65)]
    sl = oi("sl", 12); ev = float(OPT.get("ev4", 2)); pos = []
    for k in range(43):
        g = max(0, k // 8 - 1)
        p = ck[0] + 1 + k * float(OPT.get("ev3", 2)) if k < ne else pos[-1] + ev
        pos.append(max(p, ck[g]) if k < 40 else ck[4])
    pos = [int(p) for p in pos]
    hk(ck[0] - sl - 1, lambda st: (st.v_and_b32(vV, 31, vL), st.v_lshlrev_b32(vV, 2, vV)))
    for g, (addr, off) in enumerate(((vV, 256), (vFL, 384), (vFL, 448), (vFL, 512), (aP4, 576))):
        assert g == 0 or ck[g] - sl > ck[g - 1]
        if OPT.get("nochk"): continue
        hk(ck[g] - sl, lambda st, addr=addr, off=off: st.buffer_load_dword(vS4, addr, WS, sFB, mods=f"offen offset:{off} sc1"))
        hk(ck[g], lambda st, addr=addr, off=off, g=g: (stamp(st, f"k{g}a"), soft_check(st, vS4, addr, sFB, off), stamp(st, f"k{g}b")))
    def last(st):
        assert 5 in fpos and fpos[5] < ck[4]
        nxt(st)
    hk(ck[4], last)
    for k in range(43):
        assert pos[k] < P4 + 2 * k and (k >= 32 or pos[k] >= T5 + k), (k, pos[k])
        hk(pos[k], HL[k])
    hk(pos[32] - 1, lambda st: fill.drain_until(st, e[4]))
    stream(st, items, AF, 6, DEPTH, hooks, fill, bud, watch)
    if G.TAG == "f": print("T3", end[2] + 1, "T4", end[3] + 1, "T5", T5, "P4", P4, "flags", fpos, "checks", ck, "loads", pos, file=sys.stderr)
    stamp(st, "P4gemm")
    xepi(st, True)

def body(st, first):
    stop = OPT["stop"]
    T = G.TAG
    st.label(f".Lpair_{T}"); st.mark("reset")
    G.SEQ = SEQA; p1a(st)
    G.SEQ = SEQC
    if first:
        st.mark("merge", "from0"); st.label(".Lk_f")
    p1b(st); p1c(st)
    if stop == "p1": st.s_branch(".Lend"); return
    p2(st)
    if stop == "p2": st.s_branch(".Lend"); return
    p34(st)
    stamp(st, "end")
    stamp(st, 63, True)
    st.s_or_b32(sT0, s(2), sW); st.s_cmp_lg_u32(sT0, 0); st.s_cbranch_scc1(".Lend")
    st.v_add_u32(vNON, 22, vNON)
    st.buffer_store_dword(vNON, "off", WS, 0, mods=f"offset:{EPOCH} sc1")
    st.s_branch(".Lend")

SEQ0, SEQA, SEQC = [], [], []
def compute(st):
    G.SEQ = SEQ0
    p1a0(st)
    st.mark("save", "from0")
    st.s_branch(".Lk_f")
    G.SC, G.TAG = "", "f"
    body(st, True)

def compute_slow(st):
    G.SC, G.TAG, G.REC = "sc1", "s", False
    body(st, False)

sW8, sQK, sWOb, sGU, sWD5, sWI = s(74), s(75), s(76), s(77), s(78), s(79)
sWDb = [s(80 + i) for i in range(4)]
GU = 64
vKV, vQ, vW, vWR0, vWR1 = v(2), v(4), v(5), v(6), v(7)
vGG = [v(8), v(9), v(10)]; vGL = [v(16), v(17), v(18)]; vGT = v(19)
vC0, vC1, vCW, vCR = v(20), v(21), v(22), v(23)
SEL = 24; CACC = 28
FRS = [36, 40, 44, 48, 52]; WRAW = 56
vDUM = [v(11), v(60), v(61), v(62)]
GSTR = 448

def LDSW(st):
    for i in reversed(st.l):
        if i.name == "s_barrier" or (i.name == "s_waitcnt" and "lgkmcnt(0)" in i.ops[0]): return False
        if i.kind == "ds": return True
    return False

def POL(srd):
    k = {WQ: "pq", WO_: "po", WD: "pd", WG: "pg", WU: "pg"}.get(srd)
    x = os_(k, "") if k else ""
    return " " + x.replace("+", " ") if x else ""

def loader(st):
    st.v_lshrrev_b32(vT, 3, vL); st.v_bfe_u32(vU, vL, 4, 1); st.v_lshlrev_b32(vU, 2, vU); st.v_and_b32(vV, 7, vL); st.v_xor_b32(vU, vU, vV)
    st.v_mul_u32_u24(vKV, 3072, vT); st.v_and_b32(vV, 3, vU); st.v_lshl_add_u32(vKV, vV, 4, vKV)
    st.v_lshrrev_b32(vV, 2, vU); st.v_mul_u32_u24(vQ, 256 * 3072, vV); st.v_add_u32(vQ, vQ, vKV)
    st.v_lshl_add_u32(vKV, vV, 10, vKV); st.v_add_u32(vKV, 1024, vKV)
    st.v_lshlrev_b32(vW, 10, vT); st.v_lshl_add_u32(vW, vU, 4, vW)
    st.s_lshl_b32(sW8, sM, 13)
    st.s_mul_i32(sQK, sM, 64 * 3072); st.s_lshl_b32(sT0, sJ, 6); st.s_add_u32(sQK, sQK, sT0)
    sKVr = [s(84), s(85)]; sQJ = s(88); vQ0 = v(GU)
    rot(st, s(89), sT1); st.s_add_u32(s(89), s(89), sM)
    st.s_lshl_b32(sQJ, sJ, 6)
    st.s_and_b32(sT1, s(89), 7); st.s_mul_i32(sKVr[0], sT1, 64 * 3072); st.s_add_u32(sKVr[0], sKVr[0], sQJ)
    st.s_and_b32(sWI, sC, 1); st.s_lshl_b32(sWI, sWI, 4); st.s_add_u32(sWI, sWI, sJ); st.s_lshl_b32(sWI, sWI, 2); st.s_add_u32(sWI, sWI, sM)
    if not oi("fast0", 1) or os_("e0", "Tkv,c0,non,wld"):
        st.wait(lgkm=0)
        srds(st, [WQ])
    chunks = []
    for pair in range(2):
        chunks += [("kv", 0), ("kv", 1), ("q", 0), ("wo", 0), ("wo", 1), ("gp", 0), ("gp", 1)] + [("gs", r) for r in range(2, 6)]
        chunks += [("wd", r) for r in range(6)]
    N = len(chunks)
    issued = set()
    SQ = []
    def spf(n):
        for _ in range(min(n, len(SQ))): SQ.pop(0)()
    def squeue(kind):
        if kind == "k":
            for i in range(64):
                def f(i=i):
                    if i == 0:
                        st.s_lshr_b32(s(90), sWI, 4); st.s_mul_i32(s(90), s(90), 3072); st.s_and_b32(s(91), sWI, 15); st.s_lshl_b32(s(91), s(91), 7)
                        st.s_add_u32(s(91), s(91), s(90)); st.s_add_u32(s(44), s(46), s(91)); st.s_addc_u32(s(45), s(47), 0)
                    if i == 32: st.s_add_u32(s(44), s(44), 32 * 24576); st.s_addc_u32(s(45), s(45), 0)
                    x = Ins("s_load_dwordx2", [s(86, 2), s(44, 2), hex(i % 32 * 24576 + 1024 + 60)]); x.dst = set(); st.l.append(x)
                SQ.append(f)
            return
        base, cnt = dict(w=(46, 96), o=(50, 32), d=(58, 86), g=(54, 86), u=(56, 86))[kind[0]]
        if len(kind) > 1: cnt = int(kind[1:])
        for i in range(cnt):
            def f(i=i):
                if i == 0:
                    st.s_lshl_b32(s(91), sWI, 7); st.s_add_u32(s(44), s(base), s(91)); st.s_addc_u32(s(45), s(base + 1), 0)
                if i == 48: st.s_add_u32(s(44), s(44), 48 * 16384); st.s_addc_u32(s(45), s(45), 0)
                x = Ins("s_load_dwordx2", [s(86, 2), s(44, 2), hex(i % 48 * 16384 + 60)]); x.dst = set(); st.l.append(x)
            SQ.append(f)
    def dma(n, addr, srd, offs):
        slot = (n % 4) * 32768
        for i, (base, off, lds) in enumerate(offs):
            st.s_add_u32("m0", lds[0], slot + lds[1])
            st.s_add_u32(sT0, base, off)
            st.buffer_load_dwordx4(addr, srd, sT0, mods="offen" + POL(srd) + " lds", tset=f"c{n}" if i == len(offs) - 1 else None)
    def issue(n):
        if n >= N: return
        assert n not in issued; issued.add(n)
        kind, a = chunks[n]
        if kind == "kv" and n < 17:
            if a == 1: st.s_xor_b32(sT1, s(89), 4); st.s_and_b32(sT1, sT1, 7); st.s_mul_i32(sKVr[1], sT1, 64 * 3072); st.s_add_u32(sKVr[1], sKVr[1], sQJ)
            dma(n, vKV, WQ, [(sKVr[a], 8 * i * 3072, (sW8, 1024 * i)) for i in range(8)])
        elif kind == "q" and n < 17:
            st.v_add_u32(vT, sKVr[0], vQ); st.v_subrev_u32(vU, 512 * 3072, vT); st.v_min_u32(vQ0, vT, vU)
            dma(n, vQ0, WQ, [("0", 8 * i * 3072, (sW8, 1024 * i)) for i in range(8)])
        elif kind == "kv": dma(n, vKV, WQ, [(sQK, (256 * a + 8 * i) * 3072, (sW8, 1024 * i)) for i in range(8)])
        elif kind == "q": dma(n, vQ, WQ, [(sQK, 8 * i * 3072, (sW8, 1024 * i)) for i in range(8)])
        elif kind == "wo": dma(n, vW, WO_, [(sWOb, (256 * a + 8 * i) * 1024, (sW8, 1024 * i)) for i in range(8)])
        elif kind == "wd" and a < 5: dma(n, vW, WD, [(sWDb[i // 2], (16 * a + 8 * (i % 2)) * 1024, (sW8, 1024 * i)) for i in range(8)])
        elif kind == "wd":
            slot = (n % 4) * 32768
            for e in range(3):
                st.s_mul_i32(sT1, sM, 3); st.s_add_u32(sT1, sT1, e)
                st.s_lshr_b32(sT0, sT1, 1); st.s_mul_i32(sT0, sT0, 96 * 1024); st.s_and_b32(sT2, sT1, 1); st.s_lshl_b32(sT2, sT2, 13)
                st.s_add_u32(sT0, sT0, sT2); st.s_add_u32(sT0, sT0, sWD5)
                st.s_lshl_b32(sT1, sT1, 10); st.s_add_u32("m0", sT1, slot)
                st.buffer_load_dwordx4(vW, WD, sT0, mods="offen" + POL(WD) + " lds", tset=f"c{n}" if e == 2 else None)
        else:
            slot = n % 4; wr = vWR1 if slot >= 2 else vWR0; so = (slot & 1) * 32768
            for t in range(2):
                for k in range(4):
                    g, fr = (4 * a + k, t) if kind == "gp" else (4 * t + k, a)
                    st.ds_write_b128(wr, v(GU + 24 * g + 4 * fr, 4), mods=f"offset:{so + t*16384 + k*1024}", tset=f"c{n}" if (t, k) == (1, 3) else None)
    FREE = [GU + 24 * g + 4 * fr for h in (0, 2) for g in range(8) for fr in (h, h + 1)]
    def stg(n):
        a = chunks[n][1]
        if n < 17:
            assert a == 5; return [48, 52, 56]
        o = {3: 0, 4: 8, 2: 16, 5: 24}[a]
        return FREE[o:o + 8]
    def stage(n):
        kind, a = chunks[n]; assert kind == "wd"
        r = stg(n)
        if a < 5:
            for i in range(8):
                st.s_add_u32(sT0, sWDb[i // 2], (16 * a + 8 * (i % 2)) * 1024)
                st.buffer_load_dwordx4(v(r[i], 4), vW, WD, sT0, mods="offen")
        else:
            for e in range(3):
                st.s_mul_i32(sT1, sM, 3); st.s_add_u32(sT1, sT1, e)
                st.s_lshr_b32(sT0, sT1, 1); st.s_mul_i32(sT0, sT0, 96 * 1024); st.s_and_b32(sT2, sT1, 1); st.s_lshl_b32(sT2, sT2, 13)
                st.s_add_u32(sT0, sT0, sT2); st.s_add_u32(sT0, sT0, sWD5)
                st.buffer_load_dwordx4(v(r[e], 4), vW, WD, sT0, mods="offen")
    def unstage(n):
        kind, a = chunks[n]; r = stg(n); slot = (n % 4) * 32768
        assert n not in issued; issued.add(n)
        if a < 5: st.s_add_u32(sT0, sW8, slot)
        else: st.s_mul_i32(sT0, sM, 3072); st.s_add_u32(sT0, sT0, slot)
        st.v_add_u32(vT, sT0, vL16)
        for i in range(8 if a < 5 else 3): st.ds_write_b128(vT, v(r[i], 4), mods=f"offset:{1024*i}")
    def prologue():
        F0 = oi("fast0", 1)
        if F0:
            if os_("e0", "Tkv,c0,non,wld"):
                srds(st, [WS, WP, WO_, WG, WU, WD])
                run(os_("e0", "Tkv,c0,non,wld").split(","), 0)
        else:
            issue(0)
            if oi("kv1first", 1): issue(1)
        if not oi("cfirst", 1):
            st.mark("save", "ld1"); st.s_branch(".Lloader")
            st.label(".Lcomp"); st.mark("reset")
            compute(st)
            st.label(".Lloader"); st.mark("restore", "ld1")
        if not F0 and not oi("kv1first", 1): issue(1)
        def late():
            if not (F0 and os_("e0", "Tkv,c0,non,wld")):
                st.wait(lgkm=0)
                srds(st, [WQ, WS, WP, WO_, WG, WU, WD])
            stamp_base(st)
            stamp(st, "start", who="l", pair=0)
        if not F0 or os_("e0", "Tkv,c0,non,wld"): late()
        st.s_lshl_b32(sWOb, sM, 16); st.s_lshl_b32(sT0, sCG, 7); st.s_add_u32(sWOb, sWOb, sT0)
        for e in range(4):
            st.s_lshl_b32(sT1, sM, 2); st.s_add_u32(sT1, sT1, e)
            st.s_mul_i32(sT2, sT1, 6); st.s_mul_i32(sT3, sT1, 5); st.s_add_u32(sT3, sT3, 6); st.s_min_u32(sT2, sT2, sT3)
            st.s_lshl_b32(sT2, sT2, 14); st.s_add_u32(sWDb[e], sT2, sT0)
        st.s_add_u32(sWD5, sT0, 80 * 1024)
        st.s_mul_i32(sT2, sJ, 6); st.s_mul_i32(sT3, sJ, 5); st.s_add_u32(sT3, sT3, 6); st.s_min_u32(sT2, sT2, sT3)
        st.s_lshl_b32(sT2, sT2, 5); st.s_mul_i32(sGU, sM, 64 * 2752); st.s_add_u32(sGU, sGU, sT2)
        st.s_cmp_eq_u32(sT6, 1); st.s_cselect_b32(sT1, 12, 10)
        st.s_lshl_b32(sT2, sM, 12); st.s_add_u32(sT2, sT2, 32768)
        for i in range(3):
            st.v_add_u32(vT, 64 * i, vL); st.v_mul_u32_u24(vU, 5462, vT); st.v_lshrrev_b32(vU, 16, vU)
            st.v_mul_u32_u24(vV, 12, vU); st.v_sub_u32(vT, vT, vV)
            st.v_mul_u32_u24(vGG[i], 2752, vU); st.v_lshl_add_u32(vGG[i], vT, 4, vGG[i])
            st.v_cmp_gt_u32("vcc", sT1, vT); st.v_mov_b32(vV, 0x80000000); st.v_cndmask_b32(vGG[i], vV, vGG[i], "vcc")
            st.v_and_b32(vV, 7, vU); st.v_mul_u32_u24(vGL[i], GSTR, vV); st.v_lshrrev_b32(vV, 3, vU); st.v_lshl_add_u32(vGL[i], vV, 14, vGL[i])
            st.v_lshrrev_b32(vV, 1, vT); st.v_lshl_add_u32(vGL[i], vV, 6, vGL[i])
            st.v_and_b32(vV, 1, vT); st.v_lshl_add_u32(vGL[i], vV, 4, vGL[i]); st.v_add_u32(vGL[i], sT2, vGL[i])
        lane_tr(st, vGT, None, "nat", stride=GSTR, hstride=16384); st.v_add_u32(vGT, sT2, vGT)
        lane_tr(st, vC0, vC1, "qkv")
        st.s_lshl_b32(sT0, sM, 12); st.v_add_u32(vWR0, sT0, vL16); st.v_add_u32(vWR1, 65536, vWR0)
        st.v_bfe_u32(vT, vL, 4, 1); st.v_and_b32(vU, 1, vL); st.v_cmp_eq_u32("vcc", vT, vU)
        st.v_mov_b32(vV, 0x3f803f80)
        for i in range(4): st.v_cndmask_b32(v(SEL + i), 0, vV, "vcc")
        st.v_lshlrev_b32(vCW, 6, vT); st.v_lshl_add_u32(vCW, vU, 5, vCW); st.v_lshrrev_b32(vT, 5, vL); st.v_lshl_add_u32(vCW, vT, 4, vCW)
        if F0 and not os_("e0", "Tkv,c0,non,wld"): late()
    def publish():
        L = newlab("pub")
        st.v_add_u32(vNON, sXC, vNON); st.v_add_u32(vNON, 16, vNON)
        st.s_lshl_b32(sT0, sC, 7); st.s_lshl_b32(sT1, sJ, 2); st.s_add_u32(sT0, sT0, sT1); st.s_add_u32(sT0, sT0, XCCT)
        st.s_cmp_lg_u32(sM, 0); st.mark("save", L); st.s_cbranch_scc1(L)
        st.buffer_store_dword(vNON, "off", WS, sT0, mods="sc1")
        st.mark("merge", L); st.label(L)
    dn = [0]
    def dum():
        dn[0] += 1
        return vDUM[dn[0] % 4]
    def tload(addr, srd, soff):
        i = Ins("buffer_load_dword", [dum(), addr, srd, str(soff)], "offen" + POL(srd)); i.dst = set(); st.l.append(i)
    def touch(kind):
        if kind == "wd":
            st.s_mul_i32(sT0, sWI, 86 * 128); st.v_lshlrev_b32(vT, 7, vL); tload(vT, WD, sT0)
            st.v_min_u32(vU, 21, vL); st.v_lshlrev_b32(vU, 7, vU); st.s_add_u32(sT0, sT0, 8192); tload(vU, WD, sT0)
        elif kind[:2] == "wd":
            n = int(kind[2:]); c = 86 - n; assert c <= 64
            st.s_mul_i32(sT0, sWI, c * 128); st.s_add_u32(sT0, sT0, n * 16384); st.v_min_u32(vT, c - 1, vL); st.v_lshlrev_b32(vT, 7, vT); tload(vT, WD, sT0)
        elif kind in ("g", "u"):
            D = WG if kind == "g" else WU
            st.s_mul_i32(sT0, sWI, 86 * 128); st.v_lshlrev_b32(vT, 7, vL); tload(vT, D, sT0)
            st.v_min_u32(vU, 21, vL); st.v_lshlrev_b32(vU, 7, vU); st.s_add_u32(sT0, sT0, 8192); tload(vU, D, sT0)
        elif kind in ("ga", "gb"):
            st.s_mul_i32(sT0, sWI, 43 * 128); st.v_min_u32(vT, 42, vL); st.v_lshlrev_b32(vT, 7, vT)
            if kind == "gb": st.s_add_u32(sT0, sT0, 256 * 2752)
            tload(vT, WG, sT0); tload(vT, WU, sT0)
        elif kind == "kv":
            st.v_lshrrev_b32(vT, 4, vL); st.v_mul_u32_u24(vT, 3072, vT); st.v_lshl_add_u32(vT, vFL, 5, vT)
            st.s_mul_i32(sT0, sWI, 4 * 3072); st.s_add_u32(sT0, sT0, 1024); tload(vT, WQ, sT0)
        elif kind == "q":
            st.v_bfe_u32(vT, vL, 3, 2); st.v_mul_u32_u24(vT, 3072, vT); st.v_and_b32(vU, 7, vL); st.v_lshl_add_u32(vT, vU, 7, vT)
            st.s_mul_i32(sT0, sWI, 4 * 3072); tload(vT, WQ, sT0)
        elif kind == "wo":
            st.v_and_b32(vT, 31, vL); st.v_lshlrev_b32(vT, 7, vT); st.s_lshl_b32(sT0, sWI, 12); tload(vT, WO_, sT0)
        elif kind == "h":
            st.s_lshl_b32(sT0, sC, 4); st.s_add_u32(sT0, sT0, sJ); st.s_lshl_b32(sT0, sT0, 2); st.s_add_u32(sT0, sT0, sM)
            st.s_mul_i32(sT0, sT0, 43 * 128); st.s_add_u32(sT0, sT0, HB)
            st.v_min_u32(vT, 42, vL); st.v_lshlrev_b32(vT, 7, vT); tload(vT, WS, sT0)
        elif kind in ("h0", "h1"):
            n, o = (16, 0) if kind == "h0" else (27, 32768)
            st.s_lshl_b32(sT0, sC, 2); st.s_add_u32(sT0, sT0, sM); st.s_mul_i32(sT0, sT0, HB_TB)
            st.s_mul_i32(sT1, sJ, n * 128); st.s_add_u32(sT0, sT0, sT1); st.s_add_u32(sT0, sT0, HB + o)
            st.v_min_u32(vT, n - 1, vL); st.v_lshlrev_b32(vT, 7, vT); tload(vT, WS, sT0)
        elif kind == "x":
            st.s_lshl_b32(sT0, sC, 4); st.s_add_u32(sT0, sT0, sJ); st.s_lshl_b32(sT0, sT0, 2); st.s_add_u32(sT0, sT0, sM)
            st.s_lshl_b32(sT1, sT0, 11); st.s_add_u32(sT1, sT1, XB)
            st.s_lshl_b32(sT2, sT0, 8); st.s_add_u32(sT2, sT2, ST - 16 * 128)
            st.s_lshl_b32(sT3, sC, 2); st.s_add_u32(sT3, sT3, sM); st.s_lshl_b32(sT3, sT3, 10); st.s_add_u32(sT3, sT3, FL - 18 * 128)
            st.v_mov_b32(vU, sT1); st.v_mov_b32(vV, sT2); st.v_cmp_le_u32("vcc", 16, vL); st.v_cndmask_b32(vU, vU, vV, "vcc")
            st.v_mov_b32(vV, sT3); st.v_cmp_le_u32("vcc", 18, vL); st.v_cndmask_b32(vU, vU, vV, "vcc")
            st.v_min_u32(vT, 22, vL); st.v_lshl_add_u32(vT, vT, 7, vU); tload(vT, WS, 0)
        elif kind == "code":
            st.s_getpc_b64(s(100, 2))
            L = newlab("pc")
            st.label(L)
            st.raw(f"    s_sub_u32 s100, s100, {L}-{NAME}_kernel")
            st.raw("    s_subb_u32 s101, s101, 0")
            st.v_lshlrev_b32(vT, 7, vL); st.s_lshl_b32(sT0, sM, 13); st.v_add_u32(vT, sT0, vT)
            i = Ins("global_load_dword", [dum(), vT, s(100, 2)]); i.dst = set(); st.l.append(i)
            st.v_add_u32(vU, 32768, vT); st.v_min_u32(vU, f".Lslow-{NAME}_kernel", vU)
            i = Ins("global_load_dword", [dum(), vU, s(100, 2)]); i.dst = set(); st.l.append(i)
    gl = []
    for g in range(8):
        k0 = (16 * (g // 4) + (g % 4)) * 16
        for m_, srd in enumerate((WG, WU)):
            for i in range(3):
                def f(g=g, k0=k0, m_=m_, srd=srd, i=i):
                    if i == 0: st.s_add_u32(sLD, sGU, k0 * 2752)
                    st.buffer_load_dwordx4(v(GU + 24 * g + 12 * m_ + 4 * i, 4), vGG[i], srd, sLD, mods="offen" + POL(srd))
                gl.append(f)
    def gu_loads(cnt):
        for _ in range(min(cnt, len(gl))):
            f = gl.pop(0)
            if not OPT.get("noG"): f()
    def colsum(n, steps, first, lo, hi, dst=None):
        L = newlab("cs")
        st.s_sub_u32(sT0, sM, lo); st.s_cmp_ge_u32(sT0, hi - lo); st.mark("save", L); st.s_cbranch_scc1(L)
        nf = len(FRS)
        def rd(k):
            a, off = steps[k]; r = FRS[k % nf]
            st.ds_read_b64_tr_b16(v(r, 2), a, mods=f"offset:{off}"); st.ds_read_b64_tr_b16(v(r + 2, 2), a, mods=f"offset:{off+512}")
        for k in range(nf - 1): rd(k)
        for k in range(len(steps)):
            acc = v(CACC + 4 * (k & 1), 4)
            st.v_mfma_f32_16x16x32_bf16(acc, v(FRS[k % nf], 4), v(SEL, 4), "0" if first and k < 2 else acc)
            if k + nf - 1 < len(steps): rd(k + nf - 1)
        if dst is not None:
            for i in range(4): st.v_add_f32(v(CACC + i), v(CACC + i), v(CACC + 4 + i))
            st.ds_write_b128(dst, v(CACC, 4))
        st.mark("merge", L); st.label(L)
    def transpose(g):
        b = GU + 24 * g
        for m_ in range(2):
            for i in range(3): st.ds_write_b128(vGL[i], v(b + 12 * m_ + 4 * i, 4), mods=f"offset:{32*m_}")
        for t in range(6):
            for u in range(2): st.ds_read_b64_tr_b16(v(b + 4 * t + 2 * u, 2), vGT, mods=f"offset:{u*4*GSTR + t*64}")
    def tsum(g):
        b = GU + 24 * g
        for t in range(6):
            st.v_mfma_f32_16x16x32_bf16(v(CACC + 4 * t, 4), v(b + 4 * t, 4), v(SEL, 4), "0" if g == 0 else v(CACC + 4 * t, 4))
    tr_next = [0]
    def transposes(cnt):
        gs = list(range(tr_next[0], min(8, tr_next[0] + cnt))); tr_next[0] += len(gs)
        for i, g in enumerate(gs):
            transpose(g)
            if i > 0: tsum(gs[i - 1])
        tsum(gs[-1])
    def gu_partial():
        st.s_mul_i32(sT0, sM, 768); st.s_add_u32(sT0, sT0, L_VB); st.v_add_u32(vT, sT0, vCW)
        for i in range(6): st.ds_write_b128(vT, v(CACC + 4 * i, 4), mods=f"offset:{128*i}")
    def gu_reduce():
        st.v_min_u32(vCR, 6 * 128 - 16, vL16)
        st.v_add_u32(vT, L_VB, vCR)
        for w in range(4): st.ds_read_b128(v(CACC + 4 * w, 4), vT, mods=f"offset:{w*768}")
        for i in range(4):
            st.v_add_f32(v(CACC + i), v(CACC + i), v(CACC + 4 + i)); st.v_add_f32(v(CACC + 8 + i), v(CACC + 8 + i), v(CACC + 12 + i))
        for i in range(4): st.v_add_f32(v(CACC + i), v(CACC + i), v(CACC + 8 + i))
        for i in range(4):
            st.v_and_b32(v(CACC + 4 + i), 0xffff0000, v(CACC + i)); st.v_sub_f32(v(CACC + i), v(CACC + i), v(CACC + 4 + i))
            st.v_cvt_pk_bf16_f32(v(CACC + i), v(CACC + 4 + i), v(CACC + i))
        st.v_and_b32(vT, 0x380, vCR); st.v_and_b32(vU, 0x30, vCR); st.v_lshl_add_u32(vT, vU, 1, vT)
        st.v_bfe_u32(vU, vCR, 6, 1); st.v_lshl_add_u32(vT, vU, 4, vT); st.v_add_u32(vT, L_CS + 384, vT)
        st.ds_write_b128(vT, v(CACC, 4))
    def cs_kv(a):
        if a == 0:
            st.s_lshl_b32(sT0, sM, 6); st.v_xor_b32(vCR, sT0, vC0)
        else:
            st.s_lshl_b32(sT0, sM, 7); st.s_add_u32(sT0, sT0, L_CS); st.v_add_u32(vV, sT0, vCW)
        colsum(a, [(vCR, 32768 * a + 2048 * k) for k in range(16)], a == 0, 0, 2, dst=vV if a == 1 else None)
    def cs_q():
        st.v_add_u32(vT, 65536, vC0); st.v_add_u32(vU, 65536, vC1); st.v_add_u32(vV, L_CS + 256, vCW)
        colsum(2, [(a, 2048 * k) for k in range(16) for a in (vT, vU)], True, 2, 3, dst=vV)

    need = {"a0": [0], "a1": [1], "g": [3, 4], "30": [5, 6, 7, 8], "3c": [9], "3d": [10], "3f": [11], "4a": [12], "4b": [13], "4c": [14], "4d": [15], "4e": [16]}
    S0 = os_("s0", "start:c1;a0:c2,csk0;a1:csk1,wst,sigA,pub,G8,sigq,G16,wsig,X2,G12,X2,G12,X2,c3,c4,X2,Th0,Tx;g:part,c5,c6,Qk,S32;X2:c7,c8;")
    S0 += os_("s0b", "30:red,wst;3a:c9,Twd,Th1,nd;3b:c10,nd;3d:c11,c12;3f:c13;3g:c14;4a:S8;4b:c15,S8;4c:c16,S8;4d:S8;4e:c17;X4:c18")
    S1 = os_("s1", "a2:c2,sig,c3,c4;g:c5,c6;X2:c7,c8;")
    S1 += os_("s1b", "3a:c9,Twd,nd;3b:c10,nd;3c:c11;3d:c12;3f:c13;3g:c14;4b:c15;4c:c16")
    def acts(txt):
        d = {}
        for part in txt.split(";"):
            k, _, l = part.partition(":"); d[k] = l.split(",")
        return d
    DR = [False]
    def run(lst, o):
        for a in lst:
            DR[0] = False
            if a == "q": issue(2)
            elif a == "pub": publish()
            elif a == "wld": st.s_lshl_b32(sT0, sJ, 10); st.buffer_load_dwordx4(v(WRAW, 4), vL16, WP, sT0, mods="offen")
            elif a == "wst":
                st.v_bfe_u32(vT, vL, 3, 2); st.v_mul_u32_u24(vT, 576, vT); st.v_lshrrev_b32(vU, 5, vL); st.v_lshl_add_u32(vT, vU, 7, vT)
                st.v_and_b32(vU, 112, vL16); st.v_add_u32(vT, vT, vU); st.v_add_u32(vT, L_KVB, vT)
                st.ds_write_b128(vT, v(WRAW, 4))
            elif a == "non": st.buffer_load_dword(vNON, "off", WS, 0, mods=f"offset:{EPOCH} sc1")
            elif a == "sig":
                st.l.append(Ins("s_nop", ["0"], tneed=f"c{o+2}")); signal(st, 1 + o // 17)
            elif a == "sigA": signal(st, 1, 16)
            elif a == "sigq":
                L = newlab("sq")
                st.l.append(Ins("s_nop", ["0"], tneed=f"c{o+2}")); signal(st, 1, 32)
                st.s_cmp_lg_u32(sM, 2); st.mark("save", L); st.s_cbranch_scc1(L)
                st.v_mov_b32(vU, 1); sigwait(st, 12, 48, regs=(13, 14, 15))
                st.mark("merge", L); st.label(L)
                cs_q(); signal(st, 1)
            elif a == "wsig": st.v_mov_b32(vU, 2); sigwait(st, 12, 32, regs=(13, 14, 15))
            elif a.startswith("csk"): cs_kv(int(a[3]))
            elif a == "csq": cs_q()
            elif a == "part": gu_partial()
            elif a == "red": gu_reduce()
            elif a[0] == "P": st.s_setprio(int(a[1:]))
            elif a == "nd": DR[0] = True
            elif a == "wv": st.wait(vm=0)
            elif a[0] == "Q": squeue(a[1:])
            elif a[0] == "S":
                if LDSW(st): st.wait(lgkm=0)
                DR[0] = True; spf(int(a[1:]))
            elif a[0] == "c": issue(o + int(a[1:]))
            elif a[0] == "r" and a[1:].isdigit(): stage(o + int(a[1:]))
            elif a[0] == "u" and a[1:].isdigit(): unstage(o + int(a[1:]))
            elif a[0] == "@": stamp(st, a, who="l", pair=o // 17)
            elif a[0] == "G": gu_loads(int(a[1:]))
            elif a[0] == "X": transposes(int(a[1:]))
            elif a[0] == "T": touch(a[1:])
            else: raise ValueError(a)
    prologue()
    for pair in range(1 if OPT['stop'] else 2):
        o = 17 * pair; A = acts(S0 if pair == 0 else S1)
        run(A.get("start", []), o)
        for b in (SEQ0 if pair == 0 else SEQA) + SEQC:
            tk = []
            for n in need.get(b, []):
                assert o + n in issued, (pair, b, n)
                tk.append(f"c{o+n}")
            stamp(st, "<" + b, who="l", pair=pair)
            if not DR[0] and LDSW(st): st.wait(lgkm=0)
            DR[0] = False
            st.l.append(Ins("s_barrier", [], tneed=tk))
            run(A.get(b, []), o)
    assert OPT['stop'] or (not gl and tr_next[0] == 8)
    st.s_branch(".Lend")

def main():
    st = Stream()
    entry(st)
    loader(st)
    st.label(".Lslow")
    compute_slow(st)
    st.extend(OOL)
    st.label(".Lend")
    st.s_endpgm()
    bodyt = finalize(st)
    ref = open(f"cdna_kernels/{NAME}.s.ref").read().split("\n")
    head = [l for l in ref if l.startswith(";") and "@launch" not in l]
    out = "\n".join(head) + f"\n; @launch grid=(256,1,1) block=(512,1,1) lds={LDS_BYTES}\n"
    out += '.amdgcn_target "amdgcn-amd-amdhsa--gfx950"\n' + khead(NAME + "_kernel") + bodyt + kd(NAME + "_kernel")
    path = sys.argv[1] if len(sys.argv) > 1 else f"cdna_kernels/{NAME}.s"
    open(path, "w").write(out)
    stamp_names["opt"] = " ".join(a for a in sys.argv[2:] if not a.startswith(("stamps", "only"))); json.dump(stamp_names, open(path + ".json", "w"))
    n = sum(1 for l in bodyt.split("\n") if l.startswith("    ") and not l.strip().startswith(";"))
    print("wrote", path, "instructions:", n, "barriers:", SEQ0, SEQA, SEQC)

main()
```

```python
import sys, os, math, struct, json
sys.path.insert(0, os.path.dirname(os.path.abspath(__file__)))
from asmlib import *
from layout5 import *

NAME = "interleave_layers__linear_kernel_hedgehog__geglu_ffn__prompt"
OPT = dict(stop=None, stamps=False)
for a in sys.argv[2:]:
    k, _, val = a.partition("=")
    OPT[k] = val if val != "" else True
def oi(k, d): return int(OPT.get(k, d))
def os_(k, d): return str(OPT.get(k, d))
SCL = "sc1"
def f2u(x): return "0x%08x" % struct.unpack("<I", struct.pack("<f", x))[0]
LOG2E = 1.4426950408889634
class G: SC = ""; TAG = "f"; SEQ = None; REC = True

WS, X_, OUT, WQ, WP, WO_, WG, WU, WD = [s(4 + 4 * i, 4) for i in range(9)]
sXC = s(40)
sC, sJ, sHF, sCG, sM, sNONCE, sCNT, sPAIR = [s(66 + i) for i in range(8)]
sW = s(3)
sXLD, sSTLD, sFA, sXST, sSTST, sFXST = [s(74 + i) for i in range(6)]
sOST, sFB, sFJ = s(80), s(81), s(82)
sHLD, sHST = s(84), s(85)
sKVST, sKVLD, sFKVST, sFKVLD = [s(88 + i) for i in range(4)]
sKZ, sGZ, sHALF, sH5, sF5, sHS = s(62), s(63), s(60, 2), s(49), s(83), s(41)
sT0, sT1, sT2, sT3 = [s(92 + i) for i in range(4)]
sL2E, sONE, sOUTO, sT6 = s(96), s(97), s(98), s(99)
sSTMP = s(100, 2)
sRING, sKH, sTP, sDUM, sLD = s(44), s(45), s(46), s(47), s(48)
vL, vL16, vA0, vFL = v(0), v(1), v(2), v(3)
RES = 4
vNON = v(12); vT = v(13); vU = v(14); vV = v(15)
vA1, vP0, vP1 = v(121), v(122), v(123)
aXW = v(126)
XF = 128
cWDb = [s(52 + i) for i in range(4)]; sDM = s(56)
aEW, aER, vEVv, vEVr, aCS3 = v(112), v(113), v(114), v(115), v(120)
aP4, vS4 = v(124), v(125)

class bc:
    def __init__(self, r, neg=False): self.r = int(r[1:]) if isinstance(r, str) else r; self.neg = neg
class ng:
    def __init__(self, r): self.r = r
def pk(st, op, d, *src):
    ops, lo, hi, n = [], [], [], []
    for x in src:
        if isinstance(x, bc): ops.append(v(x.r & ~1, 2)); lo.append(x.r & 1); hi.append(x.r & 1); n.append(int(x.neg))
        elif isinstance(x, ng): ops.append(v(x.r, 2)); lo.append(0); hi.append(1); n.append(1); assert x.r % 2 == 0
        else: ops.append(v(x, 2)); lo.append(0); hi.append(1); n.append(0); assert x % 2 == 0
    assert d % 2 == 0
    f = lambda l: "[" + ",".join(map(str, l)) + "]"
    mods = f"op_sel:{f(lo)} op_sel_hi:{f(hi)}" + (f" neg_lo:{f(n)} neg_hi:{f(n)}" if any(n) else "")
    st.op(f"v_pk_{op}_f32", v(d, 2), *ops, mods=mods)

lab_n = [0]
def newlab(p):
    lab_n[0] += 1
    return f".L{p}_{lab_n[0]}"

def nxt(st):
    st.s_add_u32(sNONCE, sNONCE, 1); st.v_add_u32(vNON, 1, vNON)

def poll(st, addr, soff, off=0):
    L = newlab("poll"); D = newlab("pdone")
    st.label(L)
    st.buffer_load_dword(vT, addr, WS, soff, mods=f"offen offset:{off} sc1")
    st.wait(vm=0)
    st.v_cmp_ne_u32("vcc", sNONCE, vT)
    st.s_cbranch_vccz(D)
    st.s_sub_u32(sCNT, sCNT, 1)
    st.s_cbranch_scc0(L)
    st.s_mov_b32(sCNT, 0)
    st.label(D)

OOL = Stream()
def soft_check(st, reg, addr, soff, off=0):
    D = newlab("soft"); X = newlab("softx")
    st.v_cmp_ne_u32("vcc", sNONCE, reg)
    st.s_cbranch_vccnz(X)
    st.label(D)
    OOL.label(X); OOL.mark("reset")
    poll(OOL, addr, soff, off)
    OOL.s_branch(D)

stamp_names = {"c": [], "l": []}
def stamp(st, name, real=False, who="c", pair=None):
    if not OPT["stamps"]: return
    only = OPT.get("only")
    if only and who == "l" and not OPT.get("lst"): return
    if only and who == "c" and not isinstance(name, int) and name not in ("start", "end") and name not in only.split(","): return
    if isinstance(name, int): idx = name
    else:
        if name not in stamp_names[who]: stamp_names[who].append(name)
        idx = stamp_names[who].index(name)
    r = v(127) if who == "c" else v(63)
    if name == 62: st.v_mov_b32(r, s(42))
    elif name == "start" and who == "c": st.v_mov_b32(r, s(86))
    elif name == "karg": st.wait(lgkm=0); st.v_mov_b32(r, s(0))
    else:
        if real: st.s_memrealtime(sSTMP)
        else: st.s_memtime(sSTMP)
        st.wait(lgkm=0)
        st.v_mov_b32(r, s(100))
    if pair is None:
        st.s_lshl_b32(s(101), sPAIR, 8)
        st.s_add_u32(s(101), s(101), s(65))
    else:
        st.s_add_u32(s(101), s(65), 256 * pair)
    st.buffer_store_dword(r, "off", WS, s(101), mods=f"offset:{idx*4}")

def ring_addr(st, mode):
    if mode in ("trq", "trn"):
        st.v_add_u32(vA0, sRING, vP0 if mode == "trq" else vP1); st.v_xor_b32(vA1, 64, vA0)
    elif mode == "b128":
        st.v_add_u32(vA0, sRING, vL16)
def ring_next(st, mode=None):
    st.s_add_u32(sRING, sRING, 0x8000); st.s_and_b32(sRING, sRING, 0x1ffff)
    ring_addr(st, mode)
def barrier(st, name, drain=False):
    if drain: st.wait(lgkm=0)
    st.s_barrier()
    if G.REC: G.SEQ.append(name)

def signal(st, val=None, off=0):
    t0, t1 = (v(124), v(125)) if val is None else (vT, vU)
    st.s_lshl_b32(sT3, sW, 2); st.s_add_u32(sT3, sT3, L_SIG + off); st.v_mov_b32(t0, sT3)
    if val is None: st.v_add_u32(t1, 1, sPAIR)
    else: st.v_mov_b32(t1, val)
    st.ds_write_b32(t0, t1)
def sigwait(st, mask=28, off=0, regs=(124, 125, 126), cmp="ne", extra=None):
    L = newlab("sig"); D = newlab("sigd")
    a, e, r = [v(x) for x in regs]
    st.v_and_b32(a, mask, vFL); st.v_add_u32(a, L_SIG + off, a)
    if extra:
        st.ds_read_b32(r, a)
        extra(st)
        st.wait(lgkm=0)
        st.op(f"v_cmp_{cmp}_u32", "vcc", e, r)
        st.s_cbranch_vccz(D)
    st.label(L)
    st.ds_read_b32(r, a)
    st.wait(lgkm=0)
    st.op(f"v_cmp_{cmp}_u32", "vcc", e, r)
    st.s_cbranch_vccz(D)
    st.s_sub_u32(sCNT, sCNT, 1)
    st.s_cbranch_scc0(L)
    st.s_mov_b32(sCNT, 0)
    st.label(D)

def lane_tr(st, d0, d1, kind, stride=128, tmp=vT, hstride=None):
    st.v_bfe_u32(d0, vL, 2, 2)
    if stride == 128: st.v_lshlrev_b32(d0, 7, d0)
    else: st.v_mul_u32_u24(d0, stride, d0)
    st.v_lshrrev_b32(tmp, 5, vL)
    st.v_lshl_add_u32(d0, tmp, int(math.log2(hstride or 8 * stride)), d0)
    sh = dict(qkv=(5, 4), nat=(4, 5))[kind]
    st.v_and_b32(tmp, 1, vL); st.v_lshl_add_u32(d0, tmp, sh[0], d0)
    st.v_bfe_u32(tmp, vL, 1, 1); st.v_lshl_add_u32(d0, tmp, 3, d0)
    st.v_bfe_u32(tmp, vL, 4, 1); st.v_lshl_add_u32(d0, tmp, sh[1], d0)
    if stride == 128:
        st.v_bfe_u32(tmp, vL, 3, 1); st.v_lshl_add_u32(d0, tmp, 6, d0)
        if d1: st.v_xor_b32(d1, 64, d0)

gemm_n = [0]
def gemm(st, items, mode, af, nslots, depth, ready, bars=None, fill=None, budget=16, hooks=None, loads=None, pre=10, every=2, pairw=0):
    n = len(items); loads = list(loads or []); ready = set(ready); bars = bars or {}
    nr = 0; gemm_n[0] += 1; tg = f"g{gemm_n[0]}_"
    def pump(upto):
        nonlocal nr
        while nr < n and nr <= upto:
            it = items[nr]; r = af + 4 * (nr % nslots)
            assert it["chunk"] in ready, (nr, it["chunk"])
            if nr > 0 and it["chunk"] != items[nr - 1]["chunk"]: ring_next(st, mode)
            if mode != "b128":
                a = vA1 if it["t"] else vA0
                st.ds_read_b64_tr_b16(v(r, 2), a, mods=f"offset:{it['off']}")
                st.ds_read_b64_tr_b16(v(r + 2, 2), a, mods=f"offset:{it['off']+512}", tset=tg + str(nr))
            else:
                st.ds_read_b128(v(r, 4), vA0, mods=f"offset:{it['off']}", tset=tg + str(nr))
            nr += 1
    for _ in range(min(pre, len(loads))): loads.pop(0)(st)
    pump(depth - 1)
    for i in range(n):
        it = items[i]
        if hooks and i in hooks: hooks[i](st)
        acc = v(it["acc"], 16)
        st.v_mfma_f32_32x32x16_bf16(acc, v(af + 4 * (i % nslots), 4), v(it["b"], 4), "0" if it["first"] else acc,
                                    tneed=tg + str(i + 1) if pairw and i % 2 == 0 and i + 1 < nr else None)
        if i in bars:
            barrier(st, bars[i][0]); ready |= set(bars[i][1])
        pump(i + depth)
        if loads and i % every == every - 1: loads.pop(0)(st)
        if fill is not None: fill.take(st, budget(i) if callable(budget) else budget)
    assert not loads

def entry(st):
    st.s_cmp_ge_u32(s(2), 256)
    st.s_cbranch_scc1(".Lend")
    if OPT["stamps"]: st.s_memrealtime(s(42, 2)); st.s_memtime(s(86, 2))
    if OPT.get("dbg"): st.s_memrealtime(s(42, 2))
    st.s_load_dwordx16(s(44, 16), s(0, 2), 0)
    st.s_load_dwordx4(s(60, 4), s(0, 2), 64)
    st.s_load_dwordx2(s(64, 2), s(0, 2), 80)
    st.v_lshrrev_b32(vT, 6, v(0))
    st.v_and_b32(vL, 63, v(0))
    st.v_readfirstlane_b32(sW, vT)
    st.v_lshlrev_b32(vL16, 4, vL)
    st.v_and_b32(vFL, 15, vL)
    st.v_lshlrev_b32(vFL, 2, vFL)
    st.s_and_b32(sT0, s(2), 7)
    st.s_lshr_b32(sT1, s(2), 3)
    st.s_lshr_b32(sC, sT1, 4)
    st.s_lshl_b32(sT0, sT0, 1)
    st.s_add_u32(sC, sC, sT0)
    st.s_and_b32(sJ, sT1, 15)
    st.s_lshr_b32(sHF, sJ, 3)
    st.s_and_b32(sCG, sJ, 7)
    st.s_and_b32(sM, sW, 3)
    st.s_mov_b32(sCNT, 1 << 18)
    st.s_mov_b32(sPAIR, 0)
    st.s_cmp_lt_u32(sJ, 6)
    st.s_cselect_b32(sT6, 1, 0)
    st.s_getreg_b32(sXC, "hwreg(HW_REG_XCC_ID, 0, 4)")
    for d in (WS, X_, OUT, WQ, WP, WO_, WG, WU, WD):
        st.s_mov_b32(s(int(d[2:d.index(":")]) + 3), 0x20000)
    for d, size in ((X_, 2048 * 1024), (WQ, 512 * 3072), (WS, WS_SIZE), (WP, 32 * 512), (WO_, 512 * 1024), (WG, 512 * 2752),
                    (WU, 512 * 2752), (WD, 1376 * 1024), (OUT, 2048 * 1024)):
        st.s_mov_b32(s(int(d[2:d.index(":")]) + 2), size)
    if oi("cfirst", 1):
        st.s_cmp_ge_u32(sW, 4); st.s_cbranch_scc1(".Lld0")
        compute(st)
        st.label(".Lld0"); st.mark("reset")
    else:
        st.s_cmp_lt_u32(sW, 4); st.s_cbranch_scc1(".Lcomp")

def rot(st, d, t):
    if not oi("rot", 0): st.s_mov_b32(d, 0); return
    st.s_and_b32(d, sJ, 1); st.s_and_b32(t, sC, 1); st.s_lshl_b32(t, t, 1); st.s_add_u32(d, d, t); st.s_lshl_b32(d, d, 1)
    st.s_lshr_b32(t, sJ, 1); st.s_add_u32(d, d, t)

def srds(st, lst):
    src = {X_: 44, WQ: 46, WP: 48, WO_: 50, WG: 54, WU: 56, WD: 58, OUT: 60, WS: 64}
    for d in lst:
        b = int(d[2:d.index(":")])
        st.s_mov_b32(s(b), s(src[d])); st.s_and_b32(s(b + 1), s(src[d] + 1), 0xffff)

def stamp_base(st):
    if OPT["stamps"]:
        st.s_lshl_b32(s(65), s(2), 3); st.s_add_u32(s(65), s(65), sW); st.s_lshl_b32(s(65), s(65), 9)
        st.s_add_u32(s(65), s(65), STAMP)

aK, aV, aQ, AF1, WPH, STT = 16, 32, 48, 64, 88, 96
NM, RS, VE, LR = v(112), v(113), v(114), v(115)
aCS, aA, aB, aR1, aR2 = v(116), v(117), v(118), v(119), v(120)

def kv_items():
    return [dict(chunk=k // 16, off=(k % 16) * 2048, t=t, acc=acc, b=XF + 4 * k, first=k == 0)
            for k in range(32) for t, acc in ((0, aK), (1, aV))]

CK, CV = aQ, STT
def k_addr(st):
    st.v_lshrrev_b32(vU, 5, vL); st.v_and_b32(vT, 1, vL); st.v_cmp_eq_u32("vcc", vT, vU)
    st.v_lshlrev_b32(aCS, 6, vU); st.v_add_u32(aCS, L_CS, aCS)
    st.v_lshlrev_b32(aR1, 7, vU); st.v_and_b32(vT, 12, vL); st.v_lshl_add_u32(aR1, vT, 3, aR1)
    st.v_and_b32(vT, 16, vL); st.v_add_u32(aR1, aR1, vT); st.v_and_b32(vT, 2, vL); st.v_lshl_add_u32(aR1, vT, 2, aR1)
    st.v_mov_b32(vT, 544); st.v_cndmask_b32(aR1, vT, aR1, "vcc"); st.v_add_u32(aR1, L_KVB, aR1)
    st.v_and_b32(vT, 31, vL); st.s_lshl_b32(sT0, sM, 5); st.v_add_u32(vT, sT0, vT)
    st.v_mul_u32_u24(aA, 144, vT); st.v_lshl_add_u32(aA, vU, 6, aA); st.v_add_u32(aA, L_PH, aA)
    st.v_mul_u32_u24(aB, 80, vT); st.v_lshl_add_u32(aB, vU, 5, aB); st.v_add_u32(aB, L_VB, aB)
def k_reads(st, which="wkv"):
    if "k" in which:
        for i in range(4): st.ds_read_b128(v(CK + 4 * i, 4), aCS, mods=f"offset:{16*i}")
    if "w" in which:
        for q in range(4): st.ds_read_b64_tr_b16(v(WPH + 2 * q, 2), aR1, mods=f"offset:{576*q}")
    if "v" in which:
        for i in range(4): st.ds_read_b128(v(CV + 4 * i, 4), aCS, mods=f"offset:{128+16*i}")

def fin_stats(st, S, Q, t0, t1, negmean, rstd, vare):
    if t0: st.v_mov_b32(t0, S)
    st.v_mov_b32(t1, Q)
    if t0: st.v_permlane32_swap_b32(S, t0)
    st.v_permlane32_swap_b32(Q, t1)
    if t0: st.v_add_f32(S, S, t0)
    st.v_add_f32(Q, Q, t1)
    st.v_mul_f32(negmean, f2u(-1.0 / 512), S)
    st.v_mul_f32(Q, f2u(1.0 / 512), Q)
    st.v_fma_f32(vare, "-" + negmean, negmean, Q)
    st.v_max_f32(vare, 0, vare)
    st.v_add_f32(vare, f2u(1e-5), vare)
    st.v_rsq_f32(rstd, vare)

def stats(st, stt, negmean, rstd, vare):
    S, Q = v(stt), v(stt + 1)
    for i in range(4): st.v_add_f32(v(stt + i), v(stt + i), v(stt + 4 + i))
    for i in range(4): st.v_add_f32(v(stt + 8 + i), v(stt + 8 + i), v(stt + 12 + i))
    for i in range(4): st.v_add_f32(v(stt + i), v(stt + i), v(stt + 8 + i))
    st.v_add_f32(S, S, v(stt + 2)); st.v_add_f32(Q, Q, v(stt + 3))
    fin_stats(st, S, Q, v(stt + 2), v(stt + 3), negmean, rstd, vare)

def p1a0(st):
    g0, g1, aW = v(118), v(119), v(120)
    aRd = [v(88 + i) for i in range(4)]
    QD, SA, SELA = 96, 112, 92
    st.v_lshrrev_b32(vT, 3, vL); st.v_and_b32(vV, 7, vL)
    st.v_lshlrev_b32(g0, 10, vT); st.v_lshl_add_u32(g0, vV, 4, g0)
    st.s_lshl_b32(sT0, sC, 2); st.s_add_u32(sT0, sT0, sM); st.s_lshl_b32(sT0, sT0, 15)
    GA = [v(48 + g) for g in range(4)]
    st.v_lshlrev_b32(g1, 5, vFL); st.s_lshl_b32(sT1, sJ, 11); st.s_add_u32(sT1, sT1, sT0)
    for g in range(4):
        st.v_add_u32(GA[g], sT0, g0)
        if g < 3: st.s_add_u32(sT0, sT0, 8192)
    if oi("tk0", 0):
        st.v_lshrrev_b32(vT, 5, vL); st.v_lshlrev_b32(vT, 8, vT); st.v_bfe_u32(vU, vL, 4, 1); st.v_add_u32(vT, vT, vU)
        st.v_mul_u32_u24(v(124), 3072, vT); st.v_lshl_add_u32(v(124), vFL, 5, v(124))
        st.s_and_b32(sT2, sC, 1); st.s_lshl_b32(sT2, sT2, 4); st.s_add_u32(sT2, sT2, sJ); st.s_lshl_b32(sT2, sT2, 2); st.s_add_u32(sT2, sT2, sM)
        st.s_mul_i32(sT2, sT2, 2 * 3072); st.s_add_u32(sT2, sT2, 1024)
    sR, sQO = s(41), s(83)
    rot(st, sR, sT0)
    def xl(p, st):
        st.s_add_u32(sQO, sR, p); st.s_and_b32(sQO, sQO, 7); st.s_lshl_b32(sQO, sQO, 7)
        if p == 0:
            st.wait(lgkm=0)
            srds(st, [X_])
            if OPT["stamps"]: st.s_memtime(s(0, 2))
            if oi("tx0", 1):
                i = Ins("buffer_load_dword", [v(126), g1, X_, sT1], "offen"); i.dst = set(); st.l.append(i)
            if oi("tk0", 0):
                srds(st, [WQ])
                i = Ins("buffer_load_dword", [v(125), v(124), WQ, sT2], "offen"); i.dst = set(); st.l.append(i)
        for g in range(4):
            st.buffer_load_dwordx4(v(XF + 16 * p + 4 * g, 4), GA[g], X_, sQO, mods="offen")
    n0 = oi("xn0", 2); n1 = oi("xn1", 4)
    for p in range(n0): xl(p, st)
    srds(st, [WS, OUT])
    stamp_base(st)
    stamp(st, 62, True)
    stamp(st, "start")
    stamp(st, "karg"); stamp(st, "xissued")
    st.buffer_load_dword(vNON, "off", WS, 0, mods=f"offset:{EPOCH} sc1")
    st.s_and_b32(sKH, sM, 1); st.s_lshr_b32(sTP, sM, 1); st.s_mov_b32(sRING, 0)
    st.v_and_b32(aA, 31, vL); st.v_lshlrev_b32(aA, 10, aA); st.v_lshrrev_b32(vT, 5, vL); st.v_lshl_add_u32(aA, vT, 4, aA)
    st.s_lshl_b32(sOUTO, sC, 17); st.s_lshl_b32(sT1, sHF, 16); st.s_add_u32(sOUTO, sOUTO, sT1)
    st.s_lshl_b32(sT1, sTP, 15); st.s_add_u32(sOUTO, sOUTO, sT1); st.s_lshl_b32(sT1, sCG, 7); st.s_add_u32(sOUTO, sOUTO, sT1)
    st.s_lshl_b32(sT1, sKH, 6); st.s_add_u32(sOUTO, sOUTO, sT1)
    st.s_mov_b32(sL2E, f2u(LOG2E)); st.s_mov_b32(sONE, 0x3f803f80)
    st.s_lshl_b32(sT0, sC, 2); st.s_add_u32(sT1, sT0, sM)
    st.s_lshl_b32(sXLD, sT1, 15); st.s_add_u32(sXLD, sXLD, XB)
    st.s_lshl_b32(sSTLD, sT1, 12); st.s_add_u32(sSTLD, sSTLD, ST)
    st.s_lshl_b32(sFA, sT1, 10); st.s_add_u32(sFA, sFA, FL)
    st.s_lshl_b32(sT2, sJ, 2); st.s_add_u32(sFJ, sFA, sT2)
    st.s_mul_i32(sHST, sT1, HB_TB); st.s_add_u32(sHST, sHST, HB)
    st.s_lshl_b32(sT2, sJ, 11); st.s_add_u32(sOST, sHST, sT2)
    st.s_mov_b32(s(60), 0); st.s_mov_b32(s(61), -1)
    st.s_lshl_b32(sT2, sJ, 10); st.s_add_u32(sHST, sHST, sT2)
    st.s_lshl_b32(sDUM, sT1, 11); st.s_add_u32(sDUM, sDUM, DUMMY)
    st.s_lshl_b32(sT1, sHF, 1); st.s_add_u32(sT1, sT1, sT0); st.s_add_u32(sT1, sT1, sTP)
    st.s_lshl_b32(sT3, sCG, 1); st.s_add_u32(sT3, sT3, sKH)
    st.s_lshl_b32(sXST, sT1, 15); st.s_lshl_b32(sT2, sT3, 11); st.s_add_u32(sXST, sXST, sT2); st.s_add_u32(sXST, sXST, XB)
    st.s_lshl_b32(sSTST, sT1, 12); st.s_lshl_b32(sT2, sCG, 9); st.s_add_u32(sSTST, sSTST, sT2)
    st.s_lshl_b32(sT2, sKH, 3); st.s_add_u32(sSTST, sSTST, sT2); st.s_add_u32(sSTST, sSTST, ST)
    st.s_lshl_b32(sFB, sT1, 10); st.s_add_u32(sFB, sFB, FL)
    st.s_lshl_b32(sT2, sT3, 2); st.s_add_u32(sFXST, sFB, sT2)
    st.s_lshl_b32(sT2, sKH, 10)
    st.s_mul_i32(sHLD, sT1, HB_TB); st.s_add_u32(sHLD, sHLD, sT2); st.s_add_u32(sHLD, sHLD, HB)
    st.s_mul_i32(sKVLD, sJ, KV_J); st.s_add_u32(sKVLD, sKVLD, KVP)
    st.s_mul_i32(sKVST, sC, KV_REC); st.s_add_u32(sKVST, sKVST, sKVLD)
    st.s_lshl_b32(sT1, sKH, 7); st.s_lshl_b32(sT2, sTP, 5); st.s_add_u32(sT1, sT1, sT2); st.s_add_u32(sKZ, sKVST, sT1); st.s_add_u32(sKZ, sKZ, 2048)
    st.s_lshl_b32(sT1, sKH, 10); st.s_lshl_b32(sT2, sTP, 6); st.s_add_u32(sT1, sT1, sT2); st.s_add_u32(sKVST, sKVST, sT1)
    st.s_lshl_b32(sT1, sM, 6); st.s_add_u32(sGZ, sKVLD, sT1); st.s_add_u32(sGZ, sGZ, 2048)
    st.s_lshl_b32(sT1, sM, 9); st.s_add_u32(sKVLD, sKVLD, sT1)
    st.s_lshl_b32(sFKVLD, sJ, 11); st.s_add_u32(sFKVLD, sFKVLD, FKV)
    st.s_lshl_b32(sT1, sC, 7); st.s_lshl_b32(sT2, sM, 2); st.s_add_u32(sFKVST, sT1, sT2); st.s_add_u32(sFKVST, sFKVST, sFKVLD)
    for i in range(4): st.v_mov_b32(v(96 + i), 0)
    st.v_and_b32(vT, 3, vL); st.v_mul_u32_u24(vT, 576, vT); st.v_add_u32(vT, L_KVB + 544, vT)
    st.ds_write_b128(vT, v(96, 4))
    st.v_and_b32(vT, 112, vL16); st.v_add_u32(vT, L_SIG, vT)
    st.ds_write_b128(vT, v(96, 4))
    st.v_bfe_u32(vT, vL, 4, 1); st.v_and_b32(vU, 1, vL); st.v_cmp_eq_u32("vcc", vT, vU)
    st.v_mov_b32(vV, sONE)
    for i in range(4): st.v_cndmask_b32(v(SELA + i), 0, vV, "vcc")
    st.s_lshl_b32(sT0, sM, 12); st.s_add_u32(sT0, sT0, L_PH)
    st.v_and_b32(vT, 48, vL); st.v_xor_b32(vT, vT, vL16); st.v_add_u32(aW, sT0, vT); st.v_xor_b32(g1, 64, aW)
    st.v_and_b32(vT, 31, vL); st.v_lshrrev_b32(vU, 5, vL); st.v_bfe_u32(vV, vL, 1, 3); st.v_xor_b32(vU, vU, vV)
    st.v_lshlrev_b32(vT, 7, vT); st.v_lshl_add_u32(vT, vU, 4, vT); st.v_add_u32(aRd[0], sT0, vT)
    for i in range(1, 4): st.v_xor_b32(aRd[i], 32 * i, aRd[0])
    lane_tr(st, vP0, None, "qkv"); ring_addr(st, "trq")
    def rnd(q, st):
        R = XF + 16 * q
        for g in range(4): st.ds_write_b128(g1 if g & 1 else aW, v(R + 4 * g, 4), mods=f"offset:{1024*g}")
        for i in range(4): st.ds_read_b128(v(R + 4 * i, 4), aRd[i])
    def smf(k, st):
        f = v(XF + 4 * k, 4)
        st.v_mfma_f32_32x32x16_bf16(v(QD, 16), f, f, "0" if k == 0 else v(QD, 16))
        st.v_mfma_f32_16x16x32_bf16(v(SA, 4), v(SELA, 4), f, "0" if k == 0 else v(SA, 4))
    def res(st):
        st.buffer_load_dwordx4(v(RES, 4), aA, X_, sOUTO, mods="offen")
        st.buffer_load_dwordx4(v(RES + 4, 4), aA, X_, sOUTO, mods="offen offset:32")
    hooks = {}
    hq = oi("hq", 8)
    for p in range(n0, n1): xl(p, st)
    nl = n1
    rnd(0, st)
    for q in range(hq):
        if nl < 8: xl(nl, st); nl += 1
        if q < 7: rnd(q + 1, st)
        for k in range(4 * q, 4 * q + 4): smf(k, st)
    while nl < 8: xl(nl, st); nl += 1
    acts = {}
    at = oi("rnd0", 2); gap = oi("rndgap", 8)
    for n, q in enumerate(range(hq, 8)):
        i0 = at + gap * n
        if q < 7: acts.setdefault(i0, []).append(lambda st, q=q: rnd(q + 1, st))
        for u in range(4): acts.setdefault(i0 + 1 + 2 * u, []).append(lambda st, k=4 * q + u: smf(k, st))
        assert i0 < 8 * (q + 1) - 2
    acts.setdefault(oi("res0", 40), []).append(res)
    for i, l in acts.items(): hooks[i] = lambda st, l=l: [f(st) for f in l]
    stamp(st, "p1pre")
    barrier(st, "a0", drain=True)
    stamp(st, "B(a0)")
    bars = {oi("a1", 20): ("a1", [1])}
    f = Stream()
    M = [s(50 + 2 * i, 2) for i in range(5)]
    for i, bit in enumerate((16, 8, 2, 1)):
        f.v_and_b32(vT, bit, vL); f.v_cmp_ne_u32(M[i], 0, vT)
    f.v_bfe_u32(vT, vL, 2, 1); f.v_lshrrev_b32(vU, 5, vL); f.v_cmp_eq_u32(M[4], vT, vU)
    f.v_cndmask_b32(v(SA), v(SA), v(SA + 1), M[0])
    for i in range(8): f.v_cndmask_b32(v(QD + i), v(QD + i), v(QD + 8 + i), M[0])
    for i in range(4): f.v_cndmask_b32(v(QD + i), v(QD + i), v(QD + 4 + i), M[1])
    for i in range(2): f.v_cndmask_b32(v(QD + i), v(QD + i), v(QD + 2 + i), M[2])
    f.v_cndmask_b32(v(QD), v(QD), v(QD + 1), M[3])
    f.v_cndmask_b32(v(QD), 0, v(QD), M[4])
    fin_stats(f, v(SA), v(QD), None, v(QD + 1), NM, RS, VE)
    f.v_mul_f32(LR, sL2E, RS)
    g = Stream(); k_addr(g)
    lane_tr(g, vP1, None, "nat")
    g.s_lshl_b32(sT2, sKH, 6); g.v_xor_b32(vP1, sT2, vP1); g.s_lshl_b32(sT2, sKH, 11); g.v_add_u32(vP1, sT2, vP1)
    fill = Filler()
    assert hq == 8
    r0 = oi("res0", 24)
    hooks = {2: lambda st: fill.add(f), r0: res, r0 + 1: lambda st: fill.add(g)}
    gemm(st, kv_items(), "trq", AF1, 6, 5, ready=[0], bars=bars, hooks=hooks, fill=fill, budget=oi("bud1", 8))
    fill.flush(st)
    st.v_add_u32(vNON, 1, vNON)
    st.v_mov_b32(v(125), 1); sigwait(st, 12, 32, cmp="gt")
    k_reads(st)
    st.v_readfirstlane_b32(sNONCE, vNON)
    signal(st, 2, 32)
    st.s_add_u32(sH5, sHST, 16384 * 5); st.s_add_u32(sF5, sDUM, 1024)
    st.s_cmp_eq_u32(sT6, 1); st.s_cselect_b32(sH5, sH5, sDUM); st.s_cselect_b32(sF5, sFJ, sF5)
    stamp(st, "KVgemm")

def frag_loads(base, regs, stride, per):
    out = []
    for k, r in enumerate(regs):
        def f(st, k=k, r=r):
            if k % per == 0: st.s_add_u32(sLD, base, k * stride)
            st.buffer_load_dwordx4(v(r, 4), vL16, WS, sLD, mods=f"offen offset:{(k % per) * stride} {SCL}")
        out.append(f)
    return out

def x_addr(st):
    st.v_lshrrev_b32(vV, 5, vL); st.v_lshlrev_b32(vV, 11, vV); st.v_and_b32(vU, 31, vL); st.v_lshl_add_u32(vV, vU, 4, vV)
def p1a_pre(st):
    ring_next(st, "trq"); x_addr(st)
def p3_pre(st):
    st.v_and_b32(vU, 31, vL); st.v_lshlrev_b32(aCS3, 2, vU); st.v_add_u32(aCS3, L_CS + 3 * 128, aCS3)
    ring_next(st, "b128"); x_addr(st)
    st.s_add_u32(sT0, sRING, 0x10000); st.s_and_b32(sT0, sT0, 0x1ffff); st.v_add_u32(vA1, sT0, vL16)
    st.s_lshl_b32(sT0, sM, 12); st.s_add_u32(sT0, sT0, L_PH); st.v_add_u32(aXW, sT0, vL16)
def x_loads(st, stt, at=32):
    L = frag_loads(sXLD, [XF + 4 * k for k in range(32)], 1024, 4)
    def stl(st):
        for i in range(4):
            st.buffer_load_dwordx4(v(stt + 4 * i, 4), vV, WS, sSTLD, mods=f"offen offset:{512*i} {SCL}")
    return L[:at] + [stl] + L[at:]

def featmap(st, acc, kb, wp, e1, e2, lr, mid=None):
    for i in range(8): st.v_cvt_pk_bf16_f32(v(kb + i), v(acc + 2 * i), v(acc + 2 * i + 1))
    st.v_mfma_f32_32x32x16_bf16(v(acc, 16), v(wp, 4), v(kb, 4), "0")
    st.v_mfma_f32_32x32x16_bf16(v(acc, 16), v(wp + 4, 4), v(kb + 4, 4), v(acc, 16))
    if mid: mid(st)
    mx, mn = v(kb), v(kb + 1)
    p = lambda i: v(acc + i)
    st.v_max3_f32(mx, p(0), p(1), p(2)); st.v_min3_f32(mn, p(0), p(1), p(2))
    for i in range(3, 15, 2):
        st.v_max3_f32(mx, mx, p(i), p(i + 1)); st.v_min3_f32(mn, mn, p(i), p(i + 1))
    st.v_max_f32(mx, mx, p(15)); st.v_min_f32(mn, mn, p(15))
    pk(st, "mul", kb, bc(lr), kb)
    for i in range(0, 16, 2):
        pk(st, "fma", e1 + i, acc + i, bc(lr), bc(kb, True)); pk(st, "fma", e2 + i, ng(acc + i), bc(lr), bc(kb + 1))
    for i in range(16):
        st.v_exp_f32(v(e1 + i), v(e1 + i)); st.v_exp_f32(v(e2 + i), v(e2 + i))
    s1, s2 = kb + 2, kb + 4
    pk(st, "add", s1, e1, e1 + 2); pk(st, "add", s2, e2, e2 + 2)
    for i in range(4, 16, 2):
        pk(st, "add", s1, s1, e1 + i); pk(st, "add", s2, s2, e2 + i)
    st.v_add_f32(v(s1), v(s1), v(s1 + 1)); st.v_add_f32(v(s2), v(s2), v(s2 + 1))
    st.v_rcp_f32(v(s1), v(s1)); st.v_rcp_f32(v(s2), v(s2))
    for i in range(0, 16, 2):
        pk(st, "mul", e1 + i, bc(s1), e1 + i); pk(st, "mul", e2 + i, bc(s2), e2 + i)
    for i in range(8):
        st.v_cvt_pk_bf16_f32(v(e1 + i), v(e1 + 2 * i), v(e1 + 2 * i + 1))
        st.v_cvt_pk_bf16_f32(v(e2 + i), v(e2 + 2 * i), v(e2 + 2 * i + 1))

def p1a(st):
    at = oi("st1", 22)
    L = x_loads(st, STT, at)
    stamp(st, "p1pre")
    poll(st, vFL, sFA)
    stamp(st, "FXpoll")
    pre = oi("pre1", 10)
    for f in L[:pre]: f(st)
    nxt(st)
    barrier(st, "a0")
    stamp(st, "B(a0)")
    fill = Filler()
    f = Stream(); stats(f, STT, NM, RS, VE); f.v_mul_f32(LR, sL2E, RS); k_reads(f, "v")
    g = Stream(); k_addr(g); k_reads(g, "wk")
    hooks = {2: lambda st: fill.add(g), oi("sth1", 2 * at + 2): lambda st: fill.add(f)}
    gemm(st, kv_items(), "trq", AF1, 6, 5, ready=[0], bars={oi("a1", 20): ("a1", [1]), oi("a2", 56): ("a2", [])}, loads=L[pre:], pre=0,
         hooks=hooks, fill=fill, budget=oi("bud1", 8))
    fill.flush(st)
    stamp(st, "KVgemm")

def p1b(st):
    AF = AF1
    for i in range(0, 16, 2): pk(st, "fma", aK + i, CK + i, bc(NM), aK + i)
    def vpart(st):
        for i in range(0, 16, 2): pk(st, "fma", aV + i, CV + i, bc(NM), aV + i)
        for i in range(0, 16, 2): pk(st, "mul", aV + i, bc(RS), aV + i)
        for i in range(8): st.v_cvt_pk_bf16_f32(v(aV + i), v(aV + 2 * i), v(aV + 2 * i + 1))
        st.ds_write_b128(aB, v(aV, 4)); st.ds_write_b128(aB, v(aV + 4, 4), mods="offset:16")
    featmap(st, aK, AF, WPH, STT, aQ, LR, mid=vpart)
    st.ds_write_b128(aA, v(STT, 4)); st.ds_write_b128(aA, v(STT + 4, 4), mods="offset:16")
    st.ds_write_b128(aA, v(aQ, 4), mods="offset:32"); st.ds_write_b128(aA, v(aQ + 4, 4), mods="offset:48")
    signal(st)
    TA, TB, ONE, AKV, AZ = 16, 32, 96, 100, 104
    def shadow(st):
        st.v_lshrrev_b32(vT, 4, vL); st.v_lshlrev_b32(vT, 3, vT); st.v_bfe_u32(vU, vL, 2, 2); st.v_add_u32(vT, vT, vU)
        st.v_and_b32(vU, 3, vL); st.v_lshlrev_b32(vU, 3, vU)
        st.s_lshl_b32(sT0, sM, 5); st.s_add_u32(sT0, sT0, L_PH)
        st.v_mul_u32_u24(aR1, 144, vT); st.v_add3_u32(aR1, aR1, vU, sT0)
        st.s_lshl_b32(sT0, sTP, 5); st.s_add_u32(sT0, sT0, L_VB)
        st.v_mul_u32_u24(aR2, 80, vT); st.v_add3_u32(aR2, aR2, vU, sT0)
        ring_next(st, "trq")
    sigwait(st, extra=shadow)
    stamp(st, "Kepi+B")
    for k in range(4):
        for q in range(2):
            st.ds_read_b64_tr_b16(v(TA + 4 * k + 2 * q, 2), aR1, mods=f"offset:{(32*k+4*q)*144}")
            st.ds_read_b64_tr_b16(v(TB + 4 * k + 2 * q, 2), aR2, mods=f"offset:{(32*k+4*q)*80}")
    for i in range(4): st.v_mov_b32(v(ONE + i), sONE)
    st.v_lshrrev_b32(vT, 5, vL); st.v_lshlrev_b32(vV, 9, vT); st.v_bfe_u32(vU, vL, 4, 1); st.v_lshl_add_u32(vV, vU, 3, vV)
    st.v_lshlrev_b32(vT, 6, vT); st.v_lshl_add_u32(vT, vU, 4, vT)
    st.v_bfe_u32(vU, vL, 2, 2); st.v_lshl_add_u32(vV, vU, 7, vV); st.v_and_b32(vU, 3, vL); st.v_lshl_add_u32(vV, vU, 4, vV)
    for k in range(4):
        st.v_mfma_f32_16x16x32_bf16(v(AKV, 4), v(TA + 4 * k, 4), v(TB + 4 * k, 4), "0" if k == 0 else v(AKV, 4))
        st.v_mfma_f32_16x16x32_bf16(v(AZ, 4), v(TA + 4 * k, 4), v(ONE, 4), "0" if k == 0 else v(AZ, 4))
    st.v_cvt_pk_bf16_f32(v(AKV), v(AKV), v(AKV + 1)); st.v_cvt_pk_bf16_f32(v(AKV + 1), v(AKV + 2), v(AKV + 3))
    st.buffer_store_dwordx2(v(AKV, 2), vV, WS, sKVST, mods="offen sc1")
    st.buffer_store_dwordx4(v(AZ, 4), vT, WS, sKZ, mods="offen sc1", tset="kv")
    stamp(st, "kv st")
    items = []
    for k in range(16):
        for t in range(2):
            items.append(dict(chunk=0, off=k * 2048, t=t, acc=aQ, b=XF + 4 * (k + 16 * t), first=(k, t) == (0, 0)))
    def kvflag(st): st.buffer_store_dword(vNON, "off", WS, sFKVST, mods="sc1", tneed="kv")
    CS = 16
    aPL, aGZ, aGK = aR1, aR2, aB
    f = Stream()
    for i in range(4): f.ds_read_b128(v(CS + 4 * i, 4), aCS, mods=f"offset:{256+16*i}")
    f.v_lshrrev_b32(aPL, 2, vL); f.v_lshlrev_b32(aPL, 7, aPL); f.v_and_b32(vU, 3, vL); f.v_lshl_add_u32(aPL, vU, 2, aPL)
    f.v_lshrrev_b32(aGZ, 4, vL); f.v_mul_u32_u24(aGZ, KV_REC, aGZ); f.v_add_u32(aGZ, aGZ, vFL)
    f.v_lshrrev_b32(aGK, 5, vL); f.v_mul_u32_u24(aGK, KV_REC - 512, aGK); f.v_add_u32(aGK, aGK, vL16)
    fill = Filler()
    gemm(st, items, "trq", AF, 6, 5, ready=[0], hooks={4: lambda st: fill.add(f), oi("kvflag", 24): kvflag}, fill=fill, budget=8)
    fill.flush(st)
    stamp(st, "Qgemm")
    for i in range(0, 16, 2): pk(st, "fma", aQ + i, CS + i, bc(NM), aQ + i)
    featmap(st, aQ, AF, WPH, aK, aV, LR)
    stamp(st, "Q done")
    poll(st, aPL, sFKVLD)
    stamp(st, "FKVpoll")
    Gr, Z, SG, GA = XF, XF + 64, XF + 32, XF + 48
    XT = v(XF + 72)
    nt = " nt" if OPT.get("kvnt") else ""
    for cc in range(8):
        if cc: st.s_add_u32(sT0, sKVLD, 2 * cc * KV_REC)
        st.buffer_load_dwordx4(v(Gr + 4 * cc, 4), aGK, WS, sT0 if cc else sKVLD, mods="offen sc1" + nt)
    for i in range(4):
        if i: st.s_add_u32(sT1, sGZ, 4 * i * KV_REC)
        st.buffer_load_dword(v(Z + i), aGZ, WS, sT1 if i else sGZ, mods="offen sc1" + nt)
    if G.TAG == "f":
        st.s_lshl_b32(sT2, sC, 7); st.s_add_u32(sT2, sT2, XCCT)
        st.buffer_load_dword(XT, vFL, WS, sT2, mods="offen sc1")
    nxt(st)
    st.s_mul_i32(sT0, sM, 576); st.s_add_u32(sT0, sT0, L_KVB)
    st.v_and_b32(vT, 31, vL)
    st.v_and_b32(vU, 1, vL); st.v_lshlrev_b32(vU, 4, vU); st.v_mov_b32(vV, 0x3f80); st.v_lshlrev_b32(vU, vU, vV); st.v_lshrrev_b32(vV, 1, vT)
    for i in range(4):
        st.v_cmp_eq_u32("vcc", i, vV); st.v_cndmask_b32(v(SG + i), 0, vU, "vcc")
    st.v_lshlrev_b32(vT, 4, vT)
    st.v_lshrrev_b32(vU, 5, vL)
    st.v_lshl_add_u32(aA, vU, 3, vT); st.v_add_u32(aA, sT0, aA)
    st.v_lshrrev_b32(aB, 1, vFL); st.v_add_u32(aB, sT0, aB)
    st.v_bfe_u32(vV, vL, 2, 1); st.v_cmp_eq_u32("vcc", vV, vU)
    st.v_mov_b32(vV, 544); st.v_cndmask_b32(vT, vV, vT, "vcc"); st.v_add_u32(aR1, L_KVB, vT)
    st.v_lshlrev_b32(vU, 4, vU); st.v_add_u32(aR2, L_KVB + 512, vU)
    for cc in range(8):
        st.v_mfma_f32_32x32x16_bf16(v(GA, 16), v(SG, 4), v(Gr + 4 * cc, 4), "0" if cc == 0 else v(GA, 16))
    st.v_add_f32(v(Z), v(Z), v(Z + 1)); st.v_add_f32(v(Z + 2), v(Z + 2), v(Z + 3)); st.v_add_f32(v(Z), v(Z), v(Z + 2))
    st.v_mov_b32(v(Z + 1), v(Z)); st.v_permlane32_swap_b32(v(Z), v(Z + 1)); st.v_add_f32(v(Z), v(Z), v(Z + 1))
    st.v_mov_b32(v(Z + 1), v(Z)); st.v_permlane16_swap_b32(v(Z), v(Z + 1)); st.v_add_f32(v(Z), v(Z), v(Z + 1))
    st.v_cvt_pk_bf16_f32(v(Z), v(Z), v(Z))
    st.ds_write_b16(aB, v(Z), mods="offset:512")
    st.v_cvt_pk_bf16_f32(v(GA), v(GA), v(GA + 1)); st.v_cvt_pk_bf16_f32(v(GA + 1), v(GA + 2), v(GA + 3))
    st.ds_write_b64(aA, v(GA, 2))
    if G.TAG == "f":
        OK = newlab("xok"); L = newlab("xpoll"); D = newlab("xdec")
        st.s_cmp_lg_u32(sPAIR, 0)
        st.mark("save", OK)
        st.s_cbranch_scc1(OK)
        st.s_add_u32(sT0, sNONCE, 14); st.s_add_u32(sT1, sT0, sXC)
        st.v_cmp_ne_u32("vcc", sT1, XT)
        if not OPT.get("slow"): st.s_cbranch_vccz(OK)
        st.label(L)
        st.buffer_load_dword(XT, vFL, WS, sT2, mods="offen sc1")
        st.wait(vm=0)
        st.v_subrev_u32(vT, sT0, XT)
        st.v_cmp_le_u32("vcc", 16, vT)
        st.s_cbranch_vccz(D)
        st.s_sub_u32(sCNT, sCNT, 1)
        st.s_cbranch_scc0(L)
        st.s_mov_b32(sCNT, 0)
        st.label(D)
        st.v_cmp_ne_u32("vcc", sT1, XT)
        st.mark("save", "toslow")
        if OPT.get("slow"): st.s_branch(".Lg_s")
        else: st.s_cbranch_vccnz(".Lg_s")
        st.mark("merge", OK)
        st.label(OK)
    else:
        st.mark("merge", "toslow")
        st.label(".Lg_s")
    barrier(st, "g", drain=True)
    stamp(st, "gather+B")

def p1c(st):
    PHQ = [aK, aK + 4, aV, aV + 4]
    KA, ZA, NUM, DEN = XF, XF + 16, 48, v(64)
    for u in range(4): st.ds_read_b128(v(KA + 4 * u, 4), aR1, mods=f"offset:{576*u}")
    for u in range(4): st.ds_read_b128(v(ZA + 4 * u, 4), aR2, mods=f"offset:{576*u}")
    st.v_mov_b32(DEN, f2u(1e-6)); st.v_mov_b32(v(65), 0)
    st.v_lshrrev_b32(vU, 5, vL); st.v_lshl_add_u32(aA, vU, 9, vL16)
    for u in range(4):
        st.v_mfma_f32_32x32x16_bf16(v(NUM, 16), v(KA + 4 * u, 4), v(PHQ[u], 4), "0" if u == 0 else v(NUM, 16))
        for i in range(4):
            dd = DEN if i % 2 == 0 else v(65)
            st.v_dot2_f32_bf16(dd, v(PHQ[u] + i), v(ZA + 4 * u + i), dd)
    st.v_add_f32(DEN, DEN, v(65))
    st.v_rcp_f32(DEN, DEN)
    for i in range(0, 16, 2): pk(st, "mul", NUM + i, bc(DEN), NUM + i)
    for i in range(8): st.v_cvt_pk_bf16_f32(v(NUM + i), v(NUM + 2 * i), v(NUM + 2 * i + 1))
    st.buffer_store_dwordx4(v(NUM, 4), aA, WS, sOST, mods=f"offen {G.SC}")
    st.buffer_store_dwordx4(v(NUM + 4, 4), aA, WS, sOST, mods=f"offen offset:512 {G.SC}", tset="o")
    ring_next(st, "trn")
    res_init(st, 16)
    st.s_lshl_b32(sT0, sM, 12); st.s_add_u32(sT0, sT0, L_PH); st.v_add_u32(aXW, sT0, vL16)
    st.buffer_store_dword(vNON, "off", WS, sFJ, mods=f"offset:128 {G.SC}", tneed="o")
    for r in (sKVST, sKVLD, sKZ, sGZ): st.s_add_u32(r, r, KV_P)
    st.s_add_u32(sFKVST, sFKVST, 256 * 128); st.s_add_u32(sFKVLD, sFKVLD, 256 * 128)

def small_items(nsteps, breg, accs=(16, 32)):
    items = []
    for k in range(nsteps):
        for t in ((1, 0) if k == nsteps - 1 else (0, 1)):
            items.append(dict(chunk=k // 8, off=(k % 8) * 4096, t=t, acc=accs[t], b=breg(k), first=k == 0 and t == 1))
    return items
def res_init(st, a):
    for i in range(8):
        st.v_lshlrev_b32(v(a + 2 * i), 16, v(RES + i)); st.v_and_b32(v(a + 2 * i + 1), 0xffff0000, v(RES + i))

def xepi(st, last):
    aB_, T, P = (96, 48, 16) if last else (32, 16, 48)
    aX = aXW
    for i in range(4): st.ds_write_b128(aX, v(aB_ + 4 * i, 4), mods=f"offset:{1024*i}")
    st.v_xor_b32(aX, 4096, aX)
    barrier(st, "X4" if last else "X2", drain=True)
    for i in range(4): st.ds_read_b128(v(P + 4 * i, 4), aX, mods=f"offset:{1024*i}")
    st.v_and_b32(aX, 31, vL); st.v_lshlrev_b32(aX, 4, aX); st.v_lshrrev_b32(vT, 5, vL); st.v_lshl_add_u32(aX, vT, 2, aX)
    for i in range(4):
        for k in (4 * i, 4 * i + 2): pk(st, "add", T + k, T + k, P + k)
        for k in (2 * i, 2 * i + 1): st.v_cvt_pk_bf16_f32(v(RES + k), v(T + 2 * k), v(T + 2 * k + 1))
    LF = newlab("fin")
    if last:
        st.mark("save", LF)
        st.s_cmp_eq_u32(sPAIR, 1); st.s_cbranch_scc1(LF)
    st.buffer_store_dwordx4(v(RES, 4), vL16, WS, sXST, mods=f"offen {G.SC}")
    st.buffer_store_dwordx4(v(RES + 4, 4), vL16, WS, sXST, mods=f"offen offset:1024 {G.SC}")
    S, Q, S2, Q2 = v(T), v(T + 1), v(T + 2), v(T + 3)
    st.v_dot2_f32_bf16(S, v(RES), sONE, 0); st.v_dot2_f32_bf16(Q, v(RES), v(RES), 0)
    st.v_dot2_f32_bf16(S2, v(RES + 1), sONE, 0); st.v_dot2_f32_bf16(Q2, v(RES + 1), v(RES + 1), 0)
    for i in range(2, 8, 2):
        st.v_dot2_f32_bf16(S, v(RES + i), sONE, S); st.v_dot2_f32_bf16(Q, v(RES + i), v(RES + i), Q)
        st.v_dot2_f32_bf16(S2, v(RES + i + 1), sONE, S2); st.v_dot2_f32_bf16(Q2, v(RES + i + 1), v(RES + i + 1), Q2)
    pk(st, "add", T, T, T + 2)
    st.v_permlane32_swap_b32(S, Q); st.v_add_f32(S, S, Q)
    st.buffer_store_dword(S, aX, WS, sSTST, mods=f"offen {G.SC}", tset="x")
    (p1a_pre if last else p3_pre)(st)
    st.buffer_store_dword(vNON, "off", WS, sFXST, mods=G.SC, tneed="x")
    if last:
        st.s_mov_b32(sPAIR, 1)
        st.s_branch(f".Lpair_{G.TAG}")
        st.label(LF); st.mark("restore", LF)
        st.v_and_b32(aX, 31, vL); st.v_lshlrev_b32(aX, 10, aX); st.v_lshrrev_b32(vT, 5, vL); st.v_lshl_add_u32(aX, vT, 4, aX)
        st.buffer_store_dwordx4(v(RES, 4), aX, OUT, sOUTO, mods="offen")
        st.buffer_store_dwordx4(v(RES + 4, 4), aX, OUT, sOUTO, mods="offen offset:32")

def p2(st):
    stamp(st, "o stored")
    poll(st, vFL, sFB, 128)
    stamp(st, "FOpoll")
    L = frag_loads(sHLD, [XF + 4 * k for k in range(16)], 2048, 2)
    gemm(st, small_items(16, lambda k: XF + 4 * k), "trn", 48, 6, 5, ready=[0, 1], loads=L, pre=oi("pre2", 10), hooks={1: nxt})
    stamp(st, "P2gemm")
    xepi(st, False)

def stream(st, items, af, nslots, depth, hooks, fill, budget, watch=None):
    n = len(items); nr = 0
    def pump(upto):
        nonlocal nr
        while nr < n and nr <= upto:
            items[nr]["rd"](st, af + 4 * (nr % nslots)); nr += 1
    pump(depth - 1)
    for i in range(n):
        it = items[i]
        acc = v(it["acc"], 16)
        st.v_mfma_f32_32x32x16_bf16(acc, v(af + 4 * (i % nslots), 4), v(it["b"], 4), "0" if it["first"] else acc)
        n0 = len(st.l)
        for h in hooks.get(i, []): h(st)
        pump(i + depth)
        fill.take(st, budget(i))
        if watch: watch(i, st.l[n0:])
    assert not fill.q

C1 = -2.0 * math.sqrt(2.0 / math.pi) * LOG2E
def p34(st):
    A = [16, 32, 48, 96]; AF = 64; NMP = 88; DEPTH = 5
    K1, K3, VE3, NM3 = v(92), v(93), v(94), v(95)
    at = oi("st3", 20)
    L = x_loads(st, STT, at)
    stamp(st, "x stored")
    poll(st, vFL, sFA)
    stamp(st, "FXpoll2")
    pre = oi("pre3", 10)
    for f in L[:pre]: f(st)
    nxt(st)
    barrier(st, "30")
    stamp(st, "B(30)")
    items = []; hooks = {}
    def hk(i, f): hooks.setdefault(i, []).append(f)
    def wide(a, off, step=0):
        def rd(st, r):
            if step:
                st.s_add_u32(sRING, sRING, 0x8000 * step); st.s_and_b32(sRING, sRING, 0x1ffff); st.v_add_u32(vA0, sRING, vL16)
            st.ds_read_b128(v(r, 4), a, mods=f"offset:{off}")
        return rd
    def mean(r):
        return dict(rd=lambda st, q: st.ds_read_b32(v(q), aCS3, mods=f"offset:{128*r}"), acc=A[r % 4], b=NMP, first=False)
    n2 = oi("n2", 10); k2 = 0; end = {}; use = {}
    def t2(k): return dict(rd=wide(vA1, k * 1024), acc=A[2], b=XF + 4 * k, first=k == 0)
    for k in range(32):
        use[k] = len(items)
        for t in range(2):
            items.append(dict(rd=wide(vA0, t * 16384 + (k % 16) * 1024, int(k == 16 and t == 0)), acc=A[t], b=XF + 4 * k, first=k == 0))
        if k == 15: g5 = len(items) - 1
        if (k + 1) * n2 // 32 > k2: items.append(t2(k2)); k2 += 1
    items += [mean(0), mean(1)]; end[0] = len(items) - 2; end[1] = len(items) - 1
    items += [t2(k) for k in range(k2, 32)] + [mean(2)]; end[2] = len(items) - 1
    for r in range(3, 6):
        items += [dict(rd=wide(vA0, k * 1024, (2 if r == 3 else 1) if k == 0 else 0), acc=A[r % 4], b=XF + 4 * k, first=k == 0) for k in range(32)]
        items.append(mean(r)); end[r] = len(items) - 1
    T5 = end[4] + 1; P4 = len(items)
    HI = [16 + 4 * i for i in range(4)] + [116, 88] + [XF + 4 * i for i in range(2)] + [32 + 4 * i for i in range(3)]
    breg = lambda k: XF + 4 * k if k < 32 else HI[k - 32]
    for n, it in enumerate(small_items(43, breg, (48, 96))):
        def rd(st, r, it=it, n=n):
            if n % 16 == 0: ring_next(st, "trn")
            a = vA1 if it["t"] else vA0
            st.ds_read_b64_tr_b16(v(r, 2), a, mods=f"offset:{it['off']}")
            st.ds_read_b64_tr_b16(v(r + 2, 2), a, mods=f"offset:{it['off']+512}")
        items.append(dict(rd=rd, acc=it["acc"], b=it["b"], first=it["first"]))
    for n, f in enumerate(L[pre:]): hk(2 * n + 1, f)
    fill = Filler()
    f = Stream()
    stats(f, STT, NM3, K1, VE3)
    f.v_and_b32(vU, 0xffff0000, NM3); f.v_sub_f32(NM3, NM3, vU); f.v_cndmask_b32(vU, vU, NM3, sHALF)
    f.v_cvt_pk_bf16_f32(v(NMP), vU, vU)
    f.v_mul_f32(K3, K1, K1); f.v_mul_f32(K1, f2u(C1), K1); f.v_mul_f32(K3, f2u(0.044715), K3); f.v_mul_f32(K3, K3, K1)
    z = Stream()
    for i in range(1, 4): z.v_mov_b32(v(NMP + i), 0)
    z.v_min_u32(aP4, 20, vFL)
    hk(2, lambda st: fill.add(z))
    hk(use[min(31, at + oi("sth3", 2))], lambda st: fill.add(f))
    hk(end[0] - 2, lambda st: fill.flush(st))
    TM = 112
    def epi(r):
        f = Stream(); a = A[r % 4]
        g = lambda i: v(a + i)
        u = lambda i: v(a + 8 + i)
        tm = lambda i: v(TM + i % 4)
        for t in range(16):
            ok = lambda d: 0 <= t - d < 8
            if ok(3): f.v_exp_f32(g(t - 3), g(t - 3))
            if ok(0): f.v_mul_f32(tm(t), g(t), g(t))
            if ok(1): f.v_fma_f32(tm(t - 1), tm(t - 1), K3, K1)
            if ok(0): f.v_mul_f32(u(t), g(t), u(t))
            if ok(5): f.v_rcp_f32(g(t - 5), g(t - 5))
            if ok(2): f.v_mul_f32(g(t - 2), tm(t - 2), g(t - 2))
            if ok(4): f.v_fma_f32(g(t - 4), g(t - 4), VE3, VE3)
            if ok(6): f.v_mul_f32(g(t - 6), g(t - 6), u(t - 6))
            if ok(7) and t % 2 == 0: f.v_cvt_pk_bf16_f32(u((t - 8) // 2), g(t - 8), g(t - 7))
            if t == 12 and r < 5: f.s_add_u32(sHS, sHST, 16384 * r)
        f.buffer_store_dwordx4(v(a + 8, 4), vL16, WS, sHS if r < 5 else sH5, mods=f"offen {G.SC}", tset=f"h{r}")
        return f
    def flag(r):
        f = Stream()
        f.buffer_store_dword(vNON, "off", WS, sFJ if r < 5 else sF5, mods=f"offset:{256+64*r} {G.SC}", tneed=f"h{r}")
        return f
    e = [epi(r) for r in range(6)]
    ri = Stream(); res_init(ri, 48)
    lag = oi("lag", 4)
    for r in range(6):
        parts = [e[r]] + ([ri] if r == 3 else [])
        hk(end[max(r, 1)] + lag, lambda st, parts=parts: [fill.add(p) for p in parts])
        hk(end[r], lambda st, r=r: stamp(st, f"t{r}"))
    hk(end[3], lambda st: fill.drain_until(st, e[0])); hk(end[4], lambda st: fill.drain_until(st, e[1]))
    hk(end[5] - 1, lambda st: fill.drain_until(st, ri))
    fd = [int(x) for x in os_("fd", "38,20,20,18,16,12").split(",")]; fpos = {}
    def watch(i, l):
        for r in range(6):
            if any(("t", f"h{r}") in x.dst for x in l): fpos[r] = i + fd[r]; hk(i + fd[r], lambda st, r=r: (stamp(st, f"f{r}a"), st.extend(flag(r)), stamp(st, f"f{r}b")))
    b3, b4 = oi("bud3", 16), oi("bud4", 16)
    def bud(i):
        b = oi("bud0", 12) if i < end[1] else b3 if i < P4 - DEPTH else b4
        if b % 4: b += 2 if i % 2 else -2
        return b - (4 if i in hooks and oi("budh", 1) else 0)
    o = oi("b4", 10)
    for i, name in ((g5 + oi("c1d", 4), "3a"), (end[1], "3b"), (end[2], "3c"), (end[3], "3d"), (end[4], "3f"), (end[5], "3g"),
                    (P4 + o, "4a"), (P4 + 16 + o, "4b"), (P4 + 32 + o, "4c"), (P4 + 48 + o, "4d"), (P4 + 64 + o, "4e")):
        hk(i, lambda st, name=name: (stamp(st, f"{name}a"), barrier(st, name), stamp(st, f"{name}b")))
    for i in (16, 32, 48, 64): hk(P4 + i, lambda st, i=i: stamp(st, f"q{i}"))
    HL = frag_loads(sHLD, [breg(k) for k in range(43)], 2048, 2)
    if OPT.get("noH"): HL = [lambda st: None] * 43
    ne = oi("early4", 12)
    ck = [T5 + oi("chkA", 10), P4 + oi("chk2", 0), P4 + oi("chk3", 16), P4 + oi("chk4", 42), P4 + oi("chk5", 65)]
    sl = oi("sl", 12); ev = float(OPT.get("ev4", 2)); pos = []
    for k in range(43):
        g = max(0, k // 8 - 1)
        p = ck[0] + 1 + k * float(OPT.get("ev3", 2)) if k < ne else pos[-1] + ev
        pos.append(max(p, ck[g]) if k < 40 else ck[4])
    pos = [int(p) for p in pos]
    hk(ck[0] - sl - 1, lambda st: (st.v_and_b32(vV, 31, vL), st.v_lshlrev_b32(vV, 2, vV)))
    for g, (addr, off) in enumerate(((vV, 256), (vFL, 384), (vFL, 448), (vFL, 512), (aP4, 576))):
        assert g == 0 or ck[g] - sl > ck[g - 1]
        if OPT.get("nochk"): continue
        hk(ck[g] - sl, lambda st, addr=addr, off=off: st.buffer_load_dword(vS4, addr, WS, sFB, mods=f"offen offset:{off} sc1"))
        hk(ck[g], lambda st, addr=addr, off=off, g=g: (stamp(st, f"k{g}a"), soft_check(st, vS4, addr, sFB, off), stamp(st, f"k{g}b")))
    def last(st):
        assert 5 in fpos and fpos[5] < ck[4]
        nxt(st)
    hk(ck[4], last)
    for k in range(43):
        assert pos[k] < P4 + 2 * k and (k >= 32 or pos[k] >= T5 + k), (k, pos[k])
        hk(pos[k], HL[k])
    hk(pos[32] - 1, lambda st: fill.drain_until(st, e[4]))
    stream(st, items, AF, 6, DEPTH, hooks, fill, bud, watch)
    if G.TAG == "f": print("T3", end[2] + 1, "T4", end[3] + 1, "T5", T5, "P4", P4, "flags", fpos, "checks", ck, "loads", pos, file=sys.stderr)
    stamp(st, "P4gemm")
    xepi(st, True)

def body(st, first):
    stop = OPT["stop"]
    T = G.TAG
    st.label(f".Lpair_{T}"); st.mark("reset")
    G.SEQ = SEQA; p1a(st)
    G.SEQ = SEQC
    if first:
        st.mark("merge", "from0"); st.label(".Lk_f")
    p1b(st); p1c(st)
    if stop == "p1": st.s_branch(".Lend"); return
    p2(st)
    if stop == "p2": st.s_branch(".Lend"); return
    p34(st)
    stamp(st, "end")
    stamp(st, 63, True)
    if OPT.get("dbg"):
        st.s_load_dwordx2(s(44, 2), s(0, 2), 72); st.s_memrealtime(s(100, 2)); st.wait(lgkm=0)
        st.s_and_b32(s(45), s(45), 0xffff); st.s_mov_b32(s(46), 256); st.s_mov_b32(s(47), 0x20000)
        st.s_not_b32(s(42), s(42)); st.v_mov_b32(vT, s(42)); st.v_mov_b32(vU, s(100)); st.s_not_b32(s(100), s(100)); st.v_mov_b32(vV, s(100))
        st.raw("    buffer_atomic_umax v13, off, s[44:47], 0")
        st.raw("    buffer_atomic_umax v14, off, s[44:47], 0 offset:4")
        st.raw("    buffer_atomic_umax v15, off, s[44:47], 0 offset:8")
        st.s_not_b32(s(42), s(42)); st.v_mov_b32(vT, s(42))
        st.raw("    s_nop 4")
        st.raw("    buffer_atomic_umax v13, off, s[44:47], 0 offset:12")
    st.s_or_b32(sT0, s(2), sW); st.s_cmp_lg_u32(sT0, 0); st.s_cbranch_scc1(".Lend")
    st.v_add_u32(vNON, 22, vNON)
    st.buffer_store_dword(vNON, "off", WS, 0, mods=f"offset:{EPOCH} sc1")
    st.s_branch(".Lend")

SEQ0, SEQA, SEQC = [], [], []
def compute(st):
    G.SEQ = SEQ0
    p1a0(st)
    st.mark("save", "from0")
    st.s_branch(".Lk_f")
    G.SC, G.TAG = "", "f"
    body(st, True)

def compute_slow(st):
    G.SC, G.TAG, G.REC = "sc1", "s", False
    body(st, False)

sW8, sQK, sWOb, sGU, sWD5, sWI = s(74), s(75), s(76), s(77), s(78), s(79)
sWDb = [s(80 + i) for i in range(4)]
GU = 64
vKV, vQ, vW, vWR0, vWR1 = v(2), v(4), v(5), v(6), v(7)
vGG = [v(8), v(9), v(10)]; vGL = [v(16), v(17), v(18)]; vGT = v(19)
vC0, vC1, vCW, vCR = v(20), v(21), v(22), v(23)
SEL = 24; CACC = 28
FRS = [36, 40, 44, 48, 52]; WRAW = 56
vDUM = [v(11), v(60), v(61), v(62)]
GSTR = 448

def LDSW(st):
    for i in reversed(st.l):
        if i.name == "s_barrier" or (i.name == "s_waitcnt" and "lgkmcnt(0)" in i.ops[0]): return False
        if i.kind == "ds": return True
    return False

def POL(srd):
    k = {WQ: "pq", WO_: "po", WD: "pd", WG: "pg", WU: "pg"}.get(srd)
    x = os_(k, "") if k else ""
    return " " + x.replace("+", " ") if x else ""

def loader(st):
    st.v_lshrrev_b32(vT, 3, vL); st.v_bfe_u32(vU, vL, 4, 1); st.v_lshlrev_b32(vU, 2, vU); st.v_and_b32(vV, 7, vL); st.v_xor_b32(vU, vU, vV)
    st.v_mul_u32_u24(vKV, 3072, vT); st.v_and_b32(vV, 3, vU); st.v_lshl_add_u32(vKV, vV, 4, vKV)
    st.v_lshrrev_b32(vV, 2, vU); st.v_mul_u32_u24(vQ, 256 * 3072, vV); st.v_add_u32(vQ, vQ, vKV)
    st.v_lshl_add_u32(vKV, vV, 10, vKV); st.v_add_u32(vKV, 1024, vKV)
    st.v_lshlrev_b32(vW, 10, vT); st.v_lshl_add_u32(vW, vU, 4, vW)
    st.s_lshl_b32(sW8, sM, 13)
    st.s_mul_i32(sQK, sM, 64 * 3072); st.s_lshl_b32(sT0, sJ, 6); st.s_add_u32(sQK, sQK, sT0)
    sKVr = [s(84), s(85)]; sQJ = s(88); vQ0 = v(GU)
    rot(st, s(89), sT1); st.s_add_u32(s(89), s(89), sM)
    st.s_lshl_b32(sQJ, sJ, 6)
    st.s_and_b32(sT1, s(89), 7); st.s_mul_i32(sKVr[0], sT1, 64 * 3072); st.s_add_u32(sKVr[0], sKVr[0], sQJ)
    st.s_and_b32(sWI, sC, 1); st.s_lshl_b32(sWI, sWI, 4); st.s_add_u32(sWI, sWI, sJ); st.s_lshl_b32(sWI, sWI, 2); st.s_add_u32(sWI, sWI, sM)
    if not oi("fast0", 1) or os_("e0", "Tkv,c0,non,wld"):
        st.wait(lgkm=0)
        srds(st, [WQ])
    chunks = []
    for pair in range(2):
        chunks += [("kv", 0), ("kv", 1), ("q", 0), ("wo", 0), ("wo", 1), ("gp", 0), ("gp", 1)] + [("gs", r) for r in range(2, 6)]
        chunks += [("wd", r) for r in range(6)]
    N = len(chunks)
    issued = set()
    SQ = []
    def spf(n):
        for _ in range(min(n, len(SQ))): SQ.pop(0)()
    def squeue(kind):
        if kind == "k":
            for i in range(64):
                def f(i=i):
                    if i == 0:
                        st.s_lshr_b32(s(90), sWI, 4); st.s_mul_i32(s(90), s(90), 3072); st.s_and_b32(s(91), sWI, 15); st.s_lshl_b32(s(91), s(91), 7)
                        st.s_add_u32(s(91), s(91), s(90)); st.s_add_u32(s(44), s(46), s(91)); st.s_addc_u32(s(45), s(47), 0)
                    if i == 32: st.s_add_u32(s(44), s(44), 32 * 24576); st.s_addc_u32(s(45), s(45), 0)
                    x = Ins("s_load_dwordx2", [s(86, 2), s(44, 2), hex(i % 32 * 24576 + 1024 + 60)]); x.dst = set(); st.l.append(x)
                SQ.append(f)
            return
        base, cnt = dict(w=(46, 96), o=(50, 32), d=(58, 86), g=(54, 86), u=(56, 86))[kind[0]]
        if len(kind) > 1: cnt = int(kind[1:])
        for i in range(cnt):
            def f(i=i):
                if i == 0:
                    st.s_lshl_b32(s(91), sWI, 7); st.s_add_u32(s(44), s(base), s(91)); st.s_addc_u32(s(45), s(base + 1), 0)
                if i == 48: st.s_add_u32(s(44), s(44), 48 * 16384); st.s_addc_u32(s(45), s(45), 0)
                x = Ins("s_load_dwordx2", [s(86, 2), s(44, 2), hex(i % 48 * 16384 + 60)]); x.dst = set(); st.l.append(x)
            SQ.append(f)
    def dma(n, addr, srd, offs):
        slot = (n % 4) * 32768
        for i, (base, off, lds) in enumerate(offs):
            st.s_add_u32("m0", lds[0], slot + lds[1])
            st.s_add_u32(sT0, base, off)
            st.buffer_load_dwordx4(addr, srd, sT0, mods="offen" + POL(srd) + " lds", tset=f"c{n}" if i == len(offs) - 1 else None)
    def issue(n):
        if n >= N: return
        assert n not in issued; issued.add(n)
        kind, a = chunks[n]
        if kind == "kv" and n < 17:
            if a == 1: st.s_xor_b32(sT1, s(89), 4); st.s_and_b32(sT1, sT1, 7); st.s_mul_i32(sKVr[1], sT1, 64 * 3072); st.s_add_u32(sKVr[1], sKVr[1], sQJ)
            dma(n, vKV, WQ, [(sKVr[a], 8 * i * 3072, (sW8, 1024 * i)) for i in range(8)])
        elif kind == "q" and n < 17:
            st.v_add_u32(vT, sKVr[0], vQ); st.v_subrev_u32(vU, 512 * 3072, vT); st.v_min_u32(vQ0, vT, vU)
            dma(n, vQ0, WQ, [("0", 8 * i * 3072, (sW8, 1024 * i)) for i in range(8)])
        elif kind == "kv": dma(n, vKV, WQ, [(sQK, (256 * a + 8 * i) * 3072, (sW8, 1024 * i)) for i in range(8)])
        elif kind == "q": dma(n, vQ, WQ, [(sQK, 8 * i * 3072, (sW8, 1024 * i)) for i in range(8)])
        elif kind == "wo": dma(n, vW, WO_, [(sWOb, (256 * a + 8 * i) * 1024, (sW8, 1024 * i)) for i in range(8)])
        elif kind == "wd" and a < 5: dma(n, vW, WD, [(sWDb[i // 2], (16 * a + 8 * (i % 2)) * 1024, (sW8, 1024 * i)) for i in range(8)])
        elif kind == "wd":
            slot = (n % 4) * 32768
            for e in range(3):
                st.s_mul_i32(sT1, sM, 3); st.s_add_u32(sT1, sT1, e)
                st.s_lshr_b32(sT0, sT1, 1); st.s_mul_i32(sT0, sT0, 96 * 1024); st.s_and_b32(sT2, sT1, 1); st.s_lshl_b32(sT2, sT2, 13)
                st.s_add_u32(sT0, sT0, sT2); st.s_add_u32(sT0, sT0, sWD5)
                st.s_lshl_b32(sT1, sT1, 10); st.s_add_u32("m0", sT1, slot)
                st.buffer_load_dwordx4(vW, WD, sT0, mods="offen" + POL(WD) + " lds", tset=f"c{n}" if e == 2 else None)
        else:
            slot = n % 4; wr = vWR1 if slot >= 2 else vWR0; so = (slot & 1) * 32768
            for t in range(2):
                for k in range(4):
                    g, fr = (4 * a + k, t) if kind == "gp" else (4 * t + k, a)
                    st.ds_write_b128(wr, v(GU + 24 * g + 4 * fr, 4), mods=f"offset:{so + t*16384 + k*1024}", tset=f"c{n}" if (t, k) == (1, 3) else None)
    FREE = [GU + 24 * g + 4 * fr for h in (0, 2) for g in range(8) for fr in (h, h + 1)]
    def stg(n):
        a = chunks[n][1]
        if n < 17:
            assert a == 5; return [48, 52, 56]
        o = {3: 0, 4: 8, 2: 16, 5: 24}[a]
        return FREE[o:o + 8]
    def stage(n):
        kind, a = chunks[n]; assert kind == "wd"
        r = stg(n)
        if a < 5:
            for i in range(8):
                st.s_add_u32(sT0, sWDb[i // 2], (16 * a + 8 * (i % 2)) * 1024)
                st.buffer_load_dwordx4(v(r[i], 4), vW, WD, sT0, mods="offen")
        else:
            for e in range(3):
                st.s_mul_i32(sT1, sM, 3); st.s_add_u32(sT1, sT1, e)
                st.s_lshr_b32(sT0, sT1, 1); st.s_mul_i32(sT0, sT0, 96 * 1024); st.s_and_b32(sT2, sT1, 1); st.s_lshl_b32(sT2, sT2, 13)
                st.s_add_u32(sT0, sT0, sT2); st.s_add_u32(sT0, sT0, sWD5)
                st.buffer_load_dwordx4(v(r[e], 4), vW, WD, sT0, mods="offen")
    def unstage(n):
        kind, a = chunks[n]; r = stg(n); slot = (n % 4) * 32768
        assert n not in issued; issued.add(n)
        if a < 5: st.s_add_u32(sT0, sW8, slot)
        else: st.s_mul_i32(sT0, sM, 3072); st.s_add_u32(sT0, sT0, slot)
        st.v_add_u32(vT, sT0, vL16)
        for i in range(8 if a < 5 else 3): st.ds_write_b128(vT, v(r[i], 4), mods=f"offset:{1024*i}")
    def prologue():
        F0 = oi("fast0", 1)
        if F0:
            if os_("e0", "Tkv,c0,non,wld"):
                srds(st, [WS, WP, WO_, WG, WU, WD])
                run(os_("e0", "Tkv,c0,non,wld").split(","), 0)
        else:
            issue(0)
            if oi("kv1first", 1): issue(1)
        if not oi("cfirst", 1):
            st.mark("save", "ld1"); st.s_branch(".Lloader")
            st.label(".Lcomp"); st.mark("reset")
            compute(st)
            st.label(".Lloader"); st.mark("restore", "ld1")
        if not F0 and not oi("kv1first", 1): issue(1)
        def late():
            if not (F0 and os_("e0", "Tkv,c0,non,wld")):
                st.wait(lgkm=0)
                srds(st, [WQ, WS, WP, WO_, WG, WU, WD])
            stamp_base(st)
            stamp(st, "start", who="l", pair=0)
        if not F0 or os_("e0", "Tkv,c0,non,wld"): late()
        st.s_lshl_b32(sWOb, sM, 16); st.s_lshl_b32(sT0, sCG, 7); st.s_add_u32(sWOb, sWOb, sT0)
        for e in range(4):
            st.s_lshl_b32(sT1, sM, 2); st.s_add_u32(sT1, sT1, e)
            st.s_mul_i32(sT2, sT1, 6); st.s_mul_i32(sT3, sT1, 5); st.s_add_u32(sT3, sT3, 6); st.s_min_u32(sT2, sT2, sT3)
            st.s_lshl_b32(sT2, sT2, 14); st.s_add_u32(sWDb[e], sT2, sT0)
        st.s_add_u32(sWD5, sT0, 80 * 1024)
        st.s_mul_i32(sT2, sJ, 6); st.s_mul_i32(sT3, sJ, 5); st.s_add_u32(sT3, sT3, 6); st.s_min_u32(sT2, sT2, sT3)
        st.s_lshl_b32(sT2, sT2, 5); st.s_mul_i32(sGU, sM, 64 * 2752); st.s_add_u32(sGU, sGU, sT2)
        st.s_cmp_eq_u32(sT6, 1); st.s_cselect_b32(sT1, 12, 10)
        st.s_lshl_b32(sT2, sM, 12); st.s_add_u32(sT2, sT2, 32768)
        for i in range(3):
            st.v_add_u32(vT, 64 * i, vL); st.v_mul_u32_u24(vU, 5462, vT); st.v_lshrrev_b32(vU, 16, vU)
            st.v_mul_u32_u24(vV, 12, vU); st.v_sub_u32(vT, vT, vV)
            st.v_mul_u32_u24(vGG[i], 2752, vU); st.v_lshl_add_u32(vGG[i], vT, 4, vGG[i])
            st.v_cmp_gt_u32("vcc", sT1, vT); st.v_mov_b32(vV, 0x80000000); st.v_cndmask_b32(vGG[i], vV, vGG[i], "vcc")
            st.v_and_b32(vV, 7, vU); st.v_mul_u32_u24(vGL[i], GSTR, vV); st.v_lshrrev_b32(vV, 3, vU); st.v_lshl_add_u32(vGL[i], vV, 14, vGL[i])
            st.v_lshrrev_b32(vV, 1, vT); st.v_lshl_add_u32(vGL[i], vV, 6, vGL[i])
            st.v_and_b32(vV, 1, vT); st.v_lshl_add_u32(vGL[i], vV, 4, vGL[i]); st.v_add_u32(vGL[i], sT2, vGL[i])
        lane_tr(st, vGT, None, "nat", stride=GSTR, hstride=16384); st.v_add_u32(vGT, sT2, vGT)
        lane_tr(st, vC0, vC1, "qkv")
        st.s_lshl_b32(sT0, sM, 12); st.v_add_u32(vWR0, sT0, vL16); st.v_add_u32(vWR1, 65536, vWR0)
        st.v_bfe_u32(vT, vL, 4, 1); st.v_and_b32(vU, 1, vL); st.v_cmp_eq_u32("vcc", vT, vU)
        st.v_mov_b32(vV, 0x3f803f80)
        for i in range(4): st.v_cndmask_b32(v(SEL + i), 0, vV, "vcc")
        st.v_lshlrev_b32(vCW, 6, vT); st.v_lshl_add_u32(vCW, vU, 5, vCW); st.v_lshrrev_b32(vT, 5, vL); st.v_lshl_add_u32(vCW, vT, 4, vCW)
        if F0 and not os_("e0", "Tkv,c0,non,wld"): late()
    def publish():
        L = newlab("pub")
        st.v_add_u32(vNON, sXC, vNON); st.v_add_u32(vNON, 16, vNON)
        st.s_lshl_b32(sT0, sC, 7); st.s_lshl_b32(sT1, sJ, 2); st.s_add_u32(sT0, sT0, sT1); st.s_add_u32(sT0, sT0, XCCT)
        st.s_cmp_lg_u32(sM, 0); st.mark("save", L); st.s_cbranch_scc1(L)
        st.buffer_store_dword(vNON, "off", WS, sT0, mods="sc1")
        st.mark("merge", L); st.label(L)
    dn = [0]
    def dum():
        dn[0] += 1
        return vDUM[dn[0] % 4]
    def tload(addr, srd, soff):
        i = Ins("buffer_load_dword", [dum(), addr, srd, str(soff)], "offen" + POL(srd)); i.dst = set(); st.l.append(i)
    def touch(kind):
        if kind == "wd":
            st.s_mul_i32(sT0, sWI, 86 * 128); st.v_lshlrev_b32(vT, 7, vL); tload(vT, WD, sT0)
            st.v_min_u32(vU, 21, vL); st.v_lshlrev_b32(vU, 7, vU); st.s_add_u32(sT0, sT0, 8192); tload(vU, WD, sT0)
        elif kind[:2] == "wd":
            n = int(kind[2:]); c = 86 - n; assert c <= 64
            st.s_mul_i32(sT0, sWI, c * 128); st.s_add_u32(sT0, sT0, n * 16384); st.v_min_u32(vT, c - 1, vL); st.v_lshlrev_b32(vT, 7, vT); tload(vT, WD, sT0)
        elif kind in ("g", "u"):
            D = WG if kind == "g" else WU
            st.s_mul_i32(sT0, sWI, 86 * 128); st.v_lshlrev_b32(vT, 7, vL); tload(vT, D, sT0)
            st.v_min_u32(vU, 21, vL); st.v_lshlrev_b32(vU, 7, vU); st.s_add_u32(sT0, sT0, 8192); tload(vU, D, sT0)
        elif kind in ("ga", "gb"):
            st.s_mul_i32(sT0, sWI, 43 * 128); st.v_min_u32(vT, 42, vL); st.v_lshlrev_b32(vT, 7, vT)
            if kind == "gb": st.s_add_u32(sT0, sT0, 256 * 2752)
            tload(vT, WG, sT0); tload(vT, WU, sT0)
        elif kind == "kv":
            st.v_lshrrev_b32(vT, 4, vL); st.v_mul_u32_u24(vT, 3072, vT); st.v_lshl_add_u32(vT, vFL, 5, vT)
            st.s_mul_i32(sT0, sWI, 4 * 3072); st.s_add_u32(sT0, sT0, 1024); tload(vT, WQ, sT0)
        elif kind == "q":
            st.v_bfe_u32(vT, vL, 3, 2); st.v_mul_u32_u24(vT, 3072, vT); st.v_and_b32(vU, 7, vL); st.v_lshl_add_u32(vT, vU, 7, vT)
            st.s_mul_i32(sT0, sWI, 4 * 3072); tload(vT, WQ, sT0)
        elif kind == "wo":
            st.v_and_b32(vT, 31, vL); st.v_lshlrev_b32(vT, 7, vT); st.s_lshl_b32(sT0, sWI, 12); tload(vT, WO_, sT0)
        elif kind == "h":
            st.s_lshl_b32(sT0, sC, 4); st.s_add_u32(sT0, sT0, sJ); st.s_lshl_b32(sT0, sT0, 2); st.s_add_u32(sT0, sT0, sM)
            st.s_mul_i32(sT0, sT0, 43 * 128); st.s_add_u32(sT0, sT0, HB)
            st.v_min_u32(vT, 42, vL); st.v_lshlrev_b32(vT, 7, vT); tload(vT, WS, sT0)
        elif kind in ("h0", "h1"):
            n, o = (16, 0) if kind == "h0" else (27, 32768)
            st.s_lshl_b32(sT0, sC, 2); st.s_add_u32(sT0, sT0, sM); st.s_mul_i32(sT0, sT0, HB_TB)
            st.s_mul_i32(sT1, sJ, n * 128); st.s_add_u32(sT0, sT0, sT1); st.s_add_u32(sT0, sT0, HB + o)
            st.v_min_u32(vT, n - 1, vL); st.v_lshlrev_b32(vT, 7, vT); tload(vT, WS, sT0)
        elif kind == "x":
            st.s_lshl_b32(sT0, sC, 4); st.s_add_u32(sT0, sT0, sJ); st.s_lshl_b32(sT0, sT0, 2); st.s_add_u32(sT0, sT0, sM)
            st.s_lshl_b32(sT1, sT0, 11); st.s_add_u32(sT1, sT1, XB)
            st.s_lshl_b32(sT2, sT0, 8); st.s_add_u32(sT2, sT2, ST - 16 * 128)
            st.s_lshl_b32(sT3, sC, 2); st.s_add_u32(sT3, sT3, sM); st.s_lshl_b32(sT3, sT3, 10); st.s_add_u32(sT3, sT3, FL - 18 * 128)
            st.v_mov_b32(vU, sT1); st.v_mov_b32(vV, sT2); st.v_cmp_le_u32("vcc", 16, vL); st.v_cndmask_b32(vU, vU, vV, "vcc")
            st.v_mov_b32(vV, sT3); st.v_cmp_le_u32("vcc", 18, vL); st.v_cndmask_b32(vU, vU, vV, "vcc")
            st.v_min_u32(vT, 22, vL); st.v_lshl_add_u32(vT, vT, 7, vU); tload(vT, WS, 0)
        elif kind == "code":
            st.s_getpc_b64(s(100, 2))
            L = newlab("pc")
            st.label(L)
            st.raw(f"    s_sub_u32 s100, s100, {L}-{NAME}_kernel")
            st.raw("    s_subb_u32 s101, s101, 0")
            st.v_lshlrev_b32(vT, 7, vL); st.s_lshl_b32(sT0, sM, 13); st.v_add_u32(vT, sT0, vT)
            i = Ins("global_load_dword", [dum(), vT, s(100, 2)]); i.dst = set(); st.l.append(i)
            st.v_add_u32(vU, 32768, vT); st.v_min_u32(vU, f".Lslow-{NAME}_kernel", vU)
            i = Ins("global_load_dword", [dum(), vU, s(100, 2)]); i.dst = set(); st.l.append(i)
    gl = []
    for g in range(8):
        k0 = (16 * (g // 4) + (g % 4)) * 16
        for m_, srd in enumerate((WG, WU)):
            for i in range(3):
                def f(g=g, k0=k0, m_=m_, srd=srd, i=i):
                    if i == 0: st.s_add_u32(sLD, sGU, k0 * 2752)
                    st.buffer_load_dwordx4(v(GU + 24 * g + 12 * m_ + 4 * i, 4), vGG[i], srd, sLD, mods="offen" + POL(srd))
                gl.append(f)
    def gu_loads(cnt):
        for _ in range(min(cnt, len(gl))):
            f = gl.pop(0)
            if not OPT.get("noG"): f()
    def colsum(n, steps, first, lo, hi, dst=None):
        L = newlab("cs")
        st.s_sub_u32(sT0, sM, lo); st.s_cmp_ge_u32(sT0, hi - lo); st.mark("save", L); st.s_cbranch_scc1(L)
        nf = len(FRS)
        def rd(k):
            a, off = steps[k]; r = FRS[k % nf]
            st.ds_read_b64_tr_b16(v(r, 2), a, mods=f"offset:{off}"); st.ds_read_b64_tr_b16(v(r + 2, 2), a, mods=f"offset:{off+512}")
        for k in range(nf - 1): rd(k)
        for k in range(len(steps)):
            acc = v(CACC + 4 * (k & 1), 4)
            st.v_mfma_f32_16x16x32_bf16(acc, v(FRS[k % nf], 4), v(SEL, 4), "0" if first and k < 2 else acc)
            if k + nf - 1 < len(steps): rd(k + nf - 1)
        if dst is not None:
            for i in range(4): st.v_add_f32(v(CACC + i), v(CACC + i), v(CACC + 4 + i))
            st.ds_write_b128(dst, v(CACC, 4))
        st.mark("merge", L); st.label(L)
    def transpose(g):
        b = GU + 24 * g
        for m_ in range(2):
            for i in range(3): st.ds_write_b128(vGL[i], v(b + 12 * m_ + 4 * i, 4), mods=f"offset:{32*m_}")
        for t in range(6):
            for u in range(2): st.ds_read_b64_tr_b16(v(b + 4 * t + 2 * u, 2), vGT, mods=f"offset:{u*4*GSTR + t*64}")
    def tsum(g):
        b = GU + 24 * g
        for t in range(6):
            st.v_mfma_f32_16x16x32_bf16(v(CACC + 4 * t, 4), v(b + 4 * t, 4), v(SEL, 4), "0" if g == 0 else v(CACC + 4 * t, 4))
    tr_next = [0]
    def transposes(cnt):
        gs = list(range(tr_next[0], min(8, tr_next[0] + cnt))); tr_next[0] += len(gs)
        for i, g in enumerate(gs):
            transpose(g)
            if i > 0: tsum(gs[i - 1])
        tsum(gs[-1])
    def gu_partial():
        st.s_mul_i32(sT0, sM, 768); st.s_add_u32(sT0, sT0, L_VB); st.v_add_u32(vT, sT0, vCW)
        for i in range(6): st.ds_write_b128(vT, v(CACC + 4 * i, 4), mods=f"offset:{128*i}")
    def gu_reduce():
        st.v_min_u32(vCR, 6 * 128 - 16, vL16)
        st.v_add_u32(vT, L_VB, vCR)
        for w in range(4): st.ds_read_b128(v(CACC + 4 * w, 4), vT, mods=f"offset:{w*768}")
        for i in range(4):
            st.v_add_f32(v(CACC + i), v(CACC + i), v(CACC + 4 + i)); st.v_add_f32(v(CACC + 8 + i), v(CACC + 8 + i), v(CACC + 12 + i))
        for i in range(4): st.v_add_f32(v(CACC + i), v(CACC + i), v(CACC + 8 + i))
        for i in range(4):
            st.v_and_b32(v(CACC + 4 + i), 0xffff0000, v(CACC + i)); st.v_sub_f32(v(CACC + i), v(CACC + i), v(CACC + 4 + i))
            st.v_cvt_pk_bf16_f32(v(CACC + i), v(CACC + 4 + i), v(CACC + i))
        st.v_and_b32(vT, 0x380, vCR); st.v_and_b32(vU, 0x30, vCR); st.v_lshl_add_u32(vT, vU, 1, vT)
        st.v_bfe_u32(vU, vCR, 6, 1); st.v_lshl_add_u32(vT, vU, 4, vT); st.v_add_u32(vT, L_CS + 384, vT)
        st.ds_write_b128(vT, v(CACC, 4))
    def cs_kv(a):
        if a == 0:
            st.s_lshl_b32(sT0, sM, 6); st.v_xor_b32(vCR, sT0, vC0)
        else:
            st.s_lshl_b32(sT0, sM, 7); st.s_add_u32(sT0, sT0, L_CS); st.v_add_u32(vV, sT0, vCW)
        colsum(a, [(vCR, 32768 * a + 2048 * k) for k in range(16)], a == 0, 0, 2, dst=vV if a == 1 else None)
    def cs_q():
        st.v_add_u32(vT, 65536, vC0); st.v_add_u32(vU, 65536, vC1); st.v_add_u32(vV, L_CS + 256, vCW)
        colsum(2, [(a, 2048 * k) for k in range(16) for a in (vT, vU)], True, 2, 3, dst=vV)

    need = {"a0": [0], "a1": [1], "g": [3, 4], "30": [5, 6, 7, 8], "3c": [9], "3d": [10], "3f": [11], "4a": [12], "4b": [13], "4c": [14], "4d": [15], "4e": [16]}
    S0 = os_("s0", "start:c1;a0:c2,csk0;a1:csk1,wst,sigA,pub,G8,sigq,G16,wsig,X2,G12,X2,G12,X2,c3,c4,X2,Th0,Tx;g:part,c5,c6,Qk,S32;X2:c7,c8;")
    S0 += os_("s0b", "30:red,wst;3a:c9,Twd,Th1,nd;3b:c10,nd;3d:c11,c12;3f:c13;3g:c14;4a:S8;4b:c15,S8;4c:c16,S8;4d:S8;4e:c17;X4:c18")
    S1 = os_("s1", "a2:c2,sig,c3,c4;g:c5,c6;X2:c7,c8;")
    S1 += os_("s1b", "3a:c9,Twd,nd;3b:c10,nd;3c:c11;3d:c12;3f:c13;3g:c14;4b:c15;4c:c16")
    def acts(txt):
        d = {}
        for part in txt.split(";"):
            k, _, l = part.partition(":"); d[k] = l.split(",")
        return d
    DR = [False]
    def run(lst, o):
        for a in lst:
            DR[0] = False
            if a == "q": issue(2)
            elif a == "pub": publish()
            elif a == "wld": st.s_lshl_b32(sT0, sJ, 10); st.buffer_load_dwordx4(v(WRAW, 4), vL16, WP, sT0, mods="offen")
            elif a == "wst":
                st.v_bfe_u32(vT, vL, 3, 2); st.v_mul_u32_u24(vT, 576, vT); st.v_lshrrev_b32(vU, 5, vL); st.v_lshl_add_u32(vT, vU, 7, vT)
                st.v_and_b32(vU, 112, vL16); st.v_add_u32(vT, vT, vU); st.v_add_u32(vT, L_KVB, vT)
                st.ds_write_b128(vT, v(WRAW, 4))
            elif a == "non": st.buffer_load_dword(vNON, "off", WS, 0, mods=f"offset:{EPOCH} sc1")
            elif a == "sig":
                st.l.append(Ins("s_nop", ["0"], tneed=f"c{o+2}")); signal(st, 1 + o // 17)
            elif a == "sigA": signal(st, 1, 16)
            elif a == "sigq":
                L = newlab("sq")
                st.l.append(Ins("s_nop", ["0"], tneed=f"c{o+2}")); signal(st, 1, 32)
                st.s_cmp_lg_u32(sM, 2); st.mark("save", L); st.s_cbranch_scc1(L)
                st.v_mov_b32(vU, 1); sigwait(st, 12, 48, regs=(13, 14, 15))
                st.mark("merge", L); st.label(L)
                cs_q(); signal(st, 1)
            elif a == "wsig": st.v_mov_b32(vU, 2); sigwait(st, 12, 32, regs=(13, 14, 15))
            elif a.startswith("csk"): cs_kv(int(a[3]))
            elif a == "csq": cs_q()
            elif a == "part": gu_partial()
            elif a == "red": gu_reduce()
            elif a[0] == "P": st.s_setprio(int(a[1:]))
            elif a == "nd": DR[0] = True
            elif a == "wv": st.wait(vm=0)
            elif a[0] == "Q": squeue(a[1:])
            elif a[0] == "S":
                if LDSW(st): st.wait(lgkm=0)
                DR[0] = True; spf(int(a[1:]))
            elif a[0] == "c": issue(o + int(a[1:]))
            elif a[0] == "r" and a[1:].isdigit(): stage(o + int(a[1:]))
            elif a[0] == "u" and a[1:].isdigit(): unstage(o + int(a[1:]))
            elif a[0] == "@": stamp(st, a, who="l", pair=o // 17)
            elif a[0] == "G": gu_loads(int(a[1:]))
            elif a[0] == "X": transposes(int(a[1:]))
            elif a[0] == "T": touch(a[1:])
            else: raise ValueError(a)
    prologue()
    for pair in range(1 if OPT['stop'] else 2):
        o = 17 * pair; A = acts(S0 if pair == 0 else S1)
        run(A.get("start", []), o)
        for b in (SEQ0 if pair == 0 else SEQA) + SEQC:
            tk = []
            for n in need.get(b, []):
                assert o + n in issued, (pair, b, n)
                tk.append(f"c{o+n}")
            stamp(st, "<" + b, who="l", pair=pair)
            if not DR[0] and LDSW(st): st.wait(lgkm=0)
            DR[0] = False
            st.l.append(Ins("s_barrier", [], tneed=tk))
            run(A.get(b, []), o)
    assert OPT['stop'] or (not gl and tr_next[0] == 8)
    st.s_branch(".Lend")

def main():
    st = Stream()
    entry(st)
    loader(st)
    st.label(".Lslow")
    compute_slow(st)
    st.extend(OOL)
    st.label(".Lend")
    st.s_endpgm()
    bodyt = finalize(st)
    ref = open(f"cdna_kernels/{NAME}.s.ref").read().split("\n")
    head = [l for l in ref if l.startswith(";") and "@launch" not in l]
    out = "\n".join(head) + f"\n; @launch grid=(256,1,1) block=(512,1,1) lds={LDS_BYTES}\n"
    out += '.amdgcn_target "amdgcn-amd-amdhsa--gfx950"\n' + khead(NAME + "_kernel") + bodyt + kd(NAME + "_kernel")
    path = sys.argv[1] if len(sys.argv) > 1 else f"cdna_kernels/{NAME}.s"
    open(path, "w").write(out)
    stamp_names["opt"] = " ".join(a for a in sys.argv[2:] if not a.startswith(("stamps", "only"))); json.dump(stamp_names, open(path + ".json", "w"))
    n = sum(1 for l in bodyt.split("\n") if l.startswith("    ") and not l.strip().startswith(";"))
    print("wrote", path, "instructions:", n, "barriers:", SEQ0, SEQA, SEQC)

main()
```

```python
import sys, os, math, struct, json
sys.path.insert(0, os.path.dirname(os.path.abspath(__file__)))
from asmlib import *
from layout5 import *

NAME = "interleave_layers__linear_kernel_hedgehog__geglu_ffn__prompt"
OPT = dict(stop=None, stamps=False)
for a in sys.argv[2:]:
    k, _, val = a.partition("=")
    OPT[k] = val if val != "" else True
def oi(k, d): return int(OPT.get(k, d))
def os_(k, d): return str(OPT.get(k, d))
SCL = "sc1"
def f2u(x): return "0x%08x" % struct.unpack("<I", struct.pack("<f", x))[0]
LOG2E = 1.4426950408889634
class G: SC = ""; TAG = "f"; SEQ = None; REC = True

WS, X_, OUT, WQ, WP, WO_, WG, WU, WD = [s(4 + 4 * i, 4) for i in range(9)]
sXC = s(40)
sC, sJ, sHF, sCG, sM, sNONCE, sCNT, sPAIR = [s(66 + i) for i in range(8)]
sW = s(3)
sXLD, sSTLD, sFA, sXST, sSTST, sFXST = [s(74 + i) for i in range(6)]
sOST, sFB, sFJ = s(80), s(81), s(82)
sHLD, sHST = s(84), s(85)
sKVST, sKVLD, sFKVST, sFKVLD = [s(88 + i) for i in range(4)]
sKZ, sGZ, sHALF, sH5, sF5, sHS = s(62), s(63), s(60, 2), s(49), s(83), s(41)
sT0, sT1, sT2, sT3 = [s(92 + i) for i in range(4)]
sL2E, sONE, sOUTO, sT6 = s(96), s(97), s(98), s(99)
sSTMP = s(100, 2)
sRING, sKH, sTP, sDUM, sLD = s(44), s(45), s(46), s(47), s(48)
vL, vL16, vA0, vFL = v(0), v(1), v(2), v(3)
RES = 4
vNON = v(12); vT = v(13); vU = v(14); vV = v(15)
vA1, vP0, vP1 = v(121), v(122), v(123)
aXW = v(126)
XF = 128
cWDb = [s(52 + i) for i in range(4)]; sDM = s(56)
aEW, aER, vEVv, vEVr, aCS3 = v(112), v(113), v(114), v(115), v(120)
aP4, vS4 = v(124), v(125)

class bc:
    def __init__(self, r, neg=False): self.r = int(r[1:]) if isinstance(r, str) else r; self.neg = neg
class ng:
    def __init__(self, r): self.r = r
def pk(st, op, d, *src):
    ops, lo, hi, n = [], [], [], []
    for x in src:
        if isinstance(x, bc): ops.append(v(x.r & ~1, 2)); lo.append(x.r & 1); hi.append(x.r & 1); n.append(int(x.neg))
        elif isinstance(x, ng): ops.append(v(x.r, 2)); lo.append(0); hi.append(1); n.append(1); assert x.r % 2 == 0
        else: ops.append(v(x, 2)); lo.append(0); hi.append(1); n.append(0); assert x % 2 == 0
    assert d % 2 == 0
    f = lambda l: "[" + ",".join(map(str, l)) + "]"
    mods = f"op_sel:{f(lo)} op_sel_hi:{f(hi)}" + (f" neg_lo:{f(n)} neg_hi:{f(n)}" if any(n) else "")
    st.op(f"v_pk_{op}_f32", v(d, 2), *ops, mods=mods)

lab_n = [0]
def newlab(p):
    lab_n[0] += 1
    return f".L{p}_{lab_n[0]}"

def nxt(st):
    st.s_add_u32(sNONCE, sNONCE, 1); st.v_add_u32(vNON, 1, vNON)

def poll(st, addr, soff, off=0):
    L = newlab("poll"); D = newlab("pdone")
    st.label(L)
    st.buffer_load_dword(vT, addr, WS, soff, mods=f"offen offset:{off} sc1")
    st.wait(vm=0)
    st.v_cmp_ne_u32("vcc", sNONCE, vT)
    st.s_cbranch_vccz(D)
    st.s_sub_u32(sCNT, sCNT, 1)
    st.s_cbranch_scc0(L)
    st.s_mov_b32(sCNT, 0)
    st.label(D)

OOL = Stream()
def soft_check(st, reg, addr, soff, off=0):
    D = newlab("soft"); X = newlab("softx")
    st.v_cmp_ne_u32("vcc", sNONCE, reg)
    st.s_cbranch_vccnz(X)
    st.label(D)
    OOL.label(X); OOL.mark("reset")
    poll(OOL, addr, soff, off)
    OOL.s_branch(D)

stamp_names = {"c": [], "l": []}
def stamp(st, name, real=False, who="c", pair=None):
    if not OPT["stamps"]: return
    only = OPT.get("only")
    if only and who == "l" and not OPT.get("lst"): return
    if only and who == "c" and not isinstance(name, int) and name not in ("start", "end") and name not in only.split(","): return
    if isinstance(name, int): idx = name
    else:
        if name not in stamp_names[who]: stamp_names[who].append(name)
        idx = stamp_names[who].index(name)
    r = v(127) if who == "c" else v(63)
    if name == 62: st.v_mov_b32(r, s(42))
    elif name == "start" and who == "c": st.v_mov_b32(r, s(86))
    elif name == "karg": st.wait(lgkm=0); st.v_mov_b32(r, s(0))
    else:
        if real: st.s_memrealtime(sSTMP)
        else: st.s_memtime(sSTMP)
        st.wait(lgkm=0)
        st.v_mov_b32(r, s(100))
    if pair is None:
        st.s_lshl_b32(s(101), sPAIR, 8)
        st.s_add_u32(s(101), s(101), s(65))
    else:
        st.s_add_u32(s(101), s(65), 256 * pair)
    st.buffer_store_dword(r, "off", WS, s(101), mods=f"offset:{idx*4}")

def ring_addr(st, mode):
    if mode in ("trq", "trn"):
        st.v_add_u32(vA0, sRING, vP0 if mode == "trq" else vP1); st.v_xor_b32(vA1, 64, vA0)
    elif mode == "b128":
        st.v_add_u32(vA0, sRING, vL16)
def ring_next(st, mode=None):
    st.s_add_u32(sRING, sRING, 0x8000); st.s_and_b32(sRING, sRING, 0x1ffff)
    ring_addr(st, mode)
def barrier(st, name, drain=False):
    if drain: st.wait(lgkm=0)
    st.s_barrier()
    if G.REC: G.SEQ.append(name)

def signal(st, val=None, off=0):
    t0, t1 = (v(124), v(125)) if val is None else (vT, vU)
    st.s_lshl_b32(sT3, sW, 2); st.s_add_u32(sT3, sT3, L_SIG + off); st.v_mov_b32(t0, sT3)
    if val is None: st.v_add_u32(t1, 1, sPAIR)
    else: st.v_mov_b32(t1, val)
    st.ds_write_b32(t0, t1)
def sigwait(st, mask=28, off=0, regs=(124, 125, 126), cmp="ne", extra=None):
    L = newlab("sig"); D = newlab("sigd")
    a, e, r = [v(x) for x in regs]
    st.v_and_b32(a, mask, vFL); st.v_add_u32(a, L_SIG + off, a)
    if extra:
        st.ds_read_b32(r, a)
        extra(st)
        st.wait(lgkm=0)
        st.op(f"v_cmp_{cmp}_u32", "vcc", e, r)
        st.s_cbranch_vccz(D)
    st.label(L)
    st.ds_read_b32(r, a)
    st.wait(lgkm=0)
    st.op(f"v_cmp_{cmp}_u32", "vcc", e, r)
    st.s_cbranch_vccz(D)
    st.s_sub_u32(sCNT, sCNT, 1)
    st.s_cbranch_scc0(L)
    st.s_mov_b32(sCNT, 0)
    st.label(D)

def lane_tr(st, d0, d1, kind, stride=128, tmp=vT, hstride=None):
    st.v_bfe_u32(d0, vL, 2, 2)
    if stride == 128: st.v_lshlrev_b32(d0, 7, d0)
    else: st.v_mul_u32_u24(d0, stride, d0)
    st.v_lshrrev_b32(tmp, 5, vL)
    st.v_lshl_add_u32(d0, tmp, int(math.log2(hstride or 8 * stride)), d0)
    sh = dict(qkv=(5, 4), nat=(4, 5))[kind]
    st.v_and_b32(tmp, 1, vL); st.v_lshl_add_u32(d0, tmp, sh[0], d0)
    st.v_bfe_u32(tmp, vL, 1, 1); st.v_lshl_add_u32(d0, tmp, 3, d0)
    st.v_bfe_u32(tmp, vL, 4, 1); st.v_lshl_add_u32(d0, tmp, sh[1], d0)
    if stride == 128:
        st.v_bfe_u32(tmp, vL, 3, 1); st.v_lshl_add_u32(d0, tmp, 6, d0)
        if d1: st.v_xor_b32(d1, 64, d0)

gemm_n = [0]
def gemm(st, items, mode, af, nslots, depth, ready, bars=None, fill=None, budget=16, hooks=None, loads=None, pre=10, every=2, pairw=0):
    n = len(items); loads = list(loads or []); ready = set(ready); bars = bars or {}
    nr = 0; gemm_n[0] += 1; tg = f"g{gemm_n[0]}_"
    def pump(upto):
        nonlocal nr
        while nr < n and nr <= upto:
            it = items[nr]; r = af + 4 * (nr % nslots)
            assert it["chunk"] in ready, (nr, it["chunk"])
            if nr > 0 and it["chunk"] != items[nr - 1]["chunk"]: ring_next(st, mode)
            if mode != "b128":
                a = vA1 if it["t"] else vA0
                st.ds_read_b64_tr_b16(v(r, 2), a, mods=f"offset:{it['off']}")
                st.ds_read_b64_tr_b16(v(r + 2, 2), a, mods=f"offset:{it['off']+512}", tset=tg + str(nr))
            else:
                st.ds_read_b128(v(r, 4), vA0, mods=f"offset:{it['off']}", tset=tg + str(nr))
            nr += 1
    for _ in range(min(pre, len(loads))): loads.pop(0)(st)
    pump(depth - 1)
    for i in range(n):
        it = items[i]
        if hooks and i in hooks: hooks[i](st)
        acc = v(it["acc"], 16)
        st.v_mfma_f32_32x32x16_bf16(acc, v(af + 4 * (i % nslots), 4), v(it["b"], 4), "0" if it["first"] else acc,
                                    tneed=tg + str(i + 1) if pairw and i % 2 == 0 and i + 1 < nr else None)
        if i in bars:
            barrier(st, bars[i][0]); ready |= set(bars[i][1])
        pump(i + depth)
        if loads and i % every == every - 1: loads.pop(0)(st)
        if fill is not None: fill.take(st, budget(i) if callable(budget) else budget)
    assert not loads

def entry(st):
    st.s_cmp_ge_u32(s(2), 256)
    st.s_cbranch_scc1(".Lend")
    if OPT["stamps"]: st.s_memrealtime(s(42, 2)); st.s_memtime(s(86, 2))
    if OPT.get("dbg"): st.s_memrealtime(s(42, 2))
    st.s_load_dwordx16(s(44, 16), s(0, 2), 0)
    st.s_load_dwordx4(s(60, 4), s(0, 2), 64)
    st.s_load_dwordx2(s(64, 2), s(0, 2), 80)
    st.v_lshrrev_b32(vT, 6, v(0))
    st.v_and_b32(vL, 63, v(0))
    st.v_readfirstlane_b32(sW, vT)
    st.v_lshlrev_b32(vL16, 4, vL)
    st.v_and_b32(vFL, 15, vL)
    st.v_lshlrev_b32(vFL, 2, vFL)
    st.s_and_b32(sT0, s(2), 7)
    st.s_lshr_b32(sT1, s(2), 3)
    st.s_lshr_b32(sC, sT1, 4)
    st.s_lshl_b32(sT0, sT0, 1)
    st.s_add_u32(sC, sC, sT0)
    st.s_and_b32(sJ, sT1, 15)
    st.s_lshr_b32(sHF, sJ, 3)
    st.s_and_b32(sCG, sJ, 7)
    st.s_and_b32(sM, sW, 3)
    st.s_mov_b32(sCNT, 1 << 18)
    st.s_mov_b32(sPAIR, 0)
    st.s_cmp_lt_u32(sJ, 6)
    st.s_cselect_b32(sT6, 1, 0)
    st.s_getreg_b32(sXC, "hwreg(HW_REG_XCC_ID, 0, 4)")
    for d in (WS, X_, OUT, WQ, WP, WO_, WG, WU, WD):
        st.s_mov_b32(s(int(d[2:d.index(":")]) + 3), 0x20000)
    for d, size in ((X_, 2048 * 1024), (WQ, 512 * 3072), (WS, WS_SIZE), (WP, 32 * 512), (WO_, 512 * 1024), (WG, 512 * 2752),
                    (WU, 512 * 2752), (WD, 1376 * 1024), (OUT, 2048 * 1024)):
        st.s_mov_b32(s(int(d[2:d.index(":")]) + 2), size)
    if oi("cfirst", 1):
        st.s_cmp_ge_u32(sW, 4); st.s_cbranch_scc1(".Lld0")
        compute(st)
        st.label(".Lld0"); st.mark("reset")
    else:
        st.s_cmp_lt_u32(sW, 4); st.s_cbranch_scc1(".Lcomp")

def rot(st, d, t):
    if not oi("rot", 0): st.s_mov_b32(d, 0); return
    st.s_and_b32(d, sJ, 1); st.s_and_b32(t, sC, 1); st.s_lshl_b32(t, t, 1); st.s_add_u32(d, d, t); st.s_lshl_b32(d, d, 1)
    st.s_lshr_b32(t, sJ, 1); st.s_add_u32(d, d, t)

def srds(st, lst):
    src = {X_: 44, WQ: 46, WP: 48, WO_: 50, WG: 54, WU: 56, WD: 58, OUT: 60, WS: 64}
    for d in lst:
        b = int(d[2:d.index(":")])
        st.s_mov_b32(s(b), s(src[d])); st.s_and_b32(s(b + 1), s(src[d] + 1), 0xffff)

def stamp_base(st):
    if OPT["stamps"]:
        st.s_lshl_b32(s(65), s(2), 3); st.s_add_u32(s(65), s(65), sW); st.s_lshl_b32(s(65), s(65), 9)
        st.s_add_u32(s(65), s(65), STAMP)

aK, aV, aQ, AF1, WPH, STT = 16, 32, 48, 64, 88, 96
NM, RS, VE, LR = v(112), v(113), v(114), v(115)
aCS, aA, aB, aR1, aR2 = v(116), v(117), v(118), v(119), v(120)

def kv_items():
    return [dict(chunk=k // 16, off=(k % 16) * 2048, t=t, acc=acc, b=XF + 4 * k, first=k == 0)
            for k in range(32) for t, acc in ((0, aK), (1, aV))]

CK, CV = aQ, STT
def k_addr(st):
    st.v_lshrrev_b32(vU, 5, vL); st.v_and_b32(vT, 1, vL); st.v_cmp_eq_u32("vcc", vT, vU)
    st.v_lshlrev_b32(aCS, 6, vU); st.v_add_u32(aCS, L_CS, aCS)
    st.v_lshlrev_b32(aR1, 7, vU); st.v_and_b32(vT, 12, vL); st.v_lshl_add_u32(aR1, vT, 3, aR1)
    st.v_and_b32(vT, 16, vL); st.v_add_u32(aR1, aR1, vT); st.v_and_b32(vT, 2, vL); st.v_lshl_add_u32(aR1, vT, 2, aR1)
    st.v_mov_b32(vT, 544); st.v_cndmask_b32(aR1, vT, aR1, "vcc"); st.v_add_u32(aR1, L_KVB, aR1)
    st.v_and_b32(vT, 31, vL); st.s_lshl_b32(sT0, sM, 5); st.v_add_u32(vT, sT0, vT)
    st.v_mul_u32_u24(aA, 144, vT); st.v_lshl_add_u32(aA, vU, 6, aA); st.v_add_u32(aA, L_PH, aA)
    st.v_mul_u32_u24(aB, 80, vT); st.v_lshl_add_u32(aB, vU, 5, aB); st.v_add_u32(aB, L_VB, aB)
def k_reads(st, which="wkv"):
    if "k" in which:
        for i in range(4): st.ds_read_b128(v(CK + 4 * i, 4), aCS, mods=f"offset:{16*i}")
    if "w" in which:
        for q in range(4): st.ds_read_b64_tr_b16(v(WPH + 2 * q, 2), aR1, mods=f"offset:{576*q}")
    if "v" in which:
        for i in range(4): st.ds_read_b128(v(CV + 4 * i, 4), aCS, mods=f"offset:{128+16*i}")

def fin_stats(st, S, Q, t0, t1, negmean, rstd, vare):
    if t0: st.v_mov_b32(t0, S)
    st.v_mov_b32(t1, Q)
    if t0: st.v_permlane32_swap_b32(S, t0)
    st.v_permlane32_swap_b32(Q, t1)
    if t0: st.v_add_f32(S, S, t0)
    st.v_add_f32(Q, Q, t1)
    st.v_mul_f32(negmean, f2u(-1.0 / 512), S)
    st.v_mul_f32(Q, f2u(1.0 / 512), Q)
    st.v_fma_f32(vare, "-" + negmean, negmean, Q)
    st.v_max_f32(vare, 0, vare)
    st.v_add_f32(vare, f2u(1e-5), vare)
    st.v_rsq_f32(rstd, vare)

def stats(st, stt, negmean, rstd, vare):
    S, Q = v(stt), v(stt + 1)
    for i in range(4): st.v_add_f32(v(stt + i), v(stt + i), v(stt + 4 + i))
    for i in range(4): st.v_add_f32(v(stt + 8 + i), v(stt + 8 + i), v(stt + 12 + i))
    for i in range(4): st.v_add_f32(v(stt + i), v(stt + i), v(stt + 8 + i))
    st.v_add_f32(S, S, v(stt + 2)); st.v_add_f32(Q, Q, v(stt + 3))
    fin_stats(st, S, Q, v(stt + 2), v(stt + 3), negmean, rstd, vare)

def p1a0(st):
    g0, g1, aW = v(118), v(119), v(120)
    aRd = [v(88 + i) for i in range(4)]
    QD, SA, SELA = 96, 112, 92
    st.v_lshrrev_b32(vT, 3, vL); st.v_and_b32(vV, 7, vL)
    st.v_lshlrev_b32(g0, 10, vT); st.v_lshl_add_u32(g0, vV, 4, g0)
    st.s_lshl_b32(sT0, sC, 2); st.s_add_u32(sT0, sT0, sM); st.s_lshl_b32(sT0, sT0, 15)
    GA = [v(48 + g) for g in range(4)]
    st.v_lshlrev_b32(g1, 5, vFL); st.s_lshl_b32(sT1, sJ, 11); st.s_add_u32(sT1, sT1, sT0)
    for g in range(4):
        st.v_add_u32(GA[g], sT0, g0)
        if g < 3: st.s_add_u32(sT0, sT0, 8192)
    if oi("tk0", 0):
        st.v_lshrrev_b32(vT, 5, vL); st.v_lshlrev_b32(vT, 8, vT); st.v_bfe_u32(vU, vL, 4, 1); st.v_add_u32(vT, vT, vU)
        st.v_mul_u32_u24(v(124), 3072, vT); st.v_lshl_add_u32(v(124), vFL, 5, v(124))
        st.s_and_b32(sT2, sC, 1); st.s_lshl_b32(sT2, sT2, 4); st.s_add_u32(sT2, sT2, sJ); st.s_lshl_b32(sT2, sT2, 2); st.s_add_u32(sT2, sT2, sM)
        st.s_mul_i32(sT2, sT2, 2 * 3072); st.s_add_u32(sT2, sT2, 1024)
    sR, sQO = s(41), s(83)
    rot(st, sR, sT0)
    def xl(p, st):
        st.s_add_u32(sQO, sR, p); st.s_and_b32(sQO, sQO, 7); st.s_lshl_b32(sQO, sQO, 7)
        if p == 0:
            st.wait(lgkm=0)
            srds(st, [X_])
            if OPT["stamps"]: st.s_memtime(s(0, 2))
            if oi("tx0", 1):
                i = Ins("buffer_load_dword", [v(126), g1, X_, sT1], "offen"); i.dst = set(); st.l.append(i)
            if oi("tk0", 0):
                srds(st, [WQ])
                i = Ins("buffer_load_dword", [v(125), v(124), WQ, sT2], "offen"); i.dst = set(); st.l.append(i)
        for g in range(4):
            st.buffer_load_dwordx4(v(XF + 16 * p + 4 * g, 4), GA[g], X_, sQO, mods="offen")
    n0 = oi("xn0", 2); n1 = oi("xn1", 4)
    for p in range(n0): xl(p, st)
    srds(st, [WS, OUT])
    stamp_base(st)
    stamp(st, 62, True)
    stamp(st, "start")
    stamp(st, "karg"); stamp(st, "xissued")
    st.buffer_load_dword(vNON, "off", WS, 0, mods=f"offset:{EPOCH} sc1")
    st.s_and_b32(sKH, sM, 1); st.s_lshr_b32(sTP, sM, 1); st.s_mov_b32(sRING, 0)
    st.v_and_b32(aA, 31, vL); st.v_lshlrev_b32(aA, 10, aA); st.v_lshrrev_b32(vT, 5, vL); st.v_lshl_add_u32(aA, vT, 4, aA)
    st.s_lshl_b32(sOUTO, sC, 17); st.s_lshl_b32(sT1, sHF, 16); st.s_add_u32(sOUTO, sOUTO, sT1)
    st.s_lshl_b32(sT1, sTP, 15); st.s_add_u32(sOUTO, sOUTO, sT1); st.s_lshl_b32(sT1, sCG, 7); st.s_add_u32(sOUTO, sOUTO, sT1)
    st.s_lshl_b32(sT1, sKH, 6); st.s_add_u32(sOUTO, sOUTO, sT1)
    st.s_mov_b32(sL2E, f2u(LOG2E)); st.s_mov_b32(sONE, 0x3f803f80)
    st.s_lshl_b32(sT0, sC, 2); st.s_add_u32(sT1, sT0, sM)
    st.s_lshl_b32(sXLD, sT1, 15); st.s_add_u32(sXLD, sXLD, XB)
    st.s_lshl_b32(sSTLD, sT1, 12); st.s_add_u32(sSTLD, sSTLD, ST)
    st.s_lshl_b32(sFA, sT1, 10); st.s_add_u32(sFA, sFA, FL)
    st.s_lshl_b32(sT2, sJ, 2); st.s_add_u32(sFJ, sFA, sT2)
    st.s_mul_i32(sHST, sT1, HB_TB); st.s_add_u32(sHST, sHST, HB)
    st.s_lshl_b32(sT2, sJ, 11); st.s_add_u32(sOST, sHST, sT2)
    st.s_mov_b32(s(60), 0); st.s_mov_b32(s(61), -1)
    st.s_lshl_b32(sT2, sJ, 10); st.s_add_u32(sHST, sHST, sT2)
    st.s_lshl_b32(sDUM, sT1, 11); st.s_add_u32(sDUM, sDUM, DUMMY)
    st.s_lshl_b32(sT1, sHF, 1); st.s_add_u32(sT1, sT1, sT0); st.s_add_u32(sT1, sT1, sTP)
    st.s_lshl_b32(sT3, sCG, 1); st.s_add_u32(sT3, sT3, sKH)
    st.s_lshl_b32(sXST, sT1, 15); st.s_lshl_b32(sT2, sT3, 11); st.s_add_u32(sXST, sXST, sT2); st.s_add_u32(sXST, sXST, XB)
    st.s_lshl_b32(sSTST, sT1, 12); st.s_lshl_b32(sT2, sCG, 9); st.s_add_u32(sSTST, sSTST, sT2)
    st.s_lshl_b32(sT2, sKH, 3); st.s_add_u32(sSTST, sSTST, sT2); st.s_add_u32(sSTST, sSTST, ST)
    st.s_lshl_b32(sFB, sT1, 10); st.s_add_u32(sFB, sFB, FL)
    st.s_lshl_b32(sT2, sT3, 2); st.s_add_u32(sFXST, sFB, sT2)
    st.s_lshl_b32(sT2, sKH, 10)
    st.s_mul_i32(sHLD, sT1, HB_TB); st.s_add_u32(sHLD, sHLD, sT2); st.s_add_u32(sHLD, sHLD, HB)
    st.s_mul_i32(sKVLD, sJ, KV_J); st.s_add_u32(sKVLD, sKVLD, KVP)
    st.s_mul_i32(sKVST, sC, KV_REC); st.s_add_u32(sKVST, sKVST, sKVLD)
    st.s_lshl_b32(sT1, sKH, 7); st.s_lshl_b32(sT2, sTP, 5); st.s_add_u32(sT1, sT1, sT2); st.s_add_u32(sKZ, sKVST, sT1); st.s_add_u32(sKZ, sKZ, 2048)
    st.s_lshl_b32(sT1, sKH, 10); st.s_lshl_b32(sT2, sTP, 6); st.s_add_u32(sT1, sT1, sT2); st.s_add_u32(sKVST, sKVST, sT1)
    st.s_lshl_b32(sT1, sM, 6); st.s_add_u32(sGZ, sKVLD, sT1); st.s_add_u32(sGZ, sGZ, 2048)
    st.s_lshl_b32(sT1, sM, 9); st.s_add_u32(sKVLD, sKVLD, sT1)
    st.s_lshl_b32(sFKVLD, sJ, 11); st.s_add_u32(sFKVLD, sFKVLD, FKV)
    st.s_lshl_b32(sT1, sC, 7); st.s_lshl_b32(sT2, sM, 2); st.s_add_u32(sFKVST, sT1, sT2); st.s_add_u32(sFKVST, sFKVST, sFKVLD)
    for i in range(4): st.v_mov_b32(v(96 + i), 0)
    st.v_and_b32(vT, 3, vL); st.v_mul_u32_u24(vT, 576, vT); st.v_add_u32(vT, L_KVB + 544, vT)
    st.ds_write_b128(vT, v(96, 4))
    st.v_and_b32(vT, 112, vL16); st.v_add_u32(vT, L_SIG, vT)
    st.ds_write_b128(vT, v(96, 4))
    st.v_bfe_u32(vT, vL, 4, 1); st.v_and_b32(vU, 1, vL); st.v_cmp_eq_u32("vcc", vT, vU)
    st.v_mov_b32(vV, sONE)
    for i in range(4): st.v_cndmask_b32(v(SELA + i), 0, vV, "vcc")
    st.s_lshl_b32(sT0, sM, 12); st.s_add_u32(sT0, sT0, L_PH)
    st.v_and_b32(vT, 48, vL); st.v_xor_b32(vT, vT, vL16); st.v_add_u32(aW, sT0, vT); st.v_xor_b32(g1, 64, aW)
    st.v_and_b32(vT, 31, vL); st.v_lshrrev_b32(vU, 5, vL); st.v_bfe_u32(vV, vL, 1, 3); st.v_xor_b32(vU, vU, vV)
    st.v_lshlrev_b32(vT, 7, vT); st.v_lshl_add_u32(vT, vU, 4, vT); st.v_add_u32(aRd[0], sT0, vT)
    for i in range(1, 4): st.v_xor_b32(aRd[i], 32 * i, aRd[0])
    lane_tr(st, vP0, None, "qkv"); ring_addr(st, "trq")
    def rnd(q, st):
        R = XF + 16 * q
        for g in range(4): st.ds_write_b128(g1 if g & 1 else aW, v(R + 4 * g, 4), mods=f"offset:{1024*g}")
        for i in range(4): st.ds_read_b128(v(R + 4 * i, 4), aRd[i])
    def smf(k, st):
        f = v(XF + 4 * k, 4)
        st.v_mfma_f32_32x32x16_bf16(v(QD, 16), f, f, "0" if k == 0 else v(QD, 16))
        st.v_mfma_f32_16x16x32_bf16(v(SA, 4), v(SELA, 4), f, "0" if k == 0 else v(SA, 4))
    def res(st):
        st.buffer_load_dwordx4(v(RES, 4), aA, X_, sOUTO, mods="offen")
        st.buffer_load_dwordx4(v(RES + 4, 4), aA, X_, sOUTO, mods="offen offset:32")
    hooks = {}
    hq = oi("hq", 8)
    for p in range(n0, n1): xl(p, st)
    nl = n1
    rnd(0, st)
    for q in range(hq):
        if nl < 8: xl(nl, st); nl += 1
        if q < 7: rnd(q + 1, st)
        for k in range(4 * q, 4 * q + 4): smf(k, st)
    while nl < 8: xl(nl, st); nl += 1
    acts = {}
    at = oi("rnd0", 2); gap = oi("rndgap", 8)
    for n, q in enumerate(range(hq, 8)):
        i0 = at + gap * n
        if q < 7: acts.setdefault(i0, []).append(lambda st, q=q: rnd(q + 1, st))
        for u in range(4): acts.setdefault(i0 + 1 + 2 * u, []).append(lambda st, k=4 * q + u: smf(k, st))
        assert i0 < 8 * (q + 1) - 2
    acts.setdefault(oi("res0", 40), []).append(res)
    for i, l in acts.items(): hooks[i] = lambda st, l=l: [f(st) for f in l]
    stamp(st, "p1pre")
    barrier(st, "a0", drain=True)
    stamp(st, "B(a0)")
    bars = {oi("a1", 20): ("a1", [1])}
    f = Stream()
    M = [s(50 + 2 * i, 2) for i in range(5)]
    for i, bit in enumerate((16, 8, 2, 1)):
        f.v_and_b32(vT, bit, vL); f.v_cmp_ne_u32(M[i], 0, vT)
    f.v_bfe_u32(vT, vL, 2, 1); f.v_lshrrev_b32(vU, 5, vL); f.v_cmp_eq_u32(M[4], vT, vU)
    f.v_cndmask_b32(v(SA), v(SA), v(SA + 1), M[0])
    for i in range(8): f.v_cndmask_b32(v(QD + i), v(QD + i), v(QD + 8 + i), M[0])
    for i in range(4): f.v_cndmask_b32(v(QD + i), v(QD + i), v(QD + 4 + i), M[1])
    for i in range(2): f.v_cndmask_b32(v(QD + i), v(QD + i), v(QD + 2 + i), M[2])
    f.v_cndmask_b32(v(QD), v(QD), v(QD + 1), M[3])
    f.v_cndmask_b32(v(QD), 0, v(QD), M[4])
    fin_stats(f, v(SA), v(QD), None, v(QD + 1), NM, RS, VE)
    f.v_mul_f32(LR, sL2E, RS)
    g = Stream(); k_addr(g)
    lane_tr(g, vP1, None, "nat")
    g.s_lshl_b32(sT2, sKH, 6); g.v_xor_b32(vP1, sT2, vP1); g.s_lshl_b32(sT2, sKH, 11); g.v_add_u32(vP1, sT2, vP1)
    fill = Filler()
    assert hq == 8
    r0 = oi("res0", 24)
    hooks = {2: lambda st: fill.add(f), r0: res, r0 + 1: lambda st: fill.add(g)}
    gemm(st, kv_items(), "trq", AF1, 6, 5, ready=[0], bars=bars, hooks=hooks, fill=fill, budget=oi("bud1", 8))
    fill.flush(st)
    st.v_add_u32(vNON, 1, vNON)
    st.v_mov_b32(v(125), 1); sigwait(st, 12, 32, cmp="gt")
    k_reads(st)
    st.v_readfirstlane_b32(sNONCE, vNON)
    signal(st, 2, 32)
    st.s_add_u32(sH5, sHST, 16384 * 5); st.s_add_u32(sF5, sDUM, 1024)
    st.s_cmp_eq_u32(sT6, 1); st.s_cselect_b32(sH5, sH5, sDUM); st.s_cselect_b32(sF5, sFJ, sF5)
    stamp(st, "KVgemm")

def frag_loads(base, regs, stride, per):
    out = []
    for k, r in enumerate(regs):
        def f(st, k=k, r=r):
            if k % per == 0: st.s_add_u32(sLD, base, k * stride)
            st.buffer_load_dwordx4(v(r, 4), vL16, WS, sLD, mods=f"offen offset:{(k % per) * stride} {SCL}")
        out.append(f)
    return out

def x_addr(st):
    st.v_lshrrev_b32(vV, 5, vL); st.v_lshlrev_b32(vV, 11, vV); st.v_and_b32(vU, 31, vL); st.v_lshl_add_u32(vV, vU, 4, vV)
def p1a_pre(st):
    ring_next(st, "trq"); x_addr(st)
def p3_pre(st):
    st.v_and_b32(vU, 31, vL); st.v_lshlrev_b32(aCS3, 2, vU); st.v_add_u32(aCS3, L_CS + 3 * 128, aCS3)
    ring_next(st, "b128"); x_addr(st)
    st.s_add_u32(sT0, sRING, 0x10000); st.s_and_b32(sT0, sT0, 0x1ffff); st.v_add_u32(vA1, sT0, vL16)
    st.s_lshl_b32(sT0, sM, 12); st.s_add_u32(sT0, sT0, L_PH); st.v_add_u32(aXW, sT0, vL16)
def x_loads(st, stt, at=32):
    L = frag_loads(sXLD, [XF + 4 * k for k in range(32)], 1024, 4)
    def stl(st):
        for i in range(4):
            st.buffer_load_dwordx4(v(stt + 4 * i, 4), vV, WS, sSTLD, mods=f"offen offset:{512*i} {SCL}")
    return L[:at] + [stl] + L[at:]

def featmap(st, acc, kb, wp, e1, e2, lr, mid=None):
    for i in range(8): st.v_cvt_pk_bf16_f32(v(kb + i), v(acc + 2 * i), v(acc + 2 * i + 1))
    st.v_mfma_f32_32x32x16_bf16(v(acc, 16), v(wp, 4), v(kb, 4), "0")
    st.v_mfma_f32_32x32x16_bf16(v(acc, 16), v(wp + 4, 4), v(kb + 4, 4), v(acc, 16))
    if mid: mid(st)
    mx, mn = v(kb), v(kb + 1)
    p = lambda i: v(acc + i)
    st.v_max3_f32(mx, p(0), p(1), p(2)); st.v_min3_f32(mn, p(0), p(1), p(2))
    for i in range(3, 15, 2):
        st.v_max3_f32(mx, mx, p(i), p(i + 1)); st.v_min3_f32(mn, mn, p(i), p(i + 1))
    st.v_max_f32(mx, mx, p(15)); st.v_min_f32(mn, mn, p(15))
    pk(st, "mul", kb, bc(lr), kb)
    for i in range(0, 16, 2):
        pk(st, "fma", e1 + i, acc + i, bc(lr), bc(kb, True)); pk(st, "fma", e2 + i, ng(acc + i), bc(lr), bc(kb + 1))
    for i in range(16):
        st.v_exp_f32(v(e1 + i), v(e1 + i)); st.v_exp_f32(v(e2 + i), v(e2 + i))
    s1, s2 = kb + 2, kb + 4
    pk(st, "add", s1, e1, e1 + 2); pk(st, "add", s2, e2, e2 + 2)
    for i in range(4, 16, 2):
        pk(st, "add", s1, s1, e1 + i); pk(st, "add", s2, s2, e2 + i)
    st.v_add_f32(v(s1), v(s1), v(s1 + 1)); st.v_add_f32(v(s2), v(s2), v(s2 + 1))
    st.v_rcp_f32(v(s1), v(s1)); st.v_rcp_f32(v(s2), v(s2))
    for i in range(0, 16, 2):
        pk(st, "mul", e1 + i, bc(s1), e1 + i); pk(st, "mul", e2 + i, bc(s2), e2 + i)
    for i in range(8):
        st.v_cvt_pk_bf16_f32(v(e1 + i), v(e1 + 2 * i), v(e1 + 2 * i + 1))
        st.v_cvt_pk_bf16_f32(v(e2 + i), v(e2 + 2 * i), v(e2 + 2 * i + 1))

def p1a(st):
    at = oi("st1", 22)
    L = x_loads(st, STT, at)
    stamp(st, "p1pre")
    poll(st, vFL, sFA)
    stamp(st, "FXpoll")
    pre = oi("pre1", 10)
    for f in L[:pre]: f(st)
    nxt(st)
    barrier(st, "a0")
    stamp(st, "B(a0)")
    fill = Filler()
    f = Stream(); stats(f, STT, NM, RS, VE); f.v_mul_f32(LR, sL2E, RS); k_reads(f, "v")
    g = Stream(); k_addr(g); k_reads(g, "wk")
    hooks = {2: lambda st: fill.add(g), oi("sth1", 2 * at + 2): lambda st: fill.add(f)}
    gemm(st, kv_items(), "trq", AF1, 6, 5, ready=[0], bars={oi("a1", 20): ("a1", [1]), oi("a2", 56): ("a2", [])}, loads=L[pre:], pre=0,
         hooks=hooks, fill=fill, budget=oi("bud1", 8))
    fill.flush(st)
    stamp(st, "KVgemm")

def p1b(st):
    AF = AF1
    for i in range(0, 16, 2): pk(st, "fma", aK + i, CK + i, bc(NM), aK + i)
    def vpart(st):
        for i in range(0, 16, 2): pk(st, "fma", aV + i, CV + i, bc(NM), aV + i)
        for i in range(0, 16, 2): pk(st, "mul", aV + i, bc(RS), aV + i)
        for i in range(8): st.v_cvt_pk_bf16_f32(v(aV + i), v(aV + 2 * i), v(aV + 2 * i + 1))
        st.ds_write_b128(aB, v(aV, 4)); st.ds_write_b128(aB, v(aV + 4, 4), mods="offset:16")
    featmap(st, aK, AF, WPH, STT, aQ, LR, mid=vpart)
    st.ds_write_b128(aA, v(STT, 4)); st.ds_write_b128(aA, v(STT + 4, 4), mods="offset:16")
    st.ds_write_b128(aA, v(aQ, 4), mods="offset:32"); st.ds_write_b128(aA, v(aQ + 4, 4), mods="offset:48")
    signal(st)
    TA, TB, ONE, AKV, AZ = 16, 32, 96, 100, 104
    def shadow(st):
        st.v_lshrrev_b32(vT, 4, vL); st.v_lshlrev_b32(vT, 3, vT); st.v_bfe_u32(vU, vL, 2, 2); st.v_add_u32(vT, vT, vU)
        st.v_and_b32(vU, 3, vL); st.v_lshlrev_b32(vU, 3, vU)
        st.s_lshl_b32(sT0, sM, 5); st.s_add_u32(sT0, sT0, L_PH)
        st.v_mul_u32_u24(aR1, 144, vT); st.v_add3_u32(aR1, aR1, vU, sT0)
        st.s_lshl_b32(sT0, sTP, 5); st.s_add_u32(sT0, sT0, L_VB)
        st.v_mul_u32_u24(aR2, 80, vT); st.v_add3_u32(aR2, aR2, vU, sT0)
        ring_next(st, "trq")
    sigwait(st, extra=shadow)
    stamp(st, "Kepi+B")
    for k in range(4):
        for q in range(2):
            st.ds_read_b64_tr_b16(v(TA + 4 * k + 2 * q, 2), aR1, mods=f"offset:{(32*k+4*q)*144}")
            st.ds_read_b64_tr_b16(v(TB + 4 * k + 2 * q, 2), aR2, mods=f"offset:{(32*k+4*q)*80}")
    for i in range(4): st.v_mov_b32(v(ONE + i), sONE)
    st.v_lshrrev_b32(vT, 5, vL); st.v_lshlrev_b32(vV, 9, vT); st.v_bfe_u32(vU, vL, 4, 1); st.v_lshl_add_u32(vV, vU, 3, vV)
    st.v_lshlrev_b32(vT, 6, vT); st.v_lshl_add_u32(vT, vU, 4, vT)
    st.v_bfe_u32(vU, vL, 2, 2); st.v_lshl_add_u32(vV, vU, 7, vV); st.v_and_b32(vU, 3, vL); st.v_lshl_add_u32(vV, vU, 4, vV)
    for k in range(4):
        st.v_mfma_f32_16x16x32_bf16(v(AKV, 4), v(TA + 4 * k, 4), v(TB + 4 * k, 4), "0" if k == 0 else v(AKV, 4))
        st.v_mfma_f32_16x16x32_bf16(v(AZ, 4), v(TA + 4 * k, 4), v(ONE, 4), "0" if k == 0 else v(AZ, 4))
    st.v_cvt_pk_bf16_f32(v(AKV), v(AKV), v(AKV + 1)); st.v_cvt_pk_bf16_f32(v(AKV + 1), v(AKV + 2), v(AKV + 3))
    st.buffer_store_dwordx2(v(AKV, 2), vV, WS, sKVST, mods="offen sc1")
    st.buffer_store_dwordx4(v(AZ, 4), vT, WS, sKZ, mods="offen sc1", tset="kv")
    stamp(st, "kv st")
    items = []
    for k in range(16):
        for t in range(2):
            items.append(dict(chunk=0, off=k * 2048, t=t, acc=aQ, b=XF + 4 * (k + 16 * t), first=(k, t) == (0, 0)))
    def kvflag(st): st.buffer_store_dword(vNON, "off", WS, sFKVST, mods="sc1", tneed="kv")
    CS = 16
    aPL, aGZ, aGK = aR1, aR2, aB
    f = Stream()
    for i in range(4): f.ds_read_b128(v(CS + 4 * i, 4), aCS, mods=f"offset:{256+16*i}")
    f.v_lshrrev_b32(aPL, 2, vL); f.v_lshlrev_b32(aPL, 7, aPL); f.v_and_b32(vU, 3, vL); f.v_lshl_add_u32(aPL, vU, 2, aPL)
    f.v_lshrrev_b32(aGZ, 4, vL); f.v_mul_u32_u24(aGZ, KV_REC, aGZ); f.v_add_u32(aGZ, aGZ, vFL)
    f.v_lshrrev_b32(aGK, 5, vL); f.v_mul_u32_u24(aGK, KV_REC - 512, aGK); f.v_add_u32(aGK, aGK, vL16)
    fill = Filler()
    gemm(st, items, "trq", AF, 6, 5, ready=[0], hooks={4: lambda st: fill.add(f), oi("kvflag", 24): kvflag}, fill=fill, budget=8)
    fill.flush(st)
    stamp(st, "Qgemm")
    for i in range(0, 16, 2): pk(st, "fma", aQ + i, CS + i, bc(NM), aQ + i)
    featmap(st, aQ, AF, WPH, aK, aV, LR)
    stamp(st, "Q done")
    poll(st, aPL, sFKVLD)
    stamp(st, "FKVpoll")
    Gr, Z, SG, GA = XF, XF + 64, XF + 32, XF + 48
    XT = v(XF + 72)
    nt = " nt" if OPT.get("kvnt") else ""
    for cc in range(8):
        if cc: st.s_add_u32(sT0, sKVLD, 2 * cc * KV_REC)
        st.buffer_load_dwordx4(v(Gr + 4 * cc, 4), aGK, WS, sT0 if cc else sKVLD, mods="offen sc1" + nt)
    for i in range(4):
        if i: st.s_add_u32(sT1, sGZ, 4 * i * KV_REC)
        st.buffer_load_dword(v(Z + i), aGZ, WS, sT1 if i else sGZ, mods="offen sc1" + nt)
    if G.TAG == "f":
        st.s_lshl_b32(sT2, sC, 7); st.s_add_u32(sT2, sT2, XCCT)
        st.buffer_load_dword(XT, vFL, WS, sT2, mods="offen sc1")
    nxt(st)
    st.s_mul_i32(sT0, sM, 576); st.s_add_u32(sT0, sT0, L_KVB)
    st.v_and_b32(vT, 31, vL)
    st.v_and_b32(vU, 1, vL); st.v_lshlrev_b32(vU, 4, vU); st.v_mov_b32(vV, 0x3f80); st.v_lshlrev_b32(vU, vU, vV); st.v_lshrrev_b32(vV, 1, vT)
    for i in range(4):
        st.v_cmp_eq_u32("vcc", i, vV); st.v_cndmask_b32(v(SG + i), 0, vU, "vcc")
    st.v_lshlrev_b32(vT, 4, vT)
    st.v_lshrrev_b32(vU, 5, vL)
    st.v_lshl_add_u32(aA, vU, 3, vT); st.v_add_u32(aA, sT0, aA)
    st.v_lshrrev_b32(aB, 1, vFL); st.v_add_u32(aB, sT0, aB)
    st.v_bfe_u32(vV, vL, 2, 1); st.v_cmp_eq_u32("vcc", vV, vU)
    st.v_mov_b32(vV, 544); st.v_cndmask_b32(vT, vV, vT, "vcc"); st.v_add_u32(aR1, L_KVB, vT)
    st.v_lshlrev_b32(vU, 4, vU); st.v_add_u32(aR2, L_KVB + 512, vU)
    for cc in range(8):
        st.v_mfma_f32_32x32x16_bf16(v(GA, 16), v(SG, 4), v(Gr + 4 * cc, 4), "0" if cc == 0 else v(GA, 16))
    st.v_add_f32(v(Z), v(Z), v(Z + 1)); st.v_add_f32(v(Z + 2), v(Z + 2), v(Z + 3)); st.v_add_f32(v(Z), v(Z), v(Z + 2))
    st.v_mov_b32(v(Z + 1), v(Z)); st.v_permlane32_swap_b32(v(Z), v(Z + 1)); st.v_add_f32(v(Z), v(Z), v(Z + 1))
    st.v_mov_b32(v(Z + 1), v(Z)); st.v_permlane16_swap_b32(v(Z), v(Z + 1)); st.v_add_f32(v(Z), v(Z), v(Z + 1))
    st.v_cvt_pk_bf16_f32(v(Z), v(Z), v(Z))
    st.ds_write_b16(aB, v(Z), mods="offset:512")
    st.v_cvt_pk_bf16_f32(v(GA), v(GA), v(GA + 1)); st.v_cvt_pk_bf16_f32(v(GA + 1), v(GA + 2), v(GA + 3))
    st.ds_write_b64(aA, v(GA, 2))
    if G.TAG == "f":
        OK = newlab("xok"); L = newlab("xpoll"); D = newlab("xdec")
        st.s_cmp_lg_u32(sPAIR, 0)
        st.mark("save", OK)
        st.s_cbranch_scc1(OK)
        st.s_add_u32(sT0, sNONCE, 14); st.s_add_u32(sT1, sT0, sXC)
        st.v_cmp_ne_u32("vcc", sT1, XT)
        if not OPT.get("slow"): st.s_cbranch_vccz(OK)
        st.label(L)
        st.buffer_load_dword(XT, vFL, WS, sT2, mods="offen sc1")
        st.wait(vm=0)
        st.v_subrev_u32(vT, sT0, XT)
        st.v_cmp_le_u32("vcc", 16, vT)
        st.s_cbranch_vccz(D)
        st.s_sub_u32(sCNT, sCNT, 1)
        st.s_cbranch_scc0(L)
        st.s_mov_b32(sCNT, 0)
        st.label(D)
        st.v_cmp_ne_u32("vcc", sT1, XT)
        st.mark("save", "toslow")
        if OPT.get("slow"): st.s_branch(".Lg_s")
        else: st.s_cbranch_vccnz(".Lg_s")
        st.mark("merge", OK)
        st.label(OK)
    else:
        st.mark("merge", "toslow")
        st.label(".Lg_s")
    barrier(st, "g", drain=True)
    stamp(st, "gather+B")

def p1c(st):
    PHQ = [aK, aK + 4, aV, aV + 4]
    KA, ZA, NUM, DEN = XF, XF + 16, 48, v(64)
    for u in range(4): st.ds_read_b128(v(KA + 4 * u, 4), aR1, mods=f"offset:{576*u}")
    for u in range(4): st.ds_read_b128(v(ZA + 4 * u, 4), aR2, mods=f"offset:{576*u}")
    st.v_mov_b32(DEN, f2u(1e-6)); st.v_mov_b32(v(65), 0)
    st.v_lshrrev_b32(vU, 5, vL); st.v_lshl_add_u32(aA, vU, 9, vL16)
    for u in range(4):
        st.v_mfma_f32_32x32x16_bf16(v(NUM, 16), v(KA + 4 * u, 4), v(PHQ[u], 4), "0" if u == 0 else v(NUM, 16))
        for i in range(4):
            dd = DEN if i % 2 == 0 else v(65)
            st.v_dot2_f32_bf16(dd, v(PHQ[u] + i), v(ZA + 4 * u + i), dd)
    st.v_add_f32(DEN, DEN, v(65))
    st.v_rcp_f32(DEN, DEN)
    for i in range(0, 16, 2): pk(st, "mul", NUM + i, bc(DEN), NUM + i)
    for i in range(8): st.v_cvt_pk_bf16_f32(v(NUM + i), v(NUM + 2 * i), v(NUM + 2 * i + 1))
    st.buffer_store_dwordx4(v(NUM, 4), aA, WS, sOST, mods=f"offen {G.SC}")
    st.buffer_store_dwordx4(v(NUM + 4, 4), aA, WS, sOST, mods=f"offen offset:512 {G.SC}", tset="o")
    ring_next(st, "trn")
    res_init(st, 16)
    st.s_lshl_b32(sT0, sM, 12); st.s_add_u32(sT0, sT0, L_PH); st.v_add_u32(aXW, sT0, vL16)
    st.buffer_store_dword(vNON, "off", WS, sFJ, mods=f"offset:128 {G.SC}", tneed="o")
    for r in (sKVST, sKVLD, sKZ, sGZ): st.s_add_u32(r, r, KV_P)
    st.s_add_u32(sFKVST, sFKVST, 256 * 128); st.s_add_u32(sFKVLD, sFKVLD, 256 * 128)

def small_items(nsteps, breg, accs=(16, 32)):
    items = []
    for k in range(nsteps):
        for t in ((1, 0) if k == nsteps - 1 else (0, 1)):
            items.append(dict(chunk=k // 8, off=(k % 8) * 4096, t=t, acc=accs[t], b=breg(k), first=k == 0 and t == 1))
    return items
def res_init(st, a):
    for i in range(8):
        st.v_lshlrev_b32(v(a + 2 * i), 16, v(RES + i)); st.v_and_b32(v(a + 2 * i + 1), 0xffff0000, v(RES + i))

def xepi(st, last):
    aB_, T, P = (96, 48, 16) if last else (32, 16, 48)
    aX = aXW
    for i in range(4): st.ds_write_b128(aX, v(aB_ + 4 * i, 4), mods=f"offset:{1024*i}")
    st.v_xor_b32(aX, 4096, aX)
    barrier(st, "X4" if last else "X2", drain=True)
    for i in range(4): st.ds_read_b128(v(P + 4 * i, 4), aX, mods=f"offset:{1024*i}")
    st.v_and_b32(aX, 31, vL); st.v_lshlrev_b32(aX, 4, aX); st.v_lshrrev_b32(vT, 5, vL); st.v_lshl_add_u32(aX, vT, 2, aX)
    for i in range(4):
        for k in (4 * i, 4 * i + 2): pk(st, "add", T + k, T + k, P + k)
        for k in (2 * i, 2 * i + 1): st.v_cvt_pk_bf16_f32(v(RES + k), v(T + 2 * k), v(T + 2 * k + 1))
    LF = newlab("fin")
    if last:
        st.mark("save", LF)
        st.s_cmp_eq_u32(sPAIR, 1); st.s_cbranch_scc1(LF)
    st.buffer_store_dwordx4(v(RES, 4), vL16, WS, sXST, mods=f"offen {G.SC}")
    st.buffer_store_dwordx4(v(RES + 4, 4), vL16, WS, sXST, mods=f"offen offset:1024 {G.SC}")
    S, Q, S2, Q2 = v(T), v(T + 1), v(T + 2), v(T + 3)
    st.v_dot2_f32_bf16(S, v(RES), sONE, 0); st.v_dot2_f32_bf16(Q, v(RES), v(RES), 0)
    st.v_dot2_f32_bf16(S2, v(RES + 1), sONE, 0); st.v_dot2_f32_bf16(Q2, v(RES + 1), v(RES + 1), 0)
    for i in range(2, 8, 2):
        st.v_dot2_f32_bf16(S, v(RES + i), sONE, S); st.v_dot2_f32_bf16(Q, v(RES + i), v(RES + i), Q)
        st.v_dot2_f32_bf16(S2, v(RES + i + 1), sONE, S2); st.v_dot2_f32_bf16(Q2, v(RES + i + 1), v(RES + i + 1), Q2)
    pk(st, "add", T, T, T + 2)
    st.v_permlane32_swap_b32(S, Q); st.v_add_f32(S, S, Q)
    st.buffer_store_dword(S, aX, WS, sSTST, mods=f"offen {G.SC}", tset="x")
    (p1a_pre if last else p3_pre)(st)
    st.buffer_store_dword(vNON, "off", WS, sFXST, mods=G.SC, tneed="x")
    if last:
        st.s_mov_b32(sPAIR, 1)
        st.s_branch(f".Lpair_{G.TAG}")
        st.label(LF); st.mark("restore", LF)
        st.v_and_b32(aX, 31, vL); st.v_lshlrev_b32(aX, 10, aX); st.v_lshrrev_b32(vT, 5, vL); st.v_lshl_add_u32(aX, vT, 4, aX)
        st.buffer_store_dwordx4(v(RES, 4), aX, OUT, sOUTO, mods="offen")
        st.buffer_store_dwordx4(v(RES + 4, 4), aX, OUT, sOUTO, mods="offen offset:32")

def p2(st):
    stamp(st, "o stored")
    poll(st, vFL, sFB, 128)
    stamp(st, "FOpoll")
    L = frag_loads(sHLD, [XF + 4 * k for k in range(16)], 2048, 2)
    gemm(st, small_items(16, lambda k: XF + 4 * k), "trn", 48, 6, 5, ready=[0, 1], loads=L, pre=oi("pre2", 10), hooks={1: nxt})
    stamp(st, "P2gemm")
    xepi(st, False)

def stream(st, items, af, nslots, depth, hooks, fill, budget, watch=None):
    n = len(items); nr = 0
    def pump(upto):
        nonlocal nr
        while nr < n and nr <= upto:
            items[nr]["rd"](st, af + 4 * (nr % nslots)); nr += 1
    pump(depth - 1)
    for i in range(n):
        it = items[i]
        acc = v(it["acc"], 16)
        st.v_mfma_f32_32x32x16_bf16(acc, v(af + 4 * (i % nslots), 4), v(it["b"], 4), "0" if it["first"] else acc)
        n0 = len(st.l)
        for h in hooks.get(i, []): h(st)
        pump(i + depth)
        fill.take(st, budget(i))
        if watch: watch(i, st.l[n0:])
    assert not fill.q

C1 = -2.0 * math.sqrt(2.0 / math.pi) * LOG2E
def p34(st):
    A = [16, 32, 48, 96]; AF = 64; NMP = 88; DEPTH = 5
    K1, K3, VE3, NM3 = v(92), v(93), v(94), v(95)
    at = oi("st3", 20)
    L = x_loads(st, STT, at)
    stamp(st, "x stored")
    poll(st, vFL, sFA)
    stamp(st, "FXpoll2")
    pre = oi("pre3", 10)
    for f in L[:pre]: f(st)
    nxt(st)
    barrier(st, "30")
    stamp(st, "B(30)")
    items = []; hooks = {}
    def hk(i, f): hooks.setdefault(i, []).append(f)
    def wide(a, off, step=0):
        def rd(st, r):
            if step:
                st.s_add_u32(sRING, sRING, 0x8000 * step); st.s_and_b32(sRING, sRING, 0x1ffff); st.v_add_u32(vA0, sRING, vL16)
            st.ds_read_b128(v(r, 4), a, mods=f"offset:{off}")
        return rd
    def mean(r):
        return dict(rd=lambda st, q: st.ds_read_b32(v(q), aCS3, mods=f"offset:{128*r}"), acc=A[r % 4], b=NMP, first=False)
    n2 = oi("n2", 10); k2 = 0; end = {}; use = {}
    def t2(k): return dict(rd=wide(vA1, k * 1024), acc=A[2], b=XF + 4 * k, first=k == 0)
    for k in range(32):
        use[k] = len(items)
        for t in range(2):
            items.append(dict(rd=wide(vA0, t * 16384 + (k % 16) * 1024, int(k == 16 and t == 0)), acc=A[t], b=XF + 4 * k, first=k == 0))
        if k == 15: g5 = len(items) - 1
        if (k + 1) * n2 // 32 > k2: items.append(t2(k2)); k2 += 1
    items += [mean(0), mean(1)]; end[0] = len(items) - 2; end[1] = len(items) - 1
    items += [t2(k) for k in range(k2, 32)] + [mean(2)]; end[2] = len(items) - 1
    for r in range(3, 6):
        items += [dict(rd=wide(vA0, k * 1024, (2 if r == 3 else 1) if k == 0 else 0), acc=A[r % 4], b=XF + 4 * k, first=k == 0) for k in range(32)]
        items.append(mean(r)); end[r] = len(items) - 1
    T5 = end[4] + 1; P4 = len(items)
    HI = [16 + 4 * i for i in range(4)] + [116, 88] + [XF + 4 * i for i in range(2)] + [32 + 4 * i for i in range(3)]
    breg = lambda k: XF + 4 * k if k < 32 else HI[k - 32]
    for n, it in enumerate(small_items(43, breg, (48, 96))):
        def rd(st, r, it=it, n=n):
            if n % 16 == 0: ring_next(st, "trn")
            a = vA1 if it["t"] else vA0
            st.ds_read_b64_tr_b16(v(r, 2), a, mods=f"offset:{it['off']}")
            st.ds_read_b64_tr_b16(v(r + 2, 2), a, mods=f"offset:{it['off']+512}")
        items.append(dict(rd=rd, acc=it["acc"], b=it["b"], first=it["first"]))
    for n, f in enumerate(L[pre:]): hk(2 * n + 1, f)
    fill = Filler()
    f = Stream()
    stats(f, STT, NM3, K1, VE3)
    f.v_and_b32(vU, 0xffff0000, NM3); f.v_sub_f32(NM3, NM3, vU); f.v_cndmask_b32(vU, vU, NM3, sHALF)
    f.v_cvt_pk_bf16_f32(v(NMP), vU, vU)
    f.v_mul_f32(K3, K1, K1); f.v_mul_f32(K1, f2u(C1), K1); f.v_mul_f32(K3, f2u(0.044715), K3); f.v_mul_f32(K3, K3, K1)
    z = Stream()
    for i in range(1, 4): z.v_mov_b32(v(NMP + i), 0)
    z.v_min_u32(aP4, 20, vFL)
    hk(2, lambda st: fill.add(z))
    hk(use[min(31, at + oi("sth3", 2))], lambda st: fill.add(f))
    hk(end[0] - 2, lambda st: fill.flush(st))
    TM = 112
    def epi(r):
        f = Stream(); a = A[r % 4]
        g = lambda i: v(a + i)
        u = lambda i: v(a + 8 + i)
        tm = lambda i: v(TM + i % 4)
        for t in range(16):
            ok = lambda d: 0 <= t - d < 8
            if ok(3): f.v_exp_f32(g(t - 3), g(t - 3))
            if ok(0): f.v_mul_f32(tm(t), g(t), g(t))
            if ok(1): f.v_fma_f32(tm(t - 1), tm(t - 1), K3, K1)
            if ok(0): f.v_mul_f32(u(t), g(t), u(t))
            if ok(5): f.v_rcp_f32(g(t - 5), g(t - 5))
            if ok(2): f.v_mul_f32(g(t - 2), tm(t - 2), g(t - 2))
            if ok(4): f.v_fma_f32(g(t - 4), g(t - 4), VE3, VE3)
            if ok(6): f.v_mul_f32(g(t - 6), g(t - 6), u(t - 6))
            if ok(7) and t % 2 == 0: f.v_cvt_pk_bf16_f32(u((t - 8) // 2), g(t - 8), g(t - 7))
            if t == 12 and r < 5: f.s_add_u32(sHS, sHST, 16384 * r)
        f.buffer_store_dwordx4(v(a + 8, 4), vL16, WS, sHS if r < 5 else sH5, mods=f"offen {G.SC}", tset=f"h{r}")
        return f
    def flag(r):
        f = Stream()
        f.buffer_store_dword(vNON, "off", WS, sFJ if r < 5 else sF5, mods=f"offset:{256+64*r} {G.SC}", tneed=f"h{r}")
        return f
    e = [epi(r) for r in range(6)]
    ri = Stream(); res_init(ri, 48)
    lag = oi("lag", 4)
    for r in range(6):
        parts = [e[r]] + ([ri] if r == 3 else [])
        hk(end[max(r, 1)] + lag, lambda st, parts=parts: [fill.add(p) for p in parts])
        hk(end[r], lambda st, r=r: stamp(st, f"t{r}"))
    hk(end[3], lambda st: fill.drain_until(st, e[0])); hk(end[4], lambda st: fill.drain_until(st, e[1]))
    hk(end[5] - 1, lambda st: fill.drain_until(st, ri))
    fd = [int(x) for x in os_("fd", "38,20,20,18,16,12").split(",")]; fpos = {}
    def watch(i, l):
        for r in range(6):
            if any(("t", f"h{r}") in x.dst for x in l): fpos[r] = i + fd[r]; hk(i + fd[r], lambda st, r=r: (stamp(st, f"f{r}a"), st.extend(flag(r)), stamp(st, f"f{r}b")))
    b3, b4 = oi("bud3", 16), oi("bud4", 16)
    def bud(i):
        b = oi("bud0", 12) if i < end[1] else b3 if i < P4 - DEPTH else b4
        if b % 4: b += 2 if i % 2 else -2
        return b - (4 if i in hooks and oi("budh", 1) else 0)
    o = oi("b4", 10)
    for i, name in ((g5 + oi("c1d", 4), "3a"), (end[1], "3b"), (end[2], "3c"), (end[3], "3d"), (end[4], "3f"), (end[5], "3g"),
                    (P4 + o, "4a"), (P4 + 16 + o, "4b"), (P4 + 32 + o, "4c"), (P4 + 48 + o, "4d"), (P4 + 64 + o, "4e")):
        hk(i, lambda st, name=name: (stamp(st, f"{name}a"), barrier(st, name), stamp(st, f"{name}b")))
    for i in (16, 32, 48, 64): hk(P4 + i, lambda st, i=i: stamp(st, f"q{i}"))
    HL = frag_loads(sHLD, [breg(k) for k in range(43)], 2048, 2)
    if OPT.get("noH"): HL = [lambda st: None] * 43
    ne = oi("early4", 12)
    ck = [T5 + oi("chkA", 10), P4 + oi("chk2", 0), P4 + oi("chk3", 16), P4 + oi("chk4", 42), P4 + oi("chk5", 65)]
    sl = oi("sl", 12); ev = float(OPT.get("ev4", 2)); pos = []
    for k in range(43):
        g = max(0, k // 8 - 1)
        p = ck[0] + 1 + k * float(OPT.get("ev3", 2)) if k < ne else pos[-1] + ev
        pos.append(max(p, ck[g]) if k < 40 else ck[4])
    pos = [int(p) for p in pos]
    hk(ck[0] - sl - 1, lambda st: (st.v_and_b32(vV, 31, vL), st.v_lshlrev_b32(vV, 2, vV)))
    for g, (addr, off) in enumerate(((vV, 256), (vFL, 384), (vFL, 448), (vFL, 512), (aP4, 576))):
        assert g == 0 or ck[g] - sl > ck[g - 1]
        if OPT.get("nochk"): continue
        hk(ck[g] - sl, lambda st, addr=addr, off=off: st.buffer_load_dword(vS4, addr, WS, sFB, mods=f"offen offset:{off} sc1"))
        hk(ck[g], lambda st, addr=addr, off=off, g=g: (stamp(st, f"k{g}a"), soft_check(st, vS4, addr, sFB, off), stamp(st, f"k{g}b")))
    def last(st):
        assert 5 in fpos and fpos[5] < ck[4]
        nxt(st)
    hk(ck[4], last)
    for k in range(43):
        assert pos[k] < P4 + 2 * k and (k >= 32 or pos[k] >= T5 + k), (k, pos[k])
        hk(pos[k], HL[k])
    hk(pos[32] - 1, lambda st: fill.drain_until(st, e[4]))
    stream(st, items, AF, 6, DEPTH, hooks, fill, bud, watch)
    if G.TAG == "f": print("T3", end[2] + 1, "T4", end[3] + 1, "T5", T5, "P4", P4, "flags", fpos, "checks", ck, "loads", pos, file=sys.stderr)
    stamp(st, "P4gemm")
    xepi(st, True)

def body(st, first):
    stop = OPT["stop"]
    T = G.TAG
    st.label(f".Lpair_{T}"); st.mark("reset")
    G.SEQ = SEQA; p1a(st)
    G.SEQ = SEQC
    if first:
        st.mark("merge", "from0"); st.label(".Lk_f")
    p1b(st); p1c(st)
    if stop == "p1": st.s_branch(".Lend"); return
    p2(st)
    if stop == "p2": st.s_branch(".Lend"); return
    p34(st)
    stamp(st, "end")
    stamp(st, 63, True)
    if OPT.get("dbg") == "2":
        if OPT.get("wb"):
            st.wait(vm=0); st.raw("    buffer_wbl2 sc0 sc1"); st.raw("    s_waitcnt vmcnt(0)")
        L = newlab("pad"); st.label(L)
        st.s_memrealtime(s(100, 2)); st.wait(lgkm=0); st.s_sub_u32(s(100), s(100), s(42)); st.s_cmp_lt_u32(s(100), 7000); st.s_cbranch_scc1(L)
    elif OPT.get("dbg"):
        st.s_load_dwordx2(s(44, 2), s(0, 2), 72); st.s_memrealtime(s(100, 2)); st.wait(lgkm=0)
        st.s_and_b32(s(45), s(45), 0xffff); st.s_mov_b32(s(46), 256); st.s_mov_b32(s(47), 0x20000)
        st.s_not_b32(s(42), s(42)); st.v_mov_b32(vT, s(42)); st.v_mov_b32(vU, s(100)); st.s_not_b32(s(100), s(100)); st.v_mov_b32(vV, s(100))
        st.raw("    buffer_atomic_umax v13, off, s[44:47], 0")
        st.raw("    buffer_atomic_umax v14, off, s[44:47], 0 offset:4")
        st.raw("    buffer_atomic_umax v15, off, s[44:47], 0 offset:8")
        st.s_not_b32(s(42), s(42)); st.v_mov_b32(vT, s(42))
        st.raw("    s_nop 4")
        st.raw("    buffer_atomic_umax v13, off, s[44:47], 0 offset:12")
    st.s_or_b32(sT0, s(2), sW); st.s_cmp_lg_u32(sT0, 0); st.s_cbranch_scc1(".Lend")
    st.v_add_u32(vNON, 22, vNON)
    st.buffer_store_dword(vNON, "off", WS, 0, mods=f"offset:{EPOCH} sc1")
    st.s_branch(".Lend")

SEQ0, SEQA, SEQC = [], [], []
def compute(st):
    G.SEQ = SEQ0
    p1a0(st)
    st.mark("save", "from0")
    st.s_branch(".Lk_f")
    G.SC, G.TAG = "", "f"
    body(st, True)

def compute_slow(st):
    G.SC, G.TAG, G.REC = "sc1", "s", False
    body(st, False)

sW8, sQK, sWOb, sGU, sWD5, sWI = s(74), s(75), s(76), s(77), s(78), s(79)
sWDb = [s(80 + i) for i in range(4)]
GU = 64
vKV, vQ, vW, vWR0, vWR1 = v(2), v(4), v(5), v(6), v(7)
vGG = [v(8), v(9), v(10)]; vGL = [v(16), v(17), v(18)]; vGT = v(19)
vC0, vC1, vCW, vCR = v(20), v(21), v(22), v(23)
SEL = 24; CACC = 28
FRS = [36, 40, 44, 48, 52]; WRAW = 56
vDUM = [v(11), v(60), v(61), v(62)]
GSTR = 448

def LDSW(st):
    for i in reversed(st.l):
        if i.name == "s_barrier" or (i.name == "s_waitcnt" and "lgkmcnt(0)" in i.ops[0]): return False
        if i.kind == "ds": return True
    return False

def POL(srd):
    k = {WQ: "pq", WO_: "po", WD: "pd", WG: "pg", WU: "pg"}.get(srd)
    x = os_(k, "") if k else ""
    return " " + x.replace("+", " ") if x else ""

def loader(st):
    st.v_lshrrev_b32(vT, 3, vL); st.v_bfe_u32(vU, vL, 4, 1); st.v_lshlrev_b32(vU, 2, vU); st.v_and_b32(vV, 7, vL); st.v_xor_b32(vU, vU, vV)
    st.v_mul_u32_u24(vKV, 3072, vT); st.v_and_b32(vV, 3, vU); st.v_lshl_add_u32(vKV, vV, 4, vKV)
    st.v_lshrrev_b32(vV, 2, vU); st.v_mul_u32_u24(vQ, 256 * 3072, vV); st.v_add_u32(vQ, vQ, vKV)
    st.v_lshl_add_u32(vKV, vV, 10, vKV); st.v_add_u32(vKV, 1024, vKV)
    st.v_lshlrev_b32(vW, 10, vT); st.v_lshl_add_u32(vW, vU, 4, vW)
    st.s_lshl_b32(sW8, sM, 13)
    st.s_mul_i32(sQK, sM, 64 * 3072); st.s_lshl_b32(sT0, sJ, 6); st.s_add_u32(sQK, sQK, sT0)
    sKVr = [s(84), s(85)]; sQJ = s(88); vQ0 = v(GU)
    rot(st, s(89), sT1); st.s_add_u32(s(89), s(89), sM)
    st.s_lshl_b32(sQJ, sJ, 6)
    st.s_and_b32(sT1, s(89), 7); st.s_mul_i32(sKVr[0], sT1, 64 * 3072); st.s_add_u32(sKVr[0], sKVr[0], sQJ)
    st.s_and_b32(sWI, sC, 1); st.s_lshl_b32(sWI, sWI, 4); st.s_add_u32(sWI, sWI, sJ); st.s_lshl_b32(sWI, sWI, 2); st.s_add_u32(sWI, sWI, sM)
    if not oi("fast0", 1) or os_("e0", "Tkv,c0,non,wld"):
        st.wait(lgkm=0)
        srds(st, [WQ])
    chunks = []
    for pair in range(2):
        chunks += [("kv", 0), ("kv", 1), ("q", 0), ("wo", 0), ("wo", 1), ("gp", 0), ("gp", 1)] + [("gs", r) for r in range(2, 6)]
        chunks += [("wd", r) for r in range(6)]
    N = len(chunks)
    issued = set()
    SQ = []
    def spf(n):
        for _ in range(min(n, len(SQ))): SQ.pop(0)()
    def squeue(kind):
        if kind == "k":
            for i in range(64):
                def f(i=i):
                    if i == 0:
                        st.s_lshr_b32(s(90), sWI, 4); st.s_mul_i32(s(90), s(90), 3072); st.s_and_b32(s(91), sWI, 15); st.s_lshl_b32(s(91), s(91), 7)
                        st.s_add_u32(s(91), s(91), s(90)); st.s_add_u32(s(44), s(46), s(91)); st.s_addc_u32(s(45), s(47), 0)
                    if i == 32: st.s_add_u32(s(44), s(44), 32 * 24576); st.s_addc_u32(s(45), s(45), 0)
                    x = Ins("s_load_dwordx2", [s(86, 2), s(44, 2), hex(i % 32 * 24576 + 1024 + 60)]); x.dst = set(); st.l.append(x)
                SQ.append(f)
            return
        base, cnt = dict(w=(46, 96), o=(50, 32), d=(58, 86), g=(54, 86), u=(56, 86))[kind[0]]
        if len(kind) > 1: cnt = int(kind[1:])
        for i in range(cnt):
            def f(i=i):
                if i == 0:
                    st.s_lshl_b32(s(91), sWI, 7); st.s_add_u32(s(44), s(base), s(91)); st.s_addc_u32(s(45), s(base + 1), 0)
                if i == 48: st.s_add_u32(s(44), s(44), 48 * 16384); st.s_addc_u32(s(45), s(45), 0)
                x = Ins("s_load_dwordx2", [s(86, 2), s(44, 2), hex(i % 48 * 16384 + 60)]); x.dst = set(); st.l.append(x)
            SQ.append(f)
    def dma(n, addr, srd, offs):
        slot = (n % 4) * 32768
        for i, (base, off, lds) in enumerate(offs):
            st.s_add_u32("m0", lds[0], slot + lds[1])
            st.s_add_u32(sT0, base, off)
            st.buffer_load_dwordx4(addr, srd, sT0, mods="offen" + POL(srd) + " lds", tset=f"c{n}" if i == len(offs) - 1 else None)
    def issue(n):
        if n >= N: return
        assert n not in issued; issued.add(n)
        kind, a = chunks[n]
        if kind == "kv" and n < 17:
            if a == 1: st.s_xor_b32(sT1, s(89), 4); st.s_and_b32(sT1, sT1, 7); st.s_mul_i32(sKVr[1], sT1, 64 * 3072); st.s_add_u32(sKVr[1], sKVr[1], sQJ)
            dma(n, vKV, WQ, [(sKVr[a], 8 * i * 3072, (sW8, 1024 * i)) for i in range(8)])
        elif kind == "q" and n < 17:
            st.v_add_u32(vT, sKVr[0], vQ); st.v_subrev_u32(vU, 512 * 3072, vT); st.v_min_u32(vQ0, vT, vU)
            dma(n, vQ0, WQ, [("0", 8 * i * 3072, (sW8, 1024 * i)) for i in range(8)])
        elif kind == "kv": dma(n, vKV, WQ, [(sQK, (256 * a + 8 * i) * 3072, (sW8, 1024 * i)) for i in range(8)])
        elif kind == "q": dma(n, vQ, WQ, [(sQK, 8 * i * 3072, (sW8, 1024 * i)) for i in range(8)])
        elif kind == "wo": dma(n, vW, WO_, [(sWOb, (256 * a + 8 * i) * 1024, (sW8, 1024 * i)) for i in range(8)])
        elif kind == "wd" and a < 5: dma(n, vW, WD, [(sWDb[i // 2], (16 * a + 8 * (i % 2)) * 1024, (sW8, 1024 * i)) for i in range(8)])
        elif kind == "wd":
            slot = (n % 4) * 32768
            for e in range(3):
                st.s_mul_i32(sT1, sM, 3); st.s_add_u32(sT1, sT1, e)
                st.s_lshr_b32(sT0, sT1, 1); st.s_mul_i32(sT0, sT0, 96 * 1024); st.s_and_b32(sT2, sT1, 1); st.s_lshl_b32(sT2, sT2, 13)
                st.s_add_u32(sT0, sT0, sT2); st.s_add_u32(sT0, sT0, sWD5)
                st.s_lshl_b32(sT1, sT1, 10); st.s_add_u32("m0", sT1, slot)
                st.buffer_load_dwordx4(vW, WD, sT0, mods="offen" + POL(WD) + " lds", tset=f"c{n}" if e == 2 else None)
        else:
            slot = n % 4; wr = vWR1 if slot >= 2 else vWR0; so = (slot & 1) * 32768
            for t in range(2):
                for k in range(4):
                    g, fr = (4 * a + k, t) if kind == "gp" else (4 * t + k, a)
                    st.ds_write_b128(wr, v(GU + 24 * g + 4 * fr, 4), mods=f"offset:{so + t*16384 + k*1024}", tset=f"c{n}" if (t, k) == (1, 3) else None)
    FREE = [GU + 24 * g + 4 * fr for h in (0, 2) for g in range(8) for fr in (h, h + 1)]
    def stg(n):
        a = chunks[n][1]
        if n < 17:
            assert a == 5; return [48, 52, 56]
        o = {3: 0, 4: 8, 2: 16, 5: 24}[a]
        return FREE[o:o + 8]
    def stage(n):
        kind, a = chunks[n]; assert kind == "wd"
        r = stg(n)
        if a < 5:
            for i in range(8):
                st.s_add_u32(sT0, sWDb[i // 2], (16 * a + 8 * (i % 2)) * 1024)
                st.buffer_load_dwordx4(v(r[i], 4), vW, WD, sT0, mods="offen")
        else:
            for e in range(3):
                st.s_mul_i32(sT1, sM, 3); st.s_add_u32(sT1, sT1, e)
                st.s_lshr_b32(sT0, sT1, 1); st.s_mul_i32(sT0, sT0, 96 * 1024); st.s_and_b32(sT2, sT1, 1); st.s_lshl_b32(sT2, sT2, 13)
                st.s_add_u32(sT0, sT0, sT2); st.s_add_u32(sT0, sT0, sWD5)
                st.buffer_load_dwordx4(v(r[e], 4), vW, WD, sT0, mods="offen")
    def unstage(n):
        kind, a = chunks[n]; r = stg(n); slot = (n % 4) * 32768
        assert n not in issued; issued.add(n)
        if a < 5: st.s_add_u32(sT0, sW8, slot)
        else: st.s_mul_i32(sT0, sM, 3072); st.s_add_u32(sT0, sT0, slot)
        st.v_add_u32(vT, sT0, vL16)
        for i in range(8 if a < 5 else 3): st.ds_write_b128(vT, v(r[i], 4), mods=f"offset:{1024*i}")
    def prologue():
        F0 = oi("fast0", 1)
        if F0:
            if os_("e0", "Tkv,c0,non,wld"):
                srds(st, [WS, WP, WO_, WG, WU, WD])
                run(os_("e0", "Tkv,c0,non,wld").split(","), 0)
        else:
            issue(0)
            if oi("kv1first", 1): issue(1)
        if not oi("cfirst", 1):
            st.mark("save", "ld1"); st.s_branch(".Lloader")
            st.label(".Lcomp"); st.mark("reset")
            compute(st)
            st.label(".Lloader"); st.mark("restore", "ld1")
        if not F0 and not oi("kv1first", 1): issue(1)
        def late():
            if not (F0 and os_("e0", "Tkv,c0,non,wld")):
                st.wait(lgkm=0)
                srds(st, [WQ, WS, WP, WO_, WG, WU, WD])
            stamp_base(st)
            stamp(st, "start", who="l", pair=0)
        if not F0 or os_("e0", "Tkv,c0,non,wld"): late()
        st.s_lshl_b32(sWOb, sM, 16); st.s_lshl_b32(sT0, sCG, 7); st.s_add_u32(sWOb, sWOb, sT0)
        for e in range(4):
            st.s_lshl_b32(sT1, sM, 2); st.s_add_u32(sT1, sT1, e)
            st.s_mul_i32(sT2, sT1, 6); st.s_mul_i32(sT3, sT1, 5); st.s_add_u32(sT3, sT3, 6); st.s_min_u32(sT2, sT2, sT3)
            st.s_lshl_b32(sT2, sT2, 14); st.s_add_u32(sWDb[e], sT2, sT0)
        st.s_add_u32(sWD5, sT0, 80 * 1024)
        st.s_mul_i32(sT2, sJ, 6); st.s_mul_i32(sT3, sJ, 5); st.s_add_u32(sT3, sT3, 6); st.s_min_u32(sT2, sT2, sT3)
        st.s_lshl_b32(sT2, sT2, 5); st.s_mul_i32(sGU, sM, 64 * 2752); st.s_add_u32(sGU, sGU, sT2)
        st.s_cmp_eq_u32(sT6, 1); st.s_cselect_b32(sT1, 12, 10)
        st.s_lshl_b32(sT2, sM, 12); st.s_add_u32(sT2, sT2, 32768)
        for i in range(3):
            st.v_add_u32(vT, 64 * i, vL); st.v_mul_u32_u24(vU, 5462, vT); st.v_lshrrev_b32(vU, 16, vU)
            st.v_mul_u32_u24(vV, 12, vU); st.v_sub_u32(vT, vT, vV)
            st.v_mul_u32_u24(vGG[i], 2752, vU); st.v_lshl_add_u32(vGG[i], vT, 4, vGG[i])
            st.v_cmp_gt_u32("vcc", sT1, vT); st.v_mov_b32(vV, 0x80000000); st.v_cndmask_b32(vGG[i], vV, vGG[i], "vcc")
            st.v_and_b32(vV, 7, vU); st.v_mul_u32_u24(vGL[i], GSTR, vV); st.v_lshrrev_b32(vV, 3, vU); st.v_lshl_add_u32(vGL[i], vV, 14, vGL[i])
            st.v_lshrrev_b32(vV, 1, vT); st.v_lshl_add_u32(vGL[i], vV, 6, vGL[i])
            st.v_and_b32(vV, 1, vT); st.v_lshl_add_u32(vGL[i], vV, 4, vGL[i]); st.v_add_u32(vGL[i], sT2, vGL[i])
        lane_tr(st, vGT, None, "nat", stride=GSTR, hstride=16384); st.v_add_u32(vGT, sT2, vGT)
        lane_tr(st, vC0, vC1, "qkv")
        st.s_lshl_b32(sT0, sM, 12); st.v_add_u32(vWR0, sT0, vL16); st.v_add_u32(vWR1, 65536, vWR0)
        st.v_bfe_u32(vT, vL, 4, 1); st.v_and_b32(vU, 1, vL); st.v_cmp_eq_u32("vcc", vT, vU)
        st.v_mov_b32(vV, 0x3f803f80)
        for i in range(4): st.v_cndmask_b32(v(SEL + i), 0, vV, "vcc")
        st.v_lshlrev_b32(vCW, 6, vT); st.v_lshl_add_u32(vCW, vU, 5, vCW); st.v_lshrrev_b32(vT, 5, vL); st.v_lshl_add_u32(vCW, vT, 4, vCW)
        if F0 and not os_("e0", "Tkv,c0,non,wld"): late()
    def publish():
        L = newlab("pub")
        st.v_add_u32(vNON, sXC, vNON); st.v_add_u32(vNON, 16, vNON)
        st.s_lshl_b32(sT0, sC, 7); st.s_lshl_b32(sT1, sJ, 2); st.s_add_u32(sT0, sT0, sT1); st.s_add_u32(sT0, sT0, XCCT)
        st.s_cmp_lg_u32(sM, 0); st.mark("save", L); st.s_cbranch_scc1(L)
        st.buffer_store_dword(vNON, "off", WS, sT0, mods="sc1")
        st.mark("merge", L); st.label(L)
    dn = [0]
    def dum():
        dn[0] += 1
        return vDUM[dn[0] % 4]
    def tload(addr, srd, soff):
        i = Ins("buffer_load_dword", [dum(), addr, srd, str(soff)], "offen" + POL(srd)); i.dst = set(); st.l.append(i)
    def touch(kind):
        if kind == "wd":
            st.s_mul_i32(sT0, sWI, 86 * 128); st.v_lshlrev_b32(vT, 7, vL); tload(vT, WD, sT0)
            st.v_min_u32(vU, 21, vL); st.v_lshlrev_b32(vU, 7, vU); st.s_add_u32(sT0, sT0, 8192); tload(vU, WD, sT0)
        elif kind[:2] == "wd":
            n = int(kind[2:]); c = 86 - n; assert c <= 64
            st.s_mul_i32(sT0, sWI, c * 128); st.s_add_u32(sT0, sT0, n * 16384); st.v_min_u32(vT, c - 1, vL); st.v_lshlrev_b32(vT, 7, vT); tload(vT, WD, sT0)
        elif kind in ("g", "u"):
            D = WG if kind == "g" else WU
            st.s_mul_i32(sT0, sWI, 86 * 128); st.v_lshlrev_b32(vT, 7, vL); tload(vT, D, sT0)
            st.v_min_u32(vU, 21, vL); st.v_lshlrev_b32(vU, 7, vU); st.s_add_u32(sT0, sT0, 8192); tload(vU, D, sT0)
        elif kind in ("ga", "gb"):
            st.s_mul_i32(sT0, sWI, 43 * 128); st.v_min_u32(vT, 42, vL); st.v_lshlrev_b32(vT, 7, vT)
            if kind == "gb": st.s_add_u32(sT0, sT0, 256 * 2752)
            tload(vT, WG, sT0); tload(vT, WU, sT0)
        elif kind == "kv":
            st.v_lshrrev_b32(vT, 4, vL); st.v_mul_u32_u24(vT, 3072, vT); st.v_lshl_add_u32(vT, vFL, 5, vT)
            st.s_mul_i32(sT0, sWI, 4 * 3072); st.s_add_u32(sT0, sT0, 1024); tload(vT, WQ, sT0)
        elif kind == "q":
            st.v_bfe_u32(vT, vL, 3, 2); st.v_mul_u32_u24(vT, 3072, vT); st.v_and_b32(vU, 7, vL); st.v_lshl_add_u32(vT, vU, 7, vT)
            st.s_mul_i32(sT0, sWI, 4 * 3072); tload(vT, WQ, sT0)
        elif kind == "wo":
            st.v_and_b32(vT, 31, vL); st.v_lshlrev_b32(vT, 7, vT); st.s_lshl_b32(sT0, sWI, 12); tload(vT, WO_, sT0)
        elif kind == "h":
            st.s_lshl_b32(sT0, sC, 4); st.s_add_u32(sT0, sT0, sJ); st.s_lshl_b32(sT0, sT0, 2); st.s_add_u32(sT0, sT0, sM)
            st.s_mul_i32(sT0, sT0, 43 * 128); st.s_add_u32(sT0, sT0, HB)
            st.v_min_u32(vT, 42, vL); st.v_lshlrev_b32(vT, 7, vT); tload(vT, WS, sT0)
        elif kind in ("h0", "h1"):
            n, o = (16, 0) if kind == "h0" else (27, 32768)
            st.s_lshl_b32(sT0, sC, 2); st.s_add_u32(sT0, sT0, sM); st.s_mul_i32(sT0, sT0, HB_TB)
            st.s_mul_i32(sT1, sJ, n * 128); st.s_add_u32(sT0, sT0, sT1); st.s_add_u32(sT0, sT0, HB + o)
            st.v_min_u32(vT, n - 1, vL); st.v_lshlrev_b32(vT, 7, vT); tload(vT, WS, sT0)
        elif kind == "x":
            st.s_lshl_b32(sT0, sC, 4); st.s_add_u32(sT0, sT0, sJ); st.s_lshl_b32(sT0, sT0, 2); st.s_add_u32(sT0, sT0, sM)
            st.s_lshl_b32(sT1, sT0, 11); st.s_add_u32(sT1, sT1, XB)
            st.s_lshl_b32(sT2, sT0, 8); st.s_add_u32(sT2, sT2, ST - 16 * 128)
            st.s_lshl_b32(sT3, sC, 2); st.s_add_u32(sT3, sT3, sM); st.s_lshl_b32(sT3, sT3, 10); st.s_add_u32(sT3, sT3, FL - 18 * 128)
            st.v_mov_b32(vU, sT1); st.v_mov_b32(vV, sT2); st.v_cmp_le_u32("vcc", 16, vL); st.v_cndmask_b32(vU, vU, vV, "vcc")
            st.v_mov_b32(vV, sT3); st.v_cmp_le_u32("vcc", 18, vL); st.v_cndmask_b32(vU, vU, vV, "vcc")
            st.v_min_u32(vT, 22, vL); st.v_lshl_add_u32(vT, vT, 7, vU); tload(vT, WS, 0)
        elif kind == "code":
            st.s_getpc_b64(s(100, 2))
            L = newlab("pc")
            st.label(L)
            st.raw(f"    s_sub_u32 s100, s100, {L}-{NAME}_kernel")
            st.raw("    s_subb_u32 s101, s101, 0")
            st.v_lshlrev_b32(vT, 7, vL); st.s_lshl_b32(sT0, sM, 13); st.v_add_u32(vT, sT0, vT)
            i = Ins("global_load_dword", [dum(), vT, s(100, 2)]); i.dst = set(); st.l.append(i)
            st.v_add_u32(vU, 32768, vT); st.v_min_u32(vU, f".Lslow-{NAME}_kernel", vU)
            i = Ins("global_load_dword", [dum(), vU, s(100, 2)]); i.dst = set(); st.l.append(i)
    gl = []
    for g in range(8):
        k0 = (16 * (g // 4) + (g % 4)) * 16
        for m_, srd in enumerate((WG, WU)):
            for i in range(3):
                def f(g=g, k0=k0, m_=m_, srd=srd, i=i):
                    if i == 0: st.s_add_u32(sLD, sGU, k0 * 2752)
                    st.buffer_load_dwordx4(v(GU + 24 * g + 12 * m_ + 4 * i, 4), vGG[i], srd, sLD, mods="offen" + POL(srd))
                gl.append(f)
    def gu_loads(cnt):
        for _ in range(min(cnt, len(gl))):
            f = gl.pop(0)
            if not OPT.get("noG"): f()
    def colsum(n, steps, first, lo, hi, dst=None):
        L = newlab("cs")
        st.s_sub_u32(sT0, sM, lo); st.s_cmp_ge_u32(sT0, hi - lo); st.mark("save", L); st.s_cbranch_scc1(L)
        nf = len(FRS)
        def rd(k):
            a, off = steps[k]; r = FRS[k % nf]
            st.ds_read_b64_tr_b16(v(r, 2), a, mods=f"offset:{off}"); st.ds_read_b64_tr_b16(v(r + 2, 2), a, mods=f"offset:{off+512}")
        for k in range(nf - 1): rd(k)
        for k in range(len(steps)):
            acc = v(CACC + 4 * (k & 1), 4)
            st.v_mfma_f32_16x16x32_bf16(acc, v(FRS[k % nf], 4), v(SEL, 4), "0" if first and k < 2 else acc)
            if k + nf - 1 < len(steps): rd(k + nf - 1)
        if dst is not None:
            for i in range(4): st.v_add_f32(v(CACC + i), v(CACC + i), v(CACC + 4 + i))
            st.ds_write_b128(dst, v(CACC, 4))
        st.mark("merge", L); st.label(L)
    def transpose(g):
        b = GU + 24 * g
        for m_ in range(2):
            for i in range(3): st.ds_write_b128(vGL[i], v(b + 12 * m_ + 4 * i, 4), mods=f"offset:{32*m_}")
        for t in range(6):
            for u in range(2): st.ds_read_b64_tr_b16(v(b + 4 * t + 2 * u, 2), vGT, mods=f"offset:{u*4*GSTR + t*64}")
    def tsum(g):
        b = GU + 24 * g
        for t in range(6):
            st.v_mfma_f32_16x16x32_bf16(v(CACC + 4 * t, 4), v(b + 4 * t, 4), v(SEL, 4), "0" if g == 0 else v(CACC + 4 * t, 4))
    tr_next = [0]
    def transposes(cnt):
        gs = list(range(tr_next[0], min(8, tr_next[0] + cnt))); tr_next[0] += len(gs)
        for i, g in enumerate(gs):
            transpose(g)
            if i > 0: tsum(gs[i - 1])
        tsum(gs[-1])
    def gu_partial():
        st.s_mul_i32(sT0, sM, 768); st.s_add_u32(sT0, sT0, L_VB); st.v_add_u32(vT, sT0, vCW)
        for i in range(6): st.ds_write_b128(vT, v(CACC + 4 * i, 4), mods=f"offset:{128*i}")
    def gu_reduce():
        st.v_min_u32(vCR, 6 * 128 - 16, vL16)
        st.v_add_u32(vT, L_VB, vCR)
        for w in range(4): st.ds_read_b128(v(CACC + 4 * w, 4), vT, mods=f"offset:{w*768}")
        for i in range(4):
            st.v_add_f32(v(CACC + i), v(CACC + i), v(CACC + 4 + i)); st.v_add_f32(v(CACC + 8 + i), v(CACC + 8 + i), v(CACC + 12 + i))
        for i in range(4): st.v_add_f32(v(CACC + i), v(CACC + i), v(CACC + 8 + i))
        for i in range(4):
            st.v_and_b32(v(CACC + 4 + i), 0xffff0000, v(CACC + i)); st.v_sub_f32(v(CACC + i), v(CACC + i), v(CACC + 4 + i))
            st.v_cvt_pk_bf16_f32(v(CACC + i), v(CACC + 4 + i), v(CACC + i))
        st.v_and_b32(vT, 0x380, vCR); st.v_and_b32(vU, 0x30, vCR); st.v_lshl_add_u32(vT, vU, 1, vT)
        st.v_bfe_u32(vU, vCR, 6, 1); st.v_lshl_add_u32(vT, vU, 4, vT); st.v_add_u32(vT, L_CS + 384, vT)
        st.ds_write_b128(vT, v(CACC, 4))
    def cs_kv(a):
        if a == 0:
            st.s_lshl_b32(sT0, sM, 6); st.v_xor_b32(vCR, sT0, vC0)
        else:
            st.s_lshl_b32(sT0, sM, 7); st.s_add_u32(sT0, sT0, L_CS); st.v_add_u32(vV, sT0, vCW)
        colsum(a, [(vCR, 32768 * a + 2048 * k) for k in range(16)], a == 0, 0, 2, dst=vV if a == 1 else None)
    def cs_q():
        st.v_add_u32(vT, 65536, vC0); st.v_add_u32(vU, 65536, vC1); st.v_add_u32(vV, L_CS + 256, vCW)
        colsum(2, [(a, 2048 * k) for k in range(16) for a in (vT, vU)], True, 2, 3, dst=vV)

    need = {"a0": [0], "a1": [1], "g": [3, 4], "30": [5, 6, 7, 8], "3c": [9], "3d": [10], "3f": [11], "4a": [12], "4b": [13], "4c": [14], "4d": [15], "4e": [16]}
    S0 = os_("s0", "start:c1;a0:c2,csk0;a1:csk1,wst,sigA,pub,G8,sigq,G16,wsig,X2,G12,X2,G12,X2,c3,c4,X2,Th0,Tx;g:part,c5,c6,Qk,S32;X2:c7,c8;")
    S0 += os_("s0b", "30:red,wst;3a:c9,Twd,Th1,nd;3b:c10,nd;3d:c11,c12;3f:c13;3g:c14;4a:S8;4b:c15,S8;4c:c16,S8;4d:S8;4e:c17;X4:c18")
    S1 = os_("s1", "a2:c2,sig,c3,c4;g:c5,c6;X2:c7,c8;")
    S1 += os_("s1b", "3a:c9,Twd,nd;3b:c10,nd;3c:c11;3d:c12;3f:c13;3g:c14;4b:c15;4c:c16")
    def acts(txt):
        d = {}
        for part in txt.split(";"):
            k, _, l = part.partition(":"); d[k] = l.split(",")
        return d
    DR = [False]
    def run(lst, o):
        for a in lst:
            DR[0] = False
            if a == "q": issue(2)
            elif a == "pub": publish()
            elif a == "wld": st.s_lshl_b32(sT0, sJ, 10); st.buffer_load_dwordx4(v(WRAW, 4), vL16, WP, sT0, mods="offen")
            elif a == "wst":
                st.v_bfe_u32(vT, vL, 3, 2); st.v_mul_u32_u24(vT, 576, vT); st.v_lshrrev_b32(vU, 5, vL); st.v_lshl_add_u32(vT, vU, 7, vT)
                st.v_and_b32(vU, 112, vL16); st.v_add_u32(vT, vT, vU); st.v_add_u32(vT, L_KVB, vT)
                st.ds_write_b128(vT, v(WRAW, 4))
            elif a == "non": st.buffer_load_dword(vNON, "off", WS, 0, mods=f"offset:{EPOCH} sc1")
            elif a == "sig":
                st.l.append(Ins("s_nop", ["0"], tneed=f"c{o+2}")); signal(st, 1 + o // 17)
            elif a == "sigA": signal(st, 1, 16)
            elif a == "sigq":
                L = newlab("sq")
                st.l.append(Ins("s_nop", ["0"], tneed=f"c{o+2}")); signal(st, 1, 32)
                st.s_cmp_lg_u32(sM, 2); st.mark("save", L); st.s_cbranch_scc1(L)
                st.v_mov_b32(vU, 1); sigwait(st, 12, 48, regs=(13, 14, 15))
                st.mark("merge", L); st.label(L)
                cs_q(); signal(st, 1)
            elif a == "wsig": st.v_mov_b32(vU, 2); sigwait(st, 12, 32, regs=(13, 14, 15))
            elif a.startswith("csk"): cs_kv(int(a[3]))
            elif a == "csq": cs_q()
            elif a == "part": gu_partial()
            elif a == "red": gu_reduce()
            elif a[0] == "P": st.s_setprio(int(a[1:]))
            elif a == "nd": DR[0] = True
            elif a == "wv": st.wait(vm=0)
            elif a[0] == "Q": squeue(a[1:])
            elif a[0] == "S":
                if LDSW(st): st.wait(lgkm=0)
                DR[0] = True; spf(int(a[1:]))
            elif a[0] == "c": issue(o + int(a[1:]))
            elif a[0] == "r" and a[1:].isdigit(): stage(o + int(a[1:]))
            elif a[0] == "u" and a[1:].isdigit(): unstage(o + int(a[1:]))
            elif a[0] == "@": stamp(st, a, who="l", pair=o // 17)
            elif a[0] == "G": gu_loads(int(a[1:]))
            elif a[0] == "X": transposes(int(a[1:]))
            elif a[0] == "T": touch(a[1:])
            else: raise ValueError(a)
    prologue()
    for pair in range(1 if OPT['stop'] else 2):
        o = 17 * pair; A = acts(S0 if pair == 0 else S1)
        run(A.get("start", []), o)
        for b in (SEQ0 if pair == 0 else SEQA) + SEQC:
            tk = []
            for n in need.get(b, []):
                assert o + n in issued, (pair, b, n)
                tk.append(f"c{o+n}")
            stamp(st, "<" + b, who="l", pair=pair)
            if not DR[0] and LDSW(st): st.wait(lgkm=0)
            DR[0] = False
            st.l.append(Ins("s_barrier", [], tneed=tk))
            run(A.get(b, []), o)
    assert OPT['stop'] or (not gl and tr_next[0] == 8)
    st.s_branch(".Lend")

def main():
    st = Stream()
    entry(st)
    loader(st)
    st.label(".Lslow")
    compute_slow(st)
    st.extend(OOL)
    st.label(".Lend")
    st.s_endpgm()
    bodyt = finalize(st)
    ref = open(f"cdna_kernels/{NAME}.s.ref").read().split("\n")
    head = [l for l in ref if l.startswith(";") and "@launch" not in l]
    out = "\n".join(head) + f"\n; @launch grid=(256,1,1) block=(512,1,1) lds={LDS_BYTES}\n"
    out += '.amdgcn_target "amdgcn-amd-amdhsa--gfx950"\n' + khead(NAME + "_kernel") + bodyt + kd(NAME + "_kernel")
    path = sys.argv[1] if len(sys.argv) > 1 else f"cdna_kernels/{NAME}.s"
    open(path, "w").write(out)
    stamp_names["opt"] = " ".join(a for a in sys.argv[2:] if not a.startswith(("stamps", "only"))); json.dump(stamp_names, open(path + ".json", "w"))
    n = sum(1 for l in bodyt.split("\n") if l.startswith("    ") and not l.strip().startswith(";"))
    print("wrote", path, "instructions:", n, "barriers:", SEQ0, SEQA, SEQC)

main()
```

```python
import sys, os, math, struct, json
sys.path.insert(0, os.path.dirname(os.path.abspath(__file__)))
from asmlib import *
from layout5 import *

NAME = "interleave_layers__linear_kernel_hedgehog__geglu_ffn__prompt"
OPT = dict(stop=None, stamps=False)
for a in sys.argv[2:]:
    k, _, val = a.partition("=")
    OPT[k] = val if val != "" else True
def oi(k, d): return int(OPT.get(k, d))
def os_(k, d): return str(OPT.get(k, d))
SCL = "sc1"
def f2u(x): return "0x%08x" % struct.unpack("<I", struct.pack("<f", x))[0]
LOG2E = 1.4426950408889634
class G: SC = ""; TAG = "f"; SEQ = None; REC = True

WS, X_, OUT, WQ, WP, WO_, WG, WU, WD = [s(4 + 4 * i, 4) for i in range(9)]
sXC = s(40)
sC, sJ, sHF, sCG, sM, sNONCE, sCNT, sPAIR = [s(66 + i) for i in range(8)]
sW = s(3)
sXLD, sSTLD, sFA, sXST, sSTST, sFXST = [s(74 + i) for i in range(6)]
sOST, sFB, sFJ = s(80), s(81), s(82)
sHLD, sHST = s(84), s(85)
sKVST, sKVLD, sFKVST, sFKVLD = [s(88 + i) for i in range(4)]
sKZ, sGZ, sHALF, sH5, sF5, sHS = s(62), s(63), s(60, 2), s(49), s(83), s(41)
sT0, sT1, sT2, sT3 = [s(92 + i) for i in range(4)]
sL2E, sONE, sOUTO, sT6 = s(96), s(97), s(98), s(99)
sSTMP = s(100, 2)
sRING, sKH, sTP, sDUM, sLD = s(44), s(45), s(46), s(47), s(48)
vL, vL16, vA0, vFL = v(0), v(1), v(2), v(3)
RES = 4
vNON = v(12); vT = v(13); vU = v(14); vV = v(15)
vA1, vP0, vP1 = v(121), v(122), v(123)
aXW = v(126)
XF = 128
cWDb = [s(52 + i) for i in range(4)]; sDM = s(56)
aEW, aER, vEVv, vEVr, aCS3 = v(112), v(113), v(114), v(115), v(120)
aP4, vS4 = v(124), v(125)

class bc:
    def __init__(self, r, neg=False): self.r = int(r[1:]) if isinstance(r, str) else r; self.neg = neg
class ng:
    def __init__(self, r): self.r = r
def pk(st, op, d, *src):
    ops, lo, hi, n = [], [], [], []
    for x in src:
        if isinstance(x, bc): ops.append(v(x.r & ~1, 2)); lo.append(x.r & 1); hi.append(x.r & 1); n.append(int(x.neg))
        elif isinstance(x, ng): ops.append(v(x.r, 2)); lo.append(0); hi.append(1); n.append(1); assert x.r % 2 == 0
        else: ops.append(v(x, 2)); lo.append(0); hi.append(1); n.append(0); assert x % 2 == 0
    assert d % 2 == 0
    f = lambda l: "[" + ",".join(map(str, l)) + "]"
    mods = f"op_sel:{f(lo)} op_sel_hi:{f(hi)}" + (f" neg_lo:{f(n)} neg_hi:{f(n)}" if any(n) else "")
    st.op(f"v_pk_{op}_f32", v(d, 2), *ops, mods=mods)

lab_n = [0]
def newlab(p):
    lab_n[0] += 1
    return f".L{p}_{lab_n[0]}"

def nxt(st):
    st.s_add_u32(sNONCE, sNONCE, 1); st.v_add_u32(vNON, 1, vNON)

def poll(st, addr, soff, off=0):
    L = newlab("poll"); D = newlab("pdone")
    st.label(L)
    st.buffer_load_dword(vT, addr, WS, soff, mods=f"offen offset:{off} sc1")
    st.wait(vm=0)
    st.v_cmp_ne_u32("vcc", sNONCE, vT)
    st.s_cbranch_vccz(D)
    st.s_sub_u32(sCNT, sCNT, 1)
    st.s_cbranch_scc0(L)
    st.s_mov_b32(sCNT, 0)
    st.label(D)

OOL = Stream()
def soft_check(st, reg, addr, soff, off=0):
    D = newlab("soft"); X = newlab("softx")
    st.v_cmp_ne_u32("vcc", sNONCE, reg)
    st.s_cbranch_vccnz(X)
    st.label(D)
    OOL.label(X); OOL.mark("reset")
    poll(OOL, addr, soff, off)
    OOL.s_branch(D)

stamp_names = {"c": [], "l": []}
def stamp(st, name, real=False, who="c", pair=None):
    if OPT.get("cap") and who == "c" and name == OPT["cap"].split("@")[0]:
        (st.s_memrealtime if OPT.get("capr") else st.s_memtime)(sSTMP); st.wait(lgkm=0)
        st.s_cmp_eq_u32(sPAIR, int(OPT["cap"].split("@")[1])); st.s_cselect_b32(s(43), s(100), s(43))
    if not OPT["stamps"]: return
    only = OPT.get("only")
    if only and who == "l" and not OPT.get("lst"): return
    if only and who == "c" and not isinstance(name, int) and name not in ("start", "end") and name not in only.split(","): return
    if isinstance(name, int): idx = name
    else:
        if name not in stamp_names[who]: stamp_names[who].append(name)
        idx = stamp_names[who].index(name)
    r = v(127) if who == "c" else v(63)
    if name == 62: st.v_mov_b32(r, s(42))
    elif name == "start" and who == "c": st.v_mov_b32(r, s(86))
    elif name == "karg": st.wait(lgkm=0); st.v_mov_b32(r, s(0))
    else:
        if real: st.s_memrealtime(sSTMP)
        else: st.s_memtime(sSTMP)
        st.wait(lgkm=0)
        st.v_mov_b32(r, s(100))
    if pair is None:
        st.s_lshl_b32(s(101), sPAIR, 8)
        st.s_add_u32(s(101), s(101), s(65))
    else:
        st.s_add_u32(s(101), s(65), 256 * pair)
    st.buffer_store_dword(r, "off", WS, s(101), mods=f"offset:{idx*4}")

def ring_addr(st, mode):
    if mode in ("trq", "trn"):
        st.v_add_u32(vA0, sRING, vP0 if mode == "trq" else vP1); st.v_xor_b32(vA1, 64, vA0)
    elif mode == "b128":
        st.v_add_u32(vA0, sRING, vL16)
def ring_next(st, mode=None):
    st.s_add_u32(sRING, sRING, 0x8000); st.s_and_b32(sRING, sRING, 0x1ffff)
    ring_addr(st, mode)
def barrier(st, name, drain=False):
    if drain: st.wait(lgkm=0)
    st.s_barrier()
    if G.REC: G.SEQ.append(name)

def signal(st, val=None, off=0):
    t0, t1 = (v(124), v(125)) if val is None else (vT, vU)
    st.s_lshl_b32(sT3, sW, 2); st.s_add_u32(sT3, sT3, L_SIG + off); st.v_mov_b32(t0, sT3)
    if val is None: st.v_add_u32(t1, 1, sPAIR)
    else: st.v_mov_b32(t1, val)
    st.ds_write_b32(t0, t1)
def sigwait(st, mask=28, off=0, regs=(124, 125, 126), cmp="ne", extra=None):
    L = newlab("sig"); D = newlab("sigd")
    a, e, r = [v(x) for x in regs]
    st.v_and_b32(a, mask, vFL); st.v_add_u32(a, L_SIG + off, a)
    if extra:
        st.ds_read_b32(r, a)
        extra(st)
        st.wait(lgkm=0)
        st.op(f"v_cmp_{cmp}_u32", "vcc", e, r)
        st.s_cbranch_vccz(D)
    st.label(L)
    st.ds_read_b32(r, a)
    st.wait(lgkm=0)
    st.op(f"v_cmp_{cmp}_u32", "vcc", e, r)
    st.s_cbranch_vccz(D)
    st.s_sub_u32(sCNT, sCNT, 1)
    st.s_cbranch_scc0(L)
    st.s_mov_b32(sCNT, 0)
    st.label(D)

def lane_tr(st, d0, d1, kind, stride=128, tmp=vT, hstride=None):
    st.v_bfe_u32(d0, vL, 2, 2)
    if stride == 128: st.v_lshlrev_b32(d0, 7, d0)
    else: st.v_mul_u32_u24(d0, stride, d0)
    st.v_lshrrev_b32(tmp, 5, vL)
    st.v_lshl_add_u32(d0, tmp, int(math.log2(hstride or 8 * stride)), d0)
    sh = dict(qkv=(5, 4), nat=(4, 5))[kind]
    st.v_and_b32(tmp, 1, vL); st.v_lshl_add_u32(d0, tmp, sh[0], d0)
    st.v_bfe_u32(tmp, vL, 1, 1); st.v_lshl_add_u32(d0, tmp, 3, d0)
    st.v_bfe_u32(tmp, vL, 4, 1); st.v_lshl_add_u32(d0, tmp, sh[1], d0)
    if stride == 128:
        st.v_bfe_u32(tmp, vL, 3, 1); st.v_lshl_add_u32(d0, tmp, 6, d0)
        if d1: st.v_xor_b32(d1, 64, d0)

gemm_n = [0]
def gemm(st, items, mode, af, nslots, depth, ready, bars=None, fill=None, budget=16, hooks=None, loads=None, pre=10, every=2, pairw=0):
    n = len(items); loads = list(loads or []); ready = set(ready); bars = bars or {}
    nr = 0; gemm_n[0] += 1; tg = f"g{gemm_n[0]}_"
    def pump(upto):
        nonlocal nr
        while nr < n and nr <= upto:
            it = items[nr]; r = af + 4 * (nr % nslots)
            assert it["chunk"] in ready, (nr, it["chunk"])
            if nr > 0 and it["chunk"] != items[nr - 1]["chunk"]: ring_next(st, mode)
            if mode != "b128":
                a = vA1 if it["t"] else vA0
                st.ds_read_b64_tr_b16(v(r, 2), a, mods=f"offset:{it['off']}")
                st.ds_read_b64_tr_b16(v(r + 2, 2), a, mods=f"offset:{it['off']+512}", tset=tg + str(nr))
            else:
                st.ds_read_b128(v(r, 4), vA0, mods=f"offset:{it['off']}", tset=tg + str(nr))
            nr += 1
    for _ in range(min(pre, len(loads))): loads.pop(0)(st)
    pump(depth - 1)
    for i in range(n):
        it = items[i]
        if hooks and i in hooks: hooks[i](st)
        acc = v(it["acc"], 16)
        st.v_mfma_f32_32x32x16_bf16(acc, v(af + 4 * (i % nslots), 4), v(it["b"], 4), "0" if it["first"] else acc,
                                    tneed=tg + str(i + 1) if pairw and i % 2 == 0 and i + 1 < nr else None)
        if i in bars:
            barrier(st, bars[i][0]); ready |= set(bars[i][1])
        pump(i + depth)
        if loads and i % every == every - 1: loads.pop(0)(st)
        if fill is not None: fill.take(st, budget(i) if callable(budget) else budget)
    assert not loads

def entry(st):
    st.s_cmp_ge_u32(s(2), 256)
    st.s_cbranch_scc1(".Lend")
    if OPT["stamps"]: st.s_memrealtime(s(42, 2)); st.s_memtime(s(86, 2))
    if OPT.get("dbg"): st.s_memrealtime(s(42, 2)); st.s_memtime(s(86, 2))
    st.s_load_dwordx16(s(44, 16), s(0, 2), 0)
    st.s_load_dwordx4(s(60, 4), s(0, 2), 64)
    st.s_load_dwordx2(s(64, 2), s(0, 2), 80)
    st.v_lshrrev_b32(vT, 6, v(0))
    st.v_and_b32(vL, 63, v(0))
    st.v_readfirstlane_b32(sW, vT)
    st.v_lshlrev_b32(vL16, 4, vL)
    st.v_and_b32(vFL, 15, vL)
    st.v_lshlrev_b32(vFL, 2, vFL)
    st.s_and_b32(sT0, s(2), 7)
    st.s_lshr_b32(sT1, s(2), 3)
    st.s_lshr_b32(sC, sT1, 4)
    st.s_lshl_b32(sT0, sT0, 1)
    st.s_add_u32(sC, sC, sT0)
    st.s_and_b32(sJ, sT1, 15)
    st.s_lshr_b32(sHF, sJ, 3)
    st.s_and_b32(sCG, sJ, 7)
    st.s_and_b32(sM, sW, 3)
    st.s_mov_b32(sCNT, 1 << 18)
    st.s_mov_b32(sPAIR, 0)
    st.s_cmp_lt_u32(sJ, 6)
    st.s_cselect_b32(sT6, 1, 0)
    st.s_getreg_b32(sXC, "hwreg(HW_REG_XCC_ID, 0, 4)")
    for d in (WS, X_, OUT, WQ, WP, WO_, WG, WU, WD):
        st.s_mov_b32(s(int(d[2:d.index(":")]) + 3), 0x20000)
    for d, size in ((X_, 2048 * 1024), (WQ, 512 * 3072), (WS, WS_SIZE), (WP, 32 * 512), (WO_, 512 * 1024), (WG, 512 * 2752),
                    (WU, 512 * 2752), (WD, 1376 * 1024), (OUT, 2048 * 1024)):
        st.s_mov_b32(s(int(d[2:d.index(":")]) + 2), size)
    if oi("cfirst", 1):
        st.s_cmp_ge_u32(sW, 4); st.s_cbranch_scc1(".Lld0")
        compute(st)
        st.label(".Lld0"); st.mark("reset")
    else:
        st.s_cmp_lt_u32(sW, 4); st.s_cbranch_scc1(".Lcomp")

def rot(st, d, t):
    if not oi("rot", 0): st.s_mov_b32(d, 0); return
    st.s_and_b32(d, sJ, 1); st.s_and_b32(t, sC, 1); st.s_lshl_b32(t, t, 1); st.s_add_u32(d, d, t); st.s_lshl_b32(d, d, 1)
    st.s_lshr_b32(t, sJ, 1); st.s_add_u32(d, d, t)

def srds(st, lst):
    src = {X_: 44, WQ: 46, WP: 48, WO_: 50, WG: 54, WU: 56, WD: 58, OUT: 60, WS: 64}
    for d in lst:
        b = int(d[2:d.index(":")])
        st.s_mov_b32(s(b), s(src[d])); st.s_and_b32(s(b + 1), s(src[d] + 1), 0xffff)

def stamp_base(st):
    if OPT["stamps"]:
        st.s_lshl_b32(s(65), s(2), 3); st.s_add_u32(s(65), s(65), sW); st.s_lshl_b32(s(65), s(65), 9)
        st.s_add_u32(s(65), s(65), STAMP)

aK, aV, aQ, AF1, WPH, STT = 16, 32, 48, 64, 88, 96
NM, RS, VE, LR = v(112), v(113), v(114), v(115)
aCS, aA, aB, aR1, aR2 = v(116), v(117), v(118), v(119), v(120)

def kv_items():
    return [dict(chunk=k // 16, off=(k % 16) * 2048, t=t, acc=acc, b=XF + 4 * k, first=k == 0)
            for k in range(32) for t, acc in ((0, aK), (1, aV))]

CK, CV = aQ, STT
def k_addr(st):
    st.v_lshrrev_b32(vU, 5, vL); st.v_and_b32(vT, 1, vL); st.v_cmp_eq_u32("vcc", vT, vU)
    st.v_lshlrev_b32(aCS, 6, vU); st.v_add_u32(aCS, L_CS, aCS)
    st.v_lshlrev_b32(aR1, 7, vU); st.v_and_b32(vT, 12, vL); st.v_lshl_add_u32(aR1, vT, 3, aR1)
    st.v_and_b32(vT, 16, vL); st.v_add_u32(aR1, aR1, vT); st.v_and_b32(vT, 2, vL); st.v_lshl_add_u32(aR1, vT, 2, aR1)
    st.v_mov_b32(vT, 544); st.v_cndmask_b32(aR1, vT, aR1, "vcc"); st.v_add_u32(aR1, L_KVB, aR1)
    st.v_and_b32(vT, 31, vL); st.s_lshl_b32(sT0, sM, 5); st.v_add_u32(vT, sT0, vT)
    st.v_mul_u32_u24(aA, 144, vT); st.v_lshl_add_u32(aA, vU, 6, aA); st.v_add_u32(aA, L_PH, aA)
    st.v_mul_u32_u24(aB, 80, vT); st.v_lshl_add_u32(aB, vU, 5, aB); st.v_add_u32(aB, L_VB, aB)
def k_reads(st, which="wkv"):
    if "k" in which:
        for i in range(4): st.ds_read_b128(v(CK + 4 * i, 4), aCS, mods=f"offset:{16*i}")
    if "w" in which:
        for q in range(4): st.ds_read_b64_tr_b16(v(WPH + 2 * q, 2), aR1, mods=f"offset:{576*q}")
    if "v" in which:
        for i in range(4): st.ds_read_b128(v(CV + 4 * i, 4), aCS, mods=f"offset:{128+16*i}")

def fin_stats(st, S, Q, t0, t1, negmean, rstd, vare):
    if t0: st.v_mov_b32(t0, S)
    st.v_mov_b32(t1, Q)
    if t0: st.v_permlane32_swap_b32(S, t0)
    st.v_permlane32_swap_b32(Q, t1)
    if t0: st.v_add_f32(S, S, t0)
    st.v_add_f32(Q, Q, t1)
    st.v_mul_f32(negmean, f2u(-1.0 / 512), S)
    st.v_mul_f32(Q, f2u(1.0 / 512), Q)
    st.v_fma_f32(vare, "-" + negmean, negmean, Q)
    st.v_max_f32(vare, 0, vare)
    st.v_add_f32(vare, f2u(1e-5), vare)
    st.v_rsq_f32(rstd, vare)

def stats(st, stt, negmean, rstd, vare):
    S, Q = v(stt), v(stt + 1)
    for i in range(4): st.v_add_f32(v(stt + i), v(stt + i), v(stt + 4 + i))
    for i in range(4): st.v_add_f32(v(stt + 8 + i), v(stt + 8 + i), v(stt + 12 + i))
    for i in range(4): st.v_add_f32(v(stt + i), v(stt + i), v(stt + 8 + i))
    st.v_add_f32(S, S, v(stt + 2)); st.v_add_f32(Q, Q, v(stt + 3))
    fin_stats(st, S, Q, v(stt + 2), v(stt + 3), negmean, rstd, vare)

def p1a0(st):
    g0, g1, aW = v(118), v(119), v(120)
    aRd = [v(88 + i) for i in range(4)]
    QD, SA, SELA = 96, 112, 92
    st.v_lshrrev_b32(vT, 3, vL); st.v_and_b32(vV, 7, vL)
    st.v_lshlrev_b32(g0, 10, vT); st.v_lshl_add_u32(g0, vV, 4, g0)
    st.s_lshl_b32(sT0, sC, 2); st.s_add_u32(sT0, sT0, sM); st.s_lshl_b32(sT0, sT0, 15)
    GA = [v(48 + g) for g in range(4)]
    st.v_lshlrev_b32(g1, 5, vFL); st.s_lshl_b32(sT1, sJ, 11); st.s_add_u32(sT1, sT1, sT0)
    for g in range(4):
        st.v_add_u32(GA[g], sT0, g0)
        if g < 3: st.s_add_u32(sT0, sT0, 8192)
    if oi("tk0", 0):
        st.v_lshrrev_b32(vT, 5, vL); st.v_lshlrev_b32(vT, 8, vT); st.v_bfe_u32(vU, vL, 4, 1); st.v_add_u32(vT, vT, vU)
        st.v_mul_u32_u24(v(124), 3072, vT); st.v_lshl_add_u32(v(124), vFL, 5, v(124))
        st.s_and_b32(sT2, sC, 1); st.s_lshl_b32(sT2, sT2, 4); st.s_add_u32(sT2, sT2, sJ); st.s_lshl_b32(sT2, sT2, 2); st.s_add_u32(sT2, sT2, sM)
        st.s_mul_i32(sT2, sT2, 2 * 3072); st.s_add_u32(sT2, sT2, 1024)
    sR, sQO = s(41), s(83)
    rot(st, sR, sT0)
    def xl(p, st):
        st.s_add_u32(sQO, sR, p); st.s_and_b32(sQO, sQO, 7); st.s_lshl_b32(sQO, sQO, 7)
        if p == 0:
            st.wait(lgkm=0)
            srds(st, [X_])
            if OPT["stamps"]: st.s_memtime(s(0, 2))
            if oi("tx0", 1):
                i = Ins("buffer_load_dword", [v(126), g1, X_, sT1], "offen"); i.dst = set(); st.l.append(i)
            if oi("tk0", 0):
                srds(st, [WQ])
                i = Ins("buffer_load_dword", [v(125), v(124), WQ, sT2], "offen"); i.dst = set(); st.l.append(i)
        for g in range(4):
            st.buffer_load_dwordx4(v(XF + 16 * p + 4 * g, 4), GA[g], X_, sQO, mods="offen")
    n0 = oi("xn0", 2); n1 = oi("xn1", 4)
    for p in range(n0): xl(p, st)
    srds(st, [WS, OUT])
    stamp_base(st)
    stamp(st, 62, True)
    stamp(st, "start")
    stamp(st, "karg"); stamp(st, "xissued")
    st.buffer_load_dword(vNON, "off", WS, 0, mods=f"offset:{EPOCH} sc1")
    st.s_and_b32(sKH, sM, 1); st.s_lshr_b32(sTP, sM, 1); st.s_mov_b32(sRING, 0)
    st.v_and_b32(aA, 31, vL); st.v_lshlrev_b32(aA, 10, aA); st.v_lshrrev_b32(vT, 5, vL); st.v_lshl_add_u32(aA, vT, 4, aA)
    st.s_lshl_b32(sOUTO, sC, 17); st.s_lshl_b32(sT1, sHF, 16); st.s_add_u32(sOUTO, sOUTO, sT1)
    st.s_lshl_b32(sT1, sTP, 15); st.s_add_u32(sOUTO, sOUTO, sT1); st.s_lshl_b32(sT1, sCG, 7); st.s_add_u32(sOUTO, sOUTO, sT1)
    st.s_lshl_b32(sT1, sKH, 6); st.s_add_u32(sOUTO, sOUTO, sT1)
    st.s_mov_b32(sL2E, f2u(LOG2E)); st.s_mov_b32(sONE, 0x3f803f80)
    st.s_lshl_b32(sT0, sC, 2); st.s_add_u32(sT1, sT0, sM)
    st.s_lshl_b32(sXLD, sT1, 15); st.s_add_u32(sXLD, sXLD, XB)
    st.s_lshl_b32(sSTLD, sT1, 12); st.s_add_u32(sSTLD, sSTLD, ST)
    st.s_lshl_b32(sFA, sT1, 10); st.s_add_u32(sFA, sFA, FL)
    st.s_lshl_b32(sT2, sJ, 2); st.s_add_u32(sFJ, sFA, sT2)
    st.s_mul_i32(sHST, sT1, HB_TB); st.s_add_u32(sHST, sHST, HB)
    st.s_lshl_b32(sT2, sJ, 11); st.s_add_u32(sOST, sHST, sT2)
    st.s_mov_b32(s(60), 0); st.s_mov_b32(s(61), -1)
    st.s_lshl_b32(sT2, sJ, 10); st.s_add_u32(sHST, sHST, sT2)
    st.s_lshl_b32(sDUM, sT1, 11); st.s_add_u32(sDUM, sDUM, DUMMY)
    st.s_lshl_b32(sT1, sHF, 1); st.s_add_u32(sT1, sT1, sT0); st.s_add_u32(sT1, sT1, sTP)
    st.s_lshl_b32(sT3, sCG, 1); st.s_add_u32(sT3, sT3, sKH)
    st.s_lshl_b32(sXST, sT1, 15); st.s_lshl_b32(sT2, sT3, 11); st.s_add_u32(sXST, sXST, sT2); st.s_add_u32(sXST, sXST, XB)
    st.s_lshl_b32(sSTST, sT1, 12); st.s_lshl_b32(sT2, sCG, 9); st.s_add_u32(sSTST, sSTST, sT2)
    st.s_lshl_b32(sT2, sKH, 3); st.s_add_u32(sSTST, sSTST, sT2); st.s_add_u32(sSTST, sSTST, ST)
    st.s_lshl_b32(sFB, sT1, 10); st.s_add_u32(sFB, sFB, FL)
    st.s_lshl_b32(sT2, sT3, 2); st.s_add_u32(sFXST, sFB, sT2)
    st.s_lshl_b32(sT2, sKH, 10)
    st.s_mul_i32(sHLD, sT1, HB_TB); st.s_add_u32(sHLD, sHLD, sT2); st.s_add_u32(sHLD, sHLD, HB)
    st.s_mul_i32(sKVLD, sJ, KV_J); st.s_add_u32(sKVLD, sKVLD, KVP)
    st.s_mul_i32(sKVST, sC, KV_REC); st.s_add_u32(sKVST, sKVST, sKVLD)
    st.s_lshl_b32(sT1, sKH, 7); st.s_lshl_b32(sT2, sTP, 5); st.s_add_u32(sT1, sT1, sT2); st.s_add_u32(sKZ, sKVST, sT1); st.s_add_u32(sKZ, sKZ, 2048)
    st.s_lshl_b32(sT1, sKH, 10); st.s_lshl_b32(sT2, sTP, 6); st.s_add_u32(sT1, sT1, sT2); st.s_add_u32(sKVST, sKVST, sT1)
    st.s_lshl_b32(sT1, sM, 6); st.s_add_u32(sGZ, sKVLD, sT1); st.s_add_u32(sGZ, sGZ, 2048)
    st.s_lshl_b32(sT1, sM, 9); st.s_add_u32(sKVLD, sKVLD, sT1)
    st.s_lshl_b32(sFKVLD, sJ, 11); st.s_add_u32(sFKVLD, sFKVLD, FKV)
    st.s_lshl_b32(sT1, sC, 7); st.s_lshl_b32(sT2, sM, 2); st.s_add_u32(sFKVST, sT1, sT2); st.s_add_u32(sFKVST, sFKVST, sFKVLD)
    for i in range(4): st.v_mov_b32(v(96 + i), 0)
    st.v_and_b32(vT, 3, vL); st.v_mul_u32_u24(vT, 576, vT); st.v_add_u32(vT, L_KVB + 544, vT)
    st.ds_write_b128(vT, v(96, 4))
    st.v_and_b32(vT, 112, vL16); st.v_add_u32(vT, L_SIG, vT)
    st.ds_write_b128(vT, v(96, 4))
    st.v_bfe_u32(vT, vL, 4, 1); st.v_and_b32(vU, 1, vL); st.v_cmp_eq_u32("vcc", vT, vU)
    st.v_mov_b32(vV, sONE)
    for i in range(4): st.v_cndmask_b32(v(SELA + i), 0, vV, "vcc")
    st.s_lshl_b32(sT0, sM, 12); st.s_add_u32(sT0, sT0, L_PH)
    st.v_and_b32(vT, 48, vL); st.v_xor_b32(vT, vT, vL16); st.v_add_u32(aW, sT0, vT); st.v_xor_b32(g1, 64, aW)
    st.v_and_b32(vT, 31, vL); st.v_lshrrev_b32(vU, 5, vL); st.v_bfe_u32(vV, vL, 1, 3); st.v_xor_b32(vU, vU, vV)
    st.v_lshlrev_b32(vT, 7, vT); st.v_lshl_add_u32(vT, vU, 4, vT); st.v_add_u32(aRd[0], sT0, vT)
    for i in range(1, 4): st.v_xor_b32(aRd[i], 32 * i, aRd[0])
    lane_tr(st, vP0, None, "qkv"); ring_addr(st, "trq")
    def rnd(q, st):
        R = XF + 16 * q
        for g in range(4): st.ds_write_b128(g1 if g & 1 else aW, v(R + 4 * g, 4), mods=f"offset:{1024*g}")
        for i in range(4): st.ds_read_b128(v(R + 4 * i, 4), aRd[i])
    def smf(k, st):
        f = v(XF + 4 * k, 4)
        st.v_mfma_f32_32x32x16_bf16(v(QD, 16), f, f, "0" if k == 0 else v(QD, 16))
        st.v_mfma_f32_16x16x32_bf16(v(SA, 4), v(SELA, 4), f, "0" if k == 0 else v(SA, 4))
    def res(st):
        st.buffer_load_dwordx4(v(RES, 4), aA, X_, sOUTO, mods="offen")
        st.buffer_load_dwordx4(v(RES + 4, 4), aA, X_, sOUTO, mods="offen offset:32")
    hooks = {}
    hq = oi("hq", 8)
    for p in range(n0, n1): xl(p, st)
    nl = n1
    rnd(0, st)
    for q in range(hq):
        if nl < 8: xl(nl, st); nl += 1
        if q < 7: rnd(q + 1, st)
        for k in range(4 * q, 4 * q + 4): smf(k, st)
    while nl < 8: xl(nl, st); nl += 1
    acts = {}
    at = oi("rnd0", 2); gap = oi("rndgap", 8)
    for n, q in enumerate(range(hq, 8)):
        i0 = at + gap * n
        if q < 7: acts.setdefault(i0, []).append(lambda st, q=q: rnd(q + 1, st))
        for u in range(4): acts.setdefault(i0 + 1 + 2 * u, []).append(lambda st, k=4 * q + u: smf(k, st))
        assert i0 < 8 * (q + 1) - 2
    acts.setdefault(oi("res0", 40), []).append(res)
    for i, l in acts.items(): hooks[i] = lambda st, l=l: [f(st) for f in l]
    stamp(st, "p1pre")
    barrier(st, "a0", drain=True)
    stamp(st, "B(a0)")
    bars = {oi("a1", 20): ("a1", [1])}
    f = Stream()
    M = [s(50 + 2 * i, 2) for i in range(5)]
    for i, bit in enumerate((16, 8, 2, 1)):
        f.v_and_b32(vT, bit, vL); f.v_cmp_ne_u32(M[i], 0, vT)
    f.v_bfe_u32(vT, vL, 2, 1); f.v_lshrrev_b32(vU, 5, vL); f.v_cmp_eq_u32(M[4], vT, vU)
    f.v_cndmask_b32(v(SA), v(SA), v(SA + 1), M[0])
    for i in range(8): f.v_cndmask_b32(v(QD + i), v(QD + i), v(QD + 8 + i), M[0])
    for i in range(4): f.v_cndmask_b32(v(QD + i), v(QD + i), v(QD + 4 + i), M[1])
    for i in range(2): f.v_cndmask_b32(v(QD + i), v(QD + i), v(QD + 2 + i), M[2])
    f.v_cndmask_b32(v(QD), v(QD), v(QD + 1), M[3])
    f.v_cndmask_b32(v(QD), 0, v(QD), M[4])
    fin_stats(f, v(SA), v(QD), None, v(QD + 1), NM, RS, VE)
    f.v_mul_f32(LR, sL2E, RS)
    g = Stream(); k_addr(g)
    lane_tr(g, vP1, None, "nat")
    g.s_lshl_b32(sT2, sKH, 6); g.v_xor_b32(vP1, sT2, vP1); g.s_lshl_b32(sT2, sKH, 11); g.v_add_u32(vP1, sT2, vP1)
    fill = Filler()
    assert hq == 8
    r0 = oi("res0", 24)
    hooks = {2: lambda st: fill.add(f), r0: res, r0 + 1: lambda st: fill.add(g)}
    gemm(st, kv_items(), "trq", AF1, 6, 5, ready=[0], bars=bars, hooks=hooks, fill=fill, budget=oi("bud1", 8))
    fill.flush(st)
    st.v_add_u32(vNON, 1, vNON)
    st.v_mov_b32(v(125), 1); sigwait(st, 12, 32, cmp="gt")
    k_reads(st)
    st.v_readfirstlane_b32(sNONCE, vNON)
    signal(st, 2, 32)
    st.s_add_u32(sH5, sHST, 16384 * 5); st.s_add_u32(sF5, sDUM, 1024)
    st.s_cmp_eq_u32(sT6, 1); st.s_cselect_b32(sH5, sH5, sDUM); st.s_cselect_b32(sF5, sFJ, sF5)
    stamp(st, "KVgemm")

def frag_loads(base, regs, stride, per):
    out = []
    for k, r in enumerate(regs):
        def f(st, k=k, r=r):
            if k % per == 0: st.s_add_u32(sLD, base, k * stride)
            st.buffer_load_dwordx4(v(r, 4), vL16, WS, sLD, mods=f"offen offset:{(k % per) * stride} {SCL}")
        out.append(f)
    return out

def x_addr(st):
    st.v_lshrrev_b32(vV, 5, vL); st.v_lshlrev_b32(vV, 11, vV); st.v_and_b32(vU, 31, vL); st.v_lshl_add_u32(vV, vU, 4, vV)
def p1a_pre(st):
    ring_next(st, "trq"); x_addr(st)
def p3_pre(st):
    st.v_and_b32(vU, 31, vL); st.v_lshlrev_b32(aCS3, 2, vU); st.v_add_u32(aCS3, L_CS + 3 * 128, aCS3)
    ring_next(st, "b128"); x_addr(st)
    st.s_add_u32(sT0, sRING, 0x10000); st.s_and_b32(sT0, sT0, 0x1ffff); st.v_add_u32(vA1, sT0, vL16)
    st.s_lshl_b32(sT0, sM, 12); st.s_add_u32(sT0, sT0, L_PH); st.v_add_u32(aXW, sT0, vL16)
def x_loads(st, stt, at=32):
    L = frag_loads(sXLD, [XF + 4 * k for k in range(32)], 1024, 4)
    def stl(st):
        for i in range(4):
            st.buffer_load_dwordx4(v(stt + 4 * i, 4), vV, WS, sSTLD, mods=f"offen offset:{512*i} {SCL}")
    return L[:at] + [stl] + L[at:]

def featmap(st, acc, kb, wp, e1, e2, lr, mid=None):
    for i in range(8): st.v_cvt_pk_bf16_f32(v(kb + i), v(acc + 2 * i), v(acc + 2 * i + 1))
    st.v_mfma_f32_32x32x16_bf16(v(acc, 16), v(wp, 4), v(kb, 4), "0")
    st.v_mfma_f32_32x32x16_bf16(v(acc, 16), v(wp + 4, 4), v(kb + 4, 4), v(acc, 16))
    if mid: mid(st)
    mx, mn = v(kb), v(kb + 1)
    p = lambda i: v(acc + i)
    st.v_max3_f32(mx, p(0), p(1), p(2)); st.v_min3_f32(mn, p(0), p(1), p(2))
    for i in range(3, 15, 2):
        st.v_max3_f32(mx, mx, p(i), p(i + 1)); st.v_min3_f32(mn, mn, p(i), p(i + 1))
    st.v_max_f32(mx, mx, p(15)); st.v_min_f32(mn, mn, p(15))
    pk(st, "mul", kb, bc(lr), kb)
    for i in range(0, 16, 2):
        pk(st, "fma", e1 + i, acc + i, bc(lr), bc(kb, True)); pk(st, "fma", e2 + i, ng(acc + i), bc(lr), bc(kb + 1))
    for i in range(16):
        st.v_exp_f32(v(e1 + i), v(e1 + i)); st.v_exp_f32(v(e2 + i), v(e2 + i))
    s1, s2 = kb + 2, kb + 4
    pk(st, "add", s1, e1, e1 + 2); pk(st, "add", s2, e2, e2 + 2)
    for i in range(4, 16, 2):
        pk(st, "add", s1, s1, e1 + i); pk(st, "add", s2, s2, e2 + i)
    st.v_add_f32(v(s1), v(s1), v(s1 + 1)); st.v_add_f32(v(s2), v(s2), v(s2 + 1))
    st.v_rcp_f32(v(s1), v(s1)); st.v_rcp_f32(v(s2), v(s2))
    for i in range(0, 16, 2):
        pk(st, "mul", e1 + i, bc(s1), e1 + i); pk(st, "mul", e2 + i, bc(s2), e2 + i)
    for i in range(8):
        st.v_cvt_pk_bf16_f32(v(e1 + i), v(e1 + 2 * i), v(e1 + 2 * i + 1))
        st.v_cvt_pk_bf16_f32(v(e2 + i), v(e2 + 2 * i), v(e2 + 2 * i + 1))

def p1a(st):
    at = oi("st1", 22)
    L = x_loads(st, STT, at)
    stamp(st, "p1pre")
    poll(st, vFL, sFA)
    stamp(st, "FXpoll")
    pre = oi("pre1", 10)
    for f in L[:pre]: f(st)
    nxt(st)
    barrier(st, "a0")
    stamp(st, "B(a0)")
    fill = Filler()
    f = Stream(); stats(f, STT, NM, RS, VE); f.v_mul_f32(LR, sL2E, RS); k_reads(f, "v")
    g = Stream(); k_addr(g); k_reads(g, "wk")
    hooks = {2: lambda st: fill.add(g), oi("sth1", 2 * at + 2): lambda st: fill.add(f)}
    gemm(st, kv_items(), "trq", AF1, 6, 5, ready=[0], bars={oi("a1", 20): ("a1", [1]), oi("a2", 56): ("a2", [])}, loads=L[pre:], pre=0,
         hooks=hooks, fill=fill, budget=oi("bud1", 8))
    fill.flush(st)
    stamp(st, "KVgemm")

def p1b(st):
    AF = AF1
    for i in range(0, 16, 2): pk(st, "fma", aK + i, CK + i, bc(NM), aK + i)
    def vpart(st):
        for i in range(0, 16, 2): pk(st, "fma", aV + i, CV + i, bc(NM), aV + i)
        for i in range(0, 16, 2): pk(st, "mul", aV + i, bc(RS), aV + i)
        for i in range(8): st.v_cvt_pk_bf16_f32(v(aV + i), v(aV + 2 * i), v(aV + 2 * i + 1))
        st.ds_write_b128(aB, v(aV, 4)); st.ds_write_b128(aB, v(aV + 4, 4), mods="offset:16")
    featmap(st, aK, AF, WPH, STT, aQ, LR, mid=vpart)
    st.ds_write_b128(aA, v(STT, 4)); st.ds_write_b128(aA, v(STT + 4, 4), mods="offset:16")
    st.ds_write_b128(aA, v(aQ, 4), mods="offset:32"); st.ds_write_b128(aA, v(aQ + 4, 4), mods="offset:48")
    signal(st)
    TA, TB, ONE, AKV, AZ = 16, 32, 96, 100, 104
    def shadow(st):
        st.v_lshrrev_b32(vT, 4, vL); st.v_lshlrev_b32(vT, 3, vT); st.v_bfe_u32(vU, vL, 2, 2); st.v_add_u32(vT, vT, vU)
        st.v_and_b32(vU, 3, vL); st.v_lshlrev_b32(vU, 3, vU)
        st.s_lshl_b32(sT0, sM, 5); st.s_add_u32(sT0, sT0, L_PH)
        st.v_mul_u32_u24(aR1, 144, vT); st.v_add3_u32(aR1, aR1, vU, sT0)
        st.s_lshl_b32(sT0, sTP, 5); st.s_add_u32(sT0, sT0, L_VB)
        st.v_mul_u32_u24(aR2, 80, vT); st.v_add3_u32(aR2, aR2, vU, sT0)
        ring_next(st, "trq")
    sigwait(st, extra=shadow)
    stamp(st, "Kepi+B")
    for k in range(4):
        for q in range(2):
            st.ds_read_b64_tr_b16(v(TA + 4 * k + 2 * q, 2), aR1, mods=f"offset:{(32*k+4*q)*144}")
            st.ds_read_b64_tr_b16(v(TB + 4 * k + 2 * q, 2), aR2, mods=f"offset:{(32*k+4*q)*80}")
    for i in range(4): st.v_mov_b32(v(ONE + i), sONE)
    st.v_lshrrev_b32(vT, 5, vL); st.v_lshlrev_b32(vV, 9, vT); st.v_bfe_u32(vU, vL, 4, 1); st.v_lshl_add_u32(vV, vU, 3, vV)
    st.v_lshlrev_b32(vT, 6, vT); st.v_lshl_add_u32(vT, vU, 4, vT)
    st.v_bfe_u32(vU, vL, 2, 2); st.v_lshl_add_u32(vV, vU, 7, vV); st.v_and_b32(vU, 3, vL); st.v_lshl_add_u32(vV, vU, 4, vV)
    for k in range(4):
        st.v_mfma_f32_16x16x32_bf16(v(AKV, 4), v(TA + 4 * k, 4), v(TB + 4 * k, 4), "0" if k == 0 else v(AKV, 4))
        st.v_mfma_f32_16x16x32_bf16(v(AZ, 4), v(TA + 4 * k, 4), v(ONE, 4), "0" if k == 0 else v(AZ, 4))
    st.v_cvt_pk_bf16_f32(v(AKV), v(AKV), v(AKV + 1)); st.v_cvt_pk_bf16_f32(v(AKV + 1), v(AKV + 2), v(AKV + 3))
    st.buffer_store_dwordx2(v(AKV, 2), vV, WS, sKVST, mods="offen sc1")
    st.buffer_store_dwordx4(v(AZ, 4), vT, WS, sKZ, mods="offen sc1", tset="kv")
    stamp(st, "kv st")
    items = []
    for k in range(16):
        for t in range(2):
            items.append(dict(chunk=0, off=k * 2048, t=t, acc=aQ, b=XF + 4 * (k + 16 * t), first=(k, t) == (0, 0)))
    def kvflag(st): st.buffer_store_dword(vNON, "off", WS, sFKVST, mods="sc1", tneed="kv")
    CS = 16
    aPL, aGZ, aGK = aR1, aR2, aB
    f = Stream()
    for i in range(4): f.ds_read_b128(v(CS + 4 * i, 4), aCS, mods=f"offset:{256+16*i}")
    f.v_lshrrev_b32(aPL, 2, vL); f.v_lshlrev_b32(aPL, 7, aPL); f.v_and_b32(vU, 3, vL); f.v_lshl_add_u32(aPL, vU, 2, aPL)
    f.v_lshrrev_b32(aGZ, 4, vL); f.v_mul_u32_u24(aGZ, KV_REC, aGZ); f.v_add_u32(aGZ, aGZ, vFL)
    f.v_lshrrev_b32(aGK, 5, vL); f.v_mul_u32_u24(aGK, KV_REC - 512, aGK); f.v_add_u32(aGK, aGK, vL16)
    fill = Filler()
    gemm(st, items, "trq", AF, 6, 5, ready=[0], hooks={4: lambda st: fill.add(f), oi("kvflag", 24): kvflag}, fill=fill, budget=8)
    fill.flush(st)
    stamp(st, "Qgemm")
    for i in range(0, 16, 2): pk(st, "fma", aQ + i, CS + i, bc(NM), aQ + i)
    featmap(st, aQ, AF, WPH, aK, aV, LR)
    stamp(st, "Q done")
    poll(st, aPL, sFKVLD)
    stamp(st, "FKVpoll")
    Gr, Z, SG, GA = XF, XF + 64, XF + 32, XF + 48
    XT = v(XF + 72)
    nt = " nt" if OPT.get("kvnt") else ""
    for cc in range(8):
        if cc: st.s_add_u32(sT0, sKVLD, 2 * cc * KV_REC)
        st.buffer_load_dwordx4(v(Gr + 4 * cc, 4), aGK, WS, sT0 if cc else sKVLD, mods="offen sc1" + nt)
    for i in range(4):
        if i: st.s_add_u32(sT1, sGZ, 4 * i * KV_REC)
        st.buffer_load_dword(v(Z + i), aGZ, WS, sT1 if i else sGZ, mods="offen sc1" + nt)
    if G.TAG == "f":
        st.s_lshl_b32(sT2, sC, 7); st.s_add_u32(sT2, sT2, XCCT)
        st.buffer_load_dword(XT, vFL, WS, sT2, mods="offen sc1")
    nxt(st)
    st.s_mul_i32(sT0, sM, 576); st.s_add_u32(sT0, sT0, L_KVB)
    st.v_and_b32(vT, 31, vL)
    st.v_and_b32(vU, 1, vL); st.v_lshlrev_b32(vU, 4, vU); st.v_mov_b32(vV, 0x3f80); st.v_lshlrev_b32(vU, vU, vV); st.v_lshrrev_b32(vV, 1, vT)
    for i in range(4):
        st.v_cmp_eq_u32("vcc", i, vV); st.v_cndmask_b32(v(SG + i), 0, vU, "vcc")
    st.v_lshlrev_b32(vT, 4, vT)
    st.v_lshrrev_b32(vU, 5, vL)
    st.v_lshl_add_u32(aA, vU, 3, vT); st.v_add_u32(aA, sT0, aA)
    st.v_lshrrev_b32(aB, 1, vFL); st.v_add_u32(aB, sT0, aB)
    st.v_bfe_u32(vV, vL, 2, 1); st.v_cmp_eq_u32("vcc", vV, vU)
    st.v_mov_b32(vV, 544); st.v_cndmask_b32(vT, vV, vT, "vcc"); st.v_add_u32(aR1, L_KVB, vT)
    st.v_lshlrev_b32(vU, 4, vU); st.v_add_u32(aR2, L_KVB + 512, vU)
    for cc in range(8):
        st.v_mfma_f32_32x32x16_bf16(v(GA, 16), v(SG, 4), v(Gr + 4 * cc, 4), "0" if cc == 0 else v(GA, 16))
    st.v_add_f32(v(Z), v(Z), v(Z + 1)); st.v_add_f32(v(Z + 2), v(Z + 2), v(Z + 3)); st.v_add_f32(v(Z), v(Z), v(Z + 2))
    st.v_mov_b32(v(Z + 1), v(Z)); st.v_permlane32_swap_b32(v(Z), v(Z + 1)); st.v_add_f32(v(Z), v(Z), v(Z + 1))
    st.v_mov_b32(v(Z + 1), v(Z)); st.v_permlane16_swap_b32(v(Z), v(Z + 1)); st.v_add_f32(v(Z), v(Z), v(Z + 1))
    st.v_cvt_pk_bf16_f32(v(Z), v(Z), v(Z))
    st.ds_write_b16(aB, v(Z), mods="offset:512")
    st.v_cvt_pk_bf16_f32(v(GA), v(GA), v(GA + 1)); st.v_cvt_pk_bf16_f32(v(GA + 1), v(GA + 2), v(GA + 3))
    st.ds_write_b64(aA, v(GA, 2))
    if G.TAG == "f":
        OK = newlab("xok"); L = newlab("xpoll"); D = newlab("xdec")
        st.s_cmp_lg_u32(sPAIR, 0)
        st.mark("save", OK)
        st.s_cbranch_scc1(OK)
        st.s_add_u32(sT0, sNONCE, 14); st.s_add_u32(sT1, sT0, sXC)
        st.v_cmp_ne_u32("vcc", sT1, XT)
        if not OPT.get("slow"): st.s_cbranch_vccz(OK)
        st.label(L)
        st.buffer_load_dword(XT, vFL, WS, sT2, mods="offen sc1")
        st.wait(vm=0)
        st.v_subrev_u32(vT, sT0, XT)
        st.v_cmp_le_u32("vcc", 16, vT)
        st.s_cbranch_vccz(D)
        st.s_sub_u32(sCNT, sCNT, 1)
        st.s_cbranch_scc0(L)
        st.s_mov_b32(sCNT, 0)
        st.label(D)
        st.v_cmp_ne_u32("vcc", sT1, XT)
        st.mark("save", "toslow")
        if OPT.get("slow"): st.s_branch(".Lg_s")
        else: st.s_cbranch_vccnz(".Lg_s")
        st.mark("merge", OK)
        st.label(OK)
    else:
        st.mark("merge", "toslow")
        st.label(".Lg_s")
    barrier(st, "g", drain=True)
    stamp(st, "gather+B")

def p1c(st):
    PHQ = [aK, aK + 4, aV, aV + 4]
    KA, ZA, NUM, DEN = XF, XF + 16, 48, v(64)
    for u in range(4): st.ds_read_b128(v(KA + 4 * u, 4), aR1, mods=f"offset:{576*u}")
    for u in range(4): st.ds_read_b128(v(ZA + 4 * u, 4), aR2, mods=f"offset:{576*u}")
    st.v_mov_b32(DEN, f2u(1e-6)); st.v_mov_b32(v(65), 0)
    st.v_lshrrev_b32(vU, 5, vL); st.v_lshl_add_u32(aA, vU, 9, vL16)
    for u in range(4):
        st.v_mfma_f32_32x32x16_bf16(v(NUM, 16), v(KA + 4 * u, 4), v(PHQ[u], 4), "0" if u == 0 else v(NUM, 16))
        for i in range(4):
            dd = DEN if i % 2 == 0 else v(65)
            st.v_dot2_f32_bf16(dd, v(PHQ[u] + i), v(ZA + 4 * u + i), dd)
    st.v_add_f32(DEN, DEN, v(65))
    st.v_rcp_f32(DEN, DEN)
    for i in range(0, 16, 2): pk(st, "mul", NUM + i, bc(DEN), NUM + i)
    for i in range(8): st.v_cvt_pk_bf16_f32(v(NUM + i), v(NUM + 2 * i), v(NUM + 2 * i + 1))
    st.buffer_store_dwordx4(v(NUM, 4), aA, WS, sOST, mods=f"offen {G.SC}")
    st.buffer_store_dwordx4(v(NUM + 4, 4), aA, WS, sOST, mods=f"offen offset:512 {G.SC}", tset="o")
    ring_next(st, "trn")
    res_init(st, 16)
    st.s_lshl_b32(sT0, sM, 12); st.s_add_u32(sT0, sT0, L_PH); st.v_add_u32(aXW, sT0, vL16)
    st.buffer_store_dword(vNON, "off", WS, sFJ, mods=f"offset:128 {G.SC}", tneed="o")
    for r in (sKVST, sKVLD, sKZ, sGZ): st.s_add_u32(r, r, KV_P)
    st.s_add_u32(sFKVST, sFKVST, 256 * 128); st.s_add_u32(sFKVLD, sFKVLD, 256 * 128)

def small_items(nsteps, breg, accs=(16, 32)):
    items = []
    for k in range(nsteps):
        for t in ((1, 0) if k == nsteps - 1 else (0, 1)):
            items.append(dict(chunk=k // 8, off=(k % 8) * 4096, t=t, acc=accs[t], b=breg(k), first=k == 0 and t == 1))
    return items
def res_init(st, a):
    for i in range(8):
        st.v_lshlrev_b32(v(a + 2 * i), 16, v(RES + i)); st.v_and_b32(v(a + 2 * i + 1), 0xffff0000, v(RES + i))

def xepi(st, last):
    aB_, T, P = (96, 48, 16) if last else (32, 16, 48)
    aX = aXW
    for i in range(4): st.ds_write_b128(aX, v(aB_ + 4 * i, 4), mods=f"offset:{1024*i}")
    st.v_xor_b32(aX, 4096, aX)
    barrier(st, "X4" if last else "X2", drain=True)
    for i in range(4): st.ds_read_b128(v(P + 4 * i, 4), aX, mods=f"offset:{1024*i}")
    st.v_and_b32(aX, 31, vL); st.v_lshlrev_b32(aX, 4, aX); st.v_lshrrev_b32(vT, 5, vL); st.v_lshl_add_u32(aX, vT, 2, aX)
    for i in range(4):
        for k in (4 * i, 4 * i + 2): pk(st, "add", T + k, T + k, P + k)
        for k in (2 * i, 2 * i + 1): st.v_cvt_pk_bf16_f32(v(RES + k), v(T + 2 * k), v(T + 2 * k + 1))
    LF = newlab("fin")
    if last:
        st.mark("save", LF)
        st.s_cmp_eq_u32(sPAIR, 1); st.s_cbranch_scc1(LF)
    st.buffer_store_dwordx4(v(RES, 4), vL16, WS, sXST, mods=f"offen {G.SC}")
    st.buffer_store_dwordx4(v(RES + 4, 4), vL16, WS, sXST, mods=f"offen offset:1024 {G.SC}")
    S, Q, S2, Q2 = v(T), v(T + 1), v(T + 2), v(T + 3)
    st.v_dot2_f32_bf16(S, v(RES), sONE, 0); st.v_dot2_f32_bf16(Q, v(RES), v(RES), 0)
    st.v_dot2_f32_bf16(S2, v(RES + 1), sONE, 0); st.v_dot2_f32_bf16(Q2, v(RES + 1), v(RES + 1), 0)
    for i in range(2, 8, 2):
        st.v_dot2_f32_bf16(S, v(RES + i), sONE, S); st.v_dot2_f32_bf16(Q, v(RES + i), v(RES + i), Q)
        st.v_dot2_f32_bf16(S2, v(RES + i + 1), sONE, S2); st.v_dot2_f32_bf16(Q2, v(RES + i + 1), v(RES + i + 1), Q2)
    pk(st, "add", T, T, T + 2)
    st.v_permlane32_swap_b32(S, Q); st.v_add_f32(S, S, Q)
    st.buffer_store_dword(S, aX, WS, sSTST, mods=f"offen {G.SC}", tset="x")
    (p1a_pre if last else p3_pre)(st)
    st.buffer_store_dword(vNON, "off", WS, sFXST, mods=G.SC, tneed="x")
    if last:
        st.s_mov_b32(sPAIR, 1)
        st.s_branch(f".Lpair_{G.TAG}")
        st.label(LF); st.mark("restore", LF)
        st.v_and_b32(aX, 31, vL); st.v_lshlrev_b32(aX, 10, aX); st.v_lshrrev_b32(vT, 5, vL); st.v_lshl_add_u32(aX, vT, 4, aX)
        st.buffer_store_dwordx4(v(RES, 4), aX, OUT, sOUTO, mods="offen")
        st.buffer_store_dwordx4(v(RES + 4, 4), aX, OUT, sOUTO, mods="offen offset:32")

def p2(st):
    stamp(st, "o stored")
    poll(st, vFL, sFB, 128)
    stamp(st, "FOpoll")
    L = frag_loads(sHLD, [XF + 4 * k for k in range(16)], 2048, 2)
    gemm(st, small_items(16, lambda k: XF + 4 * k), "trn", 48, 6, 5, ready=[0, 1], loads=L, pre=oi("pre2", 10), hooks={1: nxt})
    stamp(st, "P2gemm")
    xepi(st, False)

def stream(st, items, af, nslots, depth, hooks, fill, budget, watch=None):
    n = len(items); nr = 0
    def pump(upto):
        nonlocal nr
        while nr < n and nr <= upto:
            items[nr]["rd"](st, af + 4 * (nr % nslots)); nr += 1
    pump(depth - 1)
    for i in range(n):
        it = items[i]
        acc = v(it["acc"], 16)
        st.v_mfma_f32_32x32x16_bf16(acc, v(af + 4 * (i % nslots), 4), v(it["b"], 4), "0" if it["first"] else acc)
        n0 = len(st.l)
        for h in hooks.get(i, []): h(st)
        pump(i + depth)
        fill.take(st, budget(i))
        if watch: watch(i, st.l[n0:])
    assert not fill.q

C1 = -2.0 * math.sqrt(2.0 / math.pi) * LOG2E
def p34(st):
    A = [16, 32, 48, 96]; AF = 64; NMP = 88; DEPTH = 5
    K1, K3, VE3, NM3 = v(92), v(93), v(94), v(95)
    at = oi("st3", 20)
    L = x_loads(st, STT, at)
    stamp(st, "x stored")
    poll(st, vFL, sFA)
    stamp(st, "FXpoll2")
    pre = oi("pre3", 10)
    for f in L[:pre]: f(st)
    nxt(st)
    barrier(st, "30")
    stamp(st, "B(30)")
    items = []; hooks = {}
    def hk(i, f): hooks.setdefault(i, []).append(f)
    def wide(a, off, step=0):
        def rd(st, r):
            if step:
                st.s_add_u32(sRING, sRING, 0x8000 * step); st.s_and_b32(sRING, sRING, 0x1ffff); st.v_add_u32(vA0, sRING, vL16)
            st.ds_read_b128(v(r, 4), a, mods=f"offset:{off}")
        return rd
    def mean(r):
        return dict(rd=lambda st, q: st.ds_read_b32(v(q), aCS3, mods=f"offset:{128*r}"), acc=A[r % 4], b=NMP, first=False)
    n2 = oi("n2", 10); k2 = 0; end = {}; use = {}
    def t2(k): return dict(rd=wide(vA1, k * 1024), acc=A[2], b=XF + 4 * k, first=k == 0)
    for k in range(32):
        use[k] = len(items)
        for t in range(2):
            items.append(dict(rd=wide(vA0, t * 16384 + (k % 16) * 1024, int(k == 16 and t == 0)), acc=A[t], b=XF + 4 * k, first=k == 0))
        if k == 15: g5 = len(items) - 1
        if (k + 1) * n2 // 32 > k2: items.append(t2(k2)); k2 += 1
    items += [mean(0), mean(1)]; end[0] = len(items) - 2; end[1] = len(items) - 1
    items += [t2(k) for k in range(k2, 32)] + [mean(2)]; end[2] = len(items) - 1
    for r in range(3, 6):
        items += [dict(rd=wide(vA0, k * 1024, (2 if r == 3 else 1) if k == 0 else 0), acc=A[r % 4], b=XF + 4 * k, first=k == 0) for k in range(32)]
        items.append(mean(r)); end[r] = len(items) - 1
    T5 = end[4] + 1; P4 = len(items)
    HI = [16 + 4 * i for i in range(4)] + [116, 88] + [XF + 4 * i for i in range(2)] + [32 + 4 * i for i in range(3)]
    breg = lambda k: XF + 4 * k if k < 32 else HI[k - 32]
    for n, it in enumerate(small_items(43, breg, (48, 96))):
        def rd(st, r, it=it, n=n):
            if n % 16 == 0: ring_next(st, "trn")
            a = vA1 if it["t"] else vA0
            st.ds_read_b64_tr_b16(v(r, 2), a, mods=f"offset:{it['off']}")
            st.ds_read_b64_tr_b16(v(r + 2, 2), a, mods=f"offset:{it['off']+512}")
        items.append(dict(rd=rd, acc=it["acc"], b=it["b"], first=it["first"]))
    for n, f in enumerate(L[pre:]): hk(2 * n + 1, f)
    fill = Filler()
    f = Stream()
    stats(f, STT, NM3, K1, VE3)
    f.v_and_b32(vU, 0xffff0000, NM3); f.v_sub_f32(NM3, NM3, vU); f.v_cndmask_b32(vU, vU, NM3, sHALF)
    f.v_cvt_pk_bf16_f32(v(NMP), vU, vU)
    f.v_mul_f32(K3, K1, K1); f.v_mul_f32(K1, f2u(C1), K1); f.v_mul_f32(K3, f2u(0.044715), K3); f.v_mul_f32(K3, K3, K1)
    z = Stream()
    for i in range(1, 4): z.v_mov_b32(v(NMP + i), 0)
    z.v_min_u32(aP4, 20, vFL)
    hk(2, lambda st: fill.add(z))
    hk(use[min(31, at + oi("sth3", 2))], lambda st: fill.add(f))
    hk(end[0] - 2, lambda st: fill.flush(st))
    TM = 112
    def epi(r):
        f = Stream(); a = A[r % 4]
        g = lambda i: v(a + i)
        u = lambda i: v(a + 8 + i)
        tm = lambda i: v(TM + i % 4)
        for t in range(16):
            ok = lambda d: 0 <= t - d < 8
            if ok(3): f.v_exp_f32(g(t - 3), g(t - 3))
            if ok(0): f.v_mul_f32(tm(t), g(t), g(t))
            if ok(1): f.v_fma_f32(tm(t - 1), tm(t - 1), K3, K1)
            if ok(0): f.v_mul_f32(u(t), g(t), u(t))
            if ok(5): f.v_rcp_f32(g(t - 5), g(t - 5))
            if ok(2): f.v_mul_f32(g(t - 2), tm(t - 2), g(t - 2))
            if ok(4): f.v_fma_f32(g(t - 4), g(t - 4), VE3, VE3)
            if ok(6): f.v_mul_f32(g(t - 6), g(t - 6), u(t - 6))
            if ok(7) and t % 2 == 0: f.v_cvt_pk_bf16_f32(u((t - 8) // 2), g(t - 8), g(t - 7))
            if t == 12 and r < 5: f.s_add_u32(sHS, sHST, 16384 * r)
        f.buffer_store_dwordx4(v(a + 8, 4), vL16, WS, sHS if r < 5 else sH5, mods=f"offen {G.SC}", tset=f"h{r}")
        return f
    def flag(r):
        f = Stream()
        f.buffer_store_dword(vNON, "off", WS, sFJ if r < 5 else sF5, mods=f"offset:{256+64*r} {G.SC}", tneed=f"h{r}")
        return f
    e = [epi(r) for r in range(6)]
    ri = Stream(); res_init(ri, 48)
    lag = oi("lag", 4)
    for r in range(6):
        parts = [e[r]] + ([ri] if r == 3 else [])
        hk(end[max(r, 1)] + lag, lambda st, parts=parts: [fill.add(p) for p in parts])
        hk(end[r], lambda st, r=r: stamp(st, f"t{r}"))
    hk(end[3], lambda st: fill.drain_until(st, e[0])); hk(end[4], lambda st: fill.drain_until(st, e[1]))
    hk(end[5] - 1, lambda st: fill.drain_until(st, ri))
    fd = [int(x) for x in os_("fd", "38,20,20,18,16,12").split(",")]; fpos = {}
    def watch(i, l):
        for r in range(6):
            if any(("t", f"h{r}") in x.dst for x in l): fpos[r] = i + fd[r]; hk(i + fd[r], lambda st, r=r: (stamp(st, f"f{r}a"), st.extend(flag(r)), stamp(st, f"f{r}b")))
    b3, b4 = oi("bud3", 16), oi("bud4", 16)
    def bud(i):
        b = oi("bud0", 12) if i < end[1] else b3 if i < P4 - DEPTH else b4
        if b % 4: b += 2 if i % 2 else -2
        return b - (4 if i in hooks and oi("budh", 1) else 0)
    o = oi("b4", 10)
    for i, name in ((g5 + oi("c1d", 4), "3a"), (end[1], "3b"), (end[2], "3c"), (end[3], "3d"), (end[4], "3f"), (end[5], "3g"),
                    (P4 + o, "4a"), (P4 + 16 + o, "4b"), (P4 + 32 + o, "4c"), (P4 + 48 + o, "4d"), (P4 + 64 + o, "4e")):
        hk(i, lambda st, name=name: (stamp(st, f"{name}a"), barrier(st, name), stamp(st, f"{name}b")))
    for i in (16, 32, 48, 64): hk(P4 + i, lambda st, i=i: stamp(st, f"q{i}"))
    HL = frag_loads(sHLD, [breg(k) for k in range(43)], 2048, 2)
    if OPT.get("noH"): HL = [lambda st: None] * 43
    ne = oi("early4", 12)
    ck = [T5 + oi("chkA", 10), P4 + oi("chk2", 0), P4 + oi("chk3", 16), P4 + oi("chk4", 42), P4 + oi("chk5", 65)]
    sl = oi("sl", 12); ev = float(OPT.get("ev4", 2)); pos = []
    for k in range(43):
        g = max(0, k // 8 - 1)
        p = ck[0] + 1 + k * float(OPT.get("ev3", 2)) if k < ne else pos[-1] + ev
        pos.append(max(p, ck[g]) if k < 40 else ck[4])
    pos = [int(p) for p in pos]
    hk(ck[0] - sl - 1, lambda st: (st.v_and_b32(vV, 31, vL), st.v_lshlrev_b32(vV, 2, vV)))
    for g, (addr, off) in enumerate(((vV, 256), (vFL, 384), (vFL, 448), (vFL, 512), (aP4, 576))):
        assert g == 0 or ck[g] - sl > ck[g - 1]
        if OPT.get("nochk"): continue
        hk(ck[g] - sl, lambda st, addr=addr, off=off: st.buffer_load_dword(vS4, addr, WS, sFB, mods=f"offen offset:{off} sc1"))
        hk(ck[g], lambda st, addr=addr, off=off, g=g: (stamp(st, f"k{g}a"), soft_check(st, vS4, addr, sFB, off), stamp(st, f"k{g}b")))
    def last(st):
        assert 5 in fpos and fpos[5] < ck[4]
        nxt(st)
    hk(ck[4], last)
    for k in range(43):
        assert pos[k] < P4 + 2 * k and (k >= 32 or pos[k] >= T5 + k), (k, pos[k])
        hk(pos[k], HL[k])
    hk(pos[32] - 1, lambda st: fill.drain_until(st, e[4]))
    stream(st, items, AF, 6, DEPTH, hooks, fill, bud, watch)
    if G.TAG == "f": print("T3", end[2] + 1, "T4", end[3] + 1, "T5", T5, "P4", P4, "flags", fpos, "checks", ck, "loads", pos, file=sys.stderr)
    stamp(st, "P4gemm")
    xepi(st, True)

def body(st, first):
    stop = OPT["stop"]
    T = G.TAG
    st.label(f".Lpair_{T}"); st.mark("reset")
    G.SEQ = SEQA; p1a(st)
    G.SEQ = SEQC
    if first:
        st.mark("merge", "from0"); st.label(".Lk_f")
    p1b(st); p1c(st)
    if stop == "p1": st.s_branch(".Lend"); return
    p2(st)
    if stop == "p2": st.s_branch(".Lend"); return
    p34(st)
    stamp(st, "end")
    stamp(st, 63, True)
    if OPT.get("dbg") == "2":
        if OPT.get("wb"):
            st.wait(vm=0); st.raw("    buffer_wbl2 sc0 sc1"); st.raw("    s_waitcnt vmcnt(0)")
        L = newlab("pad")
        st.s_mov_b32(s(87), 7000)
        if OPT.get("cap"):
            if OPT.get("capr"): st.s_sub_u32(s(43), s(43), s(42))
            else: st.s_sub_u32(s(43), s(43), s(86)); st.s_lshr_b32(s(43), s(43), 4)
            st.s_min_u32(s(43), s(43), 20000); st.s_add_u32(s(87), s(87), s(43))
        st.label(L)
        st.s_memrealtime(s(100, 2)); st.wait(lgkm=0); st.s_sub_u32(s(100), s(100), s(42)); st.s_cmp_lt_u32(s(100), s(87)); st.s_cbranch_scc1(L)
    elif OPT.get("dbg"):
        st.s_load_dwordx2(s(44, 2), s(0, 2), 72); st.s_memrealtime(s(100, 2)); st.wait(lgkm=0)
        st.s_and_b32(s(45), s(45), 0xffff); st.s_mov_b32(s(46), 256); st.s_mov_b32(s(47), 0x20000)
        st.s_not_b32(s(42), s(42)); st.v_mov_b32(vT, s(42)); st.v_mov_b32(vU, s(100)); st.s_not_b32(s(100), s(100)); st.v_mov_b32(vV, s(100))
        st.raw("    buffer_atomic_umax v13, off, s[44:47], 0")
        st.raw("    buffer_atomic_umax v14, off, s[44:47], 0 offset:4")
        st.raw("    buffer_atomic_umax v15, off, s[44:47], 0 offset:8")
        st.s_not_b32(s(42), s(42)); st.v_mov_b32(vT, s(42))
        st.raw("    s_nop 4")
        st.raw("    buffer_atomic_umax v13, off, s[44:47], 0 offset:12")
    st.s_or_b32(sT0, s(2), sW); st.s_cmp_lg_u32(sT0, 0); st.s_cbranch_scc1(".Lend")
    st.v_add_u32(vNON, 22, vNON)
    st.buffer_store_dword(vNON, "off", WS, 0, mods=f"offset:{EPOCH} sc1")
    st.s_branch(".Lend")

SEQ0, SEQA, SEQC = [], [], []
def compute(st):
    G.SEQ = SEQ0
    p1a0(st)
    st.mark("save", "from0")
    st.s_branch(".Lk_f")
    G.SC, G.TAG = "", "f"
    body(st, True)

def compute_slow(st):
    G.SC, G.TAG, G.REC = "sc1", "s", False
    body(st, False)

sW8, sQK, sWOb, sGU, sWD5, sWI = s(74), s(75), s(76), s(77), s(78), s(79)
sWDb = [s(80 + i) for i in range(4)]
GU = 64
vKV, vQ, vW, vWR0, vWR1 = v(2), v(4), v(5), v(6), v(7)
vGG = [v(8), v(9), v(10)]; vGL = [v(16), v(17), v(18)]; vGT = v(19)
vC0, vC1, vCW, vCR = v(20), v(21), v(22), v(23)
SEL = 24; CACC = 28
FRS = [36, 40, 44, 48, 52]; WRAW = 56
vDUM = [v(11), v(60), v(61), v(62)]
GSTR = 448

def LDSW(st):
    for i in reversed(st.l):
        if i.name == "s_barrier" or (i.name == "s_waitcnt" and "lgkmcnt(0)" in i.ops[0]): return False
        if i.kind == "ds": return True
    return False

def POL(srd):
    k = {WQ: "pq", WO_: "po", WD: "pd", WG: "pg", WU: "pg"}.get(srd)
    x = os_(k, "") if k else ""
    return " " + x.replace("+", " ") if x else ""

def loader(st):
    st.v_lshrrev_b32(vT, 3, vL); st.v_bfe_u32(vU, vL, 4, 1); st.v_lshlrev_b32(vU, 2, vU); st.v_and_b32(vV, 7, vL); st.v_xor_b32(vU, vU, vV)
    st.v_mul_u32_u24(vKV, 3072, vT); st.v_and_b32(vV, 3, vU); st.v_lshl_add_u32(vKV, vV, 4, vKV)
    st.v_lshrrev_b32(vV, 2, vU); st.v_mul_u32_u24(vQ, 256 * 3072, vV); st.v_add_u32(vQ, vQ, vKV)
    st.v_lshl_add_u32(vKV, vV, 10, vKV); st.v_add_u32(vKV, 1024, vKV)
    st.v_lshlrev_b32(vW, 10, vT); st.v_lshl_add_u32(vW, vU, 4, vW)
    st.s_lshl_b32(sW8, sM, 13)
    st.s_mul_i32(sQK, sM, 64 * 3072); st.s_lshl_b32(sT0, sJ, 6); st.s_add_u32(sQK, sQK, sT0)
    sKVr = [s(84), s(85)]; sQJ = s(88); vQ0 = v(GU)
    rot(st, s(89), sT1); st.s_add_u32(s(89), s(89), sM)
    st.s_lshl_b32(sQJ, sJ, 6)
    st.s_and_b32(sT1, s(89), 7); st.s_mul_i32(sKVr[0], sT1, 64 * 3072); st.s_add_u32(sKVr[0], sKVr[0], sQJ)
    st.s_and_b32(sWI, sC, 1); st.s_lshl_b32(sWI, sWI, 4); st.s_add_u32(sWI, sWI, sJ); st.s_lshl_b32(sWI, sWI, 2); st.s_add_u32(sWI, sWI, sM)
    if not oi("fast0", 1) or os_("e0", "Tkv,c0,non,wld"):
        st.wait(lgkm=0)
        srds(st, [WQ])
    chunks = []
    for pair in range(2):
        chunks += [("kv", 0), ("kv", 1), ("q", 0), ("wo", 0), ("wo", 1), ("gp", 0), ("gp", 1)] + [("gs", r) for r in range(2, 6)]
        chunks += [("wd", r) for r in range(6)]
    N = len(chunks)
    issued = set()
    SQ = []
    def spf(n):
        for _ in range(min(n, len(SQ))): SQ.pop(0)()
    def squeue(kind):
        if kind == "k":
            for i in range(64):
                def f(i=i):
                    if i == 0:
                        st.s_lshr_b32(s(90), sWI, 4); st.s_mul_i32(s(90), s(90), 3072); st.s_and_b32(s(91), sWI, 15); st.s_lshl_b32(s(91), s(91), 7)
                        st.s_add_u32(s(91), s(91), s(90)); st.s_add_u32(s(44), s(46), s(91)); st.s_addc_u32(s(45), s(47), 0)
                    if i == 32: st.s_add_u32(s(44), s(44), 32 * 24576); st.s_addc_u32(s(45), s(45), 0)
                    x = Ins("s_load_dwordx2", [s(86, 2), s(44, 2), hex(i % 32 * 24576 + 1024 + 60)]); x.dst = set(); st.l.append(x)
                SQ.append(f)
            return
        base, cnt = dict(w=(46, 96), o=(50, 32), d=(58, 86), g=(54, 86), u=(56, 86))[kind[0]]
        if len(kind) > 1: cnt = int(kind[1:])
        for i in range(cnt):
            def f(i=i):
                if i == 0:
                    st.s_lshl_b32(s(91), sWI, 7); st.s_add_u32(s(44), s(base), s(91)); st.s_addc_u32(s(45), s(base + 1), 0)
                if i == 48: st.s_add_u32(s(44), s(44), 48 * 16384); st.s_addc_u32(s(45), s(45), 0)
                x = Ins("s_load_dwordx2", [s(86, 2), s(44, 2), hex(i % 48 * 16384 + 60)]); x.dst = set(); st.l.append(x)
            SQ.append(f)
    def dma(n, addr, srd, offs):
        slot = (n % 4) * 32768
        for i, (base, off, lds) in enumerate(offs):
            st.s_add_u32("m0", lds[0], slot + lds[1])
            st.s_add_u32(sT0, base, off)
            st.buffer_load_dwordx4(addr, srd, sT0, mods="offen" + POL(srd) + " lds", tset=f"c{n}" if i == len(offs) - 1 else None)
    def issue(n):
        if n >= N: return
        assert n not in issued; issued.add(n)
        kind, a = chunks[n]
        if kind == "kv" and n < 17:
            if a == 1: st.s_xor_b32(sT1, s(89), 4); st.s_and_b32(sT1, sT1, 7); st.s_mul_i32(sKVr[1], sT1, 64 * 3072); st.s_add_u32(sKVr[1], sKVr[1], sQJ)
            dma(n, vKV, WQ, [(sKVr[a], 8 * i * 3072, (sW8, 1024 * i)) for i in range(8)])
        elif kind == "q" and n < 17:
            st.v_add_u32(vT, sKVr[0], vQ); st.v_subrev_u32(vU, 512 * 3072, vT); st.v_min_u32(vQ0, vT, vU)
            dma(n, vQ0, WQ, [("0", 8 * i * 3072, (sW8, 1024 * i)) for i in range(8)])
        elif kind == "kv": dma(n, vKV, WQ, [(sQK, (256 * a + 8 * i) * 3072, (sW8, 1024 * i)) for i in range(8)])
        elif kind == "q": dma(n, vQ, WQ, [(sQK, 8 * i * 3072, (sW8, 1024 * i)) for i in range(8)])
        elif kind == "wo": dma(n, vW, WO_, [(sWOb, (256 * a + 8 * i) * 1024, (sW8, 1024 * i)) for i in range(8)])
        elif kind == "wd" and a < 5: dma(n, vW, WD, [(sWDb[i // 2], (16 * a + 8 * (i % 2)) * 1024, (sW8, 1024 * i)) for i in range(8)])
        elif kind == "wd":
            slot = (n % 4) * 32768
            for e in range(3):
                st.s_mul_i32(sT1, sM, 3); st.s_add_u32(sT1, sT1, e)
                st.s_lshr_b32(sT0, sT1, 1); st.s_mul_i32(sT0, sT0, 96 * 1024); st.s_and_b32(sT2, sT1, 1); st.s_lshl_b32(sT2, sT2, 13)
                st.s_add_u32(sT0, sT0, sT2); st.s_add_u32(sT0, sT0, sWD5)
                st.s_lshl_b32(sT1, sT1, 10); st.s_add_u32("m0", sT1, slot)
                st.buffer_load_dwordx4(vW, WD, sT0, mods="offen" + POL(WD) + " lds", tset=f"c{n}" if e == 2 else None)
        else:
            slot = n % 4; wr = vWR1 if slot >= 2 else vWR0; so = (slot & 1) * 32768
            for t in range(2):
                for k in range(4):
                    g, fr = (4 * a + k, t) if kind == "gp" else (4 * t + k, a)
                    st.ds_write_b128(wr, v(GU + 24 * g + 4 * fr, 4), mods=f"offset:{so + t*16384 + k*1024}", tset=f"c{n}" if (t, k) == (1, 3) else None)
    FREE = [GU + 24 * g + 4 * fr for h in (0, 2) for g in range(8) for fr in (h, h + 1)]
    def stg(n):
        a = chunks[n][1]
        if n < 17:
            assert a == 5; return [48, 52, 56]
        o = {3: 0, 4: 8, 2: 16, 5: 24}[a]
        return FREE[o:o + 8]
    def stage(n):
        kind, a = chunks[n]; assert kind == "wd"
        r = stg(n)
        if a < 5:
            for i in range(8):
                st.s_add_u32(sT0, sWDb[i // 2], (16 * a + 8 * (i % 2)) * 1024)
                st.buffer_load_dwordx4(v(r[i], 4), vW, WD, sT0, mods="offen")
        else:
            for e in range(3):
                st.s_mul_i32(sT1, sM, 3); st.s_add_u32(sT1, sT1, e)
                st.s_lshr_b32(sT0, sT1, 1); st.s_mul_i32(sT0, sT0, 96 * 1024); st.s_and_b32(sT2, sT1, 1); st.s_lshl_b32(sT2, sT2, 13)
                st.s_add_u32(sT0, sT0, sT2); st.s_add_u32(sT0, sT0, sWD5)
                st.buffer_load_dwordx4(v(r[e], 4), vW, WD, sT0, mods="offen")
    def unstage(n):
        kind, a = chunks[n]; r = stg(n); slot = (n % 4) * 32768
        assert n not in issued; issued.add(n)
        if a < 5: st.s_add_u32(sT0, sW8, slot)
        else: st.s_mul_i32(sT0, sM, 3072); st.s_add_u32(sT0, sT0, slot)
        st.v_add_u32(vT, sT0, vL16)
        for i in range(8 if a < 5 else 3): st.ds_write_b128(vT, v(r[i], 4), mods=f"offset:{1024*i}")
    def prologue():
        F0 = oi("fast0", 1)
        if F0:
            if os_("e0", "Tkv,c0,non,wld"):
                srds(st, [WS, WP, WO_, WG, WU, WD])
                run(os_("e0", "Tkv,c0,non,wld").split(","), 0)
        else:
            issue(0)
            if oi("kv1first", 1): issue(1)
        if not oi("cfirst", 1):
            st.mark("save", "ld1"); st.s_branch(".Lloader")
            st.label(".Lcomp"); st.mark("reset")
            compute(st)
            st.label(".Lloader"); st.mark("restore", "ld1")
        if not F0 and not oi("kv1first", 1): issue(1)
        def late():
            if not (F0 and os_("e0", "Tkv,c0,non,wld")):
                st.wait(lgkm=0)
                srds(st, [WQ, WS, WP, WO_, WG, WU, WD])
            stamp_base(st)
            stamp(st, "start", who="l", pair=0)
        if not F0 or os_("e0", "Tkv,c0,non,wld"): late()
        st.s_lshl_b32(sWOb, sM, 16); st.s_lshl_b32(sT0, sCG, 7); st.s_add_u32(sWOb, sWOb, sT0)
        for e in range(4):
            st.s_lshl_b32(sT1, sM, 2); st.s_add_u32(sT1, sT1, e)
            st.s_mul_i32(sT2, sT1, 6); st.s_mul_i32(sT3, sT1, 5); st.s_add_u32(sT3, sT3, 6); st.s_min_u32(sT2, sT2, sT3)
            st.s_lshl_b32(sT2, sT2, 14); st.s_add_u32(sWDb[e], sT2, sT0)
        st.s_add_u32(sWD5, sT0, 80 * 1024)
        st.s_mul_i32(sT2, sJ, 6); st.s_mul_i32(sT3, sJ, 5); st.s_add_u32(sT3, sT3, 6); st.s_min_u32(sT2, sT2, sT3)
        st.s_lshl_b32(sT2, sT2, 5); st.s_mul_i32(sGU, sM, 64 * 2752); st.s_add_u32(sGU, sGU, sT2)
        st.s_cmp_eq_u32(sT6, 1); st.s_cselect_b32(sT1, 12, 10)
        st.s_lshl_b32(sT2, sM, 12); st.s_add_u32(sT2, sT2, 32768)
        for i in range(3):
            st.v_add_u32(vT, 64 * i, vL); st.v_mul_u32_u24(vU, 5462, vT); st.v_lshrrev_b32(vU, 16, vU)
            st.v_mul_u32_u24(vV, 12, vU); st.v_sub_u32(vT, vT, vV)
            st.v_mul_u32_u24(vGG[i], 2752, vU); st.v_lshl_add_u32(vGG[i], vT, 4, vGG[i])
            st.v_cmp_gt_u32("vcc", sT1, vT); st.v_mov_b32(vV, 0x80000000); st.v_cndmask_b32(vGG[i], vV, vGG[i], "vcc")
            st.v_and_b32(vV, 7, vU); st.v_mul_u32_u24(vGL[i], GSTR, vV); st.v_lshrrev_b32(vV, 3, vU); st.v_lshl_add_u32(vGL[i], vV, 14, vGL[i])
            st.v_lshrrev_b32(vV, 1, vT); st.v_lshl_add_u32(vGL[i], vV, 6, vGL[i])
            st.v_and_b32(vV, 1, vT); st.v_lshl_add_u32(vGL[i], vV, 4, vGL[i]); st.v_add_u32(vGL[i], sT2, vGL[i])
        lane_tr(st, vGT, None, "nat", stride=GSTR, hstride=16384); st.v_add_u32(vGT, sT2, vGT)
        lane_tr(st, vC0, vC1, "qkv")
        st.s_lshl_b32(sT0, sM, 12); st.v_add_u32(vWR0, sT0, vL16); st.v_add_u32(vWR1, 65536, vWR0)
        st.v_bfe_u32(vT, vL, 4, 1); st.v_and_b32(vU, 1, vL); st.v_cmp_eq_u32("vcc", vT, vU)
        st.v_mov_b32(vV, 0x3f803f80)
        for i in range(4): st.v_cndmask_b32(v(SEL + i), 0, vV, "vcc")
        st.v_lshlrev_b32(vCW, 6, vT); st.v_lshl_add_u32(vCW, vU, 5, vCW); st.v_lshrrev_b32(vT, 5, vL); st.v_lshl_add_u32(vCW, vT, 4, vCW)
        if F0 and not os_("e0", "Tkv,c0,non,wld"): late()
    def publish():
        L = newlab("pub")
        st.v_add_u32(vNON, sXC, vNON); st.v_add_u32(vNON, 16, vNON)
        st.s_lshl_b32(sT0, sC, 7); st.s_lshl_b32(sT1, sJ, 2); st.s_add_u32(sT0, sT0, sT1); st.s_add_u32(sT0, sT0, XCCT)
        st.s_cmp_lg_u32(sM, 0); st.mark("save", L); st.s_cbranch_scc1(L)
        st.buffer_store_dword(vNON, "off", WS, sT0, mods="sc1")
        st.mark("merge", L); st.label(L)
    dn = [0]
    def dum():
        dn[0] += 1
        return vDUM[dn[0] % 4]
    def tload(addr, srd, soff):
        i = Ins("buffer_load_dword", [dum(), addr, srd, str(soff)], "offen" + POL(srd)); i.dst = set(); st.l.append(i)
    def touch(kind):
        if kind == "wd":
            st.s_mul_i32(sT0, sWI, 86 * 128); st.v_lshlrev_b32(vT, 7, vL); tload(vT, WD, sT0)
            st.v_min_u32(vU, 21, vL); st.v_lshlrev_b32(vU, 7, vU); st.s_add_u32(sT0, sT0, 8192); tload(vU, WD, sT0)
        elif kind[:2] == "wd":
            n = int(kind[2:]); c = 86 - n; assert c <= 64
            st.s_mul_i32(sT0, sWI, c * 128); st.s_add_u32(sT0, sT0, n * 16384); st.v_min_u32(vT, c - 1, vL); st.v_lshlrev_b32(vT, 7, vT); tload(vT, WD, sT0)
        elif kind in ("g", "u"):
            D = WG if kind == "g" else WU
            st.s_mul_i32(sT0, sWI, 86 * 128); st.v_lshlrev_b32(vT, 7, vL); tload(vT, D, sT0)
            st.v_min_u32(vU, 21, vL); st.v_lshlrev_b32(vU, 7, vU); st.s_add_u32(sT0, sT0, 8192); tload(vU, D, sT0)
        elif kind in ("ga", "gb"):
            st.s_mul_i32(sT0, sWI, 43 * 128); st.v_min_u32(vT, 42, vL); st.v_lshlrev_b32(vT, 7, vT)
            if kind == "gb": st.s_add_u32(sT0, sT0, 256 * 2752)
            tload(vT, WG, sT0); tload(vT, WU, sT0)
        elif kind == "kv":
            st.v_lshrrev_b32(vT, 4, vL); st.v_mul_u32_u24(vT, 3072, vT); st.v_lshl_add_u32(vT, vFL, 5, vT)
            st.s_mul_i32(sT0, sWI, 4 * 3072); st.s_add_u32(sT0, sT0, 1024); tload(vT, WQ, sT0)
        elif kind == "q":
            st.v_bfe_u32(vT, vL, 3, 2); st.v_mul_u32_u24(vT, 3072, vT); st.v_and_b32(vU, 7, vL); st.v_lshl_add_u32(vT, vU, 7, vT)
            st.s_mul_i32(sT0, sWI, 4 * 3072); tload(vT, WQ, sT0)
        elif kind == "wo":
            st.v_and_b32(vT, 31, vL); st.v_lshlrev_b32(vT, 7, vT); st.s_lshl_b32(sT0, sWI, 12); tload(vT, WO_, sT0)
        elif kind == "h":
            st.s_lshl_b32(sT0, sC, 4); st.s_add_u32(sT0, sT0, sJ); st.s_lshl_b32(sT0, sT0, 2); st.s_add_u32(sT0, sT0, sM)
            st.s_mul_i32(sT0, sT0, 43 * 128); st.s_add_u32(sT0, sT0, HB)
            st.v_min_u32(vT, 42, vL); st.v_lshlrev_b32(vT, 7, vT); tload(vT, WS, sT0)
        elif kind in ("h0", "h1"):
            n, o = (16, 0) if kind == "h0" else (27, 32768)
            st.s_lshl_b32(sT0, sC, 2); st.s_add_u32(sT0, sT0, sM); st.s_mul_i32(sT0, sT0, HB_TB)
            st.s_mul_i32(sT1, sJ, n * 128); st.s_add_u32(sT0, sT0, sT1); st.s_add_u32(sT0, sT0, HB + o)
            st.v_min_u32(vT, n - 1, vL); st.v_lshlrev_b32(vT, 7, vT); tload(vT, WS, sT0)
        elif kind == "x":
            st.s_lshl_b32(sT0, sC, 4); st.s_add_u32(sT0, sT0, sJ); st.s_lshl_b32(sT0, sT0, 2); st.s_add_u32(sT0, sT0, sM)
            st.s_lshl_b32(sT1, sT0, 11); st.s_add_u32(sT1, sT1, XB)
            st.s_lshl_b32(sT2, sT0, 8); st.s_add_u32(sT2, sT2, ST - 16 * 128)
            st.s_lshl_b32(sT3, sC, 2); st.s_add_u32(sT3, sT3, sM); st.s_lshl_b32(sT3, sT3, 10); st.s_add_u32(sT3, sT3, FL - 18 * 128)
            st.v_mov_b32(vU, sT1); st.v_mov_b32(vV, sT2); st.v_cmp_le_u32("vcc", 16, vL); st.v_cndmask_b32(vU, vU, vV, "vcc")
            st.v_mov_b32(vV, sT3); st.v_cmp_le_u32("vcc", 18, vL); st.v_cndmask_b32(vU, vU, vV, "vcc")
            st.v_min_u32(vT, 22, vL); st.v_lshl_add_u32(vT, vT, 7, vU); tload(vT, WS, 0)
        elif kind == "code":
            st.s_getpc_b64(s(100, 2))
            L = newlab("pc")
            st.label(L)
            st.raw(f"    s_sub_u32 s100, s100, {L}-{NAME}_kernel")
            st.raw("    s_subb_u32 s101, s101, 0")
            st.v_lshlrev_b32(vT, 7, vL); st.s_lshl_b32(sT0, sM, 13); st.v_add_u32(vT, sT0, vT)
            i = Ins("global_load_dword", [dum(), vT, s(100, 2)]); i.dst = set(); st.l.append(i)
            st.v_add_u32(vU, 32768, vT); st.v_min_u32(vU, f".Lslow-{NAME}_kernel", vU)
            i = Ins("global_load_dword", [dum(), vU, s(100, 2)]); i.dst = set(); st.l.append(i)
    gl = []
    for g in range(8):
        k0 = (16 * (g // 4) + (g % 4)) * 16
        for m_, srd in enumerate((WG, WU)):
            for i in range(3):
                def f(g=g, k0=k0, m_=m_, srd=srd, i=i):
                    if i == 0: st.s_add_u32(sLD, sGU, k0 * 2752)
                    st.buffer_load_dwordx4(v(GU + 24 * g + 12 * m_ + 4 * i, 4), vGG[i], srd, sLD, mods="offen" + POL(srd))
                gl.append(f)
    def gu_loads(cnt):
        for _ in range(min(cnt, len(gl))):
            f = gl.pop(0)
            if not OPT.get("noG"): f()
    def colsum(n, steps, first, lo, hi, dst=None):
        L = newlab("cs")
        st.s_sub_u32(sT0, sM, lo); st.s_cmp_ge_u32(sT0, hi - lo); st.mark("save", L); st.s_cbranch_scc1(L)
        nf = len(FRS)
        def rd(k):
            a, off = steps[k]; r = FRS[k % nf]
            st.ds_read_b64_tr_b16(v(r, 2), a, mods=f"offset:{off}"); st.ds_read_b64_tr_b16(v(r + 2, 2), a, mods=f"offset:{off+512}")
        for k in range(nf - 1): rd(k)
        for k in range(len(steps)):
            acc = v(CACC + 4 * (k & 1), 4)
            st.v_mfma_f32_16x16x32_bf16(acc, v(FRS[k % nf], 4), v(SEL, 4), "0" if first and k < 2 else acc)
            if k + nf - 1 < len(steps): rd(k + nf - 1)
        if dst is not None:
            for i in range(4): st.v_add_f32(v(CACC + i), v(CACC + i), v(CACC + 4 + i))
            st.ds_write_b128(dst, v(CACC, 4))
        st.mark("merge", L); st.label(L)
    def transpose(g):
        b = GU + 24 * g
        for m_ in range(2):
            for i in range(3): st.ds_write_b128(vGL[i], v(b + 12 * m_ + 4 * i, 4), mods=f"offset:{32*m_}")
        for t in range(6):
            for u in range(2): st.ds_read_b64_tr_b16(v(b + 4 * t + 2 * u, 2), vGT, mods=f"offset:{u*4*GSTR + t*64}")
    def tsum(g):
        b = GU + 24 * g
        for t in range(6):
            st.v_mfma_f32_16x16x32_bf16(v(CACC + 4 * t, 4), v(b + 4 * t, 4), v(SEL, 4), "0" if g == 0 else v(CACC + 4 * t, 4))
    tr_next = [0]
    def transposes(cnt):
        gs = list(range(tr_next[0], min(8, tr_next[0] + cnt))); tr_next[0] += len(gs)
        for i, g in enumerate(gs):
            transpose(g)
            if i > 0: tsum(gs[i - 1])
        tsum(gs[-1])
    def gu_partial():
        st.s_mul_i32(sT0, sM, 768); st.s_add_u32(sT0, sT0, L_VB); st.v_add_u32(vT, sT0, vCW)
        for i in range(6): st.ds_write_b128(vT, v(CACC + 4 * i, 4), mods=f"offset:{128*i}")
    def gu_reduce():
        st.v_min_u32(vCR, 6 * 128 - 16, vL16)
        st.v_add_u32(vT, L_VB, vCR)
        for w in range(4): st.ds_read_b128(v(CACC + 4 * w, 4), vT, mods=f"offset:{w*768}")
        for i in range(4):
            st.v_add_f32(v(CACC + i), v(CACC + i), v(CACC + 4 + i)); st.v_add_f32(v(CACC + 8 + i), v(CACC + 8 + i), v(CACC + 12 + i))
        for i in range(4): st.v_add_f32(v(CACC + i), v(CACC + i), v(CACC + 8 + i))
        for i in range(4):
            st.v_and_b32(v(CACC + 4 + i), 0xffff0000, v(CACC + i)); st.v_sub_f32(v(CACC + i), v(CACC + i), v(CACC + 4 + i))
            st.v_cvt_pk_bf16_f32(v(CACC + i), v(CACC + 4 + i), v(CACC + i))
        st.v_and_b32(vT, 0x380, vCR); st.v_and_b32(vU, 0x30, vCR); st.v_lshl_add_u32(vT, vU, 1, vT)
        st.v_bfe_u32(vU, vCR, 6, 1); st.v_lshl_add_u32(vT, vU, 4, vT); st.v_add_u32(vT, L_CS + 384, vT)
        st.ds_write_b128(vT, v(CACC, 4))
    def cs_kv(a):
        if a == 0:
            st.s_lshl_b32(sT0, sM, 6); st.v_xor_b32(vCR, sT0, vC0)
        else:
            st.s_lshl_b32(sT0, sM, 7); st.s_add_u32(sT0, sT0, L_CS); st.v_add_u32(vV, sT0, vCW)
        colsum(a, [(vCR, 32768 * a + 2048 * k) for k in range(16)], a == 0, 0, 2, dst=vV if a == 1 else None)
    def cs_q():
        st.v_add_u32(vT, 65536, vC0); st.v_add_u32(vU, 65536, vC1); st.v_add_u32(vV, L_CS + 256, vCW)
        colsum(2, [(a, 2048 * k) for k in range(16) for a in (vT, vU)], True, 2, 3, dst=vV)

    need = {"a0": [0], "a1": [1], "g": [3, 4], "30": [5, 6, 7, 8], "3c": [9], "3d": [10], "3f": [11], "4a": [12], "4b": [13], "4c": [14], "4d": [15], "4e": [16]}
    S0 = os_("s0", "start:c1;a0:c2,csk0;a1:csk1,wst,sigA,pub,G8,sigq,G16,wsig,X2,G12,X2,G12,X2,c3,c4,X2,Th0,Tx;g:part,c5,c6,Qk,S32;X2:c7,c8;")
    S0 += os_("s0b", "30:red,wst;3a:c9,Twd,Th1,nd;3b:c10,nd;3d:c11,c12;3f:c13;3g:c14;4a:S8;4b:c15,S8;4c:c16,S8;4d:S8;4e:c17;X4:c18")
    S1 = os_("s1", "a2:c2,sig,c3,c4;g:c5,c6;X2:c7,c8;")
    S1 += os_("s1b", "3a:c9,Twd,nd;3b:c10,nd;3c:c11;3d:c12;3f:c13;3g:c14;4b:c15;4c:c16")
    def acts(txt):
        d = {}
        for part in txt.split(";"):
            k, _, l = part.partition(":"); d[k] = l.split(",")
        return d
    DR = [False]
    def run(lst, o):
        for a in lst:
            DR[0] = False
            if a == "q": issue(2)
            elif a == "pub": publish()
            elif a == "wld": st.s_lshl_b32(sT0, sJ, 10); st.buffer_load_dwordx4(v(WRAW, 4), vL16, WP, sT0, mods="offen")
            elif a == "wst":
                st.v_bfe_u32(vT, vL, 3, 2); st.v_mul_u32_u24(vT, 576, vT); st.v_lshrrev_b32(vU, 5, vL); st.v_lshl_add_u32(vT, vU, 7, vT)
                st.v_and_b32(vU, 112, vL16); st.v_add_u32(vT, vT, vU); st.v_add_u32(vT, L_KVB, vT)
                st.ds_write_b128(vT, v(WRAW, 4))
            elif a == "non": st.buffer_load_dword(vNON, "off", WS, 0, mods=f"offset:{EPOCH} sc1")
            elif a == "sig":
                st.l.append(Ins("s_nop", ["0"], tneed=f"c{o+2}")); signal(st, 1 + o // 17)
            elif a == "sigA": signal(st, 1, 16)
            elif a == "sigq":
                L = newlab("sq")
                st.l.append(Ins("s_nop", ["0"], tneed=f"c{o+2}")); signal(st, 1, 32)
                st.s_cmp_lg_u32(sM, 2); st.mark("save", L); st.s_cbranch_scc1(L)
                st.v_mov_b32(vU, 1); sigwait(st, 12, 48, regs=(13, 14, 15))
                st.mark("merge", L); st.label(L)
                cs_q(); signal(st, 1)
            elif a == "wsig": st.v_mov_b32(vU, 2); sigwait(st, 12, 32, regs=(13, 14, 15))
            elif a.startswith("csk"): cs_kv(int(a[3]))
            elif a == "csq": cs_q()
            elif a == "part": gu_partial()
            elif a == "red": gu_reduce()
            elif a[0] == "P": st.s_setprio(int(a[1:]))
            elif a == "nd": DR[0] = True
            elif a == "wv": st.wait(vm=0)
            elif a[0] == "Q": squeue(a[1:])
            elif a[0] == "S":
                if LDSW(st): st.wait(lgkm=0)
                DR[0] = True; spf(int(a[1:]))
            elif a[0] == "c": issue(o + int(a[1:]))
            elif a[0] == "r" and a[1:].isdigit(): stage(o + int(a[1:]))
            elif a[0] == "u" and a[1:].isdigit(): unstage(o + int(a[1:]))
            elif a[0] == "@": stamp(st, a, who="l", pair=o // 17)
            elif a[0] == "G": gu_loads(int(a[1:]))
            elif a[0] == "X": transposes(int(a[1:]))
            elif a[0] == "T": touch(a[1:])
            else: raise ValueError(a)
    prologue()
    for pair in range(1 if OPT['stop'] else 2):
        o = 17 * pair; A = acts(S0 if pair == 0 else S1)
        run(A.get("start", []), o)
        for b in (SEQ0 if pair == 0 else SEQA) + SEQC:
            tk = []
            for n in need.get(b, []):
                assert o + n in issued, (pair, b, n)
                tk.append(f"c{o+n}")
            stamp(st, "<" + b, who="l", pair=pair)
            if not DR[0] and LDSW(st): st.wait(lgkm=0)
            DR[0] = False
            st.l.append(Ins("s_barrier", [], tneed=tk))
            run(A.get(b, []), o)
    assert OPT['stop'] or (not gl and tr_next[0] == 8)
    st.s_branch(".Lend")

def main():
    st = Stream()
    entry(st)
    loader(st)
    st.label(".Lslow")
    compute_slow(st)
    st.extend(OOL)
    st.label(".Lend")
    st.s_endpgm()
    bodyt = finalize(st)
    ref = open(f"cdna_kernels/{NAME}.s.ref").read().split("\n")
    head = [l for l in ref if l.startswith(";") and "@launch" not in l]
    out = "\n".join(head) + f"\n; @launch grid=(256,1,1) block=(512,1,1) lds={LDS_BYTES}\n"
    out += '.amdgcn_target "amdgcn-amd-amdhsa--gfx950"\n' + khead(NAME + "_kernel") + bodyt + kd(NAME + "_kernel")
    path = sys.argv[1] if len(sys.argv) > 1 else f"cdna_kernels/{NAME}.s"
    open(path, "w").write(out)
    stamp_names["opt"] = " ".join(a for a in sys.argv[2:] if not a.startswith(("stamps", "only"))); json.dump(stamp_names, open(path + ".json", "w"))
    n = sum(1 for l in bodyt.split("\n") if l.startswith("    ") and not l.strip().startswith(";"))
    print("wrote", path, "instructions:", n, "barriers:", SEQ0, SEQA, SEQC)

main()
```

```python
import sys, os, math, struct, json
sys.path.insert(0, os.path.dirname(os.path.abspath(__file__)))
from asmlib import *
from layout5 import *

NAME = "interleave_layers__linear_kernel_hedgehog__geglu_ffn__prompt"
OPT = dict(stop=None, stamps=False)
for a in sys.argv[2:]:
    k, _, val = a.partition("=")
    OPT[k] = val if val != "" else True
def oi(k, d): return int(OPT.get(k, d))
def os_(k, d): return str(OPT.get(k, d))
SCL = "sc1"
def f2u(x): return "0x%08x" % struct.unpack("<I", struct.pack("<f", x))[0]
LOG2E = 1.4426950408889634
class G: SC = ""; TAG = "f"; SEQ = None; REC = True

WS, X_, OUT, WQ, WP, WO_, WG, WU, WD = [s(4 + 4 * i, 4) for i in range(9)]
sXC = s(40)
sC, sJ, sHF, sCG, sM, sNONCE, sCNT, sPAIR = [s(66 + i) for i in range(8)]
sW = s(3)
sXLD, sSTLD, sFA, sXST, sSTST, sFXST = [s(74 + i) for i in range(6)]
sOST, sFB, sFJ = s(80), s(81), s(82)
sHLD, sHST = s(84), s(85)
sKVST, sKVLD, sFKVST, sFKVLD = [s(88 + i) for i in range(4)]
sKZ, sGZ, sHALF, sH5, sF5, sHS = s(62), s(63), s(60, 2), s(49), s(83), s(41)
sT0, sT1, sT2, sT3 = [s(92 + i) for i in range(4)]
sL2E, sONE, sOUTO, sT6 = s(96), s(97), s(98), s(99)
sSTMP = s(100, 2)
sRING, sKH, sTP, sDUM, sLD = s(44), s(45), s(46), s(47), s(48)
vL, vL16, vA0, vFL = v(0), v(1), v(2), v(3)
RES = 4
vNON = v(12); vT = v(13); vU = v(14); vV = v(15)
vA1, vP0, vP1 = v(121), v(122), v(123)
aXW = v(126)
XF = 128
cWDb = [s(52 + i) for i in range(4)]; sDM = s(56)
aEW, aER, vEVv, vEVr, aCS3 = v(112), v(113), v(114), v(115), v(120)
aP4, vS4 = v(124), v(125)

class bc:
    def __init__(self, r, neg=False): self.r = int(r[1:]) if isinstance(r, str) else r; self.neg = neg
class ng:
    def __init__(self, r): self.r = r
def pk(st, op, d, *src):
    ops, lo, hi, n = [], [], [], []
    for x in src:
        if isinstance(x, bc): ops.append(v(x.r & ~1, 2)); lo.append(x.r & 1); hi.append(x.r & 1); n.append(int(x.neg))
        elif isinstance(x, ng): ops.append(v(x.r, 2)); lo.append(0); hi.append(1); n.append(1); assert x.r % 2 == 0
        else: ops.append(v(x, 2)); lo.append(0); hi.append(1); n.append(0); assert x % 2 == 0
    assert d % 2 == 0
    f = lambda l: "[" + ",".join(map(str, l)) + "]"
    mods = f"op_sel:{f(lo)} op_sel_hi:{f(hi)}" + (f" neg_lo:{f(n)} neg_hi:{f(n)}" if any(n) else "")
    st.op(f"v_pk_{op}_f32", v(d, 2), *ops, mods=mods)

lab_n = [0]
def newlab(p):
    lab_n[0] += 1
    return f".L{p}_{lab_n[0]}"

def nxt(st):
    st.s_add_u32(sNONCE, sNONCE, 1); st.v_add_u32(vNON, 1, vNON)

def poll(st, addr, soff, off=0):
    L = newlab("poll"); D = newlab("pdone")
    st.label(L)
    st.buffer_load_dword(vT, addr, WS, soff, mods=f"offen offset:{off} sc1")
    st.wait(vm=0)
    st.v_cmp_ne_u32("vcc", sNONCE, vT)
    st.s_cbranch_vccz(D)
    st.s_sub_u32(sCNT, sCNT, 1)
    st.s_cbranch_scc0(L)
    st.s_mov_b32(sCNT, 0)
    st.label(D)

OOL = Stream()
def soft_check(st, reg, addr, soff, off=0):
    D = newlab("soft"); X = newlab("softx")
    st.v_cmp_ne_u32("vcc", sNONCE, reg)
    st.s_cbranch_vccnz(X)
    st.label(D)
    OOL.label(X); OOL.mark("reset")
    poll(OOL, addr, soff, off)
    OOL.s_branch(D)

stamp_names = {"c": [], "l": []}
def stamp(st, name, real=False, who="c", pair=None):
    if OPT.get("cap") and who == "c" and name == OPT["cap"].split("@")[0]:
        (st.s_memrealtime if OPT.get("capr") else st.s_memtime)(sSTMP); st.wait(lgkm=0)
        st.s_cmp_eq_u32(sPAIR, int(OPT["cap"].split("@")[1])); st.s_cselect_b32(s(43), s(100), s(43))
    if not OPT["stamps"]: return
    only = OPT.get("only")
    if only and who == "l" and not OPT.get("lst"): return
    if only and who == "c" and not isinstance(name, int) and name not in ("start", "end") and name not in only.split(","): return
    if isinstance(name, int): idx = name
    else:
        if name not in stamp_names[who]: stamp_names[who].append(name)
        idx = stamp_names[who].index(name)
    r = v(127) if who == "c" else v(63)
    if name == 62: st.v_mov_b32(r, s(42))
    elif name == "start" and who == "c": st.v_mov_b32(r, s(86))
    elif name == "karg": st.wait(lgkm=0); st.v_mov_b32(r, s(0))
    else:
        if real: st.s_memrealtime(sSTMP)
        else: st.s_memtime(sSTMP)
        st.wait(lgkm=0)
        st.v_mov_b32(r, s(100))
    if pair is None:
        st.s_lshl_b32(s(101), sPAIR, 8)
        st.s_add_u32(s(101), s(101), s(65))
    else:
        st.s_add_u32(s(101), s(65), 256 * pair)
    st.buffer_store_dword(r, "off", WS, s(101), mods=f"offset:{idx*4}")

def ring_addr(st, mode):
    if mode in ("trq", "trn"):
        st.v_add_u32(vA0, sRING, vP0 if mode == "trq" else vP1); st.v_xor_b32(vA1, 64, vA0)
    elif mode == "b128":
        st.v_add_u32(vA0, sRING, vL16)
def ring_next(st, mode=None):
    st.s_add_u32(sRING, sRING, 0x8000); st.s_and_b32(sRING, sRING, 0x1ffff)
    ring_addr(st, mode)
def barrier(st, name, drain=False):
    if drain: st.wait(lgkm=0)
    st.s_barrier()
    if G.REC: G.SEQ.append(name)

def signal(st, val=None, off=0):
    t0, t1 = (v(124), v(125)) if val is None else (vT, vU)
    st.s_lshl_b32(sT3, sW, 2); st.s_add_u32(sT3, sT3, L_SIG + off); st.v_mov_b32(t0, sT3)
    if val is None: st.v_add_u32(t1, 1, sPAIR)
    else: st.v_mov_b32(t1, val)
    st.ds_write_b32(t0, t1)
def sigwait(st, mask=28, off=0, regs=(124, 125, 126), cmp="ne", extra=None):
    L = newlab("sig"); D = newlab("sigd")
    a, e, r = [v(x) for x in regs]
    st.v_and_b32(a, mask, vFL); st.v_add_u32(a, L_SIG + off, a)
    if extra:
        st.ds_read_b32(r, a)
        extra(st)
        st.wait(lgkm=0)
        st.op(f"v_cmp_{cmp}_u32", "vcc", e, r)
        st.s_cbranch_vccz(D)
    st.label(L)
    st.ds_read_b32(r, a)
    st.wait(lgkm=0)
    st.op(f"v_cmp_{cmp}_u32", "vcc", e, r)
    st.s_cbranch_vccz(D)
    st.s_sub_u32(sCNT, sCNT, 1)
    st.s_cbranch_scc0(L)
    st.s_mov_b32(sCNT, 0)
    st.label(D)

def lane_tr(st, d0, d1, kind, stride=128, tmp=vT, hstride=None):
    st.v_bfe_u32(d0, vL, 2, 2)
    if stride == 128: st.v_lshlrev_b32(d0, 7, d0)
    else: st.v_mul_u32_u24(d0, stride, d0)
    st.v_lshrrev_b32(tmp, 5, vL)
    st.v_lshl_add_u32(d0, tmp, int(math.log2(hstride or 8 * stride)), d0)
    sh = dict(qkv=(5, 4), nat=(4, 5))[kind]
    st.v_and_b32(tmp, 1, vL); st.v_lshl_add_u32(d0, tmp, sh[0], d0)
    st.v_bfe_u32(tmp, vL, 1, 1); st.v_lshl_add_u32(d0, tmp, 3, d0)
    st.v_bfe_u32(tmp, vL, 4, 1); st.v_lshl_add_u32(d0, tmp, sh[1], d0)
    if stride == 128:
        st.v_bfe_u32(tmp, vL, 3, 1); st.v_lshl_add_u32(d0, tmp, 6, d0)
        if d1: st.v_xor_b32(d1, 64, d0)

gemm_n = [0]
def gemm(st, items, mode, af, nslots, depth, ready, bars=None, fill=None, budget=16, hooks=None, loads=None, pre=10, every=2, pairw=0):
    n = len(items); loads = list(loads or []); ready = set(ready); bars = bars or {}
    nr = 0; gemm_n[0] += 1; tg = f"g{gemm_n[0]}_"
    def pump(upto):
        nonlocal nr
        while nr < n and nr <= upto:
            it = items[nr]; r = af + 4 * (nr % nslots)
            assert it["chunk"] in ready, (nr, it["chunk"])
            if nr > 0 and it["chunk"] != items[nr - 1]["chunk"]: ring_next(st, mode)
            if mode != "b128":
                a = vA1 if it["t"] else vA0
                st.ds_read_b64_tr_b16(v(r, 2), a, mods=f"offset:{it['off']}")
                st.ds_read_b64_tr_b16(v(r + 2, 2), a, mods=f"offset:{it['off']+512}", tset=tg + str(nr))
            else:
                st.ds_read_b128(v(r, 4), vA0, mods=f"offset:{it['off']}", tset=tg + str(nr))
            nr += 1
    for _ in range(min(pre, len(loads))): loads.pop(0)(st)
    pump(depth - 1)
    for i in range(n):
        it = items[i]
        if hooks and i in hooks: hooks[i](st)
        acc = v(it["acc"], 16)
        st.v_mfma_f32_32x32x16_bf16(acc, v(af + 4 * (i % nslots), 4), v(it["b"], 4), "0" if it["first"] else acc,
                                    tneed=tg + str(i + 1) if pairw and i % 2 == 0 and i + 1 < nr else None)
        if i in bars:
            barrier(st, bars[i][0]); ready |= set(bars[i][1])
        pump(i + depth)
        if loads and i % every == every - 1: loads.pop(0)(st)
        if fill is not None: fill.take(st, budget(i) if callable(budget) else budget)
    assert not loads

def entry(st):
    st.s_cmp_ge_u32(s(2), 256)
    st.s_cbranch_scc1(".Lend")
    if OPT["stamps"]: st.s_memrealtime(s(42, 2)); st.s_memtime(s(86, 2))
    if OPT.get("dbg"): st.s_memrealtime(s(42, 2)); st.s_memtime(s(86, 2))
    st.s_load_dwordx16(s(44, 16), s(0, 2), 0)
    st.s_load_dwordx4(s(60, 4), s(0, 2), 64)
    st.s_load_dwordx2(s(64, 2), s(0, 2), 80)
    st.v_lshrrev_b32(vT, 6, v(0))
    st.v_and_b32(vL, 63, v(0))
    st.v_readfirstlane_b32(sW, vT)
    st.v_lshlrev_b32(vL16, 4, vL)
    st.v_and_b32(vFL, 15, vL)
    st.v_lshlrev_b32(vFL, 2, vFL)
    st.s_and_b32(sT0, s(2), 7)
    st.s_lshr_b32(sT1, s(2), 3)
    st.s_lshr_b32(sC, sT1, 4)
    st.s_lshl_b32(sT0, sT0, 1)
    st.s_add_u32(sC, sC, sT0)
    st.s_and_b32(sJ, sT1, 15)
    st.s_lshr_b32(sHF, sJ, 3)
    st.s_and_b32(sCG, sJ, 7)
    st.s_and_b32(sM, sW, 3)
    st.s_mov_b32(sCNT, 1 << 18)
    st.s_mov_b32(sPAIR, 0)
    st.s_cmp_lt_u32(sJ, 6)
    st.s_cselect_b32(sT6, 1, 0)
    st.s_getreg_b32(sXC, "hwreg(HW_REG_XCC_ID, 0, 4)")
    for d in (WS, X_, OUT, WQ, WP, WO_, WG, WU, WD):
        st.s_mov_b32(s(int(d[2:d.index(":")]) + 3), 0x20000)
    for d, size in ((X_, 2048 * 1024), (WQ, 512 * 3072), (WS, WS_SIZE), (WP, 32 * 512), (WO_, 512 * 1024), (WG, 512 * 2752),
                    (WU, 512 * 2752), (WD, 1376 * 1024), (OUT, 2048 * 1024)):
        st.s_mov_b32(s(int(d[2:d.index(":")]) + 2), size)
    if oi("cfirst", 1):
        st.s_cmp_ge_u32(sW, 4); st.s_cbranch_scc1(".Lld0")
        compute(st)
        st.label(".Lld0"); st.mark("reset")
    else:
        st.s_cmp_lt_u32(sW, 4); st.s_cbranch_scc1(".Lcomp")

def rot(st, d, t):
    if not oi("rot", 0): st.s_mov_b32(d, 0); return
    st.s_and_b32(d, sJ, 1); st.s_and_b32(t, sC, 1); st.s_lshl_b32(t, t, 1); st.s_add_u32(d, d, t); st.s_lshl_b32(d, d, 1)
    st.s_lshr_b32(t, sJ, 1); st.s_add_u32(d, d, t)

def srds(st, lst):
    src = {X_: 44, WQ: 46, WP: 48, WO_: 50, WG: 54, WU: 56, WD: 58, OUT: 60, WS: 64}
    for d in lst:
        b = int(d[2:d.index(":")])
        st.s_mov_b32(s(b), s(src[d])); st.s_and_b32(s(b + 1), s(src[d] + 1), 0xffff)

def stamp_base(st):
    if OPT["stamps"]:
        st.s_lshl_b32(s(65), s(2), 3); st.s_add_u32(s(65), s(65), sW); st.s_lshl_b32(s(65), s(65), 9)
        st.s_add_u32(s(65), s(65), STAMP)

aK, aV, aQ, AF1, WPH, STT = 16, 32, 48, 64, 88, 96
NM, RS, VE, LR = v(112), v(113), v(114), v(115)
aCS, aA, aB, aR1, aR2 = v(116), v(117), v(118), v(119), v(120)

def kv_items():
    return [dict(chunk=k // 16, off=(k % 16) * 2048, t=t, acc=acc, b=XF + 4 * k, first=k == 0)
            for k in range(32) for t, acc in ((0, aK), (1, aV))]

CK, CV = aQ, STT
def k_addr(st):
    st.v_lshrrev_b32(vU, 5, vL); st.v_and_b32(vT, 1, vL); st.v_cmp_eq_u32("vcc", vT, vU)
    st.v_lshlrev_b32(aCS, 6, vU); st.v_add_u32(aCS, L_CS, aCS)
    st.v_lshlrev_b32(aR1, 7, vU); st.v_and_b32(vT, 12, vL); st.v_lshl_add_u32(aR1, vT, 3, aR1)
    st.v_and_b32(vT, 16, vL); st.v_add_u32(aR1, aR1, vT); st.v_and_b32(vT, 2, vL); st.v_lshl_add_u32(aR1, vT, 2, aR1)
    st.v_mov_b32(vT, 544); st.v_cndmask_b32(aR1, vT, aR1, "vcc"); st.v_add_u32(aR1, L_KVB, aR1)
    st.v_and_b32(vT, 31, vL); st.s_lshl_b32(sT0, sM, 5); st.v_add_u32(vT, sT0, vT)
    st.v_mul_u32_u24(aA, 144, vT); st.v_lshl_add_u32(aA, vU, 6, aA); st.v_add_u32(aA, L_PH, aA)
    st.v_mul_u32_u24(aB, 80, vT); st.v_lshl_add_u32(aB, vU, 5, aB); st.v_add_u32(aB, L_VB, aB)
def k_reads(st, which="wkv"):
    if "k" in which:
        for i in range(4): st.ds_read_b128(v(CK + 4 * i, 4), aCS, mods=f"offset:{16*i}")
    if "w" in which:
        for q in range(4): st.ds_read_b64_tr_b16(v(WPH + 2 * q, 2), aR1, mods=f"offset:{576*q}")
    if "v" in which:
        for i in range(4): st.ds_read_b128(v(CV + 4 * i, 4), aCS, mods=f"offset:{128+16*i}")

def fin_stats(st, S, Q, t0, t1, negmean, rstd, vare):
    if t0: st.v_mov_b32(t0, S)
    st.v_mov_b32(t1, Q)
    if t0: st.v_permlane32_swap_b32(S, t0)
    st.v_permlane32_swap_b32(Q, t1)
    if t0: st.v_add_f32(S, S, t0)
    st.v_add_f32(Q, Q, t1)
    st.v_mul_f32(negmean, f2u(-1.0 / 512), S)
    st.v_mul_f32(Q, f2u(1.0 / 512), Q)
    st.v_fma_f32(vare, "-" + negmean, negmean, Q)
    st.v_max_f32(vare, 0, vare)
    st.v_add_f32(vare, f2u(1e-5), vare)
    st.v_rsq_f32(rstd, vare)

def stats(st, stt, negmean, rstd, vare):
    S, Q = v(stt), v(stt + 1)
    for i in range(4): st.v_add_f32(v(stt + i), v(stt + i), v(stt + 4 + i))
    for i in range(4): st.v_add_f32(v(stt + 8 + i), v(stt + 8 + i), v(stt + 12 + i))
    for i in range(4): st.v_add_f32(v(stt + i), v(stt + i), v(stt + 8 + i))
    st.v_add_f32(S, S, v(stt + 2)); st.v_add_f32(Q, Q, v(stt + 3))
    fin_stats(st, S, Q, v(stt + 2), v(stt + 3), negmean, rstd, vare)

def p1a0(st):
    g0, g1, aW = v(118), v(119), v(120)
    aRd = [v(88 + i) for i in range(4)]
    QD, SA, SELA = 96, 112, 92
    st.v_lshrrev_b32(vT, 3, vL); st.v_and_b32(vV, 7, vL)
    st.v_lshlrev_b32(g0, 10, vT); st.v_lshl_add_u32(g0, vV, 4, g0)
    st.s_lshl_b32(sT0, sC, 2); st.s_add_u32(sT0, sT0, sM); st.s_lshl_b32(sT0, sT0, 15)
    GA = [v(48 + g) for g in range(4)]
    st.v_lshlrev_b32(g1, 5, vFL); st.s_lshl_b32(sT1, sJ, 11); st.s_add_u32(sT1, sT1, sT0)
    for g in range(4):
        st.v_add_u32(GA[g], sT0, g0)
        if g < 3: st.s_add_u32(sT0, sT0, 8192)
    if oi("tk0", 0):
        st.v_lshrrev_b32(vT, 5, vL); st.v_lshlrev_b32(vT, 8, vT); st.v_bfe_u32(vU, vL, 4, 1); st.v_add_u32(vT, vT, vU)
        st.v_mul_u32_u24(v(124), 3072, vT); st.v_lshl_add_u32(v(124), vFL, 5, v(124))
        st.s_and_b32(sT2, sC, 1); st.s_lshl_b32(sT2, sT2, 4); st.s_add_u32(sT2, sT2, sJ); st.s_lshl_b32(sT2, sT2, 2); st.s_add_u32(sT2, sT2, sM)
        st.s_mul_i32(sT2, sT2, 2 * 3072); st.s_add_u32(sT2, sT2, 1024)
    sR, sQO = s(41), s(83)
    rot(st, sR, sT0)
    def xl(p, st):
        st.s_add_u32(sQO, sR, p); st.s_and_b32(sQO, sQO, 7); st.s_lshl_b32(sQO, sQO, 7)
        if p == 0:
            st.wait(lgkm=0)
            srds(st, [X_])
            if OPT["stamps"]: st.s_memtime(s(0, 2))
            if oi("tx0", 1):
                i = Ins("buffer_load_dword", [v(126), g1, X_, sT1], "offen"); i.dst = set(); st.l.append(i)
            if oi("tk0", 0):
                srds(st, [WQ])
                i = Ins("buffer_load_dword", [v(125), v(124), WQ, sT2], "offen"); i.dst = set(); st.l.append(i)
        for g in range(4):
            st.buffer_load_dwordx4(v(XF + 16 * p + 4 * g, 4), GA[g], X_, sQO, mods="offen")
    n0 = oi("xn0", 2); n1 = oi("xn1", 4)
    for p in range(n0): xl(p, st)
    srds(st, [WS, OUT])
    stamp_base(st)
    stamp(st, 62, True)
    stamp(st, "start")
    stamp(st, "karg"); stamp(st, "xissued")
    st.buffer_load_dword(vNON, "off", WS, 0, mods=f"offset:{EPOCH} sc1")
    st.s_and_b32(sKH, sM, 1); st.s_lshr_b32(sTP, sM, 1); st.s_mov_b32(sRING, 0)
    st.v_and_b32(aA, 31, vL); st.v_lshlrev_b32(aA, 10, aA); st.v_lshrrev_b32(vT, 5, vL); st.v_lshl_add_u32(aA, vT, 4, aA)
    st.s_lshl_b32(sOUTO, sC, 17); st.s_lshl_b32(sT1, sHF, 16); st.s_add_u32(sOUTO, sOUTO, sT1)
    st.s_lshl_b32(sT1, sTP, 15); st.s_add_u32(sOUTO, sOUTO, sT1); st.s_lshl_b32(sT1, sCG, 7); st.s_add_u32(sOUTO, sOUTO, sT1)
    st.s_lshl_b32(sT1, sKH, 6); st.s_add_u32(sOUTO, sOUTO, sT1)
    st.s_mov_b32(sL2E, f2u(LOG2E)); st.s_mov_b32(sONE, 0x3f803f80)
    st.s_lshl_b32(sT0, sC, 2); st.s_add_u32(sT1, sT0, sM)
    st.s_lshl_b32(sXLD, sT1, 15); st.s_add_u32(sXLD, sXLD, XB)
    st.s_lshl_b32(sSTLD, sT1, 12); st.s_add_u32(sSTLD, sSTLD, ST)
    st.s_lshl_b32(sFA, sT1, 10); st.s_add_u32(sFA, sFA, FL)
    st.s_lshl_b32(sT2, sJ, 2); st.s_add_u32(sFJ, sFA, sT2)
    st.s_mul_i32(sHST, sT1, HB_TB); st.s_add_u32(sHST, sHST, HB)
    st.s_lshl_b32(sT2, sJ, 11); st.s_add_u32(sOST, sHST, sT2)
    st.s_mov_b32(s(60), 0); st.s_mov_b32(s(61), -1)
    st.s_lshl_b32(sT2, sJ, 10); st.s_add_u32(sHST, sHST, sT2)
    st.s_lshl_b32(sDUM, sT1, 11); st.s_add_u32(sDUM, sDUM, DUMMY)
    st.s_lshl_b32(sT1, sHF, 1); st.s_add_u32(sT1, sT1, sT0); st.s_add_u32(sT1, sT1, sTP)
    st.s_lshl_b32(sT3, sCG, 1); st.s_add_u32(sT3, sT3, sKH)
    st.s_lshl_b32(sXST, sT1, 15); st.s_lshl_b32(sT2, sT3, 11); st.s_add_u32(sXST, sXST, sT2); st.s_add_u32(sXST, sXST, XB)
    st.s_lshl_b32(sSTST, sT1, 12); st.s_lshl_b32(sT2, sCG, 9); st.s_add_u32(sSTST, sSTST, sT2)
    st.s_lshl_b32(sT2, sKH, 3); st.s_add_u32(sSTST, sSTST, sT2); st.s_add_u32(sSTST, sSTST, ST)
    st.s_lshl_b32(sFB, sT1, 10); st.s_add_u32(sFB, sFB, FL)
    st.s_lshl_b32(sT2, sT3, 2); st.s_add_u32(sFXST, sFB, sT2)
    st.s_lshl_b32(sT2, sKH, 10)
    st.s_mul_i32(sHLD, sT1, HB_TB); st.s_add_u32(sHLD, sHLD, sT2); st.s_add_u32(sHLD, sHLD, HB)
    st.s_mul_i32(sKVLD, sJ, KV_J); st.s_add_u32(sKVLD, sKVLD, KVP)
    st.s_mul_i32(sKVST, sC, KV_REC); st.s_add_u32(sKVST, sKVST, sKVLD)
    st.s_lshl_b32(sT1, sKH, 7); st.s_lshl_b32(sT2, sTP, 5); st.s_add_u32(sT1, sT1, sT2); st.s_add_u32(sKZ, sKVST, sT1); st.s_add_u32(sKZ, sKZ, 2048)
    st.s_lshl_b32(sT1, sKH, 10); st.s_lshl_b32(sT2, sTP, 6); st.s_add_u32(sT1, sT1, sT2); st.s_add_u32(sKVST, sKVST, sT1)
    st.s_lshl_b32(sT1, sM, 6); st.s_add_u32(sGZ, sKVLD, sT1); st.s_add_u32(sGZ, sGZ, 2048)
    st.s_lshl_b32(sT1, sM, 9); st.s_add_u32(sKVLD, sKVLD, sT1)
    st.s_lshl_b32(sFKVLD, sJ, 11); st.s_add_u32(sFKVLD, sFKVLD, FKV)
    st.s_lshl_b32(sT1, sC, 7); st.s_lshl_b32(sT2, sM, 2); st.s_add_u32(sFKVST, sT1, sT2); st.s_add_u32(sFKVST, sFKVST, sFKVLD)
    for i in range(4): st.v_mov_b32(v(96 + i), 0)
    st.v_and_b32(vT, 3, vL); st.v_mul_u32_u24(vT, 576, vT); st.v_add_u32(vT, L_KVB + 544, vT)
    st.ds_write_b128(vT, v(96, 4))
    st.v_and_b32(vT, 112, vL16); st.v_add_u32(vT, L_SIG, vT)
    st.ds_write_b128(vT, v(96, 4))
    st.v_bfe_u32(vT, vL, 4, 1); st.v_and_b32(vU, 1, vL); st.v_cmp_eq_u32("vcc", vT, vU)
    st.v_mov_b32(vV, sONE)
    for i in range(4): st.v_cndmask_b32(v(SELA + i), 0, vV, "vcc")
    st.s_lshl_b32(sT0, sM, 12); st.s_add_u32(sT0, sT0, L_PH)
    st.v_and_b32(vT, 48, vL); st.v_xor_b32(vT, vT, vL16); st.v_add_u32(aW, sT0, vT); st.v_xor_b32(g1, 64, aW)
    st.v_and_b32(vT, 31, vL); st.v_lshrrev_b32(vU, 5, vL); st.v_bfe_u32(vV, vL, 1, 3); st.v_xor_b32(vU, vU, vV)
    st.v_lshlrev_b32(vT, 7, vT); st.v_lshl_add_u32(vT, vU, 4, vT); st.v_add_u32(aRd[0], sT0, vT)
    for i in range(1, 4): st.v_xor_b32(aRd[i], 32 * i, aRd[0])
    lane_tr(st, vP0, None, "qkv"); ring_addr(st, "trq")
    def rnd(q, st):
        R = XF + 16 * q
        for g in range(4): st.ds_write_b128(g1 if g & 1 else aW, v(R + 4 * g, 4), mods=f"offset:{1024*g}")
        for i in range(4): st.ds_read_b128(v(R + 4 * i, 4), aRd[i])
    def smf(k, st):
        f = v(XF + 4 * k, 4)
        st.v_mfma_f32_32x32x16_bf16(v(QD, 16), f, f, "0" if k == 0 else v(QD, 16))
        st.v_mfma_f32_16x16x32_bf16(v(SA, 4), v(SELA, 4), f, "0" if k == 0 else v(SA, 4))
    def res(st):
        st.buffer_load_dwordx4(v(RES, 4), aA, X_, sOUTO, mods="offen")
        st.buffer_load_dwordx4(v(RES + 4, 4), aA, X_, sOUTO, mods="offen offset:32")
    hooks = {}
    hq = oi("hq", 8)
    for p in range(n0, n1): xl(p, st)
    nl = n1
    rnd(0, st)
    for q in range(hq):
        if nl < 8: xl(nl, st); nl += 1
        if q < 7: rnd(q + 1, st)
        for k in range(4 * q, 4 * q + 4): smf(k, st)
    while nl < 8: xl(nl, st); nl += 1
    acts = {}
    at = oi("rnd0", 2); gap = oi("rndgap", 8)
    for n, q in enumerate(range(hq, 8)):
        i0 = at + gap * n
        if q < 7: acts.setdefault(i0, []).append(lambda st, q=q: rnd(q + 1, st))
        for u in range(4): acts.setdefault(i0 + 1 + 2 * u, []).append(lambda st, k=4 * q + u: smf(k, st))
        assert i0 < 8 * (q + 1) - 2
    acts.setdefault(oi("res0", 40), []).append(res)
    for i, l in acts.items(): hooks[i] = lambda st, l=l: [f(st) for f in l]
    stamp(st, "p1pre")
    barrier(st, "a0", drain=True)
    stamp(st, "B(a0)")
    bars = {oi("a1", 20): ("a1", [1])}
    f = Stream()
    M = [s(50 + 2 * i, 2) for i in range(5)]
    for i, bit in enumerate((16, 8, 2, 1)):
        f.v_and_b32(vT, bit, vL); f.v_cmp_ne_u32(M[i], 0, vT)
    f.v_bfe_u32(vT, vL, 2, 1); f.v_lshrrev_b32(vU, 5, vL); f.v_cmp_eq_u32(M[4], vT, vU)
    f.v_cndmask_b32(v(SA), v(SA), v(SA + 1), M[0])
    for i in range(8): f.v_cndmask_b32(v(QD + i), v(QD + i), v(QD + 8 + i), M[0])
    for i in range(4): f.v_cndmask_b32(v(QD + i), v(QD + i), v(QD + 4 + i), M[1])
    for i in range(2): f.v_cndmask_b32(v(QD + i), v(QD + i), v(QD + 2 + i), M[2])
    f.v_cndmask_b32(v(QD), v(QD), v(QD + 1), M[3])
    f.v_cndmask_b32(v(QD), 0, v(QD), M[4])
    fin_stats(f, v(SA), v(QD), None, v(QD + 1), NM, RS, VE)
    f.v_mul_f32(LR, sL2E, RS)
    g = Stream(); k_addr(g)
    lane_tr(g, vP1, None, "nat")
    g.s_lshl_b32(sT2, sKH, 6); g.v_xor_b32(vP1, sT2, vP1); g.s_lshl_b32(sT2, sKH, 11); g.v_add_u32(vP1, sT2, vP1)
    fill = Filler()
    assert hq == 8
    r0 = oi("res0", 24)
    hooks = {2: lambda st: fill.add(f), r0: res, r0 + 1: lambda st: fill.add(g)}
    gemm(st, kv_items(), "trq", AF1, 6, 5, ready=[0], bars=bars, hooks=hooks, fill=fill, budget=oi("bud1", 8))
    fill.flush(st)
    st.v_add_u32(vNON, 1, vNON)
    st.v_mov_b32(v(125), 1); sigwait(st, 12, 32, cmp="gt")
    k_reads(st)
    st.v_readfirstlane_b32(sNONCE, vNON)
    signal(st, 2, 32)
    st.s_add_u32(sH5, sHST, 16384 * 5); st.s_add_u32(sF5, sDUM, 1024)
    st.s_cmp_eq_u32(sT6, 1); st.s_cselect_b32(sH5, sH5, sDUM); st.s_cselect_b32(sF5, sFJ, sF5)
    stamp(st, "KVgemm")

def frag_loads(base, regs, stride, per):
    out = []
    for k, r in enumerate(regs):
        def f(st, k=k, r=r):
            if k % per == 0: st.s_add_u32(sLD, base, k * stride)
            st.buffer_load_dwordx4(v(r, 4), vL16, WS, sLD, mods=f"offen offset:{(k % per) * stride} {SCL}")
        out.append(f)
    return out

def x_addr(st):
    st.v_lshrrev_b32(vV, 5, vL); st.v_lshlrev_b32(vV, 11, vV); st.v_and_b32(vU, 31, vL); st.v_lshl_add_u32(vV, vU, 4, vV)
def p1a_pre(st):
    ring_next(st, "trq"); x_addr(st)
def p3_pre(st):
    st.v_and_b32(vU, 31, vL); st.v_lshlrev_b32(aCS3, 2, vU); st.v_add_u32(aCS3, L_CS + 3 * 128, aCS3)
    ring_next(st, "b128"); x_addr(st)
    st.s_add_u32(sT0, sRING, 0x10000); st.s_and_b32(sT0, sT0, 0x1ffff); st.v_add_u32(vA1, sT0, vL16)
    st.s_lshl_b32(sT0, sM, 12); st.s_add_u32(sT0, sT0, L_PH); st.v_add_u32(aXW, sT0, vL16)
def x_loads(st, stt, at=32):
    L = frag_loads(sXLD, [XF + 4 * k for k in range(32)], 1024, 4)
    def stl(st):
        for i in range(4):
            st.buffer_load_dwordx4(v(stt + 4 * i, 4), vV, WS, sSTLD, mods=f"offen offset:{512*i} {SCL}")
    return L[:at] + [stl] + L[at:]

def featmap(st, acc, kb, wp, e1, e2, lr, mid=None):
    for i in range(8): st.v_cvt_pk_bf16_f32(v(kb + i), v(acc + 2 * i), v(acc + 2 * i + 1))
    st.v_mfma_f32_32x32x16_bf16(v(acc, 16), v(wp, 4), v(kb, 4), "0")
    st.v_mfma_f32_32x32x16_bf16(v(acc, 16), v(wp + 4, 4), v(kb + 4, 4), v(acc, 16))
    if mid: mid(st)
    mx, mn = v(kb), v(kb + 1)
    p = lambda i: v(acc + i)
    st.v_max3_f32(mx, p(0), p(1), p(2)); st.v_min3_f32(mn, p(0), p(1), p(2))
    for i in range(3, 15, 2):
        st.v_max3_f32(mx, mx, p(i), p(i + 1)); st.v_min3_f32(mn, mn, p(i), p(i + 1))
    st.v_max_f32(mx, mx, p(15)); st.v_min_f32(mn, mn, p(15))
    pk(st, "mul", kb, bc(lr), kb)
    for i in range(0, 16, 2):
        pk(st, "fma", e1 + i, acc + i, bc(lr), bc(kb, True)); pk(st, "fma", e2 + i, ng(acc + i), bc(lr), bc(kb + 1))
    for i in range(16):
        st.v_exp_f32(v(e1 + i), v(e1 + i)); st.v_exp_f32(v(e2 + i), v(e2 + i))
    s1, s2 = kb + 2, kb + 4
    pk(st, "add", s1, e1, e1 + 2); pk(st, "add", s2, e2, e2 + 2)
    for i in range(4, 16, 2):
        pk(st, "add", s1, s1, e1 + i); pk(st, "add", s2, s2, e2 + i)
    st.v_add_f32(v(s1), v(s1), v(s1 + 1)); st.v_add_f32(v(s2), v(s2), v(s2 + 1))
    st.v_rcp_f32(v(s1), v(s1)); st.v_rcp_f32(v(s2), v(s2))
    for i in range(0, 16, 2):
        pk(st, "mul", e1 + i, bc(s1), e1 + i); pk(st, "mul", e2 + i, bc(s2), e2 + i)
    for i in range(8):
        st.v_cvt_pk_bf16_f32(v(e1 + i), v(e1 + 2 * i), v(e1 + 2 * i + 1))
        st.v_cvt_pk_bf16_f32(v(e2 + i), v(e2 + 2 * i), v(e2 + 2 * i + 1))

def p1a(st):
    at = oi("st1", 22)
    L = x_loads(st, STT, at)
    stamp(st, "p1pre")
    poll(st, vFL, sFA)
    stamp(st, "FXpoll")
    pre = oi("pre1", 10)
    for f in L[:pre]: f(st)
    nxt(st)
    barrier(st, "a0")
    stamp(st, "B(a0)")
    fill = Filler()
    f = Stream(); stats(f, STT, NM, RS, VE); f.v_mul_f32(LR, sL2E, RS); k_reads(f, "v")
    g = Stream(); k_addr(g); k_reads(g, "wk")
    hooks = {2: lambda st: fill.add(g), oi("sth1", 2 * at + 2): lambda st: fill.add(f)}
    gemm(st, kv_items(), "trq", AF1, 6, 5, ready=[0], bars={oi("a1", 20): ("a1", [1]), oi("a2", 56): ("a2", [])}, loads=L[pre:], pre=0,
         hooks=hooks, fill=fill, budget=oi("bud1", 8))
    fill.flush(st)
    stamp(st, "KVgemm")

def p1b(st):
    AF = AF1
    for i in range(0, 16, 2): pk(st, "fma", aK + i, CK + i, bc(NM), aK + i)
    def vpart(st):
        for i in range(0, 16, 2): pk(st, "fma", aV + i, CV + i, bc(NM), aV + i)
        for i in range(0, 16, 2): pk(st, "mul", aV + i, bc(RS), aV + i)
        for i in range(8): st.v_cvt_pk_bf16_f32(v(aV + i), v(aV + 2 * i), v(aV + 2 * i + 1))
        st.ds_write_b128(aB, v(aV, 4)); st.ds_write_b128(aB, v(aV + 4, 4), mods="offset:16")
    featmap(st, aK, AF, WPH, STT, aQ, LR, mid=vpart)
    st.ds_write_b128(aA, v(STT, 4)); st.ds_write_b128(aA, v(STT + 4, 4), mods="offset:16")
    st.ds_write_b128(aA, v(aQ, 4), mods="offset:32"); st.ds_write_b128(aA, v(aQ + 4, 4), mods="offset:48")
    signal(st)
    TA, TB, ONE, AKV, AZ = 16, 32, 96, 100, 104
    def shadow(st):
        st.v_lshrrev_b32(vT, 4, vL); st.v_lshlrev_b32(vT, 3, vT); st.v_bfe_u32(vU, vL, 2, 2); st.v_add_u32(vT, vT, vU)
        st.v_and_b32(vU, 3, vL); st.v_lshlrev_b32(vU, 3, vU)
        st.s_lshl_b32(sT0, sM, 5); st.s_add_u32(sT0, sT0, L_PH)
        st.v_mul_u32_u24(aR1, 144, vT); st.v_add3_u32(aR1, aR1, vU, sT0)
        st.s_lshl_b32(sT0, sTP, 5); st.s_add_u32(sT0, sT0, L_VB)
        st.v_mul_u32_u24(aR2, 80, vT); st.v_add3_u32(aR2, aR2, vU, sT0)
        ring_next(st, "trq")
    sigwait(st, extra=shadow)
    stamp(st, "Kepi+B")
    for k in range(4):
        for q in range(2):
            st.ds_read_b64_tr_b16(v(TA + 4 * k + 2 * q, 2), aR1, mods=f"offset:{(32*k+4*q)*144}")
            st.ds_read_b64_tr_b16(v(TB + 4 * k + 2 * q, 2), aR2, mods=f"offset:{(32*k+4*q)*80}")
    for i in range(4): st.v_mov_b32(v(ONE + i), sONE)
    st.v_lshrrev_b32(vT, 5, vL); st.v_lshlrev_b32(vV, 9, vT); st.v_bfe_u32(vU, vL, 4, 1); st.v_lshl_add_u32(vV, vU, 3, vV)
    st.v_lshlrev_b32(vT, 6, vT); st.v_lshl_add_u32(vT, vU, 4, vT)
    st.v_bfe_u32(vU, vL, 2, 2); st.v_lshl_add_u32(vV, vU, 7, vV); st.v_and_b32(vU, 3, vL); st.v_lshl_add_u32(vV, vU, 4, vV)
    for k in range(4):
        st.v_mfma_f32_16x16x32_bf16(v(AKV, 4), v(TA + 4 * k, 4), v(TB + 4 * k, 4), "0" if k == 0 else v(AKV, 4))
        st.v_mfma_f32_16x16x32_bf16(v(AZ, 4), v(TA + 4 * k, 4), v(ONE, 4), "0" if k == 0 else v(AZ, 4))
    st.v_cvt_pk_bf16_f32(v(AKV), v(AKV), v(AKV + 1)); st.v_cvt_pk_bf16_f32(v(AKV + 1), v(AKV + 2), v(AKV + 3))
    st.buffer_store_dwordx2(v(AKV, 2), vV, WS, sKVST, mods="offen sc1")
    st.buffer_store_dwordx4(v(AZ, 4), vT, WS, sKZ, mods="offen sc1", tset="kv")
    stamp(st, "kv st")
    items = []
    for k in range(16):
        for t in range(2):
            items.append(dict(chunk=0, off=k * 2048, t=t, acc=aQ, b=XF + 4 * (k + 16 * t), first=(k, t) == (0, 0)))
    def kvflag(st): st.buffer_store_dword(vNON, "off", WS, sFKVST, mods="sc1", tneed="kv")
    CS = 16
    aPL, aGZ, aGK = aR1, aR2, aB
    f = Stream()
    for i in range(4): f.ds_read_b128(v(CS + 4 * i, 4), aCS, mods=f"offset:{256+16*i}")
    f.v_lshrrev_b32(aPL, 2, vL); f.v_lshlrev_b32(aPL, 7, aPL); f.v_and_b32(vU, 3, vL); f.v_lshl_add_u32(aPL, vU, 2, aPL)
    f.v_lshrrev_b32(aGZ, 4, vL); f.v_mul_u32_u24(aGZ, KV_REC, aGZ); f.v_add_u32(aGZ, aGZ, vFL)
    f.v_lshrrev_b32(aGK, 5, vL); f.v_mul_u32_u24(aGK, KV_REC - 512, aGK); f.v_add_u32(aGK, aGK, vL16)
    fill = Filler()
    gemm(st, items, "trq", AF, 6, 5, ready=[0], hooks={4: lambda st: fill.add(f), oi("kvflag", 24): kvflag}, fill=fill, budget=8)
    fill.flush(st)
    stamp(st, "Qgemm")
    for i in range(0, 16, 2): pk(st, "fma", aQ + i, CS + i, bc(NM), aQ + i)
    featmap(st, aQ, AF, WPH, aK, aV, LR)
    stamp(st, "Q done")
    poll(st, aPL, sFKVLD)
    stamp(st, "FKVpoll")
    Gr, Z, SG, GA = XF, XF + 64, XF + 32, XF + 48
    XT = v(XF + 72)
    nt = " nt" if OPT.get("kvnt") else ""
    for cc in range(8):
        if cc: st.s_add_u32(sT0, sKVLD, 2 * cc * KV_REC)
        st.buffer_load_dwordx4(v(Gr + 4 * cc, 4), aGK, WS, sT0 if cc else sKVLD, mods="offen sc1" + nt)
    for i in range(4):
        if i: st.s_add_u32(sT1, sGZ, 4 * i * KV_REC)
        st.buffer_load_dword(v(Z + i), aGZ, WS, sT1 if i else sGZ, mods="offen sc1" + nt)
    if G.TAG == "f":
        st.s_lshl_b32(sT2, sC, 7); st.s_add_u32(sT2, sT2, XCCT)
        st.buffer_load_dword(XT, vFL, WS, sT2, mods="offen sc1")
    nxt(st)
    st.s_mul_i32(sT0, sM, 576); st.s_add_u32(sT0, sT0, L_KVB)
    st.v_and_b32(vT, 31, vL)
    st.v_and_b32(vU, 1, vL); st.v_lshlrev_b32(vU, 4, vU); st.v_mov_b32(vV, 0x3f80); st.v_lshlrev_b32(vU, vU, vV); st.v_lshrrev_b32(vV, 1, vT)
    for i in range(4):
        st.v_cmp_eq_u32("vcc", i, vV); st.v_cndmask_b32(v(SG + i), 0, vU, "vcc")
    st.v_lshlrev_b32(vT, 4, vT)
    st.v_lshrrev_b32(vU, 5, vL)
    st.v_lshl_add_u32(aA, vU, 3, vT); st.v_add_u32(aA, sT0, aA)
    st.v_lshrrev_b32(aB, 1, vFL); st.v_add_u32(aB, sT0, aB)
    st.v_bfe_u32(vV, vL, 2, 1); st.v_cmp_eq_u32("vcc", vV, vU)
    st.v_mov_b32(vV, 544); st.v_cndmask_b32(vT, vV, vT, "vcc"); st.v_add_u32(aR1, L_KVB, vT)
    st.v_lshlrev_b32(vU, 4, vU); st.v_add_u32(aR2, L_KVB + 512, vU)
    for cc in range(8):
        st.v_mfma_f32_32x32x16_bf16(v(GA, 16), v(SG, 4), v(Gr + 4 * cc, 4), "0" if cc == 0 else v(GA, 16))
    st.v_add_f32(v(Z), v(Z), v(Z + 1)); st.v_add_f32(v(Z + 2), v(Z + 2), v(Z + 3)); st.v_add_f32(v(Z), v(Z), v(Z + 2))
    st.v_mov_b32(v(Z + 1), v(Z)); st.v_permlane32_swap_b32(v(Z), v(Z + 1)); st.v_add_f32(v(Z), v(Z), v(Z + 1))
    st.v_mov_b32(v(Z + 1), v(Z)); st.v_permlane16_swap_b32(v(Z), v(Z + 1)); st.v_add_f32(v(Z), v(Z), v(Z + 1))
    st.v_cvt_pk_bf16_f32(v(Z), v(Z), v(Z))
    st.ds_write_b16(aB, v(Z), mods="offset:512")
    st.v_cvt_pk_bf16_f32(v(GA), v(GA), v(GA + 1)); st.v_cvt_pk_bf16_f32(v(GA + 1), v(GA + 2), v(GA + 3))
    st.ds_write_b64(aA, v(GA, 2))
    if G.TAG == "f":
        OK = newlab("xok"); L = newlab("xpoll"); D = newlab("xdec")
        st.s_cmp_lg_u32(sPAIR, 0)
        st.mark("save", OK)
        st.s_cbranch_scc1(OK)
        st.s_add_u32(sT0, sNONCE, 14); st.s_add_u32(sT1, sT0, sXC)
        st.v_cmp_ne_u32("vcc", sT1, XT)
        if not OPT.get("slow"): st.s_cbranch_vccz(OK)
        st.label(L)
        st.buffer_load_dword(XT, vFL, WS, sT2, mods="offen sc1")
        st.wait(vm=0)
        st.v_subrev_u32(vT, sT0, XT)
        st.v_cmp_le_u32("vcc", 16, vT)
        st.s_cbranch_vccz(D)
        st.s_sub_u32(sCNT, sCNT, 1)
        st.s_cbranch_scc0(L)
        st.s_mov_b32(sCNT, 0)
        st.label(D)
        st.v_cmp_ne_u32("vcc", sT1, XT)
        st.mark("save", "toslow")
        if OPT.get("slow"): st.s_branch(".Lg_s")
        else: st.s_cbranch_vccnz(".Lg_s")
        st.mark("merge", OK)
        st.label(OK)
    else:
        st.mark("merge", "toslow")
        st.label(".Lg_s")
    barrier(st, "g", drain=True)
    stamp(st, "gather+B")

def p1c(st):
    PHQ = [aK, aK + 4, aV, aV + 4]
    KA, ZA, NUM, DEN = XF, XF + 16, 48, v(64)
    for u in range(4): st.ds_read_b128(v(KA + 4 * u, 4), aR1, mods=f"offset:{576*u}")
    for u in range(4): st.ds_read_b128(v(ZA + 4 * u, 4), aR2, mods=f"offset:{576*u}")
    st.v_mov_b32(DEN, f2u(1e-6)); st.v_mov_b32(v(65), 0)
    st.v_lshrrev_b32(vU, 5, vL); st.v_lshl_add_u32(aA, vU, 9, vL16)
    for u in range(4):
        st.v_mfma_f32_32x32x16_bf16(v(NUM, 16), v(KA + 4 * u, 4), v(PHQ[u], 4), "0" if u == 0 else v(NUM, 16))
        for i in range(4):
            dd = DEN if i % 2 == 0 else v(65)
            st.v_dot2_f32_bf16(dd, v(PHQ[u] + i), v(ZA + 4 * u + i), dd)
    st.v_add_f32(DEN, DEN, v(65))
    st.v_rcp_f32(DEN, DEN)
    for i in range(0, 16, 2): pk(st, "mul", NUM + i, bc(DEN), NUM + i)
    for i in range(8): st.v_cvt_pk_bf16_f32(v(NUM + i), v(NUM + 2 * i), v(NUM + 2 * i + 1))
    st.buffer_store_dwordx4(v(NUM, 4), aA, WS, sOST, mods=f"offen {G.SC}")
    st.buffer_store_dwordx4(v(NUM + 4, 4), aA, WS, sOST, mods=f"offen offset:512 {G.SC}", tset="o")
    ring_next(st, "trn")
    res_init(st, 16)
    st.s_lshl_b32(sT0, sM, 12); st.s_add_u32(sT0, sT0, L_PH); st.v_add_u32(aXW, sT0, vL16)
    st.buffer_store_dword(vNON, "off", WS, sFJ, mods=f"offset:128 {G.SC}", tneed="o")
    for r in (sKVST, sKVLD, sKZ, sGZ): st.s_add_u32(r, r, KV_P)
    st.s_add_u32(sFKVST, sFKVST, 256 * 128); st.s_add_u32(sFKVLD, sFKVLD, 256 * 128)

def small_items(nsteps, breg, accs=(16, 32)):
    items = []
    for k in range(nsteps):
        for t in ((1, 0) if k == nsteps - 1 else (0, 1)):
            items.append(dict(chunk=k // 8, off=(k % 8) * 4096, t=t, acc=accs[t], b=breg(k), first=k == 0 and t == 1))
    return items
def res_init(st, a):
    for i in range(8):
        st.v_lshlrev_b32(v(a + 2 * i), 16, v(RES + i)); st.v_and_b32(v(a + 2 * i + 1), 0xffff0000, v(RES + i))

def xepi(st, last):
    aB_, T, P = (96, 48, 16) if last else (32, 16, 48)
    aX = aXW
    for i in range(4): st.ds_write_b128(aX, v(aB_ + 4 * i, 4), mods=f"offset:{1024*i}")
    st.v_xor_b32(aX, 4096, aX)
    barrier(st, "X4" if last else "X2", drain=True)
    for i in range(4): st.ds_read_b128(v(P + 4 * i, 4), aX, mods=f"offset:{1024*i}")
    st.v_and_b32(aX, 31, vL); st.v_lshlrev_b32(aX, 4, aX); st.v_lshrrev_b32(vT, 5, vL); st.v_lshl_add_u32(aX, vT, 2, aX)
    for i in range(4):
        for k in (4 * i, 4 * i + 2): pk(st, "add", T + k, T + k, P + k)
        for k in (2 * i, 2 * i + 1): st.v_cvt_pk_bf16_f32(v(RES + k), v(T + 2 * k), v(T + 2 * k + 1))
    LF = newlab("fin")
    if last:
        st.mark("save", LF)
        st.s_cmp_eq_u32(sPAIR, 1); st.s_cbranch_scc1(LF)
    st.buffer_store_dwordx4(v(RES, 4), vL16, WS, sXST, mods=f"offen {G.SC}")
    st.buffer_store_dwordx4(v(RES + 4, 4), vL16, WS, sXST, mods=f"offen offset:1024 {G.SC}")
    S, Q, S2, Q2 = v(T), v(T + 1), v(T + 2), v(T + 3)
    st.v_dot2_f32_bf16(S, v(RES), sONE, 0); st.v_dot2_f32_bf16(Q, v(RES), v(RES), 0)
    st.v_dot2_f32_bf16(S2, v(RES + 1), sONE, 0); st.v_dot2_f32_bf16(Q2, v(RES + 1), v(RES + 1), 0)
    for i in range(2, 8, 2):
        st.v_dot2_f32_bf16(S, v(RES + i), sONE, S); st.v_dot2_f32_bf16(Q, v(RES + i), v(RES + i), Q)
        st.v_dot2_f32_bf16(S2, v(RES + i + 1), sONE, S2); st.v_dot2_f32_bf16(Q2, v(RES + i + 1), v(RES + i + 1), Q2)
    pk(st, "add", T, T, T + 2)
    st.v_permlane32_swap_b32(S, Q); st.v_add_f32(S, S, Q)
    st.buffer_store_dword(S, aX, WS, sSTST, mods=f"offen {G.SC}", tset="x")
    (p1a_pre if last else p3_pre)(st)
    st.buffer_store_dword(vNON, "off", WS, sFXST, mods=G.SC, tneed="x")
    if last:
        st.s_mov_b32(sPAIR, 1)
        st.s_branch(f".Lpair_{G.TAG}")
        st.label(LF); st.mark("restore", LF)
        st.v_and_b32(aX, 31, vL); st.v_lshlrev_b32(aX, 10, aX); st.v_lshrrev_b32(vT, 5, vL); st.v_lshl_add_u32(aX, vT, 4, aX)
        om = os_("om", "").replace("+", " ")
        st.buffer_store_dwordx4(v(RES, 4), aX, OUT, sOUTO, mods="offen " + om)
        st.buffer_store_dwordx4(v(RES + 4, 4), aX, OUT, sOUTO, mods="offen offset:32 " + om)

def p2(st):
    stamp(st, "o stored")
    poll(st, vFL, sFB, 128)
    stamp(st, "FOpoll")
    L = frag_loads(sHLD, [XF + 4 * k for k in range(16)], 2048, 2)
    gemm(st, small_items(16, lambda k: XF + 4 * k), "trn", 48, 6, 5, ready=[0, 1], loads=L, pre=oi("pre2", 10), hooks={1: nxt})
    stamp(st, "P2gemm")
    xepi(st, False)

def stream(st, items, af, nslots, depth, hooks, fill, budget, watch=None):
    n = len(items); nr = 0
    def pump(upto):
        nonlocal nr
        while nr < n and nr <= upto:
            items[nr]["rd"](st, af + 4 * (nr % nslots)); nr += 1
    pump(depth - 1)
    for i in range(n):
        it = items[i]
        acc = v(it["acc"], 16)
        st.v_mfma_f32_32x32x16_bf16(acc, v(af + 4 * (i % nslots), 4), v(it["b"], 4), "0" if it["first"] else acc)
        n0 = len(st.l)
        for h in hooks.get(i, []): h(st)
        pump(i + depth)
        fill.take(st, budget(i))
        if watch: watch(i, st.l[n0:])
    assert not fill.q

C1 = -2.0 * math.sqrt(2.0 / math.pi) * LOG2E
def p34(st):
    A = [16, 32, 48, 96]; AF = 64; NMP = 88; DEPTH = 5
    K1, K3, VE3, NM3 = v(92), v(93), v(94), v(95)
    at = oi("st3", 20)
    L = x_loads(st, STT, at)
    stamp(st, "x stored")
    poll(st, vFL, sFA)
    stamp(st, "FXpoll2")
    pre = oi("pre3", 10)
    for f in L[:pre]: f(st)
    nxt(st)
    barrier(st, "30")
    stamp(st, "B(30)")
    items = []; hooks = {}
    def hk(i, f): hooks.setdefault(i, []).append(f)
    def wide(a, off, step=0):
        def rd(st, r):
            if step:
                st.s_add_u32(sRING, sRING, 0x8000 * step); st.s_and_b32(sRING, sRING, 0x1ffff); st.v_add_u32(vA0, sRING, vL16)
            st.ds_read_b128(v(r, 4), a, mods=f"offset:{off}")
        return rd
    def mean(r):
        return dict(rd=lambda st, q: st.ds_read_b32(v(q), aCS3, mods=f"offset:{128*r}"), acc=A[r % 4], b=NMP, first=False)
    n2 = oi("n2", 10); k2 = 0; end = {}; use = {}
    def t2(k): return dict(rd=wide(vA1, k * 1024), acc=A[2], b=XF + 4 * k, first=k == 0)
    for k in range(32):
        use[k] = len(items)
        for t in range(2):
            items.append(dict(rd=wide(vA0, t * 16384 + (k % 16) * 1024, int(k == 16 and t == 0)), acc=A[t], b=XF + 4 * k, first=k == 0))
        if k == 15: g5 = len(items) - 1
        if (k + 1) * n2 // 32 > k2: items.append(t2(k2)); k2 += 1
    items += [mean(0), mean(1)]; end[0] = len(items) - 2; end[1] = len(items) - 1
    items += [t2(k) for k in range(k2, 32)] + [mean(2)]; end[2] = len(items) - 1
    for r in range(3, 6):
        items += [dict(rd=wide(vA0, k * 1024, (2 if r == 3 else 1) if k == 0 else 0), acc=A[r % 4], b=XF + 4 * k, first=k == 0) for k in range(32)]
        items.append(mean(r)); end[r] = len(items) - 1
    T5 = end[4] + 1; P4 = len(items)
    HI = [16 + 4 * i for i in range(4)] + [116, 88] + [XF + 4 * i for i in range(2)] + [32 + 4 * i for i in range(3)]
    breg = lambda k: XF + 4 * k if k < 32 else HI[k - 32]
    for n, it in enumerate(small_items(43, breg, (48, 96))):
        def rd(st, r, it=it, n=n):
            if n % 16 == 0: ring_next(st, "trn")
            a = vA1 if it["t"] else vA0
            st.ds_read_b64_tr_b16(v(r, 2), a, mods=f"offset:{it['off']}")
            st.ds_read_b64_tr_b16(v(r + 2, 2), a, mods=f"offset:{it['off']+512}")
        items.append(dict(rd=rd, acc=it["acc"], b=it["b"], first=it["first"]))
    for n, f in enumerate(L[pre:]): hk(2 * n + 1, f)
    fill = Filler()
    f = Stream()
    stats(f, STT, NM3, K1, VE3)
    f.v_and_b32(vU, 0xffff0000, NM3); f.v_sub_f32(NM3, NM3, vU); f.v_cndmask_b32(vU, vU, NM3, sHALF)
    f.v_cvt_pk_bf16_f32(v(NMP), vU, vU)
    f.v_mul_f32(K3, K1, K1); f.v_mul_f32(K1, f2u(C1), K1); f.v_mul_f32(K3, f2u(0.044715), K3); f.v_mul_f32(K3, K3, K1)
    z = Stream()
    for i in range(1, 4): z.v_mov_b32(v(NMP + i), 0)
    z.v_min_u32(aP4, 20, vFL)
    hk(2, lambda st: fill.add(z))
    hk(use[min(31, at + oi("sth3", 2))], lambda st: fill.add(f))
    hk(end[0] - 2, lambda st: fill.flush(st))
    TM = 112
    def epi(r):
        f = Stream(); a = A[r % 4]
        g = lambda i: v(a + i)
        u = lambda i: v(a + 8 + i)
        tm = lambda i: v(TM + i % 4)
        for t in range(16):
            ok = lambda d: 0 <= t - d < 8
            if ok(3): f.v_exp_f32(g(t - 3), g(t - 3))
            if ok(0): f.v_mul_f32(tm(t), g(t), g(t))
            if ok(1): f.v_fma_f32(tm(t - 1), tm(t - 1), K3, K1)
            if ok(0): f.v_mul_f32(u(t), g(t), u(t))
            if ok(5): f.v_rcp_f32(g(t - 5), g(t - 5))
            if ok(2): f.v_mul_f32(g(t - 2), tm(t - 2), g(t - 2))
            if ok(4): f.v_fma_f32(g(t - 4), g(t - 4), VE3, VE3)
            if ok(6): f.v_mul_f32(g(t - 6), g(t - 6), u(t - 6))
            if ok(7) and t % 2 == 0: f.v_cvt_pk_bf16_f32(u((t - 8) // 2), g(t - 8), g(t - 7))
            if t == 12 and r < 5: f.s_add_u32(sHS, sHST, 16384 * r)
        f.buffer_store_dwordx4(v(a + 8, 4), vL16, WS, sHS if r < 5 else sH5, mods=f"offen {G.SC} {os_('hm', '') if r < oi('hmr', 6) else ''}", tset=f"h{r}")
        return f
    def flag(r):
        f = Stream()
        f.buffer_store_dword(vNON, "off", WS, sFJ if r < 5 else sF5, mods=f"offset:{256+64*r} {G.SC}", tneed=f"h{r}")
        return f
    e = [epi(r) for r in range(6)]
    ri = Stream(); res_init(ri, 48)
    lag = oi("lag", 4)
    for r in range(6):
        parts = [e[r]] + ([ri] if r == 3 else [])
        hk(end[max(r, 1)] + lag, lambda st, parts=parts: [fill.add(p) for p in parts])
        hk(end[r], lambda st, r=r: stamp(st, f"t{r}"))
    hk(end[3], lambda st: fill.drain_until(st, e[0])); hk(end[4], lambda st: fill.drain_until(st, e[1]))
    hk(end[5] - 1, lambda st: fill.drain_until(st, ri))
    fd = [int(x) for x in os_("fd", "38,20,20,18,16,12").split(",")]; fpos = {}
    def watch(i, l):
        for r in range(6):
            if any(("t", f"h{r}") in x.dst for x in l): fpos[r] = i + fd[r]; hk(i + fd[r], lambda st, r=r: (stamp(st, f"f{r}a"), st.extend(flag(r)), stamp(st, f"f{r}b")))
    b3, b4 = oi("bud3", 16), oi("bud4", 16)
    def bud(i):
        b = oi("bud0", 12) if i < end[1] else b3 if i < P4 - DEPTH else b4
        if b % 4: b += 2 if i % 2 else -2
        return b - (4 if i in hooks and oi("budh", 1) else 0)
    o = oi("b4", 10)
    for i, name in ((g5 + oi("c1d", 4), "3a"), (end[1], "3b"), (end[2], "3c"), (end[3], "3d"), (end[4], "3f"), (end[5], "3g"),
                    (P4 + o, "4a"), (P4 + 16 + o, "4b"), (P4 + 32 + o, "4c"), (P4 + 48 + o, "4d"), (P4 + 64 + o, "4e")):
        hk(i, lambda st, name=name: (stamp(st, f"{name}a"), barrier(st, name), stamp(st, f"{name}b")))
    for i in (16, 32, 48, 64): hk(P4 + i, lambda st, i=i: stamp(st, f"q{i}"))
    HL = frag_loads(sHLD, [breg(k) for k in range(43)], 2048, 2)
    if OPT.get("noH"): HL = [lambda st: None] * 43
    ne = oi("early4", 12)
    ck = [T5 + oi("chkA", 10), P4 + oi("chk2", 0), P4 + oi("chk3", 16), P4 + oi("chk4", 42), P4 + oi("chk5", 65)]
    sl = oi("sl", 12); ev = float(OPT.get("ev4", 2)); pos = []
    for k in range(43):
        g = max(0, k // 8 - 1)
        p = ck[0] + 1 + k * float(OPT.get("ev3", 2)) if k < ne else pos[-1] + ev
        pos.append(max(p, ck[g]) if k < 40 else ck[4])
    pos = [int(p) for p in pos]
    hk(ck[0] - sl - 1, lambda st: (st.v_and_b32(vV, 31, vL), st.v_lshlrev_b32(vV, 2, vV)))
    for g, (addr, off) in enumerate(((vV, 256), (vFL, 384), (vFL, 448), (vFL, 512), (aP4, 576))):
        assert g == 0 or ck[g] - sl > ck[g - 1]
        if OPT.get("nochk"): continue
        hk(ck[g] - sl, lambda st, addr=addr, off=off: st.buffer_load_dword(vS4, addr, WS, sFB, mods=f"offen offset:{off} sc1"))
        hk(ck[g], lambda st, addr=addr, off=off, g=g: (stamp(st, f"k{g}a"), soft_check(st, vS4, addr, sFB, off), stamp(st, f"k{g}b")))
    def last(st):
        assert 5 in fpos and fpos[5] < ck[4]
        nxt(st)
    hk(ck[4], last)
    for k in range(43):
        assert pos[k] < P4 + 2 * k and (k >= 32 or pos[k] >= T5 + k), (k, pos[k])
        hk(pos[k], HL[k])
    hk(pos[32] - 1, lambda st: fill.drain_until(st, e[4]))
    stream(st, items, AF, 6, DEPTH, hooks, fill, bud, watch)
    if G.TAG == "f": print("T3", end[2] + 1, "T4", end[3] + 1, "T5", T5, "P4", P4, "flags", fpos, "checks", ck, "loads", pos, file=sys.stderr)
    stamp(st, "P4gemm")
    xepi(st, True)

def body(st, first):
    stop = OPT["stop"]
    T = G.TAG
    st.label(f".Lpair_{T}"); st.mark("reset")
    G.SEQ = SEQA; p1a(st)
    G.SEQ = SEQC
    if first:
        st.mark("merge", "from0"); st.label(".Lk_f")
    p1b(st); p1c(st)
    if stop == "p1": st.s_branch(".Lend"); return
    p2(st)
    if stop == "p2": st.s_branch(".Lend"); return
    p34(st)
    stamp(st, "end")
    stamp(st, 63, True)
    if OPT.get("dbg") == "2":
        if OPT.get("wb"):
            st.wait(vm=0); st.raw("    buffer_wbl2 sc0 sc1"); st.raw("    s_waitcnt vmcnt(0)")
        L = newlab("pad")
        st.s_mov_b32(s(87), 7000)
        if OPT.get("early"): st.s_cmp_lt_u32(s(2), int(OPT["early"])); st.s_cselect_b32(s(87), 6000, s(87))
        if OPT.get("cap"):
            if OPT.get("capr"): st.s_sub_u32(s(43), s(43), s(42))
            else: st.s_sub_u32(s(43), s(43), s(86)); st.s_lshr_b32(s(43), s(43), 2)
            st.s_min_u32(s(43), s(43), 40000); st.s_add_u32(s(87), s(87), s(43))
        st.label(L)
        st.s_memrealtime(s(100, 2)); st.wait(lgkm=0); st.s_sub_u32(s(100), s(100), s(42)); st.s_cmp_lt_u32(s(100), s(87)); st.s_cbranch_scc1(L)
    elif OPT.get("dbg"):
        st.s_load_dwordx2(s(44, 2), s(0, 2), 72); st.s_memrealtime(s(100, 2)); st.wait(lgkm=0)
        st.s_and_b32(s(45), s(45), 0xffff); st.s_mov_b32(s(46), 256); st.s_mov_b32(s(47), 0x20000)
        st.s_not_b32(s(42), s(42)); st.v_mov_b32(vT, s(42)); st.v_mov_b32(vU, s(100)); st.s_not_b32(s(100), s(100)); st.v_mov_b32(vV, s(100))
        st.raw("    buffer_atomic_umax v13, off, s[44:47], 0")
        st.raw("    buffer_atomic_umax v14, off, s[44:47], 0 offset:4")
        st.raw("    buffer_atomic_umax v15, off, s[44:47], 0 offset:8")
        st.s_not_b32(s(42), s(42)); st.v_mov_b32(vT, s(42))
        st.raw("    s_nop 4")
        st.raw("    buffer_atomic_umax v13, off, s[44:47], 0 offset:12")
    st.s_or_b32(sT0, s(2), sW); st.s_cmp_lg_u32(sT0, 0); st.s_cbranch_scc1(".Lend")
    st.v_add_u32(vNON, 22, vNON)
    st.buffer_store_dword(vNON, "off", WS, 0, mods=f"offset:{EPOCH} sc1")
    st.s_branch(".Lend")

SEQ0, SEQA, SEQC = [], [], []
def compute(st):
    G.SEQ = SEQ0
    p1a0(st)
    st.mark("save", "from0")
    st.s_branch(".Lk_f")
    G.SC, G.TAG = "", "f"
    body(st, True)

def compute_slow(st):
    G.SC, G.TAG, G.REC = "sc1", "s", False
    body(st, False)

sW8, sQK, sWOb, sGU, sWD5, sWI = s(74), s(75), s(76), s(77), s(78), s(79)
sWDb = [s(80 + i) for i in range(4)]
GU = 64
vKV, vQ, vW, vWR0, vWR1 = v(2), v(4), v(5), v(6), v(7)
vGG = [v(8), v(9), v(10)]; vGL = [v(16), v(17), v(18)]; vGT = v(19)
vC0, vC1, vCW, vCR = v(20), v(21), v(22), v(23)
SEL = 24; CACC = 28
FRS = [36, 40, 44, 48, 52]; WRAW = 56
vDUM = [v(11), v(60), v(61), v(62)]
GSTR = 448

def LDSW(st):
    for i in reversed(st.l):
        if i.name == "s_barrier" or (i.name == "s_waitcnt" and "lgkmcnt(0)" in i.ops[0]): return False
        if i.kind == "ds": return True
    return False

def POL(srd):
    k = {WQ: "pq", WO_: "po", WD: "pd", WG: "pg", WU: "pg"}.get(srd)
    x = os_(k, "") if k else ""
    return " " + x.replace("+", " ") if x else ""

def loader(st):
    st.v_lshrrev_b32(vT, 3, vL); st.v_bfe_u32(vU, vL, 4, 1); st.v_lshlrev_b32(vU, 2, vU); st.v_and_b32(vV, 7, vL); st.v_xor_b32(vU, vU, vV)
    st.v_mul_u32_u24(vKV, 3072, vT); st.v_and_b32(vV, 3, vU); st.v_lshl_add_u32(vKV, vV, 4, vKV)
    st.v_lshrrev_b32(vV, 2, vU); st.v_mul_u32_u24(vQ, 256 * 3072, vV); st.v_add_u32(vQ, vQ, vKV)
    st.v_lshl_add_u32(vKV, vV, 10, vKV); st.v_add_u32(vKV, 1024, vKV)
    st.v_lshlrev_b32(vW, 10, vT); st.v_lshl_add_u32(vW, vU, 4, vW)
    st.s_lshl_b32(sW8, sM, 13)
    st.s_mul_i32(sQK, sM, 64 * 3072); st.s_lshl_b32(sT0, sJ, 6); st.s_add_u32(sQK, sQK, sT0)
    sKVr = [s(84), s(85)]; sQJ = s(88); vQ0 = v(GU)
    rot(st, s(89), sT1); st.s_add_u32(s(89), s(89), sM)
    st.s_lshl_b32(sQJ, sJ, 6)
    st.s_and_b32(sT1, s(89), 7); st.s_mul_i32(sKVr[0], sT1, 64 * 3072); st.s_add_u32(sKVr[0], sKVr[0], sQJ)
    st.s_and_b32(sWI, sC, 1); st.s_lshl_b32(sWI, sWI, 4); st.s_add_u32(sWI, sWI, sJ); st.s_lshl_b32(sWI, sWI, 2); st.s_add_u32(sWI, sWI, sM)
    if not oi("fast0", 1) or os_("e0", "Tkv,c0,non,wld"):
        st.wait(lgkm=0)
        srds(st, [WQ])
    chunks = []
    for pair in range(2):
        chunks += [("kv", 0), ("kv", 1), ("q", 0), ("wo", 0), ("wo", 1), ("gp", 0), ("gp", 1)] + [("gs", r) for r in range(2, 6)]
        chunks += [("wd", r) for r in range(6)]
    N = len(chunks)
    issued = set()
    SQ = []
    def spf(n):
        for _ in range(min(n, len(SQ))): SQ.pop(0)()
    def squeue(kind):
        if kind == "k":
            for i in range(64):
                def f(i=i):
                    if i == 0:
                        st.s_lshr_b32(s(90), sWI, 4); st.s_mul_i32(s(90), s(90), 3072); st.s_and_b32(s(91), sWI, 15); st.s_lshl_b32(s(91), s(91), 7)
                        st.s_add_u32(s(91), s(91), s(90)); st.s_add_u32(s(44), s(46), s(91)); st.s_addc_u32(s(45), s(47), 0)
                    if i == 32: st.s_add_u32(s(44), s(44), 32 * 24576); st.s_addc_u32(s(45), s(45), 0)
                    x = Ins("s_load_dwordx2", [s(86, 2), s(44, 2), hex(i % 32 * 24576 + 1024 + 60)]); x.dst = set(); st.l.append(x)
                SQ.append(f)
            return
        base, cnt = dict(w=(46, 96), o=(50, 32), d=(58, 86), g=(54, 86), u=(56, 86))[kind[0]]
        if len(kind) > 1: cnt = int(kind[1:])
        for i in range(cnt):
            def f(i=i):
                if i == 0:
                    st.s_lshl_b32(s(91), sWI, 7); st.s_add_u32(s(44), s(base), s(91)); st.s_addc_u32(s(45), s(base + 1), 0)
                if i == 48: st.s_add_u32(s(44), s(44), 48 * 16384); st.s_addc_u32(s(45), s(45), 0)
                x = Ins("s_load_dwordx2", [s(86, 2), s(44, 2), hex(i % 48 * 16384 + 60)]); x.dst = set(); st.l.append(x)
            SQ.append(f)
    def dma(n, addr, srd, offs):
        slot = (n % 4) * 32768
        for i, (base, off, lds) in enumerate(offs):
            st.s_add_u32("m0", lds[0], slot + lds[1])
            st.s_add_u32(sT0, base, off)
            st.buffer_load_dwordx4(addr, srd, sT0, mods="offen" + POL(srd) + " lds", tset=f"c{n}" if i == len(offs) - 1 else None)
    def issue(n):
        if n >= N: return
        assert n not in issued; issued.add(n)
        kind, a = chunks[n]
        if kind == "kv" and n < 17:
            if a == 1: st.s_xor_b32(sT1, s(89), 4); st.s_and_b32(sT1, sT1, 7); st.s_mul_i32(sKVr[1], sT1, 64 * 3072); st.s_add_u32(sKVr[1], sKVr[1], sQJ)
            dma(n, vKV, WQ, [(sKVr[a], 8 * i * 3072, (sW8, 1024 * i)) for i in range(8)])
        elif kind == "q" and n < 17:
            st.v_add_u32(vT, sKVr[0], vQ); st.v_subrev_u32(vU, 512 * 3072, vT); st.v_min_u32(vQ0, vT, vU)
            dma(n, vQ0, WQ, [("0", 8 * i * 3072, (sW8, 1024 * i)) for i in range(8)])
        elif kind == "kv": dma(n, vKV, WQ, [(sQK, (256 * a + 8 * i) * 3072, (sW8, 1024 * i)) for i in range(8)])
        elif kind == "q": dma(n, vQ, WQ, [(sQK, 8 * i * 3072, (sW8, 1024 * i)) for i in range(8)])
        elif kind == "wo": dma(n, vW, WO_, [(sWOb, (256 * a + 8 * i) * 1024, (sW8, 1024 * i)) for i in range(8)])
        elif kind == "wd" and a < 5: dma(n, vW, WD, [(sWDb[i // 2], (16 * a + 8 * (i % 2)) * 1024, (sW8, 1024 * i)) for i in range(8)])
        elif kind == "wd":
            slot = (n % 4) * 32768
            for e in range(3):
                st.s_mul_i32(sT1, sM, 3); st.s_add_u32(sT1, sT1, e)
                st.s_lshr_b32(sT0, sT1, 1); st.s_mul_i32(sT0, sT0, 96 * 1024); st.s_and_b32(sT2, sT1, 1); st.s_lshl_b32(sT2, sT2, 13)
                st.s_add_u32(sT0, sT0, sT2); st.s_add_u32(sT0, sT0, sWD5)
                st.s_lshl_b32(sT1, sT1, 10); st.s_add_u32("m0", sT1, slot)
                st.buffer_load_dwordx4(vW, WD, sT0, mods="offen" + POL(WD) + " lds", tset=f"c{n}" if e == 2 else None)
        else:
            slot = n % 4; wr = vWR1 if slot >= 2 else vWR0; so = (slot & 1) * 32768
            for t in range(2):
                for k in range(4):
                    g, fr = (4 * a + k, t) if kind == "gp" else (4 * t + k, a)
                    st.ds_write_b128(wr, v(GU + 24 * g + 4 * fr, 4), mods=f"offset:{so + t*16384 + k*1024}", tset=f"c{n}" if (t, k) == (1, 3) else None)
    FREE = [GU + 24 * g + 4 * fr for h in (0, 2) for g in range(8) for fr in (h, h + 1)]
    def stg(n):
        a = chunks[n][1]
        if n < 17:
            assert a == 5; return [48, 52, 56]
        o = {3: 0, 4: 8, 2: 16, 5: 24}[a]
        return FREE[o:o + 8]
    def stage(n):
        kind, a = chunks[n]; assert kind == "wd"
        r = stg(n)
        if a < 5:
            for i in range(8):
                st.s_add_u32(sT0, sWDb[i // 2], (16 * a + 8 * (i % 2)) * 1024)
                st.buffer_load_dwordx4(v(r[i], 4), vW, WD, sT0, mods="offen")
        else:
            for e in range(3):
                st.s_mul_i32(sT1, sM, 3); st.s_add_u32(sT1, sT1, e)
                st.s_lshr_b32(sT0, sT1, 1); st.s_mul_i32(sT0, sT0, 96 * 1024); st.s_and_b32(sT2, sT1, 1); st.s_lshl_b32(sT2, sT2, 13)
                st.s_add_u32(sT0, sT0, sT2); st.s_add_u32(sT0, sT0, sWD5)
                st.buffer_load_dwordx4(v(r[e], 4), vW, WD, sT0, mods="offen")
    def unstage(n):
        kind, a = chunks[n]; r = stg(n); slot = (n % 4) * 32768
        assert n not in issued; issued.add(n)
        if a < 5: st.s_add_u32(sT0, sW8, slot)
        else: st.s_mul_i32(sT0, sM, 3072); st.s_add_u32(sT0, sT0, slot)
        st.v_add_u32(vT, sT0, vL16)
        for i in range(8 if a < 5 else 3): st.ds_write_b128(vT, v(r[i], 4), mods=f"offset:{1024*i}")
    def prologue():
        F0 = oi("fast0", 1)
        if F0:
            if os_("e0", "Tkv,c0,non,wld"):
                srds(st, [WS, WP, WO_, WG, WU, WD, OUT])
                run(os_("e0", "Tkv,c0,non,wld").split(","), 0)
        else:
            issue(0)
            if oi("kv1first", 1): issue(1)
        if not oi("cfirst", 1):
            st.mark("save", "ld1"); st.s_branch(".Lloader")
            st.label(".Lcomp"); st.mark("reset")
            compute(st)
            st.label(".Lloader"); st.mark("restore", "ld1")
        if not F0 and not oi("kv1first", 1): issue(1)
        def late():
            if not (F0 and os_("e0", "Tkv,c0,non,wld")):
                st.wait(lgkm=0)
                srds(st, [WQ, WS, WP, WO_, WG, WU, WD])
            stamp_base(st)
            stamp(st, "start", who="l", pair=0)
        if not F0 or os_("e0", "Tkv,c0,non,wld"): late()
        st.s_lshl_b32(sWOb, sM, 16); st.s_lshl_b32(sT0, sCG, 7); st.s_add_u32(sWOb, sWOb, sT0)
        for e in range(4):
            st.s_lshl_b32(sT1, sM, 2); st.s_add_u32(sT1, sT1, e)
            st.s_mul_i32(sT2, sT1, 6); st.s_mul_i32(sT3, sT1, 5); st.s_add_u32(sT3, sT3, 6); st.s_min_u32(sT2, sT2, sT3)
            st.s_lshl_b32(sT2, sT2, 14); st.s_add_u32(sWDb[e], sT2, sT0)
        st.s_add_u32(sWD5, sT0, 80 * 1024)
        st.s_mul_i32(sT2, sJ, 6); st.s_mul_i32(sT3, sJ, 5); st.s_add_u32(sT3, sT3, 6); st.s_min_u32(sT2, sT2, sT3)
        st.s_lshl_b32(sT2, sT2, 5); st.s_mul_i32(sGU, sM, 64 * 2752); st.s_add_u32(sGU, sGU, sT2)
        st.s_cmp_eq_u32(sT6, 1); st.s_cselect_b32(sT1, 12, 10)
        st.s_lshl_b32(sT2, sM, 12); st.s_add_u32(sT2, sT2, 32768)
        for i in range(3):
            st.v_add_u32(vT, 64 * i, vL); st.v_mul_u32_u24(vU, 5462, vT); st.v_lshrrev_b32(vU, 16, vU)
            st.v_mul_u32_u24(vV, 12, vU); st.v_sub_u32(vT, vT, vV)
            st.v_mul_u32_u24(vGG[i], 2752, vU); st.v_lshl_add_u32(vGG[i], vT, 4, vGG[i])
            st.v_cmp_gt_u32("vcc", sT1, vT); st.v_mov_b32(vV, 0x80000000); st.v_cndmask_b32(vGG[i], vV, vGG[i], "vcc")
            st.v_and_b32(vV, 7, vU); st.v_mul_u32_u24(vGL[i], GSTR, vV); st.v_lshrrev_b32(vV, 3, vU); st.v_lshl_add_u32(vGL[i], vV, 14, vGL[i])
            st.v_lshrrev_b32(vV, 1, vT); st.v_lshl_add_u32(vGL[i], vV, 6, vGL[i])
            st.v_and_b32(vV, 1, vT); st.v_lshl_add_u32(vGL[i], vV, 4, vGL[i]); st.v_add_u32(vGL[i], sT2, vGL[i])
        lane_tr(st, vGT, None, "nat", stride=GSTR, hstride=16384); st.v_add_u32(vGT, sT2, vGT)
        lane_tr(st, vC0, vC1, "qkv")
        st.s_lshl_b32(sT0, sM, 12); st.v_add_u32(vWR0, sT0, vL16); st.v_add_u32(vWR1, 65536, vWR0)
        st.v_bfe_u32(vT, vL, 4, 1); st.v_and_b32(vU, 1, vL); st.v_cmp_eq_u32("vcc", vT, vU)
        st.v_mov_b32(vV, 0x3f803f80)
        for i in range(4): st.v_cndmask_b32(v(SEL + i), 0, vV, "vcc")
        st.v_lshlrev_b32(vCW, 6, vT); st.v_lshl_add_u32(vCW, vU, 5, vCW); st.v_lshrrev_b32(vT, 5, vL); st.v_lshl_add_u32(vCW, vT, 4, vCW)
        if F0 and not os_("e0", "Tkv,c0,non,wld"): late()
    def publish():
        L = newlab("pub")
        st.v_add_u32(vNON, sXC, vNON); st.v_add_u32(vNON, 16, vNON)
        st.s_lshl_b32(sT0, sC, 7); st.s_lshl_b32(sT1, sJ, 2); st.s_add_u32(sT0, sT0, sT1); st.s_add_u32(sT0, sT0, XCCT)
        st.s_cmp_lg_u32(sM, 0); st.mark("save", L); st.s_cbranch_scc1(L)
        st.buffer_store_dword(vNON, "off", WS, sT0, mods="sc1")
        st.mark("merge", L); st.label(L)
    dn = [0]
    def dum():
        dn[0] += 1
        return vDUM[dn[0] % 4]
    def tload(addr, srd, soff):
        i = Ins("buffer_load_dword", [dum(), addr, srd, str(soff)], "offen" + POL(srd)); i.dst = set(); st.l.append(i)
    def touch(kind):
        if kind == "wd":
            st.s_mul_i32(sT0, sWI, 86 * 128); st.v_lshlrev_b32(vT, 7, vL); tload(vT, WD, sT0)
            st.v_min_u32(vU, 21, vL); st.v_lshlrev_b32(vU, 7, vU); st.s_add_u32(sT0, sT0, 8192); tload(vU, WD, sT0)
        elif kind[:2] == "wd":
            n = int(kind[2:]); c = 86 - n; assert c <= 64
            st.s_mul_i32(sT0, sWI, c * 128); st.s_add_u32(sT0, sT0, n * 16384); st.v_min_u32(vT, c - 1, vL); st.v_lshlrev_b32(vT, 7, vT); tload(vT, WD, sT0)
        elif kind == "out":
            st.s_lshl_b32(sT0, sC, 4); st.s_add_u32(sT0, sT0, sJ); st.s_lshl_b32(sT0, sT0, 2); st.s_add_u32(sT0, sT0, sM); st.s_lshl_b32(sT0, sT0, 11)
            st.v_lshlrev_b32(vT, 5, vFL); tload(vT, OUT, sT0)
        elif kind in ("g", "u"):
            D = WG if kind == "g" else WU
            st.s_mul_i32(sT0, sWI, 86 * 128); st.v_lshlrev_b32(vT, 7, vL); tload(vT, D, sT0)
            st.v_min_u32(vU, 21, vL); st.v_lshlrev_b32(vU, 7, vU); st.s_add_u32(sT0, sT0, 8192); tload(vU, D, sT0)
        elif kind in ("ga", "gb"):
            st.s_mul_i32(sT0, sWI, 43 * 128); st.v_min_u32(vT, 42, vL); st.v_lshlrev_b32(vT, 7, vT)
            if kind == "gb": st.s_add_u32(sT0, sT0, 256 * 2752)
            tload(vT, WG, sT0); tload(vT, WU, sT0)
        elif kind == "kv":
            st.v_lshrrev_b32(vT, 4, vL); st.v_mul_u32_u24(vT, 3072, vT); st.v_lshl_add_u32(vT, vFL, 5, vT)
            st.s_mul_i32(sT0, sWI, 4 * 3072); st.s_add_u32(sT0, sT0, 1024); tload(vT, WQ, sT0)
        elif kind == "q":
            st.v_bfe_u32(vT, vL, 3, 2); st.v_mul_u32_u24(vT, 3072, vT); st.v_and_b32(vU, 7, vL); st.v_lshl_add_u32(vT, vU, 7, vT)
            st.s_mul_i32(sT0, sWI, 4 * 3072); tload(vT, WQ, sT0)
        elif kind == "wo":
            st.v_and_b32(vT, 31, vL); st.v_lshlrev_b32(vT, 7, vT); st.s_lshl_b32(sT0, sWI, 12); tload(vT, WO_, sT0)
        elif kind == "h":
            st.s_lshl_b32(sT0, sC, 4); st.s_add_u32(sT0, sT0, sJ); st.s_lshl_b32(sT0, sT0, 2); st.s_add_u32(sT0, sT0, sM)
            st.s_mul_i32(sT0, sT0, 43 * 128); st.s_add_u32(sT0, sT0, HB)
            st.v_min_u32(vT, 42, vL); st.v_lshlrev_b32(vT, 7, vT); tload(vT, WS, sT0)
        elif kind in ("h0", "h1"):
            n, o = (16, 0) if kind == "h0" else (27, 32768)
            st.s_lshl_b32(sT0, sC, 2); st.s_add_u32(sT0, sT0, sM); st.s_mul_i32(sT0, sT0, HB_TB)
            st.s_mul_i32(sT1, sJ, n * 128); st.s_add_u32(sT0, sT0, sT1); st.s_add_u32(sT0, sT0, HB + o)
            st.v_min_u32(vT, n - 1, vL); st.v_lshlrev_b32(vT, 7, vT); tload(vT, WS, sT0)
        elif kind == "x":
            st.s_lshl_b32(sT0, sC, 4); st.s_add_u32(sT0, sT0, sJ); st.s_lshl_b32(sT0, sT0, 2); st.s_add_u32(sT0, sT0, sM)
            st.s_lshl_b32(sT1, sT0, 11); st.s_add_u32(sT1, sT1, XB)
            st.s_lshl_b32(sT2, sT0, 8); st.s_add_u32(sT2, sT2, ST - 16 * 128)
            st.s_lshl_b32(sT3, sC, 2); st.s_add_u32(sT3, sT3, sM); st.s_lshl_b32(sT3, sT3, 10); st.s_add_u32(sT3, sT3, FL - 18 * 128)
            st.v_mov_b32(vU, sT1); st.v_mov_b32(vV, sT2); st.v_cmp_le_u32("vcc", 16, vL); st.v_cndmask_b32(vU, vU, vV, "vcc")
            st.v_mov_b32(vV, sT3); st.v_cmp_le_u32("vcc", 18, vL); st.v_cndmask_b32(vU, vU, vV, "vcc")
            st.v_min_u32(vT, 22, vL); st.v_lshl_add_u32(vT, vT, 7, vU); tload(vT, WS, 0)
        elif kind == "code":
            st.s_getpc_b64(s(100, 2))
            L = newlab("pc")
            st.label(L)
            st.raw(f"    s_sub_u32 s100, s100, {L}-{NAME}_kernel")
            st.raw("    s_subb_u32 s101, s101, 0")
            st.v_lshlrev_b32(vT, 7, vL); st.s_lshl_b32(sT0, sM, 13); st.v_add_u32(vT, sT0, vT)
            i = Ins("global_load_dword", [dum(), vT, s(100, 2)]); i.dst = set(); st.l.append(i)
            st.v_add_u32(vU, 32768, vT); st.v_min_u32(vU, f".Lslow-{NAME}_kernel", vU)
            i = Ins("global_load_dword", [dum(), vU, s(100, 2)]); i.dst = set(); st.l.append(i)
    gl = []
    for g in range(8):
        k0 = (16 * (g // 4) + (g % 4)) * 16
        for m_, srd in enumerate((WG, WU)):
            for i in range(3):
                def f(g=g, k0=k0, m_=m_, srd=srd, i=i):
                    if i == 0: st.s_add_u32(sLD, sGU, k0 * 2752)
                    st.buffer_load_dwordx4(v(GU + 24 * g + 12 * m_ + 4 * i, 4), vGG[i], srd, sLD, mods="offen" + POL(srd))
                gl.append(f)
    def gu_loads(cnt):
        for _ in range(min(cnt, len(gl))):
            f = gl.pop(0)
            if not OPT.get("noG"): f()
    def colsum(n, steps, first, lo, hi, dst=None):
        L = newlab("cs")
        st.s_sub_u32(sT0, sM, lo); st.s_cmp_ge_u32(sT0, hi - lo); st.mark("save", L); st.s_cbranch_scc1(L)
        nf = len(FRS)
        def rd(k):
            a, off = steps[k]; r = FRS[k % nf]
            st.ds_read_b64_tr_b16(v(r, 2), a, mods=f"offset:{off}"); st.ds_read_b64_tr_b16(v(r + 2, 2), a, mods=f"offset:{off+512}")
        for k in range(nf - 1): rd(k)
        for k in range(len(steps)):
            acc = v(CACC + 4 * (k & 1), 4)
            st.v_mfma_f32_16x16x32_bf16(acc, v(FRS[k % nf], 4), v(SEL, 4), "0" if first and k < 2 else acc)
            if k + nf - 1 < len(steps): rd(k + nf - 1)
        if dst is not None:
            for i in range(4): st.v_add_f32(v(CACC + i), v(CACC + i), v(CACC + 4 + i))
            st.ds_write_b128(dst, v(CACC, 4))
        st.mark("merge", L); st.label(L)
    def transpose(g):
        b = GU + 24 * g
        for m_ in range(2):
            for i in range(3): st.ds_write_b128(vGL[i], v(b + 12 * m_ + 4 * i, 4), mods=f"offset:{32*m_}")
        for t in range(6):
            for u in range(2): st.ds_read_b64_tr_b16(v(b + 4 * t + 2 * u, 2), vGT, mods=f"offset:{u*4*GSTR + t*64}")
    def tsum(g):
        b = GU + 24 * g
        for t in range(6):
            st.v_mfma_f32_16x16x32_bf16(v(CACC + 4 * t, 4), v(b + 4 * t, 4), v(SEL, 4), "0" if g == 0 else v(CACC + 4 * t, 4))
    tr_next = [0]
    def transposes(cnt):
        gs = list(range(tr_next[0], min(8, tr_next[0] + cnt))); tr_next[0] += len(gs)
        for i, g in enumerate(gs):
            transpose(g)
            if i > 0: tsum(gs[i - 1])
        tsum(gs[-1])
    def gu_partial():
        st.s_mul_i32(sT0, sM, 768); st.s_add_u32(sT0, sT0, L_VB); st.v_add_u32(vT, sT0, vCW)
        for i in range(6): st.ds_write_b128(vT, v(CACC + 4 * i, 4), mods=f"offset:{128*i}")
    def gu_reduce():
        st.v_min_u32(vCR, 6 * 128 - 16, vL16)
        st.v_add_u32(vT, L_VB, vCR)
        for w in range(4): st.ds_read_b128(v(CACC + 4 * w, 4), vT, mods=f"offset:{w*768}")
        for i in range(4):
            st.v_add_f32(v(CACC + i), v(CACC + i), v(CACC + 4 + i)); st.v_add_f32(v(CACC + 8 + i), v(CACC + 8 + i), v(CACC + 12 + i))
        for i in range(4): st.v_add_f32(v(CACC + i), v(CACC + i), v(CACC + 8 + i))
        for i in range(4):
            st.v_and_b32(v(CACC + 4 + i), 0xffff0000, v(CACC + i)); st.v_sub_f32(v(CACC + i), v(CACC + i), v(CACC + 4 + i))
            st.v_cvt_pk_bf16_f32(v(CACC + i), v(CACC + 4 + i), v(CACC + i))
        st.v_and_b32(vT, 0x380, vCR); st.v_and_b32(vU, 0x30, vCR); st.v_lshl_add_u32(vT, vU, 1, vT)
        st.v_bfe_u32(vU, vCR, 6, 1); st.v_lshl_add_u32(vT, vU, 4, vT); st.v_add_u32(vT, L_CS + 384, vT)
        st.ds_write_b128(vT, v(CACC, 4))
    def cs_kv(a):
        if a == 0:
            st.s_lshl_b32(sT0, sM, 6); st.v_xor_b32(vCR, sT0, vC0)
        else:
            st.s_lshl_b32(sT0, sM, 7); st.s_add_u32(sT0, sT0, L_CS); st.v_add_u32(vV, sT0, vCW)
        colsum(a, [(vCR, 32768 * a + 2048 * k) for k in range(16)], a == 0, 0, 2, dst=vV if a == 1 else None)
    def cs_q():
        st.v_add_u32(vT, 65536, vC0); st.v_add_u32(vU, 65536, vC1); st.v_add_u32(vV, L_CS + 256, vCW)
        colsum(2, [(a, 2048 * k) for k in range(16) for a in (vT, vU)], True, 2, 3, dst=vV)

    need = {"a0": [0], "a1": [1], "g": [3, 4], "30": [5, 6, 7, 8], "3c": [9], "3d": [10], "3f": [11], "4a": [12], "4b": [13], "4c": [14], "4d": [15], "4e": [16]}
    S0 = os_("s0", "start:c1;a0:c2,csk0;a1:csk1,wst,sigA,pub,G8,sigq,G16,wsig,X2,G12,X2,G12,X2,c3,c4,X2,Th0,Tx;g:part,c5,c6,Qk,S32;X2:c7,c8;")
    S0 += os_("s0b", "30:red,wst;3a:c9,Twd,Th1,nd;3b:c10,nd;3d:c11,c12;3f:c13;3g:c14;4a:S8;4b:c15,S8;4c:c16,S8;4d:S8;4e:c17;X4:c18")
    S1 = os_("s1", "a2:c2,sig,c3,c4;g:c5,c6;X2:c7,c8;")
    S1 += os_("s1b", "3a:c9,Twd,nd;3b:c10,nd;3c:c11;3d:c12;3f:c13;3g:c14;4b:c15;4c:c16")
    def acts(txt):
        d = {}
        for part in txt.split(";"):
            k, _, l = part.partition(":"); d[k] = l.split(",")
        return d
    DR = [False]
    def run(lst, o):
        for a in lst:
            DR[0] = False
            if a == "q": issue(2)
            elif a == "pub": publish()
            elif a == "wld": st.s_lshl_b32(sT0, sJ, 10); st.buffer_load_dwordx4(v(WRAW, 4), vL16, WP, sT0, mods="offen")
            elif a == "wst":
                st.v_bfe_u32(vT, vL, 3, 2); st.v_mul_u32_u24(vT, 576, vT); st.v_lshrrev_b32(vU, 5, vL); st.v_lshl_add_u32(vT, vU, 7, vT)
                st.v_and_b32(vU, 112, vL16); st.v_add_u32(vT, vT, vU); st.v_add_u32(vT, L_KVB, vT)
                st.ds_write_b128(vT, v(WRAW, 4))
            elif a == "non": st.buffer_load_dword(vNON, "off", WS, 0, mods=f"offset:{EPOCH} sc1")
            elif a == "sig":
                st.l.append(Ins("s_nop", ["0"], tneed=f"c{o+2}")); signal(st, 1 + o // 17)
            elif a == "sigA": signal(st, 1, 16)
            elif a == "sigq":
                L = newlab("sq")
                st.l.append(Ins("s_nop", ["0"], tneed=f"c{o+2}")); signal(st, 1, 32)
                st.s_cmp_lg_u32(sM, 2); st.mark("save", L); st.s_cbranch_scc1(L)
                st.v_mov_b32(vU, 1); sigwait(st, 12, 48, regs=(13, 14, 15))
                st.mark("merge", L); st.label(L)
                cs_q(); signal(st, 1)
            elif a == "wsig": st.v_mov_b32(vU, 2); sigwait(st, 12, 32, regs=(13, 14, 15))
            elif a.startswith("csk"): cs_kv(int(a[3]))
            elif a == "csq": cs_q()
            elif a == "part": gu_partial()
            elif a == "red": gu_reduce()
            elif a[0] == "P": st.s_setprio(int(a[1:]))
            elif a == "nd": DR[0] = True
            elif a[:2] == "WB":
                L = newlab("wb")
                if a == "WB": st.s_or_b32(sT0, sJ, sM)
                else: st.s_mov_b32(sT0, sM)
                st.s_cmp_lg_u32(sT0, 0); st.mark("save", L); st.s_cbranch_scc1(L)
                st.raw("    buffer_wbl2 " + os_("wbm", "sc1").replace("+", " "))
                st.mark("merge", L); st.label(L)
            elif a == "wv": st.wait(vm=0)
            elif a[0] == "Q": squeue(a[1:])
            elif a[0] == "S":
                if LDSW(st): st.wait(lgkm=0)
                DR[0] = True; spf(int(a[1:]))
            elif a[0] == "c": issue(o + int(a[1:]))
            elif a[0] == "r" and a[1:].isdigit(): stage(o + int(a[1:]))
            elif a[0] == "u" and a[1:].isdigit(): unstage(o + int(a[1:]))
            elif a[0] == "@": stamp(st, a, who="l", pair=o // 17)
            elif a[0] == "G": gu_loads(int(a[1:]))
            elif a[0] == "X": transposes(int(a[1:]))
            elif a[0] == "T": touch(a[1:])
            else: raise ValueError(a)
    prologue()
    for pair in range(1 if OPT['stop'] else 2):
        o = 17 * pair; A = acts(S0 if pair == 0 else S1)
        run(A.get("start", []), o)
        for b in (SEQ0 if pair == 0 else SEQA) + SEQC:
            tk = []
            for n in need.get(b, []):
                assert o + n in issued, (pair, b, n)
                tk.append(f"c{o+n}")
            stamp(st, "<" + b, who="l", pair=pair)
            if not DR[0] and LDSW(st): st.wait(lgkm=0)
            DR[0] = False
            st.l.append(Ins("s_barrier", [], tneed=tk))
            run(A.get(b, []), o)
    assert OPT['stop'] or (not gl and tr_next[0] == 8)
    st.s_branch(".Lend")

def main():
    st = Stream()
    entry(st)
    loader(st)
    st.label(".Lslow")
    compute_slow(st)
    st.extend(OOL)
    st.label(".Lend")
    st.s_endpgm()
    bodyt = finalize(st)
    ref = open(f"cdna_kernels/{NAME}.s.ref").read().split("\n")
    head = [l for l in ref if l.startswith(";") and "@launch" not in l]
    out = "\n".join(head) + f"\n; @launch grid=(256,1,1) block=(512,1,1) lds={LDS_BYTES}\n"
    out += '.amdgcn_target "amdgcn-amd-amdhsa--gfx950"\n' + khead(NAME + "_kernel") + bodyt + kd(NAME + "_kernel")
    path = sys.argv[1] if len(sys.argv) > 1 else f"cdna_kernels/{NAME}.s"
    open(path, "w").write(out)
    stamp_names["opt"] = " ".join(a for a in sys.argv[2:] if not a.startswith(("stamps", "only"))); json.dump(stamp_names, open(path + ".json", "w"))
    n = sum(1 for l in bodyt.split("\n") if l.startswith("    ") and not l.strip().startswith(";"))
    print("wrote", path, "instructions:", n, "barriers:", SEQ0, SEQA, SEQC)

main()
```

```python
import sys, os, math, struct, json
sys.path.insert(0, os.path.dirname(os.path.abspath(__file__)))
from asmlib import *
from layout5 import *

NAME = "interleave_layers__linear_kernel_hedgehog__geglu_ffn__prompt"
OPT = dict(stop=None, stamps=False)
for a in sys.argv[2:]:
    k, _, val = a.partition("=")
    OPT[k] = val if val != "" else True
def oi(k, d): return int(OPT.get(k, d))
def os_(k, d): return str(OPT.get(k, d))
SCL = "sc1"
def f2u(x): return "0x%08x" % struct.unpack("<I", struct.pack("<f", x))[0]
LOG2E = 1.4426950408889634
class G: SC = ""; TAG = "f"; SEQ = None; REC = True

WS, X_, OUT, WQ, WP, WO_, WG, WU, WD = [s(4 + 4 * i, 4) for i in range(9)]
sXC = s(40)
XO = oi("xo", 1)
XS = OUT if XO else WS
sC, sJ, sHF, sCG, sM, sNONCE, sCNT, sPAIR = [s(66 + i) for i in range(8)]
sW = s(3)
sXLD, sSTLD, sFA, sXST, sSTST, sFXST = [s(74 + i) for i in range(6)]
sOST, sFB, sFJ = s(80), s(81), s(82)
sHLD, sHST = s(84), s(85)
sKVST, sKVLD, sFKVST, sFKVLD = [s(88 + i) for i in range(4)]
sKZ, sGZ, sHALF, sH5, sF5, sHS = s(62), s(63), s(60, 2), s(49), s(83), s(41)
sT0, sT1, sT2, sT3 = [s(92 + i) for i in range(4)]
sL2E, sONE, sOUTO, sT6 = s(96), s(97), s(98), s(99)
sSTMP = s(100, 2)
sRING, sKH, sTP, sDUM, sLD = s(44), s(45), s(46), s(47), s(48)
vL, vL16, vA0, vFL = v(0), v(1), v(2), v(3)
RES = 4
vNON = v(12); vT = v(13); vU = v(14); vV = v(15)
vA1, vP0, vP1 = v(121), v(122), v(123)
aXW = v(126)
XF = 128
cWDb = [s(52 + i) for i in range(4)]; sDM = s(56)
aEW, aER, vEVv, vEVr, aCS3 = v(112), v(113), v(114), v(115), v(120)
aP4, vS4 = v(124), v(125)

class bc:
    def __init__(self, r, neg=False): self.r = int(r[1:]) if isinstance(r, str) else r; self.neg = neg
class ng:
    def __init__(self, r): self.r = r
def pk(st, op, d, *src):
    ops, lo, hi, n = [], [], [], []
    for x in src:
        if isinstance(x, bc): ops.append(v(x.r & ~1, 2)); lo.append(x.r & 1); hi.append(x.r & 1); n.append(int(x.neg))
        elif isinstance(x, ng): ops.append(v(x.r, 2)); lo.append(0); hi.append(1); n.append(1); assert x.r % 2 == 0
        else: ops.append(v(x, 2)); lo.append(0); hi.append(1); n.append(0); assert x % 2 == 0
    assert d % 2 == 0
    f = lambda l: "[" + ",".join(map(str, l)) + "]"
    mods = f"op_sel:{f(lo)} op_sel_hi:{f(hi)}" + (f" neg_lo:{f(n)} neg_hi:{f(n)}" if any(n) else "")
    st.op(f"v_pk_{op}_f32", v(d, 2), *ops, mods=mods)

lab_n = [0]
def newlab(p):
    lab_n[0] += 1
    return f".L{p}_{lab_n[0]}"

def nxt(st):
    st.s_add_u32(sNONCE, sNONCE, 1); st.v_add_u32(vNON, 1, vNON)

def poll(st, addr, soff, off=0):
    L = newlab("poll"); D = newlab("pdone")
    st.label(L)
    st.buffer_load_dword(vT, addr, WS, soff, mods=f"offen offset:{off} sc1")
    st.wait(vm=0)
    st.v_cmp_ne_u32("vcc", sNONCE, vT)
    st.s_cbranch_vccz(D)
    st.s_sub_u32(sCNT, sCNT, 1)
    st.s_cbranch_scc0(L)
    st.s_mov_b32(sCNT, 0)
    st.label(D)

OOL = Stream()
def soft_check(st, reg, addr, soff, off=0):
    D = newlab("soft"); X = newlab("softx")
    st.v_cmp_ne_u32("vcc", sNONCE, reg)
    st.s_cbranch_vccnz(X)
    st.label(D)
    OOL.label(X); OOL.mark("reset")
    poll(OOL, addr, soff, off)
    OOL.s_branch(D)

stamp_names = {"c": [], "l": []}
def stamp(st, name, real=False, who="c", pair=None):
    if OPT.get("cap") and who == "c" and name == OPT["cap"].split("@")[0]:
        (st.s_memrealtime if OPT.get("capr") else st.s_memtime)(sSTMP); st.wait(lgkm=0)
        st.s_cmp_eq_u32(sPAIR, int(OPT["cap"].split("@")[1])); st.s_cselect_b32(s(43), s(100), s(43))
    if not OPT["stamps"]: return
    only = OPT.get("only")
    if only and who == "l" and not OPT.get("lst"): return
    if only and who == "c" and not isinstance(name, int) and name not in ("start", "end") and name not in only.split(","): return
    if isinstance(name, int): idx = name
    else:
        if name not in stamp_names[who]: stamp_names[who].append(name)
        idx = stamp_names[who].index(name)
    r = v(127) if who == "c" else v(63)
    if name == 62: st.v_mov_b32(r, s(42))
    elif name == "start" and who == "c": st.v_mov_b32(r, s(86))
    elif name == "karg": st.wait(lgkm=0); st.v_mov_b32(r, s(0))
    else:
        if real: st.s_memrealtime(sSTMP)
        else: st.s_memtime(sSTMP)
        st.wait(lgkm=0)
        st.v_mov_b32(r, s(100))
    if pair is None:
        st.s_lshl_b32(s(101), sPAIR, 8)
        st.s_add_u32(s(101), s(101), s(65))
    else:
        st.s_add_u32(s(101), s(65), 256 * pair)
    st.buffer_store_dword(r, "off", WS, s(101), mods=f"offset:{idx*4}")

def ring_addr(st, mode):
    if mode in ("trq", "trn"):
        st.v_add_u32(vA0, sRING, vP0 if mode == "trq" else vP1); st.v_xor_b32(vA1, 64, vA0)
    elif mode == "b128":
        st.v_add_u32(vA0, sRING, vL16)
def ring_next(st, mode=None):
    st.s_add_u32(sRING, sRING, 0x8000); st.s_and_b32(sRING, sRING, 0x1ffff)
    ring_addr(st, mode)
def barrier(st, name, drain=False):
    if drain: st.wait(lgkm=0)
    st.s_barrier()
    if G.REC: G.SEQ.append(name)

def signal(st, val=None, off=0):
    t0, t1 = (v(124), v(125)) if val is None else (vT, vU)
    st.s_lshl_b32(sT3, sW, 2); st.s_add_u32(sT3, sT3, L_SIG + off); st.v_mov_b32(t0, sT3)
    if val is None: st.v_add_u32(t1, 1, sPAIR)
    else: st.v_mov_b32(t1, val)
    st.ds_write_b32(t0, t1)
def sigwait(st, mask=28, off=0, regs=(124, 125, 126), cmp="ne", extra=None):
    L = newlab("sig"); D = newlab("sigd")
    a, e, r = [v(x) for x in regs]
    st.v_and_b32(a, mask, vFL); st.v_add_u32(a, L_SIG + off, a)
    if extra:
        st.ds_read_b32(r, a)
        extra(st)
        st.wait(lgkm=0)
        st.op(f"v_cmp_{cmp}_u32", "vcc", e, r)
        st.s_cbranch_vccz(D)
    st.label(L)
    st.ds_read_b32(r, a)
    st.wait(lgkm=0)
    st.op(f"v_cmp_{cmp}_u32", "vcc", e, r)
    st.s_cbranch_vccz(D)
    st.s_sub_u32(sCNT, sCNT, 1)
    st.s_cbranch_scc0(L)
    st.s_mov_b32(sCNT, 0)
    st.label(D)

def lane_tr(st, d0, d1, kind, stride=128, tmp=vT, hstride=None):
    st.v_bfe_u32(d0, vL, 2, 2)
    if stride == 128: st.v_lshlrev_b32(d0, 7, d0)
    else: st.v_mul_u32_u24(d0, stride, d0)
    st.v_lshrrev_b32(tmp, 5, vL)
    st.v_lshl_add_u32(d0, tmp, int(math.log2(hstride or 8 * stride)), d0)
    sh = dict(qkv=(5, 4), nat=(4, 5))[kind]
    st.v_and_b32(tmp, 1, vL); st.v_lshl_add_u32(d0, tmp, sh[0], d0)
    st.v_bfe_u32(tmp, vL, 1, 1); st.v_lshl_add_u32(d0, tmp, 3, d0)
    st.v_bfe_u32(tmp, vL, 4, 1); st.v_lshl_add_u32(d0, tmp, sh[1], d0)
    if stride == 128:
        st.v_bfe_u32(tmp, vL, 3, 1); st.v_lshl_add_u32(d0, tmp, 6, d0)
        if d1: st.v_xor_b32(d1, 64, d0)

gemm_n = [0]
def gemm(st, items, mode, af, nslots, depth, ready, bars=None, fill=None, budget=16, hooks=None, loads=None, pre=10, every=2, pairw=0):
    n = len(items); loads = list(loads or []); ready = set(ready); bars = bars or {}
    nr = 0; gemm_n[0] += 1; tg = f"g{gemm_n[0]}_"
    def pump(upto):
        nonlocal nr
        while nr < n and nr <= upto:
            it = items[nr]; r = af + 4 * (nr % nslots)
            assert it["chunk"] in ready, (nr, it["chunk"])
            if nr > 0 and it["chunk"] != items[nr - 1]["chunk"]: ring_next(st, mode)
            if mode != "b128":
                a = vA1 if it["t"] else vA0
                st.ds_read_b64_tr_b16(v(r, 2), a, mods=f"offset:{it['off']}")
                st.ds_read_b64_tr_b16(v(r + 2, 2), a, mods=f"offset:{it['off']+512}", tset=tg + str(nr))
            else:
                st.ds_read_b128(v(r, 4), vA0, mods=f"offset:{it['off']}", tset=tg + str(nr))
            nr += 1
    for _ in range(min(pre, len(loads))): loads.pop(0)(st)
    pump(depth - 1)
    for i in range(n):
        it = items[i]
        if hooks and i in hooks: hooks[i](st)
        acc = v(it["acc"], 16)
        st.v_mfma_f32_32x32x16_bf16(acc, v(af + 4 * (i % nslots), 4), v(it["b"], 4), "0" if it["first"] else acc,
                                    tneed=tg + str(i + 1) if pairw and i % 2 == 0 and i + 1 < nr else None)
        if i in bars:
            barrier(st, bars[i][0]); ready |= set(bars[i][1])
        pump(i + depth)
        if loads and i % every == every - 1: loads.pop(0)(st)
        if fill is not None: fill.take(st, budget(i) if callable(budget) else budget)
    assert not loads

def entry(st):
    st.s_cmp_ge_u32(s(2), 256)
    st.s_cbranch_scc1(".Lend")
    if OPT["stamps"]: st.s_memrealtime(s(42, 2)); st.s_memtime(s(86, 2))
    if OPT.get("dbg"): st.s_memrealtime(s(42, 2)); st.s_memtime(s(86, 2))
    st.s_load_dwordx16(s(44, 16), s(0, 2), 0)
    st.s_load_dwordx4(s(60, 4), s(0, 2), 64)
    st.s_load_dwordx2(s(64, 2), s(0, 2), 80)
    st.v_lshrrev_b32(vT, 6, v(0))
    st.v_and_b32(vL, 63, v(0))
    st.v_readfirstlane_b32(sW, vT)
    st.v_lshlrev_b32(vL16, 4, vL)
    st.v_and_b32(vFL, 15, vL)
    st.v_lshlrev_b32(vFL, 2, vFL)
    st.s_and_b32(sT0, s(2), 7)
    st.s_lshr_b32(sT1, s(2), 3)
    st.s_lshr_b32(sC, sT1, 4)
    st.s_lshl_b32(sT0, sT0, 1)
    st.s_add_u32(sC, sC, sT0)
    st.s_and_b32(sJ, sT1, 15)
    st.s_lshr_b32(sHF, sJ, 3)
    st.s_and_b32(sCG, sJ, 7)
    st.s_and_b32(sM, sW, 3)
    st.s_mov_b32(sCNT, 1 << 18)
    st.s_mov_b32(sPAIR, 0)
    st.s_cmp_lt_u32(sJ, 6)
    st.s_cselect_b32(sT6, 1, 0)
    st.s_getreg_b32(sXC, "hwreg(HW_REG_XCC_ID, 0, 4)")
    for d in (WS, X_, OUT, WQ, WP, WO_, WG, WU, WD):
        st.s_mov_b32(s(int(d[2:d.index(":")]) + 3), 0x20000)
    for d, size in ((X_, 2048 * 1024), (WQ, 512 * 3072), (WS, WS_SIZE), (WP, 32 * 512), (WO_, 512 * 1024), (WG, 512 * 2752),
                    (WU, 512 * 2752), (WD, 1376 * 1024), (OUT, 2048 * 1024)):
        st.s_mov_b32(s(int(d[2:d.index(":")]) + 2), size)
    if oi("cfirst", 1):
        st.s_cmp_ge_u32(sW, 4); st.s_cbranch_scc1(".Lld0")
        compute(st)
        st.label(".Lld0"); st.mark("reset")
    else:
        st.s_cmp_lt_u32(sW, 4); st.s_cbranch_scc1(".Lcomp")

def rot(st, d, t):
    if not oi("rot", 0): st.s_mov_b32(d, 0); return
    st.s_and_b32(d, sJ, 1); st.s_and_b32(t, sC, 1); st.s_lshl_b32(t, t, 1); st.s_add_u32(d, d, t); st.s_lshl_b32(d, d, 1)
    st.s_lshr_b32(t, sJ, 1); st.s_add_u32(d, d, t)

def srds(st, lst):
    src = {X_: 44, WQ: 46, WP: 48, WO_: 50, WG: 54, WU: 56, WD: 58, OUT: 60, WS: 64}
    for d in lst:
        b = int(d[2:d.index(":")])
        st.s_mov_b32(s(b), s(src[d])); st.s_and_b32(s(b + 1), s(src[d] + 1), 0xffff)

def stamp_base(st):
    if OPT["stamps"]:
        st.s_lshl_b32(s(65), s(2), 3); st.s_add_u32(s(65), s(65), sW); st.s_lshl_b32(s(65), s(65), 9)
        st.s_add_u32(s(65), s(65), STAMP)

aK, aV, aQ, AF1, WPH, STT = 16, 32, 48, 64, 88, 96
NM, RS, VE, LR = v(112), v(113), v(114), v(115)
aCS, aA, aB, aR1, aR2 = v(116), v(117), v(118), v(119), v(120)

def kv_items():
    return [dict(chunk=k // 16, off=(k % 16) * 2048, t=t, acc=acc, b=XF + 4 * k, first=k == 0)
            for k in range(32) for t, acc in ((0, aK), (1, aV))]

CK, CV = aQ, STT
def k_addr(st):
    st.v_lshrrev_b32(vU, 5, vL); st.v_and_b32(vT, 1, vL); st.v_cmp_eq_u32("vcc", vT, vU)
    st.v_lshlrev_b32(aCS, 6, vU); st.v_add_u32(aCS, L_CS, aCS)
    st.v_lshlrev_b32(aR1, 7, vU); st.v_and_b32(vT, 12, vL); st.v_lshl_add_u32(aR1, vT, 3, aR1)
    st.v_and_b32(vT, 16, vL); st.v_add_u32(aR1, aR1, vT); st.v_and_b32(vT, 2, vL); st.v_lshl_add_u32(aR1, vT, 2, aR1)
    st.v_mov_b32(vT, 544); st.v_cndmask_b32(aR1, vT, aR1, "vcc"); st.v_add_u32(aR1, L_KVB, aR1)
    st.v_and_b32(vT, 31, vL); st.s_lshl_b32(sT0, sM, 5); st.v_add_u32(vT, sT0, vT)
    st.v_mul_u32_u24(aA, 144, vT); st.v_lshl_add_u32(aA, vU, 6, aA); st.v_add_u32(aA, L_PH, aA)
    st.v_mul_u32_u24(aB, 80, vT); st.v_lshl_add_u32(aB, vU, 5, aB); st.v_add_u32(aB, L_VB, aB)
def k_reads(st, which="wkv"):
    if "k" in which:
        for i in range(4): st.ds_read_b128(v(CK + 4 * i, 4), aCS, mods=f"offset:{16*i}")
    if "w" in which:
        for q in range(4): st.ds_read_b64_tr_b16(v(WPH + 2 * q, 2), aR1, mods=f"offset:{576*q}")
    if "v" in which:
        for i in range(4): st.ds_read_b128(v(CV + 4 * i, 4), aCS, mods=f"offset:{128+16*i}")

def fin_stats(st, S, Q, t0, t1, negmean, rstd, vare):
    if t0: st.v_mov_b32(t0, S)
    st.v_mov_b32(t1, Q)
    if t0: st.v_permlane32_swap_b32(S, t0)
    st.v_permlane32_swap_b32(Q, t1)
    if t0: st.v_add_f32(S, S, t0)
    st.v_add_f32(Q, Q, t1)
    st.v_mul_f32(negmean, f2u(-1.0 / 512), S)
    st.v_mul_f32(Q, f2u(1.0 / 512), Q)
    st.v_fma_f32(vare, "-" + negmean, negmean, Q)
    st.v_max_f32(vare, 0, vare)
    st.v_add_f32(vare, f2u(1e-5), vare)
    st.v_rsq_f32(rstd, vare)

def stats(st, stt, negmean, rstd, vare):
    S, Q = v(stt), v(stt + 1)
    for i in range(4): st.v_add_f32(v(stt + i), v(stt + i), v(stt + 4 + i))
    for i in range(4): st.v_add_f32(v(stt + 8 + i), v(stt + 8 + i), v(stt + 12 + i))
    for i in range(4): st.v_add_f32(v(stt + i), v(stt + i), v(stt + 8 + i))
    st.v_add_f32(S, S, v(stt + 2)); st.v_add_f32(Q, Q, v(stt + 3))
    fin_stats(st, S, Q, v(stt + 2), v(stt + 3), negmean, rstd, vare)

def p1a0(st):
    g0, g1, aW = v(118), v(119), v(120)
    aRd = [v(88 + i) for i in range(4)]
    QD, SA, SELA = 96, 112, 92
    st.v_lshrrev_b32(vT, 3, vL); st.v_and_b32(vV, 7, vL)
    st.v_lshlrev_b32(g0, 10, vT); st.v_lshl_add_u32(g0, vV, 4, g0)
    st.s_lshl_b32(sT0, sC, 2); st.s_add_u32(sT0, sT0, sM); st.s_lshl_b32(sT0, sT0, 15)
    GA = [v(48 + g) for g in range(4)]
    st.v_lshlrev_b32(g1, 5, vFL); st.s_lshl_b32(sT1, sJ, 11); st.s_add_u32(sT1, sT1, sT0)
    for g in range(4):
        st.v_add_u32(GA[g], sT0, g0)
        if g < 3: st.s_add_u32(sT0, sT0, 8192)
    if oi("tk0", 0):
        st.v_lshrrev_b32(vT, 5, vL); st.v_lshlrev_b32(vT, 8, vT); st.v_bfe_u32(vU, vL, 4, 1); st.v_add_u32(vT, vT, vU)
        st.v_mul_u32_u24(v(124), 3072, vT); st.v_lshl_add_u32(v(124), vFL, 5, v(124))
        st.s_and_b32(sT2, sC, 1); st.s_lshl_b32(sT2, sT2, 4); st.s_add_u32(sT2, sT2, sJ); st.s_lshl_b32(sT2, sT2, 2); st.s_add_u32(sT2, sT2, sM)
        st.s_mul_i32(sT2, sT2, 2 * 3072); st.s_add_u32(sT2, sT2, 1024)
    sR, sQO = s(41), s(83)
    rot(st, sR, sT0)
    def xl(p, st):
        st.s_add_u32(sQO, sR, p); st.s_and_b32(sQO, sQO, 7); st.s_lshl_b32(sQO, sQO, 7)
        if p == 0:
            st.wait(lgkm=0)
            srds(st, [X_])
            if OPT["stamps"]: st.s_memtime(s(0, 2))
            if oi("tx0", 1):
                i = Ins("buffer_load_dword", [v(126), g1, X_, sT1], "offen"); i.dst = set(); st.l.append(i)
            if oi("tk0", 0):
                srds(st, [WQ])
                i = Ins("buffer_load_dword", [v(125), v(124), WQ, sT2], "offen"); i.dst = set(); st.l.append(i)
        for g in range(4):
            st.buffer_load_dwordx4(v(XF + 16 * p + 4 * g, 4), GA[g], X_, sQO, mods="offen")
    n0 = oi("xn0", 2); n1 = oi("xn1", 4)
    for p in range(n0): xl(p, st)
    srds(st, [WS, OUT])
    stamp_base(st)
    stamp(st, 62, True)
    stamp(st, "start")
    stamp(st, "karg"); stamp(st, "xissued")
    st.buffer_load_dword(vNON, "off", WS, 0, mods=f"offset:{EPOCH} sc1")
    st.s_and_b32(sKH, sM, 1); st.s_lshr_b32(sTP, sM, 1); st.s_mov_b32(sRING, 0)
    st.v_and_b32(aA, 31, vL); st.v_lshlrev_b32(aA, 10, aA); st.v_lshrrev_b32(vT, 5, vL); st.v_lshl_add_u32(aA, vT, 4, aA)
    st.s_lshl_b32(sOUTO, sC, 17); st.s_lshl_b32(sT1, sHF, 16); st.s_add_u32(sOUTO, sOUTO, sT1)
    st.s_lshl_b32(sT1, sTP, 15); st.s_add_u32(sOUTO, sOUTO, sT1); st.s_lshl_b32(sT1, sCG, 7); st.s_add_u32(sOUTO, sOUTO, sT1)
    st.s_lshl_b32(sT1, sKH, 6); st.s_add_u32(sOUTO, sOUTO, sT1)
    st.s_mov_b32(sL2E, f2u(LOG2E)); st.s_mov_b32(sONE, 0x3f803f80)
    st.s_lshl_b32(sT0, sC, 2); st.s_add_u32(sT1, sT0, sM)
    st.s_lshl_b32(sXLD, sT1, 15)
    if not XO: st.s_add_u32(sXLD, sXLD, XB)
    st.s_lshl_b32(sSTLD, sT1, 12); st.s_add_u32(sSTLD, sSTLD, ST)
    st.s_lshl_b32(sFA, sT1, 10); st.s_add_u32(sFA, sFA, FL)
    st.s_lshl_b32(sT2, sJ, 2); st.s_add_u32(sFJ, sFA, sT2)
    st.s_mul_i32(sHST, sT1, HB_TB); st.s_add_u32(sHST, sHST, HB)
    st.s_lshl_b32(sT2, sJ, 11); st.s_add_u32(sOST, sHST, sT2)
    st.s_mov_b32(s(60), 0); st.s_mov_b32(s(61), -1)
    st.s_lshl_b32(sT2, sJ, 10); st.s_add_u32(sHST, sHST, sT2)
    st.s_lshl_b32(sDUM, sT1, 11); st.s_add_u32(sDUM, sDUM, DUMMY)
    st.s_lshl_b32(sT1, sHF, 1); st.s_add_u32(sT1, sT1, sT0); st.s_add_u32(sT1, sT1, sTP)
    st.s_lshl_b32(sT3, sCG, 1); st.s_add_u32(sT3, sT3, sKH)
    st.s_lshl_b32(sXST, sT1, 15); st.s_lshl_b32(sT2, sT3, 11); st.s_add_u32(sXST, sXST, sT2)
    if not XO: st.s_add_u32(sXST, sXST, XB)
    st.s_lshl_b32(sSTST, sT1, 12); st.s_lshl_b32(sT2, sCG, 9); st.s_add_u32(sSTST, sSTST, sT2)
    st.s_lshl_b32(sT2, sKH, 3); st.s_add_u32(sSTST, sSTST, sT2); st.s_add_u32(sSTST, sSTST, ST)
    st.s_lshl_b32(sFB, sT1, 10); st.s_add_u32(sFB, sFB, FL)
    st.s_lshl_b32(sT2, sT3, 2); st.s_add_u32(sFXST, sFB, sT2)
    st.s_lshl_b32(sT2, sKH, 10)
    st.s_mul_i32(sHLD, sT1, HB_TB); st.s_add_u32(sHLD, sHLD, sT2); st.s_add_u32(sHLD, sHLD, HB)
    st.s_mul_i32(sKVLD, sJ, KV_J); st.s_add_u32(sKVLD, sKVLD, KVP)
    st.s_mul_i32(sKVST, sC, KV_REC); st.s_add_u32(sKVST, sKVST, sKVLD)
    st.s_lshl_b32(sT1, sKH, 7); st.s_lshl_b32(sT2, sTP, 5); st.s_add_u32(sT1, sT1, sT2); st.s_add_u32(sKZ, sKVST, sT1); st.s_add_u32(sKZ, sKZ, 2048)
    st.s_lshl_b32(sT1, sKH, 10); st.s_lshl_b32(sT2, sTP, 6); st.s_add_u32(sT1, sT1, sT2); st.s_add_u32(sKVST, sKVST, sT1)
    st.s_lshl_b32(sT1, sM, 6); st.s_add_u32(sGZ, sKVLD, sT1); st.s_add_u32(sGZ, sGZ, 2048)
    st.s_lshl_b32(sT1, sM, 9); st.s_add_u32(sKVLD, sKVLD, sT1)
    st.s_lshl_b32(sFKVLD, sJ, 11); st.s_add_u32(sFKVLD, sFKVLD, FKV)
    st.s_lshl_b32(sT1, sC, 7); st.s_lshl_b32(sT2, sM, 2); st.s_add_u32(sFKVST, sT1, sT2); st.s_add_u32(sFKVST, sFKVST, sFKVLD)
    for i in range(4): st.v_mov_b32(v(96 + i), 0)
    st.v_and_b32(vT, 3, vL); st.v_mul_u32_u24(vT, 576, vT); st.v_add_u32(vT, L_KVB + 544, vT)
    st.ds_write_b128(vT, v(96, 4))
    st.v_and_b32(vT, 112, vL16); st.v_add_u32(vT, L_SIG, vT)
    st.ds_write_b128(vT, v(96, 4))
    st.v_bfe_u32(vT, vL, 4, 1); st.v_and_b32(vU, 1, vL); st.v_cmp_eq_u32("vcc", vT, vU)
    st.v_mov_b32(vV, sONE)
    for i in range(4): st.v_cndmask_b32(v(SELA + i), 0, vV, "vcc")
    st.s_lshl_b32(sT0, sM, 12); st.s_add_u32(sT0, sT0, L_PH)
    st.v_and_b32(vT, 48, vL); st.v_xor_b32(vT, vT, vL16); st.v_add_u32(aW, sT0, vT); st.v_xor_b32(g1, 64, aW)
    st.v_and_b32(vT, 31, vL); st.v_lshrrev_b32(vU, 5, vL); st.v_bfe_u32(vV, vL, 1, 3); st.v_xor_b32(vU, vU, vV)
    st.v_lshlrev_b32(vT, 7, vT); st.v_lshl_add_u32(vT, vU, 4, vT); st.v_add_u32(aRd[0], sT0, vT)
    for i in range(1, 4): st.v_xor_b32(aRd[i], 32 * i, aRd[0])
    lane_tr(st, vP0, None, "qkv"); ring_addr(st, "trq")
    def rnd(q, st):
        R = XF + 16 * q
        for g in range(4): st.ds_write_b128(g1 if g & 1 else aW, v(R + 4 * g, 4), mods=f"offset:{1024*g}")
        for i in range(4): st.ds_read_b128(v(R + 4 * i, 4), aRd[i])
    def smf(k, st):
        f = v(XF + 4 * k, 4)
        st.v_mfma_f32_32x32x16_bf16(v(QD, 16), f, f, "0" if k == 0 else v(QD, 16))
        st.v_mfma_f32_16x16x32_bf16(v(SA, 4), v(SELA, 4), f, "0" if k == 0 else v(SA, 4))
    def res(st):
        st.buffer_load_dwordx4(v(RES, 4), aA, X_, sOUTO, mods="offen")
        st.buffer_load_dwordx4(v(RES + 4, 4), aA, X_, sOUTO, mods="offen offset:32")
    hooks = {}
    hq = oi("hq", 8)
    for p in range(n0, n1): xl(p, st)
    nl = n1
    rnd(0, st)
    for q in range(hq):
        if nl < 8: xl(nl, st); nl += 1
        if q < 7: rnd(q + 1, st)
        for k in range(4 * q, 4 * q + 4): smf(k, st)
    while nl < 8: xl(nl, st); nl += 1
    acts = {}
    at = oi("rnd0", 2); gap = oi("rndgap", 8)
    for n, q in enumerate(range(hq, 8)):
        i0 = at + gap * n
        if q < 7: acts.setdefault(i0, []).append(lambda st, q=q: rnd(q + 1, st))
        for u in range(4): acts.setdefault(i0 + 1 + 2 * u, []).append(lambda st, k=4 * q + u: smf(k, st))
        assert i0 < 8 * (q + 1) - 2
    acts.setdefault(oi("res0", 40), []).append(res)
    for i, l in acts.items(): hooks[i] = lambda st, l=l: [f(st) for f in l]
    stamp(st, "p1pre")
    barrier(st, "a0", drain=True)
    stamp(st, "B(a0)")
    bars = {oi("a1", 20): ("a1", [1])}
    f = Stream()
    M = [s(50 + 2 * i, 2) for i in range(5)]
    for i, bit in enumerate((16, 8, 2, 1)):
        f.v_and_b32(vT, bit, vL); f.v_cmp_ne_u32(M[i], 0, vT)
    f.v_bfe_u32(vT, vL, 2, 1); f.v_lshrrev_b32(vU, 5, vL); f.v_cmp_eq_u32(M[4], vT, vU)
    f.v_cndmask_b32(v(SA), v(SA), v(SA + 1), M[0])
    for i in range(8): f.v_cndmask_b32(v(QD + i), v(QD + i), v(QD + 8 + i), M[0])
    for i in range(4): f.v_cndmask_b32(v(QD + i), v(QD + i), v(QD + 4 + i), M[1])
    for i in range(2): f.v_cndmask_b32(v(QD + i), v(QD + i), v(QD + 2 + i), M[2])
    f.v_cndmask_b32(v(QD), v(QD), v(QD + 1), M[3])
    f.v_cndmask_b32(v(QD), 0, v(QD), M[4])
    fin_stats(f, v(SA), v(QD), None, v(QD + 1), NM, RS, VE)
    f.v_mul_f32(LR, sL2E, RS)
    g = Stream(); k_addr(g)
    lane_tr(g, vP1, None, "nat")
    g.s_lshl_b32(sT2, sKH, 6); g.v_xor_b32(vP1, sT2, vP1); g.s_lshl_b32(sT2, sKH, 11); g.v_add_u32(vP1, sT2, vP1)
    fill = Filler()
    assert hq == 8
    r0 = oi("res0", 24)
    hooks = {2: lambda st: fill.add(f), r0: res, r0 + 1: lambda st: fill.add(g)}
    gemm(st, kv_items(), "trq", AF1, 6, 5, ready=[0], bars=bars, hooks=hooks, fill=fill, budget=oi("bud1", 8))
    fill.flush(st)
    st.v_add_u32(vNON, 1, vNON)
    st.v_mov_b32(v(125), 1); sigwait(st, 12, 32, cmp="gt")
    k_reads(st)
    st.v_readfirstlane_b32(sNONCE, vNON)
    signal(st, 2, 32)
    st.s_add_u32(sH5, sHST, 16384 * 5); st.s_add_u32(sF5, sDUM, 1024)
    st.s_cmp_eq_u32(sT6, 1); st.s_cselect_b32(sH5, sH5, sDUM); st.s_cselect_b32(sF5, sFJ, sF5)
    stamp(st, "KVgemm")

def frag_loads(base, regs, stride, per, WS=WS):
    out = []
    for k, r in enumerate(regs):
        def f(st, k=k, r=r):
            if k % per == 0: st.s_add_u32(sLD, base, k * stride)
            st.buffer_load_dwordx4(v(r, 4), vL16, WS, sLD, mods=f"offen offset:{(k % per) * stride} {SCL}")
        out.append(f)
    return out

def x_addr(st):
    st.v_lshrrev_b32(vV, 5, vL); st.v_lshlrev_b32(vV, 11, vV); st.v_and_b32(vU, 31, vL); st.v_lshl_add_u32(vV, vU, 4, vV)
def p1a_pre(st):
    ring_next(st, "trq"); x_addr(st)
def p3_pre(st):
    st.v_and_b32(vU, 31, vL); st.v_lshlrev_b32(aCS3, 2, vU); st.v_add_u32(aCS3, L_CS + 3 * 128, aCS3)
    ring_next(st, "b128"); x_addr(st)
    st.s_add_u32(sT0, sRING, 0x10000); st.s_and_b32(sT0, sT0, 0x1ffff); st.v_add_u32(vA1, sT0, vL16)
    st.s_lshl_b32(sT0, sM, 12); st.s_add_u32(sT0, sT0, L_PH); st.v_add_u32(aXW, sT0, vL16)
def x_loads(st, stt, at=32):
    L = frag_loads(sXLD, [XF + 4 * k for k in range(32)], 1024, 4, XS)
    def stl(st):
        for i in range(4):
            st.buffer_load_dwordx4(v(stt + 4 * i, 4), vV, WS, sSTLD, mods=f"offen offset:{512*i} {SCL}")
    return L[:at] + [stl] + L[at:]

def featmap(st, acc, kb, wp, e1, e2, lr, mid=None):
    for i in range(8): st.v_cvt_pk_bf16_f32(v(kb + i), v(acc + 2 * i), v(acc + 2 * i + 1))
    st.v_mfma_f32_32x32x16_bf16(v(acc, 16), v(wp, 4), v(kb, 4), "0")
    st.v_mfma_f32_32x32x16_bf16(v(acc, 16), v(wp + 4, 4), v(kb + 4, 4), v(acc, 16))
    if mid: mid(st)
    mx, mn = v(kb), v(kb + 1)
    p = lambda i: v(acc + i)
    st.v_max3_f32(mx, p(0), p(1), p(2)); st.v_min3_f32(mn, p(0), p(1), p(2))
    for i in range(3, 15, 2):
        st.v_max3_f32(mx, mx, p(i), p(i + 1)); st.v_min3_f32(mn, mn, p(i), p(i + 1))
    st.v_max_f32(mx, mx, p(15)); st.v_min_f32(mn, mn, p(15))
    pk(st, "mul", kb, bc(lr), kb)
    for i in range(0, 16, 2):
        pk(st, "fma", e1 + i, acc + i, bc(lr), bc(kb, True)); pk(st, "fma", e2 + i, ng(acc + i), bc(lr), bc(kb + 1))
    for i in range(16):
        st.v_exp_f32(v(e1 + i), v(e1 + i)); st.v_exp_f32(v(e2 + i), v(e2 + i))
    s1, s2 = kb + 2, kb + 4
    pk(st, "add", s1, e1, e1 + 2); pk(st, "add", s2, e2, e2 + 2)
    for i in range(4, 16, 2):
        pk(st, "add", s1, s1, e1 + i); pk(st, "add", s2, s2, e2 + i)
    st.v_add_f32(v(s1), v(s1), v(s1 + 1)); st.v_add_f32(v(s2), v(s2), v(s2 + 1))
    st.v_rcp_f32(v(s1), v(s1)); st.v_rcp_f32(v(s2), v(s2))
    for i in range(0, 16, 2):
        pk(st, "mul", e1 + i, bc(s1), e1 + i); pk(st, "mul", e2 + i, bc(s2), e2 + i)
    for i in range(8):
        st.v_cvt_pk_bf16_f32(v(e1 + i), v(e1 + 2 * i), v(e1 + 2 * i + 1))
        st.v_cvt_pk_bf16_f32(v(e2 + i), v(e2 + 2 * i), v(e2 + 2 * i + 1))

def p1a(st):
    at = oi("st1", 22)
    L = x_loads(st, STT, at)
    stamp(st, "p1pre")
    poll(st, vFL, sFA)
    stamp(st, "FXpoll")
    pre = oi("pre1", 10)
    for f in L[:pre]: f(st)
    nxt(st)
    barrier(st, "a0")
    stamp(st, "B(a0)")
    fill = Filler()
    f = Stream(); stats(f, STT, NM, RS, VE); f.v_mul_f32(LR, sL2E, RS); k_reads(f, "v")
    g = Stream(); k_addr(g); k_reads(g, "wk")
    hooks = {2: lambda st: fill.add(g), oi("sth1", 2 * at + 2): lambda st: fill.add(f)}
    gemm(st, kv_items(), "trq", AF1, 6, 5, ready=[0], bars={oi("a1", 20): ("a1", [1]), oi("a2", 56): ("a2", [])}, loads=L[pre:], pre=0,
         hooks=hooks, fill=fill, budget=oi("bud1", 8))
    fill.flush(st)
    stamp(st, "KVgemm")

def p1b(st):
    AF = AF1
    for i in range(0, 16, 2): pk(st, "fma", aK + i, CK + i, bc(NM), aK + i)
    def vpart(st):
        for i in range(0, 16, 2): pk(st, "fma", aV + i, CV + i, bc(NM), aV + i)
        for i in range(0, 16, 2): pk(st, "mul", aV + i, bc(RS), aV + i)
        for i in range(8): st.v_cvt_pk_bf16_f32(v(aV + i), v(aV + 2 * i), v(aV + 2 * i + 1))
        st.ds_write_b128(aB, v(aV, 4)); st.ds_write_b128(aB, v(aV + 4, 4), mods="offset:16")
    featmap(st, aK, AF, WPH, STT, aQ, LR, mid=vpart)
    st.ds_write_b128(aA, v(STT, 4)); st.ds_write_b128(aA, v(STT + 4, 4), mods="offset:16")
    st.ds_write_b128(aA, v(aQ, 4), mods="offset:32"); st.ds_write_b128(aA, v(aQ + 4, 4), mods="offset:48")
    signal(st)
    TA, TB, ONE, AKV, AZ = 16, 32, 96, 100, 104
    def shadow(st):
        st.v_lshrrev_b32(vT, 4, vL); st.v_lshlrev_b32(vT, 3, vT); st.v_bfe_u32(vU, vL, 2, 2); st.v_add_u32(vT, vT, vU)
        st.v_and_b32(vU, 3, vL); st.v_lshlrev_b32(vU, 3, vU)
        st.s_lshl_b32(sT0, sM, 5); st.s_add_u32(sT0, sT0, L_PH)
        st.v_mul_u32_u24(aR1, 144, vT); st.v_add3_u32(aR1, aR1, vU, sT0)
        st.s_lshl_b32(sT0, sTP, 5); st.s_add_u32(sT0, sT0, L_VB)
        st.v_mul_u32_u24(aR2, 80, vT); st.v_add3_u32(aR2, aR2, vU, sT0)
        ring_next(st, "trq")
    sigwait(st, extra=shadow)
    stamp(st, "Kepi+B")
    for k in range(4):
        for q in range(2):
            st.ds_read_b64_tr_b16(v(TA + 4 * k + 2 * q, 2), aR1, mods=f"offset:{(32*k+4*q)*144}")
            st.ds_read_b64_tr_b16(v(TB + 4 * k + 2 * q, 2), aR2, mods=f"offset:{(32*k+4*q)*80}")
    for i in range(4): st.v_mov_b32(v(ONE + i), sONE)
    st.v_lshrrev_b32(vT, 5, vL); st.v_lshlrev_b32(vV, 9, vT); st.v_bfe_u32(vU, vL, 4, 1); st.v_lshl_add_u32(vV, vU, 3, vV)
    st.v_lshlrev_b32(vT, 6, vT); st.v_lshl_add_u32(vT, vU, 4, vT)
    st.v_bfe_u32(vU, vL, 2, 2); st.v_lshl_add_u32(vV, vU, 7, vV); st.v_and_b32(vU, 3, vL); st.v_lshl_add_u32(vV, vU, 4, vV)
    for k in range(4):
        st.v_mfma_f32_16x16x32_bf16(v(AKV, 4), v(TA + 4 * k, 4), v(TB + 4 * k, 4), "0" if k == 0 else v(AKV, 4))
        st.v_mfma_f32_16x16x32_bf16(v(AZ, 4), v(TA + 4 * k, 4), v(ONE, 4), "0" if k == 0 else v(AZ, 4))
    st.v_cvt_pk_bf16_f32(v(AKV), v(AKV), v(AKV + 1)); st.v_cvt_pk_bf16_f32(v(AKV + 1), v(AKV + 2), v(AKV + 3))
    st.buffer_store_dwordx2(v(AKV, 2), vV, WS, sKVST, mods="offen sc1")
    st.buffer_store_dwordx4(v(AZ, 4), vT, WS, sKZ, mods="offen sc1", tset="kv")
    stamp(st, "kv st")
    items = []
    for k in range(16):
        for t in range(2):
            items.append(dict(chunk=0, off=k * 2048, t=t, acc=aQ, b=XF + 4 * (k + 16 * t), first=(k, t) == (0, 0)))
    def kvflag(st): st.buffer_store_dword(vNON, "off", WS, sFKVST, mods="sc1", tneed="kv")
    CS = 16
    aPL, aGZ, aGK = aR1, aR2, aB
    f = Stream()
    for i in range(4): f.ds_read_b128(v(CS + 4 * i, 4), aCS, mods=f"offset:{256+16*i}")
    f.v_lshrrev_b32(aPL, 2, vL); f.v_lshlrev_b32(aPL, 7, aPL); f.v_and_b32(vU, 3, vL); f.v_lshl_add_u32(aPL, vU, 2, aPL)
    f.v_lshrrev_b32(aGZ, 4, vL); f.v_mul_u32_u24(aGZ, KV_REC, aGZ); f.v_add_u32(aGZ, aGZ, vFL)
    f.v_lshrrev_b32(aGK, 5, vL); f.v_mul_u32_u24(aGK, KV_REC - 512, aGK); f.v_add_u32(aGK, aGK, vL16)
    fill = Filler()
    gemm(st, items, "trq", AF, 6, 5, ready=[0], hooks={4: lambda st: fill.add(f), oi("kvflag", 24): kvflag}, fill=fill, budget=8)
    fill.flush(st)
    stamp(st, "Qgemm")
    for i in range(0, 16, 2): pk(st, "fma", aQ + i, CS + i, bc(NM), aQ + i)
    featmap(st, aQ, AF, WPH, aK, aV, LR)
    stamp(st, "Q done")
    poll(st, aPL, sFKVLD)
    stamp(st, "FKVpoll")
    Gr, Z, SG, GA = XF, XF + 64, XF + 32, XF + 48
    XT = v(XF + 72)
    nt = " nt" if OPT.get("kvnt") else ""
    for cc in range(8):
        if cc: st.s_add_u32(sT0, sKVLD, 2 * cc * KV_REC)
        st.buffer_load_dwordx4(v(Gr + 4 * cc, 4), aGK, WS, sT0 if cc else sKVLD, mods="offen sc1" + nt)
    for i in range(4):
        if i: st.s_add_u32(sT1, sGZ, 4 * i * KV_REC)
        st.buffer_load_dword(v(Z + i), aGZ, WS, sT1 if i else sGZ, mods="offen sc1" + nt)
    if G.TAG == "f":
        st.s_lshl_b32(sT2, sC, 7); st.s_add_u32(sT2, sT2, XCCT)
        st.buffer_load_dword(XT, vFL, WS, sT2, mods="offen sc1")
    nxt(st)
    st.s_mul_i32(sT0, sM, 576); st.s_add_u32(sT0, sT0, L_KVB)
    st.v_and_b32(vT, 31, vL)
    st.v_and_b32(vU, 1, vL); st.v_lshlrev_b32(vU, 4, vU); st.v_mov_b32(vV, 0x3f80); st.v_lshlrev_b32(vU, vU, vV); st.v_lshrrev_b32(vV, 1, vT)
    for i in range(4):
        st.v_cmp_eq_u32("vcc", i, vV); st.v_cndmask_b32(v(SG + i), 0, vU, "vcc")
    st.v_lshlrev_b32(vT, 4, vT)
    st.v_lshrrev_b32(vU, 5, vL)
    st.v_lshl_add_u32(aA, vU, 3, vT); st.v_add_u32(aA, sT0, aA)
    st.v_lshrrev_b32(aB, 1, vFL); st.v_add_u32(aB, sT0, aB)
    st.v_bfe_u32(vV, vL, 2, 1); st.v_cmp_eq_u32("vcc", vV, vU)
    st.v_mov_b32(vV, 544); st.v_cndmask_b32(vT, vV, vT, "vcc"); st.v_add_u32(aR1, L_KVB, vT)
    st.v_lshlrev_b32(vU, 4, vU); st.v_add_u32(aR2, L_KVB + 512, vU)
    for cc in range(8):
        st.v_mfma_f32_32x32x16_bf16(v(GA, 16), v(SG, 4), v(Gr + 4 * cc, 4), "0" if cc == 0 else v(GA, 16))
    st.v_add_f32(v(Z), v(Z), v(Z + 1)); st.v_add_f32(v(Z + 2), v(Z + 2), v(Z + 3)); st.v_add_f32(v(Z), v(Z), v(Z + 2))
    st.v_mov_b32(v(Z + 1), v(Z)); st.v_permlane32_swap_b32(v(Z), v(Z + 1)); st.v_add_f32(v(Z), v(Z), v(Z + 1))
    st.v_mov_b32(v(Z + 1), v(Z)); st.v_permlane16_swap_b32(v(Z), v(Z + 1)); st.v_add_f32(v(Z), v(Z), v(Z + 1))
    st.v_cvt_pk_bf16_f32(v(Z), v(Z), v(Z))
    st.ds_write_b16(aB, v(Z), mods="offset:512")
    st.v_cvt_pk_bf16_f32(v(GA), v(GA), v(GA + 1)); st.v_cvt_pk_bf16_f32(v(GA + 1), v(GA + 2), v(GA + 3))
    st.ds_write_b64(aA, v(GA, 2))
    if G.TAG == "f":
        OK = newlab("xok"); L = newlab("xpoll"); D = newlab("xdec")
        st.s_cmp_lg_u32(sPAIR, 0)
        st.mark("save", OK)
        st.s_cbranch_scc1(OK)
        st.s_add_u32(sT0, sNONCE, 14); st.s_add_u32(sT1, sT0, sXC)
        st.v_cmp_ne_u32("vcc", sT1, XT)
        if not OPT.get("slow"): st.s_cbranch_vccz(OK)
        st.label(L)
        st.buffer_load_dword(XT, vFL, WS, sT2, mods="offen sc1")
        st.wait(vm=0)
        st.v_subrev_u32(vT, sT0, XT)
        st.v_cmp_le_u32("vcc", 16, vT)
        st.s_cbranch_vccz(D)
        st.s_sub_u32(sCNT, sCNT, 1)
        st.s_cbranch_scc0(L)
        st.s_mov_b32(sCNT, 0)
        st.label(D)
        st.v_cmp_ne_u32("vcc", sT1, XT)
        st.mark("save", "toslow")
        if OPT.get("slow"): st.s_branch(".Lg_s")
        else: st.s_cbranch_vccnz(".Lg_s")
        st.mark("merge", OK)
        st.label(OK)
    else:
        st.mark("merge", "toslow")
        st.label(".Lg_s")
    barrier(st, "g", drain=True)
    stamp(st, "gather+B")

def p1c(st):
    PHQ = [aK, aK + 4, aV, aV + 4]
    KA, ZA, NUM, DEN = XF, XF + 16, 48, v(64)
    for u in range(4): st.ds_read_b128(v(KA + 4 * u, 4), aR1, mods=f"offset:{576*u}")
    for u in range(4): st.ds_read_b128(v(ZA + 4 * u, 4), aR2, mods=f"offset:{576*u}")
    st.v_mov_b32(DEN, f2u(1e-6)); st.v_mov_b32(v(65), 0)
    st.v_lshrrev_b32(vU, 5, vL); st.v_lshl_add_u32(aA, vU, 9, vL16)
    for u in range(4):
        st.v_mfma_f32_32x32x16_bf16(v(NUM, 16), v(KA + 4 * u, 4), v(PHQ[u], 4), "0" if u == 0 else v(NUM, 16))
        for i in range(4):
            dd = DEN if i % 2 == 0 else v(65)
            st.v_dot2_f32_bf16(dd, v(PHQ[u] + i), v(ZA + 4 * u + i), dd)
    st.v_add_f32(DEN, DEN, v(65))
    st.v_rcp_f32(DEN, DEN)
    for i in range(0, 16, 2): pk(st, "mul", NUM + i, bc(DEN), NUM + i)
    for i in range(8): st.v_cvt_pk_bf16_f32(v(NUM + i), v(NUM + 2 * i), v(NUM + 2 * i + 1))
    st.buffer_store_dwordx4(v(NUM, 4), aA, WS, sOST, mods=f"offen {G.SC}")
    st.buffer_store_dwordx4(v(NUM + 4, 4), aA, WS, sOST, mods=f"offen offset:512 {G.SC}", tset="o")
    ring_next(st, "trn")
    res_init(st, 16)
    st.s_lshl_b32(sT0, sM, 12); st.s_add_u32(sT0, sT0, L_PH); st.v_add_u32(aXW, sT0, vL16)
    st.buffer_store_dword(vNON, "off", WS, sFJ, mods=f"offset:128 {G.SC}", tneed="o")
    for r in (sKVST, sKVLD, sKZ, sGZ): st.s_add_u32(r, r, KV_P)
    st.s_add_u32(sFKVST, sFKVST, 256 * 128); st.s_add_u32(sFKVLD, sFKVLD, 256 * 128)

def small_items(nsteps, breg, accs=(16, 32)):
    items = []
    for k in range(nsteps):
        for t in ((1, 0) if k == nsteps - 1 else (0, 1)):
            items.append(dict(chunk=k // 8, off=(k % 8) * 4096, t=t, acc=accs[t], b=breg(k), first=k == 0 and t == 1))
    return items
def res_init(st, a):
    for i in range(8):
        st.v_lshlrev_b32(v(a + 2 * i), 16, v(RES + i)); st.v_and_b32(v(a + 2 * i + 1), 0xffff0000, v(RES + i))

def xepi(st, last):
    aB_, T, P = (96, 48, 16) if last else (32, 16, 48)
    aX = aXW
    for i in range(4): st.ds_write_b128(aX, v(aB_ + 4 * i, 4), mods=f"offset:{1024*i}")
    st.v_xor_b32(aX, 4096, aX)
    barrier(st, "X4" if last else "X2", drain=True)
    for i in range(4): st.ds_read_b128(v(P + 4 * i, 4), aX, mods=f"offset:{1024*i}")
    st.v_and_b32(aX, 31, vL); st.v_lshlrev_b32(aX, 4, aX); st.v_lshrrev_b32(vT, 5, vL); st.v_lshl_add_u32(aX, vT, 2, aX)
    for i in range(4):
        for k in (4 * i, 4 * i + 2): pk(st, "add", T + k, T + k, P + k)
        for k in (2 * i, 2 * i + 1): st.v_cvt_pk_bf16_f32(v(RES + k), v(T + 2 * k), v(T + 2 * k + 1))
    LF = newlab("fin")
    if last:
        st.mark("save", LF)
        st.s_cmp_eq_u32(sPAIR, 1); st.s_cbranch_scc1(LF)
    st.buffer_store_dwordx4(v(RES, 4), vL16, XS, sXST, mods=f"offen {G.SC}")
    st.buffer_store_dwordx4(v(RES + 4, 4), vL16, XS, sXST, mods=f"offen offset:1024 {G.SC}")
    S, Q, S2, Q2 = v(T), v(T + 1), v(T + 2), v(T + 3)
    st.v_dot2_f32_bf16(S, v(RES), sONE, 0); st.v_dot2_f32_bf16(Q, v(RES), v(RES), 0)
    st.v_dot2_f32_bf16(S2, v(RES + 1), sONE, 0); st.v_dot2_f32_bf16(Q2, v(RES + 1), v(RES + 1), 0)
    for i in range(2, 8, 2):
        st.v_dot2_f32_bf16(S, v(RES + i), sONE, S); st.v_dot2_f32_bf16(Q, v(RES + i), v(RES + i), Q)
        st.v_dot2_f32_bf16(S2, v(RES + i + 1), sONE, S2); st.v_dot2_f32_bf16(Q2, v(RES + i + 1), v(RES + i + 1), Q2)
    pk(st, "add", T, T, T + 2)
    st.v_permlane32_swap_b32(S, Q); st.v_add_f32(S, S, Q)
    st.buffer_store_dword(S, aX, WS, sSTST, mods=f"offen {G.SC}", tset="x")
    (p1a_pre if last else p3_pre)(st)
    st.buffer_store_dword(vNON, "off", WS, sFXST, mods=G.SC, tneed="x")
    if last:
        st.s_mov_b32(sPAIR, 1)
        st.s_branch(f".Lpair_{G.TAG}")
        st.label(LF); st.mark("restore", LF)
        st.v_and_b32(aX, 31, vL); st.v_lshlrev_b32(aX, 10, aX); st.v_lshrrev_b32(vT, 5, vL); st.v_lshl_add_u32(aX, vT, 4, aX)
        om = os_("om", "").replace("+", " ")
        st.buffer_store_dwordx4(v(RES, 4), aX, OUT, sOUTO, mods="offen " + om)
        st.buffer_store_dwordx4(v(RES + 4, 4), aX, OUT, sOUTO, mods="offen offset:32 " + om)

def p2(st):
    stamp(st, "o stored")
    poll(st, vFL, sFB, 128)
    stamp(st, "FOpoll")
    L = frag_loads(sHLD, [XF + 4 * k for k in range(16)], 2048, 2)
    gemm(st, small_items(16, lambda k: XF + 4 * k), "trn", 48, 6, 5, ready=[0, 1], loads=L, pre=oi("pre2", 10), hooks={1: nxt})
    stamp(st, "P2gemm")
    xepi(st, False)

def stream(st, items, af, nslots, depth, hooks, fill, budget, watch=None):
    n = len(items); nr = 0
    def pump(upto):
        nonlocal nr
        while nr < n and nr <= upto:
            items[nr]["rd"](st, af + 4 * (nr % nslots)); nr += 1
    pump(depth - 1)
    for i in range(n):
        it = items[i]
        acc = v(it["acc"], 16)
        st.v_mfma_f32_32x32x16_bf16(acc, v(af + 4 * (i % nslots), 4), v(it["b"], 4), "0" if it["first"] else acc)
        n0 = len(st.l)
        for h in hooks.get(i, []): h(st)
        pump(i + depth)
        fill.take(st, budget(i))
        if watch: watch(i, st.l[n0:])
    assert not fill.q

C1 = -2.0 * math.sqrt(2.0 / math.pi) * LOG2E
def p34(st):
    A = [16, 32, 48, 96]; AF = 64; NMP = 88; DEPTH = 5
    K1, K3, VE3, NM3 = v(92), v(93), v(94), v(95)
    at = oi("st3", 20)
    L = x_loads(st, STT, at)
    stamp(st, "x stored")
    poll(st, vFL, sFA)
    stamp(st, "FXpoll2")
    pre = oi("pre3", 10)
    for f in L[:pre]: f(st)
    nxt(st)
    barrier(st, "30")
    stamp(st, "B(30)")
    items = []; hooks = {}
    def hk(i, f): hooks.setdefault(i, []).append(f)
    def wide(a, off, step=0):
        def rd(st, r):
            if step:
                st.s_add_u32(sRING, sRING, 0x8000 * step); st.s_and_b32(sRING, sRING, 0x1ffff); st.v_add_u32(vA0, sRING, vL16)
            st.ds_read_b128(v(r, 4), a, mods=f"offset:{off}")
        return rd
    def mean(r):
        return dict(rd=lambda st, q: st.ds_read_b32(v(q), aCS3, mods=f"offset:{128*r}"), acc=A[r % 4], b=NMP, first=False)
    n2 = oi("n2", 10); k2 = 0; end = {}; use = {}
    def t2(k): return dict(rd=wide(vA1, k * 1024), acc=A[2], b=XF + 4 * k, first=k == 0)
    for k in range(32):
        use[k] = len(items)
        for t in range(2):
            items.append(dict(rd=wide(vA0, t * 16384 + (k % 16) * 1024, int(k == 16 and t == 0)), acc=A[t], b=XF + 4 * k, first=k == 0))
        if k == 15: g5 = len(items) - 1
        if (k + 1) * n2 // 32 > k2: items.append(t2(k2)); k2 += 1
    items += [mean(0), mean(1)]; end[0] = len(items) - 2; end[1] = len(items) - 1
    items += [t2(k) for k in range(k2, 32)] + [mean(2)]; end[2] = len(items) - 1
    for r in range(3, 6):
        items += [dict(rd=wide(vA0, k * 1024, (2 if r == 3 else 1) if k == 0 else 0), acc=A[r % 4], b=XF + 4 * k, first=k == 0) for k in range(32)]
        items.append(mean(r)); end[r] = len(items) - 1
    T5 = end[4] + 1; P4 = len(items)
    HI = [16 + 4 * i for i in range(4)] + [116, 88] + [XF + 4 * i for i in range(2)] + [32 + 4 * i for i in range(3)]
    breg = lambda k: XF + 4 * k if k < 32 else HI[k - 32]
    for n, it in enumerate(small_items(43, breg, (48, 96))):
        def rd(st, r, it=it, n=n):
            if n % 16 == 0: ring_next(st, "trn")
            a = vA1 if it["t"] else vA0
            st.ds_read_b64_tr_b16(v(r, 2), a, mods=f"offset:{it['off']}")
            st.ds_read_b64_tr_b16(v(r + 2, 2), a, mods=f"offset:{it['off']+512}")
        items.append(dict(rd=rd, acc=it["acc"], b=it["b"], first=it["first"]))
    for n, f in enumerate(L[pre:]): hk(2 * n + 1, f)
    fill = Filler()
    f = Stream()
    stats(f, STT, NM3, K1, VE3)
    f.v_and_b32(vU, 0xffff0000, NM3); f.v_sub_f32(NM3, NM3, vU); f.v_cndmask_b32(vU, vU, NM3, sHALF)
    f.v_cvt_pk_bf16_f32(v(NMP), vU, vU)
    f.v_mul_f32(K3, K1, K1); f.v_mul_f32(K1, f2u(C1), K1); f.v_mul_f32(K3, f2u(0.044715), K3); f.v_mul_f32(K3, K3, K1)
    z = Stream()
    for i in range(1, 4): z.v_mov_b32(v(NMP + i), 0)
    z.v_min_u32(aP4, 20, vFL)
    hk(2, lambda st: fill.add(z))
    hk(use[min(31, at + oi("sth3", 2))], lambda st: fill.add(f))
    hk(end[0] - 2, lambda st: fill.flush(st))
    TM = 112
    def epi(r):
        f = Stream(); a = A[r % 4]
        g = lambda i: v(a + i)
        u = lambda i: v(a + 8 + i)
        tm = lambda i: v(TM + i % 4)
        for t in range(16):
            ok = lambda d: 0 <= t - d < 8
            if ok(3): f.v_exp_f32(g(t - 3), g(t - 3))
            if ok(0): f.v_mul_f32(tm(t), g(t), g(t))
            if ok(1): f.v_fma_f32(tm(t - 1), tm(t - 1), K3, K1)
            if ok(0): f.v_mul_f32(u(t), g(t), u(t))
            if ok(5): f.v_rcp_f32(g(t - 5), g(t - 5))
            if ok(2): f.v_mul_f32(g(t - 2), tm(t - 2), g(t - 2))
            if ok(4): f.v_fma_f32(g(t - 4), g(t - 4), VE3, VE3)
            if ok(6): f.v_mul_f32(g(t - 6), g(t - 6), u(t - 6))
            if ok(7) and t % 2 == 0: f.v_cvt_pk_bf16_f32(u((t - 8) // 2), g(t - 8), g(t - 7))
            if t == 12 and r < 5: f.s_add_u32(sHS, sHST, 16384 * r)
        f.buffer_store_dwordx4(v(a + 8, 4), vL16, WS, sHS if r < 5 else sH5, mods=f"offen {G.SC} {os_('hm', '') if r < oi('hmr', 6) else ''}", tset=f"h{r}")
        return f
    def flag(r):
        f = Stream()
        f.buffer_store_dword(vNON, "off", WS, sFJ if r < 5 else sF5, mods=f"offset:{256+64*r} {G.SC}", tneed=f"h{r}")
        return f
    e = [epi(r) for r in range(6)]
    ri = Stream(); res_init(ri, 48)
    lag = oi("lag", 4)
    for r in range(6):
        parts = [e[r]] + ([ri] if r == 3 else [])
        hk(end[max(r, 1)] + lag, lambda st, parts=parts: [fill.add(p) for p in parts])
        hk(end[r], lambda st, r=r: stamp(st, f"t{r}"))
    hk(end[3], lambda st: fill.drain_until(st, e[0])); hk(end[4], lambda st: fill.drain_until(st, e[1]))
    hk(end[5] - 1, lambda st: fill.drain_until(st, ri))
    fd = [int(x) for x in os_("fd", "38,20,20,18,16,12").split(",")]; fpos = {}
    def watch(i, l):
        for r in range(6):
            if any(("t", f"h{r}") in x.dst for x in l): fpos[r] = i + fd[r]; hk(i + fd[r], lambda st, r=r: (stamp(st, f"f{r}a"), st.extend(flag(r)), stamp(st, f"f{r}b")))
    b3, b4 = oi("bud3", 16), oi("bud4", 16)
    def bud(i):
        b = oi("bud0", 12) if i < end[1] else b3 if i < P4 - DEPTH else b4
        if b % 4: b += 2 if i % 2 else -2
        return b - (4 if i in hooks and oi("budh", 1) else 0)
    o = oi("b4", 10)
    for i, name in ((g5 + oi("c1d", 4), "3a"), (end[1], "3b"), (end[2], "3c"), (end[3], "3d"), (end[4], "3f"), (end[5], "3g"),
                    (P4 + o, "4a"), (P4 + 16 + o, "4b"), (P4 + 32 + o, "4c"), (P4 + 48 + o, "4d"), (P4 + 64 + o, "4e")):
        hk(i, lambda st, name=name: (stamp(st, f"{name}a"), barrier(st, name), stamp(st, f"{name}b")))
    for i in (16, 32, 48, 64): hk(P4 + i, lambda st, i=i: stamp(st, f"q{i}"))
    HL = frag_loads(sHLD, [breg(k) for k in range(43)], 2048, 2)
    if OPT.get("noH"): HL = [lambda st: None] * 43
    ne = oi("early4", 12)
    ck = [T5 + oi("chkA", 10), P4 + oi("chk2", 0), P4 + oi("chk3", 16), P4 + oi("chk4", 42), P4 + oi("chk5", 65)]
    sl = oi("sl", 12); ev = float(OPT.get("ev4", 2)); pos = []
    for k in range(43):
        g = max(0, k // 8 - 1)
        p = ck[0] + 1 + k * float(OPT.get("ev3", 2)) if k < ne else pos[-1] + ev
        pos.append(max(p, ck[g]) if k < 40 else ck[4])
    pos = [int(p) for p in pos]
    hk(ck[0] - sl - 1, lambda st: (st.v_and_b32(vV, 31, vL), st.v_lshlrev_b32(vV, 2, vV)))
    for g, (addr, off) in enumerate(((vV, 256), (vFL, 384), (vFL, 448), (vFL, 512), (aP4, 576))):
        assert g == 0 or ck[g] - sl > ck[g - 1]
        if OPT.get("nochk"): continue
        hk(ck[g] - sl, lambda st, addr=addr, off=off: st.buffer_load_dword(vS4, addr, WS, sFB, mods=f"offen offset:{off} sc1"))
        hk(ck[g], lambda st, addr=addr, off=off, g=g: (stamp(st, f"k{g}a"), soft_check(st, vS4, addr, sFB, off), stamp(st, f"k{g}b")))
    def last(st):
        assert 5 in fpos and fpos[5] < ck[4]
        nxt(st)
    hk(ck[4], last)
    for k in range(43):
        assert pos[k] < P4 + 2 * k and (k >= 32 or pos[k] >= T5 + k), (k, pos[k])
        hk(pos[k], HL[k])
    hk(pos[32] - 1, lambda st: fill.drain_until(st, e[4]))
    stream(st, items, AF, 6, DEPTH, hooks, fill, bud, watch)
    if G.TAG == "f": print("T3", end[2] + 1, "T4", end[3] + 1, "T5", T5, "P4", P4, "flags", fpos, "checks", ck, "loads", pos, file=sys.stderr)
    stamp(st, "P4gemm")
    xepi(st, True)

def body(st, first):
    stop = OPT["stop"]
    T = G.TAG
    st.label(f".Lpair_{T}"); st.mark("reset")
    G.SEQ = SEQA; p1a(st)
    G.SEQ = SEQC
    if first:
        st.mark("merge", "from0"); st.label(".Lk_f")
    p1b(st); p1c(st)
    if stop == "p1": st.s_branch(".Lend"); return
    p2(st)
    if stop == "p2": st.s_branch(".Lend"); return
    p34(st)
    stamp(st, "end")
    stamp(st, 63, True)
    if OPT.get("dbg") == "2":
        if OPT.get("wb"):
            st.wait(vm=0); st.raw("    buffer_wbl2 sc0 sc1"); st.raw("    s_waitcnt vmcnt(0)")
        L = newlab("pad")
        st.s_mov_b32(s(87), 7000)
        if OPT.get("early"): st.s_cmp_lt_u32(s(2), int(OPT["early"])); st.s_cselect_b32(s(87), 6000, s(87))
        if OPT.get("cap"):
            if OPT.get("capr"): st.s_sub_u32(s(43), s(43), s(42))
            else: st.s_sub_u32(s(43), s(43), s(86)); st.s_lshr_b32(s(43), s(43), 2)
            st.s_min_u32(s(43), s(43), 40000); st.s_add_u32(s(87), s(87), s(43))
        st.label(L)
        st.s_memrealtime(s(100, 2)); st.wait(lgkm=0); st.s_sub_u32(s(100), s(100), s(42)); st.s_cmp_lt_u32(s(100), s(87)); st.s_cbranch_scc1(L)
    elif OPT.get("dbg"):
        st.s_load_dwordx2(s(44, 2), s(0, 2), 72); st.s_memrealtime(s(100, 2)); st.wait(lgkm=0)
        st.s_and_b32(s(45), s(45), 0xffff); st.s_mov_b32(s(46), 256); st.s_mov_b32(s(47), 0x20000)
        st.s_not_b32(s(42), s(42)); st.v_mov_b32(vT, s(42)); st.v_mov_b32(vU, s(100)); st.s_not_b32(s(100), s(100)); st.v_mov_b32(vV, s(100))
        st.raw("    buffer_atomic_umax v13, off, s[44:47], 0")
        st.raw("    buffer_atomic_umax v14, off, s[44:47], 0 offset:4")
        st.raw("    buffer_atomic_umax v15, off, s[44:47], 0 offset:8")
        st.s_not_b32(s(42), s(42)); st.v_mov_b32(vT, s(42))
        st.raw("    s_nop 4")
        st.raw("    buffer_atomic_umax v13, off, s[44:47], 0 offset:12")
    st.s_or_b32(sT0, s(2), sW); st.s_cmp_lg_u32(sT0, 0); st.s_cbranch_scc1(".Lend")
    st.v_add_u32(vNON, 22, vNON)
    st.buffer_store_dword(vNON, "off", WS, 0, mods=f"offset:{EPOCH} sc1")
    st.s_branch(".Lend")

SEQ0, SEQA, SEQC = [], [], []
def compute(st):
    G.SEQ = SEQ0
    p1a0(st)
    st.mark("save", "from0")
    st.s_branch(".Lk_f")
    G.SC, G.TAG = "", "f"
    body(st, True)

def compute_slow(st):
    G.SC, G.TAG, G.REC = "sc1", "s", False
    body(st, False)

sW8, sQK, sWOb, sGU, sWD5, sWI = s(74), s(75), s(76), s(77), s(78), s(79)
sWDb = [s(80 + i) for i in range(4)]
GU = 64
vKV, vQ, vW, vWR0, vWR1 = v(2), v(4), v(5), v(6), v(7)
vGG = [v(8), v(9), v(10)]; vGL = [v(16), v(17), v(18)]; vGT = v(19)
vC0, vC1, vCW, vCR = v(20), v(21), v(22), v(23)
SEL = 24; CACC = 28
FRS = [36, 40, 44, 48, 52]; WRAW = 56
vDUM = [v(11), v(60), v(61), v(62)]
GSTR = 448

def LDSW(st):
    for i in reversed(st.l):
        if i.name == "s_barrier" or (i.name == "s_waitcnt" and "lgkmcnt(0)" in i.ops[0]): return False
        if i.kind == "ds": return True
    return False

def POL(srd):
    k = {WQ: "pq", WO_: "po", WD: "pd", WG: "pg", WU: "pg"}.get(srd)
    x = os_(k, "") if k else ""
    return " " + x.replace("+", " ") if x else ""

def loader(st):
    st.v_lshrrev_b32(vT, 3, vL); st.v_bfe_u32(vU, vL, 4, 1); st.v_lshlrev_b32(vU, 2, vU); st.v_and_b32(vV, 7, vL); st.v_xor_b32(vU, vU, vV)
    st.v_mul_u32_u24(vKV, 3072, vT); st.v_and_b32(vV, 3, vU); st.v_lshl_add_u32(vKV, vV, 4, vKV)
    st.v_lshrrev_b32(vV, 2, vU); st.v_mul_u32_u24(vQ, 256 * 3072, vV); st.v_add_u32(vQ, vQ, vKV)
    st.v_lshl_add_u32(vKV, vV, 10, vKV); st.v_add_u32(vKV, 1024, vKV)
    st.v_lshlrev_b32(vW, 10, vT); st.v_lshl_add_u32(vW, vU, 4, vW)
    st.s_lshl_b32(sW8, sM, 13)
    st.s_mul_i32(sQK, sM, 64 * 3072); st.s_lshl_b32(sT0, sJ, 6); st.s_add_u32(sQK, sQK, sT0)
    sKVr = [s(84), s(85)]; sQJ = s(88); vQ0 = v(GU)
    rot(st, s(89), sT1); st.s_add_u32(s(89), s(89), sM)
    st.s_lshl_b32(sQJ, sJ, 6)
    st.s_and_b32(sT1, s(89), 7); st.s_mul_i32(sKVr[0], sT1, 64 * 3072); st.s_add_u32(sKVr[0], sKVr[0], sQJ)
    st.s_and_b32(sWI, sC, 1); st.s_lshl_b32(sWI, sWI, 4); st.s_add_u32(sWI, sWI, sJ); st.s_lshl_b32(sWI, sWI, 2); st.s_add_u32(sWI, sWI, sM)
    if not oi("fast0", 1) or os_("e0", "Tkv,c0,non,wld"):
        st.wait(lgkm=0)
        srds(st, [WQ])
    chunks = []
    for pair in range(2):
        chunks += [("kv", 0), ("kv", 1), ("q", 0), ("wo", 0), ("wo", 1), ("gp", 0), ("gp", 1)] + [("gs", r) for r in range(2, 6)]
        chunks += [("wd", r) for r in range(6)]
    N = len(chunks)
    issued = set()
    SQ = []
    def spf(n):
        for _ in range(min(n, len(SQ))): SQ.pop(0)()
    def squeue(kind):
        if kind == "k":
            for i in range(64):
                def f(i=i):
                    if i == 0:
                        st.s_lshr_b32(s(90), sWI, 4); st.s_mul_i32(s(90), s(90), 3072); st.s_and_b32(s(91), sWI, 15); st.s_lshl_b32(s(91), s(91), 7)
                        st.s_add_u32(s(91), s(91), s(90)); st.s_add_u32(s(44), s(46), s(91)); st.s_addc_u32(s(45), s(47), 0)
                    if i == 32: st.s_add_u32(s(44), s(44), 32 * 24576); st.s_addc_u32(s(45), s(45), 0)
                    x = Ins("s_load_dwordx2", [s(86, 2), s(44, 2), hex(i % 32 * 24576 + 1024 + 60)]); x.dst = set(); st.l.append(x)
                SQ.append(f)
            return
        base, cnt = dict(w=(46, 96), o=(50, 32), d=(58, 86), g=(54, 86), u=(56, 86))[kind[0]]
        if len(kind) > 1: cnt = int(kind[1:])
        for i in range(cnt):
            def f(i=i):
                if i == 0:
                    st.s_lshl_b32(s(91), sWI, 7); st.s_add_u32(s(44), s(base), s(91)); st.s_addc_u32(s(45), s(base + 1), 0)
                if i == 48: st.s_add_u32(s(44), s(44), 48 * 16384); st.s_addc_u32(s(45), s(45), 0)
                x = Ins("s_load_dwordx2", [s(86, 2), s(44, 2), hex(i % 48 * 16384 + 60)]); x.dst = set(); st.l.append(x)
            SQ.append(f)
    def dma(n, addr, srd, offs):
        slot = (n % 4) * 32768
        for i, (base, off, lds) in enumerate(offs):
            st.s_add_u32("m0", lds[0], slot + lds[1])
            st.s_add_u32(sT0, base, off)
            st.buffer_load_dwordx4(addr, srd, sT0, mods="offen" + POL(srd) + " lds", tset=f"c{n}" if i == len(offs) - 1 else None)
    def issue(n):
        if n >= N: return
        assert n not in issued; issued.add(n)
        kind, a = chunks[n]
        if kind == "kv" and n < 17:
            if a == 1: st.s_xor_b32(sT1, s(89), 4); st.s_and_b32(sT1, sT1, 7); st.s_mul_i32(sKVr[1], sT1, 64 * 3072); st.s_add_u32(sKVr[1], sKVr[1], sQJ)
            dma(n, vKV, WQ, [(sKVr[a], 8 * i * 3072, (sW8, 1024 * i)) for i in range(8)])
        elif kind == "q" and n < 17:
            st.v_add_u32(vT, sKVr[0], vQ); st.v_subrev_u32(vU, 512 * 3072, vT); st.v_min_u32(vQ0, vT, vU)
            dma(n, vQ0, WQ, [("0", 8 * i * 3072, (sW8, 1024 * i)) for i in range(8)])
        elif kind == "kv": dma(n, vKV, WQ, [(sQK, (256 * a + 8 * i) * 3072, (sW8, 1024 * i)) for i in range(8)])
        elif kind == "q": dma(n, vQ, WQ, [(sQK, 8 * i * 3072, (sW8, 1024 * i)) for i in range(8)])
        elif kind == "wo": dma(n, vW, WO_, [(sWOb, (256 * a + 8 * i) * 1024, (sW8, 1024 * i)) for i in range(8)])
        elif kind == "wd" and a < 5: dma(n, vW, WD, [(sWDb[i // 2], (16 * a + 8 * (i % 2)) * 1024, (sW8, 1024 * i)) for i in range(8)])
        elif kind == "wd":
            slot = (n % 4) * 32768
            for e in range(3):
                st.s_mul_i32(sT1, sM, 3); st.s_add_u32(sT1, sT1, e)
                st.s_lshr_b32(sT0, sT1, 1); st.s_mul_i32(sT0, sT0, 96 * 1024); st.s_and_b32(sT2, sT1, 1); st.s_lshl_b32(sT2, sT2, 13)
                st.s_add_u32(sT0, sT0, sT2); st.s_add_u32(sT0, sT0, sWD5)
                st.s_lshl_b32(sT1, sT1, 10); st.s_add_u32("m0", sT1, slot)
                st.buffer_load_dwordx4(vW, WD, sT0, mods="offen" + POL(WD) + " lds", tset=f"c{n}" if e == 2 else None)
        else:
            slot = n % 4; wr = vWR1 if slot >= 2 else vWR0; so = (slot & 1) * 32768
            for t in range(2):
                for k in range(4):
                    g, fr = (4 * a + k, t) if kind == "gp" else (4 * t + k, a)
                    st.ds_write_b128(wr, v(GU + 24 * g + 4 * fr, 4), mods=f"offset:{so + t*16384 + k*1024}", tset=f"c{n}" if (t, k) == (1, 3) else None)
    FREE = [GU + 24 * g + 4 * fr for h in (0, 2) for g in range(8) for fr in (h, h + 1)]
    def stg(n):
        a = chunks[n][1]
        if n < 17:
            assert a == 5; return [48, 52, 56]
        o = {3: 0, 4: 8, 2: 16, 5: 24}[a]
        return FREE[o:o + 8]
    def stage(n):
        kind, a = chunks[n]; assert kind == "wd"
        r = stg(n)
        if a < 5:
            for i in range(8):
                st.s_add_u32(sT0, sWDb[i // 2], (16 * a + 8 * (i % 2)) * 1024)
                st.buffer_load_dwordx4(v(r[i], 4), vW, WD, sT0, mods="offen")
        else:
            for e in range(3):
                st.s_mul_i32(sT1, sM, 3); st.s_add_u32(sT1, sT1, e)
                st.s_lshr_b32(sT0, sT1, 1); st.s_mul_i32(sT0, sT0, 96 * 1024); st.s_and_b32(sT2, sT1, 1); st.s_lshl_b32(sT2, sT2, 13)
                st.s_add_u32(sT0, sT0, sT2); st.s_add_u32(sT0, sT0, sWD5)
                st.buffer_load_dwordx4(v(r[e], 4), vW, WD, sT0, mods="offen")
    def unstage(n):
        kind, a = chunks[n]; r = stg(n); slot = (n % 4) * 32768
        assert n not in issued; issued.add(n)
        if a < 5: st.s_add_u32(sT0, sW8, slot)
        else: st.s_mul_i32(sT0, sM, 3072); st.s_add_u32(sT0, sT0, slot)
        st.v_add_u32(vT, sT0, vL16)
        for i in range(8 if a < 5 else 3): st.ds_write_b128(vT, v(r[i], 4), mods=f"offset:{1024*i}")
    def prologue():
        F0 = oi("fast0", 1)
        if F0:
            if os_("e0", "Tkv,c0,non,wld"):
                srds(st, [WS, WP, WO_, WG, WU, WD, OUT])
                run(os_("e0", "Tkv,c0,non,wld").split(","), 0)
        else:
            issue(0)
            if oi("kv1first", 1): issue(1)
        if not oi("cfirst", 1):
            st.mark("save", "ld1"); st.s_branch(".Lloader")
            st.label(".Lcomp"); st.mark("reset")
            compute(st)
            st.label(".Lloader"); st.mark("restore", "ld1")
        if not F0 and not oi("kv1first", 1): issue(1)
        def late():
            if not (F0 and os_("e0", "Tkv,c0,non,wld")):
                st.wait(lgkm=0)
                srds(st, [WQ, WS, WP, WO_, WG, WU, WD])
            stamp_base(st)
            stamp(st, "start", who="l", pair=0)
        if not F0 or os_("e0", "Tkv,c0,non,wld"): late()
        st.s_lshl_b32(sWOb, sM, 16); st.s_lshl_b32(sT0, sCG, 7); st.s_add_u32(sWOb, sWOb, sT0)
        for e in range(4):
            st.s_lshl_b32(sT1, sM, 2); st.s_add_u32(sT1, sT1, e)
            st.s_mul_i32(sT2, sT1, 6); st.s_mul_i32(sT3, sT1, 5); st.s_add_u32(sT3, sT3, 6); st.s_min_u32(sT2, sT2, sT3)
            st.s_lshl_b32(sT2, sT2, 14); st.s_add_u32(sWDb[e], sT2, sT0)
        st.s_add_u32(sWD5, sT0, 80 * 1024)
        st.s_mul_i32(sT2, sJ, 6); st.s_mul_i32(sT3, sJ, 5); st.s_add_u32(sT3, sT3, 6); st.s_min_u32(sT2, sT2, sT3)
        st.s_lshl_b32(sT2, sT2, 5); st.s_mul_i32(sGU, sM, 64 * 2752); st.s_add_u32(sGU, sGU, sT2)
        st.s_cmp_eq_u32(sT6, 1); st.s_cselect_b32(sT1, 12, 10)
        st.s_lshl_b32(sT2, sM, 12); st.s_add_u32(sT2, sT2, 32768)
        for i in range(3):
            st.v_add_u32(vT, 64 * i, vL); st.v_mul_u32_u24(vU, 5462, vT); st.v_lshrrev_b32(vU, 16, vU)
            st.v_mul_u32_u24(vV, 12, vU); st.v_sub_u32(vT, vT, vV)
            st.v_mul_u32_u24(vGG[i], 2752, vU); st.v_lshl_add_u32(vGG[i], vT, 4, vGG[i])
            st.v_cmp_gt_u32("vcc", sT1, vT); st.v_mov_b32(vV, 0x80000000); st.v_cndmask_b32(vGG[i], vV, vGG[i], "vcc")
            st.v_and_b32(vV, 7, vU); st.v_mul_u32_u24(vGL[i], GSTR, vV); st.v_lshrrev_b32(vV, 3, vU); st.v_lshl_add_u32(vGL[i], vV, 14, vGL[i])
            st.v_lshrrev_b32(vV, 1, vT); st.v_lshl_add_u32(vGL[i], vV, 6, vGL[i])
            st.v_and_b32(vV, 1, vT); st.v_lshl_add_u32(vGL[i], vV, 4, vGL[i]); st.v_add_u32(vGL[i], sT2, vGL[i])
        lane_tr(st, vGT, None, "nat", stride=GSTR, hstride=16384); st.v_add_u32(vGT, sT2, vGT)
        lane_tr(st, vC0, vC1, "qkv")
        st.s_lshl_b32(sT0, sM, 12); st.v_add_u32(vWR0, sT0, vL16); st.v_add_u32(vWR1, 65536, vWR0)
        st.v_bfe_u32(vT, vL, 4, 1); st.v_and_b32(vU, 1, vL); st.v_cmp_eq_u32("vcc", vT, vU)
        st.v_mov_b32(vV, 0x3f803f80)
        for i in range(4): st.v_cndmask_b32(v(SEL + i), 0, vV, "vcc")
        st.v_lshlrev_b32(vCW, 6, vT); st.v_lshl_add_u32(vCW, vU, 5, vCW); st.v_lshrrev_b32(vT, 5, vL); st.v_lshl_add_u32(vCW, vT, 4, vCW)
        if F0 and not os_("e0", "Tkv,c0,non,wld"): late()
    def publish():
        L = newlab("pub")
        st.v_add_u32(vNON, sXC, vNON); st.v_add_u32(vNON, 16, vNON)
        st.s_lshl_b32(sT0, sC, 7); st.s_lshl_b32(sT1, sJ, 2); st.s_add_u32(sT0, sT0, sT1); st.s_add_u32(sT0, sT0, XCCT)
        st.s_cmp_lg_u32(sM, 0); st.mark("save", L); st.s_cbranch_scc1(L)
        st.buffer_store_dword(vNON, "off", WS, sT0, mods="sc1")
        st.mark("merge", L); st.label(L)
    dn = [0]
    def dum():
        dn[0] += 1
        return vDUM[dn[0] % 4]
    def tload(addr, srd, soff):
        i = Ins("buffer_load_dword", [dum(), addr, srd, str(soff)], "offen" + POL(srd)); i.dst = set(); st.l.append(i)
    def touch(kind):
        if kind == "wd":
            st.s_mul_i32(sT0, sWI, 86 * 128); st.v_lshlrev_b32(vT, 7, vL); tload(vT, WD, sT0)
            st.v_min_u32(vU, 21, vL); st.v_lshlrev_b32(vU, 7, vU); st.s_add_u32(sT0, sT0, 8192); tload(vU, WD, sT0)
        elif kind[:2] == "wd":
            n = int(kind[2:]); c = 86 - n; assert c <= 64
            st.s_mul_i32(sT0, sWI, c * 128); st.s_add_u32(sT0, sT0, n * 16384); st.v_min_u32(vT, c - 1, vL); st.v_lshlrev_b32(vT, 7, vT); tload(vT, WD, sT0)
        elif kind == "out":
            st.s_lshl_b32(sT0, sC, 4); st.s_add_u32(sT0, sT0, sJ); st.s_lshl_b32(sT0, sT0, 2); st.s_add_u32(sT0, sT0, sM); st.s_lshl_b32(sT0, sT0, 11)
            st.v_lshlrev_b32(vT, 5, vFL); tload(vT, OUT, sT0)
        elif kind in ("g", "u"):
            D = WG if kind == "g" else WU
            st.s_mul_i32(sT0, sWI, 86 * 128); st.v_lshlrev_b32(vT, 7, vL); tload(vT, D, sT0)
            st.v_min_u32(vU, 21, vL); st.v_lshlrev_b32(vU, 7, vU); st.s_add_u32(sT0, sT0, 8192); tload(vU, D, sT0)
        elif kind in ("ga", "gb"):
            st.s_mul_i32(sT0, sWI, 43 * 128); st.v_min_u32(vT, 42, vL); st.v_lshlrev_b32(vT, 7, vT)
            if kind == "gb": st.s_add_u32(sT0, sT0, 256 * 2752)
            tload(vT, WG, sT0); tload(vT, WU, sT0)
        elif kind == "kv":
            st.v_lshrrev_b32(vT, 4, vL); st.v_mul_u32_u24(vT, 3072, vT); st.v_lshl_add_u32(vT, vFL, 5, vT)
            st.s_mul_i32(sT0, sWI, 4 * 3072); st.s_add_u32(sT0, sT0, 1024); tload(vT, WQ, sT0)
        elif kind == "q":
            st.v_bfe_u32(vT, vL, 3, 2); st.v_mul_u32_u24(vT, 3072, vT); st.v_and_b32(vU, 7, vL); st.v_lshl_add_u32(vT, vU, 7, vT)
            st.s_mul_i32(sT0, sWI, 4 * 3072); tload(vT, WQ, sT0)
        elif kind == "wo":
            st.v_and_b32(vT, 31, vL); st.v_lshlrev_b32(vT, 7, vT); st.s_lshl_b32(sT0, sWI, 12); tload(vT, WO_, sT0)
        elif kind == "h":
            st.s_lshl_b32(sT0, sC, 4); st.s_add_u32(sT0, sT0, sJ); st.s_lshl_b32(sT0, sT0, 2); st.s_add_u32(sT0, sT0, sM)
            st.s_mul_i32(sT0, sT0, 43 * 128); st.s_add_u32(sT0, sT0, HB)
            st.v_min_u32(vT, 42, vL); st.v_lshlrev_b32(vT, 7, vT); tload(vT, WS, sT0)
        elif kind in ("h0", "h1"):
            n, o = (16, 0) if kind == "h0" else (27, 32768)
            st.s_lshl_b32(sT0, sC, 2); st.s_add_u32(sT0, sT0, sM); st.s_mul_i32(sT0, sT0, HB_TB)
            st.s_mul_i32(sT1, sJ, n * 128); st.s_add_u32(sT0, sT0, sT1); st.s_add_u32(sT0, sT0, HB + o)
            st.v_min_u32(vT, n - 1, vL); st.v_lshlrev_b32(vT, 7, vT); tload(vT, WS, sT0)
        elif kind == "x" and XO:
            st.s_lshl_b32(sT0, sC, 4); st.s_add_u32(sT0, sT0, sJ); st.s_lshl_b32(sT0, sT0, 2); st.s_add_u32(sT0, sT0, sM)
            st.s_lshl_b32(sT1, sT0, 11); st.v_lshlrev_b32(vT, 5, vFL); tload(vT, OUT, sT1)
            st.s_lshl_b32(sT2, sT0, 8); st.s_add_u32(sT2, sT2, ST)
            st.s_lshl_b32(sT3, sC, 2); st.s_add_u32(sT3, sT3, sM); st.s_lshl_b32(sT3, sT3, 10); st.s_add_u32(sT3, sT3, FL - 2 * 128)
            st.v_mov_b32(vU, sT2); st.v_mov_b32(vV, sT3); st.v_cmp_le_u32("vcc", 2, vL); st.v_cndmask_b32(vU, vU, vV, "vcc")
            st.v_min_u32(vT, 6, vL); st.v_lshl_add_u32(vT, vT, 7, vU); tload(vT, WS, 0)
        elif kind == "x":
            st.s_lshl_b32(sT0, sC, 4); st.s_add_u32(sT0, sT0, sJ); st.s_lshl_b32(sT0, sT0, 2); st.s_add_u32(sT0, sT0, sM)
            st.s_lshl_b32(sT1, sT0, 11); st.s_add_u32(sT1, sT1, XB)
            st.s_lshl_b32(sT2, sT0, 8); st.s_add_u32(sT2, sT2, ST - 16 * 128)
            st.s_lshl_b32(sT3, sC, 2); st.s_add_u32(sT3, sT3, sM); st.s_lshl_b32(sT3, sT3, 10); st.s_add_u32(sT3, sT3, FL - 18 * 128)
            st.v_mov_b32(vU, sT1); st.v_mov_b32(vV, sT2); st.v_cmp_le_u32("vcc", 16, vL); st.v_cndmask_b32(vU, vU, vV, "vcc")
            st.v_mov_b32(vV, sT3); st.v_cmp_le_u32("vcc", 18, vL); st.v_cndmask_b32(vU, vU, vV, "vcc")
            st.v_min_u32(vT, 22, vL); st.v_lshl_add_u32(vT, vT, 7, vU); tload(vT, WS, 0)
        elif kind == "code":
            st.s_getpc_b64(s(100, 2))
            L = newlab("pc")
            st.label(L)
            st.raw(f"    s_sub_u32 s100, s100, {L}-{NAME}_kernel")
            st.raw("    s_subb_u32 s101, s101, 0")
            st.v_lshlrev_b32(vT, 7, vL); st.s_lshl_b32(sT0, sM, 13); st.v_add_u32(vT, sT0, vT)
            i = Ins("global_load_dword", [dum(), vT, s(100, 2)]); i.dst = set(); st.l.append(i)
            st.v_add_u32(vU, 32768, vT); st.v_min_u32(vU, f".Lslow-{NAME}_kernel", vU)
            i = Ins("global_load_dword", [dum(), vU, s(100, 2)]); i.dst = set(); st.l.append(i)
    gl = []
    for g in range(8):
        k0 = (16 * (g // 4) + (g % 4)) * 16
        for m_, srd in enumerate((WG, WU)):
            for i in range(3):
                def f(g=g, k0=k0, m_=m_, srd=srd, i=i):
                    if i == 0: st.s_add_u32(sLD, sGU, k0 * 2752)
                    st.buffer_load_dwordx4(v(GU + 24 * g + 12 * m_ + 4 * i, 4), vGG[i], srd, sLD, mods="offen" + POL(srd))
                gl.append(f)
    def gu_loads(cnt):
        for _ in range(min(cnt, len(gl))):
            f = gl.pop(0)
            if not OPT.get("noG"): f()
    def colsum(n, steps, first, lo, hi, dst=None):
        L = newlab("cs")
        st.s_sub_u32(sT0, sM, lo); st.s_cmp_ge_u32(sT0, hi - lo); st.mark("save", L); st.s_cbranch_scc1(L)
        nf = len(FRS)
        def rd(k):
            a, off = steps[k]; r = FRS[k % nf]
            st.ds_read_b64_tr_b16(v(r, 2), a, mods=f"offset:{off}"); st.ds_read_b64_tr_b16(v(r + 2, 2), a, mods=f"offset:{off+512}")
        for k in range(nf - 1): rd(k)
        for k in range(len(steps)):
            acc = v(CACC + 4 * (k & 1), 4)
            st.v_mfma_f32_16x16x32_bf16(acc, v(FRS[k % nf], 4), v(SEL, 4), "0" if first and k < 2 else acc)
            if k + nf - 1 < len(steps): rd(k + nf - 1)
        if dst is not None:
            for i in range(4): st.v_add_f32(v(CACC + i), v(CACC + i), v(CACC + 4 + i))
            st.ds_write_b128(dst, v(CACC, 4))
        st.mark("merge", L); st.label(L)
    def transpose(g):
        b = GU + 24 * g
        for m_ in range(2):
            for i in range(3): st.ds_write_b128(vGL[i], v(b + 12 * m_ + 4 * i, 4), mods=f"offset:{32*m_}")
        for t in range(6):
            for u in range(2): st.ds_read_b64_tr_b16(v(b + 4 * t + 2 * u, 2), vGT, mods=f"offset:{u*4*GSTR + t*64}")
    def tsum(g):
        b = GU + 24 * g
        for t in range(6):
            st.v_mfma_f32_16x16x32_bf16(v(CACC + 4 * t, 4), v(b + 4 * t, 4), v(SEL, 4), "0" if g == 0 else v(CACC + 4 * t, 4))
    tr_next = [0]
    def transposes(cnt):
        gs = list(range(tr_next[0], min(8, tr_next[0] + cnt))); tr_next[0] += len(gs)
        for i, g in enumerate(gs):
            transpose(g)
            if i > 0: tsum(gs[i - 1])
        tsum(gs[-1])
    def gu_partial():
        st.s_mul_i32(sT0, sM, 768); st.s_add_u32(sT0, sT0, L_VB); st.v_add_u32(vT, sT0, vCW)
        for i in range(6): st.ds_write_b128(vT, v(CACC + 4 * i, 4), mods=f"offset:{128*i}")
    def gu_reduce():
        st.v_min_u32(vCR, 6 * 128 - 16, vL16)
        st.v_add_u32(vT, L_VB, vCR)
        for w in range(4): st.ds_read_b128(v(CACC + 4 * w, 4), vT, mods=f"offset:{w*768}")
        for i in range(4):
            st.v_add_f32(v(CACC + i), v(CACC + i), v(CACC + 4 + i)); st.v_add_f32(v(CACC + 8 + i), v(CACC + 8 + i), v(CACC + 12 + i))
        for i in range(4): st.v_add_f32(v(CACC + i), v(CACC + i), v(CACC + 8 + i))
        for i in range(4):
            st.v_and_b32(v(CACC + 4 + i), 0xffff0000, v(CACC + i)); st.v_sub_f32(v(CACC + i), v(CACC + i), v(CACC + 4 + i))
            st.v_cvt_pk_bf16_f32(v(CACC + i), v(CACC + 4 + i), v(CACC + i))
        st.v_and_b32(vT, 0x380, vCR); st.v_and_b32(vU, 0x30, vCR); st.v_lshl_add_u32(vT, vU, 1, vT)
        st.v_bfe_u32(vU, vCR, 6, 1); st.v_lshl_add_u32(vT, vU, 4, vT); st.v_add_u32(vT, L_CS + 384, vT)
        st.ds_write_b128(vT, v(CACC, 4))
    def cs_kv(a):
        if a == 0:
            st.s_lshl_b32(sT0, sM, 6); st.v_xor_b32(vCR, sT0, vC0)
        else:
            st.s_lshl_b32(sT0, sM, 7); st.s_add_u32(sT0, sT0, L_CS); st.v_add_u32(vV, sT0, vCW)
        colsum(a, [(vCR, 32768 * a + 2048 * k) for k in range(16)], a == 0, 0, 2, dst=vV if a == 1 else None)
    def cs_q():
        st.v_add_u32(vT, 65536, vC0); st.v_add_u32(vU, 65536, vC1); st.v_add_u32(vV, L_CS + 256, vCW)
        colsum(2, [(a, 2048 * k) for k in range(16) for a in (vT, vU)], True, 2, 3, dst=vV)

    need = {"a0": [0], "a1": [1], "g": [3, 4], "30": [5, 6, 7, 8], "3c": [9], "3d": [10], "3f": [11], "4a": [12], "4b": [13], "4c": [14], "4d": [15], "4e": [16]}
    S0 = os_("s0", "start:c1;a0:c2,csk0;a1:csk1,wst,sigA,pub,G8,sigq,G16,wsig,X2,G12,X2,G12,X2,c3,c4,X2,Th0,Tx;g:part,c5,c6,Qk,S32;X2:c7,c8;")
    S0 += os_("s0b", "30:red,wst;3a:c9,Twd,Th1,nd;3b:c10,nd;3d:c11,c12;3f:c13;3g:c14;4a:S8;4b:c15,S8;4c:c16,S8;4d:S8;4e:c17;X4:c18")
    S1 = os_("s1", "a2:c2,sig,c3,c4;g:c5,c6;X2:c7,c8;")
    S1 += os_("s1b", "3a:c9,Twd,nd;3b:c10,nd;3c:c11;3d:c12;3f:c13;3g:c14;4b:c15;4c:c16")
    def acts(txt):
        d = {}
        for part in txt.split(";"):
            k, _, l = part.partition(":"); d[k] = l.split(",")
        return d
    DR = [False]
    def run(lst, o):
        for a in lst:
            DR[0] = False
            if a == "q": issue(2)
            elif a == "pub": publish()
            elif a == "wld": st.s_lshl_b32(sT0, sJ, 10); st.buffer_load_dwordx4(v(WRAW, 4), vL16, WP, sT0, mods="offen")
            elif a == "wst":
                st.v_bfe_u32(vT, vL, 3, 2); st.v_mul_u32_u24(vT, 576, vT); st.v_lshrrev_b32(vU, 5, vL); st.v_lshl_add_u32(vT, vU, 7, vT)
                st.v_and_b32(vU, 112, vL16); st.v_add_u32(vT, vT, vU); st.v_add_u32(vT, L_KVB, vT)
                st.ds_write_b128(vT, v(WRAW, 4))
            elif a == "non": st.buffer_load_dword(vNON, "off", WS, 0, mods=f"offset:{EPOCH} sc1")
            elif a == "sig":
                st.l.append(Ins("s_nop", ["0"], tneed=f"c{o+2}")); signal(st, 1 + o // 17)
            elif a == "sigA": signal(st, 1, 16)
            elif a == "sigq":
                L = newlab("sq")
                st.l.append(Ins("s_nop", ["0"], tneed=f"c{o+2}")); signal(st, 1, 32)
                st.s_cmp_lg_u32(sM, 2); st.mark("save", L); st.s_cbranch_scc1(L)
                st.v_mov_b32(vU, 1); sigwait(st, 12, 48, regs=(13, 14, 15))
                st.mark("merge", L); st.label(L)
                cs_q(); signal(st, 1)
            elif a == "wsig": st.v_mov_b32(vU, 2); sigwait(st, 12, 32, regs=(13, 14, 15))
            elif a.startswith("csk"): cs_kv(int(a[3]))
            elif a == "csq": cs_q()
            elif a == "part": gu_partial()
            elif a == "red": gu_reduce()
            elif a[0] == "P": st.s_setprio(int(a[1:]))
            elif a == "nd": DR[0] = True
            elif a[:2] == "WB":
                L = newlab("wb")
                if a == "WB": st.s_or_b32(sT0, sJ, sM)
                else: st.s_mov_b32(sT0, sM)
                st.s_cmp_lg_u32(sT0, 0); st.mark("save", L); st.s_cbranch_scc1(L)
                st.raw("    buffer_wbl2 " + os_("wbm", "sc1").replace("+", " "))
                st.mark("merge", L); st.label(L)
            elif a == "wv": st.wait(vm=0)
            elif a[0] == "Q": squeue(a[1:])
            elif a[0] == "S":
                if LDSW(st): st.wait(lgkm=0)
                DR[0] = True; spf(int(a[1:]))
            elif a[0] == "c": issue(o + int(a[1:]))
            elif a[0] == "r" and a[1:].isdigit(): stage(o + int(a[1:]))
            elif a[0] == "u" and a[1:].isdigit(): unstage(o + int(a[1:]))
            elif a[0] == "@": stamp(st, a, who="l", pair=o // 17)
            elif a[0] == "G": gu_loads(int(a[1:]))
            elif a[0] == "X": transposes(int(a[1:]))
            elif a[0] == "T": touch(a[1:])
            else: raise ValueError(a)
    prologue()
    for pair in range(1 if OPT['stop'] else 2):
        o = 17 * pair; A = acts(S0 if pair == 0 else S1)
        run(A.get("start", []), o)
        for b in (SEQ0 if pair == 0 else SEQA) + SEQC:
            tk = []
            for n in need.get(b, []):
                assert o + n in issued, (pair, b, n)
                tk.append(f"c{o+n}")
            stamp(st, "<" + b, who="l", pair=pair)
            if not DR[0] and LDSW(st): st.wait(lgkm=0)
            DR[0] = False
            st.l.append(Ins("s_barrier", [], tneed=tk))
            run(A.get(b, []), o)
    assert OPT['stop'] or (not gl and tr_next[0] == 8)
    st.s_branch(".Lend")

def main():
    st = Stream()
    entry(st)
    loader(st)
    st.label(".Lslow")
    compute_slow(st)
    st.extend(OOL)
    st.label(".Lend")
    st.s_endpgm()
    bodyt = finalize(st)
    ref = open(f"cdna_kernels/{NAME}.s.ref").read().split("\n")
    head = [l for l in ref if l.startswith(";") and "@launch" not in l]
    out = "\n".join(head) + f"\n; @launch grid=(256,1,1) block=(512,1,1) lds={LDS_BYTES}\n"
    out += '.amdgcn_target "amdgcn-amd-amdhsa--gfx950"\n' + khead(NAME + "_kernel") + bodyt + kd(NAME + "_kernel")
    path = sys.argv[1] if len(sys.argv) > 1 else f"cdna_kernels/{NAME}.s"
    open(path, "w").write(out)
    stamp_names["opt"] = " ".join(a for a in sys.argv[2:] if not a.startswith(("stamps", "only"))); json.dump(stamp_names, open(path + ".json", "w"))
    n = sum(1 for l in bodyt.split("\n") if l.startswith("    ") and not l.strip().startswith(";"))
    print("wrote", path, "instructions:", n, "barriers:", SEQ0, SEQA, SEQC)

main()
```

```python
import sys, os, math, struct, json
sys.path.insert(0, os.path.dirname(os.path.abspath(__file__)))
from asmlib import *
from layout5 import *

NAME = "interleave_layers__linear_kernel_hedgehog__geglu_ffn__prompt"
OPT = dict(stop=None, stamps=False)
for a in sys.argv[2:]:
    k, _, val = a.partition("=")
    OPT[k] = val if val != "" else True
def oi(k, d): return int(OPT.get(k, d))
def os_(k, d): return str(OPT.get(k, d))
SCL = "sc1"
def f2u(x): return "0x%08x" % struct.unpack("<I", struct.pack("<f", x))[0]
LOG2E = 1.4426950408889634
class G: SC = ""; TAG = "f"; SEQ = None; REC = True

WS, X_, OUT, WQ, WP, WO_, WG, WU, WD = [s(4 + 4 * i, 4) for i in range(9)]
sXC = s(40)
XO = oi("xo", 0)
XS = OUT if XO else WS
sC, sJ, sHF, sCG, sM, sNONCE, sCNT, sPAIR = [s(66 + i) for i in range(8)]
sW = s(3)
sXLD, sSTLD, sFA, sXST, sSTST, sFXST = [s(74 + i) for i in range(6)]
sOST, sFB, sFJ = s(80), s(81), s(82)
sHLD, sHST = s(84), s(85)
sKVST, sKVLD, sFKVST, sFKVLD = [s(88 + i) for i in range(4)]
sKZ, sGZ, sHALF, sH5, sF5, sHS = s(62), s(63), s(60, 2), s(49), s(83), s(41)
sT0, sT1, sT2, sT3 = [s(92 + i) for i in range(4)]
sL2E, sONE, sOUTO, sT6 = s(96), s(97), s(98), s(99)
sSTMP = s(100, 2)
sRING, sKH, sTP, sDUM, sLD = s(44), s(45), s(46), s(47), s(48)
vL, vL16, vA0, vFL = v(0), v(1), v(2), v(3)
RES = 4
vNON = v(12); vT = v(13); vU = v(14); vV = v(15)
vA1, vP0, vP1 = v(121), v(122), v(123)
aXW = v(126)
XF = 128
cWDb = [s(52 + i) for i in range(4)]; sDM = s(56)
aEW, aER, vEVv, vEVr, aCS3 = v(112), v(113), v(114), v(115), v(120)
aP4, vS4 = v(124), v(125)

class bc:
    def __init__(self, r, neg=False): self.r = int(r[1:]) if isinstance(r, str) else r; self.neg = neg
class ng:
    def __init__(self, r): self.r = r
def pk(st, op, d, *src):
    ops, lo, hi, n = [], [], [], []
    for x in src:
        if isinstance(x, bc): ops.append(v(x.r & ~1, 2)); lo.append(x.r & 1); hi.append(x.r & 1); n.append(int(x.neg))
        elif isinstance(x, ng): ops.append(v(x.r, 2)); lo.append(0); hi.append(1); n.append(1); assert x.r % 2 == 0
        else: ops.append(v(x, 2)); lo.append(0); hi.append(1); n.append(0); assert x % 2 == 0
    assert d % 2 == 0
    f = lambda l: "[" + ",".join(map(str, l)) + "]"
    mods = f"op_sel:{f(lo)} op_sel_hi:{f(hi)}" + (f" neg_lo:{f(n)} neg_hi:{f(n)}" if any(n) else "")
    st.op(f"v_pk_{op}_f32", v(d, 2), *ops, mods=mods)

lab_n = [0]
def newlab(p):
    lab_n[0] += 1
    return f".L{p}_{lab_n[0]}"

def nxt(st):
    st.s_add_u32(sNONCE, sNONCE, 1); st.v_add_u32(vNON, 1, vNON)

def poll(st, addr, soff, off=0):
    L = newlab("poll"); D = newlab("pdone")
    st.label(L)
    st.buffer_load_dword(vT, addr, WS, soff, mods=f"offen offset:{off} sc1")
    st.wait(vm=0)
    st.v_cmp_ne_u32("vcc", sNONCE, vT)
    st.s_cbranch_vccz(D)
    st.s_sub_u32(sCNT, sCNT, 1)
    st.s_cbranch_scc0(L)
    st.s_mov_b32(sCNT, 0)
    st.label(D)

OOL = Stream()
def soft_check(st, reg, addr, soff, off=0):
    D = newlab("soft"); X = newlab("softx")
    st.v_cmp_ne_u32("vcc", sNONCE, reg)
    st.s_cbranch_vccnz(X)
    st.label(D)
    OOL.label(X); OOL.mark("reset")
    poll(OOL, addr, soff, off)
    OOL.s_branch(D)

stamp_names = {"c": [], "l": []}
def stamp(st, name, real=False, who="c", pair=None):
    if OPT.get("cap") and who == "c" and name == OPT["cap"].split("@")[0]:
        (st.s_memrealtime if OPT.get("capr") else st.s_memtime)(sSTMP); st.wait(lgkm=0)
        st.s_cmp_eq_u32(sPAIR, int(OPT["cap"].split("@")[1])); st.s_cselect_b32(s(43), s(100), s(43))
    if not OPT["stamps"]: return
    only = OPT.get("only")
    if only and who == "l" and not OPT.get("lst"): return
    if only and who == "c" and not isinstance(name, int) and name not in ("start", "end") and name not in only.split(","): return
    if isinstance(name, int): idx = name
    else:
        if name not in stamp_names[who]: stamp_names[who].append(name)
        idx = stamp_names[who].index(name)
    r = v(127) if who == "c" else v(63)
    if name == 62: st.v_mov_b32(r, s(42))
    elif name == "start" and who == "c": st.v_mov_b32(r, s(86))
    elif name == "karg": st.wait(lgkm=0); st.v_mov_b32(r, s(0))
    else:
        if real: st.s_memrealtime(sSTMP)
        else: st.s_memtime(sSTMP)
        st.wait(lgkm=0)
        st.v_mov_b32(r, s(100))
    if pair is None:
        st.s_lshl_b32(s(101), sPAIR, 8)
        st.s_add_u32(s(101), s(101), s(65))
    else:
        st.s_add_u32(s(101), s(65), 256 * pair)
    st.buffer_store_dword(r, "off", WS, s(101), mods=f"offset:{idx*4}")

def ring_addr(st, mode):
    if mode in ("trq", "trn"):
        st.v_add_u32(vA0, sRING, vP0 if mode == "trq" else vP1); st.v_xor_b32(vA1, 64, vA0)
    elif mode == "b128":
        st.v_add_u32(vA0, sRING, vL16)
def ring_next(st, mode=None):
    st.s_add_u32(sRING, sRING, 0x8000); st.s_and_b32(sRING, sRING, 0x1ffff)
    ring_addr(st, mode)
def barrier(st, name, drain=False):
    if drain: st.wait(lgkm=0)
    st.s_barrier()
    if G.REC: G.SEQ.append(name)

def signal(st, val=None, off=0):
    t0, t1 = (v(124), v(125)) if val is None else (vT, vU)
    st.s_lshl_b32(sT3, sW, 2); st.s_add_u32(sT3, sT3, L_SIG + off); st.v_mov_b32(t0, sT3)
    if val is None: st.v_add_u32(t1, 1, sPAIR)
    else: st.v_mov_b32(t1, val)
    st.ds_write_b32(t0, t1)
def sigwait(st, mask=28, off=0, regs=(124, 125, 126), cmp="ne", extra=None):
    L = newlab("sig"); D = newlab("sigd")
    a, e, r = [v(x) for x in regs]
    st.v_and_b32(a, mask, vFL); st.v_add_u32(a, L_SIG + off, a)
    if extra:
        st.ds_read_b32(r, a)
        extra(st)
        st.wait(lgkm=0)
        st.op(f"v_cmp_{cmp}_u32", "vcc", e, r)
        st.s_cbranch_vccz(D)
    st.label(L)
    st.ds_read_b32(r, a)
    st.wait(lgkm=0)
    st.op(f"v_cmp_{cmp}_u32", "vcc", e, r)
    st.s_cbranch_vccz(D)
    st.s_sub_u32(sCNT, sCNT, 1)
    st.s_cbranch_scc0(L)
    st.s_mov_b32(sCNT, 0)
    st.label(D)

def lane_tr(st, d0, d1, kind, stride=128, tmp=vT, hstride=None):
    st.v_bfe_u32(d0, vL, 2, 2)
    if stride == 128: st.v_lshlrev_b32(d0, 7, d0)
    else: st.v_mul_u32_u24(d0, stride, d0)
    st.v_lshrrev_b32(tmp, 5, vL)
    st.v_lshl_add_u32(d0, tmp, int(math.log2(hstride or 8 * stride)), d0)
    sh = dict(qkv=(5, 4), nat=(4, 5))[kind]
    st.v_and_b32(tmp, 1, vL); st.v_lshl_add_u32(d0, tmp, sh[0], d0)
    st.v_bfe_u32(tmp, vL, 1, 1); st.v_lshl_add_u32(d0, tmp, 3, d0)
    st.v_bfe_u32(tmp, vL, 4, 1); st.v_lshl_add_u32(d0, tmp, sh[1], d0)
    if stride == 128:
        st.v_bfe_u32(tmp, vL, 3, 1); st.v_lshl_add_u32(d0, tmp, 6, d0)
        if d1: st.v_xor_b32(d1, 64, d0)

gemm_n = [0]
def gemm(st, items, mode, af, nslots, depth, ready, bars=None, fill=None, budget=16, hooks=None, loads=None, pre=10, every=2, pairw=0):
    n = len(items); loads = list(loads or []); ready = set(ready); bars = bars or {}
    nr = 0; gemm_n[0] += 1; tg = f"g{gemm_n[0]}_"
    def pump(upto):
        nonlocal nr
        while nr < n and nr <= upto:
            it = items[nr]; r = af + 4 * (nr % nslots)
            assert it["chunk"] in ready, (nr, it["chunk"])
            if nr > 0 and it["chunk"] != items[nr - 1]["chunk"]: ring_next(st, mode)
            if mode != "b128":
                a = vA1 if it["t"] else vA0
                st.ds_read_b64_tr_b16(v(r, 2), a, mods=f"offset:{it['off']}")
                st.ds_read_b64_tr_b16(v(r + 2, 2), a, mods=f"offset:{it['off']+512}", tset=tg + str(nr))
            else:
                st.ds_read_b128(v(r, 4), vA0, mods=f"offset:{it['off']}", tset=tg + str(nr))
            nr += 1
    for _ in range(min(pre, len(loads))): loads.pop(0)(st)
    pump(depth - 1)
    for i in range(n):
        it = items[i]
        if hooks and i in hooks: hooks[i](st)
        acc = v(it["acc"], 16)
        st.v_mfma_f32_32x32x16_bf16(acc, v(af + 4 * (i % nslots), 4), v(it["b"], 4), "0" if it["first"] else acc,
                                    tneed=tg + str(i + 1) if pairw and i % 2 == 0 and i + 1 < nr else None)
        if i in bars:
            barrier(st, bars[i][0]); ready |= set(bars[i][1])
        pump(i + depth)
        if loads and i % every == every - 1: loads.pop(0)(st)
        if fill is not None: fill.take(st, budget(i) if callable(budget) else budget)
    assert not loads

def entry(st):
    st.s_cmp_ge_u32(s(2), 256)
    st.s_cbranch_scc1(".Lend")
    if OPT["stamps"]: st.s_memrealtime(s(42, 2)); st.s_memtime(s(86, 2))
    if OPT.get("dbg"): st.s_memrealtime(s(42, 2)); st.s_memtime(s(86, 2))
    st.s_load_dwordx16(s(44, 16), s(0, 2), 0)
    st.s_load_dwordx4(s(60, 4), s(0, 2), 64)
    st.s_load_dwordx2(s(64, 2), s(0, 2), 80)
    st.v_lshrrev_b32(vT, 6, v(0))
    st.v_and_b32(vL, 63, v(0))
    st.v_readfirstlane_b32(sW, vT)
    st.v_lshlrev_b32(vL16, 4, vL)
    st.v_and_b32(vFL, 15, vL)
    st.v_lshlrev_b32(vFL, 2, vFL)
    st.s_and_b32(sT0, s(2), 7)
    st.s_lshr_b32(sT1, s(2), 3)
    st.s_lshr_b32(sC, sT1, 4)
    st.s_lshl_b32(sT0, sT0, 1)
    st.s_add_u32(sC, sC, sT0)
    st.s_and_b32(sJ, sT1, 15)
    st.s_lshr_b32(sHF, sJ, 3)
    st.s_and_b32(sCG, sJ, 7)
    st.s_and_b32(sM, sW, 3)
    st.s_mov_b32(sCNT, 1 << 18)
    st.s_mov_b32(sPAIR, 0)
    st.s_cmp_lt_u32(sJ, 6)
    st.s_cselect_b32(sT6, 1, 0)
    st.s_getreg_b32(sXC, "hwreg(HW_REG_XCC_ID, 0, 4)")
    for d in (WS, X_, OUT, WQ, WP, WO_, WG, WU, WD):
        st.s_mov_b32(s(int(d[2:d.index(":")]) + 3), 0x20000)
    for d, size in ((X_, 2048 * 1024), (WQ, 512 * 3072), (WS, WS_SIZE), (WP, 32 * 512), (WO_, 512 * 1024), (WG, 512 * 2752),
                    (WU, 512 * 2752), (WD, 1376 * 1024), (OUT, 2048 * 1024)):
        st.s_mov_b32(s(int(d[2:d.index(":")]) + 2), size)
    if oi("cfirst", 1):
        st.s_cmp_ge_u32(sW, 4); st.s_cbranch_scc1(".Lld0")
        compute(st)
        st.label(".Lld0"); st.mark("reset")
    else:
        st.s_cmp_lt_u32(sW, 4); st.s_cbranch_scc1(".Lcomp")

def rot(st, d, t):
    if not oi("rot", 0): st.s_mov_b32(d, 0); return
    st.s_and_b32(d, sJ, 1); st.s_and_b32(t, sC, 1); st.s_lshl_b32(t, t, 1); st.s_add_u32(d, d, t); st.s_lshl_b32(d, d, 1)
    st.s_lshr_b32(t, sJ, 1); st.s_add_u32(d, d, t)

def srds(st, lst):
    src = {X_: 44, WQ: 46, WP: 48, WO_: 50, WG: 54, WU: 56, WD: 58, OUT: 60, WS: 64}
    for d in lst:
        b = int(d[2:d.index(":")])
        st.s_mov_b32(s(b), s(src[d])); st.s_and_b32(s(b + 1), s(src[d] + 1), 0xffff)

def stamp_base(st):
    if OPT["stamps"]:
        st.s_lshl_b32(s(65), s(2), 3); st.s_add_u32(s(65), s(65), sW); st.s_lshl_b32(s(65), s(65), 9)
        st.s_add_u32(s(65), s(65), STAMP)

aK, aV, aQ, AF1, WPH, STT = 16, 32, 48, 64, 88, 96
NM, RS, VE, LR = v(112), v(113), v(114), v(115)
aCS, aA, aB, aR1, aR2 = v(116), v(117), v(118), v(119), v(120)

def kv_items():
    return [dict(chunk=k // 16, off=(k % 16) * 2048, t=t, acc=acc, b=XF + 4 * k, first=k == 0)
            for k in range(32) for t, acc in ((0, aK), (1, aV))]

CK, CV = aQ, STT
def k_addr(st):
    st.v_lshrrev_b32(vU, 5, vL); st.v_and_b32(vT, 1, vL); st.v_cmp_eq_u32("vcc", vT, vU)
    st.v_lshlrev_b32(aCS, 6, vU); st.v_add_u32(aCS, L_CS, aCS)
    st.v_lshlrev_b32(aR1, 7, vU); st.v_and_b32(vT, 12, vL); st.v_lshl_add_u32(aR1, vT, 3, aR1)
    st.v_and_b32(vT, 16, vL); st.v_add_u32(aR1, aR1, vT); st.v_and_b32(vT, 2, vL); st.v_lshl_add_u32(aR1, vT, 2, aR1)
    st.v_mov_b32(vT, 544); st.v_cndmask_b32(aR1, vT, aR1, "vcc"); st.v_add_u32(aR1, L_KVB, aR1)
    st.v_and_b32(vT, 31, vL); st.s_lshl_b32(sT0, sM, 5); st.v_add_u32(vT, sT0, vT)
    st.v_mul_u32_u24(aA, 144, vT); st.v_lshl_add_u32(aA, vU, 6, aA); st.v_add_u32(aA, L_PH, aA)
    st.v_mul_u32_u24(aB, 80, vT); st.v_lshl_add_u32(aB, vU, 5, aB); st.v_add_u32(aB, L_VB, aB)
def k_reads(st, which="wkv"):
    if "k" in which:
        for i in range(4): st.ds_read_b128(v(CK + 4 * i, 4), aCS, mods=f"offset:{16*i}")
    if "w" in which:
        for q in range(4): st.ds_read_b64_tr_b16(v(WPH + 2 * q, 2), aR1, mods=f"offset:{576*q}")
    if "v" in which:
        for i in range(4): st.ds_read_b128(v(CV + 4 * i, 4), aCS, mods=f"offset:{128+16*i}")

def fin_stats(st, S, Q, t0, t1, negmean, rstd, vare):
    if t0: st.v_mov_b32(t0, S)
    st.v_mov_b32(t1, Q)
    if t0: st.v_permlane32_swap_b32(S, t0)
    st.v_permlane32_swap_b32(Q, t1)
    if t0: st.v_add_f32(S, S, t0)
    st.v_add_f32(Q, Q, t1)
    st.v_mul_f32(negmean, f2u(-1.0 / 512), S)
    st.v_mul_f32(Q, f2u(1.0 / 512), Q)
    st.v_fma_f32(vare, "-" + negmean, negmean, Q)
    st.v_max_f32(vare, 0, vare)
    st.v_add_f32(vare, f2u(1e-5), vare)
    st.v_rsq_f32(rstd, vare)

def stats(st, stt, negmean, rstd, vare):
    S, Q = v(stt), v(stt + 1)
    for i in range(4): st.v_add_f32(v(stt + i), v(stt + i), v(stt + 4 + i))
    for i in range(4): st.v_add_f32(v(stt + 8 + i), v(stt + 8 + i), v(stt + 12 + i))
    for i in range(4): st.v_add_f32(v(stt + i), v(stt + i), v(stt + 8 + i))
    st.v_add_f32(S, S, v(stt + 2)); st.v_add_f32(Q, Q, v(stt + 3))
    fin_stats(st, S, Q, v(stt + 2), v(stt + 3), negmean, rstd, vare)

def p1a0(st):
    g0, g1, aW = v(118), v(119), v(120)
    aRd = [v(88 + i) for i in range(4)]
    QD, SA, SELA = 96, 112, 92
    XD = oi("xd", 0)
    st.v_lshrrev_b32(vT, 3, vL); st.v_and_b32(vV, 7, vL)
    if XD: st.v_lshrrev_b32(vU, 4, vL); st.v_xor_b32(vV, vV, vU)
    st.v_lshlrev_b32(g0, 10, vT); st.v_lshl_add_u32(g0, vV, 4, g0)
    st.s_lshl_b32(sT0, sC, 2); st.s_add_u32(sT0, sT0, sM); st.s_lshl_b32(sT0, sT0, 15)
    GA = [v(48 + g) for g in range(4)]
    st.v_lshlrev_b32(g1, 5, vFL); st.s_lshl_b32(sT1, sJ, 11); st.s_add_u32(sT1, sT1, sT0)
    for g in range(4):
        st.v_add_u32(GA[g], sT0, g0)
        if XD and g & 1: st.v_xor_b32(GA[g], 64, GA[g])
        if g < 3: st.s_add_u32(sT0, sT0, 8192)
    vKc, sA0, sKc, sK8 = v(52), s(41), s(83), s(98)
    AREA = [0, 16384, 32768, 49152, 65536, 32768, 49152, 65536]
    if XD:
        st.v_bfe_u32(vU, vL, 4, 1); st.v_lshlrev_b32(vU, 2, vU); st.v_and_b32(vV, 7, vL); st.v_xor_b32(vU, vU, vV)
        st.v_mul_u32_u24(vKc, 3072, vT); st.v_and_b32(vV, 3, vU); st.v_lshl_add_u32(vKc, vV, 4, vKc)
        st.v_lshrrev_b32(vV, 2, vU); st.v_lshl_add_u32(vKc, vV, 10, vKc); st.v_add_u32(vKc, 1024, vKc)
        st.s_lshl_b32(sA0, sM, 12); st.s_add_u32(sA0, sA0, 65536); st.s_lshl_b32(sK8, sM, 13)
        st.s_mul_i32(sKc, sM, 64 * 3072); st.s_lshl_b32(sT0, sJ, 6); st.s_add_u32(sKc, sKc, sT0)
    if oi("tk0", 0):
        st.v_lshrrev_b32(vT, 5, vL); st.v_lshlrev_b32(vT, 8, vT); st.v_bfe_u32(vU, vL, 4, 1); st.v_add_u32(vT, vT, vU)
        st.v_mul_u32_u24(v(124), 3072, vT); st.v_lshl_add_u32(v(124), vFL, 5, v(124))
        st.s_and_b32(sT2, sC, 1); st.s_lshl_b32(sT2, sT2, 4); st.s_add_u32(sT2, sT2, sJ); st.s_lshl_b32(sT2, sT2, 2); st.s_add_u32(sT2, sT2, sM)
        st.s_mul_i32(sT2, sT2, 2 * 3072); st.s_add_u32(sT2, sT2, 1024)
    sR, sQO = s(41), s(83)
    if not XD: rot(st, sR, sT0)
    def c0(st):
        srds(st, [WQ])
        for i in range(8):
            st.s_add_u32("m0", sK8, 1024 * i); st.s_add_u32(sT0, sKc, 8 * i * 3072)
            st.buffer_load_dwordx4(vKc, WQ, sT0, mods="offen lds", tset="c0c" if i == 7 else None)
    def xl(p, st):
        if not XD: st.s_add_u32(sQO, sR, p); st.s_and_b32(sQO, sQO, 7); st.s_lshl_b32(sQO, sQO, 7)
        if p == (-1 if XD else 0):
            st.wait(lgkm=0)
            srds(st, [X_])
            if OPT["stamps"]: st.s_memtime(s(0, 2))
            if oi("tx0", 1):
                i = Ins("buffer_load_dword", [v(126), g1, X_, sT1], "offen"); i.dst = set(); st.l.append(i)
            if oi("tk0", 0):
                srds(st, [WQ])
                i = Ins("buffer_load_dword", [v(125), v(124), WQ, sT2], "offen"); i.dst = set(); st.l.append(i)
        if p < 0: return
        for g in range(4):
            if XD:
                st.s_add_u32("m0", sA0 if AREA[p] < 65536 else sKc, AREA[p] + 1024 * g - 128 * p)
                st.buffer_load_dwordx4(GA[g], X_, 0, mods=f"offen offset:{128*p} lds", tset=f"x{p}" if g == 3 else None,
                                       tneed=f"r{p-3}" if p >= 5 and g == 0 else None)
            else: st.buffer_load_dwordx4(v(XF + 16 * p + 4 * g, 4), GA[g], X_, sQO, mods="offen")
    n0 = oi("xn0", 2); n1 = oi("xn1", 4)
    if XD: n0 = oi("xn0", 1); xl(-1, st)
    for p in range(n0): xl(p, st)
    if XD: c0(st)
    srds(st, [WS, OUT])
    stamp_base(st)
    stamp(st, 62, True)
    stamp(st, "start")
    stamp(st, "karg"); stamp(st, "xissued")
    st.buffer_load_dword(vNON, "off", WS, 0, mods=f"offset:{EPOCH} sc1")
    st.s_and_b32(sKH, sM, 1); st.s_lshr_b32(sTP, sM, 1); st.s_mov_b32(sRING, 0)
    st.v_and_b32(aA, 31, vL); st.v_lshlrev_b32(aA, 10, aA); st.v_lshrrev_b32(vT, 5, vL); st.v_lshl_add_u32(aA, vT, 4, aA)
    st.s_lshl_b32(sOUTO, sC, 17); st.s_lshl_b32(sT1, sHF, 16); st.s_add_u32(sOUTO, sOUTO, sT1)
    st.s_lshl_b32(sT1, sTP, 15); st.s_add_u32(sOUTO, sOUTO, sT1); st.s_lshl_b32(sT1, sCG, 7); st.s_add_u32(sOUTO, sOUTO, sT1)
    st.s_lshl_b32(sT1, sKH, 6); st.s_add_u32(sOUTO, sOUTO, sT1)
    st.s_mov_b32(sL2E, f2u(LOG2E)); st.s_mov_b32(sONE, 0x3f803f80)
    st.s_lshl_b32(sT0, sC, 2); st.s_add_u32(sT1, sT0, sM)
    st.s_lshl_b32(sXLD, sT1, 15)
    if not XO: st.s_add_u32(sXLD, sXLD, XB)
    st.s_lshl_b32(sSTLD, sT1, 12); st.s_add_u32(sSTLD, sSTLD, ST)
    st.s_lshl_b32(sFA, sT1, 10); st.s_add_u32(sFA, sFA, FL)
    st.s_lshl_b32(sT2, sJ, 2); st.s_add_u32(sFJ, sFA, sT2)
    st.s_mul_i32(sHST, sT1, HB_TB); st.s_add_u32(sHST, sHST, HB)
    st.s_lshl_b32(sT2, sJ, 11); st.s_add_u32(sOST, sHST, sT2)
    st.s_mov_b32(s(60), 0); st.s_mov_b32(s(61), -1)
    st.s_lshl_b32(sT2, sJ, 10); st.s_add_u32(sHST, sHST, sT2)
    st.s_lshl_b32(sDUM, sT1, 11); st.s_add_u32(sDUM, sDUM, DUMMY)
    st.s_lshl_b32(sT1, sHF, 1); st.s_add_u32(sT1, sT1, sT0); st.s_add_u32(sT1, sT1, sTP)
    st.s_lshl_b32(sT3, sCG, 1); st.s_add_u32(sT3, sT3, sKH)
    st.s_lshl_b32(sXST, sT1, 15); st.s_lshl_b32(sT2, sT3, 11); st.s_add_u32(sXST, sXST, sT2)
    if not XO: st.s_add_u32(sXST, sXST, XB)
    st.s_lshl_b32(sSTST, sT1, 12); st.s_lshl_b32(sT2, sCG, 9); st.s_add_u32(sSTST, sSTST, sT2)
    st.s_lshl_b32(sT2, sKH, 3); st.s_add_u32(sSTST, sSTST, sT2); st.s_add_u32(sSTST, sSTST, ST)
    st.s_lshl_b32(sFB, sT1, 10); st.s_add_u32(sFB, sFB, FL)
    st.s_lshl_b32(sT2, sT3, 2); st.s_add_u32(sFXST, sFB, sT2)
    st.s_lshl_b32(sT2, sKH, 10)
    st.s_mul_i32(sHLD, sT1, HB_TB); st.s_add_u32(sHLD, sHLD, sT2); st.s_add_u32(sHLD, sHLD, HB)
    st.s_mul_i32(sKVLD, sJ, KV_J); st.s_add_u32(sKVLD, sKVLD, KVP)
    st.s_mul_i32(sKVST, sC, KV_REC); st.s_add_u32(sKVST, sKVST, sKVLD)
    st.s_lshl_b32(sT1, sKH, 7); st.s_lshl_b32(sT2, sTP, 5); st.s_add_u32(sT1, sT1, sT2); st.s_add_u32(sKZ, sKVST, sT1); st.s_add_u32(sKZ, sKZ, 2048)
    st.s_lshl_b32(sT1, sKH, 10); st.s_lshl_b32(sT2, sTP, 6); st.s_add_u32(sT1, sT1, sT2); st.s_add_u32(sKVST, sKVST, sT1)
    st.s_lshl_b32(sT1, sM, 6); st.s_add_u32(sGZ, sKVLD, sT1); st.s_add_u32(sGZ, sGZ, 2048)
    st.s_lshl_b32(sT1, sM, 9); st.s_add_u32(sKVLD, sKVLD, sT1)
    st.s_lshl_b32(sFKVLD, sJ, 11); st.s_add_u32(sFKVLD, sFKVLD, FKV)
    st.s_lshl_b32(sT1, sC, 7); st.s_lshl_b32(sT2, sM, 2); st.s_add_u32(sFKVST, sT1, sT2); st.s_add_u32(sFKVST, sFKVST, sFKVLD)
    for i in range(4): st.v_mov_b32(v(96 + i), 0)
    st.v_and_b32(vT, 3, vL); st.v_mul_u32_u24(vT, 576, vT); st.v_add_u32(vT, L_KVB + 544, vT)
    st.ds_write_b128(vT, v(96, 4))
    st.v_and_b32(vT, 112, vL16); st.v_add_u32(vT, L_SIG, vT)
    st.ds_write_b128(vT, v(96, 4))
    st.v_bfe_u32(vT, vL, 4, 1); st.v_and_b32(vU, 1, vL); st.v_cmp_eq_u32("vcc", vT, vU)
    st.v_mov_b32(vV, sONE)
    for i in range(4): st.v_cndmask_b32(v(SELA + i), 0, vV, "vcc")
    if XD: sT0_ = sA0
    else:
        sT0_ = sT0
        st.s_lshl_b32(sT0, sM, 12); st.s_add_u32(sT0, sT0, L_PH)
        st.v_and_b32(vT, 48, vL); st.v_xor_b32(vT, vT, vL16); st.v_add_u32(aW, sT0, vT); st.v_xor_b32(g1, 64, aW)
    st.v_and_b32(vT, 31, vL); st.v_lshrrev_b32(vU, 5, vL); st.v_bfe_u32(vV, vL, 1, 3); st.v_xor_b32(vU, vU, vV)
    st.v_lshlrev_b32(vT, 7, vT); st.v_lshl_add_u32(vT, vU, 4, vT); st.v_add_u32(aRd[0], sT0_, vT)
    for i in range(1, 4): st.v_xor_b32(aRd[i], 32 * i, aRd[0])
    aR4 = [v(56 + i) for i in range(4)]
    if XD:
        st.s_lshl_b32(sT0, sM, 9); st.s_add_u32(sKc, sA0, sT0); st.s_add_u32(sT0, sT0, 65536)
        for i in range(4): st.v_add_u32(aR4[i], sT0, aRd[i])
    lane_tr(st, vP0, None, "qkv"); ring_addr(st, "trq")
    def rnd(q, st):
        R = XF + 16 * q
        if XD:
            for i in range(4):
                st.ds_read_b128(v(R + 4 * i, 4), (aRd if AREA[q] < 65536 else aR4)[i], mods=f"offset:{AREA[q] % 65536}",
                                tneed=f"x{q}" if i == 0 else None, tset=f"r{q}" if i == 3 else None)
            return
        for g in range(4): st.ds_write_b128(g1 if g & 1 else aW, v(R + 4 * g, 4), mods=f"offset:{1024*g}")
        for i in range(4): st.ds_read_b128(v(R + 4 * i, 4), aRd[i])
    def smf(k, st):
        f = v(XF + 4 * k, 4)
        st.v_mfma_f32_32x32x16_bf16(v(QD, 16), f, f, "0" if k == 0 else v(QD, 16))
        st.v_mfma_f32_16x16x32_bf16(v(SA, 4), v(SELA, 4), f, "0" if k == 0 else v(SA, 4))
    def res(st):
        st.buffer_load_dwordx4(v(RES, 4), aA, X_, sOUTO, mods="offen")
        st.buffer_load_dwordx4(v(RES + 4, 4), aA, X_, sOUTO, mods="offen offset:32")
    hq = oi("hq", 8)
    if XD:
        hq = 1; n1 = oi("xn1", 5)
        for p in range(n0, n1): xl(p, st)
        stamp(st, "xiss2")
        barrier(st, "s0")
        for p in range(n1, 5): xl(p, st)
        rnd(0, st)
        for k in range(4): smf(k, st)
        rnd(1, st)
        acts = {}
        act = lambda i, f: acts.setdefault(i, []).append(f)
        rps = [int(x) for x in os_("rp", "2,8,14,28,36,44").split(",")]; xps = [int(x) for x in os_("xp", "5,11,17").split(",")]
        for b in range(2, 8): act(rps[b - 2], lambda st, b=b: rnd(b, st))
        for b in range(5, 8): act(xps[b - 5], lambda st, b=b: xl(b, st))
        for k in range(4, 32):
            last = 2 * (k - 4) + oi("sm0", 0); assert k < 8 or last > rps[k // 4 - 2]
            act(last, lambda st, k=k: smf(k, st))
        rp = 0
        stamp(st, "p1pre")
        st.wait(lgkm=0); st.l.append(Ins("s_barrier", [], tneed="c0c"))
        if G.REC: G.SEQ.append("a0")
    else:
      for p in range(n0, n1): xl(p, st)
      nl = n1; nb = oi("xnb", 8)
      rnd(0, st)
      for q in range(hq):
        if nl < nb: xl(nl, st); nl += 1
        if q < 7: rnd(q + 1, st)
        for k in range(4 * q, 4 * q + 4): smf(k, st)
      while nl < nb: xl(nl, st); nl += 1
      acts = {}
      act = lambda i, f: acts.setdefault(i, []).append(f)
      for n, p in enumerate(range(nl, 8)): act(oi("xat", 0) + oi("xgap", 8) * n, lambda st, p=p: xl(p, st))
      rl = oi("rl", 2); last = 0
      for b in range(hq, 8):
        rp = max(1, 8 * (b - 1) - rl)
        if b > hq: act(rp, lambda st, b=b: rnd(b, st))
        for u in range(4):
            last = max(last + 1, (rp + oi("rs", 5) if b > hq else 0) + 2 * u)
            act(last, lambda st, k=4 * b + u: smf(k, st))
      stamp(st, "p1pre")
      barrier(st, "a0", drain=True)
    stamp(st, "B(a0)")
    bars = {oi("a1", 20): ("a1", [1])}
    f = Stream()
    M = [s(50 + 2 * i, 2) for i in range(5)]
    for i, bit in enumerate((16, 8, 2, 1)):
        f.v_and_b32(vT, bit, vL); f.v_cmp_ne_u32(M[i], 0, vT)
    f.v_bfe_u32(vT, vL, 2, 1); f.v_lshrrev_b32(vU, 5, vL); f.v_cmp_eq_u32(M[4], vT, vU)
    fm = None
    if hq < 8: fm = f; f = Stream()
    f.v_cndmask_b32(v(SA), v(SA), v(SA + 1), M[0])
    for i in range(8): f.v_cndmask_b32(v(QD + i), v(QD + i), v(QD + 8 + i), M[0])
    for i in range(4): f.v_cndmask_b32(v(QD + i), v(QD + i), v(QD + 4 + i), M[1])
    for i in range(2): f.v_cndmask_b32(v(QD + i), v(QD + i), v(QD + 2 + i), M[2])
    f.v_cndmask_b32(v(QD), v(QD), v(QD + 1), M[3])
    f.v_cndmask_b32(v(QD), 0, v(QD), M[4])
    fin_stats(f, v(SA), v(QD), None, v(QD + 1), NM, RS, VE)
    f.v_mul_f32(LR, sL2E, RS)
    g = Stream(); k_addr(g)
    g2 = g if hq == 8 else Stream()
    lane_tr(g2, vP1, None, "nat")
    g2.s_lshl_b32(sT2, sKH, 6); g2.v_xor_b32(vP1, sT2, vP1); g2.s_lshl_b32(sT2, sKH, 11); g2.v_add_u32(vP1, sT2, vP1)
    fill = Filler()
    r0 = oi("res0", 24)
    if hq == 8:
        act(2, lambda st: fill.add(f)); act(r0, res); act(r0 + 1, lambda st: fill.add(g))
    else:
        act(oi("gat", 1), lambda st: (fill.add(g2), fill.add(fm))); act(max(r0, 25), res)
        act(max(rp + 1, 26), lambda st: fill.add(g)); act(last + 3, lambda st: fill.add(f))
    hooks = {i: (lambda st, l=l: [f(st) for f in l]) for i, l in acts.items()}
    gemm(st, kv_items(), "trq", AF1, 6, 5, ready=[0], bars=bars, hooks=hooks, fill=fill, budget=oi("bud10", 8), pairw=oi("pw1", 0))
    fill.flush(st)
    st.v_add_u32(vNON, 1, vNON)
    st.v_mov_b32(v(125), 1); sigwait(st, 12, 32, cmp="gt")
    k_reads(st)
    st.v_readfirstlane_b32(sNONCE, vNON)
    signal(st, 2, 32)
    st.s_add_u32(sH5, sHST, 16384 * 5); st.s_add_u32(sF5, sDUM, 1024)
    st.s_cmp_eq_u32(sT6, 1); st.s_cselect_b32(sH5, sH5, sDUM); st.s_cselect_b32(sF5, sFJ, sF5)
    stamp(st, "KVgemm")

def frag_loads(base, regs, stride, per, WS=WS):
    out = []
    for k, r in enumerate(regs):
        def f(st, k=k, r=r):
            if k % per == 0: st.s_add_u32(sLD, base, k * stride)
            st.buffer_load_dwordx4(v(r, 4), vL16, WS, sLD, mods=f"offen offset:{(k % per) * stride} {SCL}")
        out.append(f)
    return out

def x_addr(st):
    st.v_lshrrev_b32(vV, 5, vL); st.v_lshlrev_b32(vV, 11, vV); st.v_and_b32(vU, 31, vL); st.v_lshl_add_u32(vV, vU, 4, vV)
def p1a_pre(st):
    ring_next(st, "trq"); x_addr(st)
def p3_pre(st):
    st.v_and_b32(vU, 31, vL); st.v_lshlrev_b32(aCS3, 2, vU); st.v_add_u32(aCS3, L_CS + 3 * 128, aCS3)
    ring_next(st, "b128"); x_addr(st)
    st.s_add_u32(sT0, sRING, 0x10000); st.s_and_b32(sT0, sT0, 0x1ffff); st.v_add_u32(vA1, sT0, vL16)
    st.s_lshl_b32(sT0, sM, 12); st.s_add_u32(sT0, sT0, L_PH); st.v_add_u32(aXW, sT0, vL16)
def x_loads(st, stt, at=32):
    L = frag_loads(sXLD, [XF + 4 * k for k in range(32)], 1024, 4, XS)
    def stl(st):
        for i in range(4):
            st.buffer_load_dwordx4(v(stt + 4 * i, 4), vV, WS, sSTLD, mods=f"offen offset:{512*i} {SCL}")
    return L[:at] + [stl] + L[at:]

def featmap(st, acc, kb, wp, e1, e2, lr, mid=None):
    for i in range(8): st.v_cvt_pk_bf16_f32(v(kb + i), v(acc + 2 * i), v(acc + 2 * i + 1))
    st.v_mfma_f32_32x32x16_bf16(v(acc, 16), v(wp, 4), v(kb, 4), "0")
    st.v_mfma_f32_32x32x16_bf16(v(acc, 16), v(wp + 4, 4), v(kb + 4, 4), v(acc, 16))
    if mid: mid(st)
    mx, mn = v(kb), v(kb + 1)
    p = lambda i: v(acc + i)
    st.v_max3_f32(mx, p(0), p(1), p(2)); st.v_min3_f32(mn, p(0), p(1), p(2))
    for i in range(3, 15, 2):
        st.v_max3_f32(mx, mx, p(i), p(i + 1)); st.v_min3_f32(mn, mn, p(i), p(i + 1))
    st.v_max_f32(mx, mx, p(15)); st.v_min_f32(mn, mn, p(15))
    pk(st, "mul", kb, bc(lr), kb)
    for i in range(0, 16, 2):
        pk(st, "fma", e1 + i, acc + i, bc(lr), bc(kb, True)); pk(st, "fma", e2 + i, ng(acc + i), bc(lr), bc(kb + 1))
    for i in range(16):
        st.v_exp_f32(v(e1 + i), v(e1 + i)); st.v_exp_f32(v(e2 + i), v(e2 + i))
    s1, s2 = kb + 2, kb + 4
    pk(st, "add", s1, e1, e1 + 2); pk(st, "add", s2, e2, e2 + 2)
    for i in range(4, 16, 2):
        pk(st, "add", s1, s1, e1 + i); pk(st, "add", s2, s2, e2 + i)
    st.v_add_f32(v(s1), v(s1), v(s1 + 1)); st.v_add_f32(v(s2), v(s2), v(s2 + 1))
    st.v_rcp_f32(v(s1), v(s1)); st.v_rcp_f32(v(s2), v(s2))
    for i in range(0, 16, 2):
        pk(st, "mul", e1 + i, bc(s1), e1 + i); pk(st, "mul", e2 + i, bc(s2), e2 + i)
    for i in range(8):
        st.v_cvt_pk_bf16_f32(v(e1 + i), v(e1 + 2 * i), v(e1 + 2 * i + 1))
        st.v_cvt_pk_bf16_f32(v(e2 + i), v(e2 + 2 * i), v(e2 + 2 * i + 1))

def p1a(st):
    at = oi("st1", 22)
    L = x_loads(st, STT, at)
    stamp(st, "p1pre")
    poll(st, vFL, sFA)
    stamp(st, "FXpoll")
    pre = oi("pre1", 10)
    for f in L[:pre]: f(st)
    nxt(st)
    barrier(st, "a0")
    stamp(st, "B(a0)")
    fill = Filler()
    f = Stream(); stats(f, STT, NM, RS, VE); f.v_mul_f32(LR, sL2E, RS); k_reads(f, "v")
    g = Stream(); k_addr(g); k_reads(g, "wk")
    hooks = {2: lambda st: fill.add(g), oi("sth1", 2 * at + 2): lambda st: fill.add(f)}
    gemm(st, kv_items(), "trq", AF1, 6, 5, ready=[0], bars={oi("a1", 20): ("a1", [1]), oi("a2", 56): ("a2", [])}, loads=L[pre:], pre=0,
         hooks=hooks, fill=fill, budget=oi("bud1", 8), pairw=oi("pw1", 0))
    fill.flush(st)
    stamp(st, "KVgemm")

def p1b(st):
    AF = AF1
    for i in range(0, 16, 2): pk(st, "fma", aK + i, CK + i, bc(NM), aK + i)
    def vpart(st):
        for i in range(0, 16, 2): pk(st, "fma", aV + i, CV + i, bc(NM), aV + i)
        for i in range(0, 16, 2): pk(st, "mul", aV + i, bc(RS), aV + i)
        for i in range(8): st.v_cvt_pk_bf16_f32(v(aV + i), v(aV + 2 * i), v(aV + 2 * i + 1))
        st.ds_write_b128(aB, v(aV, 4)); st.ds_write_b128(aB, v(aV + 4, 4), mods="offset:16")
    featmap(st, aK, AF, WPH, STT, aQ, LR, mid=vpart)
    st.ds_write_b128(aA, v(STT, 4)); st.ds_write_b128(aA, v(STT + 4, 4), mods="offset:16")
    st.ds_write_b128(aA, v(aQ, 4), mods="offset:32"); st.ds_write_b128(aA, v(aQ + 4, 4), mods="offset:48")
    signal(st)
    TA, TB, ONE, AKV, AZ = 16, 32, 96, 100, 104
    def shadow(st):
        st.v_lshrrev_b32(vT, 4, vL); st.v_lshlrev_b32(vT, 3, vT); st.v_bfe_u32(vU, vL, 2, 2); st.v_add_u32(vT, vT, vU)
        st.v_and_b32(vU, 3, vL); st.v_lshlrev_b32(vU, 3, vU)
        st.s_lshl_b32(sT0, sM, 5); st.s_add_u32(sT0, sT0, L_PH)
        st.v_mul_u32_u24(aR1, 144, vT); st.v_add3_u32(aR1, aR1, vU, sT0)
        st.s_lshl_b32(sT0, sTP, 5); st.s_add_u32(sT0, sT0, L_VB)
        st.v_mul_u32_u24(aR2, 80, vT); st.v_add3_u32(aR2, aR2, vU, sT0)
        ring_next(st, "trq")
    sigwait(st, extra=shadow)
    stamp(st, "Kepi+B")
    for k in range(4):
        for q in range(2):
            st.ds_read_b64_tr_b16(v(TA + 4 * k + 2 * q, 2), aR1, mods=f"offset:{(32*k+4*q)*144}")
            st.ds_read_b64_tr_b16(v(TB + 4 * k + 2 * q, 2), aR2, mods=f"offset:{(32*k+4*q)*80}")
    for i in range(4): st.v_mov_b32(v(ONE + i), sONE)
    st.v_lshrrev_b32(vT, 5, vL); st.v_lshlrev_b32(vV, 9, vT); st.v_bfe_u32(vU, vL, 4, 1); st.v_lshl_add_u32(vV, vU, 3, vV)
    st.v_lshlrev_b32(vT, 6, vT); st.v_lshl_add_u32(vT, vU, 4, vT)
    st.v_bfe_u32(vU, vL, 2, 2); st.v_lshl_add_u32(vV, vU, 7, vV); st.v_and_b32(vU, 3, vL); st.v_lshl_add_u32(vV, vU, 4, vV)
    for k in range(4):
        st.v_mfma_f32_16x16x32_bf16(v(AKV, 4), v(TA + 4 * k, 4), v(TB + 4 * k, 4), "0" if k == 0 else v(AKV, 4))
        st.v_mfma_f32_16x16x32_bf16(v(AZ, 4), v(TA + 4 * k, 4), v(ONE, 4), "0" if k == 0 else v(AZ, 4))
    st.v_cvt_pk_bf16_f32(v(AKV), v(AKV), v(AKV + 1)); st.v_cvt_pk_bf16_f32(v(AKV + 1), v(AKV + 2), v(AKV + 3))
    st.buffer_store_dwordx2(v(AKV, 2), vV, WS, sKVST, mods="offen sc1")
    st.buffer_store_dwordx4(v(AZ, 4), vT, WS, sKZ, mods="offen sc1", tset="kv")
    stamp(st, "kv st")
    items = []
    for k in range(16):
        for t in range(2):
            items.append(dict(chunk=0, off=k * 2048, t=t, acc=aQ, b=XF + 4 * (k + 16 * t), first=(k, t) == (0, 0)))
    def kvflag(st): st.buffer_store_dword(vNON, "off", WS, sFKVST, mods="sc1", tneed="kv")
    CS = 16
    aPL, aGZ, aGK = aR1, aR2, aB
    f = Stream()
    for i in range(4): f.ds_read_b128(v(CS + 4 * i, 4), aCS, mods=f"offset:{256+16*i}")
    f.v_lshrrev_b32(aPL, 2, vL); f.v_lshlrev_b32(aPL, 7, aPL); f.v_and_b32(vU, 3, vL); f.v_lshl_add_u32(aPL, vU, 2, aPL)
    f.v_lshrrev_b32(aGZ, 4, vL); f.v_mul_u32_u24(aGZ, KV_REC, aGZ); f.v_add_u32(aGZ, aGZ, vFL)
    f.v_lshrrev_b32(aGK, 5, vL); f.v_mul_u32_u24(aGK, KV_REC - 512, aGK); f.v_add_u32(aGK, aGK, vL16)
    fill = Filler()
    gemm(st, items, "trq", AF, 6, 5, ready=[0], hooks={4: lambda st: fill.add(f), oi("kvflag", 24): kvflag}, fill=fill, budget=8, pairw=oi("pwq", 0))
    fill.flush(st)
    stamp(st, "Qgemm")
    for i in range(0, 16, 2): pk(st, "fma", aQ + i, CS + i, bc(NM), aQ + i)
    featmap(st, aQ, AF, WPH, aK, aV, LR)
    stamp(st, "Q done")
    poll(st, aPL, sFKVLD)
    stamp(st, "FKVpoll")
    Gr, Z, SG, GA = XF, XF + 64, XF + 32, XF + 48
    XT = v(XF + 72)
    nt = os_("gm", "sc1").replace("+", " ").replace("-", "")
    for cc in range(8):
        if cc: st.s_add_u32(sT0, sKVLD, 2 * cc * KV_REC)
        st.buffer_load_dwordx4(v(Gr + 4 * cc, 4), aGK, WS, sT0 if cc else sKVLD, mods="offen " + nt)
    for i in range(4):
        if i: st.s_add_u32(sT1, sGZ, 4 * i * KV_REC)
        st.buffer_load_dword(v(Z + i), aGZ, WS, sT1 if i else sGZ, mods="offen " + nt)
    if G.TAG == "f":
        st.s_lshl_b32(sT2, sC, 7); st.s_add_u32(sT2, sT2, XCCT)
        st.buffer_load_dword(XT, vFL, WS, sT2, mods="offen sc1")
    nxt(st)
    st.s_mul_i32(sT0, sM, 576); st.s_add_u32(sT0, sT0, L_KVB)
    st.v_and_b32(vT, 31, vL)
    st.v_and_b32(vU, 1, vL); st.v_lshlrev_b32(vU, 4, vU); st.v_mov_b32(vV, 0x3f80); st.v_lshlrev_b32(vU, vU, vV); st.v_lshrrev_b32(vV, 1, vT)
    for i in range(4):
        st.v_cmp_eq_u32("vcc", i, vV); st.v_cndmask_b32(v(SG + i), 0, vU, "vcc")
    st.v_lshlrev_b32(vT, 4, vT)
    st.v_lshrrev_b32(vU, 5, vL)
    st.v_lshl_add_u32(aA, vU, 3, vT); st.v_add_u32(aA, sT0, aA)
    st.v_lshrrev_b32(aB, 1, vFL); st.v_add_u32(aB, sT0, aB)
    st.v_bfe_u32(vV, vL, 2, 1); st.v_cmp_eq_u32("vcc", vV, vU)
    st.v_mov_b32(vV, 544); st.v_cndmask_b32(vT, vV, vT, "vcc"); st.v_add_u32(aR1, L_KVB, vT)
    st.v_lshlrev_b32(vU, 4, vU); st.v_add_u32(aR2, L_KVB + 512, vU)
    for cc in range(8):
        st.v_mfma_f32_32x32x16_bf16(v(GA, 16), v(SG, 4), v(Gr + 4 * cc, 4), "0" if cc == 0 else v(GA, 16))
    st.v_add_f32(v(Z), v(Z), v(Z + 1)); st.v_add_f32(v(Z + 2), v(Z + 2), v(Z + 3)); st.v_add_f32(v(Z), v(Z), v(Z + 2))
    st.v_mov_b32(v(Z + 1), v(Z)); st.v_permlane32_swap_b32(v(Z), v(Z + 1)); st.v_add_f32(v(Z), v(Z), v(Z + 1))
    st.v_mov_b32(v(Z + 1), v(Z)); st.v_permlane16_swap_b32(v(Z), v(Z + 1)); st.v_add_f32(v(Z), v(Z), v(Z + 1))
    st.v_cvt_pk_bf16_f32(v(Z), v(Z), v(Z))
    st.ds_write_b16(aB, v(Z), mods="offset:512")
    st.v_cvt_pk_bf16_f32(v(GA), v(GA), v(GA + 1)); st.v_cvt_pk_bf16_f32(v(GA + 1), v(GA + 2), v(GA + 3))
    st.ds_write_b64(aA, v(GA, 2))
    if G.TAG == "f":
        OK = newlab("xok"); L = newlab("xpoll"); D = newlab("xdec")
        st.s_cmp_lg_u32(sPAIR, 0)
        st.mark("save", OK)
        st.s_cbranch_scc1(OK)
        st.s_add_u32(sT0, sNONCE, 14); st.s_add_u32(sT1, sT0, sXC)
        st.v_cmp_ne_u32("vcc", sT1, XT)
        if not OPT.get("slow"): st.s_cbranch_vccz(OK)
        st.label(L)
        st.buffer_load_dword(XT, vFL, WS, sT2, mods="offen sc1")
        st.wait(vm=0)
        st.v_subrev_u32(vT, sT0, XT)
        st.v_cmp_le_u32("vcc", 16, vT)
        st.s_cbranch_vccz(D)
        st.s_sub_u32(sCNT, sCNT, 1)
        st.s_cbranch_scc0(L)
        st.s_mov_b32(sCNT, 0)
        st.label(D)
        st.v_cmp_ne_u32("vcc", sT1, XT)
        st.mark("save", "toslow")
        if OPT.get("slow"): st.s_branch(".Lg_s")
        else: st.s_cbranch_vccnz(".Lg_s")
        st.mark("merge", OK)
        st.label(OK)
    else:
        st.mark("merge", "toslow")
        st.label(".Lg_s")
    barrier(st, "g", drain=True)
    stamp(st, "gather+B")

def p1c(st):
    PHQ = [aK, aK + 4, aV, aV + 4]
    KA, ZA, NUM, DEN = XF, XF + 16, 48, v(64)
    for u in range(4): st.ds_read_b128(v(KA + 4 * u, 4), aR1, mods=f"offset:{576*u}")
    for u in range(4): st.ds_read_b128(v(ZA + 4 * u, 4), aR2, mods=f"offset:{576*u}")
    st.v_mov_b32(DEN, f2u(1e-6)); st.v_mov_b32(v(65), 0)
    st.v_lshrrev_b32(vU, 5, vL); st.v_lshl_add_u32(aA, vU, 9, vL16)
    for u in range(4):
        st.v_mfma_f32_32x32x16_bf16(v(NUM, 16), v(KA + 4 * u, 4), v(PHQ[u], 4), "0" if u == 0 else v(NUM, 16))
        for i in range(4):
            dd = DEN if i % 2 == 0 else v(65)
            st.v_dot2_f32_bf16(dd, v(PHQ[u] + i), v(ZA + 4 * u + i), dd)
    st.v_add_f32(DEN, DEN, v(65))
    st.v_rcp_f32(DEN, DEN)
    for i in range(0, 16, 2): pk(st, "mul", NUM + i, bc(DEN), NUM + i)
    for i in range(8): st.v_cvt_pk_bf16_f32(v(NUM + i), v(NUM + 2 * i), v(NUM + 2 * i + 1))
    st.buffer_store_dwordx4(v(NUM, 4), aA, WS, sOST, mods=f"offen {G.SC}")
    st.buffer_store_dwordx4(v(NUM + 4, 4), aA, WS, sOST, mods=f"offen offset:512 {G.SC}", tset="o")
    ring_next(st, "trn")
    res_init(st, 16)
    st.s_lshl_b32(sT0, sM, 12); st.s_add_u32(sT0, sT0, L_PH); st.v_add_u32(aXW, sT0, vL16)
    st.buffer_store_dword(vNON, "off", WS, sFJ, mods=f"offset:128 {G.SC}", tneed="o")
    for r in (sKVST, sKVLD, sKZ, sGZ): st.s_add_u32(r, r, KV_P)
    st.s_add_u32(sFKVST, sFKVST, 256 * 128); st.s_add_u32(sFKVLD, sFKVLD, 256 * 128)

def small_items(nsteps, breg, accs=(16, 32)):
    items = []
    for k in range(nsteps):
        for t in ((1, 0) if k == nsteps - 1 else (0, 1)):
            items.append(dict(chunk=k // 8, off=(k % 8) * 4096, t=t, acc=accs[t], b=breg(k), first=k == 0 and t == 1))
    return items
def res_init(st, a):
    for i in range(8):
        st.v_lshlrev_b32(v(a + 2 * i), 16, v(RES + i)); st.v_and_b32(v(a + 2 * i + 1), 0xffff0000, v(RES + i))

def xepi(st, last):
    aB_, T, P = (96, 48, 16) if last else (32, 16, 48)
    aX = aXW
    for i in range(4): st.ds_write_b128(aX, v(aB_ + 4 * i, 4), mods=f"offset:{1024*i}")
    st.v_xor_b32(aX, 4096, aX)
    barrier(st, "X4" if last else "X2", drain=True)
    for i in range(4): st.ds_read_b128(v(P + 4 * i, 4), aX, mods=f"offset:{1024*i}")
    st.v_and_b32(aX, 31, vL); st.v_lshlrev_b32(aX, 4, aX); st.v_lshrrev_b32(vT, 5, vL); st.v_lshl_add_u32(aX, vT, 2, aX)
    for i in range(4):
        for k in (4 * i, 4 * i + 2): pk(st, "add", T + k, T + k, P + k)
        for k in (2 * i, 2 * i + 1): st.v_cvt_pk_bf16_f32(v(RES + k), v(T + 2 * k), v(T + 2 * k + 1))
    LF = newlab("fin")
    if last:
        st.mark("save", LF)
        st.s_cmp_eq_u32(sPAIR, 1); st.s_cbranch_scc1(LF)
    st.buffer_store_dwordx4(v(RES, 4), vL16, XS, sXST, mods=f"offen {G.SC}")
    st.buffer_store_dwordx4(v(RES + 4, 4), vL16, XS, sXST, mods=f"offen offset:1024 {G.SC}")
    S, Q, S2, Q2 = v(T), v(T + 1), v(T + 2), v(T + 3)
    st.v_dot2_f32_bf16(S, v(RES), sONE, 0); st.v_dot2_f32_bf16(Q, v(RES), v(RES), 0)
    st.v_dot2_f32_bf16(S2, v(RES + 1), sONE, 0); st.v_dot2_f32_bf16(Q2, v(RES + 1), v(RES + 1), 0)
    for i in range(2, 8, 2):
        st.v_dot2_f32_bf16(S, v(RES + i), sONE, S); st.v_dot2_f32_bf16(Q, v(RES + i), v(RES + i), Q)
        st.v_dot2_f32_bf16(S2, v(RES + i + 1), sONE, S2); st.v_dot2_f32_bf16(Q2, v(RES + i + 1), v(RES + i + 1), Q2)
    pk(st, "add", T, T, T + 2)
    st.v_permlane32_swap_b32(S, Q); st.v_add_f32(S, S, Q)
    st.buffer_store_dword(S, aX, WS, sSTST, mods=f"offen {G.SC}", tset="x")
    (p1a_pre if last else p3_pre)(st)
    st.buffer_store_dword(vNON, "off", WS, sFXST, mods=G.SC, tneed="x")
    if last:
        st.s_mov_b32(sPAIR, 1)
        st.s_branch(f".Lpair_{G.TAG}")
        st.label(LF); st.mark("restore", LF)
        st.v_and_b32(aX, 31, vL); st.v_lshlrev_b32(aX, 10, aX); st.v_lshrrev_b32(vT, 5, vL); st.v_lshl_add_u32(aX, vT, 4, aX)
        om = os_("om", "").replace("+", " ")
        st.buffer_store_dwordx4(v(RES, 4), aX, OUT, sOUTO, mods="offen " + om)
        st.buffer_store_dwordx4(v(RES + 4, 4), aX, OUT, sOUTO, mods="offen offset:32 " + om)

def p2(st):
    stamp(st, "o stored")
    poll(st, vFL, sFB, 128)
    stamp(st, "FOpoll")
    L = frag_loads(sHLD, [XF + 4 * k for k in range(16)], 2048, 2)
    gemm(st, small_items(16, lambda k: XF + 4 * k), "trn", 48, 6, 5, ready=[0, 1], loads=L, pre=oi("pre2", 10), hooks={1: nxt}, pairw=oi("pw2", 0),
         bars={oi("p2a", 12): ("p2", [])} if oi("p2a", 12) else None)
    stamp(st, "P2gemm")
    xepi(st, False)

def stream(st, items, af, nslots, depth, hooks, fill, budget, watch=None, slots=None, gw=1):
    n = len(items); nr = 0
    gemm_n[0] += 1; tg = f"g{gemm_n[0]}_"
    G_ = (lambda i: gw) if not callable(gw) else gw
    def pump(upto):
        nonlocal nr
        while nr < n and nr <= upto:
            items[nr]["rd"](st, af + 4 * (nr % nslots)); st.l[-1].dst = st.l[-1].dst | {("t", tg + str(nr))}; nr += 1
    pump(depth - 1)
    nextw = 0; err = 0.0
    for i in range(n):
        it = items[i]
        acc = v(it["acc"], 16)
        tn = None
        if i == nextw:
            nextw = i + G_(i); tn = tg + str(min(nextw, nr) - 1)
        st.v_mfma_f32_32x32x16_bf16(acc, v(af + 4 * (i % nslots), 4), v(it["b"], 4), "0" if it["first"] else acc, tneed=tn)
        if tn and it.get("b2"): st.l[-1].src = st.l[-1].src | regs_of(v(it["b2"], 4))
        n0 = len(st.l)
        for h in hooks.get(i, []): h(st)
        pump(i + depth)
        if slots:
            used = 1 + sum(cost(x) for x in st.l[n0:]) // 4 + (1 if i + 1 == nextw else 0)
            room = slots(i) - used + err
            n1 = len(st.l)
            if room >= 1: fill.take(st, 4 * int(room))
            took = sum(cost(x) for x in st.l[n1:]) // 4
            err = max(-1.0, min(1.0, room - took)) if fill.q else 0.0
        else: fill.take(st, budget(i))
        if watch: watch(i, st.l[n0:])
    assert not fill.q

C1 = -2.0 * math.sqrt(2.0 / math.pi) * LOG2E
def p34(st):
    A = [16, 32, 48, 96]; AF = 64; NMP = 88; DEPTH = oi("dep", 5)
    K1, K3, VE3, NM3 = v(92), v(93), v(94), v(95)
    at = oi("st3", 20)
    L = x_loads(st, STT, at)
    stamp(st, "x stored")
    poll(st, vFL, sFA)
    stamp(st, "FXpoll2")
    pre = oi("pre3", 10)
    for f in L[:pre]: f(st)
    nxt(st)
    barrier(st, "30")
    stamp(st, "B(30)")
    items = []; hooks = {}
    def hk(i, f): hooks.setdefault(i, []).append(f)
    def wide(a, off, step=0):
        def rd(st, r):
            if step:
                st.s_add_u32(sRING, sRING, 0x8000 * step); st.s_and_b32(sRING, sRING, 0x1ffff); st.v_add_u32(vA0, sRING, vL16)
            st.ds_read_b128(v(r, 4), a, mods=f"offset:{off}")
        return rd
    def mean(r):
        return dict(rd=lambda st, q: st.ds_read_b32(v(q), aCS3, mods=f"offset:{128*r}"), acc=A[r % 4], b=NMP, first=False)
    n2 = oi("n2", 10); k2 = 0; end = {}; use = {}
    def t2(k): return dict(rd=wide(vA1, k * 1024), acc=A[2], b=XF + 4 * k, first=k == 0)
    for k in range(32):
        use[k] = len(items)
        for t in range(2):
            items.append(dict(rd=wide(vA0, t * 16384 + (k % 16) * 1024, int(k == 16 and t == 0)), acc=A[t], b=XF + 4 * k, first=k == 0))
        if k == 15: g5 = len(items) - 1
        if (k + 1) * n2 // 32 > k2: items.append(t2(k2)); k2 += 1
    items += [mean(0), mean(1)]; end[0] = len(items) - 2; end[1] = len(items) - 1
    items += [t2(k) for k in range(k2, 32)] + [mean(2)]; end[2] = len(items) - 1
    for r in range(3, 6):
        items += [dict(rd=wide(vA0, k * 1024, (2 if r == 3 else 1) if k == 0 else 0), acc=A[r % 4], b=XF + 4 * k, first=k == 0) for k in range(32)]
        items.append(mean(r)); end[r] = len(items) - 1
    T5 = end[4] + 1; P4 = len(items)
    HI = [16 + 4 * i for i in range(4)] + [116, 88] + [XF + 4 * i for i in range(2)] + [32 + 4 * i for i in range(3)]
    breg = lambda k: XF + 4 * k if k < 32 else HI[k - 32]
    for n, it in enumerate(small_items(43, breg, (48, 96))):
        def rd(st, r, it=it, n=n):
            if n % 16 == 0: ring_next(st, "trn")
            a = vA1 if it["t"] else vA0
            st.ds_read_b64_tr_b16(v(r, 2), a, mods=f"offset:{it['off']}")
            st.ds_read_b64_tr_b16(v(r + 2, 2), a, mods=f"offset:{it['off']+512}")
        items.append(dict(rd=rd, acc=it["acc"], b=it["b"], first=it["first"]))
    for n, f in enumerate(L[pre:]): hk(2 * n + 1, f)
    fill = Filler()
    f = Stream()
    stats(f, STT, NM3, K1, VE3)
    f.v_and_b32(vU, 0xffff0000, NM3); f.v_sub_f32(NM3, NM3, vU); f.v_cndmask_b32(vU, vU, NM3, sHALF)
    f.v_cvt_pk_bf16_f32(v(NMP), vU, vU)
    f.v_mul_f32(K3, K1, K1); f.v_mul_f32(K1, f2u(C1), K1); f.v_mul_f32(K3, f2u(0.044715), K3); f.v_mul_f32(K3, K3, K1)
    z = Stream()
    for i in range(1, 4): z.v_mov_b32(v(NMP + i), 0)
    z.v_min_u32(aP4, 20, vFL)
    hk(2, lambda st: fill.add(z))
    hk(use[min(31, at + oi("sth3", 2))], lambda st: fill.add(f))
    hk(end[0] - 2, lambda st: fill.flush(st))
    TM = 112
    def epi(r):
        f = Stream(); a = A[r % 4]
        g = lambda i: v(a + i)
        u = lambda i: v(a + 8 + i)
        tm = lambda i: v(TM + i % 4)
        for t in range(16):
            ok = lambda d: 0 <= t - d < 8
            if ok(3): f.v_exp_f32(g(t - 3), g(t - 3))
            if ok(0): f.v_mul_f32(tm(t), g(t), g(t))
            if ok(1): f.v_fma_f32(tm(t - 1), tm(t - 1), K3, K1)
            if ok(0): f.v_mul_f32(u(t), g(t), u(t))
            if ok(5): f.v_rcp_f32(g(t - 5), g(t - 5))
            if ok(2): f.v_mul_f32(g(t - 2), tm(t - 2), g(t - 2))
            if ok(4): f.v_fma_f32(g(t - 4), g(t - 4), VE3, VE3)
            if ok(6): f.v_mul_f32(g(t - 6), g(t - 6), u(t - 6))
            if ok(7) and t % 2 == 0: f.v_cvt_pk_bf16_f32(u((t - 8) // 2), g(t - 8), g(t - 7))
            if t == 12 and r < 5: f.s_add_u32(sHS, sHST, 16384 * r)
        f.buffer_store_dwordx4(v(a + 8, 4), vL16, WS, sHS if r < 5 else sH5, mods=f"offen {G.SC} {os_('hm', '') if r < oi('hmr', 6) else ''}", tset=f"h{r}")
        return f
    def flag(r):
        f = Stream()
        f.buffer_store_dword(vNON, "off", WS, sFJ if r < 5 else sF5, mods=f"offset:{256+64*r} {G.SC}", tneed=f"h{r}")
        return f
    e = [epi(r) for r in range(6)]
    ri = Stream(); res_init(ri, 48)
    lag = oi("lag", 3)
    for r in range(6):
        parts = [e[r]] + ([ri] if r == 3 else [])
        hk(end[max(r, 1)] + lag, lambda st, parts=parts: [fill.add(p) for p in parts])
        hk(end[r], lambda st, r=r: stamp(st, f"t{r}"))
    hk(end[3], lambda st: fill.drain_until(st, e[0])); hk(end[4], lambda st: fill.drain_until(st, e[1]))
    hk(end[5] - 1, lambda st: fill.drain_until(st, ri))
    fd = [int(x) for x in os_("fd", "38,20,20,18,16,12").split(",")]; fpos = {}
    def watch(i, l):
        for r in range(6):
            if any(("t", f"h{r}") in x.dst for x in l): fpos[r] = i + fd[r]; hk(i + fd[r], lambda st, r=r: (stamp(st, f"f{r}a"), st.extend(flag(r)), stamp(st, f"f{r}b")))
    b3, b4 = oi("bud3", 16), oi("bud4", 16)
    def bud(i):
        b = oi("bud0", 12) if i < end[1] else b3 if i < P4 - DEPTH else b4
        if b % 4: b += 2 if i % 2 else -2
        return b - (4 if i in hooks and oi("budh", 1) else 0)
    o = oi("b4", 10)
    for i, name in ((g5 + oi("c1d", 4), "3a"), (end[1], "3b"), (end[2], "3c"), (end[3], "3d"), (end[4], "3f"), (end[5], "3g"),
                    (P4 + o, "4a"), (P4 + 16 + o, "4b"), (P4 + 32 + o, "4c"), (P4 + 48 + o, "4d"), (P4 + 64 + o, "4e")):
        hk(i, lambda st, name=name: (stamp(st, f"{name}a"), barrier(st, name), stamp(st, f"{name}b")))
    for i in (16, 32, 48, 64): hk(P4 + i, lambda st, i=i: stamp(st, f"q{i}"))
    HL = frag_loads(sHLD, [breg(k) for k in range(43)], 2048, 2)
    if OPT.get("noH"): HL = [lambda st: None] * 43
    ne = oi("early4", 12)
    ck = [T5 + oi("chkA", 10), P4 + oi("chk2", 0), P4 + oi("chk3", 16), P4 + oi("chk4", 42), P4 + oi("chk5", 65)]
    sl = oi("sl", 12); ev = float(OPT.get("ev4", 2)); pos = []
    for k in range(43):
        g = max(0, k // 8 - 1)
        p = ck[0] + 1 + k * float(OPT.get("ev3", 2)) if k < ne else pos[-1] + ev
        pos.append(max(p, ck[g]) if k < 40 else ck[4])
    pos = [int(p) for p in pos]
    hk(ck[0] - sl - 1, lambda st: (st.v_and_b32(vV, 31, vL), st.v_lshlrev_b32(vV, 2, vV)))
    for g, (addr, off) in enumerate(((vV, 256), (vFL, 384), (vFL, 448), (vFL, 512), (aP4, 576))):
        assert g == 0 or ck[g] - sl > ck[g - 1]
        if OPT.get("nochk"): continue
        hk(ck[g] - sl, lambda st, addr=addr, off=off: st.buffer_load_dword(vS4, addr, WS, sFB, mods=f"offen offset:{off} sc1"))
        hk(ck[g], lambda st, addr=addr, off=off, g=g: (stamp(st, f"k{g}a"), soft_check(st, vS4, addr, sFB, off), stamp(st, f"k{g}b")))
    def last(st):
        assert 5 in fpos and fpos[5] < ck[4]
        nxt(st)
    hk(ck[4], last)
    for k in range(43):
        assert pos[k] < P4 + 2 * k and (k >= 32 or pos[k] >= T5 + k), (k, pos[k])
        hk(pos[k], HL[k])
    hk(pos[32] - 1, lambda st: fill.drain_until(st, e[4]))
    sl_ = None
    if float(OPT.get("sl3", 7)):
        s0_, s3_, s4_ = [float(OPT.get(k, d)) for k, d in (("sl0", 7), ("sl3", 7), ("sl4", 8))]
        sl_ = lambda i: s0_ if i < end[1] else s3_ if i < P4 - DEPTH else s4_
    g0_, g3_, g4_ = oi("gw0", 2), oi("gw3", 2), oi("gw4", 2)
    def gw_(i):
        g = g0_ if i < end[1] else g3_ if i < P4 else g4_
        return min(g, P4 - i) if i < P4 else g
    if g4_ == 4 or oi("gv4", 0):
        for i in range(P4, len(items) - 2, 4): items[i]["b2"] = items[i + 2]["b"]
    stream(st, items, AF, 6, DEPTH, hooks, fill, bud, watch, sl_, gw_)
    if G.TAG == "f": print("T3", end[2] + 1, "T4", end[3] + 1, "T5", T5, "P4", P4, "flags", fpos, "checks", ck, "loads", pos, file=sys.stderr)
    stamp(st, "P4gemm")
    xepi(st, True)

def body(st, first):
    stop = OPT["stop"]
    T = G.TAG
    st.label(f".Lpair_{T}"); st.mark("reset")
    G.SEQ = SEQA; p1a(st)
    G.SEQ = SEQC
    if first:
        st.mark("merge", "from0"); st.label(".Lk_f")
    p1b(st); p1c(st)
    if stop == "p1": st.s_branch(".Lend"); return
    p2(st)
    if stop == "p2": st.s_branch(".Lend"); return
    p34(st)
    stamp(st, "end")
    stamp(st, 63, True)
    if OPT.get("dbg") == "2":
        if OPT.get("wb"):
            st.wait(vm=0); st.raw("    buffer_wbl2 sc0 sc1"); st.raw("    s_waitcnt vmcnt(0)")
        L = newlab("pad")
        st.s_mov_b32(s(87), 7000)
        if OPT.get("early"): st.s_cmp_lt_u32(s(2), int(OPT["early"])); st.s_cselect_b32(s(87), 6000, s(87))
        if OPT.get("cap"):
            if OPT.get("capr"): st.s_sub_u32(s(43), s(43), s(42))
            else: st.s_sub_u32(s(43), s(43), s(86)); st.s_lshr_b32(s(43), s(43), 2)
            st.s_min_u32(s(43), s(43), 40000); st.s_add_u32(s(87), s(87), s(43))
        st.label(L)
        st.s_memrealtime(s(100, 2)); st.wait(lgkm=0); st.s_sub_u32(s(100), s(100), s(42)); st.s_cmp_lt_u32(s(100), s(87)); st.s_cbranch_scc1(L)
    elif OPT.get("dbg"):
        st.s_load_dwordx2(s(44, 2), s(0, 2), 72); st.s_memrealtime(s(100, 2)); st.wait(lgkm=0)
        st.s_and_b32(s(45), s(45), 0xffff); st.s_mov_b32(s(46), 256); st.s_mov_b32(s(47), 0x20000)
        st.s_not_b32(s(42), s(42)); st.v_mov_b32(vT, s(42)); st.v_mov_b32(vU, s(100)); st.s_not_b32(s(100), s(100)); st.v_mov_b32(vV, s(100))
        st.raw("    buffer_atomic_umax v13, off, s[44:47], 0")
        st.raw("    buffer_atomic_umax v14, off, s[44:47], 0 offset:4")
        st.raw("    buffer_atomic_umax v15, off, s[44:47], 0 offset:8")
        st.s_not_b32(s(42), s(42)); st.v_mov_b32(vT, s(42))
        st.raw("    s_nop 4")
        st.raw("    buffer_atomic_umax v13, off, s[44:47], 0 offset:12")
    st.s_or_b32(sT0, s(2), sW); st.s_cmp_lg_u32(sT0, 0); st.s_cbranch_scc1(".Lend")
    st.v_add_u32(vNON, 22, vNON)
    st.buffer_store_dword(vNON, "off", WS, 0, mods=f"offset:{EPOCH} sc1")
    st.s_branch(".Lend")

SEQ0, SEQA, SEQC = [], [], []
def compute(st):
    G.SEQ = SEQ0
    p1a0(st)
    st.mark("save", "from0")
    st.s_branch(".Lk_f")
    G.SC, G.TAG = "", "f"
    body(st, True)

def compute_slow(st):
    G.SC, G.TAG, G.REC = "sc1", "s", False
    body(st, False)

sW8, sQK, sWOb, sGU, sWD5, sWI = s(74), s(75), s(76), s(77), s(78), s(79)
sWDb = [s(80 + i) for i in range(4)]
GU = 64
vKV, vQ, vW, vWR0, vWR1 = v(2), v(4), v(5), v(6), v(7)
vGG = [v(8), v(9), v(10)]; vGL = [v(16), v(17), v(18)]; vGT = v(19)
vC0, vC1, vCW, vCR = v(20), v(21), v(22), v(23)
SEL = 24; CACC = 28
FRS = [36, 40, 44, 48, 52]; WRAW = 56
vDUM = [v(11), v(60), v(61), v(62)]
GSTR = 448

def LDSW(st):
    for i in reversed(st.l):
        if i.name == "s_barrier" or (i.name == "s_waitcnt" and "lgkmcnt(0)" in i.ops[0]): return False
        if i.kind == "ds": return True
    return False

def POL(srd):
    k = {WQ: "pq", WO_: "po", WD: "pd", WG: "pg", WU: "pg"}.get(srd)
    x = os_(k, "") if k else ""
    return " " + x.replace("+", " ") if x else ""

def loader(st):
    st.v_lshrrev_b32(vT, 3, vL); st.v_bfe_u32(vU, vL, 4, 1); st.v_lshlrev_b32(vU, 2, vU); st.v_and_b32(vV, 7, vL); st.v_xor_b32(vU, vU, vV)
    st.v_mul_u32_u24(vKV, 3072, vT); st.v_and_b32(vV, 3, vU); st.v_lshl_add_u32(vKV, vV, 4, vKV)
    st.v_lshrrev_b32(vV, 2, vU); st.v_mul_u32_u24(vQ, 256 * 3072, vV); st.v_add_u32(vQ, vQ, vKV)
    st.v_lshl_add_u32(vKV, vV, 10, vKV); st.v_add_u32(vKV, 1024, vKV)
    st.v_lshlrev_b32(vW, 10, vT); st.v_lshl_add_u32(vW, vU, 4, vW)
    st.s_lshl_b32(sW8, sM, 13)
    st.s_mul_i32(sQK, sM, 64 * 3072); st.s_lshl_b32(sT0, sJ, 6); st.s_add_u32(sQK, sQK, sT0)
    sKVr = [s(84), s(85)]; sQJ = s(88); vQ0 = v(GU)
    rot(st, s(89), sT1); st.s_add_u32(s(89), s(89), sM)
    st.s_lshl_b32(sQJ, sJ, 6)
    st.s_and_b32(sT1, s(89), 7); st.s_mul_i32(sKVr[0], sT1, 64 * 3072); st.s_add_u32(sKVr[0], sKVr[0], sQJ)
    st.s_and_b32(sWI, sC, 1); st.s_lshl_b32(sWI, sWI, 4); st.s_add_u32(sWI, sWI, sJ); st.s_lshl_b32(sWI, sWI, 2); st.s_add_u32(sWI, sWI, sM)
    if not oi("fast0", 1) or os_("e0", "Tkv,c0,non,wld"):
        st.wait(lgkm=0)
        srds(st, [WQ])
    chunks = []
    for pair in range(2):
        chunks += [("kv", 0), ("kv", 1), ("q", 0), ("wo", 0), ("wo", 1), ("gp", 0), ("gp", 1)] + [("gs", r) for r in range(2, 6)]
        chunks += [("wd", r) for r in range(6)]
    N = len(chunks)
    issued = set()
    SQ = []
    def spf(n):
        for _ in range(min(n, len(SQ))): SQ.pop(0)()
    def squeue(kind):
        if kind[0] == "k":
            i0 = 32 if kind == "k2" else 0
            for i in range(i0, 64):
                def f(i=i):
                    if i == i0:
                        st.s_lshr_b32(s(90), sWI, 4); st.s_mul_i32(s(90), s(90), 3072); st.s_and_b32(s(91), sWI, 15); st.s_lshl_b32(s(91), s(91), 7)
                        st.s_add_u32(s(91), s(91), s(90)); st.s_add_u32(s(44), s(46), s(91)); st.s_addc_u32(s(45), s(47), 0)
                    if i == 32: st.s_add_u32(s(44), s(44), 32 * 24576); st.s_addc_u32(s(45), s(45), 0)
                    x = Ins("s_load_dwordx2", [s(86, 2), s(44, 2), hex(i % 32 * 24576 + 1024 + 60)]); x.dst = set(); st.l.append(x)
                SQ.append(f)
            return
        base, cnt = dict(w=(46, 96), o=(50, 32), d=(58, 86), g=(54, 86), u=(56, 86))[kind[0]]
        if len(kind) > 1: cnt = int(kind[1:])
        for i in range(cnt):
            def f(i=i):
                if i == 0:
                    st.s_lshl_b32(s(91), sWI, 7); st.s_add_u32(s(44), s(base), s(91)); st.s_addc_u32(s(45), s(base + 1), 0)
                if i == 48: st.s_add_u32(s(44), s(44), 48 * 16384); st.s_addc_u32(s(45), s(45), 0)
                x = Ins("s_load_dwordx2", [s(86, 2), s(44, 2), hex(i % 48 * 16384 + 60)]); x.dst = set(); st.l.append(x)
            SQ.append(f)
    PART = [0, 8]
    def dma(n, addr, srd, offs):
        slot = (n % 4) * 32768
        for i, (base, off, lds) in enumerate(offs):
            if not PART[0] <= i < PART[1]: continue
            st.s_add_u32("m0", lds[0], slot + lds[1])
            st.s_add_u32(sT0, base, off)
            st.buffer_load_dwordx4(addr, srd, sT0, mods="offen" + POL(srd) + " lds", tset=f"c{n}" if i == len(offs) - 1 else None)
    def issue(n):
        if n >= N: return
        assert n not in issued
        if PART[1] == 8: issued.add(n)
        kind, a = chunks[n]
        if kind == "kv" and n < 17:
            if a == 1: st.s_xor_b32(sT1, s(89), 4); st.s_and_b32(sT1, sT1, 7); st.s_mul_i32(sKVr[1], sT1, 64 * 3072); st.s_add_u32(sKVr[1], sKVr[1], sQJ)
            dma(n, vKV, WQ, [(sKVr[a], 8 * i * 3072, (sW8, 1024 * i)) for i in range(8)])
        elif kind == "q" and n < 17:
            st.v_add_u32(vT, sKVr[0], vQ); st.v_subrev_u32(vU, 512 * 3072, vT); st.v_min_u32(vQ0, vT, vU)
            dma(n, vQ0, WQ, [("0", 8 * i * 3072, (sW8, 1024 * i)) for i in range(8)])
        elif kind == "kv": dma(n, vKV, WQ, [(sQK, (256 * a + 8 * i) * 3072, (sW8, 1024 * i)) for i in range(8)])
        elif kind == "q": dma(n, vQ, WQ, [(sQK, 8 * i * 3072, (sW8, 1024 * i)) for i in range(8)])
        elif kind == "wo": dma(n, vW, WO_, [(sWOb, (256 * a + 8 * i) * 1024, (sW8, 1024 * i)) for i in range(8)])
        elif kind == "wd" and a < 5: dma(n, vW, WD, [(sWDb[i // 2], (16 * a + 8 * (i % 2)) * 1024, (sW8, 1024 * i)) for i in range(8)])
        elif kind == "wd":
            slot = (n % 4) * 32768
            for e in range(3):
                st.s_mul_i32(sT1, sM, 3); st.s_add_u32(sT1, sT1, e)
                st.s_lshr_b32(sT0, sT1, 1); st.s_mul_i32(sT0, sT0, 96 * 1024); st.s_and_b32(sT2, sT1, 1); st.s_lshl_b32(sT2, sT2, 13)
                st.s_add_u32(sT0, sT0, sT2); st.s_add_u32(sT0, sT0, sWD5)
                st.s_lshl_b32(sT1, sT1, 10); st.s_add_u32("m0", sT1, slot)
                st.buffer_load_dwordx4(vW, WD, sT0, mods="offen" + POL(WD) + " lds", tset=f"c{n}" if e == 2 else None)
        else:
            slot = n % 4; wr = vWR1 if slot >= 2 else vWR0; so = (slot & 1) * 32768
            for t in range(2):
                for k in range(4):
                    g, fr = (4 * a + k, t) if kind == "gp" else (4 * t + k, a)
                    st.ds_write_b128(wr, v(GU + 24 * g + 4 * fr, 4), mods=f"offset:{so + t*16384 + k*1024}", tset=f"c{n}" if (t, k) == (1, 3) else None)
    FREE = [GU + 24 * g + 4 * fr for h in (0, 2) for g in range(8) for fr in (h, h + 1)]
    def stg(n):
        a = chunks[n][1]
        if n < 17:
            assert a == 5; return [48, 52, 56]
        o = {3: 0, 4: 8, 2: 16, 5: 24}[a]
        return FREE[o:o + 8]
    def stage(n):
        kind, a = chunks[n]; assert kind == "wd"
        r = stg(n)
        if a < 5:
            for i in range(8):
                st.s_add_u32(sT0, sWDb[i // 2], (16 * a + 8 * (i % 2)) * 1024)
                st.buffer_load_dwordx4(v(r[i], 4), vW, WD, sT0, mods="offen")
        else:
            for e in range(3):
                st.s_mul_i32(sT1, sM, 3); st.s_add_u32(sT1, sT1, e)
                st.s_lshr_b32(sT0, sT1, 1); st.s_mul_i32(sT0, sT0, 96 * 1024); st.s_and_b32(sT2, sT1, 1); st.s_lshl_b32(sT2, sT2, 13)
                st.s_add_u32(sT0, sT0, sT2); st.s_add_u32(sT0, sT0, sWD5)
                st.buffer_load_dwordx4(v(r[e], 4), vW, WD, sT0, mods="offen")
    def unstage(n):
        kind, a = chunks[n]; r = stg(n); slot = (n % 4) * 32768
        assert n not in issued; issued.add(n)
        if a < 5: st.s_add_u32(sT0, sW8, slot)
        else: st.s_mul_i32(sT0, sM, 3072); st.s_add_u32(sT0, sT0, slot)
        st.v_add_u32(vT, sT0, vL16)
        for i in range(8 if a < 5 else 3): st.ds_write_b128(vT, v(r[i], 4), mods=f"offset:{1024*i}")
    def prologue():
        F0 = oi("fast0", 1)
        if F0:
            if os_("e0", "Tkv,c0,non,wld"):
                srds(st, [WS, WP, WO_, WG, WU, WD, OUT])
                run(os_("e0", "Tkv,c0,non,wld").split(","), 0)
        else:
            issue(0)
            if oi("kv1first", 1): issue(1)
        if not oi("cfirst", 1):
            st.mark("save", "ld1"); st.s_branch(".Lloader")
            st.label(".Lcomp"); st.mark("reset")
            compute(st)
            st.label(".Lloader"); st.mark("restore", "ld1")
        if not F0 and not oi("kv1first", 1): issue(1)
        def late():
            if not (F0 and os_("e0", "Tkv,c0,non,wld")):
                st.wait(lgkm=0)
                srds(st, [WQ, WS, WP, WO_, WG, WU, WD])
            stamp_base(st)
            stamp(st, "start", who="l", pair=0)
        if not F0 or os_("e0", "Tkv,c0,non,wld"): late()
        st.s_lshl_b32(sWOb, sM, 16); st.s_lshl_b32(sT0, sCG, 7); st.s_add_u32(sWOb, sWOb, sT0)
        for e in range(4):
            st.s_lshl_b32(sT1, sM, 2); st.s_add_u32(sT1, sT1, e)
            st.s_mul_i32(sT2, sT1, 6); st.s_mul_i32(sT3, sT1, 5); st.s_add_u32(sT3, sT3, 6); st.s_min_u32(sT2, sT2, sT3)
            st.s_lshl_b32(sT2, sT2, 14); st.s_add_u32(sWDb[e], sT2, sT0)
        st.s_add_u32(sWD5, sT0, 80 * 1024)
        st.s_mul_i32(sT2, sJ, 6); st.s_mul_i32(sT3, sJ, 5); st.s_add_u32(sT3, sT3, 6); st.s_min_u32(sT2, sT2, sT3)
        st.s_lshl_b32(sT2, sT2, 5); st.s_mul_i32(sGU, sM, 64 * 2752); st.s_add_u32(sGU, sGU, sT2)
        st.s_cmp_eq_u32(sT6, 1); st.s_cselect_b32(sT1, 12, 10)
        st.s_lshl_b32(sT2, sM, 12); st.s_add_u32(sT2, sT2, 32768)
        for i in range(3):
            st.v_add_u32(vT, 64 * i, vL); st.v_mul_u32_u24(vU, 5462, vT); st.v_lshrrev_b32(vU, 16, vU)
            st.v_mul_u32_u24(vV, 12, vU); st.v_sub_u32(vT, vT, vV)
            st.v_mul_u32_u24(vGG[i], 2752, vU); st.v_lshl_add_u32(vGG[i], vT, 4, vGG[i])
            st.v_cmp_gt_u32("vcc", sT1, vT); st.v_mov_b32(vV, 0x80000000); st.v_cndmask_b32(vGG[i], vV, vGG[i], "vcc")
            st.v_and_b32(vV, 7, vU); st.v_mul_u32_u24(vGL[i], GSTR, vV); st.v_lshrrev_b32(vV, 3, vU); st.v_lshl_add_u32(vGL[i], vV, 14, vGL[i])
            st.v_lshrrev_b32(vV, 1, vT); st.v_lshl_add_u32(vGL[i], vV, 6, vGL[i])
            st.v_and_b32(vV, 1, vT); st.v_lshl_add_u32(vGL[i], vV, 4, vGL[i]); st.v_add_u32(vGL[i], sT2, vGL[i])
        lane_tr(st, vGT, None, "nat", stride=GSTR, hstride=16384); st.v_add_u32(vGT, sT2, vGT)
        lane_tr(st, vC0, vC1, "qkv")
        st.s_lshl_b32(sT0, sM, 12); st.v_add_u32(vWR0, sT0, vL16); st.v_add_u32(vWR1, 65536, vWR0)
        st.v_bfe_u32(vT, vL, 4, 1); st.v_and_b32(vU, 1, vL); st.v_cmp_eq_u32("vcc", vT, vU)
        st.v_mov_b32(vV, 0x3f803f80)
        for i in range(4): st.v_cndmask_b32(v(SEL + i), 0, vV, "vcc")
        st.v_lshlrev_b32(vCW, 6, vT); st.v_lshl_add_u32(vCW, vU, 5, vCW); st.v_lshrrev_b32(vT, 5, vL); st.v_lshl_add_u32(vCW, vT, 4, vCW)
        if F0 and not os_("e0", "Tkv,c0,non,wld"): late()
    def publish():
        L = newlab("pub")
        st.v_add_u32(vNON, sXC, vNON); st.v_add_u32(vNON, 16, vNON)
        st.s_lshl_b32(sT0, sC, 7); st.s_lshl_b32(sT1, sJ, 2); st.s_add_u32(sT0, sT0, sT1); st.s_add_u32(sT0, sT0, XCCT)
        st.s_cmp_lg_u32(sM, 0); st.mark("save", L); st.s_cbranch_scc1(L)
        st.buffer_store_dword(vNON, "off", WS, sT0, mods="sc1")
        st.mark("merge", L); st.label(L)
    dn = [0]
    def dum():
        dn[0] += 1
        return vDUM[dn[0] % 4]
    def tload(addr, srd, soff):
        i = Ins("buffer_load_dword", [dum(), addr, srd, str(soff)], "offen" + POL(srd)); i.dst = set(); st.l.append(i)
    def touch(kind):
        if kind == "wd":
            st.s_mul_i32(sT0, sWI, 86 * 128); st.v_lshlrev_b32(vT, 7, vL); tload(vT, WD, sT0)
            st.v_min_u32(vU, 21, vL); st.v_lshlrev_b32(vU, 7, vU); st.s_add_u32(sT0, sT0, 8192); tload(vU, WD, sT0)
        elif kind[:2] == "wf":
            n = int(kind[2:]); assert n <= 64
            st.s_mul_i32(sT0, sWI, n * 128); st.v_min_u32(vT, n - 1, vL); st.v_lshlrev_b32(vT, 7, vT); tload(vT, WD, sT0)
        elif kind[:2] == "wd":
            n = int(kind[2:]); c = 86 - n; assert c <= 64
            st.s_mul_i32(sT0, sWI, c * 128); st.s_add_u32(sT0, sT0, n * 16384); st.v_min_u32(vT, c - 1, vL); st.v_lshlrev_b32(vT, 7, vT); tload(vT, WD, sT0)
        elif kind == "out":
            st.s_lshl_b32(sT0, sC, 4); st.s_add_u32(sT0, sT0, sJ); st.s_lshl_b32(sT0, sT0, 2); st.s_add_u32(sT0, sT0, sM); st.s_lshl_b32(sT0, sT0, 11)
            st.v_lshlrev_b32(vT, 5, vFL); tload(vT, OUT, sT0)
        elif kind in ("g", "u"):
            D = WG if kind == "g" else WU
            st.s_mul_i32(sT0, sWI, 86 * 128); st.v_lshlrev_b32(vT, 7, vL); tload(vT, D, sT0)
            st.v_min_u32(vU, 21, vL); st.v_lshlrev_b32(vU, 7, vU); st.s_add_u32(sT0, sT0, 8192); tload(vU, D, sT0)
        elif kind in ("ga", "gb"):
            st.s_mul_i32(sT0, sWI, 43 * 128); st.v_min_u32(vT, 42, vL); st.v_lshlrev_b32(vT, 7, vT)
            if kind == "gb": st.s_add_u32(sT0, sT0, 256 * 2752)
            tload(vT, WG, sT0); tload(vT, WU, sT0)
        elif kind in ("kv0", "kv1"):
            st.v_bfe_u32(vT, vL, 4, 1); st.v_mul_u32_u24(vT, 3072, vT); st.v_lshl_add_u32(vT, vFL, 5, vT)
            st.s_mul_i32(sT0, sWI, 2 * 3072); st.s_add_u32(sT0, sT0, 1024 + 256 * 3072 * int(kind[2])); tload(vT, WQ, sT0)
        elif kind == "kv":
            st.v_lshrrev_b32(vT, 4, vL); st.v_mul_u32_u24(vT, 3072, vT); st.v_lshl_add_u32(vT, vFL, 5, vT)
            st.s_mul_i32(sT0, sWI, 4 * 3072); st.s_add_u32(sT0, sT0, 1024); tload(vT, WQ, sT0)
        elif kind == "q":
            st.v_bfe_u32(vT, vL, 3, 2); st.v_mul_u32_u24(vT, 3072, vT); st.v_and_b32(vU, 7, vL); st.v_lshl_add_u32(vT, vU, 7, vT)
            st.s_mul_i32(sT0, sWI, 4 * 3072); tload(vT, WQ, sT0)
        elif kind == "wo":
            st.v_and_b32(vT, 31, vL); st.v_lshlrev_b32(vT, 7, vT); st.s_lshl_b32(sT0, sWI, 12); tload(vT, WO_, sT0)
        elif kind == "h":
            st.s_lshl_b32(sT0, sC, 4); st.s_add_u32(sT0, sT0, sJ); st.s_lshl_b32(sT0, sT0, 2); st.s_add_u32(sT0, sT0, sM)
            st.s_mul_i32(sT0, sT0, 43 * 128); st.s_add_u32(sT0, sT0, HB)
            st.v_min_u32(vT, 42, vL); st.v_lshlrev_b32(vT, 7, vT); tload(vT, WS, sT0)
        elif kind in ("h0", "h1"):
            n, o = (16, 0) if kind == "h0" else (27, 32768)
            st.s_lshl_b32(sT0, sC, 2); st.s_add_u32(sT0, sT0, sM); st.s_mul_i32(sT0, sT0, HB_TB)
            st.s_mul_i32(sT1, sJ, n * 128); st.s_add_u32(sT0, sT0, sT1); st.s_add_u32(sT0, sT0, HB + o)
            st.v_min_u32(vT, n - 1, vL); st.v_lshlrev_b32(vT, 7, vT); tload(vT, WS, sT0)
        elif kind == "x" and XO:
            st.s_lshl_b32(sT0, sC, 4); st.s_add_u32(sT0, sT0, sJ); st.s_lshl_b32(sT0, sT0, 2); st.s_add_u32(sT0, sT0, sM)
            st.s_lshl_b32(sT1, sT0, 11); st.v_lshlrev_b32(vT, 5, vFL); tload(vT, OUT, sT1)
            st.s_lshl_b32(sT2, sT0, 8); st.s_add_u32(sT2, sT2, ST)
            st.s_lshl_b32(sT3, sC, 2); st.s_add_u32(sT3, sT3, sM); st.s_lshl_b32(sT3, sT3, 10); st.s_add_u32(sT3, sT3, FL - 2 * 128)
            st.v_mov_b32(vU, sT2); st.v_mov_b32(vV, sT3); st.v_cmp_le_u32("vcc", 2, vL); st.v_cndmask_b32(vU, vU, vV, "vcc")
            st.v_min_u32(vT, 6, vL); st.v_lshl_add_u32(vT, vT, 7, vU); tload(vT, WS, 0)
        elif kind == "x":
            st.s_lshl_b32(sT0, sC, 4); st.s_add_u32(sT0, sT0, sJ); st.s_lshl_b32(sT0, sT0, 2); st.s_add_u32(sT0, sT0, sM)
            st.s_lshl_b32(sT1, sT0, 11); st.s_add_u32(sT1, sT1, XB)
            st.s_lshl_b32(sT2, sT0, 8); st.s_add_u32(sT2, sT2, ST - 16 * 128)
            st.s_lshl_b32(sT3, sC, 2); st.s_add_u32(sT3, sT3, sM); st.s_lshl_b32(sT3, sT3, 10); st.s_add_u32(sT3, sT3, FL - 18 * 128)
            st.v_mov_b32(vU, sT1); st.v_mov_b32(vV, sT2); st.v_cmp_le_u32("vcc", 16, vL); st.v_cndmask_b32(vU, vU, vV, "vcc")
            st.v_mov_b32(vV, sT3); st.v_cmp_le_u32("vcc", 18, vL); st.v_cndmask_b32(vU, vU, vV, "vcc")
            st.v_min_u32(vT, 22, vL); st.v_lshl_add_u32(vT, vT, 7, vU); tload(vT, WS, 0)
        elif kind == "code":
            st.s_getpc_b64(s(100, 2))
            L = newlab("pc")
            st.label(L)
            st.raw(f"    s_sub_u32 s100, s100, {L}-{NAME}_kernel")
            st.raw("    s_subb_u32 s101, s101, 0")
            st.v_lshlrev_b32(vT, 7, vL); st.s_lshl_b32(sT0, sM, 13); st.v_add_u32(vT, sT0, vT)
            i = Ins("global_load_dword", [dum(), vT, s(100, 2)]); i.dst = set(); st.l.append(i)
            st.v_add_u32(vU, 32768, vT); st.v_min_u32(vU, f".Lslow-{NAME}_kernel", vU)
            i = Ins("global_load_dword", [dum(), vU, s(100, 2)]); i.dst = set(); st.l.append(i)
    gl = []
    for g in range(8):
        k0 = (16 * (g // 4) + (g % 4)) * 16
        for m_, srd in enumerate((WG, WU)):
            for i in range(3):
                def f(g=g, k0=k0, m_=m_, srd=srd, i=i):
                    if i == 0: st.s_add_u32(sLD, sGU, k0 * 2752)
                    st.buffer_load_dwordx4(v(GU + 24 * g + 12 * m_ + 4 * i, 4), vGG[i], srd, sLD, mods="offen" + POL(srd))
                gl.append(f)
    def gu_loads(cnt):
        for _ in range(min(cnt, len(gl))):
            f = gl.pop(0)
            if not OPT.get("noG"): f()
    def colsum(n, steps, first, lo, hi, dst=None):
        L = newlab("cs")
        st.s_sub_u32(sT0, sM, lo); st.s_cmp_ge_u32(sT0, hi - lo); st.mark("save", L); st.s_cbranch_scc1(L)
        nf = len(FRS)
        def rd(k):
            a, off = steps[k]; r = FRS[k % nf]
            st.ds_read_b64_tr_b16(v(r, 2), a, mods=f"offset:{off}"); st.ds_read_b64_tr_b16(v(r + 2, 2), a, mods=f"offset:{off+512}")
        for k in range(nf - 1): rd(k)
        for k in range(len(steps)):
            acc = v(CACC + 4 * (k & 1), 4)
            st.v_mfma_f32_16x16x32_bf16(acc, v(FRS[k % nf], 4), v(SEL, 4), "0" if first and k < 2 else acc)
            if k + nf - 1 < len(steps): rd(k + nf - 1)
        if dst is not None:
            for i in range(4): st.v_add_f32(v(CACC + i), v(CACC + i), v(CACC + 4 + i))
            st.ds_write_b128(dst, v(CACC, 4))
        st.mark("merge", L); st.label(L)
    def transpose(g):
        b = GU + 24 * g
        for m_ in range(2):
            for i in range(3): st.ds_write_b128(vGL[i], v(b + 12 * m_ + 4 * i, 4), mods=f"offset:{32*m_}")
        for t in range(6):
            for u in range(2): st.ds_read_b64_tr_b16(v(b + 4 * t + 2 * u, 2), vGT, mods=f"offset:{u*4*GSTR + t*64}")
    def tsum(g):
        b = GU + 24 * g
        for t in range(6):
            st.v_mfma_f32_16x16x32_bf16(v(CACC + 4 * t, 4), v(b + 4 * t, 4), v(SEL, 4), "0" if g == 0 else v(CACC + 4 * t, 4))
    tr_next = [0]
    def transposes(cnt):
        gs = list(range(tr_next[0], min(8, tr_next[0] + cnt))); tr_next[0] += len(gs)
        for i, g in enumerate(gs):
            transpose(g)
            if i > 0: tsum(gs[i - 1])
        tsum(gs[-1])
    def gu_partial():
        st.s_mul_i32(sT0, sM, 768); st.s_add_u32(sT0, sT0, L_VB); st.v_add_u32(vT, sT0, vCW)
        for i in range(6): st.ds_write_b128(vT, v(CACC + 4 * i, 4), mods=f"offset:{128*i}")
    def gu_reduce():
        st.v_min_u32(vCR, 6 * 128 - 16, vL16)
        st.v_add_u32(vT, L_VB, vCR)
        for w in range(4): st.ds_read_b128(v(CACC + 4 * w, 4), vT, mods=f"offset:{w*768}")
        for i in range(4):
            st.v_add_f32(v(CACC + i), v(CACC + i), v(CACC + 4 + i)); st.v_add_f32(v(CACC + 8 + i), v(CACC + 8 + i), v(CACC + 12 + i))
        for i in range(4): st.v_add_f32(v(CACC + i), v(CACC + i), v(CACC + 8 + i))
        for i in range(4):
            st.v_and_b32(v(CACC + 4 + i), 0xffff0000, v(CACC + i)); st.v_sub_f32(v(CACC + i), v(CACC + i), v(CACC + 4 + i))
            st.v_cvt_pk_bf16_f32(v(CACC + i), v(CACC + 4 + i), v(CACC + i))
        st.v_and_b32(vT, 0x380, vCR); st.v_and_b32(vU, 0x30, vCR); st.v_lshl_add_u32(vT, vU, 1, vT)
        st.v_bfe_u32(vU, vCR, 6, 1); st.v_lshl_add_u32(vT, vU, 4, vT); st.v_add_u32(vT, L_CS + 384, vT)
        st.ds_write_b128(vT, v(CACC, 4))
    def cs_kv(a):
        if a == 0:
            st.s_lshl_b32(sT0, sM, 6); st.v_xor_b32(vCR, sT0, vC0)
        else:
            st.s_lshl_b32(sT0, sM, 7); st.s_add_u32(sT0, sT0, L_CS); st.v_add_u32(vV, sT0, vCW)
        colsum(a, [(vCR, 32768 * a + 2048 * k) for k in range(16)], a == 0, 0, 2, dst=vV if a == 1 else None)
    def cs_q():
        st.v_add_u32(vT, 65536, vC0); st.v_add_u32(vU, 65536, vC1); st.v_add_u32(vV, L_CS + 256, vCW)
        colsum(2, [(a, 2048 * k) for k in range(16) for a in (vT, vU)], True, 2, 3, dst=vV)

    need = {"a0": [0], "a1": [1], "g": [3, 4], "30": [5, 6, 7, 8], "3c": [9], "3d": [10], "3f": [11], "4a": [12], "4b": [13], "4c": [14], "4d": [15], "4e": [16]}
    S0 = os_("s0", "start:c1;a0:c2,csk0;a1:csk1,wst,sigA,pub,G8,sigq,G16,wsig,X2,G12,X2,G12,X2,c3,c4,X2,Th0,Tx;g:part,c5,c6,Qk,S21;p2:Th1,S7;X2:c7,c8;")
    S0 += os_("s0b", "30:red,wst;3a:c9,Twd,nd;3b:c10,nd;3d:c11,c12;3f:c13,S4;3g:c14,S4;4a:S7;4b:c15,S7;4c:c16,S7;4d:S7;4e:c17;X4:c18")
    S1 = os_("s1", "a2:c2,sig,c3,c4;g:c5,c6;p2:Twf32;X2:c7,c8;")
    S1 += os_("s1b", "3a:c9,Twd32,nd;3b:c10,nd;3c:c11,r15,r16;3d:c12;3f:c13;3g:c14;4b:u15;4c:u16")
    def acts(txt):
        d = {}
        for part in txt.split(";"):
            k, _, l = part.partition(":"); d[k] = l.split(",")
        return d
    DR = [False]
    def run(lst, o):
        for a in lst:
            DR[0] = False
            if a == "q": issue(2)
            elif a == "pub": publish()
            elif a == "wld": st.s_lshl_b32(sT0, sJ, 10); st.buffer_load_dwordx4(v(WRAW, 4), vL16, WP, sT0, mods="offen")
            elif a == "wst":
                st.v_bfe_u32(vT, vL, 3, 2); st.v_mul_u32_u24(vT, 576, vT); st.v_lshrrev_b32(vU, 5, vL); st.v_lshl_add_u32(vT, vU, 7, vT)
                st.v_and_b32(vU, 112, vL16); st.v_add_u32(vT, vT, vU); st.v_add_u32(vT, L_KVB, vT)
                st.ds_write_b128(vT, v(WRAW, 4))
            elif a == "non": st.buffer_load_dword(vNON, "off", WS, 0, mods=f"offset:{EPOCH} sc1")
            elif a == "sig":
                st.l.append(Ins("s_nop", ["0"], tneed=f"c{o+2}")); signal(st, 1 + o // 17)
            elif a == "sigA": signal(st, 1, 16)
            elif a == "sigq":
                L = newlab("sq")
                st.l.append(Ins("s_nop", ["0"], tneed=f"c{o+2}")); signal(st, 1, 32)
                st.s_cmp_lg_u32(sM, 2); st.mark("save", L); st.s_cbranch_scc1(L)
                st.v_mov_b32(vU, 1); sigwait(st, 12, 48, regs=(13, 14, 15))
                st.mark("merge", L); st.label(L)
                cs_q(); signal(st, 1)
            elif a == "wsig": st.v_mov_b32(vU, 2); sigwait(st, 12, 32, regs=(13, 14, 15))
            elif a.startswith("csk"): cs_kv(int(a[3]))
            elif a == "csq": cs_q()
            elif a == "part": gu_partial()
            elif a == "red": gu_reduce()
            elif a[0] == "P": st.s_setprio(int(a[1:]))
            elif a == "nd": DR[0] = True
            elif a == "AT":
                for b, off in ((54, 0), (56, 0), (50, 0), (58, 0), (60, 0)):
                    x = Ins("s_load_dword", [s(86), s(b, 2), hex(off)]); x.dst = set(); st.l.append(x)
                for i in range(1, 5):
                    st.s_add_u32(s(44), s(64), i << 21); st.s_addc_u32(s(45), s(65), 0)
                    x = Ins("s_load_dword", [s(86), s(44, 2), "0x0"]); x.dst = set(); st.l.append(x)
                DR[0] = True
            elif a[:2] == "WB":
                L = newlab("wb")
                if a == "WB": st.s_or_b32(sT0, sJ, sM)
                else: st.s_mov_b32(sT0, sM)
                st.s_cmp_lg_u32(sT0, 0); st.mark("save", L); st.s_cbranch_scc1(L)
                st.raw("    buffer_wbl2 " + os_("wbm", "sc1").replace("+", " "))
                st.mark("merge", L); st.label(L)
            elif a == "wv": st.wait(vm=0)
            elif a[0] == "Q": squeue(a[1:])
            elif a[0] == "S":
                if LDSW(st): st.wait(lgkm=0)
                DR[0] = True; spf(int(a[1:]))
            elif a[0] == "c" and "-" in a:
                n_, PART[0], PART[1] = [int(x) for x in a[1:].split("-")]
                issue(o + n_); PART[:] = [0, 8]
            elif a[0] == "c": issue(o + int(a[1:]))
            elif a[0] == "r" and a[1:].isdigit(): stage(o + int(a[1:]))
            elif a[0] == "u" and a[1:].isdigit(): unstage(o + int(a[1:]))
            elif a[0] == "@": stamp(st, a, who="l", pair=o // 17)
            elif a[0] == "G": gu_loads(int(a[1:]))
            elif a[0] == "X": transposes(int(a[1:]))
            elif a[0] == "T": touch(a[1:])
            else: raise ValueError(a)
    prologue()
    for pair in range(1 if OPT['stop'] else 2):
        o = 17 * pair; A = acts(S0 if pair == 0 else S1)
        run(A.get("start", []), o)
        for b in (SEQ0 if pair == 0 else SEQA) + SEQC:
            tk = []
            for n in need.get(b, []):
                if o + n == 0 and oi("xd", 0): continue
                assert o + n in issued, (pair, b, n)
                tk.append(f"c{o+n}")
            stamp(st, "<" + b, who="l", pair=pair)
            if not DR[0] and LDSW(st): st.wait(lgkm=0)
            DR[0] = False
            st.l.append(Ins("s_barrier", [], tneed=tk))
            run(A.get(b, []), o)
    assert OPT['stop'] or (not gl and tr_next[0] == 8)
    st.s_branch(".Lend")

def main():
    st = Stream()
    entry(st)
    loader(st)
    st.label(".Lslow")
    compute_slow(st)
    st.extend(OOL)
    st.label(".Lend")
    st.s_endpgm()
    bodyt = finalize(st)
    ref = open(f"cdna_kernels/{NAME}.s.ref").read().split("\n")
    head = [l for l in ref if l.startswith(";") and "@launch" not in l]
    out = "\n".join(head) + f"\n; @launch grid=(256,1,1) block=(512,1,1) lds={LDS_BYTES}\n"
    out += '.amdgcn_target "amdgcn-amd-amdhsa--gfx950"\n' + khead(NAME + "_kernel") + bodyt + kd(NAME + "_kernel")
    path = sys.argv[1] if len(sys.argv) > 1 else f"cdna_kernels/{NAME}.s"
    open(path, "w").write(out)
    stamp_names["opt"] = " ".join(a for a in sys.argv[2:] if not a.startswith(("stamps", "only"))); json.dump(stamp_names, open(path + ".json", "w"))
    n = sum(1 for l in bodyt.split("\n") if l.startswith("    ") and not l.strip().startswith(";"))
    print("wrote", path, "instructions:", n, "barriers:", SEQ0, SEQA, SEQC)

main()
```

```python
import sys, os, math, struct, json
sys.path.insert(0, os.path.dirname(os.path.abspath(__file__)))
from asmlib import *
from layout5 import *

NAME = "interleave_layers__linear_kernel_hedgehog__geglu_ffn__prompt"
OPT = dict(stop=None, stamps=False)
for a in sys.argv[2:]:
    k, _, val = a.partition("=")
    OPT[k] = val if val != "" else True
def oi(k, d): return int(OPT.get(k, d))
def os_(k, d): return str(OPT.get(k, d))
SCL = "sc1"
def f2u(x): return "0x%08x" % struct.unpack("<I", struct.pack("<f", x))[0]
LOG2E = 1.4426950408889634
class G: SC = ""; TAG = "f"; SEQ = None; REC = True

WS, X_, OUT, WQ, WP, WO_, WG, WU, WD = [s(4 + 4 * i, 4) for i in range(9)]
sXC = s(40)
XO = oi("xo", 0)
XS = OUT if XO else WS
sC, sJ, sHF, sCG, sM, sNONCE, sCNT, sPAIR = [s(66 + i) for i in range(8)]
sW = s(3)
sXLD, sSTLD, sFA, sXST, sSTST, sFXST = [s(74 + i) for i in range(6)]
sOST, sFB, sFJ = s(80), s(81), s(82)
sHLD, sHST = s(84), s(85)
sKVST, sKVLD, sFKVST, sFKVLD = [s(88 + i) for i in range(4)]
sKZ, sGZ, sHALF, sH5, sF5, sHS = s(62), s(63), s(60, 2), s(49), s(83), s(41)
sT0, sT1, sT2, sT3 = [s(92 + i) for i in range(4)]
sL2E, sONE, sOUTO, sT6 = s(96), s(97), s(98), s(99)
sSTMP = s(100, 2)
sRING, sKH, sTP, sDUM, sLD = s(44), s(45), s(46), s(47), s(48)
vL, vL16, vA0, vFL = v(0), v(1), v(2), v(3)
RES = 4
vNON = v(12); vT = v(13); vU = v(14); vV = v(15)
vA1, vP0, vP1 = v(121), v(122), v(123)
aXW = v(126)
XF = 128
cWDb = [s(52 + i) for i in range(4)]; sDM = s(56)
aEW, aER, vEVv, vEVr, aCS3 = v(112), v(113), v(114), v(115), v(120)
aP4, vS4 = v(124), v(125)

class bc:
    def __init__(self, r, neg=False): self.r = int(r[1:]) if isinstance(r, str) else r; self.neg = neg
class ng:
    def __init__(self, r): self.r = r
def pk(st, op, d, *src):
    ops, lo, hi, n = [], [], [], []
    for x in src:
        if isinstance(x, bc): ops.append(v(x.r & ~1, 2)); lo.append(x.r & 1); hi.append(x.r & 1); n.append(int(x.neg))
        elif isinstance(x, ng): ops.append(v(x.r, 2)); lo.append(0); hi.append(1); n.append(1); assert x.r % 2 == 0
        else: ops.append(v(x, 2)); lo.append(0); hi.append(1); n.append(0); assert x % 2 == 0
    assert d % 2 == 0
    f = lambda l: "[" + ",".join(map(str, l)) + "]"
    mods = f"op_sel:{f(lo)} op_sel_hi:{f(hi)}" + (f" neg_lo:{f(n)} neg_hi:{f(n)}" if any(n) else "")
    st.op(f"v_pk_{op}_f32", v(d, 2), *ops, mods=mods)

lab_n = [0]
def newlab(p):
    lab_n[0] += 1
    return f".L{p}_{lab_n[0]}"

def nxt(st):
    st.s_add_u32(sNONCE, sNONCE, 1); st.v_add_u32(vNON, 1, vNON)

def poll(st, addr, soff, off=0, back=0):
    L = newlab("poll"); D = newlab("pdone")
    st.label(L)
    st.buffer_load_dword(vT, addr, WS, soff, mods=f"offen offset:{off} sc1")
    st.wait(vm=0)
    st.v_cmp_ne_u32("vcc", sNONCE, vT)
    st.s_cbranch_vccz(D)
    for _ in range(back): st.s_nop(15)
    st.s_sub_u32(sCNT, sCNT, 1)
    st.s_cbranch_scc0(L)
    st.s_mov_b32(sCNT, 0)
    st.label(D)

PRA, PRB = v(124), v(125)
def pload(st, r, addr, soff, off=0):
    i = Ins("buffer_load_dword", [r, addr, WS, soff], f"offen offset:{off} sc1"); i.dst = set(); st.l.append(i)
def poll2(st, addr, soff, off=0, gap=0, issued=0):
    if gap < 0: return poll(st, addr, soff, off, -1 - gap)
    L = newlab("poll"); D = newlab("pdone")
    if issued < 1: pload(st, PRA, addr, soff, off)
    if issued < 2:
        for _ in range(gap): st.s_nop(15)
        pload(st, PRB, addr, soff, off)
    st.label(L)
    for r in (PRA, PRB):
        st.wait(vm=1)
        st.v_cmp_ne_u32("vcc", sNONCE, r)
        st.s_cbranch_vccz(D)
        pload(st, r, addr, soff, off)
    st.s_sub_u32(sCNT, sCNT, 1)
    st.s_cbranch_scc0(L)
    st.s_mov_b32(sCNT, 0)
    st.wait(vm=1)
    st.label(D)

OOL = Stream()
def soft_check(st, reg, addr, soff, off=0):
    D = newlab("soft"); X = newlab("softx")
    st.v_cmp_ne_u32("vcc", sNONCE, reg)
    st.s_cbranch_vccnz(X)
    st.label(D)
    OOL.label(X); OOL.mark("reset")
    poll(OOL, addr, soff, off)
    OOL.s_branch(D)

stamp_names = {"c": [], "l": []}
def stamp(st, name, real=False, who="c", pair=None):
    if OPT.get("cap") and who == "c" and name == OPT["cap"].split("@")[0]:
        (st.s_memrealtime if OPT.get("capr") else st.s_memtime)(sSTMP); st.wait(lgkm=0)
        st.s_cmp_eq_u32(sPAIR, int(OPT["cap"].split("@")[1])); st.s_cselect_b32(s(43), s(100), s(43))
    if not OPT["stamps"]: return
    only = OPT.get("only")
    if only and who == "l" and not OPT.get("lst"): return
    if only and who == "c" and not isinstance(name, int) and name not in ("start", "end") and name not in only.split(","): return
    if isinstance(name, int): idx = name
    else:
        if name not in stamp_names[who]: stamp_names[who].append(name)
        idx = stamp_names[who].index(name)
    r = v(127) if who == "c" else v(63)
    if name == 62: st.v_mov_b32(r, s(42))
    elif name == "start" and who == "c": st.v_mov_b32(r, s(86))
    elif name == "karg": st.wait(lgkm=0); st.v_mov_b32(r, s(0))
    else:
        if real: st.s_memrealtime(sSTMP)
        else: st.s_memtime(sSTMP)
        st.wait(lgkm=0)
        st.v_mov_b32(r, s(100))
    if pair is None:
        st.s_lshl_b32(s(101), sPAIR, 8)
        st.s_add_u32(s(101), s(101), s(65))
    else:
        st.s_add_u32(s(101), s(65), 256 * pair)
    st.buffer_store_dword(r, "off", WS, s(101), mods=f"offset:{idx*4}")

def ring_addr(st, mode):
    if mode in ("trq", "trn"):
        st.v_add_u32(vA0, sRING, vP0 if mode == "trq" else vP1); st.v_xor_b32(vA1, 64, vA0)
    elif mode == "b128":
        st.v_add_u32(vA0, sRING, vL16)
def ring_next(st, mode=None):
    st.s_add_u32(sRING, sRING, 0x8000); st.s_and_b32(sRING, sRING, 0x1ffff)
    ring_addr(st, mode)
def barrier(st, name, drain=False):
    if drain: st.wait(lgkm=0)
    st.s_barrier()
    if G.REC: G.SEQ.append(name)

def signal(st, val=None, off=0):
    t0, t1 = (v(124), v(125)) if val is None else (vT, vU)
    st.s_lshl_b32(sT3, sW, 2); st.s_add_u32(sT3, sT3, L_SIG + off); st.v_mov_b32(t0, sT3)
    if val is None: st.v_add_u32(t1, 1, sPAIR)
    else: st.v_mov_b32(t1, val)
    st.ds_write_b32(t0, t1)
def sigwait(st, mask=28, off=0, regs=(124, 125, 126), cmp="ne", extra=None):
    L = newlab("sig"); D = newlab("sigd")
    a, e, r = [v(x) for x in regs]
    st.v_and_b32(a, mask, vFL); st.v_add_u32(a, L_SIG + off, a)
    if extra:
        st.ds_read_b32(r, a)
        extra(st)
        st.wait(lgkm=0)
        st.op(f"v_cmp_{cmp}_u32", "vcc", e, r)
        st.s_cbranch_vccz(D)
    st.label(L)
    st.ds_read_b32(r, a)
    st.wait(lgkm=0)
    st.op(f"v_cmp_{cmp}_u32", "vcc", e, r)
    st.s_cbranch_vccz(D)
    st.s_sub_u32(sCNT, sCNT, 1)
    st.s_cbranch_scc0(L)
    st.s_mov_b32(sCNT, 0)
    st.label(D)

def lane_tr(st, d0, d1, kind, stride=128, tmp=vT, hstride=None):
    st.v_bfe_u32(d0, vL, 2, 2)
    if stride == 128: st.v_lshlrev_b32(d0, 7, d0)
    else: st.v_mul_u32_u24(d0, stride, d0)
    st.v_lshrrev_b32(tmp, 5, vL)
    st.v_lshl_add_u32(d0, tmp, int(math.log2(hstride or 8 * stride)), d0)
    sh = dict(qkv=(5, 4), nat=(4, 5))[kind]
    st.v_and_b32(tmp, 1, vL); st.v_lshl_add_u32(d0, tmp, sh[0], d0)
    st.v_bfe_u32(tmp, vL, 1, 1); st.v_lshl_add_u32(d0, tmp, 3, d0)
    st.v_bfe_u32(tmp, vL, 4, 1); st.v_lshl_add_u32(d0, tmp, sh[1], d0)
    if stride == 128:
        st.v_bfe_u32(tmp, vL, 3, 1); st.v_lshl_add_u32(d0, tmp, 6, d0)
        if d1: st.v_xor_b32(d1, 64, d0)

gemm_n = [0]
def gemm(st, items, mode, af, nslots, depth, ready, bars=None, fill=None, budget=16, hooks=None, loads=None, pre=10, every=2, pairw=0):
    n = len(items); loads = list(loads or []); ready = set(ready); bars = bars or {}
    nr = 0; gemm_n[0] += 1; tg = f"g{gemm_n[0]}_"
    def pump(upto):
        nonlocal nr
        while nr < n and nr <= upto:
            it = items[nr]; r = af + 4 * (nr % nslots)
            assert it["chunk"] in ready, (nr, it["chunk"])
            if nr > 0 and it["chunk"] != items[nr - 1]["chunk"]: ring_next(st, mode)
            if mode != "b128":
                a = vA1 if it["t"] else vA0
                st.ds_read_b64_tr_b16(v(r, 2), a, mods=f"offset:{it['off']}")
                st.ds_read_b64_tr_b16(v(r + 2, 2), a, mods=f"offset:{it['off']+512}", tset=tg + str(nr))
            else:
                st.ds_read_b128(v(r, 4), vA0, mods=f"offset:{it['off']}", tset=tg + str(nr))
            nr += 1
    for _ in range(min(pre, len(loads))): loads.pop(0)(st)
    pump(depth - 1)
    for i in range(n):
        it = items[i]
        if hooks and i in hooks: hooks[i](st)
        acc = v(it["acc"], 16)
        st.v_mfma_f32_32x32x16_bf16(acc, v(af + 4 * (i % nslots), 4), v(it["b"], 4), "0" if it["first"] else acc,
                                    tneed=tg + str(i + 1) if pairw and i % 2 == 0 and i + 1 < nr else None)
        if i in bars:
            barrier(st, bars[i][0]); ready |= set(bars[i][1])
        pump(i + depth)
        if loads and i % every == every - 1: loads.pop(0)(st)
        if fill is not None: fill.take(st, budget(i) if callable(budget) else budget)
    assert not loads

def entry(st):
    st.s_cmp_ge_u32(s(2), 256)
    st.s_cbranch_scc1(".Lend")
    if OPT["stamps"]: st.s_memrealtime(s(42, 2)); st.s_memtime(s(86, 2))
    if OPT.get("dbg"): st.s_memrealtime(s(42, 2)); st.s_memtime(s(86, 2))
    st.s_load_dwordx16(s(44, 16), s(0, 2), 0)
    st.s_load_dwordx4(s(60, 4), s(0, 2), 64)
    st.s_load_dwordx2(s(64, 2), s(0, 2), 80)
    st.v_lshrrev_b32(vT, 6, v(0))
    st.v_and_b32(vL, 63, v(0))
    st.v_readfirstlane_b32(sW, vT)
    st.v_lshlrev_b32(vL16, 4, vL)
    st.v_and_b32(vFL, 15, vL)
    st.v_lshlrev_b32(vFL, 2, vFL)
    st.s_and_b32(sT0, s(2), 7)
    st.s_lshr_b32(sT1, s(2), 3)
    st.s_lshr_b32(sC, sT1, 4)
    st.s_lshl_b32(sT0, sT0, 1)
    st.s_add_u32(sC, sC, sT0)
    st.s_and_b32(sJ, sT1, 15)
    st.s_lshr_b32(sHF, sJ, 3)
    st.s_and_b32(sCG, sJ, 7)
    st.s_and_b32(sM, sW, 3)
    st.s_mov_b32(sCNT, 1 << 18)
    st.s_mov_b32(sPAIR, 0)
    st.s_cmp_lt_u32(sJ, 6)
    st.s_cselect_b32(sT6, 1, 0)
    st.s_getreg_b32(sXC, "hwreg(HW_REG_XCC_ID, 0, 4)")
    for d in (WS, X_, OUT, WQ, WP, WO_, WG, WU, WD):
        st.s_mov_b32(s(int(d[2:d.index(":")]) + 3), 0x20000)
    for d, size in ((X_, 2048 * 1024), (WQ, 512 * 3072), (WS, WS_SIZE), (WP, 32 * 512), (WO_, 512 * 1024), (WG, 512 * 2752),
                    (WU, 512 * 2752), (WD, 1376 * 1024), (OUT, 2048 * 1024)):
        st.s_mov_b32(s(int(d[2:d.index(":")]) + 2), size)
    if oi("cfirst", 1):
        st.s_cmp_ge_u32(sW, 4); st.s_cbranch_scc1(".Lld0")
        compute(st)
        st.label(".Lld0"); st.mark("reset")
    else:
        st.s_cmp_lt_u32(sW, 4); st.s_cbranch_scc1(".Lcomp")

def rot(st, d, t):
    if not oi("rot", 0): st.s_mov_b32(d, 0); return
    st.s_and_b32(d, sJ, 1); st.s_and_b32(t, sC, 1); st.s_lshl_b32(t, t, 1); st.s_add_u32(d, d, t); st.s_lshl_b32(d, d, 1)
    st.s_lshr_b32(t, sJ, 1); st.s_add_u32(d, d, t)

def srds(st, lst):
    src = {X_: 44, WQ: 46, WP: 48, WO_: 50, WG: 54, WU: 56, WD: 58, OUT: 60, WS: 64}
    for d in lst:
        b = int(d[2:d.index(":")])
        st.s_mov_b32(s(b), s(src[d])); st.s_and_b32(s(b + 1), s(src[d] + 1), 0xffff)

def stamp_base(st):
    if OPT["stamps"]:
        st.s_lshl_b32(s(65), s(2), 3); st.s_add_u32(s(65), s(65), sW); st.s_lshl_b32(s(65), s(65), 9)
        st.s_add_u32(s(65), s(65), STAMP)

aK, aV, aQ, AF1, WPH, STT = 16, 32, 48, 64, 88, 96
NM, RS, VE, LR = v(112), v(113), v(114), v(115)
aCS, aA, aB, aR1, aR2 = v(116), v(117), v(118), v(119), v(120)

def kv_items():
    return [dict(chunk=k // 16, off=(k % 16) * 2048, t=t, acc=acc, b=XF + 4 * k, first=k == 0)
            for k in range(32) for t, acc in ((0, aK), (1, aV))]

CK, CV = aQ, STT
def k_addr(st):
    st.v_lshrrev_b32(vU, 5, vL); st.v_and_b32(vT, 1, vL); st.v_cmp_eq_u32("vcc", vT, vU)
    st.v_lshlrev_b32(aCS, 6, vU); st.v_add_u32(aCS, L_CS, aCS)
    st.v_lshlrev_b32(aR1, 7, vU); st.v_and_b32(vT, 12, vL); st.v_lshl_add_u32(aR1, vT, 3, aR1)
    st.v_and_b32(vT, 16, vL); st.v_add_u32(aR1, aR1, vT); st.v_and_b32(vT, 2, vL); st.v_lshl_add_u32(aR1, vT, 2, aR1)
    st.v_mov_b32(vT, 544); st.v_cndmask_b32(aR1, vT, aR1, "vcc"); st.v_add_u32(aR1, L_KVB, aR1)
    st.v_and_b32(vT, 31, vL); st.s_lshl_b32(sT0, sM, 5); st.v_add_u32(vT, sT0, vT)
    st.v_mul_u32_u24(aA, 144, vT); st.v_lshl_add_u32(aA, vU, 6, aA); st.v_add_u32(aA, L_PH, aA)
    st.v_mul_u32_u24(aB, 80, vT); st.v_lshl_add_u32(aB, vU, 5, aB); st.v_add_u32(aB, L_VB, aB)
def k_reads(st, which="wkv"):
    if "k" in which:
        for i in range(4): st.ds_read_b128(v(CK + 4 * i, 4), aCS, mods=f"offset:{16*i}")
    if "w" in which:
        for q in range(4): st.ds_read_b64_tr_b16(v(WPH + 2 * q, 2), aR1, mods=f"offset:{576*q}")
    if "v" in which:
        for i in range(4): st.ds_read_b128(v(CV + 4 * i, 4), aCS, mods=f"offset:{128+16*i}")

def fin_stats(st, S, Q, t0, t1, negmean, rstd, vare):
    if t0: st.v_mov_b32(t0, S)
    st.v_mov_b32(t1, Q)
    if t0: st.v_permlane32_swap_b32(S, t0)
    st.v_permlane32_swap_b32(Q, t1)
    if t0: st.v_add_f32(S, S, t0)
    st.v_add_f32(Q, Q, t1)
    st.v_mul_f32(negmean, f2u(-1.0 / 512), S)
    st.v_mul_f32(Q, f2u(1.0 / 512), Q)
    st.v_fma_f32(vare, "-" + negmean, negmean, Q)
    st.v_max_f32(vare, 0, vare)
    st.v_add_f32(vare, f2u(1e-5), vare)
    st.v_rsq_f32(rstd, vare)

def stats(st, stt, negmean, rstd, vare):
    S, Q = v(stt), v(stt + 1)
    for i in range(4): st.v_add_f32(v(stt + i), v(stt + i), v(stt + 4 + i))
    for i in range(4): st.v_add_f32(v(stt + 8 + i), v(stt + 8 + i), v(stt + 12 + i))
    for i in range(4): st.v_add_f32(v(stt + i), v(stt + i), v(stt + 8 + i))
    st.v_add_f32(S, S, v(stt + 2)); st.v_add_f32(Q, Q, v(stt + 3))
    fin_stats(st, S, Q, v(stt + 2), v(stt + 3), negmean, rstd, vare)

def p1a0(st):
    g0, g1, aW = v(118), v(119), v(120)
    aRd = [v(88 + i) for i in range(4)]
    QD, SA, SELA = 96, 112, 92
    XD = oi("xd", 0)
    st.v_lshrrev_b32(vT, 3, vL); st.v_and_b32(vV, 7, vL)
    if XD: st.v_lshrrev_b32(vU, 4, vL); st.v_xor_b32(vV, vV, vU)
    st.v_lshlrev_b32(g0, 10, vT); st.v_lshl_add_u32(g0, vV, 4, g0)
    st.s_lshl_b32(sT0, sC, 2); st.s_add_u32(sT0, sT0, sM); st.s_lshl_b32(sT0, sT0, 15)
    GA = [v(48 + g) for g in range(4)]
    st.v_lshlrev_b32(g1, 5, vFL); st.s_lshl_b32(sT1, sJ, 11); st.s_add_u32(sT1, sT1, sT0)
    for g in range(4):
        st.v_add_u32(GA[g], sT0, g0)
        if XD and g & 1: st.v_xor_b32(GA[g], 64, GA[g])
        if g < 3: st.s_add_u32(sT0, sT0, 8192)
    vKc, sA0, sKc, sK8 = v(52), s(41), s(83), s(98)
    AREA = [0, 16384, 32768, 49152, 65536, 32768, 49152, 65536]
    if XD:
        st.v_bfe_u32(vU, vL, 4, 1); st.v_lshlrev_b32(vU, 2, vU); st.v_and_b32(vV, 7, vL); st.v_xor_b32(vU, vU, vV)
        st.v_mul_u32_u24(vKc, 3072, vT); st.v_and_b32(vV, 3, vU); st.v_lshl_add_u32(vKc, vV, 4, vKc)
        st.v_lshrrev_b32(vV, 2, vU); st.v_lshl_add_u32(vKc, vV, 10, vKc); st.v_add_u32(vKc, 1024, vKc)
        st.s_lshl_b32(sA0, sM, 12); st.s_add_u32(sA0, sA0, 65536); st.s_lshl_b32(sK8, sM, 13)
        st.s_mul_i32(sKc, sM, 64 * 3072); st.s_lshl_b32(sT0, sJ, 6); st.s_add_u32(sKc, sKc, sT0)
    if oi("tk0", 0):
        st.v_lshrrev_b32(vT, 5, vL); st.v_lshlrev_b32(vT, 8, vT); st.v_bfe_u32(vU, vL, 4, 1); st.v_add_u32(vT, vT, vU)
        st.v_mul_u32_u24(v(124), 3072, vT); st.v_lshl_add_u32(v(124), vFL, 5, v(124))
        st.s_and_b32(sT2, sC, 1); st.s_lshl_b32(sT2, sT2, 4); st.s_add_u32(sT2, sT2, sJ); st.s_lshl_b32(sT2, sT2, 2); st.s_add_u32(sT2, sT2, sM)
        st.s_mul_i32(sT2, sT2, 2 * 3072); st.s_add_u32(sT2, sT2, 1024)
    sR, sQO = s(41), s(83)
    if not XD: rot(st, sR, sT0)
    def c0(st):
        srds(st, [WQ])
        for i in range(8):
            st.s_add_u32("m0", sK8, 1024 * i); st.s_add_u32(sT0, sKc, 8 * i * 3072)
            st.buffer_load_dwordx4(vKc, WQ, sT0, mods="offen lds", tset="c0c" if i == 7 else None)
    def xl(p, st):
        if not XD: st.s_add_u32(sQO, sR, p); st.s_and_b32(sQO, sQO, 7); st.s_lshl_b32(sQO, sQO, 7)
        if p == (-1 if XD else 0):
            st.wait(lgkm=0)
            srds(st, [X_])
            if OPT["stamps"]: st.s_memtime(s(0, 2))
            if oi("tx0", 1):
                i = Ins("buffer_load_dword", [v(126), g1, X_, sT1], "offen"); i.dst = set(); st.l.append(i)
            if oi("tk0", 0):
                srds(st, [WQ])
                i = Ins("buffer_load_dword", [v(125), v(124), WQ, sT2], "offen"); i.dst = set(); st.l.append(i)
        if p < 0: return
        for g in range(4):
            if XD:
                st.s_add_u32("m0", sA0 if AREA[p] < 65536 else sKc, AREA[p] + 1024 * g - 128 * p)
                st.buffer_load_dwordx4(GA[g], X_, 0, mods=f"offen offset:{128*p} lds", tset=f"x{p}" if g == 3 else None,
                                       tneed=f"r{p-3}" if p >= 5 and g == 0 else None)
            else: st.buffer_load_dwordx4(v(XF + 16 * p + 4 * g, 4), GA[g], X_, sQO, mods="offen")
    n0 = oi("xn0", 2); n1 = oi("xn1", 4)
    if XD: n0 = oi("xn0", 1); xl(-1, st)
    for p in range(n0): xl(p, st)
    if XD: c0(st)
    srds(st, [WS, OUT])
    stamp_base(st)
    stamp(st, 62, True)
    stamp(st, "start")
    stamp(st, "karg"); stamp(st, "xissued")
    st.buffer_load_dword(vNON, "off", WS, 0, mods=f"offset:{EPOCH} sc1")
    st.s_and_b32(sKH, sM, 1); st.s_lshr_b32(sTP, sM, 1); st.s_mov_b32(sRING, 0)
    st.v_and_b32(aA, 31, vL); st.v_lshlrev_b32(aA, 10, aA); st.v_lshrrev_b32(vT, 5, vL); st.v_lshl_add_u32(aA, vT, 4, aA)
    st.s_lshl_b32(sOUTO, sC, 17); st.s_lshl_b32(sT1, sHF, 16); st.s_add_u32(sOUTO, sOUTO, sT1)
    st.s_lshl_b32(sT1, sTP, 15); st.s_add_u32(sOUTO, sOUTO, sT1); st.s_lshl_b32(sT1, sCG, 7); st.s_add_u32(sOUTO, sOUTO, sT1)
    st.s_lshl_b32(sT1, sKH, 6); st.s_add_u32(sOUTO, sOUTO, sT1)
    st.s_mov_b32(sL2E, f2u(LOG2E)); st.s_mov_b32(sONE, 0x3f803f80)
    st.s_lshl_b32(sT0, sC, 2); st.s_add_u32(sT1, sT0, sM)
    st.s_lshl_b32(sXLD, sT1, 15)
    if not XO: st.s_add_u32(sXLD, sXLD, XB)
    st.s_lshl_b32(sSTLD, sT1, 12); st.s_add_u32(sSTLD, sSTLD, ST)
    st.s_lshl_b32(sFA, sT1, 10); st.s_add_u32(sFA, sFA, FL)
    st.s_lshl_b32(sT2, sJ, 2); st.s_add_u32(sFJ, sFA, sT2)
    st.s_mul_i32(sHST, sT1, HB_TB); st.s_add_u32(sHST, sHST, HB)
    st.s_lshl_b32(sT2, sJ, 11); st.s_add_u32(sOST, sHST, sT2)
    st.s_mov_b32(s(60), 0); st.s_mov_b32(s(61), -1)
    st.s_lshl_b32(sT2, sJ, 10); st.s_add_u32(sHST, sHST, sT2)
    st.s_lshl_b32(sDUM, sT1, 11); st.s_add_u32(sDUM, sDUM, DUMMY)
    st.s_lshl_b32(sT1, sHF, 1); st.s_add_u32(sT1, sT1, sT0); st.s_add_u32(sT1, sT1, sTP)
    st.s_lshl_b32(sT3, sCG, 1); st.s_add_u32(sT3, sT3, sKH)
    st.s_lshl_b32(sXST, sT1, 15); st.s_lshl_b32(sT2, sT3, 11); st.s_add_u32(sXST, sXST, sT2)
    if not XO: st.s_add_u32(sXST, sXST, XB)
    st.s_lshl_b32(sSTST, sT1, 12); st.s_lshl_b32(sT2, sCG, 9); st.s_add_u32(sSTST, sSTST, sT2)
    st.s_lshl_b32(sT2, sKH, 3); st.s_add_u32(sSTST, sSTST, sT2); st.s_add_u32(sSTST, sSTST, ST)
    st.s_lshl_b32(sFB, sT1, 10); st.s_add_u32(sFB, sFB, FL)
    st.s_lshl_b32(sT2, sT3, 2); st.s_add_u32(sFXST, sFB, sT2)
    st.s_lshl_b32(sT2, sKH, 10)
    st.s_mul_i32(sHLD, sT1, HB_TB); st.s_add_u32(sHLD, sHLD, sT2); st.s_add_u32(sHLD, sHLD, HB)
    st.s_mul_i32(sKVLD, sJ, KV_J); st.s_add_u32(sKVLD, sKVLD, KVP)
    st.s_mul_i32(sKVST, sC, KV_REC); st.s_add_u32(sKVST, sKVST, sKVLD)
    st.s_lshl_b32(sT1, sKH, 7); st.s_lshl_b32(sT2, sTP, 5); st.s_add_u32(sT1, sT1, sT2); st.s_add_u32(sKZ, sKVST, sT1); st.s_add_u32(sKZ, sKZ, 2048)
    st.s_lshl_b32(sT1, sKH, 10); st.s_lshl_b32(sT2, sTP, 6); st.s_add_u32(sT1, sT1, sT2); st.s_add_u32(sKVST, sKVST, sT1)
    st.s_lshl_b32(sT1, sM, 6); st.s_add_u32(sGZ, sKVLD, sT1); st.s_add_u32(sGZ, sGZ, 2048)
    st.s_lshl_b32(sT1, sM, 9); st.s_add_u32(sKVLD, sKVLD, sT1)
    st.s_lshl_b32(sFKVLD, sJ, 11); st.s_add_u32(sFKVLD, sFKVLD, FKV)
    st.s_lshl_b32(sT1, sC, oi("fks", 7)); st.s_lshl_b32(sT2, sM, 2); st.s_add_u32(sFKVST, sT1, sT2); st.s_add_u32(sFKVST, sFKVST, sFKVLD)
    for i in range(4): st.v_mov_b32(v(96 + i), 0)
    st.v_and_b32(vT, 3, vL); st.v_mul_u32_u24(vT, 576, vT); st.v_add_u32(vT, L_KVB + 544, vT)
    st.ds_write_b128(vT, v(96, 4))
    st.v_and_b32(vT, 112, vL16); st.v_add_u32(vT, L_SIG, vT)
    st.ds_write_b128(vT, v(96, 4))
    st.v_bfe_u32(vT, vL, 4, 1); st.v_and_b32(vU, 1, vL); st.v_cmp_eq_u32("vcc", vT, vU)
    st.v_mov_b32(vV, sONE)
    for i in range(4): st.v_cndmask_b32(v(SELA + i), 0, vV, "vcc")
    if XD: sT0_ = sA0
    else:
        sT0_ = sT0
        st.s_lshl_b32(sT0, sM, 12); st.s_add_u32(sT0, sT0, L_PH)
        st.v_and_b32(vT, 48, vL); st.v_xor_b32(vT, vT, vL16); st.v_add_u32(aW, sT0, vT); st.v_xor_b32(g1, 64, aW)
    st.v_and_b32(vT, 31, vL); st.v_lshrrev_b32(vU, 5, vL); st.v_bfe_u32(vV, vL, 1, 3); st.v_xor_b32(vU, vU, vV)
    st.v_lshlrev_b32(vT, 7, vT); st.v_lshl_add_u32(vT, vU, 4, vT); st.v_add_u32(aRd[0], sT0_, vT)
    for i in range(1, 4): st.v_xor_b32(aRd[i], 32 * i, aRd[0])
    aR4 = [v(56 + i) for i in range(4)]
    if XD:
        st.s_lshl_b32(sT0, sM, 9); st.s_add_u32(sKc, sA0, sT0); st.s_add_u32(sT0, sT0, 65536)
        for i in range(4): st.v_add_u32(aR4[i], sT0, aRd[i])
    lane_tr(st, vP0, None, "qkv"); ring_addr(st, "trq")
    def rnd(q, st):
        R = XF + 16 * q
        if XD:
            for i in range(4):
                st.ds_read_b128(v(R + 4 * i, 4), (aRd if AREA[q] < 65536 else aR4)[i], mods=f"offset:{AREA[q] % 65536}",
                                tneed=f"x{q}" if i == 0 else None, tset=f"r{q}" if i == 3 else None)
            return
        for g in range(4): st.ds_write_b128(g1 if g & 1 else aW, v(R + 4 * g, 4), mods=f"offset:{1024*g}")
        for i in range(4): st.ds_read_b128(v(R + 4 * i, 4), aRd[i])
    def smf(k, st):
        f = v(XF + 4 * k, 4)
        st.v_mfma_f32_32x32x16_bf16(v(QD, 16), f, f, "0" if k == 0 else v(QD, 16))
        st.v_mfma_f32_16x16x32_bf16(v(SA, 4), v(SELA, 4), f, "0" if k == 0 else v(SA, 4))
    def res(st):
        st.buffer_load_dwordx4(v(RES, 4), aA, X_, sOUTO, mods="offen")
        st.buffer_load_dwordx4(v(RES + 4, 4), aA, X_, sOUTO, mods="offen offset:32")
    hq = oi("hq", 8)
    if XD:
        hq = 1; n1 = oi("xn1", 5)
        for p in range(n0, n1): xl(p, st)
        stamp(st, "xiss2")
        barrier(st, "s0")
        for p in range(n1, 5): xl(p, st)
        rnd(0, st)
        for k in range(4): smf(k, st)
        rnd(1, st)
        acts = {}
        act = lambda i, f: acts.setdefault(i, []).append(f)
        rps = [int(x) for x in os_("rp", "2,8,14,28,36,44").split(",")]; xps = [int(x) for x in os_("xp", "5,11,17").split(",")]
        for b in range(2, 8): act(rps[b - 2], lambda st, b=b: rnd(b, st))
        for b in range(5, 8): act(xps[b - 5], lambda st, b=b: xl(b, st))
        for k in range(4, 32):
            last = 2 * (k - 4) + oi("sm0", 0); assert k < 8 or last > rps[k // 4 - 2]
            act(last, lambda st, k=k: smf(k, st))
        rp = 0
        stamp(st, "p1pre")
        st.wait(lgkm=0); st.l.append(Ins("s_barrier", [], tneed="c0c"))
        if G.REC: G.SEQ.append("a0")
    else:
      for p in range(n0, n1): xl(p, st)
      nl = n1; nb = oi("xnb", 8)
      rnd(0, st)
      for q in range(hq):
        if nl < nb: xl(nl, st); nl += 1
        if q < 7: rnd(q + 1, st)
        for k in range(4 * q, 4 * q + 4): smf(k, st)
      while nl < nb: xl(nl, st); nl += 1
      acts = {}
      act = lambda i, f: acts.setdefault(i, []).append(f)
      for n, p in enumerate(range(nl, 8)): act(oi("xat", 0) + oi("xgap", 8) * n, lambda st, p=p: xl(p, st))
      rl = oi("rl", 2); last = 0
      for b in range(hq, 8):
        rp = max(1, 8 * (b - 1) - rl)
        if b > hq: act(rp, lambda st, b=b: rnd(b, st))
        for u in range(4):
            last = max(last + 1, (rp + oi("rs", 5) if b > hq else 0) + 2 * u)
            act(last, lambda st, k=4 * b + u: smf(k, st))
      stamp(st, "p1pre")
      barrier(st, "a0", drain=True)
    stamp(st, "B(a0)")
    bars = {oi("a1", 20): ("a1", [1])}
    f = Stream()
    M = [s(50 + 2 * i, 2) for i in range(5)]
    for i, bit in enumerate((16, 8, 2, 1)):
        f.v_and_b32(vT, bit, vL); f.v_cmp_ne_u32(M[i], 0, vT)
    f.v_bfe_u32(vT, vL, 2, 1); f.v_lshrrev_b32(vU, 5, vL); f.v_cmp_eq_u32(M[4], vT, vU)
    fm = None
    if hq < 8: fm = f; f = Stream()
    f.v_cndmask_b32(v(SA), v(SA), v(SA + 1), M[0])
    for i in range(8): f.v_cndmask_b32(v(QD + i), v(QD + i), v(QD + 8 + i), M[0])
    for i in range(4): f.v_cndmask_b32(v(QD + i), v(QD + i), v(QD + 4 + i), M[1])
    for i in range(2): f.v_cndmask_b32(v(QD + i), v(QD + i), v(QD + 2 + i), M[2])
    f.v_cndmask_b32(v(QD), v(QD), v(QD + 1), M[3])
    f.v_cndmask_b32(v(QD), 0, v(QD), M[4])
    fin_stats(f, v(SA), v(QD), None, v(QD + 1), NM, RS, VE)
    f.v_mul_f32(LR, sL2E, RS)
    g = Stream(); k_addr(g)
    g2 = g if hq == 8 else Stream()
    lane_tr(g2, vP1, None, "nat")
    g2.s_lshl_b32(sT2, sKH, 6); g2.v_xor_b32(vP1, sT2, vP1); g2.s_lshl_b32(sT2, sKH, 11); g2.v_add_u32(vP1, sT2, vP1)
    fill = Filler()
    r0 = oi("res0", 24)
    if hq == 8:
        act(2, lambda st: fill.add(f)); act(r0, res); act(r0 + 1, lambda st: fill.add(g))
    else:
        act(oi("gat", 1), lambda st: (fill.add(g2), fill.add(fm))); act(max(r0, 25), res)
        act(max(rp + 1, 26), lambda st: fill.add(g)); act(last + 3, lambda st: fill.add(f))
    hooks = {i: (lambda st, l=l: [f(st) for f in l]) for i, l in acts.items()}
    gemm(st, kv_items(), "trq", AF1, 6, 5, ready=[0], bars=bars, hooks=hooks, fill=fill, budget=oi("bud10", 8), pairw=oi("pw1", 0))
    fill.flush(st)
    st.v_add_u32(vNON, 1, vNON)
    st.v_mov_b32(v(125), 1); sigwait(st, 12, 32, cmp="gt")
    k_reads(st)
    st.v_readfirstlane_b32(sNONCE, vNON)
    signal(st, 2, 32)
    st.s_add_u32(sH5, sHST, 16384 * 5); st.s_add_u32(sF5, sDUM, 1024)
    st.s_cmp_eq_u32(sT6, 1); st.s_cselect_b32(sH5, sH5, sDUM); st.s_cselect_b32(sF5, sFJ, sF5)
    stamp(st, "KVgemm")

def frag_loads(base, regs, stride, per, WS=WS):
    out = []
    for k, r in enumerate(regs):
        def f(st, k=k, r=r):
            if k % per == 0: st.s_add_u32(sLD, base, k * stride)
            st.buffer_load_dwordx4(v(r, 4), vL16, WS, sLD, mods=f"offen offset:{(k % per) * stride} {SCL}")
        out.append(f)
    return out

def x_addr(st):
    st.v_lshrrev_b32(vV, 5, vL); st.v_lshlrev_b32(vV, 11, vV); st.v_and_b32(vU, 31, vL); st.v_lshl_add_u32(vV, vU, 4, vV)
def p1a_pre(st):
    ring_next(st, "trq"); x_addr(st)
def p3_pre(st):
    st.v_and_b32(vU, 31, vL); st.v_lshlrev_b32(aCS3, 2, vU); st.v_add_u32(aCS3, L_CS + 3 * 128, aCS3)
    ring_next(st, "b128"); x_addr(st)
    st.s_add_u32(sT0, sRING, 0x10000); st.s_and_b32(sT0, sT0, 0x1ffff); st.v_add_u32(vA1, sT0, vL16)
    st.s_lshl_b32(sT0, sM, 12); st.s_add_u32(sT0, sT0, L_PH); st.v_add_u32(aXW, sT0, vL16)
def x_loads(st, stt, at=32):
    L = frag_loads(sXLD, [XF + 4 * k for k in range(32)], 1024, 4, XS)
    def stl(st):
        for i in range(4):
            st.buffer_load_dwordx4(v(stt + 4 * i, 4), vV, WS, sSTLD, mods=f"offen offset:{512*i} {SCL}")
    return L[:at] + [stl] + L[at:]

def featmap(st, acc, kb, wp, e1, e2, lr, mid=None, hk=None):
    n0 = len(st.l)
    featmap_(st, acc, kb, wp, e1, e2, lr, mid)
    for at in sorted(hk or {}, reverse=True):
        x = Stream(); hk[at](x); st.l[n0 + at:n0 + at] = x.l
def featmap_(st, acc, kb, wp, e1, e2, lr, mid=None):
    for i in range(8): st.v_cvt_pk_bf16_f32(v(kb + i), v(acc + 2 * i), v(acc + 2 * i + 1))
    st.v_mfma_f32_32x32x16_bf16(v(acc, 16), v(wp, 4), v(kb, 4), "0")
    st.v_mfma_f32_32x32x16_bf16(v(acc, 16), v(wp + 4, 4), v(kb + 4, 4), v(acc, 16))
    if mid: mid(st)
    mx, mn = v(kb), v(kb + 1)
    p = lambda i: v(acc + i)
    st.v_max3_f32(mx, p(0), p(1), p(2)); st.v_min3_f32(mn, p(0), p(1), p(2))
    for i in range(3, 15, 2):
        st.v_max3_f32(mx, mx, p(i), p(i + 1)); st.v_min3_f32(mn, mn, p(i), p(i + 1))
    st.v_max_f32(mx, mx, p(15)); st.v_min_f32(mn, mn, p(15))
    pk(st, "mul", kb, bc(lr), kb)
    for i in range(0, 16, 2):
        pk(st, "fma", e1 + i, acc + i, bc(lr), bc(kb, True)); pk(st, "fma", e2 + i, ng(acc + i), bc(lr), bc(kb + 1))
    for i in range(16):
        st.v_exp_f32(v(e1 + i), v(e1 + i)); st.v_exp_f32(v(e2 + i), v(e2 + i))
    s1, s2 = kb + 2, kb + 4
    pk(st, "add", s1, e1, e1 + 2); pk(st, "add", s2, e2, e2 + 2)
    for i in range(4, 16, 2):
        pk(st, "add", s1, s1, e1 + i); pk(st, "add", s2, s2, e2 + i)
    st.v_add_f32(v(s1), v(s1), v(s1 + 1)); st.v_add_f32(v(s2), v(s2), v(s2 + 1))
    st.v_rcp_f32(v(s1), v(s1)); st.v_rcp_f32(v(s2), v(s2))
    for i in range(0, 16, 2):
        pk(st, "mul", e1 + i, bc(s1), e1 + i); pk(st, "mul", e2 + i, bc(s2), e2 + i)
    for i in range(8):
        st.v_cvt_pk_bf16_f32(v(e1 + i), v(e1 + 2 * i), v(e1 + 2 * i + 1))
        st.v_cvt_pk_bf16_f32(v(e2 + i), v(e2 + 2 * i), v(e2 + 2 * i + 1))

def p1a(st):
    at = oi("st1", 22)
    L = x_loads(st, STT, at)
    stamp(st, "p1pre")
    poll2(st, vFL, sFA, 0, oi("gfx", -1))
    stamp(st, "FXpoll")
    pre = oi("pre1", 10)
    for f in L[:pre]: f(st)
    nxt(st)
    barrier(st, "a0")
    stamp(st, "B(a0)")
    fill = Filler()
    f = Stream(); stats(f, STT, NM, RS, VE); f.v_mul_f32(LR, sL2E, RS); k_reads(f, "v")
    g = Stream(); k_addr(g); k_reads(g, "wk")
    hooks = {2: lambda st: fill.add(g), oi("sth1", 2 * at + 2): lambda st: fill.add(f)}
    gemm(st, kv_items(), "trq", AF1, 6, 5, ready=[0], bars={oi("a1", 20): ("a1", [1]), oi("a2", 56): ("a2", [])}, loads=L[pre:], pre=0,
         hooks=hooks, fill=fill, budget=oi("bud1", 8), pairw=oi("pw1", 0))
    fill.flush(st)
    stamp(st, "KVgemm")

def p1b(st):
    AF = AF1
    for i in range(0, 16, 2): pk(st, "fma", aK + i, CK + i, bc(NM), aK + i)
    def vpart(st):
        for i in range(0, 16, 2): pk(st, "fma", aV + i, CV + i, bc(NM), aV + i)
        for i in range(0, 16, 2): pk(st, "mul", aV + i, bc(RS), aV + i)
        for i in range(8): st.v_cvt_pk_bf16_f32(v(aV + i), v(aV + 2 * i), v(aV + 2 * i + 1))
        st.ds_write_b128(aB, v(aV, 4)); st.ds_write_b128(aB, v(aV + 4, 4), mods="offset:16")
    featmap(st, aK, AF, WPH, STT, aQ, LR, mid=vpart)
    st.ds_write_b128(aA, v(STT, 4)); st.ds_write_b128(aA, v(STT + 4, 4), mods="offset:16")
    st.ds_write_b128(aA, v(aQ, 4), mods="offset:32"); st.ds_write_b128(aA, v(aQ + 4, 4), mods="offset:48")
    signal(st)
    TA, TB, ONE, AKV, AZ = 16, 32, 96, 100, 104
    def shadow(st):
        st.v_lshrrev_b32(vT, 4, vL); st.v_lshlrev_b32(vT, 3, vT); st.v_bfe_u32(vU, vL, 2, 2); st.v_add_u32(vT, vT, vU)
        st.v_and_b32(vU, 3, vL); st.v_lshlrev_b32(vU, 3, vU)
        st.s_lshl_b32(sT0, sM, 5); st.s_add_u32(sT0, sT0, L_PH)
        st.v_mul_u32_u24(aR1, 144, vT); st.v_add3_u32(aR1, aR1, vU, sT0)
        st.s_lshl_b32(sT0, sTP, 5); st.s_add_u32(sT0, sT0, L_VB)
        st.v_mul_u32_u24(aR2, 80, vT); st.v_add3_u32(aR2, aR2, vU, sT0)
        ring_next(st, "trq")
    sigwait(st, extra=shadow)
    stamp(st, "Kepi+B")
    for k in range(4):
        for q in range(2):
            st.ds_read_b64_tr_b16(v(TA + 4 * k + 2 * q, 2), aR1, mods=f"offset:{(32*k+4*q)*144}")
            st.ds_read_b64_tr_b16(v(TB + 4 * k + 2 * q, 2), aR2, mods=f"offset:{(32*k+4*q)*80}")
    for i in range(4): st.v_mov_b32(v(ONE + i), sONE)
    st.v_lshrrev_b32(vT, 5, vL); st.v_lshlrev_b32(vV, 9, vT); st.v_bfe_u32(vU, vL, 4, 1); st.v_lshl_add_u32(vV, vU, 3, vV)
    st.v_lshlrev_b32(vT, 6, vT); st.v_lshl_add_u32(vT, vU, 4, vT)
    st.v_bfe_u32(vU, vL, 2, 2); st.v_lshl_add_u32(vV, vU, 7, vV); st.v_and_b32(vU, 3, vL); st.v_lshl_add_u32(vV, vU, 4, vV)
    for k in range(4):
        st.v_mfma_f32_16x16x32_bf16(v(AKV, 4), v(TA + 4 * k, 4), v(TB + 4 * k, 4), "0" if k == 0 else v(AKV, 4))
        st.v_mfma_f32_16x16x32_bf16(v(AZ, 4), v(TA + 4 * k, 4), v(ONE, 4), "0" if k == 0 else v(AZ, 4))
    st.v_cvt_pk_bf16_f32(v(AKV), v(AKV), v(AKV + 1)); st.v_cvt_pk_bf16_f32(v(AKV + 1), v(AKV + 2), v(AKV + 3))
    st.buffer_store_dwordx2(v(AKV, 2), vV, WS, sKVST, mods="offen sc1")
    st.buffer_store_dwordx4(v(AZ, 4), vT, WS, sKZ, mods="offen sc1", tset="kv")
    stamp(st, "kv st")
    items = []
    for k in range(16):
        for t in range(2):
            items.append(dict(chunk=0, off=k * 2048, t=t, acc=aQ, b=XF + 4 * (k + 16 * t), first=(k, t) == (0, 0)))
    def kvflag(st): st.buffer_store_dword(vNON, "off", WS, sFKVST, mods="sc1", tneed="kv")
    CS = 16
    aPL, aGZ, aGK = aR1, aR2, aB
    f = Stream()
    for i in range(4): f.ds_read_b128(v(CS + 4 * i, 4), aCS, mods=f"offset:{256+16*i}")
    f.v_lshrrev_b32(aPL, 2, vL); f.v_lshlrev_b32(aPL, oi("fks", 7), aPL); f.v_and_b32(vU, 3, vL); f.v_lshl_add_u32(aPL, vU, 2, aPL)
    f.v_lshrrev_b32(aGZ, 4, vL); f.v_mul_u32_u24(aGZ, KV_REC, aGZ); f.v_add_u32(aGZ, aGZ, vFL)
    f.v_lshrrev_b32(aGK, 5, vL); f.v_mul_u32_u24(aGK, KV_REC - 512, aGK); f.v_add_u32(aGK, aGK, vL16)
    fill = Filler()
    gemm(st, items, "trq", AF, 6, 5, ready=[0], hooks={4: lambda st: fill.add(f), oi("kvflag", 24): kvflag}, fill=fill, budget=8, pairw=oi("pwq", 0))
    fill.flush(st)
    stamp(st, "Qgemm")
    for i in range(0, 16, 2): pk(st, "fma", aQ + i, CS + i, bc(NM), aQ + i)
    ep = [int(x) for x in os_("kvp", "").split(",") if x]
    featmap(st, aQ, AF, WPH, aK, aV, LR, hk={a: (lambda x, r=r: pload(x, r, aPL, sFKVLD)) for a, r in zip(ep, (PRA, PRB))})
    stamp(st, "Q done")
    poll2(st, aPL, sFKVLD, 0, oi("gkv", -1), len(ep))
    stamp(st, "FKVpoll")
    Gr, Z, SG, GA = XF, XF + 64, XF + 32, XF + 48
    XT = v(XF + 72)
    nt = os_("gm", "sc1").replace("+", " ").replace("-", "")
    for cc in range(8):
        if cc: st.s_add_u32(sT0, sKVLD, 2 * cc * KV_REC)
        st.buffer_load_dwordx4(v(Gr + 4 * cc, 4), aGK, WS, sT0 if cc else sKVLD, mods="offen " + nt)
    for i in range(4):
        if i: st.s_add_u32(sT1, sGZ, 4 * i * KV_REC)
        st.buffer_load_dword(v(Z + i), aGZ, WS, sT1 if i else sGZ, mods="offen " + nt)
    if G.TAG == "f":
        st.s_lshl_b32(sT2, sC, 7); st.s_add_u32(sT2, sT2, XCCT)
        st.buffer_load_dword(XT, vFL, WS, sT2, mods="offen sc1")
    nxt(st)
    st.s_mul_i32(sT0, sM, 576); st.s_add_u32(sT0, sT0, L_KVB)
    st.v_and_b32(vT, 31, vL)
    st.v_and_b32(vU, 1, vL); st.v_lshlrev_b32(vU, 4, vU); st.v_mov_b32(vV, 0x3f80); st.v_lshlrev_b32(vU, vU, vV); st.v_lshrrev_b32(vV, 1, vT)
    for i in range(4):
        st.v_cmp_eq_u32("vcc", i, vV); st.v_cndmask_b32(v(SG + i), 0, vU, "vcc")
    st.v_lshlrev_b32(vT, 4, vT)
    st.v_lshrrev_b32(vU, 5, vL)
    st.v_lshl_add_u32(aA, vU, 3, vT); st.v_add_u32(aA, sT0, aA)
    st.v_lshrrev_b32(aB, 1, vFL); st.v_add_u32(aB, sT0, aB)
    st.v_bfe_u32(vV, vL, 2, 1); st.v_cmp_eq_u32("vcc", vV, vU)
    st.v_mov_b32(vV, 544); st.v_cndmask_b32(vT, vV, vT, "vcc"); st.v_add_u32(aR1, L_KVB, vT)
    st.v_lshlrev_b32(vU, 4, vU); st.v_add_u32(aR2, L_KVB + 512, vU)
    for cc in range(8):
        st.v_mfma_f32_32x32x16_bf16(v(GA, 16), v(SG, 4), v(Gr + 4 * cc, 4), "0" if cc == 0 else v(GA, 16))
    st.v_add_f32(v(Z), v(Z), v(Z + 1)); st.v_add_f32(v(Z + 2), v(Z + 2), v(Z + 3)); st.v_add_f32(v(Z), v(Z), v(Z + 2))
    st.v_mov_b32(v(Z + 1), v(Z)); st.v_permlane32_swap_b32(v(Z), v(Z + 1)); st.v_add_f32(v(Z), v(Z), v(Z + 1))
    st.v_mov_b32(v(Z + 1), v(Z)); st.v_permlane16_swap_b32(v(Z), v(Z + 1)); st.v_add_f32(v(Z), v(Z), v(Z + 1))
    st.v_cvt_pk_bf16_f32(v(Z), v(Z), v(Z))
    st.ds_write_b16(aB, v(Z), mods="offset:512")
    st.v_cvt_pk_bf16_f32(v(GA), v(GA), v(GA + 1)); st.v_cvt_pk_bf16_f32(v(GA + 1), v(GA + 2), v(GA + 3))
    st.ds_write_b64(aA, v(GA, 2))
    if G.TAG == "f":
        OK = newlab("xok"); L = newlab("xpoll"); D = newlab("xdec")
        st.s_cmp_lg_u32(sPAIR, 0)
        st.mark("save", OK)
        st.s_cbranch_scc1(OK)
        st.s_add_u32(sT0, sNONCE, 14); st.s_add_u32(sT1, sT0, sXC)
        st.v_cmp_ne_u32("vcc", sT1, XT)
        if not OPT.get("slow"): st.s_cbranch_vccz(OK)
        st.label(L)
        st.buffer_load_dword(XT, vFL, WS, sT2, mods="offen sc1")
        st.wait(vm=0)
        st.v_subrev_u32(vT, sT0, XT)
        st.v_cmp_le_u32("vcc", 16, vT)
        st.s_cbranch_vccz(D)
        st.s_sub_u32(sCNT, sCNT, 1)
        st.s_cbranch_scc0(L)
        st.s_mov_b32(sCNT, 0)
        st.label(D)
        st.v_cmp_ne_u32("vcc", sT1, XT)
        st.mark("save", "toslow")
        if OPT.get("slow"): st.s_branch(".Lg_s")
        else: st.s_cbranch_vccnz(".Lg_s")
        st.mark("merge", OK)
        st.label(OK)
    else:
        st.mark("merge", "toslow")
        st.label(".Lg_s")
    barrier(st, "g", drain=True)
    stamp(st, "gather+B")

def p1c(st):
    PHQ = [aK, aK + 4, aV, aV + 4]
    KA, ZA, NUM, DEN = XF, XF + 16, 48, v(64)
    for u in range(4): st.ds_read_b128(v(KA + 4 * u, 4), aR1, mods=f"offset:{576*u}")
    for u in range(4): st.ds_read_b128(v(ZA + 4 * u, 4), aR2, mods=f"offset:{576*u}")
    st.v_mov_b32(DEN, f2u(1e-6)); st.v_mov_b32(v(65), 0)
    st.v_lshrrev_b32(vU, 5, vL); st.v_lshl_add_u32(aA, vU, 9, vL16)
    for u in range(4):
        st.v_mfma_f32_32x32x16_bf16(v(NUM, 16), v(KA + 4 * u, 4), v(PHQ[u], 4), "0" if u == 0 else v(NUM, 16))
        for i in range(4):
            dd = DEN if i % 2 == 0 else v(65)
            st.v_dot2_f32_bf16(dd, v(PHQ[u] + i), v(ZA + 4 * u + i), dd)
    st.v_add_f32(DEN, DEN, v(65))
    st.v_rcp_f32(DEN, DEN)
    for i in range(0, 16, 2): pk(st, "mul", NUM + i, bc(DEN), NUM + i)
    for i in range(8): st.v_cvt_pk_bf16_f32(v(NUM + i), v(NUM + 2 * i), v(NUM + 2 * i + 1))
    st.buffer_store_dwordx4(v(NUM, 4), aA, WS, sOST, mods=f"offen {G.SC}")
    st.buffer_store_dwordx4(v(NUM + 4, 4), aA, WS, sOST, mods=f"offen offset:512 {G.SC}", tset="o")
    ring_next(st, "trn")
    res_init(st, 16)
    st.s_lshl_b32(sT0, sM, 12); st.s_add_u32(sT0, sT0, L_PH); st.v_add_u32(aXW, sT0, vL16)
    st.buffer_store_dword(vNON, "off", WS, sFJ, mods=f"offset:128 {G.SC}", tneed="o")
    for r in (sKVST, sKVLD, sKZ, sGZ): st.s_add_u32(r, r, KV_P)
    st.s_add_u32(sFKVST, sFKVST, 256 * 128); st.s_add_u32(sFKVLD, sFKVLD, 256 * 128)

def small_items(nsteps, breg, accs=(16, 32)):
    items = []
    for k in range(nsteps):
        for t in ((1, 0) if k == nsteps - 1 else (0, 1)):
            items.append(dict(chunk=k // 8, off=(k % 8) * 4096, t=t, acc=accs[t], b=breg(k), first=k == 0 and t == 1))
    return items
def res_init(st, a):
    for i in range(8):
        st.v_lshlrev_b32(v(a + 2 * i), 16, v(RES + i)); st.v_and_b32(v(a + 2 * i + 1), 0xffff0000, v(RES + i))

def xepi(st, last):
    aB_, T, P = (96, 48, 16) if last else (32, 16, 48)
    aX = aXW
    for i in range(4): st.ds_write_b128(aX, v(aB_ + 4 * i, 4), mods=f"offset:{1024*i}")
    st.v_xor_b32(aX, 4096, aX)
    barrier(st, "X4" if last else "X2", drain=True)
    for i in range(4): st.ds_read_b128(v(P + 4 * i, 4), aX, mods=f"offset:{1024*i}")
    st.v_and_b32(aX, 31, vL); st.v_lshlrev_b32(aX, 4, aX); st.v_lshrrev_b32(vT, 5, vL); st.v_lshl_add_u32(aX, vT, 2, aX)
    for i in range(4):
        for k in (4 * i, 4 * i + 2): pk(st, "add", T + k, T + k, P + k)
        for k in (2 * i, 2 * i + 1): st.v_cvt_pk_bf16_f32(v(RES + k), v(T + 2 * k), v(T + 2 * k + 1))
    LF = newlab("fin")
    if last:
        st.mark("save", LF)
        st.s_cmp_eq_u32(sPAIR, 1); st.s_cbranch_scc1(LF)
    st.buffer_store_dwordx4(v(RES, 4), vL16, XS, sXST, mods=f"offen {G.SC}")
    st.buffer_store_dwordx4(v(RES + 4, 4), vL16, XS, sXST, mods=f"offen offset:1024 {G.SC}")
    S, Q, S2, Q2 = v(T), v(T + 1), v(T + 2), v(T + 3)
    st.v_dot2_f32_bf16(S, v(RES), sONE, 0); st.v_dot2_f32_bf16(Q, v(RES), v(RES), 0)
    st.v_dot2_f32_bf16(S2, v(RES + 1), sONE, 0); st.v_dot2_f32_bf16(Q2, v(RES + 1), v(RES + 1), 0)
    for i in range(2, 8, 2):
        st.v_dot2_f32_bf16(S, v(RES + i), sONE, S); st.v_dot2_f32_bf16(Q, v(RES + i), v(RES + i), Q)
        st.v_dot2_f32_bf16(S2, v(RES + i + 1), sONE, S2); st.v_dot2_f32_bf16(Q2, v(RES + i + 1), v(RES + i + 1), Q2)
    pk(st, "add", T, T, T + 2)
    st.v_permlane32_swap_b32(S, Q); st.v_add_f32(S, S, Q)
    st.buffer_store_dword(S, aX, WS, sSTST, mods=f"offen {G.SC}", tset="x")
    (p1a_pre if last else p3_pre)(st)
    st.buffer_store_dword(vNON, "off", WS, sFXST, mods=G.SC, tneed="x")
    if last:
        st.s_mov_b32(sPAIR, 1)
        st.s_branch(f".Lpair_{G.TAG}")
        st.label(LF); st.mark("restore", LF)
        st.v_and_b32(aX, 31, vL); st.v_lshlrev_b32(aX, 10, aX); st.v_lshrrev_b32(vT, 5, vL); st.v_lshl_add_u32(aX, vT, 4, aX)
        om = os_("om", "").replace("+", " ")
        st.buffer_store_dwordx4(v(RES, 4), aX, OUT, sOUTO, mods="offen " + om)
        st.buffer_store_dwordx4(v(RES + 4, 4), aX, OUT, sOUTO, mods="offen offset:32 " + om)

def p2(st):
    stamp(st, "o stored")
    poll2(st, vFL, sFB, 128, oi("gfo", -1))
    stamp(st, "FOpoll")
    L = frag_loads(sHLD, [XF + 4 * k for k in range(16)], 2048, 2)
    gemm(st, small_items(16, lambda k: XF + 4 * k), "trn", 48, 6, 5, ready=[0, 1], loads=L, pre=oi("pre2", 10), hooks={1: nxt}, pairw=oi("pw2", 0),
         bars={oi("p2a", 12): ("p2", [])} if oi("p2a", 12) else None)
    stamp(st, "P2gemm")
    xepi(st, False)

def stream(st, items, af, nslots, depth, hooks, fill, budget, watch=None, slots=None, gw=1):
    n = len(items); nr = 0
    gemm_n[0] += 1; tg = f"g{gemm_n[0]}_"
    G_ = (lambda i: gw) if not callable(gw) else gw
    def pump(upto):
        nonlocal nr
        while nr < n and nr <= upto:
            items[nr]["rd"](st, af + 4 * (nr % nslots)); st.l[-1].dst = st.l[-1].dst | {("t", tg + str(nr))}; nr += 1
    pump(depth - 1)
    nextw = 0; err = 0.0
    for i in range(n):
        it = items[i]
        acc = v(it["acc"], 16)
        tn = None
        if i == nextw:
            nextw = i + G_(i); tn = tg + str(min(nextw, nr) - 1)
        st.v_mfma_f32_32x32x16_bf16(acc, v(af + 4 * (i % nslots), 4), v(it["b"], 4), "0" if it["first"] else acc, tneed=tn)
        if tn and it.get("b2"): st.l[-1].src = st.l[-1].src | regs_of(v(it["b2"], 4))
        n0 = len(st.l)
        for h in hooks.get(i, []): h(st)
        pump(i + depth)
        if slots:
            used = 1 + sum(cost(x) for x in st.l[n0:]) // 4 + (1 if i + 1 == nextw else 0)
            room = slots(i) - used + err
            n1 = len(st.l)
            if room >= 1: fill.take(st, 4 * int(room))
            took = sum(cost(x) for x in st.l[n1:]) // 4
            err = max(-1.0, min(1.0, room - took)) if fill.q else 0.0
        else: fill.take(st, budget(i))
        if watch: watch(i, st.l[n0:])
    assert not fill.q

C1 = -2.0 * math.sqrt(2.0 / math.pi) * LOG2E
def p34(st):
    A = [16, 32, 48, 96]; AF = 64; NMP = 88; DEPTH = oi("dep", 5)
    K1, K3, VE3, NM3 = v(92), v(93), v(94), v(95)
    at = oi("st3", 20)
    L = x_loads(st, STT, at)
    stamp(st, "x stored")
    poll2(st, vFL, sFA, 0, oi("gf2", -1))
    stamp(st, "FXpoll2")
    pre = oi("pre3", 10)
    for f in L[:pre]: f(st)
    nxt(st)
    barrier(st, "30")
    stamp(st, "B(30)")
    items = []; hooks = {}
    def hk(i, f): hooks.setdefault(i, []).append(f)
    def wide(a, off, step=0):
        def rd(st, r):
            if step:
                st.s_add_u32(sRING, sRING, 0x8000 * step); st.s_and_b32(sRING, sRING, 0x1ffff); st.v_add_u32(vA0, sRING, vL16)
            st.ds_read_b128(v(r, 4), a, mods=f"offset:{off}")
        return rd
    def mean(r):
        return dict(rd=lambda st, q: st.ds_read_b32(v(q), aCS3, mods=f"offset:{128*r}"), acc=A[r % 4], b=NMP, first=False)
    n2 = oi("n2", 10); k2 = 0; end = {}; use = {}
    def t2(k): return dict(rd=wide(vA1, k * 1024), acc=A[2], b=XF + 4 * k, first=k == 0)
    for k in range(32):
        use[k] = len(items)
        for t in range(2):
            items.append(dict(rd=wide(vA0, t * 16384 + (k % 16) * 1024, int(k == 16 and t == 0)), acc=A[t], b=XF + 4 * k, first=k == 0))
        if k == 15: g5 = len(items) - 1
        if (k + 1) * n2 // 32 > k2: items.append(t2(k2)); k2 += 1
    items += [mean(0), mean(1)]; end[0] = len(items) - 2; end[1] = len(items) - 1
    items += [t2(k) for k in range(k2, 32)] + [mean(2)]; end[2] = len(items) - 1
    for r in range(3, 6):
        items += [dict(rd=wide(vA0, k * 1024, (2 if r == 3 else 1) if k == 0 else 0), acc=A[r % 4], b=XF + 4 * k, first=k == 0) for k in range(32)]
        items.append(mean(r)); end[r] = len(items) - 1
    T5 = end[4] + 1; P4 = len(items)
    HI = [16 + 4 * i for i in range(4)] + [116, 88] + [XF + 4 * i for i in range(2)] + [32 + 4 * i for i in range(3)]
    breg = lambda k: XF + 4 * k if k < 32 else HI[k - 32]
    for n, it in enumerate(small_items(43, breg, (48, 96))):
        def rd(st, r, it=it, n=n):
            if n % 16 == 0: ring_next(st, "trn")
            a = vA1 if it["t"] else vA0
            st.ds_read_b64_tr_b16(v(r, 2), a, mods=f"offset:{it['off']}")
            st.ds_read_b64_tr_b16(v(r + 2, 2), a, mods=f"offset:{it['off']+512}")
        items.append(dict(rd=rd, acc=it["acc"], b=it["b"], first=it["first"]))
    for n, f in enumerate(L[pre:]): hk(2 * n + 1, f)
    fill = Filler()
    f = Stream()
    stats(f, STT, NM3, K1, VE3)
    f.v_and_b32(vU, 0xffff0000, NM3); f.v_sub_f32(NM3, NM3, vU); f.v_cndmask_b32(vU, vU, NM3, sHALF)
    f.v_cvt_pk_bf16_f32(v(NMP), vU, vU)
    f.v_mul_f32(K3, K1, K1); f.v_mul_f32(K1, f2u(C1), K1); f.v_mul_f32(K3, f2u(0.044715), K3); f.v_mul_f32(K3, K3, K1)
    z = Stream()
    for i in range(1, 4): z.v_mov_b32(v(NMP + i), 0)
    z.v_min_u32(aP4, 20, vFL)
    hk(2, lambda st: fill.add(z))
    hk(use[min(31, at + oi("sth3", 2))], lambda st: fill.add(f))
    hk(end[0] - 2, lambda st: fill.flush(st))
    TM = 112
    def epi(r):
        f = Stream(); a = A[r % 4]
        g = lambda i: v(a + i)
        u = lambda i: v(a + 8 + i)
        tm = lambda i: v(TM + i % 4)
        for t in range(16):
            ok = lambda d: 0 <= t - d < 8
            if ok(3): f.v_exp_f32(g(t - 3), g(t - 3))
            if ok(0): f.v_mul_f32(tm(t), g(t), g(t))
            if ok(1): f.v_fma_f32(tm(t - 1), tm(t - 1), K3, K1)
            if ok(0): f.v_mul_f32(u(t), g(t), u(t))
            if ok(5): f.v_rcp_f32(g(t - 5), g(t - 5))
            if ok(2): f.v_mul_f32(g(t - 2), tm(t - 2), g(t - 2))
            if ok(4): f.v_fma_f32(g(t - 4), g(t - 4), VE3, VE3)
            if ok(6): f.v_mul_f32(g(t - 6), g(t - 6), u(t - 6))
            if ok(7) and t % 2 == 0: f.v_cvt_pk_bf16_f32(u((t - 8) // 2), g(t - 8), g(t - 7))
            if t == 12 and r < 5: f.s_add_u32(sHS, sHST, 16384 * r)
        f.buffer_store_dwordx4(v(a + 8, 4), vL16, WS, sHS if r < 5 else sH5, mods=f"offen {G.SC} {os_('hm', '') if r < oi('hmr', 6) else ''}", tset=f"h{r}")
        return f
    def flag(r):
        f = Stream()
        f.buffer_store_dword(vNON, "off", WS, sFJ if r < 5 else sF5, mods=f"offset:{256+64*r} {G.SC}", tneed=f"h{r}")
        return f
    e = [epi(r) for r in range(6)]
    ri = Stream(); res_init(ri, 48)
    lag = oi("lag", 3)
    for r in range(6):
        parts = [e[r]] + ([ri] if r == 3 else [])
        hk(end[max(r, 1)] + lag, lambda st, parts=parts: [fill.add(p) for p in parts])
        hk(end[r], lambda st, r=r: stamp(st, f"t{r}"))
    hk(end[3], lambda st: fill.drain_until(st, e[0])); hk(end[4], lambda st: fill.drain_until(st, e[1]))
    hk(end[5] - 1, lambda st: fill.drain_until(st, ri))
    fd = [int(x) for x in os_("fd", "38,20,20,18,16,12").split(",")]; fpos = {}
    def watch(i, l):
        for r in range(6):
            if any(("t", f"h{r}") in x.dst for x in l): fpos[r] = i + fd[r]; hk(i + fd[r], lambda st, r=r: (stamp(st, f"f{r}a"), st.extend(flag(r)), stamp(st, f"f{r}b")))
    b3, b4 = oi("bud3", 16), oi("bud4", 16)
    def bud(i):
        b = oi("bud0", 12) if i < end[1] else b3 if i < P4 - DEPTH else b4
        if b % 4: b += 2 if i % 2 else -2
        return b - (4 if i in hooks and oi("budh", 1) else 0)
    o = oi("b4", 10)
    for i, name in ((g5 + oi("c1d", 4), "3a"), (end[1], "3b"), (end[2], "3c"), (end[3], "3d"), (end[4], "3f"), (end[5], "3g"),
                    (P4 + o, "4a"), (P4 + 16 + o, "4b"), (P4 + 32 + o, "4c"), (P4 + 48 + o, "4d"), (P4 + 64 + o, "4e")):
        hk(i, lambda st, name=name: (stamp(st, f"{name}a"), barrier(st, name), stamp(st, f"{name}b")))
    for i in (16, 32, 48, 64): hk(P4 + i, lambda st, i=i: stamp(st, f"q{i}"))
    HL = frag_loads(sHLD, [breg(k) for k in range(43)], 2048, 2)
    if OPT.get("noH"): HL = [lambda st: None] * 43
    ne = oi("early4", 12)
    ck = [T5 + oi("chkA", 10), P4 + oi("chk2", 0), P4 + oi("chk3", 16), P4 + oi("chk4", 42), P4 + oi("chk5", 65)]
    sl = oi("sl", 12); ev = float(OPT.get("ev4", 2)); pos = []
    for k in range(43):
        g = max(0, k // 8 - 1)
        p = ck[0] + 1 + k * float(OPT.get("ev3", 2)) if k < ne else pos[-1] + ev
        pos.append(max(p, ck[g]) if k < 40 else ck[4])
    pos = [int(p) for p in pos]
    hk(ck[0] - sl - 1, lambda st: (st.v_and_b32(vV, 31, vL), st.v_lshlrev_b32(vV, 2, vV)))
    for g, (addr, off) in enumerate(((vV, 256), (vFL, 384), (vFL, 448), (vFL, 512), (aP4, 576))):
        assert g == 0 or ck[g] - sl > ck[g - 1]
        if OPT.get("nochk"): continue
        hk(ck[g] - sl, lambda st, addr=addr, off=off: st.buffer_load_dword(vS4, addr, WS, sFB, mods=f"offen offset:{off} sc1"))
        hk(ck[g], lambda st, addr=addr, off=off, g=g: (stamp(st, f"k{g}a"), soft_check(st, vS4, addr, sFB, off), stamp(st, f"k{g}b")))
    def last(st):
        assert 5 in fpos and fpos[5] < ck[4]
        nxt(st)
    hk(ck[4], last)
    for k in range(43):
        assert pos[k] < P4 + 2 * k and (k >= 32 or pos[k] >= T5 + k), (k, pos[k])
        hk(pos[k], HL[k])
    hk(pos[32] - 1, lambda st: fill.drain_until(st, e[4]))
    sl_ = None
    if float(OPT.get("sl3", 7)):
        s0_, s3_, s4_ = [float(OPT.get(k, d)) for k, d in (("sl0", 7), ("sl3", 7), ("sl4", 8))]
        sl_ = lambda i: s0_ if i < end[1] else s3_ if i < P4 - DEPTH else s4_
    g0_, g3_, g4_ = oi("gw0", 2), oi("gw3", 2), oi("gw4", 2)
    def gw_(i):
        g = g0_ if i < end[1] else g3_ if i < P4 else g4_
        return min(g, P4 - i) if i < P4 else g
    if g4_ == 4 or oi("gv4", 0):
        for i in range(P4, len(items) - 2, 4): items[i]["b2"] = items[i + 2]["b"]
    stream(st, items, AF, 6, DEPTH, hooks, fill, bud, watch, sl_, gw_)
    if G.TAG == "f": print("T3", end[2] + 1, "T4", end[3] + 1, "T5", T5, "P4", P4, "flags", fpos, "checks", ck, "loads", pos, file=sys.stderr)
    stamp(st, "P4gemm")
    xepi(st, True)

def body(st, first):
    stop = OPT["stop"]
    T = G.TAG
    st.label(f".Lpair_{T}"); st.mark("reset")
    G.SEQ = SEQA; p1a(st)
    G.SEQ = SEQC
    if first:
        st.mark("merge", "from0"); st.label(".Lk_f")
    p1b(st); p1c(st)
    if stop == "p1": st.s_branch(".Lend"); return
    p2(st)
    if stop == "p2": st.s_branch(".Lend"); return
    p34(st)
    stamp(st, "end")
    stamp(st, 63, True)
    if OPT.get("dbg") == "2":
        if OPT.get("wb"):
            st.wait(vm=0); st.raw("    buffer_wbl2 sc0 sc1"); st.raw("    s_waitcnt vmcnt(0)")
        L = newlab("pad")
        st.s_mov_b32(s(87), 7000)
        if OPT.get("early"): st.s_cmp_lt_u32(s(2), int(OPT["early"])); st.s_cselect_b32(s(87), 6000, s(87))
        if OPT.get("cap"):
            if OPT.get("capr"): st.s_sub_u32(s(43), s(43), s(42))
            else: st.s_sub_u32(s(43), s(43), s(86)); st.s_lshr_b32(s(43), s(43), 2)
            st.s_min_u32(s(43), s(43), 40000); st.s_add_u32(s(87), s(87), s(43))
        st.label(L)
        st.s_memrealtime(s(100, 2)); st.wait(lgkm=0); st.s_sub_u32(s(100), s(100), s(42)); st.s_cmp_lt_u32(s(100), s(87)); st.s_cbranch_scc1(L)
    elif OPT.get("dbg"):
        st.s_load_dwordx2(s(44, 2), s(0, 2), 72); st.s_memrealtime(s(100, 2)); st.wait(lgkm=0)
        st.s_and_b32(s(45), s(45), 0xffff); st.s_mov_b32(s(46), 256); st.s_mov_b32(s(47), 0x20000)
        st.s_not_b32(s(42), s(42)); st.v_mov_b32(vT, s(42)); st.v_mov_b32(vU, s(100)); st.s_not_b32(s(100), s(100)); st.v_mov_b32(vV, s(100))
        st.raw("    buffer_atomic_umax v13, off, s[44:47], 0")
        st.raw("    buffer_atomic_umax v14, off, s[44:47], 0 offset:4")
        st.raw("    buffer_atomic_umax v15, off, s[44:47], 0 offset:8")
        st.s_not_b32(s(42), s(42)); st.v_mov_b32(vT, s(42))
        st.raw("    s_nop 4")
        st.raw("    buffer_atomic_umax v13, off, s[44:47], 0 offset:12")
    st.s_or_b32(sT0, s(2), sW); st.s_cmp_lg_u32(sT0, 0); st.s_cbranch_scc1(".Lend")
    st.v_add_u32(vNON, 22, vNON)
    st.buffer_store_dword(vNON, "off", WS, 0, mods=f"offset:{EPOCH} sc1")
    st.s_branch(".Lend")

SEQ0, SEQA, SEQC = [], [], []
def compute(st):
    G.SEQ = SEQ0
    p1a0(st)
    st.mark("save", "from0")
    st.s_branch(".Lk_f")
    G.SC, G.TAG = "", "f"
    body(st, True)

def compute_slow(st):
    G.SC, G.TAG, G.REC = "sc1", "s", False
    body(st, False)

sW8, sQK, sWOb, sGU, sWD5, sWI = s(74), s(75), s(76), s(77), s(78), s(79)
sWDb = [s(80 + i) for i in range(4)]
GU = 64
vKV, vQ, vW, vWR0, vWR1 = v(2), v(4), v(5), v(6), v(7)
vGG = [v(8), v(9), v(10)]; vGL = [v(16), v(17), v(18)]; vGT = v(19)
vC0, vC1, vCW, vCR = v(20), v(21), v(22), v(23)
SEL = 24; CACC = 28
FRS = [36, 40, 44, 48, 52]; WRAW = 56
vDUM = [v(11), v(60), v(61), v(62)]
GSTR = 448

def LDSW(st):
    for i in reversed(st.l):
        if i.name == "s_barrier" or (i.name == "s_waitcnt" and "lgkmcnt(0)" in i.ops[0]): return False
        if i.kind == "ds": return True
    return False

def POL(srd):
    k = {WQ: "pq", WO_: "po", WD: "pd", WG: "pg", WU: "pg"}.get(srd)
    x = os_(k, "") if k else ""
    return " " + x.replace("+", " ") if x else ""

def loader(st):
    st.v_lshrrev_b32(vT, 3, vL); st.v_bfe_u32(vU, vL, 4, 1); st.v_lshlrev_b32(vU, 2, vU); st.v_and_b32(vV, 7, vL); st.v_xor_b32(vU, vU, vV)
    st.v_mul_u32_u24(vKV, 3072, vT); st.v_and_b32(vV, 3, vU); st.v_lshl_add_u32(vKV, vV, 4, vKV)
    st.v_lshrrev_b32(vV, 2, vU); st.v_mul_u32_u24(vQ, 256 * 3072, vV); st.v_add_u32(vQ, vQ, vKV)
    st.v_lshl_add_u32(vKV, vV, 10, vKV); st.v_add_u32(vKV, 1024, vKV)
    st.v_lshlrev_b32(vW, 10, vT); st.v_lshl_add_u32(vW, vU, 4, vW)
    st.s_lshl_b32(sW8, sM, 13)
    st.s_mul_i32(sQK, sM, 64 * 3072); st.s_lshl_b32(sT0, sJ, 6); st.s_add_u32(sQK, sQK, sT0)
    sKVr = [s(84), s(85)]; sQJ = s(88); vQ0 = v(GU)
    rot(st, s(89), sT1); st.s_add_u32(s(89), s(89), sM)
    st.s_lshl_b32(sQJ, sJ, 6)
    st.s_and_b32(sT1, s(89), 7); st.s_mul_i32(sKVr[0], sT1, 64 * 3072); st.s_add_u32(sKVr[0], sKVr[0], sQJ)
    st.s_and_b32(sWI, sC, 1); st.s_lshl_b32(sWI, sWI, 4); st.s_add_u32(sWI, sWI, sJ); st.s_lshl_b32(sWI, sWI, 2); st.s_add_u32(sWI, sWI, sM)
    if not oi("fast0", 1) or os_("e0", "Tkv,c0,non,wld"):
        st.wait(lgkm=0)
        srds(st, [WQ])
    chunks = []
    for pair in range(2):
        chunks += [("kv", 0), ("kv", 1), ("q", 0), ("wo", 0), ("wo", 1), ("gp", 0), ("gp", 1)] + [("gs", r) for r in range(2, 6)]
        chunks += [("wd", r) for r in range(6)]
    N = len(chunks)
    issued = set()
    SQ = []
    def spf(n):
        for _ in range(min(n, len(SQ))): SQ.pop(0)()
    def squeue(kind):
        if kind[0] == "k":
            i0 = 32 if kind == "k2" else 0
            for i in range(i0, 64):
                def f(i=i):
                    if i == i0:
                        st.s_lshr_b32(s(90), sWI, 4); st.s_mul_i32(s(90), s(90), 3072); st.s_and_b32(s(91), sWI, 15); st.s_lshl_b32(s(91), s(91), 7)
                        st.s_add_u32(s(91), s(91), s(90)); st.s_add_u32(s(44), s(46), s(91)); st.s_addc_u32(s(45), s(47), 0)
                    if i == 32: st.s_add_u32(s(44), s(44), 32 * 24576); st.s_addc_u32(s(45), s(45), 0)
                    x = Ins("s_load_dwordx2", [s(86, 2), s(44, 2), hex(i % 32 * 24576 + 1024 + 60)]); x.dst = set(); st.l.append(x)
                SQ.append(f)
            return
        base, cnt = dict(w=(46, 96), o=(50, 32), d=(58, 86), g=(54, 86), u=(56, 86))[kind[0]]
        if len(kind) > 1: cnt = int(kind[1:])
        for i in range(cnt):
            def f(i=i):
                if i == 0:
                    st.s_lshl_b32(s(91), sWI, 7); st.s_add_u32(s(44), s(base), s(91)); st.s_addc_u32(s(45), s(base + 1), 0)
                if i == 48: st.s_add_u32(s(44), s(44), 48 * 16384); st.s_addc_u32(s(45), s(45), 0)
                x = Ins("s_load_dwordx2", [s(86, 2), s(44, 2), hex(i % 48 * 16384 + 60)]); x.dst = set(); st.l.append(x)
            SQ.append(f)
    PART = [0, 8]
    def dma(n, addr, srd, offs):
        slot = (n % 4) * 32768
        for i, (base, off, lds) in enumerate(offs):
            if not PART[0] <= i < PART[1]: continue
            st.s_add_u32("m0", lds[0], slot + lds[1])
            st.s_add_u32(sT0, base, off)
            st.buffer_load_dwordx4(addr, srd, sT0, mods="offen" + POL(srd) + " lds", tset=f"c{n}" if i == len(offs) - 1 else None)
    def issue(n):
        if n >= N: return
        assert n not in issued
        if PART[1] == 8: issued.add(n)
        kind, a = chunks[n]
        if kind == "kv" and n < 17:
            if a == 1: st.s_xor_b32(sT1, s(89), 4); st.s_and_b32(sT1, sT1, 7); st.s_mul_i32(sKVr[1], sT1, 64 * 3072); st.s_add_u32(sKVr[1], sKVr[1], sQJ)
            dma(n, vKV, WQ, [(sKVr[a], 8 * i * 3072, (sW8, 1024 * i)) for i in range(8)])
        elif kind == "q" and n < 17:
            st.v_add_u32(vT, sKVr[0], vQ); st.v_subrev_u32(vU, 512 * 3072, vT); st.v_min_u32(vQ0, vT, vU)
            dma(n, vQ0, WQ, [("0", 8 * i * 3072, (sW8, 1024 * i)) for i in range(8)])
        elif kind == "kv": dma(n, vKV, WQ, [(sQK, (256 * a + 8 * i) * 3072, (sW8, 1024 * i)) for i in range(8)])
        elif kind == "q": dma(n, vQ, WQ, [(sQK, 8 * i * 3072, (sW8, 1024 * i)) for i in range(8)])
        elif kind == "wo": dma(n, vW, WO_, [(sWOb, (256 * a + 8 * i) * 1024, (sW8, 1024 * i)) for i in range(8)])
        elif kind == "wd" and a < 5: dma(n, vW, WD, [(sWDb[i // 2], (16 * a + 8 * (i % 2)) * 1024, (sW8, 1024 * i)) for i in range(8)])
        elif kind == "wd":
            slot = (n % 4) * 32768
            for e in range(3):
                st.s_mul_i32(sT1, sM, 3); st.s_add_u32(sT1, sT1, e)
                st.s_lshr_b32(sT0, sT1, 1); st.s_mul_i32(sT0, sT0, 96 * 1024); st.s_and_b32(sT2, sT1, 1); st.s_lshl_b32(sT2, sT2, 13)
                st.s_add_u32(sT0, sT0, sT2); st.s_add_u32(sT0, sT0, sWD5)
                st.s_lshl_b32(sT1, sT1, 10); st.s_add_u32("m0", sT1, slot)
                st.buffer_load_dwordx4(vW, WD, sT0, mods="offen" + POL(WD) + " lds", tset=f"c{n}" if e == 2 else None)
        else:
            slot = n % 4; wr = vWR1 if slot >= 2 else vWR0; so = (slot & 1) * 32768
            for t in range(2):
                for k in range(4):
                    g, fr = (4 * a + k, t) if kind == "gp" else (4 * t + k, a)
                    st.ds_write_b128(wr, v(GU + 24 * g + 4 * fr, 4), mods=f"offset:{so + t*16384 + k*1024}", tset=f"c{n}" if (t, k) == (1, 3) else None)
    FREE = [GU + 24 * g + 4 * fr for h in (0, 2) for g in range(8) for fr in (h, h + 1)]
    def stg(n):
        a = chunks[n][1]
        if n < 17:
            return [48, 52, 56] if a == 5 else [16 + 4 * i for i in range(8)]
        o = {3: 0, 4: 8, 2: 16, 5: 24}[a]
        return FREE[o:o + 8]
    def stage(n):
        kind, a = chunks[n]; assert kind == "wd"
        r = stg(n)
        if a < 5:
            for i in range(8):
                st.s_add_u32(sT0, sWDb[i // 2], (16 * a + 8 * (i % 2)) * 1024)
                st.buffer_load_dwordx4(v(r[i], 4), vW, WD, sT0, mods="offen")
        else:
            for e in range(3):
                st.s_mul_i32(sT1, sM, 3); st.s_add_u32(sT1, sT1, e)
                st.s_lshr_b32(sT0, sT1, 1); st.s_mul_i32(sT0, sT0, 96 * 1024); st.s_and_b32(sT2, sT1, 1); st.s_lshl_b32(sT2, sT2, 13)
                st.s_add_u32(sT0, sT0, sT2); st.s_add_u32(sT0, sT0, sWD5)
                st.buffer_load_dwordx4(v(r[e], 4), vW, WD, sT0, mods="offen")
    def unstage(n):
        kind, a = chunks[n]; r = stg(n); slot = (n % 4) * 32768
        assert n not in issued; issued.add(n)
        if a < 5: st.s_add_u32(sT0, sW8, slot)
        else: st.s_mul_i32(sT0, sM, 3072); st.s_add_u32(sT0, sT0, slot)
        st.v_add_u32(vT, sT0, vL16)
        for i in range(8 if a < 5 else 3): st.ds_write_b128(vT, v(r[i], 4), mods=f"offset:{1024*i}")
    def prologue():
        F0 = oi("fast0", 1)
        if F0:
            if os_("e0", "Tkv,c0,non,wld"):
                srds(st, [WS, WP, WO_, WG, WU, WD, OUT])
                run(os_("e0", "Tkv,c0,non,wld").split(","), 0)
        else:
            issue(0)
            if oi("kv1first", 1): issue(1)
        if not oi("cfirst", 1):
            st.mark("save", "ld1"); st.s_branch(".Lloader")
            st.label(".Lcomp"); st.mark("reset")
            compute(st)
            st.label(".Lloader"); st.mark("restore", "ld1")
        if not F0 and not oi("kv1first", 1): issue(1)
        def late():
            if not (F0 and os_("e0", "Tkv,c0,non,wld")):
                st.wait(lgkm=0)
                srds(st, [WQ, WS, WP, WO_, WG, WU, WD])
            stamp_base(st)
            stamp(st, "start", who="l", pair=0)
        if not F0 or os_("e0", "Tkv,c0,non,wld"): late()
        st.s_lshl_b32(sWOb, sM, 16); st.s_lshl_b32(sT0, sCG, 7); st.s_add_u32(sWOb, sWOb, sT0)
        for e in range(4):
            st.s_lshl_b32(sT1, sM, 2); st.s_add_u32(sT1, sT1, e)
            st.s_mul_i32(sT2, sT1, 6); st.s_mul_i32(sT3, sT1, 5); st.s_add_u32(sT3, sT3, 6); st.s_min_u32(sT2, sT2, sT3)
            st.s_lshl_b32(sT2, sT2, 14); st.s_add_u32(sWDb[e], sT2, sT0)
        st.s_add_u32(sWD5, sT0, 80 * 1024)
        st.s_mul_i32(sT2, sJ, 6); st.s_mul_i32(sT3, sJ, 5); st.s_add_u32(sT3, sT3, 6); st.s_min_u32(sT2, sT2, sT3)
        st.s_lshl_b32(sT2, sT2, 5); st.s_mul_i32(sGU, sM, 64 * 2752); st.s_add_u32(sGU, sGU, sT2)
        st.s_cmp_eq_u32(sT6, 1); st.s_cselect_b32(sT1, 12, 10)
        st.s_lshl_b32(sT2, sM, 12); st.s_add_u32(sT2, sT2, 32768)
        for i in range(3):
            st.v_add_u32(vT, 64 * i, vL); st.v_mul_u32_u24(vU, 5462, vT); st.v_lshrrev_b32(vU, 16, vU)
            st.v_mul_u32_u24(vV, 12, vU); st.v_sub_u32(vT, vT, vV)
            st.v_mul_u32_u24(vGG[i], 2752, vU); st.v_lshl_add_u32(vGG[i], vT, 4, vGG[i])
            st.v_cmp_gt_u32("vcc", sT1, vT); st.v_mov_b32(vV, 0x80000000); st.v_cndmask_b32(vGG[i], vV, vGG[i], "vcc")
            st.v_and_b32(vV, 7, vU); st.v_mul_u32_u24(vGL[i], GSTR, vV); st.v_lshrrev_b32(vV, 3, vU); st.v_lshl_add_u32(vGL[i], vV, 14, vGL[i])
            st.v_lshrrev_b32(vV, 1, vT); st.v_lshl_add_u32(vGL[i], vV, 6, vGL[i])
            st.v_and_b32(vV, 1, vT); st.v_lshl_add_u32(vGL[i], vV, 4, vGL[i]); st.v_add_u32(vGL[i], sT2, vGL[i])
        lane_tr(st, vGT, None, "nat", stride=GSTR, hstride=16384); st.v_add_u32(vGT, sT2, vGT)
        lane_tr(st, vC0, vC1, "qkv")
        st.s_lshl_b32(sT0, sM, 12); st.v_add_u32(vWR0, sT0, vL16); st.v_add_u32(vWR1, 65536, vWR0)
        st.v_bfe_u32(vT, vL, 4, 1); st.v_and_b32(vU, 1, vL); st.v_cmp_eq_u32("vcc", vT, vU)
        st.v_mov_b32(vV, 0x3f803f80)
        for i in range(4): st.v_cndmask_b32(v(SEL + i), 0, vV, "vcc")
        st.v_lshlrev_b32(vCW, 6, vT); st.v_lshl_add_u32(vCW, vU, 5, vCW); st.v_lshrrev_b32(vT, 5, vL); st.v_lshl_add_u32(vCW, vT, 4, vCW)
        if F0 and not os_("e0", "Tkv,c0,non,wld"): late()
    def publish():
        L = newlab("pub")
        st.v_add_u32(vNON, sXC, vNON); st.v_add_u32(vNON, 16, vNON)
        st.s_lshl_b32(sT0, sC, 7); st.s_lshl_b32(sT1, sJ, 2); st.s_add_u32(sT0, sT0, sT1); st.s_add_u32(sT0, sT0, XCCT)
        st.s_cmp_lg_u32(sM, 0); st.mark("save", L); st.s_cbranch_scc1(L)
        st.buffer_store_dword(vNON, "off", WS, sT0, mods="sc1")
        st.mark("merge", L); st.label(L)
    dn = [0]
    def dum():
        dn[0] += 1
        return vDUM[dn[0] % 4]
    def tload(addr, srd, soff):
        i = Ins("buffer_load_dword", [dum(), addr, srd, str(soff)], "offen" + POL(srd)); i.dst = set(); st.l.append(i)
    def touch(kind):
        if kind == "wd":
            st.s_mul_i32(sT0, sWI, 86 * 128); st.v_lshlrev_b32(vT, 7, vL); tload(vT, WD, sT0)
            st.v_min_u32(vU, 21, vL); st.v_lshlrev_b32(vU, 7, vU); st.s_add_u32(sT0, sT0, 8192); tload(vU, WD, sT0)
        elif kind[:2] == "wf":
            n = int(kind[2:]); assert n <= 64
            st.s_mul_i32(sT0, sWI, n * 128); st.v_min_u32(vT, n - 1, vL); st.v_lshlrev_b32(vT, 7, vT); tload(vT, WD, sT0)
        elif kind[:2] == "wd":
            n = int(kind[2:]); c = 86 - n; assert c <= 64
            st.s_mul_i32(sT0, sWI, c * 128); st.s_add_u32(sT0, sT0, n * 16384); st.v_min_u32(vT, c - 1, vL); st.v_lshlrev_b32(vT, 7, vT); tload(vT, WD, sT0)
        elif kind == "out":
            st.s_lshl_b32(sT0, sC, 4); st.s_add_u32(sT0, sT0, sJ); st.s_lshl_b32(sT0, sT0, 2); st.s_add_u32(sT0, sT0, sM); st.s_lshl_b32(sT0, sT0, 11)
            st.v_lshlrev_b32(vT, 5, vFL); tload(vT, OUT, sT0)
        elif kind in ("g", "u"):
            D = WG if kind == "g" else WU
            st.s_mul_i32(sT0, sWI, 86 * 128); st.v_lshlrev_b32(vT, 7, vL); tload(vT, D, sT0)
            st.v_min_u32(vU, 21, vL); st.v_lshlrev_b32(vU, 7, vU); st.s_add_u32(sT0, sT0, 8192); tload(vU, D, sT0)
        elif kind in ("ga", "gb"):
            st.s_mul_i32(sT0, sWI, 43 * 128); st.v_min_u32(vT, 42, vL); st.v_lshlrev_b32(vT, 7, vT)
            if kind == "gb": st.s_add_u32(sT0, sT0, 256 * 2752)
            tload(vT, WG, sT0); tload(vT, WU, sT0)
        elif kind in ("kv0", "kv1"):
            st.v_bfe_u32(vT, vL, 4, 1); st.v_mul_u32_u24(vT, 3072, vT); st.v_lshl_add_u32(vT, vFL, 5, vT)
            st.s_mul_i32(sT0, sWI, 2 * 3072); st.s_add_u32(sT0, sT0, 1024 + 256 * 3072 * int(kind[2])); tload(vT, WQ, sT0)
        elif kind == "kv":
            st.v_lshrrev_b32(vT, 4, vL); st.v_mul_u32_u24(vT, 3072, vT); st.v_lshl_add_u32(vT, vFL, 5, vT)
            st.s_mul_i32(sT0, sWI, 4 * 3072); st.s_add_u32(sT0, sT0, 1024); tload(vT, WQ, sT0)
        elif kind == "q":
            st.v_bfe_u32(vT, vL, 3, 2); st.v_mul_u32_u24(vT, 3072, vT); st.v_and_b32(vU, 7, vL); st.v_lshl_add_u32(vT, vU, 7, vT)
            st.s_mul_i32(sT0, sWI, 4 * 3072); tload(vT, WQ, sT0)
        elif kind == "wo":
            st.v_and_b32(vT, 31, vL); st.v_lshlrev_b32(vT, 7, vT); st.s_lshl_b32(sT0, sWI, 12); tload(vT, WO_, sT0)
        elif kind == "h":
            st.s_lshl_b32(sT0, sC, 4); st.s_add_u32(sT0, sT0, sJ); st.s_lshl_b32(sT0, sT0, 2); st.s_add_u32(sT0, sT0, sM)
            st.s_mul_i32(sT0, sT0, 43 * 128); st.s_add_u32(sT0, sT0, HB)
            st.v_min_u32(vT, 42, vL); st.v_lshlrev_b32(vT, 7, vT); tload(vT, WS, sT0)
        elif kind in ("h0", "h1"):
            n, o = (16, 0) if kind == "h0" else (27, 32768)
            st.s_lshl_b32(sT0, sC, 2); st.s_add_u32(sT0, sT0, sM); st.s_mul_i32(sT0, sT0, HB_TB)
            st.s_mul_i32(sT1, sJ, n * 128); st.s_add_u32(sT0, sT0, sT1); st.s_add_u32(sT0, sT0, HB + o)
            st.v_min_u32(vT, n - 1, vL); st.v_lshlrev_b32(vT, 7, vT); tload(vT, WS, sT0)
        elif kind == "x" and XO:
            st.s_lshl_b32(sT0, sC, 4); st.s_add_u32(sT0, sT0, sJ); st.s_lshl_b32(sT0, sT0, 2); st.s_add_u32(sT0, sT0, sM)
            st.s_lshl_b32(sT1, sT0, 11); st.v_lshlrev_b32(vT, 5, vFL); tload(vT, OUT, sT1)
            st.s_lshl_b32(sT2, sT0, 8); st.s_add_u32(sT2, sT2, ST)
            st.s_lshl_b32(sT3, sC, 2); st.s_add_u32(sT3, sT3, sM); st.s_lshl_b32(sT3, sT3, 10); st.s_add_u32(sT3, sT3, FL - 2 * 128)
            st.v_mov_b32(vU, sT2); st.v_mov_b32(vV, sT3); st.v_cmp_le_u32("vcc", 2, vL); st.v_cndmask_b32(vU, vU, vV, "vcc")
            st.v_min_u32(vT, 6, vL); st.v_lshl_add_u32(vT, vT, 7, vU); tload(vT, WS, 0)
        elif kind == "x":
            st.s_lshl_b32(sT0, sC, 4); st.s_add_u32(sT0, sT0, sJ); st.s_lshl_b32(sT0, sT0, 2); st.s_add_u32(sT0, sT0, sM)
            st.s_lshl_b32(sT1, sT0, 11); st.s_add_u32(sT1, sT1, XB)
            st.s_lshl_b32(sT2, sT0, 8); st.s_add_u32(sT2, sT2, ST - 16 * 128)
            st.s_lshl_b32(sT3, sC, 2); st.s_add_u32(sT3, sT3, sM); st.s_lshl_b32(sT3, sT3, 10); st.s_add_u32(sT3, sT3, FL - 18 * 128)
            st.v_mov_b32(vU, sT1); st.v_mov_b32(vV, sT2); st.v_cmp_le_u32("vcc", 16, vL); st.v_cndmask_b32(vU, vU, vV, "vcc")
            st.v_mov_b32(vV, sT3); st.v_cmp_le_u32("vcc", 18, vL); st.v_cndmask_b32(vU, vU, vV, "vcc")
            st.v_min_u32(vT, 22, vL); st.v_lshl_add_u32(vT, vT, 7, vU); tload(vT, WS, 0)
        elif kind == "code":
            st.s_getpc_b64(s(100, 2))
            L = newlab("pc")
            st.label(L)
            st.raw(f"    s_sub_u32 s100, s100, {L}-{NAME}_kernel")
            st.raw("    s_subb_u32 s101, s101, 0")
            st.v_lshlrev_b32(vT, 7, vL); st.s_lshl_b32(sT0, sM, 13); st.v_add_u32(vT, sT0, vT)
            i = Ins("global_load_dword", [dum(), vT, s(100, 2)]); i.dst = set(); st.l.append(i)
            st.v_add_u32(vU, 32768, vT); st.v_min_u32(vU, f".Lslow-{NAME}_kernel", vU)
            i = Ins("global_load_dword", [dum(), vU, s(100, 2)]); i.dst = set(); st.l.append(i)
    gl = []
    for g in range(8):
        k0 = (16 * (g // 4) + (g % 4)) * 16
        for m_, srd in enumerate((WG, WU)):
            for i in range(3):
                def f(g=g, k0=k0, m_=m_, srd=srd, i=i):
                    if i == 0: st.s_add_u32(sLD, sGU, k0 * 2752)
                    st.buffer_load_dwordx4(v(GU + 24 * g + 12 * m_ + 4 * i, 4), vGG[i], srd, sLD, mods="offen" + POL(srd))
                gl.append(f)
    def gu_loads(cnt):
        for _ in range(min(cnt, len(gl))):
            f = gl.pop(0)
            if not OPT.get("noG"): f()
    def colsum(n, steps, first, lo, hi, dst=None):
        L = newlab("cs")
        st.s_sub_u32(sT0, sM, lo); st.s_cmp_ge_u32(sT0, hi - lo); st.mark("save", L); st.s_cbranch_scc1(L)
        nf = len(FRS)
        def rd(k):
            a, off = steps[k]; r = FRS[k % nf]
            st.ds_read_b64_tr_b16(v(r, 2), a, mods=f"offset:{off}"); st.ds_read_b64_tr_b16(v(r + 2, 2), a, mods=f"offset:{off+512}")
        for k in range(nf - 1): rd(k)
        for k in range(len(steps)):
            acc = v(CACC + 4 * (k & 1), 4)
            st.v_mfma_f32_16x16x32_bf16(acc, v(FRS[k % nf], 4), v(SEL, 4), "0" if first and k < 2 else acc)
            if k + nf - 1 < len(steps): rd(k + nf - 1)
        if dst is not None:
            for i in range(4): st.v_add_f32(v(CACC + i), v(CACC + i), v(CACC + 4 + i))
            st.ds_write_b128(dst, v(CACC, 4))
        st.mark("merge", L); st.label(L)
    def transpose(g):
        b = GU + 24 * g
        for m_ in range(2):
            for i in range(3): st.ds_write_b128(vGL[i], v(b + 12 * m_ + 4 * i, 4), mods=f"offset:{32*m_}")
        for t in range(6):
            for u in range(2): st.ds_read_b64_tr_b16(v(b + 4 * t + 2 * u, 2), vGT, mods=f"offset:{u*4*GSTR + t*64}")
    def tsum(g):
        b = GU + 24 * g
        for t in range(6):
            st.v_mfma_f32_16x16x32_bf16(v(CACC + 4 * t, 4), v(b + 4 * t, 4), v(SEL, 4), "0" if g == 0 else v(CACC + 4 * t, 4))
    tr_next = [0]
    def transposes(cnt):
        gs = list(range(tr_next[0], min(8, tr_next[0] + cnt))); tr_next[0] += len(gs)
        for i, g in enumerate(gs):
            transpose(g)
            if i > 0: tsum(gs[i - 1])
        tsum(gs[-1])
    def gu_partial():
        st.s_mul_i32(sT0, sM, 768); st.s_add_u32(sT0, sT0, L_VB); st.v_add_u32(vT, sT0, vCW)
        for i in range(6): st.ds_write_b128(vT, v(CACC + 4 * i, 4), mods=f"offset:{128*i}")
    def gu_reduce():
        st.v_min_u32(vCR, 6 * 128 - 16, vL16)
        st.v_add_u32(vT, L_VB, vCR)
        for w in range(4): st.ds_read_b128(v(CACC + 4 * w, 4), vT, mods=f"offset:{w*768}")
        for i in range(4):
            st.v_add_f32(v(CACC + i), v(CACC + i), v(CACC + 4 + i)); st.v_add_f32(v(CACC + 8 + i), v(CACC + 8 + i), v(CACC + 12 + i))
        for i in range(4): st.v_add_f32(v(CACC + i), v(CACC + i), v(CACC + 8 + i))
        for i in range(4):
            st.v_and_b32(v(CACC + 4 + i), 0xffff0000, v(CACC + i)); st.v_sub_f32(v(CACC + i), v(CACC + i), v(CACC + 4 + i))
            st.v_cvt_pk_bf16_f32(v(CACC + i), v(CACC + 4 + i), v(CACC + i))
        st.v_and_b32(vT, 0x380, vCR); st.v_and_b32(vU, 0x30, vCR); st.v_lshl_add_u32(vT, vU, 1, vT)
        st.v_bfe_u32(vU, vCR, 6, 1); st.v_lshl_add_u32(vT, vU, 4, vT); st.v_add_u32(vT, L_CS + 384, vT)
        st.ds_write_b128(vT, v(CACC, 4))
    def cs_kv(a):
        if a == 0:
            st.s_lshl_b32(sT0, sM, 6); st.v_xor_b32(vCR, sT0, vC0)
        else:
            st.s_lshl_b32(sT0, sM, 7); st.s_add_u32(sT0, sT0, L_CS); st.v_add_u32(vV, sT0, vCW)
        colsum(a, [(vCR, 32768 * a + 2048 * k) for k in range(16)], a == 0, 0, 2, dst=vV if a == 1 else None)
    def cs_q():
        st.v_add_u32(vT, 65536, vC0); st.v_add_u32(vU, 65536, vC1); st.v_add_u32(vV, L_CS + 256, vCW)
        colsum(2, [(a, 2048 * k) for k in range(16) for a in (vT, vU)], True, 2, 3, dst=vV)

    need = {"a0": [0], "a1": [1], "g": [3, 4], "30": [5, 6, 7, 8], "3c": [9], "3d": [10], "3f": [11], "4a": [12], "4b": [13], "4c": [14], "4d": [15], "4e": [16]}
    S0 = os_("s0", "start:c1;a0:c2,csk0;a1:csk1,wst,sigA,pub,G8,sigq,G16,wsig,X2,G12,X2,G12,X2,c3,c4,X2,Th0,Tx;g:part,c5,c6,Qk,S21;p2:Th1,S7;X2:c7,c8;")
    S0 += os_("s0b", "30:red,wst;3a:c9,Twd,nd;3b:c10,nd;3d:c11,c12;3f:c13,S4;3g:c14,S4;4a:S7;4b:c15,S7;4c:c16,S7;4d:S7;4e:c17;X4:c18")
    S1 = os_("s1", "a2:c2,sig,c3,c4;g:c5,c6;p2:Twf32;X2:c7,c8;")
    S1 += os_("s1b", "3a:c9,Twd32,nd;3b:c10,nd;3c:c11,r15,r16;3d:c12;3f:c13;3g:c14;4b:u15;4c:u16")
    def acts(txt):
        d = {}
        for part in txt.split(";"):
            k, _, l = part.partition(":"); d[k] = l.split(",")
        return d
    DR = [False]
    def run(lst, o):
        for a in lst:
            DR[0] = False
            if a == "q": issue(2)
            elif a == "pub": publish()
            elif a == "wld": st.s_lshl_b32(sT0, sJ, 10); st.buffer_load_dwordx4(v(WRAW, 4), vL16, WP, sT0, mods="offen")
            elif a == "wst":
                st.v_bfe_u32(vT, vL, 3, 2); st.v_mul_u32_u24(vT, 576, vT); st.v_lshrrev_b32(vU, 5, vL); st.v_lshl_add_u32(vT, vU, 7, vT)
                st.v_and_b32(vU, 112, vL16); st.v_add_u32(vT, vT, vU); st.v_add_u32(vT, L_KVB, vT)
                st.ds_write_b128(vT, v(WRAW, 4))
            elif a == "non": st.buffer_load_dword(vNON, "off", WS, 0, mods=f"offset:{EPOCH} sc1")
            elif a == "sig":
                st.l.append(Ins("s_nop", ["0"], tneed=f"c{o+2}")); signal(st, 1 + o // 17)
            elif a == "sigA": signal(st, 1, 16)
            elif a == "sigq":
                L = newlab("sq")
                st.l.append(Ins("s_nop", ["0"], tneed=f"c{o+2}")); signal(st, 1, 32)
                st.s_cmp_lg_u32(sM, 2); st.mark("save", L); st.s_cbranch_scc1(L)
                st.v_mov_b32(vU, 1); sigwait(st, 12, 48, regs=(13, 14, 15))
                st.mark("merge", L); st.label(L)
                cs_q(); signal(st, 1)
            elif a == "wsig": st.v_mov_b32(vU, 2); sigwait(st, 12, 32, regs=(13, 14, 15))
            elif a.startswith("csk"): cs_kv(int(a[3]))
            elif a == "csq": cs_q()
            elif a == "part": gu_partial()
            elif a == "red": gu_reduce()
            elif a[0] == "P": st.s_setprio(int(a[1:]))
            elif a == "nd": DR[0] = True
            elif a[:2] == "WB":
                L = newlab("wb")
                if a == "WB": st.s_or_b32(sT0, sJ, sM)
                else: st.s_mov_b32(sT0, sM)
                st.s_cmp_lg_u32(sT0, 0); st.mark("save", L); st.s_cbranch_scc1(L)
                st.raw("    buffer_wbl2 " + os_("wbm", "sc1").replace("+", " "))
                st.mark("merge", L); st.label(L)
            elif a == "wv": st.wait(vm=0)
            elif a[0] == "Q": squeue(a[1:])
            elif a[0] == "S":
                if LDSW(st): st.wait(lgkm=0)
                DR[0] = True; spf(int(a[1:]))
            elif a[0] == "c" and "-" in a:
                n_, PART[0], PART[1] = [int(x) for x in a[1:].split("-")]
                issue(o + n_); PART[:] = [0, 8]
            elif a[0] == "c": issue(o + int(a[1:]))
            elif a[0] == "r" and a[1:].isdigit(): stage(o + int(a[1:]))
            elif a[0] == "u" and a[1:].isdigit(): unstage(o + int(a[1:]))
            elif a[0] == "@": stamp(st, a, who="l", pair=o // 17)
            elif a[0] == "G": gu_loads(int(a[1:]))
            elif a[0] == "X": transposes(int(a[1:]))
            elif a[0] == "T": touch(a[1:])
            else: raise ValueError(a)
    prologue()
    for pair in range(1 if OPT['stop'] else 2):
        o = 17 * pair; A = acts(S0 if pair == 0 else S1)
        run(A.get("start", []), o)
        for b in (SEQ0 if pair == 0 else SEQA) + SEQC:
            tk = []
            for n in need.get(b, []):
                if o + n == 0 and oi("xd", 0): continue
                assert o + n in issued, (pair, b, n)
                tk.append(f"c{o+n}")
            stamp(st, "<" + b, who="l", pair=pair)
            if not DR[0] and LDSW(st): st.wait(lgkm=0)
            DR[0] = False
            st.l.append(Ins("s_barrier", [], tneed=tk))
            run(A.get(b, []), o)
    assert OPT['stop'] or (not gl and tr_next[0] == 8)
    st.s_branch(".Lend")

def main():
    st = Stream()
    entry(st)
    loader(st)
    st.label(".Lslow")
    compute_slow(st)
    st.extend(OOL)
    st.label(".Lend")
    st.s_endpgm()
    bodyt = finalize(st)
    ref = open(f"cdna_kernels/{NAME}.s.ref").read().split("\n")
    head = [l for l in ref if l.startswith(";") and "@launch" not in l]
    out = "\n".join(head) + f"\n; @launch grid=(256,1,1) block=(512,1,1) lds={LDS_BYTES}\n"
    out += '.amdgcn_target "amdgcn-amd-amdhsa--gfx950"\n' + khead(NAME + "_kernel") + bodyt + kd(NAME + "_kernel")
    path = sys.argv[1] if len(sys.argv) > 1 else f"cdna_kernels/{NAME}.s"
    open(path, "w").write(out)
    stamp_names["opt"] = " ".join(a for a in sys.argv[2:] if not a.startswith(("stamps", "only"))); json.dump(stamp_names, open(path + ".json", "w"))
    n = sum(1 for l in bodyt.split("\n") if l.startswith("    ") and not l.strip().startswith(";"))
    print("wrote", path, "instructions:", n, "barriers:", SEQ0, SEQA, SEQC)

main()
```

```python
import sys, os, math, struct, json
sys.path.insert(0, os.path.dirname(os.path.abspath(__file__)))
from asmlib import *
from layout5 import *

NAME = "interleave_layers__linear_kernel_hedgehog__geglu_ffn__prompt"
OPT = dict(stop=None, stamps=False)
for a in sys.argv[2:]:
    k, _, val = a.partition("=")
    OPT[k] = val if val != "" else True
def oi(k, d): return int(OPT.get(k, d))
def os_(k, d): return str(OPT.get(k, d))
E0 = os_("e0", "Qk,S21,QC,c0,non,wld")
SCL = "sc1"
def f2u(x): return "0x%08x" % struct.unpack("<I", struct.pack("<f", x))[0]
LOG2E = 1.4426950408889634
class G: SC = ""; TAG = "f"; SEQ = None; REC = True

WS, X_, OUT, WQ, WP, WO_, WG, WU, WD = [s(4 + 4 * i, 4) for i in range(9)]
sXC = s(40)
XO = oi("xo", 0)
XS = OUT if XO else WS
sC, sJ, sHF, sCG, sM, sNONCE, sCNT, sPAIR = [s(66 + i) for i in range(8)]
sW = s(3)
sXLD, sSTLD, sFA, sXST, sSTST, sFXST = [s(74 + i) for i in range(6)]
sOST, sFB, sFJ = s(80), s(81), s(82)
sHLD, sHST = s(84), s(85)
sKVST, sKVLD, sFKVST, sFKVLD = [s(88 + i) for i in range(4)]
sKZ, sGZ, sHALF, sH5, sF5, sHS = s(62), s(63), s(60, 2), s(49), s(83), s(41)
sT0, sT1, sT2, sT3 = [s(92 + i) for i in range(4)]
sL2E, sONE, sOUTO, sT6 = s(96), s(97), s(98), s(99)
sSTMP = s(100, 2)
sRING, sKH, sTP, sDUM, sLD = s(44), s(45), s(46), s(47), s(48)
vL, vL16, vA0, vFL = v(0), v(1), v(2), v(3)
RES = 4
vNON = v(12); vT = v(13); vU = v(14); vV = v(15)
vA1, vP0, vP1 = v(121), v(122), v(123)
aXW = v(126)
XF = 128
cWDb = [s(52 + i) for i in range(4)]; sDM = s(56)
aEW, aER, vEVv, vEVr, aCS3 = v(112), v(113), v(114), v(115), v(120)
aP4, vS4 = v(124), v(125)

class bc:
    def __init__(self, r, neg=False): self.r = int(r[1:]) if isinstance(r, str) else r; self.neg = neg
class ng:
    def __init__(self, r): self.r = r
def pk(st, op, d, *src):
    ops, lo, hi, n = [], [], [], []
    for x in src:
        if isinstance(x, bc): ops.append(v(x.r & ~1, 2)); lo.append(x.r & 1); hi.append(x.r & 1); n.append(int(x.neg))
        elif isinstance(x, ng): ops.append(v(x.r, 2)); lo.append(0); hi.append(1); n.append(1); assert x.r % 2 == 0
        else: ops.append(v(x, 2)); lo.append(0); hi.append(1); n.append(0); assert x % 2 == 0
    assert d % 2 == 0
    f = lambda l: "[" + ",".join(map(str, l)) + "]"
    mods = f"op_sel:{f(lo)} op_sel_hi:{f(hi)}" + (f" neg_lo:{f(n)} neg_hi:{f(n)}" if any(n) else "")
    st.op(f"v_pk_{op}_f32", v(d, 2), *ops, mods=mods)

lab_n = [0]
def newlab(p):
    lab_n[0] += 1
    return f".L{p}_{lab_n[0]}"

def nxt(st):
    st.s_add_u32(sNONCE, sNONCE, 1); st.v_add_u32(vNON, 1, vNON)

def poll(st, addr, soff, off=0, back=0):
    L = newlab("poll"); D = newlab("pdone")
    st.label(L)
    st.buffer_load_dword(vT, addr, WS, soff, mods=f"offen offset:{off} sc1")
    st.wait(vm=0)
    st.v_cmp_ne_u32("vcc", sNONCE, vT)
    st.s_cbranch_vccz(D)
    for _ in range(back): st.s_nop(15)
    st.s_sub_u32(sCNT, sCNT, 1)
    st.s_cbranch_scc0(L)
    st.s_mov_b32(sCNT, 0)
    st.label(D)

PRA, PRB = v(124), v(125)
def pload(st, r, addr, soff, off=0):
    i = Ins("buffer_load_dword", [r, addr, WS, soff], f"offen offset:{off} sc1"); i.dst = set(); st.l.append(i)
def poll2(st, addr, soff, off=0, gap=0, issued=0):
    if gap < 0: return poll(st, addr, soff, off, -1 - gap)
    L = newlab("poll"); D = newlab("pdone")
    if issued < 1: pload(st, PRA, addr, soff, off)
    if issued < 2:
        for _ in range(gap): st.s_nop(15)
        pload(st, PRB, addr, soff, off)
    st.label(L)
    for r in (PRA, PRB):
        st.wait(vm=1)
        st.v_cmp_ne_u32("vcc", sNONCE, r)
        st.s_cbranch_vccz(D)
        pload(st, r, addr, soff, off)
    st.s_sub_u32(sCNT, sCNT, 1)
    st.s_cbranch_scc0(L)
    st.s_mov_b32(sCNT, 0)
    st.wait(vm=1)
    st.label(D)

OOL = Stream()
def soft_check(st, reg, addr, soff, off=0):
    D = newlab("soft"); X = newlab("softx")
    st.v_cmp_ne_u32("vcc", sNONCE, reg)
    st.s_cbranch_vccnz(X)
    st.label(D)
    OOL.label(X); OOL.mark("reset")
    poll(OOL, addr, soff, off)
    OOL.s_branch(D)

stamp_names = {"c": [], "l": []}
def stamp(st, name, real=False, who="c", pair=None):
    if OPT.get("cap") and who == "c" and name == OPT["cap"].split("@")[0]:
        (st.s_memrealtime if OPT.get("capr") else st.s_memtime)(sSTMP); st.wait(lgkm=0)
        st.s_cmp_eq_u32(sPAIR, int(OPT["cap"].split("@")[1])); st.s_cselect_b32(s(43), s(100), s(43))
    if not OPT["stamps"]: return
    only = OPT.get("only")
    if only and who == "l" and not OPT.get("lst"): return
    if only and who == "c" and not isinstance(name, int) and name not in ("start", "end") and name not in only.split(","): return
    if isinstance(name, int): idx = name
    else:
        if name not in stamp_names[who]: stamp_names[who].append(name)
        idx = stamp_names[who].index(name)
    r = v(127) if who == "c" else v(63)
    if name == 62: st.v_mov_b32(r, s(42))
    elif name == "start" and who == "c": st.v_mov_b32(r, s(86))
    elif name == "karg": st.wait(lgkm=0); st.v_mov_b32(r, s(0))
    else:
        if real: st.s_memrealtime(sSTMP)
        else: st.s_memtime(sSTMP)
        st.wait(lgkm=0)
        st.v_mov_b32(r, s(100))
    if pair is None:
        st.s_lshl_b32(s(101), sPAIR, 8)
        st.s_add_u32(s(101), s(101), s(65))
    else:
        st.s_add_u32(s(101), s(65), 256 * pair)
    st.buffer_store_dword(r, "off", WS, s(101), mods=f"offset:{idx*4}")

DEF = {"c": [], "l": []}
def dcap(st, name, who="c", reg=None):
    if not (OPT["stamps"] and OPT.get("dcap")): return
    if (reg is None) != (OPT["dcap"] == "1"): return
    r = v(reg) if reg else v(16 + len(DEF[who])) if who == "c" else v(30 + len(DEF[who]))
    st.s_memtime(sSTMP); st.wait(lgkm=0); st.v_mov_b32(r, s(100)); DEF[who].append((name, r))
def dflush(st, who="c"):
    if DEF[who]: st.s_lshl_b32(s(101), sPAIR, 8); st.s_add_u32(s(101), s(101), s(65))
    for name, r in DEF[who]:
        if name not in stamp_names[who]: stamp_names[who].append(name)
        st.buffer_store_dword(r, "off", WS, s(101), mods=f"offset:{stamp_names[who].index(name)*4}")
    DEF[who].clear()

def ring_addr(st, mode):
    if mode in ("trq", "trn"):
        st.v_add_u32(vA0, sRING, vP0 if mode == "trq" else vP1); st.v_xor_b32(vA1, 64, vA0)
    elif mode == "b128":
        st.v_add_u32(vA0, sRING, vL16)
def ring_next(st, mode=None):
    st.s_add_u32(sRING, sRING, 0x8000); st.s_and_b32(sRING, sRING, 0x1ffff)
    ring_addr(st, mode)
def barrier(st, name, drain=False):
    if drain: st.wait(lgkm=0)
    st.s_barrier()
    if G.REC: G.SEQ.append(name)

def signal(st, val=None, off=0):
    t0, t1 = (v(124), v(125)) if val is None else (vT, vU)
    st.s_lshl_b32(sT3, sW, 2); st.s_add_u32(sT3, sT3, L_SIG + off); st.v_mov_b32(t0, sT3)
    if val is None: st.v_add_u32(t1, 1, sPAIR)
    else: st.v_mov_b32(t1, val)
    st.ds_write_b32(t0, t1)
def sigwait(st, mask=28, off=0, regs=(124, 125, 126), cmp="ne", extra=None):
    L = newlab("sig"); D = newlab("sigd")
    a, e, r = [v(x) for x in regs]
    st.v_and_b32(a, mask, vFL); st.v_add_u32(a, L_SIG + off, a)
    if extra:
        st.ds_read_b32(r, a)
        extra(st)
        st.wait(lgkm=0)
        st.op(f"v_cmp_{cmp}_u32", "vcc", e, r)
        st.s_cbranch_vccz(D)
    st.label(L)
    st.ds_read_b32(r, a)
    st.wait(lgkm=0)
    st.op(f"v_cmp_{cmp}_u32", "vcc", e, r)
    st.s_cbranch_vccz(D)
    st.s_sub_u32(sCNT, sCNT, 1)
    st.s_cbranch_scc0(L)
    st.s_mov_b32(sCNT, 0)
    st.label(D)

def lane_tr(st, d0, d1, kind, stride=128, tmp=vT, hstride=None):
    st.v_bfe_u32(d0, vL, 2, 2)
    if stride == 128: st.v_lshlrev_b32(d0, 7, d0)
    else: st.v_mul_u32_u24(d0, stride, d0)
    st.v_lshrrev_b32(tmp, 5, vL)
    st.v_lshl_add_u32(d0, tmp, int(math.log2(hstride or 8 * stride)), d0)
    sh = dict(qkv=(5, 4), nat=(4, 5))[kind]
    st.v_and_b32(tmp, 1, vL); st.v_lshl_add_u32(d0, tmp, sh[0], d0)
    st.v_bfe_u32(tmp, vL, 1, 1); st.v_lshl_add_u32(d0, tmp, 3, d0)
    st.v_bfe_u32(tmp, vL, 4, 1); st.v_lshl_add_u32(d0, tmp, sh[1], d0)
    if stride == 128:
        st.v_bfe_u32(tmp, vL, 3, 1); st.v_lshl_add_u32(d0, tmp, 6, d0)
        if d1: st.v_xor_b32(d1, 64, d0)

gemm_n = [0]
def gemm(st, items, mode, af, nslots, depth, ready, bars=None, fill=None, budget=16, hooks=None, loads=None, pre=10, every=2, pairw=0):
    n = len(items); loads = list(loads or []); ready = set(ready); bars = bars or {}
    nr = 0; gemm_n[0] += 1; tg = f"g{gemm_n[0]}_"
    def pump(upto):
        nonlocal nr
        while nr < n and nr <= upto:
            it = items[nr]; r = af + 4 * (nr % nslots)
            assert it["chunk"] in ready, (nr, it["chunk"])
            if nr > 0 and it["chunk"] != items[nr - 1]["chunk"]: ring_next(st, mode)
            if mode != "b128":
                a = vA1 if it["t"] else vA0
                st.ds_read_b64_tr_b16(v(r, 2), a, mods=f"offset:{it['off']}")
                st.ds_read_b64_tr_b16(v(r + 2, 2), a, mods=f"offset:{it['off']+512}", tset=tg + str(nr))
            else:
                st.ds_read_b128(v(r, 4), vA0, mods=f"offset:{it['off']}", tset=tg + str(nr))
            nr += 1
    for _ in range(min(pre, len(loads))): loads.pop(0)(st)
    pump(depth - 1)
    for i in range(n):
        it = items[i]
        if hooks and i in hooks: hooks[i](st)
        acc = v(it["acc"], 16)
        st.v_mfma_f32_32x32x16_bf16(acc, v(af + 4 * (i % nslots), 4), v(it["b"], 4), "0" if it["first"] else acc,
                                    tneed=tg + str(i + 1) if pairw and i % 2 == 0 and i + 1 < nr else None)
        if i in bars:
            barrier(st, bars[i][0]); ready |= set(bars[i][1])
        pump(i + depth)
        if loads and i % every == every - 1: loads.pop(0)(st)
        if fill is not None: fill.take(st, budget(i) if callable(budget) else budget)
    assert not loads

def entry(st):
    st.s_cmp_ge_u32(s(2), 256)
    st.s_cbranch_scc1(".Lend")
    if OPT["stamps"]: st.s_memrealtime(s(42, 2)); st.s_memtime(s(86, 2))
    if OPT.get("dbg"): st.s_memrealtime(s(42, 2)); st.s_memtime(s(86, 2))
    st.s_load_dwordx16(s(44, 16), s(0, 2), 0)
    st.s_load_dwordx4(s(60, 4), s(0, 2), 64)
    st.s_load_dwordx2(s(64, 2), s(0, 2), 80)
    st.v_lshrrev_b32(vT, 6, v(0))
    st.v_and_b32(vL, 63, v(0))
    st.v_readfirstlane_b32(sW, vT)
    st.v_lshlrev_b32(vL16, 4, vL)
    st.v_and_b32(vFL, 15, vL)
    st.v_lshlrev_b32(vFL, 2, vFL)
    st.s_and_b32(sT0, s(2), 7)
    st.s_lshr_b32(sT1, s(2), 3)
    st.s_lshr_b32(sC, sT1, 4)
    st.s_lshl_b32(sT0, sT0, 1)
    st.s_add_u32(sC, sC, sT0)
    st.s_and_b32(sJ, sT1, 15)
    st.s_lshr_b32(sHF, sJ, 3)
    st.s_and_b32(sCG, sJ, 7)
    st.s_and_b32(sM, sW, 3)
    st.s_mov_b32(sCNT, 1 << 18)
    st.s_mov_b32(sPAIR, 0)
    st.s_cmp_lt_u32(sJ, 6)
    st.s_cselect_b32(sT6, 1, 0)
    st.s_getreg_b32(sXC, "hwreg(HW_REG_XCC_ID, 0, 4)")
    for d in (WS, X_, OUT, WQ, WP, WO_, WG, WU, WD):
        st.s_mov_b32(s(int(d[2:d.index(":")]) + 3), 0x20000)
    for d, size in ((X_, 2048 * 1024), (WQ, 512 * 3072), (WS, WS_SIZE), (WP, 32 * 512), (WO_, 512 * 1024), (WG, 512 * 2752),
                    (WU, 512 * 2752), (WD, 1376 * 1024), (OUT, 2048 * 1024)):
        st.s_mov_b32(s(int(d[2:d.index(":")]) + 2), size)
    if oi("cfirst", 1) and oi("es", 0):
        st.s_cmp_eq_u32(sW, 7); st.s_cbranch_scc1(".Lld7")
        st.s_cmp_lt_u32(sW, 4); st.s_cbranch_scc1(".Lcmp0")
        early_round(st); st.s_branch(".Lld0")
        st.label(".Lcmp0"); st.mark("reset")
        compute(st)
        st.label(".Lld7"); st.mark("reset")
        early_round(st)
        st.label(".Lld0"); st.mark("reset")
    elif oi("cfirst", 1):
        st.s_cmp_ge_u32(sW, 4); st.s_cbranch_scc1(".Lld0")
        compute(st)
        st.label(".Lld0"); st.mark("reset")
    else:
        st.s_cmp_lt_u32(sW, 4); st.s_cbranch_scc1(".Lcomp")

def early_round(st, wait=True):
    a, b = s(90), s(91)
    st.s_and_b32(a, sC, 1); st.s_lshl_b32(a, a, 4); st.s_add_u32(a, a, sJ); st.s_lshl_b32(a, a, 3); st.s_add_u32(a, a, sW)
    st.s_lshr_b32(b, a, 4); st.s_mul_i32(b, b, 3072); st.s_and_b32(a, a, 15); st.s_lshl_b32(a, a, 7); st.s_add_u32(a, a, b)
    if wait: st.wait(lgkm=0)
    st.s_add_u32(a, s(46), a); st.s_addc_u32(b, s(47), 0)
    for i in range(oi("es", 0)):
        x = Ins("s_load_dwordx2", [s(88, 2), s(90, 2), hex(i * 16 * 3072 + 1024 + 60)]); x.dst = set(); st.l.append(x)

def rot(st, d, t):
    if not oi("rot", 0): st.s_mov_b32(d, 0); return
    st.s_and_b32(d, sJ, 1); st.s_and_b32(t, sC, 1); st.s_lshl_b32(t, t, 1); st.s_add_u32(d, d, t); st.s_lshl_b32(d, d, 1)
    st.s_lshr_b32(t, sJ, 1); st.s_add_u32(d, d, t)

def srds(st, lst):
    src = {X_: 44, WQ: 46, WP: 48, WO_: 50, WG: 54, WU: 56, WD: 58, OUT: 60, WS: 64}
    for d in lst:
        b = int(d[2:d.index(":")])
        st.s_mov_b32(s(b), s(src[d])); st.s_and_b32(s(b + 1), s(src[d] + 1), 0xffff)

def stamp_base(st):
    if OPT["stamps"]:
        st.s_lshl_b32(s(65), s(2), 3); st.s_add_u32(s(65), s(65), sW); st.s_lshl_b32(s(65), s(65), 9)
        st.s_add_u32(s(65), s(65), STAMP)

aK, aV, aQ, AF1, WPH, STT = 16, 32, 48, 64, 88, 96
NM, RS, VE, LR = v(112), v(113), v(114), v(115)
aCS, aA, aB, aR1, aR2 = v(116), v(117), v(118), v(119), v(120)

def kv_items():
    return [dict(chunk=k // 16, off=(k % 16) * 2048, t=t, acc=acc, b=XF + 4 * k, first=k == 0)
            for k in range(32) for t, acc in ((0, aK), (1, aV))]

CK, CV = aQ, STT
def k_addr(st):
    st.v_lshrrev_b32(vU, 5, vL); st.v_and_b32(vT, 1, vL); st.v_cmp_eq_u32("vcc", vT, vU)
    st.v_lshlrev_b32(aCS, 6, vU); st.v_add_u32(aCS, L_CS, aCS)
    st.v_lshlrev_b32(aR1, 7, vU); st.v_and_b32(vT, 12, vL); st.v_lshl_add_u32(aR1, vT, 3, aR1)
    st.v_and_b32(vT, 16, vL); st.v_add_u32(aR1, aR1, vT); st.v_and_b32(vT, 2, vL); st.v_lshl_add_u32(aR1, vT, 2, aR1)
    st.v_mov_b32(vT, 544); st.v_cndmask_b32(aR1, vT, aR1, "vcc"); st.v_add_u32(aR1, L_KVB, aR1)
    st.v_and_b32(vT, 31, vL); st.s_lshl_b32(sT0, sM, 5); st.v_add_u32(vT, sT0, vT)
    st.v_mul_u32_u24(aA, 144, vT); st.v_lshl_add_u32(aA, vU, 6, aA); st.v_add_u32(aA, L_PH, aA)
    st.v_mul_u32_u24(aB, 80, vT); st.v_lshl_add_u32(aB, vU, 5, aB); st.v_add_u32(aB, L_VB, aB)
def k_reads(st, which="wkv"):
    if "k" in which:
        for i in range(4): st.ds_read_b128(v(CK + 4 * i, 4), aCS, mods=f"offset:{16*i}")
    if "w" in which:
        for q in range(4): st.ds_read_b64_tr_b16(v(WPH + 2 * q, 2), aR1, mods=f"offset:{576*q}")
    if "v" in which:
        for i in range(4): st.ds_read_b128(v(CV + 4 * i, 4), aCS, mods=f"offset:{128+16*i}")

def fin_stats(st, S, Q, t0, t1, negmean, rstd, vare):
    if t0: st.v_mov_b32(t0, S)
    st.v_mov_b32(t1, Q)
    if t0: st.v_permlane32_swap_b32(S, t0)
    st.v_permlane32_swap_b32(Q, t1)
    if t0: st.v_add_f32(S, S, t0)
    st.v_add_f32(Q, Q, t1)
    st.v_mul_f32(negmean, f2u(-1.0 / 512), S)
    st.v_mul_f32(Q, f2u(1.0 / 512), Q)
    st.v_fma_f32(vare, "-" + negmean, negmean, Q)
    st.v_max_f32(vare, 0, vare)
    st.v_add_f32(vare, f2u(1e-5), vare)
    st.v_rsq_f32(rstd, vare)

def stats(st, stt, negmean, rstd, vare):
    S, Q = v(stt), v(stt + 1)
    for i in range(4): st.v_add_f32(v(stt + i), v(stt + i), v(stt + 4 + i))
    for i in range(4): st.v_add_f32(v(stt + 8 + i), v(stt + 8 + i), v(stt + 12 + i))
    for i in range(4): st.v_add_f32(v(stt + i), v(stt + i), v(stt + 8 + i))
    st.v_add_f32(S, S, v(stt + 2)); st.v_add_f32(Q, Q, v(stt + 3))
    fin_stats(st, S, Q, v(stt + 2), v(stt + 3), negmean, rstd, vare)

def p1a0(st):
    g0, g1, aW = v(118), v(119), v(120)
    aRd = [v(88 + i) for i in range(4)]
    QD, SA, SELA = 96, 112, 92
    XD = oi("xd", 0)
    st.v_lshrrev_b32(vT, 3, vL); st.v_and_b32(vV, 7, vL)
    if XD: st.v_lshrrev_b32(vU, 4, vL); st.v_xor_b32(vV, vV, vU)
    st.v_lshlrev_b32(g0, 10, vT); st.v_lshl_add_u32(g0, vV, 4, g0)
    st.s_lshl_b32(sT0, sC, 2); st.s_add_u32(sT0, sT0, sM); st.s_lshl_b32(sT0, sT0, 15)
    GA = [v(48 + g) for g in range(4)]
    st.v_lshlrev_b32(g1, 5, vFL); st.s_lshl_b32(sT1, sJ, 11); st.s_add_u32(sT1, sT1, sT0)
    for g in range(4):
        st.v_add_u32(GA[g], sT0, g0)
        if XD and g & 1: st.v_xor_b32(GA[g], 64, GA[g])
        if g < 3: st.s_add_u32(sT0, sT0, 8192)
    vKc, sA0, sKc, sK8 = v(52), s(41), s(83), s(98)
    AREA = [0, 16384, 32768, 49152, 65536, 32768, 49152, 65536]
    if XD:
        st.v_bfe_u32(vU, vL, 4, 1); st.v_lshlrev_b32(vU, 2, vU); st.v_and_b32(vV, 7, vL); st.v_xor_b32(vU, vU, vV)
        st.v_mul_u32_u24(vKc, 3072, vT); st.v_and_b32(vV, 3, vU); st.v_lshl_add_u32(vKc, vV, 4, vKc)
        st.v_lshrrev_b32(vV, 2, vU); st.v_lshl_add_u32(vKc, vV, 10, vKc); st.v_add_u32(vKc, 1024, vKc)
        st.s_lshl_b32(sA0, sM, 12); st.s_add_u32(sA0, sA0, 65536); st.s_lshl_b32(sK8, sM, 13)
        st.s_mul_i32(sKc, sM, 64 * 3072); st.s_lshl_b32(sT0, sJ, 6); st.s_add_u32(sKc, sKc, sT0)
    if oi("tk0", 0):
        st.v_lshrrev_b32(vT, 5, vL); st.v_lshlrev_b32(vT, 8, vT); st.v_bfe_u32(vU, vL, 4, 1); st.v_add_u32(vT, vT, vU)
        st.v_mul_u32_u24(v(124), 3072, vT); st.v_lshl_add_u32(v(124), vFL, 5, v(124))
        st.s_and_b32(sT2, sC, 1); st.s_lshl_b32(sT2, sT2, 4); st.s_add_u32(sT2, sT2, sJ); st.s_lshl_b32(sT2, sT2, 2); st.s_add_u32(sT2, sT2, sM)
        st.s_mul_i32(sT2, sT2, 2 * 3072); st.s_add_u32(sT2, sT2, 1024)
    sR, sQO = s(41), s(83)
    if not XD: rot(st, sR, sT0)
    def c0(st):
        srds(st, [WQ])
        for i in range(8):
            st.s_add_u32("m0", sK8, 1024 * i); st.s_add_u32(sT0, sKc, 8 * i * 3072)
            st.buffer_load_dwordx4(vKc, WQ, sT0, mods="offen lds", tset="c0c" if i == 7 else None)
    def xl(p, st):
        if not XD: st.s_add_u32(sQO, sR, p); st.s_and_b32(sQO, sQO, 7); st.s_lshl_b32(sQO, sQO, 7)
        if p == (-1 if XD else 0):
            st.wait(lgkm=0)
            srds(st, [X_])
            if OPT["stamps"]: st.s_memtime(s(0, 2))
            dcap(st, "dk")
            if OPT.get("lat"):
                srds(st, [WQ, WO_, WG, WD, WS, OUT])
                st.v_lshlrev_b32(v(40), 2, vL)
                for nm_, srd, off in (("x0", X_, 0), ("x1", X_, 4096), ("x2", X_, 65536), ("x3", X_, 1 << 20), ("wo", WO_, 0), ("wo2", WO_, 262144), ("wg", WG, 0), ("wd", WD, 0),
                                      ("ws", WS, XB), ("ws2", WS, XB + 4096), ("ws3", WS, HB + 2 * MB), ("out", OUT, 0)):
                    st.s_mov_b32(sT2, off); st.buffer_load_dword(v(41), v(40), srd, sT2, mods="offen"); st.wait(vm=0); dcap(st, nm_)
            if oi("tx0", 1):
                i = Ins("buffer_load_dword", [v(126), g1, X_, sT1], "offen"); i.dst = set(); st.l.append(i)
            if oi("tk0", 0):
                srds(st, [WQ])
                i = Ins("buffer_load_dword", [v(125), v(124), WQ, sT2], "offen"); i.dst = set(); st.l.append(i)
        if p < 0: return
        for g in range(4):
            if XD:
                st.s_add_u32("m0", sA0 if AREA[p] < 65536 else sKc, AREA[p] + 1024 * g - 128 * p)
                st.buffer_load_dwordx4(GA[g], X_, 0, mods=f"offen offset:{128*p} lds", tset=f"x{p}" if g == 3 else None,
                                       tneed=f"r{p-3}" if p >= 5 and g == 0 else None)
            else: st.buffer_load_dwordx4(v(XF + 16 * p + 4 * g, 4), GA[g], X_, sQO, mods="offen")
    n0 = oi("xn0", 2); n1 = oi("xn1", 4)
    if XD: n0 = oi("xn0", 1); xl(-1, st)
    for p in range(n0): xl(p, st)
    if XD: c0(st)
    srds(st, [WS, OUT])
    stamp_base(st)
    if XD: stamp(st, 62, True); stamp(st, "start"); stamp(st, "karg"); stamp(st, "xissued")
    st.buffer_load_dword(vNON, "off", WS, 0, mods=f"offset:{EPOCH} sc1")
    st.s_and_b32(sKH, sM, 1); st.s_lshr_b32(sTP, sM, 1); st.s_mov_b32(sRING, 0)
    st.v_and_b32(aA, 31, vL); st.v_lshlrev_b32(aA, 10, aA); st.v_lshrrev_b32(vT, 5, vL); st.v_lshl_add_u32(aA, vT, 4, aA)
    st.s_lshl_b32(sOUTO, sC, 17); st.s_lshl_b32(sT1, sHF, 16); st.s_add_u32(sOUTO, sOUTO, sT1)
    st.s_lshl_b32(sT1, sTP, 15); st.s_add_u32(sOUTO, sOUTO, sT1); st.s_lshl_b32(sT1, sCG, 7); st.s_add_u32(sOUTO, sOUTO, sT1)
    st.s_lshl_b32(sT1, sKH, 6); st.s_add_u32(sOUTO, sOUTO, sT1)
    st.s_mov_b32(sL2E, f2u(LOG2E)); st.s_mov_b32(sONE, 0x3f803f80)
    st.s_lshl_b32(sT0, sC, 2); st.s_add_u32(sT1, sT0, sM)
    st.s_lshl_b32(sXLD, sT1, 15)
    if not XO: st.s_add_u32(sXLD, sXLD, XB)
    st.s_lshl_b32(sSTLD, sT1, 12); st.s_add_u32(sSTLD, sSTLD, ST)
    st.s_lshl_b32(sFA, sT1, 10); st.s_add_u32(sFA, sFA, FL)
    st.s_lshl_b32(sT2, sJ, 2); st.s_add_u32(sFJ, sFA, sT2)
    st.s_mul_i32(sHST, sT1, HB_TB); st.s_add_u32(sHST, sHST, HB)
    st.s_lshl_b32(sT2, sJ, 11); st.s_add_u32(sOST, sHST, sT2)
    st.s_mov_b32(s(60), 0); st.s_mov_b32(s(61), -1)
    st.s_lshl_b32(sT2, sJ, 10); st.s_add_u32(sHST, sHST, sT2)
    st.s_lshl_b32(sDUM, sT1, 11); st.s_add_u32(sDUM, sDUM, DUMMY)
    st.s_lshl_b32(sT1, sHF, 1); st.s_add_u32(sT1, sT1, sT0); st.s_add_u32(sT1, sT1, sTP)
    st.s_lshl_b32(sT3, sCG, 1); st.s_add_u32(sT3, sT3, sKH)
    st.s_lshl_b32(sXST, sT1, 15); st.s_lshl_b32(sT2, sT3, 11); st.s_add_u32(sXST, sXST, sT2)
    if not XO: st.s_add_u32(sXST, sXST, XB)
    st.s_lshl_b32(sSTST, sT1, 12); st.s_lshl_b32(sT2, sCG, 9); st.s_add_u32(sSTST, sSTST, sT2)
    st.s_lshl_b32(sT2, sKH, 3); st.s_add_u32(sSTST, sSTST, sT2); st.s_add_u32(sSTST, sSTST, ST)
    st.s_lshl_b32(sFB, sT1, 10); st.s_add_u32(sFB, sFB, FL)
    st.s_lshl_b32(sT2, sT3, 2); st.s_add_u32(sFXST, sFB, sT2)
    st.s_lshl_b32(sT2, sKH, 10)
    st.s_mul_i32(sHLD, sT1, HB_TB); st.s_add_u32(sHLD, sHLD, sT2); st.s_add_u32(sHLD, sHLD, HB)
    st.s_mul_i32(sKVLD, sJ, KV_J); st.s_add_u32(sKVLD, sKVLD, KVP)
    st.s_mul_i32(sKVST, sC, KV_REC); st.s_add_u32(sKVST, sKVST, sKVLD)
    st.s_lshl_b32(sT1, sKH, 7); st.s_lshl_b32(sT2, sTP, 5); st.s_add_u32(sT1, sT1, sT2); st.s_add_u32(sKZ, sKVST, sT1); st.s_add_u32(sKZ, sKZ, 2048)
    st.s_lshl_b32(sT1, sKH, 10); st.s_lshl_b32(sT2, sTP, 6); st.s_add_u32(sT1, sT1, sT2); st.s_add_u32(sKVST, sKVST, sT1)
    st.s_lshl_b32(sT1, sM, 6); st.s_add_u32(sGZ, sKVLD, sT1); st.s_add_u32(sGZ, sGZ, 2048)
    st.s_lshl_b32(sT1, sM, 9); st.s_add_u32(sKVLD, sKVLD, sT1)
    st.s_lshl_b32(sFKVLD, sJ, 11); st.s_add_u32(sFKVLD, sFKVLD, FKV)
    st.s_lshl_b32(sT1, sC, oi("fks", 7)); st.s_lshl_b32(sT2, sM, 2); st.s_add_u32(sFKVST, sT1, sT2); st.s_add_u32(sFKVST, sFKVST, sFKVLD)
    for i in range(4): st.v_mov_b32(v(96 + i), 0)
    st.v_and_b32(vT, 3, vL); st.v_mul_u32_u24(vT, 576, vT); st.v_add_u32(vT, L_KVB + 544, vT)
    st.ds_write_b128(vT, v(96, 4))
    st.v_and_b32(vT, 112, vL16); st.v_add_u32(vT, L_SIG, vT)
    st.ds_write_b128(vT, v(96, 4))
    st.v_bfe_u32(vT, vL, 4, 1); st.v_and_b32(vU, 1, vL); st.v_cmp_eq_u32("vcc", vT, vU)
    st.v_mov_b32(vV, sONE)
    for i in range(4): st.v_cndmask_b32(v(SELA + i), 0, vV, "vcc")
    if XD: sT0_ = sA0
    else:
        sT0_ = sT0
        st.s_lshl_b32(sT0, sM, 12); st.s_add_u32(sT0, sT0, L_PH)
        st.v_and_b32(vT, 48, vL); st.v_xor_b32(vT, vT, vL16); st.v_add_u32(aW, sT0, vT); st.v_xor_b32(g1, 64, aW)
    st.v_and_b32(vT, 31, vL); st.v_lshrrev_b32(vU, 5, vL); st.v_bfe_u32(vV, vL, 1, 3); st.v_xor_b32(vU, vU, vV)
    st.v_lshlrev_b32(vT, 7, vT); st.v_lshl_add_u32(vT, vU, 4, vT); st.v_add_u32(aRd[0], sT0_, vT)
    for i in range(1, 4): st.v_xor_b32(aRd[i], 32 * i, aRd[0])
    aR4 = [v(56 + i) for i in range(4)]
    if XD:
        st.s_lshl_b32(sT0, sM, 9); st.s_add_u32(sKc, sA0, sT0); st.s_add_u32(sT0, sT0, 65536)
        for i in range(4): st.v_add_u32(aR4[i], sT0, aRd[i])
    lane_tr(st, vP0, None, "qkv"); ring_addr(st, "trq")
    def rnd(q, st):
        R = XF + 16 * q
        if XD:
            for i in range(4):
                st.ds_read_b128(v(R + 4 * i, 4), (aRd if AREA[q] < 65536 else aR4)[i], mods=f"offset:{AREA[q] % 65536}",
                                tneed=f"x{q}" if i == 0 else None, tset=f"r{q}" if i == 3 else None)
            return
        for g in range(4): st.ds_write_b128(g1 if g & 1 else aW, v(R + 4 * g, 4), mods=f"offset:{1024*g}")
        for i in range(4): st.ds_read_b128(v(R + 4 * i, 4), aRd[i])
    def smf(k, st):
        f = v(XF + 4 * k, 4)
        st.v_mfma_f32_32x32x16_bf16(v(QD, 16), f, f, "0" if k == 0 else v(QD, 16))
        st.v_mfma_f32_16x16x32_bf16(v(SA, 4), v(SELA, 4), f, "0" if k == 0 else v(SA, 4))
    def res(st):
        st.buffer_load_dwordx4(v(RES, 4), aA, X_, sOUTO, mods="offen")
        st.buffer_load_dwordx4(v(RES + 4, 4), aA, X_, sOUTO, mods="offen offset:32")
    hq = oi("hq", 8)
    if XD:
        hq = 1; n1 = oi("xn1", 5)
        for p in range(n0, n1): xl(p, st)
        stamp(st, "xiss2")
        barrier(st, "s0")
        for p in range(n1, 5): xl(p, st)
        rnd(0, st)
        for k in range(4): smf(k, st)
        rnd(1, st)
        acts = {}
        act = lambda i, f: acts.setdefault(i, []).append(f)
        rps = [int(x) for x in os_("rp", "2,8,14,28,36,44").split(",")]; xps = [int(x) for x in os_("xp", "5,11,17").split(",")]
        for b in range(2, 8): act(rps[b - 2], lambda st, b=b: rnd(b, st))
        for b in range(5, 8): act(xps[b - 5], lambda st, b=b: xl(b, st))
        for k in range(4, 32):
            last = 2 * (k - 4) + oi("sm0", 0); assert k < 8 or last > rps[k // 4 - 2]
            act(last, lambda st, k=k: smf(k, st))
        rp = 0
        stamp(st, "p1pre")
        st.wait(lgkm=0); st.l.append(Ins("s_barrier", [], tneed="c0c"))
        if G.REC: G.SEQ.append("a0")
    else:
      dcap(st, "d1")
      for p in range(n0, n1): xl(p, st)
      nl = n1; nb = oi("xnb", 8)
      dcap(st, "d2")
      rnd(0, st)
      dcap(st, "r0")
      for q in range(hq):
        if nl < nb: xl(nl, st); nl += 1
        if q < 7: rnd(q + 1, st)
        if q in (0, 2, 4, 6): dcap(st, f"r{q+1}")
        for k in range(4 * q, 4 * q + 4): smf(k, st)
      while nl < nb: xl(nl, st); nl += 1
      acts = {}
      act = lambda i, f: acts.setdefault(i, []).append(f)
      for n, p in enumerate(range(nl, 8)): act(oi("xat", 0) + oi("xgap", 8) * n, lambda st, p=p: xl(p, st))
      rl = oi("rl", 2); last = 0
      for b in range(hq, 8):
        rp = max(1, 8 * (b - 1) - rl)
        if b > hq: act(rp, lambda st, b=b: rnd(b, st))
        for u in range(4):
            last = max(last + 1, (rp + oi("rs", 5) if b > hq else 0) + 2 * u)
            act(last, lambda st, k=4 * b + u: smf(k, st))
      stamp(st, "p1pre")
      dcap(st, "dp")
      barrier(st, "a0", drain=True)
      dcap(st, "da")
      stamp(st, 62, True); stamp(st, "start"); stamp(st, "karg")
      dflush(st)
    stamp(st, "B(a0)")
    bars = {oi("a1", 20): ("a1", [1])}
    f = Stream()
    M = [s(50 + 2 * i, 2) for i in range(5)]
    for i, bit in enumerate((16, 8, 2, 1)):
        f.v_and_b32(vT, bit, vL); f.v_cmp_ne_u32(M[i], 0, vT)
    f.v_bfe_u32(vT, vL, 2, 1); f.v_lshrrev_b32(vU, 5, vL); f.v_cmp_eq_u32(M[4], vT, vU)
    fm = None
    if hq < 8: fm = f; f = Stream()
    f.v_cndmask_b32(v(SA), v(SA), v(SA + 1), M[0])
    for i in range(8): f.v_cndmask_b32(v(QD + i), v(QD + i), v(QD + 8 + i), M[0])
    for i in range(4): f.v_cndmask_b32(v(QD + i), v(QD + i), v(QD + 4 + i), M[1])
    for i in range(2): f.v_cndmask_b32(v(QD + i), v(QD + i), v(QD + 2 + i), M[2])
    f.v_cndmask_b32(v(QD), v(QD), v(QD + 1), M[3])
    f.v_cndmask_b32(v(QD), 0, v(QD), M[4])
    fin_stats(f, v(SA), v(QD), None, v(QD + 1), NM, RS, VE)
    f.v_mul_f32(LR, sL2E, RS)
    g = Stream(); k_addr(g)
    g2 = g if hq == 8 else Stream()
    lane_tr(g2, vP1, None, "nat")
    g2.s_lshl_b32(sT2, sKH, 6); g2.v_xor_b32(vP1, sT2, vP1); g2.s_lshl_b32(sT2, sKH, 11); g2.v_add_u32(vP1, sT2, vP1)
    fill = Filler()
    r0 = oi("res0", 24)
    if hq == 8:
        act(2, lambda st: fill.add(f)); act(r0, res); act(r0 + 1, lambda st: fill.add(g))
    else:
        act(oi("gat", 1), lambda st: (fill.add(g2), fill.add(fm))); act(max(r0, 25), res)
        act(max(rp + 1, 26), lambda st: fill.add(g)); act(last + 3, lambda st: fill.add(f))
    hooks = {i: (lambda st, l=l: [f(st) for f in l]) for i, l in acts.items()}
    gemm(st, kv_items(), "trq", AF1, 6, 5, ready=[0], bars=bars, hooks=hooks, fill=fill, budget=oi("bud10", 8), pairw=oi("pw1", 0))
    fill.flush(st)
    st.v_add_u32(vNON, 1, vNON)
    st.v_mov_b32(v(125), 1); sigwait(st, 12, 32, cmp="gt")
    k_reads(st)
    st.v_readfirstlane_b32(sNONCE, vNON)
    signal(st, 2, 32)
    st.s_add_u32(sH5, sHST, 16384 * 5); st.s_add_u32(sF5, sDUM, 1024)
    st.s_cmp_eq_u32(sT6, 1); st.s_cselect_b32(sH5, sH5, sDUM); st.s_cselect_b32(sF5, sFJ, sF5)
    stamp(st, "KVgemm")

def frag_loads(base, regs, stride, per, WS=WS):
    out = []
    for k, r in enumerate(regs):
        def f(st, k=k, r=r):
            if k % per == 0: st.s_add_u32(sLD, base, k * stride)
            st.buffer_load_dwordx4(v(r, 4), vL16, WS, sLD, mods=f"offen offset:{(k % per) * stride} {SCL}")
        out.append(f)
    return out

def x_addr(st):
    st.v_lshrrev_b32(vV, 5, vL); st.v_lshlrev_b32(vV, 11, vV); st.v_and_b32(vU, 31, vL); st.v_lshl_add_u32(vV, vU, 4, vV)
def p1a_pre(st):
    ring_next(st, "trq"); x_addr(st)
def p3_pre(st):
    st.v_and_b32(vU, 31, vL); st.v_lshlrev_b32(aCS3, 2, vU); st.v_add_u32(aCS3, L_CS + 3 * 128, aCS3)
    ring_next(st, "b128"); x_addr(st)
    st.s_add_u32(sT0, sRING, 0x10000); st.s_and_b32(sT0, sT0, 0x1ffff); st.v_add_u32(vA1, sT0, vL16)
    st.s_lshl_b32(sT0, sM, 12); st.s_add_u32(sT0, sT0, L_PH); st.v_add_u32(aXW, sT0, vL16)
def x_loads(st, stt, at=32):
    L = frag_loads(sXLD, [XF + 4 * k for k in range(32)], 1024, 4, XS)
    def stl(st):
        for i in range(4):
            st.buffer_load_dwordx4(v(stt + 4 * i, 4), vV, WS, sSTLD, mods=f"offen offset:{512*i} {SCL}")
    return L[:at] + [stl] + L[at:]

def featmap(st, acc, kb, wp, e1, e2, lr, mid=None, hk=None):
    n0 = len(st.l)
    featmap_(st, acc, kb, wp, e1, e2, lr, mid)
    for at in sorted(hk or {}, reverse=True):
        x = Stream(); hk[at](x); st.l[n0 + at:n0 + at] = x.l
def featmap_(st, acc, kb, wp, e1, e2, lr, mid=None):
    for i in range(8): st.v_cvt_pk_bf16_f32(v(kb + i), v(acc + 2 * i), v(acc + 2 * i + 1))
    st.v_mfma_f32_32x32x16_bf16(v(acc, 16), v(wp, 4), v(kb, 4), "0")
    st.v_mfma_f32_32x32x16_bf16(v(acc, 16), v(wp + 4, 4), v(kb + 4, 4), v(acc, 16))
    if mid: mid(st)
    mx, mn = v(kb), v(kb + 1)
    p = lambda i: v(acc + i)
    st.v_max3_f32(mx, p(0), p(1), p(2)); st.v_min3_f32(mn, p(0), p(1), p(2))
    for i in range(3, 15, 2):
        st.v_max3_f32(mx, mx, p(i), p(i + 1)); st.v_min3_f32(mn, mn, p(i), p(i + 1))
    st.v_max_f32(mx, mx, p(15)); st.v_min_f32(mn, mn, p(15))
    pk(st, "mul", kb, bc(lr), kb)
    for i in range(0, 16, 2):
        pk(st, "fma", e1 + i, acc + i, bc(lr), bc(kb, True)); pk(st, "fma", e2 + i, ng(acc + i), bc(lr), bc(kb + 1))
    for i in range(16):
        st.v_exp_f32(v(e1 + i), v(e1 + i)); st.v_exp_f32(v(e2 + i), v(e2 + i))
    s1, s2 = kb + 2, kb + 4
    pk(st, "add", s1, e1, e1 + 2); pk(st, "add", s2, e2, e2 + 2)
    for i in range(4, 16, 2):
        pk(st, "add", s1, s1, e1 + i); pk(st, "add", s2, s2, e2 + i)
    st.v_add_f32(v(s1), v(s1), v(s1 + 1)); st.v_add_f32(v(s2), v(s2), v(s2 + 1))
    st.v_rcp_f32(v(s1), v(s1)); st.v_rcp_f32(v(s2), v(s2))
    for i in range(0, 16, 2):
        pk(st, "mul", e1 + i, bc(s1), e1 + i); pk(st, "mul", e2 + i, bc(s2), e2 + i)
    for i in range(8):
        st.v_cvt_pk_bf16_f32(v(e1 + i), v(e1 + 2 * i), v(e1 + 2 * i + 1))
        st.v_cvt_pk_bf16_f32(v(e2 + i), v(e2 + 2 * i), v(e2 + 2 * i + 1))

def p1a(st):
    at = oi("st1", 22)
    L = x_loads(st, STT, at)
    stamp(st, "p1pre")
    poll2(st, vFL, sFA, 0, oi("gfx", -1))
    stamp(st, "FXpoll")
    pre = oi("pre1", 10)
    for f in L[:pre]: f(st)
    nxt(st)
    barrier(st, "a0")
    stamp(st, "B(a0)")
    fill = Filler()
    f = Stream(); stats(f, STT, NM, RS, VE); f.v_mul_f32(LR, sL2E, RS); k_reads(f, "v")
    g = Stream(); k_addr(g); k_reads(g, "wk")
    hooks = {2: lambda st: fill.add(g), oi("sth1", 2 * at + 2): lambda st: fill.add(f)}
    gemm(st, kv_items(), "trq", AF1, 6, 5, ready=[0], bars={oi("a1", 20): ("a1", [1]), oi("a2", 56): ("a2", [])}, loads=L[pre:], pre=0,
         hooks=hooks, fill=fill, budget=oi("bud1", 8), pairw=oi("pw1", 0))
    fill.flush(st)
    stamp(st, "KVgemm")

def p1b(st):
    AF = AF1
    for i in range(0, 16, 2): pk(st, "fma", aK + i, CK + i, bc(NM), aK + i)
    def vpart(st):
        for i in range(0, 16, 2): pk(st, "fma", aV + i, CV + i, bc(NM), aV + i)
        for i in range(0, 16, 2): pk(st, "mul", aV + i, bc(RS), aV + i)
        for i in range(8): st.v_cvt_pk_bf16_f32(v(aV + i), v(aV + 2 * i), v(aV + 2 * i + 1))
        st.ds_write_b128(aB, v(aV, 4)); st.ds_write_b128(aB, v(aV + 4, 4), mods="offset:16")
    featmap(st, aK, AF, WPH, STT, aQ, LR, mid=vpart)
    st.ds_write_b128(aA, v(STT, 4)); st.ds_write_b128(aA, v(STT + 4, 4), mods="offset:16")
    st.ds_write_b128(aA, v(aQ, 4), mods="offset:32"); st.ds_write_b128(aA, v(aQ + 4, 4), mods="offset:48")
    signal(st)
    TA, TB, ONE, AKV, AZ = 16, 32, 96, 100, 104
    def shadow(st):
        st.v_lshrrev_b32(vT, 4, vL); st.v_lshlrev_b32(vT, 3, vT); st.v_bfe_u32(vU, vL, 2, 2); st.v_add_u32(vT, vT, vU)
        st.v_and_b32(vU, 3, vL); st.v_lshlrev_b32(vU, 3, vU)
        st.s_lshl_b32(sT0, sM, 5); st.s_add_u32(sT0, sT0, L_PH)
        st.v_mul_u32_u24(aR1, 144, vT); st.v_add3_u32(aR1, aR1, vU, sT0)
        st.s_lshl_b32(sT0, sTP, 5); st.s_add_u32(sT0, sT0, L_VB)
        st.v_mul_u32_u24(aR2, 80, vT); st.v_add3_u32(aR2, aR2, vU, sT0)
        ring_next(st, "trq")
    sigwait(st, extra=shadow)
    stamp(st, "Kepi+B")
    for k in range(4):
        for q in range(2):
            st.ds_read_b64_tr_b16(v(TA + 4 * k + 2 * q, 2), aR1, mods=f"offset:{(32*k+4*q)*144}")
            st.ds_read_b64_tr_b16(v(TB + 4 * k + 2 * q, 2), aR2, mods=f"offset:{(32*k+4*q)*80}")
    for i in range(4): st.v_mov_b32(v(ONE + i), sONE)
    st.v_lshrrev_b32(vT, 5, vL); st.v_lshlrev_b32(vV, 9, vT); st.v_bfe_u32(vU, vL, 4, 1); st.v_lshl_add_u32(vV, vU, 3, vV)
    st.v_lshlrev_b32(vT, 6, vT); st.v_lshl_add_u32(vT, vU, 4, vT)
    st.v_bfe_u32(vU, vL, 2, 2); st.v_lshl_add_u32(vV, vU, 7, vV); st.v_and_b32(vU, 3, vL); st.v_lshl_add_u32(vV, vU, 4, vV)
    for k in range(4):
        st.v_mfma_f32_16x16x32_bf16(v(AKV, 4), v(TA + 4 * k, 4), v(TB + 4 * k, 4), "0" if k == 0 else v(AKV, 4))
        st.v_mfma_f32_16x16x32_bf16(v(AZ, 4), v(TA + 4 * k, 4), v(ONE, 4), "0" if k == 0 else v(AZ, 4))
    st.v_cvt_pk_bf16_f32(v(AKV), v(AKV), v(AKV + 1)); st.v_cvt_pk_bf16_f32(v(AKV + 1), v(AKV + 2), v(AKV + 3))
    st.buffer_store_dwordx2(v(AKV, 2), vV, WS, sKVST, mods="offen sc1")
    st.buffer_store_dwordx4(v(AZ, 4), vT, WS, sKZ, mods="offen sc1", tset="kv")
    stamp(st, "kv st")
    items = []
    for k in range(16):
        for t in range(2):
            items.append(dict(chunk=0, off=k * 2048, t=t, acc=aQ, b=XF + 4 * (k + 16 * t), first=(k, t) == (0, 0)))
    def kvflag(st):
        dcap(st, "kf0", reg=124)
        st.buffer_store_dword(vNON, "off", WS, sFKVST, mods="sc1", tneed="kv")
        dcap(st, "kf1", reg=125)
    CS = 16
    aPL, aGZ, aGK = aR1, aR2, aB
    f = Stream()
    for i in range(4): f.ds_read_b128(v(CS + 4 * i, 4), aCS, mods=f"offset:{256+16*i}")
    f.v_lshrrev_b32(aPL, 2, vL); f.v_lshlrev_b32(aPL, oi("fks", 7), aPL); f.v_and_b32(vU, 3, vL); f.v_lshl_add_u32(aPL, vU, 2, aPL)
    f.v_lshrrev_b32(aGZ, 4, vL); f.v_mul_u32_u24(aGZ, KV_REC, aGZ); f.v_add_u32(aGZ, aGZ, vFL)
    f.v_lshrrev_b32(aGK, 5, vL); f.v_mul_u32_u24(aGK, KV_REC - 512, aGK); f.v_add_u32(aGK, aGK, vL16)
    fill = Filler()
    gemm(st, items, "trq", AF, 6, 5, ready=[0], hooks={4: lambda st: fill.add(f), oi("kvflag", 24): kvflag}, fill=fill, budget=8, pairw=oi("pwq", 0))
    fill.flush(st)
    stamp(st, "Qgemm")
    for i in range(0, 16, 2): pk(st, "fma", aQ + i, CS + i, bc(NM), aQ + i)
    ep = [int(x) for x in os_("kvp", "").split(",") if x]
    featmap(st, aQ, AF, WPH, aK, aV, LR, hk={a: (lambda x, r=r: pload(x, r, aPL, sFKVLD)) for a, r in zip(ep, (PRA, PRB))})
    stamp(st, "Q done")
    if OPT.get("dcap") == "2": st.wait(vm=0); dcap(st, "kf2", reg=126)
    poll2(st, aPL, sFKVLD, 0, oi("gkv", -1), len(ep))
    dflush(st)
    stamp(st, "FKVpoll")
    Gr, Z, SG, GA = XF, XF + 64, XF + 32, XF + 48
    XT = v(XF + 72)
    nt = os_("gm", "sc1").replace("+", " ").replace("-", "")
    for cc in range(8):
        if cc: st.s_add_u32(sT0, sKVLD, 2 * cc * KV_REC)
        st.buffer_load_dwordx4(v(Gr + 4 * cc, 4), aGK, WS, sT0 if cc else sKVLD, mods="offen " + nt)
    for i in range(4):
        if i: st.s_add_u32(sT1, sGZ, 4 * i * KV_REC)
        st.buffer_load_dword(v(Z + i), aGZ, WS, sT1 if i else sGZ, mods="offen " + nt)
    if G.TAG == "f":
        st.s_lshl_b32(sT2, sC, 7); st.s_add_u32(sT2, sT2, XCCT)
        st.buffer_load_dword(XT, vFL, WS, sT2, mods="offen sc1")
        if oi("gsig", 0): signal(st, 1, 64)
    nxt(st)
    st.s_mul_i32(sT0, sM, 576); st.s_add_u32(sT0, sT0, L_KVB)
    st.v_and_b32(vT, 31, vL)
    st.v_and_b32(vU, 1, vL); st.v_lshlrev_b32(vU, 4, vU); st.v_mov_b32(vV, 0x3f80); st.v_lshlrev_b32(vU, vU, vV); st.v_lshrrev_b32(vV, 1, vT)
    for i in range(4):
        st.v_cmp_eq_u32("vcc", i, vV); st.v_cndmask_b32(v(SG + i), 0, vU, "vcc")
    st.v_lshlrev_b32(vT, 4, vT)
    st.v_lshrrev_b32(vU, 5, vL)
    st.v_lshl_add_u32(aA, vU, 3, vT); st.v_add_u32(aA, sT0, aA)
    st.v_lshrrev_b32(aB, 1, vFL); st.v_add_u32(aB, sT0, aB)
    st.v_bfe_u32(vV, vL, 2, 1); st.v_cmp_eq_u32("vcc", vV, vU)
    st.v_mov_b32(vV, 544); st.v_cndmask_b32(vT, vV, vT, "vcc"); st.v_add_u32(aR1, L_KVB, vT)
    st.v_lshlrev_b32(vU, 4, vU); st.v_add_u32(aR2, L_KVB + 512, vU)
    for cc in range(8):
        st.v_mfma_f32_32x32x16_bf16(v(GA, 16), v(SG, 4), v(Gr + 4 * cc, 4), "0" if cc == 0 else v(GA, 16))
    st.v_add_f32(v(Z), v(Z), v(Z + 1)); st.v_add_f32(v(Z + 2), v(Z + 2), v(Z + 3)); st.v_add_f32(v(Z), v(Z), v(Z + 2))
    st.v_mov_b32(v(Z + 1), v(Z)); st.v_permlane32_swap_b32(v(Z), v(Z + 1)); st.v_add_f32(v(Z), v(Z), v(Z + 1))
    st.v_mov_b32(v(Z + 1), v(Z)); st.v_permlane16_swap_b32(v(Z), v(Z + 1)); st.v_add_f32(v(Z), v(Z), v(Z + 1))
    st.v_cvt_pk_bf16_f32(v(Z), v(Z), v(Z))
    st.ds_write_b16(aB, v(Z), mods="offset:512")
    st.v_cvt_pk_bf16_f32(v(GA), v(GA), v(GA + 1)); st.v_cvt_pk_bf16_f32(v(GA + 1), v(GA + 2), v(GA + 3))
    st.ds_write_b64(aA, v(GA, 2))
    if G.TAG == "f":
        OK = newlab("xok"); L = newlab("xpoll"); D = newlab("xdec")
        st.s_cmp_lg_u32(sPAIR, 0)
        st.mark("save", OK)
        st.s_cbranch_scc1(OK)
        st.s_add_u32(sT0, sNONCE, 14); st.s_add_u32(sT1, sT0, sXC)
        st.v_cmp_ne_u32("vcc", sT1, XT)
        if not OPT.get("slow"): st.s_cbranch_vccz(OK)
        st.label(L)
        st.buffer_load_dword(XT, vFL, WS, sT2, mods="offen sc1")
        st.wait(vm=0)
        st.v_subrev_u32(vT, sT0, XT)
        st.v_cmp_le_u32("vcc", 16, vT)
        st.s_cbranch_vccz(D)
        st.s_sub_u32(sCNT, sCNT, 1)
        st.s_cbranch_scc0(L)
        st.s_mov_b32(sCNT, 0)
        st.label(D)
        st.v_cmp_ne_u32("vcc", sT1, XT)
        st.mark("save", "toslow")
        if OPT.get("slow"): st.s_branch(".Lg_s")
        else: st.s_cbranch_vccnz(".Lg_s")
        st.mark("merge", OK)
        st.label(OK)
    else:
        st.mark("merge", "toslow")
        st.label(".Lg_s")
    barrier(st, "g", drain=True)
    stamp(st, "gather+B")

def p1c(st):
    PHQ = [aK, aK + 4, aV, aV + 4]
    KA, ZA, NUM, DEN = XF, XF + 16, 48, v(64)
    for u in range(4): st.ds_read_b128(v(KA + 4 * u, 4), aR1, mods=f"offset:{576*u}")
    for u in range(4): st.ds_read_b128(v(ZA + 4 * u, 4), aR2, mods=f"offset:{576*u}")
    st.v_mov_b32(DEN, f2u(1e-6)); st.v_mov_b32(v(65), 0)
    st.v_lshrrev_b32(vU, 5, vL); st.v_lshl_add_u32(aA, vU, 9, vL16)
    for u in range(4):
        st.v_mfma_f32_32x32x16_bf16(v(NUM, 16), v(KA + 4 * u, 4), v(PHQ[u], 4), "0" if u == 0 else v(NUM, 16))
        for i in range(4):
            dd = DEN if i % 2 == 0 else v(65)
            st.v_dot2_f32_bf16(dd, v(PHQ[u] + i), v(ZA + 4 * u + i), dd)
    st.v_add_f32(DEN, DEN, v(65))
    st.v_rcp_f32(DEN, DEN)
    for i in range(0, 16, 2): pk(st, "mul", NUM + i, bc(DEN), NUM + i)
    for i in range(8): st.v_cvt_pk_bf16_f32(v(NUM + i), v(NUM + 2 * i), v(NUM + 2 * i + 1))
    st.buffer_store_dwordx4(v(NUM, 4), aA, WS, sOST, mods=f"offen {G.SC}")
    st.buffer_store_dwordx4(v(NUM + 4, 4), aA, WS, sOST, mods=f"offen offset:512 {G.SC}", tset="o")
    ring_next(st, "trn")
    res_init(st, 16)
    st.s_lshl_b32(sT0, sM, 12); st.s_add_u32(sT0, sT0, L_PH); st.v_add_u32(aXW, sT0, vL16)
    st.buffer_store_dword(vNON, "off", WS, sFJ, mods=f"offset:128 {G.SC}", tneed="o")
    for r in (sKVST, sKVLD, sKZ, sGZ): st.s_add_u32(r, r, KV_P)
    fp = 16 if oi("fkw", 1) else 256 * 128
    st.s_add_u32(sFKVST, sFKVST, fp); st.s_add_u32(sFKVLD, sFKVLD, fp)

def small_items(nsteps, breg, accs=(16, 32)):
    items = []
    for k in range(nsteps):
        for t in ((1, 0) if k == nsteps - 1 else (0, 1)):
            items.append(dict(chunk=k // 8, off=(k % 8) * 4096, t=t, acc=accs[t], b=breg(k), first=k == 0 and t == 1))
    return items
def res_init(st, a):
    for i in range(8):
        st.v_lshlrev_b32(v(a + 2 * i), 16, v(RES + i)); st.v_and_b32(v(a + 2 * i + 1), 0xffff0000, v(RES + i))

def xepi(st, last):
    aB_, T, P = (96, 48, 16) if last else (32, 16, 48)
    aX = aXW
    for i in range(4): st.ds_write_b128(aX, v(aB_ + 4 * i, 4), mods=f"offset:{1024*i}")
    st.v_xor_b32(aX, 4096, aX)
    barrier(st, "X4" if last else "X2", drain=True)
    for i in range(4): st.ds_read_b128(v(P + 4 * i, 4), aX, mods=f"offset:{1024*i}")
    st.v_and_b32(aX, 31, vL); st.v_lshlrev_b32(aX, 4, aX); st.v_lshrrev_b32(vT, 5, vL); st.v_lshl_add_u32(aX, vT, 2, aX)
    for i in range(4):
        for k in (4 * i, 4 * i + 2): pk(st, "add", T + k, T + k, P + k)
        for k in (2 * i, 2 * i + 1): st.v_cvt_pk_bf16_f32(v(RES + k), v(T + 2 * k), v(T + 2 * k + 1))
    LF = newlab("fin")
    if last:
        st.mark("save", LF)
        st.s_cmp_eq_u32(sPAIR, 1); st.s_cbranch_scc1(LF)
    st.buffer_store_dwordx4(v(RES, 4), vL16, XS, sXST, mods=f"offen {G.SC}")
    st.buffer_store_dwordx4(v(RES + 4, 4), vL16, XS, sXST, mods=f"offen offset:1024 {G.SC}")
    S, Q, S2, Q2 = v(T), v(T + 1), v(T + 2), v(T + 3)
    st.v_dot2_f32_bf16(S, v(RES), sONE, 0); st.v_dot2_f32_bf16(Q, v(RES), v(RES), 0)
    st.v_dot2_f32_bf16(S2, v(RES + 1), sONE, 0); st.v_dot2_f32_bf16(Q2, v(RES + 1), v(RES + 1), 0)
    for i in range(2, 8, 2):
        st.v_dot2_f32_bf16(S, v(RES + i), sONE, S); st.v_dot2_f32_bf16(Q, v(RES + i), v(RES + i), Q)
        st.v_dot2_f32_bf16(S2, v(RES + i + 1), sONE, S2); st.v_dot2_f32_bf16(Q2, v(RES + i + 1), v(RES + i + 1), Q2)
    pk(st, "add", T, T, T + 2)
    st.v_permlane32_swap_b32(S, Q); st.v_add_f32(S, S, Q)
    st.buffer_store_dword(S, aX, WS, sSTST, mods=f"offen {G.SC}", tset="x")
    (p1a_pre if last else p3_pre)(st)
    st.buffer_store_dword(vNON, "off", WS, sFXST, mods=G.SC, tneed="x")
    if last:
        st.s_mov_b32(sPAIR, 1)
        st.s_branch(f".Lpair_{G.TAG}")
        st.label(LF); st.mark("restore", LF)
        st.v_and_b32(aX, 31, vL); st.v_lshlrev_b32(aX, 10, aX); st.v_lshrrev_b32(vT, 5, vL); st.v_lshl_add_u32(aX, vT, 4, aX)
        om = os_("om", "").replace("+", " ")
        st.buffer_store_dwordx4(v(RES, 4), aX, OUT, sOUTO, mods="offen " + om)
        st.buffer_store_dwordx4(v(RES + 4, 4), aX, OUT, sOUTO, mods="offen offset:32 " + om)

def p2(st):
    stamp(st, "o stored")
    poll2(st, vFL, sFB, 128, oi("gfo", -1))
    stamp(st, "FOpoll")
    L = frag_loads(sHLD, [XF + 4 * k for k in range(16)], 2048, 2)
    gemm(st, small_items(16, lambda k: XF + 4 * k), "trn", 48, 6, 5, ready=[0, 1], loads=L, pre=oi("pre2", 10), hooks={1: nxt}, pairw=oi("pw2", 0),
         bars={oi("p2a", 12): ("p2", [])} if oi("p2a", 12) else None)
    stamp(st, "P2gemm")
    xepi(st, False)

def stream(st, items, af, nslots, depth, hooks, fill, budget, watch=None, slots=None, gw=1):
    n = len(items); nr = 0
    gemm_n[0] += 1; tg = f"g{gemm_n[0]}_"
    G_ = (lambda i: gw) if not callable(gw) else gw
    def pump(upto):
        nonlocal nr
        while nr < n and nr <= upto:
            items[nr]["rd"](st, af + 4 * (nr % nslots)); st.l[-1].dst = st.l[-1].dst | {("t", tg + str(nr))}; nr += 1
    pump(depth - 1)
    nextw = 0; err = 0.0
    for i in range(n):
        it = items[i]
        acc = v(it["acc"], 16)
        tn = None
        if i == nextw:
            nextw = i + G_(i); tn = tg + str(min(nextw, nr) - 1)
        st.v_mfma_f32_32x32x16_bf16(acc, v(af + 4 * (i % nslots), 4), v(it["b"], 4), "0" if it["first"] else acc, tneed=tn)
        if tn and it.get("b2"): st.l[-1].src = st.l[-1].src | regs_of(v(it["b2"], 4))
        n0 = len(st.l)
        for h in hooks.get(i, []): h(st)
        pump(i + depth)
        if slots:
            used = 1 + sum(cost(x) for x in st.l[n0:]) // 4 + (1 if i + 1 == nextw else 0)
            room = slots(i) - used + err
            n1 = len(st.l)
            if room >= 1: fill.take(st, 4 * int(room))
            took = sum(cost(x) for x in st.l[n1:]) // 4
            err = max(-1.0, min(1.0, room - took)) if fill.q else 0.0
        else: fill.take(st, budget(i))
        if watch: watch(i, st.l[n0:])
    assert not fill.q

C1 = -2.0 * math.sqrt(2.0 / math.pi) * LOG2E
def p34(st):
    A = [16, 32, 48, 96]; AF = 64; NMP = 88; DEPTH = oi("dep", 5)
    K1, K3, VE3, NM3 = v(92), v(93), v(94), v(95)
    at = oi("st3", 20)
    L = x_loads(st, STT, at)
    stamp(st, "x stored")
    poll2(st, vFL, sFA, 0, oi("gf2", -1))
    stamp(st, "FXpoll2")
    pre = oi("pre3", 10)
    for f in L[:pre]: f(st)
    nxt(st)
    barrier(st, "30")
    stamp(st, "B(30)")
    items = []; hooks = {}
    def hk(i, f): hooks.setdefault(i, []).append(f)
    def wide(a, off, step=0):
        def rd(st, r):
            if step:
                st.s_add_u32(sRING, sRING, 0x8000 * step); st.s_and_b32(sRING, sRING, 0x1ffff); st.v_add_u32(vA0, sRING, vL16)
            st.ds_read_b128(v(r, 4), a, mods=f"offset:{off}")
        return rd
    def mean(r):
        return dict(rd=lambda st, q: st.ds_read_b32(v(q), aCS3, mods=f"offset:{128*r}"), acc=A[r % 4], b=NMP, first=False)
    n2 = oi("n2", 10); k2 = 0; end = {}; use = {}
    def t2(k): return dict(rd=wide(vA1, k * 1024), acc=A[2], b=XF + 4 * k, first=k == 0)
    for k in range(32):
        use[k] = len(items)
        for t in range(2):
            items.append(dict(rd=wide(vA0, t * 16384 + (k % 16) * 1024, int(k == 16 and t == 0)), acc=A[t], b=XF + 4 * k, first=k == 0))
        if k == 15: g5 = len(items) - 1
        if (k + 1) * n2 // 32 > k2: items.append(t2(k2)); k2 += 1
    items += [mean(0), mean(1)]; end[0] = len(items) - 2; end[1] = len(items) - 1
    items += [t2(k) for k in range(k2, 32)] + [mean(2)]; end[2] = len(items) - 1
    for r in range(3, 6):
        items += [dict(rd=wide(vA0, k * 1024, (2 if r == 3 else 1) if k == 0 else 0), acc=A[r % 4], b=XF + 4 * k, first=k == 0) for k in range(32)]
        items.append(mean(r)); end[r] = len(items) - 1
    T5 = end[4] + 1; P4 = len(items)
    HI = [16 + 4 * i for i in range(4)] + [116, 88] + [XF + 4 * i for i in range(2)] + [32 + 4 * i for i in range(3)]
    breg = lambda k: XF + 4 * k if k < 32 else HI[k - 32]
    for n, it in enumerate(small_items(43, breg, (48, 96))):
        def rd(st, r, it=it, n=n):
            if n % 16 == 0: ring_next(st, "trn")
            a = vA1 if it["t"] else vA0
            st.ds_read_b64_tr_b16(v(r, 2), a, mods=f"offset:{it['off']}")
            st.ds_read_b64_tr_b16(v(r + 2, 2), a, mods=f"offset:{it['off']+512}")
        items.append(dict(rd=rd, acc=it["acc"], b=it["b"], first=it["first"]))
    for n, f in enumerate(L[pre:]): hk(2 * n + 1, f)
    fill = Filler()
    f = Stream()
    stats(f, STT, NM3, K1, VE3)
    f.v_and_b32(vU, 0xffff0000, NM3); f.v_sub_f32(NM3, NM3, vU); f.v_cndmask_b32(vU, vU, NM3, sHALF)
    f.v_cvt_pk_bf16_f32(v(NMP), vU, vU)
    f.v_mul_f32(K3, K1, K1); f.v_mul_f32(K1, f2u(C1), K1); f.v_mul_f32(K3, f2u(0.044715), K3); f.v_mul_f32(K3, K3, K1)
    z = Stream()
    for i in range(1, 4): z.v_mov_b32(v(NMP + i), 0)
    z.v_min_u32(aP4, 20, vFL)
    hk(2, lambda st: fill.add(z))
    hk(use[min(31, at + oi("sth3", 2))], lambda st: fill.add(f))
    hk(end[0] - 2, lambda st: fill.flush(st))
    TM = 112
    def epi(r):
        f = Stream(); a = A[r % 4]
        g = lambda i: v(a + i)
        u = lambda i: v(a + 8 + i)
        tm = lambda i: v(TM + i % 4)
        for t in range(16):
            ok = lambda d: 0 <= t - d < 8
            if ok(3): f.v_exp_f32(g(t - 3), g(t - 3))
            if ok(0): f.v_mul_f32(tm(t), g(t), g(t))
            if ok(1): f.v_fma_f32(tm(t - 1), tm(t - 1), K3, K1)
            if ok(0): f.v_mul_f32(u(t), g(t), u(t))
            if ok(5): f.v_rcp_f32(g(t - 5), g(t - 5))
            if ok(2): f.v_mul_f32(g(t - 2), tm(t - 2), g(t - 2))
            if ok(4): f.v_fma_f32(g(t - 4), g(t - 4), VE3, VE3)
            if ok(6): f.v_mul_f32(g(t - 6), g(t - 6), u(t - 6))
            if ok(7) and t % 2 == 0: f.v_cvt_pk_bf16_f32(u((t - 8) // 2), g(t - 8), g(t - 7))
            if t == 12 and r < 5: f.s_add_u32(sHS, sHST, 16384 * r)
        f.buffer_store_dwordx4(v(a + 8, 4), vL16, WS, sHS if r < 5 else sH5, mods=f"offen {G.SC} {os_('hm', '') if r < oi('hmr', 6) else ''}", tset=f"h{r}")
        return f
    def flag(r):
        f = Stream()
        f.buffer_store_dword(vNON, "off", WS, sFJ if r < 5 else sF5, mods=f"offset:{256+64*r} {G.SC}", tneed=f"h{r}")
        return f
    e = [epi(r) for r in range(6)]
    ri = Stream(); res_init(ri, 48)
    lag = oi("lag", 3)
    for r in range(6):
        parts = [e[r]] + ([ri] if r == 3 else [])
        hk(end[max(r, 1)] + lag, lambda st, parts=parts: [fill.add(p) for p in parts])
        hk(end[r], lambda st, r=r: stamp(st, f"t{r}"))
    hk(end[3], lambda st: fill.drain_until(st, e[0])); hk(end[4], lambda st: fill.drain_until(st, e[1]))
    hk(end[5] - 1, lambda st: fill.drain_until(st, ri))
    fd = [int(x) for x in os_("fd", "38,20,20,18,16,12").split(",")]; fpos = {}
    def watch(i, l):
        for r in range(6):
            if any(("t", f"h{r}") in x.dst for x in l): fpos[r] = i + fd[r]; hk(i + fd[r], lambda st, r=r: (stamp(st, f"f{r}a"), st.extend(flag(r)), stamp(st, f"f{r}b")))
    b3, b4 = oi("bud3", 16), oi("bud4", 16)
    def bud(i):
        b = oi("bud0", 12) if i < end[1] else b3 if i < P4 - DEPTH else b4
        if b % 4: b += 2 if i % 2 else -2
        return b - (4 if i in hooks and oi("budh", 1) else 0)
    o = oi("b4", 10)
    for i, name in ((g5 + oi("c1d", 4), "3a"), (end[1], "3b"), (end[2], "3c"), (end[3], "3d"), (end[4], "3f"), (end[5], "3g"),
                    (P4 + o, "4a"), (P4 + 16 + o, "4b"), (P4 + 32 + o, "4c"), (P4 + 48 + o, "4d"), (P4 + 64 + o, "4e")):
        hk(i, lambda st, name=name: (stamp(st, f"{name}a"), barrier(st, name), stamp(st, f"{name}b")))
    for i in (16, 32, 48, 64): hk(P4 + i, lambda st, i=i: stamp(st, f"q{i}"))
    HL = frag_loads(sHLD, [breg(k) for k in range(43)], 2048, 2)
    if OPT.get("noH"): HL = [lambda st: None] * 43
    ne = oi("early4", 12)
    ck = [T5 + oi("chkA", 10), P4 + oi("chk2", 0), P4 + oi("chk3", 16), P4 + oi("chk4", 42), P4 + oi("chk5", 65)]
    sl = oi("sl", 12); ev = float(OPT.get("ev4", 2)); pos = []
    for k in range(43):
        g = max(0, k // 8 - 1)
        p = ck[0] + 1 + k * float(OPT.get("ev3", 2)) if k < ne else pos[-1] + ev
        pos.append(max(p, ck[g]) if k < 40 else ck[4])
    pos = [int(p) for p in pos]
    hk(ck[0] - sl - 1, lambda st: (st.v_and_b32(vV, 31, vL), st.v_lshlrev_b32(vV, 2, vV)))
    for g, (addr, off) in enumerate(((vV, 256), (vFL, 384), (vFL, 448), (vFL, 512), (aP4, 576))):
        assert g == 0 or ck[g] - sl > ck[g - 1]
        if OPT.get("nochk"): continue
        hk(ck[g] - sl, lambda st, addr=addr, off=off: st.buffer_load_dword(vS4, addr, WS, sFB, mods=f"offen offset:{off} sc1"))
        hk(ck[g], lambda st, addr=addr, off=off, g=g: (stamp(st, f"k{g}a"), soft_check(st, vS4, addr, sFB, off), stamp(st, f"k{g}b")))
    def last(st):
        assert 5 in fpos and fpos[5] < ck[4]
        nxt(st)
    hk(ck[4], last)
    for k in range(43):
        assert pos[k] < P4 + 2 * k and (k >= 32 or pos[k] >= T5 + k), (k, pos[k])
        hk(pos[k], HL[k])
    hk(pos[32] - 1, lambda st: fill.drain_until(st, e[4]))
    sl_ = None
    if float(OPT.get("sl3", 7)):
        s0_, s3_, s4_ = [float(OPT.get(k, d)) for k, d in (("sl0", 7), ("sl3", 7), ("sl4", 8))]
        sl_ = lambda i: s0_ if i < end[1] else s3_ if i < P4 - DEPTH else s4_
    g0_, g3_, g4_ = oi("gw0", 2), oi("gw3", 2), oi("gw4", 2)
    def gw_(i):
        g = g0_ if i < end[1] else g3_ if i < P4 else g4_
        return min(g, P4 - i) if i < P4 else g
    if g4_ == 4 or oi("gv4", 0):
        for i in range(P4, len(items) - 2, 4): items[i]["b2"] = items[i + 2]["b"]
    stream(st, items, AF, 6, DEPTH, hooks, fill, bud, watch, sl_, gw_)
    if G.TAG == "f": print("T3", end[2] + 1, "T4", end[3] + 1, "T5", T5, "P4", P4, "flags", fpos, "checks", ck, "loads", pos, file=sys.stderr)
    stamp(st, "P4gemm")
    xepi(st, True)

def body(st, first):
    stop = OPT["stop"]
    T = G.TAG
    st.label(f".Lpair_{T}"); st.mark("reset")
    G.SEQ = SEQA; p1a(st)
    G.SEQ = SEQC
    if first:
        st.mark("merge", "from0"); st.label(".Lk_f")
    p1b(st); p1c(st)
    if stop == "p1": st.s_branch(".Lend"); return
    p2(st)
    if stop == "p2": st.s_branch(".Lend"); return
    p34(st)
    stamp(st, "end")
    stamp(st, 63, True)
    if OPT.get("dbg") == "2":
        if OPT.get("wb"):
            st.wait(vm=0); st.raw("    buffer_wbl2 sc0 sc1"); st.raw("    s_waitcnt vmcnt(0)")
        L = newlab("pad")
        st.s_mov_b32(s(87), 7000)
        if OPT.get("early"): st.s_cmp_lt_u32(s(2), int(OPT["early"])); st.s_cselect_b32(s(87), 6000, s(87))
        if OPT.get("cap"):
            if OPT.get("capr"): st.s_sub_u32(s(43), s(43), s(42))
            else: st.s_sub_u32(s(43), s(43), s(86)); st.s_lshr_b32(s(43), s(43), 2)
            st.s_min_u32(s(43), s(43), 40000); st.s_add_u32(s(87), s(87), s(43))
        st.label(L)
        st.s_memrealtime(s(100, 2)); st.wait(lgkm=0); st.s_sub_u32(s(100), s(100), s(42)); st.s_cmp_lt_u32(s(100), s(87)); st.s_cbranch_scc1(L)
    elif OPT.get("dbg"):
        st.s_load_dwordx2(s(44, 2), s(0, 2), 72); st.s_memrealtime(s(100, 2)); st.wait(lgkm=0)
        st.s_and_b32(s(45), s(45), 0xffff); st.s_mov_b32(s(46), 256); st.s_mov_b32(s(47), 0x20000)
        st.s_not_b32(s(42), s(42)); st.v_mov_b32(vT, s(42)); st.v_mov_b32(vU, s(100)); st.s_not_b32(s(100), s(100)); st.v_mov_b32(vV, s(100))
        st.raw("    buffer_atomic_umax v13, off, s[44:47], 0")
        st.raw("    buffer_atomic_umax v14, off, s[44:47], 0 offset:4")
        st.raw("    buffer_atomic_umax v15, off, s[44:47], 0 offset:8")
        st.s_not_b32(s(42), s(42)); st.v_mov_b32(vT, s(42))
        st.raw("    s_nop 4")
        st.raw("    buffer_atomic_umax v13, off, s[44:47], 0 offset:12")
    st.s_or_b32(sT0, s(2), sW); st.s_cmp_lg_u32(sT0, 0); st.s_cbranch_scc1(".Lend")
    st.v_add_u32(vNON, 22, vNON)
    st.buffer_store_dword(vNON, "off", WS, 0, mods=f"offset:{EPOCH} sc1")
    st.s_branch(".Lend")

SEQ0, SEQA, SEQC = [], [], []
def compute(st):
    G.SEQ = SEQ0
    p1a0(st)
    st.mark("save", "from0")
    st.s_branch(".Lk_f")
    G.SC, G.TAG = "", "f"
    body(st, True)

def compute_slow(st):
    G.SC, G.TAG, G.REC = "sc1", "s", False
    body(st, False)

sW8, sQK, sWOb, sGU, sWD5, sWI = s(74), s(75), s(76), s(77), s(78), s(79)
sWDb = [s(80 + i) for i in range(4)]
GU = 64
vKV, vQ, vW, vWR0, vWR1 = v(2), v(4), v(5), v(6), v(7)
vGG = [v(8), v(9), v(10)]; vGL = [v(16), v(17), v(18)]; vGT = v(19)
vC0, vC1, vCW, vCR = v(20), v(21), v(22), v(23)
SEL = 24; CACC = 28
FRS = [36, 40, 44, 48, 52]; WRAW = 56
vDUM = [v(11), v(60), v(61), v(62)]
GSTR = 448

def LDSW(st):
    for i in reversed(st.l):
        if i.name == "s_barrier" or (i.name == "s_waitcnt" and "lgkmcnt(0)" in i.ops[0]): return False
        if i.kind == "ds": return True
    return False

def POL(srd):
    k = {WQ: "pq", WO_: "po", WD: "pd", WG: "pg", WU: "pg"}.get(srd)
    x = os_(k, "") if k else ""
    return " " + x.replace("+", " ") if x else ""

def loader(st):
    st.v_lshrrev_b32(vT, 3, vL); st.v_bfe_u32(vU, vL, 4, 1); st.v_lshlrev_b32(vU, 2, vU); st.v_and_b32(vV, 7, vL); st.v_xor_b32(vU, vU, vV)
    st.v_mul_u32_u24(vKV, 3072, vT); st.v_and_b32(vV, 3, vU); st.v_lshl_add_u32(vKV, vV, 4, vKV)
    st.v_lshrrev_b32(vV, 2, vU); st.v_mul_u32_u24(vQ, 256 * 3072, vV); st.v_add_u32(vQ, vQ, vKV)
    st.v_lshl_add_u32(vKV, vV, 10, vKV); st.v_add_u32(vKV, 1024, vKV)
    st.v_lshlrev_b32(vW, 10, vT); st.v_lshl_add_u32(vW, vU, 4, vW)
    st.s_lshl_b32(sW8, sM, 13)
    st.s_mul_i32(sQK, sM, 64 * 3072); st.s_lshl_b32(sT0, sJ, 6); st.s_add_u32(sQK, sQK, sT0)
    sKVr = [s(84), s(85)]; sQJ = s(88); vQ0 = v(GU)
    rot(st, s(89), sT1); st.s_add_u32(s(89), s(89), sM)
    st.s_lshl_b32(sQJ, sJ, 6)
    st.s_and_b32(sT1, s(89), 7); st.s_mul_i32(sKVr[0], sT1, 64 * 3072); st.s_add_u32(sKVr[0], sKVr[0], sQJ)
    st.s_and_b32(sWI, sC, 1); st.s_lshl_b32(sWI, sWI, 4); st.s_add_u32(sWI, sWI, sJ); st.s_lshl_b32(sWI, sWI, 2); st.s_add_u32(sWI, sWI, sM)
    if not oi("fast0", 1) or E0:
        dcap(st, "l0", "l")
        st.wait(lgkm=0)
        srds(st, [WQ])
    chunks = []
    for pair in range(2):
        chunks += [("kv", 0), ("kv", 1), ("q", 0), ("wo", 0), ("wo", 1), ("gp", 0), ("gp", 1)] + [("gs", r) for r in range(2, 6)]
        chunks += [("wd", r) for r in range(6)]
    N = len(chunks)
    issued = set()
    SQ = []
    def spf(n):
        for _ in range(min(n, len(SQ))): SQ.pop(0)()
    def squeue(kind):
        if kind[0] == "k":
            i0 = 32 if kind == "k2" else int(kind[2:]) if kind[1:2] == "." else 0
            for i in range(i0, 64):
                def f(i=i):
                    if i == i0:
                        st.s_lshr_b32(s(90), sWI, 4); st.s_mul_i32(s(90), s(90), 3072); st.s_and_b32(s(91), sWI, 15); st.s_lshl_b32(s(91), s(91), 7)
                        st.s_add_u32(s(91), s(91), s(90)); st.s_add_u32(s(44), s(46), s(91)); st.s_addc_u32(s(45), s(47), 0)
                    if i == 32 or (i == i0 and i0 > 32): st.s_add_u32(s(44), s(44), 32 * 24576); st.s_addc_u32(s(45), s(45), 0)
                    x = Ins("s_load_dwordx2", [s(86, 2), s(44, 2), hex(i % 32 * 24576 + 1024 + 60)]); x.dst = set(); st.l.append(x)
                SQ.append(f)
            return
        if kind[0] == "h":
            n, o = dict(h0=(16, 0), h1=(27, 32768), h2=(16, 32768), h3=(11, 65536))[kind]
            for i in range(n):
                def f(i=i):
                    if i == 0:
                        st.s_lshl_b32(s(90), sC, 2); st.s_add_u32(s(90), s(90), sM); st.s_mul_i32(s(90), s(90), HB_TB)
                        st.s_mul_i32(s(91), sJ, n * 128); st.s_add_u32(s(90), s(90), s(91)); st.s_add_u32(s(90), s(90), HB + o)
                        st.s_add_u32(s(44), s(4), s(90)); st.s_addc_u32(s(45), s(5), 0)
                    x = Ins("s_load_dwordx2", [s(86, 2), s(44, 2), hex(i * 128 + 60)]); x.dst = set(); st.l.append(x)
                SQ.append(f)
            return
        if kind == "R":
            st.s_mul_i32(s(90), sJ, KV_J); st.s_mul_i32(s(91), sC, KV_REC); st.s_add_u32(s(90), s(90), s(91))
            st.s_mul_i32(s(91), sM, 5 * 128); st.s_min_u32(s(91), s(91), 13 * 128); st.s_add_u32(s(90), s(90), s(91)); st.s_add_u32(s(90), s(90), KVP + KV_P)
            st.s_add_u32(s(90), s(4), s(90)); st.s_addc_u32(s(91), s(5), 0)
            for i in range(5):
                def f(i=i):
                    x = Ins("s_load_dwordx2", [s(86, 2), s(90, 2), hex(i * 128 + 60)]); x.dst = set(); st.l.append(x)
                SQ.insert(0, f)
            return
        if kind[0] == "r":
            i0 = 5 if kind == "r1" else 0
            for i in range(i0, 10):
                def f(i=i):
                    if i == i0:
                        st.s_mul_i32(s(90), sJ, KV_J); st.s_mul_i32(s(91), sC, KV_REC); st.s_add_u32(s(90), s(90), s(91))
                        st.s_mul_i32(s(91), sM, 5 * 128); st.s_min_u32(s(91), s(91), 13 * 128); st.s_add_u32(s(90), s(90), s(91)); st.s_add_u32(s(90), s(90), KVP)
                        st.s_add_u32(s(44), s(4), s(90)); st.s_addc_u32(s(45), s(5), 0)
                        st.s_lshl_b32(s(90), sJ, 11); st.s_lshl_b32(s(91), sC, oi("fks", 7)); st.s_add_u32(s(90), s(90), s(91)); st.s_add_u32(s(90), s(90), FKV)
                        st.s_add_u32(s(90), s(4), s(90)); st.s_addc_u32(s(91), s(5), 0)
                    x = Ins("s_load_dwordx2", [s(86, 2), s(44, 2), hex(i % 5 * 128 + i // 5 * KV_P + 60)]); x.dst = set(); st.l.append(x)
                    if i % 5 == 4 and not oi("fkw", 1):
                        x = Ins("s_load_dword", [s(86), s(90, 2), hex(i // 5 * 256 * 128)]); x.dst = set(); st.l.append(x)
                SQ.append(f)
            return
        base, cnt = dict(w=(46, 96), o=(50, 32), d=(58, 86), g=(54, 86), u=(56, 86))[kind[0]]
        if len(kind) > 1: cnt = int(kind[1:])
        for i in range(cnt):
            def f(i=i):
                if i == 0:
                    st.s_lshl_b32(s(91), sWI, 7); st.s_add_u32(s(44), s(base), s(91)); st.s_addc_u32(s(45), s(base + 1), 0)
                if i == 48: st.s_add_u32(s(44), s(44), 48 * 16384); st.s_addc_u32(s(45), s(45), 0)
                x = Ins("s_load_dwordx2", [s(86, 2), s(44, 2), hex(i % 48 * 16384 + 60)]); x.dst = set(); st.l.append(x)
            SQ.append(f)
    PART = [0, 8]
    def dma(n, addr, srd, offs):
        slot = (n % 4) * 32768
        for i, (base, off, lds) in enumerate(offs):
            if not PART[0] <= i < PART[1]: continue
            st.s_add_u32("m0", lds[0], slot + lds[1])
            st.s_add_u32(sT0, base, off)
            st.buffer_load_dwordx4(addr, srd, sT0, mods="offen" + POL(srd) + " lds", tset=f"c{n}" if i == len(offs) - 1 else None)
    def issue(n):
        if n >= N: return
        assert n not in issued
        if PART[1] == 8: issued.add(n)
        kind, a = chunks[n]
        if kind == "kv" and n < 17:
            if a == 1: st.s_xor_b32(sT1, s(89), 4); st.s_and_b32(sT1, sT1, 7); st.s_mul_i32(sKVr[1], sT1, 64 * 3072); st.s_add_u32(sKVr[1], sKVr[1], sQJ)
            dma(n, vKV, WQ, [(sKVr[a], 8 * i * 3072, (sW8, 1024 * i)) for i in range(8)])
        elif kind == "q" and n < 17:
            st.v_add_u32(vT, sKVr[0], vQ); st.v_subrev_u32(vU, 512 * 3072, vT); st.v_min_u32(vQ0, vT, vU)
            dma(n, vQ0, WQ, [("0", 8 * i * 3072, (sW8, 1024 * i)) for i in range(8)])
        elif kind == "kv": dma(n, vKV, WQ, [(sQK, (256 * a + 8 * i) * 3072, (sW8, 1024 * i)) for i in range(8)])
        elif kind == "q": dma(n, vQ, WQ, [(sQK, 8 * i * 3072, (sW8, 1024 * i)) for i in range(8)])
        elif kind == "wo": dma(n, vW, WO_, [(sWOb, (256 * a + 8 * i) * 1024, (sW8, 1024 * i)) for i in range(8)])
        elif kind == "wd" and a < 5: dma(n, vW, WD, [(sWDb[i // 2], (16 * a + 8 * (i % 2)) * 1024, (sW8, 1024 * i)) for i in range(8)])
        elif kind == "wd":
            slot = (n % 4) * 32768
            for e in range(3):
                st.s_mul_i32(sT1, sM, 3); st.s_add_u32(sT1, sT1, e)
                st.s_lshr_b32(sT0, sT1, 1); st.s_mul_i32(sT0, sT0, 96 * 1024); st.s_and_b32(sT2, sT1, 1); st.s_lshl_b32(sT2, sT2, 13)
                st.s_add_u32(sT0, sT0, sT2); st.s_add_u32(sT0, sT0, sWD5)
                st.s_lshl_b32(sT1, sT1, 10); st.s_add_u32("m0", sT1, slot)
                st.buffer_load_dwordx4(vW, WD, sT0, mods="offen" + POL(WD) + " lds", tset=f"c{n}" if e == 2 else None)
        else:
            slot = n % 4; wr = vWR1 if slot >= 2 else vWR0; so = (slot & 1) * 32768
            for t in range(2):
                for k in range(4):
                    g, fr = (4 * a + k, t) if kind == "gp" else (4 * t + k, a)
                    st.ds_write_b128(wr, v(GU + 24 * g + 4 * fr, 4), mods=f"offset:{so + t*16384 + k*1024}", tset=f"c{n}" if (t, k) == (1, 3) else None)
    FREE = [GU + 24 * g + 4 * fr for h in (0, 2) for g in range(8) for fr in (h, h + 1)]
    def stg(n):
        a = chunks[n][1]
        if n < 17:
            return [48, 52, 56] if a == 5 else [16 + 4 * i for i in range(8)]
        o = {3: 0, 4: 8, 2: 16, 5: 24}[a]
        return FREE[o:o + 8]
    def stage(n):
        kind, a = chunks[n]; assert kind == "wd"
        r = stg(n)
        if a < 5:
            for i in range(8):
                st.s_add_u32(sT0, sWDb[i // 2], (16 * a + 8 * (i % 2)) * 1024)
                st.buffer_load_dwordx4(v(r[i], 4), vW, WD, sT0, mods="offen")
        else:
            for e in range(3):
                st.s_mul_i32(sT1, sM, 3); st.s_add_u32(sT1, sT1, e)
                st.s_lshr_b32(sT0, sT1, 1); st.s_mul_i32(sT0, sT0, 96 * 1024); st.s_and_b32(sT2, sT1, 1); st.s_lshl_b32(sT2, sT2, 13)
                st.s_add_u32(sT0, sT0, sT2); st.s_add_u32(sT0, sT0, sWD5)
                st.buffer_load_dwordx4(v(r[e], 4), vW, WD, sT0, mods="offen")
    def unstage(n):
        kind, a = chunks[n]; r = stg(n); slot = (n % 4) * 32768
        assert n not in issued; issued.add(n)
        if a < 5: st.s_add_u32(sT0, sW8, slot)
        else: st.s_mul_i32(sT0, sM, 3072); st.s_add_u32(sT0, sT0, slot)
        st.v_add_u32(vT, sT0, vL16)
        for i in range(8 if a < 5 else 3): st.ds_write_b128(vT, v(r[i], 4), mods=f"offset:{1024*i}")
    def prologue():
        F0 = oi("fast0", 1)
        if F0:
            if E0:
                srds(st, [WS, WP, WO_, WG, WU, WD, OUT])
                run(E0.split(","), 0)
        else:
            issue(0)
            if oi("kv1first", 1): issue(1)
        if not oi("cfirst", 1):
            st.mark("save", "ld1"); st.s_branch(".Lloader")
            st.label(".Lcomp"); st.mark("reset")
            compute(st)
            st.label(".Lloader"); st.mark("restore", "ld1")
        if not F0 and not oi("kv1first", 1): issue(1)
        def late():
            if not (F0 and E0):
                st.wait(lgkm=0)
                srds(st, [WQ, WS, WP, WO_, WG, WU, WD])
            stamp_base(st)
            if not OPT.get("dcap"): stamp(st, "start", who="l", pair=0)
        if not F0 or E0: late()
        st.s_lshl_b32(sWOb, sM, 16); st.s_lshl_b32(sT0, sCG, 7); st.s_add_u32(sWOb, sWOb, sT0)
        for e in range(4):
            st.s_lshl_b32(sT1, sM, 2); st.s_add_u32(sT1, sT1, e)
            st.s_mul_i32(sT2, sT1, 6); st.s_mul_i32(sT3, sT1, 5); st.s_add_u32(sT3, sT3, 6); st.s_min_u32(sT2, sT2, sT3)
            st.s_lshl_b32(sT2, sT2, 14); st.s_add_u32(sWDb[e], sT2, sT0)
        st.s_add_u32(sWD5, sT0, 80 * 1024)
        st.s_mul_i32(sT2, sJ, 6); st.s_mul_i32(sT3, sJ, 5); st.s_add_u32(sT3, sT3, 6); st.s_min_u32(sT2, sT2, sT3)
        st.s_lshl_b32(sT2, sT2, 5); st.s_mul_i32(sGU, sM, 64 * 2752); st.s_add_u32(sGU, sGU, sT2)
        st.s_cmp_eq_u32(sT6, 1); st.s_cselect_b32(sT1, 12, 10)
        st.s_lshl_b32(sT2, sM, 12); st.s_add_u32(sT2, sT2, 32768)
        for i in range(3):
            st.v_add_u32(vT, 64 * i, vL); st.v_mul_u32_u24(vU, 5462, vT); st.v_lshrrev_b32(vU, 16, vU)
            st.v_mul_u32_u24(vV, 12, vU); st.v_sub_u32(vT, vT, vV)
            st.v_mul_u32_u24(vGG[i], 2752, vU); st.v_lshl_add_u32(vGG[i], vT, 4, vGG[i])
            st.v_cmp_gt_u32("vcc", sT1, vT); st.v_mov_b32(vV, 0x80000000); st.v_cndmask_b32(vGG[i], vV, vGG[i], "vcc")
            st.v_and_b32(vV, 7, vU); st.v_mul_u32_u24(vGL[i], GSTR, vV); st.v_lshrrev_b32(vV, 3, vU); st.v_lshl_add_u32(vGL[i], vV, 14, vGL[i])
            st.v_lshrrev_b32(vV, 1, vT); st.v_lshl_add_u32(vGL[i], vV, 6, vGL[i])
            st.v_and_b32(vV, 1, vT); st.v_lshl_add_u32(vGL[i], vV, 4, vGL[i]); st.v_add_u32(vGL[i], sT2, vGL[i])
        lane_tr(st, vGT, None, "nat", stride=GSTR, hstride=16384); st.v_add_u32(vGT, sT2, vGT)
        lane_tr(st, vC0, vC1, "qkv")
        st.s_lshl_b32(sT0, sM, 12); st.v_add_u32(vWR0, sT0, vL16); st.v_add_u32(vWR1, 65536, vWR0)
        st.v_bfe_u32(vT, vL, 4, 1); st.v_and_b32(vU, 1, vL); st.v_cmp_eq_u32("vcc", vT, vU)
        st.v_mov_b32(vV, 0x3f803f80)
        for i in range(4): st.v_cndmask_b32(v(SEL + i), 0, vV, "vcc")
        st.v_lshlrev_b32(vCW, 6, vT); st.v_lshl_add_u32(vCW, vU, 5, vCW); st.v_lshrrev_b32(vT, 5, vL); st.v_lshl_add_u32(vCW, vT, 4, vCW)
        if F0 and not E0: late()
    def publish():
        L = newlab("pub")
        st.v_add_u32(vNON, sXC, vNON); st.v_add_u32(vNON, 16, vNON)
        st.s_lshl_b32(sT0, sC, 7); st.s_lshl_b32(sT1, sJ, 2); st.s_add_u32(sT0, sT0, sT1); st.s_add_u32(sT0, sT0, XCCT)
        st.s_cmp_lg_u32(sM, 0); st.mark("save", L); st.s_cbranch_scc1(L)
        st.buffer_store_dword(vNON, "off", WS, sT0, mods="sc1")
        st.mark("merge", L); st.label(L)
    dn = [0]
    def dum():
        dn[0] += 1
        return vDUM[dn[0] % 4]
    def tload(addr, srd, soff):
        i = Ins("buffer_load_dword", [dum(), addr, srd, str(soff)], "offen" + POL(srd)); i.dst = set(); st.l.append(i)
    def touch(kind):
        if kind == "wd":
            st.s_mul_i32(sT0, sWI, 86 * 128); st.v_lshlrev_b32(vT, 7, vL); tload(vT, WD, sT0)
            st.v_min_u32(vU, 21, vL); st.v_lshlrev_b32(vU, 7, vU); st.s_add_u32(sT0, sT0, 8192); tload(vU, WD, sT0)
        elif kind[:2] == "wf":
            n = int(kind[2:]); assert n <= 64
            st.s_mul_i32(sT0, sWI, n * 128); st.v_min_u32(vT, n - 1, vL); st.v_lshlrev_b32(vT, 7, vT); tload(vT, WD, sT0)
        elif kind[:2] == "wd":
            n = int(kind[2:]); c = 86 - n; assert c <= 64
            st.s_mul_i32(sT0, sWI, c * 128); st.s_add_u32(sT0, sT0, n * 16384); st.v_min_u32(vT, c - 1, vL); st.v_lshlrev_b32(vT, 7, vT); tload(vT, WD, sT0)
        elif kind == "out":
            st.s_lshl_b32(sT0, sC, 4); st.s_add_u32(sT0, sT0, sJ); st.s_lshl_b32(sT0, sT0, 2); st.s_add_u32(sT0, sT0, sM); st.s_lshl_b32(sT0, sT0, 11)
            st.v_lshlrev_b32(vT, 5, vFL); tload(vT, OUT, sT0)
        elif kind in ("g", "u"):
            D = WG if kind == "g" else WU
            st.s_mul_i32(sT0, sWI, 86 * 128); st.v_lshlrev_b32(vT, 7, vL); tload(vT, D, sT0)
            st.v_min_u32(vU, 21, vL); st.v_lshlrev_b32(vU, 7, vU); st.s_add_u32(sT0, sT0, 8192); tload(vU, D, sT0)
        elif kind in ("ga", "gb"):
            st.s_mul_i32(sT0, sWI, 43 * 128); st.v_min_u32(vT, 42, vL); st.v_lshlrev_b32(vT, 7, vT)
            if kind == "gb": st.s_add_u32(sT0, sT0, 256 * 2752)
            tload(vT, WG, sT0); tload(vT, WU, sT0)
        elif kind in ("kv0", "kv1"):
            st.v_bfe_u32(vT, vL, 4, 1); st.v_mul_u32_u24(vT, 3072, vT); st.v_lshl_add_u32(vT, vFL, 5, vT)
            st.s_mul_i32(sT0, sWI, 2 * 3072); st.s_add_u32(sT0, sT0, 1024 + 256 * 3072 * int(kind[2])); tload(vT, WQ, sT0)
        elif kind == "kv":
            st.v_lshrrev_b32(vT, 4, vL); st.v_mul_u32_u24(vT, 3072, vT); st.v_lshl_add_u32(vT, vFL, 5, vT)
            st.s_mul_i32(sT0, sWI, 4 * 3072); st.s_add_u32(sT0, sT0, 1024); tload(vT, WQ, sT0)
        elif kind == "q":
            st.v_bfe_u32(vT, vL, 3, 2); st.v_mul_u32_u24(vT, 3072, vT); st.v_and_b32(vU, 7, vL); st.v_lshl_add_u32(vT, vU, 7, vT)
            st.s_mul_i32(sT0, sWI, 4 * 3072); tload(vT, WQ, sT0)
        elif kind == "wo":
            st.v_and_b32(vT, 31, vL); st.v_lshlrev_b32(vT, 7, vT); st.s_lshl_b32(sT0, sWI, 12); tload(vT, WO_, sT0)
        elif kind == "h":
            st.s_lshl_b32(sT0, sC, 4); st.s_add_u32(sT0, sT0, sJ); st.s_lshl_b32(sT0, sT0, 2); st.s_add_u32(sT0, sT0, sM)
            st.s_mul_i32(sT0, sT0, 43 * 128); st.s_add_u32(sT0, sT0, HB)
            st.v_min_u32(vT, 42, vL); st.v_lshlrev_b32(vT, 7, vT); tload(vT, WS, sT0)
        elif kind in ("h0", "h1", "h2", "h3"):
            n, o = dict(h0=(16, 0), h1=(27, 32768), h2=(16, 32768), h3=(11, 65536))[kind]
            st.s_lshl_b32(sT0, sC, 2); st.s_add_u32(sT0, sT0, sM); st.s_mul_i32(sT0, sT0, HB_TB)
            st.s_mul_i32(sT1, sJ, n * 128); st.s_add_u32(sT0, sT0, sT1); st.s_add_u32(sT0, sT0, HB + o)
            st.v_min_u32(vT, n - 1, vL); st.v_lshlrev_b32(vT, 7, vT); tload(vT, WS, sT0)
        elif kind == "hs":
            st.s_lshl_b32(sT0, sC, 2); st.s_mul_i32(sT0, sT0, HB_TB); st.s_add_u32(sT0, sT0, HB)
            st.s_lshl_b32(sT1, sJ, 2); st.s_add_u32(sT1, sT1, sM); st.s_lshl_b32(sT1, sT1, 1)
            st.v_and_b32(vT, 1, vL); st.v_add_u32(vT, sT1, vT); st.v_min_u32(vT, 4 * HB_TB // 4096 - 1, vT); st.v_lshlrev_b32(vT, 12, vT); tload(vT, WS, sT0)
        elif kind == "x" and XO:
            st.s_lshl_b32(sT0, sC, 4); st.s_add_u32(sT0, sT0, sJ); st.s_lshl_b32(sT0, sT0, 2); st.s_add_u32(sT0, sT0, sM)
            st.s_lshl_b32(sT1, sT0, 11); st.v_lshlrev_b32(vT, 5, vFL); tload(vT, OUT, sT1)
            st.s_lshl_b32(sT2, sT0, 8); st.s_add_u32(sT2, sT2, ST)
            st.s_lshl_b32(sT3, sC, 2); st.s_add_u32(sT3, sT3, sM); st.s_lshl_b32(sT3, sT3, 10); st.s_add_u32(sT3, sT3, FL - 2 * 128)
            st.v_mov_b32(vU, sT2); st.v_mov_b32(vV, sT3); st.v_cmp_le_u32("vcc", 2, vL); st.v_cndmask_b32(vU, vU, vV, "vcc")
            st.v_min_u32(vT, 6, vL); st.v_lshl_add_u32(vT, vT, 7, vU); tload(vT, WS, 0)
        elif kind == "x":
            st.s_lshl_b32(sT0, sC, 4); st.s_add_u32(sT0, sT0, sJ); st.s_lshl_b32(sT0, sT0, 2); st.s_add_u32(sT0, sT0, sM)
            st.s_lshl_b32(sT1, sT0, 11); st.s_add_u32(sT1, sT1, XB)
            st.s_lshl_b32(sT2, sT0, 8); st.s_add_u32(sT2, sT2, ST - 16 * 128)
            st.s_lshl_b32(sT3, sC, 2); st.s_add_u32(sT3, sT3, sM); st.s_lshl_b32(sT3, sT3, 10); st.s_add_u32(sT3, sT3, FL - 18 * 128)
            st.v_mov_b32(vU, sT1); st.v_mov_b32(vV, sT2); st.v_cmp_le_u32("vcc", 16, vL); st.v_cndmask_b32(vU, vU, vV, "vcc")
            st.v_mov_b32(vV, sT3); st.v_cmp_le_u32("vcc", 18, vL); st.v_cndmask_b32(vU, vU, vV, "vcc")
            st.v_min_u32(vT, 22, vL); st.v_lshl_add_u32(vT, vT, 7, vU); tload(vT, WS, 0)
        elif kind == "r1":
            st.s_mul_i32(sT0, sJ, KV_J); st.s_mul_i32(sT1, sC, KV_REC); st.s_add_u32(sT0, sT0, sT1)
            st.s_mul_i32(sT1, sM, 640); st.s_min_u32(sT1, sT1, 13 * 128); st.s_add_u32(sT0, sT0, sT1); st.s_add_u32(sT0, sT0, KVP + KV_P)
            st.v_min_u32(vT, 4, vL); st.v_lshlrev_b32(vT, 7, vT); tload(vT, WS, sT0)
        elif kind == "f":
            st.s_lshl_b32(sT3, sC, 2); st.s_add_u32(sT3, sT3, sM); st.s_lshl_b32(sT3, sT3, 10); st.s_add_u32(sT3, sT3, FL)
            st.v_min_u32(vT, 4, vL); st.v_lshlrev_b32(vT, 7, vT); tload(vT, WS, sT3)
        elif kind == "cs":
            st.s_getpc_b64(s(100, 2))
            L = newlab("pc")
            st.label(L)
            st.raw(f"    s_sub_u32 s100, s100, {L}-{NAME}_kernel")
            st.raw("    s_subb_u32 s101, s101, 0")
            st.v_and_b32(vT, 3, vL); st.v_lshlrev_b32(vT, 14, vT); st.s_lshl_b32(sT0, sWI, 7); st.v_add_u32(vT, sT0, vT)
            st.v_min_u32(vT, f".Lslow-{NAME}_kernel", vT)
            i = Ins("global_load_dword", [dum(), vT, s(100, 2)]); i.dst = set(); st.l.append(i)
        elif kind == "code":
            st.s_getpc_b64(s(100, 2))
            L = newlab("pc")
            st.label(L)
            st.raw(f"    s_sub_u32 s100, s100, {L}-{NAME}_kernel")
            st.raw("    s_subb_u32 s101, s101, 0")
            st.v_lshlrev_b32(vT, 7, vL); st.s_lshl_b32(sT0, sM, 13); st.v_add_u32(vT, sT0, vT)
            i = Ins("global_load_dword", [dum(), vT, s(100, 2)]); i.dst = set(); st.l.append(i)
            st.v_add_u32(vU, 32768, vT); st.v_min_u32(vU, f".Lslow-{NAME}_kernel", vU)
            i = Ins("global_load_dword", [dum(), vU, s(100, 2)]); i.dst = set(); st.l.append(i)
    def claim(kind):
        sm = os_("sm", "")
        def sel(lo, r):
            st.v_mov_b32(vV, r); st.v_cmp_le_u32("vcc", lo, vL); st.v_cndmask_b32(vU, vU, vV, "vcc")
        if kind in ("ox", "x"):
            st.s_lshl_b32(sT0, sC, 2); st.s_add_u32(sT1, sT0, sM); st.s_mul_i32(sT1, sT1, HB_TB); st.s_lshl_b32(sT2, sJ, 11)
            st.s_add_u32(sT1, sT1, sT2); st.s_add_u32(sT1, sT1, HB); st.v_mov_b32(vU, sT1)
            st.s_lshl_b32(sT1, sHF, 1); st.s_add_u32(sT0, sT0, sT1); st.s_lshr_b32(sT1, sM, 1); st.s_add_u32(sT0, sT0, sT1)
            st.s_lshl_b32(sT1, sCG, 1); st.s_and_b32(sT2, sM, 1); st.s_add_u32(sT1, sT1, sT2)
            st.s_lshl_b32(sT2, sT0, 15); st.s_lshl_b32(sT3, sT1, 11); st.s_add_u32(sT2, sT2, sT3); st.s_add_u32(sT2, sT2, XB - 16 * 128)
            sel(16 if kind == "ox" else 0, sT2)
            st.s_lshl_b32(sT2, sT0, 12); st.s_lshl_b32(sT3, sT1, 8); st.s_add_u32(sT2, sT2, sT3); st.s_add_u32(sT2, sT2, ST - 32 * 128)
            sel(32, sT2)
            st.v_min_u32(vT, 33, vL)
            if kind == "x": st.v_max_u32(vT, 16, vT)
            st.v_lshl_add_u32(vT, vT, 7, vU)
        elif kind == "h":
            st.s_lshl_b32(sT0, sC, 2); st.s_add_u32(sT1, sT0, sM); st.s_mul_i32(sT1, sT1, HB_TB); st.s_lshl_b32(sT2, sJ, 10)
            st.s_add_u32(sT1, sT1, sT2); st.s_add_u32(sT1, sT1, HB + 32768)
            st.s_add_u32(sT2, sT6, 2); st.v_lshrrev_b32(vT, 3, vL); st.v_min_u32(vT, sT2, vT); st.v_lshlrev_b32(vT, 14, vT)
            st.v_and_b32(vU, 7, vL); st.v_lshl_add_u32(vT, vU, 7, vT); st.v_add_u32(vT, sT1, vT)
        elif kind == "r":
            sm = "sc1"
            st.s_mul_i32(sT0, sJ, KV_J); st.s_mul_i32(sT1, sC, KV_REC); st.s_add_u32(sT0, sT0, sT1)
            st.s_mul_i32(sT1, sM, 5 * 128); st.s_min_u32(sT1, sT1, 13 * 128); st.s_add_u32(sT0, sT0, sT1); st.s_add_u32(sT0, sT0, KVP)
            st.v_mov_b32(vU, sT0); st.s_add_u32(sT0, sT0, KV_P - 5 * 128); sel(5, sT0)
            assert oi("fks", 7) == 7
            st.s_lshl_b32(sT0, sJ, 11); st.s_lshl_b32(sT1, sC, 7); st.s_add_u32(sT0, sT0, sT1); st.s_add_u32(sT0, sT0, FKV + 32 - 10 * 128)
            sel(10, sT0); st.s_add_u32(sT0, sT0, 256 * 128 - 128); sel(11, sT0)
            st.v_min_u32(vT, 11, vL); st.v_lshl_add_u32(vT, vT, 7, vU)
        st.buffer_store_dword(vL, vT, WS, 0, mods="offen " + sm, tset="w" + kind)
    def fillw(kind):
        sm = os_("fm", "sc1").replace("+", " ").replace("-", "")
        D = v(8, 4)
        def w(addr, soff, off=0, tag=None): st.buffer_store_dwordx4(D, addr, WS, soff, mods=f"offen offset:{off} {sm}", tset=tag)
        if kind == "o":
            st.s_lshl_b32(sT0, sC, 2); st.s_add_u32(sT1, sT0, sM); st.s_mul_i32(sT1, sT1, HB_TB); st.s_lshl_b32(sT2, sJ, 11)
            st.s_add_u32(sT1, sT1, sT2); st.s_add_u32(sT1, sT1, HB); w(vL16, sT1); w(vL16, sT1, 1024, "wo")
        elif kind == "x":
            st.s_lshl_b32(sT0, sC, 2)
            st.s_lshl_b32(sT1, sHF, 1); st.s_add_u32(sT0, sT0, sT1); st.s_lshr_b32(sT1, sM, 1); st.s_add_u32(sT0, sT0, sT1)
            st.s_lshl_b32(sT1, sCG, 1); st.s_and_b32(sT2, sM, 1); st.s_add_u32(sT1, sT1, sT2)
            st.s_lshl_b32(sT2, sT0, 15); st.s_lshl_b32(sT3, sT1, 11); st.s_add_u32(sT2, sT2, sT3); st.s_add_u32(sT2, sT2, XB)
            w(vL16, sT2); w(vL16, sT2, 1024)
            st.s_lshl_b32(sT2, sT0, 12); st.s_lshl_b32(sT3, sT1, 8); st.s_add_u32(sT2, sT2, sT3); st.s_add_u32(sT2, sT2, ST)
            st.v_and_b32(vT, 240, vL16); w(vT, sT2, 0, "wx")
        elif kind == "h":
            st.s_lshl_b32(sT0, sC, 2); st.s_add_u32(sT1, sT0, sM); st.s_mul_i32(sT1, sT1, HB_TB); st.s_lshl_b32(sT2, sJ, 10)
            st.s_add_u32(sT1, sT1, sT2); st.s_add_u32(sT1, sT1, HB + 32768)
            for r in range(2): w(vL16, sT1); st.s_add_u32(sT1, sT1, 16384)
            w(vL16, sT1); st.s_lshl_b32(sT2, sT6, 14); st.s_add_u32(sT1, sT1, sT2); w(vL16, sT1, 0, "wh")
        elif kind in ("r", "r1"):
            st.s_mul_i32(sT0, sJ, KV_J); st.s_mul_i32(sT1, sC, KV_REC); st.s_add_u32(sT0, sT0, sT1)
            st.s_mul_i32(sT1, sM, 640); st.s_min_u32(sT1, sT1, 13 * 128); st.s_add_u32(sT0, sT0, sT1); st.s_add_u32(sT0, sT0, KVP)
            st.v_min_u32(vT, 39 * 16, vL16)
            if kind == "r": w(vT, sT0)
            st.s_add_u32(sT0, sT0, KV_P); w(vT, sT0, 0, "wr")
    gl = []
    for g in range(8):
        k0 = (16 * (g // 4) + (g % 4)) * 16
        for m_, srd in enumerate((WG, WU)):
            for i in range(3):
                def f(g=g, k0=k0, m_=m_, srd=srd, i=i):
                    if i == 0: st.s_add_u32(sLD, sGU, k0 * 2752)
                    st.buffer_load_dwordx4(v(GU + 24 * g + 12 * m_ + 4 * i, 4), vGG[i], srd, sLD, mods="offen" + POL(srd))
                gl.append(f)
    def gu_loads(cnt):
        for _ in range(min(cnt, len(gl))):
            f = gl.pop(0)
            if not OPT.get("noG"): f()
    def colsum(n, steps, first, lo, hi, dst=None):
        L = newlab("cs")
        st.s_sub_u32(sT0, sM, lo); st.s_cmp_ge_u32(sT0, hi - lo); st.mark("save", L); st.s_cbranch_scc1(L)
        nf = len(FRS)
        def rd(k):
            a, off = steps[k]; r = FRS[k % nf]
            st.ds_read_b64_tr_b16(v(r, 2), a, mods=f"offset:{off}"); st.ds_read_b64_tr_b16(v(r + 2, 2), a, mods=f"offset:{off+512}")
        for k in range(nf - 1): rd(k)
        for k in range(len(steps)):
            acc = v(CACC + 4 * (k & 1), 4)
            st.v_mfma_f32_16x16x32_bf16(acc, v(FRS[k % nf], 4), v(SEL, 4), "0" if first and k < 2 else acc)
            if k + nf - 1 < len(steps): rd(k + nf - 1)
        if dst is not None:
            for i in range(4): st.v_add_f32(v(CACC + i), v(CACC + i), v(CACC + 4 + i))
            st.ds_write_b128(dst, v(CACC, 4))
        st.mark("merge", L); st.label(L)
    def transpose(g):
        b = GU + 24 * g
        for m_ in range(2):
            for i in range(3): st.ds_write_b128(vGL[i], v(b + 12 * m_ + 4 * i, 4), mods=f"offset:{32*m_}")
        for t in range(6):
            for u in range(2): st.ds_read_b64_tr_b16(v(b + 4 * t + 2 * u, 2), vGT, mods=f"offset:{u*4*GSTR + t*64}")
    def tsum(g):
        b = GU + 24 * g
        for t in range(6):
            st.v_mfma_f32_16x16x32_bf16(v(CACC + 4 * t, 4), v(b + 4 * t, 4), v(SEL, 4), "0" if g == 0 else v(CACC + 4 * t, 4))
    tr_next = [0]
    def transposes(cnt):
        gs = list(range(tr_next[0], min(8, tr_next[0] + cnt))); tr_next[0] += len(gs)
        for i, g in enumerate(gs):
            transpose(g)
            if i > 0: tsum(gs[i - 1])
        tsum(gs[-1])
    def gu_partial():
        st.s_mul_i32(sT0, sM, 768); st.s_add_u32(sT0, sT0, L_VB); st.v_add_u32(vT, sT0, vCW)
        for i in range(6): st.ds_write_b128(vT, v(CACC + 4 * i, 4), mods=f"offset:{128*i}")
    def gu_reduce():
        st.v_min_u32(vCR, 6 * 128 - 16, vL16)
        st.v_add_u32(vT, L_VB, vCR)
        for w in range(4): st.ds_read_b128(v(CACC + 4 * w, 4), vT, mods=f"offset:{w*768}")
        for i in range(4):
            st.v_add_f32(v(CACC + i), v(CACC + i), v(CACC + 4 + i)); st.v_add_f32(v(CACC + 8 + i), v(CACC + 8 + i), v(CACC + 12 + i))
        for i in range(4): st.v_add_f32(v(CACC + i), v(CACC + i), v(CACC + 8 + i))
        for i in range(4):
            st.v_and_b32(v(CACC + 4 + i), 0xffff0000, v(CACC + i)); st.v_sub_f32(v(CACC + i), v(CACC + i), v(CACC + 4 + i))
            st.v_cvt_pk_bf16_f32(v(CACC + i), v(CACC + 4 + i), v(CACC + i))
        st.v_and_b32(vT, 0x380, vCR); st.v_and_b32(vU, 0x30, vCR); st.v_lshl_add_u32(vT, vU, 1, vT)
        st.v_bfe_u32(vU, vCR, 6, 1); st.v_lshl_add_u32(vT, vU, 4, vT); st.v_add_u32(vT, L_CS + 384, vT)
        st.ds_write_b128(vT, v(CACC, 4))
    def cs_kv(a):
        if a == 0:
            st.s_lshl_b32(sT0, sM, 6); st.v_xor_b32(vCR, sT0, vC0)
        else:
            st.s_lshl_b32(sT0, sM, 7); st.s_add_u32(sT0, sT0, L_CS); st.v_add_u32(vV, sT0, vCW)
        colsum(a, [(vCR, 32768 * a + 2048 * k) for k in range(16)], a == 0, 0, 2, dst=vV if a == 1 else None)
    def cs_q():
        st.v_add_u32(vT, 65536, vC0); st.v_add_u32(vU, 65536, vC1); st.v_add_u32(vV, L_CS + 256, vCW)
        colsum(2, [(a, 2048 * k) for k in range(16) for a in (vT, vU)], True, 2, 3, dst=vV)

    need = {"a0": [0], "a1": [1], "g": [3, 4], "30": [5, 6, 7, 8], "3c": [9], "3d": [10], "3f": [11], "4a": [12], "4b": [13], "4c": [14], "4d": [15], "4e": [16]}
    S0 = os_("s0", "start:c1;a0:c2,csk0;a1:csk1,wst,sigA,pub,G8,sigq,G16,wsig,X2,G12,X2,G12,X2,c3,c4,X2,Th0,Tx;g:part,c5,c6,Qk,S21;p2:Th1,S7;X2:c7,c8;")
    S0 += os_("s0b", "30:red,wst;3a:c9,Twd,nd;3b:c10,nd;3c:r15,r16;3d:c11,c12;3f:c13,S4;3g:c14,S4;4a:S7;4b:u15,S7;4c:u16,S7;4d:S7;4e:c17;X4:c18,QR,S5")
    S1 = os_("s1", "a2:c2,sig,c3,c4;g:c5,c6;p2:Twf32;X2:c7,c8;")
    S1 += os_("s1b", "3a:c9,Twd32,nd;3b:c10,nd;3c:c11,r15,r16;3d:c12;3f:c13;3g:c14;4b:u15;4c:u16")
    def acts(txt):
        d = {}
        for part in txt.split(";"):
            k, _, l = part.partition(":"); d[k] = l.split(",")
        return d
    DR = [False]
    def run(lst, o):
        for a in lst:
            DR[0] = False
            if a == "q": issue(2)
            elif a == "pub": publish()
            elif a == "wld": st.s_lshl_b32(sT0, sJ, 10); st.buffer_load_dwordx4(v(WRAW, 4), vL16, WP, sT0, mods="offen")
            elif a == "wst":
                st.v_bfe_u32(vT, vL, 3, 2); st.v_mul_u32_u24(vT, 576, vT); st.v_lshrrev_b32(vU, 5, vL); st.v_lshl_add_u32(vT, vU, 7, vT)
                st.v_and_b32(vU, 112, vL16); st.v_add_u32(vT, vT, vU); st.v_add_u32(vT, L_KVB, vT)
                st.ds_write_b128(vT, v(WRAW, 4))
            elif a == "non": st.buffer_load_dword(vNON, "off", WS, 0, mods=f"offset:{EPOCH} sc1")
            elif a == "sig":
                st.l.append(Ins("s_nop", ["0"], tneed=f"c{o+2}")); signal(st, 1 + o // 17)
            elif a == "sigA": signal(st, 1, 16)
            elif a == "sigq":
                L = newlab("sq")
                st.l.append(Ins("s_nop", ["0"], tneed=f"c{o+2}")); signal(st, 1, 32)
                st.s_cmp_lg_u32(sM, 2); st.mark("save", L); st.s_cbranch_scc1(L)
                st.v_mov_b32(vU, 1); sigwait(st, 12, 48, regs=(13, 14, 15))
                st.mark("merge", L); st.label(L)
                cs_q(); signal(st, 1)
            elif a == "wsg": st.v_mov_b32(vU, 1); sigwait(st, 12, 64, regs=(13, 14, 15))
            elif a == "wsig": st.v_mov_b32(vU, 2); sigwait(st, 12, 32, regs=(13, 14, 15))
            elif a.startswith("csk"): cs_kv(int(a[3]))
            elif a == "csq": cs_q()
            elif a == "part": gu_partial()
            elif a == "red": gu_reduce()
            elif a[0] == "P": st.s_setprio(int(a[1:]))
            elif a == "nd": DR[0] = True
            elif a == "QC": SQ.clear()
            elif a == "wl": st.wait(lgkm=0)
            elif a[0] == "D" and a != "DF": dcap(st, a, "l")
            elif a == "DF": dflush(st, "l")
            elif a[:2] == "WB":
                L = newlab("wb")
                if a == "WB": st.s_or_b32(sT0, sJ, sM)
                else: st.s_mov_b32(sT0, sM)
                st.s_cmp_lg_u32(sT0, 0); st.mark("save", L); st.s_cbranch_scc1(L)
                st.raw("    buffer_wbl2 " + os_("wbm", "sc1").replace("+", " "))
                st.mark("merge", L); st.label(L)
            elif a == "wv": st.wait(vm=0)
            elif a[0] == "Q": squeue(a[1:])
            elif a[0] == "S":
                if LDSW(st): st.wait(lgkm=0)
                DR[0] = True; spf(int(a[1:]))
            elif a[0] == "c" and "-" in a:
                n_, PART[0], PART[1] = [int(x) for x in a[1:].split("-")]
                issue(o + n_); PART[:] = [0, 8]
            elif a[0] == "c": issue(o + int(a[1:]))
            elif a[0] == "r" and a[1:].isdigit(): stage(o + int(a[1:]))
            elif a[0] == "u" and a[1:].isdigit(): unstage(o + int(a[1:]))
            elif a[0] == "@": stamp(st, a, who="l", pair=o // 17)
            elif a[0] == "G": gu_loads(int(a[1:]))
            elif a[0] == "X": transposes(int(a[1:]))
            elif a[0] == "T": touch(a[1:])
            elif a[0] == "W": claim(a[1:])
            elif a[0] == "F": fillw(a[1:])
            elif a[0] == "N": st.l.append(Ins("s_nop", ["0"], tneed="w" + a[1:]))
            else: raise ValueError(a)
    prologue()
    for pair in range(1 if OPT['stop'] else 2):
        o = 17 * pair; A = acts(S0 if pair == 0 else S1)
        run(A.get("start", []), o)
        for b in (SEQ0 if pair == 0 else SEQA) + SEQC:
            tk = []
            for n in need.get(b, []):
                if o + n == 0 and oi("xd", 0): continue
                assert o + n in issued, (pair, b, n)
                tk.append(f"c{o+n}")
            if not (OPT.get("dcap") and b == "a0" and pair == 0): stamp(st, "<" + b, who="l", pair=pair)
            if not DR[0] and LDSW(st): st.wait(lgkm=0)
            DR[0] = False
            st.l.append(Ins("s_barrier", [], tneed=tk))
            run(A.get(b, []), o)
    assert OPT['stop'] or (not gl and tr_next[0] == 8)
    st.s_branch(".Lend")

def main():
    st = Stream()
    entry(st)
    loader(st)
    st.label(".Lslow")
    compute_slow(st)
    st.extend(OOL)
    st.label(".Lend")
    st.s_endpgm()
    bodyt = finalize(st)
    ref = open(f"cdna_kernels/{NAME}.s.ref").read().split("\n")
    head = [l for l in ref if l.startswith(";") and "@launch" not in l]
    out = "\n".join(head) + f"\n; @launch grid=(256,1,1) block=(512,1,1) lds={LDS_BYTES}\n"
    out += '.amdgcn_target "amdgcn-amd-amdhsa--gfx950"\n' + khead(NAME + "_kernel") + bodyt + kd(NAME + "_kernel")
    path = sys.argv[1] if len(sys.argv) > 1 else f"cdna_kernels/{NAME}.s"
    open(path, "w").write(out)
    stamp_names["opt"] = " ".join(a for a in sys.argv[2:] if not a.startswith(("stamps", "only"))); json.dump(stamp_names, open(path + ".json", "w"))
    n = sum(1 for l in bodyt.split("\n") if l.startswith("    ") and not l.strip().startswith(";"))
    print("wrote", path, "instructions:", n, "barriers:", SEQ0, SEQA, SEQC)

main()
```

```python
import sys, os, math, struct, json
sys.path.insert(0, os.path.dirname(os.path.abspath(__file__)))
from asmlib import *
from layout5 import *

NAME = "interleave_layers__linear_kernel_hedgehog__geglu_ffn__prompt"
OPT = dict(stop=None, stamps=False)
for a in sys.argv[2:]:
    k, _, val = a.partition("=")
    OPT[k] = val if val != "" else True
def oi(k, d): return int(OPT.get(k, d))
def os_(k, d): return str(OPT.get(k, d))
TG = oi("tg", 1)
TGM = 0xbfffbfff
E0 = os_("e0", "Qk,S21,QC,c0,non,wld")
SCL = "sc1"
def f2u(x): return "0x%08x" % struct.unpack("<I", struct.pack("<f", x))[0]
LOG2E = 1.4426950408889634
class G: SC = ""; TAG = "f"; SEQ = None; REC = True

WS, X_, OUT, WQ, WP, WO_, WG, WU, WD = [s(4 + 4 * i, 4) for i in range(9)]
sXC = s(40)
XO = oi("xo", 0)
XS = OUT if XO else WS
sC, sJ, sHF, sCG, sM, sNONCE, sCNT, sPAIR = [s(66 + i) for i in range(8)]
sW = s(3)
sXLD, sSTLD, sFA, sXST, sSTST, sFXST = [s(74 + i) for i in range(6)]
sOST, sFB, sFJ = s(80), s(81), s(82)
sHLD, sHST = s(84), s(85)
sKVST, sKVLD, sFKVST, sFKVLD = [s(88 + i) for i in range(4)]
sKZ, sGZ, sHALF, sH5, sF5, sHS = s(62), s(63), s(60, 2), s(49), s(83), s(41)
sT0, sT1, sT2, sT3 = [s(92 + i) for i in range(4)]
sL2E, sONE, sOUTO, sT6 = s(96), s(97), s(98), s(99)
sSTMP = s(100, 2)
sRING, sKH, sTP, sDUM, sLD = s(44), s(45), s(46), s(47), s(48)
vL, vL16, vA0, vFL = v(0), v(1), v(2), v(3)
RES = 4
vNON = v(12); vT = v(13); vU = v(14); vV = v(15)
vA1, vP0, vP1 = v(121), v(122), v(123)
aXW = v(126)
XF = 128
cWDb = [s(52 + i) for i in range(4)]; sDM = s(56)
aEW, aER, vEVv, vEVr, aCS3 = v(112), v(113), v(114), v(115), v(120)
aP4, vS4 = v(124), v(125)

class bc:
    def __init__(self, r, neg=False): self.r = int(r[1:]) if isinstance(r, str) else r; self.neg = neg
class ng:
    def __init__(self, r): self.r = r
def pk(st, op, d, *src):
    ops, lo, hi, n = [], [], [], []
    for x in src:
        if isinstance(x, bc): ops.append(v(x.r & ~1, 2)); lo.append(x.r & 1); hi.append(x.r & 1); n.append(int(x.neg))
        elif isinstance(x, ng): ops.append(v(x.r, 2)); lo.append(0); hi.append(1); n.append(1); assert x.r % 2 == 0
        else: ops.append(v(x, 2)); lo.append(0); hi.append(1); n.append(0); assert x % 2 == 0
    assert d % 2 == 0
    f = lambda l: "[" + ",".join(map(str, l)) + "]"
    mods = f"op_sel:{f(lo)} op_sel_hi:{f(hi)}" + (f" neg_lo:{f(n)} neg_hi:{f(n)}" if any(n) else "")
    st.op(f"v_pk_{op}_f32", v(d, 2), *ops, mods=mods)

lab_n = [0]
def newlab(p):
    lab_n[0] += 1
    return f".L{p}_{lab_n[0]}"

def nxt(st):
    st.s_add_u32(sNONCE, sNONCE, 1); st.v_add_u32(vNON, 1, vNON)

def poll(st, addr, soff, off=0, back=0):
    L = newlab("poll"); D = newlab("pdone")
    st.label(L)
    st.buffer_load_dword(vT, addr, WS, soff, mods=f"offen offset:{off} sc1")
    st.wait(vm=0)
    st.v_cmp_ne_u32("vcc", sNONCE, vT)
    st.s_cbranch_vccz(D)
    for _ in range(back): st.s_nop(15)
    st.s_sub_u32(sCNT, sCNT, 1)
    st.s_cbranch_scc0(L)
    st.s_mov_b32(sCNT, 0)
    st.label(D)

PRA, PRB = v(124), v(125)
def pload(st, r, addr, soff, off=0):
    i = Ins("buffer_load_dword", [r, addr, WS, soff], f"offen offset:{off} sc1"); i.dst = set(); st.l.append(i)
def poll2(st, addr, soff, off=0, gap=0, issued=0):
    if gap < 0: return poll(st, addr, soff, off, -1 - gap)
    L = newlab("poll"); D = newlab("pdone")
    if issued < 1: pload(st, PRA, addr, soff, off)
    if issued < 2:
        for _ in range(gap): st.s_nop(15)
        pload(st, PRB, addr, soff, off)
    st.label(L)
    for r in (PRA, PRB):
        st.wait(vm=1)
        st.v_cmp_ne_u32("vcc", sNONCE, r)
        st.s_cbranch_vccz(D)
        pload(st, r, addr, soff, off)
    st.s_sub_u32(sCNT, sCNT, 1)
    st.s_cbranch_scc0(L)
    st.s_mov_b32(sCNT, 0)
    st.wait(vm=1)
    st.label(D)

OOL = Stream()
def soft_check(st, reg, addr, soff, off=0):
    D = newlab("soft"); X = newlab("softx")
    st.v_cmp_ne_u32("vcc", sNONCE, reg)
    st.s_cbranch_vccnz(X)
    st.label(D)
    OOL.label(X); OOL.mark("reset")
    poll(OOL, addr, soff, off)
    OOL.s_branch(D)

stamp_names = {"c": [], "l": []}
def stamp(st, name, real=False, who="c", pair=None):
    if OPT.get("cap") and who == "c" and name == OPT["cap"].split("@")[0]:
        (st.s_memrealtime if OPT.get("capr") else st.s_memtime)(sSTMP); st.wait(lgkm=0)
        st.s_cmp_eq_u32(sPAIR, int(OPT["cap"].split("@")[1])); st.s_cselect_b32(s(43), s(100), s(43))
    if not OPT["stamps"]: return
    only = OPT.get("only")
    if only and who == "l" and not OPT.get("lst"): return
    if only and who == "c" and not isinstance(name, int) and name not in ("start", "end") and name not in only.split(","): return
    if isinstance(name, int): idx = name
    else:
        if name not in stamp_names[who]: stamp_names[who].append(name)
        idx = stamp_names[who].index(name)
    r = v(127) if who == "c" else v(63)
    if name == 62: st.v_mov_b32(r, s(42))
    elif name == "start" and who == "c": st.v_mov_b32(r, s(86))
    elif name == "karg": st.wait(lgkm=0); st.v_mov_b32(r, s(0))
    else:
        if real: st.s_memrealtime(sSTMP)
        else: st.s_memtime(sSTMP)
        st.wait(lgkm=0)
        st.v_mov_b32(r, s(100))
    if pair is None:
        st.s_lshl_b32(s(101), sPAIR, 8)
        st.s_add_u32(s(101), s(101), s(65))
    else:
        st.s_add_u32(s(101), s(65), 256 * pair)
    st.buffer_store_dword(r, "off", WS, s(101), mods=f"offset:{idx*4}")

DEF = {"c": [], "l": []}
def dcap(st, name, who="c", reg=None):
    if not (OPT["stamps"] and OPT.get("dcap")): return
    if (reg is None) != (OPT["dcap"] == "1"): return
    r = v(reg) if reg else v(16 + len(DEF[who])) if who == "c" else v(30 + len(DEF[who]))
    st.s_memtime(sSTMP); st.wait(lgkm=0); st.v_mov_b32(r, s(100)); DEF[who].append((name, r))
def dflush(st, who="c"):
    if DEF[who]: st.s_lshl_b32(s(101), sPAIR, 8); st.s_add_u32(s(101), s(101), s(65))
    for name, r in DEF[who]:
        if name not in stamp_names[who]: stamp_names[who].append(name)
        st.buffer_store_dword(r, "off", WS, s(101), mods=f"offset:{stamp_names[who].index(name)*4}")
    DEF[who].clear()

def ring_addr(st, mode):
    if mode in ("trq", "trn"):
        st.v_add_u32(vA0, sRING, vP0 if mode == "trq" else vP1); st.v_xor_b32(vA1, 64, vA0)
    elif mode == "b128":
        st.v_add_u32(vA0, sRING, vL16)
def ring_next(st, mode=None):
    st.s_add_u32(sRING, sRING, 0x8000); st.s_and_b32(sRING, sRING, 0x1ffff)
    ring_addr(st, mode)
def barrier(st, name, drain=False):
    if drain: st.wait(lgkm=0)
    st.s_barrier()
    if G.REC: G.SEQ.append(name)

def signal(st, val=None, off=0):
    t0, t1 = (v(124), v(125)) if val is None else (vT, vU)
    st.s_lshl_b32(sT3, sW, 2); st.s_add_u32(sT3, sT3, L_SIG + off); st.v_mov_b32(t0, sT3)
    if val is None: st.v_add_u32(t1, 1, sPAIR)
    else: st.v_mov_b32(t1, val)
    st.ds_write_b32(t0, t1)
def sigwait(st, mask=28, off=0, regs=(124, 125, 126), cmp="ne", extra=None):
    L = newlab("sig"); D = newlab("sigd")
    a, e, r = [v(x) for x in regs]
    st.v_and_b32(a, mask, vFL); st.v_add_u32(a, L_SIG + off, a)
    if extra:
        st.ds_read_b32(r, a)
        extra(st)
        st.wait(lgkm=0)
        st.op(f"v_cmp_{cmp}_u32", "vcc", e, r)
        st.s_cbranch_vccz(D)
    st.label(L)
    st.ds_read_b32(r, a)
    st.wait(lgkm=0)
    st.op(f"v_cmp_{cmp}_u32", "vcc", e, r)
    st.s_cbranch_vccz(D)
    st.s_sub_u32(sCNT, sCNT, 1)
    st.s_cbranch_scc0(L)
    st.s_mov_b32(sCNT, 0)
    st.label(D)

def lane_tr(st, d0, d1, kind, stride=128, tmp=vT, hstride=None):
    st.v_bfe_u32(d0, vL, 2, 2)
    if stride == 128: st.v_lshlrev_b32(d0, 7, d0)
    else: st.v_mul_u32_u24(d0, stride, d0)
    st.v_lshrrev_b32(tmp, 5, vL)
    st.v_lshl_add_u32(d0, tmp, int(math.log2(hstride or 8 * stride)), d0)
    sh = dict(qkv=(5, 4), nat=(4, 5))[kind]
    st.v_and_b32(tmp, 1, vL); st.v_lshl_add_u32(d0, tmp, sh[0], d0)
    st.v_bfe_u32(tmp, vL, 1, 1); st.v_lshl_add_u32(d0, tmp, 3, d0)
    st.v_bfe_u32(tmp, vL, 4, 1); st.v_lshl_add_u32(d0, tmp, sh[1], d0)
    if stride == 128:
        st.v_bfe_u32(tmp, vL, 3, 1); st.v_lshl_add_u32(d0, tmp, 6, d0)
        if d1: st.v_xor_b32(d1, 64, d0)

gemm_n = [0]
def gemm(st, items, mode, af, nslots, depth, ready, bars=None, fill=None, budget=16, hooks=None, loads=None, pre=10, every=2, pairw=0):
    n = len(items); loads = list(loads or []); ready = set(ready); bars = bars or {}
    nr = 0; gemm_n[0] += 1; tg = f"g{gemm_n[0]}_"
    def pump(upto):
        nonlocal nr
        while nr < n and nr <= upto:
            it = items[nr]; r = af + 4 * (nr % nslots)
            assert it["chunk"] in ready, (nr, it["chunk"])
            if nr > 0 and it["chunk"] != items[nr - 1]["chunk"]: ring_next(st, mode)
            if mode != "b128":
                a = vA1 if it["t"] else vA0
                st.ds_read_b64_tr_b16(v(r, 2), a, mods=f"offset:{it['off']}")
                st.ds_read_b64_tr_b16(v(r + 2, 2), a, mods=f"offset:{it['off']+512}", tset=tg + str(nr))
            else:
                st.ds_read_b128(v(r, 4), vA0, mods=f"offset:{it['off']}", tset=tg + str(nr))
            nr += 1
    for _ in range(min(pre, len(loads))): loads.pop(0)(st)
    pump(depth - 1)
    for i in range(n):
        it = items[i]
        if hooks and i in hooks: hooks[i](st)
        acc = v(it["acc"], 16)
        st.v_mfma_f32_32x32x16_bf16(acc, v(af + 4 * (i % nslots), 4), v(it["b"], 4), "0" if it["first"] else acc,
                                    tneed=tg + str(i + 1) if pairw and i % 2 == 0 and i + 1 < nr else None)
        if i in bars:
            barrier(st, bars[i][0]); ready |= set(bars[i][1])
        pump(i + depth)
        if loads and i % every == every - 1: loads.pop(0)(st)
        if fill is not None: fill.take(st, budget(i) if callable(budget) else budget)
    assert not loads

def entry(st):
    st.s_cmp_ge_u32(s(2), 256)
    st.s_cbranch_scc1(".Lend")
    if OPT["stamps"]: st.s_memrealtime(s(42, 2)); st.s_memtime(s(86, 2))
    if OPT.get("dbg"): st.s_memrealtime(s(42, 2)); st.s_memtime(s(86, 2))
    st.s_load_dwordx16(s(44, 16), s(0, 2), 0)
    st.s_load_dwordx4(s(60, 4), s(0, 2), 64)
    st.s_load_dwordx2(s(64, 2), s(0, 2), 80)
    if oi("pc0", 0):
        st.s_getpc_b64(s(100, 2))
        L = newlab("pc")
        st.label(L)
        st.raw(f"    s_sub_u32 s100, s100, {L}-{NAME}_kernel")
        st.raw("    s_subb_u32 s101, s101, 0")
        m = oi("pc0", 0)
        if m == 1:
            st.v_lshlrev_b32(vU, 7, v(0))
        elif m == 2:
            st.v_and_b32(vU, 15, v(0)); st.v_lshrrev_b32(vT, 6, v(0)); st.v_and_b32(vV, 3, vT); st.v_lshl_add_u32(vU, vV, 4, vU); st.v_lshlrev_b32(vU, 7, vU)
            st.v_lshrrev_b32(vT, 2, vT); st.v_mul_u32_u24(vT, f"(.Lld0-{NAME}_kernel)&0xffff80", vT); st.v_add_u32(vU, vU, vT)
        elif m == 3:
            st.v_and_b32(vU, 15, v(0)); st.v_lshrrev_b32(vT, 6, v(0)); st.v_lshl_add_u32(vU, vT, 4, vU); st.v_lshlrev_b32(vU, 9, vU)
            st.s_lshr_b32(sT0, s(2), 3); st.s_and_b32(sT0, sT0, 3); st.s_lshl_b32(sT0, sT0, 7); st.v_add_u32(vU, sT0, vU)
        st.v_min_u32(vU, f".Lslow-{NAME}_kernel", vU)
        i = Ins("global_load_dword", [v(11), vU, s(100, 2)]); i.dst = set(); st.l.append(i)
    st.v_lshrrev_b32(vT, 6, v(0))
    st.v_and_b32(vL, 63, v(0))
    st.v_readfirstlane_b32(sW, vT)
    st.v_lshlrev_b32(vL16, 4, vL)
    st.v_and_b32(vFL, 15, vL)
    st.v_lshlrev_b32(vFL, 2, vFL)
    st.s_and_b32(sT0, s(2), 7)
    st.s_lshr_b32(sT1, s(2), 3)
    st.s_lshr_b32(sC, sT1, 4)
    st.s_lshl_b32(sT0, sT0, 1)
    st.s_add_u32(sC, sC, sT0)
    st.s_and_b32(sJ, sT1, 15)
    st.s_lshr_b32(sHF, sJ, 3)
    st.s_and_b32(sCG, sJ, 7)
    st.s_and_b32(sM, sW, 3)
    st.s_mov_b32(sCNT, 1 << 18)
    st.s_mov_b32(sPAIR, 0)
    st.s_cmp_lt_u32(sJ, 6)
    st.s_cselect_b32(sT6, 1, 0)
    st.s_getreg_b32(sXC, "hwreg(HW_REG_XCC_ID, 0, 4)")
    for d in (WS, X_, OUT, WQ, WP, WO_, WG, WU, WD):
        st.s_mov_b32(s(int(d[2:d.index(":")]) + 3), 0x20000)
    for d, size in ((X_, 2048 * 1024), (WQ, 512 * 3072), (WS, WS_SIZE), (WP, 32 * 512), (WO_, 512 * 1024), (WG, 512 * 2752),
                    (WU, 512 * 2752), (WD, 1376 * 1024), (OUT, 2048 * 1024)):
        st.s_mov_b32(s(int(d[2:d.index(":")]) + 2), size)
    if oi("cfirst", 1) and oi("es", 0):
        if oi("w7", 1): st.s_cmp_eq_u32(sW, 7); st.s_cbranch_scc1(".Lld7")
        st.s_cmp_lt_u32(sW, 4); st.s_cbranch_scc1(".Lcmp0")
        early_round(st); st.s_branch(".Lld0")
        st.label(".Lcmp0"); st.mark("reset")
        compute(st)
        if oi("w7", 1):
            st.label(".Lld7"); st.mark("reset")
            early_round(st)
        st.label(".Lld0"); st.mark("reset")
    elif oi("cfirst", 1):
        st.s_cmp_ge_u32(sW, 4); st.s_cbranch_scc1(".Lld0")
        compute(st)
        st.label(".Lld0"); st.mark("reset")
    else:
        st.s_cmp_lt_u32(sW, 4); st.s_cbranch_scc1(".Lcomp")

def early_round(st, wait=True):
    r = 90 if wait else 54
    a, b = s(r), s(r + 1)
    L = oi("esl", 0)
    st.s_and_b32(a, sC, 1); st.s_lshl_b32(a, a, 4); st.s_add_u32(a, a, sJ); st.s_lshl_b32(a, a, 2 if L else 3); st.s_add_u32(a, a, sM if L else sW)
    st.s_lshr_b32(b, a, 4); st.s_mul_i32(b, b, 3072); st.s_and_b32(a, a, 15); st.s_lshl_b32(a, a, 7); st.s_add_u32(a, a, b)
    if wait: st.wait(lgkm=0)
    st.s_add_u32(a, s(46), a); st.s_addc_u32(b, s(47), 0)
    for i in range(oi("es", 0)):
        x = Ins("s_load_dwordx2", [s(52, 2), s(r, 2), hex(i * (8 if L else 16) * 3072 + 1024 + 60)]); x.dst = set(); st.l.append(x)

def rot(st, d, t):
    if not oi("rot", 0): st.s_mov_b32(d, 0); return
    st.s_and_b32(d, sJ, 1); st.s_and_b32(t, sC, 1); st.s_lshl_b32(t, t, 1); st.s_add_u32(d, d, t); st.s_lshl_b32(d, d, 1)
    st.s_lshr_b32(t, sJ, 1); st.s_add_u32(d, d, t)

def srds(st, lst):
    src = {X_: 44, WQ: 46, WP: 48, WO_: 50, WG: 54, WU: 56, WD: 58, OUT: 60, WS: 64}
    for d in lst:
        b = int(d[2:d.index(":")])
        st.s_mov_b32(s(b), s(src[d])); st.s_and_b32(s(b + 1), s(src[d] + 1), 0xffff)

def stamp_base(st):
    if OPT["stamps"]:
        st.s_lshl_b32(s(65), s(2), 3); st.s_add_u32(s(65), s(65), sW); st.s_lshl_b32(s(65), s(65), 9)
        st.s_add_u32(s(65), s(65), STAMP)

aK, aV, aQ, AF1, WPH, STT = 16, 32, 48, 64, 88, 96
NM, RS, VE, LR = v(112), v(113), v(114), v(115)
aCS, aA, aB, aR1, aR2 = v(116), v(117), v(118), v(119), v(120)

def kv_items():
    return [dict(chunk=k // 16, off=(k % 16) * 2048, t=t, acc=acc, b=XF + 4 * k, first=k == 0)
            for k in range(32) for t, acc in ((0, aK), (1, aV))]

CK, CV = aQ, STT
def k_addr(st):
    st.v_lshrrev_b32(vU, 5, vL); st.v_and_b32(vT, 1, vL); st.v_cmp_eq_u32("vcc", vT, vU)
    st.v_lshlrev_b32(aCS, 6, vU); st.v_add_u32(aCS, L_CS, aCS)
    st.v_lshlrev_b32(aR1, 7, vU); st.v_and_b32(vT, 12, vL); st.v_lshl_add_u32(aR1, vT, 3, aR1)
    st.v_and_b32(vT, 16, vL); st.v_add_u32(aR1, aR1, vT); st.v_and_b32(vT, 2, vL); st.v_lshl_add_u32(aR1, vT, 2, aR1)
    st.v_mov_b32(vT, 544); st.v_cndmask_b32(aR1, vT, aR1, "vcc"); st.v_add_u32(aR1, L_KVB, aR1)
    st.v_and_b32(vT, 31, vL); st.s_lshl_b32(sT0, sM, 5); st.v_add_u32(vT, sT0, vT)
    st.v_mul_u32_u24(aA, 144, vT); st.v_lshl_add_u32(aA, vU, 6, aA); st.v_add_u32(aA, L_PH, aA)
    st.v_mul_u32_u24(aB, 80, vT); st.v_lshl_add_u32(aB, vU, 5, aB); st.v_add_u32(aB, L_VB, aB)
def k_reads(st, which="wkv"):
    if "k" in which:
        for i in range(4): st.ds_read_b128(v(CK + 4 * i, 4), aCS, mods=f"offset:{16*i}")
    if "w" in which:
        for q in range(4): st.ds_read_b64_tr_b16(v(WPH + 2 * q, 2), aR1, mods=f"offset:{576*q}")
    if "v" in which:
        for i in range(4): st.ds_read_b128(v(CV + 4 * i, 4), aCS, mods=f"offset:{128+16*i}")

def fin_stats(st, S, Q, t0, t1, negmean, rstd, vare):
    if t0: st.v_mov_b32(t0, S)
    st.v_mov_b32(t1, Q)
    if t0: st.v_permlane32_swap_b32(S, t0)
    st.v_permlane32_swap_b32(Q, t1)
    if t0: st.v_add_f32(S, S, t0)
    st.v_add_f32(Q, Q, t1)
    st.v_mul_f32(negmean, f2u(-1.0 / 512), S)
    st.v_mul_f32(Q, f2u(1.0 / 512), Q)
    st.v_fma_f32(vare, "-" + negmean, negmean, Q)
    st.v_max_f32(vare, 0, vare)
    st.v_add_f32(vare, f2u(1e-5), vare)
    st.v_rsq_f32(rstd, vare)

def stats(st, stt, negmean, rstd, vare):
    S, Q = v(stt), v(stt + 1)
    for i in range(4): st.v_add_f32(v(stt + i), v(stt + i), v(stt + 4 + i))
    for i in range(4): st.v_add_f32(v(stt + 8 + i), v(stt + 8 + i), v(stt + 12 + i))
    for i in range(4): st.v_add_f32(v(stt + i), v(stt + i), v(stt + 8 + i))
    st.v_add_f32(S, S, v(stt + 2)); st.v_add_f32(Q, Q, v(stt + 3))
    fin_stats(st, S, Q, v(stt + 2), v(stt + 3), negmean, rstd, vare)

def p1a0(st):
    g0, g1, aW = v(118), v(119), v(120)
    aRd = [v(88 + i) for i in range(4)]
    QD, SA, SELA = 96, 112, 92
    XD = oi("xd", 0)
    st.v_lshrrev_b32(vT, 3, vL); st.v_and_b32(vV, 7, vL)
    if XD: st.v_lshrrev_b32(vU, 4, vL); st.v_xor_b32(vV, vV, vU)
    st.v_lshlrev_b32(g0, 10, vT); st.v_lshl_add_u32(g0, vV, 4, g0)
    st.s_lshl_b32(sT0, sC, 2); st.s_add_u32(sT0, sT0, sM); st.s_lshl_b32(sT0, sT0, 15)
    GA = [v(48 + g) for g in range(4)]
    PRE = oi("pre", 0); assert not (PRE and (XD or oi("rot", 0)))
    st.v_lshlrev_b32(g1, 5, vFL); st.s_lshl_b32(sT1, sJ, 11); st.s_add_u32(sT1, sT1, sT0)
    if PRE: st.v_add_u32(v(53), sT1, g1)
    for g in range(4):
        st.v_add_u32(GA[g], sT0, g0)
        if XD and g & 1: st.v_xor_b32(GA[g], 64, GA[g])
        if g < 3: st.s_add_u32(sT0, sT0, 8192)
    vKc, sA0, sKc, sK8 = v(52), s(41), s(83), s(98)
    AREA = [0, 16384, 32768, 49152, 65536, 32768, 49152, 65536]
    if XD:
        st.v_bfe_u32(vU, vL, 4, 1); st.v_lshlrev_b32(vU, 2, vU); st.v_and_b32(vV, 7, vL); st.v_xor_b32(vU, vU, vV)
        st.v_mul_u32_u24(vKc, 3072, vT); st.v_and_b32(vV, 3, vU); st.v_lshl_add_u32(vKc, vV, 4, vKc)
        st.v_lshrrev_b32(vV, 2, vU); st.v_lshl_add_u32(vKc, vV, 10, vKc); st.v_add_u32(vKc, 1024, vKc)
        st.s_lshl_b32(sA0, sM, 12); st.s_add_u32(sA0, sA0, 65536); st.s_lshl_b32(sK8, sM, 13)
        st.s_mul_i32(sKc, sM, 64 * 3072); st.s_lshl_b32(sT0, sJ, 6); st.s_add_u32(sKc, sKc, sT0)
    if oi("tk0", 0):
        st.v_lshrrev_b32(vT, 5, vL); st.v_lshlrev_b32(vT, 8, vT); st.v_bfe_u32(vU, vL, 4, 1); st.v_add_u32(vT, vT, vU)
        st.v_mul_u32_u24(v(124), 3072, vT); st.v_lshl_add_u32(v(124), vFL, 5, v(124))
        st.s_and_b32(sT2, sC, 1); st.s_lshl_b32(sT2, sT2, 4); st.s_add_u32(sT2, sT2, sJ); st.s_lshl_b32(sT2, sT2, 2); st.s_add_u32(sT2, sT2, sM)
        st.s_mul_i32(sT2, sT2, 2 * 3072); st.s_add_u32(sT2, sT2, 1024)
    sR, sQO = s(41), s(83)
    if not XD and not PRE: rot(st, sR, sT0)
    def c0(st):
        srds(st, [WQ])
        for i in range(8):
            st.s_add_u32("m0", sK8, 1024 * i); st.s_add_u32(sT0, sKc, 8 * i * 3072)
            st.buffer_load_dwordx4(vKc, WQ, sT0, mods="offen lds", tset="c0c" if i == 7 else None)
    def xl(p, st):
        if not XD and not PRE: st.s_add_u32(sQO, sR, p); st.s_and_b32(sQO, sQO, 7); st.s_lshl_b32(sQO, sQO, 7)
        if p == (-1 if XD else 0):
            st.wait(lgkm=0)
            srds(st, [X_])
            if OPT["stamps"]: st.s_memtime(s(0, 2))
            dcap(st, "dk")
            if OPT.get("lat"):
                srds(st, [WQ, WO_, WG, WD, WS, OUT])
                st.v_lshlrev_b32(v(40), 2, vL)
                for nm_, srd, off in (("x0", X_, 0), ("x1", X_, 4096), ("x2", X_, 65536), ("x3", X_, 1 << 20), ("wo", WO_, 0), ("wo2", WO_, 262144), ("wg", WG, 0), ("wd", WD, 0),
                                      ("ws", WS, XB), ("ws2", WS, XB + 4096), ("ws3", WS, HB + 2 * MB), ("out", OUT, 0)):
                    st.s_mov_b32(sT2, off); st.buffer_load_dword(v(41), v(40), srd, sT2, mods="offen"); st.wait(vm=0); dcap(st, nm_)
            if oi("tx0", 1):
                i = Ins("buffer_load_dword", [v(126), v(53), X_, "0"] if PRE else [v(126), g1, X_, sT1], "offen"); i.dst = set(); st.l.append(i)
            if oi("tk0", 0):
                srds(st, [WQ])
                i = Ins("buffer_load_dword", [v(125), v(124), WQ, sT2], "offen"); i.dst = set(); st.l.append(i)
        if p < 0: return
        for g in range(4):
            if XD:
                st.s_add_u32("m0", sA0 if AREA[p] < 65536 else sKc, AREA[p] + 1024 * g - 128 * p)
                st.buffer_load_dwordx4(GA[g], X_, 0, mods=f"offen offset:{128*p} lds", tset=f"x{p}" if g == 3 else None,
                                       tneed=f"r{p-3}" if p >= 5 and g == 0 else None)
            elif PRE: st.buffer_load_dwordx4(v(XF + 16 * p + 4 * g, 4), GA[g], X_, 0, mods=f"offen offset:{128*p}")
            else: st.buffer_load_dwordx4(v(XF + 16 * p + 4 * g, 4), GA[g], X_, sQO, mods="offen")
        if p == 7 and oi("nonl", 0): st.buffer_load_dword(vNON, "off", WS, 0, mods=f"offset:{EPOCH} sc1")
    def head(st):
        n0 = oi("xn0", 2); n1 = oi("xn1", 4)
        if XD: n0 = oi("xn0", 1); xl(-1, st)
        for p in range(n0):
            xl(p, st)
            if oi("es", 0) and not oi("esl", 0) and p == min(n0, oi("esp", 1)) - 1: early_round(st, wait=False)
        if XD: c0(st)
        srds(st, [WS, OUT])
        stamp_base(st)
        if XD: stamp(st, 62, True); stamp(st, "start"); stamp(st, "karg"); stamp(st, "xissued")
        if not oi("nonl", 0): st.buffer_load_dword(vNON, "off", WS, 0, mods=f"offset:{EPOCH} sc1")
        return n0, n1
    def block(st, post, sKH, sTP, sKZ, sGZ):
        st.s_and_b32(sKH, sM, 1); st.s_lshr_b32(sTP, sM, 1); post.s_mov_b32(sRING, 0)
        st.v_and_b32(aA, 31, vL); st.v_lshlrev_b32(aA, 10, aA); st.v_lshrrev_b32(vT, 5, vL); st.v_lshl_add_u32(aA, vT, 4, aA)
        st.s_lshl_b32(sOUTO, sC, 17); st.s_lshl_b32(sT1, sHF, 16); st.s_add_u32(sOUTO, sOUTO, sT1)
        st.s_lshl_b32(sT1, sTP, 15); st.s_add_u32(sOUTO, sOUTO, sT1); st.s_lshl_b32(sT1, sCG, 7); st.s_add_u32(sOUTO, sOUTO, sT1)
        st.s_lshl_b32(sT1, sKH, 6); st.s_add_u32(sOUTO, sOUTO, sT1)
        post.s_mov_b32(sL2E, f2u(LOG2E)); post.s_mov_b32(sONE, 0x3f803f80)
        st.s_lshl_b32(sT0, sC, 2); st.s_add_u32(sT1, sT0, sM)
        st.s_lshl_b32(sXLD, sT1, 15)
        if not XO: st.s_add_u32(sXLD, sXLD, XB)
        st.s_lshl_b32(sSTLD, sT1, 12); st.s_add_u32(sSTLD, sSTLD, ST)
        st.s_lshl_b32(sFA, sT1, 10); st.s_add_u32(sFA, sFA, FL)
        st.s_lshl_b32(sT2, sJ, 2); st.s_add_u32(sFJ, sFA, sT2)
        st.s_mul_i32(sHST, sT1, HB_TB); st.s_add_u32(sHST, sHST, HB)
        st.s_lshl_b32(sT2, sJ, 11); st.s_add_u32(sOST, sHST, sT2)
        post.s_mov_b32(s(60), 0); post.s_mov_b32(s(61), -1)
        st.s_lshl_b32(sT2, sJ, 10); st.s_add_u32(sHST, sHST, sT2)
        post.s_lshl_b32(sDUM, sFA, 1); post.s_add_u32(sDUM, sDUM, (DUMMY - 2 * FL) & 0xffffffff)
        st.s_lshl_b32(sT1, sHF, 1); st.s_add_u32(sT1, sT1, sT0); st.s_add_u32(sT1, sT1, sTP)
        st.s_lshl_b32(sT3, sCG, 1); st.s_add_u32(sT3, sT3, sKH)
        st.s_lshl_b32(sXST, sT1, 15); st.s_lshl_b32(sT2, sT3, 11); st.s_add_u32(sXST, sXST, sT2)
        if not XO: st.s_add_u32(sXST, sXST, XB)
        st.s_lshl_b32(sSTST, sT1, 12); st.s_lshl_b32(sT2, sCG, 9); st.s_add_u32(sSTST, sSTST, sT2)
        st.s_lshl_b32(sT2, sKH, 3); st.s_add_u32(sSTST, sSTST, sT2); st.s_add_u32(sSTST, sSTST, ST)
        st.s_lshl_b32(sFB, sT1, 10); st.s_add_u32(sFB, sFB, FL)
        st.s_lshl_b32(sT2, sT3, 2); st.s_add_u32(sFXST, sFB, sT2)
        st.s_lshl_b32(sT2, sKH, 10)
        st.s_mul_i32(sHLD, sT1, HB_TB); st.s_add_u32(sHLD, sHLD, sT2); st.s_add_u32(sHLD, sHLD, HB)
        if TG:
            st.s_lshl_b32(sT1, sJ, 2); st.s_add_u32(sT1, sT1, sM); st.s_mul_i32(sKVLD, sT1, 16 * TG_W); st.s_add_u32(sKVLD, sKVLD, KVP)
            st.s_mul_i32(sKVST, sC, TG_W); st.s_add_u32(sKVST, sKVST, sKVLD)
        else:
            st.s_mul_i32(sKVLD, sJ, KV_J); st.s_add_u32(sKVLD, sKVLD, KVP)
            st.s_mul_i32(sKVST, sC, KV_REC); st.s_add_u32(sKVST, sKVST, sKVLD)
            st.s_lshl_b32(sT1, sKH, 7); st.s_lshl_b32(sT2, sTP, 5); st.s_add_u32(sT1, sT1, sT2); st.s_add_u32(sKZ, sKVST, sT1); st.s_add_u32(sKZ, sKZ, 2048)
            st.s_lshl_b32(sT1, sKH, 10); st.s_lshl_b32(sT2, sTP, 6); st.s_add_u32(sT1, sT1, sT2); st.s_add_u32(sKVST, sKVST, sT1)
            st.s_lshl_b32(sT1, sM, 6); st.s_add_u32(sGZ, sKVLD, sT1); st.s_add_u32(sGZ, sGZ, 2048)
            st.s_lshl_b32(sT1, sM, 9); st.s_add_u32(sKVLD, sKVLD, sT1)
            st.s_lshl_b32(sFKVLD, sJ, 11); st.s_add_u32(sFKVLD, sFKVLD, FKV)
            st.s_lshl_b32(sT1, sC, oi("fks", 7)); st.s_lshl_b32(sT2, sM, 2); st.s_add_u32(sFKVST, sT1, sT2); st.s_add_u32(sFKVST, sFKVST, sFKVLD)
        for i in range(4): st.v_mov_b32(v(96 + i), 0)
        st.v_and_b32(vT, 3, vL); st.v_mul_u32_u24(vT, 576, vT); st.v_add_u32(vT, L_KVB + 544, vT)
        st.ds_write_b128(vT, v(96, 4))
        st.v_and_b32(vT, 112, vL16); st.v_add_u32(vT, L_SIG, vT)
        st.ds_write_b128(vT, v(96, 4))
        st.v_bfe_u32(vT, vL, 4, 1); st.v_and_b32(vU, 1, vL); st.v_cmp_eq_u32("vcc", vT, vU)
        st.v_mov_b32(vV, 0x3f803f80)
        for i in range(4): st.v_cndmask_b32(v(SELA + i), 0, vV, "vcc")
        if XD: sT0_ = sA0
        else:
            sT0_ = sT0
            st.s_lshl_b32(sT0, sM, 12); st.s_add_u32(sT0, sT0, L_PH)
            st.v_and_b32(vT, 48, vL); st.v_xor_b32(vT, vT, vL16); st.v_add_u32(aW, sT0, vT); st.v_xor_b32(g1, 64, aW)
        st.v_and_b32(vT, 31, vL); st.v_lshrrev_b32(vU, 5, vL); st.v_bfe_u32(vV, vL, 1, 3); st.v_xor_b32(vU, vU, vV)
        st.v_lshlrev_b32(vT, 7, vT); st.v_lshl_add_u32(vT, vU, 4, vT); st.v_add_u32(aRd[0], sT0_, vT)
        for i in range(1, 4): st.v_xor_b32(aRd[i], 32 * i, aRd[0])
        if XD:
            st.s_lshl_b32(sT0, sM, 9); st.s_add_u32(sKc, sA0, sT0); st.s_add_u32(sT0, sT0, 65536)
            for i in range(4): st.v_add_u32(aR4[i], sT0, aRd[i])
        lane_tr(st, vP0, None, "qkv"); ring_addr(post, "trq")
    aR4 = [v(56 + i) for i in range(4)]
    if PRE:
        B = Stream(); post = Stream()
        post.s_mov_b32(sKH, s(96)); post.s_mov_b32(sTP, s(97)); post.s_mov_b32(sKZ, s(41)); post.s_mov_b32(sGZ, s(83))
        block(B, post, s(96), s(97), s(41), s(83))
        print("block", len(B.l), file=sys.stderr)
        o = oi("prer", 0)
        if o:
            k = next(i for i, x in enumerate(B.l) if x.name == "v_mov_b32" and x.ops[0] == "v96")
            B.l = B.l[k:] + B.l[:k]; print("vector part", len(B.l) - k, file=sys.stderr)
        st.extend(B.l[:PRE]); n0, n1 = head(st); LATE = Stream(); LATE.extend(B.l[PRE:]); LATE.extend(post)
        if not oi("late", 0): st.extend(LATE); LATE = Stream()
    else:
        n0, n1 = head(st); post = Stream(); LATE = Stream()
        block(st, post, sKH, sTP, sKZ, sGZ); st.extend(post)
    def rnd(q, st):
        R = XF + 16 * q
        if XD:
            for i in range(4):
                st.ds_read_b128(v(R + 4 * i, 4), (aRd if AREA[q] < 65536 else aR4)[i], mods=f"offset:{AREA[q] % 65536}",
                                tneed=f"x{q}" if i == 0 else None, tset=f"r{q}" if i == 3 else None)
            return
        for g in range(4): st.ds_write_b128(g1 if g & 1 else aW, v(R + 4 * g, 4), mods=f"offset:{1024*g}")
        for i in range(4): st.ds_read_b128(v(R + 4 * i, 4), aRd[i])
    def smf(k, st):
        f = v(XF + 4 * k, 4)
        st.v_mfma_f32_32x32x16_bf16(v(QD, 16), f, f, "0" if k == 0 else v(QD, 16))
        st.v_mfma_f32_16x16x32_bf16(v(SA, 4), v(SELA, 4), f, "0" if k == 0 else v(SA, 4))
    def res(st):
        st.buffer_load_dwordx4(v(RES, 4), aA, X_, sOUTO, mods="offen")
        st.buffer_load_dwordx4(v(RES + 4, 4), aA, X_, sOUTO, mods="offen offset:32")
    hq = oi("hq", 8)
    if XD:
        hq = 1; n1 = oi("xn1", 5)
        for p in range(n0, n1): xl(p, st)
        stamp(st, "xiss2")
        barrier(st, "s0")
        for p in range(n1, 5): xl(p, st)
        rnd(0, st)
        for k in range(4): smf(k, st)
        rnd(1, st)
        acts = {}
        act = lambda i, f: acts.setdefault(i, []).append(f)
        rps = [int(x) for x in os_("rp", "2,8,14,28,36,44").split(",")]; xps = [int(x) for x in os_("xp", "5,11,17").split(",")]
        for b in range(2, 8): act(rps[b - 2], lambda st, b=b: rnd(b, st))
        for b in range(5, 8): act(xps[b - 5], lambda st, b=b: xl(b, st))
        for k in range(4, 32):
            last = 2 * (k - 4) + oi("sm0", 0); assert k < 8 or last > rps[k // 4 - 2]
            act(last, lambda st, k=k: smf(k, st))
        rp = 0
        stamp(st, "p1pre")
        st.wait(lgkm=0); st.l.append(Ins("s_barrier", [], tneed="c0c"))
        if G.REC: G.SEQ.append("a0")
    else:
      dcap(st, "d1")
      for p in range(n0, n1): xl(p, st)
      nl = n1; nb = oi("xnb", 8)
      dcap(st, "d2")
      rnd(0, st)
      dcap(st, "r0")
      for q in range(hq):
        if nl < nb: xl(nl, st); nl += 1
        if q < 7: rnd(q + 1, st)
        lk = oi("late", 0)
        st.extend(LATE.l[:lk]); LATE.l = LATE.l[lk:]
        if q == hq - 1: st.extend(LATE)
        if q in (0, 2, 4, 6): dcap(st, f"r{q+1}")
        for k in range(4 * q, 4 * q + 4): smf(k, st)
      while nl < nb: xl(nl, st); nl += 1
      acts = {}
      act = lambda i, f: acts.setdefault(i, []).append(f)
      for n, p in enumerate(range(nl, 8)): act(oi("xat", 0) + oi("xgap", 8) * n, lambda st, p=p: xl(p, st))
      rl = oi("rl", 2); last = 0
      for b in range(hq, 8):
        rp = max(1, 8 * (b - 1) - rl)
        if b > hq: act(rp, lambda st, b=b: rnd(b, st))
        for u in range(4):
            last = max(last + 1, (rp + oi("rs", 5) if b > hq else 0) + 2 * u)
            act(last, lambda st, k=4 * b + u: smf(k, st))
      stamp(st, "p1pre")
      dcap(st, "dp")
      barrier(st, "a0", drain=True)
      dcap(st, "da")
      stamp(st, 62, True); stamp(st, "start"); stamp(st, "karg")
      dflush(st)
    stamp(st, "B(a0)")
    bars = {oi("a1", 20): ("a1", [1])}
    f = Stream()
    M = [s(50 + 2 * i, 2) for i in range(5)]
    for i, bit in enumerate((16, 8, 2, 1)):
        f.v_and_b32(vT, bit, vL); f.v_cmp_ne_u32(M[i], 0, vT)
    f.v_bfe_u32(vT, vL, 2, 1); f.v_lshrrev_b32(vU, 5, vL); f.v_cmp_eq_u32(M[4], vT, vU)
    fm = None
    if hq < 8: fm = f; f = Stream()
    f.v_cndmask_b32(v(SA), v(SA), v(SA + 1), M[0])
    for i in range(8): f.v_cndmask_b32(v(QD + i), v(QD + i), v(QD + 8 + i), M[0])
    for i in range(4): f.v_cndmask_b32(v(QD + i), v(QD + i), v(QD + 4 + i), M[1])
    for i in range(2): f.v_cndmask_b32(v(QD + i), v(QD + i), v(QD + 2 + i), M[2])
    f.v_cndmask_b32(v(QD), v(QD), v(QD + 1), M[3])
    f.v_cndmask_b32(v(QD), 0, v(QD), M[4])
    fin_stats(f, v(SA), v(QD), None, v(QD + 1), NM, RS, VE)
    f.v_mul_f32(LR, sL2E, RS)
    g = Stream(); k_addr(g)
    g2 = g if hq == 8 else Stream()
    lane_tr(g2, vP1, None, "nat")
    g2.s_lshl_b32(sT2, sKH, 6); g2.v_xor_b32(vP1, sT2, vP1); g2.s_lshl_b32(sT2, sKH, 11); g2.v_add_u32(vP1, sT2, vP1)
    fill = Filler()
    r0 = oi("res0", 24)
    if hq == 8:
        act(2, lambda st: fill.add(f)); act(r0, res); act(r0 + 1, lambda st: fill.add(g))
    else:
        act(oi("gat", 1), lambda st: (fill.add(g2), fill.add(fm))); act(max(r0, 25), res)
        act(max(rp + 1, 26), lambda st: fill.add(g)); act(last + 3, lambda st: fill.add(f))
    hooks = {i: (lambda st, l=l: [f(st) for f in l]) for i, l in acts.items()}
    gemm(st, kv_items(), "trq", AF1, 6, 5, ready=[0], bars=bars, hooks=hooks, fill=fill, budget=oi("bud10", 8), pairw=oi("pw1", 0))
    fill.flush(st)
    st.v_add_u32(vNON, 1, vNON)
    st.v_mov_b32(v(125), 1); sigwait(st, 12, 32, cmp="gt")
    k_reads(st)
    st.v_readfirstlane_b32(sNONCE, vNON)
    signal(st, 2, 32)
    st.s_add_u32(sH5, sHST, 16384 * 5); st.s_add_u32(sF5, sDUM, 1024)
    st.s_cmp_eq_u32(sT6, 1); st.s_cselect_b32(sH5, sH5, sDUM); st.s_cselect_b32(sF5, sFJ, sF5)
    stamp(st, "KVgemm")

def frag_loads(base, regs, stride, per, WS=WS):
    out = []
    for k, r in enumerate(regs):
        def f(st, k=k, r=r):
            if k % per == 0: st.s_add_u32(sLD, base, k * stride)
            st.buffer_load_dwordx4(v(r, 4), vL16, WS, sLD, mods=f"offen offset:{(k % per) * stride} {SCL}")
        out.append(f)
    return out

def x_addr(st):
    st.v_lshrrev_b32(vV, 5, vL); st.v_lshlrev_b32(vV, 11, vV); st.v_and_b32(vU, 31, vL); st.v_lshl_add_u32(vV, vU, 4, vV)
def p1a_pre(st):
    ring_next(st, "trq"); x_addr(st)
def p3_pre(st):
    st.v_and_b32(vU, 31, vL); st.v_lshlrev_b32(aCS3, 2, vU); st.v_add_u32(aCS3, L_CS + 3 * 128, aCS3)
    ring_next(st, "b128"); x_addr(st)
    st.s_add_u32(sT0, sRING, 0x10000); st.s_and_b32(sT0, sT0, 0x1ffff); st.v_add_u32(vA1, sT0, vL16)
    st.s_lshl_b32(sT0, sM, 12); st.s_add_u32(sT0, sT0, L_PH); st.v_add_u32(aXW, sT0, vL16)
def x_loads(st, stt, at=32):
    L = frag_loads(sXLD, [XF + 4 * k for k in range(32)], 1024, 4, XS)
    def stl(st):
        for i in range(4):
            st.buffer_load_dwordx4(v(stt + 4 * i, 4), vV, WS, sSTLD, mods=f"offen offset:{512*i} {SCL}")
    return L[:at] + [stl] + L[at:]

def featmap(st, acc, kb, wp, e1, e2, lr, mid=None, hk=None):
    n0 = len(st.l)
    featmap_(st, acc, kb, wp, e1, e2, lr, mid)
    for at in sorted(hk or {}, reverse=True):
        x = Stream(); hk[at](x); st.l[n0 + at:n0 + at] = x.l
def featmap_(st, acc, kb, wp, e1, e2, lr, mid=None):
    for i in range(8): st.v_cvt_pk_bf16_f32(v(kb + i), v(acc + 2 * i), v(acc + 2 * i + 1))
    st.v_mfma_f32_32x32x16_bf16(v(acc, 16), v(wp, 4), v(kb, 4), "0")
    st.v_mfma_f32_32x32x16_bf16(v(acc, 16), v(wp + 4, 4), v(kb + 4, 4), v(acc, 16))
    if mid: mid(st)
    mx, mn = v(kb), v(kb + 1)
    p = lambda i: v(acc + i)
    st.v_max3_f32(mx, p(0), p(1), p(2)); st.v_min3_f32(mn, p(0), p(1), p(2))
    for i in range(3, 15, 2):
        st.v_max3_f32(mx, mx, p(i), p(i + 1)); st.v_min3_f32(mn, mn, p(i), p(i + 1))
    st.v_max_f32(mx, mx, p(15)); st.v_min_f32(mn, mn, p(15))
    pk(st, "mul", kb, bc(lr), kb)
    for i in range(0, 16, 2):
        pk(st, "fma", e1 + i, acc + i, bc(lr), bc(kb, True)); pk(st, "fma", e2 + i, ng(acc + i), bc(lr), bc(kb + 1))
    for i in range(16):
        st.v_exp_f32(v(e1 + i), v(e1 + i)); st.v_exp_f32(v(e2 + i), v(e2 + i))
    s1, s2 = kb + 2, kb + 4
    pk(st, "add", s1, e1, e1 + 2); pk(st, "add", s2, e2, e2 + 2)
    for i in range(4, 16, 2):
        pk(st, "add", s1, s1, e1 + i); pk(st, "add", s2, s2, e2 + i)
    st.v_add_f32(v(s1), v(s1), v(s1 + 1)); st.v_add_f32(v(s2), v(s2), v(s2 + 1))
    st.v_rcp_f32(v(s1), v(s1)); st.v_rcp_f32(v(s2), v(s2))
    for i in range(0, 16, 2):
        pk(st, "mul", e1 + i, bc(s1), e1 + i); pk(st, "mul", e2 + i, bc(s2), e2 + i)
    for i in range(8):
        st.v_cvt_pk_bf16_f32(v(e1 + i), v(e1 + 2 * i), v(e1 + 2 * i + 1))
        st.v_cvt_pk_bf16_f32(v(e2 + i), v(e2 + 2 * i), v(e2 + 2 * i + 1))

def p1a(st):
    at = oi("st1", 22)
    L = x_loads(st, STT, at)
    stamp(st, "p1pre")
    poll2(st, vFL, sFA, 0, oi("gfx", -1))
    stamp(st, "FXpoll")
    pre = oi("pre1", 10)
    for f in L[:pre]: f(st)
    nxt(st)
    barrier(st, "a0")
    stamp(st, "B(a0)")
    fill = Filler()
    f = Stream(); stats(f, STT, NM, RS, VE); f.v_mul_f32(LR, sL2E, RS); k_reads(f, "v")
    g = Stream(); k_addr(g); k_reads(g, "wk")
    hooks = {2: lambda st: fill.add(g), oi("sth1", 2 * at + 2): lambda st: fill.add(f)}
    gemm(st, kv_items(), "trq", AF1, 6, 5, ready=[0], bars={oi("a1", 20): ("a1", [1]), oi("a2", 56): ("a2", [])}, loads=L[pre:], pre=0,
         hooks=hooks, fill=fill, budget=oi("bud1", 8), pairw=oi("pw1", 0))
    fill.flush(st)
    stamp(st, "KVgemm")

def gather_flagged(st, AF, aPL, aGZ, aGK, XT):
    ep = [int(x) for x in os_("kvp", "").split(",") if x]
    featmap(st, aQ, AF, WPH, aK, aV, LR, hk={a: (lambda x, r=r: pload(x, r, aPL, sFKVLD)) for a, r in zip(ep, (PRA, PRB))})
    stamp(st, "Q done")
    if OPT.get("dcap") == "2": st.wait(vm=0); dcap(st, "kf2", reg=126)
    poll2(st, aPL, sFKVLD, 0, oi("gkv", -1), len(ep))
    dflush(st)
    stamp(st, "FKVpoll")
    Gr, Z, SG, GA = XF, XF + 64, XF + 32, XF + 48
    nt = os_("gm", "sc1").replace("+", " ").replace("-", "")
    for cc in range(8):
        if cc: st.s_add_u32(sT0, sKVLD, 2 * cc * KV_REC)
        st.buffer_load_dwordx4(v(Gr + 4 * cc, 4), aGK, WS, sT0 if cc else sKVLD, mods="offen " + nt)
    for i in range(4):
        if i: st.s_add_u32(sT1, sGZ, 4 * i * KV_REC)
        st.buffer_load_dword(v(Z + i), aGZ, WS, sT1 if i else sGZ, mods="offen " + nt)
    if G.TAG == "f":
        st.s_lshl_b32(sT2, sC, 7); st.s_add_u32(sT2, sT2, XCCT)
        st.buffer_load_dword(XT, vFL, WS, sT2, mods="offen sc1")
        if oi("gsig", 0): signal(st, 1, 64)
    nxt(st)
    st.s_mul_i32(sT0, sM, 576); st.s_add_u32(sT0, sT0, L_KVB)
    st.v_and_b32(vT, 31, vL)
    st.v_and_b32(vU, 1, vL); st.v_lshlrev_b32(vU, 4, vU); st.v_mov_b32(vV, 0x3f80); st.v_lshlrev_b32(vU, vU, vV); st.v_lshrrev_b32(vV, 1, vT)
    for i in range(4):
        st.v_cmp_eq_u32("vcc", i, vV); st.v_cndmask_b32(v(SG + i), 0, vU, "vcc")
    st.v_lshlrev_b32(vT, 4, vT)
    st.v_lshrrev_b32(vU, 5, vL)
    st.v_lshl_add_u32(aA, vU, 3, vT); st.v_add_u32(aA, sT0, aA)
    st.v_lshrrev_b32(aB, 1, vFL); st.v_add_u32(aB, sT0, aB)
    st.v_bfe_u32(vV, vL, 2, 1); st.v_cmp_eq_u32("vcc", vV, vU)
    st.v_mov_b32(vV, 544); st.v_cndmask_b32(vT, vV, vT, "vcc"); st.v_add_u32(aR1, L_KVB, vT)
    st.v_lshlrev_b32(vU, 4, vU); st.v_add_u32(aR2, L_KVB + 512, vU)
    for cc in range(8):
        st.v_mfma_f32_32x32x16_bf16(v(GA, 16), v(SG, 4), v(Gr + 4 * cc, 4), "0" if cc == 0 else v(GA, 16))
    st.v_add_f32(v(Z), v(Z), v(Z + 1)); st.v_add_f32(v(Z + 2), v(Z + 2), v(Z + 3)); st.v_add_f32(v(Z), v(Z), v(Z + 2))
    st.v_mov_b32(v(Z + 1), v(Z)); st.v_permlane32_swap_b32(v(Z), v(Z + 1)); st.v_add_f32(v(Z), v(Z), v(Z + 1))
    st.v_mov_b32(v(Z + 1), v(Z)); st.v_permlane16_swap_b32(v(Z), v(Z + 1)); st.v_add_f32(v(Z), v(Z), v(Z + 1))
    st.v_cvt_pk_bf16_f32(v(Z), v(Z), v(Z))
    st.ds_write_b16(aB, v(Z), mods="offset:512")
    st.v_cvt_pk_bf16_f32(v(GA), v(GA), v(GA + 1)); st.v_cvt_pk_bf16_f32(v(GA + 1), v(GA + 2), v(GA + 3))
    st.ds_write_b64(aA, v(GA, 2))

def gather_tagged(st, AF, aPL, aGK, XT):
    Gr, SG, GA, ZS, ER = XF, XF + 64, XF + 68, v(XF + 73), v(XF + 74)
    aZ = v(XF + 75)
    nt = os_("gm", "sc1").replace("+", " ").replace("-", "")
    sTG = sT3
    def ld(st, c, base=False):
        if (c % 4 == 0 or base) and c >= 4: st.s_add_u32(sT0, sKVLD, c // 4 * 4 * TG_W)
        st.buffer_load_dwordx4(v(Gr + 4 * c, 4), aGK, WS, sT0 if c >= 4 else sKVLD, mods=f"offen offset:{c % 4 * TG_W} " + nt)
        if c == 15 and G.TAG == "f" and not base:
            st.s_lshl_b32(sT2, sC, 7); st.s_add_u32(sT2, sT2, XCCT)
            st.buffer_load_dword(XT, vFL, WS, sT2, mods="offen sc1")
    at = oi("tga", 40); gs = oi("tgs", 3)
    tmp = Stream(); featmap_(tmp, aQ, AF, WPH, aK, aV, LR); nf = len(tmp.l)
    hk = {}
    for c in range(16):
        if at + gs * c < nf: hk.setdefault(at + gs * c, []).append(c)
    done = sum(hk.values(), [])
    featmap(st, aQ, AF, WPH, aK, aV, LR, hk={k: (lambda x, l=l: [ld(x, c) for c in l]) for k, l in hk.items()})
    stamp(st, "Q done")
    st.s_and_b32(sTG, sNONCE, TGM)
    for c in range(16):
        if c not in done: ld(st, c)
    stamp(st, "FKVpoll")
    st.v_and_b32(vU, 1, vL); st.v_lshlrev_b32(vU, 4, vU); st.v_mov_b32(vV, 0x3f80); st.v_lshlrev_b32(vU, vU, vV)
    st.v_bfe_u32(vT, vL, 2, 2); st.v_bfe_u32(vV, vL, 1, 1); st.v_cmp_eq_u32("vcc", 3, vT)
    st.v_cndmask_b32(vT, vT, vV, "vcc"); st.v_cndmask_b32(vV, vV, 2, "vcc")
    st.v_lshrrev_b32(ER, 4, vL); st.v_cmp_eq_u32("vcc", vT, ER); st.v_cndmask_b32(vU, 0, vU, "vcc")
    for i in range(3):
        st.v_cmp_eq_u32("vcc", i, vV); st.v_cndmask_b32(v(SG + i), 0, vU, "vcc")
    st.v_mov_b32(v(SG + 3), 0)
    st.s_mul_i32(sT0, sKH, 2 * 576); st.s_add_u32(sT0, sT0, L_KVB); st.s_lshl_b32(sT1, sTP, 6); st.s_add_u32(sT1, sT1, sT0)
    st.v_lshrrev_b32(vU, 5, vL); st.v_mul_u32_u24(aA, 576, vU); st.v_bfe_u32(vT, vL, 2, 2); st.v_lshl_add_u32(aA, vT, 7, aA)
    st.v_and_b32(vT, 3, vL); st.v_lshl_add_u32(aA, vT, 4, aA); st.v_bfe_u32(vT, vL, 4, 1); st.v_lshl_add_u32(aA, vT, 3, aA); st.v_add_u32(aA, sT1, aA)
    st.s_lshl_b32(sT1, sTP, 4); st.s_add_u32(sT1, sT1, sT0); st.s_add_u32(sT1, sT1, 512)
    st.v_bfe_u32(vT, vL, 3, 1); st.v_mul_u32_u24(aZ, 576, vT); st.v_and_b32(vT, 7, vL); st.v_lshl_add_u32(aZ, vT, 1, aZ); st.v_add_u32(aZ, sT1, aZ)
    st.v_mov_b32(vV, L_KVB + 560); st.v_cmp_gt_u32("vcc", 32, vL); st.v_cndmask_b32(aZ, aZ, vV, "vcc")
    st.v_and_b32(vT, 31, vL); st.v_lshlrev_b32(vT, 4, vT)
    st.v_bfe_u32(vV, vL, 2, 1); st.v_cmp_eq_u32("vcc", vV, vU)
    st.v_mov_b32(vV, 544); st.v_cndmask_b32(vT, vV, vT, "vcc"); st.v_add_u32(aR2, L_KVB, vT)
    V, X, D = newlab("kvv"), newlab("kvx"), newlab("kvd")
    st.label(V)
    for c in range(16):
        g = Gr + 4 * c
        st.v_dot2_f32_bf16(ZS, v(g + 2), sONE, 0 if c == 0 else ZS)
        if c == 0: st.v_xor_b32(ER, sTG, v(g + 3))
        else: st.v_xor_b32(vT, sTG, v(g + 3)); st.v_or_b32(ER, vT, ER)
        st.v_mfma_f32_16x16x32_bf16(v(GA, 4), v(SG, 4), v(g, 4), "0" if c == 0 else v(GA, 4))
    st.v_cmp_ne_u32("vcc", 0, ER)
    st.s_cbranch_vccnz(X)
    st.label(D)
    OOL.label(X); OOL.mark("reset")
    OOL.s_sub_u32(sCNT, sCNT, 1); OOL.s_cselect_b32(sCNT, 0, sCNT); OOL.s_cbranch_scc1(D)
    OOL.s_mov_b32(sT1, 0)
    for c in range(16):
        K = newlab("kvk")
        OOL.v_cmp_ne_u32("vcc", sTG, v(Gr + 4 * c + 3))
        OOL.s_cbranch_vccz(K)
        ld(OOL, c, True); OOL.s_mov_b32(sT1, 1)
        OOL.label(K); OOL.mark("reset")
    OOL.wait(vm=0)
    for _ in range(oi("tgb", 0)): OOL.s_nop(15)
    OOL.s_cmp_lg_u32(sT1, 0); OOL.s_cbranch_scc1(X)
    OOL.s_branch(V)
    nxt(st)
    st.v_mov_b32(aR1, aR2)
    st.v_lshrrev_b32(vU, 5, vL); st.v_lshlrev_b32(vU, 4, vU); st.v_add_u32(aR2, L_KVB + 512, vU)
    st.v_cvt_pk_bf16_f32(ZS, ZS, ZS)
    st.ds_write_b16(aZ, ZS)
    st.v_cvt_pk_bf16_f32(v(GA), v(GA), v(GA + 1)); st.v_cvt_pk_bf16_f32(v(GA + 1), v(GA + 2), v(GA + 3))
    st.ds_write_b64(aA, v(GA, 2))

def p1b(st):
    AF = AF1
    for i in range(0, 16, 2): pk(st, "fma", aK + i, CK + i, bc(NM), aK + i)
    def vpart(st):
        for i in range(0, 16, 2): pk(st, "fma", aV + i, CV + i, bc(NM), aV + i)
        for i in range(0, 16, 2): pk(st, "mul", aV + i, bc(RS), aV + i)
        for i in range(8): st.v_cvt_pk_bf16_f32(v(aV + i), v(aV + 2 * i), v(aV + 2 * i + 1))
        st.ds_write_b128(aB, v(aV, 4)); st.ds_write_b128(aB, v(aV + 4, 4), mods="offset:16")
    featmap(st, aK, AF, WPH, STT, aQ, LR, mid=vpart)
    st.ds_write_b128(aA, v(STT, 4)); st.ds_write_b128(aA, v(STT + 4, 4), mods="offset:16")
    st.ds_write_b128(aA, v(aQ, 4), mods="offset:32"); st.ds_write_b128(aA, v(aQ + 4, 4), mods="offset:48")
    signal(st)
    TA, TB, ONE, AKV, AZ = 16, 32, 96, 100, 104
    def shadow(st):
        st.v_lshrrev_b32(vT, 4, vL); st.v_lshlrev_b32(vT, 3, vT); st.v_bfe_u32(vU, vL, 2, 2); st.v_add_u32(vT, vT, vU)
        st.v_and_b32(vU, 3, vL); st.v_lshlrev_b32(vU, 3, vU)
        st.s_lshl_b32(sT0, sM, 5); st.s_add_u32(sT0, sT0, L_PH)
        st.v_mul_u32_u24(aR1, 144, vT); st.v_add3_u32(aR1, aR1, vU, sT0)
        st.s_lshl_b32(sT0, sTP, 5); st.s_add_u32(sT0, sT0, L_VB)
        st.v_mul_u32_u24(aR2, 80, vT); st.v_add3_u32(aR2, aR2, vU, sT0)
        ring_next(st, "trq")
    SPL = oi("spl", 1)
    sigwait(st, 12 if SPL else 28, extra=shadow)
    stamp(st, "Kepi+B")
    def kvpart(st):
        for k in range(4):
            for q in range(2):
                st.ds_read_b64_tr_b16(v(TA + 4 * k + 2 * q, 2), aR1, mods=f"offset:{(32*k+4*q)*144}")
                st.ds_read_b64_tr_b16(v(TB + 4 * k + 2 * q, 2), aR2, mods=f"offset:{(32*k+4*q)*80}")
        for i in range(4): st.v_mov_b32(v(ONE + i), sONE)
        if TG:
            for k in range(4):
                st.v_mfma_f32_16x16x32_bf16(v(AZ, 4), v(ONE, 4), v(TA + 4 * k, 4), "0" if k == 0 else v(AZ, 4))
                st.v_mfma_f32_16x16x32_bf16(v(AKV, 4), v(TA + 4 * k, 4), v(TB + 4 * k, 4), "0" if k == 0 else v(AKV, 4))
            P = 108
            st.v_and_b32(v(P + 3), TGM, vNON)
            st.v_and_b32(v(AZ + 1), 0xffff0000, v(AZ)); st.v_sub_f32(v(AZ), v(AZ), v(AZ + 1)); st.v_cvt_pk_bf16_f32(v(P + 2), v(AZ + 1), v(AZ))
            st.v_cvt_pk_bf16_f32(v(AZ + 2), v(AKV), v(AKV + 1)); st.v_cvt_pk_bf16_f32(v(AZ + 3), v(AKV + 2), v(AKV + 3))
            st.v_cvt_pk_bf16_f32(v(P), v(AKV), v(AKV + 1)); st.v_cvt_pk_bf16_f32(v(P + 1), v(AKV + 2), v(AKV + 3))
            st.v_permlane16_swap_b32(v(AZ + 2), v(AZ + 3)); st.v_permlane32_swap_b32(v(AZ + 3), v(P + 2))
            st.s_mov_b32("exec_hi", 0xffff)
            st.buffer_store_dwordx4(v(P, 4), vL16, WS, sKVST, mods="offen " + os_("km", "sc1").replace("+", " "), tset="kv")
            st.s_mov_b32("exec_hi", -1)
        else:
            st.v_lshrrev_b32(vT, 5, vL); st.v_lshlrev_b32(vV, 9, vT); st.v_bfe_u32(vU, vL, 4, 1); st.v_lshl_add_u32(vV, vU, 3, vV)
            st.v_lshlrev_b32(vT, 6, vT); st.v_lshl_add_u32(vT, vU, 4, vT)
            st.v_bfe_u32(vU, vL, 2, 2); st.v_lshl_add_u32(vV, vU, 7, vV); st.v_and_b32(vU, 3, vL); st.v_lshl_add_u32(vV, vU, 4, vV)
            for k in range(4):
                st.v_mfma_f32_16x16x32_bf16(v(AKV, 4), v(TA + 4 * k, 4), v(TB + 4 * k, 4), "0" if k == 0 else v(AKV, 4))
                st.v_mfma_f32_16x16x32_bf16(v(AZ, 4), v(TA + 4 * k, 4), v(ONE, 4), "0" if k == 0 else v(AZ, 4))
            st.v_cvt_pk_bf16_f32(v(AKV), v(AKV), v(AKV + 1)); st.v_cvt_pk_bf16_f32(v(AKV + 1), v(AKV + 2), v(AKV + 3))
            st.buffer_store_dwordx2(v(AKV, 2), vV, WS, sKVST, mods="offen sc1")
            st.buffer_store_dwordx4(v(AZ, 4), vT, WS, sKZ, mods="offen sc1", tset="kv")
    if SPL: sigwait(st, 12, 16, extra=kvpart)
    else: kvpart(st)
    stamp(st, "kv st")
    items = []
    for k in range(16):
        for t in range(2):
            items.append(dict(chunk=0, off=k * 2048, t=t, acc=aQ, b=XF + 4 * (k + 16 * t), first=(k, t) == (0, 0)))
    def kvflag(st):
        dcap(st, "kf0", reg=124)
        st.buffer_store_dword(vNON, "off", WS, sFKVST, mods="sc1", tneed="kv")
        dcap(st, "kf1", reg=125)
    CS = 16
    aPL, aGZ, aGK = aR1, aR2, aB
    f = Stream()
    for i in range(4): f.ds_read_b128(v(CS + 4 * i, 4), aCS, mods=f"offset:{256+16*i}")
    if TG:
        f.v_and_b32(aPL, 15, vL); f.v_mul_u32_u24(aPL, TG_W, aPL)
        f.v_subrev_u32(vU, 256, vL16); f.v_cmp_gt_u32("vcc", 48, vL); f.v_cndmask_b32(aGK, vU, vL16, "vcc")
    else:
        f.v_lshrrev_b32(aPL, 2, vL); f.v_lshlrev_b32(aPL, oi("fks", 7), aPL); f.v_and_b32(vU, 3, vL); f.v_lshl_add_u32(aPL, vU, 2, aPL)
        f.v_lshrrev_b32(aGZ, 4, vL); f.v_mul_u32_u24(aGZ, KV_REC, aGZ); f.v_add_u32(aGZ, aGZ, vFL)
        f.v_lshrrev_b32(aGK, 5, vL); f.v_mul_u32_u24(aGK, KV_REC - 512, aGK); f.v_add_u32(aGK, aGK, vL16)
    fill = Filler()
    gemm(st, items, "trq", AF, 6, 5, ready=[0], hooks={4: lambda st: fill.add(f)} if TG else {4: lambda st: fill.add(f), oi("kvflag", 24): kvflag}, fill=fill, budget=8, pairw=oi("pwq", 0))
    fill.flush(st)
    stamp(st, "Qgemm")
    for i in range(0, 16, 2): pk(st, "fma", aQ + i, CS + i, bc(NM), aQ + i)
    XT = v(XF + 72)
    if TG: gather_tagged(st, AF, aPL, aGK, XT)
    else: gather_flagged(st, AF, aPL, aGZ, aGK, XT)
    if G.TAG == "f":
        OK = newlab("xok"); L = newlab("xpoll"); D = newlab("xdec")
        st.s_cmp_lg_u32(sPAIR, 0)
        st.mark("save", OK)
        st.s_cbranch_scc1(OK)
        st.s_add_u32(sT0, sNONCE, 14); st.s_add_u32(sT1, sT0, sXC)
        st.v_cmp_ne_u32("vcc", sT1, XT)
        if not OPT.get("slow"): st.s_cbranch_vccz(OK)
        st.label(L)
        st.buffer_load_dword(XT, vFL, WS, sT2, mods="offen sc1")
        st.wait(vm=0)
        st.v_subrev_u32(vT, sT0, XT)
        st.v_cmp_le_u32("vcc", 16, vT)
        st.s_cbranch_vccz(D)
        st.s_sub_u32(sCNT, sCNT, 1)
        st.s_cbranch_scc0(L)
        st.s_mov_b32(sCNT, 0)
        st.label(D)
        st.v_cmp_ne_u32("vcc", sT1, XT)
        st.mark("save", "toslow")
        if OPT.get("slow"): st.s_branch(".Lg_s")
        else: st.s_cbranch_vccnz(".Lg_s")
        st.mark("merge", OK)
        st.label(OK)
    else:
        st.mark("merge", "toslow")
        st.label(".Lg_s")
    barrier(st, "g", drain=True)
    stamp(st, "gather+B")

def p1c(st):
    PHQ = [aK, aK + 4, aV, aV + 4]
    KA, ZA, NUM, DEN = XF, XF + 16, 48, v(64)
    for u in range(4): st.ds_read_b128(v(KA + 4 * u, 4), aR1, mods=f"offset:{576*u}")
    for u in range(4): st.ds_read_b128(v(ZA + 4 * u, 4), aR2, mods=f"offset:{576*u}")
    st.v_mov_b32(DEN, f2u(1e-6)); st.v_mov_b32(v(65), 0)
    st.v_lshrrev_b32(vU, 5, vL); st.v_lshl_add_u32(aA, vU, 9, vL16)
    for u in range(4):
        st.v_mfma_f32_32x32x16_bf16(v(NUM, 16), v(KA + 4 * u, 4), v(PHQ[u], 4), "0" if u == 0 else v(NUM, 16))
        for i in range(4):
            dd = DEN if i % 2 == 0 else v(65)
            st.v_dot2_f32_bf16(dd, v(PHQ[u] + i), v(ZA + 4 * u + i), dd)
    st.v_add_f32(DEN, DEN, v(65))
    st.v_rcp_f32(DEN, DEN)
    for i in range(0, 16, 2): pk(st, "mul", NUM + i, bc(DEN), NUM + i)
    for i in range(8): st.v_cvt_pk_bf16_f32(v(NUM + i), v(NUM + 2 * i), v(NUM + 2 * i + 1))
    st.buffer_store_dwordx4(v(NUM, 4), aA, WS, sOST, mods=f"offen {G.SC}")
    st.buffer_store_dwordx4(v(NUM + 4, 4), aA, WS, sOST, mods=f"offen offset:512 {G.SC}", tset="o")
    ring_next(st, "trn")
    res_init(st, 16)
    st.s_lshl_b32(sT0, sM, 12); st.s_add_u32(sT0, sT0, L_PH); st.v_add_u32(aXW, sT0, vL16)
    st.buffer_store_dword(vNON, "off", WS, sFJ, mods=f"offset:128 {G.SC}", tneed="o")
    if TG:
        for r in (sKVST, sKVLD): st.s_add_u32(r, r, TG_P)
        return
    for r in (sKVST, sKVLD, sKZ, sGZ): st.s_add_u32(r, r, KV_P)
    fp = 16 if oi("fkw", 1) else 256 * 128
    st.s_add_u32(sFKVST, sFKVST, fp); st.s_add_u32(sFKVLD, sFKVLD, fp)

def small_items(nsteps, breg, accs=(16, 32)):
    items = []
    for k in range(nsteps):
        for t in ((1, 0) if k == nsteps - 1 else (0, 1)):
            items.append(dict(chunk=k // 8, off=(k % 8) * 4096, t=t, acc=accs[t], b=breg(k), first=k == 0 and t == 1))
    return items
def res_init(st, a):
    for i in range(8):
        st.v_lshlrev_b32(v(a + 2 * i), 16, v(RES + i)); st.v_and_b32(v(a + 2 * i + 1), 0xffff0000, v(RES + i))

def xepi(st, last):
    aB_, T, P = (96, 48, 16) if last else (32, 16, 48)
    aX = aXW
    for i in range(4): st.ds_write_b128(aX, v(aB_ + 4 * i, 4), mods=f"offset:{1024*i}")
    st.v_xor_b32(aX, 4096, aX)
    barrier(st, "X4" if last else "X2", drain=True)
    for i in range(4): st.ds_read_b128(v(P + 4 * i, 4), aX, mods=f"offset:{1024*i}")
    st.v_and_b32(aX, 31, vL); st.v_lshlrev_b32(aX, 4, aX); st.v_lshrrev_b32(vT, 5, vL); st.v_lshl_add_u32(aX, vT, 2, aX)
    for i in range(4):
        for k in (4 * i, 4 * i + 2): pk(st, "add", T + k, T + k, P + k)
        for k in (2 * i, 2 * i + 1): st.v_cvt_pk_bf16_f32(v(RES + k), v(T + 2 * k), v(T + 2 * k + 1))
    LF = newlab("fin")
    if last:
        st.mark("save", LF)
        st.s_cmp_eq_u32(sPAIR, 1); st.s_cbranch_scc1(LF)
    st.buffer_store_dwordx4(v(RES, 4), vL16, XS, sXST, mods=f"offen {G.SC}")
    st.buffer_store_dwordx4(v(RES + 4, 4), vL16, XS, sXST, mods=f"offen offset:1024 {G.SC}")
    S, Q, S2, Q2 = v(T), v(T + 1), v(T + 2), v(T + 3)
    st.v_dot2_f32_bf16(S, v(RES), sONE, 0); st.v_dot2_f32_bf16(Q, v(RES), v(RES), 0)
    st.v_dot2_f32_bf16(S2, v(RES + 1), sONE, 0); st.v_dot2_f32_bf16(Q2, v(RES + 1), v(RES + 1), 0)
    for i in range(2, 8, 2):
        st.v_dot2_f32_bf16(S, v(RES + i), sONE, S); st.v_dot2_f32_bf16(Q, v(RES + i), v(RES + i), Q)
        st.v_dot2_f32_bf16(S2, v(RES + i + 1), sONE, S2); st.v_dot2_f32_bf16(Q2, v(RES + i + 1), v(RES + i + 1), Q2)
    pk(st, "add", T, T, T + 2)
    st.v_permlane32_swap_b32(S, Q); st.v_add_f32(S, S, Q)
    st.buffer_store_dword(S, aX, WS, sSTST, mods=f"offen {G.SC}", tset="x")
    (p1a_pre if last else p3_pre)(st)
    st.buffer_store_dword(vNON, "off", WS, sFXST, mods=G.SC, tneed="x")
    if last:
        st.s_mov_b32(sPAIR, 1)
        st.s_branch(f".Lpair_{G.TAG}")
        st.label(LF); st.mark("restore", LF)
        st.v_and_b32(aX, 31, vL); st.v_lshlrev_b32(aX, 10, aX); st.v_lshrrev_b32(vT, 5, vL); st.v_lshl_add_u32(aX, vT, 4, aX)
        om = os_("om", "").replace("+", " ")
        st.buffer_store_dwordx4(v(RES, 4), aX, OUT, sOUTO, mods="offen " + om)
        st.buffer_store_dwordx4(v(RES + 4, 4), aX, OUT, sOUTO, mods="offen offset:32 " + om)

def p2(st):
    stamp(st, "o stored")
    poll2(st, vFL, sFB, 128, oi("gfo", -1))
    stamp(st, "FOpoll")
    L = frag_loads(sHLD, [XF + 4 * k for k in range(16)], 2048, 2)
    gemm(st, small_items(16, lambda k: XF + 4 * k), "trn", 48, 6, 5, ready=[0, 1], loads=L, pre=oi("pre2", 10), hooks={1: nxt}, pairw=oi("pw2", 0),
         bars={oi("p2a", 12): ("p2", [])} if oi("p2a", 12) else None)
    stamp(st, "P2gemm")
    xepi(st, False)

def stream(st, items, af, nslots, depth, hooks, fill, budget, watch=None, slots=None, gw=1):
    n = len(items); nr = 0
    gemm_n[0] += 1; tg = f"g{gemm_n[0]}_"
    G_ = (lambda i: gw) if not callable(gw) else gw
    def pump(upto):
        nonlocal nr
        while nr < n and nr <= upto:
            items[nr]["rd"](st, af + 4 * (nr % nslots)); st.l[-1].dst = st.l[-1].dst | {("t", tg + str(nr))}; nr += 1
    pump(depth - 1)
    nextw = 0; err = 0.0
    for i in range(n):
        it = items[i]
        acc = v(it["acc"], 16)
        tn = None
        if i == nextw:
            nextw = i + G_(i); tn = tg + str(min(nextw, nr) - 1)
        st.v_mfma_f32_32x32x16_bf16(acc, v(af + 4 * (i % nslots), 4), v(it["b"], 4), "0" if it["first"] else acc, tneed=tn)
        if tn and it.get("b2"): st.l[-1].src = st.l[-1].src | regs_of(v(it["b2"], 4))
        n0 = len(st.l)
        for h in hooks.get(i, []): h(st)
        pump(i + depth)
        if slots:
            used = 1 + sum(cost(x) for x in st.l[n0:]) // 4 + (1 if i + 1 == nextw else 0)
            room = slots(i) - used + err
            n1 = len(st.l)
            if room >= 1: fill.take(st, 4 * int(room))
            took = sum(cost(x) for x in st.l[n1:]) // 4
            err = max(-1.0, min(1.0, room - took)) if fill.q else 0.0
        else: fill.take(st, budget(i))
        if watch: watch(i, st.l[n0:])
    assert not fill.q

C1 = -2.0 * math.sqrt(2.0 / math.pi) * LOG2E
def p34(st):
    A = [16, 32, 48, 96]; AF = 64; NMP = 88; DEPTH = oi("dep", 5)
    K1, K3, VE3, NM3 = v(92), v(93), v(94), v(95)
    at = oi("st3", 20)
    L = x_loads(st, STT, at)
    stamp(st, "x stored")
    poll2(st, vFL, sFA, 0, oi("gf2", -1))
    stamp(st, "FXpoll2")
    pre = oi("pre3", 10)
    for f in L[:pre]: f(st)
    nxt(st)
    barrier(st, "30")
    stamp(st, "B(30)")
    items = []; hooks = {}
    def hk(i, f): hooks.setdefault(i, []).append(f)
    def wide(a, off, step=0):
        def rd(st, r):
            if step:
                st.s_add_u32(sRING, sRING, 0x8000 * step); st.s_and_b32(sRING, sRING, 0x1ffff); st.v_add_u32(vA0, sRING, vL16)
            st.ds_read_b128(v(r, 4), a, mods=f"offset:{off}")
        return rd
    def mean(r):
        return dict(rd=lambda st, q: st.ds_read_b32(v(q), aCS3, mods=f"offset:{128*r}"), acc=A[r % 4], b=NMP, first=False)
    n2 = oi("n2", 10); k2 = 0; end = {}; use = {}
    def t2(k): return dict(rd=wide(vA1, k * 1024), acc=A[2], b=XF + 4 * k, first=k == 0)
    for k in range(32):
        use[k] = len(items)
        for t in range(2):
            items.append(dict(rd=wide(vA0, t * 16384 + (k % 16) * 1024, int(k == 16 and t == 0)), acc=A[t], b=XF + 4 * k, first=k == 0))
        if k == 15: g5 = len(items) - 1
        if (k + 1) * n2 // 32 > k2: items.append(t2(k2)); k2 += 1
    items += [mean(0), mean(1)]; end[0] = len(items) - 2; end[1] = len(items) - 1
    items += [t2(k) for k in range(k2, 32)] + [mean(2)]; end[2] = len(items) - 1
    for r in range(3, 6):
        items += [dict(rd=wide(vA0, k * 1024, (2 if r == 3 else 1) if k == 0 else 0), acc=A[r % 4], b=XF + 4 * k, first=k == 0) for k in range(32)]
        items.append(mean(r)); end[r] = len(items) - 1
    T5 = end[4] + 1; P4 = len(items)
    HI = [16 + 4 * i for i in range(4)] + [116, 88] + [XF + 4 * i for i in range(2)] + [32 + 4 * i for i in range(3)]
    breg = lambda k: XF + 4 * k if k < 32 else HI[k - 32]
    for n, it in enumerate(small_items(43, breg, (48, 96))):
        def rd(st, r, it=it, n=n):
            if n % 16 == 0: ring_next(st, "trn")
            a = vA1 if it["t"] else vA0
            st.ds_read_b64_tr_b16(v(r, 2), a, mods=f"offset:{it['off']}")
            st.ds_read_b64_tr_b16(v(r + 2, 2), a, mods=f"offset:{it['off']+512}")
        items.append(dict(rd=rd, acc=it["acc"], b=it["b"], first=it["first"]))
    for n, f in enumerate(L[pre:]): hk(2 * n + 1, f)
    fill = Filler()
    f = Stream()
    stats(f, STT, NM3, K1, VE3)
    f.v_and_b32(vU, 0xffff0000, NM3); f.v_sub_f32(NM3, NM3, vU); f.v_cndmask_b32(vU, vU, NM3, sHALF)
    f.v_cvt_pk_bf16_f32(v(NMP), vU, vU)
    f.v_mul_f32(K3, K1, K1); f.v_mul_f32(K1, f2u(C1), K1); f.v_mul_f32(K3, f2u(0.044715), K3); f.v_mul_f32(K3, K3, K1)
    z = Stream()
    for i in range(1, 4): z.v_mov_b32(v(NMP + i), 0)
    z.v_min_u32(aP4, 20, vFL)
    hk(2, lambda st: fill.add(z))
    hk(use[min(31, at + oi("sth3", 2))], lambda st: fill.add(f))
    hk(end[0] - 2, lambda st: fill.flush(st))
    TM = 112
    def epi(r):
        f = Stream(); a = A[r % 4]
        g = lambda i: v(a + i)
        u = lambda i: v(a + 8 + i)
        tm = lambda i: v(TM + i % 4)
        for t in range(16):
            ok = lambda d: 0 <= t - d < 8
            if ok(3): f.v_exp_f32(g(t - 3), g(t - 3))
            if ok(0): f.v_mul_f32(tm(t), g(t), g(t))
            if ok(1): f.v_fma_f32(tm(t - 1), tm(t - 1), K3, K1)
            if ok(0): f.v_mul_f32(u(t), g(t), u(t))
            if ok(5): f.v_rcp_f32(g(t - 5), g(t - 5))
            if ok(2): f.v_mul_f32(g(t - 2), tm(t - 2), g(t - 2))
            if ok(4): f.v_fma_f32(g(t - 4), g(t - 4), VE3, VE3)
            if ok(6): f.v_mul_f32(g(t - 6), g(t - 6), u(t - 6))
            if ok(7) and t % 2 == 0: f.v_cvt_pk_bf16_f32(u((t - 8) // 2), g(t - 8), g(t - 7))
            if t == 12 and r < 5: f.s_add_u32(sHS, sHST, 16384 * r)
        f.buffer_store_dwordx4(v(a + 8, 4), vL16, WS, sHS if r < 5 else sH5, mods=f"offen {G.SC} {os_('hm', '') if r < oi('hmr', 6) else ''}", tset=f"h{r}")
        return f
    def flag(r):
        f = Stream()
        f.buffer_store_dword(vNON, "off", WS, sFJ if r < 5 else sF5, mods=f"offset:{256+64*r} {G.SC}", tneed=f"h{r}")
        return f
    e = [epi(r) for r in range(6)]
    ri = Stream(); res_init(ri, 48)
    lag = oi("lag", 3)
    for r in range(6):
        parts = [e[r]] + ([ri] if r == 3 else [])
        hk(end[max(r, 1)] + lag, lambda st, parts=parts: [fill.add(p) for p in parts])
        hk(end[r], lambda st, r=r: stamp(st, f"t{r}"))
    hk(end[3], lambda st: fill.drain_until(st, e[0])); hk(end[4], lambda st: fill.drain_until(st, e[1]))
    hk(end[5] - 1, lambda st: fill.drain_until(st, ri))
    fd = [int(x) for x in os_("fd", "38,20,20,18,16,12").split(",")]; fpos = {}
    def watch(i, l):
        for r in range(6):
            if any(("t", f"h{r}") in x.dst for x in l): fpos[r] = i + fd[r]; hk(i + fd[r], lambda st, r=r: (stamp(st, f"f{r}a"), st.extend(flag(r)), stamp(st, f"f{r}b")))
    b3, b4 = oi("bud3", 16), oi("bud4", 16)
    def bud(i):
        b = oi("bud0", 12) if i < end[1] else b3 if i < P4 - DEPTH else b4
        if b % 4: b += 2 if i % 2 else -2
        return b - (4 if i in hooks and oi("budh", 1) else 0)
    o = oi("b4", 10)
    for i, name in ((g5 + oi("c1d", 4), "3a"), (end[1], "3b"), (end[2], "3c"), (end[3], "3d"), (end[4], "3f"), (end[5], "3g"),
                    (P4 + o, "4a"), (P4 + 16 + o, "4b"), (P4 + 32 + o, "4c"), (P4 + 48 + o, "4d"), (P4 + 64 + o, "4e")):
        hk(i, lambda st, name=name: (stamp(st, f"{name}a"), barrier(st, name), stamp(st, f"{name}b")))
    for i in (16, 32, 48, 64): hk(P4 + i, lambda st, i=i: stamp(st, f"q{i}"))
    HL = frag_loads(sHLD, [breg(k) for k in range(43)], 2048, 2)
    if OPT.get("noH"): HL = [lambda st: None] * 43
    ne = oi("early4", 12)
    ck = [T5 + oi("chkA", 10), P4 + oi("chk2", 0), P4 + oi("chk3", 16), P4 + oi("chk4", 42), P4 + oi("chk5", 65)]
    sl = oi("sl", 12); ev = float(OPT.get("ev4", 2)); pos = []
    for k in range(43):
        g = max(0, k // 8 - 1)
        p = ck[0] + 1 + k * float(OPT.get("ev3", 2)) if k < ne else pos[-1] + ev
        pos.append(max(p, ck[g]) if k < 40 else ck[4])
    pos = [int(p) for p in pos]
    hk(ck[0] - sl - 1, lambda st: (st.v_and_b32(vV, 31, vL), st.v_lshlrev_b32(vV, 2, vV)))
    for g, (addr, off) in enumerate(((vV, 256), (vFL, 384), (vFL, 448), (vFL, 512), (aP4, 576))):
        assert g == 0 or ck[g] - sl > ck[g - 1]
        if OPT.get("nochk"): continue
        hk(ck[g] - sl, lambda st, addr=addr, off=off: st.buffer_load_dword(vS4, addr, WS, sFB, mods=f"offen offset:{off} sc1"))
        hk(ck[g], lambda st, addr=addr, off=off, g=g: (stamp(st, f"k{g}a"), soft_check(st, vS4, addr, sFB, off), stamp(st, f"k{g}b")))
    def last(st):
        assert 5 in fpos and fpos[5] < ck[4]
        nxt(st)
    hk(ck[4], last)
    for k in range(43):
        assert pos[k] < P4 + 2 * k and (k >= 32 or pos[k] >= T5 + k), (k, pos[k])
        hk(pos[k], HL[k])
    hk(pos[32] - 1, lambda st: fill.drain_until(st, e[4]))
    sl_ = None
    if float(OPT.get("sl3", 7)):
        s0_, s3_, s4_ = [float(OPT.get(k, d)) for k, d in (("sl0", 7), ("sl3", 7), ("sl4", 8))]
        sl_ = lambda i: s0_ if i < end[1] else s3_ if i < P4 - DEPTH else s4_
    g0_, g3_, g4_ = oi("gw0", 2), oi("gw3", 2), oi("gw4", 2)
    def gw_(i):
        g = g0_ if i < end[1] else g3_ if i < P4 else g4_
        return min(g, P4 - i) if i < P4 else g
    if g4_ == 4 or oi("gv4", 0):
        for i in range(P4, len(items) - 2, 4): items[i]["b2"] = items[i + 2]["b"]
    stream(st, items, AF, 6, DEPTH, hooks, fill, bud, watch, sl_, gw_)
    if G.TAG == "f": print("T3", end[2] + 1, "T4", end[3] + 1, "T5", T5, "P4", P4, "flags", fpos, "checks", ck, "loads", pos, file=sys.stderr)
    stamp(st, "P4gemm")
    xepi(st, True)

def body(st, first):
    stop = OPT["stop"]
    T = G.TAG
    st.label(f".Lpair_{T}"); st.mark("reset")
    G.SEQ = SEQA; p1a(st)
    G.SEQ = SEQC
    if first:
        st.mark("merge", "from0"); st.label(".Lk_f")
    p1b(st); p1c(st)
    if stop == "p1": st.s_branch(".Lend"); return
    p2(st)
    if stop == "p2": st.s_branch(".Lend"); return
    p34(st)
    stamp(st, "end")
    stamp(st, 63, True)
    if OPT.get("dbg") == "2":
        if OPT.get("wb"):
            st.wait(vm=0); st.raw("    buffer_wbl2 sc0 sc1"); st.raw("    s_waitcnt vmcnt(0)")
        L = newlab("pad")
        st.s_mov_b32(s(87), 7000)
        if OPT.get("early"): st.s_cmp_lt_u32(s(2), int(OPT["early"])); st.s_cselect_b32(s(87), 6000, s(87))
        if OPT.get("cap"):
            if OPT.get("capr"): st.s_sub_u32(s(43), s(43), s(42))
            else: st.s_sub_u32(s(43), s(43), s(86)); st.s_lshr_b32(s(43), s(43), 2)
            st.s_min_u32(s(43), s(43), 40000); st.s_add_u32(s(87), s(87), s(43))
        st.label(L)
        st.s_memrealtime(s(100, 2)); st.wait(lgkm=0); st.s_sub_u32(s(100), s(100), s(42)); st.s_cmp_lt_u32(s(100), s(87)); st.s_cbranch_scc1(L)
    elif OPT.get("dbg"):
        st.s_load_dwordx2(s(44, 2), s(0, 2), 72); st.s_memrealtime(s(100, 2)); st.wait(lgkm=0)
        st.s_and_b32(s(45), s(45), 0xffff); st.s_mov_b32(s(46), 256); st.s_mov_b32(s(47), 0x20000)
        st.s_not_b32(s(42), s(42)); st.v_mov_b32(vT, s(42)); st.v_mov_b32(vU, s(100)); st.s_not_b32(s(100), s(100)); st.v_mov_b32(vV, s(100))
        st.raw("    buffer_atomic_umax v13, off, s[44:47], 0")
        st.raw("    buffer_atomic_umax v14, off, s[44:47], 0 offset:4")
        st.raw("    buffer_atomic_umax v15, off, s[44:47], 0 offset:8")
        st.s_not_b32(s(42), s(42)); st.v_mov_b32(vT, s(42))
        st.raw("    s_nop 4")
        st.raw("    buffer_atomic_umax v13, off, s[44:47], 0 offset:12")
    st.s_or_b32(sT0, s(2), sW); st.s_cmp_lg_u32(sT0, 0); st.s_cbranch_scc1(".Lend")
    st.v_add_u32(vNON, 22, vNON)
    st.buffer_store_dword(vNON, "off", WS, 0, mods=f"offset:{EPOCH} sc1")
    st.s_branch(".Lend")

SEQ0, SEQA, SEQC = [], [], []
def compute(st):
    G.SEQ = SEQ0
    p1a0(st)
    st.mark("save", "from0")
    st.s_branch(".Lk_f")
    G.SC, G.TAG = "", "f"
    body(st, True)

def compute_slow(st):
    G.SC, G.TAG, G.REC = "sc1", "s", False
    body(st, False)

sW8, sQK, sWOb, sGU, sWD5, sWI = s(74), s(75), s(76), s(77), s(78), s(79)
sWDb = [s(80 + i) for i in range(4)]
GU = 64
vKV, vQ, vW, vWR0, vWR1 = v(2), v(4), v(5), v(6), v(7)
vGG = [v(8), v(9), v(10)]; vGL = [v(16), v(17), v(18)]; vGT = v(19)
vC0, vC1, vCW, vCR = v(20), v(21), v(22), v(23)
SEL = 24; CACC = 28
FRS = [36, 40, 44, 48, 52]; WRAW = 56
vDUM = [v(11), v(60), v(61), v(62)]
GSTR = 448

def LDSW(st):
    for i in reversed(st.l):
        if i.name == "s_barrier" or (i.name == "s_waitcnt" and "lgkmcnt(0)" in i.ops[0]): return False
        if i.kind == "ds": return True
    return False

def POL(srd):
    k = {WQ: "pq", WO_: "po", WD: "pd", WG: "pg", WU: "pg"}.get(srd)
    x = os_(k, "") if k else ""
    return " " + x.replace("+", " ") if x else ""

def loader(st):
    st.v_lshrrev_b32(vT, 3, vL); st.v_bfe_u32(vU, vL, 4, 1); st.v_lshlrev_b32(vU, 2, vU); st.v_and_b32(vV, 7, vL); st.v_xor_b32(vU, vU, vV)
    st.v_mul_u32_u24(vKV, 3072, vT); st.v_and_b32(vV, 3, vU); st.v_lshl_add_u32(vKV, vV, 4, vKV)
    st.v_lshrrev_b32(vV, 2, vU); st.v_mul_u32_u24(vQ, 256 * 3072, vV); st.v_add_u32(vQ, vQ, vKV)
    st.v_lshl_add_u32(vKV, vV, 10, vKV); st.v_add_u32(vKV, 1024, vKV)
    st.v_lshlrev_b32(vW, 10, vT); st.v_lshl_add_u32(vW, vU, 4, vW)
    st.s_lshl_b32(sW8, sM, 13)
    st.s_mul_i32(sQK, sM, 64 * 3072); st.s_lshl_b32(sT0, sJ, 6); st.s_add_u32(sQK, sQK, sT0)
    sKVr = [s(84), s(85)]; sQJ = s(88); vQ0 = v(GU)
    rot(st, s(89), sT1); st.s_add_u32(s(89), s(89), sM)
    st.s_lshl_b32(sQJ, sJ, 6)
    st.s_and_b32(sT1, s(89), 7); st.s_mul_i32(sKVr[0], sT1, 64 * 3072); st.s_add_u32(sKVr[0], sKVr[0], sQJ)
    st.s_and_b32(sWI, sC, 1); st.s_lshl_b32(sWI, sWI, 4); st.s_add_u32(sWI, sWI, sJ); st.s_lshl_b32(sWI, sWI, 2); st.s_add_u32(sWI, sWI, sM)
    if not oi("fast0", 1) or E0:
        dcap(st, "l0", "l")
        if not oi("es", 0): st.wait(lgkm=0)
        srds(st, [WQ])
    chunks = []
    for pair in range(2):
        chunks += [("kv", 0), ("kv", 1), ("q", 0), ("wo", 0), ("wo", 1), ("gp", 0), ("gp", 1)] + [("gs", r) for r in range(2, 6)]
        chunks += [("wd", r) for r in range(6)]
    N = len(chunks)
    issued = set()
    SQ = []
    def spf(n):
        for _ in range(min(n, len(SQ))): SQ.pop(0)()
    def squeue(kind):
        if kind[0] == "k":
            i0 = 32 if kind == "k2" else int(kind[2:]) if kind[1:2] == "." else 0
            for i in range(i0, 64):
                def f(i=i):
                    if i == i0:
                        st.s_lshr_b32(s(90), sWI, 4); st.s_mul_i32(s(90), s(90), 3072); st.s_and_b32(s(91), sWI, 15); st.s_lshl_b32(s(91), s(91), 7)
                        st.s_add_u32(s(91), s(91), s(90)); st.s_add_u32(s(44), s(46), s(91)); st.s_addc_u32(s(45), s(47), 0)
                    if i == 32 or (i == i0 and i0 > 32): st.s_add_u32(s(44), s(44), 32 * 24576); st.s_addc_u32(s(45), s(45), 0)
                    x = Ins("s_load_dwordx2", [s(86, 2), s(44, 2), hex(i % 32 * 24576 + 1024 + 60)]); x.dst = set(); st.l.append(x)
                SQ.append(f)
            return
        if kind[0] == "h":
            n, o = dict(h0=(16, 0), h1=(27, 32768), h2=(16, 32768), h3=(11, 65536))[kind]
            for i in range(n):
                def f(i=i):
                    if i == 0:
                        st.s_lshl_b32(s(90), sC, 2); st.s_add_u32(s(90), s(90), sM); st.s_mul_i32(s(90), s(90), HB_TB)
                        st.s_mul_i32(s(91), sJ, n * 128); st.s_add_u32(s(90), s(90), s(91)); st.s_add_u32(s(90), s(90), HB + o)
                        st.s_add_u32(s(44), s(4), s(90)); st.s_addc_u32(s(45), s(5), 0)
                    x = Ins("s_load_dwordx2", [s(86, 2), s(44, 2), hex(i * 128 + 60)]); x.dst = set(); st.l.append(x)
                SQ.append(f)
            return
        if kind[0] == "R" and TG:
            st.s_lshl_b32(s(90), sJ, 2); st.s_add_u32(s(90), s(90), sM); st.s_lshl_b32(s(90), s(90), 4); st.s_add_u32(s(90), s(90), sC)
            st.s_mul_i32(s(90), s(90), TG_W); st.s_add_u32(s(90), s(90), KVP + (0 if kind == "R0" else TG_P))
            st.s_add_u32(s(90), s(4), s(90)); st.s_addc_u32(s(91), s(5), 0)
            for i in range(6):
                def f(i=i):
                    x = Ins("s_load_dwordx2", [s(86, 2), s(90, 2), hex(i * 128 + 60)]); x.dst = set(); st.l.append(x)
                SQ.insert(0, f)
            return
        if kind == "R":
            st.s_mul_i32(s(90), sJ, KV_J); st.s_mul_i32(s(91), sC, KV_REC); st.s_add_u32(s(90), s(90), s(91))
            st.s_mul_i32(s(91), sM, 5 * 128); st.s_min_u32(s(91), s(91), 13 * 128); st.s_add_u32(s(90), s(90), s(91)); st.s_add_u32(s(90), s(90), KVP + KV_P)
            st.s_add_u32(s(90), s(4), s(90)); st.s_addc_u32(s(91), s(5), 0)
            for i in range(5):
                def f(i=i):
                    x = Ins("s_load_dwordx2", [s(86, 2), s(90, 2), hex(i * 128 + 60)]); x.dst = set(); st.l.append(x)
                SQ.insert(0, f)
            return
        if kind[0] == "r":
            i0 = 5 if kind == "r1" else 0
            for i in range(i0, 10):
                def f(i=i):
                    if i == i0:
                        st.s_mul_i32(s(90), sJ, KV_J); st.s_mul_i32(s(91), sC, KV_REC); st.s_add_u32(s(90), s(90), s(91))
                        st.s_mul_i32(s(91), sM, 5 * 128); st.s_min_u32(s(91), s(91), 13 * 128); st.s_add_u32(s(90), s(90), s(91)); st.s_add_u32(s(90), s(90), KVP)
                        st.s_add_u32(s(44), s(4), s(90)); st.s_addc_u32(s(45), s(5), 0)
                        st.s_lshl_b32(s(90), sJ, 11); st.s_lshl_b32(s(91), sC, oi("fks", 7)); st.s_add_u32(s(90), s(90), s(91)); st.s_add_u32(s(90), s(90), FKV)
                        st.s_add_u32(s(90), s(4), s(90)); st.s_addc_u32(s(91), s(5), 0)
                    x = Ins("s_load_dwordx2", [s(86, 2), s(44, 2), hex(i % 5 * 128 + i // 5 * KV_P + 60)]); x.dst = set(); st.l.append(x)
                    if i % 5 == 4 and not oi("fkw", 1):
                        x = Ins("s_load_dword", [s(86), s(90, 2), hex(i // 5 * 256 * 128)]); x.dst = set(); st.l.append(x)
                SQ.append(f)
            return
        base, cnt = dict(w=(46, 96), o=(50, 32), d=(58, 86), g=(54, 86), u=(56, 86))[kind[0]]
        if len(kind) > 1: cnt = int(kind[1:])
        for i in range(cnt):
            def f(i=i):
                if i == 0:
                    st.s_lshl_b32(s(91), sWI, 7); st.s_add_u32(s(44), s(base), s(91)); st.s_addc_u32(s(45), s(base + 1), 0)
                if i == 48: st.s_add_u32(s(44), s(44), 48 * 16384); st.s_addc_u32(s(45), s(45), 0)
                x = Ins("s_load_dwordx2", [s(86, 2), s(44, 2), hex(i % 48 * 16384 + 60)]); x.dst = set(); st.l.append(x)
            SQ.append(f)
    PART = [0, 8]
    def dma(n, addr, srd, offs):
        slot = (n % 4) * 32768
        for i, (base, off, lds) in enumerate(offs):
            if not PART[0] <= i < PART[1]: continue
            st.s_add_u32("m0", lds[0], slot + lds[1])
            st.s_add_u32(sT0, base, off)
            st.buffer_load_dwordx4(addr, srd, sT0, mods="offen" + POL(srd) + " lds", tset=f"c{n}" if i == len(offs) - 1 else None)
    def issue(n):
        if n >= N: return
        assert n not in issued
        if PART[1] == 8: issued.add(n)
        kind, a = chunks[n]
        if kind == "kv" and n < 17:
            if a == 1: st.s_xor_b32(sT1, s(89), 4); st.s_and_b32(sT1, sT1, 7); st.s_mul_i32(sKVr[1], sT1, 64 * 3072); st.s_add_u32(sKVr[1], sKVr[1], sQJ)
            dma(n, vKV, WQ, [(sKVr[a], 8 * i * 3072, (sW8, 1024 * i)) for i in range(8)])
        elif kind == "q" and n < 17:
            st.v_add_u32(vT, sKVr[0], vQ); st.v_subrev_u32(vU, 512 * 3072, vT); st.v_min_u32(vQ0, vT, vU)
            dma(n, vQ0, WQ, [("0", 8 * i * 3072, (sW8, 1024 * i)) for i in range(8)])
        elif kind == "kv": dma(n, vKV, WQ, [(sQK, (256 * a + 8 * i) * 3072, (sW8, 1024 * i)) for i in range(8)])
        elif kind == "q": dma(n, vQ, WQ, [(sQK, 8 * i * 3072, (sW8, 1024 * i)) for i in range(8)])
        elif kind == "wo": dma(n, vW, WO_, [(sWOb, (256 * a + 8 * i) * 1024, (sW8, 1024 * i)) for i in range(8)])
        elif kind == "wd" and a < 5: dma(n, vW, WD, [(sWDb[i // 2], (16 * a + 8 * (i % 2)) * 1024, (sW8, 1024 * i)) for i in range(8)])
        elif kind == "wd":
            slot = (n % 4) * 32768
            for e in range(3):
                st.s_mul_i32(sT1, sM, 3); st.s_add_u32(sT1, sT1, e)
                st.s_lshr_b32(sT0, sT1, 1); st.s_mul_i32(sT0, sT0, 96 * 1024); st.s_and_b32(sT2, sT1, 1); st.s_lshl_b32(sT2, sT2, 13)
                st.s_add_u32(sT0, sT0, sT2); st.s_add_u32(sT0, sT0, sWD5)
                st.s_lshl_b32(sT1, sT1, 10); st.s_add_u32("m0", sT1, slot)
                st.buffer_load_dwordx4(vW, WD, sT0, mods="offen" + POL(WD) + " lds", tset=f"c{n}" if e == 2 else None)
        else:
            slot = n % 4; wr = vWR1 if slot >= 2 else vWR0; so = (slot & 1) * 32768
            for t in range(2):
                for k in range(4):
                    g, fr = (4 * a + k, t) if kind == "gp" else (4 * t + k, a)
                    st.ds_write_b128(wr, v(GU + 24 * g + 4 * fr, 4), mods=f"offset:{so + t*16384 + k*1024}", tset=f"c{n}" if (t, k) == (1, 3) else None)
    FREE = [GU + 24 * g + 4 * fr for h in (0, 2) for g in range(8) for fr in (h, h + 1)]
    def stg(n):
        a = chunks[n][1]
        if n < 17:
            return [48, 52, 56] if a == 5 else [16 + 4 * i for i in range(8)]
        o = {3: 0, 4: 8, 2: 16, 5: 24}[a]
        return FREE[o:o + 8]
    def stage(n):
        kind, a = chunks[n]; assert kind == "wd"
        r = stg(n)
        if a < 5:
            for i in range(8):
                st.s_add_u32(sT0, sWDb[i // 2], (16 * a + 8 * (i % 2)) * 1024)
                st.buffer_load_dwordx4(v(r[i], 4), vW, WD, sT0, mods="offen")
        else:
            for e in range(3):
                st.s_mul_i32(sT1, sM, 3); st.s_add_u32(sT1, sT1, e)
                st.s_lshr_b32(sT0, sT1, 1); st.s_mul_i32(sT0, sT0, 96 * 1024); st.s_and_b32(sT2, sT1, 1); st.s_lshl_b32(sT2, sT2, 13)
                st.s_add_u32(sT0, sT0, sT2); st.s_add_u32(sT0, sT0, sWD5)
                st.buffer_load_dwordx4(v(r[e], 4), vW, WD, sT0, mods="offen")
    def unstage(n):
        kind, a = chunks[n]; r = stg(n); slot = (n % 4) * 32768
        assert n not in issued; issued.add(n)
        if a < 5: st.s_add_u32(sT0, sW8, slot)
        else: st.s_mul_i32(sT0, sM, 3072); st.s_add_u32(sT0, sT0, slot)
        st.v_add_u32(vT, sT0, vL16)
        for i in range(8 if a < 5 else 3): st.ds_write_b128(vT, v(r[i], 4), mods=f"offset:{1024*i}")
    def prologue():
        F0 = oi("fast0", 1)
        if F0:
            if E0:
                srds(st, [WS, WP, WO_, WG, WU, WD, OUT])
                run(E0.split(","), 0)
        else:
            issue(0)
            if oi("kv1first", 1): issue(1)
        if not oi("cfirst", 1):
            st.mark("save", "ld1"); st.s_branch(".Lloader")
            st.label(".Lcomp"); st.mark("reset")
            compute(st)
            st.label(".Lloader"); st.mark("restore", "ld1")
        if not F0 and not oi("kv1first", 1): issue(1)
        def late():
            if not (F0 and E0):
                st.wait(lgkm=0)
                srds(st, [WQ, WS, WP, WO_, WG, WU, WD])
            stamp_base(st)
            if not OPT.get("dcap"): stamp(st, "start", who="l", pair=0)
        if not F0 or E0: late()
        st.s_lshl_b32(sWOb, sM, 16); st.s_lshl_b32(sT0, sCG, 7); st.s_add_u32(sWOb, sWOb, sT0)
        for e in range(4):
            st.s_lshl_b32(sT1, sM, 2); st.s_add_u32(sT1, sT1, e)
            st.s_mul_i32(sT2, sT1, 6); st.s_mul_i32(sT3, sT1, 5); st.s_add_u32(sT3, sT3, 6); st.s_min_u32(sT2, sT2, sT3)
            st.s_lshl_b32(sT2, sT2, 14); st.s_add_u32(sWDb[e], sT2, sT0)
        st.s_add_u32(sWD5, sT0, 80 * 1024)
        st.s_mul_i32(sT2, sJ, 6); st.s_mul_i32(sT3, sJ, 5); st.s_add_u32(sT3, sT3, 6); st.s_min_u32(sT2, sT2, sT3)
        st.s_lshl_b32(sT2, sT2, 5); st.s_mul_i32(sGU, sM, 64 * 2752); st.s_add_u32(sGU, sGU, sT2)
        st.s_cmp_eq_u32(sT6, 1); st.s_cselect_b32(sT1, 12, 10)
        st.s_lshl_b32(sT2, sM, 12); st.s_add_u32(sT2, sT2, 32768)
        for i in range(3):
            st.v_add_u32(vT, 64 * i, vL); st.v_mul_u32_u24(vU, 5462, vT); st.v_lshrrev_b32(vU, 16, vU)
            st.v_mul_u32_u24(vV, 12, vU); st.v_sub_u32(vT, vT, vV)
            st.v_mul_u32_u24(vGG[i], 2752, vU); st.v_lshl_add_u32(vGG[i], vT, 4, vGG[i])
            st.v_cmp_gt_u32("vcc", sT1, vT); st.v_mov_b32(vV, 0x80000000); st.v_cndmask_b32(vGG[i], vV, vGG[i], "vcc")
            st.v_and_b32(vV, 7, vU); st.v_mul_u32_u24(vGL[i], GSTR, vV); st.v_lshrrev_b32(vV, 3, vU); st.v_lshl_add_u32(vGL[i], vV, 14, vGL[i])
            st.v_lshrrev_b32(vV, 1, vT); st.v_lshl_add_u32(vGL[i], vV, 6, vGL[i])
            st.v_and_b32(vV, 1, vT); st.v_lshl_add_u32(vGL[i], vV, 4, vGL[i]); st.v_add_u32(vGL[i], sT2, vGL[i])
        lane_tr(st, vGT, None, "nat", stride=GSTR, hstride=16384); st.v_add_u32(vGT, sT2, vGT)
        lane_tr(st, vC0, vC1, "qkv")
        st.s_lshl_b32(sT0, sM, 12); st.v_add_u32(vWR0, sT0, vL16); st.v_add_u32(vWR1, 65536, vWR0)
        st.v_bfe_u32(vT, vL, 4, 1); st.v_and_b32(vU, 1, vL); st.v_cmp_eq_u32("vcc", vT, vU)
        st.v_mov_b32(vV, 0x3f803f80)
        for i in range(4): st.v_cndmask_b32(v(SEL + i), 0, vV, "vcc")
        st.v_lshlrev_b32(vCW, 6, vT); st.v_lshl_add_u32(vCW, vU, 5, vCW); st.v_lshrrev_b32(vT, 5, vL); st.v_lshl_add_u32(vCW, vT, 4, vCW)
        if F0 and not E0: late()
    def publish():
        L = newlab("pub")
        st.v_add_u32(vNON, sXC, vNON); st.v_add_u32(vNON, 16, vNON)
        st.s_lshl_b32(sT0, sC, 7); st.s_lshl_b32(sT1, sJ, 2); st.s_add_u32(sT0, sT0, sT1); st.s_add_u32(sT0, sT0, XCCT)
        st.s_cmp_lg_u32(sM, 0); st.mark("save", L); st.s_cbranch_scc1(L)
        st.buffer_store_dword(vNON, "off", WS, sT0, mods="sc1")
        st.mark("merge", L); st.label(L)
    dn = [0]
    def dum():
        dn[0] += 1
        return vDUM[dn[0] % 4]
    def tload(addr, srd, soff):
        i = Ins("buffer_load_dword", [dum(), addr, srd, str(soff)], "offen" + POL(srd)); i.dst = set(); st.l.append(i)
    def touch(kind):
        if kind == "wd":
            st.s_mul_i32(sT0, sWI, 86 * 128); st.v_lshlrev_b32(vT, 7, vL); tload(vT, WD, sT0)
            st.v_min_u32(vU, 21, vL); st.v_lshlrev_b32(vU, 7, vU); st.s_add_u32(sT0, sT0, 8192); tload(vU, WD, sT0)
        elif kind[:2] == "wf":
            n = int(kind[2:]); assert n <= 64
            st.s_mul_i32(sT0, sWI, n * 128); st.v_min_u32(vT, n - 1, vL); st.v_lshlrev_b32(vT, 7, vT); tload(vT, WD, sT0)
        elif kind[:2] == "wd":
            n = int(kind[2:]); c = 86 - n; assert c <= 64
            st.s_mul_i32(sT0, sWI, c * 128); st.s_add_u32(sT0, sT0, n * 16384); st.v_min_u32(vT, c - 1, vL); st.v_lshlrev_b32(vT, 7, vT); tload(vT, WD, sT0)
        elif kind == "out":
            st.s_lshl_b32(sT0, sC, 4); st.s_add_u32(sT0, sT0, sJ); st.s_lshl_b32(sT0, sT0, 2); st.s_add_u32(sT0, sT0, sM); st.s_lshl_b32(sT0, sT0, 11)
            st.v_lshlrev_b32(vT, 5, vFL); tload(vT, OUT, sT0)
        elif kind in ("g", "u"):
            D = WG if kind == "g" else WU
            st.s_mul_i32(sT0, sWI, 86 * 128); st.v_lshlrev_b32(vT, 7, vL); tload(vT, D, sT0)
            st.v_min_u32(vU, 21, vL); st.v_lshlrev_b32(vU, 7, vU); st.s_add_u32(sT0, sT0, 8192); tload(vU, D, sT0)
        elif kind in ("ga", "gb"):
            st.s_mul_i32(sT0, sWI, 43 * 128); st.v_min_u32(vT, 42, vL); st.v_lshlrev_b32(vT, 7, vT)
            if kind == "gb": st.s_add_u32(sT0, sT0, 256 * 2752)
            tload(vT, WG, sT0); tload(vT, WU, sT0)
        elif kind in ("kv0", "kv1"):
            st.v_bfe_u32(vT, vL, 4, 1); st.v_mul_u32_u24(vT, 3072, vT); st.v_lshl_add_u32(vT, vFL, 5, vT)
            st.s_mul_i32(sT0, sWI, 2 * 3072); st.s_add_u32(sT0, sT0, 1024 + 256 * 3072 * int(kind[2])); tload(vT, WQ, sT0)
        elif kind == "kv":
            st.v_lshrrev_b32(vT, 4, vL); st.v_mul_u32_u24(vT, 3072, vT); st.v_lshl_add_u32(vT, vFL, 5, vT)
            st.s_mul_i32(sT0, sWI, 4 * 3072); st.s_add_u32(sT0, sT0, 1024); tload(vT, WQ, sT0)
        elif kind == "q":
            st.v_bfe_u32(vT, vL, 3, 2); st.v_mul_u32_u24(vT, 3072, vT); st.v_and_b32(vU, 7, vL); st.v_lshl_add_u32(vT, vU, 7, vT)
            st.s_mul_i32(sT0, sWI, 4 * 3072); tload(vT, WQ, sT0)
        elif kind == "wo":
            st.v_and_b32(vT, 31, vL); st.v_lshlrev_b32(vT, 7, vT); st.s_lshl_b32(sT0, sWI, 12); tload(vT, WO_, sT0)
        elif kind == "h":
            st.s_lshl_b32(sT0, sC, 4); st.s_add_u32(sT0, sT0, sJ); st.s_lshl_b32(sT0, sT0, 2); st.s_add_u32(sT0, sT0, sM)
            st.s_mul_i32(sT0, sT0, 43 * 128); st.s_add_u32(sT0, sT0, HB)
            st.v_min_u32(vT, 42, vL); st.v_lshlrev_b32(vT, 7, vT); tload(vT, WS, sT0)
        elif kind in ("h0", "h1", "h2", "h3"):
            n, o = dict(h0=(16, 0), h1=(27, 32768), h2=(16, 32768), h3=(11, 65536))[kind]
            st.s_lshl_b32(sT0, sC, 2); st.s_add_u32(sT0, sT0, sM); st.s_mul_i32(sT0, sT0, HB_TB)
            st.s_mul_i32(sT1, sJ, n * 128); st.s_add_u32(sT0, sT0, sT1); st.s_add_u32(sT0, sT0, HB + o)
            st.v_min_u32(vT, n - 1, vL); st.v_lshlrev_b32(vT, 7, vT); tload(vT, WS, sT0)
        elif kind == "hs":
            st.s_lshl_b32(sT0, sC, 2); st.s_mul_i32(sT0, sT0, HB_TB); st.s_add_u32(sT0, sT0, HB)
            st.s_lshl_b32(sT1, sJ, 2); st.s_add_u32(sT1, sT1, sM); st.s_lshl_b32(sT1, sT1, 1)
            st.v_and_b32(vT, 1, vL); st.v_add_u32(vT, sT1, vT); st.v_min_u32(vT, 4 * HB_TB // 4096 - 1, vT); st.v_lshlrev_b32(vT, 12, vT); tload(vT, WS, sT0)
        elif kind == "x" and XO:
            st.s_lshl_b32(sT0, sC, 4); st.s_add_u32(sT0, sT0, sJ); st.s_lshl_b32(sT0, sT0, 2); st.s_add_u32(sT0, sT0, sM)
            st.s_lshl_b32(sT1, sT0, 11); st.v_lshlrev_b32(vT, 5, vFL); tload(vT, OUT, sT1)
            st.s_lshl_b32(sT2, sT0, 8); st.s_add_u32(sT2, sT2, ST)
            st.s_lshl_b32(sT3, sC, 2); st.s_add_u32(sT3, sT3, sM); st.s_lshl_b32(sT3, sT3, 10); st.s_add_u32(sT3, sT3, FL - 2 * 128)
            st.v_mov_b32(vU, sT2); st.v_mov_b32(vV, sT3); st.v_cmp_le_u32("vcc", 2, vL); st.v_cndmask_b32(vU, vU, vV, "vcc")
            st.v_min_u32(vT, 6, vL); st.v_lshl_add_u32(vT, vT, 7, vU); tload(vT, WS, 0)
        elif kind == "x":
            st.s_lshl_b32(sT0, sC, 4); st.s_add_u32(sT0, sT0, sJ); st.s_lshl_b32(sT0, sT0, 2); st.s_add_u32(sT0, sT0, sM)
            st.s_lshl_b32(sT1, sT0, 11); st.s_add_u32(sT1, sT1, XB)
            st.s_lshl_b32(sT2, sT0, 8); st.s_add_u32(sT2, sT2, ST - 16 * 128)
            st.s_lshl_b32(sT3, sC, 2); st.s_add_u32(sT3, sT3, sM); st.s_lshl_b32(sT3, sT3, 10); st.s_add_u32(sT3, sT3, FL - 18 * 128)
            st.v_mov_b32(vU, sT1); st.v_mov_b32(vV, sT2); st.v_cmp_le_u32("vcc", 16, vL); st.v_cndmask_b32(vU, vU, vV, "vcc")
            st.v_mov_b32(vV, sT3); st.v_cmp_le_u32("vcc", 18, vL); st.v_cndmask_b32(vU, vU, vV, "vcc")
            st.v_min_u32(vT, 22, vL); st.v_lshl_add_u32(vT, vT, 7, vU); tload(vT, WS, 0)
        elif kind == "r1":
            st.s_mul_i32(sT0, sJ, KV_J); st.s_mul_i32(sT1, sC, KV_REC); st.s_add_u32(sT0, sT0, sT1)
            st.s_mul_i32(sT1, sM, 640); st.s_min_u32(sT1, sT1, 13 * 128); st.s_add_u32(sT0, sT0, sT1); st.s_add_u32(sT0, sT0, KVP + KV_P)
            st.v_min_u32(vT, 4, vL); st.v_lshlrev_b32(vT, 7, vT); tload(vT, WS, sT0)
        elif kind == "f":
            st.s_lshl_b32(sT3, sC, 2); st.s_add_u32(sT3, sT3, sM); st.s_lshl_b32(sT3, sT3, 10); st.s_add_u32(sT3, sT3, FL)
            st.v_min_u32(vT, 4, vL); st.v_lshlrev_b32(vT, 7, vT); tload(vT, WS, sT3)
        elif kind == "cs":
            st.s_getpc_b64(s(100, 2))
            L = newlab("pc")
            st.label(L)
            st.raw(f"    s_sub_u32 s100, s100, {L}-{NAME}_kernel")
            st.raw("    s_subb_u32 s101, s101, 0")
            st.v_and_b32(vT, 3, vL); st.v_lshlrev_b32(vT, 14, vT); st.s_lshl_b32(sT0, sWI, 7); st.v_add_u32(vT, sT0, vT)
            st.v_min_u32(vT, f".Lslow-{NAME}_kernel", vT)
            i = Ins("global_load_dword", [dum(), vT, s(100, 2)]); i.dst = set(); st.l.append(i)
        elif kind == "code":
            st.s_getpc_b64(s(100, 2))
            L = newlab("pc")
            st.label(L)
            st.raw(f"    s_sub_u32 s100, s100, {L}-{NAME}_kernel")
            st.raw("    s_subb_u32 s101, s101, 0")
            st.v_lshlrev_b32(vT, 7, vL); st.s_lshl_b32(sT0, sM, 13); st.v_add_u32(vT, sT0, vT)
            i = Ins("global_load_dword", [dum(), vT, s(100, 2)]); i.dst = set(); st.l.append(i)
            st.v_add_u32(vU, 32768, vT); st.v_min_u32(vU, f".Lslow-{NAME}_kernel", vU)
            i = Ins("global_load_dword", [dum(), vU, s(100, 2)]); i.dst = set(); st.l.append(i)
    def claim(kind):
        sm = os_("sm", "")
        def sel(lo, r):
            st.v_mov_b32(vV, r); st.v_cmp_le_u32("vcc", lo, vL); st.v_cndmask_b32(vU, vU, vV, "vcc")
        if kind in ("ox", "x"):
            st.s_lshl_b32(sT0, sC, 2); st.s_add_u32(sT1, sT0, sM); st.s_mul_i32(sT1, sT1, HB_TB); st.s_lshl_b32(sT2, sJ, 11)
            st.s_add_u32(sT1, sT1, sT2); st.s_add_u32(sT1, sT1, HB); st.v_mov_b32(vU, sT1)
            st.s_lshl_b32(sT1, sHF, 1); st.s_add_u32(sT0, sT0, sT1); st.s_lshr_b32(sT1, sM, 1); st.s_add_u32(sT0, sT0, sT1)
            st.s_lshl_b32(sT1, sCG, 1); st.s_and_b32(sT2, sM, 1); st.s_add_u32(sT1, sT1, sT2)
            st.s_lshl_b32(sT2, sT0, 15); st.s_lshl_b32(sT3, sT1, 11); st.s_add_u32(sT2, sT2, sT3); st.s_add_u32(sT2, sT2, XB - 16 * 128)
            sel(16 if kind == "ox" else 0, sT2)
            st.s_lshl_b32(sT2, sT0, 12); st.s_lshl_b32(sT3, sT1, 8); st.s_add_u32(sT2, sT2, sT3); st.s_add_u32(sT2, sT2, ST - 32 * 128)
            sel(32, sT2)
            st.v_min_u32(vT, 33, vL)
            if kind == "x": st.v_max_u32(vT, 16, vT)
            st.v_lshl_add_u32(vT, vT, 7, vU)
        elif kind == "h":
            st.s_lshl_b32(sT0, sC, 2); st.s_add_u32(sT1, sT0, sM); st.s_mul_i32(sT1, sT1, HB_TB); st.s_lshl_b32(sT2, sJ, 10)
            st.s_add_u32(sT1, sT1, sT2); st.s_add_u32(sT1, sT1, HB + 32768)
            st.s_add_u32(sT2, sT6, 2); st.v_lshrrev_b32(vT, 3, vL); st.v_min_u32(vT, sT2, vT); st.v_lshlrev_b32(vT, 14, vT)
            st.v_and_b32(vU, 7, vL); st.v_lshl_add_u32(vT, vU, 7, vT); st.v_add_u32(vT, sT1, vT)
        elif kind == "r":
            sm = "sc1"
            st.s_mul_i32(sT0, sJ, KV_J); st.s_mul_i32(sT1, sC, KV_REC); st.s_add_u32(sT0, sT0, sT1)
            st.s_mul_i32(sT1, sM, 5 * 128); st.s_min_u32(sT1, sT1, 13 * 128); st.s_add_u32(sT0, sT0, sT1); st.s_add_u32(sT0, sT0, KVP)
            st.v_mov_b32(vU, sT0); st.s_add_u32(sT0, sT0, KV_P - 5 * 128); sel(5, sT0)
            assert oi("fks", 7) == 7
            st.s_lshl_b32(sT0, sJ, 11); st.s_lshl_b32(sT1, sC, 7); st.s_add_u32(sT0, sT0, sT1); st.s_add_u32(sT0, sT0, FKV + 32 - 10 * 128)
            sel(10, sT0); st.s_add_u32(sT0, sT0, 256 * 128 - 128); sel(11, sT0)
            st.v_min_u32(vT, 11, vL); st.v_lshl_add_u32(vT, vT, 7, vU)
        st.buffer_store_dword(vL, vT, WS, 0, mods="offen " + sm, tset="w" + kind)
    def fillw(kind):
        sm = os_("fm", "sc1").replace("+", " ").replace("-", "")
        D = v(8, 4)
        def w(addr, soff, off=0, tag=None): st.buffer_store_dwordx4(D, addr, WS, soff, mods=f"offen offset:{off} {sm}", tset=tag)
        if kind == "o":
            st.s_lshl_b32(sT0, sC, 2); st.s_add_u32(sT1, sT0, sM); st.s_mul_i32(sT1, sT1, HB_TB); st.s_lshl_b32(sT2, sJ, 11)
            st.s_add_u32(sT1, sT1, sT2); st.s_add_u32(sT1, sT1, HB); w(vL16, sT1); w(vL16, sT1, 1024, "wo")
        elif kind == "x":
            st.s_lshl_b32(sT0, sC, 2)
            st.s_lshl_b32(sT1, sHF, 1); st.s_add_u32(sT0, sT0, sT1); st.s_lshr_b32(sT1, sM, 1); st.s_add_u32(sT0, sT0, sT1)
            st.s_lshl_b32(sT1, sCG, 1); st.s_and_b32(sT2, sM, 1); st.s_add_u32(sT1, sT1, sT2)
            st.s_lshl_b32(sT2, sT0, 15); st.s_lshl_b32(sT3, sT1, 11); st.s_add_u32(sT2, sT2, sT3); st.s_add_u32(sT2, sT2, XB)
            w(vL16, sT2); w(vL16, sT2, 1024)
            st.s_lshl_b32(sT2, sT0, 12); st.s_lshl_b32(sT3, sT1, 8); st.s_add_u32(sT2, sT2, sT3); st.s_add_u32(sT2, sT2, ST)
            st.v_and_b32(vT, 240, vL16); w(vT, sT2, 0, "wx")
        elif kind == "h":
            st.s_lshl_b32(sT0, sC, 2); st.s_add_u32(sT1, sT0, sM); st.s_mul_i32(sT1, sT1, HB_TB); st.s_lshl_b32(sT2, sJ, 10)
            st.s_add_u32(sT1, sT1, sT2); st.s_add_u32(sT1, sT1, HB + 32768)
            for r in range(2): w(vL16, sT1); st.s_add_u32(sT1, sT1, 16384)
            w(vL16, sT1); st.s_lshl_b32(sT2, sT6, 14); st.s_add_u32(sT1, sT1, sT2); w(vL16, sT1, 0, "wh")
        elif kind in ("r", "r1"):
            st.s_mul_i32(sT0, sJ, KV_J); st.s_mul_i32(sT1, sC, KV_REC); st.s_add_u32(sT0, sT0, sT1)
            st.s_mul_i32(sT1, sM, 640); st.s_min_u32(sT1, sT1, 13 * 128); st.s_add_u32(sT0, sT0, sT1); st.s_add_u32(sT0, sT0, KVP)
            st.v_min_u32(vT, 39 * 16, vL16)
            if kind == "r": w(vT, sT0)
            st.s_add_u32(sT0, sT0, KV_P); w(vT, sT0, 0, "wr")
    gl = []
    for g in range(8):
        k0 = (16 * (g // 4) + (g % 4)) * 16
        for m_, srd in enumerate((WG, WU)):
            for i in range(3):
                def f(g=g, k0=k0, m_=m_, srd=srd, i=i):
                    if i == 0: st.s_add_u32(sLD, sGU, k0 * 2752)
                    st.buffer_load_dwordx4(v(GU + 24 * g + 12 * m_ + 4 * i, 4), vGG[i], srd, sLD, mods="offen" + POL(srd))
                gl.append(f)
    def gu_loads(cnt):
        for _ in range(min(cnt, len(gl))):
            f = gl.pop(0)
            if not OPT.get("noG"): f()
    def colsum(n, steps, first, lo, hi, dst=None):
        L = newlab("cs")
        st.s_sub_u32(sT0, sM, lo); st.s_cmp_ge_u32(sT0, hi - lo); st.mark("save", L); st.s_cbranch_scc1(L)
        nf = len(FRS)
        def rd(k):
            a, off = steps[k]; r = FRS[k % nf]
            st.ds_read_b64_tr_b16(v(r, 2), a, mods=f"offset:{off}"); st.ds_read_b64_tr_b16(v(r + 2, 2), a, mods=f"offset:{off+512}")
        for k in range(nf - 1): rd(k)
        for k in range(len(steps)):
            acc = v(CACC + 4 * (k & 1), 4)
            st.v_mfma_f32_16x16x32_bf16(acc, v(FRS[k % nf], 4), v(SEL, 4), "0" if first and k < 2 else acc)
            if k + nf - 1 < len(steps): rd(k + nf - 1)
        if dst is not None:
            for i in range(4): st.v_add_f32(v(CACC + i), v(CACC + i), v(CACC + 4 + i))
            st.ds_write_b128(dst, v(CACC, 4))
        st.mark("merge", L); st.label(L)
    def transpose(g):
        b = GU + 24 * g
        for m_ in range(2):
            for i in range(3): st.ds_write_b128(vGL[i], v(b + 12 * m_ + 4 * i, 4), mods=f"offset:{32*m_}")
        for t in range(6):
            for u in range(2): st.ds_read_b64_tr_b16(v(b + 4 * t + 2 * u, 2), vGT, mods=f"offset:{u*4*GSTR + t*64}")
    def tsum(g):
        b = GU + 24 * g
        for t in range(6):
            st.v_mfma_f32_16x16x32_bf16(v(CACC + 4 * t, 4), v(b + 4 * t, 4), v(SEL, 4), "0" if g == 0 else v(CACC + 4 * t, 4))
    tr_next = [0]
    def transposes(cnt):
        gs = list(range(tr_next[0], min(8, tr_next[0] + cnt))); tr_next[0] += len(gs)
        for i, g in enumerate(gs):
            transpose(g)
            if i > 0: tsum(gs[i - 1])
        tsum(gs[-1])
    def gu_partial():
        st.s_mul_i32(sT0, sM, 768); st.s_add_u32(sT0, sT0, L_VB); st.v_add_u32(vT, sT0, vCW)
        for i in range(6): st.ds_write_b128(vT, v(CACC + 4 * i, 4), mods=f"offset:{128*i}")
    def gu_reduce():
        st.v_min_u32(vCR, 6 * 128 - 16, vL16)
        st.v_add_u32(vT, L_VB, vCR)
        for w in range(4): st.ds_read_b128(v(CACC + 4 * w, 4), vT, mods=f"offset:{w*768}")
        for i in range(4):
            st.v_add_f32(v(CACC + i), v(CACC + i), v(CACC + 4 + i)); st.v_add_f32(v(CACC + 8 + i), v(CACC + 8 + i), v(CACC + 12 + i))
        for i in range(4): st.v_add_f32(v(CACC + i), v(CACC + i), v(CACC + 8 + i))
        for i in range(4):
            st.v_and_b32(v(CACC + 4 + i), 0xffff0000, v(CACC + i)); st.v_sub_f32(v(CACC + i), v(CACC + i), v(CACC + 4 + i))
            st.v_cvt_pk_bf16_f32(v(CACC + i), v(CACC + 4 + i), v(CACC + i))
        st.v_and_b32(vT, 0x380, vCR); st.v_and_b32(vU, 0x30, vCR); st.v_lshl_add_u32(vT, vU, 1, vT)
        st.v_bfe_u32(vU, vCR, 6, 1); st.v_lshl_add_u32(vT, vU, 4, vT); st.v_add_u32(vT, L_CS + 384, vT)
        st.ds_write_b128(vT, v(CACC, 4))
    def cs_kv(a):
        if a == 0:
            st.s_lshl_b32(sT0, sM, 6); st.v_xor_b32(vCR, sT0, vC0)
        else:
            st.s_lshl_b32(sT0, sM, 7); st.s_add_u32(sT0, sT0, L_CS); st.v_add_u32(vV, sT0, vCW)
        colsum(a, [(vCR, 32768 * a + 2048 * k) for k in range(16)], a == 0, 0, 2, dst=vV if a == 1 else None)
    def cs_q():
        st.v_add_u32(vT, 65536, vC0); st.v_add_u32(vU, 65536, vC1); st.v_add_u32(vV, L_CS + 256, vCW)
        colsum(2, [(a, 2048 * k) for k in range(16) for a in (vT, vU)], True, 2, 3, dst=vV)

    need = {"a0": [0], "a1": [1], "g": [3, 4], "30": [5, 6, 7, 8], "3c": [9], "3d": [10], "3f": [11], "4a": [12], "4b": [13], "4c": [14], "4d": [15], "4e": [16]}
    S0 = os_("s0", "start:c1;a0:c2,csk0;a1:csk1,wst,sigA,pub,G8,sigq,G16,wsig,X2,G12,X2,G12,X2,c3,c4,X2,Th0,Tx;g:part,c5,c6,Qk,S21;p2:Th1,S7;X2:c7,c8;")
    S0 += os_("s0b", "30:red,wst;3a:c9,Twd,nd;3b:c10,nd;3c:r15,r16;3d:c11,c12;3f:c13,S4;3g:c14,S4;4a:S7;4b:u15,S7;4c:u16,S7;4d:S7;4e:c17;X4:c18")
    S1 = os_("s1", "a2:c2,sig,c3,c4;g:c5,c6;p2:Twf32;X2:c7,c8;")
    S1 += os_("s1b", "3a:c9,Twd32,nd;3b:c10,nd;3c:c11,r15,r16;3d:c12;3f:c13;3g:c14;4b:u15;4c:u16")
    def acts(txt):
        d = {}
        for part in txt.split(";"):
            k, _, l = part.partition(":"); d[k] = l.split(",")
        return d
    DR = [False]
    def run(lst, o):
        for a in lst:
            DR[0] = False
            if a == "q": issue(2)
            elif a == "pub": publish()
            elif a == "wld": st.s_lshl_b32(sT0, sJ, 10); st.buffer_load_dwordx4(v(WRAW, 4), vL16, WP, sT0, mods="offen")
            elif a == "wst":
                st.v_bfe_u32(vT, vL, 3, 2); st.v_mul_u32_u24(vT, 576, vT); st.v_lshrrev_b32(vU, 5, vL); st.v_lshl_add_u32(vT, vU, 7, vT)
                st.v_and_b32(vU, 112, vL16); st.v_add_u32(vT, vT, vU); st.v_add_u32(vT, L_KVB, vT)
                st.ds_write_b128(vT, v(WRAW, 4))
            elif a == "non": st.buffer_load_dword(vNON, "off", WS, 0, mods=f"offset:{EPOCH} sc1")
            elif a == "sig":
                st.l.append(Ins("s_nop", ["0"], tneed=f"c{o+2}")); signal(st, 1 + o // 17)
            elif a == "sigA": signal(st, 1, 16)
            elif a == "sigq":
                L = newlab("sq")
                st.l.append(Ins("s_nop", ["0"], tneed=f"c{o+2}")); signal(st, 1, 32)
                st.s_cmp_lg_u32(sM, 2); st.mark("save", L); st.s_cbranch_scc1(L)
                st.v_mov_b32(vU, 1); sigwait(st, 12, 48, regs=(13, 14, 15))
                st.mark("merge", L); st.label(L)
                cs_q(); signal(st, 1)
            elif a == "wsg": st.v_mov_b32(vU, 1); sigwait(st, 12, 64, regs=(13, 14, 15))
            elif a == "wsig": st.v_mov_b32(vU, 2); sigwait(st, 12, 32, regs=(13, 14, 15))
            elif a.startswith("csk"): cs_kv(int(a[3]))
            elif a == "csq": cs_q()
            elif a == "part": gu_partial()
            elif a == "red": gu_reduce()
            elif a[0] == "P": st.s_setprio(int(a[1:]))
            elif a == "nd": DR[0] = True
            elif a == "QC": SQ.clear()
            elif a == "wl": st.wait(lgkm=0)
            elif a[0] == "D" and a != "DF": dcap(st, a, "l")
            elif a == "DF": dflush(st, "l")
            elif a[:2] == "WB":
                L = newlab("wb")
                if a == "WB": st.s_or_b32(sT0, sJ, sM)
                else: st.s_mov_b32(sT0, sM)
                st.s_cmp_lg_u32(sT0, 0); st.mark("save", L); st.s_cbranch_scc1(L)
                st.raw("    buffer_wbl2 " + os_("wbm", "sc1").replace("+", " "))
                st.mark("merge", L); st.label(L)
            elif a == "wv": st.wait(vm=0)
            elif a[0] == "Q": squeue(a[1:])
            elif a[0] == "S":
                if LDSW(st): st.wait(lgkm=0)
                DR[0] = True; spf(int(a[1:]))
            elif a[0] == "c" and "-" in a:
                n_, PART[0], PART[1] = [int(x) for x in a[1:].split("-")]
                issue(o + n_); PART[:] = [0, 8]
            elif a[0] == "c": issue(o + int(a[1:]))
            elif a[0] == "r" and a[1:].isdigit(): stage(o + int(a[1:]))
            elif a[0] == "u" and a[1:].isdigit(): unstage(o + int(a[1:]))
            elif a[0] == "@": stamp(st, a, who="l", pair=o // 17)
            elif a[0] == "G": gu_loads(int(a[1:]))
            elif a[0] == "X": transposes(int(a[1:]))
            elif a[0] == "T": touch(a[1:])
            elif a[0] == "W": claim(a[1:])
            elif a[0] == "F": fillw(a[1:])
            elif a[0] == "N": st.l.append(Ins("s_nop", ["0"], tneed="w" + a[1:]))
            else: raise ValueError(a)
    prologue()
    for pair in range(1 if OPT['stop'] else 2):
        o = 17 * pair; A = acts(S0 if pair == 0 else S1)
        run(A.get("start", []), o)
        for b in (SEQ0 if pair == 0 else SEQA) + SEQC:
            tk = []
            for n in need.get(b, []):
                if o + n == 0 and oi("xd", 0): continue
                assert o + n in issued, (pair, b, n)
                tk.append(f"c{o+n}")
            if not (OPT.get("dcap") and b == "a0" and pair == 0): stamp(st, "<" + b, who="l", pair=pair)
            if not DR[0] and LDSW(st): st.wait(lgkm=0)
            DR[0] = False
            st.l.append(Ins("s_barrier", [], tneed=tk))
            run(A.get(b, []), o)
    assert OPT['stop'] or (not gl and tr_next[0] == 8)
    st.s_branch(".Lend")

def main():
    st = Stream()
    entry(st)
    loader(st)
    st.label(".Lslow")
    compute_slow(st)
    st.extend(OOL)
    st.label(".Lend")
    st.s_endpgm()
    bodyt = finalize(st)
    ref = open(f"cdna_kernels/{NAME}.s.ref").read().split("\n")
    head = [l for l in ref if l.startswith(";") and "@launch" not in l]
    out = "\n".join(head) + f"\n; @launch grid=(256,1,1) block=(512,1,1) lds={LDS_BYTES}\n"
    out += '.amdgcn_target "amdgcn-amd-amdhsa--gfx950"\n' + khead(NAME + "_kernel") + bodyt + kd(NAME + "_kernel")
    path = sys.argv[1] if len(sys.argv) > 1 else f"cdna_kernels/{NAME}.s"
    open(path, "w").write(out)
    stamp_names["opt"] = " ".join(a for a in sys.argv[2:] if not a.startswith(("stamps", "only"))); json.dump(stamp_names, open(path + ".json", "w"))
    n = sum(1 for l in bodyt.split("\n") if l.startswith("    ") and not l.strip().startswith(";"))
    print("wrote", path, "instructions:", n, "barriers:", SEQ0, SEQA, SEQC)

main()
```

```python
KB = 1024; MB = 1 << 20
EPOCH   = 0
XCCT    = 4096
FL      = 64 * KB
FKV     = FL + 64 * KB
DUMMY   = FKV + 64 * KB
XB      = 1 * MB
ST      = XB + 2 * MB
HB_TB   = 86 * KB
HB      = ST + 256 * KB
KV_REC  = 2304
KV_J    = 16 * KV_REC
KV_P    = 16 * KV_J
KVP     = HB + 64 * HB_TB
TG_W    = 768
TG_P    = 16 * 64 * TG_W
WS_END  = KVP + 2 * TG_P
STAMP   = (WS_END + 4095) // 4096 * 4096
X_A     = 10 * MB + MB // 2
X_B     = 2 * MB + MB // 4
OB1     = 16 * MB
assert STAMP + MB <= XB + X_A and XB + X_A + X_B + X_B <= OB1
WS_SIZE = 268435456
assert DUMMY + 128 * KB <= XB
RING    = 0
L_PH    = 131072
L_VB    = L_PH + 128 * 144
L_KVB   = L_VB + 128 * 80
L_CS    = L_KVB + 4 * 576
L_SIG   = L_CS + 9 * 128
L_EV    = L_SIG + 64
L_KH    = L_PH + 16384
L_END   = L_EV + 64
assert L_END <= 163840, L_END
LDS_BYTES = 163840
def fstart(j): return 6 * j if j < 6 else 5 * j + 6
```

```python
import sys, os, math, struct, json
sys.path.insert(0, os.path.dirname(os.path.abspath(__file__)))
from asmlib import *
from layout5 import *

NAME = "interleave_layers__linear_kernel_hedgehog__geglu_ffn__prompt"
OPT = dict(stop=None, stamps=False)
for a in sys.argv[2:]:
    k, _, val = a.partition("=")
    OPT[k] = val if val != "" else True
def oi(k, d): return int(OPT.get(k, d))
def os_(k, d): return str(OPT.get(k, d))
TG = oi("tg", 1)
TGM = 0xbfffbfff
SPEC = oi("spec", 0)
E0 = os_("e0", "Qk,Qcj,S21,QC,c0,non,wld")
SCL = "sc1"
def f2u(x): return "0x%08x" % struct.unpack("<I", struct.pack("<f", x))[0]
LOG2E = 1.4426950408889634
class G: SC = ""; TAG = "f"; SEQ = None; REC = True

WS, X_, OUT, WQ, WP, WO_, WG, WU, WD = [s(4 + 4 * i, 4) for i in range(9)]
sXC = s(40)
XO = oi("xo", 0)
XS = OUT if XO else WS
sC, sJ, sHF, sCG, sM, sNONCE, sCNT, sPAIR = [s(66 + i) for i in range(8)]
sW = s(3)
sXLD, sSTLD, sFA, sXST, sSTST, sFXST = [s(74 + i) for i in range(6)]
sOST, sFB, sFJ = s(80), s(81), s(82)
sHLD, sHST = s(84), s(85)
sKVST, sKVLD, sFKVST, sFKVLD = [s(88 + i) for i in range(4)]
sKZ, sGZ, sHALF, sH5, sF5, sHS = s(62), s(63), s(60, 2), s(49), s(83), s(41)
sT0, sT1, sT2, sT3 = [s(92 + i) for i in range(4)]
sL2E, sONE, sOUTO, sT6 = s(96), s(97), s(98), s(99)
sSTMP = s(100, 2)
sRING, sKH, sTP, sDUM, sLD = s(44), s(45), s(46), s(47), s(48)
sMASK, sBAD, sOLD, sOST1, sOLD1, sTX = s(56), s(58, 2), s(62), s(63), s(90), s(57)
vL, vL16, vA0, vFL = v(0), v(1), v(2), v(3)
RES = 4
vNON = v(12); vT = v(13); vU = v(14); vV = v(15)
vA1, vP0, vP1 = v(121), v(122), v(123)
aXW = v(126)
XF = 128
cWDb = [s(52 + i) for i in range(4)]; sDM = s(56)
aEW, aER, vEVv, vEVr, aCS3 = v(112), v(113), v(114), v(115), v(120)
aP4, vS4 = v(124), v(125)

class bc:
    def __init__(self, r, neg=False): self.r = int(r[1:]) if isinstance(r, str) else r; self.neg = neg
class ng:
    def __init__(self, r): self.r = r
def pk(st, op, d, *src):
    ops, lo, hi, n = [], [], [], []
    for x in src:
        if isinstance(x, bc): ops.append(v(x.r & ~1, 2)); lo.append(x.r & 1); hi.append(x.r & 1); n.append(int(x.neg))
        elif isinstance(x, ng): ops.append(v(x.r, 2)); lo.append(0); hi.append(1); n.append(1); assert x.r % 2 == 0
        else: ops.append(v(x, 2)); lo.append(0); hi.append(1); n.append(0); assert x % 2 == 0
    assert d % 2 == 0
    f = lambda l: "[" + ",".join(map(str, l)) + "]"
    mods = f"op_sel:{f(lo)} op_sel_hi:{f(hi)}" + (f" neg_lo:{f(n)} neg_hi:{f(n)}" if any(n) else "")
    st.op(f"v_pk_{op}_f32", v(d, 2), *ops, mods=mods)

lab_n = [0]
def newlab(p):
    lab_n[0] += 1
    return f".L{p}_{lab_n[0]}"

def nxt(st):
    st.s_add_u32(sNONCE, sNONCE, 1); st.v_add_u32(vNON, 1, vNON)

def poll(st, addr, soff, off=0, back=0):
    L = newlab("poll"); D = newlab("pdone")
    st.label(L)
    st.buffer_load_dword(vT, addr, WS, soff, mods=f"offen offset:{off} sc1")
    st.wait(vm=0)
    st.v_cmp_ne_u32("vcc", sNONCE, vT)
    st.s_cbranch_vccz(D)
    for _ in range(back): st.s_nop(15)
    st.s_sub_u32(sCNT, sCNT, 1)
    st.s_cbranch_scc0(L)
    st.s_mov_b32(sCNT, 0)
    st.label(D)

PRA, PRB = v(124), v(125)
def pload(st, r, addr, soff, off=0):
    i = Ins("buffer_load_dword", [r, addr, WS, soff], f"offen offset:{off} sc1"); i.dst = set(); st.l.append(i)
def poll2(st, addr, soff, off=0, gap=0, issued=0):
    if gap < 0: return poll(st, addr, soff, off, -1 - gap)
    L = newlab("poll"); D = newlab("pdone")
    if issued < 1: pload(st, PRA, addr, soff, off)
    if issued < 2:
        for _ in range(gap): st.s_nop(15)
        pload(st, PRB, addr, soff, off)
    st.label(L)
    for r in (PRA, PRB):
        st.wait(vm=1)
        st.v_cmp_ne_u32("vcc", sNONCE, r)
        st.s_cbranch_vccz(D)
        pload(st, r, addr, soff, off)
    st.s_sub_u32(sCNT, sCNT, 1)
    st.s_cbranch_scc0(L)
    st.s_mov_b32(sCNT, 0)
    st.wait(vm=1)
    st.label(D)

OOL = Stream()
def soft_check(st, reg, addr, soff, off=0):
    D = newlab("soft"); X = newlab("softx")
    st.v_cmp_ne_u32("vcc", sNONCE, reg)
    st.s_cbranch_vccnz(X)
    st.label(D)
    OOL.label(X); OOL.mark("reset")
    poll(OOL, addr, soff, off)
    OOL.s_branch(D)

class Spec:
    def __init__(self, n, reg, load, use, head=None, redo=None):
        self.n, self.reg, self.load, self.use, self.head, self.redo = n, reg, load, use, head, redo
    def guard(self, st, g, mf):
        L = newlab("sp")
        if g[0] == "chk":
            X = newlab("miss"); k = g[1]
            st.v_cmp_eq_u32("vcc", -1, v(self.reg(k) + 3))
            b = Ins("s_cbranch_vccnz", [X])
            OOL.label(X); OOL.mark("reset")
            self.load(OOL, k); OOL.s_bitset1_b32(sMASK, k); OOL.s_branch(L)
        elif g[0] == "vcc": b = Ins("s_cbranch_vccnz", [L])
        else: st.s_bitcmp1_b32(sMASK, g[1]); b = Ins("s_cbranch_scc1", [L])
        b.src = set(mf.src); st.l.append(b)
        return L
    def fix(self, st):
        X, D, T = newlab("fix"), newlab("fixd"), newlab("fixt")
        if self.redo: st.s_or_b32(sTX, s(58), s(59)); st.s_or_b32(sTX, sTX, sMASK)
        else: st.s_cmp_lg_u32(sMASK, 0)
        st.s_cbranch_scc1(X); st.label(D)
        o = OOL
        o.label(X); o.mark("reset")
        if self.head: self.head(o)
        o.label(T); o.mark("reset")
        o.s_sub_u32(sCNT, sCNT, 1); o.s_cselect_b32(sCNT, 0, sCNT); o.s_cbranch_scc1(D)
        o.wait(vm=0, lgkm=0)
        tail = Stream()
        for k0 in range(0, self.n, 8):
            S = newlab("fxs")
            o.s_and_b32(sTX, sMASK, 0xff << k0); o.s_cbranch_scc0(S)
            for k in range(k0, k0 + 8):
                F, R, A = newlab("fxf"), newlab("fxr"), newlab("fxa")
                o.s_bitcmp1_b32(sMASK, k); o.s_cbranch_scc1(F); o.label(R)
                tail.label(F); tail.mark("reset")
                tail.v_cmp_eq_u32("vcc", -1, v(self.reg(k) + 3)); tail.s_cbranch_vccnz(A)
                self.use(tail, k); tail.s_bitset0_b32(sMASK, k); tail.s_branch(R)
                tail.label(A); tail.mark("reset")
                self.load(tail, k); tail.s_branch(R)
            o.label(S)
        if self.redo:
            S = newlab("fxs")
            o.s_or_b32(sTX, s(58), s(59)); o.s_cbranch_scc0(S)
            o.mark("reset"); self.redo(o)
            o.label(S); o.mark("reset")
            o.s_nop(1); o.s_or_b32(sTX, s(58), s(59)); o.s_or_b32(sTX, sTX, sMASK)
        else: o.s_cmp_lg_u32(sMASK, 0)
        o.s_cbranch_scc1(T)
        o.wait(lgkm=0); o.s_nop(15); o.s_branch(D)
        o.extend(tail)
    def gate(self, st, base, off, again, n):
        X, D = newlab("gate"), newlab("gated")
        st.v_cmp_eq_u32("vcc", -1, vT); st.s_bcnt1_i32_b64(sTX, "vcc"); st.s_cmp_gt_u32(sTX, 4 * n); st.s_cbranch_scc1(X); st.label(D)
        o = OOL; E = newlab("gatee")
        o.label(X); o.mark("reset")
        o.buffer_load_dword(vT, vU, WS, base, mods=f"offen offset:{off} sc1")
        o.s_sub_u32(sCNT, sCNT, 1); o.s_cselect_b32(sCNT, 0, sCNT); o.s_cbranch_scc1(E)
        o.wait(vm=0)
        o.v_cmp_eq_u32("vcc", -1, vT); o.s_bcnt1_i32_b64(sTX, "vcc"); o.s_cmp_gt_u32(sTX, 4 * oi("gn2", n)); o.s_cbranch_scc1(X)
        o.label(E); o.mark("reset"); o.wait(vm=0)
        for f in again: f(o)
        o.s_branch(D)
    def probe(self, st, base, off):
        st.v_lshlrev_b32(vU, 9, vFL); st.buffer_load_dword(vT, vU, WS, base, mods=f"offen offset:{off} sc1")

stamp_names = {"c": [], "l": []}
def stamp(st, name, real=False, who="c", pair=None):
    if OPT.get("cap") and who == "c" and name == OPT["cap"].split("@")[0]:
        (st.s_memrealtime if OPT.get("capr") else st.s_memtime)(sSTMP); st.wait(lgkm=0)
        st.s_cmp_eq_u32(sPAIR, int(OPT["cap"].split("@")[1])); st.s_cselect_b32(s(43), s(100), s(43))
    if not OPT["stamps"]: return
    only = OPT.get("only")
    if only and who == "l" and not OPT.get("lst"): return
    if only and who == "c" and not isinstance(name, int) and name not in ("start", "end") and name not in only.split(","): return
    if isinstance(name, int): idx = name
    else:
        if name not in stamp_names[who]: stamp_names[who].append(name)
        idx = stamp_names[who].index(name)
    r = v(127) if who == "c" else v(63)
    if name == 62: st.v_mov_b32(r, s(42))
    elif name == "start" and who == "c": st.v_mov_b32(r, s(86))
    elif name == "karg": st.wait(lgkm=0); st.v_mov_b32(r, s(0))
    else:
        if real: st.s_memrealtime(sSTMP)
        else: st.s_memtime(sSTMP)
        st.wait(lgkm=0)
        st.v_mov_b32(r, s(100))
    if pair is None:
        st.s_lshl_b32(s(101), sPAIR, 8)
        st.s_add_u32(s(101), s(101), s(65))
    else:
        st.s_add_u32(s(101), s(65), 256 * pair)
    st.buffer_store_dword(r, "off", WS, s(101), mods=f"offset:{idx*4}")

def vstamp(st, name):
    if not OPT["stamps"] or name not in OPT.get("only", "").split(","): return
    if name not in stamp_names["c"]: stamp_names["c"].append(name)
    st.s_bcnt1_i32_b32(s(100), sMASK); st.v_mov_b32(v(127), s(100))
    st.s_lshl_b32(s(101), sPAIR, 8); st.s_add_u32(s(101), s(101), s(65))
    st.buffer_store_dword(v(127), "off", WS, s(101), mods=f"offset:{stamp_names['c'].index(name)*4}")

DEF = {"c": [], "l": []}
def dcap(st, name, who="c", reg=None):
    if not (OPT["stamps"] and OPT.get("dcap")): return
    if (reg is None) != (OPT["dcap"] == "1"): return
    r = v(reg) if reg else v(16 + len(DEF[who])) if who == "c" else v(30 + len(DEF[who]))
    st.s_memtime(sSTMP); st.wait(lgkm=0); st.v_mov_b32(r, s(100)); DEF[who].append((name, r))
def dflush(st, who="c"):
    if DEF[who]: st.s_lshl_b32(s(101), sPAIR, 8); st.s_add_u32(s(101), s(101), s(65))
    for name, r in DEF[who]:
        if name not in stamp_names[who]: stamp_names[who].append(name)
        st.buffer_store_dword(r, "off", WS, s(101), mods=f"offset:{stamp_names[who].index(name)*4}")
    DEF[who].clear()

def ring_addr(st, mode):
    if mode in ("trq", "trn"):
        st.v_add_u32(vA0, sRING, vP0 if mode == "trq" else vP1); st.v_xor_b32(vA1, 64, vA0)
    elif mode == "b128":
        st.v_add_u32(vA0, sRING, vL16)
def ring_next(st, mode=None):
    st.s_add_u32(sRING, sRING, 0x8000); st.s_and_b32(sRING, sRING, 0x1ffff)
    ring_addr(st, mode)
def barrier(st, name, drain=False):
    if drain: st.wait(lgkm=0)
    st.s_barrier()
    if G.REC: G.SEQ.append(name)

def signal(st, val=None, off=0):
    t0, t1 = (v(124), v(125)) if val is None else (vT, vU)
    st.s_lshl_b32(sT3, sW, 2); st.s_add_u32(sT3, sT3, L_SIG + off); st.v_mov_b32(t0, sT3)
    if val is None: st.v_add_u32(t1, 1, sPAIR)
    else: st.v_mov_b32(t1, val)
    st.ds_write_b32(t0, t1)
def sigwait(st, mask=28, off=0, regs=(124, 125, 126), cmp="ne", extra=None):
    L = newlab("sig"); D = newlab("sigd")
    a, e, r = [v(x) for x in regs]
    st.v_and_b32(a, mask, vFL); st.v_add_u32(a, L_SIG + off, a)
    if extra:
        st.ds_read_b32(r, a)
        extra(st)
        st.wait(lgkm=0)
        st.op(f"v_cmp_{cmp}_u32", "vcc", e, r)
        st.s_cbranch_vccz(D)
    st.label(L)
    st.ds_read_b32(r, a)
    st.wait(lgkm=0)
    st.op(f"v_cmp_{cmp}_u32", "vcc", e, r)
    st.s_cbranch_vccz(D)
    st.s_sub_u32(sCNT, sCNT, 1)
    st.s_cbranch_scc0(L)
    st.s_mov_b32(sCNT, 0)
    st.label(D)

def lane_tr(st, d0, d1, kind, stride=128, tmp=vT, hstride=None):
    st.v_bfe_u32(d0, vL, 2, 2)
    if stride == 128: st.v_lshlrev_b32(d0, 7, d0)
    else: st.v_mul_u32_u24(d0, stride, d0)
    st.v_lshrrev_b32(tmp, 5, vL)
    st.v_lshl_add_u32(d0, tmp, int(math.log2(hstride or 8 * stride)), d0)
    sh = dict(qkv=(5, 4), nat=(4, 5))[kind]
    st.v_and_b32(tmp, 1, vL); st.v_lshl_add_u32(d0, tmp, sh[0], d0)
    st.v_bfe_u32(tmp, vL, 1, 1); st.v_lshl_add_u32(d0, tmp, 3, d0)
    st.v_bfe_u32(tmp, vL, 4, 1); st.v_lshl_add_u32(d0, tmp, sh[1], d0)
    if stride == 128:
        st.v_bfe_u32(tmp, vL, 3, 1); st.v_lshl_add_u32(d0, tmp, 6, d0)
        if d1: st.v_xor_b32(d1, 64, d0)

gemm_n = [0]
def gemm(st, items, mode, af, nslots, depth, ready, bars=None, fill=None, budget=16, hooks=None, loads=None, pre=10, every=2, pairw=0, spec=None):
    n = len(items); loads = list(loads or []); ready = set(ready); bars = bars or {}
    nr = 0; gemm_n[0] += 1; tg = f"g{gemm_n[0]}_"
    def pump(upto):
        nonlocal nr
        while nr < n and nr <= upto:
            it = items[nr]; r = af + 4 * (nr % nslots)
            assert it["chunk"] in ready, (nr, it["chunk"])
            if nr > 0 and it["chunk"] != items[nr - 1]["chunk"]: ring_next(st, mode)
            if mode != "b128":
                a = vA1 if it["t"] else vA0
                st.ds_read_b64_tr_b16(v(r, 2), a, mods=f"offset:{it['off']}")
                st.ds_read_b64_tr_b16(v(r + 2, 2), a, mods=f"offset:{it['off']+512}", tset=tg + str(nr))
            else:
                st.ds_read_b128(v(r, 4), vA0, mods=f"offset:{it['off']}", tset=tg + str(nr))
            nr += 1
    for _ in range(min(pre, len(loads))): loads.pop(0)(st)
    pump(depth - 1)
    for i in range(n):
        it = items[i]
        if hooks and i in hooks: hooks[i](st)
        acc = v(it["acc"], 16)
        st.v_mfma_f32_32x32x16_bf16(acc, v(af + 4 * (i % nslots), 4), v(it["b"], 4), "0" if it["first"] else acc,
                                    tneed=tg + str(i + 1) if pairw and i % 2 == 0 and i + 1 < nr else None)
        if spec and it.get("guard"):
            mf = st.l.pop(); L = spec.guard(st, it["guard"], mf); st.l.append(mf); st.label(L)
        if i in bars:
            barrier(st, bars[i][0]); ready |= set(bars[i][1])
        pump(i + depth)
        if loads and i % every == every - 1: loads.pop(0)(st)
        if fill is not None: fill.take(st, budget(i) if callable(budget) else budget)
    assert not loads

def entry(st):
    st.s_cmp_ge_u32(s(2), 256)
    st.s_cbranch_scc1(".Lend")
    if OPT["stamps"]: st.s_memrealtime(s(42, 2)); st.s_memtime(s(86, 2))
    if OPT.get("dbg"): st.s_memrealtime(s(42, 2)); st.s_memtime(s(86, 2))
    st.s_load_dwordx16(s(44, 16), s(0, 2), 0)
    st.s_load_dwordx4(s(60, 4), s(0, 2), 64)
    st.s_load_dwordx2(s(64, 2), s(0, 2), 80)
    if oi("pc0", 0):
        st.s_getpc_b64(s(100, 2))
        L = newlab("pc")
        st.label(L)
        st.raw(f"    s_sub_u32 s100, s100, {L}-{NAME}_kernel")
        st.raw("    s_subb_u32 s101, s101, 0")
        m = oi("pc0", 0)
        if m == 1:
            st.v_lshlrev_b32(vU, 7, v(0))
        elif m == 2:
            st.v_and_b32(vU, 15, v(0)); st.v_lshrrev_b32(vT, 6, v(0)); st.v_and_b32(vV, 3, vT); st.v_lshl_add_u32(vU, vV, 4, vU); st.v_lshlrev_b32(vU, 7, vU)
            st.v_lshrrev_b32(vT, 2, vT); st.v_mul_u32_u24(vT, f"(.Lld0-{NAME}_kernel)&0xffff80", vT); st.v_add_u32(vU, vU, vT)
        elif m == 3:
            st.v_and_b32(vU, 15, v(0)); st.v_lshrrev_b32(vT, 6, v(0)); st.v_lshl_add_u32(vU, vT, 4, vU); st.v_lshlrev_b32(vU, 9, vU)
            st.s_lshr_b32(sT0, s(2), 3); st.s_and_b32(sT0, sT0, 3); st.s_lshl_b32(sT0, sT0, 7); st.v_add_u32(vU, sT0, vU)
        st.v_min_u32(vU, f".Lslow-{NAME}_kernel", vU)
        i = Ins("global_load_dword", [v(11), vU, s(100, 2)]); i.dst = set(); st.l.append(i)
    st.v_lshrrev_b32(vT, 6, v(0))
    st.v_and_b32(vL, 63, v(0))
    st.v_readfirstlane_b32(sW, vT)
    st.v_lshlrev_b32(vL16, 4, vL)
    st.v_and_b32(vFL, 15, vL)
    st.v_lshlrev_b32(vFL, 2, vFL)
    st.s_and_b32(sT0, s(2), 7)
    st.s_lshr_b32(sT1, s(2), 3)
    st.s_lshr_b32(sC, sT1, 4)
    st.s_lshl_b32(sT0, sT0, 1)
    st.s_add_u32(sC, sC, sT0)
    st.s_and_b32(sJ, sT1, 15)
    st.s_lshr_b32(sHF, sJ, 3)
    st.s_and_b32(sCG, sJ, 7)
    st.s_and_b32(sM, sW, 3)
    st.s_mov_b32(sCNT, 1 << 18)
    st.s_mov_b32(sPAIR, 0)
    st.s_cmp_lt_u32(sJ, 6)
    st.s_cselect_b32(sT6, 1, 0)
    st.s_getreg_b32(sXC, "hwreg(HW_REG_XCC_ID, 0, 4)")
    for d in (WS, X_, OUT, WQ, WP, WO_, WG, WU, WD):
        st.s_mov_b32(s(int(d[2:d.index(":")]) + 3), 0x20000)
    for d, size in ((X_, 2048 * 1024), (WQ, 512 * 3072), (WS, WS_SIZE), (WP, 32 * 512), (WO_, 512 * 1024), (WG, 512 * 2752),
                    (WU, 512 * 2752), (WD, 1376 * 1024), (OUT, 2048 * 1024)):
        st.s_mov_b32(s(int(d[2:d.index(":")]) + 2), size)
    if oi("cfirst", 1) and oi("es", 0):
        if oi("w7", 1): st.s_cmp_eq_u32(sW, 7); st.s_cbranch_scc1(".Lld7")
        st.s_cmp_lt_u32(sW, 4); st.s_cbranch_scc1(".Lcmp0")
        early_round(st); st.s_branch(".Lld0")
        st.label(".Lcmp0"); st.mark("reset")
        compute(st)
        if oi("w7", 1):
            st.label(".Lld7"); st.mark("reset")
            early_round(st)
        st.label(".Lld0"); st.mark("reset")
    elif oi("cfirst", 1):
        st.s_cmp_ge_u32(sW, 4); st.s_cbranch_scc1(".Lld0")
        compute(st)
        st.label(".Lld0"); st.mark("reset")
    else:
        st.s_cmp_lt_u32(sW, 4); st.s_cbranch_scc1(".Lcomp")

def early_round(st, wait=True):
    r = 90 if wait else 54
    a, b = s(r), s(r + 1)
    L = oi("esl", 0)
    st.s_and_b32(a, sC, 1); st.s_lshl_b32(a, a, 4); st.s_add_u32(a, a, sJ); st.s_lshl_b32(a, a, 2 if L else 3); st.s_add_u32(a, a, sM if L else sW)
    st.s_lshr_b32(b, a, 4); st.s_mul_i32(b, b, 3072); st.s_and_b32(a, a, 15); st.s_lshl_b32(a, a, 7); st.s_add_u32(a, a, b)
    if wait: st.wait(lgkm=0)
    st.s_add_u32(a, s(46), a); st.s_addc_u32(b, s(47), 0)
    for i in range(oi("es", 0)):
        x = Ins("s_load_dwordx2", [s(52, 2), s(r, 2), hex(i * (8 if L else 16) * 3072 + 1024 + 60)]); x.dst = set(); st.l.append(x)

def rot(st, d, t):
    if not oi("rot", 0): st.s_mov_b32(d, 0); return
    st.s_and_b32(d, sJ, 1); st.s_and_b32(t, sC, 1); st.s_lshl_b32(t, t, 1); st.s_add_u32(d, d, t); st.s_lshl_b32(d, d, 1)
    st.s_lshr_b32(t, sJ, 1); st.s_add_u32(d, d, t)

def srds(st, lst):
    src = {X_: 44, WQ: 46, WP: 48, WO_: 50, WG: 54, WU: 56, WD: 58, OUT: 60, WS: 64}
    for d in lst:
        b = int(d[2:d.index(":")])
        st.s_mov_b32(s(b), s(src[d])); st.s_and_b32(s(b + 1), s(src[d] + 1), 0xffff)

def stamp_base(st):
    if OPT["stamps"]:
        st.s_lshl_b32(s(65), s(2), 3); st.s_add_u32(s(65), s(65), sW); st.s_lshl_b32(s(65), s(65), 9)
        st.s_add_u32(s(65), s(65), STAMP)

aK, aV, aQ, AF1, WPH, STT = 16, 32, 48, 64, 88, 96
NM, RS, VE, LR = v(112), v(113), v(114), v(115)
aCS, aA, aB, aR1, aR2 = v(116), v(117), v(118), v(119), v(120)

def kv_items():
    return [dict(chunk=k // 16, off=(k % 16) * 2048, t=t, acc=acc, b=XF + 4 * k, first=k == 0)
            for k in range(32) for t, acc in ((0, aK), (1, aV))]

CK, CV = aQ, STT
def k_addr(st):
    st.v_lshrrev_b32(vU, 5, vL); st.v_and_b32(vT, 1, vL); st.v_cmp_eq_u32("vcc", vT, vU)
    st.v_lshlrev_b32(aCS, 6, vU); st.v_add_u32(aCS, L_CS, aCS)
    st.v_lshlrev_b32(aR1, 7, vU); st.v_and_b32(vT, 12, vL); st.v_lshl_add_u32(aR1, vT, 3, aR1)
    st.v_and_b32(vT, 16, vL); st.v_add_u32(aR1, aR1, vT); st.v_and_b32(vT, 2, vL); st.v_lshl_add_u32(aR1, vT, 2, aR1)
    st.v_mov_b32(vT, 544); st.v_cndmask_b32(aR1, vT, aR1, "vcc"); st.v_add_u32(aR1, L_KVB, aR1)
    st.v_and_b32(vT, 31, vL); st.s_lshl_b32(sT0, sM, 5); st.v_add_u32(vT, sT0, vT)
    st.v_mul_u32_u24(aA, 144, vT); st.v_lshl_add_u32(aA, vU, 6, aA); st.v_add_u32(aA, L_PH, aA)
    st.v_mul_u32_u24(aB, 80, vT); st.v_lshl_add_u32(aB, vU, 5, aB); st.v_add_u32(aB, L_VB, aB)
def k_reads(st, which="wkv"):
    if "k" in which:
        for i in range(4): st.ds_read_b128(v(CK + 4 * i, 4), aCS, mods=f"offset:{16*i}")
    if "w" in which:
        for q in range(4): st.ds_read_b64_tr_b16(v(WPH + 2 * q, 2), aR1, mods=f"offset:{576*q}")
    if "v" in which:
        for i in range(4): st.ds_read_b128(v(CV + 4 * i, 4), aCS, mods=f"offset:{128+16*i}")

def fin_stats(st, S, Q, t0, t1, negmean, rstd, vare):
    if t0: st.v_mov_b32(t0, S)
    st.v_mov_b32(t1, Q)
    if t0: st.v_permlane32_swap_b32(S, t0)
    st.v_permlane32_swap_b32(Q, t1)
    if t0: st.v_add_f32(S, S, t0)
    st.v_add_f32(Q, Q, t1)
    st.v_mul_f32(negmean, f2u(-1.0 / 512), S)
    st.v_mul_f32(Q, f2u(1.0 / 512), Q)
    st.v_fma_f32(vare, "-" + negmean, negmean, Q)
    st.v_max_f32(vare, 0, vare)
    st.v_add_f32(vare, f2u(1e-5), vare)
    st.v_rsq_f32(rstd, vare)

def stats(st, stt, negmean, rstd, vare):
    S, Q = v(stt), v(stt + 1)
    for i in range(4): st.v_add_f32(v(stt + i), v(stt + i), v(stt + 4 + i))
    for i in range(4): st.v_add_f32(v(stt + 8 + i), v(stt + 8 + i), v(stt + 12 + i))
    for i in range(4): st.v_add_f32(v(stt + i), v(stt + i), v(stt + 8 + i))
    st.v_add_f32(S, S, v(stt + 2)); st.v_add_f32(Q, Q, v(stt + 3))
    fin_stats(st, S, Q, v(stt + 2), v(stt + 3), negmean, rstd, vare)

def p1a0(st):
    g0, g1, aW = v(118), v(119), v(120)
    aRd = [v(88 + i) for i in range(4)]
    QD, SA, SELA = 96, 112, 92
    XD = oi("xd", 0)
    st.v_lshrrev_b32(vT, 3, vL); st.v_and_b32(vV, 7, vL)
    if XD: st.v_lshrrev_b32(vU, 4, vL); st.v_xor_b32(vV, vV, vU)
    st.v_lshlrev_b32(g0, 10, vT); st.v_lshl_add_u32(g0, vV, 4, g0)
    st.s_lshl_b32(sT0, sC, 2); st.s_add_u32(sT0, sT0, sM); st.s_lshl_b32(sT0, sT0, 15)
    GA = [v(48 + g) for g in range(4)]
    PRE = oi("pre", 0); assert not (PRE and (XD or oi("rot", 0)))
    st.v_lshlrev_b32(g1, 5, vFL); st.s_lshl_b32(sT1, sJ, 11); st.s_add_u32(sT1, sT1, sT0)
    if PRE: st.v_add_u32(v(53), sT1, g1)
    for g in range(4):
        st.v_add_u32(GA[g], sT0, g0)
        if XD and g & 1: st.v_xor_b32(GA[g], 64, GA[g])
        if g < 3: st.s_add_u32(sT0, sT0, 8192)
    vKc, sA0, sKc, sK8 = v(52), s(41), s(83), s(98)
    AREA = [0, 16384, 32768, 49152, 65536, 32768, 49152, 65536]
    if XD:
        st.v_bfe_u32(vU, vL, 4, 1); st.v_lshlrev_b32(vU, 2, vU); st.v_and_b32(vV, 7, vL); st.v_xor_b32(vU, vU, vV)
        st.v_mul_u32_u24(vKc, 3072, vT); st.v_and_b32(vV, 3, vU); st.v_lshl_add_u32(vKc, vV, 4, vKc)
        st.v_lshrrev_b32(vV, 2, vU); st.v_lshl_add_u32(vKc, vV, 10, vKc); st.v_add_u32(vKc, 1024, vKc)
        st.s_lshl_b32(sA0, sM, 12); st.s_add_u32(sA0, sA0, 65536); st.s_lshl_b32(sK8, sM, 13)
        st.s_mul_i32(sKc, sM, 64 * 3072); st.s_lshl_b32(sT0, sJ, 6); st.s_add_u32(sKc, sKc, sT0)
    if oi("tk0", 0):
        st.v_lshrrev_b32(vT, 5, vL); st.v_lshlrev_b32(vT, 8, vT); st.v_bfe_u32(vU, vL, 4, 1); st.v_add_u32(vT, vT, vU)
        st.v_mul_u32_u24(v(124), 3072, vT); st.v_lshl_add_u32(v(124), vFL, 5, v(124))
        st.s_and_b32(sT2, sC, 1); st.s_lshl_b32(sT2, sT2, 4); st.s_add_u32(sT2, sT2, sJ); st.s_lshl_b32(sT2, sT2, 2); st.s_add_u32(sT2, sT2, sM)
        st.s_mul_i32(sT2, sT2, 2 * 3072); st.s_add_u32(sT2, sT2, 1024)
    sR, sQO = s(41), s(83)
    if not XD and not PRE: rot(st, sR, sT0)
    def c0(st):
        srds(st, [WQ])
        for i in range(8):
            st.s_add_u32("m0", sK8, 1024 * i); st.s_add_u32(sT0, sKc, 8 * i * 3072)
            st.buffer_load_dwordx4(vKc, WQ, sT0, mods="offen lds", tset="c0c" if i == 7 else None)
    def xl(p, st):
        if not XD and not PRE: st.s_add_u32(sQO, sR, p); st.s_and_b32(sQO, sQO, 7); st.s_lshl_b32(sQO, sQO, 7)
        if p == (-1 if XD else 0):
            st.wait(lgkm=0)
            srds(st, [X_])
            if OPT["stamps"]: st.s_memtime(s(0, 2))
            dcap(st, "dk")
            if OPT.get("lat"):
                srds(st, [WQ, WO_, WG, WD, WS, OUT])
                st.v_lshlrev_b32(v(40), 2, vL)
                for nm_, srd, off in (("x0", X_, 0), ("x1", X_, 4096), ("x2", X_, 65536), ("x3", X_, 1 << 20), ("wo", WO_, 0), ("wo2", WO_, 262144), ("wg", WG, 0), ("wd", WD, 0),
                                      ("ws", WS, XB), ("ws2", WS, XB + 4096), ("ws3", WS, HB + 2 * MB), ("out", OUT, 0)):
                    st.s_mov_b32(sT2, off); st.buffer_load_dword(v(41), v(40), srd, sT2, mods="offen"); st.wait(vm=0); dcap(st, nm_)
            if oi("tx0", 1):
                i = Ins("buffer_load_dword", [v(126), v(53), X_, "0"] if PRE else [v(126), g1, X_, sT1], "offen"); i.dst = set(); st.l.append(i)
            if oi("tk0", 0):
                srds(st, [WQ])
                i = Ins("buffer_load_dword", [v(125), v(124), WQ, sT2], "offen"); i.dst = set(); st.l.append(i)
        if p < 0: return
        for g in range(4):
            if XD:
                st.s_add_u32("m0", sA0 if AREA[p] < 65536 else sKc, AREA[p] + 1024 * g - 128 * p)
                st.buffer_load_dwordx4(GA[g], X_, 0, mods=f"offen offset:{128*p} lds", tset=f"x{p}" if g == 3 else None,
                                       tneed=f"r{p-3}" if p >= 5 and g == 0 else None)
            elif PRE: st.buffer_load_dwordx4(v(XF + 16 * p + 4 * g, 4), GA[g], X_, 0, mods=f"offen offset:{128*p}")
            else: st.buffer_load_dwordx4(v(XF + 16 * p + 4 * g, 4), GA[g], X_, sQO, mods="offen")
        if p == 7 and oi("nonl", 0): st.buffer_load_dword(vNON, "off", WS, 0, mods=f"offset:{EPOCH} sc1")
    def head(st):
        n0 = oi("xn0", 2); n1 = oi("xn1", 4)
        if XD: n0 = oi("xn0", 1); xl(-1, st)
        for p in range(n0):
            xl(p, st)
            if oi("es", 0) and not oi("esl", 0) and p == min(n0, oi("esp", 1)) - 1: early_round(st, wait=False)
        if XD: c0(st)
        srds(st, [WS, OUT])
        stamp_base(st)
        if XD: stamp(st, 62, True); stamp(st, "start"); stamp(st, "karg"); stamp(st, "xissued")
        if not oi("nonl", 0): st.buffer_load_dword(vNON, "off", WS, 0, mods=f"offset:{EPOCH} sc1")
        return n0, n1
    def block(st, post, sKH, sTP, sKZ, sGZ):
        st.s_and_b32(sKH, sM, 1); st.s_lshr_b32(sTP, sM, 1); post.s_mov_b32(sRING, 0)
        st.v_and_b32(aA, 31, vL); st.v_lshlrev_b32(aA, 10, aA); st.v_lshrrev_b32(vT, 5, vL); st.v_lshl_add_u32(aA, vT, 4, aA)
        st.s_lshl_b32(sOUTO, sC, 17); st.s_lshl_b32(sT1, sHF, 16); st.s_add_u32(sOUTO, sOUTO, sT1)
        st.s_lshl_b32(sT1, sTP, 15); st.s_add_u32(sOUTO, sOUTO, sT1); st.s_lshl_b32(sT1, sCG, 7); st.s_add_u32(sOUTO, sOUTO, sT1)
        st.s_lshl_b32(sT1, sKH, 6); st.s_add_u32(sOUTO, sOUTO, sT1)
        post.s_mov_b32(sL2E, f2u(LOG2E)); post.s_mov_b32(sONE, 0x3f803f80)
        st.s_lshl_b32(sT0, sC, 2); st.s_add_u32(sT1, sT0, sM)
        st.s_lshl_b32(sXLD, sT1, 15)
        if not XO: st.s_add_u32(sXLD, sXLD, XB)
        st.s_lshl_b32(sSTLD, sT1, 12); st.s_add_u32(sSTLD, sSTLD, ST)
        st.s_lshl_b32(sFA, sT1, 10); st.s_add_u32(sFA, sFA, FL)
        st.s_lshl_b32(sT2, sJ, 2); st.s_add_u32(sFJ, sFA, sT2)
        st.s_mul_i32(sHST, sT1, HB_TB); st.s_add_u32(sHST, sHST, HB)
        st.s_lshl_b32(sT2, sJ, 11); st.s_add_u32(sOST, sHST, sT2)
        post.s_mov_b32(s(60), 0); post.s_mov_b32(s(61), -1)
        st.s_lshl_b32(sT2, sJ, 10); st.s_add_u32(sHST, sHST, sT2)
        post.s_lshl_b32(sDUM, sFA, 1); post.s_add_u32(sDUM, sDUM, (DUMMY - 2 * FL) & 0xffffffff)
        st.s_lshl_b32(sT1, sHF, 1); st.s_add_u32(sT1, sT1, sT0); st.s_add_u32(sT1, sT1, sTP)
        st.s_lshl_b32(sT3, sCG, 1); st.s_add_u32(sT3, sT3, sKH)
        st.s_lshl_b32(sXST, sT1, 15); st.s_lshl_b32(sT2, sT3, 11); st.s_add_u32(sXST, sXST, sT2)
        if not XO: st.s_add_u32(sXST, sXST, XB)
        st.s_lshl_b32(sSTST, sT1, 12); st.s_lshl_b32(sT2, sCG, 9); st.s_add_u32(sSTST, sSTST, sT2)
        st.s_lshl_b32(sT2, sKH, 3); st.s_add_u32(sSTST, sSTST, sT2); st.s_add_u32(sSTST, sSTST, ST)
        st.s_lshl_b32(sFB, sT1, 10); st.s_add_u32(sFB, sFB, FL)
        st.s_lshl_b32(sT2, sT3, 2); st.s_add_u32(sFXST, sFB, sT2)
        st.s_lshl_b32(sT2, sKH, 10)
        st.s_mul_i32(sHLD, sT1, HB_TB); st.s_add_u32(sHLD, sHLD, sT2); st.s_add_u32(sHLD, sHLD, HB)
        if SPEC & 1:
            post.s_mov_b32(sOLD, sHLD)
            post.s_lshl_b32(sT0, sJ, 11); post.s_add_u32(sOST1, sXLD, sT0); post.s_add_u32(sOST1, sOST1, OB1 - XB)
            post.s_and_b32(sOLD1, sXST, ~32767 & 0xffffffff); post.s_lshl_b32(sT0, sKH, 10); post.s_add_u32(sOLD1, sOLD1, sT0); post.s_add_u32(sOLD1, sOLD1, OB1 - XB)
        if TG:
            st.s_lshl_b32(sT1, sJ, 2); st.s_add_u32(sT1, sT1, sM); st.s_mul_i32(sKVLD, sT1, 16 * TG_W); st.s_add_u32(sKVLD, sKVLD, KVP)
            st.s_mul_i32(sKVST, sC, TG_W); st.s_add_u32(sKVST, sKVST, sKVLD)
        else:
            st.s_mul_i32(sKVLD, sJ, KV_J); st.s_add_u32(sKVLD, sKVLD, KVP)
            st.s_mul_i32(sKVST, sC, KV_REC); st.s_add_u32(sKVST, sKVST, sKVLD)
            st.s_lshl_b32(sT1, sKH, 7); st.s_lshl_b32(sT2, sTP, 5); st.s_add_u32(sT1, sT1, sT2); st.s_add_u32(sKZ, sKVST, sT1); st.s_add_u32(sKZ, sKZ, 2048)
            st.s_lshl_b32(sT1, sKH, 10); st.s_lshl_b32(sT2, sTP, 6); st.s_add_u32(sT1, sT1, sT2); st.s_add_u32(sKVST, sKVST, sT1)
            st.s_lshl_b32(sT1, sM, 6); st.s_add_u32(sGZ, sKVLD, sT1); st.s_add_u32(sGZ, sGZ, 2048)
            st.s_lshl_b32(sT1, sM, 9); st.s_add_u32(sKVLD, sKVLD, sT1)
            st.s_lshl_b32(sFKVLD, sJ, 11); st.s_add_u32(sFKVLD, sFKVLD, FKV)
            st.s_lshl_b32(sT1, sC, oi("fks", 7)); st.s_lshl_b32(sT2, sM, 2); st.s_add_u32(sFKVST, sT1, sT2); st.s_add_u32(sFKVST, sFKVST, sFKVLD)
        for i in range(4): st.v_mov_b32(v(96 + i), 0)
        st.v_and_b32(vT, 3, vL); st.v_mul_u32_u24(vT, 576, vT); st.v_add_u32(vT, L_KVB + 544, vT)
        st.ds_write_b128(vT, v(96, 4))
        st.v_and_b32(vT, 112, vL16); st.v_add_u32(vT, L_SIG, vT)
        st.ds_write_b128(vT, v(96, 4))
        st.v_bfe_u32(vT, vL, 4, 1); st.v_and_b32(vU, 1, vL); st.v_cmp_eq_u32("vcc", vT, vU)
        st.v_mov_b32(vV, 0x3f803f80)
        for i in range(4): st.v_cndmask_b32(v(SELA + i), 0, vV, "vcc")
        if XD: sT0_ = sA0
        else:
            sT0_ = sT0
            st.s_lshl_b32(sT0, sM, 12); st.s_add_u32(sT0, sT0, L_PH)
            st.v_and_b32(vT, 48, vL); st.v_xor_b32(vT, vT, vL16); st.v_add_u32(aW, sT0, vT); st.v_xor_b32(g1, 64, aW)
        st.v_and_b32(vT, 31, vL); st.v_lshrrev_b32(vU, 5, vL); st.v_bfe_u32(vV, vL, 1, 3); st.v_xor_b32(vU, vU, vV)
        st.v_lshlrev_b32(vT, 7, vT); st.v_lshl_add_u32(vT, vU, 4, vT); st.v_add_u32(aRd[0], sT0_, vT)
        for i in range(1, 4): st.v_xor_b32(aRd[i], 32 * i, aRd[0])
        if XD:
            st.s_lshl_b32(sT0, sM, 9); st.s_add_u32(sKc, sA0, sT0); st.s_add_u32(sT0, sT0, 65536)
            for i in range(4): st.v_add_u32(aR4[i], sT0, aRd[i])
        lane_tr(st, vP0, None, "qkv"); ring_addr(post, "trq")
    aR4 = [v(56 + i) for i in range(4)]
    if PRE:
        B = Stream(); post = Stream()
        post.s_mov_b32(sKH, s(96)); post.s_mov_b32(sTP, s(97)); post.s_mov_b32(sKZ, s(41)); post.s_mov_b32(sGZ, s(83))
        block(B, post, s(96), s(97), s(41), s(83))
        print("block", len(B.l), file=sys.stderr)
        o = oi("prer", 0)
        if o:
            k = next(i for i, x in enumerate(B.l) if x.name == "v_mov_b32" and x.ops[0] == "v96")
            B.l = B.l[k:] + B.l[:k]; print("vector part", len(B.l) - k, file=sys.stderr)
        st.extend(B.l[:PRE]); n0, n1 = head(st); LATE = Stream(); LATE.extend(B.l[PRE:]); LATE.extend(post)
        if not oi("late", 0): st.extend(LATE); LATE = Stream()
    else:
        n0, n1 = head(st); post = Stream(); LATE = Stream()
        block(st, post, sKH, sTP, sKZ, sGZ); st.extend(post)
    def rnd(q, st):
        R = XF + 16 * q
        if XD:
            for i in range(4):
                st.ds_read_b128(v(R + 4 * i, 4), (aRd if AREA[q] < 65536 else aR4)[i], mods=f"offset:{AREA[q] % 65536}",
                                tneed=f"x{q}" if i == 0 else None, tset=f"r{q}" if i == 3 else None)
            return
        for g in range(4): st.ds_write_b128(g1 if g & 1 else aW, v(R + 4 * g, 4), mods=f"offset:{1024*g}")
        for i in range(4): st.ds_read_b128(v(R + 4 * i, 4), aRd[i])
    def smf(k, st):
        f = v(XF + 4 * k, 4)
        st.v_mfma_f32_32x32x16_bf16(v(QD, 16), f, f, "0" if k == 0 else v(QD, 16))
        st.v_mfma_f32_16x16x32_bf16(v(SA, 4), v(SELA, 4), f, "0" if k == 0 else v(SA, 4))
    def res(st):
        st.buffer_load_dwordx4(v(RES, 4), aA, X_, sOUTO, mods="offen")
        st.buffer_load_dwordx4(v(RES + 4, 4), aA, X_, sOUTO, mods="offen offset:32")
    hq = oi("hq", 8)
    ORD = [int(c) for c in os_("xord", "01234567")]; assert ORD[:2] == [0, 1] and (hq == 8 or ORD == sorted(ORD))
    if XD:
        hq = 1; n1 = oi("xn1", 5)
        for p in range(n0, n1): xl(p, st)
        stamp(st, "xiss2")
        barrier(st, "s0")
        for p in range(n1, 5): xl(p, st)
        rnd(0, st)
        for k in range(4): smf(k, st)
        rnd(1, st)
        acts = {}
        act = lambda i, f: acts.setdefault(i, []).append(f)
        rps = [int(x) for x in os_("rp", "2,8,14,28,36,44").split(",")]; xps = [int(x) for x in os_("xp", "5,11,17").split(",")]
        for b in range(2, 8): act(rps[b - 2], lambda st, b=b: rnd(b, st))
        for b in range(5, 8): act(xps[b - 5], lambda st, b=b: xl(b, st))
        for k in range(4, 32):
            last = 2 * (k - 4) + oi("sm0", 0); assert k < 8 or last > rps[k // 4 - 2]
            act(last, lambda st, k=k: smf(k, st))
        rp = 0
        stamp(st, "p1pre")
        st.wait(lgkm=0); st.l.append(Ins("s_barrier", [], tneed="c0c"))
        if G.REC: G.SEQ.append("a0")
    else:
      dcap(st, "d1")
      for p in range(n0, n1): xl(ORD[p], st)
      nl = n1; nb = oi("xnb", 8)
      dcap(st, "d2")
      rnd(0, st)
      dcap(st, "r0")
      for q in range(hq):
        if nl < nb: xl(ORD[nl], st); nl += 1
        if q < 7: rnd(ORD[q + 1], st)
        lk = oi("late", 0)
        st.extend(LATE.l[:lk]); LATE.l = LATE.l[lk:]
        if q == hq - 1: st.extend(LATE)
        if q in (0, 2, 4, 6): dcap(st, f"r{q+1}")
        for k in range(4 * ORD[q], 4 * ORD[q] + 4): smf(k, st)
      while nl < nb: xl(ORD[nl], st); nl += 1
      acts = {}
      act = lambda i, f: acts.setdefault(i, []).append(f)
      for n, p in enumerate(range(nl, 8)): act(oi("xat", 0) + oi("xgap", 8) * n, lambda st, p=p: xl(p, st))
      rl = oi("rl", 2); last = 0
      for b in range(hq, 8):
        rp = max(1, 8 * (b - 1) - rl)
        if b > hq: act(rp, lambda st, b=b: rnd(b, st))
        for u in range(4):
            last = max(last + 1, (rp + oi("rs", 5) if b > hq else 0) + 2 * u)
            act(last, lambda st, k=4 * b + u: smf(k, st))
      stamp(st, "p1pre")
      dcap(st, "dp")
      barrier(st, "a0", drain=True)
      dcap(st, "da")
      stamp(st, 62, True); stamp(st, "start"); stamp(st, "karg")
      dflush(st)
    stamp(st, "B(a0)")
    bars = {oi("a1", 20): ("a1", [1])}
    f = Stream()
    M = [s(50 + 2 * i, 2) for i in range(5)]
    for i, bit in enumerate((16, 8, 2, 1)):
        f.v_and_b32(vT, bit, vL); f.v_cmp_ne_u32(M[i], 0, vT)
    f.v_bfe_u32(vT, vL, 2, 1); f.v_lshrrev_b32(vU, 5, vL); f.v_cmp_eq_u32(M[4], vT, vU)
    fm = None
    if hq < 8: fm = f; f = Stream()
    f.v_cndmask_b32(v(SA), v(SA), v(SA + 1), M[0])
    for i in range(8): f.v_cndmask_b32(v(QD + i), v(QD + i), v(QD + 8 + i), M[0])
    for i in range(4): f.v_cndmask_b32(v(QD + i), v(QD + i), v(QD + 4 + i), M[1])
    for i in range(2): f.v_cndmask_b32(v(QD + i), v(QD + i), v(QD + 2 + i), M[2])
    f.v_cndmask_b32(v(QD), v(QD), v(QD + 1), M[3])
    f.v_cndmask_b32(v(QD), 0, v(QD), M[4])
    fin_stats(f, v(SA), v(QD), None, v(QD + 1), NM, RS, VE)
    f.v_mul_f32(LR, sL2E, RS)
    g = Stream(); k_addr(g)
    g2 = g if hq == 8 else Stream()
    lane_tr(g2, vP1, None, "nat")
    g2.s_lshl_b32(sT2, sKH, 6); g2.v_xor_b32(vP1, sT2, vP1); g2.s_lshl_b32(sT2, sKH, 11); g2.v_add_u32(vP1, sT2, vP1)
    fill = Filler()
    r0 = oi("res0", 24)
    if hq == 8:
        act(2, lambda st: fill.add(f)); act(r0, res); act(r0 + 1, lambda st: fill.add(g))
    else:
        act(oi("gat", 1), lambda st: (fill.add(g2), fill.add(fm))); act(max(r0, 25), res)
        act(max(rp + 1, 26), lambda st: fill.add(g)); act(last + 3, lambda st: fill.add(f))
    hooks = {i: (lambda st, l=l: [f(st) for f in l]) for i, l in acts.items()}
    gemm(st, kv_items(), "trq", AF1, 6, 5, ready=[0], bars=bars, hooks=hooks, fill=fill, budget=oi("bud10", 8), pairw=oi("pw1", 0))
    fill.flush(st)
    st.v_add_u32(vNON, 1, vNON)
    st.v_mov_b32(v(125), 1); sigwait(st, 12, 32, cmp="gt")
    k_reads(st)
    st.v_readfirstlane_b32(sNONCE, vNON)
    signal(st, 2, 32)
    st.s_add_u32(sH5, sHST, 16384 * 5); st.s_add_u32(sF5, sDUM, 1024)
    st.s_cmp_eq_u32(sT6, 1); st.s_cselect_b32(sH5, sH5, sDUM); st.s_cselect_b32(sF5, sFJ, sF5)
    stamp(st, "KVgemm")

def frag_loads(base, regs, stride, per, WS=WS):
    out = []
    for k, r in enumerate(regs):
        def f(st, k=k, r=r):
            if k % per == 0: st.s_add_u32(sLD, base, k * stride)
            st.buffer_load_dwordx4(v(r, 4), vL16, WS, sLD, mods=f"offen offset:{(k % per) * stride} {SCL}")
        out.append(f)
    return out

def x_addr(st):
    st.v_lshrrev_b32(vV, 5, vL); st.v_lshlrev_b32(vV, 11, vV); st.v_and_b32(vU, 31, vL); st.v_lshl_add_u32(vV, vU, 4, vV)
def p1a_pre(st):
    ring_next(st, "trq"); x_addr(st)
def p3_pre(st):
    st.v_and_b32(vU, 31, vL); st.v_lshlrev_b32(aCS3, 2, vU); st.v_add_u32(aCS3, L_CS + 3 * 128, aCS3)
    ring_next(st, "b128"); x_addr(st)
    st.s_add_u32(sT0, sRING, 0x10000); st.s_and_b32(sT0, sT0, 0x1ffff); st.v_add_u32(vA1, sT0, vL16)
    st.s_lshl_b32(sT0, sM, 12); st.s_add_u32(sT0, sT0, L_PH); st.v_add_u32(aXW, sT0, vL16)
def x_loads(st, stt, at=32):
    L = frag_loads(sXLD, [XF + 4 * k for k in range(32)], 1024, 4, XS)
    def stl(st):
        for i in range(4):
            st.buffer_load_dwordx4(v(stt + 4 * i, 4), vV, WS, sSTLD, mods=f"offen offset:{512*i} {SCL}")
    return L[:at] + [stl] + L[at:]

def featmap(st, acc, kb, wp, e1, e2, lr, mid=None, hk=None):
    n0 = len(st.l)
    featmap_(st, acc, kb, wp, e1, e2, lr, mid)
    for at in sorted(hk or {}, reverse=True):
        x = Stream(); hk[at](x); st.l[n0 + at:n0 + at] = x.l
def featmap_(st, acc, kb, wp, e1, e2, lr, mid=None):
    for i in range(8): st.v_cvt_pk_bf16_f32(v(kb + i), v(acc + 2 * i), v(acc + 2 * i + 1))
    st.v_mfma_f32_32x32x16_bf16(v(acc, 16), v(wp, 4), v(kb, 4), "0")
    st.v_mfma_f32_32x32x16_bf16(v(acc, 16), v(wp + 4, 4), v(kb + 4, 4), v(acc, 16))
    if mid: mid(st)
    mx, mn = v(kb), v(kb + 1)
    p = lambda i: v(acc + i)
    st.v_max3_f32(mx, p(0), p(1), p(2)); st.v_min3_f32(mn, p(0), p(1), p(2))
    for i in range(3, 15, 2):
        st.v_max3_f32(mx, mx, p(i), p(i + 1)); st.v_min3_f32(mn, mn, p(i), p(i + 1))
    st.v_max_f32(mx, mx, p(15)); st.v_min_f32(mn, mn, p(15))
    pk(st, "mul", kb, bc(lr), kb)
    for i in range(0, 16, 2):
        pk(st, "fma", e1 + i, acc + i, bc(lr), bc(kb, True)); pk(st, "fma", e2 + i, ng(acc + i), bc(lr), bc(kb + 1))
    for i in range(16):
        st.v_exp_f32(v(e1 + i), v(e1 + i)); st.v_exp_f32(v(e2 + i), v(e2 + i))
    s1, s2 = kb + 2, kb + 4
    pk(st, "add", s1, e1, e1 + 2); pk(st, "add", s2, e2, e2 + 2)
    for i in range(4, 16, 2):
        pk(st, "add", s1, s1, e1 + i); pk(st, "add", s2, s2, e2 + i)
    st.v_add_f32(v(s1), v(s1), v(s1 + 1)); st.v_add_f32(v(s2), v(s2), v(s2 + 1))
    st.v_rcp_f32(v(s1), v(s1)); st.v_rcp_f32(v(s2), v(s2))
    for i in range(0, 16, 2):
        pk(st, "mul", e1 + i, bc(s1), e1 + i); pk(st, "mul", e2 + i, bc(s2), e2 + i)
    for i in range(8):
        st.v_cvt_pk_bf16_f32(v(e1 + i), v(e1 + 2 * i), v(e1 + 2 * i + 1))
        st.v_cvt_pk_bf16_f32(v(e2 + i), v(e2 + 2 * i), v(e2 + 2 * i + 1))

def p1a(st):
    at = oi("st1", 22)
    L = x_loads(st, STT, at)
    stamp(st, "p1pre")
    if "l" not in os_("nopoll", ""): poll2(st, vFL, sFA, 0, oi("gfx", -1))
    stamp(st, "FXpoll")
    pre = oi("pre1", 10)
    for f in L[:pre]: f(st)
    nxt(st)
    barrier(st, "a0")
    stamp(st, "B(a0)")
    fill = Filler()
    f = Stream(); stats(f, STT, NM, RS, VE); f.v_mul_f32(LR, sL2E, RS); k_reads(f, "v")
    g = Stream(); k_addr(g); k_reads(g, "wk")
    hooks = {2: lambda st: fill.add(g), oi("sth1", 2 * at + 2): lambda st: fill.add(f)}
    gemm(st, kv_items(), "trq", AF1, 6, 5, ready=[0], bars={oi("a1", 20): ("a1", [1]), oi("a2", 56): ("a2", [])}, loads=L[pre:], pre=0,
         hooks=hooks, fill=fill, budget=oi("bud1", 8), pairw=oi("pw1", 0))
    fill.flush(st)
    stamp(st, "KVgemm")

def gather_flagged(st, AF, aPL, aGZ, aGK, XT):
    ep = [int(x) for x in os_("kvp", "").split(",") if x]
    featmap(st, aQ, AF, WPH, aK, aV, LR, hk={a: (lambda x, r=r: pload(x, r, aPL, sFKVLD)) for a, r in zip(ep, (PRA, PRB))})
    stamp(st, "Q done")
    if OPT.get("dcap") == "2": st.wait(vm=0); dcap(st, "kf2", reg=126)
    poll2(st, aPL, sFKVLD, 0, oi("gkv", -1), len(ep))
    dflush(st)
    stamp(st, "FKVpoll")
    Gr, Z, SG, GA = XF, XF + 64, XF + 32, XF + 48
    nt = os_("gm", "sc1").replace("+", " ").replace("-", "")
    for cc in range(8):
        if cc: st.s_add_u32(sT0, sKVLD, 2 * cc * KV_REC)
        st.buffer_load_dwordx4(v(Gr + 4 * cc, 4), aGK, WS, sT0 if cc else sKVLD, mods="offen " + nt)
    for i in range(4):
        if i: st.s_add_u32(sT1, sGZ, 4 * i * KV_REC)
        st.buffer_load_dword(v(Z + i), aGZ, WS, sT1 if i else sGZ, mods="offen " + nt)
    if G.TAG == "f":
        st.s_lshl_b32(sT2, sC, 7); st.s_add_u32(sT2, sT2, XCCT)
        st.buffer_load_dword(XT, vFL, WS, sT2, mods="offen sc1")
        if oi("gsig", 0): signal(st, 1, 64)
    nxt(st)
    st.s_mul_i32(sT0, sM, 576); st.s_add_u32(sT0, sT0, L_KVB)
    st.v_and_b32(vT, 31, vL)
    st.v_and_b32(vU, 1, vL); st.v_lshlrev_b32(vU, 4, vU); st.v_mov_b32(vV, 0x3f80); st.v_lshlrev_b32(vU, vU, vV); st.v_lshrrev_b32(vV, 1, vT)
    for i in range(4):
        st.v_cmp_eq_u32("vcc", i, vV); st.v_cndmask_b32(v(SG + i), 0, vU, "vcc")
    st.v_lshlrev_b32(vT, 4, vT)
    st.v_lshrrev_b32(vU, 5, vL)
    st.v_lshl_add_u32(aA, vU, 3, vT); st.v_add_u32(aA, sT0, aA)
    st.v_lshrrev_b32(aB, 1, vFL); st.v_add_u32(aB, sT0, aB)
    st.v_bfe_u32(vV, vL, 2, 1); st.v_cmp_eq_u32("vcc", vV, vU)
    st.v_mov_b32(vV, 544); st.v_cndmask_b32(vT, vV, vT, "vcc"); st.v_add_u32(aR1, L_KVB, vT)
    st.v_lshlrev_b32(vU, 4, vU); st.v_add_u32(aR2, L_KVB + 512, vU)
    for cc in range(8):
        st.v_mfma_f32_32x32x16_bf16(v(GA, 16), v(SG, 4), v(Gr + 4 * cc, 4), "0" if cc == 0 else v(GA, 16))
    st.v_add_f32(v(Z), v(Z), v(Z + 1)); st.v_add_f32(v(Z + 2), v(Z + 2), v(Z + 3)); st.v_add_f32(v(Z), v(Z), v(Z + 2))
    st.v_mov_b32(v(Z + 1), v(Z)); st.v_permlane32_swap_b32(v(Z), v(Z + 1)); st.v_add_f32(v(Z), v(Z), v(Z + 1))
    st.v_mov_b32(v(Z + 1), v(Z)); st.v_permlane16_swap_b32(v(Z), v(Z + 1)); st.v_add_f32(v(Z), v(Z), v(Z + 1))
    st.v_cvt_pk_bf16_f32(v(Z), v(Z), v(Z))
    st.ds_write_b16(aB, v(Z), mods="offset:512")
    st.v_cvt_pk_bf16_f32(v(GA), v(GA), v(GA + 1)); st.v_cvt_pk_bf16_f32(v(GA + 1), v(GA + 2), v(GA + 3))
    st.ds_write_b64(aA, v(GA, 2))

def gather_tagged(st, AF, aPL, aGK, XT):
    Gr, SG, GA, ZS, ER = XF, XF + 64, XF + 68, v(XF + 73), v(XF + 74)
    aZ = v(XF + 75)
    nt = os_("gm", "sc1").replace("+", " ").replace("-", "")
    sTG = sT3
    def ld(st, c, base=False):
        if (c % 4 == 0 or base) and c >= 4: st.s_add_u32(sT0, sKVLD, c // 4 * 4 * TG_W)
        st.buffer_load_dwordx4(v(Gr + 4 * c, 4), aGK, WS, sT0 if c >= 4 else sKVLD, mods=f"offen offset:{c % 4 * TG_W} " + nt)
        if c == 15 and G.TAG == "f" and not base:
            st.s_lshl_b32(sT2, sC, 7); st.s_add_u32(sT2, sT2, XCCT)
            st.buffer_load_dword(XT, vFL, WS, sT2, mods="offen sc1")
    at = oi("tga", 40); gs = oi("tgs", 3)
    tmp = Stream(); featmap_(tmp, aQ, AF, WPH, aK, aV, LR); nf = len(tmp.l)
    hk = {}
    for c in range(16):
        if at + gs * c < nf: hk.setdefault(at + gs * c, []).append(c)
    done = sum(hk.values(), [])
    featmap(st, aQ, AF, WPH, aK, aV, LR, hk={k: (lambda x, l=l: [ld(x, c) for c in l]) for k, l in hk.items()})
    stamp(st, "Q done")
    st.s_and_b32(sTG, sNONCE, TGM)
    for c in range(16):
        if c not in done: ld(st, c)
    stamp(st, "FKVpoll")
    st.v_and_b32(vU, 1, vL); st.v_lshlrev_b32(vU, 4, vU); st.v_mov_b32(vV, 0x3f80); st.v_lshlrev_b32(vU, vU, vV)
    st.v_bfe_u32(vT, vL, 2, 2); st.v_bfe_u32(vV, vL, 1, 1); st.v_cmp_eq_u32("vcc", 3, vT)
    st.v_cndmask_b32(vT, vT, vV, "vcc"); st.v_cndmask_b32(vV, vV, 2, "vcc")
    st.v_lshrrev_b32(ER, 4, vL); st.v_cmp_eq_u32("vcc", vT, ER); st.v_cndmask_b32(vU, 0, vU, "vcc")
    for i in range(3):
        st.v_cmp_eq_u32("vcc", i, vV); st.v_cndmask_b32(v(SG + i), 0, vU, "vcc")
    st.v_mov_b32(v(SG + 3), 0)
    st.s_mul_i32(sT0, sKH, 2 * 576); st.s_add_u32(sT0, sT0, L_KVB); st.s_lshl_b32(sT1, sTP, 6); st.s_add_u32(sT1, sT1, sT0)
    st.v_lshrrev_b32(vU, 5, vL); st.v_mul_u32_u24(aA, 576, vU); st.v_bfe_u32(vT, vL, 2, 2); st.v_lshl_add_u32(aA, vT, 7, aA)
    st.v_and_b32(vT, 3, vL); st.v_lshl_add_u32(aA, vT, 4, aA); st.v_bfe_u32(vT, vL, 4, 1); st.v_lshl_add_u32(aA, vT, 3, aA); st.v_add_u32(aA, sT1, aA)
    st.s_lshl_b32(sT1, sTP, 4); st.s_add_u32(sT1, sT1, sT0); st.s_add_u32(sT1, sT1, 512)
    st.v_bfe_u32(vT, vL, 3, 1); st.v_mul_u32_u24(aZ, 576, vT); st.v_and_b32(vT, 7, vL); st.v_lshl_add_u32(aZ, vT, 1, aZ); st.v_add_u32(aZ, sT1, aZ)
    st.v_mov_b32(vV, L_KVB + 560); st.v_cmp_gt_u32("vcc", 32, vL); st.v_cndmask_b32(aZ, aZ, vV, "vcc")
    st.v_and_b32(vT, 31, vL); st.v_lshlrev_b32(vT, 4, vT)
    st.v_bfe_u32(vV, vL, 2, 1); st.v_cmp_eq_u32("vcc", vV, vU)
    st.v_mov_b32(vV, 544); st.v_cndmask_b32(vT, vV, vT, "vcc"); st.v_add_u32(aR2, L_KVB, vT)
    V, X, D = newlab("kvv"), newlab("kvx"), newlab("kvd")
    st.label(V)
    for c in range(16):
        g = Gr + 4 * c
        st.v_dot2_f32_bf16(ZS, v(g + 2), sONE, 0 if c == 0 else ZS)
        if c == 0: st.v_xor_b32(ER, sTG, v(g + 3))
        else: st.v_xor_b32(vT, sTG, v(g + 3)); st.v_or_b32(ER, vT, ER)
        st.v_mfma_f32_16x16x32_bf16(v(GA, 4), v(SG, 4), v(g, 4), "0" if c == 0 else v(GA, 4))
    st.v_cmp_ne_u32("vcc", 0, ER)
    st.s_cbranch_vccnz(X)
    st.label(D)
    OOL.label(X); OOL.mark("reset")
    OOL.s_sub_u32(sCNT, sCNT, 1); OOL.s_cselect_b32(sCNT, 0, sCNT); OOL.s_cbranch_scc1(D)
    OOL.s_mov_b32(sT1, 0)
    tail = Stream()
    for c in range(16):
        K = newlab("kvk")
        OOL.v_cmp_ne_u32("vcc", sTG, v(Gr + 4 * c + 3))
        if oi("tgf", 1):
            M_ = newlab("kvm")
            OOL.s_cbranch_vccnz(M_); OOL.label(K)
            tail.label(M_); tail.mark("reset"); ld(tail, c, True); tail.s_mov_b32(sT1, 1); tail.s_branch(K)
            continue
        OOL.s_cbranch_vccz(K)
        ld(OOL, c, True); OOL.s_mov_b32(sT1, 1)
        OOL.label(K); OOL.mark("reset")
    OOL.wait(vm=0)
    for _ in range(oi("tgb", 0)): OOL.s_nop(15)
    OOL.s_cmp_lg_u32(sT1, 0); OOL.s_cbranch_scc1(X)
    OOL.s_branch(V)
    OOL.extend(tail)
    nxt(st)
    st.v_mov_b32(aR1, aR2)
    st.v_lshrrev_b32(vU, 5, vL); st.v_lshlrev_b32(vU, 4, vU); st.v_add_u32(aR2, L_KVB + 512, vU)
    st.v_cvt_pk_bf16_f32(ZS, ZS, ZS)
    st.ds_write_b16(aZ, ZS)
    st.v_cvt_pk_bf16_f32(v(GA), v(GA), v(GA + 1)); st.v_cvt_pk_bf16_f32(v(GA + 1), v(GA + 2), v(GA + 3))
    st.ds_write_b64(aA, v(GA, 2))

def p1b(st):
    AF = AF1
    for i in range(0, 16, 2): pk(st, "fma", aK + i, CK + i, bc(NM), aK + i)
    def vpart(st):
        for i in range(0, 16, 2): pk(st, "fma", aV + i, CV + i, bc(NM), aV + i)
        for i in range(0, 16, 2): pk(st, "mul", aV + i, bc(RS), aV + i)
        for i in range(8): st.v_cvt_pk_bf16_f32(v(aV + i), v(aV + 2 * i), v(aV + 2 * i + 1))
        st.ds_write_b128(aB, v(aV, 4)); st.ds_write_b128(aB, v(aV + 4, 4), mods="offset:16")
    featmap(st, aK, AF, WPH, STT, aQ, LR, mid=vpart)
    st.ds_write_b128(aA, v(STT, 4)); st.ds_write_b128(aA, v(STT + 4, 4), mods="offset:16")
    st.ds_write_b128(aA, v(aQ, 4), mods="offset:32"); st.ds_write_b128(aA, v(aQ + 4, 4), mods="offset:48")
    signal(st)
    TA, TB, ONE, AKV, AZ = 16, 32, 96, 100, 104
    def shadow(st):
        st.v_lshrrev_b32(vT, 4, vL); st.v_lshlrev_b32(vT, 3, vT); st.v_bfe_u32(vU, vL, 2, 2); st.v_add_u32(vT, vT, vU)
        st.v_and_b32(vU, 3, vL); st.v_lshlrev_b32(vU, 3, vU)
        st.s_lshl_b32(sT0, sM, 5); st.s_add_u32(sT0, sT0, L_PH)
        st.v_mul_u32_u24(aR1, 144, vT); st.v_add3_u32(aR1, aR1, vU, sT0)
        st.s_lshl_b32(sT0, sTP, 5); st.s_add_u32(sT0, sT0, L_VB)
        st.v_mul_u32_u24(aR2, 80, vT); st.v_add3_u32(aR2, aR2, vU, sT0)
        ring_next(st, "trq")
    SPL = oi("spl", 1)
    sigwait(st, 12 if SPL else 28, extra=shadow)
    stamp(st, "Kepi+B")
    def kvpart(st):
        for k in range(4):
            for q in range(2):
                st.ds_read_b64_tr_b16(v(TA + 4 * k + 2 * q, 2), aR1, mods=f"offset:{(32*k+4*q)*144}")
                st.ds_read_b64_tr_b16(v(TB + 4 * k + 2 * q, 2), aR2, mods=f"offset:{(32*k+4*q)*80}")
        for i in range(4): st.v_mov_b32(v(ONE + i), sONE)
        if TG:
            for k in range(4):
                st.v_mfma_f32_16x16x32_bf16(v(AZ, 4), v(ONE, 4), v(TA + 4 * k, 4), "0" if k == 0 else v(AZ, 4))
                st.v_mfma_f32_16x16x32_bf16(v(AKV, 4), v(TA + 4 * k, 4), v(TB + 4 * k, 4), "0" if k == 0 else v(AKV, 4))
            P = 108
            st.v_and_b32(v(P + 3), TGM, vNON)
            st.v_and_b32(v(AZ + 1), 0xffff0000, v(AZ)); st.v_sub_f32(v(AZ), v(AZ), v(AZ + 1)); st.v_cvt_pk_bf16_f32(v(P + 2), v(AZ + 1), v(AZ))
            st.v_cvt_pk_bf16_f32(v(AZ + 2), v(AKV), v(AKV + 1)); st.v_cvt_pk_bf16_f32(v(AZ + 3), v(AKV + 2), v(AKV + 3))
            st.v_cvt_pk_bf16_f32(v(P), v(AKV), v(AKV + 1)); st.v_cvt_pk_bf16_f32(v(P + 1), v(AKV + 2), v(AKV + 3))
            st.v_permlane16_swap_b32(v(AZ + 2), v(AZ + 3)); st.v_permlane32_swap_b32(v(AZ + 3), v(P + 2))
            st.s_mov_b32("exec_hi", 0xffff)
            st.buffer_store_dwordx4(v(P, 4), vL16, WS, sKVST, mods="offen " + os_("km", "sc1").replace("+", " "), tset="kv")
            st.s_mov_b32("exec_hi", -1)
            if oi("ksig", 0):
                st.s_lshl_b32(sT3, sW, 2); st.s_add_u32(sT3, sT3, L_SIG + 64); st.v_mov_b32(vT, sT3); st.ds_write_b32(vT, v(125))
        else:
            st.v_lshrrev_b32(vT, 5, vL); st.v_lshlrev_b32(vV, 9, vT); st.v_bfe_u32(vU, vL, 4, 1); st.v_lshl_add_u32(vV, vU, 3, vV)
            st.v_lshlrev_b32(vT, 6, vT); st.v_lshl_add_u32(vT, vU, 4, vT)
            st.v_bfe_u32(vU, vL, 2, 2); st.v_lshl_add_u32(vV, vU, 7, vV); st.v_and_b32(vU, 3, vL); st.v_lshl_add_u32(vV, vU, 4, vV)
            for k in range(4):
                st.v_mfma_f32_16x16x32_bf16(v(AKV, 4), v(TA + 4 * k, 4), v(TB + 4 * k, 4), "0" if k == 0 else v(AKV, 4))
                st.v_mfma_f32_16x16x32_bf16(v(AZ, 4), v(TA + 4 * k, 4), v(ONE, 4), "0" if k == 0 else v(AZ, 4))
            st.v_cvt_pk_bf16_f32(v(AKV), v(AKV), v(AKV + 1)); st.v_cvt_pk_bf16_f32(v(AKV + 1), v(AKV + 2), v(AKV + 3))
            st.buffer_store_dwordx2(v(AKV, 2), vV, WS, sKVST, mods="offen sc1")
            st.buffer_store_dwordx4(v(AZ, 4), vT, WS, sKZ, mods="offen sc1", tset="kv")
    if SPL: sigwait(st, 12, 16, extra=kvpart)
    else: kvpart(st)
    stamp(st, "kv st")
    items = []
    for k in range(16):
        for t in range(2):
            items.append(dict(chunk=0, off=k * 2048, t=t, acc=aQ, b=XF + 4 * (k + 16 * t), first=(k, t) == (0, 0)))
    def kvflag(st):
        dcap(st, "kf0", reg=124)
        st.buffer_store_dword(vNON, "off", WS, sFKVST, mods="sc1", tneed="kv")
        dcap(st, "kf1", reg=125)
    CS = 16
    aPL, aGZ, aGK = aR1, aR2, aB
    f = Stream()
    for i in range(4): f.ds_read_b128(v(CS + 4 * i, 4), aCS, mods=f"offset:{256+16*i}")
    if TG:
        f.v_and_b32(aPL, 15, vL); f.v_mul_u32_u24(aPL, TG_W, aPL)
        f.v_subrev_u32(vU, 256, vL16); f.v_cmp_gt_u32("vcc", 48, vL); f.v_cndmask_b32(aGK, vU, vL16, "vcc")
    else:
        f.v_lshrrev_b32(aPL, 2, vL); f.v_lshlrev_b32(aPL, oi("fks", 7), aPL); f.v_and_b32(vU, 3, vL); f.v_lshl_add_u32(aPL, vU, 2, aPL)
        f.v_lshrrev_b32(aGZ, 4, vL); f.v_mul_u32_u24(aGZ, KV_REC, aGZ); f.v_add_u32(aGZ, aGZ, vFL)
        f.v_lshrrev_b32(aGK, 5, vL); f.v_mul_u32_u24(aGK, KV_REC - 512, aGK); f.v_add_u32(aGK, aGK, vL16)
    fill = Filler()
    gemm(st, items, "trq", AF, 6, 5, ready=[0], hooks={4: lambda st: fill.add(f)} if TG else {4: lambda st: fill.add(f), oi("kvflag", 24): kvflag}, fill=fill, budget=8, pairw=oi("pwq", 0))
    fill.flush(st)
    stamp(st, "Qgemm")
    for i in range(0, 16, 2): pk(st, "fma", aQ + i, CS + i, bc(NM), aQ + i)
    XT = v(XF + 72)
    if TG: gather_tagged(st, AF, aPL, aGK, XT)
    else: gather_flagged(st, AF, aPL, aGZ, aGK, XT)
    if G.TAG == "f":
        OK = newlab("xok"); L = newlab("xpoll"); D = newlab("xdec")
        st.s_cmp_lg_u32(sPAIR, 0)
        st.mark("save", OK)
        st.s_cbranch_scc1(OK)
        st.s_add_u32(sT0, sNONCE, 14); st.s_add_u32(sT1, sT0, sXC)
        st.v_cmp_ne_u32("vcc", sT1, XT)
        if not OPT.get("slow"): st.s_cbranch_vccz(OK)
        st.label(L)
        st.buffer_load_dword(XT, vFL, WS, sT2, mods="offen sc1")
        st.wait(vm=0)
        st.v_subrev_u32(vT, sT0, XT)
        st.v_cmp_le_u32("vcc", 16, vT)
        st.s_cbranch_vccz(D)
        st.s_sub_u32(sCNT, sCNT, 1)
        st.s_cbranch_scc0(L)
        st.s_mov_b32(sCNT, 0)
        st.label(D)
        st.v_cmp_ne_u32("vcc", sT1, XT)
        st.mark("save", "toslow")
        if OPT.get("slow"): st.s_branch(".Lg_s")
        else: st.s_cbranch_vccnz(".Lg_s")
        st.mark("merge", OK)
        st.label(OK)
    else:
        st.mark("merge", "toslow")
        st.label(".Lg_s")
    barrier(st, "g", drain=True)
    stamp(st, "gather+B")

def p1c(st):
    PHQ = [aK, aK + 4, aV, aV + 4]
    KA, ZA, NUM, DEN = XF, XF + 16, 48, v(64)
    for u in range(4): st.ds_read_b128(v(KA + 4 * u, 4), aR1, mods=f"offset:{576*u}")
    for u in range(4): st.ds_read_b128(v(ZA + 4 * u, 4), aR2, mods=f"offset:{576*u}")
    st.v_mov_b32(DEN, f2u(1e-6)); st.v_mov_b32(v(65), 0)
    st.v_lshrrev_b32(vU, 5, vL); st.v_lshl_add_u32(aA, vU, 9, vL16)
    for u in range(4):
        st.v_mfma_f32_32x32x16_bf16(v(NUM, 16), v(KA + 4 * u, 4), v(PHQ[u], 4), "0" if u == 0 else v(NUM, 16))
        for i in range(4):
            dd = DEN if i % 2 == 0 else v(65)
            st.v_dot2_f32_bf16(dd, v(PHQ[u] + i), v(ZA + 4 * u + i), dd)
    st.v_add_f32(DEN, DEN, v(65))
    st.v_rcp_f32(DEN, DEN)
    for i in range(0, 16, 2): pk(st, "mul", NUM + i, bc(DEN), NUM + i)
    for i in range(8): st.v_cvt_pk_bf16_f32(v(NUM + i), v(NUM + 2 * i), v(NUM + 2 * i + 1))
    st.buffer_store_dwordx4(v(NUM, 4), aA, WS, sOST, mods=f"offen {G.SC}")
    st.buffer_store_dwordx4(v(NUM + 4, 4), aA, WS, sOST, mods=f"offen offset:512 {G.SC}", tset="o")
    ring_next(st, "trn")
    res_init(st, 16)
    st.s_lshl_b32(sT0, sM, 12); st.s_add_u32(sT0, sT0, L_PH); st.v_add_u32(aXW, sT0, vL16)
    if SPEC & 1:
        st.s_mov_b32(sOST, sOST1); st.s_lshr_b32(sMASK, sM, 2)
        for i in range(16): st.v_mov_b32(v(32 + i), 0)
    else: st.buffer_store_dword(vNON, "off", WS, sFJ, mods=f"offset:128 {G.SC}", tneed=None if OPT.get("noack") else "o")
    if TG:
        for r in (sKVST, sKVLD): st.s_add_u32(r, r, TG_P)
        return
    for r in (sKVST, sKVLD, sKZ, sGZ): st.s_add_u32(r, r, KV_P)
    fp = 16 if oi("fkw", 1) else 256 * 128
    st.s_add_u32(sFKVST, sFKVST, fp); st.s_add_u32(sFKVLD, sFKVLD, fp)

def small_items(nsteps, breg, accs=(16, 32)):
    items = []
    for k in range(nsteps):
        for t in ((1, 0) if k == nsteps - 1 else (0, 1)):
            items.append(dict(chunk=k // 8, off=(k % 8) * 4096, t=t, acc=accs[t], b=breg(k), first=k == 0 and t == 1))
    return items
def res_init(st, a):
    for i in range(8):
        st.v_lshlrev_b32(v(a + 2 * i), 16, v(RES + i)); st.v_and_b32(v(a + 2 * i + 1), 0xffff0000, v(RES + i))

def xepi(st, last):
    aB_, T, P = (96, 48, 16) if last else (32, 16, 48)
    aX = aXW
    for i in range(4): st.ds_write_b128(aX, v(aB_ + 4 * i, 4), mods=f"offset:{1024*i}")
    st.v_xor_b32(aX, 4096, aX)
    barrier(st, "X4" if last else "X2", drain=True)
    for i in range(4): st.ds_read_b128(v(P + 4 * i, 4), aX, mods=f"offset:{1024*i}")
    st.v_and_b32(aX, 31, vL); st.v_lshlrev_b32(aX, 4, aX); st.v_lshrrev_b32(vT, 5, vL); st.v_lshl_add_u32(aX, vT, 2, aX)
    for i in range(4):
        for k in (4 * i, 4 * i + 2): pk(st, "add", T + k, T + k, P + k)
        for k in (2 * i, 2 * i + 1): st.v_cvt_pk_bf16_f32(v(RES + k), v(T + 2 * k), v(T + 2 * k + 1))
    LF = newlab("fin")
    if last:
        st.mark("save", LF)
        st.s_cmp_eq_u32(sPAIR, 1); st.s_cbranch_scc1(LF)
    st.buffer_store_dwordx4(v(RES, 4), vL16, XS, sXST, mods=f"offen {G.SC}")
    st.buffer_store_dwordx4(v(RES + 4, 4), vL16, XS, sXST, mods=f"offen offset:1024 {G.SC}")
    S, Q, S2, Q2 = v(T), v(T + 1), v(T + 2), v(T + 3)
    st.v_dot2_f32_bf16(S, v(RES), sONE, 0); st.v_dot2_f32_bf16(Q, v(RES), v(RES), 0)
    st.v_dot2_f32_bf16(S2, v(RES + 1), sONE, 0); st.v_dot2_f32_bf16(Q2, v(RES + 1), v(RES + 1), 0)
    for i in range(2, 8, 2):
        st.v_dot2_f32_bf16(S, v(RES + i), sONE, S); st.v_dot2_f32_bf16(Q, v(RES + i), v(RES + i), Q)
        st.v_dot2_f32_bf16(S2, v(RES + i + 1), sONE, S2); st.v_dot2_f32_bf16(Q2, v(RES + i + 1), v(RES + i + 1), Q2)
    pk(st, "add", T, T, T + 2)
    st.v_permlane32_swap_b32(S, Q); st.v_add_f32(S, S, Q)
    st.buffer_store_dword(S, aX, WS, sSTST, mods=f"offen {G.SC}", tset="x")
    if last and oi("xsig", 0): signal(st, 1, 80)
    (p1a_pre if last else p3_pre)(st)
    st.buffer_store_dword(vNON, "off", WS, sFXST, mods=G.SC, tneed=None if OPT.get("noack") else "x")
    if last:
        st.s_mov_b32(sPAIR, 1)
        st.s_branch(f".Lpair_{G.TAG}")
        st.label(LF); st.mark("restore", LF)
        st.v_and_b32(aX, 31, vL); st.v_lshlrev_b32(aX, 10, aX); st.v_lshrrev_b32(vT, 5, vL); st.v_lshl_add_u32(aX, vT, 4, aX)
        om = os_("om", "").replace("+", " ")
        st.buffer_store_dwordx4(v(RES, 4), aX, OUT, sOUTO, mods="offen " + om)
        st.buffer_store_dwordx4(v(RES + 4, 4), aX, OUT, sOUTO, mods="offen offset:32 " + om)

def tr_use(o, addr, off, acc, b, tmp):
    o.ds_read_b64_tr_b16(v(tmp, 2), addr, mods=f"offset:{off}"); o.ds_read_b64_tr_b16(v(tmp + 2, 2), addr, mods=f"offset:{off+512}")
    return lambda: o.v_mfma_f32_32x32x16_bf16(v(acc, 16), v(tmp, 4), v(b, 4), v(acc, 16))
def prev_chunk(o, vP, d0, d1):
    o.s_sub_u32(sTX, sRING, 0x8000); o.s_and_b32(sTX, sTX, 0x1ffff); o.v_add_u32(d0, sTX, vP); o.v_xor_b32(d1, 64, d0)

def p2(st):
    stamp(st, "o stored")
    items = small_items(16, lambda k: XF + 4 * k); sp = None; pre = oi("pre2", 10); hooks = {1: nxt}
    if SPEC & 1:
        L = frag_loads(sOLD, [XF + 4 * k for k in range(16)], 2048, 2)
        def load(o, k):
            o.s_add_u32(sTX, sOLD, k * 2048); o.buffer_load_dwordx4(v(XF + 4 * k, 4), vL16, WS, sTX, mods=f"offen {SCL}")
        c0 = (v(72), v(73))
        def use(o, k):
            m = [tr_use(o, (c0 if k < 8 else (vA0, vA1))[t], (k % 8) * 4096, (16, 32)[t], XF + 4 * k, 48 + 4 * t) for t in range(2)]
            for f in m: f()
        sp = Spec(16, lambda k: XF + 4 * k, load, use, head=lambda o: prev_chunk(o, vP1, *c0))
        for i, it in enumerate(items): it["first"] = False; it["guard"] = ("chk", i // 2) if i % 2 == 0 else ("vcc",)
        for _ in range(oi("od", 0)): st.s_nop(15)
        gn = oi("gno", 4)
        if gn < 16: sp.probe(st, sOLD, 12)
        for f in L[:pre]: f(st)
        if gn < 16: hooks[0] = lambda st, a=L[:pre]: (sp.gate(st, sOLD, 12, a, gn), stamp(st, "FOpoll"))
        L = L[pre:]; pre = 0
    else:
        if "o" not in os_("nopoll", ""): poll2(st, vFL, sFB, 128, oi("gfo", -1))
        L = frag_loads(sHLD, [XF + 4 * k for k in range(16)], 2048, 2)
        stamp(st, "FOpoll")
    gemm(st, items, "trn", 48, 6, 5, ready=[0, 1], loads=L, pre=pre, hooks=hooks, pairw=oi("pw2", 0),
         bars={oi("p2a", 12): ("p2", [])} if oi("p2a", 12) else None, spec=sp)
    if sp: stamp(st, "P2main"); vstamp(st, "nmo"); sp.fix(st); st.s_mov_b32(sOLD, sOLD1)
    stamp(st, "P2gemm")
    xepi(st, False)

def stream(st, items, af, nslots, depth, hooks, fill, budget, watch=None, slots=None, gw=1, spec=None):
    n = len(items); nr = 0
    gemm_n[0] += 1; tg = f"g{gemm_n[0]}_"
    G_ = (lambda i: gw) if not callable(gw) else gw
    def pump(upto):
        nonlocal nr
        while nr < n and nr <= upto:
            items[nr]["rd"](st, af + 4 * (nr % nslots)); st.l[-1].dst = st.l[-1].dst | {("t", tg + str(nr))}; nr += 1
    pump(depth - 1)
    nextw = 0; err = 0.0
    for i in range(n):
        it = items[i]
        acc = v(it["acc"], 16)
        tn = None
        if i == nextw:
            nextw = i + G_(i); tn = tg + str(min(nextw, nr) - 1)
        st.v_mfma_f32_32x32x16_bf16(acc, v(af + 4 * (i % nslots), 4), v(it["b"], 4), "0" if it["first"] else acc, tneed=tn)
        if tn and it.get("b2"): st.l[-1].src = st.l[-1].src | regs_of(v(it["b2"], 4))
        if spec and it.get("guard"):
            mf = st.l.pop(); L = spec.guard(st, it["guard"], mf); st.l.append(mf); st.label(L)
        n0 = len(st.l)
        for h in hooks.get(i, []): h(st)
        pump(i + depth)
        if slots:
            used = 1 + sum(cost(x) for x in st.l[n0:]) // 4 + (1 if i + 1 == nextw else 0)
            room = slots(i) - used + err
            n1 = len(st.l)
            if room >= 1: fill.take(st, 4 * int(room))
            took = sum(cost(x) for x in st.l[n1:]) // 4
            err = max(-1.0, min(1.0, room - took)) if fill.q else 0.0
        else: fill.take(st, budget(i))
        if watch: watch(i, st.l[n0:])
    assert not fill.q

C1 = -2.0 * math.sqrt(2.0 / math.pi) * LOG2E
def p34(st):
    A = [16, 32, 48, 96]; AF = 64; NMP = 88; DEPTH = oi("dep", 5)
    K1, K3, VE3, NM3 = v(92), v(93), v(94), v(95)
    at = oi("st3", 20)
    L = x_loads(st, STT, at)
    stamp(st, "x stored")
    if "x" not in os_("nopoll", ""): poll2(st, vFL, sFA, 0, oi("gf2", -1))
    stamp(st, "FXpoll2")
    pre = oi("pre3", 10)
    for f in L[:pre]: f(st)
    nxt(st)
    barrier(st, "30")
    stamp(st, "B(30)")
    items = []; hooks = {}
    def hk(i, f): hooks.setdefault(i, []).append(f)
    def wide(a, off, step=0):
        def rd(st, r):
            if step:
                st.s_add_u32(sRING, sRING, 0x8000 * step); st.s_and_b32(sRING, sRING, 0x1ffff); st.v_add_u32(vA0, sRING, vL16)
            st.ds_read_b128(v(r, 4), a, mods=f"offset:{off}")
        return rd
    def mean(r):
        return dict(rd=lambda st, q: st.ds_read_b32(v(q), aCS3, mods=f"offset:{128*r}"), acc=A[r % 4], b=NMP, first=False)
    n2 = oi("n2", 10); k2 = 0; end = {}; use = {}
    def t2(k): return dict(rd=wide(vA1, k * 1024), acc=A[2], b=XF + 4 * k, first=k == 0)
    for k in range(32):
        use[k] = len(items)
        for t in range(2):
            items.append(dict(rd=wide(vA0, t * 16384 + (k % 16) * 1024, int(k == 16 and t == 0)), acc=A[t], b=XF + 4 * k, first=k == 0))
        if k == 15: g5 = len(items) - 1
        if (k + 1) * n2 // 32 > k2: items.append(t2(k2)); k2 += 1
    items += [mean(0), mean(1)]; end[0] = len(items) - 2; end[1] = len(items) - 1
    items += [t2(k) for k in range(k2, 32)] + [mean(2)]; end[2] = len(items) - 1
    for r in range(3, 6):
        items += [dict(rd=wide(vA0, k * 1024, (2 if r == 3 else 1) if k == 0 else 0), acc=A[r % 4], b=XF + 4 * k, first=k == 0) for k in range(32)]
        items.append(mean(r)); end[r] = len(items) - 1
    T5 = end[4] + 1; P4 = len(items)
    HI = [16 + 4 * i for i in range(4)] + [116, 88] + [XF + 4 * i for i in range(2)] + [32 + 4 * i for i in range(3)]
    breg = lambda k: XF + 4 * k if k < 32 else HI[k - 32]
    for n, it in enumerate(small_items(43, breg, (48, 96))):
        def rd(st, r, it=it, n=n):
            if n % 16 == 0: ring_next(st, "trn")
            a = vA1 if it["t"] else vA0
            st.ds_read_b64_tr_b16(v(r, 2), a, mods=f"offset:{it['off']}")
            st.ds_read_b64_tr_b16(v(r + 2, 2), a, mods=f"offset:{it['off']+512}")
        items.append(dict(rd=rd, acc=it["acc"], b=it["b"], first=it["first"]))
    for n, f in enumerate(L[pre:]): hk(2 * n + 1, f)
    fill = Filler()
    f = Stream()
    stats(f, STT, NM3, K1, VE3)
    f.v_and_b32(vU, 0xffff0000, NM3); f.v_sub_f32(NM3, NM3, vU); f.v_cndmask_b32(vU, vU, NM3, sHALF)
    f.v_cvt_pk_bf16_f32(v(NMP), vU, vU)
    f.v_mul_f32(K3, K1, K1); f.v_mul_f32(K1, f2u(C1), K1); f.v_mul_f32(K3, f2u(0.044715), K3); f.v_mul_f32(K3, K3, K1)
    z = Stream()
    for i in range(1, 4): z.v_mov_b32(v(NMP + i), 0)
    z.v_min_u32(aP4, 20, vFL)
    hk(2, lambda st: fill.add(z))
    hk(use[min(31, at + oi("sth3", 2))], lambda st: fill.add(f))
    hk(end[0] - 2, lambda st: fill.flush(st))
    TM = 112
    def epi(r):
        f = Stream(); a = A[r % 4]
        g = lambda i: v(a + i)
        u = lambda i: v(a + 8 + i)
        tm = lambda i: v(TM + i % 4)
        for t in range(16):
            ok = lambda d: 0 <= t - d < 8
            if ok(3): f.v_exp_f32(g(t - 3), g(t - 3))
            if ok(0): f.v_mul_f32(tm(t), g(t), g(t))
            if ok(1): f.v_fma_f32(tm(t - 1), tm(t - 1), K3, K1)
            if ok(0): f.v_mul_f32(u(t), g(t), u(t))
            if ok(5): f.v_rcp_f32(g(t - 5), g(t - 5))
            if ok(2): f.v_mul_f32(g(t - 2), tm(t - 2), g(t - 2))
            if ok(4): f.v_fma_f32(g(t - 4), g(t - 4), VE3, VE3)
            if ok(6): f.v_mul_f32(g(t - 6), g(t - 6), u(t - 6))
            if ok(7) and t % 2 == 0: f.v_cvt_pk_bf16_f32(u((t - 8) // 2), g(t - 8), g(t - 7))
            if t == 12 and r < 5: f.s_add_u32(sHS, sHST, 16384 * r)
        f.buffer_store_dwordx4(v(a + 8, 4), vL16, WS, sHS if r < 5 else sH5, mods=f"offen {G.SC} {os_('hm', '') if r < oi('hmr', 6) else ''}", tset=f"h{r}")
        return f
    def flag(r):
        f = Stream()
        f.buffer_store_dword(vNON, "off", WS, sFJ if r < 5 else sF5, mods=f"offset:{256+64*r} {G.SC}", tneed=f"h{r}")
        return f
    e = [epi(r) for r in range(6)]
    ri = Stream(); res_init(ri, 48)
    lag = oi("lag", 3)
    for r in range(6):
        parts = [e[r]] + ([ri] if r == 3 else [])
        hk(end[max(r, 1)] + lag, lambda st, parts=parts: [fill.add(p) for p in parts])
        hk(end[r], lambda st, r=r: stamp(st, f"t{r}"))
    hk(end[3], lambda st: fill.drain_until(st, e[0])); hk(end[4], lambda st: fill.drain_until(st, e[1]))
    hk(end[5] - 1, lambda st: fill.drain_until(st, ri))
    fd = [int(x) for x in os_("fd", "38,20,20,18,16,12").split(",")]; fpos = {}
    def watch(i, l):
        for r in range(6):
            if any(("t", f"h{r}") in x.dst for x in l): fpos[r] = i + fd[r]; hk(i + fd[r], lambda st, r=r: (stamp(st, f"f{r}a"), st.extend(flag(r)), stamp(st, f"f{r}b")))
    b3, b4 = oi("bud3", 16), oi("bud4", 16)
    def bud(i):
        b = oi("bud0", 12) if i < end[1] else b3 if i < P4 - DEPTH else b4
        if b % 4: b += 2 if i % 2 else -2
        return b - (4 if i in hooks and oi("budh", 1) else 0)
    o = oi("b4", 10)
    for i, name in ((g5 + oi("c1d", 4), "3a"), (end[1], "3b"), (end[2], "3c"), (end[3], "3d"), (end[4], "3f"), (end[5], "3g"),
                    (P4 + o, "4a"), (P4 + 16 + o, "4b"), (P4 + 32 + o, "4c"), (P4 + 48 + o, "4d"), (P4 + 64 + o, "4e")):
        hk(i, lambda st, name=name: (stamp(st, f"{name}a"), barrier(st, name), stamp(st, f"{name}b")))
    for i in (16, 32, 48, 64): hk(P4 + i, lambda st, i=i: stamp(st, f"q{i}"))
    HL = frag_loads(sHLD, [breg(k) for k in range(43)], 2048, 2)
    if OPT.get("noH"): HL = [lambda st: None] * 43
    ne = oi("early4", 12)
    ck = [T5 + oi("chkA", 10), P4 + oi("chk2", 0), P4 + oi("chk3", 16), P4 + oi("chk4", 42), P4 + oi("chk5", 65)]
    sl = oi("sl", 12); ev = float(OPT.get("ev4", 2)); pos = []
    for k in range(43):
        g = max(0, k // 8 - 1)
        p = ck[0] + 1 + k * float(OPT.get("ev3", 2)) if k < ne else pos[-1] + ev
        pos.append(max(p, ck[g]) if k < 40 else ck[4])
    pos = [int(p) for p in pos]
    hk(ck[0] - sl - 1, lambda st: (st.v_and_b32(vV, 31, vL), st.v_lshlrev_b32(vV, 2, vV)))
    for g, (addr, off) in enumerate(((vV, 256), (vFL, 384), (vFL, 448), (vFL, 512), (aP4, 576))):
        assert g == 0 or ck[g] - sl > ck[g - 1]
        if OPT.get("nochk"): continue
        hk(ck[g] - sl, lambda st, addr=addr, off=off: st.buffer_load_dword(vS4, addr, WS, sFB, mods=f"offen offset:{off} sc1"))
        hk(ck[g], lambda st, addr=addr, off=off, g=g: (stamp(st, f"k{g}a"), soft_check(st, vS4, addr, sFB, off), stamp(st, f"k{g}b")))
    def last(st):
        assert 5 in fpos and fpos[5] < ck[4]
        nxt(st)
    hk(ck[4], last)
    for k in range(43):
        assert pos[k] < P4 + 2 * k and (k >= 32 or pos[k] >= T5 + k), (k, pos[k])
        hk(pos[k], HL[k])
    hk(pos[32] - 1, lambda st: fill.drain_until(st, e[4]))
    sl_ = None
    if float(OPT.get("sl3", 7)):
        s0_, s3_, s4_ = [float(OPT.get(k, d)) for k, d in (("sl0", 7), ("sl3", 7), ("sl4", 8))]
        sl_ = lambda i: s0_ if i < end[1] else s3_ if i < P4 - DEPTH else s4_
    g0_, g3_, g4_ = oi("gw0", 2), oi("gw3", 2), oi("gw4", 2)
    def gw_(i):
        g = g0_ if i < end[1] else g3_ if i < P4 else g4_
        return min(g, P4 - i) if i < P4 else g
    if g4_ == 4 or oi("gv4", 0):
        for i in range(P4, len(items) - 2, 4): items[i]["b2"] = items[i + 2]["b"]
    stream(st, items, AF, 6, DEPTH, hooks, fill, bud, watch, sl_, gw_)
    if G.TAG == "f": print("T3", end[2] + 1, "T4", end[3] + 1, "T5", T5, "P4", P4, "flags", fpos, "checks", ck, "loads", pos, file=sys.stderr)
    stamp(st, "P4gemm")
    xepi(st, True)

def body(st, first):
    stop = OPT["stop"]
    T = G.TAG
    st.label(f".Lpair_{T}"); st.mark("reset")
    G.SEQ = SEQA; p1a(st)
    G.SEQ = SEQC
    if first:
        st.mark("merge", "from0"); st.label(".Lk_f")
    p1b(st); p1c(st)
    if stop == "p1": st.s_branch(".Lend"); return
    p2(st)
    if stop == "p2": st.s_branch(".Lend"); return
    p34(st)
    stamp(st, "end")
    stamp(st, 63, True)
    if OPT.get("dbg") == "2":
        if OPT.get("wb"):
            st.wait(vm=0); st.raw("    buffer_wbl2 sc0 sc1"); st.raw("    s_waitcnt vmcnt(0)")
        L = newlab("pad")
        st.s_mov_b32(s(87), 7000)
        if OPT.get("early"): st.s_cmp_lt_u32(s(2), int(OPT["early"])); st.s_cselect_b32(s(87), 6000, s(87))
        if OPT.get("cap"):
            if OPT.get("capr"): st.s_sub_u32(s(43), s(43), s(42))
            else: st.s_sub_u32(s(43), s(43), s(86)); st.s_lshr_b32(s(43), s(43), 2)
            st.s_min_u32(s(43), s(43), 40000); st.s_add_u32(s(87), s(87), s(43))
        st.label(L)
        st.s_memrealtime(s(100, 2)); st.wait(lgkm=0); st.s_sub_u32(s(100), s(100), s(42)); st.s_cmp_lt_u32(s(100), s(87)); st.s_cbranch_scc1(L)
    elif OPT.get("dbg"):
        st.s_load_dwordx2(s(44, 2), s(0, 2), 72); st.s_memrealtime(s(100, 2)); st.wait(lgkm=0)
        st.s_and_b32(s(45), s(45), 0xffff); st.s_mov_b32(s(46), 256); st.s_mov_b32(s(47), 0x20000)
        st.s_not_b32(s(42), s(42)); st.v_mov_b32(vT, s(42)); st.v_mov_b32(vU, s(100)); st.s_not_b32(s(100), s(100)); st.v_mov_b32(vV, s(100))
        st.raw("    buffer_atomic_umax v13, off, s[44:47], 0")
        st.raw("    buffer_atomic_umax v14, off, s[44:47], 0 offset:4")
        st.raw("    buffer_atomic_umax v15, off, s[44:47], 0 offset:8")
        st.s_not_b32(s(42), s(42)); st.v_mov_b32(vT, s(42))
        st.raw("    s_nop 4")
        st.raw("    buffer_atomic_umax v13, off, s[44:47], 0 offset:12")
    st.s_or_b32(sT0, s(2), sW); st.s_cmp_lg_u32(sT0, 0); st.s_cbranch_scc1(".Lend")
    st.v_add_u32(vNON, 22, vNON)
    st.buffer_store_dword(vNON, "off", WS, 0, mods=f"offset:{EPOCH} sc1")
    st.s_branch(".Lend")

SEQ0, SEQA, SEQC = [], [], []
def compute(st):
    G.SEQ = SEQ0
    p1a0(st)
    st.mark("save", "from0")
    st.s_branch(".Lk_f")
    G.SC, G.TAG = "", "f"
    body(st, True)

def compute_slow(st):
    G.SC, G.TAG, G.REC = "sc1", "s", False
    body(st, False)

sW8, sQK, sWOb, sGU, sWD5, sWI = s(74), s(75), s(76), s(77), s(78), s(79)
sWDb = [s(80 + i) for i in range(4)]
GU = 64
vKV, vQ, vW, vWR0, vWR1 = v(2), v(4), v(5), v(6), v(7)
vGG = [v(8), v(9), v(10)]; vGL = [v(16), v(17), v(18)]; vGT = v(19)
vC0, vC1, vCW, vCR = v(20), v(21), v(22), v(23)
SEL = 24; CACC = 28
FRS = [36, 40, 44, 48, 52]; WRAW = 56
vDUM = [v(11), v(60), v(61), v(62)]
GSTR = 448

def LDSW(st):
    for i in reversed(st.l):
        if i.name == "s_barrier" or (i.name == "s_waitcnt" and "lgkmcnt(0)" in i.ops[0]): return False
        if i.kind == "ds": return True
    return False

def POL(srd):
    k = {WQ: "pq", WO_: "po", WD: "pd", WG: "pg", WU: "pg"}.get(srd)
    x = os_(k, "") if k else ""
    return " " + x.replace("+", " ") if x else ""

def loader(st):
    st.v_lshrrev_b32(vT, 3, vL); st.v_bfe_u32(vU, vL, 4, 1); st.v_lshlrev_b32(vU, 2, vU); st.v_and_b32(vV, 7, vL); st.v_xor_b32(vU, vU, vV)
    st.v_mul_u32_u24(vKV, 3072, vT); st.v_and_b32(vV, 3, vU); st.v_lshl_add_u32(vKV, vV, 4, vKV)
    st.v_lshrrev_b32(vV, 2, vU); st.v_mul_u32_u24(vQ, 256 * 3072, vV); st.v_add_u32(vQ, vQ, vKV)
    st.v_lshl_add_u32(vKV, vV, 10, vKV); st.v_add_u32(vKV, 1024, vKV)
    st.v_lshlrev_b32(vW, 10, vT); st.v_lshl_add_u32(vW, vU, 4, vW)
    st.s_lshl_b32(sW8, sM, 13)
    st.s_mul_i32(sQK, sM, 64 * 3072); st.s_lshl_b32(sT0, sJ, 6); st.s_add_u32(sQK, sQK, sT0)
    sKVr = [s(84), s(85)]; sQJ = s(88); vQ0 = v(GU)
    rot(st, s(89), sT1); st.s_add_u32(s(89), s(89), sM)
    st.s_lshl_b32(sQJ, sJ, 6)
    st.s_and_b32(sT1, s(89), 7); st.s_mul_i32(sKVr[0], sT1, 64 * 3072); st.s_add_u32(sKVr[0], sKVr[0], sQJ)
    st.s_and_b32(sWI, sC, 1); st.s_lshl_b32(sWI, sWI, 4); st.s_add_u32(sWI, sWI, sJ); st.s_lshl_b32(sWI, sWI, 2); st.s_add_u32(sWI, sWI, sM)
    if not oi("fast0", 1) or E0:
        dcap(st, "l0", "l")
        if not oi("es", 0): st.wait(lgkm=0)
        srds(st, [WQ])
    chunks = []
    for pair in range(2):
        chunks += [("kv", 0), ("kv", 1), ("q", 0), ("wo", 0), ("wo", 1), ("gp", 0), ("gp", 1)] + [("gs", r) for r in range(2, 6)]
        chunks += [("wd", r) for r in range(6)]
    N = len(chunks)
    issued = set()
    SQ = []
    def spf(n):
        for _ in range(min(n, len(SQ))): SQ.pop(0)()
    def squeue(kind):
        if kind[0] == "K":
            i0 = int(kind[2:]) if kind[1:2] == "." else 0
            for i in range(i0, 64):
                def f(i=i):
                    if i == i0:
                        st.s_lshr_b32(s(90), sWI, 4); st.s_mul_i32(s(90), s(90), 3072); st.s_add_u32(s(44), s(46), s(90)); st.s_addc_u32(s(45), s(47), 0)
                        st.s_lshl_b32(s(91), sWI, 7)
                    if i == 32 or (i == i0 and i0 > 32): st.s_add_u32(s(44), s(44), 32 * 24576); st.s_addc_u32(s(45), s(45), 0)
                    st.s_add_u32(s(91), s(91), 128 * oi("krot", 1)); st.s_and_b32(s(91), s(91), 0x780)
                    x = Ins("s_load_dwordx2", [s(86, 2), s(44, 2), s(91)], f"offset:{hex(i % 32 * 24576 + 1024 + 60)}"); x.dst = set(); st.l.append(x)
                SQ.append(f)
            return
        if kind[0] == "c":
            base, stride, n, col = dict(q=(46, 3072, 4, [384]), k=(46, 3072, 4, [1408, 2432]), j=(46, 3072, 2, [1408, 2432]), o=(50, 1024, 4, [384]), d=(58, 1024, 11, [384]))[kind[1]]
            L = []
            r = s(92, 2) if kind[1] in "qkj" else s(94, 2)
            for i in range(n):
                for c_ in col:
                    def f(i=i, c_=c_):
                        if i == 0 and c_ == col[0]:
                            st.s_mul_i32(s(90), sWI, stride); st.s_add_u32(s(100), s(base), s(90)); st.s_addc_u32(s(101), s(base + 1), 0)
                        if kind[1] == "d" and i == 10:
                            st.s_min_u32(s(90), sWI, 95); st.s_sub_u32(s(90), sWI, s(90)); st.s_lshl_b32(s(90), s(90), 10)
                            st.s_sub_u32(s(100), s(100), s(90)); st.s_subb_u32(s(101), s(101), 0)
                        if c_ == col[0] and i * 128 * stride >= 1 << 20 and (i - 1) * 128 * stride < 1 << 20: st.s_add_u32(s(100), s(100), 1 << 20); st.s_addc_u32(s(101), s(101), 0)
                        x = Ins("s_load_dwordx2", [s(86, 2), s(100, 2), hex((i * 128 * stride) % (1 << 20) + c_ + 60)]); x.dst = set(); st.l.append(x)
                    L.append(f)
            SQ[0:0] = L
            return
        if kind[0] == "k":
            i0 = 32 if kind == "k2" else int(kind[2:]) if kind[1:2] == "." else 0
            for i in range(i0, 64):
                def f(i=i):
                    if i == i0:
                        st.s_lshr_b32(s(90), sWI, 4); st.s_mul_i32(s(90), s(90), 3072); st.s_and_b32(s(91), sWI, 15); st.s_lshl_b32(s(91), s(91), 7)
                        st.s_add_u32(s(91), s(91), s(90)); st.s_add_u32(s(44), s(46), s(91)); st.s_addc_u32(s(45), s(47), 0)
                    if i == 32 or (i == i0 and i0 > 32): st.s_add_u32(s(44), s(44), 32 * 24576); st.s_addc_u32(s(45), s(45), 0)
                    x = Ins("s_load_dwordx2", [s(86, 2), s(44, 2), hex(i % 32 * 24576 + 1024 + 60)]); x.dst = set(); st.l.append(x)
                SQ.append(f)
            return
        if kind[0] == "q":
            for i in range(32):
                def f(i=i):
                    if i == 0:
                        st.s_lshr_b32(s(90), sWI, 3); st.s_mul_i32(s(90), s(90), 3072); st.s_and_b32(s(91), sWI, 7); st.s_lshl_b32(s(91), s(91), 7)
                        st.s_add_u32(s(91), s(91), s(90)); st.s_add_u32(s(44), s(46), s(91)); st.s_addc_u32(s(45), s(47), 0)
                    if i == 16: st.s_add_u32(s(44), s(44), 16 * 49152); st.s_addc_u32(s(45), s(45), 0)
                    x = Ins("s_load_dwordx2", [s(86, 2), s(44, 2), hex(i % 16 * 49152 + 60)]); x.dst = set(); st.l.append(x)
                SQ.append(f)
            return
        if kind[0] == "h":
            n, o = dict(h0=(16, 0), h1=(27, 32768), h2=(16, 32768), h3=(11, 65536))[kind]
            for i in range(n):
                def f(i=i):
                    if i == 0:
                        st.s_lshl_b32(s(90), sC, 2); st.s_add_u32(s(90), s(90), sM); st.s_mul_i32(s(90), s(90), HB_TB)
                        st.s_mul_i32(s(91), sJ, n * 128); st.s_add_u32(s(90), s(90), s(91)); st.s_add_u32(s(90), s(90), HB + o)
                        st.s_add_u32(s(44), s(4), s(90)); st.s_addc_u32(s(45), s(5), 0)
                    x = Ins("s_load_dwordx2", [s(86, 2), s(44, 2), hex(i * 128 + 60)]); x.dst = set(); st.l.append(x)
                SQ.append(f)
            return
        if kind[0] == "R" and TG:
            st.s_lshl_b32(s(90), sJ, 2); st.s_add_u32(s(90), s(90), sM); st.s_lshl_b32(s(90), s(90), 4); st.s_add_u32(s(90), s(90), sC)
            st.s_mul_i32(s(90), s(90), TG_W); st.s_add_u32(s(90), s(90), KVP + (0 if kind == "R0" else TG_P))
            st.s_add_u32(s(90), s(4), s(90)); st.s_addc_u32(s(91), s(5), 0)
            for i in range(6):
                def f(i=i):
                    x = Ins("s_load_dwordx2", [s(86, 2), s(90, 2), hex(i * 128 + 60)]); x.dst = set(); st.l.append(x)
                SQ.insert(0, f)
            return
        if kind == "R":
            st.s_mul_i32(s(90), sJ, KV_J); st.s_mul_i32(s(91), sC, KV_REC); st.s_add_u32(s(90), s(90), s(91))
            st.s_mul_i32(s(91), sM, 5 * 128); st.s_min_u32(s(91), s(91), 13 * 128); st.s_add_u32(s(90), s(90), s(91)); st.s_add_u32(s(90), s(90), KVP + KV_P)
            st.s_add_u32(s(90), s(4), s(90)); st.s_addc_u32(s(91), s(5), 0)
            for i in range(5):
                def f(i=i):
                    x = Ins("s_load_dwordx2", [s(86, 2), s(90, 2), hex(i * 128 + 60)]); x.dst = set(); st.l.append(x)
                SQ.insert(0, f)
            return
        if kind[0] == "r":
            i0 = 5 if kind == "r1" else 0
            for i in range(i0, 10):
                def f(i=i):
                    if i == i0:
                        st.s_mul_i32(s(90), sJ, KV_J); st.s_mul_i32(s(91), sC, KV_REC); st.s_add_u32(s(90), s(90), s(91))
                        st.s_mul_i32(s(91), sM, 5 * 128); st.s_min_u32(s(91), s(91), 13 * 128); st.s_add_u32(s(90), s(90), s(91)); st.s_add_u32(s(90), s(90), KVP)
                        st.s_add_u32(s(44), s(4), s(90)); st.s_addc_u32(s(45), s(5), 0)
                        st.s_lshl_b32(s(90), sJ, 11); st.s_lshl_b32(s(91), sC, oi("fks", 7)); st.s_add_u32(s(90), s(90), s(91)); st.s_add_u32(s(90), s(90), FKV)
                        st.s_add_u32(s(90), s(4), s(90)); st.s_addc_u32(s(91), s(5), 0)
                    x = Ins("s_load_dwordx2", [s(86, 2), s(44, 2), hex(i % 5 * 128 + i // 5 * KV_P + 60)]); x.dst = set(); st.l.append(x)
                    if i % 5 == 4 and not oi("fkw", 1):
                        x = Ins("s_load_dword", [s(86), s(90, 2), hex(i // 5 * 256 * 128)]); x.dst = set(); st.l.append(x)
                SQ.append(f)
            return
        base, cnt = dict(w=(46, 96), o=(50, 32), d=(58, 86), g=(54, 86), u=(56, 86))[kind[0]]
        if len(kind) > 1: cnt = int(kind[1:])
        for i in range(cnt):
            def f(i=i):
                if i == 0:
                    st.s_lshl_b32(s(91), sWI, 7); st.s_add_u32(s(44), s(base), s(91)); st.s_addc_u32(s(45), s(base + 1), 0)
                if i == 48: st.s_add_u32(s(44), s(44), 48 * 16384); st.s_addc_u32(s(45), s(45), 0)
                x = Ins("s_load_dwordx2", [s(86, 2), s(44, 2), hex(i % 48 * 16384 + 60)]); x.dst = set(); st.l.append(x)
            SQ.append(f)
    PART = [0, 8]
    def dma(n, addr, srd, offs):
        slot = (n % 4) * 32768
        for i, (base, off, lds) in enumerate(offs):
            if not PART[0] <= i < PART[1]: continue
            st.s_add_u32("m0", lds[0], slot + lds[1])
            st.s_add_u32(sT0, base, off)
            st.buffer_load_dwordx4(addr, srd, sT0, mods="offen" + POL(srd) + " lds", tset=f"c{n}" if i == len(offs) - 1 else None)
    def issue(n):
        if n >= N: return
        assert n not in issued
        if PART[1] == 8: issued.add(n)
        kind, a = chunks[n]
        if kind == "kv" and n < 17:
            if a == 1: st.s_xor_b32(sT1, s(89), 4); st.s_and_b32(sT1, sT1, 7); st.s_mul_i32(sKVr[1], sT1, 64 * 3072); st.s_add_u32(sKVr[1], sKVr[1], sQJ)
            dma(n, vKV, WQ, [(sKVr[a], 8 * i * 3072, (sW8, 1024 * i)) for i in range(8)])
        elif kind == "q" and n < 17:
            st.v_add_u32(vT, sKVr[0], vQ); st.v_subrev_u32(vU, 512 * 3072, vT); st.v_min_u32(vQ0, vT, vU)
            dma(n, vQ0, WQ, [("0", 8 * i * 3072, (sW8, 1024 * i)) for i in range(8)])
        elif kind == "kv": dma(n, vKV, WQ, [(sQK, (256 * a + 8 * i) * 3072, (sW8, 1024 * i)) for i in range(8)])
        elif kind == "q": dma(n, vQ, WQ, [(sQK, 8 * i * 3072, (sW8, 1024 * i)) for i in range(8)])
        elif kind == "wo": dma(n, vW, WO_, [(sWOb, (256 * a + 8 * i) * 1024, (sW8, 1024 * i)) for i in range(8)])
        elif kind == "wd" and a < 5: dma(n, vW, WD, [(sWDb[i // 2], (16 * a + 8 * (i % 2)) * 1024, (sW8, 1024 * i)) for i in range(8)])
        elif kind == "wd":
            slot = (n % 4) * 32768
            for e in range(3):
                st.s_mul_i32(sT1, sM, 3); st.s_add_u32(sT1, sT1, e)
                st.s_lshr_b32(sT0, sT1, 1); st.s_mul_i32(sT0, sT0, 96 * 1024); st.s_and_b32(sT2, sT1, 1); st.s_lshl_b32(sT2, sT2, 13)
                st.s_add_u32(sT0, sT0, sT2); st.s_add_u32(sT0, sT0, sWD5)
                st.s_lshl_b32(sT1, sT1, 10); st.s_add_u32("m0", sT1, slot)
                st.buffer_load_dwordx4(vW, WD, sT0, mods="offen" + POL(WD) + " lds", tset=f"c{n}" if e == 2 else None)
        else:
            slot = n % 4; wr = vWR1 if slot >= 2 else vWR0; so = (slot & 1) * 32768
            for t in range(2):
                for k in range(4):
                    g, fr = (4 * a + k, t) if kind == "gp" else (4 * t + k, a)
                    st.ds_write_b128(wr, v(GU + 24 * g + 4 * fr, 4), mods=f"offset:{so + t*16384 + k*1024}", tset=f"c{n}" if (t, k) == (1, 3) else None)
    FREE = [GU + 24 * g + 4 * fr for h in (0, 2) for g in range(8) for fr in (h, h + 1)]
    def stg(n):
        a = chunks[n][1]
        if n < 17:
            return [48, 52, 56] if a == 5 else [16 + 4 * i for i in range(8)]
        o = {3: 0, 4: 8, 2: 16, 5: 24}[a]
        return FREE[o:o + 8]
    def stage(n):
        kind, a = chunks[n]; assert kind == "wd"
        r = stg(n)
        if a < 5:
            for i in range(8):
                st.s_add_u32(sT0, sWDb[i // 2], (16 * a + 8 * (i % 2)) * 1024)
                st.buffer_load_dwordx4(v(r[i], 4), vW, WD, sT0, mods="offen")
        else:
            for e in range(3):
                st.s_mul_i32(sT1, sM, 3); st.s_add_u32(sT1, sT1, e)
                st.s_lshr_b32(sT0, sT1, 1); st.s_mul_i32(sT0, sT0, 96 * 1024); st.s_and_b32(sT2, sT1, 1); st.s_lshl_b32(sT2, sT2, 13)
                st.s_add_u32(sT0, sT0, sT2); st.s_add_u32(sT0, sT0, sWD5)
                st.buffer_load_dwordx4(v(r[e], 4), vW, WD, sT0, mods="offen")
    def unstage(n):
        kind, a = chunks[n]; r = stg(n); slot = (n % 4) * 32768
        assert n not in issued; issued.add(n)
        if a < 5: st.s_add_u32(sT0, sW8, slot)
        else: st.s_mul_i32(sT0, sM, 3072); st.s_add_u32(sT0, sT0, slot)
        st.v_add_u32(vT, sT0, vL16)
        for i in range(8 if a < 5 else 3): st.ds_write_b128(vT, v(r[i], 4), mods=f"offset:{1024*i}")
    def prologue():
        F0 = oi("fast0", 1)
        if F0:
            if E0:
                srds(st, [WS, WP, WO_, WG, WU, WD, OUT])
                run(E0.split(","), 0)
        else:
            issue(0)
            if oi("kv1first", 1): issue(1)
        if not oi("cfirst", 1):
            st.mark("save", "ld1"); st.s_branch(".Lloader")
            st.label(".Lcomp"); st.mark("reset")
            compute(st)
            st.label(".Lloader"); st.mark("restore", "ld1")
        if not F0 and not oi("kv1first", 1): issue(1)
        def late():
            if not (F0 and E0):
                st.wait(lgkm=0)
                srds(st, [WQ, WS, WP, WO_, WG, WU, WD])
            stamp_base(st)
            if not OPT.get("dcap"): stamp(st, "start", who="l", pair=0)
        if not F0 or E0: late()
        st.s_lshl_b32(sWOb, sM, 16); st.s_lshl_b32(sT0, sCG, 7); st.s_add_u32(sWOb, sWOb, sT0)
        for e in range(4):
            st.s_lshl_b32(sT1, sM, 2); st.s_add_u32(sT1, sT1, e)
            st.s_mul_i32(sT2, sT1, 6); st.s_mul_i32(sT3, sT1, 5); st.s_add_u32(sT3, sT3, 6); st.s_min_u32(sT2, sT2, sT3)
            st.s_lshl_b32(sT2, sT2, 14); st.s_add_u32(sWDb[e], sT2, sT0)
        st.s_add_u32(sWD5, sT0, 80 * 1024)
        st.s_mul_i32(sT2, sJ, 6); st.s_mul_i32(sT3, sJ, 5); st.s_add_u32(sT3, sT3, 6); st.s_min_u32(sT2, sT2, sT3)
        st.s_lshl_b32(sT2, sT2, 5); st.s_mul_i32(sGU, sM, 64 * 2752); st.s_add_u32(sGU, sGU, sT2)
        st.s_cmp_eq_u32(sT6, 1); st.s_cselect_b32(sT1, 12, 10)
        st.s_lshl_b32(sT2, sM, 12); st.s_add_u32(sT2, sT2, 32768)
        for i in range(3):
            st.v_add_u32(vT, 64 * i, vL); st.v_mul_u32_u24(vU, 5462, vT); st.v_lshrrev_b32(vU, 16, vU)
            st.v_mul_u32_u24(vV, 12, vU); st.v_sub_u32(vT, vT, vV)
            st.v_mul_u32_u24(vGG[i], 2752, vU); st.v_lshl_add_u32(vGG[i], vT, 4, vGG[i])
            st.v_cmp_gt_u32("vcc", sT1, vT); st.v_mov_b32(vV, 0x80000000); st.v_cndmask_b32(vGG[i], vV, vGG[i], "vcc")
            st.v_and_b32(vV, 7, vU); st.v_mul_u32_u24(vGL[i], GSTR, vV); st.v_lshrrev_b32(vV, 3, vU); st.v_lshl_add_u32(vGL[i], vV, 14, vGL[i])
            st.v_lshrrev_b32(vV, 1, vT); st.v_lshl_add_u32(vGL[i], vV, 6, vGL[i])
            st.v_and_b32(vV, 1, vT); st.v_lshl_add_u32(vGL[i], vV, 4, vGL[i]); st.v_add_u32(vGL[i], sT2, vGL[i])
        lane_tr(st, vGT, None, "nat", stride=GSTR, hstride=16384); st.v_add_u32(vGT, sT2, vGT)
        lane_tr(st, vC0, vC1, "qkv")
        st.s_lshl_b32(sT0, sM, 12); st.v_add_u32(vWR0, sT0, vL16); st.v_add_u32(vWR1, 65536, vWR0)
        st.v_bfe_u32(vT, vL, 4, 1); st.v_and_b32(vU, 1, vL); st.v_cmp_eq_u32("vcc", vT, vU)
        st.v_mov_b32(vV, 0x3f803f80)
        for i in range(4): st.v_cndmask_b32(v(SEL + i), 0, vV, "vcc")
        st.v_lshlrev_b32(vCW, 6, vT); st.v_lshl_add_u32(vCW, vU, 5, vCW); st.v_lshrrev_b32(vT, 5, vL); st.v_lshl_add_u32(vCW, vT, 4, vCW)
        if F0 and not E0: late()
    def publish():
        L = newlab("pub")
        st.v_add_u32(vNON, sXC, vNON); st.v_add_u32(vNON, 16, vNON)
        st.s_lshl_b32(sT0, sC, 7); st.s_lshl_b32(sT1, sJ, 2); st.s_add_u32(sT0, sT0, sT1); st.s_add_u32(sT0, sT0, XCCT)
        st.s_cmp_lg_u32(sM, 0); st.mark("save", L); st.s_cbranch_scc1(L)
        st.buffer_store_dword(vNON, "off", WS, sT0, mods="sc1")
        st.mark("merge", L); st.label(L)
    dn = [0]
    def dum():
        dn[0] += 1
        return vDUM[dn[0] % 4]
    def tload(addr, srd, soff):
        i = Ins("buffer_load_dword", [dum(), addr, srd, str(soff)], "offen" + POL(srd)); i.dst = set(); st.l.append(i)
    def touch(kind):
        if kind == "wd":
            st.s_mul_i32(sT0, sWI, 86 * 128); st.v_lshlrev_b32(vT, 7, vL); tload(vT, WD, sT0)
            st.v_min_u32(vU, 21, vL); st.v_lshlrev_b32(vU, 7, vU); st.s_add_u32(sT0, sT0, 8192); tload(vU, WD, sT0)
        elif kind[:2] == "wf":
            n = int(kind[2:]); assert n <= 64
            st.s_mul_i32(sT0, sWI, n * 128); st.v_min_u32(vT, n - 1, vL); st.v_lshlrev_b32(vT, 7, vT); tload(vT, WD, sT0)
        elif kind[:2] == "wd":
            n = int(kind[2:]); c = 86 - n; assert c <= 64
            st.s_mul_i32(sT0, sWI, c * 128); st.s_add_u32(sT0, sT0, n * 16384); st.v_min_u32(vT, c - 1, vL); st.v_lshlrev_b32(vT, 7, vT); tload(vT, WD, sT0)
        elif kind == "out":
            st.s_lshl_b32(sT0, sC, 4); st.s_add_u32(sT0, sT0, sJ); st.s_lshl_b32(sT0, sT0, 2); st.s_add_u32(sT0, sT0, sM); st.s_lshl_b32(sT0, sT0, 11)
            st.v_lshlrev_b32(vT, 5, vFL); tload(vT, OUT, sT0)
        elif kind in ("g", "u"):
            D = WG if kind == "g" else WU
            st.s_mul_i32(sT0, sWI, 86 * 128); st.v_lshlrev_b32(vT, 7, vL); tload(vT, D, sT0)
            st.v_min_u32(vU, 21, vL); st.v_lshlrev_b32(vU, 7, vU); st.s_add_u32(sT0, sT0, 8192); tload(vU, D, sT0)
        elif kind in ("ga", "gb"):
            st.s_mul_i32(sT0, sWI, 43 * 128); st.v_min_u32(vT, 42, vL); st.v_lshlrev_b32(vT, 7, vT)
            if kind == "gb": st.s_add_u32(sT0, sT0, 256 * 2752)
            tload(vT, WG, sT0); tload(vT, WU, sT0)
        elif kind in ("kv0", "kv1"):
            st.v_bfe_u32(vT, vL, 4, 1); st.v_mul_u32_u24(vT, 3072, vT); st.v_lshl_add_u32(vT, vFL, 5, vT)
            st.s_mul_i32(sT0, sWI, 2 * 3072); st.s_add_u32(sT0, sT0, 1024 + 256 * 3072 * int(kind[2])); tload(vT, WQ, sT0)
        elif kind == "kv":
            st.v_lshrrev_b32(vT, 4, vL); st.v_mul_u32_u24(vT, 3072, vT); st.v_lshl_add_u32(vT, vFL, 5, vT)
            st.s_mul_i32(sT0, sWI, 4 * 3072); st.s_add_u32(sT0, sT0, 1024); tload(vT, WQ, sT0)
        elif kind == "q":
            st.v_bfe_u32(vT, vL, 3, 2); st.v_mul_u32_u24(vT, 3072, vT); st.v_and_b32(vU, 7, vL); st.v_lshl_add_u32(vT, vU, 7, vT)
            st.s_mul_i32(sT0, sWI, 4 * 3072); tload(vT, WQ, sT0)
        elif kind == "wo":
            st.v_and_b32(vT, 31, vL); st.v_lshlrev_b32(vT, 7, vT); st.s_lshl_b32(sT0, sWI, 12); tload(vT, WO_, sT0)
        elif kind == "h":
            st.s_lshl_b32(sT0, sC, 4); st.s_add_u32(sT0, sT0, sJ); st.s_lshl_b32(sT0, sT0, 2); st.s_add_u32(sT0, sT0, sM)
            st.s_mul_i32(sT0, sT0, 43 * 128); st.s_add_u32(sT0, sT0, HB)
            st.v_min_u32(vT, 42, vL); st.v_lshlrev_b32(vT, 7, vT); tload(vT, WS, sT0)
        elif kind in ("h0", "h1", "h2", "h3"):
            n, o = dict(h0=(16, 0), h1=(27, 32768), h2=(16, 32768), h3=(11, 65536))[kind]
            st.s_lshl_b32(sT0, sC, 2); st.s_add_u32(sT0, sT0, sM); st.s_mul_i32(sT0, sT0, HB_TB)
            st.s_mul_i32(sT1, sJ, n * 128); st.s_add_u32(sT0, sT0, sT1); st.s_add_u32(sT0, sT0, HB + o)
            st.v_min_u32(vT, n - 1, vL); st.v_lshlrev_b32(vT, 7, vT); tload(vT, WS, sT0)
        elif kind == "hs":
            st.s_lshl_b32(sT0, sC, 2); st.s_mul_i32(sT0, sT0, HB_TB); st.s_add_u32(sT0, sT0, HB)
            st.s_lshl_b32(sT1, sJ, 2); st.s_add_u32(sT1, sT1, sM); st.s_lshl_b32(sT1, sT1, 1)
            st.v_and_b32(vT, 1, vL); st.v_add_u32(vT, sT1, vT); st.v_min_u32(vT, 4 * HB_TB // 4096 - 1, vT); st.v_lshlrev_b32(vT, 12, vT); tload(vT, WS, sT0)
        elif kind == "x" and XO:
            st.s_lshl_b32(sT0, sC, 4); st.s_add_u32(sT0, sT0, sJ); st.s_lshl_b32(sT0, sT0, 2); st.s_add_u32(sT0, sT0, sM)
            st.s_lshl_b32(sT1, sT0, 11); st.v_lshlrev_b32(vT, 5, vFL); tload(vT, OUT, sT1)
            st.s_lshl_b32(sT2, sT0, 8); st.s_add_u32(sT2, sT2, ST)
            st.s_lshl_b32(sT3, sC, 2); st.s_add_u32(sT3, sT3, sM); st.s_lshl_b32(sT3, sT3, 10); st.s_add_u32(sT3, sT3, FL - 2 * 128)
            st.v_mov_b32(vU, sT2); st.v_mov_b32(vV, sT3); st.v_cmp_le_u32("vcc", 2, vL); st.v_cndmask_b32(vU, vU, vV, "vcc")
            st.v_min_u32(vT, 6, vL); st.v_lshl_add_u32(vT, vT, 7, vU); tload(vT, WS, 0)
        elif kind == "x":
            st.s_lshl_b32(sT0, sC, 4); st.s_add_u32(sT0, sT0, sJ); st.s_lshl_b32(sT0, sT0, 2); st.s_add_u32(sT0, sT0, sM)
            st.s_lshl_b32(sT1, sT0, 11); st.s_add_u32(sT1, sT1, XB)
            st.s_lshl_b32(sT2, sT0, 8); st.s_add_u32(sT2, sT2, ST - 16 * 128)
            st.s_lshl_b32(sT3, sC, 2); st.s_add_u32(sT3, sT3, sM); st.s_lshl_b32(sT3, sT3, 10); st.s_add_u32(sT3, sT3, FL - 18 * 128)
            st.v_mov_b32(vU, sT1); st.v_mov_b32(vV, sT2); st.v_cmp_le_u32("vcc", 16, vL); st.v_cndmask_b32(vU, vU, vV, "vcc")
            st.v_mov_b32(vV, sT3); st.v_cmp_le_u32("vcc", 18, vL); st.v_cndmask_b32(vU, vU, vV, "vcc")
            st.v_min_u32(vT, 22, vL); st.v_lshl_add_u32(vT, vT, 7, vU); tload(vT, WS, 0)
        elif kind == "r1":
            st.s_mul_i32(sT0, sJ, KV_J); st.s_mul_i32(sT1, sC, KV_REC); st.s_add_u32(sT0, sT0, sT1)
            st.s_mul_i32(sT1, sM, 640); st.s_min_u32(sT1, sT1, 13 * 128); st.s_add_u32(sT0, sT0, sT1); st.s_add_u32(sT0, sT0, KVP + KV_P)
            st.v_min_u32(vT, 4, vL); st.v_lshlrev_b32(vT, 7, vT); tload(vT, WS, sT0)
        elif kind == "f":
            st.s_lshl_b32(sT3, sC, 2); st.s_add_u32(sT3, sT3, sM); st.s_lshl_b32(sT3, sT3, 10); st.s_add_u32(sT3, sT3, FL)
            st.v_min_u32(vT, 4, vL); st.v_lshlrev_b32(vT, 7, vT); tload(vT, WS, sT3)
        elif kind == "cs":
            st.s_getpc_b64(s(100, 2))
            L = newlab("pc")
            st.label(L)
            st.raw(f"    s_sub_u32 s100, s100, {L}-{NAME}_kernel")
            st.raw("    s_subb_u32 s101, s101, 0")
            st.v_and_b32(vT, 3, vL); st.v_lshlrev_b32(vT, 14, vT); st.s_lshl_b32(sT0, sWI, 7); st.v_add_u32(vT, sT0, vT)
            st.v_min_u32(vT, f".Lslow-{NAME}_kernel", vT)
            i = Ins("global_load_dword", [dum(), vT, s(100, 2)]); i.dst = set(); st.l.append(i)
        elif kind == "code":
            st.s_getpc_b64(s(100, 2))
            L = newlab("pc")
            st.label(L)
            st.raw(f"    s_sub_u32 s100, s100, {L}-{NAME}_kernel")
            st.raw("    s_subb_u32 s101, s101, 0")
            st.v_lshlrev_b32(vT, 7, vL); st.s_lshl_b32(sT0, sM, 13); st.v_add_u32(vT, sT0, vT)
            i = Ins("global_load_dword", [dum(), vT, s(100, 2)]); i.dst = set(); st.l.append(i)
            st.v_add_u32(vU, 32768, vT); st.v_min_u32(vU, f".Lslow-{NAME}_kernel", vU)
            i = Ins("global_load_dword", [dum(), vU, s(100, 2)]); i.dst = set(); st.l.append(i)
    def claim(kind):
        sm = os_("sm", "")
        def sel(lo, r):
            st.v_mov_b32(vV, r); st.v_cmp_le_u32("vcc", lo, vL); st.v_cndmask_b32(vU, vU, vV, "vcc")
        if kind in ("ox", "x"):
            st.s_lshl_b32(sT0, sC, 2); st.s_add_u32(sT1, sT0, sM); st.s_mul_i32(sT1, sT1, HB_TB); st.s_lshl_b32(sT2, sJ, 11)
            st.s_add_u32(sT1, sT1, sT2); st.s_add_u32(sT1, sT1, HB); st.v_mov_b32(vU, sT1)
            st.s_lshl_b32(sT1, sHF, 1); st.s_add_u32(sT0, sT0, sT1); st.s_lshr_b32(sT1, sM, 1); st.s_add_u32(sT0, sT0, sT1)
            st.s_lshl_b32(sT1, sCG, 1); st.s_and_b32(sT2, sM, 1); st.s_add_u32(sT1, sT1, sT2)
            st.s_lshl_b32(sT2, sT0, 15); st.s_lshl_b32(sT3, sT1, 11); st.s_add_u32(sT2, sT2, sT3); st.s_add_u32(sT2, sT2, XB - 16 * 128)
            sel(16 if kind == "ox" else 0, sT2)
            st.s_lshl_b32(sT2, sT0, 12); st.s_lshl_b32(sT3, sT1, 8); st.s_add_u32(sT2, sT2, sT3); st.s_add_u32(sT2, sT2, ST - 32 * 128)
            sel(32, sT2)
            st.v_min_u32(vT, 33, vL)
            if kind == "x": st.v_max_u32(vT, 16, vT)
            st.v_lshl_add_u32(vT, vT, 7, vU)
        elif kind == "h":
            st.s_lshl_b32(sT0, sC, 2); st.s_add_u32(sT1, sT0, sM); st.s_mul_i32(sT1, sT1, HB_TB); st.s_lshl_b32(sT2, sJ, 10)
            st.s_add_u32(sT1, sT1, sT2); st.s_add_u32(sT1, sT1, HB + 32768)
            st.s_add_u32(sT2, sT6, 2); st.v_lshrrev_b32(vT, 3, vL); st.v_min_u32(vT, sT2, vT); st.v_lshlrev_b32(vT, 14, vT)
            st.v_and_b32(vU, 7, vL); st.v_lshl_add_u32(vT, vU, 7, vT); st.v_add_u32(vT, sT1, vT)
        elif kind == "r":
            sm = "sc1"
            st.s_mul_i32(sT0, sJ, KV_J); st.s_mul_i32(sT1, sC, KV_REC); st.s_add_u32(sT0, sT0, sT1)
            st.s_mul_i32(sT1, sM, 5 * 128); st.s_min_u32(sT1, sT1, 13 * 128); st.s_add_u32(sT0, sT0, sT1); st.s_add_u32(sT0, sT0, KVP)
            st.v_mov_b32(vU, sT0); st.s_add_u32(sT0, sT0, KV_P - 5 * 128); sel(5, sT0)
            assert oi("fks", 7) == 7
            st.s_lshl_b32(sT0, sJ, 11); st.s_lshl_b32(sT1, sC, 7); st.s_add_u32(sT0, sT0, sT1); st.s_add_u32(sT0, sT0, FKV + 32 - 10 * 128)
            sel(10, sT0); st.s_add_u32(sT0, sT0, 256 * 128 - 128); sel(11, sT0)
            st.v_min_u32(vT, 11, vL); st.v_lshl_add_u32(vT, vT, 7, vU)
        st.buffer_store_dword(vL, vT, WS, 0, mods="offen " + sm, tset="w" + kind)
    def fillw(kind):
        sm = os_("fm", "sc1").replace("+", " ").replace("-", "")
        D = v(8, 4)
        if SPEC:
            D = v(52, 4)
            for i in range(4): st.v_mov_b32(v(52 + i), -1)
        def w(addr, soff, off=0, tag=None): st.buffer_store_dwordx4(D, addr, WS, soff, mods=f"offen offset:{off} {sm}", tset=tag)
        if kind == "o":
            st.s_lshl_b32(sT0, sC, 2); st.s_add_u32(sT1, sT0, sM); st.s_mul_i32(sT1, sT1, HB_TB); st.s_lshl_b32(sT2, sJ, 11)
            st.s_add_u32(sT1, sT1, sT2); st.s_add_u32(sT1, sT1, HB); w(vL16, sT1); w(vL16, sT1, 1024, "wo")
        elif kind == "o1":
            st.s_lshl_b32(sT0, sC, 2); st.s_add_u32(sT1, sT0, sM); st.s_lshl_b32(sT1, sT1, 15); st.s_lshl_b32(sT2, sJ, 11)
            st.s_add_u32(sT1, sT1, sT2); st.s_add_u32(sT1, sT1, OB1); w(vL16, sT1); w(vL16, sT1, 1024, "wo1")
        elif kind[0] == "x":
            d = {"x": 0, "x1": X_A, "x2": X_A + X_B}[kind]
            st.s_lshl_b32(sT0, sC, 2)
            st.s_lshl_b32(sT1, sHF, 1); st.s_add_u32(sT0, sT0, sT1); st.s_lshr_b32(sT1, sM, 1); st.s_add_u32(sT0, sT0, sT1)
            st.s_lshl_b32(sT1, sCG, 1); st.s_and_b32(sT2, sM, 1); st.s_add_u32(sT1, sT1, sT2)
            st.s_lshl_b32(sT2, sT0, 15); st.s_lshl_b32(sT3, sT1, 11); st.s_add_u32(sT2, sT2, sT3); st.s_add_u32(sT2, sT2, XB + d)
            w(vL16, sT2); w(vL16, sT2, 1024)
            st.s_lshl_b32(sT2, sT0, 12); st.s_lshl_b32(sT3, sT1, 8); st.s_add_u32(sT2, sT2, sT3); st.s_add_u32(sT2, sT2, ST + d)
            st.v_and_b32(vT, 240, vL16); w(vT, sT2, 0, "w" + kind)
        elif kind == "h":
            st.s_lshl_b32(sT0, sC, 2); st.s_add_u32(sT1, sT0, sM); st.s_mul_i32(sT1, sT1, HB_TB); st.s_lshl_b32(sT2, sJ, 10)
            st.s_add_u32(sT1, sT1, sT2); st.s_add_u32(sT1, sT1, HB + 32768)
            for r in range(2): w(vL16, sT1); st.s_add_u32(sT1, sT1, 16384)
            w(vL16, sT1); st.s_lshl_b32(sT2, sT6, 14); st.s_add_u32(sT1, sT1, sT2); w(vL16, sT1, 0, "wh")
        elif kind in ("r", "r1"):
            st.s_mul_i32(sT0, sJ, KV_J); st.s_mul_i32(sT1, sC, KV_REC); st.s_add_u32(sT0, sT0, sT1)
            st.s_mul_i32(sT1, sM, 640); st.s_min_u32(sT1, sT1, 13 * 128); st.s_add_u32(sT0, sT0, sT1); st.s_add_u32(sT0, sT0, KVP)
            st.v_min_u32(vT, 39 * 16, vL16)
            if kind == "r": w(vT, sT0)
            st.s_add_u32(sT0, sT0, KV_P); w(vT, sT0, 0, "wr")
    gl = []
    for g in range(8):
        k0 = (16 * (g // 4) + (g % 4)) * 16
        for m_, srd in enumerate((WG, WU)):
            for i in range(3):
                def f(g=g, k0=k0, m_=m_, srd=srd, i=i):
                    if i == 0: st.s_add_u32(sLD, sGU, k0 * 2752)
                    st.buffer_load_dwordx4(v(GU + 24 * g + 12 * m_ + 4 * i, 4), vGG[i], srd, sLD, mods="offen" + POL(srd))
                gl.append(f)
    def gu_loads(cnt):
        for _ in range(min(cnt, len(gl))):
            f = gl.pop(0)
            if not OPT.get("noG"): f()
    def colsum(n, steps, first, lo, hi, dst=None):
        L = newlab("cs")
        st.s_sub_u32(sT0, sM, lo); st.s_cmp_ge_u32(sT0, hi - lo); st.mark("save", L); st.s_cbranch_scc1(L)
        nf = len(FRS)
        def rd(k):
            a, off = steps[k]; r = FRS[k % nf]
            st.ds_read_b64_tr_b16(v(r, 2), a, mods=f"offset:{off}"); st.ds_read_b64_tr_b16(v(r + 2, 2), a, mods=f"offset:{off+512}")
        for k in range(nf - 1): rd(k)
        for k in range(len(steps)):
            acc = v(CACC + 4 * (k & 1), 4)
            st.v_mfma_f32_16x16x32_bf16(acc, v(FRS[k % nf], 4), v(SEL, 4), "0" if first and k < 2 else acc)
            if k + nf - 1 < len(steps): rd(k + nf - 1)
        if dst is not None:
            for i in range(4): st.v_add_f32(v(CACC + i), v(CACC + i), v(CACC + 4 + i))
            st.ds_write_b128(dst, v(CACC, 4))
        st.mark("merge", L); st.label(L)
    def transpose(g):
        b = GU + 24 * g
        for m_ in range(2):
            for i in range(3): st.ds_write_b128(vGL[i], v(b + 12 * m_ + 4 * i, 4), mods=f"offset:{32*m_}")
        for t in range(6):
            for u in range(2): st.ds_read_b64_tr_b16(v(b + 4 * t + 2 * u, 2), vGT, mods=f"offset:{u*4*GSTR + t*64}")
    def tsum(g):
        b = GU + 24 * g
        for t in range(6):
            st.v_mfma_f32_16x16x32_bf16(v(CACC + 4 * t, 4), v(b + 4 * t, 4), v(SEL, 4), "0" if g == 0 else v(CACC + 4 * t, 4))
    tr_next = [0]
    def transposes(cnt):
        gs = list(range(tr_next[0], min(8, tr_next[0] + cnt))); tr_next[0] += len(gs)
        for i, g in enumerate(gs):
            transpose(g)
            if i > 0: tsum(gs[i - 1])
        tsum(gs[-1])
    def gu_partial():
        st.s_mul_i32(sT0, sM, 768); st.s_add_u32(sT0, sT0, L_VB); st.v_add_u32(vT, sT0, vCW)
        for i in range(6): st.ds_write_b128(vT, v(CACC + 4 * i, 4), mods=f"offset:{128*i}")
    def gu_reduce():
        st.v_min_u32(vCR, 6 * 128 - 16, vL16)
        st.v_add_u32(vT, L_VB, vCR)
        for w in range(4): st.ds_read_b128(v(CACC + 4 * w, 4), vT, mods=f"offset:{w*768}")
        for i in range(4):
            st.v_add_f32(v(CACC + i), v(CACC + i), v(CACC + 4 + i)); st.v_add_f32(v(CACC + 8 + i), v(CACC + 8 + i), v(CACC + 12 + i))
        for i in range(4): st.v_add_f32(v(CACC + i), v(CACC + i), v(CACC + 8 + i))
        for i in range(4):
            st.v_and_b32(v(CACC + 4 + i), 0xffff0000, v(CACC + i)); st.v_sub_f32(v(CACC + i), v(CACC + i), v(CACC + 4 + i))
            st.v_cvt_pk_bf16_f32(v(CACC + i), v(CACC + 4 + i), v(CACC + i))
        st.v_and_b32(vT, 0x380, vCR); st.v_and_b32(vU, 0x30, vCR); st.v_lshl_add_u32(vT, vU, 1, vT)
        st.v_bfe_u32(vU, vCR, 6, 1); st.v_lshl_add_u32(vT, vU, 4, vT); st.v_add_u32(vT, L_CS + 384, vT)
        st.ds_write_b128(vT, v(CACC, 4))
    def cs_kv(a):
        if a == 0:
            st.s_lshl_b32(sT0, sM, 6); st.v_xor_b32(vCR, sT0, vC0)
        else:
            st.s_lshl_b32(sT0, sM, 7); st.s_add_u32(sT0, sT0, L_CS); st.v_add_u32(vV, sT0, vCW)
        colsum(a, [(vCR, 32768 * a + 2048 * k) for k in range(16)], a == 0, 0, 2, dst=vV if a == 1 else None)
    def cs_q():
        st.v_add_u32(vT, 65536, vC0); st.v_add_u32(vU, 65536, vC1); st.v_add_u32(vV, L_CS + 256, vCW)
        colsum(2, [(a, 2048 * k) for k in range(16) for a in (vT, vU)], True, 2, 3, dst=vV)

    need = {"a0": [0], "a1": [1], "g": [3, 4], "30": [5, 6, 7, 8], "3c": [9], "3d": [10], "3f": [11], "4a": [12], "4b": [13], "4c": [14], "4d": [15], "4e": [16]}
    S0 = os_("s0", "start:c1,Qcq,S4;a0:c2,csk0,Qco,S4;a1:csk1,wst,sigA,pub,G8,sigq,G16,wsig,X2,G12,X2,G12,X2,c3,c4,X2,Th0,Tx;g:part,c5,c6,Qk,S21;p2:Th1,S7;X2:c7,c8;")
    S0 += os_("s0b", "30:red,wst;3a:c9,Twd,nd;3b:c10,nd;3c:r15,r16;3d:c11,c12;3f:c13,S4;3g:c14,S4;4a:S7;4b:u15,S7;4c:u16,S7;4d:S7;4e:c17;X4:c18,Qco,Qcq,S8")
    S1 = os_("s1", "a2:c2,sig,c3,c4;g:c5,c6;p2:Twf32;X2:c7,c8;")
    S1 += os_("s1b", "3a:c9,Twd32,nd;3b:c10,nd;3c:c11,r15,r16;3d:c12;3f:c13;3g:c14;4b:u15;4c:u16")
    def acts(txt):
        d = {}
        for part in txt.split(";"):
            k, _, l = part.partition(":"); d[k] = l.split(",")
        return d
    DR = [False]
    def run(lst, o):
        for a in lst:
            DR[0] = False
            if a == "q": issue(2)
            elif a == "pub": publish()
            elif a == "wld": st.s_lshl_b32(sT0, sJ, 10); st.buffer_load_dwordx4(v(WRAW, 4), vL16, WP, sT0, mods="offen")
            elif a == "wst":
                st.v_bfe_u32(vT, vL, 3, 2); st.v_mul_u32_u24(vT, 576, vT); st.v_lshrrev_b32(vU, 5, vL); st.v_lshl_add_u32(vT, vU, 7, vT)
                st.v_and_b32(vU, 112, vL16); st.v_add_u32(vT, vT, vU); st.v_add_u32(vT, L_KVB, vT)
                st.ds_write_b128(vT, v(WRAW, 4))
            elif a == "non": st.buffer_load_dword(vNON, "off", WS, 0, mods=f"offset:{EPOCH} sc1")
            elif a == "sig":
                st.l.append(Ins("s_nop", ["0"], tneed=f"c{o+2}")); signal(st, 1 + o // 17)
            elif a == "sigA": signal(st, 1, 16)
            elif a == "sigq":
                L = newlab("sq")
                st.l.append(Ins("s_nop", ["0"], tneed=f"c{o+2}")); signal(st, 1, 32)
                st.s_cmp_lg_u32(sM, 2); st.mark("save", L); st.s_cbranch_scc1(L)
                st.v_mov_b32(vU, 1); sigwait(st, 12, 48, regs=(13, 14, 15))
                st.mark("merge", L); st.label(L)
                cs_q(); signal(st, 1)
            elif a == "wsg": st.v_mov_b32(vU, 1); sigwait(st, 12, 64, regs=(13, 14, 15))
            elif a == "wsk": st.v_mov_b32(vU, 1 + o // 17); sigwait(st, 12, 64, regs=(13, 14, 15))
            elif a == "wsx": st.v_mov_b32(vU, 1); sigwait(st, 12, 80, regs=(13, 14, 15))
            elif a == "wsig": st.v_mov_b32(vU, 2); sigwait(st, 12, 32, regs=(13, 14, 15))
            elif a.startswith("csk"): cs_kv(int(a[3]))
            elif a == "csq": cs_q()
            elif a == "part": gu_partial()
            elif a == "red": gu_reduce()
            elif a[0] == "P": st.s_setprio(int(a[1:]))
            elif a == "nd": DR[0] = True
            elif a == "QC": SQ.clear()
            elif a == "wl": st.wait(lgkm=0)
            elif a[0] == "D" and a != "DF": dcap(st, a, "l")
            elif a == "DF": dflush(st, "l")
            elif a[:2] == "WB":
                L = newlab("wb")
                if a == "WB": st.s_or_b32(sT0, sJ, sM)
                else: st.s_mov_b32(sT0, sM)
                st.s_cmp_lg_u32(sT0, 0); st.mark("save", L); st.s_cbranch_scc1(L)
                st.raw("    buffer_wbl2 " + os_("wbm", "sc1").replace("+", " "))
                st.mark("merge", L); st.label(L)
            elif a == "wv": st.wait(vm=0)
            elif a[0] == "Q": squeue(a[1:])
            elif a[0] == "S":
                if LDSW(st): st.wait(lgkm=0)
                DR[0] = True; spf(int(a[1:]))
            elif a[0] == "c" and "-" in a:
                n_, PART[0], PART[1] = [int(x) for x in a[1:].split("-")]
                issue(o + n_); PART[:] = [0, 8]
            elif a[0] == "c": issue(o + int(a[1:]))
            elif a[0] == "r" and a[1:].isdigit(): stage(o + int(a[1:]))
            elif a[0] == "u" and a[1:].isdigit(): unstage(o + int(a[1:]))
            elif a[0] == "@": stamp(st, a, who="l", pair=o // 17)
            elif a[0] == "G": gu_loads(int(a[1:]))
            elif a[0] == "X": transposes(int(a[1:]))
            elif a[0] == "T": touch(a[1:])
            elif a[0] == "W": claim(a[1:])
            elif a[0] == "F": fillw(a[1:])
            elif a[0] == "N": st.l.append(Ins("s_nop", ["0"], tneed="w" + a[1:]))
            else: raise ValueError(a)
    prologue()
    for pair in range(1 if OPT['stop'] else 2):
        o = 17 * pair; A = acts(S0 if pair == 0 else S1)
        run(A.get("start", []), o)
        for b in (SEQ0 if pair == 0 else SEQA) + SEQC:
            tk = []
            for n in need.get(b, []):
                if o + n == 0 and oi("xd", 0): continue
                assert o + n in issued, (pair, b, n)
                tk.append(f"c{o+n}")
            if not (OPT.get("dcap") and b == "a0" and pair == 0): stamp(st, "<" + b, who="l", pair=pair)
            if not DR[0] and LDSW(st): st.wait(lgkm=0)
            DR[0] = False
            st.l.append(Ins("s_barrier", [], tneed=tk))
            run(A.get(b, []), o)
    assert OPT['stop'] or (not gl and tr_next[0] == 8)
    st.s_branch(".Lend")

def main():
    st = Stream()
    entry(st)
    loader(st)
    st.label(".Lslow")
    compute_slow(st)
    st.extend(OOL)
    st.label(".Lend")
    st.s_endpgm()
    bodyt = finalize(st)
    ref = open(f"cdna_kernels/{NAME}.s.ref").read().split("\n")
    head = [l for l in ref if l.startswith(";") and "@launch" not in l]
    out = "\n".join(head) + f"\n; @launch grid=(256,1,1) block=(512,1,1) lds={LDS_BYTES}\n"
    out += '.amdgcn_target "amdgcn-amd-amdhsa--gfx950"\n' + khead(NAME + "_kernel") + bodyt + kd(NAME + "_kernel")
    path = sys.argv[1] if len(sys.argv) > 1 else f"cdna_kernels/{NAME}.s"
    open(path, "w").write(out)
    stamp_names["opt"] = " ".join(a for a in sys.argv[2:] if not a.startswith(("stamps", "only"))); json.dump(stamp_names, open(path + ".json", "w"))
    n = sum(1 for l in bodyt.split("\n") if l.startswith("    ") and not l.strip().startswith(";"))
    print("wrote", path, "instructions:", n, "barriers:", SEQ0, SEQA, SEQC)

main()
```

```python
import sys, os, math, struct, json
sys.path.insert(0, os.path.dirname(os.path.abspath(__file__)))
from asmlib import *
from layout5 import *

NAME = "interleave_layers__linear_kernel_hedgehog__geglu_ffn__prompt"
OPT = dict(stop=None, stamps=False)
for a in sys.argv[2:]:
    k, _, val = a.partition("=")
    OPT[k] = val if val != "" else True
def oi(k, d): return int(OPT.get(k, d))
def os_(k, d): return str(OPT.get(k, d))
TG = oi("tg", 1)
TGM = 0xbfffbfff
SPEC = oi("spec", 0)
E0 = os_("e0", "Qk,Qcj,S21,QC,c0,non,wld")
SCL = "sc1"
def f2u(x): return "0x%08x" % struct.unpack("<I", struct.pack("<f", x))[0]
LOG2E = 1.4426950408889634
DG = oi("dg", 0)
class G: SC = ""; TAG = "f"; SEQ = None; REC = True

WS, X_, OUT, WQ, WP, WO_, WG, WU, WD = [s(4 + 4 * i, 4) for i in range(9)]
sXC = s(40)
XO = oi("xo", 0)
XS = OUT if XO else WS
sC, sJ, sHF, sCG, sM, sNONCE, sCNT, sPAIR = [s(66 + i) for i in range(8)]
sW = s(3)
sXLD, sSTLD, sFA, sXST, sSTST, sFXST = [s(74 + i) for i in range(6)]
sOST, sFB, sFJ = s(80), s(81), s(82)
sHLD, sHST = s(84), s(85)
sKVST, sKVLD, sFKVST, sFKVLD = [s(88 + i) for i in range(4)]
sKZ, sGZ, sHALF, sH5, sF5, sHS = s(62), s(63), s(60, 2), s(49), s(83), s(41)
sT0, sT1, sT2, sT3 = [s(92 + i) for i in range(4)]
sL2E, sONE, sOUTO, sT6 = s(96), s(97), s(98), s(99)
sSTMP = s(100, 2)
sRING, sKH, sTP, sDUM, sLD = s(44), s(45), s(46), s(47), s(48)
sMASK, sBAD, sOLD, sOST1, sOLD1, sTX = s(56), s(58, 2), s(62), s(63), s(90), s(57)
vL, vL16, vA0, vFL = v(0), v(1), v(2), v(3)
RES = 4
vNON = v(12); vT = v(13); vU = v(14); vV = v(15)
vA1, vP0, vP1 = v(121), v(122), v(123)
aXW = v(126)
XF = 128
cWDb = [s(52 + i) for i in range(4)]; sDM = s(56)
aEW, aER, vEVv, vEVr, aCS3 = v(112), v(113), v(114), v(115), v(120)
aP4, vS4 = v(124), v(125)

class bc:
    def __init__(self, r, neg=False): self.r = int(r[1:]) if isinstance(r, str) else r; self.neg = neg
class ng:
    def __init__(self, r): self.r = r
def pk(st, op, d, *src):
    ops, lo, hi, n = [], [], [], []
    for x in src:
        if isinstance(x, bc): ops.append(v(x.r & ~1, 2)); lo.append(x.r & 1); hi.append(x.r & 1); n.append(int(x.neg))
        elif isinstance(x, ng): ops.append(v(x.r, 2)); lo.append(0); hi.append(1); n.append(1); assert x.r % 2 == 0
        else: ops.append(v(x, 2)); lo.append(0); hi.append(1); n.append(0); assert x % 2 == 0
    assert d % 2 == 0
    f = lambda l: "[" + ",".join(map(str, l)) + "]"
    mods = f"op_sel:{f(lo)} op_sel_hi:{f(hi)}" + (f" neg_lo:{f(n)} neg_hi:{f(n)}" if any(n) else "")
    st.op(f"v_pk_{op}_f32", v(d, 2), *ops, mods=mods)

lab_n = [0]
def newlab(p):
    lab_n[0] += 1
    return f".L{p}_{lab_n[0]}"

def nxt(st):
    st.s_add_u32(sNONCE, sNONCE, 1); st.v_add_u32(vNON, 1, vNON)

def poll(st, addr, soff, off=0, back=0):
    L = newlab("poll"); D = newlab("pdone")
    st.label(L)
    st.buffer_load_dword(vT, addr, WS, soff, mods=f"offen offset:{off} sc1")
    st.wait(vm=0)
    st.v_cmp_ne_u32("vcc", sNONCE, vT)
    st.s_cbranch_vccz(D)
    for _ in range(back): st.s_nop(15)
    st.s_sub_u32(sCNT, sCNT, 1)
    st.s_cbranch_scc0(L)
    st.s_mov_b32(sCNT, 0)
    st.label(D)

PRA, PRB = v(124), v(125)
def pload(st, r, addr, soff, off=0):
    i = Ins("buffer_load_dword", [r, addr, WS, soff], f"offen offset:{off} sc1"); i.dst = set(); st.l.append(i)
def poll2(st, addr, soff, off=0, gap=0, issued=0):
    if gap < 0: return poll(st, addr, soff, off, -1 - gap)
    L = newlab("poll"); D = newlab("pdone")
    if issued < 1: pload(st, PRA, addr, soff, off)
    if issued < 2:
        for _ in range(gap): st.s_nop(15)
        pload(st, PRB, addr, soff, off)
    st.label(L)
    for r in (PRA, PRB):
        st.wait(vm=1)
        st.v_cmp_ne_u32("vcc", sNONCE, r)
        st.s_cbranch_vccz(D)
        pload(st, r, addr, soff, off)
    st.s_sub_u32(sCNT, sCNT, 1)
    st.s_cbranch_scc0(L)
    st.s_mov_b32(sCNT, 0)
    st.wait(vm=1)
    st.label(D)

OOL = Stream()
def soft_check(st, reg, addr, soff, off=0):
    D = newlab("soft"); X = newlab("softx")
    st.v_cmp_ne_u32("vcc", sNONCE, reg)
    st.s_cbranch_vccnz(X)
    st.label(D)
    OOL.label(X); OOL.mark("reset")
    poll(OOL, addr, soff, off)
    OOL.s_branch(D)

class Spec:
    def __init__(self, n, reg, load, use, head=None, redo=None):
        self.n, self.reg, self.load, self.use, self.head, self.redo = n, reg, load, use, head, redo
    def guard(self, st, g, mf):
        L = newlab("sp")
        if g[0] == "chk":
            X = newlab("miss"); k = g[1]
            st.v_cmp_eq_u32("vcc", -1, v(self.reg(k) + 3))
            b = Ins("s_cbranch_vccnz", [X])
            OOL.label(X); OOL.mark("reset")
            self.load(OOL, k); OOL.s_bitset1_b32(sMASK, k); OOL.s_branch(L)
        elif g[0] == "vcc": b = Ins("s_cbranch_vccnz", [L])
        else: st.s_bitcmp1_b32(sMASK, g[1]); b = Ins("s_cbranch_scc1", [L])
        b.src = set(mf.src); st.l.append(b)
        return L
    def fix(self, st):
        X, D, T = newlab("fix"), newlab("fixd"), newlab("fixt")
        if self.redo: st.s_or_b32(sTX, s(58), s(59)); st.s_or_b32(sTX, sTX, sMASK)
        else: st.s_cmp_lg_u32(sMASK, 0)
        st.s_cbranch_scc1(X); st.label(D)
        o = OOL
        o.label(X); o.mark("reset")
        if self.head: self.head(o)
        o.label(T); o.mark("reset")
        o.s_sub_u32(sCNT, sCNT, 1); o.s_cselect_b32(sCNT, 0, sCNT); o.s_cbranch_scc1(D)
        o.wait(vm=0, lgkm=0)
        tail = Stream()
        for k0 in range(0, self.n, 8):
            S = newlab("fxs")
            o.s_and_b32(sTX, sMASK, 0xff << k0); o.s_cbranch_scc0(S)
            for k in range(k0, k0 + 8):
                F, R, A = newlab("fxf"), newlab("fxr"), newlab("fxa")
                o.s_bitcmp1_b32(sMASK, k); o.s_cbranch_scc1(F); o.label(R)
                tail.label(F); tail.mark("reset")
                tail.v_cmp_eq_u32("vcc", -1, v(self.reg(k) + 3)); tail.s_cbranch_vccnz(A)
                self.use(tail, k); tail.s_bitset0_b32(sMASK, k); tail.s_branch(R)
                tail.label(A); tail.mark("reset")
                self.load(tail, k); tail.s_branch(R)
            o.label(S)
        if self.redo:
            S = newlab("fxs")
            o.s_or_b32(sTX, s(58), s(59)); o.s_cbranch_scc0(S)
            o.mark("reset"); self.redo(o)
            o.label(S); o.mark("reset")
            o.s_nop(1); o.s_or_b32(sTX, s(58), s(59)); o.s_or_b32(sTX, sTX, sMASK)
        else: o.s_cmp_lg_u32(sMASK, 0)
        o.s_cbranch_scc1(T)
        o.wait(lgkm=0); o.s_nop(15); o.s_branch(D)
        o.extend(tail)
    def gate(self, st, base, off, again, n):
        X, D = newlab("gate"), newlab("gated")
        st.v_cmp_eq_u32("vcc", -1, vT); st.s_bcnt1_i32_b64(sTX, "vcc"); st.s_cmp_gt_u32(sTX, 4 * n); st.s_cbranch_scc1(X); st.label(D)
        o = OOL; E = newlab("gatee")
        o.label(X); o.mark("reset")
        o.buffer_load_dword(vT, vU, WS, base, mods=f"offen offset:{off} sc1")
        o.s_sub_u32(sCNT, sCNT, 1); o.s_cselect_b32(sCNT, 0, sCNT); o.s_cbranch_scc1(E)
        o.wait(vm=0)
        o.v_cmp_eq_u32("vcc", -1, vT); o.s_bcnt1_i32_b64(sTX, "vcc"); o.s_cmp_gt_u32(sTX, 4 * oi("gn2", n)); o.s_cbranch_scc1(X)
        o.label(E); o.mark("reset"); o.wait(vm=0)
        for f in again: f(o)
        o.s_branch(D)
    def probe(self, st, base, off):
        st.v_lshlrev_b32(vU, 9, vFL); st.buffer_load_dword(vT, vU, WS, base, mods=f"offen offset:{off} sc1")

stamp_names = {"c": [], "l": []}
def stamp(st, name, real=False, who="c", pair=None):
    if OPT.get("cap") and who == "c" and name == OPT["cap"].split("@")[0]:
        (st.s_memrealtime if OPT.get("capr") else st.s_memtime)(sSTMP); st.wait(lgkm=0)
        st.s_cmp_eq_u32(sPAIR, int(OPT["cap"].split("@")[1])); st.s_cselect_b32(s(43), s(100), s(43))
    if not OPT["stamps"]: return
    only = OPT.get("only")
    if only and who == "l" and not OPT.get("lst"): return
    if only and who == "c" and not isinstance(name, int) and name not in ("start", "end") and name not in only.split(","): return
    if isinstance(name, int): idx = name
    else:
        if name not in stamp_names[who]: stamp_names[who].append(name)
        idx = stamp_names[who].index(name)
    r = v(127) if who == "c" else v(63)
    if name == 62: st.v_mov_b32(r, s(42))
    elif name == "start" and who == "c": st.v_mov_b32(r, s(86))
    elif name == "karg": st.wait(lgkm=0); st.v_mov_b32(r, s(0))
    else:
        if real or OPT.get("rts"): st.s_memrealtime(sSTMP)
        else: st.s_memtime(sSTMP)
        st.wait(lgkm=0)
        st.v_mov_b32(r, s(100))
    if pair is None:
        st.s_lshl_b32(s(101), sPAIR, 8)
        st.s_add_u32(s(101), s(101), s(65))
    else:
        st.s_add_u32(s(101), s(65), 256 * pair)
    st.buffer_store_dword(r, "off", WS, s(101), mods=f"offset:{idx*4}")

def vstamp(st, name):
    if not OPT["stamps"] or name not in OPT.get("only", "").split(","): return
    if name not in stamp_names["c"]: stamp_names["c"].append(name)
    st.s_bcnt1_i32_b32(s(100), sMASK); st.v_mov_b32(v(127), s(100))
    st.s_lshl_b32(s(101), sPAIR, 8); st.s_add_u32(s(101), s(101), s(65))
    st.buffer_store_dword(v(127), "off", WS, s(101), mods=f"offset:{stamp_names['c'].index(name)*4}")

DEF = {"c": [], "l": []}
def dcap(st, name, who="c", reg=None):
    if not (OPT["stamps"] and OPT.get("dcap")): return
    if (reg is None) != (OPT["dcap"] == "1"): return
    r = v(reg) if reg else v(16 + len(DEF[who])) if who == "c" else v(30 + len(DEF[who]))
    st.s_memtime(sSTMP); st.wait(lgkm=0); st.v_mov_b32(r, s(100)); DEF[who].append((name, r))
def dflush(st, who="c"):
    if DEF[who]: st.s_lshl_b32(s(101), sPAIR, 8); st.s_add_u32(s(101), s(101), s(65))
    for name, r in DEF[who]:
        if name not in stamp_names[who]: stamp_names[who].append(name)
        st.buffer_store_dword(r, "off", WS, s(101), mods=f"offset:{stamp_names[who].index(name)*4}")
    DEF[who].clear()

def ring_addr(st, mode):
    if mode in ("trq", "trn"):
        st.v_add_u32(vA0, sRING, vP0 if mode == "trq" else vP1); st.v_xor_b32(vA1, 64, vA0)
    elif mode == "b128":
        st.v_add_u32(vA0, sRING, vL16)
def ring_next(st, mode=None):
    st.s_add_u32(sRING, sRING, 0x8000); st.s_and_b32(sRING, sRING, 0x1ffff)
    ring_addr(st, mode)
def barrier(st, name, drain=False):
    if drain: st.wait(lgkm=0)
    st.s_barrier()
    if G.REC: G.SEQ.append(name)

def signal(st, val=None, off=0):
    t0, t1 = (v(124), v(125)) if val is None else (vT, vU)
    st.s_lshl_b32(sT3, sW, 2); st.s_add_u32(sT3, sT3, L_SIG + off); st.v_mov_b32(t0, sT3)
    if val is None: st.v_add_u32(t1, 1, sPAIR)
    else: st.v_mov_b32(t1, val)
    st.ds_write_b32(t0, t1)
def sigwait(st, mask=28, off=0, regs=(124, 125, 126), cmp="ne", extra=None):
    L = newlab("sig"); D = newlab("sigd")
    a, e, r = [v(x) for x in regs]
    st.v_and_b32(a, mask, vFL); st.v_add_u32(a, L_SIG + off, a)
    if extra:
        st.ds_read_b32(r, a)
        extra(st)
        st.wait(lgkm=0)
        st.op(f"v_cmp_{cmp}_u32", "vcc", e, r)
        st.s_cbranch_vccz(D)
    st.label(L)
    st.ds_read_b32(r, a)
    st.wait(lgkm=0)
    st.op(f"v_cmp_{cmp}_u32", "vcc", e, r)
    st.s_cbranch_vccz(D)
    st.s_sub_u32(sCNT, sCNT, 1)
    st.s_cbranch_scc0(L)
    st.s_mov_b32(sCNT, 0)
    st.label(D)

def lane_tr(st, d0, d1, kind, stride=128, tmp=vT, hstride=None):
    st.v_bfe_u32(d0, vL, 2, 2)
    if stride == 128: st.v_lshlrev_b32(d0, 7, d0)
    else: st.v_mul_u32_u24(d0, stride, d0)
    st.v_lshrrev_b32(tmp, 5, vL)
    st.v_lshl_add_u32(d0, tmp, int(math.log2(hstride or 8 * stride)), d0)
    sh = dict(qkv=(5, 4), nat=(4, 5))[kind]
    st.v_and_b32(tmp, 1, vL); st.v_lshl_add_u32(d0, tmp, sh[0], d0)
    st.v_bfe_u32(tmp, vL, 1, 1); st.v_lshl_add_u32(d0, tmp, 3, d0)
    st.v_bfe_u32(tmp, vL, 4, 1); st.v_lshl_add_u32(d0, tmp, sh[1], d0)
    if stride == 128:
        st.v_bfe_u32(tmp, vL, 3, 1); st.v_lshl_add_u32(d0, tmp, 6, d0)
        if d1: st.v_xor_b32(d1, 64, d0)

gemm_n = [0]
def gemm(st, items, mode, af, nslots, depth, ready, bars=None, fill=None, budget=16, hooks=None, loads=None, pre=10, every=2, pairw=0, spec=None):
    n = len(items); loads = list(loads or []); ready = set(ready); bars = bars or {}
    nr = 0; gemm_n[0] += 1; tg = f"g{gemm_n[0]}_"
    def pump(upto):
        nonlocal nr
        while nr < n and nr <= upto:
            it = items[nr]; r = af + 4 * (nr % nslots)
            assert it["chunk"] in ready, (nr, it["chunk"])
            if nr > 0 and it["chunk"] != items[nr - 1]["chunk"]: ring_next(st, mode)
            if mode != "b128":
                a = vA1 if it["t"] else vA0
                st.ds_read_b64_tr_b16(v(r, 2), a, mods=f"offset:{it['off']}")
                st.ds_read_b64_tr_b16(v(r + 2, 2), a, mods=f"offset:{it['off']+512}", tset=tg + str(nr))
            else:
                st.ds_read_b128(v(r, 4), vA0, mods=f"offset:{it['off']}", tset=tg + str(nr))
            nr += 1
    for _ in range(min(pre, len(loads))): loads.pop(0)(st)
    pump(depth - 1)
    for i in range(n):
        it = items[i]
        if hooks and i in hooks: hooks[i](st)
        acc = v(it["acc"], 16)
        st.v_mfma_f32_32x32x16_bf16(acc, v(af + 4 * (i % nslots), 4), v(it["b"], 4), "0" if it["first"] else acc,
                                    tneed=tg + str(i + 1) if pairw and i % 2 == 0 and i + 1 < nr else None)
        if spec and it.get("guard"):
            mf = st.l.pop(); L = spec.guard(st, it["guard"], mf); st.l.append(mf); st.label(L)
        if i in bars:
            barrier(st, bars[i][0]); ready |= set(bars[i][1])
        pump(i + depth)
        if loads and i % every == every - 1: loads.pop(0)(st)
        if fill is not None: fill.take(st, budget(i) if callable(budget) else budget)
    assert not loads

def entry(st):
    st.s_cmp_ge_u32(s(2), 256)
    st.s_cbranch_scc1(".Lend")
    if OPT["stamps"]: st.s_memrealtime(s(42, 2)); st.s_memtime(s(86, 2))
    if OPT.get("dbg"): st.s_memrealtime(s(42, 2)); st.s_memtime(s(86, 2))
    st.s_load_dwordx16(s(44, 16), s(0, 2), 0)
    st.s_load_dwordx4(s(60, 4), s(0, 2), 64)
    st.s_load_dwordx2(s(64, 2), s(0, 2), 80)
    if oi("pc0", 0):
        st.s_getpc_b64(s(100, 2))
        L = newlab("pc")
        st.label(L)
        st.raw(f"    s_sub_u32 s100, s100, {L}-{NAME}_kernel")
        st.raw("    s_subb_u32 s101, s101, 0")
        m = oi("pc0", 0)
        if m == 1:
            st.v_lshlrev_b32(vU, 7, v(0))
        elif m == 2:
            st.v_and_b32(vU, 15, v(0)); st.v_lshrrev_b32(vT, 6, v(0)); st.v_and_b32(vV, 3, vT); st.v_lshl_add_u32(vU, vV, 4, vU); st.v_lshlrev_b32(vU, 7, vU)
            st.v_lshrrev_b32(vT, 2, vT); st.v_mul_u32_u24(vT, f"(.Lld0-{NAME}_kernel)&0xffff80", vT); st.v_add_u32(vU, vU, vT)
        elif m == 3:
            st.v_and_b32(vU, 15, v(0)); st.v_lshrrev_b32(vT, 6, v(0)); st.v_lshl_add_u32(vU, vT, 4, vU); st.v_lshlrev_b32(vU, 9, vU)
            st.s_lshr_b32(sT0, s(2), 3); st.s_and_b32(sT0, sT0, 3); st.s_lshl_b32(sT0, sT0, 7); st.v_add_u32(vU, sT0, vU)
        st.v_min_u32(vU, f".Lslow-{NAME}_kernel", vU)
        i = Ins("global_load_dword", [v(11), vU, s(100, 2)]); i.dst = set(); st.l.append(i)
    st.v_lshrrev_b32(vT, 6, v(0))
    st.v_and_b32(vL, 63, v(0))
    st.v_readfirstlane_b32(sW, vT)
    st.v_lshlrev_b32(vL16, 4, vL)
    st.v_and_b32(vFL, 15, vL)
    st.v_lshlrev_b32(vFL, 2, vFL)
    st.s_and_b32(sT0, s(2), 7)
    st.s_lshr_b32(sT1, s(2), 3)
    st.s_lshr_b32(sC, sT1, 4)
    st.s_lshl_b32(sT0, sT0, 1)
    st.s_add_u32(sC, sC, sT0)
    st.s_and_b32(sJ, sT1, 15)
    st.s_lshr_b32(sHF, sJ, 3)
    st.s_and_b32(sCG, sJ, 7)
    st.s_and_b32(sM, sW, 3)
    st.s_mov_b32(sCNT, 1 << 18)
    st.s_mov_b32(sPAIR, 0)
    st.s_cmp_lt_u32(sJ, 6)
    st.s_cselect_b32(sT6, 1, 0)
    st.s_getreg_b32(sXC, "hwreg(HW_REG_XCC_ID, 0, 4)")
    for d in (WS, X_, OUT, WQ, WP, WO_, WG, WU, WD):
        st.s_mov_b32(s(int(d[2:d.index(":")]) + 3), 0x20000)
    for d, size in ((X_, 2048 * 1024), (WQ, 512 * 3072), (WS, WS_SIZE - (oi("wso", 0) << 20)), (WP, 32 * 512), (WO_, 512 * 1024), (WG, 512 * 2752),
                    (WU, 512 * 2752), (WD, 1376 * 1024), (OUT, 2048 * 1024)):
        st.s_mov_b32(s(int(d[2:d.index(":")]) + 2), size)
    if oi("cfirst", 1) and oi("es", 0):
        if oi("w7", 1): st.s_cmp_eq_u32(sW, 7); st.s_cbranch_scc1(".Lld7")
        st.s_cmp_lt_u32(sW, 4); st.s_cbranch_scc1(".Lcmp0")
        early_round(st); st.s_branch(".Lld0")
        st.label(".Lcmp0"); st.mark("reset")
        compute(st)
        if oi("w7", 1):
            st.label(".Lld7"); st.mark("reset")
            early_round(st)
        st.label(".Lld0"); st.mark("reset")
    elif oi("cfirst", 1):
        st.s_cmp_ge_u32(sW, 4); st.s_cbranch_scc1(".Lld0")
        compute(st)
        st.label(".Lld0"); st.mark("reset")
    else:
        st.s_cmp_lt_u32(sW, 4); st.s_cbranch_scc1(".Lcomp")

def early_round(st, wait=True):
    r = 90 if wait else 54
    a, b = s(r), s(r + 1)
    L = oi("esl", 0)
    st.s_and_b32(a, sC, 1); st.s_lshl_b32(a, a, 4); st.s_add_u32(a, a, sJ); st.s_lshl_b32(a, a, 2 if L else 3); st.s_add_u32(a, a, sM if L else sW)
    st.s_lshr_b32(b, a, 4); st.s_mul_i32(b, b, 3072); st.s_and_b32(a, a, 15); st.s_lshl_b32(a, a, 7); st.s_add_u32(a, a, b)
    if wait: st.wait(lgkm=0)
    st.s_add_u32(a, s(46), a); st.s_addc_u32(b, s(47), 0)
    for i in range(oi("es", 0)):
        x = Ins("s_load_dwordx2", [s(52, 2), s(r, 2), hex(i * (8 if L else 16) * 3072 + 1024 + 60)]); x.dst = set(); st.l.append(x)

def rot(st, d, t):
    if not oi("rot", 0): st.s_mov_b32(d, 0); return
    st.s_and_b32(d, sJ, 1); st.s_and_b32(t, sC, 1); st.s_lshl_b32(t, t, 1); st.s_add_u32(d, d, t); st.s_lshl_b32(d, d, 1)
    st.s_lshr_b32(t, sJ, 1); st.s_add_u32(d, d, t)

def srds(st, lst):
    src = {X_: 44, WQ: 46, WP: 48, WO_: 50, WG: 54, WU: 56, WD: 58, OUT: 60, WS: 64}
    for d in lst:
        b = int(d[2:d.index(":")])
        if d == WS and oi("wso", 0):
            st.s_add_u32(s(b), s(src[d]), oi("wso", 0) << 20); st.s_addc_u32(s(b + 1), s(src[d] + 1), 0); st.s_and_b32(s(b + 1), s(b + 1), 0xffff)
            continue
        st.s_mov_b32(s(b), s(src[d])); st.s_and_b32(s(b + 1), s(src[d] + 1), 0xffff)

def stamp_base(st):
    if OPT["stamps"]:
        st.s_lshl_b32(s(65), s(2), 3); st.s_add_u32(s(65), s(65), sW); st.s_lshl_b32(s(65), s(65), 9)
        st.s_add_u32(s(65), s(65), STAMP)

aK, aV, aQ, AF1, WPH, STT = 16, 32, 48, 64, 88, 96
NM, RS, VE, LR = v(112), v(113), v(114), v(115)
aCS, aA, aB, aR1, aR2 = v(116), v(117), v(118), v(119), v(120)

def kv_items():
    return [dict(chunk=k // 16, off=(k % 16) * 2048, t=t, acc=acc, b=XF + 4 * k, first=k == 0)
            for k in range(32) for t, acc in ((0, aK), (1, aV))]

CK, CV = aQ, STT
def k_addr(st):
    st.v_lshrrev_b32(vU, 5, vL); st.v_and_b32(vT, 1, vL); st.v_cmp_eq_u32("vcc", vT, vU)
    st.v_lshlrev_b32(aCS, 6, vU); st.v_add_u32(aCS, L_CS, aCS)
    st.v_lshlrev_b32(aR1, 7, vU); st.v_and_b32(vT, 12, vL); st.v_lshl_add_u32(aR1, vT, 3, aR1)
    st.v_and_b32(vT, 16, vL); st.v_add_u32(aR1, aR1, vT); st.v_and_b32(vT, 2, vL); st.v_lshl_add_u32(aR1, vT, 2, aR1)
    st.v_mov_b32(vT, 544); st.v_cndmask_b32(aR1, vT, aR1, "vcc"); st.v_add_u32(aR1, L_KVB, aR1)
    st.v_and_b32(vT, 31, vL); st.s_lshl_b32(sT0, sM, 5); st.v_add_u32(vT, sT0, vT)
    st.v_mul_u32_u24(aA, 144, vT); st.v_lshl_add_u32(aA, vU, 6, aA); st.v_add_u32(aA, L_PH, aA)
    st.v_mul_u32_u24(aB, 80, vT); st.v_lshl_add_u32(aB, vU, 5, aB); st.v_add_u32(aB, L_VB, aB)
def k_reads(st, which="wkv"):
    if "k" in which:
        for i in range(4): st.ds_read_b128(v(CK + 4 * i, 4), aCS, mods=f"offset:{16*i}")
    if "w" in which:
        for q in range(4): st.ds_read_b64_tr_b16(v(WPH + 2 * q, 2), aR1, mods=f"offset:{576*q}")
    if "v" in which:
        for i in range(4): st.ds_read_b128(v(CV + 4 * i, 4), aCS, mods=f"offset:{128+16*i}")

def fin_stats(st, S, Q, t0, t1, negmean, rstd, vare):
    if t0: st.v_mov_b32(t0, S)
    st.v_mov_b32(t1, Q)
    if t0: st.v_permlane32_swap_b32(S, t0)
    st.v_permlane32_swap_b32(Q, t1)
    if t0: st.v_add_f32(S, S, t0)
    st.v_add_f32(Q, Q, t1)
    st.v_mul_f32(negmean, f2u(-1.0 / 512), S)
    st.v_mul_f32(Q, f2u(1.0 / 512), Q)
    st.v_fma_f32(vare, "-" + negmean, negmean, Q)
    st.v_max_f32(vare, 0, vare)
    st.v_add_f32(vare, f2u(1e-5), vare)
    st.v_rsq_f32(rstd, vare)

def stats(st, stt, negmean, rstd, vare):
    S, Q = v(stt), v(stt + 1)
    for i in range(4): st.v_add_f32(v(stt + i), v(stt + i), v(stt + 4 + i))
    for i in range(4): st.v_add_f32(v(stt + 8 + i), v(stt + 8 + i), v(stt + 12 + i))
    for i in range(4): st.v_add_f32(v(stt + i), v(stt + i), v(stt + 8 + i))
    st.v_add_f32(S, S, v(stt + 2)); st.v_add_f32(Q, Q, v(stt + 3))
    fin_stats(st, S, Q, v(stt + 2), v(stt + 3), negmean, rstd, vare)

def p1a0(st):
    g0, g1, aW = v(118), v(119), v(120)
    aRd = [v(88 + i) for i in range(4)]
    QD, SA, SELA = 96, 112, 92
    XD = oi("xd", 0)
    st.v_lshrrev_b32(vT, 3, vL); st.v_and_b32(vV, 7, vL)
    if XD: st.v_lshrrev_b32(vU, 4, vL); st.v_xor_b32(vV, vV, vU)
    st.v_lshlrev_b32(g0, 10, vT); st.v_lshl_add_u32(g0, vV, 4, g0)
    st.s_lshl_b32(sT0, sC, 2); st.s_add_u32(sT0, sT0, sM); st.s_lshl_b32(sT0, sT0, 15)
    GA = [v(48 + g) for g in range(4)]
    PRE = oi("pre", 0); assert not (PRE and (XD or oi("rot", 0)))
    st.v_lshlrev_b32(g1, 5, vFL); st.s_lshl_b32(sT1, sJ, 11); st.s_add_u32(sT1, sT1, sT0)
    if PRE: st.v_add_u32(v(53), sT1, g1)
    for g in range(4):
        st.v_add_u32(GA[g], sT0, g0)
        if XD and g & 1: st.v_xor_b32(GA[g], 64, GA[g])
        if g < 3: st.s_add_u32(sT0, sT0, 8192)
    vKc, sA0, sKc, sK8 = v(52), s(41), s(83), s(98)
    AREA = [0, 16384, 32768, 49152, 65536, 32768, 49152, 65536]
    if XD:
        st.v_bfe_u32(vU, vL, 4, 1); st.v_lshlrev_b32(vU, 2, vU); st.v_and_b32(vV, 7, vL); st.v_xor_b32(vU, vU, vV)
        st.v_mul_u32_u24(vKc, 3072, vT); st.v_and_b32(vV, 3, vU); st.v_lshl_add_u32(vKc, vV, 4, vKc)
        st.v_lshrrev_b32(vV, 2, vU); st.v_lshl_add_u32(vKc, vV, 10, vKc); st.v_add_u32(vKc, 1024, vKc)
        st.s_lshl_b32(sA0, sM, 12); st.s_add_u32(sA0, sA0, 65536); st.s_lshl_b32(sK8, sM, 13)
        st.s_mul_i32(sKc, sM, 64 * 3072); st.s_lshl_b32(sT0, sJ, 6); st.s_add_u32(sKc, sKc, sT0)
    if oi("tk0", 0):
        st.v_lshrrev_b32(vT, 5, vL); st.v_lshlrev_b32(vT, 8, vT); st.v_bfe_u32(vU, vL, 4, 1); st.v_add_u32(vT, vT, vU)
        st.v_mul_u32_u24(v(124), 3072, vT); st.v_lshl_add_u32(v(124), vFL, 5, v(124))
        st.s_and_b32(sT2, sC, 1); st.s_lshl_b32(sT2, sT2, 4); st.s_add_u32(sT2, sT2, sJ); st.s_lshl_b32(sT2, sT2, 2); st.s_add_u32(sT2, sT2, sM)
        st.s_mul_i32(sT2, sT2, 2 * 3072); st.s_add_u32(sT2, sT2, 1024)
    sR, sQO = s(41), s(83)
    if not XD and not PRE: rot(st, sR, sT0)
    def c0(st):
        srds(st, [WQ])
        for i in range(8):
            st.s_add_u32("m0", sK8, 1024 * i); st.s_add_u32(sT0, sKc, 8 * i * 3072)
            st.buffer_load_dwordx4(vKc, WQ, sT0, mods="offen lds", tset="c0c" if i == 7 else None)
    def xl(p, st):
        if not XD and not PRE: st.s_add_u32(sQO, sR, p); st.s_and_b32(sQO, sQO, 7); st.s_lshl_b32(sQO, sQO, 7)
        if p == (-1 if XD else 0):
            st.wait(lgkm=0)
            srds(st, [X_])
            if OPT["stamps"]: st.s_memtime(s(0, 2))
            dcap(st, "dk")
            if OPT.get("lat"):
                srds(st, [WQ, WO_, WG, WD, WS, OUT])
                st.v_lshlrev_b32(v(40), 2, vL)
                for nm_, srd, off in (("x0", X_, 0), ("x1", X_, 4096), ("x2", X_, 65536), ("x3", X_, 1 << 20), ("wo", WO_, 0), ("wo2", WO_, 262144), ("wg", WG, 0), ("wd", WD, 0),
                                      ("ws", WS, XB), ("ws2", WS, XB + 4096), ("ws3", WS, HB + 2 * MB), ("out", OUT, 0)):
                    st.s_mov_b32(sT2, off); st.buffer_load_dword(v(41), v(40), srd, sT2, mods="offen"); st.wait(vm=0); dcap(st, nm_)
            if oi("tx0", 1):
                i = Ins("buffer_load_dword", [v(126), v(53), X_, "0"] if PRE else [v(126), g1, X_, sT1], "offen"); i.dst = set(); st.l.append(i)
            if oi("tk0", 0):
                srds(st, [WQ])
                i = Ins("buffer_load_dword", [v(125), v(124), WQ, sT2], "offen"); i.dst = set(); st.l.append(i)
        if p < 0: return
        for g in range(4):
            if XD:
                st.s_add_u32("m0", sA0 if AREA[p] < 65536 else sKc, AREA[p] + 1024 * g - 128 * p)
                st.buffer_load_dwordx4(GA[g], X_, 0, mods=f"offen offset:{128*p} lds", tset=f"x{p}" if g == 3 else None,
                                       tneed=f"r{p-3}" if p >= 5 and g == 0 else None)
            elif PRE: st.buffer_load_dwordx4(v(XF + 16 * p + 4 * g, 4), GA[g], X_, 0, mods=f"offen offset:{128*p}")
            else: st.buffer_load_dwordx4(v(XF + 16 * p + 4 * g, 4), GA[g], X_, sQO, mods="offen")
        if p == 7 and oi("nonl", 0): st.buffer_load_dword(vNON, "off", WS, 0, mods=f"offset:{EPOCH} sc1")
    def head(st):
        n0 = oi("xn0", 2); n1 = oi("xn1", 4)
        if XD: n0 = oi("xn0", 1); xl(-1, st)
        for p in range(n0):
            xl(p, st)
            if oi("es", 0) and not oi("esl", 0) and p == min(n0, oi("esp", 1)) - 1: early_round(st, wait=False)
        if XD: c0(st)
        srds(st, [WS, OUT])
        stamp_base(st)
        if XD: stamp(st, 62, True); stamp(st, "start"); stamp(st, "karg"); stamp(st, "xissued")
        if not oi("nonl", 0): st.buffer_load_dword(vNON, "off", WS, 0, mods=f"offset:{EPOCH} sc1")
        return n0, n1
    def block(st, post, sKH, sTP, sKZ, sGZ):
        st.s_and_b32(sKH, sM, 1); st.s_lshr_b32(sTP, sM, 1); post.s_mov_b32(sRING, 0)
        st.v_and_b32(aA, 31, vL); st.v_lshlrev_b32(aA, 10, aA); st.v_lshrrev_b32(vT, 5, vL); st.v_lshl_add_u32(aA, vT, 4, aA)
        st.s_lshl_b32(sOUTO, sC, 17); st.s_lshl_b32(sT1, sHF, 16); st.s_add_u32(sOUTO, sOUTO, sT1)
        st.s_lshl_b32(sT1, sTP, 15); st.s_add_u32(sOUTO, sOUTO, sT1); st.s_lshl_b32(sT1, sCG, 7); st.s_add_u32(sOUTO, sOUTO, sT1)
        st.s_lshl_b32(sT1, sKH, 6); st.s_add_u32(sOUTO, sOUTO, sT1)
        post.s_mov_b32(sL2E, f2u(LOG2E)); post.s_mov_b32(sONE, 0x3f803f80)
        st.s_lshl_b32(sT0, sC, 2); st.s_add_u32(sT1, sT0, sM)
        st.s_lshl_b32(sXLD, sT1, 15)
        if not XO: st.s_add_u32(sXLD, sXLD, XB)
        st.s_lshl_b32(sSTLD, sT1, 12); st.s_add_u32(sSTLD, sSTLD, ST)
        st.s_lshl_b32(sFA, sT1, 10); st.s_add_u32(sFA, sFA, FL)
        st.s_lshl_b32(sT2, sJ, 2); st.s_add_u32(sFJ, sFA, sT2)
        st.s_mul_i32(sHST, sT1, HB_TB); st.s_add_u32(sHST, sHST, HB)
        st.s_lshl_b32(sT2, sJ, 11); st.s_add_u32(sOST, sHST, sT2)
        post.s_mov_b32(s(60), 0); post.s_mov_b32(s(61), -1)
        st.s_lshl_b32(sT2, sJ, 10); st.s_add_u32(sHST, sHST, sT2)
        post.s_lshl_b32(sDUM, sFA, 1); post.s_add_u32(sDUM, sDUM, (DUMMY - 2 * FL) & 0xffffffff)
        st.s_lshl_b32(sT1, sHF, 1); st.s_add_u32(sT1, sT1, sT0); st.s_add_u32(sT1, sT1, sTP)
        st.s_lshl_b32(sT3, sCG, 1); st.s_add_u32(sT3, sT3, sKH)
        st.s_lshl_b32(sXST, sT1, 15); st.s_lshl_b32(sT2, sT3, 11); st.s_add_u32(sXST, sXST, sT2)
        if not XO: st.s_add_u32(sXST, sXST, XB)
        st.s_lshl_b32(sSTST, sT1, 12); st.s_lshl_b32(sT2, sCG, 9); st.s_add_u32(sSTST, sSTST, sT2)
        st.s_lshl_b32(sT2, sKH, 3); st.s_add_u32(sSTST, sSTST, sT2); st.s_add_u32(sSTST, sSTST, ST)
        st.s_lshl_b32(sFB, sT1, 10); st.s_add_u32(sFB, sFB, FL)
        st.s_lshl_b32(sT2, sT3, 2); st.s_add_u32(sFXST, sFB, sT2)
        st.s_lshl_b32(sT2, sKH, 10)
        st.s_mul_i32(sHLD, sT1, HB_TB); st.s_add_u32(sHLD, sHLD, sT2); st.s_add_u32(sHLD, sHLD, HB)
        if SPEC & 1:
            post.s_mov_b32(sOLD, sHLD)
            post.s_lshl_b32(sT0, sJ, 11); post.s_add_u32(sOST1, sXLD, sT0); post.s_add_u32(sOST1, sOST1, OB1 - XB)
            post.s_and_b32(sOLD1, sXST, ~32767 & 0xffffffff); post.s_lshl_b32(sT0, sKH, 10); post.s_add_u32(sOLD1, sOLD1, sT0); post.s_add_u32(sOLD1, sOLD1, OB1 - XB)
        if TG:
            st.s_lshl_b32(sT1, sJ, 2); st.s_add_u32(sT1, sT1, sM); st.s_mul_i32(sKVLD, sT1, 16 * TG_W); st.s_add_u32(sKVLD, sKVLD, KVP)
            st.s_mul_i32(sKVST, sC, TG_W); st.s_add_u32(sKVST, sKVST, sKVLD)
        else:
            st.s_mul_i32(sKVLD, sJ, KV_J); st.s_add_u32(sKVLD, sKVLD, KVP)
            st.s_mul_i32(sKVST, sC, KV_REC); st.s_add_u32(sKVST, sKVST, sKVLD)
            st.s_lshl_b32(sT1, sKH, 7); st.s_lshl_b32(sT2, sTP, 5); st.s_add_u32(sT1, sT1, sT2); st.s_add_u32(sKZ, sKVST, sT1); st.s_add_u32(sKZ, sKZ, 2048)
            st.s_lshl_b32(sT1, sKH, 10); st.s_lshl_b32(sT2, sTP, 6); st.s_add_u32(sT1, sT1, sT2); st.s_add_u32(sKVST, sKVST, sT1)
            st.s_lshl_b32(sT1, sM, 6); st.s_add_u32(sGZ, sKVLD, sT1); st.s_add_u32(sGZ, sGZ, 2048)
            st.s_lshl_b32(sT1, sM, 9); st.s_add_u32(sKVLD, sKVLD, sT1)
            st.s_lshl_b32(sFKVLD, sJ, 11); st.s_add_u32(sFKVLD, sFKVLD, FKV)
            st.s_lshl_b32(sT1, sC, oi("fks", 7)); st.s_lshl_b32(sT2, sM, 2); st.s_add_u32(sFKVST, sT1, sT2); st.s_add_u32(sFKVST, sFKVST, sFKVLD)
        for i in range(4): st.v_mov_b32(v(96 + i), 0)
        st.v_and_b32(vT, 3, vL); st.v_mul_u32_u24(vT, 576, vT); st.v_add_u32(vT, L_KVB + 544, vT)
        st.ds_write_b128(vT, v(96, 4))
        st.v_and_b32(vT, 112, vL16); st.v_add_u32(vT, L_SIG, vT)
        st.ds_write_b128(vT, v(96, 4))
        st.v_bfe_u32(vT, vL, 4, 1); st.v_and_b32(vU, 1, vL); st.v_cmp_eq_u32("vcc", vT, vU)
        st.v_mov_b32(vV, 0x3f803f80)
        for i in range(4): st.v_cndmask_b32(v(SELA + i), 0, vV, "vcc")
        if XD: sT0_ = sA0
        else:
            sT0_ = sT0
            st.s_lshl_b32(sT0, sM, 12); st.s_add_u32(sT0, sT0, L_PH)
            st.v_and_b32(vT, 48, vL); st.v_xor_b32(vT, vT, vL16); st.v_add_u32(aW, sT0, vT); st.v_xor_b32(g1, 64, aW)
        st.v_and_b32(vT, 31, vL); st.v_lshrrev_b32(vU, 5, vL); st.v_bfe_u32(vV, vL, 1, 3); st.v_xor_b32(vU, vU, vV)
        st.v_lshlrev_b32(vT, 7, vT); st.v_lshl_add_u32(vT, vU, 4, vT); st.v_add_u32(aRd[0], sT0_, vT)
        for i in range(1, 4): st.v_xor_b32(aRd[i], 32 * i, aRd[0])
        if XD:
            st.s_lshl_b32(sT0, sM, 9); st.s_add_u32(sKc, sA0, sT0); st.s_add_u32(sT0, sT0, 65536)
            for i in range(4): st.v_add_u32(aR4[i], sT0, aRd[i])
        lane_tr(st, vP0, None, "qkv"); ring_addr(post, "trq")
    aR4 = [v(56 + i) for i in range(4)]
    if PRE:
        B = Stream(); post = Stream()
        post.s_mov_b32(sKH, s(96)); post.s_mov_b32(sTP, s(97)); post.s_mov_b32(sKZ, s(41)); post.s_mov_b32(sGZ, s(83))
        block(B, post, s(96), s(97), s(41), s(83))
        print("block", len(B.l), file=sys.stderr)
        o = oi("prer", 0)
        if o:
            k = next(i for i, x in enumerate(B.l) if x.name == "v_mov_b32" and x.ops[0] == "v96")
            B.l = B.l[k:] + B.l[:k]; print("vector part", len(B.l) - k, file=sys.stderr)
        st.extend(B.l[:PRE]); n0, n1 = head(st); LATE = Stream(); LATE.extend(B.l[PRE:]); LATE.extend(post)
        if not oi("late", 0): st.extend(LATE); LATE = Stream()
    else:
        n0, n1 = head(st); post = Stream(); LATE = Stream()
        block(st, post, sKH, sTP, sKZ, sGZ); st.extend(post)
    def rnd(q, st):
        R = XF + 16 * q
        if XD:
            for i in range(4):
                st.ds_read_b128(v(R + 4 * i, 4), (aRd if AREA[q] < 65536 else aR4)[i], mods=f"offset:{AREA[q] % 65536}",
                                tneed=f"x{q}" if i == 0 else None, tset=f"r{q}" if i == 3 else None)
            return
        for g in range(4): st.ds_write_b128(g1 if g & 1 else aW, v(R + 4 * g, 4), mods=f"offset:{1024*g}")
        for i in range(4): st.ds_read_b128(v(R + 4 * i, 4), aRd[i])
    def smf(k, st):
        f = v(XF + 4 * k, 4)
        st.v_mfma_f32_32x32x16_bf16(v(QD, 16), f, f, "0" if k == 0 else v(QD, 16))
        st.v_mfma_f32_16x16x32_bf16(v(SA, 4), v(SELA, 4), f, "0" if k == 0 else v(SA, 4))
    def res(st):
        st.buffer_load_dwordx4(v(RES, 4), aA, X_, sOUTO, mods="offen")
        st.buffer_load_dwordx4(v(RES + 4, 4), aA, X_, sOUTO, mods="offen offset:32")
    hq = oi("hq", 8)
    ORD = [int(c) for c in os_("xord", "01234567")]; assert ORD[:2] == [0, 1] and (hq == 8 or ORD == sorted(ORD))
    if XD:
        hq = 1; n1 = oi("xn1", 5)
        for p in range(n0, n1): xl(p, st)
        stamp(st, "xiss2")
        barrier(st, "s0")
        for p in range(n1, 5): xl(p, st)
        rnd(0, st)
        for k in range(4): smf(k, st)
        rnd(1, st)
        acts = {}
        act = lambda i, f: acts.setdefault(i, []).append(f)
        rps = [int(x) for x in os_("rp", "2,8,14,28,36,44").split(",")]; xps = [int(x) for x in os_("xp", "5,11,17").split(",")]
        for b in range(2, 8): act(rps[b - 2], lambda st, b=b: rnd(b, st))
        for b in range(5, 8): act(xps[b - 5], lambda st, b=b: xl(b, st))
        for k in range(4, 32):
            last = 2 * (k - 4) + oi("sm0", 0); assert k < 8 or last > rps[k // 4 - 2]
            act(last, lambda st, k=k: smf(k, st))
        rp = 0
        stamp(st, "p1pre")
        st.wait(lgkm=0); st.l.append(Ins("s_barrier", [], tneed="c0c"))
        if G.REC: G.SEQ.append("a0")
    else:
      dcap(st, "d1")
      for p in range(n0, n1): xl(ORD[p], st)
      nl = n1; nb = oi("xnb", 8)
      dcap(st, "d2")
      rnd(0, st)
      dcap(st, "r0")
      for q in range(hq):
        if nl < nb: xl(ORD[nl], st); nl += 1
        if q < 7: rnd(ORD[q + 1], st)
        lk = oi("late", 0)
        st.extend(LATE.l[:lk]); LATE.l = LATE.l[lk:]
        if q == hq - 1: st.extend(LATE)
        if q in (0, 2, 4, 6): dcap(st, f"r{q+1}")
        for k in range(4 * ORD[q], 4 * ORD[q] + 4): smf(k, st)
      while nl < nb: xl(ORD[nl], st); nl += 1
      acts = {}
      act = lambda i, f: acts.setdefault(i, []).append(f)
      for n, p in enumerate(range(nl, 8)): act(oi("xat", 0) + oi("xgap", 8) * n, lambda st, p=p: xl(p, st))
      rl = oi("rl", 2); last = 0
      for b in range(hq, 8):
        rp = max(1, 8 * (b - 1) - rl)
        if b > hq: act(rp, lambda st, b=b: rnd(b, st))
        for u in range(4):
            last = max(last + 1, (rp + oi("rs", 5) if b > hq else 0) + 2 * u)
            act(last, lambda st, k=4 * b + u: smf(k, st))
      stamp(st, "p1pre")
      dcap(st, "dp")
      barrier(st, "a0", drain=True)
      dcap(st, "da")
      stamp(st, 62, True); stamp(st, "start"); stamp(st, "karg")
      dflush(st)
    stamp(st, "B(a0)")
    bars = {oi("a1", 20): ("a1", [1])}
    f = Stream()
    M = [s(50 + 2 * i, 2) for i in range(5)]
    for i, bit in enumerate((16, 8, 2, 1)):
        f.v_and_b32(vT, bit, vL); f.v_cmp_ne_u32(M[i], 0, vT)
    f.v_bfe_u32(vT, vL, 2, 1); f.v_lshrrev_b32(vU, 5, vL); f.v_cmp_eq_u32(M[4], vT, vU)
    fm = None
    if hq < 8: fm = f; f = Stream()
    f.v_cndmask_b32(v(SA), v(SA), v(SA + 1), M[0])
    for i in range(8): f.v_cndmask_b32(v(QD + i), v(QD + i), v(QD + 8 + i), M[0])
    for i in range(4): f.v_cndmask_b32(v(QD + i), v(QD + i), v(QD + 4 + i), M[1])
    for i in range(2): f.v_cndmask_b32(v(QD + i), v(QD + i), v(QD + 2 + i), M[2])
    f.v_cndmask_b32(v(QD), v(QD), v(QD + 1), M[3])
    f.v_cndmask_b32(v(QD), 0, v(QD), M[4])
    fin_stats(f, v(SA), v(QD), None, v(QD + 1), NM, RS, VE)
    f.v_mul_f32(LR, sL2E, RS)
    g = Stream(); k_addr(g)
    g2 = g if hq == 8 else Stream()
    lane_tr(g2, vP1, None, "nat")
    g2.s_lshl_b32(sT2, sKH, 6); g2.v_xor_b32(vP1, sT2, vP1); g2.s_lshl_b32(sT2, sKH, 11); g2.v_add_u32(vP1, sT2, vP1)
    fill = Filler()
    r0 = oi("res0", 24)
    if hq == 8:
        act(2, lambda st: fill.add(f)); act(r0, res); act(r0 + 1, lambda st: fill.add(g))
    else:
        act(oi("gat", 1), lambda st: (fill.add(g2), fill.add(fm))); act(max(r0, 25), res)
        act(max(rp + 1, 26), lambda st: fill.add(g)); act(last + 3, lambda st: fill.add(f))
    hooks = {i: (lambda st, l=l: [f(st) for f in l]) for i, l in acts.items()}
    gemm(st, kv_items(), "trq", AF1, 6, 5, ready=[0], bars=bars, hooks=hooks, fill=fill, budget=oi("bud10", 8), pairw=oi("pw1", 0))
    fill.flush(st)
    st.v_add_u32(vNON, 1, vNON)
    st.v_mov_b32(v(125), 1); sigwait(st, 12, 32, cmp="gt")
    k_reads(st)
    st.v_readfirstlane_b32(sNONCE, vNON)
    signal(st, 2, 32)
    st.s_add_u32(sH5, sHST, 16384 * 5); st.s_add_u32(sF5, sDUM, 1024)
    st.s_cmp_eq_u32(sT6, 1); st.s_cselect_b32(sH5, sH5, sDUM); st.s_cselect_b32(sF5, sFJ, sF5)
    stamp(st, "KVgemm")

def frag_loads(base, regs, stride, per, WS=WS):
    out = []
    for k, r in enumerate(regs):
        def f(st, k=k, r=r):
            if k % per == 0: st.s_add_u32(sLD, base, k * stride)
            st.buffer_load_dwordx4(v(r, 4), vL16, WS, sLD, mods=f"offen offset:{(k % per) * stride} {SCL}")
        out.append(f)
    return out

def x_addr(st):
    st.v_lshrrev_b32(vV, 5, vL); st.v_lshlrev_b32(vV, 11, vV); st.v_and_b32(vU, 31, vL); st.v_lshl_add_u32(vV, vU, 4, vV)
def p1a_pre(st):
    ring_next(st, "trq"); x_addr(st)
def p3_pre(st):
    st.v_and_b32(vU, 31, vL); st.v_lshlrev_b32(aCS3, 2, vU); st.v_add_u32(aCS3, L_CS + 3 * 128, aCS3)
    ring_next(st, "b128"); x_addr(st)
    st.s_add_u32(sT0, sRING, 0x10000); st.s_and_b32(sT0, sT0, 0x1ffff); st.v_add_u32(vA1, sT0, vL16)
    st.s_lshl_b32(sT0, sM, 12); st.s_add_u32(sT0, sT0, L_PH); st.v_add_u32(aXW, sT0, vL16)
def x_loads(st, stt, at=32):
    L = frag_loads(sXLD, [XF + 4 * k for k in range(32)], 1024, 4, XS)
    def stl(st):
        for i in range(4):
            st.buffer_load_dwordx4(v(stt + 4 * i, 4), vV, WS, sSTLD, mods=f"offen offset:{512*i} {SCL}")
    return L[:at] + [stl] + L[at:]

def featmap(st, acc, kb, wp, e1, e2, lr, mid=None, hk=None):
    n0 = len(st.l)
    featmap_(st, acc, kb, wp, e1, e2, lr, mid)
    for at in sorted(hk or {}, reverse=True):
        x = Stream(); hk[at](x); st.l[n0 + at:n0 + at] = x.l
def featmap_(st, acc, kb, wp, e1, e2, lr, mid=None):
    for i in range(8): st.v_cvt_pk_bf16_f32(v(kb + i), v(acc + 2 * i), v(acc + 2 * i + 1))
    st.v_mfma_f32_32x32x16_bf16(v(acc, 16), v(wp, 4), v(kb, 4), "0")
    st.v_mfma_f32_32x32x16_bf16(v(acc, 16), v(wp + 4, 4), v(kb + 4, 4), v(acc, 16))
    if mid: mid(st)
    mx, mn = v(kb), v(kb + 1)
    p = lambda i: v(acc + i)
    st.v_max3_f32(mx, p(0), p(1), p(2)); st.v_min3_f32(mn, p(0), p(1), p(2))
    for i in range(3, 15, 2):
        st.v_max3_f32(mx, mx, p(i), p(i + 1)); st.v_min3_f32(mn, mn, p(i), p(i + 1))
    st.v_max_f32(mx, mx, p(15)); st.v_min_f32(mn, mn, p(15))
    pk(st, "mul", kb, bc(lr), kb)
    for i in range(0, 16, 2):
        pk(st, "fma", e1 + i, acc + i, bc(lr), bc(kb, True)); pk(st, "fma", e2 + i, ng(acc + i), bc(lr), bc(kb + 1))
    for i in range(16):
        st.v_exp_f32(v(e1 + i), v(e1 + i)); st.v_exp_f32(v(e2 + i), v(e2 + i))
    s1, s2 = kb + 2, kb + 4
    pk(st, "add", s1, e1, e1 + 2); pk(st, "add", s2, e2, e2 + 2)
    for i in range(4, 16, 2):
        pk(st, "add", s1, s1, e1 + i); pk(st, "add", s2, s2, e2 + i)
    st.v_add_f32(v(s1), v(s1), v(s1 + 1)); st.v_add_f32(v(s2), v(s2), v(s2 + 1))
    st.v_rcp_f32(v(s1), v(s1)); st.v_rcp_f32(v(s2), v(s2))
    for i in range(0, 16, 2):
        pk(st, "mul", e1 + i, bc(s1), e1 + i); pk(st, "mul", e2 + i, bc(s2), e2 + i)
    for i in range(8):
        st.v_cvt_pk_bf16_f32(v(e1 + i), v(e1 + 2 * i), v(e1 + 2 * i + 1))
        st.v_cvt_pk_bf16_f32(v(e2 + i), v(e2 + 2 * i), v(e2 + 2 * i + 1))

def p1a(st):
    at = oi("st1", 22)
    L = x_loads(st, STT, at)
    stamp(st, "p1pre")
    if "l" not in os_("nopoll", ""): poll2(st, vFL, sFA, 0, oi("gfx", -1))
    stamp(st, "FXpoll")
    pre = oi("pre1", 10)
    for f in L[:pre]: f(st)
    nxt(st)
    barrier(st, "a0")
    stamp(st, "B(a0)")
    fill = Filler()
    f = Stream(); stats(f, STT, NM, RS, VE); f.v_mul_f32(LR, sL2E, RS); k_reads(f, "v")
    g = Stream(); k_addr(g); k_reads(g, "wk")
    hooks = {2: lambda st: fill.add(g), oi("sth1", 2 * at + 2): lambda st: fill.add(f)}
    gemm(st, kv_items(), "trq", AF1, 6, 5, ready=[0], bars={oi("a1", 20): ("a1", [1]), oi("a2", 56): ("a2", [])}, loads=L[pre:], pre=0,
         hooks=hooks, fill=fill, budget=oi("bud1", 8), pairw=oi("pw1", 0))
    fill.flush(st)
    stamp(st, "KVgemm")

def gather_flagged(st, AF, aPL, aGZ, aGK, XT):
    ep = [int(x) for x in os_("kvp", "").split(",") if x]
    featmap(st, aQ, AF, WPH, aK, aV, LR, hk={a: (lambda x, r=r: pload(x, r, aPL, sFKVLD)) for a, r in zip(ep, (PRA, PRB))})
    stamp(st, "Q done")
    if OPT.get("dcap") == "2": st.wait(vm=0); dcap(st, "kf2", reg=126)
    poll2(st, aPL, sFKVLD, 0, oi("gkv", -1), len(ep))
    dflush(st)
    stamp(st, "FKVpoll")
    Gr, Z, SG, GA = XF, XF + 64, XF + 32, XF + 48
    nt = os_("gm", "sc1").replace("+", " ").replace("-", "")
    for cc in range(8):
        if cc: st.s_add_u32(sT0, sKVLD, 2 * cc * KV_REC)
        st.buffer_load_dwordx4(v(Gr + 4 * cc, 4), aGK, WS, sT0 if cc else sKVLD, mods="offen " + nt)
    for i in range(4):
        if i: st.s_add_u32(sT1, sGZ, 4 * i * KV_REC)
        st.buffer_load_dword(v(Z + i), aGZ, WS, sT1 if i else sGZ, mods="offen " + nt)
    if G.TAG == "f":
        st.s_lshl_b32(sT2, sC, 7); st.s_add_u32(sT2, sT2, XCCT)
        st.buffer_load_dword(XT, vFL, WS, sT2, mods="offen sc1")
        if oi("gsig", 0): signal(st, 1, 64)
    nxt(st)
    st.s_mul_i32(sT0, sM, 576); st.s_add_u32(sT0, sT0, L_KVB)
    st.v_and_b32(vT, 31, vL)
    st.v_and_b32(vU, 1, vL); st.v_lshlrev_b32(vU, 4, vU); st.v_mov_b32(vV, 0x3f80); st.v_lshlrev_b32(vU, vU, vV); st.v_lshrrev_b32(vV, 1, vT)
    for i in range(4):
        st.v_cmp_eq_u32("vcc", i, vV); st.v_cndmask_b32(v(SG + i), 0, vU, "vcc")
    st.v_lshlrev_b32(vT, 4, vT)
    st.v_lshrrev_b32(vU, 5, vL)
    st.v_lshl_add_u32(aA, vU, 3, vT); st.v_add_u32(aA, sT0, aA)
    st.v_lshrrev_b32(aB, 1, vFL); st.v_add_u32(aB, sT0, aB)
    st.v_bfe_u32(vV, vL, 2, 1); st.v_cmp_eq_u32("vcc", vV, vU)
    st.v_mov_b32(vV, 544); st.v_cndmask_b32(vT, vV, vT, "vcc"); st.v_add_u32(aR1, L_KVB, vT)
    st.v_lshlrev_b32(vU, 4, vU); st.v_add_u32(aR2, L_KVB + 512, vU)
    for cc in range(8):
        st.v_mfma_f32_32x32x16_bf16(v(GA, 16), v(SG, 4), v(Gr + 4 * cc, 4), "0" if cc == 0 else v(GA, 16))
    st.v_add_f32(v(Z), v(Z), v(Z + 1)); st.v_add_f32(v(Z + 2), v(Z + 2), v(Z + 3)); st.v_add_f32(v(Z), v(Z), v(Z + 2))
    st.v_mov_b32(v(Z + 1), v(Z)); st.v_permlane32_swap_b32(v(Z), v(Z + 1)); st.v_add_f32(v(Z), v(Z), v(Z + 1))
    st.v_mov_b32(v(Z + 1), v(Z)); st.v_permlane16_swap_b32(v(Z), v(Z + 1)); st.v_add_f32(v(Z), v(Z), v(Z + 1))
    st.v_cvt_pk_bf16_f32(v(Z), v(Z), v(Z))
    st.ds_write_b16(aB, v(Z), mods="offset:512")
    st.v_cvt_pk_bf16_f32(v(GA), v(GA), v(GA + 1)); st.v_cvt_pk_bf16_f32(v(GA + 1), v(GA + 2), v(GA + 3))
    st.ds_write_b64(aA, v(GA, 2))

def gather_tagged(st, AF, aPL, aGK, XT):
    Gr, SG, GA, ZS, ER = XF, XF + 64, XF + 68, v(XF + 73), v(XF + 74)
    aZ = v(XF + 75)
    nt = os_("gm", "sc1").replace("+", " ").replace("-", "")
    sTG = sT3
    def ld(st, c, base=False):
        if (c % 4 == 0 or base) and c >= 4: st.s_add_u32(sT0, sKVLD, c // 4 * 4 * TG_W)
        st.buffer_load_dwordx4(v(Gr + 4 * c, 4), aGK, WS, sT0 if c >= 4 else sKVLD, mods=f"offen offset:{c % 4 * TG_W} " + nt)
        if c == 15 and G.TAG == "f" and not base:
            st.s_lshl_b32(sT2, sC, 7); st.s_add_u32(sT2, sT2, XCCT)
            st.buffer_load_dword(XT, vFL, WS, sT2, mods="offen sc1")
    at = oi("tga", 40); gs = oi("tgs", 3)
    tmp = Stream(); featmap_(tmp, aQ, AF, WPH, aK, aV, LR); nf = len(tmp.l)
    hk = {}
    for c in range(16):
        if at + gs * c < nf: hk.setdefault(at + gs * c, []).append(c)
    done = sum(hk.values(), [])
    featmap(st, aQ, AF, WPH, aK, aV, LR, hk={k: (lambda x, l=l: [ld(x, c) for c in l]) for k, l in hk.items()})
    stamp(st, "Q done")
    st.s_and_b32(sTG, sNONCE, TGM)
    for c in range(16):
        if c not in done: ld(st, c)
    stamp(st, "FKVpoll")
    st.v_and_b32(vU, 1, vL); st.v_lshlrev_b32(vU, 4, vU); st.v_mov_b32(vV, 0x3f80); st.v_lshlrev_b32(vU, vU, vV)
    st.v_bfe_u32(vT, vL, 2, 2); st.v_bfe_u32(vV, vL, 1, 1); st.v_cmp_eq_u32("vcc", 3, vT)
    st.v_cndmask_b32(vT, vT, vV, "vcc"); st.v_cndmask_b32(vV, vV, 2, "vcc")
    st.v_lshrrev_b32(ER, 4, vL); st.v_cmp_eq_u32("vcc", vT, ER); st.v_cndmask_b32(vU, 0, vU, "vcc")
    for i in range(3):
        st.v_cmp_eq_u32("vcc", i, vV); st.v_cndmask_b32(v(SG + i), 0, vU, "vcc")
    st.v_mov_b32(v(SG + 3), 0)
    st.s_mul_i32(sT0, sKH, 2 * 576); st.s_add_u32(sT0, sT0, L_KVB); st.s_lshl_b32(sT1, sTP, 6); st.s_add_u32(sT1, sT1, sT0)
    st.v_lshrrev_b32(vU, 5, vL); st.v_mul_u32_u24(aA, 576, vU); st.v_bfe_u32(vT, vL, 2, 2); st.v_lshl_add_u32(aA, vT, 7, aA)
    st.v_and_b32(vT, 3, vL); st.v_lshl_add_u32(aA, vT, 4, aA); st.v_bfe_u32(vT, vL, 4, 1); st.v_lshl_add_u32(aA, vT, 3, aA); st.v_add_u32(aA, sT1, aA)
    st.s_lshl_b32(sT1, sTP, 4); st.s_add_u32(sT1, sT1, sT0); st.s_add_u32(sT1, sT1, 512)
    st.v_bfe_u32(vT, vL, 3, 1); st.v_mul_u32_u24(aZ, 576, vT); st.v_and_b32(vT, 7, vL); st.v_lshl_add_u32(aZ, vT, 1, aZ); st.v_add_u32(aZ, sT1, aZ)
    st.v_mov_b32(vV, L_KVB + 560); st.v_cmp_gt_u32("vcc", 32, vL); st.v_cndmask_b32(aZ, aZ, vV, "vcc")
    st.v_and_b32(vT, 31, vL); st.v_lshlrev_b32(vT, 4, vT)
    st.v_bfe_u32(vV, vL, 2, 1); st.v_cmp_eq_u32("vcc", vV, vU)
    st.v_mov_b32(vV, 544); st.v_cndmask_b32(vT, vV, vT, "vcc"); st.v_add_u32(aR2, L_KVB, vT)
    V, X, D = newlab("kvv"), newlab("kvx"), newlab("kvd")
    st.label(V)
    for c in range(16):
        g = Gr + 4 * c
        st.v_dot2_f32_bf16(ZS, v(g + 2), sONE, 0 if c == 0 else ZS)
        if c == 0: st.v_xor_b32(ER, sTG, v(g + 3))
        else: st.v_xor_b32(vT, sTG, v(g + 3)); st.v_or_b32(ER, vT, ER)
        st.v_mfma_f32_16x16x32_bf16(v(GA, 4), v(SG, 4), v(g, 4), "0" if c == 0 else v(GA, 4))
    st.v_cmp_ne_u32("vcc", 0, ER)
    st.s_cbranch_vccnz(X)
    st.label(D)
    OOL.label(X); OOL.mark("reset")
    OOL.s_sub_u32(sCNT, sCNT, 1); OOL.s_cselect_b32(sCNT, 0, sCNT); OOL.s_cbranch_scc1(D)
    OOL.s_mov_b32(sT1, 0)
    tail = Stream()
    for c in range(16):
        K = newlab("kvk")
        OOL.v_cmp_ne_u32("vcc", sTG, v(Gr + 4 * c + 3))
        if oi("tgf", 1):
            M_ = newlab("kvm")
            OOL.s_cbranch_vccnz(M_); OOL.label(K)
            tail.label(M_); tail.mark("reset"); ld(tail, c, True); tail.s_mov_b32(sT1, 1); tail.s_branch(K)
            continue
        OOL.s_cbranch_vccz(K)
        ld(OOL, c, True); OOL.s_mov_b32(sT1, 1)
        OOL.label(K); OOL.mark("reset")
    OOL.wait(vm=0)
    for _ in range(oi("tgb", 0)): OOL.s_nop(15)
    OOL.s_cmp_lg_u32(sT1, 0); OOL.s_cbranch_scc1(X)
    OOL.s_branch(V)
    OOL.extend(tail)
    nxt(st)
    st.v_mov_b32(aR1, aR2)
    st.v_lshrrev_b32(vU, 5, vL); st.v_lshlrev_b32(vU, 4, vU); st.v_add_u32(aR2, L_KVB + 512, vU)
    st.v_cvt_pk_bf16_f32(ZS, ZS, ZS)
    st.ds_write_b16(aZ, ZS)
    st.v_cvt_pk_bf16_f32(v(GA), v(GA), v(GA + 1)); st.v_cvt_pk_bf16_f32(v(GA + 1), v(GA + 2), v(GA + 3))
    st.ds_write_b64(aA, v(GA, 2))

def p1b(st):
    AF = AF1
    for i in range(0, 16, 2): pk(st, "fma", aK + i, CK + i, bc(NM), aK + i)
    def vpart(st):
        for i in range(0, 16, 2): pk(st, "fma", aV + i, CV + i, bc(NM), aV + i)
        for i in range(0, 16, 2): pk(st, "mul", aV + i, bc(RS), aV + i)
        for i in range(8): st.v_cvt_pk_bf16_f32(v(aV + i), v(aV + 2 * i), v(aV + 2 * i + 1))
        st.ds_write_b128(aB, v(aV, 4)); st.ds_write_b128(aB, v(aV + 4, 4), mods="offset:16")
    featmap(st, aK, AF, WPH, STT, aQ, LR, mid=vpart)
    st.ds_write_b128(aA, v(STT, 4)); st.ds_write_b128(aA, v(STT + 4, 4), mods="offset:16")
    st.ds_write_b128(aA, v(aQ, 4), mods="offset:32"); st.ds_write_b128(aA, v(aQ + 4, 4), mods="offset:48")
    signal(st)
    TA, TB, ONE, AKV, AZ = 16, 32, 96, 100, 104
    def shadow(st):
        st.v_lshrrev_b32(vT, 4, vL); st.v_lshlrev_b32(vT, 3, vT); st.v_bfe_u32(vU, vL, 2, 2); st.v_add_u32(vT, vT, vU)
        st.v_and_b32(vU, 3, vL); st.v_lshlrev_b32(vU, 3, vU)
        st.s_lshl_b32(sT0, sM, 5); st.s_add_u32(sT0, sT0, L_PH)
        st.v_mul_u32_u24(aR1, 144, vT); st.v_add3_u32(aR1, aR1, vU, sT0)
        st.s_lshl_b32(sT0, sTP, 5); st.s_add_u32(sT0, sT0, L_VB)
        st.v_mul_u32_u24(aR2, 80, vT); st.v_add3_u32(aR2, aR2, vU, sT0)
        ring_next(st, "trq")
    SPL = oi("spl", 1)
    sigwait(st, 12 if SPL else 28, extra=shadow)
    stamp(st, "Kepi+B")
    def kvpart(st):
        for k in range(4):
            for q in range(2):
                st.ds_read_b64_tr_b16(v(TA + 4 * k + 2 * q, 2), aR1, mods=f"offset:{(32*k+4*q)*144}")
                st.ds_read_b64_tr_b16(v(TB + 4 * k + 2 * q, 2), aR2, mods=f"offset:{(32*k+4*q)*80}")
        for i in range(4): st.v_mov_b32(v(ONE + i), sONE)
        if TG:
            for k in range(4):
                st.v_mfma_f32_16x16x32_bf16(v(AZ, 4), v(ONE, 4), v(TA + 4 * k, 4), "0" if k == 0 else v(AZ, 4))
                st.v_mfma_f32_16x16x32_bf16(v(AKV, 4), v(TA + 4 * k, 4), v(TB + 4 * k, 4), "0" if k == 0 else v(AKV, 4))
            P = 108
            st.v_and_b32(v(P + 3), TGM, vNON)
            st.v_and_b32(v(AZ + 1), 0xffff0000, v(AZ)); st.v_sub_f32(v(AZ), v(AZ), v(AZ + 1)); st.v_cvt_pk_bf16_f32(v(P + 2), v(AZ + 1), v(AZ))
            st.v_cvt_pk_bf16_f32(v(AZ + 2), v(AKV), v(AKV + 1)); st.v_cvt_pk_bf16_f32(v(AZ + 3), v(AKV + 2), v(AKV + 3))
            st.v_cvt_pk_bf16_f32(v(P), v(AKV), v(AKV + 1)); st.v_cvt_pk_bf16_f32(v(P + 1), v(AKV + 2), v(AKV + 3))
            st.v_permlane16_swap_b32(v(AZ + 2), v(AZ + 3)); st.v_permlane32_swap_b32(v(AZ + 3), v(P + 2))
            st.s_mov_b32("exec_hi", 0xffff)
            st.buffer_store_dwordx4(v(P, 4), vL16, WS, sKVST, mods="offen " + os_("km", "sc1").replace("+", " "), tset="kv")
            st.s_mov_b32("exec_hi", -1)
            if oi("ksig", 0):
                st.s_lshl_b32(sT3, sW, 2); st.s_add_u32(sT3, sT3, L_SIG + 64); st.v_mov_b32(vT, sT3); st.ds_write_b32(vT, v(125))
        else:
            st.v_lshrrev_b32(vT, 5, vL); st.v_lshlrev_b32(vV, 9, vT); st.v_bfe_u32(vU, vL, 4, 1); st.v_lshl_add_u32(vV, vU, 3, vV)
            st.v_lshlrev_b32(vT, 6, vT); st.v_lshl_add_u32(vT, vU, 4, vT)
            st.v_bfe_u32(vU, vL, 2, 2); st.v_lshl_add_u32(vV, vU, 7, vV); st.v_and_b32(vU, 3, vL); st.v_lshl_add_u32(vV, vU, 4, vV)
            for k in range(4):
                st.v_mfma_f32_16x16x32_bf16(v(AKV, 4), v(TA + 4 * k, 4), v(TB + 4 * k, 4), "0" if k == 0 else v(AKV, 4))
                st.v_mfma_f32_16x16x32_bf16(v(AZ, 4), v(TA + 4 * k, 4), v(ONE, 4), "0" if k == 0 else v(AZ, 4))
            st.v_cvt_pk_bf16_f32(v(AKV), v(AKV), v(AKV + 1)); st.v_cvt_pk_bf16_f32(v(AKV + 1), v(AKV + 2), v(AKV + 3))
            st.buffer_store_dwordx2(v(AKV, 2), vV, WS, sKVST, mods="offen sc1")
            st.buffer_store_dwordx4(v(AZ, 4), vT, WS, sKZ, mods="offen sc1", tset="kv")
    if SPL: sigwait(st, 12, 16, extra=kvpart)
    else: kvpart(st)
    stamp(st, "kv st")
    items = []
    for k in range(16):
        for t in range(2):
            items.append(dict(chunk=0, off=k * 2048, t=t, acc=aQ, b=XF + 4 * (k + 16 * t), first=(k, t) == (0, 0)))
    def kvflag(st):
        dcap(st, "kf0", reg=124)
        st.buffer_store_dword(vNON, "off", WS, sFKVST, mods="sc1", tneed="kv")
        dcap(st, "kf1", reg=125)
    CS = 16
    aPL, aGZ, aGK = aR1, aR2, aB
    f = Stream()
    for i in range(4): f.ds_read_b128(v(CS + 4 * i, 4), aCS, mods=f"offset:{256+16*i}")
    if TG:
        f.v_and_b32(aPL, 15, vL); f.v_mul_u32_u24(aPL, TG_W, aPL)
        f.v_subrev_u32(vU, 256, vL16); f.v_cmp_gt_u32("vcc", 48, vL); f.v_cndmask_b32(aGK, vU, vL16, "vcc")
    else:
        f.v_lshrrev_b32(aPL, 2, vL); f.v_lshlrev_b32(aPL, oi("fks", 7), aPL); f.v_and_b32(vU, 3, vL); f.v_lshl_add_u32(aPL, vU, 2, aPL)
        f.v_lshrrev_b32(aGZ, 4, vL); f.v_mul_u32_u24(aGZ, KV_REC, aGZ); f.v_add_u32(aGZ, aGZ, vFL)
        f.v_lshrrev_b32(aGK, 5, vL); f.v_mul_u32_u24(aGK, KV_REC - 512, aGK); f.v_add_u32(aGK, aGK, vL16)
    fill = Filler()
    gemm(st, items, "trq", AF, 6, 5, ready=[0], hooks={4: lambda st: fill.add(f)} if TG else {4: lambda st: fill.add(f), oi("kvflag", 24): kvflag}, fill=fill, budget=8, pairw=oi("pwq", 0))
    fill.flush(st)
    stamp(st, "Qgemm")
    for i in range(0, 16, 2): pk(st, "fma", aQ + i, CS + i, bc(NM), aQ + i)
    XT = v(XF + 72)
    if TG: gather_tagged(st, AF, aPL, aGK, XT)
    else: gather_flagged(st, AF, aPL, aGZ, aGK, XT)
    if DG: signal(st, None, 64)
    if G.TAG == "f":
        OK = newlab("xok"); L = newlab("xpoll"); D = newlab("xdec")
        st.s_cmp_lg_u32(sPAIR, 0)
        st.mark("save", OK)
        st.s_cbranch_scc1(OK)
        st.s_add_u32(sT0, sNONCE, 14); st.s_add_u32(sT1, sT0, sXC)
        st.v_cmp_ne_u32("vcc", sT1, XT)
        if not OPT.get("slow"): st.s_cbranch_vccz(OK)
        st.label(L)
        st.buffer_load_dword(XT, vFL, WS, sT2, mods="offen sc1")
        st.wait(vm=0)
        st.v_subrev_u32(vT, sT0, XT)
        st.v_cmp_le_u32("vcc", 16, vT)
        st.s_cbranch_vccz(D)
        st.s_sub_u32(sCNT, sCNT, 1)
        st.s_cbranch_scc0(L)
        st.s_mov_b32(sCNT, 0)
        st.label(D)
        st.v_cmp_ne_u32("vcc", sT1, XT)
        st.mark("save", "toslow")
        if OPT.get("slow"): st.s_branch(".Lg_s")
        else: st.s_cbranch_vccnz(".Lg_s")
        st.mark("merge", OK)
        st.label(OK)
    else:
        st.mark("merge", "toslow")
        st.label(".Lg_s")
    if DG: sigwait(st, 12, 64)
    else: barrier(st, "g", drain=True)
    stamp(st, "gather+B")

def p1c(st):
    PHQ = [aK, aK + 4, aV, aV + 4]
    KA, ZA, NUM, DEN = XF, XF + 16, 48, v(64)
    for u in range(4): st.ds_read_b128(v(KA + 4 * u, 4), aR1, mods=f"offset:{576*u}")
    for u in range(4): st.ds_read_b128(v(ZA + 4 * u, 4), aR2, mods=f"offset:{576*u}")
    st.v_mov_b32(DEN, f2u(1e-6)); st.v_mov_b32(v(65), 0)
    st.v_lshrrev_b32(vU, 5, vL); st.v_lshl_add_u32(aA, vU, 9, vL16)
    for u in range(4):
        st.v_mfma_f32_32x32x16_bf16(v(NUM, 16), v(KA + 4 * u, 4), v(PHQ[u], 4), "0" if u == 0 else v(NUM, 16))
        for i in range(4):
            dd = DEN if i % 2 == 0 else v(65)
            st.v_dot2_f32_bf16(dd, v(PHQ[u] + i), v(ZA + 4 * u + i), dd)
    st.v_add_f32(DEN, DEN, v(65))
    st.v_rcp_f32(DEN, DEN)
    for i in range(0, 16, 2): pk(st, "mul", NUM + i, bc(DEN), NUM + i)
    for i in range(8): st.v_cvt_pk_bf16_f32(v(NUM + i), v(NUM + 2 * i), v(NUM + 2 * i + 1))
    st.buffer_store_dwordx4(v(NUM, 4), aA, WS, sOST, mods=f"offen {G.SC}")
    st.buffer_store_dwordx4(v(NUM + 4, 4), aA, WS, sOST, mods=f"offen offset:512 {G.SC}", tset="o")
    ring_next(st, "trn")
    res_init(st, 16)
    st.s_lshl_b32(sT0, sM, 12); st.s_add_u32(sT0, sT0, L_PH); st.v_add_u32(aXW, sT0, vL16)
    if SPEC & 1:
        st.s_mov_b32(sOST, sOST1); st.s_lshr_b32(sMASK, sM, 2)
        for i in range(16): st.v_mov_b32(v(32 + i), 0)
    else: st.buffer_store_dword(vNON, "off", WS, sFJ, mods=f"offset:128 {G.SC}", tneed=None if OPT.get("noack") else "o")
    if TG:
        for r in (sKVST, sKVLD): st.s_add_u32(r, r, TG_P)
        return
    for r in (sKVST, sKVLD, sKZ, sGZ): st.s_add_u32(r, r, KV_P)
    fp = 16 if oi("fkw", 1) else 256 * 128
    st.s_add_u32(sFKVST, sFKVST, fp); st.s_add_u32(sFKVLD, sFKVLD, fp)

def small_items(nsteps, breg, accs=(16, 32)):
    items = []
    for k in range(nsteps):
        for t in ((1, 0) if k == nsteps - 1 else (0, 1)):
            items.append(dict(chunk=k // 8, off=(k % 8) * 4096, t=t, acc=accs[t], b=breg(k), first=k == 0 and t == 1))
    return items
def res_init(st, a):
    for i in range(8):
        st.v_lshlrev_b32(v(a + 2 * i), 16, v(RES + i)); st.v_and_b32(v(a + 2 * i + 1), 0xffff0000, v(RES + i))

def xepi(st, last):
    aB_, T, P = (96, 48, 16) if last else (32, 16, 48)
    aX = aXW
    for i in range(4): st.ds_write_b128(aX, v(aB_ + 4 * i, 4), mods=f"offset:{1024*i}")
    st.v_xor_b32(aX, 4096, aX)
    barrier(st, "X4" if last else "X2", drain=True)
    for i in range(4): st.ds_read_b128(v(P + 4 * i, 4), aX, mods=f"offset:{1024*i}")
    st.v_and_b32(aX, 31, vL); st.v_lshlrev_b32(aX, 4, aX); st.v_lshrrev_b32(vT, 5, vL); st.v_lshl_add_u32(aX, vT, 2, aX)
    for i in range(4):
        for k in (4 * i, 4 * i + 2): pk(st, "add", T + k, T + k, P + k)
        for k in (2 * i, 2 * i + 1): st.v_cvt_pk_bf16_f32(v(RES + k), v(T + 2 * k), v(T + 2 * k + 1))
    LF = newlab("fin")
    if last:
        st.mark("save", LF)
        st.s_cmp_eq_u32(sPAIR, 1); st.s_cbranch_scc1(LF)
    st.buffer_store_dwordx4(v(RES, 4), vL16, XS, sXST, mods=f"offen {G.SC}")
    st.buffer_store_dwordx4(v(RES + 4, 4), vL16, XS, sXST, mods=f"offen offset:1024 {G.SC}")
    S, Q, S2, Q2 = v(T), v(T + 1), v(T + 2), v(T + 3)
    st.v_dot2_f32_bf16(S, v(RES), sONE, 0); st.v_dot2_f32_bf16(Q, v(RES), v(RES), 0)
    st.v_dot2_f32_bf16(S2, v(RES + 1), sONE, 0); st.v_dot2_f32_bf16(Q2, v(RES + 1), v(RES + 1), 0)
    for i in range(2, 8, 2):
        st.v_dot2_f32_bf16(S, v(RES + i), sONE, S); st.v_dot2_f32_bf16(Q, v(RES + i), v(RES + i), Q)
        st.v_dot2_f32_bf16(S2, v(RES + i + 1), sONE, S2); st.v_dot2_f32_bf16(Q2, v(RES + i + 1), v(RES + i + 1), Q2)
    pk(st, "add", T, T, T + 2)
    st.v_permlane32_swap_b32(S, Q); st.v_add_f32(S, S, Q)
    st.buffer_store_dword(S, aX, WS, sSTST, mods=f"offen {G.SC}", tset="x")
    if last and oi("xsig", 0): signal(st, 1, 80)
    (p1a_pre if last else p3_pre)(st)
    st.buffer_store_dword(vNON, "off", WS, sFXST, mods=G.SC, tneed=None if OPT.get("noack") else "x")
    if last:
        st.s_mov_b32(sPAIR, 1)
        st.s_branch(f".Lpair_{G.TAG}")
        st.label(LF); st.mark("restore", LF)
        st.v_and_b32(aX, 31, vL); st.v_lshlrev_b32(aX, 10, aX); st.v_lshrrev_b32(vT, 5, vL); st.v_lshl_add_u32(aX, vT, 4, aX)
        om = os_("om", "").replace("+", " ")
        st.buffer_store_dwordx4(v(RES, 4), aX, OUT, sOUTO, mods="offen " + om)
        st.buffer_store_dwordx4(v(RES + 4, 4), aX, OUT, sOUTO, mods="offen offset:32 " + om)

def tr_use(o, addr, off, acc, b, tmp):
    o.ds_read_b64_tr_b16(v(tmp, 2), addr, mods=f"offset:{off}"); o.ds_read_b64_tr_b16(v(tmp + 2, 2), addr, mods=f"offset:{off+512}")
    return lambda: o.v_mfma_f32_32x32x16_bf16(v(acc, 16), v(tmp, 4), v(b, 4), v(acc, 16))
def prev_chunk(o, vP, d0, d1):
    o.s_sub_u32(sTX, sRING, 0x8000); o.s_and_b32(sTX, sTX, 0x1ffff); o.v_add_u32(d0, sTX, vP); o.v_xor_b32(d1, 64, d0)

def p2(st):
    stamp(st, "o stored")
    items = small_items(16, lambda k: XF + 4 * k); sp = None; pre = oi("pre2", 10); hooks = {1: nxt}
    if SPEC & 1:
        L = frag_loads(sOLD, [XF + 4 * k for k in range(16)], 2048, 2)
        def load(o, k):
            o.s_add_u32(sTX, sOLD, k * 2048); o.buffer_load_dwordx4(v(XF + 4 * k, 4), vL16, WS, sTX, mods=f"offen {SCL}")
        c0 = (v(72), v(73))
        def use(o, k):
            m = [tr_use(o, (c0 if k < 8 else (vA0, vA1))[t], (k % 8) * 4096, (16, 32)[t], XF + 4 * k, 48 + 4 * t) for t in range(2)]
            for f in m: f()
        sp = Spec(16, lambda k: XF + 4 * k, load, use, head=lambda o: prev_chunk(o, vP1, *c0))
        for i, it in enumerate(items): it["first"] = False; it["guard"] = ("chk", i // 2) if i % 2 == 0 else ("vcc",)
        for _ in range(oi("od", 0)): st.s_nop(15)
        gn = oi("gno", 4)
        if gn < 16: sp.probe(st, sOLD, 12)
        for f in L[:pre]: f(st)
        if gn < 16: hooks[0] = lambda st, a=L[:pre]: (sp.gate(st, sOLD, 12, a, gn), stamp(st, "FOpoll"))
        L = L[pre:]; pre = 0
    elif DG:
        L = frag_loads(sHLD, [XF + 4 * k for k in range(16)], 2048, 2)
        def first(st):
            poll2(st, vFL, sFB, 128, oi("gfo", -1))
            stamp(st, "FOpoll")
            for f in L[:pre]: f(st)
        sigwait(st, 12, 80, regs=(124, 125, 48), extra=first)
        stamp(st, "Wo ok")
        L = L[pre:]; pre = 0
        hooks[oi("p2a", 12) + 1] = lambda st: signal(st, None, 96)
    else:
        if "o" not in os_("nopoll", ""): poll2(st, vFL, sFB, 128, oi("gfo", -1))
        L = frag_loads(sHLD, [XF + 4 * k for k in range(16)], 2048, 2)
        stamp(st, "FOpoll")
    gemm(st, items, "trn", 48, 6, 5, ready=[0, 1], loads=L, pre=pre, hooks=hooks, pairw=oi("pw2", 0),
         bars={oi("p2a", 12): ("p2", [])} if oi("p2a", 12) and not DG else None, spec=sp)
    if sp: stamp(st, "P2main"); vstamp(st, "nmo"); sp.fix(st); st.s_mov_b32(sOLD, sOLD1)
    stamp(st, "P2gemm")
    xepi(st, False)

def stream(st, items, af, nslots, depth, hooks, fill, budget, watch=None, slots=None, gw=1, spec=None):
    n = len(items); nr = 0
    gemm_n[0] += 1; tg = f"g{gemm_n[0]}_"
    G_ = (lambda i: gw) if not callable(gw) else gw
    def pump(upto):
        nonlocal nr
        while nr < n and nr <= upto:
            items[nr]["rd"](st, af + 4 * (nr % nslots)); st.l[-1].dst = st.l[-1].dst | {("t", tg + str(nr))}; nr += 1
    pump(depth - 1)
    nextw = 0; err = 0.0
    for i in range(n):
        it = items[i]
        acc = v(it["acc"], 16)
        tn = None
        if i == nextw:
            nextw = i + G_(i); tn = tg + str(min(nextw, nr) - 1)
        st.v_mfma_f32_32x32x16_bf16(acc, v(af + 4 * (i % nslots), 4), v(it["b"], 4), "0" if it["first"] else acc, tneed=tn)
        if tn and it.get("b2"): st.l[-1].src = st.l[-1].src | regs_of(v(it["b2"], 4))
        if spec and it.get("guard"):
            mf = st.l.pop(); L = spec.guard(st, it["guard"], mf); st.l.append(mf); st.label(L)
        n0 = len(st.l)
        for h in hooks.get(i, []): h(st)
        pump(i + depth)
        if slots:
            used = 1 + sum(cost(x) for x in st.l[n0:]) // 4 + (1 if i + 1 == nextw else 0)
            room = slots(i) - used + err
            n1 = len(st.l)
            if room >= 1: fill.take(st, 4 * int(room))
            took = sum(cost(x) for x in st.l[n1:]) // 4
            err = max(-1.0, min(1.0, room - took)) if fill.q else 0.0
        else: fill.take(st, budget(i))
        if watch: watch(i, st.l[n0:])
    assert not fill.q

C1 = -2.0 * math.sqrt(2.0 / math.pi) * LOG2E
def p34(st):
    A = [16, 32, 48, 96]; AF = 64; NMP = 88; DEPTH = oi("dep", 5)
    K1, K3, VE3, NM3 = v(92), v(93), v(94), v(95)
    at = oi("st3", 20)
    L = x_loads(st, STT, at)
    stamp(st, "x stored")
    if "x" not in os_("nopoll", ""): poll2(st, vFL, sFA, 0, oi("gf2", -1))
    stamp(st, "FXpoll2")
    pre = oi("pre3", 10)
    for f in L[:pre]: f(st)
    nxt(st)
    barrier(st, "30")
    stamp(st, "B(30)")
    items = []; hooks = {}
    def hk(i, f): hooks.setdefault(i, []).append(f)
    def wide(a, off, step=0):
        def rd(st, r):
            if step:
                st.s_add_u32(sRING, sRING, 0x8000 * step); st.s_and_b32(sRING, sRING, 0x1ffff); st.v_add_u32(vA0, sRING, vL16)
            st.ds_read_b128(v(r, 4), a, mods=f"offset:{off}")
        return rd
    def mean(r):
        return dict(rd=lambda st, q: st.ds_read_b32(v(q), aCS3, mods=f"offset:{128*r}"), acc=A[r % 4], b=NMP, first=False)
    n2 = oi("n2", 10); k2 = 0; end = {}; use = {}
    def t2(k): return dict(rd=wide(vA1, k * 1024), acc=A[2], b=XF + 4 * k, first=k == 0)
    for k in range(32):
        use[k] = len(items)
        for t in range(2):
            items.append(dict(rd=wide(vA0, t * 16384 + (k % 16) * 1024, int(k == 16 and t == 0)), acc=A[t], b=XF + 4 * k, first=k == 0))
        if k == 15: g5 = len(items) - 1
        if (k + 1) * n2 // 32 > k2: items.append(t2(k2)); k2 += 1
    items += [mean(0), mean(1)]; end[0] = len(items) - 2; end[1] = len(items) - 1
    items += [t2(k) for k in range(k2, 32)] + [mean(2)]; end[2] = len(items) - 1
    for r in range(3, 6):
        items += [dict(rd=wide(vA0, k * 1024, (2 if r == 3 else 1) if k == 0 else 0), acc=A[r % 4], b=XF + 4 * k, first=k == 0) for k in range(32)]
        items.append(mean(r)); end[r] = len(items) - 1
    T5 = end[4] + 1; P4 = len(items)
    HI = [16 + 4 * i for i in range(4)] + [116, 88] + [XF + 4 * i for i in range(2)] + [32 + 4 * i for i in range(3)]
    breg = lambda k: XF + 4 * k if k < 32 else HI[k - 32]
    for n, it in enumerate(small_items(43, breg, (48, 96))):
        def rd(st, r, it=it, n=n):
            if n % 16 == 0: ring_next(st, "trn")
            a = vA1 if it["t"] else vA0
            st.ds_read_b64_tr_b16(v(r, 2), a, mods=f"offset:{it['off']}")
            st.ds_read_b64_tr_b16(v(r + 2, 2), a, mods=f"offset:{it['off']+512}")
        items.append(dict(rd=rd, acc=it["acc"], b=it["b"], first=it["first"]))
    for n, f in enumerate(L[pre:]): hk(2 * n + 1, f)
    fill = Filler()
    f = Stream()
    stats(f, STT, NM3, K1, VE3)
    f.v_and_b32(vU, 0xffff0000, NM3); f.v_sub_f32(NM3, NM3, vU); f.v_cndmask_b32(vU, vU, NM3, sHALF)
    f.v_cvt_pk_bf16_f32(v(NMP), vU, vU)
    f.v_mul_f32(K3, K1, K1); f.v_mul_f32(K1, f2u(C1), K1); f.v_mul_f32(K3, f2u(0.044715), K3); f.v_mul_f32(K3, K3, K1)
    z = Stream()
    for i in range(1, 4): z.v_mov_b32(v(NMP + i), 0)
    z.v_min_u32(aP4, 20, vFL)
    hk(2, lambda st: fill.add(z))
    hk(use[min(31, at + oi("sth3", 2))], lambda st: fill.add(f))
    hk(end[0] - 2, lambda st: fill.flush(st))
    TM = 112
    def epi(r):
        f = Stream(); a = A[r % 4]
        g = lambda i: v(a + i)
        u = lambda i: v(a + 8 + i)
        tm = lambda i: v(TM + i % 4)
        for t in range(16):
            ok = lambda d: 0 <= t - d < 8
            if ok(3): f.v_exp_f32(g(t - 3), g(t - 3))
            if ok(0): f.v_mul_f32(tm(t), g(t), g(t))
            if ok(1): f.v_fma_f32(tm(t - 1), tm(t - 1), K3, K1)
            if ok(0): f.v_mul_f32(u(t), g(t), u(t))
            if ok(5): f.v_rcp_f32(g(t - 5), g(t - 5))
            if ok(2): f.v_mul_f32(g(t - 2), tm(t - 2), g(t - 2))
            if ok(4): f.v_fma_f32(g(t - 4), g(t - 4), VE3, VE3)
            if ok(6): f.v_mul_f32(g(t - 6), g(t - 6), u(t - 6))
            if ok(7) and t % 2 == 0: f.v_cvt_pk_bf16_f32(u((t - 8) // 2), g(t - 8), g(t - 7))
            if t == 12 and r < 5: f.s_add_u32(sHS, sHST, 16384 * r)
        f.buffer_store_dwordx4(v(a + 8, 4), vL16, WS, sHS if r < 5 else sH5, mods=f"offen {G.SC} {os_('hm', '') if r < oi('hmr', 6) else ''}", tset=f"h{r}")
        return f
    def flag(r):
        f = Stream()
        f.buffer_store_dword(vNON, "off", WS, sFJ if r < 5 else sF5, mods=f"offset:{256+64*r} {G.SC}", tneed=f"h{r}")
        return f
    e = [epi(r) for r in range(6)]
    ri = Stream(); res_init(ri, 48)
    lag = oi("lag", 3)
    for r in range(6):
        parts = [e[r]] + ([ri] if r == 3 else [])
        hk(end[max(r, 1)] + lag, lambda st, parts=parts: [fill.add(p) for p in parts])
        hk(end[r], lambda st, r=r: stamp(st, f"t{r}"))
    hk(end[3], lambda st: fill.drain_until(st, e[0])); hk(end[4], lambda st: fill.drain_until(st, e[1]))
    hk(end[5] - 1, lambda st: fill.drain_until(st, ri))
    fd = [int(x) for x in os_("fd", "38,20,20,18,16,12").split(",")]; fpos = {}
    def watch(i, l):
        for r in range(6):
            if any(("t", f"h{r}") in x.dst for x in l): fpos[r] = i + fd[r]; hk(i + fd[r], lambda st, r=r: (stamp(st, f"f{r}a"), st.extend(flag(r)), stamp(st, f"f{r}b")))
    b3, b4 = oi("bud3", 16), oi("bud4", 16)
    def bud(i):
        b = oi("bud0", 12) if i < end[1] else b3 if i < P4 - DEPTH else b4
        if b % 4: b += 2 if i % 2 else -2
        return b - (4 if i in hooks and oi("budh", 1) else 0)
    o = oi("b4", 10)
    for i, name in ((g5 + oi("c1d", 4), "3a"), (end[1], "3b"), (end[2], "3c"), (end[3], "3d"), (end[4], "3f"), (end[5], "3g"),
                    (P4 + o, "4a"), (P4 + 16 + o, "4b"), (P4 + 32 + o, "4c"), (P4 + 48 + o, "4d"), (P4 + 64 + o, "4e")):
        hk(i, lambda st, name=name: (stamp(st, f"{name}a"), barrier(st, name), stamp(st, f"{name}b")))
    for i in (16, 32, 48, 64): hk(P4 + i, lambda st, i=i: stamp(st, f"q{i}"))
    HL = frag_loads(sHLD, [breg(k) for k in range(43)], 2048, 2)
    if OPT.get("noH"): HL = [lambda st: None] * 43
    ne = oi("early4", 12)
    ck = [T5 + oi("chkA", 10), P4 + oi("chk2", 0), P4 + oi("chk3", 16), P4 + oi("chk4", 42), P4 + oi("chk5", 65)]
    sl = oi("sl", 12); ev = float(OPT.get("ev4", 2)); pos = []
    for k in range(43):
        g = max(0, k // 8 - 1)
        p = ck[0] + 1 + k * float(OPT.get("ev3", 2)) if k < ne else pos[-1] + ev
        pos.append(max(p, ck[g]) if k < 40 else ck[4])
    pos = [int(p) for p in pos]
    hk(ck[0] - sl - 1, lambda st: (st.v_and_b32(vV, 31, vL), st.v_lshlrev_b32(vV, 2, vV)))
    for g, (addr, off) in enumerate(((vV, 256), (vFL, 384), (vFL, 448), (vFL, 512), (aP4, 576))):
        assert g == 0 or ck[g] - sl > ck[g - 1]
        if OPT.get("nochk"): continue
        hk(ck[g] - sl, lambda st, addr=addr, off=off: st.buffer_load_dword(vS4, addr, WS, sFB, mods=f"offen offset:{off} sc1"))
        hk(ck[g], lambda st, addr=addr, off=off, g=g: (stamp(st, f"k{g}a"), soft_check(st, vS4, addr, sFB, off), stamp(st, f"k{g}b")))
    def last(st):
        assert 5 in fpos and fpos[5] < ck[4]
        nxt(st)
    hk(ck[4], last)
    for k in range(43):
        assert pos[k] < P4 + 2 * k and (k >= 32 or pos[k] >= T5 + k), (k, pos[k])
        hk(pos[k], HL[k])
    hk(pos[32] - 1, lambda st: fill.drain_until(st, e[4]))
    sl_ = None
    if float(OPT.get("sl3", 7)):
        s0_, s3_, s4_ = [float(OPT.get(k, d)) for k, d in (("sl0", 7), ("sl3", 7), ("sl4", 8))]
        sl_ = lambda i: s0_ if i < end[1] else s3_ if i < P4 - DEPTH else s4_
    g0_, g3_, g4_ = oi("gw0", 2), oi("gw3", 2), oi("gw4", 2)
    def gw_(i):
        g = g0_ if i < end[1] else g3_ if i < P4 else g4_
        return min(g, P4 - i) if i < P4 else g
    if g4_ == 4 or oi("gv4", 0):
        for i in range(P4, len(items) - 2, 4): items[i]["b2"] = items[i + 2]["b"]
    stream(st, items, AF, 6, DEPTH, hooks, fill, bud, watch, sl_, gw_)
    if G.TAG == "f": print("T3", end[2] + 1, "T4", end[3] + 1, "T5", T5, "P4", P4, "flags", fpos, "checks", ck, "loads", pos, file=sys.stderr)
    stamp(st, "P4gemm")
    xepi(st, True)

def body(st, first):
    stop = OPT["stop"]
    T = G.TAG
    st.label(f".Lpair_{T}"); st.mark("reset")
    G.SEQ = SEQA; p1a(st)
    G.SEQ = SEQC
    if first:
        st.mark("merge", "from0"); st.label(".Lk_f")
    p1b(st); p1c(st)
    if stop == "p1": st.s_branch(".Lend"); return
    p2(st)
    if stop == "p2": st.s_branch(".Lend"); return
    p34(st)
    stamp(st, "end")
    stamp(st, 63, True)
    if OPT.get("dbg") == "2":
        if OPT.get("wb"):
            st.wait(vm=0); st.raw("    buffer_wbl2 sc0 sc1"); st.raw("    s_waitcnt vmcnt(0)")
        L = newlab("pad")
        st.s_mov_b32(s(87), 7000)
        if OPT.get("early"): st.s_cmp_lt_u32(s(2), int(OPT["early"])); st.s_cselect_b32(s(87), 6000, s(87))
        if OPT.get("cap"):
            if OPT.get("capr"): st.s_sub_u32(s(43), s(43), s(42))
            else: st.s_sub_u32(s(43), s(43), s(86)); st.s_lshr_b32(s(43), s(43), 2)
            st.s_min_u32(s(43), s(43), 40000); st.s_add_u32(s(87), s(87), s(43))
        st.label(L)
        st.s_memrealtime(s(100, 2)); st.wait(lgkm=0); st.s_sub_u32(s(100), s(100), s(42)); st.s_cmp_lt_u32(s(100), s(87)); st.s_cbranch_scc1(L)
    elif OPT.get("dbg"):
        st.s_load_dwordx2(s(44, 2), s(0, 2), 72); st.s_memrealtime(s(100, 2)); st.wait(lgkm=0)
        st.s_and_b32(s(45), s(45), 0xffff); st.s_mov_b32(s(46), 256); st.s_mov_b32(s(47), 0x20000)
        st.s_not_b32(s(42), s(42)); st.v_mov_b32(vT, s(42)); st.v_mov_b32(vU, s(100)); st.s_not_b32(s(100), s(100)); st.v_mov_b32(vV, s(100))
        st.raw("    buffer_atomic_umax v13, off, s[44:47], 0")
        st.raw("    buffer_atomic_umax v14, off, s[44:47], 0 offset:4")
        st.raw("    buffer_atomic_umax v15, off, s[44:47], 0 offset:8")
        st.s_not_b32(s(42), s(42)); st.v_mov_b32(vT, s(42))
        st.raw("    s_nop 4")
        st.raw("    buffer_atomic_umax v13, off, s[44:47], 0 offset:12")
    st.s_or_b32(sT0, s(2), sW); st.s_cmp_lg_u32(sT0, 0); st.s_cbranch_scc1(".Lend")
    st.v_add_u32(vNON, 22, vNON)
    st.buffer_store_dword(vNON, "off", WS, 0, mods=f"offset:{EPOCH} sc1")
    st.s_branch(".Lend")

SEQ0, SEQA, SEQC = [], [], []
def compute(st):
    G.SEQ = SEQ0
    p1a0(st)
    st.mark("save", "from0")
    st.s_branch(".Lk_f")
    G.SC, G.TAG = "", "f"
    body(st, True)

def compute_slow(st):
    G.SC, G.TAG, G.REC = "sc1", "s", False
    body(st, False)

sW8, sQK, sWOb, sGU, sWD5, sWI = s(74), s(75), s(76), s(77), s(78), s(79)
sWDb = [s(80 + i) for i in range(4)]
GU = 64
vKV, vQ, vW, vWR0, vWR1 = v(2), v(4), v(5), v(6), v(7)
vGG = [v(8), v(9), v(10)]; vGL = [v(16), v(17), v(18)]; vGT = v(19)
vC0, vC1, vCW, vCR = v(20), v(21), v(22), v(23)
SEL = 24; CACC = 28
FRS = [36, 40, 44, 48, 52]; WRAW = 56
vDUM = [v(11), v(60), v(61), v(62)]
GSTR = 448

def LDSW(st):
    for i in reversed(st.l):
        if i.name == "s_barrier" or (i.name == "s_waitcnt" and "lgkmcnt(0)" in i.ops[0]): return False
        if i.kind == "ds": return True
    return False

def POL(srd):
    k = {WQ: "pq", WO_: "po", WD: "pd", WG: "pg", WU: "pg"}.get(srd)
    x = os_(k, "") if k else ""
    return " " + x.replace("+", " ") if x else ""

def loader(st):
    st.v_lshrrev_b32(vT, 3, vL); st.v_bfe_u32(vU, vL, 4, 1); st.v_lshlrev_b32(vU, 2, vU); st.v_and_b32(vV, 7, vL); st.v_xor_b32(vU, vU, vV)
    st.v_mul_u32_u24(vKV, 3072, vT); st.v_and_b32(vV, 3, vU); st.v_lshl_add_u32(vKV, vV, 4, vKV)
    st.v_lshrrev_b32(vV, 2, vU); st.v_mul_u32_u24(vQ, 256 * 3072, vV); st.v_add_u32(vQ, vQ, vKV)
    st.v_lshl_add_u32(vKV, vV, 10, vKV); st.v_add_u32(vKV, 1024, vKV)
    st.v_lshlrev_b32(vW, 10, vT); st.v_lshl_add_u32(vW, vU, 4, vW)
    st.s_lshl_b32(sW8, sM, 13)
    st.s_mul_i32(sQK, sM, 64 * 3072); st.s_lshl_b32(sT0, sJ, 6); st.s_add_u32(sQK, sQK, sT0)
    sKVr = [s(84), s(85)]; sQJ = s(88); vQ0 = v(GU)
    rot(st, s(89), sT1); st.s_add_u32(s(89), s(89), sM)
    st.s_lshl_b32(sQJ, sJ, 6)
    st.s_and_b32(sT1, s(89), 7); st.s_mul_i32(sKVr[0], sT1, 64 * 3072); st.s_add_u32(sKVr[0], sKVr[0], sQJ)
    st.s_and_b32(sWI, sC, 1); st.s_lshl_b32(sWI, sWI, 4); st.s_add_u32(sWI, sWI, sJ); st.s_lshl_b32(sWI, sWI, 2); st.s_add_u32(sWI, sWI, sM)
    if not oi("fast0", 1) or E0:
        dcap(st, "l0", "l")
        if not oi("es", 0): st.wait(lgkm=0)
        srds(st, [WQ])
    chunks = []
    for pair in range(2):
        chunks += [("kv", 0), ("kv", 1), ("q", 0), ("wo", 0), ("wo", 1), ("gp", 0), ("gp", 1)] + [("gs", r) for r in range(2, 6)]
        chunks += [("wd", r) for r in range(6)]
    N = len(chunks)
    issued = set()
    SQ = []
    def spf(n):
        for _ in range(min(n, len(SQ))): SQ.pop(0)()
    def squeue(kind):
        if kind[0] == "K":
            i0 = int(kind[2:]) if kind[1:2] == "." else 0
            for i in range(i0, 64):
                def f(i=i):
                    if i == i0:
                        st.s_lshr_b32(s(90), sWI, 4); st.s_mul_i32(s(90), s(90), 3072); st.s_add_u32(s(44), s(46), s(90)); st.s_addc_u32(s(45), s(47), 0)
                        st.s_lshl_b32(s(91), sWI, 7)
                    if i == 32 or (i == i0 and i0 > 32): st.s_add_u32(s(44), s(44), 32 * 24576); st.s_addc_u32(s(45), s(45), 0)
                    st.s_add_u32(s(91), s(91), 128 * oi("krot", 1)); st.s_and_b32(s(91), s(91), 0x780)
                    x = Ins("s_load_dwordx2", [s(86, 2), s(44, 2), s(91)], f"offset:{hex(i % 32 * 24576 + 1024 + 60)}"); x.dst = set(); st.l.append(x)
                SQ.append(f)
            return
        if kind == "ce":
            L = []
            for i in range(12):
                def f(i=i):
                    if i == 0:
                        st.s_lshr_b32(s(90), sWI, 3); st.s_mul_i32(s(91), s(90), 6); st.s_mul_i32(s(90), s(90), 5); st.s_add_u32(s(90), s(90), 6)
                        st.s_min_u32(s(90), s(90), s(91)); st.s_lshl_b32(s(90), s(90), 4); st.s_and_b32(s(91), sWI, 7); st.s_add_u32(s(90), s(90), s(91))
                        st.s_lshl_b32(s(90), s(90), 10); st.s_add_u32(s(100), s(58), s(90)); st.s_addc_u32(s(101), s(59), 0)
                    if i == 10:
                        st.s_cmp_lt_u32(sWI, 48); st.s_cselect_b32(s(90), 0, 16384); st.s_sub_u32(s(100), s(100), s(90)); st.s_subb_u32(s(101), s(101), 0)
                    x = Ins("s_load_dwordx2", [s(86, 2), s(100, 2), hex(i * 8192 + 384 + 60)]); x.dst = set(); st.l.append(x)
                L.append(f)
            SQ[0:0] = L
            return
        if kind[0] == "c":
            base, stride, n, col = dict(q=(46, 3072, 4, [384]), k=(46, 3072, 4, [1408, 2432]), j=(46, 3072, 2, [1408, 2432]), o=(50, 1024, 4, [384]), d=(58, 1024, 11, [384]))[kind[1]]
            L = []
            r = s(92, 2) if kind[1] in "qkj" else s(94, 2)
            for i in range(n):
                for c_ in col:
                    def f(i=i, c_=c_):
                        if i == 0 and c_ == col[0]:
                            st.s_mul_i32(s(90), sWI, stride); st.s_add_u32(s(100), s(base), s(90)); st.s_addc_u32(s(101), s(base + 1), 0)
                        if kind[1] == "d" and i == 10:
                            st.s_min_u32(s(90), sWI, 95); st.s_sub_u32(s(90), sWI, s(90)); st.s_lshl_b32(s(90), s(90), 10)
                            st.s_sub_u32(s(100), s(100), s(90)); st.s_subb_u32(s(101), s(101), 0)
                        if c_ == col[0] and i * 128 * stride >= 1 << 20 and (i - 1) * 128 * stride < 1 << 20: st.s_add_u32(s(100), s(100), 1 << 20); st.s_addc_u32(s(101), s(101), 0)
                        x = Ins("s_load_dwordx2", [s(86, 2), s(100, 2), hex((i * 128 * stride) % (1 << 20) + c_ + 60)]); x.dst = set(); st.l.append(x)
                    L.append(f)
            SQ[0:0] = L
            return
        if kind[0] == "k":
            i0 = 32 if kind == "k2" else int(kind[2:]) if kind[1:2] == "." else 0
            for i in range(i0, 64):
                def f(i=i):
                    if i == i0:
                        st.s_lshr_b32(s(90), sWI, 4); st.s_mul_i32(s(90), s(90), 3072); st.s_and_b32(s(91), sWI, 15); st.s_lshl_b32(s(91), s(91), 7)
                        st.s_add_u32(s(91), s(91), s(90)); st.s_add_u32(s(44), s(46), s(91)); st.s_addc_u32(s(45), s(47), 0)
                    if i == 32 or (i == i0 and i0 > 32): st.s_add_u32(s(44), s(44), 32 * 24576); st.s_addc_u32(s(45), s(45), 0)
                    x = Ins("s_load_dwordx2", [s(86, 2), s(44, 2), hex(i % 32 * 24576 + 1024 + 60)]); x.dst = set(); st.l.append(x)
                SQ.append(f)
            return
        if kind[0] == "q":
            for i in range(32):
                def f(i=i):
                    if i == 0:
                        st.s_lshr_b32(s(90), sWI, 3); st.s_mul_i32(s(90), s(90), 3072); st.s_and_b32(s(91), sWI, 7); st.s_lshl_b32(s(91), s(91), 7)
                        st.s_add_u32(s(91), s(91), s(90)); st.s_add_u32(s(44), s(46), s(91)); st.s_addc_u32(s(45), s(47), 0)
                    if i == 16: st.s_add_u32(s(44), s(44), 16 * 49152); st.s_addc_u32(s(45), s(45), 0)
                    x = Ins("s_load_dwordx2", [s(86, 2), s(44, 2), hex(i % 16 * 49152 + 60)]); x.dst = set(); st.l.append(x)
                SQ.append(f)
            return
        if kind[0] == "h":
            n, o = dict(h0=(16, 0), h1=(27, 32768), h2=(16, 32768), h3=(11, 65536))[kind]
            for i in range(n):
                def f(i=i):
                    if i == 0:
                        st.s_lshl_b32(s(90), sC, 2); st.s_add_u32(s(90), s(90), sM); st.s_mul_i32(s(90), s(90), HB_TB)
                        st.s_mul_i32(s(91), sJ, n * 128); st.s_add_u32(s(90), s(90), s(91)); st.s_add_u32(s(90), s(90), HB + o)
                        st.s_add_u32(s(44), s(4), s(90)); st.s_addc_u32(s(45), s(5), 0)
                    x = Ins("s_load_dwordx2", [s(86, 2), s(44, 2), hex(i * 128 + 60)]); x.dst = set(); st.l.append(x)
                SQ.append(f)
            return
        if kind[0] == "R" and TG:
            st.s_lshl_b32(s(90), sJ, 2); st.s_add_u32(s(90), s(90), sM); st.s_lshl_b32(s(90), s(90), 4); st.s_add_u32(s(90), s(90), sC)
            st.s_mul_i32(s(90), s(90), TG_W); st.s_add_u32(s(90), s(90), KVP + (0 if kind == "R0" else TG_P))
            st.s_add_u32(s(90), s(4), s(90)); st.s_addc_u32(s(91), s(5), 0)
            for i in range(6):
                def f(i=i):
                    x = Ins("s_load_dwordx2", [s(86, 2), s(90, 2), hex(i * 128 + 60)]); x.dst = set(); st.l.append(x)
                SQ.insert(0, f)
            return
        if kind == "R":
            st.s_mul_i32(s(90), sJ, KV_J); st.s_mul_i32(s(91), sC, KV_REC); st.s_add_u32(s(90), s(90), s(91))
            st.s_mul_i32(s(91), sM, 5 * 128); st.s_min_u32(s(91), s(91), 13 * 128); st.s_add_u32(s(90), s(90), s(91)); st.s_add_u32(s(90), s(90), KVP + KV_P)
            st.s_add_u32(s(90), s(4), s(90)); st.s_addc_u32(s(91), s(5), 0)
            for i in range(5):
                def f(i=i):
                    x = Ins("s_load_dwordx2", [s(86, 2), s(90, 2), hex(i * 128 + 60)]); x.dst = set(); st.l.append(x)
                SQ.insert(0, f)
            return
        if kind[0] == "r":
            i0 = 5 if kind == "r1" else 0
            for i in range(i0, 10):
                def f(i=i):
                    if i == i0:
                        st.s_mul_i32(s(90), sJ, KV_J); st.s_mul_i32(s(91), sC, KV_REC); st.s_add_u32(s(90), s(90), s(91))
                        st.s_mul_i32(s(91), sM, 5 * 128); st.s_min_u32(s(91), s(91), 13 * 128); st.s_add_u32(s(90), s(90), s(91)); st.s_add_u32(s(90), s(90), KVP)
                        st.s_add_u32(s(44), s(4), s(90)); st.s_addc_u32(s(45), s(5), 0)
                        st.s_lshl_b32(s(90), sJ, 11); st.s_lshl_b32(s(91), sC, oi("fks", 7)); st.s_add_u32(s(90), s(90), s(91)); st.s_add_u32(s(90), s(90), FKV)
                        st.s_add_u32(s(90), s(4), s(90)); st.s_addc_u32(s(91), s(5), 0)
                    x = Ins("s_load_dwordx2", [s(86, 2), s(44, 2), hex(i % 5 * 128 + i // 5 * KV_P + 60)]); x.dst = set(); st.l.append(x)
                    if i % 5 == 4 and not oi("fkw", 1):
                        x = Ins("s_load_dword", [s(86), s(90, 2), hex(i // 5 * 256 * 128)]); x.dst = set(); st.l.append(x)
                SQ.append(f)
            return
        base, cnt = dict(w=(46, 96), o=(50, 32), d=(58, 86), g=(54, 86), u=(56, 86))[kind[0]]
        if len(kind) > 1: cnt = int(kind[1:])
        for i in range(cnt):
            def f(i=i):
                if i == 0:
                    st.s_lshl_b32(s(91), sWI, 7); st.s_add_u32(s(44), s(base), s(91)); st.s_addc_u32(s(45), s(base + 1), 0)
                if i == 48: st.s_add_u32(s(44), s(44), 48 * 16384); st.s_addc_u32(s(45), s(45), 0)
                x = Ins("s_load_dwordx2", [s(86, 2), s(44, 2), hex(i % 48 * 16384 + 60)]); x.dst = set(); st.l.append(x)
            SQ.append(f)
    PART = [0, 8]
    def dma(n, addr, srd, offs):
        slot = (n % 4) * 32768
        for i, (base, off, lds) in enumerate(offs):
            if not PART[0] <= i < PART[1]: continue
            st.s_add_u32("m0", lds[0], slot + lds[1])
            st.s_add_u32(sT0, base, off)
            st.buffer_load_dwordx4(addr, srd, sT0, mods="offen" + POL(srd) + " lds", tset=f"c{n}" if i == len(offs) - 1 else None)
    def issue(n):
        if n >= N: return
        assert n not in issued
        if PART[1] == 8: issued.add(n)
        kind, a = chunks[n]
        if kind == "kv" and n < 17:
            if a == 1: st.s_xor_b32(sT1, s(89), 4); st.s_and_b32(sT1, sT1, 7); st.s_mul_i32(sKVr[1], sT1, 64 * 3072); st.s_add_u32(sKVr[1], sKVr[1], sQJ)
            dma(n, vKV, WQ, [(sKVr[a], 8 * i * 3072, (sW8, 1024 * i)) for i in range(8)])
        elif kind == "q" and n < 17:
            st.v_add_u32(vT, sKVr[0], vQ); st.v_subrev_u32(vU, 512 * 3072, vT); st.v_min_u32(vQ0, vT, vU)
            dma(n, vQ0, WQ, [("0", 8 * i * 3072, (sW8, 1024 * i)) for i in range(8)])
        elif kind == "kv": dma(n, vKV, WQ, [(sQK, (256 * a + 8 * i) * 3072, (sW8, 1024 * i)) for i in range(8)])
        elif kind == "q": dma(n, vQ, WQ, [(sQK, 8 * i * 3072, (sW8, 1024 * i)) for i in range(8)])
        elif kind == "wo": dma(n, vW, WO_, [(sWOb, (256 * a + 8 * i) * 1024, (sW8, 1024 * i)) for i in range(8)])
        elif kind == "wd" and a < 5: dma(n, vW, WD, [(sWDb[i // 2], (16 * a + 8 * (i % 2)) * 1024, (sW8, 1024 * i)) for i in range(8)])
        elif kind == "wd":
            slot = (n % 4) * 32768
            for e in range(3):
                st.s_mul_i32(sT1, sM, 3); st.s_add_u32(sT1, sT1, e)
                st.s_lshr_b32(sT0, sT1, 1); st.s_mul_i32(sT0, sT0, 96 * 1024); st.s_and_b32(sT2, sT1, 1); st.s_lshl_b32(sT2, sT2, 13)
                st.s_add_u32(sT0, sT0, sT2); st.s_add_u32(sT0, sT0, sWD5)
                st.s_lshl_b32(sT1, sT1, 10); st.s_add_u32("m0", sT1, slot)
                st.buffer_load_dwordx4(vW, WD, sT0, mods="offen" + POL(WD) + " lds", tset=f"c{n}" if e == 2 else None)
        else:
            slot = n % 4; wr = vWR1 if slot >= 2 else vWR0; so = (slot & 1) * 32768
            for t in range(2):
                for k in range(4):
                    g, fr = (4 * a + k, t) if kind == "gp" else (4 * t + k, a)
                    st.ds_write_b128(wr, v(GU + 24 * g + 4 * fr, 4), mods=f"offset:{so + t*16384 + k*1024}", tset=f"c{n}" if (t, k) == (1, 3) else None)
    FREE = [GU + 24 * g + 4 * fr for h in (0, 2) for g in range(8) for fr in (h, h + 1)]
    def stg(n):
        a = chunks[n][1]
        if n < 17:
            return [48, 52, 56] if a == 5 else [16 + 4 * i for i in range(8)]
        o = {3: 0, 4: 8, 2: 16, 5: 24}[a]
        return FREE[o:o + 8]
    def stage(n):
        kind, a = chunks[n]; assert kind == "wd"
        r = stg(n)
        if a < 5:
            for i in range(8):
                st.s_add_u32(sT0, sWDb[i // 2], (16 * a + 8 * (i % 2)) * 1024)
                st.buffer_load_dwordx4(v(r[i], 4), vW, WD, sT0, mods="offen")
        else:
            for e in range(3):
                st.s_mul_i32(sT1, sM, 3); st.s_add_u32(sT1, sT1, e)
                st.s_lshr_b32(sT0, sT1, 1); st.s_mul_i32(sT0, sT0, 96 * 1024); st.s_and_b32(sT2, sT1, 1); st.s_lshl_b32(sT2, sT2, 13)
                st.s_add_u32(sT0, sT0, sT2); st.s_add_u32(sT0, sT0, sWD5)
                st.buffer_load_dwordx4(v(r[e], 4), vW, WD, sT0, mods="offen")
    def unstage(n):
        kind, a = chunks[n]; r = stg(n); slot = (n % 4) * 32768
        assert n not in issued; issued.add(n)
        if a < 5: st.s_add_u32(sT0, sW8, slot)
        else: st.s_mul_i32(sT0, sM, 3072); st.s_add_u32(sT0, sT0, slot)
        st.v_add_u32(vT, sT0, vL16)
        for i in range(8 if a < 5 else 3): st.ds_write_b128(vT, v(r[i], 4), mods=f"offset:{1024*i}")
    def prologue():
        F0 = oi("fast0", 1)
        if F0:
            if E0:
                srds(st, [WS, WP, WO_, WG, WU, WD, OUT])
                run(E0.split(","), 0)
        else:
            issue(0)
            if oi("kv1first", 1): issue(1)
        if not oi("cfirst", 1):
            st.mark("save", "ld1"); st.s_branch(".Lloader")
            st.label(".Lcomp"); st.mark("reset")
            compute(st)
            st.label(".Lloader"); st.mark("restore", "ld1")
        if not F0 and not oi("kv1first", 1): issue(1)
        def late():
            if not (F0 and E0):
                st.wait(lgkm=0)
                srds(st, [WQ, WS, WP, WO_, WG, WU, WD])
            stamp_base(st)
            if not OPT.get("dcap"): stamp(st, "start", who="l", pair=0)
        if not F0 or E0: late()
        st.s_lshl_b32(sWOb, sM, 16); st.s_lshl_b32(sT0, sCG, 7); st.s_add_u32(sWOb, sWOb, sT0)
        for e in range(4):
            st.s_lshl_b32(sT1, sM, 2); st.s_add_u32(sT1, sT1, e)
            st.s_mul_i32(sT2, sT1, 6); st.s_mul_i32(sT3, sT1, 5); st.s_add_u32(sT3, sT3, 6); st.s_min_u32(sT2, sT2, sT3)
            st.s_lshl_b32(sT2, sT2, 14); st.s_add_u32(sWDb[e], sT2, sT0)
        st.s_add_u32(sWD5, sT0, 80 * 1024)
        st.s_mul_i32(sT2, sJ, 6); st.s_mul_i32(sT3, sJ, 5); st.s_add_u32(sT3, sT3, 6); st.s_min_u32(sT2, sT2, sT3)
        st.s_lshl_b32(sT2, sT2, 5); st.s_mul_i32(sGU, sM, 64 * 2752); st.s_add_u32(sGU, sGU, sT2)
        st.s_cmp_eq_u32(sT6, 1); st.s_cselect_b32(sT1, 12, 10)
        st.s_lshl_b32(sT2, sM, 12); st.s_add_u32(sT2, sT2, 32768)
        for i in range(3):
            st.v_add_u32(vT, 64 * i, vL); st.v_mul_u32_u24(vU, 5462, vT); st.v_lshrrev_b32(vU, 16, vU)
            st.v_mul_u32_u24(vV, 12, vU); st.v_sub_u32(vT, vT, vV)
            st.v_mul_u32_u24(vGG[i], 2752, vU); st.v_lshl_add_u32(vGG[i], vT, 4, vGG[i])
            st.v_cmp_gt_u32("vcc", sT1, vT); st.v_mov_b32(vV, 0x80000000); st.v_cndmask_b32(vGG[i], vV, vGG[i], "vcc")
            st.v_and_b32(vV, 7, vU); st.v_mul_u32_u24(vGL[i], GSTR, vV); st.v_lshrrev_b32(vV, 3, vU); st.v_lshl_add_u32(vGL[i], vV, 14, vGL[i])
            st.v_lshrrev_b32(vV, 1, vT); st.v_lshl_add_u32(vGL[i], vV, 6, vGL[i])
            st.v_and_b32(vV, 1, vT); st.v_lshl_add_u32(vGL[i], vV, 4, vGL[i]); st.v_add_u32(vGL[i], sT2, vGL[i])
        lane_tr(st, vGT, None, "nat", stride=GSTR, hstride=16384); st.v_add_u32(vGT, sT2, vGT)
        lane_tr(st, vC0, vC1, "qkv")
        st.s_lshl_b32(sT0, sM, 12); st.v_add_u32(vWR0, sT0, vL16); st.v_add_u32(vWR1, 65536, vWR0)
        st.v_bfe_u32(vT, vL, 4, 1); st.v_and_b32(vU, 1, vL); st.v_cmp_eq_u32("vcc", vT, vU)
        st.v_mov_b32(vV, 0x3f803f80)
        for i in range(4): st.v_cndmask_b32(v(SEL + i), 0, vV, "vcc")
        st.v_lshlrev_b32(vCW, 6, vT); st.v_lshl_add_u32(vCW, vU, 5, vCW); st.v_lshrrev_b32(vT, 5, vL); st.v_lshl_add_u32(vCW, vT, 4, vCW)
        if F0 and not E0: late()
    def publish():
        L = newlab("pub")
        st.v_add_u32(vNON, sXC, vNON); st.v_add_u32(vNON, 16, vNON)
        st.s_lshl_b32(sT0, sC, 7); st.s_lshl_b32(sT1, sJ, 2); st.s_add_u32(sT0, sT0, sT1); st.s_add_u32(sT0, sT0, XCCT)
        st.s_cmp_lg_u32(sM, 0); st.mark("save", L); st.s_cbranch_scc1(L)
        st.buffer_store_dword(vNON, "off", WS, sT0, mods="sc1")
        st.mark("merge", L); st.label(L)
    dn = [0]
    def dum():
        dn[0] += 1
        return vDUM[dn[0] % 4]
    def tload(addr, srd, soff):
        i = Ins("buffer_load_dword", [dum(), addr, srd, str(soff)], "offen" + POL(srd)); i.dst = set(); st.l.append(i)
    def touch(kind):
        if kind == "wd":
            st.s_mul_i32(sT0, sWI, 86 * 128); st.v_lshlrev_b32(vT, 7, vL); tload(vT, WD, sT0)
            st.v_min_u32(vU, 21, vL); st.v_lshlrev_b32(vU, 7, vU); st.s_add_u32(sT0, sT0, 8192); tload(vU, WD, sT0)
        elif kind[:2] == "wf":
            n = int(kind[2:]); assert n <= 64
            st.s_mul_i32(sT0, sWI, n * 128); st.v_min_u32(vT, n - 1, vL); st.v_lshlrev_b32(vT, 7, vT); tload(vT, WD, sT0)
        elif kind[:2] == "wd":
            n = int(kind[2:]); c = 86 - n; assert c <= 64
            st.s_mul_i32(sT0, sWI, c * 128); st.s_add_u32(sT0, sT0, n * 16384); st.v_min_u32(vT, c - 1, vL); st.v_lshlrev_b32(vT, 7, vT); tload(vT, WD, sT0)
        elif kind == "out":
            st.s_lshl_b32(sT0, sC, 4); st.s_add_u32(sT0, sT0, sJ); st.s_lshl_b32(sT0, sT0, 2); st.s_add_u32(sT0, sT0, sM); st.s_lshl_b32(sT0, sT0, 11)
            st.v_lshlrev_b32(vT, 5, vFL); tload(vT, OUT, sT0)
        elif kind in ("g", "u"):
            D = WG if kind == "g" else WU
            st.s_mul_i32(sT0, sWI, 86 * 128); st.v_lshlrev_b32(vT, 7, vL); tload(vT, D, sT0)
            st.v_min_u32(vU, 21, vL); st.v_lshlrev_b32(vU, 7, vU); st.s_add_u32(sT0, sT0, 8192); tload(vU, D, sT0)
        elif kind in ("ga", "gb"):
            st.s_mul_i32(sT0, sWI, 43 * 128); st.v_min_u32(vT, 42, vL); st.v_lshlrev_b32(vT, 7, vT)
            if kind == "gb": st.s_add_u32(sT0, sT0, 256 * 2752)
            tload(vT, WG, sT0); tload(vT, WU, sT0)
        elif kind in ("kv0", "kv1"):
            st.v_bfe_u32(vT, vL, 4, 1); st.v_mul_u32_u24(vT, 3072, vT); st.v_lshl_add_u32(vT, vFL, 5, vT)
            st.s_mul_i32(sT0, sWI, 2 * 3072); st.s_add_u32(sT0, sT0, 1024 + 256 * 3072 * int(kind[2])); tload(vT, WQ, sT0)
        elif kind == "kv":
            st.v_lshrrev_b32(vT, 4, vL); st.v_mul_u32_u24(vT, 3072, vT); st.v_lshl_add_u32(vT, vFL, 5, vT)
            st.s_mul_i32(sT0, sWI, 4 * 3072); st.s_add_u32(sT0, sT0, 1024); tload(vT, WQ, sT0)
        elif kind == "q":
            st.v_bfe_u32(vT, vL, 3, 2); st.v_mul_u32_u24(vT, 3072, vT); st.v_and_b32(vU, 7, vL); st.v_lshl_add_u32(vT, vU, 7, vT)
            st.s_mul_i32(sT0, sWI, 4 * 3072); tload(vT, WQ, sT0)
        elif kind == "wo":
            st.v_and_b32(vT, 31, vL); st.v_lshlrev_b32(vT, 7, vT); st.s_lshl_b32(sT0, sWI, 12); tload(vT, WO_, sT0)
        elif kind == "h":
            st.s_lshl_b32(sT0, sC, 4); st.s_add_u32(sT0, sT0, sJ); st.s_lshl_b32(sT0, sT0, 2); st.s_add_u32(sT0, sT0, sM)
            st.s_mul_i32(sT0, sT0, 43 * 128); st.s_add_u32(sT0, sT0, HB)
            st.v_min_u32(vT, 42, vL); st.v_lshlrev_b32(vT, 7, vT); tload(vT, WS, sT0)
        elif kind in ("h0", "h1", "h2", "h3"):
            n, o = dict(h0=(16, 0), h1=(27, 32768), h2=(16, 32768), h3=(11, 65536))[kind]
            st.s_lshl_b32(sT0, sC, 2); st.s_add_u32(sT0, sT0, sM); st.s_mul_i32(sT0, sT0, HB_TB)
            st.s_mul_i32(sT1, sJ, n * 128); st.s_add_u32(sT0, sT0, sT1); st.s_add_u32(sT0, sT0, HB + o)
            st.v_min_u32(vT, n - 1, vL); st.v_lshlrev_b32(vT, 7, vT); tload(vT, WS, sT0)
        elif kind == "hs":
            st.s_lshl_b32(sT0, sC, 2); st.s_mul_i32(sT0, sT0, HB_TB); st.s_add_u32(sT0, sT0, HB)
            st.s_lshl_b32(sT1, sJ, 2); st.s_add_u32(sT1, sT1, sM); st.s_lshl_b32(sT1, sT1, 1)
            st.v_and_b32(vT, 1, vL); st.v_add_u32(vT, sT1, vT); st.v_min_u32(vT, 4 * HB_TB // 4096 - 1, vT); st.v_lshlrev_b32(vT, 12, vT); tload(vT, WS, sT0)
        elif kind == "x" and XO:
            st.s_lshl_b32(sT0, sC, 4); st.s_add_u32(sT0, sT0, sJ); st.s_lshl_b32(sT0, sT0, 2); st.s_add_u32(sT0, sT0, sM)
            st.s_lshl_b32(sT1, sT0, 11); st.v_lshlrev_b32(vT, 5, vFL); tload(vT, OUT, sT1)
            st.s_lshl_b32(sT2, sT0, 8); st.s_add_u32(sT2, sT2, ST)
            st.s_lshl_b32(sT3, sC, 2); st.s_add_u32(sT3, sT3, sM); st.s_lshl_b32(sT3, sT3, 10); st.s_add_u32(sT3, sT3, FL - 2 * 128)
            st.v_mov_b32(vU, sT2); st.v_mov_b32(vV, sT3); st.v_cmp_le_u32("vcc", 2, vL); st.v_cndmask_b32(vU, vU, vV, "vcc")
            st.v_min_u32(vT, 6, vL); st.v_lshl_add_u32(vT, vT, 7, vU); tload(vT, WS, 0)
        elif kind == "x":
            st.s_lshl_b32(sT0, sC, 4); st.s_add_u32(sT0, sT0, sJ); st.s_lshl_b32(sT0, sT0, 2); st.s_add_u32(sT0, sT0, sM)
            st.s_lshl_b32(sT1, sT0, 11); st.s_add_u32(sT1, sT1, XB)
            st.s_lshl_b32(sT2, sT0, 8); st.s_add_u32(sT2, sT2, ST - 16 * 128)
            st.s_lshl_b32(sT3, sC, 2); st.s_add_u32(sT3, sT3, sM); st.s_lshl_b32(sT3, sT3, 10); st.s_add_u32(sT3, sT3, FL - 18 * 128)
            st.v_mov_b32(vU, sT1); st.v_mov_b32(vV, sT2); st.v_cmp_le_u32("vcc", 16, vL); st.v_cndmask_b32(vU, vU, vV, "vcc")
            st.v_mov_b32(vV, sT3); st.v_cmp_le_u32("vcc", 18, vL); st.v_cndmask_b32(vU, vU, vV, "vcc")
            st.v_min_u32(vT, 22, vL); st.v_lshl_add_u32(vT, vT, 7, vU); tload(vT, WS, 0)
        elif kind == "r1":
            st.s_mul_i32(sT0, sJ, KV_J); st.s_mul_i32(sT1, sC, KV_REC); st.s_add_u32(sT0, sT0, sT1)
            st.s_mul_i32(sT1, sM, 640); st.s_min_u32(sT1, sT1, 13 * 128); st.s_add_u32(sT0, sT0, sT1); st.s_add_u32(sT0, sT0, KVP + KV_P)
            st.v_min_u32(vT, 4, vL); st.v_lshlrev_b32(vT, 7, vT); tload(vT, WS, sT0)
        elif kind == "f":
            st.s_lshl_b32(sT3, sC, 2); st.s_add_u32(sT3, sT3, sM); st.s_lshl_b32(sT3, sT3, 10); st.s_add_u32(sT3, sT3, FL)
            st.v_min_u32(vT, 4, vL); st.v_lshlrev_b32(vT, 7, vT); tload(vT, WS, sT3)
        elif kind == "cs":
            st.s_getpc_b64(s(100, 2))
            L = newlab("pc")
            st.label(L)
            st.raw(f"    s_sub_u32 s100, s100, {L}-{NAME}_kernel")
            st.raw("    s_subb_u32 s101, s101, 0")
            st.v_and_b32(vT, 3, vL); st.v_lshlrev_b32(vT, 14, vT); st.s_lshl_b32(sT0, sWI, 7); st.v_add_u32(vT, sT0, vT)
            st.v_min_u32(vT, f".Lslow-{NAME}_kernel", vT)
            i = Ins("global_load_dword", [dum(), vT, s(100, 2)]); i.dst = set(); st.l.append(i)
        elif kind == "code":
            st.s_getpc_b64(s(100, 2))
            L = newlab("pc")
            st.label(L)
            st.raw(f"    s_sub_u32 s100, s100, {L}-{NAME}_kernel")
            st.raw("    s_subb_u32 s101, s101, 0")
            st.v_lshlrev_b32(vT, 7, vL); st.s_lshl_b32(sT0, sM, 13); st.v_add_u32(vT, sT0, vT)
            i = Ins("global_load_dword", [dum(), vT, s(100, 2)]); i.dst = set(); st.l.append(i)
            st.v_add_u32(vU, 32768, vT); st.v_min_u32(vU, f".Lslow-{NAME}_kernel", vU)
            i = Ins("global_load_dword", [dum(), vU, s(100, 2)]); i.dst = set(); st.l.append(i)
    def claim(kind):
        sm = os_("sm", "")
        def sel(lo, r):
            st.v_mov_b32(vV, r); st.v_cmp_le_u32("vcc", lo, vL); st.v_cndmask_b32(vU, vU, vV, "vcc")
        if kind in ("ox", "x"):
            st.s_lshl_b32(sT0, sC, 2); st.s_add_u32(sT1, sT0, sM); st.s_mul_i32(sT1, sT1, HB_TB); st.s_lshl_b32(sT2, sJ, 11)
            st.s_add_u32(sT1, sT1, sT2); st.s_add_u32(sT1, sT1, HB); st.v_mov_b32(vU, sT1)
            st.s_lshl_b32(sT1, sHF, 1); st.s_add_u32(sT0, sT0, sT1); st.s_lshr_b32(sT1, sM, 1); st.s_add_u32(sT0, sT0, sT1)
            st.s_lshl_b32(sT1, sCG, 1); st.s_and_b32(sT2, sM, 1); st.s_add_u32(sT1, sT1, sT2)
            st.s_lshl_b32(sT2, sT0, 15); st.s_lshl_b32(sT3, sT1, 11); st.s_add_u32(sT2, sT2, sT3); st.s_add_u32(sT2, sT2, XB - 16 * 128)
            sel(16 if kind == "ox" else 0, sT2)
            st.s_lshl_b32(sT2, sT0, 12); st.s_lshl_b32(sT3, sT1, 8); st.s_add_u32(sT2, sT2, sT3); st.s_add_u32(sT2, sT2, ST - 32 * 128)
            sel(32, sT2)
            st.v_min_u32(vT, 33, vL)
            if kind == "x": st.v_max_u32(vT, 16, vT)
            st.v_lshl_add_u32(vT, vT, 7, vU)
        elif kind == "h":
            st.s_lshl_b32(sT0, sC, 2); st.s_add_u32(sT1, sT0, sM); st.s_mul_i32(sT1, sT1, HB_TB); st.s_lshl_b32(sT2, sJ, 10)
            st.s_add_u32(sT1, sT1, sT2); st.s_add_u32(sT1, sT1, HB + 32768)
            st.s_add_u32(sT2, sT6, 2); st.v_lshrrev_b32(vT, 3, vL); st.v_min_u32(vT, sT2, vT); st.v_lshlrev_b32(vT, 14, vT)
            st.v_and_b32(vU, 7, vL); st.v_lshl_add_u32(vT, vU, 7, vT); st.v_add_u32(vT, sT1, vT)
        elif kind == "r":
            sm = "sc1"
            st.s_mul_i32(sT0, sJ, KV_J); st.s_mul_i32(sT1, sC, KV_REC); st.s_add_u32(sT0, sT0, sT1)
            st.s_mul_i32(sT1, sM, 5 * 128); st.s_min_u32(sT1, sT1, 13 * 128); st.s_add_u32(sT0, sT0, sT1); st.s_add_u32(sT0, sT0, KVP)
            st.v_mov_b32(vU, sT0); st.s_add_u32(sT0, sT0, KV_P - 5 * 128); sel(5, sT0)
            assert oi("fks", 7) == 7
            st.s_lshl_b32(sT0, sJ, 11); st.s_lshl_b32(sT1, sC, 7); st.s_add_u32(sT0, sT0, sT1); st.s_add_u32(sT0, sT0, FKV + 32 - 10 * 128)
            sel(10, sT0); st.s_add_u32(sT0, sT0, 256 * 128 - 128); sel(11, sT0)
            st.v_min_u32(vT, 11, vL); st.v_lshl_add_u32(vT, vT, 7, vU)
        st.buffer_store_dword(vL, vT, WS, 0, mods="offen " + sm, tset="w" + kind)
    def fillw(kind):
        sm = os_("fm", "sc1").replace("+", " ").replace("-", "")
        D = v(8, 4)
        if SPEC:
            D = v(52, 4)
            for i in range(4): st.v_mov_b32(v(52 + i), -1)
        def w(addr, soff, off=0, tag=None): st.buffer_store_dwordx4(D, addr, WS, soff, mods=f"offen offset:{off} {sm}", tset=tag)
        if kind == "o":
            st.s_lshl_b32(sT0, sC, 2); st.s_add_u32(sT1, sT0, sM); st.s_mul_i32(sT1, sT1, HB_TB); st.s_lshl_b32(sT2, sJ, 11)
            st.s_add_u32(sT1, sT1, sT2); st.s_add_u32(sT1, sT1, HB); w(vL16, sT1); w(vL16, sT1, 1024, "wo")
        elif kind == "o1":
            st.s_lshl_b32(sT0, sC, 2); st.s_add_u32(sT1, sT0, sM); st.s_lshl_b32(sT1, sT1, 15); st.s_lshl_b32(sT2, sJ, 11)
            st.s_add_u32(sT1, sT1, sT2); st.s_add_u32(sT1, sT1, OB1); w(vL16, sT1); w(vL16, sT1, 1024, "wo1")
        elif kind[0] == "x":
            d = {"x": 0, "x1": X_A, "x2": X_A + X_B}[kind]
            st.s_lshl_b32(sT0, sC, 2)
            st.s_lshl_b32(sT1, sHF, 1); st.s_add_u32(sT0, sT0, sT1); st.s_lshr_b32(sT1, sM, 1); st.s_add_u32(sT0, sT0, sT1)
            st.s_lshl_b32(sT1, sCG, 1); st.s_and_b32(sT2, sM, 1); st.s_add_u32(sT1, sT1, sT2)
            st.s_lshl_b32(sT2, sT0, 15); st.s_lshl_b32(sT3, sT1, 11); st.s_add_u32(sT2, sT2, sT3); st.s_add_u32(sT2, sT2, XB + d)
            w(vL16, sT2); w(vL16, sT2, 1024)
            st.s_lshl_b32(sT2, sT0, 12); st.s_lshl_b32(sT3, sT1, 8); st.s_add_u32(sT2, sT2, sT3); st.s_add_u32(sT2, sT2, ST + d)
            st.v_and_b32(vT, 240, vL16); w(vT, sT2, 0, "w" + kind)
        elif kind == "h":
            st.s_lshl_b32(sT0, sC, 2); st.s_add_u32(sT1, sT0, sM); st.s_mul_i32(sT1, sT1, HB_TB); st.s_lshl_b32(sT2, sJ, 10)
            st.s_add_u32(sT1, sT1, sT2); st.s_add_u32(sT1, sT1, HB + 32768)
            for r in range(2): w(vL16, sT1); st.s_add_u32(sT1, sT1, 16384)
            w(vL16, sT1); st.s_lshl_b32(sT2, sT6, 14); st.s_add_u32(sT1, sT1, sT2); w(vL16, sT1, 0, "wh")
        elif kind in ("r", "r1"):
            st.s_mul_i32(sT0, sJ, KV_J); st.s_mul_i32(sT1, sC, KV_REC); st.s_add_u32(sT0, sT0, sT1)
            st.s_mul_i32(sT1, sM, 640); st.s_min_u32(sT1, sT1, 13 * 128); st.s_add_u32(sT0, sT0, sT1); st.s_add_u32(sT0, sT0, KVP)
            st.v_min_u32(vT, 39 * 16, vL16)
            if kind == "r": w(vT, sT0)
            st.s_add_u32(sT0, sT0, KV_P); w(vT, sT0, 0, "wr")
    gl = []
    for g in range(8):
        k0 = (16 * (g // 4) + (g % 4)) * 16
        for m_, srd in enumerate((WG, WU)):
            for i in range(3):
                def f(g=g, k0=k0, m_=m_, srd=srd, i=i):
                    if i == 0: st.s_add_u32(sLD, sGU, k0 * 2752)
                    st.buffer_load_dwordx4(v(GU + 24 * g + 12 * m_ + 4 * i, 4), vGG[i], srd, sLD, mods="offen" + POL(srd))
                gl.append(f)
    def gu_loads(cnt):
        for _ in range(min(cnt, len(gl))):
            f = gl.pop(0)
            if not OPT.get("noG"): f()
    def colsum(n, steps, first, lo, hi, dst=None):
        L = newlab("cs")
        st.s_sub_u32(sT0, sM, lo); st.s_cmp_ge_u32(sT0, hi - lo); st.mark("save", L); st.s_cbranch_scc1(L)
        nf = len(FRS)
        def rd(k):
            a, off = steps[k]; r = FRS[k % nf]
            st.ds_read_b64_tr_b16(v(r, 2), a, mods=f"offset:{off}"); st.ds_read_b64_tr_b16(v(r + 2, 2), a, mods=f"offset:{off+512}")
        for k in range(nf - 1): rd(k)
        for k in range(len(steps)):
            acc = v(CACC + 4 * (k & 1), 4)
            st.v_mfma_f32_16x16x32_bf16(acc, v(FRS[k % nf], 4), v(SEL, 4), "0" if first and k < 2 else acc)
            if k + nf - 1 < len(steps): rd(k + nf - 1)
        if dst is not None:
            for i in range(4): st.v_add_f32(v(CACC + i), v(CACC + i), v(CACC + 4 + i))
            st.ds_write_b128(dst, v(CACC, 4))
        st.mark("merge", L); st.label(L)
    def transpose(g):
        b = GU + 24 * g
        for m_ in range(2):
            for i in range(3): st.ds_write_b128(vGL[i], v(b + 12 * m_ + 4 * i, 4), mods=f"offset:{32*m_}")
        for t in range(6):
            for u in range(2): st.ds_read_b64_tr_b16(v(b + 4 * t + 2 * u, 2), vGT, mods=f"offset:{u*4*GSTR + t*64}")
    def tsum(g):
        b = GU + 24 * g
        for t in range(6):
            st.v_mfma_f32_16x16x32_bf16(v(CACC + 4 * t, 4), v(b + 4 * t, 4), v(SEL, 4), "0" if g == 0 else v(CACC + 4 * t, 4))
    tr_next = [0]
    def transposes(cnt):
        gs = list(range(tr_next[0], min(8, tr_next[0] + cnt))); tr_next[0] += len(gs)
        for i, g in enumerate(gs):
            transpose(g)
            if i > 0: tsum(gs[i - 1])
        tsum(gs[-1])
    def gu_partial():
        st.s_mul_i32(sT0, sM, 768); st.s_add_u32(sT0, sT0, L_VB); st.v_add_u32(vT, sT0, vCW)
        for i in range(6): st.ds_write_b128(vT, v(CACC + 4 * i, 4), mods=f"offset:{128*i}")
    def gu_reduce():
        st.v_min_u32(vCR, 6 * 128 - 16, vL16)
        st.v_add_u32(vT, L_VB, vCR)
        for w in range(4): st.ds_read_b128(v(CACC + 4 * w, 4), vT, mods=f"offset:{w*768}")
        for i in range(4):
            st.v_add_f32(v(CACC + i), v(CACC + i), v(CACC + 4 + i)); st.v_add_f32(v(CACC + 8 + i), v(CACC + 8 + i), v(CACC + 12 + i))
        for i in range(4): st.v_add_f32(v(CACC + i), v(CACC + i), v(CACC + 8 + i))
        for i in range(4):
            st.v_and_b32(v(CACC + 4 + i), 0xffff0000, v(CACC + i)); st.v_sub_f32(v(CACC + i), v(CACC + i), v(CACC + 4 + i))
            st.v_cvt_pk_bf16_f32(v(CACC + i), v(CACC + 4 + i), v(CACC + i))
        st.v_and_b32(vT, 0x380, vCR); st.v_and_b32(vU, 0x30, vCR); st.v_lshl_add_u32(vT, vU, 1, vT)
        st.v_bfe_u32(vU, vCR, 6, 1); st.v_lshl_add_u32(vT, vU, 4, vT); st.v_add_u32(vT, L_CS + 384, vT)
        st.ds_write_b128(vT, v(CACC, 4))
    def cs_kv(a):
        if a == 0:
            st.s_lshl_b32(sT0, sM, 6); st.v_xor_b32(vCR, sT0, vC0)
        else:
            st.s_lshl_b32(sT0, sM, 7); st.s_add_u32(sT0, sT0, L_CS); st.v_add_u32(vV, sT0, vCW)
        colsum(a, [(vCR, 32768 * a + 2048 * k) for k in range(16)], a == 0, 0, 2, dst=vV if a == 1 else None)
    def cs_q():
        st.v_add_u32(vT, 65536, vC0); st.v_add_u32(vU, 65536, vC1); st.v_add_u32(vV, L_CS + 256, vCW)
        colsum(2, [(a, 2048 * k) for k in range(16) for a in (vT, vU)], True, 2, 3, dst=vV)

    need = {"a0": [0], "a1": [1], "g": [3, 4], "30": [5, 6, 7, 8], "3c": [9], "3d": [10], "3f": [11], "4a": [12], "4b": [13], "4c": [14], "4d": [15], "4e": [16]}
    S0 = os_("s0", "start:c1,Qcq,S4;a0:c2,csk0,Qco,S4;a1:csk1,wst,sigA,pub,G8,sigq,G16,wsig,X2,G12,X2,G12,X2,c3,c4,X2,Th0,Tx;g:part,c5,c6,Qk,S21;p2:Th1,S7;X2:c7,c8;")
    S0 += os_("s0b", "30:red,wst;3a:c9,Twd,nd;3b:c10,nd;3c:r15,r16;3d:c11,c12;3f:c13,S4;3g:c14,S4;4a:S7;4b:u15,S7;4c:u16,S7;4d:S7;4e:c17;X4:c18,Qco,Qcq,S8")
    S1 = os_("s1", "a2:c2,sig,c3,c4;g:c5,c6;p2:Twf32;X2:c7,c8;")
    S1 += os_("s1b", "3a:c9,Twd32,nd;3b:c10,nd;3c:c11,r15,r16;3d:c12;3f:c13;3g:c14;4b:u15;4c:u16")
    def acts(txt):
        d = {}
        for part in txt.split(";"):
            k, _, l = part.partition(":"); d[k] = l.split(",")
        return d
    DR = [False]
    def run(lst, o):
        for a in lst:
            DR[0] = False
            if a == "q": issue(2)
            elif a == "pub": publish()
            elif a == "wld": st.s_lshl_b32(sT0, sJ, 10); st.buffer_load_dwordx4(v(WRAW, 4), vL16, WP, sT0, mods="offen")
            elif a == "wst":
                st.v_bfe_u32(vT, vL, 3, 2); st.v_mul_u32_u24(vT, 576, vT); st.v_lshrrev_b32(vU, 5, vL); st.v_lshl_add_u32(vT, vU, 7, vT)
                st.v_and_b32(vU, 112, vL16); st.v_add_u32(vT, vT, vU); st.v_add_u32(vT, L_KVB, vT)
                st.ds_write_b128(vT, v(WRAW, 4))
            elif a == "non": st.buffer_load_dword(vNON, "off", WS, 0, mods=f"offset:{EPOCH} sc1")
            elif a == "sig":
                st.l.append(Ins("s_nop", ["0"], tneed=f"c{o+2}")); signal(st, 1 + o // 17)
            elif a == "sigA": signal(st, 1, 16)
            elif a == "sigq":
                L = newlab("sq")
                st.l.append(Ins("s_nop", ["0"], tneed=f"c{o+2}")); signal(st, 1, 32)
                st.s_cmp_lg_u32(sM, 2); st.mark("save", L); st.s_cbranch_scc1(L)
                st.v_mov_b32(vU, 1); sigwait(st, 12, 48, regs=(13, 14, 15))
                st.mark("merge", L); st.label(L)
                cs_q(); signal(st, 1)
            elif a == "wsg": st.v_mov_b32(vU, 1); sigwait(st, 12, 64, regs=(13, 14, 15))
            elif a == "wsk": st.v_mov_b32(vU, 1 + o // 17); sigwait(st, 12, 64, regs=(13, 14, 15))
            elif a == "sigo":
                st.l.append(Ins("s_nop", ["0"], tneed=[f"c{o+3}", f"c{o+4}"])); signal(st, 1 + o // 17, 64)
            elif a == "wsp": st.v_mov_b32(vU, 1 + o // 17); sigwait(st, 12, 96, regs=(13, 14, 15))
            elif a == "wsx": st.v_mov_b32(vU, 1); sigwait(st, 12, 80, regs=(13, 14, 15))
            elif a == "wsig": st.v_mov_b32(vU, 2); sigwait(st, 12, 32, regs=(13, 14, 15))
            elif a.startswith("csk"): cs_kv(int(a[3]))
            elif a == "csq": cs_q()
            elif a == "part": gu_partial()
            elif a == "red": gu_reduce()
            elif a[0] == "P": st.s_setprio(int(a[1:]))
            elif a == "nd": DR[0] = True
            elif a == "QC": SQ.clear()
            elif a == "wl": st.wait(lgkm=0)
            elif a[0] == "D" and a != "DF": dcap(st, a, "l")
            elif a == "DF": dflush(st, "l")
            elif a[:2] == "WB":
                L = newlab("wb")
                if a == "WB": st.s_or_b32(sT0, sJ, sM)
                else: st.s_mov_b32(sT0, sM)
                st.s_cmp_lg_u32(sT0, 0); st.mark("save", L); st.s_cbranch_scc1(L)
                st.raw("    buffer_wbl2 " + os_("wbm", "sc1").replace("+", " "))
                st.mark("merge", L); st.label(L)
            elif a == "wv": st.wait(vm=0)
            elif a[0] == "Q": squeue(a[1:])
            elif a[0] == "S":
                if LDSW(st): st.wait(lgkm=0)
                DR[0] = True; spf(int(a[1:]))
            elif a[0] == "c" and "-" in a:
                n_, PART[0], PART[1] = [int(x) for x in a[1:].split("-")]
                issue(o + n_); PART[:] = [0, 8]
            elif a[0] == "c": issue(o + int(a[1:]))
            elif a[0] == "r" and a[1:].isdigit(): stage(o + int(a[1:]))
            elif a[0] == "u" and a[1:].isdigit(): unstage(o + int(a[1:]))
            elif a[0] == "@": stamp(st, a, who="l", pair=o // 17)
            elif a[0] == "G": gu_loads(int(a[1:]))
            elif a[0] == "X": transposes(int(a[1:]))
            elif a[0] == "T": touch(a[1:])
            elif a[0] == "W": claim(a[1:])
            elif a[0] == "F": fillw(a[1:])
            elif a[0] == "N": st.l.append(Ins("s_nop", ["0"], tneed="w" + a[1:]))
            else: raise ValueError(a)
    prologue()
    for pair in range(1 if OPT['stop'] else 2):
        o = 17 * pair; A = acts(S0 if pair == 0 else S1)
        run(A.get("start", []), o)
        for b in (SEQ0 if pair == 0 else SEQA) + SEQC:
            tk = []
            for n in need.get(b, []):
                if o + n == 0 and oi("xd", 0): continue
                assert o + n in issued, (pair, b, n)
                tk.append(f"c{o+n}")
            if not (OPT.get("dcap") and b == "a0" and pair == 0): stamp(st, "<" + b, who="l", pair=pair)
            if not DR[0] and LDSW(st): st.wait(lgkm=0)
            DR[0] = False
            st.l.append(Ins("s_barrier", [], tneed=tk))
            run(A.get(b, []), o)
    assert OPT['stop'] or (not gl and tr_next[0] == 8)
    st.s_branch(".Lend")

def main():
    st = Stream()
    entry(st)
    loader(st)
    st.label(".Lslow")
    compute_slow(st)
    st.extend(OOL)
    st.label(".Lend")
    st.s_endpgm()
    bodyt = finalize(st)
    ref = open(f"cdna_kernels/{NAME}.s.ref").read().split("\n")
    head = [l for l in ref if l.startswith(";") and "@launch" not in l]
    out = "\n".join(head) + f"\n; @launch grid=(256,1,1) block=(512,1,1) lds={LDS_BYTES}\n"
    out += '.amdgcn_target "amdgcn-amd-amdhsa--gfx950"\n' + khead(NAME + "_kernel") + bodyt + kd(NAME + "_kernel")
    path = sys.argv[1] if len(sys.argv) > 1 else f"cdna_kernels/{NAME}.s"
    open(path, "w").write(out)
    stamp_names["opt"] = " ".join(a for a in sys.argv[2:] if not a.startswith(("stamps", "only"))); json.dump(stamp_names, open(path + ".json", "w"))
    n = sum(1 for l in bodyt.split("\n") if l.startswith("    ") and not l.strip().startswith(";"))
    print("wrote", path, "instructions:", n, "barriers:", SEQ0, SEQA, SEQC)

main()
```

```python
import sys, os, math, struct, json
sys.path.insert(0, os.path.dirname(os.path.abspath(__file__)))
from asmlib import *
from layout5 import *

NAME = "interleave_layers__linear_kernel_hedgehog__geglu_ffn__prompt"
OPT = dict(stop=None, stamps=False)
for a in sys.argv[2:]:
    k, _, val = a.partition("=")
    OPT[k] = val if val != "" else True
def oi(k, d): return int(OPT.get(k, d))
def os_(k, d): return str(OPT.get(k, d))
TG = oi("tg", 1)
TGM = 0xbfffbfff
SPEC = oi("spec", 0)
E0 = os_("e0", "Qk,Qcj,S21,QC,c0,non,wld")
SCL = "sc1"
def f2u(x): return "0x%08x" % struct.unpack("<I", struct.pack("<f", x))[0]
LOG2E = 1.4426950408889634
DG = oi("dg", 0)
class G: SC = ""; TAG = "f"; SEQ = None; REC = True

WS, X_, OUT, WQ, WP, WO_, WG, WU, WD = [s(4 + 4 * i, 4) for i in range(9)]
sXC = s(40)
XO = oi("xo", 0)
XS = OUT if XO else WS
sC, sJ, sHF, sCG, sM, sNONCE, sCNT, sPAIR = [s(66 + i) for i in range(8)]
sW = s(3)
sXLD, sSTLD, sFA, sXST, sSTST, sFXST = [s(74 + i) for i in range(6)]
sOST, sFB, sFJ = s(80), s(81), s(82)
sHLD, sHST = s(84), s(85)
sKVST, sKVLD, sFKVST, sFKVLD = [s(88 + i) for i in range(4)]
sKZ, sGZ, sHALF, sH5, sF5, sHS = s(62), s(63), s(60, 2), s(49), s(83), s(41)
sT0, sT1, sT2, sT3 = [s(92 + i) for i in range(4)]
sL2E, sONE, sOUTO, sT6 = s(96), s(97), s(98), s(99)
sSTMP = s(100, 2)
sRING, sKH, sTP, sDUM, sLD = s(44), s(45), s(46), s(47), s(48)
sMASK, sBAD, sOLD, sOST1, sOLD1, sTX = s(56), s(58, 2), s(62), s(63), s(90), s(57)
vL, vL16, vA0, vFL = v(0), v(1), v(2), v(3)
RES = 4
vNON = v(12); vT = v(13); vU = v(14); vV = v(15)
vA1, vP0, vP1 = v(121), v(122), v(123)
aXW = v(126)
XF = 128
sXR = s(91)
aEW, aER, vEVv, vEVr, aCS3 = v(112), v(113), v(114), v(115), v(120)
aP4, vS4 = v(124), v(125)

class bc:
    def __init__(self, r, neg=False): self.r = int(r[1:]) if isinstance(r, str) else r; self.neg = neg
class ng:
    def __init__(self, r): self.r = r
def pk(st, op, d, *src):
    ops, lo, hi, n = [], [], [], []
    for x in src:
        if isinstance(x, bc): ops.append(v(x.r & ~1, 2)); lo.append(x.r & 1); hi.append(x.r & 1); n.append(int(x.neg))
        elif isinstance(x, ng): ops.append(v(x.r, 2)); lo.append(0); hi.append(1); n.append(1); assert x.r % 2 == 0
        else: ops.append(v(x, 2)); lo.append(0); hi.append(1); n.append(0); assert x % 2 == 0
    assert d % 2 == 0
    f = lambda l: "[" + ",".join(map(str, l)) + "]"
    mods = f"op_sel:{f(lo)} op_sel_hi:{f(hi)}" + (f" neg_lo:{f(n)} neg_hi:{f(n)}" if any(n) else "")
    st.op(f"v_pk_{op}_f32", v(d, 2), *ops, mods=mods)

lab_n = [0]
def newlab(p):
    lab_n[0] += 1
    return f".L{p}_{lab_n[0]}"

def nxt(st):
    st.s_add_u32(sNONCE, sNONCE, 1); st.v_add_u32(vNON, 1, vNON)

def poll(st, addr, soff, off=0, back=0):
    L = newlab("poll"); D = newlab("pdone")
    st.label(L)
    st.buffer_load_dword(vT, addr, WS, soff, mods=f"offen offset:{off} sc1")
    st.wait(vm=0)
    st.v_cmp_ne_u32("vcc", sNONCE, vT)
    st.s_cbranch_vccz(D)
    for _ in range(back): st.s_nop(15)
    st.s_sub_u32(sCNT, sCNT, 1)
    st.s_cbranch_scc0(L)
    st.s_mov_b32(sCNT, 0)
    st.label(D)

PRA, PRB = v(124), v(125)
def pload(st, r, addr, soff, off=0):
    i = Ins("buffer_load_dword", [r, addr, WS, soff], f"offen offset:{off} sc1"); i.dst = set(); st.l.append(i)
def poll2(st, addr, soff, off=0, gap=0, issued=0):
    if gap < 0: return poll(st, addr, soff, off, -1 - gap)
    L = newlab("poll"); D = newlab("pdone")
    if issued < 1: pload(st, PRA, addr, soff, off)
    if issued < 2:
        for _ in range(gap): st.s_nop(15)
        pload(st, PRB, addr, soff, off)
    st.label(L)
    for r in (PRA, PRB):
        st.wait(vm=1)
        st.v_cmp_ne_u32("vcc", sNONCE, r)
        st.s_cbranch_vccz(D)
        pload(st, r, addr, soff, off)
    st.s_sub_u32(sCNT, sCNT, 1)
    st.s_cbranch_scc0(L)
    st.s_mov_b32(sCNT, 0)
    st.wait(vm=1)
    st.label(D)

OOL = Stream()
def soft_check(st, reg, addr, soff, off=0):
    D = newlab("soft"); X = newlab("softx")
    st.v_cmp_ne_u32("vcc", sNONCE, reg)
    st.s_cbranch_vccnz(X)
    st.label(D)
    OOL.label(X); OOL.mark("reset")
    poll(OOL, addr, soff, off)
    OOL.s_branch(D)

class Spec:
    def __init__(self, n, reg, load, use, head=None, redo=None):
        self.n, self.reg, self.load, self.use, self.head, self.redo = n, reg, load, use, head, redo
    def guard(self, st, g, mf):
        L = newlab("sp")
        if g[0] == "chk":
            X = newlab("miss"); k = g[1]
            st.v_cmp_eq_u32("vcc", -1, v(self.reg(k) + 3))
            b = Ins("s_cbranch_vccnz", [X])
            OOL.label(X); OOL.mark("reset")
            self.load(OOL, k); OOL.s_bitset1_b32(sMASK, k); OOL.s_branch(L)
        elif g[0] == "vcc": b = Ins("s_cbranch_vccnz", [L])
        else: st.s_bitcmp1_b32(sMASK, g[1]); b = Ins("s_cbranch_scc1", [L])
        b.src = set(mf.src); st.l.append(b)
        return L
    def fix(self, st):
        X, D, T = newlab("fix"), newlab("fixd"), newlab("fixt")
        if self.redo: st.s_or_b32(sTX, s(58), s(59)); st.s_or_b32(sTX, sTX, sMASK)
        else: st.s_cmp_lg_u32(sMASK, 0)
        st.s_cbranch_scc1(X); st.label(D)
        o = OOL
        o.label(X); o.mark("reset")
        if self.head: self.head(o)
        o.label(T); o.mark("reset")
        o.s_sub_u32(sCNT, sCNT, 1); o.s_cselect_b32(sCNT, 0, sCNT); o.s_cbranch_scc1(D)
        o.wait(vm=0, lgkm=0)
        tail = Stream()
        for k0 in range(0, self.n, 8):
            S = newlab("fxs")
            o.s_and_b32(sTX, sMASK, 0xff << k0); o.s_cbranch_scc0(S)
            for k in range(k0, k0 + 8):
                F, R, A = newlab("fxf"), newlab("fxr"), newlab("fxa")
                o.s_bitcmp1_b32(sMASK, k); o.s_cbranch_scc1(F); o.label(R)
                tail.label(F); tail.mark("reset")
                tail.v_cmp_eq_u32("vcc", -1, v(self.reg(k) + 3)); tail.s_cbranch_vccnz(A)
                self.use(tail, k); tail.s_bitset0_b32(sMASK, k); tail.s_branch(R)
                tail.label(A); tail.mark("reset")
                self.load(tail, k); tail.s_branch(R)
            o.label(S)
        if self.redo:
            S = newlab("fxs")
            o.s_or_b32(sTX, s(58), s(59)); o.s_cbranch_scc0(S)
            o.mark("reset"); self.redo(o)
            o.label(S); o.mark("reset")
            o.s_nop(1); o.s_or_b32(sTX, s(58), s(59)); o.s_or_b32(sTX, sTX, sMASK)
        else: o.s_cmp_lg_u32(sMASK, 0)
        o.s_cbranch_scc1(T)
        o.wait(lgkm=0); o.s_nop(15); o.s_branch(D)
        o.extend(tail)
    def gate(self, st, base, off, again, n):
        X, D = newlab("gate"), newlab("gated")
        st.v_cmp_eq_u32("vcc", -1, vT); st.s_bcnt1_i32_b64(sTX, "vcc"); st.s_cmp_gt_u32(sTX, 4 * n); st.s_cbranch_scc1(X); st.label(D)
        o = OOL; E = newlab("gatee")
        o.label(X); o.mark("reset")
        o.buffer_load_dword(vT, vU, WS, base, mods=f"offen offset:{off} sc1")
        o.s_sub_u32(sCNT, sCNT, 1); o.s_cselect_b32(sCNT, 0, sCNT); o.s_cbranch_scc1(E)
        o.wait(vm=0)
        o.v_cmp_eq_u32("vcc", -1, vT); o.s_bcnt1_i32_b64(sTX, "vcc"); o.s_cmp_gt_u32(sTX, 4 * oi("gn2", n)); o.s_cbranch_scc1(X)
        o.label(E); o.mark("reset"); o.wait(vm=0)
        for f in again: f(o)
        o.s_branch(D)
    def probe(self, st, base, off):
        st.v_lshlrev_b32(vU, 9, vFL); st.buffer_load_dword(vT, vU, WS, base, mods=f"offen offset:{off} sc1")

stamp_names = {"c": [], "l": []}
def stamp(st, name, real=False, who="c", pair=None):
    if OPT.get("cap") and who == "c" and name == OPT["cap"].split("@")[0]:
        (st.s_memrealtime if OPT.get("capr") else st.s_memtime)(sSTMP); st.wait(lgkm=0)
        st.s_cmp_eq_u32(sPAIR, int(OPT["cap"].split("@")[1])); st.s_cselect_b32(s(43), s(100), s(43))
    if not OPT["stamps"]: return
    only = OPT.get("only")
    if only and who == "l" and not OPT.get("lst"): return
    if only and who == "c" and not isinstance(name, int) and name not in ("start", "end") and name not in only.split(","): return
    if isinstance(name, int): idx = name
    else:
        if name not in stamp_names[who]: stamp_names[who].append(name)
        idx = stamp_names[who].index(name)
    r = v(127) if who == "c" else v(63)
    if name == 62: st.v_mov_b32(r, s(42))
    elif name == "start" and who == "c": st.v_mov_b32(r, s(86))
    elif name == "karg": st.wait(lgkm=0); st.v_mov_b32(r, s(0))
    else:
        if real or OPT.get("rts"): st.s_memrealtime(sSTMP)
        else: st.s_memtime(sSTMP)
        st.wait(lgkm=0)
        st.v_mov_b32(r, s(100))
    if pair is None:
        st.s_lshl_b32(s(101), sPAIR, 8)
        st.s_add_u32(s(101), s(101), s(65))
    else:
        st.s_add_u32(s(101), s(65), 256 * pair)
    st.buffer_store_dword(r, "off", WS, s(101), mods=f"offset:{idx*4}")

def vstamp(st, name):
    if not OPT["stamps"] or name not in OPT.get("only", "").split(","): return
    if name not in stamp_names["c"]: stamp_names["c"].append(name)
    st.s_bcnt1_i32_b32(s(100), sMASK); st.v_mov_b32(v(127), s(100))
    st.s_lshl_b32(s(101), sPAIR, 8); st.s_add_u32(s(101), s(101), s(65))
    st.buffer_store_dword(v(127), "off", WS, s(101), mods=f"offset:{stamp_names['c'].index(name)*4}")

DEF = {"c": [], "l": []}
def dcap(st, name, who="c", reg=None):
    if not (OPT["stamps"] and OPT.get("dcap")): return
    if (reg is None) != (OPT["dcap"] == "1"): return
    if who == "l" and OPT.get("dsg"):
        r = s([8, 9, 10, 11, 12, 13, 14, 15, 41, 42, 43, 60, 61, 62, 63, 97, 98][len(DEF[who])])
        st.s_memrealtime(sSTMP); st.wait(lgkm=0); st.s_mov_b32(r, s(100)); DEF[who].append((name, r)); return
    r = v(reg) if reg else v(16 + len(DEF[who])) if who == "c" else v(30 + len(DEF[who]))
    st.s_memtime(sSTMP); st.wait(lgkm=0); st.v_mov_b32(r, s(100)); DEF[who].append((name, r))
def dflush(st, who="c"):
    if DEF[who]: st.s_lshl_b32(s(101), sPAIR, 8); st.s_add_u32(s(101), s(101), s(65))
    for name, r in DEF[who]:
        if name not in stamp_names[who]: stamp_names[who].append(name)
        if r[0] == "s": st.v_mov_b32(v(63), r); r = v(63)
        st.buffer_store_dword(r, "off", WS, s(101), mods=f"offset:{stamp_names[who].index(name)*4}")
    DEF[who].clear()

def ring_addr(st, mode):
    if mode in ("trq", "trn"):
        st.v_add_u32(vA0, sRING, vP0 if mode == "trq" else vP1); st.v_xor_b32(vA1, 64, vA0)
    elif mode == "b128":
        st.v_add_u32(vA0, sRING, vL16)
def ring_next(st, mode=None):
    st.s_add_u32(sRING, sRING, 0x8000); st.s_and_b32(sRING, sRING, 0x1ffff)
    ring_addr(st, mode)
def barrier(st, name, drain=False):
    if drain: st.wait(lgkm=0)
    st.s_barrier()
    if G.REC: G.SEQ.append(name)

def signal(st, val=None, off=0):
    t0, t1 = (v(124), v(125)) if val is None else (vT, vU)
    st.s_lshl_b32(sT3, sW, 2); st.s_add_u32(sT3, sT3, L_SIG + off); st.v_mov_b32(t0, sT3)
    if val is None: st.v_add_u32(t1, 1, sPAIR)
    else: st.v_mov_b32(t1, val)
    st.ds_write_b32(t0, t1)
def sigwait(st, mask=28, off=0, regs=(124, 125, 126), cmp="ne", extra=None):
    L = newlab("sig"); D = newlab("sigd")
    a, e, r = [v(x) for x in regs]
    st.v_and_b32(a, mask, vFL); st.v_add_u32(a, L_SIG + off, a)
    if extra:
        st.ds_read_b32(r, a)
        extra(st)
        st.wait(lgkm=0)
        st.op(f"v_cmp_{cmp}_u32", "vcc", e, r)
        st.s_cbranch_vccz(D)
    st.label(L)
    st.ds_read_b32(r, a)
    st.wait(lgkm=0)
    st.op(f"v_cmp_{cmp}_u32", "vcc", e, r)
    st.s_cbranch_vccz(D)
    st.s_sub_u32(sCNT, sCNT, 1)
    st.s_cbranch_scc0(L)
    st.s_mov_b32(sCNT, 0)
    st.label(D)

def lane_tr(st, d0, d1, kind, stride=128, tmp=vT, hstride=None):
    st.v_bfe_u32(d0, vL, 2, 2)
    if stride == 128: st.v_lshlrev_b32(d0, 7, d0)
    else: st.v_mul_u32_u24(d0, stride, d0)
    st.v_lshrrev_b32(tmp, 5, vL)
    st.v_lshl_add_u32(d0, tmp, int(math.log2(hstride or 8 * stride)), d0)
    sh = dict(qkv=(5, 4), nat=(4, 5))[kind]
    st.v_and_b32(tmp, 1, vL); st.v_lshl_add_u32(d0, tmp, sh[0], d0)
    st.v_bfe_u32(tmp, vL, 1, 1); st.v_lshl_add_u32(d0, tmp, 3, d0)
    st.v_bfe_u32(tmp, vL, 4, 1); st.v_lshl_add_u32(d0, tmp, sh[1], d0)
    if stride == 128:
        st.v_bfe_u32(tmp, vL, 3, 1); st.v_lshl_add_u32(d0, tmp, 6, d0)
        if d1: st.v_xor_b32(d1, 64, d0)

gemm_n = [0]
def gemm(st, items, mode, af, nslots, depth, ready, bars=None, fill=None, budget=16, hooks=None, loads=None, pre=10, every=2, pairw=0, spec=None):
    n = len(items); loads = list(loads or []); ready = set(ready); bars = bars or {}
    nr = 0; gemm_n[0] += 1; tg = f"g{gemm_n[0]}_"
    def pump(upto):
        nonlocal nr
        while nr < n and nr <= upto:
            it = items[nr]; r = af + 4 * (nr % nslots)
            assert it["chunk"] in ready, (nr, it["chunk"])
            if nr > 0 and it["chunk"] != items[nr - 1]["chunk"]: ring_next(st, mode)
            if mode != "b128":
                a = vA1 if it["t"] else vA0
                st.ds_read_b64_tr_b16(v(r, 2), a, mods=f"offset:{it['off']}")
                st.ds_read_b64_tr_b16(v(r + 2, 2), a, mods=f"offset:{it['off']+512}", tset=tg + str(nr))
            else:
                st.ds_read_b128(v(r, 4), vA0, mods=f"offset:{it['off']}", tset=tg + str(nr))
            nr += 1
    for _ in range(min(pre, len(loads))): loads.pop(0)(st)
    pump(depth - 1)
    for i in range(n):
        it = items[i]
        if hooks and i in hooks: hooks[i](st)
        acc = v(it["acc"], 16)
        st.v_mfma_f32_32x32x16_bf16(acc, v(af + 4 * (i % nslots), 4), v(it["b"], 4), "0" if it["first"] else acc,
                                    tneed=tg + str(i + 1) if pairw and i % 2 == 0 and i + 1 < nr else None)
        if spec and it.get("guard"):
            mf = st.l.pop(); L = spec.guard(st, it["guard"], mf); st.l.append(mf); st.label(L)
        if i in bars:
            barrier(st, bars[i][0]); ready |= set(bars[i][1])
        pump(i + depth)
        if loads and i % every == every - 1: loads.pop(0)(st)
        if fill is not None: fill.take(st, budget(i) if callable(budget) else budget)
    assert not loads

def entry(st):
    st.s_cmp_ge_u32(s(2), 256)
    st.s_cbranch_scc1(".Lend")
    if OPT["stamps"]: st.s_memrealtime(s(42, 2)); st.s_memtime(s(86, 2))
    if OPT.get("dbg"): st.s_memrealtime(s(42, 2)); st.s_memtime(s(86, 2))
    st.s_load_dwordx16(s(44, 16), s(0, 2), 0)
    st.s_load_dwordx4(s(60, 4), s(0, 2), 64)
    st.s_load_dwordx2(s(64, 2), s(0, 2), 80)
    if oi("pc0", 0):
        st.s_getpc_b64(s(100, 2))
        L = newlab("pc")
        st.label(L)
        st.raw(f"    s_sub_u32 s100, s100, {L}-{NAME}_kernel")
        st.raw("    s_subb_u32 s101, s101, 0")
        m = oi("pc0", 0)
        if m == 1:
            st.v_lshlrev_b32(vU, 7, v(0))
        elif m == 2:
            st.v_and_b32(vU, 15, v(0)); st.v_lshrrev_b32(vT, 6, v(0)); st.v_and_b32(vV, 3, vT); st.v_lshl_add_u32(vU, vV, 4, vU); st.v_lshlrev_b32(vU, 7, vU)
            st.v_lshrrev_b32(vT, 2, vT); st.v_mul_u32_u24(vT, f"(.Lld0-{NAME}_kernel)&0xffff80", vT); st.v_add_u32(vU, vU, vT)
        elif m == 3:
            st.v_and_b32(vU, 15, v(0)); st.v_lshrrev_b32(vT, 6, v(0)); st.v_lshl_add_u32(vU, vT, 4, vU); st.v_lshlrev_b32(vU, 9, vU)
            st.s_lshr_b32(sT0, s(2), 3); st.s_and_b32(sT0, sT0, 3); st.s_lshl_b32(sT0, sT0, 7); st.v_add_u32(vU, sT0, vU)
        st.v_min_u32(vU, f".Lslow-{NAME}_kernel", vU)
        i = Ins("global_load_dword", [v(11), vU, s(100, 2)]); i.dst = set(); st.l.append(i)
    st.v_lshrrev_b32(vT, 6, v(0))
    st.v_and_b32(vL, 63, v(0))
    st.v_readfirstlane_b32(sW, vT)
    st.v_lshlrev_b32(vL16, 4, vL)
    st.v_and_b32(vFL, 15, vL)
    st.v_lshlrev_b32(vFL, 2, vFL)
    st.s_and_b32(sT0, s(2), 7)
    st.s_lshr_b32(sT1, s(2), 3)
    st.s_lshr_b32(sC, sT1, 4)
    st.s_lshl_b32(sT0, sT0, 1)
    st.s_add_u32(sC, sC, sT0)
    st.s_and_b32(sJ, sT1, 15)
    st.s_lshr_b32(sHF, sJ, 3)
    st.s_and_b32(sCG, sJ, 7)
    st.s_and_b32(sM, sW, 3)
    st.s_mov_b32(sCNT, 1 << 18)
    st.s_mov_b32(sPAIR, 0)
    st.s_cmp_lt_u32(sJ, 6)
    st.s_cselect_b32(sT6, 1, 0)
    st.s_getreg_b32(sXC, "hwreg(HW_REG_XCC_ID, 0, 4)")
    for d in (WS, X_, OUT, WQ, WP, WO_, WG, WU, WD):
        st.s_mov_b32(s(int(d[2:d.index(":")]) + 3), 0x20000)
    for d, size in ((X_, 2048 * 1024), (WQ, 512 * 3072), (WS, WS_SIZE - (oi("wso", 0) << 20)), (WP, 32 * 512), (WO_, 512 * 1024), (WG, 512 * 2752),
                    (WU, 512 * 2752), (WD, 1376 * 1024), (OUT, 2048 * 1024)):
        st.s_mov_b32(s(int(d[2:d.index(":")]) + 2), size)
    if oi("cfirst", 1) and oi("es", 0):
        if oi("w7", 1): st.s_cmp_eq_u32(sW, 7); st.s_cbranch_scc1(".Lld7")
        st.s_cmp_lt_u32(sW, 4); st.s_cbranch_scc1(".Lcmp0")
        early_round(st); st.s_branch(".Lld0")
        st.label(".Lcmp0"); st.mark("reset")
        compute(st)
        if oi("w7", 1):
            st.label(".Lld7"); st.mark("reset")
            early_round(st)
        st.label(".Lld0"); st.mark("reset")
    elif oi("cfirst", 1):
        st.s_cmp_ge_u32(sW, 4); st.s_cbranch_scc1(".Lld0")
        compute(st)
        st.label(".Lld0"); st.mark("reset")
    else:
        st.s_cmp_lt_u32(sW, 4); st.s_cbranch_scc1(".Lcomp")

def early_round(st, wait=True):
    r = 90 if wait else 54
    a, b = s(r), s(r + 1)
    L = oi("esl", 0)
    st.s_and_b32(a, sC, 1); st.s_lshl_b32(a, a, 4); st.s_add_u32(a, a, sJ); st.s_lshl_b32(a, a, 2 if L else 3); st.s_add_u32(a, a, sM if L else sW)
    st.s_lshr_b32(b, a, 4); st.s_mul_i32(b, b, 3072); st.s_and_b32(a, a, 15); st.s_lshl_b32(a, a, 7); st.s_add_u32(a, a, b)
    if wait: st.wait(lgkm=0)
    st.s_add_u32(a, s(46), a); st.s_addc_u32(b, s(47), 0)
    for i in range(oi("es", 0)):
        x = Ins("s_load_dwordx2", [s(52, 2), s(r, 2), hex(i * (8 if L else 16) * 3072 + 1024 + 60)]); x.dst = set(); st.l.append(x)

def rot(st, d, t):
    if not oi("rot", 0): st.s_mov_b32(d, 0); return
    if oi("rot", 0) == 2: st.s_lshr_b32(d, sC, 1); return
    if oi("rot", 0) == 3: st.s_lshr_b32(d, sC, 1); st.s_and_b32(t, sC, 1); st.s_lshl_b32(t, t, 2); st.s_add_u32(d, d, t); return
    if oi("rot", 0) == 4: st.s_and_b32(d, sC, 1); st.s_lshl_b32(d, d, 2); return
    if oi("rot", 0) == 5: st.s_and_b32(d, sC, 2); st.s_lshl_b32(d, d, 1); return
    st.s_and_b32(d, sJ, 1); st.s_and_b32(t, sC, 1); st.s_lshl_b32(t, t, 1); st.s_add_u32(d, d, t); st.s_lshl_b32(d, d, 1)
    st.s_lshr_b32(t, sJ, 1); st.s_add_u32(d, d, t)

GR = oi("gr", 0)
def grot(st, d, t):
    if GR == 1: st.s_lshr_b32(d, sC, 1); st.s_and_b32(d, d, 3); st.s_and_b32(t, sC, 1); st.s_lshl_b32(t, t, 2); st.s_or_b32(d, d, t)
    elif GR == 2: st.s_lshr_b32(d, sC, 1)
    elif GR == 3: st.s_and_b32(d, sC, 1); st.s_lshl_b32(d, d, 2)
    elif GR == 4: st.s_mov_b32(d, 0)
    elif GR == 5: st.s_and_b32(d, sC, 1); st.s_lshl_b32(d, d, 1); st.s_bfe_u32(t, sC, 0x10001); st.s_or_b32(d, d, t); st.s_and_b32(t, sC, 4); st.s_or_b32(d, d, t)
    elif GR == 6: st.s_and_b32(d, sC, 7)
def srds(st, lst):
    src = {X_: 44, WQ: 46, WP: 48, WO_: 50, WG: 54, WU: 56, WD: 58, OUT: 60, WS: 64}
    for d in lst:
        b = int(d[2:d.index(":")])
        if d == WS and oi("wso", 0):
            st.s_add_u32(s(b), s(src[d]), oi("wso", 0) << 20); st.s_addc_u32(s(b + 1), s(src[d] + 1), 0); st.s_and_b32(s(b + 1), s(b + 1), 0xffff)
            continue
        st.s_mov_b32(s(b), s(src[d])); st.s_and_b32(s(b + 1), s(src[d] + 1), 0xffff)

def stamp_base(st):
    if OPT["stamps"]:
        st.s_lshl_b32(s(65), s(2), 3); st.s_add_u32(s(65), s(65), sW); st.s_lshl_b32(s(65), s(65), 9)
        st.s_add_u32(s(65), s(65), STAMP)

aK, aV, aQ, AF1, WPH, STT = 16, 32, 48, 64, 88, 96
NM, RS, VE, LR = v(112), v(113), v(114), v(115)
aCS, aA, aB, aR1, aR2 = v(116), v(117), v(118), v(119), v(120)

def kv_items():
    return [dict(chunk=k // 16, off=(k % 16) * 2048, t=t, acc=acc, b=XF + 4 * k, first=k == 0)
            for k in range(32) for t, acc in ((0, aK), (1, aV))]

CK, CV = aQ, STT
def k_addr(st):
    st.v_lshrrev_b32(vU, 5, vL); st.v_and_b32(vT, 1, vL); st.v_cmp_eq_u32("vcc", vT, vU)
    st.v_lshlrev_b32(aCS, 6, vU); st.v_add_u32(aCS, L_CS, aCS)
    st.v_lshlrev_b32(aR1, 7, vU); st.v_and_b32(vT, 12, vL); st.v_lshl_add_u32(aR1, vT, 3, aR1)
    st.v_and_b32(vT, 16, vL); st.v_add_u32(aR1, aR1, vT); st.v_and_b32(vT, 2, vL); st.v_lshl_add_u32(aR1, vT, 2, aR1)
    st.v_mov_b32(vT, 544); st.v_cndmask_b32(aR1, vT, aR1, "vcc"); st.v_add_u32(aR1, L_KVB, aR1)
    st.v_and_b32(vT, 31, vL); st.s_lshl_b32(sT0, sM, 5); st.v_add_u32(vT, sT0, vT)
    st.v_mul_u32_u24(aA, 144, vT); st.v_lshl_add_u32(aA, vU, 6, aA); st.v_add_u32(aA, L_PH, aA)
    st.v_mul_u32_u24(aB, 80, vT); st.v_lshl_add_u32(aB, vU, 5, aB); st.v_add_u32(aB, L_VB, aB)
def k_reads(st, which="wkv"):
    if "k" in which:
        for i in range(4): st.ds_read_b128(v(CK + 4 * i, 4), aCS, mods=f"offset:{16*i}")
    if "w" in which:
        for q in range(4): st.ds_read_b64_tr_b16(v(WPH + 2 * q, 2), aR1, mods=f"offset:{576*q}")
    if "v" in which:
        for i in range(4): st.ds_read_b128(v(CV + 4 * i, 4), aCS, mods=f"offset:{128+16*i}")

def fin_stats(st, S, Q, t0, t1, negmean, rstd, vare):
    if t0: st.v_mov_b32(t0, S)
    st.v_mov_b32(t1, Q)
    if t0: st.v_permlane32_swap_b32(S, t0)
    st.v_permlane32_swap_b32(Q, t1)
    if t0: st.v_add_f32(S, S, t0)
    st.v_add_f32(Q, Q, t1)
    st.v_mul_f32(negmean, f2u(-1.0 / 512), S)
    st.v_mul_f32(Q, f2u(1.0 / 512), Q)
    st.v_fma_f32(vare, "-" + negmean, negmean, Q)
    st.v_max_f32(vare, 0, vare)
    st.v_add_f32(vare, f2u(1e-5), vare)
    st.v_rsq_f32(rstd, vare)

def stats(st, stt, negmean, rstd, vare):
    S, Q = v(stt), v(stt + 1)
    for i in range(4): st.v_add_f32(v(stt + i), v(stt + i), v(stt + 4 + i))
    for i in range(4): st.v_add_f32(v(stt + 8 + i), v(stt + 8 + i), v(stt + 12 + i))
    for i in range(4): st.v_add_f32(v(stt + i), v(stt + i), v(stt + 8 + i))
    st.v_add_f32(S, S, v(stt + 2)); st.v_add_f32(Q, Q, v(stt + 3))
    fin_stats(st, S, Q, v(stt + 2), v(stt + 3), negmean, rstd, vare)

def p1a0(st):
    g0, g1, aW = v(118), v(119), v(120)
    aRd = [v(88 + i) for i in range(4)]
    QD, SA, SELA = 96, 112, 92
    XD = oi("xd", 0)
    st.v_lshrrev_b32(vT, 3, vL); st.v_and_b32(vV, 7, vL)
    if XD: st.v_lshrrev_b32(vU, 4, vL); st.v_xor_b32(vV, vV, vU)
    st.v_lshlrev_b32(g0, 10, vT); st.v_lshl_add_u32(g0, vV, 4, g0)
    st.s_lshl_b32(sT0, sC, 2); st.s_add_u32(sT0, sT0, sM); st.s_lshl_b32(sT0, sT0, 15)
    GA = [v(48 + g) for g in range(4)]
    PRE = oi("pre", 0); assert not (PRE and (XD or oi("rot", 0)))
    st.v_lshlrev_b32(g1, 5, vFL); st.s_lshl_b32(sT1, sJ, 11); st.s_add_u32(sT1, sT1, sT0)
    if PRE: st.v_add_u32(v(53), sT1, g1)
    for g in range(4):
        st.v_add_u32(GA[g], sT0, g0)
        if XD and g & 1: st.v_xor_b32(GA[g], 64, GA[g])
        if g < 3: st.s_add_u32(sT0, sT0, 8192)
    vKc, sA0, sKc, sK8 = v(52), s(41), s(83), s(98)
    AREA = [0, 16384, 32768, 49152, 65536, 32768, 49152, 65536]
    if XD:
        st.v_bfe_u32(vU, vL, 4, 1); st.v_lshlrev_b32(vU, 2, vU); st.v_and_b32(vV, 7, vL); st.v_xor_b32(vU, vU, vV)
        st.v_mul_u32_u24(vKc, 3072, vT); st.v_and_b32(vV, 3, vU); st.v_lshl_add_u32(vKc, vV, 4, vKc)
        st.v_lshrrev_b32(vV, 2, vU); st.v_lshl_add_u32(vKc, vV, 10, vKc); st.v_add_u32(vKc, 1024, vKc)
        st.s_lshl_b32(sA0, sM, 12); st.s_add_u32(sA0, sA0, 65536); st.s_lshl_b32(sK8, sM, 13)
        st.s_mul_i32(sKc, sM, 64 * 3072); st.s_lshl_b32(sT0, sJ, 6); st.s_add_u32(sKc, sKc, sT0)
    if oi("tk0", 0):
        st.v_lshrrev_b32(vT, 5, vL); st.v_lshlrev_b32(vT, 8, vT); st.v_bfe_u32(vU, vL, 4, 1); st.v_add_u32(vT, vT, vU)
        st.v_mul_u32_u24(v(124), 3072, vT); st.v_lshl_add_u32(v(124), vFL, 5, v(124))
        st.s_and_b32(sT2, sC, 1); st.s_lshl_b32(sT2, sT2, 4); st.s_add_u32(sT2, sT2, sJ); st.s_lshl_b32(sT2, sT2, 2); st.s_add_u32(sT2, sT2, sM)
        st.s_mul_i32(sT2, sT2, 2 * 3072); st.s_add_u32(sT2, sT2, 1024)
    sR, sQO = s(41), s(83)
    if not XD and not PRE: rot(st, sR, sT0)
    def c0(st):
        srds(st, [WQ])
        for i in range(8):
            st.s_add_u32("m0", sK8, 1024 * i); st.s_add_u32(sT0, sKc, 8 * i * 3072)
            st.buffer_load_dwordx4(vKc, WQ, sT0, mods="offen lds", tset="c0c" if i == 7 else None)
    def xl(p, st):
        if not XD and not PRE: st.s_add_u32(sQO, sR, p); st.s_and_b32(sQO, sQO, 7); st.s_lshl_b32(sQO, sQO, 7)
        if p == (-1 if XD else 0):
            st.wait(lgkm=0)
            srds(st, [X_])
            if OPT["stamps"]: st.s_memtime(s(0, 2))
            dcap(st, "dk")
            if OPT.get("lat"):
                srds(st, [WQ, WO_, WG, WD, WS, OUT])
                st.v_lshlrev_b32(v(40), 2, vL)
                for nm_, srd, off in (("x0", X_, 0), ("x1", X_, 4096), ("x2", X_, 65536), ("x3", X_, 1 << 20), ("wo", WO_, 0), ("wo2", WO_, 262144), ("wg", WG, 0), ("wd", WD, 0),
                                      ("ws", WS, XB), ("ws2", WS, XB + 4096), ("ws3", WS, HB + 2 * MB), ("out", OUT, 0)):
                    st.s_mov_b32(sT2, off); st.buffer_load_dword(v(41), v(40), srd, sT2, mods="offen"); st.wait(vm=0); dcap(st, nm_)
            if oi("tx0", 1):
                i = Ins("buffer_load_dword", [v(126), v(53), X_, "0"] if PRE else [v(126), g1, X_, sT1], "offen"); i.dst = set(); st.l.append(i)
            if oi("tk0", 0):
                srds(st, [WQ])
                i = Ins("buffer_load_dword", [v(125), v(124), WQ, sT2], "offen"); i.dst = set(); st.l.append(i)
        if p < 0: return
        for g in range(4):
            if XD:
                st.s_add_u32("m0", sA0 if AREA[p] < 65536 else sKc, AREA[p] + 1024 * g - 128 * p)
                st.buffer_load_dwordx4(GA[g], X_, 0, mods=f"offen offset:{128*p} lds", tset=f"x{p}" if g == 3 else None,
                                       tneed=f"r{p-3}" if p >= 5 and g == 0 else None)
            elif PRE: st.buffer_load_dwordx4(v(XF + 16 * p + 4 * g, 4), GA[g], X_, 0, mods=f"offen offset:{128*p}")
            else: st.buffer_load_dwordx4(v(XF + 16 * p + 4 * g, 4), GA[g], X_, sQO, mods="offen")
        if p == 7 and oi("nonl", 0): st.buffer_load_dword(vNON, "off", WS, 0, mods=f"offset:{EPOCH} sc1")
    def head(st):
        n0 = oi("xn0", 2); n1 = oi("xn1", 4)
        if XD: n0 = oi("xn0", 1); xl(-1, st)
        for p in range(n0):
            xl(p, st)
            if oi("es", 0) and not oi("esl", 0) and p == min(n0, oi("esp", 1)) - 1: early_round(st, wait=False)
        if XD: c0(st)
        srds(st, [WS, OUT])
        stamp_base(st)
        if XD: stamp(st, 62, True); stamp(st, "start"); stamp(st, "karg"); stamp(st, "xissued")
        if not oi("nonl", 0): st.buffer_load_dword(vNON, "off", WS, 0, mods=f"offset:{EPOCH} sc1")
        return n0, n1
    def block(st, post, sKH, sTP, sKZ, sGZ):
        st.s_and_b32(sKH, sM, 1); st.s_lshr_b32(sTP, sM, 1); post.s_mov_b32(sRING, 0)
        st.v_and_b32(aA, 31, vL); st.v_lshlrev_b32(aA, 10, aA); st.v_lshrrev_b32(vT, 5, vL); st.v_lshl_add_u32(aA, vT, 4, aA)
        st.s_lshl_b32(sOUTO, sC, 17); st.s_lshl_b32(sT1, sHF, 16); st.s_add_u32(sOUTO, sOUTO, sT1)
        st.s_lshl_b32(sT1, sTP, 15); st.s_add_u32(sOUTO, sOUTO, sT1); st.s_lshl_b32(sT1, sCG, 7); st.s_add_u32(sOUTO, sOUTO, sT1)
        st.s_lshl_b32(sT1, sKH, 6); st.s_add_u32(sOUTO, sOUTO, sT1)
        post.s_mov_b32(sL2E, f2u(LOG2E)); post.s_mov_b32(sONE, 0x3f803f80)
        st.s_lshl_b32(sT0, sC, 2); st.s_add_u32(sT1, sT0, sM)
        st.s_lshl_b32(sXLD, sT1, 15)
        if not XO: st.s_add_u32(sXLD, sXLD, XB)
        if GR: grot(st, sXR, sT2); st.s_lshl_b32(sXR, sXR, 12); st.s_xor_b32(sXR, sXR, sXLD)
        st.s_lshl_b32(sSTLD, sT1, 12); st.s_add_u32(sSTLD, sSTLD, ST)
        st.s_lshl_b32(sFA, sT1, 10); st.s_add_u32(sFA, sFA, FL)
        st.s_lshl_b32(sT2, sJ, 2); st.s_add_u32(sFJ, sFA, sT2)
        st.s_mul_i32(sHST, sT1, HB_TB); st.s_add_u32(sHST, sHST, HB)
        st.s_lshl_b32(sT2, sJ, 11); st.s_add_u32(sOST, sHST, sT2)
        post.s_mov_b32(s(60), 0); post.s_mov_b32(s(61), -1)
        st.s_lshl_b32(sT2, sJ, 10); st.s_add_u32(sHST, sHST, sT2)
        post.s_lshl_b32(sDUM, sFA, 1); post.s_add_u32(sDUM, sDUM, (DUMMY - 2 * FL) & 0xffffffff)
        st.s_lshl_b32(sT1, sHF, 1); st.s_add_u32(sT1, sT1, sT0); st.s_add_u32(sT1, sT1, sTP)
        st.s_lshl_b32(sT3, sCG, 1); st.s_add_u32(sT3, sT3, sKH)
        st.s_lshl_b32(sXST, sT1, 15); st.s_lshl_b32(sT2, sT3, 11); st.s_add_u32(sXST, sXST, sT2)
        if not XO: st.s_add_u32(sXST, sXST, XB)
        st.s_lshl_b32(sSTST, sT1, 12); st.s_lshl_b32(sT2, sCG, 9); st.s_add_u32(sSTST, sSTST, sT2)
        st.s_lshl_b32(sT2, sKH, 3); st.s_add_u32(sSTST, sSTST, sT2); st.s_add_u32(sSTST, sSTST, ST)
        st.s_lshl_b32(sFB, sT1, 10); st.s_add_u32(sFB, sFB, FL)
        st.s_lshl_b32(sT2, sT3, 2); st.s_add_u32(sFXST, sFB, sT2)
        st.s_lshl_b32(sT2, sKH, 10)
        st.s_mul_i32(sHLD, sT1, HB_TB); st.s_add_u32(sHLD, sHLD, sT2); st.s_add_u32(sHLD, sHLD, HB)
        if SPEC & 1:
            post.s_mov_b32(sOLD, sHLD)
            post.s_lshl_b32(sT0, sJ, 11); post.s_add_u32(sOST1, sXLD, sT0); post.s_add_u32(sOST1, sOST1, OB1 - XB)
            post.s_and_b32(sOLD1, sXST, ~32767 & 0xffffffff); post.s_lshl_b32(sT0, sKH, 10); post.s_add_u32(sOLD1, sOLD1, sT0); post.s_add_u32(sOLD1, sOLD1, OB1 - XB)
        if TG:
            st.s_lshl_b32(sT1, sJ, 2); st.s_add_u32(sT1, sT1, sM); st.s_mul_i32(sKVLD, sT1, 16 * TG_W); st.s_add_u32(sKVLD, sKVLD, KVP)
            st.s_mul_i32(sKVST, sC, TG_W); st.s_add_u32(sKVST, sKVST, sKVLD)
        else:
            st.s_mul_i32(sKVLD, sJ, KV_J); st.s_add_u32(sKVLD, sKVLD, KVP)
            st.s_mul_i32(sKVST, sC, KV_REC); st.s_add_u32(sKVST, sKVST, sKVLD)
            st.s_lshl_b32(sT1, sKH, 7); st.s_lshl_b32(sT2, sTP, 5); st.s_add_u32(sT1, sT1, sT2); st.s_add_u32(sKZ, sKVST, sT1); st.s_add_u32(sKZ, sKZ, 2048)
            st.s_lshl_b32(sT1, sKH, 10); st.s_lshl_b32(sT2, sTP, 6); st.s_add_u32(sT1, sT1, sT2); st.s_add_u32(sKVST, sKVST, sT1)
            st.s_lshl_b32(sT1, sM, 6); st.s_add_u32(sGZ, sKVLD, sT1); st.s_add_u32(sGZ, sGZ, 2048)
            st.s_lshl_b32(sT1, sM, 9); st.s_add_u32(sKVLD, sKVLD, sT1)
            st.s_lshl_b32(sFKVLD, sJ, 11); st.s_add_u32(sFKVLD, sFKVLD, FKV)
            st.s_lshl_b32(sT1, sC, oi("fks", 7)); st.s_lshl_b32(sT2, sM, 2); st.s_add_u32(sFKVST, sT1, sT2); st.s_add_u32(sFKVST, sFKVST, sFKVLD)
        for i in range(4): st.v_mov_b32(v(96 + i), 0)
        st.v_and_b32(vT, 3, vL); st.v_mul_u32_u24(vT, 576, vT); st.v_add_u32(vT, L_KVB + 544, vT)
        st.ds_write_b128(vT, v(96, 4))
        st.v_and_b32(vT, 112, vL16); st.v_add_u32(vT, L_SIG, vT)
        st.ds_write_b128(vT, v(96, 4))
        st.v_bfe_u32(vT, vL, 4, 1); st.v_and_b32(vU, 1, vL); st.v_cmp_eq_u32("vcc", vT, vU)
        st.v_mov_b32(vV, 0x3f803f80)
        for i in range(4): st.v_cndmask_b32(v(SELA + i), 0, vV, "vcc")
        if XD: sT0_ = sA0
        else:
            sT0_ = sT0
            st.s_lshl_b32(sT0, sM, 12); st.s_add_u32(sT0, sT0, L_PH)
            st.v_and_b32(vT, 48, vL); st.v_xor_b32(vT, vT, vL16); st.v_add_u32(aW, sT0, vT); st.v_xor_b32(g1, 64, aW)
        st.v_and_b32(vT, 31, vL); st.v_lshrrev_b32(vU, 5, vL); st.v_bfe_u32(vV, vL, 1, 3); st.v_xor_b32(vU, vU, vV)
        st.v_lshlrev_b32(vT, 7, vT); st.v_lshl_add_u32(vT, vU, 4, vT); st.v_add_u32(aRd[0], sT0_, vT)
        for i in range(1, 4): st.v_xor_b32(aRd[i], 32 * i, aRd[0])
        if XD:
            st.s_lshl_b32(sT0, sM, 9); st.s_add_u32(sKc, sA0, sT0); st.s_add_u32(sT0, sT0, 65536)
            for i in range(4): st.v_add_u32(aR4[i], sT0, aRd[i])
        lane_tr(st, vP0, None, "qkv"); ring_addr(post, "trq")
    aR4 = [v(56 + i) for i in range(4)]
    if PRE:
        B = Stream(); post = Stream()
        post.s_mov_b32(sKH, s(96)); post.s_mov_b32(sTP, s(97)); post.s_mov_b32(sKZ, s(41)); post.s_mov_b32(sGZ, s(83))
        block(B, post, s(96), s(97), s(41), s(83))
        print("block", len(B.l), file=sys.stderr)
        o = oi("prer", 0)
        if o:
            k = next(i for i, x in enumerate(B.l) if x.name == "v_mov_b32" and x.ops[0] == "v96")
            B.l = B.l[k:] + B.l[:k]; print("vector part", len(B.l) - k, file=sys.stderr)
        st.extend(B.l[:PRE]); n0, n1 = head(st); LATE = Stream(); LATE.extend(B.l[PRE:]); LATE.extend(post)
        if not oi("late", 0): st.extend(LATE); LATE = Stream()
    else:
        n0, n1 = head(st); post = Stream(); LATE = Stream()
        block(st, post, sKH, sTP, sKZ, sGZ); st.extend(post)
    def rnd(q, st):
        R = XF + 16 * q
        if XD:
            for i in range(4):
                st.ds_read_b128(v(R + 4 * i, 4), (aRd if AREA[q] < 65536 else aR4)[i], mods=f"offset:{AREA[q] % 65536}",
                                tneed=f"x{q}" if i == 0 else None, tset=f"r{q}" if i == 3 else None)
            return
        for g in range(4): st.ds_write_b128(g1 if g & 1 else aW, v(R + 4 * g, 4), mods=f"offset:{1024*g}")
        for i in range(4): st.ds_read_b128(v(R + 4 * i, 4), aRd[i])
    def smf(k, st):
        f = v(XF + 4 * k, 4)
        st.v_mfma_f32_32x32x16_bf16(v(QD, 16), f, f, "0" if k == 0 else v(QD, 16))
        st.v_mfma_f32_16x16x32_bf16(v(SA, 4), v(SELA, 4), f, "0" if k == 0 else v(SA, 4))
    def res(st):
        st.buffer_load_dwordx4(v(RES, 4), aA, X_, sOUTO, mods="offen")
        st.buffer_load_dwordx4(v(RES + 4, 4), aA, X_, sOUTO, mods="offen offset:32")
    hq = oi("hq", 8)
    ORD = [int(c) for c in os_("xord", "01234567")]; assert ORD[:2] == [0, 1] and (hq == 8 or ORD == sorted(ORD))
    if XD:
        hq = 1; n1 = oi("xn1", 5)
        for p in range(n0, n1): xl(p, st)
        stamp(st, "xiss2")
        barrier(st, "s0")
        for p in range(n1, 5): xl(p, st)
        rnd(0, st)
        for k in range(4): smf(k, st)
        rnd(1, st)
        acts = {}
        act = lambda i, f: acts.setdefault(i, []).append(f)
        rps = [int(x) for x in os_("rp", "2,8,14,28,36,44").split(",")]; xps = [int(x) for x in os_("xp", "5,11,17").split(",")]
        for b in range(2, 8): act(rps[b - 2], lambda st, b=b: rnd(b, st))
        for b in range(5, 8): act(xps[b - 5], lambda st, b=b: xl(b, st))
        for k in range(4, 32):
            last = 2 * (k - 4) + oi("sm0", 0); assert k < 8 or last > rps[k // 4 - 2]
            act(last, lambda st, k=k: smf(k, st))
        rp = 0
        stamp(st, "p1pre")
        st.wait(lgkm=0); st.l.append(Ins("s_barrier", [], tneed="c0c"))
        if G.REC: G.SEQ.append("a0")
    else:
      dcap(st, "d1")
      for p in range(n0, n1): xl(ORD[p], st)
      nl = n1; nb = oi("xnb", 8)
      dcap(st, "d2")
      rnd(0, st)
      dcap(st, "r0")
      for q in range(hq):
        if nl < nb: xl(ORD[nl], st); nl += 1
        if q < 7: rnd(ORD[q + 1], st)
        lk = oi("late", 0)
        st.extend(LATE.l[:lk]); LATE.l = LATE.l[lk:]
        if q == hq - 1: st.extend(LATE)
        if q in (0, 2, 4, 6): dcap(st, f"r{q+1}")
        for k in range(4 * ORD[q], 4 * ORD[q] + 4): smf(k, st)
      while nl < nb: xl(ORD[nl], st); nl += 1
      acts = {}
      act = lambda i, f: acts.setdefault(i, []).append(f)
      for n, p in enumerate(range(nl, 8)): act(oi("xat", 0) + oi("xgap", 8) * n, lambda st, p=p: xl(p, st))
      rl = oi("rl", 2); last = 0
      for b in range(hq, 8):
        rp = max(1, 8 * (b - 1) - rl)
        if b > hq: act(rp, lambda st, b=b: rnd(b, st))
        for u in range(4):
            last = max(last + 1, (rp + oi("rs", 5) if b > hq else 0) + 2 * u)
            act(last, lambda st, k=4 * b + u: smf(k, st))
      stamp(st, "p1pre")
      dcap(st, "dp")
      barrier(st, "a0", drain=True)
      dcap(st, "da")
      stamp(st, 62, True); stamp(st, "start"); stamp(st, "karg")
      dflush(st)
    stamp(st, "B(a0)")
    bars = {oi("a1", 20): ("a1", [1])}
    f = Stream()
    M = [s(50 + 2 * i, 2) for i in range(5)]
    for i, bit in enumerate((16, 8, 2, 1)):
        f.v_and_b32(vT, bit, vL); f.v_cmp_ne_u32(M[i], 0, vT)
    f.v_bfe_u32(vT, vL, 2, 1); f.v_lshrrev_b32(vU, 5, vL); f.v_cmp_eq_u32(M[4], vT, vU)
    fm = None
    if hq < 8: fm = f; f = Stream()
    f.v_cndmask_b32(v(SA), v(SA), v(SA + 1), M[0])
    for i in range(8): f.v_cndmask_b32(v(QD + i), v(QD + i), v(QD + 8 + i), M[0])
    for i in range(4): f.v_cndmask_b32(v(QD + i), v(QD + i), v(QD + 4 + i), M[1])
    for i in range(2): f.v_cndmask_b32(v(QD + i), v(QD + i), v(QD + 2 + i), M[2])
    f.v_cndmask_b32(v(QD), v(QD), v(QD + 1), M[3])
    f.v_cndmask_b32(v(QD), 0, v(QD), M[4])
    fin_stats(f, v(SA), v(QD), None, v(QD + 1), NM, RS, VE)
    f.v_mul_f32(LR, sL2E, RS)
    g = Stream(); k_addr(g)
    g2 = g if hq == 8 else Stream()
    lane_tr(g2, vP1, None, "nat")
    g2.s_lshl_b32(sT2, sKH, 6); g2.v_xor_b32(vP1, sT2, vP1); g2.s_lshl_b32(sT2, sKH, 11); g2.v_add_u32(vP1, sT2, vP1)
    fill = Filler()
    r0 = oi("res0", 24)
    if hq == 8:
        act(2, lambda st: fill.add(f)); act(r0, res); act(r0 + 1, lambda st: fill.add(g))
    else:
        act(oi("gat", 1), lambda st: (fill.add(g2), fill.add(fm))); act(max(r0, 25), res)
        act(max(rp + 1, 26), lambda st: fill.add(g)); act(last + 3, lambda st: fill.add(f))
    hooks = {i: (lambda st, l=l: [f(st) for f in l]) for i, l in acts.items()}
    gemm(st, kv_items(), "trq", AF1, 6, 5, ready=[0], bars=bars, hooks=hooks, fill=fill, budget=oi("bud10", 8), pairw=oi("pw1", 0))
    fill.flush(st)
    st.v_add_u32(vNON, 1, vNON)
    st.v_mov_b32(v(125), 1); sigwait(st, 12, 32, cmp="gt")
    k_reads(st)
    st.v_readfirstlane_b32(sNONCE, vNON)
    signal(st, 2, 32)
    st.s_add_u32(sH5, sHST, 16384 * 5); st.s_add_u32(sF5, sDUM, 1024)
    st.s_cmp_eq_u32(sT6, 1); st.s_cselect_b32(sH5, sH5, sDUM); st.s_cselect_b32(sF5, sFJ, sF5)
    stamp(st, "KVgemm")

def frag_loads(base, regs, stride, per, WS=WS, xor=False):
    out = []
    for k, r in enumerate(regs):
        def f(st, k=k, r=r):
            if k % per == 0: (st.s_xor_b32 if xor else st.s_add_u32)(sLD, base, k * stride)
            st.buffer_load_dwordx4(v(r, 4), vL16, WS, sLD, mods=f"offen offset:{(k % per) * stride} {SCL}")
        out.append(f)
    return out

def x_addr(st):
    st.v_lshrrev_b32(vV, 5, vL); st.v_lshlrev_b32(vV, 11, vV); st.v_and_b32(vU, 31, vL); st.v_lshl_add_u32(vV, vU, 4, vV)
def p1a_pre(st):
    ring_next(st, "trq"); x_addr(st)
def p3_pre(st):
    st.v_and_b32(vU, 31, vL); st.v_lshlrev_b32(aCS3, 2, vU); st.v_add_u32(aCS3, L_CS + 3 * 128, aCS3)
    ring_next(st, "b128"); x_addr(st)
    st.s_add_u32(sT0, sRING, 0x10000); st.s_and_b32(sT0, sT0, 0x1ffff); st.v_add_u32(vA1, sT0, vL16)
    st.s_lshl_b32(sT0, sM, 12); st.s_add_u32(sT0, sT0, L_PH); st.v_add_u32(aXW, sT0, vL16)
def x_loads(st, stt, at=32, rot=False):
    L = frag_loads(sXR if rot else sXLD, [XF + 4 * k for k in range(32)], 1024, 4, XS, xor=rot)
    def stl(st):
        for i in range(4):
            st.buffer_load_dwordx4(v(stt + 4 * i, 4), vV, WS, sSTLD, mods=f"offen offset:{512*i} {SCL}")
    return L[:at] + [stl] + L[at:]

def featmap(st, acc, kb, wp, e1, e2, lr, mid=None, hk=None):
    n0 = len(st.l)
    featmap_(st, acc, kb, wp, e1, e2, lr, mid)
    for at in sorted(hk or {}, reverse=True):
        x = Stream(); hk[at](x); st.l[n0 + at:n0 + at] = x.l
def featmap_(st, acc, kb, wp, e1, e2, lr, mid=None):
    for i in range(8): st.v_cvt_pk_bf16_f32(v(kb + i), v(acc + 2 * i), v(acc + 2 * i + 1))
    st.v_mfma_f32_32x32x16_bf16(v(acc, 16), v(wp, 4), v(kb, 4), "0")
    st.v_mfma_f32_32x32x16_bf16(v(acc, 16), v(wp + 4, 4), v(kb + 4, 4), v(acc, 16))
    if mid: mid(st)
    mx, mn = v(kb), v(kb + 1)
    p = lambda i: v(acc + i)
    st.v_max3_f32(mx, p(0), p(1), p(2)); st.v_min3_f32(mn, p(0), p(1), p(2))
    for i in range(3, 15, 2):
        st.v_max3_f32(mx, mx, p(i), p(i + 1)); st.v_min3_f32(mn, mn, p(i), p(i + 1))
    st.v_max_f32(mx, mx, p(15)); st.v_min_f32(mn, mn, p(15))
    pk(st, "mul", kb, bc(lr), kb)
    for i in range(0, 16, 2):
        pk(st, "fma", e1 + i, acc + i, bc(lr), bc(kb, True)); pk(st, "fma", e2 + i, ng(acc + i), bc(lr), bc(kb + 1))
    for i in range(16):
        st.v_exp_f32(v(e1 + i), v(e1 + i)); st.v_exp_f32(v(e2 + i), v(e2 + i))
    s1, s2 = kb + 2, kb + 4
    pk(st, "add", s1, e1, e1 + 2); pk(st, "add", s2, e2, e2 + 2)
    for i in range(4, 16, 2):
        pk(st, "add", s1, s1, e1 + i); pk(st, "add", s2, s2, e2 + i)
    st.v_add_f32(v(s1), v(s1), v(s1 + 1)); st.v_add_f32(v(s2), v(s2), v(s2 + 1))
    st.v_rcp_f32(v(s1), v(s1)); st.v_rcp_f32(v(s2), v(s2))
    for i in range(0, 16, 2):
        pk(st, "mul", e1 + i, bc(s1), e1 + i); pk(st, "mul", e2 + i, bc(s2), e2 + i)
    for i in range(8):
        st.v_cvt_pk_bf16_f32(v(e1 + i), v(e1 + 2 * i), v(e1 + 2 * i + 1))
        st.v_cvt_pk_bf16_f32(v(e2 + i), v(e2 + 2 * i), v(e2 + 2 * i + 1))

def p1a(st):
    at = oi("st1", 22)
    L = x_loads(st, STT, at)
    stamp(st, "p1pre")
    if "l" not in os_("nopoll", ""): poll2(st, vFL, sFA, 0, oi("gfx", -1))
    stamp(st, "FXpoll")
    pre = oi("pre1", 10)
    for f in L[:pre]: f(st)
    nxt(st)
    barrier(st, "a0")
    stamp(st, "B(a0)")
    fill = Filler()
    f = Stream(); stats(f, STT, NM, RS, VE); f.v_mul_f32(LR, sL2E, RS); k_reads(f, "v")
    g = Stream(); k_addr(g); k_reads(g, "wk")
    hooks = {2: lambda st: fill.add(g), oi("sth1", 2 * at + 2): lambda st: fill.add(f)}
    gemm(st, kv_items(), "trq", AF1, 6, 5, ready=[0], bars={oi("a1", 20): ("a1", [1]), oi("a2", 56): ("a2", [])}, loads=L[pre:], pre=0,
         hooks=hooks, fill=fill, budget=oi("bud1", 8), pairw=oi("pw1", 0))
    fill.flush(st)
    stamp(st, "KVgemm")

def gather_flagged(st, AF, aPL, aGZ, aGK, XT):
    ep = [int(x) for x in os_("kvp", "").split(",") if x]
    featmap(st, aQ, AF, WPH, aK, aV, LR, hk={a: (lambda x, r=r: pload(x, r, aPL, sFKVLD)) for a, r in zip(ep, (PRA, PRB))})
    stamp(st, "Q done")
    if OPT.get("dcap") == "2": st.wait(vm=0); dcap(st, "kf2", reg=126)
    poll2(st, aPL, sFKVLD, 0, oi("gkv", -1), len(ep))
    dflush(st)
    stamp(st, "FKVpoll")
    Gr, Z, SG, GA = XF, XF + 64, XF + 32, XF + 48
    nt = os_("gm", "sc1").replace("+", " ").replace("-", "")
    for cc in range(8):
        if cc: st.s_add_u32(sT0, sKVLD, 2 * cc * KV_REC)
        st.buffer_load_dwordx4(v(Gr + 4 * cc, 4), aGK, WS, sT0 if cc else sKVLD, mods="offen " + nt)
    for i in range(4):
        if i: st.s_add_u32(sT1, sGZ, 4 * i * KV_REC)
        st.buffer_load_dword(v(Z + i), aGZ, WS, sT1 if i else sGZ, mods="offen " + nt)
    if G.TAG == "f":
        st.s_lshl_b32(sT2, sC, 7); st.s_add_u32(sT2, sT2, XCCT)
        st.buffer_load_dword(XT, vFL, WS, sT2, mods="offen sc1")
        if oi("gsig", 0): signal(st, 1, 64)
    nxt(st)
    st.s_mul_i32(sT0, sM, 576); st.s_add_u32(sT0, sT0, L_KVB)
    st.v_and_b32(vT, 31, vL)
    st.v_and_b32(vU, 1, vL); st.v_lshlrev_b32(vU, 4, vU); st.v_mov_b32(vV, 0x3f80); st.v_lshlrev_b32(vU, vU, vV); st.v_lshrrev_b32(vV, 1, vT)
    for i in range(4):
        st.v_cmp_eq_u32("vcc", i, vV); st.v_cndmask_b32(v(SG + i), 0, vU, "vcc")
    st.v_lshlrev_b32(vT, 4, vT)
    st.v_lshrrev_b32(vU, 5, vL)
    st.v_lshl_add_u32(aA, vU, 3, vT); st.v_add_u32(aA, sT0, aA)
    st.v_lshrrev_b32(aB, 1, vFL); st.v_add_u32(aB, sT0, aB)
    st.v_bfe_u32(vV, vL, 2, 1); st.v_cmp_eq_u32("vcc", vV, vU)
    st.v_mov_b32(vV, 544); st.v_cndmask_b32(vT, vV, vT, "vcc"); st.v_add_u32(aR1, L_KVB, vT)
    st.v_lshlrev_b32(vU, 4, vU); st.v_add_u32(aR2, L_KVB + 512, vU)
    for cc in range(8):
        st.v_mfma_f32_32x32x16_bf16(v(GA, 16), v(SG, 4), v(Gr + 4 * cc, 4), "0" if cc == 0 else v(GA, 16))
    st.v_add_f32(v(Z), v(Z), v(Z + 1)); st.v_add_f32(v(Z + 2), v(Z + 2), v(Z + 3)); st.v_add_f32(v(Z), v(Z), v(Z + 2))
    st.v_mov_b32(v(Z + 1), v(Z)); st.v_permlane32_swap_b32(v(Z), v(Z + 1)); st.v_add_f32(v(Z), v(Z), v(Z + 1))
    st.v_mov_b32(v(Z + 1), v(Z)); st.v_permlane16_swap_b32(v(Z), v(Z + 1)); st.v_add_f32(v(Z), v(Z), v(Z + 1))
    st.v_cvt_pk_bf16_f32(v(Z), v(Z), v(Z))
    st.ds_write_b16(aB, v(Z), mods="offset:512")
    st.v_cvt_pk_bf16_f32(v(GA), v(GA), v(GA + 1)); st.v_cvt_pk_bf16_f32(v(GA + 1), v(GA + 2), v(GA + 3))
    st.ds_write_b64(aA, v(GA, 2))

def gather_tagged(st, AF, aPL, aGK, XT):
    Gr, SG, GA, ZS, ER = XF, XF + 64, XF + 68, v(XF + 73), v(XF + 74)
    aZ = v(XF + 75)
    nt = os_("gm", "sc1").replace("+", " ").replace("-", "")
    sTG = sT3
    def ld(st, c, base=False):
        if (c % 4 == 0 or base) and c >= 4: st.s_add_u32(sT0, sKVLD, c // 4 * 4 * TG_W)
        st.buffer_load_dwordx4(v(Gr + 4 * c, 4), aGK, WS, sT0 if c >= 4 else sKVLD, mods=f"offen offset:{c % 4 * TG_W} " + nt)
        if c == 15 and G.TAG == "f" and not base:
            st.s_lshl_b32(sT2, sC, 7); st.s_add_u32(sT2, sT2, XCCT)
            st.buffer_load_dword(XT, vFL, WS, sT2, mods="offen sc1")
    at = oi("tga", 40); gs = oi("tgs", 3)
    tmp = Stream(); featmap_(tmp, aQ, AF, WPH, aK, aV, LR); nf = len(tmp.l)
    hk = {}
    for c in range(16):
        if at + gs * c < nf: hk.setdefault(at + gs * c, []).append(c)
    done = sum(hk.values(), [])
    featmap(st, aQ, AF, WPH, aK, aV, LR, hk={k: (lambda x, l=l: [ld(x, c) for c in l]) for k, l in hk.items()})
    stamp(st, "Q done")
    st.s_and_b32(sTG, sNONCE, TGM)
    for c in range(16):
        if c not in done: ld(st, c)
    stamp(st, "FKVpoll")
    st.v_and_b32(vU, 1, vL); st.v_lshlrev_b32(vU, 4, vU); st.v_mov_b32(vV, 0x3f80); st.v_lshlrev_b32(vU, vU, vV)
    st.v_bfe_u32(vT, vL, 2, 2); st.v_bfe_u32(vV, vL, 1, 1); st.v_cmp_eq_u32("vcc", 3, vT)
    st.v_cndmask_b32(vT, vT, vV, "vcc"); st.v_cndmask_b32(vV, vV, 2, "vcc")
    st.v_lshrrev_b32(ER, 4, vL); st.v_cmp_eq_u32("vcc", vT, ER); st.v_cndmask_b32(vU, 0, vU, "vcc")
    for i in range(3):
        st.v_cmp_eq_u32("vcc", i, vV); st.v_cndmask_b32(v(SG + i), 0, vU, "vcc")
    st.v_mov_b32(v(SG + 3), 0)
    st.s_mul_i32(sT0, sKH, 2 * 576); st.s_add_u32(sT0, sT0, L_KVB); st.s_lshl_b32(sT1, sTP, 6); st.s_add_u32(sT1, sT1, sT0)
    st.v_lshrrev_b32(vU, 5, vL); st.v_mul_u32_u24(aA, 576, vU); st.v_bfe_u32(vT, vL, 2, 2); st.v_lshl_add_u32(aA, vT, 7, aA)
    st.v_and_b32(vT, 3, vL); st.v_lshl_add_u32(aA, vT, 4, aA); st.v_bfe_u32(vT, vL, 4, 1); st.v_lshl_add_u32(aA, vT, 3, aA); st.v_add_u32(aA, sT1, aA)
    st.s_lshl_b32(sT1, sTP, 4); st.s_add_u32(sT1, sT1, sT0); st.s_add_u32(sT1, sT1, 512)
    st.v_bfe_u32(vT, vL, 3, 1); st.v_mul_u32_u24(aZ, 576, vT); st.v_and_b32(vT, 7, vL); st.v_lshl_add_u32(aZ, vT, 1, aZ); st.v_add_u32(aZ, sT1, aZ)
    st.v_mov_b32(vV, L_KVB + 560); st.v_cmp_gt_u32("vcc", 32, vL); st.v_cndmask_b32(aZ, aZ, vV, "vcc")
    st.v_and_b32(vT, 31, vL); st.v_lshlrev_b32(vT, 4, vT)
    st.v_bfe_u32(vV, vL, 2, 1); st.v_cmp_eq_u32("vcc", vV, vU)
    st.v_mov_b32(vV, 544); st.v_cndmask_b32(vT, vV, vT, "vcc"); st.v_add_u32(aR2, L_KVB, vT)
    V, X, D = newlab("kvv"), newlab("kvx"), newlab("kvd")
    st.label(V)
    for c in range(16):
        g = Gr + 4 * c
        st.v_dot2_f32_bf16(ZS, v(g + 2), sONE, 0 if c == 0 else ZS)
        if c == 0: st.v_xor_b32(ER, sTG, v(g + 3))
        else: st.v_xor_b32(vT, sTG, v(g + 3)); st.v_or_b32(ER, vT, ER)
        st.v_mfma_f32_16x16x32_bf16(v(GA, 4), v(SG, 4), v(g, 4), "0" if c == 0 else v(GA, 4))
    st.v_cmp_ne_u32("vcc", 0, ER)
    st.s_cbranch_vccnz(X)
    st.label(D)
    OOL.label(X); OOL.mark("reset")
    OOL.s_sub_u32(sCNT, sCNT, 1); OOL.s_cselect_b32(sCNT, 0, sCNT); OOL.s_cbranch_scc1(D)
    OOL.s_mov_b32(sT1, 0)
    tail = Stream()
    for c in range(16):
        K = newlab("kvk")
        OOL.v_cmp_ne_u32("vcc", sTG, v(Gr + 4 * c + 3))
        if oi("tgf", 1):
            M_ = newlab("kvm")
            OOL.s_cbranch_vccnz(M_); OOL.label(K)
            tail.label(M_); tail.mark("reset"); ld(tail, c, True); tail.s_mov_b32(sT1, 1); tail.s_branch(K)
            continue
        OOL.s_cbranch_vccz(K)
        ld(OOL, c, True); OOL.s_mov_b32(sT1, 1)
        OOL.label(K); OOL.mark("reset")
    OOL.wait(vm=0)
    for _ in range(oi("tgb", 0)): OOL.s_nop(15)
    OOL.s_cmp_lg_u32(sT1, 0); OOL.s_cbranch_scc1(X)
    OOL.s_branch(V)
    OOL.extend(tail)
    nxt(st)
    st.v_mov_b32(aR1, aR2)
    st.v_lshrrev_b32(vU, 5, vL); st.v_lshlrev_b32(vU, 4, vU); st.v_add_u32(aR2, L_KVB + 512, vU)
    st.v_cvt_pk_bf16_f32(ZS, ZS, ZS)
    st.ds_write_b16(aZ, ZS)
    st.v_cvt_pk_bf16_f32(v(GA), v(GA), v(GA + 1)); st.v_cvt_pk_bf16_f32(v(GA + 1), v(GA + 2), v(GA + 3))
    st.ds_write_b64(aA, v(GA, 2))

def p1b(st):
    AF = AF1
    for i in range(0, 16, 2): pk(st, "fma", aK + i, CK + i, bc(NM), aK + i)
    def vpart(st):
        for i in range(0, 16, 2): pk(st, "fma", aV + i, CV + i, bc(NM), aV + i)
        for i in range(0, 16, 2): pk(st, "mul", aV + i, bc(RS), aV + i)
        for i in range(8): st.v_cvt_pk_bf16_f32(v(aV + i), v(aV + 2 * i), v(aV + 2 * i + 1))
        st.ds_write_b128(aB, v(aV, 4)); st.ds_write_b128(aB, v(aV + 4, 4), mods="offset:16")
    featmap(st, aK, AF, WPH, STT, aQ, LR, mid=vpart)
    st.ds_write_b128(aA, v(STT, 4)); st.ds_write_b128(aA, v(STT + 4, 4), mods="offset:16")
    st.ds_write_b128(aA, v(aQ, 4), mods="offset:32"); st.ds_write_b128(aA, v(aQ + 4, 4), mods="offset:48")
    signal(st)
    TA, TB, ONE, AKV, AZ = 16, 32, 96, 100, 104
    def shadow(st):
        st.v_lshrrev_b32(vT, 4, vL); st.v_lshlrev_b32(vT, 3, vT); st.v_bfe_u32(vU, vL, 2, 2); st.v_add_u32(vT, vT, vU)
        st.v_and_b32(vU, 3, vL); st.v_lshlrev_b32(vU, 3, vU)
        st.s_lshl_b32(sT0, sM, 5); st.s_add_u32(sT0, sT0, L_PH)
        st.v_mul_u32_u24(aR1, 144, vT); st.v_add3_u32(aR1, aR1, vU, sT0)
        st.s_lshl_b32(sT0, sTP, 5); st.s_add_u32(sT0, sT0, L_VB)
        st.v_mul_u32_u24(aR2, 80, vT); st.v_add3_u32(aR2, aR2, vU, sT0)
        ring_next(st, "trq")
    SPL = oi("spl", 1)
    sigwait(st, 12 if SPL else 28, extra=shadow)
    stamp(st, "Kepi+B")
    def kvpart(st):
        for k in range(4):
            for q in range(2):
                st.ds_read_b64_tr_b16(v(TA + 4 * k + 2 * q, 2), aR1, mods=f"offset:{(32*k+4*q)*144}")
                st.ds_read_b64_tr_b16(v(TB + 4 * k + 2 * q, 2), aR2, mods=f"offset:{(32*k+4*q)*80}")
        for i in range(4): st.v_mov_b32(v(ONE + i), sONE)
        if TG:
            for k in range(4):
                st.v_mfma_f32_16x16x32_bf16(v(AZ, 4), v(ONE, 4), v(TA + 4 * k, 4), "0" if k == 0 else v(AZ, 4))
                st.v_mfma_f32_16x16x32_bf16(v(AKV, 4), v(TA + 4 * k, 4), v(TB + 4 * k, 4), "0" if k == 0 else v(AKV, 4))
            P = 108
            st.v_and_b32(v(P + 3), TGM, vNON)
            st.v_and_b32(v(AZ + 1), 0xffff0000, v(AZ)); st.v_sub_f32(v(AZ), v(AZ), v(AZ + 1)); st.v_cvt_pk_bf16_f32(v(P + 2), v(AZ + 1), v(AZ))
            st.v_cvt_pk_bf16_f32(v(AZ + 2), v(AKV), v(AKV + 1)); st.v_cvt_pk_bf16_f32(v(AZ + 3), v(AKV + 2), v(AKV + 3))
            st.v_cvt_pk_bf16_f32(v(P), v(AKV), v(AKV + 1)); st.v_cvt_pk_bf16_f32(v(P + 1), v(AKV + 2), v(AKV + 3))
            st.v_permlane16_swap_b32(v(AZ + 2), v(AZ + 3)); st.v_permlane32_swap_b32(v(AZ + 3), v(P + 2))
            st.s_mov_b32("exec_hi", 0xffff)
            st.buffer_store_dwordx4(v(P, 4), vL16, WS, sKVST, mods="offen " + os_("km", "sc1").replace("+", " "), tset="kv")
            st.s_mov_b32("exec_hi", -1)
            if oi("ksig", 0):
                st.s_lshl_b32(sT3, sW, 2); st.s_add_u32(sT3, sT3, L_SIG + 64); st.v_mov_b32(vT, sT3); st.ds_write_b32(vT, v(125))
        else:
            st.v_lshrrev_b32(vT, 5, vL); st.v_lshlrev_b32(vV, 9, vT); st.v_bfe_u32(vU, vL, 4, 1); st.v_lshl_add_u32(vV, vU, 3, vV)
            st.v_lshlrev_b32(vT, 6, vT); st.v_lshl_add_u32(vT, vU, 4, vT)
            st.v_bfe_u32(vU, vL, 2, 2); st.v_lshl_add_u32(vV, vU, 7, vV); st.v_and_b32(vU, 3, vL); st.v_lshl_add_u32(vV, vU, 4, vV)
            for k in range(4):
                st.v_mfma_f32_16x16x32_bf16(v(AKV, 4), v(TA + 4 * k, 4), v(TB + 4 * k, 4), "0" if k == 0 else v(AKV, 4))
                st.v_mfma_f32_16x16x32_bf16(v(AZ, 4), v(TA + 4 * k, 4), v(ONE, 4), "0" if k == 0 else v(AZ, 4))
            st.v_cvt_pk_bf16_f32(v(AKV), v(AKV), v(AKV + 1)); st.v_cvt_pk_bf16_f32(v(AKV + 1), v(AKV + 2), v(AKV + 3))
            st.buffer_store_dwordx2(v(AKV, 2), vV, WS, sKVST, mods="offen sc1")
            st.buffer_store_dwordx4(v(AZ, 4), vT, WS, sKZ, mods="offen sc1", tset="kv")
    if SPL: sigwait(st, 12, 16, extra=kvpart)
    else: kvpart(st)
    stamp(st, "kv st")
    items = []
    for k in range(16):
        for t in range(2):
            items.append(dict(chunk=0, off=k * 2048, t=t, acc=aQ, b=XF + 4 * (k + 16 * t), first=(k, t) == (0, 0)))
    def kvflag(st):
        dcap(st, "kf0", reg=124)
        st.buffer_store_dword(vNON, "off", WS, sFKVST, mods="sc1", tneed="kv")
        dcap(st, "kf1", reg=125)
    CS = 16
    aPL, aGZ, aGK = aR1, aR2, aB
    f = Stream()
    for i in range(4): f.ds_read_b128(v(CS + 4 * i, 4), aCS, mods=f"offset:{256+16*i}")
    if TG:
        f.v_and_b32(aPL, 15, vL); f.v_mul_u32_u24(aPL, TG_W, aPL)
        f.v_subrev_u32(vU, 256, vL16); f.v_cmp_gt_u32("vcc", 48, vL); f.v_cndmask_b32(aGK, vU, vL16, "vcc")
    else:
        f.v_lshrrev_b32(aPL, 2, vL); f.v_lshlrev_b32(aPL, oi("fks", 7), aPL); f.v_and_b32(vU, 3, vL); f.v_lshl_add_u32(aPL, vU, 2, aPL)
        f.v_lshrrev_b32(aGZ, 4, vL); f.v_mul_u32_u24(aGZ, KV_REC, aGZ); f.v_add_u32(aGZ, aGZ, vFL)
        f.v_lshrrev_b32(aGK, 5, vL); f.v_mul_u32_u24(aGK, KV_REC - 512, aGK); f.v_add_u32(aGK, aGK, vL16)
    fill = Filler()
    gemm(st, items, "trq", AF, 6, 5, ready=[0], hooks={4: lambda st: fill.add(f)} if TG else {4: lambda st: fill.add(f), oi("kvflag", 24): kvflag}, fill=fill, budget=8, pairw=oi("pwq", 0))
    fill.flush(st)
    stamp(st, "Qgemm")
    for i in range(0, 16, 2): pk(st, "fma", aQ + i, CS + i, bc(NM), aQ + i)
    XT = v(XF + 72)
    if TG: gather_tagged(st, AF, aPL, aGK, XT)
    else: gather_flagged(st, AF, aPL, aGZ, aGK, XT)
    if DG: signal(st, None, 64)
    if G.TAG == "f":
        OK = newlab("xok"); L = newlab("xpoll"); D = newlab("xdec")
        st.s_cmp_lg_u32(sPAIR, 0)
        st.mark("save", OK)
        st.s_cbranch_scc1(OK)
        st.s_add_u32(sT0, sNONCE, 14); st.s_add_u32(sT1, sT0, sXC)
        st.v_cmp_ne_u32("vcc", sT1, XT)
        if not OPT.get("slow"): st.s_cbranch_vccz(OK)
        st.label(L)
        st.buffer_load_dword(XT, vFL, WS, sT2, mods="offen sc1")
        st.wait(vm=0)
        st.v_subrev_u32(vT, sT0, XT)
        st.v_cmp_le_u32("vcc", 16, vT)
        st.s_cbranch_vccz(D)
        st.s_sub_u32(sCNT, sCNT, 1)
        st.s_cbranch_scc0(L)
        st.s_mov_b32(sCNT, 0)
        st.label(D)
        st.v_cmp_ne_u32("vcc", sT1, XT)
        st.mark("save", "toslow")
        if OPT.get("slow"): st.s_branch(".Lg_s")
        else: st.s_cbranch_vccnz(".Lg_s")
        st.mark("merge", OK)
        st.label(OK)
    else:
        st.mark("merge", "toslow")
        st.label(".Lg_s")
    if DG: sigwait(st, 12, 64)
    else: barrier(st, "g", drain=True)
    stamp(st, "gather+B")

def p1c(st):
    PHQ = [aK, aK + 4, aV, aV + 4]
    KA, ZA, NUM, DEN = XF, XF + 16, 48, v(64)
    for u in range(4): st.ds_read_b128(v(KA + 4 * u, 4), aR1, mods=f"offset:{576*u}")
    for u in range(4): st.ds_read_b128(v(ZA + 4 * u, 4), aR2, mods=f"offset:{576*u}")
    st.v_mov_b32(DEN, f2u(1e-6)); st.v_mov_b32(v(65), 0)
    st.v_lshrrev_b32(vU, 5, vL); st.v_lshl_add_u32(aA, vU, 9, vL16)
    for u in range(4):
        st.v_mfma_f32_32x32x16_bf16(v(NUM, 16), v(KA + 4 * u, 4), v(PHQ[u], 4), "0" if u == 0 else v(NUM, 16))
        for i in range(4):
            dd = DEN if i % 2 == 0 else v(65)
            st.v_dot2_f32_bf16(dd, v(PHQ[u] + i), v(ZA + 4 * u + i), dd)
    st.v_add_f32(DEN, DEN, v(65))
    st.v_rcp_f32(DEN, DEN)
    for i in range(0, 16, 2): pk(st, "mul", NUM + i, bc(DEN), NUM + i)
    for i in range(8): st.v_cvt_pk_bf16_f32(v(NUM + i), v(NUM + 2 * i), v(NUM + 2 * i + 1))
    st.buffer_store_dwordx4(v(NUM, 4), aA, WS, sOST, mods=f"offen {G.SC}")
    st.buffer_store_dwordx4(v(NUM + 4, 4), aA, WS, sOST, mods=f"offen offset:512 {G.SC}", tset="o")
    ring_next(st, "trn")
    res_init(st, 16)
    st.s_lshl_b32(sT0, sM, 12); st.s_add_u32(sT0, sT0, L_PH); st.v_add_u32(aXW, sT0, vL16)
    if SPEC & 1:
        st.s_mov_b32(sOST, sOST1); st.s_lshr_b32(sMASK, sM, 2)
        for i in range(16): st.v_mov_b32(v(32 + i), 0)
    else: st.buffer_store_dword(vNON, "off", WS, sFJ, mods=f"offset:128 {G.SC}", tneed=None if OPT.get("noack") else "o")
    if TG:
        for r in (sKVST, sKVLD): st.s_add_u32(r, r, TG_P)
        return
    for r in (sKVST, sKVLD, sKZ, sGZ): st.s_add_u32(r, r, KV_P)
    fp = 16 if oi("fkw", 1) else 256 * 128
    st.s_add_u32(sFKVST, sFKVST, fp); st.s_add_u32(sFKVLD, sFKVLD, fp)

def small_items(nsteps, breg, accs=(16, 32)):
    items = []
    for k in range(nsteps):
        for t in ((1, 0) if k == nsteps - 1 else (0, 1)):
            items.append(dict(chunk=k // 8, off=(k % 8) * 4096, t=t, acc=accs[t], b=breg(k), first=k == 0 and t == 1))
    return items
def res_init(st, a):
    for i in range(8):
        st.v_lshlrev_b32(v(a + 2 * i), 16, v(RES + i)); st.v_and_b32(v(a + 2 * i + 1), 0xffff0000, v(RES + i))

def xepi(st, last):
    aB_, T, P = (96, 48, 16) if last else (32, 16, 48)
    aX = aXW
    for i in range(4): st.ds_write_b128(aX, v(aB_ + 4 * i, 4), mods=f"offset:{1024*i}")
    st.v_xor_b32(aX, 4096, aX)
    barrier(st, "X4" if last else "X2", drain=True)
    for i in range(4): st.ds_read_b128(v(P + 4 * i, 4), aX, mods=f"offset:{1024*i}")
    st.v_and_b32(aX, 31, vL); st.v_lshlrev_b32(aX, 4, aX); st.v_lshrrev_b32(vT, 5, vL); st.v_lshl_add_u32(aX, vT, 2, aX)
    for i in range(4):
        for k in (4 * i, 4 * i + 2): pk(st, "add", T + k, T + k, P + k)
        for k in (2 * i, 2 * i + 1): st.v_cvt_pk_bf16_f32(v(RES + k), v(T + 2 * k), v(T + 2 * k + 1))
    LF = newlab("fin")
    if last:
        st.mark("save", LF)
        st.s_cmp_eq_u32(sPAIR, 1); st.s_cbranch_scc1(LF)
    st.buffer_store_dwordx4(v(RES, 4), vL16, XS, sXST, mods=f"offen {G.SC}")
    st.buffer_store_dwordx4(v(RES + 4, 4), vL16, XS, sXST, mods=f"offen offset:1024 {G.SC}")
    S, Q, S2, Q2 = v(T), v(T + 1), v(T + 2), v(T + 3)
    st.v_dot2_f32_bf16(S, v(RES), sONE, 0); st.v_dot2_f32_bf16(Q, v(RES), v(RES), 0)
    st.v_dot2_f32_bf16(S2, v(RES + 1), sONE, 0); st.v_dot2_f32_bf16(Q2, v(RES + 1), v(RES + 1), 0)
    for i in range(2, 8, 2):
        st.v_dot2_f32_bf16(S, v(RES + i), sONE, S); st.v_dot2_f32_bf16(Q, v(RES + i), v(RES + i), Q)
        st.v_dot2_f32_bf16(S2, v(RES + i + 1), sONE, S2); st.v_dot2_f32_bf16(Q2, v(RES + i + 1), v(RES + i + 1), Q2)
    pk(st, "add", T, T, T + 2)
    st.v_permlane32_swap_b32(S, Q); st.v_add_f32(S, S, Q)
    st.buffer_store_dword(S, aX, WS, sSTST, mods=f"offen {G.SC}", tset="x")
    if last and oi("xsig", 0): signal(st, 1, 80)
    (p1a_pre if last else p3_pre)(st)
    st.buffer_store_dword(vNON, "off", WS, sFXST, mods=G.SC, tneed=None if OPT.get("noack") else "x")
    if last:
        st.s_mov_b32(sPAIR, 1)
        st.s_branch(f".Lpair_{G.TAG}")
        st.label(LF); st.mark("restore", LF)
        st.v_and_b32(aX, 31, vL); st.v_lshlrev_b32(aX, 10, aX); st.v_lshrrev_b32(vT, 5, vL); st.v_lshl_add_u32(aX, vT, 4, aX)
        om = os_("om", "").replace("+", " ")
        st.buffer_store_dwordx4(v(RES, 4), aX, OUT, sOUTO, mods="offen " + om)
        st.buffer_store_dwordx4(v(RES + 4, 4), aX, OUT, sOUTO, mods="offen offset:32 " + om)

def tr_use(o, addr, off, acc, b, tmp):
    o.ds_read_b64_tr_b16(v(tmp, 2), addr, mods=f"offset:{off}"); o.ds_read_b64_tr_b16(v(tmp + 2, 2), addr, mods=f"offset:{off+512}")
    return lambda: o.v_mfma_f32_32x32x16_bf16(v(acc, 16), v(tmp, 4), v(b, 4), v(acc, 16))
def prev_chunk(o, vP, d0, d1):
    o.s_sub_u32(sTX, sRING, 0x8000); o.s_and_b32(sTX, sTX, 0x1ffff); o.v_add_u32(d0, sTX, vP); o.v_xor_b32(d1, 64, d0)

def p2(st):
    stamp(st, "o stored")
    items = small_items(16, lambda k: XF + 4 * k); sp = None; pre = oi("pre2", 10); hooks = {1: nxt}
    if SPEC & 1:
        L = frag_loads(sOLD, [XF + 4 * k for k in range(16)], 2048, 2)
        def load(o, k):
            o.s_add_u32(sTX, sOLD, k * 2048); o.buffer_load_dwordx4(v(XF + 4 * k, 4), vL16, WS, sTX, mods=f"offen {SCL}")
        c0 = (v(72), v(73))
        def use(o, k):
            m = [tr_use(o, (c0 if k < 8 else (vA0, vA1))[t], (k % 8) * 4096, (16, 32)[t], XF + 4 * k, 48 + 4 * t) for t in range(2)]
            for f in m: f()
        sp = Spec(16, lambda k: XF + 4 * k, load, use, head=lambda o: prev_chunk(o, vP1, *c0))
        for i, it in enumerate(items): it["first"] = False; it["guard"] = ("chk", i // 2) if i % 2 == 0 else ("vcc",)
        for _ in range(oi("od", 0)): st.s_nop(15)
        gn = oi("gno", 4)
        if gn < 16: sp.probe(st, sOLD, 12)
        for f in L[:pre]: f(st)
        if gn < 16: hooks[0] = lambda st, a=L[:pre]: (sp.gate(st, sOLD, 12, a, gn), stamp(st, "FOpoll"))
        L = L[pre:]; pre = 0
    elif DG:
        L = frag_loads(sHLD, [XF + 4 * k for k in range(16)], 2048, 2)
        def first(st):
            poll2(st, vFL, sFB, 128, oi("gfo", -1))
            stamp(st, "FOpoll")
            for f in L[:pre]: f(st)
        sigwait(st, 12, 80, regs=(124, 125, 48), extra=first)
        stamp(st, "Wo ok")
        L = L[pre:]; pre = 0
        hooks[oi("p2a", 12) + 1] = lambda st: signal(st, None, 96)
    else:
        if "o" not in os_("nopoll", ""): poll2(st, vFL, sFB, 128, oi("gfo", -1))
        L = frag_loads(sHLD, [XF + 4 * k for k in range(16)], 2048, 2)
        stamp(st, "FOpoll")
    gemm(st, items, "trn", 48, 6, 5, ready=[0, 1], loads=L, pre=pre, hooks=hooks, pairw=oi("pw2", 0),
         bars={oi("p2a", 12): ("p2", [])} if oi("p2a", 12) and not DG else None, spec=sp)
    if sp: stamp(st, "P2main"); vstamp(st, "nmo"); sp.fix(st); st.s_mov_b32(sOLD, sOLD1)
    stamp(st, "P2gemm")
    xepi(st, False)

def stream(st, items, af, nslots, depth, hooks, fill, budget, watch=None, slots=None, gw=1, spec=None):
    n = len(items); nr = 0
    gemm_n[0] += 1; tg = f"g{gemm_n[0]}_"
    G_ = (lambda i: gw) if not callable(gw) else gw
    def pump(upto):
        nonlocal nr
        while nr < n and nr <= upto:
            items[nr]["rd"](st, af + 4 * (nr % nslots)); st.l[-1].dst = st.l[-1].dst | {("t", tg + str(nr))}; nr += 1
    pump(depth - 1)
    nextw = 0; err = 0.0
    for i in range(n):
        it = items[i]
        acc = v(it["acc"], 16)
        tn = None
        if i == nextw:
            nextw = i + G_(i); tn = tg + str(min(nextw, nr) - 1)
        st.v_mfma_f32_32x32x16_bf16(acc, v(af + 4 * (i % nslots), 4), v(it["b"], 4), "0" if it["first"] else acc, tneed=tn)
        if tn and it.get("b2"): st.l[-1].src = st.l[-1].src | regs_of(v(it["b2"], 4))
        if spec and it.get("guard"):
            mf = st.l.pop(); L = spec.guard(st, it["guard"], mf); st.l.append(mf); st.label(L)
        n0 = len(st.l)
        for h in hooks.get(i, []): h(st)
        pump(i + depth)
        if slots:
            used = 1 + sum(cost(x) for x in st.l[n0:]) // 4 + (1 if i + 1 == nextw else 0)
            room = slots(i) - used + err
            n1 = len(st.l)
            if room >= 1: fill.take(st, 4 * int(room))
            took = sum(cost(x) for x in st.l[n1:]) // 4
            err = max(-1.0, min(1.0, room - took)) if fill.q else 0.0
        else: fill.take(st, budget(i))
        if watch: watch(i, st.l[n0:])
    assert not fill.q

C1 = -2.0 * math.sqrt(2.0 / math.pi) * LOG2E
def p34(st):
    A = [16, 32, 48, 96]; AF = 64; NMP = 88; DEPTH = oi("dep", 5)
    K1, K3, VE3, NM3 = v(92), v(93), v(94), v(95)
    at = oi("st3", 20)
    L = x_loads(st, STT, at, rot=bool(GR))
    stamp(st, "x stored")
    if "x" not in os_("nopoll", ""): poll2(st, vFL, sFA, 0, oi("gf2", -1))
    stamp(st, "FXpoll2")
    pre = oi("pre3", 10)
    for f in L[:pre]: f(st)
    nxt(st)
    barrier(st, "30")
    stamp(st, "B(30)")
    items = []; hooks = {}
    def hk(i, f): hooks.setdefault(i, []).append(f)
    def wide(a, off, step=0):
        def rd(st, r):
            if step:
                st.s_add_u32(sRING, sRING, 0x8000 * step); st.s_and_b32(sRING, sRING, 0x1ffff); st.v_add_u32(vA0, sRING, vL16)
            st.ds_read_b128(v(r, 4), a, mods=f"offset:{off}")
        return rd
    def mean(r):
        return dict(rd=lambda st, q: st.ds_read_b32(v(q), aCS3, mods=f"offset:{128*r}"), acc=A[r % 4], b=NMP, first=False)
    n2 = oi("n2", 10); k2 = 0; end = {}; use = {}
    def t2(k): return dict(rd=wide(vA1, k * 1024), acc=A[2], b=XF + 4 * k, first=k == 0)
    for k in range(32):
        use[k] = len(items)
        for t in range(2):
            items.append(dict(rd=wide(vA0, t * 16384 + (k % 16) * 1024, int(k == 16 and t == 0)), acc=A[t], b=XF + 4 * k, first=k == 0))
        if k == 15: g5 = len(items) - 1
        if (k + 1) * n2 // 32 > k2: items.append(t2(k2)); k2 += 1
    items += [mean(0), mean(1)]; end[0] = len(items) - 2; end[1] = len(items) - 1
    items += [t2(k) for k in range(k2, 32)] + [mean(2)]; end[2] = len(items) - 1
    for r in range(3, 6):
        items += [dict(rd=wide(vA0, k * 1024, (2 if r == 3 else 1) if k == 0 else 0), acc=A[r % 4], b=XF + 4 * k, first=k == 0) for k in range(32)]
        items.append(mean(r)); end[r] = len(items) - 1
    T5 = end[4] + 1; P4 = len(items)
    HI = [16 + 4 * i for i in range(4)] + [116, 88] + [XF + 4 * i for i in range(2)] + [32 + 4 * i for i in range(3)]
    breg = lambda k: XF + 4 * k if k < 32 else HI[k - 32]
    for n, it in enumerate(small_items(43, breg, (48, 96))):
        def rd(st, r, it=it, n=n):
            if n % 16 == 0: ring_next(st, "trn")
            a = vA1 if it["t"] else vA0
            st.ds_read_b64_tr_b16(v(r, 2), a, mods=f"offset:{it['off']}")
            st.ds_read_b64_tr_b16(v(r + 2, 2), a, mods=f"offset:{it['off']+512}")
        items.append(dict(rd=rd, acc=it["acc"], b=it["b"], first=it["first"]))
    for n, f in enumerate(L[pre:]): hk(2 * n + 1, f)
    fill = Filler()
    f = Stream()
    stats(f, STT, NM3, K1, VE3)
    f.v_and_b32(vU, 0xffff0000, NM3); f.v_sub_f32(NM3, NM3, vU); f.v_cndmask_b32(vU, vU, NM3, sHALF)
    f.v_cvt_pk_bf16_f32(v(NMP), vU, vU)
    f.v_mul_f32(K3, K1, K1); f.v_mul_f32(K1, f2u(C1), K1); f.v_mul_f32(K3, f2u(0.044715), K3); f.v_mul_f32(K3, K3, K1)
    z = Stream()
    for i in range(1, 4): z.v_mov_b32(v(NMP + i), 0)
    z.v_min_u32(aP4, 20, vFL)
    hk(2, lambda st: fill.add(z))
    hk(use[min(31, at + oi("sth3", 2))], lambda st: fill.add(f))
    hk(end[0] - 2, lambda st: fill.flush(st))
    TM = 112
    def epi(r):
        f = Stream(); a = A[r % 4]
        g = lambda i: v(a + i)
        u = lambda i: v(a + 8 + i)
        tm = lambda i: v(TM + i % 4)
        for t in range(16):
            ok = lambda d: 0 <= t - d < 8
            if ok(3): f.v_exp_f32(g(t - 3), g(t - 3))
            if ok(0): f.v_mul_f32(tm(t), g(t), g(t))
            if ok(1): f.v_fma_f32(tm(t - 1), tm(t - 1), K3, K1)
            if ok(0): f.v_mul_f32(u(t), g(t), u(t))
            if ok(5): f.v_rcp_f32(g(t - 5), g(t - 5))
            if ok(2): f.v_mul_f32(g(t - 2), tm(t - 2), g(t - 2))
            if ok(4): f.v_fma_f32(g(t - 4), g(t - 4), VE3, VE3)
            if ok(6): f.v_mul_f32(g(t - 6), g(t - 6), u(t - 6))
            if ok(7) and t % 2 == 0: f.v_cvt_pk_bf16_f32(u((t - 8) // 2), g(t - 8), g(t - 7))
            if t == 12 and r < 5: f.s_add_u32(sHS, sHST, 16384 * r)
        f.buffer_store_dwordx4(v(a + 8, 4), vL16, WS, sHS if r < 5 else sH5, mods=f"offen {G.SC} {os_('hm', '') if oi('hml', 0) <= r < oi('hmr', 6) and not G.SC else ''}", tset=f"h{r}")
        return f
    def flag(r):
        f = Stream()
        f.buffer_store_dword(vNON, "off", WS, sFJ if r < 5 else sF5, mods=f"offset:{256+64*r} {G.SC}", tneed=f"h{r}")
        return f
    e = [epi(r) for r in range(6)]
    ri = Stream(); res_init(ri, 48)
    lag = oi("lag", 3)
    for r in range(6):
        parts = [e[r]] + ([ri] if r == 3 else [])
        hk(end[max(r, 1)] + lag, lambda st, parts=parts: [fill.add(p) for p in parts])
        hk(end[r], lambda st, r=r: stamp(st, f"t{r}"))
    hk(end[3], lambda st: fill.drain_until(st, e[0])); hk(end[4], lambda st: fill.drain_until(st, e[1]))
    hk(end[5] - 1, lambda st: fill.drain_until(st, ri))
    fd = [int(x) for x in os_("fd", "38,20,20,18,16,12").split(",")]; fpos = {}
    def watch(i, l):
        for r in range(6):
            if any(("t", f"h{r}") in x.dst for x in l): fpos[r] = i + fd[r]; hk(i + fd[r], lambda st, r=r: (stamp(st, f"f{r}a"), st.extend(flag(r)), stamp(st, f"f{r}b")))
    b3, b4 = oi("bud3", 16), oi("bud4", 16)
    def bud(i):
        b = oi("bud0", 12) if i < end[1] else b3 if i < P4 - DEPTH else b4
        if b % 4: b += 2 if i % 2 else -2
        return b - (4 if i in hooks and oi("budh", 1) else 0)
    o = oi("b4", 10)
    for i, name in ((g5 + oi("c1d", 4), "3a"), (end[1], "3b"), (end[2], "3c"), (end[3], "3d"), (end[4], "3f"), (end[5], "3g"),
                    (P4 + o, "4a"), (P4 + 16 + o, "4b"), (P4 + 32 + o, "4c"), (P4 + 48 + o, "4d"), (P4 + 64 + o, "4e")):
        hk(i, lambda st, name=name: (stamp(st, f"{name}a"), barrier(st, name), stamp(st, f"{name}b")))
    for i in (16, 32, 48, 64): hk(P4 + i, lambda st, i=i: stamp(st, f"q{i}"))
    HL = frag_loads(sHLD, [breg(k) for k in range(43)], 2048, 2)
    if OPT.get("noH"): HL = [lambda st: None] * 43
    ne = oi("early4", 12)
    ck = [T5 + oi("chkA", 10), P4 + oi("chk2", 0), P4 + oi("chk3", 16), P4 + oi("chk4", 42), P4 + oi("chk5", 65)]
    sl = oi("sl", 12); ev = float(OPT.get("ev4", 2)); pos = []
    for k in range(43):
        g = max(0, k // 8 - 1)
        p = ck[0] + 1 + k * float(OPT.get("ev3", 2)) if k < ne else pos[-1] + ev
        pos.append(max(p, ck[g]) if k < 40 else ck[4])
    pos = [int(p) for p in pos]
    hk(ck[0] - sl - 1, lambda st: (st.v_and_b32(vV, 31, vL), st.v_lshlrev_b32(vV, 2, vV)))
    for g, (addr, off) in enumerate(((vV, 256), (vFL, 384), (vFL, 448), (vFL, 512), (aP4, 576))):
        assert g == 0 or ck[g] - sl > ck[g - 1]
        if OPT.get("nochk"): continue
        hk(ck[g] - sl, lambda st, addr=addr, off=off: st.buffer_load_dword(vS4, addr, WS, sFB, mods=f"offen offset:{off} sc1"))
        hk(ck[g], lambda st, addr=addr, off=off, g=g: (stamp(st, f"k{g}a"), soft_check(st, vS4, addr, sFB, off), stamp(st, f"k{g}b")))
    def last(st):
        assert 5 in fpos and fpos[5] < ck[4]
        nxt(st)
    hk(ck[4], last)
    for k in range(43):
        assert pos[k] < P4 + 2 * k and (k >= 32 or pos[k] >= T5 + k), (k, pos[k])
        hk(pos[k], HL[k])
    hk(pos[32] - 1, lambda st: fill.drain_until(st, e[4]))
    sl_ = None
    if float(OPT.get("sl3", 7)):
        s0_, s3_, s4_ = [float(OPT.get(k, d)) for k, d in (("sl0", 7), ("sl3", 7), ("sl4", 8))]
        sl_ = lambda i: s0_ if i < end[1] else s3_ if i < P4 - DEPTH else s4_
    g0_, g3_, g4_ = oi("gw0", 2), oi("gw3", 2), oi("gw4", 2)
    def gw_(i):
        g = g0_ if i < end[1] else g3_ if i < P4 else g4_
        return min(g, P4 - i) if i < P4 else g
    if g4_ == 4 or oi("gv4", 0):
        for i in range(P4, len(items) - 2, 4): items[i]["b2"] = items[i + 2]["b"]
    stream(st, items, AF, 6, DEPTH, hooks, fill, bud, watch, sl_, gw_)
    if G.TAG == "f": print("T3", end[2] + 1, "T4", end[3] + 1, "T5", T5, "P4", P4, "flags", fpos, "checks", ck, "loads", pos, file=sys.stderr)
    stamp(st, "P4gemm")
    xepi(st, True)

def body(st, first):
    stop = OPT["stop"]
    T = G.TAG
    st.label(f".Lpair_{T}"); st.mark("reset")
    G.SEQ = SEQA; p1a(st)
    G.SEQ = SEQC
    if first:
        st.mark("merge", "from0"); st.label(".Lk_f")
    p1b(st); p1c(st)
    if stop == "p1": st.s_branch(".Lend"); return
    p2(st)
    if stop == "p2": st.s_branch(".Lend"); return
    p34(st)
    stamp(st, "end")
    stamp(st, 63, True)
    if OPT.get("dbg") == "2":
        if OPT.get("wb"):
            st.wait(vm=0); st.raw("    buffer_wbl2 sc0 sc1"); st.raw("    s_waitcnt vmcnt(0)")
        L = newlab("pad")
        st.s_mov_b32(s(87), 7000)
        if OPT.get("early"): st.s_cmp_lt_u32(s(2), int(OPT["early"])); st.s_cselect_b32(s(87), 6000, s(87))
        if OPT.get("cap"):
            if OPT.get("capr"): st.s_sub_u32(s(43), s(43), s(42))
            else: st.s_sub_u32(s(43), s(43), s(86)); st.s_lshr_b32(s(43), s(43), 2)
            st.s_min_u32(s(43), s(43), 40000); st.s_add_u32(s(87), s(87), s(43))
        st.label(L)
        st.s_memrealtime(s(100, 2)); st.wait(lgkm=0); st.s_sub_u32(s(100), s(100), s(42)); st.s_cmp_lt_u32(s(100), s(87)); st.s_cbranch_scc1(L)
    elif OPT.get("dbg"):
        st.s_load_dwordx2(s(44, 2), s(0, 2), 72); st.s_memrealtime(s(100, 2)); st.wait(lgkm=0)
        st.s_and_b32(s(45), s(45), 0xffff); st.s_mov_b32(s(46), 256); st.s_mov_b32(s(47), 0x20000)
        st.s_not_b32(s(42), s(42)); st.v_mov_b32(vT, s(42)); st.v_mov_b32(vU, s(100)); st.s_not_b32(s(100), s(100)); st.v_mov_b32(vV, s(100))
        st.raw("    buffer_atomic_umax v13, off, s[44:47], 0")
        st.raw("    buffer_atomic_umax v14, off, s[44:47], 0 offset:4")
        st.raw("    buffer_atomic_umax v15, off, s[44:47], 0 offset:8")
        st.s_not_b32(s(42), s(42)); st.v_mov_b32(vT, s(42))
        st.raw("    s_nop 4")
        st.raw("    buffer_atomic_umax v13, off, s[44:47], 0 offset:12")
    st.s_or_b32(sT0, s(2), sW); st.s_cmp_lg_u32(sT0, 0); st.s_cbranch_scc1(".Lend")
    st.v_add_u32(vNON, 22, vNON)
    st.buffer_store_dword(vNON, "off", WS, 0, mods=f"offset:{EPOCH} sc1")
    st.s_branch(".Lend")

SEQ0, SEQA, SEQC = [], [], []
def compute(st):
    G.SEQ = SEQ0
    p1a0(st)
    st.mark("save", "from0")
    st.s_branch(".Lk_f")
    G.SC, G.TAG = "", "f"
    body(st, True)

def compute_slow(st):
    G.SC, G.TAG, G.REC = "sc1", "s", False
    body(st, False)

sW8, sQK, sWOb, sGU, sWD5, sWI = s(74), s(75), s(76), s(77), s(78), s(79)
sWDb = [s(80 + i) for i in range(4)]
GU = 64
vKV, vQ, vW, vWR0, vWR1 = v(2), v(4), v(5), v(6), v(7)
vGG = [v(8), v(9), v(10)]; vGL = [v(16), v(17), v(18)]; vGT = v(19)
vC0, vC1, vCW, vCR = v(20), v(21), v(22), v(23)
SEL = 24; CACC = 28
FRS = [36, 40, 44, 48, 52]; WRAW = 56
vDUM = [v(11), v(60), v(61), v(62)]
GSTR = 448
GL = oi("gl", 0)

def LDSW(st):
    for i in reversed(st.l):
        if i.name == "s_barrier" or (i.name == "s_waitcnt" and "lgkmcnt(0)" in i.ops[0]): return False
        if i.kind == "ds": return True
    return False

def POL(srd):
    k = {WQ: "pq", WO_: "po", WD: "pd", WG: "pg", WU: "pg"}.get(srd)
    x = os_(k, "") if k else ""
    return " " + x.replace("+", " ") if x else ""

def loader(st):
    st.v_lshrrev_b32(vT, 3, vL); st.v_bfe_u32(vU, vL, 4, 1); st.v_lshlrev_b32(vU, 2, vU); st.v_and_b32(vV, 7, vL); st.v_xor_b32(vU, vU, vV)
    st.v_mul_u32_u24(vKV, 3072, vT); st.v_and_b32(vV, 3, vU); st.v_lshl_add_u32(vKV, vV, 4, vKV)
    st.v_lshrrev_b32(vV, 2, vU); st.v_mul_u32_u24(vQ, 256 * 3072, vV); st.v_add_u32(vQ, vQ, vKV)
    st.v_lshl_add_u32(vKV, vV, 10, vKV); st.v_add_u32(vKV, 1024, vKV)
    st.v_lshlrev_b32(vW, 10, vT); st.v_lshl_add_u32(vW, vU, 4, vW)
    st.s_lshl_b32(sW8, sM, 13)
    st.s_mul_i32(sQK, sM, 64 * 3072); st.s_lshl_b32(sT0, sJ, 6); st.s_add_u32(sQK, sQK, sT0)
    sKVr = [s(84), s(85)]; sQJ = s(88); vQ0 = v(GU)
    rot(st, s(89), sT1); st.s_add_u32(s(89), s(89), sM)
    st.s_lshl_b32(sQJ, sJ, 6)
    st.s_and_b32(sT1, s(89), 7); st.s_mul_i32(sKVr[0], sT1, 64 * 3072); st.s_add_u32(sKVr[0], sKVr[0], sQJ)
    st.s_and_b32(sWI, sC, 1); st.s_lshl_b32(sWI, sWI, 4); st.s_add_u32(sWI, sWI, sJ); st.s_lshl_b32(sWI, sWI, 2); st.s_add_u32(sWI, sWI, sM)
    if not oi("fast0", 1) or E0:
        dcap(st, "l0", "l")
        if not oi("es", 0): st.wait(lgkm=0)
        srds(st, [WQ])
    chunks = []
    for pair in range(2):
        chunks += [("kv", 0), ("kv", 1), ("q", 0), ("wo", 0), ("wo", 1), ("gp", 0), ("gp", 1)] + [("gs", r) for r in range(2, 6)]
        chunks += [("wd", r) for r in range(6)]
    N = len(chunks)
    issued = set()
    SQ = []
    def spf(n):
        for _ in range(min(n, len(SQ))): SQ.pop(0)()
    def squeue(kind):
        if kind[0] == "K":
            i0 = int(kind[2:]) if kind[1:2] == "." else 0
            for i in range(i0, 64):
                def f(i=i):
                    if i == i0:
                        st.s_lshr_b32(s(90), sWI, 4); st.s_mul_i32(s(90), s(90), 3072); st.s_add_u32(s(44), s(46), s(90)); st.s_addc_u32(s(45), s(47), 0)
                        st.s_lshl_b32(s(91), sWI, 7)
                    if i == 32 or (i == i0 and i0 > 32): st.s_add_u32(s(44), s(44), 32 * 24576); st.s_addc_u32(s(45), s(45), 0)
                    st.s_add_u32(s(91), s(91), 128 * oi("krot", 1)); st.s_and_b32(s(91), s(91), 0x780)
                    x = Ins("s_load_dwordx2", [s(86, 2), s(44, 2), s(91)], f"offset:{hex(i % 32 * 24576 + 1024 + 60)}"); x.dst = set(); st.l.append(x)
                SQ.append(f)
            return
        if kind[0] == "e":
            for base in dict(g=(54, 56), d=(58,), o=(50,))[kind[1]]:
                n, tot = (4, 512) if base == 50 else (11, 1376)
                for i in range(n):
                    def f(i=i, base=base, n=n, tot=tot):
                        if i == 0:
                            st.s_mul_i32(s(90), sWI, n); st.s_min_u32(s(90), s(90), tot - n); st.s_lshr_b32(s(91), sC, 1); st.s_mul_i32(s(91), s(91), tot)
                            st.s_add_u32(s(90), s(90), s(91)); st.s_lshl_b32(s(90), s(90), 7); st.s_add_u32(s(44), s(base), s(90)); st.s_addc_u32(s(45), s(base + 1), 0)
                        x = Ins("s_load_dwordx2", [s(86, 2), s(44, 2), hex(i * 128 + 60)]); x.dst = set(); st.l.append(x)
                    SQ.append(f)
            return
        if kind == "ce":
            L = []
            for i in range(12):
                def f(i=i):
                    if i == 0:
                        st.s_lshr_b32(s(90), sWI, 3); st.s_mul_i32(s(91), s(90), 6); st.s_mul_i32(s(90), s(90), 5); st.s_add_u32(s(90), s(90), 6)
                        st.s_min_u32(s(90), s(90), s(91)); st.s_lshl_b32(s(90), s(90), 4); st.s_and_b32(s(91), sWI, 7); st.s_add_u32(s(90), s(90), s(91))
                        st.s_lshl_b32(s(90), s(90), 10); st.s_add_u32(s(100), s(58), s(90)); st.s_addc_u32(s(101), s(59), 0)
                    if i == 10:
                        st.s_cmp_lt_u32(sWI, 48); st.s_cselect_b32(s(90), 0, 16384); st.s_sub_u32(s(100), s(100), s(90)); st.s_subb_u32(s(101), s(101), 0)
                    x = Ins("s_load_dwordx2", [s(86, 2), s(100, 2), hex(i * 8192 + 384 + 60)]); x.dst = set(); st.l.append(x)
                L.append(f)
            SQ[0:0] = L
            return
        if kind[0] == "c":
            base, stride, n, col = dict(q=(46, 3072, 4, [384]), k=(46, 3072, 4, [1408, 2432]), j=(46, 3072, 2, [1408, 2432]), o=(50, 1024, 4, [384]), d=(58, 1024, 11, [384]))[kind[1]]
            L = []
            r = s(92, 2) if kind[1] in "qkj" else s(94, 2)
            for i in range(n):
                for c_ in col:
                    def f(i=i, c_=c_):
                        if i == 0 and c_ == col[0]:
                            st.s_mul_i32(s(90), sWI, stride); st.s_add_u32(s(100), s(base), s(90)); st.s_addc_u32(s(101), s(base + 1), 0)
                        if kind[1] == "d" and i == 10:
                            st.s_min_u32(s(90), sWI, 95); st.s_sub_u32(s(90), sWI, s(90)); st.s_lshl_b32(s(90), s(90), 10)
                            st.s_sub_u32(s(100), s(100), s(90)); st.s_subb_u32(s(101), s(101), 0)
                        if c_ == col[0] and i * 128 * stride >= 1 << 20 and (i - 1) * 128 * stride < 1 << 20: st.s_add_u32(s(100), s(100), 1 << 20); st.s_addc_u32(s(101), s(101), 0)
                        x = Ins("s_load_dwordx2", [s(86, 2), s(100, 2), hex((i * 128 * stride) % (1 << 20) + c_ + 60)]); x.dst = set(); st.l.append(x)
                    L.append(f)
            SQ[0:0] = L
            return
        if kind[0] == "k":
            i0 = 32 if kind == "k2" else int(kind[2:]) if kind[1:2] == "." else 0
            for i in range(i0, 64):
                def f(i=i):
                    if i == i0:
                        st.s_lshr_b32(s(90), sWI, 4); st.s_mul_i32(s(90), s(90), 3072); st.s_and_b32(s(91), sWI, 15); st.s_lshl_b32(s(91), s(91), 7)
                        st.s_add_u32(s(91), s(91), s(90)); st.s_add_u32(s(44), s(46), s(91)); st.s_addc_u32(s(45), s(47), 0)
                    if i == 32 or (i == i0 and i0 > 32): st.s_add_u32(s(44), s(44), 32 * 24576); st.s_addc_u32(s(45), s(45), 0)
                    x = Ins("s_load_dwordx2", [s(86, 2), s(44, 2), hex(i % 32 * 24576 + 1024 + 60)]); x.dst = set(); st.l.append(x)
                SQ.append(f)
            return
        if kind[0] == "q":
            for i in range(32):
                def f(i=i):
                    if i == 0:
                        st.s_lshr_b32(s(90), sWI, 3); st.s_mul_i32(s(90), s(90), 3072); st.s_and_b32(s(91), sWI, 7); st.s_lshl_b32(s(91), s(91), 7)
                        st.s_add_u32(s(91), s(91), s(90)); st.s_add_u32(s(44), s(46), s(91)); st.s_addc_u32(s(45), s(47), 0)
                    if i == 16: st.s_add_u32(s(44), s(44), 16 * 49152); st.s_addc_u32(s(45), s(45), 0)
                    x = Ins("s_load_dwordx2", [s(86, 2), s(44, 2), hex(i % 16 * 49152 + 60)]); x.dst = set(); st.l.append(x)
                SQ.append(f)
            return
        if kind[0] == "h":
            n, o = dict(h0=(16, 0), h1=(27, 32768), h2=(16, 32768), h3=(11, 65536))[kind]
            for i in range(n):
                def f(i=i):
                    if i == 0:
                        st.s_lshl_b32(s(90), sC, 2); st.s_add_u32(s(90), s(90), sM); st.s_mul_i32(s(90), s(90), HB_TB)
                        st.s_mul_i32(s(91), sJ, n * 128); st.s_add_u32(s(90), s(90), s(91)); st.s_add_u32(s(90), s(90), HB + o)
                        st.s_add_u32(s(44), s(4), s(90)); st.s_addc_u32(s(45), s(5), 0)
                    x = Ins("s_load_dwordx2", [s(86, 2), s(44, 2), hex(i * 128 + 60)]); x.dst = set(); st.l.append(x)
                SQ.append(f)
            return
        if kind[0] == "R" and TG:
            st.s_lshl_b32(s(90), sJ, 2); st.s_add_u32(s(90), s(90), sM); st.s_lshl_b32(s(90), s(90), 4); st.s_add_u32(s(90), s(90), sC)
            st.s_mul_i32(s(90), s(90), TG_W); st.s_add_u32(s(90), s(90), KVP + (0 if kind == "R0" else TG_P))
            st.s_add_u32(s(90), s(4), s(90)); st.s_addc_u32(s(91), s(5), 0)
            for i in range(6):
                def f(i=i):
                    x = Ins("s_load_dwordx2", [s(86, 2), s(90, 2), hex(i * 128 + 60)]); x.dst = set(); st.l.append(x)
                SQ.insert(0, f)
            return
        if kind == "R":
            st.s_mul_i32(s(90), sJ, KV_J); st.s_mul_i32(s(91), sC, KV_REC); st.s_add_u32(s(90), s(90), s(91))
            st.s_mul_i32(s(91), sM, 5 * 128); st.s_min_u32(s(91), s(91), 13 * 128); st.s_add_u32(s(90), s(90), s(91)); st.s_add_u32(s(90), s(90), KVP + KV_P)
            st.s_add_u32(s(90), s(4), s(90)); st.s_addc_u32(s(91), s(5), 0)
            for i in range(5):
                def f(i=i):
                    x = Ins("s_load_dwordx2", [s(86, 2), s(90, 2), hex(i * 128 + 60)]); x.dst = set(); st.l.append(x)
                SQ.insert(0, f)
            return
        if kind[0] == "r":
            i0 = 5 if kind == "r1" else 0
            for i in range(i0, 10):
                def f(i=i):
                    if i == i0:
                        st.s_mul_i32(s(90), sJ, KV_J); st.s_mul_i32(s(91), sC, KV_REC); st.s_add_u32(s(90), s(90), s(91))
                        st.s_mul_i32(s(91), sM, 5 * 128); st.s_min_u32(s(91), s(91), 13 * 128); st.s_add_u32(s(90), s(90), s(91)); st.s_add_u32(s(90), s(90), KVP)
                        st.s_add_u32(s(44), s(4), s(90)); st.s_addc_u32(s(45), s(5), 0)
                        st.s_lshl_b32(s(90), sJ, 11); st.s_lshl_b32(s(91), sC, oi("fks", 7)); st.s_add_u32(s(90), s(90), s(91)); st.s_add_u32(s(90), s(90), FKV)
                        st.s_add_u32(s(90), s(4), s(90)); st.s_addc_u32(s(91), s(5), 0)
                    x = Ins("s_load_dwordx2", [s(86, 2), s(44, 2), hex(i % 5 * 128 + i // 5 * KV_P + 60)]); x.dst = set(); st.l.append(x)
                    if i % 5 == 4 and not oi("fkw", 1):
                        x = Ins("s_load_dword", [s(86), s(90, 2), hex(i // 5 * 256 * 128)]); x.dst = set(); st.l.append(x)
                SQ.append(f)
            return
        base, cnt = dict(w=(46, 96), o=(50, 32), d=(58, 86), g=(54, 86), u=(56, 86))[kind[0]]
        if len(kind) > 1: cnt = int(kind[1:])
        for i in range(cnt):
            def f(i=i):
                if i == 0:
                    st.s_lshl_b32(s(91), sWI, 7); st.s_add_u32(s(44), s(base), s(91)); st.s_addc_u32(s(45), s(base + 1), 0)
                if i == 48: st.s_add_u32(s(44), s(44), 48 * 16384); st.s_addc_u32(s(45), s(45), 0)
                x = Ins("s_load_dwordx2", [s(86, 2), s(44, 2), hex(i % 48 * 16384 + 60)]); x.dst = set(); st.l.append(x)
            SQ.append(f)
    PART = [0, 8]
    def dma(n, addr, srd, offs):
        slot = (n % 4) * 32768
        for i, (base, off, lds) in enumerate(offs):
            if not PART[0] <= i < PART[1]: continue
            st.s_add_u32("m0", lds[0], slot + lds[1])
            st.s_add_u32(sT0, base, off)
            st.buffer_load_dwordx4(addr, srd, sT0, mods="offen" + POL(srd) + " lds", tset=f"c{n}" if i == len(offs) - 1 else None)
    def issue(n):
        if n >= N: return
        assert n not in issued
        if PART[1] == 8: issued.add(n)
        kind, a = chunks[n]
        if kind == "kv" and n < 17:
            if a == 1: st.s_xor_b32(sT1, s(89), 4); st.s_and_b32(sT1, sT1, 7); st.s_mul_i32(sKVr[1], sT1, 64 * 3072); st.s_add_u32(sKVr[1], sKVr[1], sQJ)
            dma(n, vKV, WQ, [(sKVr[a], 8 * i * 3072, (sW8, 1024 * i)) for i in range(8)])
        elif kind == "q" and n < 17:
            st.v_add_u32(vT, sKVr[0], vQ); st.v_subrev_u32(vU, 512 * 3072, vT); st.v_min_u32(vQ0, vT, vU)
            dma(n, vQ0, WQ, [("0", 8 * i * 3072, (sW8, 1024 * i)) for i in range(8)])
        elif kind == "kv": dma(n, vKV, WQ, [(sQK, (256 * a + 8 * i) * 3072, (sW8, 1024 * i)) for i in range(8)])
        elif kind == "q": dma(n, vQ, WQ, [(sQK, 8 * i * 3072, (sW8, 1024 * i)) for i in range(8)])
        elif kind == "wo": dma(n, vW, WO_, [(sWOb, (256 * a + 8 * i) * 1024, (sW8, 1024 * i)) for i in range(8)])
        elif kind == "wd" and a < 5: dma(n, vW, WD, [(sWDb[i // 2], (16 * a + 8 * (i % 2)) * 1024, (sW8, 1024 * i)) for i in range(8)])
        elif kind == "wd":
            slot = (n % 4) * 32768
            for e in range(3):
                st.s_mul_i32(sT1, sM, 3); st.s_add_u32(sT1, sT1, e)
                st.s_lshr_b32(sT0, sT1, 1); st.s_mul_i32(sT0, sT0, 96 * 1024); st.s_and_b32(sT2, sT1, 1); st.s_lshl_b32(sT2, sT2, 13)
                st.s_add_u32(sT0, sT0, sT2); st.s_add_u32(sT0, sT0, sWD5)
                st.s_lshl_b32(sT1, sT1, 10); st.s_add_u32("m0", sT1, slot)
                st.buffer_load_dwordx4(vW, WD, sT0, mods="offen" + POL(WD) + " lds", tset=f"c{n}" if e == 2 else None)
        else:
            slot = n % 4; wr = vWR1 if slot >= 2 else vWR0; so = (slot & 1) * 32768
            for t in range(2):
                for k in range(4):
                    g, fr = (4 * a + k, t) if kind == "gp" else (4 * t + k, a)
                    st.ds_write_b128(wr, v(GU + 24 * g + 4 * fr, 4), mods=f"offset:{so + t*16384 + k*(4096 if GR else 1024)}", tset=f"c{n}" if (t, k) == (1, 3) else None)
    FREE = [GU + 24 * g + 4 * fr for h in (0, 2) for g in range(8) for fr in (h, h + 1)]
    def stg(n):
        a = chunks[n][1]
        if n < 17:
            return [48, 52, 56] if a == 5 else [16 + 4 * i for i in range(8)]
        o = {3: 0, 4: 8, 2: 16, 5: 24}[a]
        return FREE[o:o + 8]
    def stage(n):
        kind, a = chunks[n]; assert kind == "wd"
        r = stg(n)
        if a < 5:
            for i in range(8):
                st.s_add_u32(sT0, sWDb[i // 2], (16 * a + 8 * (i % 2)) * 1024)
                st.buffer_load_dwordx4(v(r[i], 4), vW, WD, sT0, mods="offen")
        else:
            for e in range(3):
                st.s_mul_i32(sT1, sM, 3); st.s_add_u32(sT1, sT1, e)
                st.s_lshr_b32(sT0, sT1, 1); st.s_mul_i32(sT0, sT0, 96 * 1024); st.s_and_b32(sT2, sT1, 1); st.s_lshl_b32(sT2, sT2, 13)
                st.s_add_u32(sT0, sT0, sT2); st.s_add_u32(sT0, sT0, sWD5)
                st.buffer_load_dwordx4(v(r[e], 4), vW, WD, sT0, mods="offen")
    def unstage(n):
        kind, a = chunks[n]; r = stg(n); slot = (n % 4) * 32768
        assert n not in issued; issued.add(n)
        if a < 5: st.s_add_u32(sT0, sW8, slot)
        else: st.s_mul_i32(sT0, sM, 3072); st.s_add_u32(sT0, sT0, slot)
        st.v_add_u32(vT, sT0, vL16)
        for i in range(8 if a < 5 else 3): st.ds_write_b128(vT, v(r[i], 4), mods=f"offset:{1024*i}")
    def prologue():
        F0 = oi("fast0", 1)
        if F0:
            if E0:
                srds(st, [WS, WP, WO_, WG, WU, WD, OUT])
                run(E0.split(","), 0)
        else:
            issue(0)
            if oi("kv1first", 1): issue(1)
        if not oi("cfirst", 1):
            st.mark("save", "ld1"); st.s_branch(".Lloader")
            st.label(".Lcomp"); st.mark("reset")
            compute(st)
            st.label(".Lloader"); st.mark("restore", "ld1")
        if not F0 and not oi("kv1first", 1): issue(1)
        def late():
            if not (F0 and E0):
                st.wait(lgkm=0)
                srds(st, [WQ, WS, WP, WO_, WG, WU, WD])
            stamp_base(st)
            if not OPT.get("dcap"): stamp(st, "start", who="l", pair=0)
        if not F0 or E0: late()
        st.s_lshl_b32(sWOb, sM, 16); st.s_lshl_b32(sT0, sCG, 7); st.s_add_u32(sWOb, sWOb, sT0)
        for e in range(4):
            st.s_lshl_b32(sT1, sM, 2); st.s_add_u32(sT1, sT1, e)
            st.s_mul_i32(sT2, sT1, 6); st.s_mul_i32(sT3, sT1, 5); st.s_add_u32(sT3, sT3, 6); st.s_min_u32(sT2, sT2, sT3)
            st.s_lshl_b32(sT2, sT2, 14); st.s_add_u32(sWDb[e], sT2, sT0)
        st.s_add_u32(sWD5, sT0, 80 * 1024)
        st.s_mul_i32(sT2, sJ, 6); st.s_mul_i32(sT3, sJ, 5); st.s_add_u32(sT3, sT3, 6); st.s_min_u32(sT2, sT2, sT3)
        st.s_lshl_b32(sT2, sT2, 5); st.s_mul_i32(sGU, sM, (16 if GR else 64) * 2752); st.s_add_u32(sGU, sGU, sT2)
        if GR: grot(st, s(96), sT2)
        st.s_cmp_eq_u32(sT6, 1); st.s_cselect_b32(sT1, 12, 10)
        st.s_lshl_b32(sT2, sM, 13 if oi("gs3", 0) else 12); st.s_add_u32(sT2, sT2, 98304 if oi("gs3", 0) else 32768)
        for i in range(3):
            st.v_add_u32(vT, 64 * i, vL); st.v_mul_u32_u24(vU, 5462, vT); st.v_lshrrev_b32(vU, 16, vU)
            st.v_mul_u32_u24(vV, 12, vU); st.v_sub_u32(vT, vT, vV)
            st.v_mul_u32_u24(vGG[i], 2752, vU); st.v_lshl_add_u32(vGG[i], vT, 4, vGG[i])
            st.v_cmp_gt_u32("vcc", sT1, vT); st.v_mov_b32(vV, 0x80000000); st.v_cndmask_b32(vGG[i], vV, vGG[i], "vcc")
            st.v_and_b32(vV, 7, vU); st.v_mul_u32_u24(vGL[i], GSTR, vV); st.v_lshrrev_b32(vV, 3, vU); st.v_lshl_add_u32(vGL[i], vV, 12 if oi("gs3", 0) else 14, vGL[i])
            if GL: st.v_lshl_add_u32(vGL[i], vT, 4, vGL[i])
            else:
                st.v_lshrrev_b32(vV, 1, vT); st.v_lshl_add_u32(vGL[i], vV, 6, vGL[i])
                st.v_and_b32(vV, 1, vT); st.v_lshl_add_u32(vGL[i], vV, 4, vGL[i])
            st.v_add_u32(vGL[i], sT2, vGL[i])
        lane_tr(st, vGT, None, "nat", stride=GSTR, hstride=4096 if oi("gs3", 0) else 16384); st.v_add_u32(vGT, sT2, vGT)
        if GL: st.v_bfe_u32(vT, vL, 4, 1); st.v_mul_u32_u24(vT, 192, vT); st.v_add_u32(vGT, vT, vGT)
        lane_tr(st, vC0, vC1, "qkv")
        st.s_lshl_b32(sT0, sM, 10 if GR else 12); st.v_add_u32(vWR0, sT0, vL16); st.v_add_u32(vWR1, 65536, vWR0)
        st.v_bfe_u32(vT, vL, 4, 1); st.v_and_b32(vU, 1, vL); st.v_cmp_eq_u32("vcc", vT, vU)
        st.v_mov_b32(vV, 0x3f803f80)
        for i in range(4): st.v_cndmask_b32(v(SEL + i), 0, vV, "vcc")
        st.v_lshlrev_b32(vCW, 6, vT); st.v_lshl_add_u32(vCW, vU, 5, vCW); st.v_lshrrev_b32(vT, 5, vL); st.v_lshl_add_u32(vCW, vT, 4, vCW)
        if F0 and not E0: late()
    def publish():
        L = newlab("pub")
        st.v_add_u32(vNON, sXC, vNON); st.v_add_u32(vNON, 16, vNON)
        st.s_lshl_b32(sT0, sC, 7); st.s_lshl_b32(sT1, sJ, 2); st.s_add_u32(sT0, sT0, sT1); st.s_add_u32(sT0, sT0, XCCT)
        st.s_cmp_lg_u32(sM, 0); st.mark("save", L); st.s_cbranch_scc1(L)
        st.buffer_store_dword(vNON, "off", WS, sT0, mods="sc1")
        st.mark("merge", L); st.label(L)
    dn = [0]
    def dum():
        dn[0] += 1
        return vDUM[dn[0] % 4]
    def tload(addr, srd, soff):
        i = Ins("buffer_load_dword", [dum(), addr, srd, str(soff)], "offen" + POL(srd)); i.dst = set(); st.l.append(i)
    def touch(kind):
        if kind == "wd":
            st.s_mul_i32(sT0, sWI, 86 * 128); st.v_lshlrev_b32(vT, 7, vL); tload(vT, WD, sT0)
            st.v_min_u32(vU, 21, vL); st.v_lshlrev_b32(vU, 7, vU); st.s_add_u32(sT0, sT0, 8192); tload(vU, WD, sT0)
        elif kind[:2] == "wf":
            n = int(kind[2:]); assert n <= 64
            st.s_mul_i32(sT0, sWI, n * 128); st.v_min_u32(vT, n - 1, vL); st.v_lshlrev_b32(vT, 7, vT); tload(vT, WD, sT0)
        elif kind[:2] == "wd":
            n = int(kind[2:]); c = 86 - n; assert c <= 64
            st.s_mul_i32(sT0, sWI, c * 128); st.s_add_u32(sT0, sT0, n * 16384); st.v_min_u32(vT, c - 1, vL); st.v_lshlrev_b32(vT, 7, vT); tload(vT, WD, sT0)
        elif kind[0] == "e":
            for D in dict(g=(WG, WU), d=(WD,), o=(WO_,))[kind[1]]:
                n, tot = (4, 512) if D == WO_ else (11, 1376)
                st.s_mul_i32(sT0, sWI, n); st.v_min_u32(vT, n - 1, vL); st.v_add_u32(vT, sT0, vT); st.v_min_u32(vT, tot - 1, vT); st.v_lshlrev_b32(vT, 7, vT)
                st.s_lshr_b32(sT0, sC, 1); st.s_mul_i32(sT0, sT0, tot * 128); tload(vT, D, sT0)
        elif kind == "out":
            st.s_lshl_b32(sT0, sC, 4); st.s_add_u32(sT0, sT0, sJ); st.s_lshl_b32(sT0, sT0, 2); st.s_add_u32(sT0, sT0, sM); st.s_lshl_b32(sT0, sT0, 11)
            st.v_lshlrev_b32(vT, 5, vFL); tload(vT, OUT, sT0)
        elif kind in ("g", "u"):
            D = WG if kind == "g" else WU
            st.s_mul_i32(sT0, sWI, 86 * 128); st.v_lshlrev_b32(vT, 7, vL); tload(vT, D, sT0)
            st.v_min_u32(vU, 21, vL); st.v_lshlrev_b32(vU, 7, vU); st.s_add_u32(sT0, sT0, 8192); tload(vU, D, sT0)
        elif kind in ("ga", "gb"):
            st.s_mul_i32(sT0, sWI, 43 * 128); st.v_min_u32(vT, 42, vL); st.v_lshlrev_b32(vT, 7, vT)
            if kind == "gb": st.s_add_u32(sT0, sT0, 256 * 2752)
            tload(vT, WG, sT0); tload(vT, WU, sT0)
        elif kind in ("kv0", "kv1"):
            st.v_bfe_u32(vT, vL, 4, 1); st.v_mul_u32_u24(vT, 3072, vT); st.v_lshl_add_u32(vT, vFL, 5, vT)
            st.s_mul_i32(sT0, sWI, 2 * 3072); st.s_add_u32(sT0, sT0, 1024 + 256 * 3072 * int(kind[2])); tload(vT, WQ, sT0)
        elif kind == "kv":
            st.v_lshrrev_b32(vT, 4, vL); st.v_mul_u32_u24(vT, 3072, vT); st.v_lshl_add_u32(vT, vFL, 5, vT)
            st.s_mul_i32(sT0, sWI, 4 * 3072); st.s_add_u32(sT0, sT0, 1024); tload(vT, WQ, sT0)
        elif kind == "q":
            st.v_bfe_u32(vT, vL, 3, 2); st.v_mul_u32_u24(vT, 3072, vT); st.v_and_b32(vU, 7, vL); st.v_lshl_add_u32(vT, vU, 7, vT)
            st.s_mul_i32(sT0, sWI, 4 * 3072); tload(vT, WQ, sT0)
        elif kind == "wo":
            st.v_and_b32(vT, 31, vL); st.v_lshlrev_b32(vT, 7, vT); st.s_lshl_b32(sT0, sWI, 12); tload(vT, WO_, sT0)
        elif kind == "h":
            st.s_lshl_b32(sT0, sC, 4); st.s_add_u32(sT0, sT0, sJ); st.s_lshl_b32(sT0, sT0, 2); st.s_add_u32(sT0, sT0, sM)
            st.s_mul_i32(sT0, sT0, 43 * 128); st.s_add_u32(sT0, sT0, HB)
            st.v_min_u32(vT, 42, vL); st.v_lshlrev_b32(vT, 7, vT); tload(vT, WS, sT0)
        elif kind in ("h0", "h1", "h2", "h3"):
            n, o = dict(h0=(16, 0), h1=(27, 32768), h2=(16, 32768), h3=(11, 65536))[kind]
            st.s_lshl_b32(sT0, sC, 2); st.s_add_u32(sT0, sT0, sM); st.s_mul_i32(sT0, sT0, HB_TB)
            st.s_mul_i32(sT1, sJ, n * 128); st.s_add_u32(sT0, sT0, sT1); st.s_add_u32(sT0, sT0, HB + o)
            st.v_min_u32(vT, n - 1, vL); st.v_lshlrev_b32(vT, 7, vT); tload(vT, WS, sT0)
        elif kind == "hs":
            st.s_lshl_b32(sT0, sC, 2); st.s_mul_i32(sT0, sT0, HB_TB); st.s_add_u32(sT0, sT0, HB)
            st.s_lshl_b32(sT1, sJ, 2); st.s_add_u32(sT1, sT1, sM); st.s_lshl_b32(sT1, sT1, 1)
            st.v_and_b32(vT, 1, vL); st.v_add_u32(vT, sT1, vT); st.v_min_u32(vT, 4 * HB_TB // 4096 - 1, vT); st.v_lshlrev_b32(vT, 12, vT); tload(vT, WS, sT0)
        elif kind == "x" and XO:
            st.s_lshl_b32(sT0, sC, 4); st.s_add_u32(sT0, sT0, sJ); st.s_lshl_b32(sT0, sT0, 2); st.s_add_u32(sT0, sT0, sM)
            st.s_lshl_b32(sT1, sT0, 11); st.v_lshlrev_b32(vT, 5, vFL); tload(vT, OUT, sT1)
            st.s_lshl_b32(sT2, sT0, 8); st.s_add_u32(sT2, sT2, ST)
            st.s_lshl_b32(sT3, sC, 2); st.s_add_u32(sT3, sT3, sM); st.s_lshl_b32(sT3, sT3, 10); st.s_add_u32(sT3, sT3, FL - 2 * 128)
            st.v_mov_b32(vU, sT2); st.v_mov_b32(vV, sT3); st.v_cmp_le_u32("vcc", 2, vL); st.v_cndmask_b32(vU, vU, vV, "vcc")
            st.v_min_u32(vT, 6, vL); st.v_lshl_add_u32(vT, vT, 7, vU); tload(vT, WS, 0)
        elif kind == "x":
            st.s_lshl_b32(sT0, sC, 4); st.s_add_u32(sT0, sT0, sJ); st.s_lshl_b32(sT0, sT0, 2); st.s_add_u32(sT0, sT0, sM)
            st.s_lshl_b32(sT1, sT0, 11); st.s_add_u32(sT1, sT1, XB)
            st.s_lshl_b32(sT2, sT0, 8); st.s_add_u32(sT2, sT2, ST - 16 * 128)
            st.s_lshl_b32(sT3, sC, 2); st.s_add_u32(sT3, sT3, sM); st.s_lshl_b32(sT3, sT3, 10); st.s_add_u32(sT3, sT3, FL - 18 * 128)
            st.v_mov_b32(vU, sT1); st.v_mov_b32(vV, sT2); st.v_cmp_le_u32("vcc", 16, vL); st.v_cndmask_b32(vU, vU, vV, "vcc")
            st.v_mov_b32(vV, sT3); st.v_cmp_le_u32("vcc", 18, vL); st.v_cndmask_b32(vU, vU, vV, "vcc")
            st.v_min_u32(vT, 22, vL); st.v_lshl_add_u32(vT, vT, 7, vU); tload(vT, WS, 0)
        elif kind == "r1":
            st.s_mul_i32(sT0, sJ, KV_J); st.s_mul_i32(sT1, sC, KV_REC); st.s_add_u32(sT0, sT0, sT1)
            st.s_mul_i32(sT1, sM, 640); st.s_min_u32(sT1, sT1, 13 * 128); st.s_add_u32(sT0, sT0, sT1); st.s_add_u32(sT0, sT0, KVP + KV_P)
            st.v_min_u32(vT, 4, vL); st.v_lshlrev_b32(vT, 7, vT); tload(vT, WS, sT0)
        elif kind == "f":
            st.s_lshl_b32(sT3, sC, 2); st.s_add_u32(sT3, sT3, sM); st.s_lshl_b32(sT3, sT3, 10); st.s_add_u32(sT3, sT3, FL)
            st.v_min_u32(vT, 4, vL); st.v_lshlrev_b32(vT, 7, vT); tload(vT, WS, sT3)
        elif kind == "cs":
            st.s_getpc_b64(s(100, 2))
            L = newlab("pc")
            st.label(L)
            st.raw(f"    s_sub_u32 s100, s100, {L}-{NAME}_kernel")
            st.raw("    s_subb_u32 s101, s101, 0")
            st.v_and_b32(vT, 3, vL); st.v_lshlrev_b32(vT, 14, vT); st.s_lshl_b32(sT0, sWI, 7); st.v_add_u32(vT, sT0, vT)
            st.v_min_u32(vT, f".Lslow-{NAME}_kernel", vT)
            i = Ins("global_load_dword", [dum(), vT, s(100, 2)]); i.dst = set(); st.l.append(i)
        elif kind == "code":
            st.s_getpc_b64(s(100, 2))
            L = newlab("pc")
            st.label(L)
            st.raw(f"    s_sub_u32 s100, s100, {L}-{NAME}_kernel")
            st.raw("    s_subb_u32 s101, s101, 0")
            st.v_lshlrev_b32(vT, 7, vL); st.s_lshl_b32(sT0, sM, 13); st.v_add_u32(vT, sT0, vT)
            i = Ins("global_load_dword", [dum(), vT, s(100, 2)]); i.dst = set(); st.l.append(i)
            st.v_add_u32(vU, 32768, vT); st.v_min_u32(vU, f".Lslow-{NAME}_kernel", vU)
            i = Ins("global_load_dword", [dum(), vU, s(100, 2)]); i.dst = set(); st.l.append(i)
    def claim(kind):
        sm = os_("sm", "")
        def sel(lo, r):
            st.v_mov_b32(vV, r); st.v_cmp_le_u32("vcc", lo, vL); st.v_cndmask_b32(vU, vU, vV, "vcc")
        if kind in ("ox", "x"):
            st.s_lshl_b32(sT0, sC, 2); st.s_add_u32(sT1, sT0, sM); st.s_mul_i32(sT1, sT1, HB_TB); st.s_lshl_b32(sT2, sJ, 11)
            st.s_add_u32(sT1, sT1, sT2); st.s_add_u32(sT1, sT1, HB); st.v_mov_b32(vU, sT1)
            st.s_lshl_b32(sT1, sHF, 1); st.s_add_u32(sT0, sT0, sT1); st.s_lshr_b32(sT1, sM, 1); st.s_add_u32(sT0, sT0, sT1)
            st.s_lshl_b32(sT1, sCG, 1); st.s_and_b32(sT2, sM, 1); st.s_add_u32(sT1, sT1, sT2)
            st.s_lshl_b32(sT2, sT0, 15); st.s_lshl_b32(sT3, sT1, 11); st.s_add_u32(sT2, sT2, sT3); st.s_add_u32(sT2, sT2, XB - 16 * 128)
            sel(16 if kind == "ox" else 0, sT2)
            st.s_lshl_b32(sT2, sT0, 12); st.s_lshl_b32(sT3, sT1, 8); st.s_add_u32(sT2, sT2, sT3); st.s_add_u32(sT2, sT2, ST - 32 * 128)
            sel(32, sT2)
            st.v_min_u32(vT, 33, vL)
            if kind == "x": st.v_max_u32(vT, 16, vT)
            st.v_lshl_add_u32(vT, vT, 7, vU)
        elif kind == "h":
            st.s_lshl_b32(sT0, sC, 2); st.s_add_u32(sT1, sT0, sM); st.s_mul_i32(sT1, sT1, HB_TB); st.s_lshl_b32(sT2, sJ, 10)
            st.s_add_u32(sT1, sT1, sT2); st.s_add_u32(sT1, sT1, HB + 32768)
            st.s_add_u32(sT2, sT6, 2); st.v_lshrrev_b32(vT, 3, vL); st.v_min_u32(vT, sT2, vT); st.v_lshlrev_b32(vT, 14, vT)
            st.v_and_b32(vU, 7, vL); st.v_lshl_add_u32(vT, vU, 7, vT); st.v_add_u32(vT, sT1, vT)
        elif kind == "r":
            sm = "sc1"
            st.s_mul_i32(sT0, sJ, KV_J); st.s_mul_i32(sT1, sC, KV_REC); st.s_add_u32(sT0, sT0, sT1)
            st.s_mul_i32(sT1, sM, 5 * 128); st.s_min_u32(sT1, sT1, 13 * 128); st.s_add_u32(sT0, sT0, sT1); st.s_add_u32(sT0, sT0, KVP)
            st.v_mov_b32(vU, sT0); st.s_add_u32(sT0, sT0, KV_P - 5 * 128); sel(5, sT0)
            assert oi("fks", 7) == 7
            st.s_lshl_b32(sT0, sJ, 11); st.s_lshl_b32(sT1, sC, 7); st.s_add_u32(sT0, sT0, sT1); st.s_add_u32(sT0, sT0, FKV + 32 - 10 * 128)
            sel(10, sT0); st.s_add_u32(sT0, sT0, 256 * 128 - 128); sel(11, sT0)
            st.v_min_u32(vT, 11, vL); st.v_lshl_add_u32(vT, vT, 7, vU)
        st.buffer_store_dword(vL, vT, WS, 0, mods="offen " + sm, tset="w" + kind)
    def fillw(kind):
        sm = os_("fm", "sc1").replace("+", " ").replace("-", "")
        D = v(8, 4)
        if SPEC:
            D = v(52, 4)
            for i in range(4): st.v_mov_b32(v(52 + i), -1)
        def w(addr, soff, off=0, tag=None): st.buffer_store_dwordx4(D, addr, WS, soff, mods=f"offen offset:{off} {sm}", tset=tag)
        if kind == "o":
            st.s_lshl_b32(sT0, sC, 2); st.s_add_u32(sT1, sT0, sM); st.s_mul_i32(sT1, sT1, HB_TB); st.s_lshl_b32(sT2, sJ, 11)
            st.s_add_u32(sT1, sT1, sT2); st.s_add_u32(sT1, sT1, HB); w(vL16, sT1); w(vL16, sT1, 1024, "wo")
        elif kind == "o1":
            st.s_lshl_b32(sT0, sC, 2); st.s_add_u32(sT1, sT0, sM); st.s_lshl_b32(sT1, sT1, 15); st.s_lshl_b32(sT2, sJ, 11)
            st.s_add_u32(sT1, sT1, sT2); st.s_add_u32(sT1, sT1, OB1); w(vL16, sT1); w(vL16, sT1, 1024, "wo1")
        elif kind[0] == "x":
            d = {"x": 0, "x1": X_A, "x2": X_A + X_B}[kind]
            st.s_lshl_b32(sT0, sC, 2)
            st.s_lshl_b32(sT1, sHF, 1); st.s_add_u32(sT0, sT0, sT1); st.s_lshr_b32(sT1, sM, 1); st.s_add_u32(sT0, sT0, sT1)
            st.s_lshl_b32(sT1, sCG, 1); st.s_and_b32(sT2, sM, 1); st.s_add_u32(sT1, sT1, sT2)
            st.s_lshl_b32(sT2, sT0, 15); st.s_lshl_b32(sT3, sT1, 11); st.s_add_u32(sT2, sT2, sT3); st.s_add_u32(sT2, sT2, XB + d)
            w(vL16, sT2); w(vL16, sT2, 1024)
            st.s_lshl_b32(sT2, sT0, 12); st.s_lshl_b32(sT3, sT1, 8); st.s_add_u32(sT2, sT2, sT3); st.s_add_u32(sT2, sT2, ST + d)
            st.v_and_b32(vT, 240, vL16); w(vT, sT2, 0, "w" + kind)
        elif kind == "h":
            st.s_lshl_b32(sT0, sC, 2); st.s_add_u32(sT1, sT0, sM); st.s_mul_i32(sT1, sT1, HB_TB); st.s_lshl_b32(sT2, sJ, 10)
            st.s_add_u32(sT1, sT1, sT2); st.s_add_u32(sT1, sT1, HB + 32768)
            for r in range(2): w(vL16, sT1); st.s_add_u32(sT1, sT1, 16384)
            w(vL16, sT1); st.s_lshl_b32(sT2, sT6, 14); st.s_add_u32(sT1, sT1, sT2); w(vL16, sT1, 0, "wh")
        elif kind in ("r", "r1"):
            st.s_mul_i32(sT0, sJ, KV_J); st.s_mul_i32(sT1, sC, KV_REC); st.s_add_u32(sT0, sT0, sT1)
            st.s_mul_i32(sT1, sM, 640); st.s_min_u32(sT1, sT1, 13 * 128); st.s_add_u32(sT0, sT0, sT1); st.s_add_u32(sT0, sT0, KVP)
            st.v_min_u32(vT, 39 * 16, vL16)
            if kind == "r": w(vT, sT0)
            st.s_add_u32(sT0, sT0, KV_P); w(vT, sT0, 0, "wr")
    gl = []
    for g in range(8):
        k0 = (16 * (g // 4) + (g % 4)) * 16
        for m_, srd in enumerate((WG, WU)):
            for i in range(3):
                def f(g=g, k0=k0, m_=m_, srd=srd, i=i):
                    if i == 0 and GR:
                        st.s_xor_b32(sLD, s(96), g); st.s_mul_i32(sLD, sLD, 64 * 2752); st.s_add_u32(sLD, sLD, sGU)
                    elif i == 0: st.s_add_u32(sLD, sGU, k0 * 2752)
                    st.buffer_load_dwordx4(v(GU + 24 * g + 12 * m_ + 4 * i, 4), vGG[i], srd, sLD, mods="offen" + POL(srd))
                f.g = g
                gl.append(f)
    vGD = vC0; gd_set = []
    def area(a):
        return {"0": 0, "1": 32768, "3": 98304, "2": 65536}[a]
    def gu_dma(g, a):
        assert GR and len([f for f in gl if f.g == g]) == 6
        gl[:] = [f for f in gl if f.g != g]
        st.s_xor_b32(sLD, s(96), g); st.s_mul_i32(sLD, sLD, 64 * 2752); st.s_add_u32(sLD, sLD, sGU)
        for m_, srd in enumerate((WG, WU)):
            for i in range(3):
                st.s_add_u32("m0", sW8, area(a) + 3104 * m_ + 1024 * i)
                st.buffer_load_dwordx4(vGG[i], srd, sLD, mods="offen" + POL(srd) + " lds", tset=f"gd{g}" if (m_, i) == (1, 2) else None)
    def gu_read(g, a, cnt=1):
        if not gd_set:
            gd_set.append(1)
            st.v_bfe_u32(vGD, vL, 2, 2); st.v_mul_u32_u24(vGD, 192, vGD); st.v_lshrrev_b32(vT, 5, vL); st.v_mul_u32_u24(vT, 1536, vT); st.v_add_u32(vGD, vT, vGD)
            st.v_and_b32(vT, 1, vL); st.v_lshl_add_u32(vGD, vT, 4, vGD); st.v_bfe_u32(vT, vL, 1, 1); st.v_lshl_add_u32(vGD, vT, 3, vGD)
            st.v_bfe_u32(vT, vL, 4, 1); st.v_mul_u32_u24(vT, 3104, vT); st.v_add3_u32(vGD, vT, vGD, sW8)
        assert g == tr_next[0]; tr_next[0] += 1
        b = GU + 24 * g; o = area(a); r = vGD
        if o >= 65536: st.v_add_u32(vC1, 65536, vGD); r = vC1; o -= 65536
        for t in range(6):
            for u in range(2): st.ds_read_b64_tr_b16(v(b + 4 * t + 2 * u, 2), r, mods=f"offset:{o + u*768 + t*32}", tneed=f"gd{g}" if (t, u) == (0, 0) else None)
        tsum(g)
    def gu_loads(cnt):
        for _ in range(min(cnt, len(gl))):
            f = gl.pop(0)
            if not OPT.get("noG"): f()
    def colsum(n, steps, first, lo, hi, dst=None):
        L = newlab("cs")
        st.s_sub_u32(sT0, sM, lo); st.s_cmp_ge_u32(sT0, hi - lo); st.mark("save", L); st.s_cbranch_scc1(L)
        nf = len(FRS)
        def rd(k):
            a, off = steps[k]; r = FRS[k % nf]
            st.ds_read_b64_tr_b16(v(r, 2), a, mods=f"offset:{off}"); st.ds_read_b64_tr_b16(v(r + 2, 2), a, mods=f"offset:{off+512}")
        for k in range(nf - 1): rd(k)
        for k in range(len(steps)):
            acc = v(CACC + 4 * (k & 1), 4)
            st.v_mfma_f32_16x16x32_bf16(acc, v(FRS[k % nf], 4), v(SEL, 4), "0" if first and k < 2 else acc)
            if k + nf - 1 < len(steps): rd(k + nf - 1)
        if dst is not None:
            for i in range(4): st.v_add_f32(v(CACC + i), v(CACC + i), v(CACC + 4 + i))
            st.ds_write_b128(dst, v(CACC, 4))
        st.mark("merge", L); st.label(L)
    def transpose(g):
        b = GU + 24 * g
        for m_ in range(2):
            for i in range(3): st.ds_write_b128(vGL[i], v(b + 12 * m_ + 4 * i, 4), mods=f"offset:{(224 if GL else 32)*m_}")
        for t in range(6):
            for u in range(2): st.ds_read_b64_tr_b16(v(b + 4 * t + 2 * u, 2), vGT, mods=f"offset:{u*4*GSTR + t*(32 if GL else 64)}")
    def tsum(g):
        b = GU + 24 * g
        for t in range(6):
            st.v_mfma_f32_16x16x32_bf16(v(CACC + 4 * t, 4), v(b + 4 * t, 4), v(SEL, 4), "0" if g == 0 else v(CACC + 4 * t, 4))
    tr_next = [0]
    def transposes(cnt):
        gs = list(range(tr_next[0], min(8, tr_next[0] + cnt))); tr_next[0] += len(gs)
        for i, g in enumerate(gs):
            transpose(g)
            if i > 0: tsum(gs[i - 1])
        tsum(gs[-1])
    def gu_partial():
        st.s_mul_i32(sT0, sM, 768); st.s_add_u32(sT0, sT0, L_VB); st.v_add_u32(vT, sT0, vCW)
        for i in range(6): st.ds_write_b128(vT, v(CACC + 4 * i, 4), mods=f"offset:{128*i}")
    def gu_reduce():
        st.v_min_u32(vCR, 6 * 128 - 16, vL16)
        st.v_add_u32(vT, L_VB, vCR)
        for w in range(4): st.ds_read_b128(v(CACC + 4 * w, 4), vT, mods=f"offset:{w*768}")
        for i in range(4):
            st.v_add_f32(v(CACC + i), v(CACC + i), v(CACC + 4 + i)); st.v_add_f32(v(CACC + 8 + i), v(CACC + 8 + i), v(CACC + 12 + i))
        for i in range(4): st.v_add_f32(v(CACC + i), v(CACC + i), v(CACC + 8 + i))
        for i in range(4):
            st.v_and_b32(v(CACC + 4 + i), 0xffff0000, v(CACC + i)); st.v_sub_f32(v(CACC + i), v(CACC + i), v(CACC + 4 + i))
            st.v_cvt_pk_bf16_f32(v(CACC + i), v(CACC + 4 + i), v(CACC + i))
        st.v_and_b32(vT, 0x380, vCR); st.v_and_b32(vU, 0x30, vCR); st.v_lshl_add_u32(vT, vU, 1, vT)
        st.v_bfe_u32(vU, vCR, 6, 1); st.v_lshl_add_u32(vT, vU, 4, vT); st.v_add_u32(vT, L_CS + 384, vT)
        st.ds_write_b128(vT, v(CACC, 4))
    def cs_kv(a):
        if a == 0:
            st.s_lshl_b32(sT0, sM, 6); st.v_xor_b32(vCR, sT0, vC0)
        else:
            st.s_lshl_b32(sT0, sM, 7); st.s_add_u32(sT0, sT0, L_CS); st.v_add_u32(vV, sT0, vCW)
        colsum(a, [(vCR, 32768 * a + 2048 * k) for k in range(16)], a == 0, 0, 2, dst=vV if a == 1 else None)
    def cs_own(kind):
        a, b = vCR, vV
        o = dict(k0=0, k1=32768, q=65536)[kind]
        st.s_add_u32(sT0, sW8, o & 65536); st.v_add_u32(a, sT0, vC0); st.v_add_u32(b, sT0, vC1)
        steps = [(r, (o & 65535) + 2048 * k) for k in range(4) for r in (a, b)]
        for k, (r, off) in enumerate(steps):
            f = FRS[k % 5]
            if k >= 5: st.v_mfma_f32_16x16x32_bf16(v(CACC + 4 * ((k - 5) & 1), 4), v(f, 4), v(SEL, 4), "0" if kind != "k1" and k - 5 < 2 else v(CACC + 4 * ((k - 5) & 1), 4))
            st.ds_read_b64_tr_b16(v(f, 2), r, mods=f"offset:{off}", tneed="c2" if kind == "q" and k == 0 else None)
            st.ds_read_b64_tr_b16(v(f + 2, 2), r, mods=f"offset:{off+512}")
        for k in range(3, 8): st.v_mfma_f32_16x16x32_bf16(v(CACC + 4 * (k & 1), 4), v(FRS[k % 5], 4), v(SEL, 4), v(CACC + 4 * (k & 1), 4))
        if kind == "k1":
            st.s_lshl_b32(sT0, sM, 8); st.s_add_u32(sT0, sT0, L_VB); st.v_add_u32(vT, sT0, vCW)
            st.ds_write_b128(vT, v(CACC, 4)); st.ds_write_b128(vT, v(CACC + 4, 4), mods="offset:128")
            signal(st, 1, 96)
        elif kind == "q":
            st.s_lshl_b32(sT0, sM, 7); st.s_add_u32(sT0, sT0, L_CS + 384); st.v_add_u32(vT, sT0, vCW)
            for i in range(4): st.v_add_f32(v(CACC + i), v(CACC + i), v(CACC + 4 + i))
            st.ds_write_b128(vT, v(CACC, 4))
            signal(st, 1, 32)
    def cs_fin(kind):
        L = newlab("cf")
        if kind == "k": st.s_cmp_ge_u32(sM, 2)
        else: st.s_cmp_lg_u32(sM, 2)
        st.mark("save", L); st.s_cbranch_scc1(L)
        st.v_mov_b32(vU, 1); sigwait(st, 12, 112 if kind == "k" else 48, regs=(13, 14, 15))
        if kind == "k": st.s_lshl_b32(sT0, sM, 7); st.v_add_u32(vU, sT0, vCW); st.v_add_u32(vT, L_VB, vU); st.v_add_u32(vU, L_CS, vU)
        else: st.v_add_u32(vT, L_CS + 384, vCW); st.v_add_u32(vU, L_CS + 256, vCW)
        for w in range(4): st.ds_read_b128(v(CACC + 4 * w, 4), vT, mods=f"offset:{w * (256 if kind == 'k' else 128)}")
        for i in range(4):
            st.v_add_f32(v(CACC + i), v(CACC + i), v(CACC + 4 + i)); st.v_add_f32(v(CACC + 8 + i), v(CACC + 8 + i), v(CACC + 12 + i))
        for i in range(4): st.v_add_f32(v(CACC + i), v(CACC + i), v(CACC + 8 + i))
        st.ds_write_b128(vU, v(CACC, 4))
        st.mark("merge", L); st.label(L)
        if kind == "q": signal(st, 1)
    def cs_q():
        st.v_add_u32(vT, 65536, vC0); st.v_add_u32(vU, 65536, vC1); st.v_add_u32(vV, L_CS + 256, vCW)
        colsum(2, [(a, 2048 * k) for k in range(16) for a in (vT, vU)], True, 2, 3, dst=vV)

    need = {"a0": [0], "a1": [1], "g": [3, 4], "30": [5, 6, 7, 8], "3c": [9], "3d": [10], "3f": [11], "4a": [12], "4b": [13], "4c": [14], "4d": [15], "4e": [16]}
    S0 = os_("s0", "start:c1,Qcq,S4;a0:c2,csk0,Qco,S4;a1:csk1,wst,sigA,pub,G8,sigq,G16,wsig,X2,G12,X2,G12,X2,c3,c4,X2,Th0,Tx;g:part,c5,c6,Qk,S21;p2:Th1,S7;X2:c7,c8;")
    S0 += os_("s0b", "30:red,wst;3a:c9,Twd,nd;3b:c10,nd;3c:r15,r16;3d:c11,c12;3f:c13,S4;3g:c14,S4;4a:S7;4b:u15,S7;4c:u16,S7;4d:S7;4e:c17;X4:c18,Qco,Qcq,S8")
    S1 = os_("s1", "a2:c2,sig,c3,c4;g:c5,c6;p2:Twf32;X2:c7,c8;")
    S1 += os_("s1b", "3a:c9,Twd32,nd;3b:c10,nd;3c:c11,r15,r16;3d:c12;3f:c13;3g:c14;4b:u15;4c:u16")
    def acts(txt):
        d = {}
        for part in txt.split(";"):
            k, _, l = part.partition(":"); d[k] = l.split(",")
        return d
    DR = [False]
    def run(lst, o):
        for a in lst:
            DR[0] = False
            if a == "q": issue(2)
            elif a == "pub": publish()
            elif a == "wld": st.s_lshl_b32(sT0, sJ, 10); st.buffer_load_dwordx4(v(WRAW, 4), vL16, WP, sT0, mods="offen")
            elif a == "wst":
                st.v_bfe_u32(vT, vL, 3, 2); st.v_mul_u32_u24(vT, 576, vT); st.v_lshrrev_b32(vU, 5, vL); st.v_lshl_add_u32(vT, vU, 7, vT)
                st.v_and_b32(vU, 112, vL16); st.v_add_u32(vT, vT, vU); st.v_add_u32(vT, L_KVB, vT)
                st.ds_write_b128(vT, v(WRAW, 4))
            elif a == "non": st.buffer_load_dword(vNON, "off", WS, 0, mods=f"offset:{EPOCH} sc1")
            elif a == "sig":
                st.l.append(Ins("s_nop", ["0"], tneed=f"c{o+2}")); signal(st, 1 + o // 17)
            elif a == "sigA": signal(st, 1, 16)
            elif a == "sigq":
                L = newlab("sq")
                st.l.append(Ins("s_nop", ["0"], tneed=f"c{o+2}")); signal(st, 1, 32)
                st.s_cmp_lg_u32(sM, 2); st.mark("save", L); st.s_cbranch_scc1(L)
                st.v_mov_b32(vU, 1); sigwait(st, 12, 48, regs=(13, 14, 15))
                st.mark("merge", L); st.label(L)
                cs_q(); signal(st, 1)
            elif a == "wsg": st.v_mov_b32(vU, 1); sigwait(st, 12, 64, regs=(13, 14, 15))
            elif a == "wsk": st.v_mov_b32(vU, 1 + o // 17); sigwait(st, 12, 64, regs=(13, 14, 15))
            elif a == "sigo":
                st.l.append(Ins("s_nop", ["0"], tneed=[f"c{o+3}", f"c{o+4}"])); signal(st, 1 + o // 17, 64)
            elif a == "wsp": st.v_mov_b32(vU, 1 + o // 17); sigwait(st, 12, 96, regs=(13, 14, 15))
            elif a == "sw":
                for r in vGL + [vGT]: st.v_xor_b32(r, 0x10000, r)
            elif a == "wsx": st.v_mov_b32(vU, 1); sigwait(st, 12, 80, regs=(13, 14, 15))
            elif a == "wsig": st.v_mov_b32(vU, 2); sigwait(st, 12, 32, regs=(13, 14, 15))
            elif a in ("ok0", "ok1", "oq"): cs_own(a[1:])
            elif a in ("fk", "fq"): cs_fin(a[1])
            elif a.startswith("csk"): cs_kv(int(a[3]))
            elif a == "csq": cs_q()
            elif a == "part": gu_partial()
            elif a == "red": gu_reduce()
            elif a[0] == "P": st.s_setprio(int(a[1:]))
            elif a == "nd": DR[0] = True
            elif a == "QC": SQ.clear()
            elif a == "wl": st.wait(lgkm=0)
            elif a[0] == "D" and a != "DF": dcap(st, a, "l")
            elif a == "DF": dflush(st, "l")
            elif a[:2] == "WB":
                L = newlab("wb")
                if a == "WB": st.s_or_b32(sT0, sJ, sM)
                else: st.s_mov_b32(sT0, sM)
                st.s_cmp_lg_u32(sT0, 0); st.mark("save", L); st.s_cbranch_scc1(L)
                st.raw("    buffer_wbl2 " + os_("wbm", "sc1").replace("+", " "))
                st.mark("merge", L); st.label(L)
            elif a == "wv": st.wait(vm=0)
            elif a[:2] == "wv": st.wait(vm=int(a[2:]))
            elif a[0] == "Q": squeue(a[1:])
            elif a[0] == "S":
                if LDSW(st): st.wait(lgkm=0)
                DR[0] = True; spf(int(a[1:]))
            elif a[0] == "c" and "-" in a:
                n_, PART[0], PART[1] = [int(x) for x in a[1:].split("-")]
                issue(o + n_); PART[:] = [0, 8]
            elif a[0] == "c": issue(o + int(a[1:]))
            elif a[0] == "r" and a[1:].isdigit(): stage(o + int(a[1:]))
            elif a[0] == "u" and a[1:].isdigit(): unstage(o + int(a[1:]))
            elif a[0] == "@": stamp(st, a, who="l", pair=o // 17)
            elif a[0] == "G": gu_loads(int(a[1:]))
            elif a[0] == "X": transposes(int(a[1:]))
            elif a[0] == "H": gu_dma(int(a[1]), a[3])
            elif a[0] == "Y": gu_read(int(a[1]), a[3])
            elif a[0] == "T": touch(a[1:])
            elif a[0] == "W": claim(a[1:])
            elif a[0] == "F": fillw(a[1:])
            elif a[0] == "N": st.l.append(Ins("s_nop", ["0"], tneed="w" + a[1:]))
            else: raise ValueError(a)
    prologue()
    for pair in range(1 if OPT['stop'] else 2):
        o = 17 * pair; A = acts(S0 if pair == 0 else S1)
        run(A.get("start", []), o)
        for b in (SEQ0 if pair == 0 else SEQA) + SEQC:
            tk = []
            for n in need.get(b, []):
                if o + n == 0 and oi("xd", 0): continue
                assert o + n in issued, (pair, b, n)
                tk.append(f"c{o+n}")
            if not (OPT.get("dcap") and b == "a0" and pair == 0): stamp(st, "<" + b, who="l", pair=pair)
            if not DR[0] and LDSW(st): st.wait(lgkm=0)
            DR[0] = False
            st.l.append(Ins("s_barrier", [], tneed=tk))
            run(A.get(b, []), o)
    assert OPT['stop'] or (not gl and tr_next[0] == 8)
    st.s_branch(".Lend")

def main():
    st = Stream()
    entry(st)
    loader(st)
    st.label(".Lslow")
    compute_slow(st)
    st.extend(OOL)
    st.label(".Lend")
    st.s_endpgm()
    bodyt = finalize(st)
    ref = open(f"cdna_kernels/{NAME}.s.ref").read().split("\n")
    head = [l for l in ref if l.startswith(";") and "@launch" not in l]
    out = "\n".join(head) + f"\n; @launch grid=(256,1,1) block=(512,1,1) lds={LDS_BYTES}\n"
    out += '.amdgcn_target "amdgcn-amd-amdhsa--gfx950"\n' + khead(NAME + "_kernel") + bodyt + kd(NAME + "_kernel")
    path = sys.argv[1] if len(sys.argv) > 1 else f"cdna_kernels/{NAME}.s"
    open(path, "w").write(out)
    stamp_names["opt"] = " ".join(a for a in sys.argv[2:] if not a.startswith(("stamps", "only"))); json.dump(stamp_names, open(path + ".json", "w"))
    n = sum(1 for l in bodyt.split("\n") if l.startswith("    ") and not l.strip().startswith(";"))
    print("wrote", path, "instructions:", n, "barriers:", SEQ0, SEQA, SEQC)

main()
```

```python
import sys, os, math, struct, json
sys.path.insert(0, os.path.dirname(os.path.abspath(__file__)))
from asmlib import *
from layout5 import *

NAME = "interleave_layers__linear_kernel_hedgehog__geglu_ffn__prompt"
OPT = dict(stop=None, stamps=False)
for a in sys.argv[2:]:
    k, _, val = a.partition("=")
    OPT[k] = val if val != "" else True
def oi(k, d): return int(OPT.get(k, d))
def os_(k, d): return str(OPT.get(k, d))
TG = oi("tg", 1)
TGM = 0xbfffbfff
SPEC = oi("spec", 0)
E0 = os_("e0", "Qk,Qcj,S21,QC,c0,non,wld")
SCL = "sc1"
def f2u(x): return "0x%08x" % struct.unpack("<I", struct.pack("<f", x))[0]
LOG2E = 1.4426950408889634
DG = oi("dg", 0)
class G: SC = ""; TAG = "f"; SEQ = None; REC = True

WS, X_, OUT, WQ, WP, WO_, WG, WU, WD = [s(4 + 4 * i, 4) for i in range(9)]
sXC = s(40)
XO = oi("xo", 0)
XS = OUT if XO else WS
sC, sJ, sHF, sCG, sM, sNONCE, sCNT, sPAIR = [s(66 + i) for i in range(8)]
sW = s(3)
sXLD, sSTLD, sFA, sXST, sSTST, sFXST = [s(74 + i) for i in range(6)]
sOST, sFB, sFJ = s(80), s(81), s(82)
sHLD, sHST = s(84), s(85)
sKVST, sKVLD, sFKVST, sFKVLD = [s(88 + i) for i in range(4)]
sKZ, sGZ, sHALF, sH5, sF5, sHS = s(62), s(63), s(60, 2), s(49), s(83), s(41)
sT0, sT1, sT2, sT3 = [s(92 + i) for i in range(4)]
sL2E, sONE, sOUTO, sT6 = s(96), s(97), s(98), s(99)
sSTMP = s(100, 2)
sRING, sKH, sTP, sDUM, sLD = s(44), s(45), s(46), s(47), s(48)
sMASK, sBAD, sOLD, sOST1, sOLD1, sTX = s(56), s(58, 2), s(62), s(63), s(90), s(57)
vL, vL16, vA0, vFL = v(0), v(1), v(2), v(3)
RES = 4
vNON = v(12); vT = v(13); vU = v(14); vV = v(15)
vA1, vP0, vP1 = v(121), v(122), v(123)
aXW = v(126)
XF = 128
sXR = s(91)
aEW, aER, vEVv, vEVr, aCS3 = v(112), v(113), v(114), v(115), v(120)
aP4, vS4 = v(124), v(125)

class bc:
    def __init__(self, r, neg=False): self.r = int(r[1:]) if isinstance(r, str) else r; self.neg = neg
class ng:
    def __init__(self, r): self.r = r
def pk(st, op, d, *src):
    ops, lo, hi, n = [], [], [], []
    for x in src:
        if isinstance(x, bc): ops.append(v(x.r & ~1, 2)); lo.append(x.r & 1); hi.append(x.r & 1); n.append(int(x.neg))
        elif isinstance(x, ng): ops.append(v(x.r, 2)); lo.append(0); hi.append(1); n.append(1); assert x.r % 2 == 0
        else: ops.append(v(x, 2)); lo.append(0); hi.append(1); n.append(0); assert x % 2 == 0
    assert d % 2 == 0
    f = lambda l: "[" + ",".join(map(str, l)) + "]"
    mods = f"op_sel:{f(lo)} op_sel_hi:{f(hi)}" + (f" neg_lo:{f(n)} neg_hi:{f(n)}" if any(n) else "")
    st.op(f"v_pk_{op}_f32", v(d, 2), *ops, mods=mods)

lab_n = [0]
def newlab(p):
    lab_n[0] += 1
    return f".L{p}_{lab_n[0]}"

def nxt(st):
    st.s_add_u32(sNONCE, sNONCE, 1); st.v_add_u32(vNON, 1, vNON)

def poll(st, addr, soff, off=0, back=0):
    L = newlab("poll"); D = newlab("pdone")
    st.label(L)
    st.buffer_load_dword(vT, addr, WS, soff, mods=f"offen offset:{off} sc1")
    st.wait(vm=0)
    st.v_cmp_ne_u32("vcc", sNONCE, vT)
    st.s_cbranch_vccz(D)
    for _ in range(back): st.s_nop(15)
    st.s_sub_u32(sCNT, sCNT, 1)
    st.s_cbranch_scc0(L)
    st.s_mov_b32(sCNT, 0)
    st.label(D)

PRA, PRB = v(124), v(125)
def pload(st, r, addr, soff, off=0):
    i = Ins("buffer_load_dword", [r, addr, WS, soff], f"offen offset:{off} sc1"); i.dst = set(); st.l.append(i)
def poll2(st, addr, soff, off=0, gap=0, issued=0):
    if gap < 0: return poll(st, addr, soff, off, -1 - gap)
    L = newlab("poll"); D = newlab("pdone")
    if issued < 1: pload(st, PRA, addr, soff, off)
    if issued < 2:
        for _ in range(gap): st.s_nop(15)
        pload(st, PRB, addr, soff, off)
    st.label(L)
    for r in (PRA, PRB):
        st.wait(vm=1)
        st.v_cmp_ne_u32("vcc", sNONCE, r)
        st.s_cbranch_vccz(D)
        pload(st, r, addr, soff, off)
    st.s_sub_u32(sCNT, sCNT, 1)
    st.s_cbranch_scc0(L)
    st.s_mov_b32(sCNT, 0)
    st.wait(vm=1)
    st.label(D)

OOL = Stream()
def soft_check(st, reg, addr, soff, off=0):
    D = newlab("soft"); X = newlab("softx")
    st.v_cmp_ne_u32("vcc", sNONCE, reg)
    st.s_cbranch_vccnz(X)
    st.label(D)
    OOL.label(X); OOL.mark("reset")
    poll(OOL, addr, soff, off)
    OOL.s_branch(D)

class Spec:
    def __init__(self, n, reg, load, use, head=None, redo=None):
        self.n, self.reg, self.load, self.use, self.head, self.redo = n, reg, load, use, head, redo
    def guard(self, st, g, mf):
        L = newlab("sp")
        if g[0] == "chk":
            X = newlab("miss"); k = g[1]
            st.v_cmp_eq_u32("vcc", -1, v(self.reg(k) + 3))
            b = Ins("s_cbranch_vccnz", [X])
            OOL.label(X); OOL.mark("reset")
            self.load(OOL, k); OOL.s_bitset1_b32(sMASK, k); OOL.s_branch(L)
        elif g[0] == "vcc": b = Ins("s_cbranch_vccnz", [L])
        else: st.s_bitcmp1_b32(sMASK, g[1]); b = Ins("s_cbranch_scc1", [L])
        b.src = set(mf.src); st.l.append(b)
        return L
    def fix(self, st):
        X, D, T = newlab("fix"), newlab("fixd"), newlab("fixt")
        if self.redo: st.s_or_b32(sTX, s(58), s(59)); st.s_or_b32(sTX, sTX, sMASK)
        else: st.s_cmp_lg_u32(sMASK, 0)
        st.s_cbranch_scc1(X); st.label(D)
        o = OOL
        o.label(X); o.mark("reset")
        if self.head: self.head(o)
        o.label(T); o.mark("reset")
        o.s_sub_u32(sCNT, sCNT, 1); o.s_cselect_b32(sCNT, 0, sCNT); o.s_cbranch_scc1(D)
        o.wait(vm=0, lgkm=0)
        tail = Stream()
        for k0 in range(0, self.n, 8):
            S = newlab("fxs")
            o.s_and_b32(sTX, sMASK, 0xff << k0); o.s_cbranch_scc0(S)
            for k in range(k0, k0 + 8):
                F, R, A = newlab("fxf"), newlab("fxr"), newlab("fxa")
                o.s_bitcmp1_b32(sMASK, k); o.s_cbranch_scc1(F); o.label(R)
                tail.label(F); tail.mark("reset")
                tail.v_cmp_eq_u32("vcc", -1, v(self.reg(k) + 3)); tail.s_cbranch_vccnz(A)
                self.use(tail, k); tail.s_bitset0_b32(sMASK, k); tail.s_branch(R)
                tail.label(A); tail.mark("reset")
                self.load(tail, k); tail.s_branch(R)
            o.label(S)
        if self.redo:
            S = newlab("fxs")
            o.s_or_b32(sTX, s(58), s(59)); o.s_cbranch_scc0(S)
            o.mark("reset"); self.redo(o)
            o.label(S); o.mark("reset")
            o.s_nop(1); o.s_or_b32(sTX, s(58), s(59)); o.s_or_b32(sTX, sTX, sMASK)
        else: o.s_cmp_lg_u32(sMASK, 0)
        o.s_cbranch_scc1(T)
        o.wait(lgkm=0); o.s_nop(15); o.s_branch(D)
        o.extend(tail)
    def gate(self, st, base, off, again, n):
        X, D = newlab("gate"), newlab("gated")
        st.v_cmp_eq_u32("vcc", -1, vT); st.s_bcnt1_i32_b64(sTX, "vcc"); st.s_cmp_gt_u32(sTX, 4 * n); st.s_cbranch_scc1(X); st.label(D)
        o = OOL; E = newlab("gatee")
        o.label(X); o.mark("reset")
        o.buffer_load_dword(vT, vU, WS, base, mods=f"offen offset:{off} sc1")
        o.s_sub_u32(sCNT, sCNT, 1); o.s_cselect_b32(sCNT, 0, sCNT); o.s_cbranch_scc1(E)
        o.wait(vm=0)
        o.v_cmp_eq_u32("vcc", -1, vT); o.s_bcnt1_i32_b64(sTX, "vcc"); o.s_cmp_gt_u32(sTX, 4 * oi("gn2", n)); o.s_cbranch_scc1(X)
        o.label(E); o.mark("reset"); o.wait(vm=0)
        for f in again: f(o)
        o.s_branch(D)
    def probe(self, st, base, off):
        st.v_lshlrev_b32(vU, 9, vFL); st.buffer_load_dword(vT, vU, WS, base, mods=f"offen offset:{off} sc1")

stamp_names = {"c": [], "l": []}
def stamp(st, name, real=False, who="c", pair=None):
    if OPT.get("cap") and who == "c" and name == OPT["cap"].split("@")[0]:
        (st.s_memrealtime if OPT.get("capr") else st.s_memtime)(sSTMP); st.wait(lgkm=0)
        st.s_cmp_eq_u32(sPAIR, int(OPT["cap"].split("@")[1])); st.s_cselect_b32(s(43), s(100), s(43))
    if not OPT["stamps"]: return
    only = OPT.get("only")
    if only and who == "l" and not OPT.get("lst"): return
    if only and who == "c" and not isinstance(name, int) and name not in ("start", "end") and name not in only.split(","): return
    if isinstance(name, int): idx = name
    else:
        if name not in stamp_names[who]: stamp_names[who].append(name)
        idx = stamp_names[who].index(name)
    r = v(127) if who == "c" else v(63)
    if name == 62: st.v_mov_b32(r, s(42))
    elif name == "start" and who == "c": st.v_mov_b32(r, s(86))
    elif name == "karg": st.wait(lgkm=0); st.v_mov_b32(r, s(0))
    else:
        if real or OPT.get("rts"): st.s_memrealtime(sSTMP)
        else: st.s_memtime(sSTMP)
        st.wait(lgkm=0)
        st.v_mov_b32(r, s(100))
    if pair is None:
        st.s_lshl_b32(s(101), sPAIR, 8)
        st.s_add_u32(s(101), s(101), s(65))
    else:
        st.s_add_u32(s(101), s(65), 256 * pair)
    st.buffer_store_dword(r, "off", WS, s(101), mods=f"offset:{idx*4}")

def vstamp(st, name):
    if not OPT["stamps"] or name not in OPT.get("only", "").split(","): return
    if name not in stamp_names["c"]: stamp_names["c"].append(name)
    st.s_bcnt1_i32_b32(s(100), sMASK); st.v_mov_b32(v(127), s(100))
    st.s_lshl_b32(s(101), sPAIR, 8); st.s_add_u32(s(101), s(101), s(65))
    st.buffer_store_dword(v(127), "off", WS, s(101), mods=f"offset:{stamp_names['c'].index(name)*4}")

DEF = {"c": [], "l": []}
def dcap(st, name, who="c", reg=None):
    if not (OPT["stamps"] and OPT.get("dcap")): return
    if (reg is None) != (OPT["dcap"] == "1"): return
    if who == "l" and OPT.get("dsg"):
        r = s([8, 9, 10, 11, 12, 13, 14, 15, 41, 42, 43, 60, 61, 62, 63, 97, 98][len(DEF[who])])
        st.s_memrealtime(sSTMP); st.wait(lgkm=0); st.s_mov_b32(r, s(100)); DEF[who].append((name, r)); return
    r = v(reg) if reg else v(16 + len(DEF[who])) if who == "c" else v(30 + len(DEF[who]))
    st.s_memtime(sSTMP); st.wait(lgkm=0); st.v_mov_b32(r, s(100)); DEF[who].append((name, r))
def dflush(st, who="c"):
    if DEF[who]: st.s_lshl_b32(s(101), sPAIR, 8); st.s_add_u32(s(101), s(101), s(65))
    for name, r in DEF[who]:
        if name not in stamp_names[who]: stamp_names[who].append(name)
        if r[0] == "s": st.v_mov_b32(v(63), r); r = v(63)
        st.buffer_store_dword(r, "off", WS, s(101), mods=f"offset:{stamp_names[who].index(name)*4}")
    DEF[who].clear()

def ring_addr(st, mode):
    if mode in ("trq", "trn"):
        st.v_add_u32(vA0, sRING, vP0 if mode == "trq" else vP1); st.v_xor_b32(vA1, 64, vA0)
    elif mode == "b128":
        st.v_add_u32(vA0, sRING, vL16)
def ring_next(st, mode=None):
    st.s_add_u32(sRING, sRING, 0x8000); st.s_and_b32(sRING, sRING, 0x1ffff)
    ring_addr(st, mode)
def barrier(st, name, drain=False):
    if drain: st.wait(lgkm=0)
    st.s_barrier()
    if G.REC: G.SEQ.append(name)

def signal(st, val=None, off=0):
    t0, t1 = (v(124), v(125)) if val is None else (vT, vU)
    st.s_lshl_b32(sT3, sW, 2); st.s_add_u32(sT3, sT3, L_SIG + off); st.v_mov_b32(t0, sT3)
    if val is None: st.v_add_u32(t1, 1, sPAIR)
    else: st.v_mov_b32(t1, val)
    st.ds_write_b32(t0, t1)
def sigwait(st, mask=28, off=0, regs=(124, 125, 126), cmp="ne", extra=None):
    L = newlab("sig"); D = newlab("sigd")
    a, e, r = [v(x) for x in regs]
    st.v_and_b32(a, mask, vFL); st.v_add_u32(a, L_SIG + off, a)
    if extra:
        st.ds_read_b32(r, a)
        extra(st)
        st.wait(lgkm=0)
        st.op(f"v_cmp_{cmp}_u32", "vcc", e, r)
        st.s_cbranch_vccz(D)
    st.label(L)
    st.ds_read_b32(r, a)
    st.wait(lgkm=0)
    st.op(f"v_cmp_{cmp}_u32", "vcc", e, r)
    st.s_cbranch_vccz(D)
    st.s_sub_u32(sCNT, sCNT, 1)
    st.s_cbranch_scc0(L)
    st.s_mov_b32(sCNT, 0)
    st.label(D)

def lane_tr(st, d0, d1, kind, stride=128, tmp=vT, hstride=None):
    st.v_bfe_u32(d0, vL, 2, 2)
    if stride == 128: st.v_lshlrev_b32(d0, 7, d0)
    else: st.v_mul_u32_u24(d0, stride, d0)
    st.v_lshrrev_b32(tmp, 5, vL)
    st.v_lshl_add_u32(d0, tmp, int(math.log2(hstride or 8 * stride)), d0)
    sh = dict(qkv=(5, 4), nat=(4, 5))[kind]
    st.v_and_b32(tmp, 1, vL); st.v_lshl_add_u32(d0, tmp, sh[0], d0)
    st.v_bfe_u32(tmp, vL, 1, 1); st.v_lshl_add_u32(d0, tmp, 3, d0)
    st.v_bfe_u32(tmp, vL, 4, 1); st.v_lshl_add_u32(d0, tmp, sh[1], d0)
    if stride == 128:
        st.v_bfe_u32(tmp, vL, 3, 1); st.v_lshl_add_u32(d0, tmp, 6, d0)
        if d1: st.v_xor_b32(d1, 64, d0)

gemm_n = [0]
def gemm(st, items, mode, af, nslots, depth, ready, bars=None, fill=None, budget=16, hooks=None, loads=None, pre=10, every=2, pairw=0, spec=None):
    n = len(items); loads = list(loads or []); ready = set(ready); bars = bars or {}
    nr = 0; gemm_n[0] += 1; tg = f"g{gemm_n[0]}_"
    def pump(upto):
        nonlocal nr
        while nr < n and nr <= upto:
            it = items[nr]; r = af + 4 * (nr % nslots)
            assert it["chunk"] in ready, (nr, it["chunk"])
            if nr > 0 and it["chunk"] != items[nr - 1]["chunk"]: ring_next(st, mode)
            if mode != "b128":
                a = vA1 if it["t"] else vA0
                st.ds_read_b64_tr_b16(v(r, 2), a, mods=f"offset:{it['off']}")
                st.ds_read_b64_tr_b16(v(r + 2, 2), a, mods=f"offset:{it['off']+512}", tset=tg + str(nr))
            else:
                st.ds_read_b128(v(r, 4), vA0, mods=f"offset:{it['off']}", tset=tg + str(nr))
            nr += 1
    for _ in range(min(pre, len(loads))): loads.pop(0)(st)
    pump(depth - 1)
    for i in range(n):
        it = items[i]
        if hooks and i in hooks: hooks[i](st)
        acc = v(it["acc"], 16)
        st.v_mfma_f32_32x32x16_bf16(acc, v(af + 4 * (i % nslots), 4), v(it["b"], 4), "0" if it["first"] else acc,
                                    tneed=tg + str(i + 1) if pairw and i % 2 == 0 and i + 1 < nr else None)
        if spec and it.get("guard"):
            mf = st.l.pop(); L = spec.guard(st, it["guard"], mf); st.l.append(mf); st.label(L)
        if i in bars:
            barrier(st, bars[i][0]); ready |= set(bars[i][1])
        pump(i + depth)
        if loads and i % every == every - 1: loads.pop(0)(st)
        if fill is not None: fill.take(st, budget(i) if callable(budget) else budget)
    assert not loads

def entry(st):
    st.s_cmp_ge_u32(s(2), 256)
    st.s_cbranch_scc1(".Lend")
    if OPT["stamps"]: st.s_memrealtime(s(42, 2)); st.s_memtime(s(86, 2))
    if OPT.get("dbg"): st.s_memrealtime(s(42, 2)); st.s_memtime(s(86, 2))
    st.s_load_dwordx16(s(44, 16), s(0, 2), 0)
    st.s_load_dwordx4(s(60, 4), s(0, 2), 64)
    st.s_load_dwordx2(s(64, 2), s(0, 2), 80)
    if oi("pc0", 0):
        st.s_getpc_b64(s(100, 2))
        L = newlab("pc")
        st.label(L)
        st.raw(f"    s_sub_u32 s100, s100, {L}-{NAME}_kernel")
        st.raw("    s_subb_u32 s101, s101, 0")
        m = oi("pc0", 0)
        if m == 1:
            st.v_lshlrev_b32(vU, 7, v(0))
        elif m == 2:
            st.v_and_b32(vU, 15, v(0)); st.v_lshrrev_b32(vT, 6, v(0)); st.v_and_b32(vV, 3, vT); st.v_lshl_add_u32(vU, vV, 4, vU); st.v_lshlrev_b32(vU, 7, vU)
            st.v_lshrrev_b32(vT, 2, vT); st.v_mul_u32_u24(vT, f"(.Lld0-{NAME}_kernel)&0xffff80", vT); st.v_add_u32(vU, vU, vT)
        elif m == 3:
            st.v_and_b32(vU, 15, v(0)); st.v_lshrrev_b32(vT, 6, v(0)); st.v_lshl_add_u32(vU, vT, 4, vU); st.v_lshlrev_b32(vU, 9, vU)
            st.s_lshr_b32(sT0, s(2), 3); st.s_and_b32(sT0, sT0, 3); st.s_lshl_b32(sT0, sT0, 7); st.v_add_u32(vU, sT0, vU)
        st.v_min_u32(vU, f".Lslow-{NAME}_kernel", vU)
        i = Ins("global_load_dword", [v(11), vU, s(100, 2)]); i.dst = set(); st.l.append(i)
    st.v_lshrrev_b32(vT, 6, v(0))
    st.v_and_b32(vL, 63, v(0))
    st.v_readfirstlane_b32(sW, vT)
    st.v_lshlrev_b32(vL16, 4, vL)
    st.v_and_b32(vFL, 15, vL)
    st.v_lshlrev_b32(vFL, 2, vFL)
    st.s_and_b32(sT0, s(2), 7)
    st.s_lshr_b32(sT1, s(2), 3)
    st.s_lshr_b32(sC, sT1, 4)
    st.s_lshl_b32(sT0, sT0, 1)
    st.s_add_u32(sC, sC, sT0)
    st.s_and_b32(sJ, sT1, 15)
    st.s_lshr_b32(sHF, sJ, 3)
    st.s_and_b32(sCG, sJ, 7)
    st.s_and_b32(sM, sW, 3)
    st.s_mov_b32(sCNT, 1 << 18)
    st.s_mov_b32(sPAIR, 0)
    st.s_cmp_lt_u32(sJ, 6)
    st.s_cselect_b32(sT6, 1, 0)
    st.s_getreg_b32(sXC, "hwreg(HW_REG_XCC_ID, 0, 4)")
    for d in (WS, X_, OUT, WQ, WP, WO_, WG, WU, WD):
        st.s_mov_b32(s(int(d[2:d.index(":")]) + 3), 0x20000)
    for d, size in ((X_, 2048 * 1024), (WQ, 512 * 3072), (WS, WS_SIZE - (oi("wso", 0) << 20)), (WP, 32 * 512), (WO_, 512 * 1024), (WG, 512 * 2752),
                    (WU, 512 * 2752), (WD, 1376 * 1024), (OUT, 2048 * 1024)):
        st.s_mov_b32(s(int(d[2:d.index(":")]) + 2), size)
    if oi("cfirst", 1) and oi("es", 0):
        if oi("w7", 1): st.s_cmp_eq_u32(sW, 7); st.s_cbranch_scc1(".Lld7")
        st.s_cmp_lt_u32(sW, 4); st.s_cbranch_scc1(".Lcmp0")
        early_round(st); st.s_branch(".Lld0")
        st.label(".Lcmp0"); st.mark("reset")
        compute(st)
        if oi("w7", 1):
            st.label(".Lld7"); st.mark("reset")
            early_round(st)
        st.label(".Lld0"); st.mark("reset")
    elif oi("cfirst", 1):
        st.s_cmp_ge_u32(sW, 4); st.s_cbranch_scc1(".Lld0")
        compute(st)
        st.label(".Lld0"); st.mark("reset")
    else:
        st.s_cmp_lt_u32(sW, 4); st.s_cbranch_scc1(".Lcomp")

def early_round(st, wait=True):
    r = 90 if wait else 54
    a, b = s(r), s(r + 1)
    L = oi("esl", 0)
    st.s_and_b32(a, sC, 1); st.s_lshl_b32(a, a, 4); st.s_add_u32(a, a, sJ); st.s_lshl_b32(a, a, 2 if L else 3); st.s_add_u32(a, a, sM if L else sW)
    st.s_lshr_b32(b, a, 4); st.s_mul_i32(b, b, 3072); st.s_and_b32(a, a, 15); st.s_lshl_b32(a, a, 7); st.s_add_u32(a, a, b)
    if wait: st.wait(lgkm=0)
    st.s_add_u32(a, s(46), a); st.s_addc_u32(b, s(47), 0)
    for i in range(oi("es", 0)):
        x = Ins("s_load_dwordx2", [s(52, 2), s(r, 2), hex(i * (8 if L else 16) * 3072 + 1024 + 60)]); x.dst = set(); st.l.append(x)

def rot(st, d, t):
    if not oi("rot", 0): st.s_mov_b32(d, 0); return
    if oi("rot", 0) == 2: st.s_lshr_b32(d, sC, 1); return
    if oi("rot", 0) == 3: st.s_lshr_b32(d, sC, 1); st.s_and_b32(t, sC, 1); st.s_lshl_b32(t, t, 2); st.s_add_u32(d, d, t); return
    if oi("rot", 0) == 4: st.s_and_b32(d, sC, 1); st.s_lshl_b32(d, d, 2); return
    if oi("rot", 0) == 5: st.s_and_b32(d, sC, 2); st.s_lshl_b32(d, d, 1); return
    st.s_and_b32(d, sJ, 1); st.s_and_b32(t, sC, 1); st.s_lshl_b32(t, t, 1); st.s_add_u32(d, d, t); st.s_lshl_b32(d, d, 1)
    st.s_lshr_b32(t, sJ, 1); st.s_add_u32(d, d, t)

GR = oi("gr", 2)
def grot(st, d, t):
    if GR == 1: st.s_lshr_b32(d, sC, 1); st.s_and_b32(d, d, 3); st.s_and_b32(t, sC, 1); st.s_lshl_b32(t, t, 2); st.s_or_b32(d, d, t)
    elif GR == 2: st.s_lshr_b32(d, sC, 1)
    elif GR == 3: st.s_and_b32(d, sC, 1); st.s_lshl_b32(d, d, 2)
    elif GR == 4: st.s_mov_b32(d, 0)
    elif GR == 5: st.s_and_b32(d, sC, 1); st.s_lshl_b32(d, d, 1); st.s_bfe_u32(t, sC, 0x10001); st.s_or_b32(d, d, t); st.s_and_b32(t, sC, 4); st.s_or_b32(d, d, t)
    elif GR == 6: st.s_and_b32(d, sC, 7)
def srds(st, lst):
    src = {X_: 44, WQ: 46, WP: 48, WO_: 50, WG: 54, WU: 56, WD: 58, OUT: 60, WS: 64}
    for d in lst:
        b = int(d[2:d.index(":")])
        if d == WS and oi("wso", 0):
            st.s_add_u32(s(b), s(src[d]), oi("wso", 0) << 20); st.s_addc_u32(s(b + 1), s(src[d] + 1), 0); st.s_and_b32(s(b + 1), s(b + 1), 0xffff)
            continue
        st.s_mov_b32(s(b), s(src[d])); st.s_and_b32(s(b + 1), s(src[d] + 1), 0xffff)

def stamp_base(st):
    if OPT["stamps"]:
        st.s_lshl_b32(s(65), s(2), 3); st.s_add_u32(s(65), s(65), sW); st.s_lshl_b32(s(65), s(65), 9)
        st.s_add_u32(s(65), s(65), STAMP)

aK, aV, aQ, AF1, WPH, STT = 16, 32, 48, 64, 88, 96
NM, RS, VE, LR = v(112), v(113), v(114), v(115)
aCS, aA, aB, aR1, aR2 = v(116), v(117), v(118), v(119), v(120)

def kv_items():
    return [dict(chunk=k // 16, off=(k % 16) * 2048, t=t, acc=acc, b=XF + 4 * k, first=k == 0)
            for k in range(32) for t, acc in ((0, aK), (1, aV))]

CK, CV = aQ, STT
def k_addr(st):
    st.v_lshrrev_b32(vU, 5, vL); st.v_and_b32(vT, 1, vL); st.v_cmp_eq_u32("vcc", vT, vU)
    st.v_lshlrev_b32(aCS, 6, vU); st.v_add_u32(aCS, L_CS, aCS)
    st.v_lshlrev_b32(aR1, 7, vU); st.v_and_b32(vT, 12, vL); st.v_lshl_add_u32(aR1, vT, 3, aR1)
    st.v_and_b32(vT, 16, vL); st.v_add_u32(aR1, aR1, vT); st.v_and_b32(vT, 2, vL); st.v_lshl_add_u32(aR1, vT, 2, aR1)
    st.v_mov_b32(vT, 544); st.v_cndmask_b32(aR1, vT, aR1, "vcc"); st.v_add_u32(aR1, L_KVB, aR1)
    st.v_and_b32(vT, 31, vL); st.s_lshl_b32(sT0, sM, 5); st.v_add_u32(vT, sT0, vT)
    st.v_mul_u32_u24(aA, 144, vT); st.v_lshl_add_u32(aA, vU, 6, aA); st.v_add_u32(aA, L_PH, aA)
    st.v_mul_u32_u24(aB, 80, vT); st.v_lshl_add_u32(aB, vU, 5, aB); st.v_add_u32(aB, L_VB, aB)
def k_reads(st, which="wkv"):
    if "k" in which:
        for i in range(4): st.ds_read_b128(v(CK + 4 * i, 4), aCS, mods=f"offset:{16*i}")
    if "w" in which:
        for q in range(4): st.ds_read_b64_tr_b16(v(WPH + 2 * q, 2), aR1, mods=f"offset:{576*q}")
    if "v" in which:
        for i in range(4): st.ds_read_b128(v(CV + 4 * i, 4), aCS, mods=f"offset:{128+16*i}")

def fin_stats(st, S, Q, t0, t1, negmean, rstd, vare):
    if t0: st.v_mov_b32(t0, S)
    st.v_mov_b32(t1, Q)
    if t0: st.v_permlane32_swap_b32(S, t0)
    st.v_permlane32_swap_b32(Q, t1)
    if t0: st.v_add_f32(S, S, t0)
    st.v_add_f32(Q, Q, t1)
    st.v_mul_f32(negmean, f2u(-1.0 / 512), S)
    st.v_mul_f32(Q, f2u(1.0 / 512), Q)
    st.v_fma_f32(vare, "-" + negmean, negmean, Q)
    st.v_max_f32(vare, 0, vare)
    st.v_add_f32(vare, f2u(1e-5), vare)
    st.v_rsq_f32(rstd, vare)

def stats(st, stt, negmean, rstd, vare):
    S, Q = v(stt), v(stt + 1)
    for i in range(4): st.v_add_f32(v(stt + i), v(stt + i), v(stt + 4 + i))
    for i in range(4): st.v_add_f32(v(stt + 8 + i), v(stt + 8 + i), v(stt + 12 + i))
    for i in range(4): st.v_add_f32(v(stt + i), v(stt + i), v(stt + 8 + i))
    st.v_add_f32(S, S, v(stt + 2)); st.v_add_f32(Q, Q, v(stt + 3))
    fin_stats(st, S, Q, v(stt + 2), v(stt + 3), negmean, rstd, vare)

def p1a0(st):
    g0, g1, aW = v(118), v(119), v(120)
    aRd = [v(88 + i) for i in range(4)]
    QD, SA, SELA = 96, 112, 92
    XD = oi("xd", 0)
    st.v_lshrrev_b32(vT, 3, vL); st.v_and_b32(vV, 7, vL)
    if XD: st.v_lshrrev_b32(vU, 4, vL); st.v_xor_b32(vV, vV, vU)
    st.v_lshlrev_b32(g0, 10, vT); st.v_lshl_add_u32(g0, vV, 4, g0)
    st.s_lshl_b32(sT0, sC, 2); st.s_add_u32(sT0, sT0, sM); st.s_lshl_b32(sT0, sT0, 15)
    GA = [v(48 + g) for g in range(4)]
    PRE = oi("pre", 0); assert not (PRE and (XD or oi("rot", 0)))
    st.v_lshlrev_b32(g1, 5, vFL); st.s_lshl_b32(sT1, sJ, 11); st.s_add_u32(sT1, sT1, sT0)
    if PRE: st.v_add_u32(v(53), sT1, g1)
    for g in range(4):
        st.v_add_u32(GA[g], sT0, g0)
        if XD and g & 1: st.v_xor_b32(GA[g], 64, GA[g])
        if g < 3: st.s_add_u32(sT0, sT0, 8192)
    vKc, sA0, sKc, sK8 = v(52), s(41), s(83), s(98)
    AREA = [0, 16384, 32768, 49152, 65536, 32768, 49152, 65536]
    if XD:
        st.v_bfe_u32(vU, vL, 4, 1); st.v_lshlrev_b32(vU, 2, vU); st.v_and_b32(vV, 7, vL); st.v_xor_b32(vU, vU, vV)
        st.v_mul_u32_u24(vKc, 3072, vT); st.v_and_b32(vV, 3, vU); st.v_lshl_add_u32(vKc, vV, 4, vKc)
        st.v_lshrrev_b32(vV, 2, vU); st.v_lshl_add_u32(vKc, vV, 10, vKc); st.v_add_u32(vKc, 1024, vKc)
        st.s_lshl_b32(sA0, sM, 12); st.s_add_u32(sA0, sA0, 65536); st.s_lshl_b32(sK8, sM, 13)
        st.s_mul_i32(sKc, sM, 64 * 3072); st.s_lshl_b32(sT0, sJ, 6); st.s_add_u32(sKc, sKc, sT0)
    if oi("tk0", 0):
        st.v_lshrrev_b32(vT, 5, vL); st.v_lshlrev_b32(vT, 8, vT); st.v_bfe_u32(vU, vL, 4, 1); st.v_add_u32(vT, vT, vU)
        st.v_mul_u32_u24(v(124), 3072, vT); st.v_lshl_add_u32(v(124), vFL, 5, v(124))
        st.s_and_b32(sT2, sC, 1); st.s_lshl_b32(sT2, sT2, 4); st.s_add_u32(sT2, sT2, sJ); st.s_lshl_b32(sT2, sT2, 2); st.s_add_u32(sT2, sT2, sM)
        st.s_mul_i32(sT2, sT2, 2 * 3072); st.s_add_u32(sT2, sT2, 1024)
    sR, sQO = s(41), s(83)
    if not XD and not PRE: rot(st, sR, sT0)
    def c0(st):
        srds(st, [WQ])
        for i in range(8):
            st.s_add_u32("m0", sK8, 1024 * i); st.s_add_u32(sT0, sKc, 8 * i * 3072)
            st.buffer_load_dwordx4(vKc, WQ, sT0, mods="offen lds", tset="c0c" if i == 7 else None)
    def xl(p, st):
        if not XD and not PRE: st.s_add_u32(sQO, sR, p); st.s_and_b32(sQO, sQO, 7); st.s_lshl_b32(sQO, sQO, 7)
        if p == (-1 if XD else 0):
            st.wait(lgkm=0)
            srds(st, [X_])
            if OPT["stamps"]: st.s_memtime(s(0, 2))
            dcap(st, "dk")
            if OPT.get("lat"):
                srds(st, [WQ, WO_, WG, WD, WS, OUT])
                st.v_lshlrev_b32(v(40), 2, vL)
                for nm_, srd, off in (("x0", X_, 0), ("x1", X_, 4096), ("x2", X_, 65536), ("x3", X_, 1 << 20), ("wo", WO_, 0), ("wo2", WO_, 262144), ("wg", WG, 0), ("wd", WD, 0),
                                      ("ws", WS, XB), ("ws2", WS, XB + 4096), ("ws3", WS, HB + 2 * MB), ("out", OUT, 0)):
                    st.s_mov_b32(sT2, off); st.buffer_load_dword(v(41), v(40), srd, sT2, mods="offen"); st.wait(vm=0); dcap(st, nm_)
            if oi("tx0", 1):
                i = Ins("buffer_load_dword", [v(126), v(53), X_, "0"] if PRE else [v(126), g1, X_, sT1], "offen"); i.dst = set(); st.l.append(i)
            if oi("tk0", 0):
                srds(st, [WQ])
                i = Ins("buffer_load_dword", [v(125), v(124), WQ, sT2], "offen"); i.dst = set(); st.l.append(i)
        if p < 0: return
        for g in range(4):
            if XD:
                st.s_add_u32("m0", sA0 if AREA[p] < 65536 else sKc, AREA[p] + 1024 * g - 128 * p)
                st.buffer_load_dwordx4(GA[g], X_, 0, mods=f"offen offset:{128*p} lds", tset=f"x{p}" if g == 3 else None,
                                       tneed=f"r{p-3}" if p >= 5 and g == 0 else None)
            elif PRE: st.buffer_load_dwordx4(v(XF + 16 * p + 4 * g, 4), GA[g], X_, 0, mods=f"offen offset:{128*p}")
            else: st.buffer_load_dwordx4(v(XF + 16 * p + 4 * g, 4), GA[g], X_, sQO, mods="offen")
        if p == 7 and oi("nonl", 0): st.buffer_load_dword(vNON, "off", WS, 0, mods=f"offset:{EPOCH} sc1")
    def head(st):
        n0 = oi("xn0", 2); n1 = oi("xn1", 4)
        if XD: n0 = oi("xn0", 1); xl(-1, st)
        for p in range(n0):
            xl(p, st)
            if oi("es", 0) and not oi("esl", 0) and p == min(n0, oi("esp", 1)) - 1: early_round(st, wait=False)
        if XD: c0(st)
        srds(st, [WS, OUT])
        stamp_base(st)
        if XD: stamp(st, 62, True); stamp(st, "start"); stamp(st, "karg"); stamp(st, "xissued")
        if not oi("nonl", 0): st.buffer_load_dword(vNON, "off", WS, 0, mods=f"offset:{EPOCH} sc1")
        return n0, n1
    def block(st, post, sKH, sTP, sKZ, sGZ):
        st.s_and_b32(sKH, sM, 1); st.s_lshr_b32(sTP, sM, 1); post.s_mov_b32(sRING, 0)
        st.v_and_b32(aA, 31, vL); st.v_lshlrev_b32(aA, 10, aA); st.v_lshrrev_b32(vT, 5, vL); st.v_lshl_add_u32(aA, vT, 4, aA)
        st.s_lshl_b32(sOUTO, sC, 17); st.s_lshl_b32(sT1, sHF, 16); st.s_add_u32(sOUTO, sOUTO, sT1)
        st.s_lshl_b32(sT1, sTP, 15); st.s_add_u32(sOUTO, sOUTO, sT1); st.s_lshl_b32(sT1, sCG, 7); st.s_add_u32(sOUTO, sOUTO, sT1)
        st.s_lshl_b32(sT1, sKH, 6); st.s_add_u32(sOUTO, sOUTO, sT1)
        post.s_mov_b32(sL2E, f2u(LOG2E)); post.s_mov_b32(sONE, 0x3f803f80)
        st.s_lshl_b32(sT0, sC, 2); st.s_add_u32(sT1, sT0, sM)
        st.s_lshl_b32(sXLD, sT1, 15)
        if not XO: st.s_add_u32(sXLD, sXLD, XB)
        if GR: grot(st, sXR, sT2); st.s_lshl_b32(sXR, sXR, 12); st.s_xor_b32(sXR, sXR, sXLD)
        st.s_lshl_b32(sSTLD, sT1, 12); st.s_add_u32(sSTLD, sSTLD, ST)
        st.s_lshl_b32(sFA, sT1, 10); st.s_add_u32(sFA, sFA, FL)
        st.s_lshl_b32(sT2, sJ, 2); st.s_add_u32(sFJ, sFA, sT2)
        st.s_mul_i32(sHST, sT1, HB_TB); st.s_add_u32(sHST, sHST, HB)
        st.s_lshl_b32(sT2, sJ, 11); st.s_add_u32(sOST, sHST, sT2)
        post.s_mov_b32(s(60), 0); post.s_mov_b32(s(61), -1)
        st.s_lshl_b32(sT2, sJ, 10); st.s_add_u32(sHST, sHST, sT2)
        post.s_lshl_b32(sDUM, sFA, 1); post.s_add_u32(sDUM, sDUM, (DUMMY - 2 * FL) & 0xffffffff)
        st.s_lshl_b32(sT1, sHF, 1); st.s_add_u32(sT1, sT1, sT0); st.s_add_u32(sT1, sT1, sTP)
        st.s_lshl_b32(sT3, sCG, 1); st.s_add_u32(sT3, sT3, sKH)
        st.s_lshl_b32(sXST, sT1, 15); st.s_lshl_b32(sT2, sT3, 11); st.s_add_u32(sXST, sXST, sT2)
        if not XO: st.s_add_u32(sXST, sXST, XB)
        st.s_lshl_b32(sSTST, sT1, 12); st.s_lshl_b32(sT2, sCG, 9); st.s_add_u32(sSTST, sSTST, sT2)
        st.s_lshl_b32(sT2, sKH, 3); st.s_add_u32(sSTST, sSTST, sT2); st.s_add_u32(sSTST, sSTST, ST)
        st.s_lshl_b32(sFB, sT1, 10); st.s_add_u32(sFB, sFB, FL)
        st.s_lshl_b32(sT2, sT3, 2); st.s_add_u32(sFXST, sFB, sT2)
        st.s_lshl_b32(sT2, sKH, 10)
        st.s_mul_i32(sHLD, sT1, HB_TB); st.s_add_u32(sHLD, sHLD, sT2); st.s_add_u32(sHLD, sHLD, HB)
        if SPEC & 1:
            post.s_mov_b32(sOLD, sHLD)
            post.s_lshl_b32(sT0, sJ, 11); post.s_add_u32(sOST1, sXLD, sT0); post.s_add_u32(sOST1, sOST1, OB1 - XB)
            post.s_and_b32(sOLD1, sXST, ~32767 & 0xffffffff); post.s_lshl_b32(sT0, sKH, 10); post.s_add_u32(sOLD1, sOLD1, sT0); post.s_add_u32(sOLD1, sOLD1, OB1 - XB)
        if TG:
            st.s_lshl_b32(sT1, sJ, 2); st.s_add_u32(sT1, sT1, sM); st.s_mul_i32(sKVLD, sT1, 16 * TG_W); st.s_add_u32(sKVLD, sKVLD, KVP)
            st.s_mul_i32(sKVST, sC, TG_W); st.s_add_u32(sKVST, sKVST, sKVLD)
        else:
            st.s_mul_i32(sKVLD, sJ, KV_J); st.s_add_u32(sKVLD, sKVLD, KVP)
            st.s_mul_i32(sKVST, sC, KV_REC); st.s_add_u32(sKVST, sKVST, sKVLD)
            st.s_lshl_b32(sT1, sKH, 7); st.s_lshl_b32(sT2, sTP, 5); st.s_add_u32(sT1, sT1, sT2); st.s_add_u32(sKZ, sKVST, sT1); st.s_add_u32(sKZ, sKZ, 2048)
            st.s_lshl_b32(sT1, sKH, 10); st.s_lshl_b32(sT2, sTP, 6); st.s_add_u32(sT1, sT1, sT2); st.s_add_u32(sKVST, sKVST, sT1)
            st.s_lshl_b32(sT1, sM, 6); st.s_add_u32(sGZ, sKVLD, sT1); st.s_add_u32(sGZ, sGZ, 2048)
            st.s_lshl_b32(sT1, sM, 9); st.s_add_u32(sKVLD, sKVLD, sT1)
            st.s_lshl_b32(sFKVLD, sJ, 11); st.s_add_u32(sFKVLD, sFKVLD, FKV)
            st.s_lshl_b32(sT1, sC, oi("fks", 7)); st.s_lshl_b32(sT2, sM, 2); st.s_add_u32(sFKVST, sT1, sT2); st.s_add_u32(sFKVST, sFKVST, sFKVLD)
        for i in range(4): st.v_mov_b32(v(96 + i), 0)
        st.v_and_b32(vT, 3, vL); st.v_mul_u32_u24(vT, 576, vT); st.v_add_u32(vT, L_KVB + 544, vT)
        st.ds_write_b128(vT, v(96, 4))
        st.v_and_b32(vT, 112, vL16); st.v_add_u32(vT, L_SIG, vT)
        st.ds_write_b128(vT, v(96, 4))
        st.v_bfe_u32(vT, vL, 4, 1); st.v_and_b32(vU, 1, vL); st.v_cmp_eq_u32("vcc", vT, vU)
        st.v_mov_b32(vV, 0x3f803f80)
        for i in range(4): st.v_cndmask_b32(v(SELA + i), 0, vV, "vcc")
        if XD: sT0_ = sA0
        else:
            sT0_ = sT0
            st.s_lshl_b32(sT0, sM, 12); st.s_add_u32(sT0, sT0, L_PH)
            st.v_and_b32(vT, 48, vL); st.v_xor_b32(vT, vT, vL16); st.v_add_u32(aW, sT0, vT); st.v_xor_b32(g1, 64, aW)
        st.v_and_b32(vT, 31, vL); st.v_lshrrev_b32(vU, 5, vL); st.v_bfe_u32(vV, vL, 1, 3); st.v_xor_b32(vU, vU, vV)
        st.v_lshlrev_b32(vT, 7, vT); st.v_lshl_add_u32(vT, vU, 4, vT); st.v_add_u32(aRd[0], sT0_, vT)
        for i in range(1, 4): st.v_xor_b32(aRd[i], 32 * i, aRd[0])
        if XD:
            st.s_lshl_b32(sT0, sM, 9); st.s_add_u32(sKc, sA0, sT0); st.s_add_u32(sT0, sT0, 65536)
            for i in range(4): st.v_add_u32(aR4[i], sT0, aRd[i])
        lane_tr(st, vP0, None, "qkv"); ring_addr(post, "trq")
    aR4 = [v(56 + i) for i in range(4)]
    if PRE:
        B = Stream(); post = Stream()
        post.s_mov_b32(sKH, s(96)); post.s_mov_b32(sTP, s(97)); post.s_mov_b32(sKZ, s(41)); post.s_mov_b32(sGZ, s(83))
        block(B, post, s(96), s(97), s(41), s(83))
        print("block", len(B.l), file=sys.stderr)
        o = oi("prer", 0)
        if o:
            k = next(i for i, x in enumerate(B.l) if x.name == "v_mov_b32" and x.ops[0] == "v96")
            B.l = B.l[k:] + B.l[:k]; print("vector part", len(B.l) - k, file=sys.stderr)
        st.extend(B.l[:PRE]); n0, n1 = head(st); LATE = Stream(); LATE.extend(B.l[PRE:]); LATE.extend(post)
        if not oi("late", 0): st.extend(LATE); LATE = Stream()
    else:
        n0, n1 = head(st); post = Stream(); LATE = Stream()
        block(st, post, sKH, sTP, sKZ, sGZ); st.extend(post)
    def rnd(q, st):
        R = XF + 16 * q
        if XD:
            for i in range(4):
                st.ds_read_b128(v(R + 4 * i, 4), (aRd if AREA[q] < 65536 else aR4)[i], mods=f"offset:{AREA[q] % 65536}",
                                tneed=f"x{q}" if i == 0 else None, tset=f"r{q}" if i == 3 else None)
            return
        for g in range(4): st.ds_write_b128(g1 if g & 1 else aW, v(R + 4 * g, 4), mods=f"offset:{1024*g}")
        for i in range(4): st.ds_read_b128(v(R + 4 * i, 4), aRd[i])
    def smf(k, st):
        f = v(XF + 4 * k, 4)
        st.v_mfma_f32_32x32x16_bf16(v(QD, 16), f, f, "0" if k == 0 else v(QD, 16))
        st.v_mfma_f32_16x16x32_bf16(v(SA, 4), v(SELA, 4), f, "0" if k == 0 else v(SA, 4))
    def res(st):
        st.buffer_load_dwordx4(v(RES, 4), aA, X_, sOUTO, mods="offen")
        st.buffer_load_dwordx4(v(RES + 4, 4), aA, X_, sOUTO, mods="offen offset:32")
    hq = oi("hq", 8)
    ORD = [int(c) for c in os_("xord", "01234567")]; assert ORD[:2] == [0, 1] and (hq == 8 or ORD == sorted(ORD))
    if XD:
        hq = 1; n1 = oi("xn1", 5)
        for p in range(n0, n1): xl(p, st)
        stamp(st, "xiss2")
        barrier(st, "s0")
        for p in range(n1, 5): xl(p, st)
        rnd(0, st)
        for k in range(4): smf(k, st)
        rnd(1, st)
        acts = {}
        act = lambda i, f: acts.setdefault(i, []).append(f)
        rps = [int(x) for x in os_("rp", "2,8,14,28,36,44").split(",")]; xps = [int(x) for x in os_("xp", "5,11,17").split(",")]
        for b in range(2, 8): act(rps[b - 2], lambda st, b=b: rnd(b, st))
        for b in range(5, 8): act(xps[b - 5], lambda st, b=b: xl(b, st))
        for k in range(4, 32):
            last = 2 * (k - 4) + oi("sm0", 0); assert k < 8 or last > rps[k // 4 - 2]
            act(last, lambda st, k=k: smf(k, st))
        rp = 0
        stamp(st, "p1pre")
        st.wait(lgkm=0); st.l.append(Ins("s_barrier", [], tneed="c0c"))
        if G.REC: G.SEQ.append("a0")
    else:
      dcap(st, "d1")
      for p in range(n0, n1): xl(ORD[p], st)
      nl = n1; nb = oi("xnb", 8)
      dcap(st, "d2")
      rnd(0, st)
      dcap(st, "r0")
      for q in range(hq):
        if nl < nb: xl(ORD[nl], st); nl += 1
        if q < 7: rnd(ORD[q + 1], st)
        lk = oi("late", 0)
        st.extend(LATE.l[:lk]); LATE.l = LATE.l[lk:]
        if q == hq - 1: st.extend(LATE)
        if q in (0, 2, 4, 6): dcap(st, f"r{q+1}")
        for k in range(4 * ORD[q], 4 * ORD[q] + 4): smf(k, st)
      while nl < nb: xl(ORD[nl], st); nl += 1
      acts = {}
      act = lambda i, f: acts.setdefault(i, []).append(f)
      for n, p in enumerate(range(nl, 8)): act(oi("xat", 0) + oi("xgap", 8) * n, lambda st, p=p: xl(p, st))
      rl = oi("rl", 2); last = 0
      for b in range(hq, 8):
        rp = max(1, 8 * (b - 1) - rl)
        if b > hq: act(rp, lambda st, b=b: rnd(b, st))
        for u in range(4):
            last = max(last + 1, (rp + oi("rs", 5) if b > hq else 0) + 2 * u)
            act(last, lambda st, k=4 * b + u: smf(k, st))
      stamp(st, "p1pre")
      dcap(st, "dp")
      barrier(st, "a0", drain=True)
      dcap(st, "da")
      stamp(st, 62, True); stamp(st, "start"); stamp(st, "karg")
      dflush(st)
    stamp(st, "B(a0)")
    bars = {oi("a1", 20): ("a1", [1])}
    f = Stream()
    M = [s(50 + 2 * i, 2) for i in range(5)]
    for i, bit in enumerate((16, 8, 2, 1)):
        f.v_and_b32(vT, bit, vL); f.v_cmp_ne_u32(M[i], 0, vT)
    f.v_bfe_u32(vT, vL, 2, 1); f.v_lshrrev_b32(vU, 5, vL); f.v_cmp_eq_u32(M[4], vT, vU)
    fm = None
    if hq < 8: fm = f; f = Stream()
    f.v_cndmask_b32(v(SA), v(SA), v(SA + 1), M[0])
    for i in range(8): f.v_cndmask_b32(v(QD + i), v(QD + i), v(QD + 8 + i), M[0])
    for i in range(4): f.v_cndmask_b32(v(QD + i), v(QD + i), v(QD + 4 + i), M[1])
    for i in range(2): f.v_cndmask_b32(v(QD + i), v(QD + i), v(QD + 2 + i), M[2])
    f.v_cndmask_b32(v(QD), v(QD), v(QD + 1), M[3])
    f.v_cndmask_b32(v(QD), 0, v(QD), M[4])
    fin_stats(f, v(SA), v(QD), None, v(QD + 1), NM, RS, VE)
    f.v_mul_f32(LR, sL2E, RS)
    g = Stream(); k_addr(g)
    g2 = g if hq == 8 else Stream()
    lane_tr(g2, vP1, None, "nat")
    g2.s_lshl_b32(sT2, sKH, 6); g2.v_xor_b32(vP1, sT2, vP1); g2.s_lshl_b32(sT2, sKH, 11); g2.v_add_u32(vP1, sT2, vP1)
    fill = Filler()
    r0 = oi("res0", 24)
    if hq == 8:
        act(2, lambda st: fill.add(f)); act(r0, res); act(r0 + 1, lambda st: fill.add(g))
    else:
        act(oi("gat", 1), lambda st: (fill.add(g2), fill.add(fm))); act(max(r0, 25), res)
        act(max(rp + 1, 26), lambda st: fill.add(g)); act(last + 3, lambda st: fill.add(f))
    hooks = {i: (lambda st, l=l: [f(st) for f in l]) for i, l in acts.items()}
    gemm(st, kv_items(), "trq", AF1, 6, 5, ready=[0], bars=bars, hooks=hooks, fill=fill, budget=oi("bud10", 8), pairw=oi("pw1", 0))
    fill.flush(st)
    st.v_add_u32(vNON, 1, vNON)
    st.v_mov_b32(v(125), 1); sigwait(st, 12, 32, cmp="gt")
    k_reads(st)
    st.v_readfirstlane_b32(sNONCE, vNON)
    signal(st, 2, 32)
    st.s_add_u32(sH5, sHST, 16384 * 5); st.s_add_u32(sF5, sDUM, 1024)
    st.s_cmp_eq_u32(sT6, 1); st.s_cselect_b32(sH5, sH5, sDUM); st.s_cselect_b32(sF5, sFJ, sF5)
    stamp(st, "KVgemm")

def frag_loads(base, regs, stride, per, WS=WS, xor=False):
    out = []
    for k, r in enumerate(regs):
        def f(st, k=k, r=r):
            if k % per == 0: (st.s_xor_b32 if xor else st.s_add_u32)(sLD, base, k * stride)
            st.buffer_load_dwordx4(v(r, 4), vL16, WS, sLD, mods=f"offen offset:{(k % per) * stride} {SCL}")
        out.append(f)
    return out

def x_addr(st):
    st.v_lshrrev_b32(vV, 5, vL); st.v_lshlrev_b32(vV, 11, vV); st.v_and_b32(vU, 31, vL); st.v_lshl_add_u32(vV, vU, 4, vV)
def p1a_pre(st):
    ring_next(st, "trq"); x_addr(st)
def p3_pre(st):
    st.v_and_b32(vU, 31, vL); st.v_lshlrev_b32(aCS3, 2, vU); st.v_add_u32(aCS3, L_CS + 3 * 128, aCS3)
    ring_next(st, "b128"); x_addr(st)
    st.s_add_u32(sT0, sRING, 0x10000); st.s_and_b32(sT0, sT0, 0x1ffff); st.v_add_u32(vA1, sT0, vL16)
    st.s_lshl_b32(sT0, sM, 12); st.s_add_u32(sT0, sT0, L_PH); st.v_add_u32(aXW, sT0, vL16)
def x_loads(st, stt, at=32, rot=False):
    L = frag_loads(sXR if rot else sXLD, [XF + 4 * k for k in range(32)], 1024, 4, XS, xor=rot)
    def stl(st):
        for i in range(4):
            st.buffer_load_dwordx4(v(stt + 4 * i, 4), vV, WS, sSTLD, mods=f"offen offset:{512*i} {SCL}")
    return L[:at] + [stl] + L[at:]

def featmap(st, acc, kb, wp, e1, e2, lr, mid=None, hk=None):
    n0 = len(st.l)
    featmap_(st, acc, kb, wp, e1, e2, lr, mid)
    for at in sorted(hk or {}, reverse=True):
        x = Stream(); hk[at](x); st.l[n0 + at:n0 + at] = x.l
def featmap_(st, acc, kb, wp, e1, e2, lr, mid=None):
    for i in range(8): st.v_cvt_pk_bf16_f32(v(kb + i), v(acc + 2 * i), v(acc + 2 * i + 1))
    st.v_mfma_f32_32x32x16_bf16(v(acc, 16), v(wp, 4), v(kb, 4), "0")
    st.v_mfma_f32_32x32x16_bf16(v(acc, 16), v(wp + 4, 4), v(kb + 4, 4), v(acc, 16))
    if mid: mid(st)
    mx, mn = v(kb), v(kb + 1)
    p = lambda i: v(acc + i)
    st.v_max3_f32(mx, p(0), p(1), p(2)); st.v_min3_f32(mn, p(0), p(1), p(2))
    for i in range(3, 15, 2):
        st.v_max3_f32(mx, mx, p(i), p(i + 1)); st.v_min3_f32(mn, mn, p(i), p(i + 1))
    st.v_max_f32(mx, mx, p(15)); st.v_min_f32(mn, mn, p(15))
    pk(st, "mul", kb, bc(lr), kb)
    for i in range(0, 16, 2):
        pk(st, "fma", e1 + i, acc + i, bc(lr), bc(kb, True)); pk(st, "fma", e2 + i, ng(acc + i), bc(lr), bc(kb + 1))
    for i in range(16):
        st.v_exp_f32(v(e1 + i), v(e1 + i)); st.v_exp_f32(v(e2 + i), v(e2 + i))
    s1, s2 = kb + 2, kb + 4
    pk(st, "add", s1, e1, e1 + 2); pk(st, "add", s2, e2, e2 + 2)
    for i in range(4, 16, 2):
        pk(st, "add", s1, s1, e1 + i); pk(st, "add", s2, s2, e2 + i)
    st.v_add_f32(v(s1), v(s1), v(s1 + 1)); st.v_add_f32(v(s2), v(s2), v(s2 + 1))
    st.v_rcp_f32(v(s1), v(s1)); st.v_rcp_f32(v(s2), v(s2))
    for i in range(0, 16, 2):
        pk(st, "mul", e1 + i, bc(s1), e1 + i); pk(st, "mul", e2 + i, bc(s2), e2 + i)
    for i in range(8):
        st.v_cvt_pk_bf16_f32(v(e1 + i), v(e1 + 2 * i), v(e1 + 2 * i + 1))
        st.v_cvt_pk_bf16_f32(v(e2 + i), v(e2 + 2 * i), v(e2 + 2 * i + 1))

def p1a(st):
    at = oi("st1", 22)
    L = x_loads(st, STT, at)
    stamp(st, "p1pre")
    if "l" not in os_("nopoll", ""): poll2(st, vFL, sFA, 0, oi("gfx", -1))
    stamp(st, "FXpoll")
    pre = oi("pre1", 10)
    for f in L[:pre]: f(st)
    nxt(st)
    barrier(st, "a0")
    stamp(st, "B(a0)")
    fill = Filler()
    f = Stream(); stats(f, STT, NM, RS, VE); f.v_mul_f32(LR, sL2E, RS); k_reads(f, "v")
    g = Stream(); k_addr(g); k_reads(g, "wk")
    hooks = {2: lambda st: fill.add(g), oi("sth1", 2 * at + 2): lambda st: fill.add(f)}
    gemm(st, kv_items(), "trq", AF1, 6, 5, ready=[0], bars={oi("a1", 20): ("a1", [1]), oi("a2", 56): ("a2", [])}, loads=L[pre:], pre=0,
         hooks=hooks, fill=fill, budget=oi("bud1", 8), pairw=oi("pw1", 0))
    fill.flush(st)
    stamp(st, "KVgemm")

def gather_flagged(st, AF, aPL, aGZ, aGK, XT):
    ep = [int(x) for x in os_("kvp", "").split(",") if x]
    featmap(st, aQ, AF, WPH, aK, aV, LR, hk={a: (lambda x, r=r: pload(x, r, aPL, sFKVLD)) for a, r in zip(ep, (PRA, PRB))})
    stamp(st, "Q done")
    if OPT.get("dcap") == "2": st.wait(vm=0); dcap(st, "kf2", reg=126)
    poll2(st, aPL, sFKVLD, 0, oi("gkv", -1), len(ep))
    dflush(st)
    stamp(st, "FKVpoll")
    Gr, Z, SG, GA = XF, XF + 64, XF + 32, XF + 48
    nt = os_("gm", "sc1").replace("+", " ").replace("-", "")
    for cc in range(8):
        if cc: st.s_add_u32(sT0, sKVLD, 2 * cc * KV_REC)
        st.buffer_load_dwordx4(v(Gr + 4 * cc, 4), aGK, WS, sT0 if cc else sKVLD, mods="offen " + nt)
    for i in range(4):
        if i: st.s_add_u32(sT1, sGZ, 4 * i * KV_REC)
        st.buffer_load_dword(v(Z + i), aGZ, WS, sT1 if i else sGZ, mods="offen " + nt)
    if G.TAG == "f":
        st.s_lshl_b32(sT2, sC, 7); st.s_add_u32(sT2, sT2, XCCT)
        st.buffer_load_dword(XT, vFL, WS, sT2, mods="offen sc1")
        if oi("gsig", 0): signal(st, 1, 64)
    nxt(st)
    st.s_mul_i32(sT0, sM, 576); st.s_add_u32(sT0, sT0, L_KVB)
    st.v_and_b32(vT, 31, vL)
    st.v_and_b32(vU, 1, vL); st.v_lshlrev_b32(vU, 4, vU); st.v_mov_b32(vV, 0x3f80); st.v_lshlrev_b32(vU, vU, vV); st.v_lshrrev_b32(vV, 1, vT)
    for i in range(4):
        st.v_cmp_eq_u32("vcc", i, vV); st.v_cndmask_b32(v(SG + i), 0, vU, "vcc")
    st.v_lshlrev_b32(vT, 4, vT)
    st.v_lshrrev_b32(vU, 5, vL)
    st.v_lshl_add_u32(aA, vU, 3, vT); st.v_add_u32(aA, sT0, aA)
    st.v_lshrrev_b32(aB, 1, vFL); st.v_add_u32(aB, sT0, aB)
    st.v_bfe_u32(vV, vL, 2, 1); st.v_cmp_eq_u32("vcc", vV, vU)
    st.v_mov_b32(vV, 544); st.v_cndmask_b32(vT, vV, vT, "vcc"); st.v_add_u32(aR1, L_KVB, vT)
    st.v_lshlrev_b32(vU, 4, vU); st.v_add_u32(aR2, L_KVB + 512, vU)
    for cc in range(8):
        st.v_mfma_f32_32x32x16_bf16(v(GA, 16), v(SG, 4), v(Gr + 4 * cc, 4), "0" if cc == 0 else v(GA, 16))
    st.v_add_f32(v(Z), v(Z), v(Z + 1)); st.v_add_f32(v(Z + 2), v(Z + 2), v(Z + 3)); st.v_add_f32(v(Z), v(Z), v(Z + 2))
    st.v_mov_b32(v(Z + 1), v(Z)); st.v_permlane32_swap_b32(v(Z), v(Z + 1)); st.v_add_f32(v(Z), v(Z), v(Z + 1))
    st.v_mov_b32(v(Z + 1), v(Z)); st.v_permlane16_swap_b32(v(Z), v(Z + 1)); st.v_add_f32(v(Z), v(Z), v(Z + 1))
    st.v_cvt_pk_bf16_f32(v(Z), v(Z), v(Z))
    st.ds_write_b16(aB, v(Z), mods="offset:512")
    st.v_cvt_pk_bf16_f32(v(GA), v(GA), v(GA + 1)); st.v_cvt_pk_bf16_f32(v(GA + 1), v(GA + 2), v(GA + 3))
    st.ds_write_b64(aA, v(GA, 2))

def gather_tagged(st, AF, aPL, aGK, XT):
    Gr, SG, GA, ZS, ER = XF, XF + 64, XF + 68, v(XF + 73), v(XF + 74)
    aZ = v(XF + 75)
    nt = os_("gm", "sc1").replace("+", " ").replace("-", "")
    sTG = sT3
    def ld(st, c, base=False):
        if (c % 4 == 0 or base) and c >= 4: st.s_add_u32(sT0, sKVLD, c // 4 * 4 * TG_W)
        st.buffer_load_dwordx4(v(Gr + 4 * c, 4), aGK, WS, sT0 if c >= 4 else sKVLD, mods=f"offen offset:{c % 4 * TG_W} " + nt)
        if c == 15 and G.TAG == "f" and not base:
            st.s_lshl_b32(sT2, sC, 7); st.s_add_u32(sT2, sT2, XCCT)
            st.buffer_load_dword(XT, vFL, WS, sT2, mods="offen sc1")
    at = oi("tga", 40); gs = oi("tgs", 3)
    tmp = Stream(); featmap_(tmp, aQ, AF, WPH, aK, aV, LR); nf = len(tmp.l)
    hk = {}
    for c in range(16):
        if at + gs * c < nf: hk.setdefault(at + gs * c, []).append(c)
    done = sum(hk.values(), [])
    featmap(st, aQ, AF, WPH, aK, aV, LR, hk={k: (lambda x, l=l: [ld(x, c) for c in l]) for k, l in hk.items()})
    stamp(st, "Q done")
    st.s_and_b32(sTG, sNONCE, TGM)
    for c in range(16):
        if c not in done: ld(st, c)
    stamp(st, "FKVpoll")
    st.v_and_b32(vU, 1, vL); st.v_lshlrev_b32(vU, 4, vU); st.v_mov_b32(vV, 0x3f80); st.v_lshlrev_b32(vU, vU, vV)
    st.v_bfe_u32(vT, vL, 2, 2); st.v_bfe_u32(vV, vL, 1, 1); st.v_cmp_eq_u32("vcc", 3, vT)
    st.v_cndmask_b32(vT, vT, vV, "vcc"); st.v_cndmask_b32(vV, vV, 2, "vcc")
    st.v_lshrrev_b32(ER, 4, vL); st.v_cmp_eq_u32("vcc", vT, ER); st.v_cndmask_b32(vU, 0, vU, "vcc")
    for i in range(3):
        st.v_cmp_eq_u32("vcc", i, vV); st.v_cndmask_b32(v(SG + i), 0, vU, "vcc")
    st.v_mov_b32(v(SG + 3), 0)
    st.s_mul_i32(sT0, sKH, 2 * 576); st.s_add_u32(sT0, sT0, L_KVB); st.s_lshl_b32(sT1, sTP, 6); st.s_add_u32(sT1, sT1, sT0)
    st.v_lshrrev_b32(vU, 5, vL); st.v_mul_u32_u24(aA, 576, vU); st.v_bfe_u32(vT, vL, 2, 2); st.v_lshl_add_u32(aA, vT, 7, aA)
    st.v_and_b32(vT, 3, vL); st.v_lshl_add_u32(aA, vT, 4, aA); st.v_bfe_u32(vT, vL, 4, 1); st.v_lshl_add_u32(aA, vT, 3, aA); st.v_add_u32(aA, sT1, aA)
    st.s_lshl_b32(sT1, sTP, 4); st.s_add_u32(sT1, sT1, sT0); st.s_add_u32(sT1, sT1, 512)
    st.v_bfe_u32(vT, vL, 3, 1); st.v_mul_u32_u24(aZ, 576, vT); st.v_and_b32(vT, 7, vL); st.v_lshl_add_u32(aZ, vT, 1, aZ); st.v_add_u32(aZ, sT1, aZ)
    st.v_mov_b32(vV, L_KVB + 560); st.v_cmp_gt_u32("vcc", 32, vL); st.v_cndmask_b32(aZ, aZ, vV, "vcc")
    st.v_and_b32(vT, 31, vL); st.v_lshlrev_b32(vT, 4, vT)
    st.v_bfe_u32(vV, vL, 2, 1); st.v_cmp_eq_u32("vcc", vV, vU)
    st.v_mov_b32(vV, 544); st.v_cndmask_b32(vT, vV, vT, "vcc"); st.v_add_u32(aR2, L_KVB, vT)
    V, X, D = newlab("kvv"), newlab("kvx"), newlab("kvd")
    st.label(V)
    for c in range(16):
        g = Gr + 4 * c
        st.v_dot2_f32_bf16(ZS, v(g + 2), sONE, 0 if c == 0 else ZS)
        if c == 0: st.v_xor_b32(ER, sTG, v(g + 3))
        else: st.v_xor_b32(vT, sTG, v(g + 3)); st.v_or_b32(ER, vT, ER)
        st.v_mfma_f32_16x16x32_bf16(v(GA, 4), v(SG, 4), v(g, 4), "0" if c == 0 else v(GA, 4))
    st.v_cmp_ne_u32("vcc", 0, ER)
    st.s_cbranch_vccnz(X)
    st.label(D)
    OOL.label(X); OOL.mark("reset")
    OOL.s_sub_u32(sCNT, sCNT, 1); OOL.s_cselect_b32(sCNT, 0, sCNT); OOL.s_cbranch_scc1(D)
    OOL.s_mov_b32(sT1, 0)
    tail = Stream()
    for c in range(16):
        K = newlab("kvk")
        OOL.v_cmp_ne_u32("vcc", sTG, v(Gr + 4 * c + 3))
        if oi("tgf", 1):
            M_ = newlab("kvm")
            OOL.s_cbranch_vccnz(M_); OOL.label(K)
            tail.label(M_); tail.mark("reset"); ld(tail, c, True); tail.s_mov_b32(sT1, 1); tail.s_branch(K)
            continue
        OOL.s_cbranch_vccz(K)
        ld(OOL, c, True); OOL.s_mov_b32(sT1, 1)
        OOL.label(K); OOL.mark("reset")
    OOL.wait(vm=0)
    for _ in range(oi("tgb", 0)): OOL.s_nop(15)
    OOL.s_cmp_lg_u32(sT1, 0); OOL.s_cbranch_scc1(X)
    OOL.s_branch(V)
    OOL.extend(tail)
    nxt(st)
    st.v_mov_b32(aR1, aR2)
    st.v_lshrrev_b32(vU, 5, vL); st.v_lshlrev_b32(vU, 4, vU); st.v_add_u32(aR2, L_KVB + 512, vU)
    st.v_cvt_pk_bf16_f32(ZS, ZS, ZS)
    st.ds_write_b16(aZ, ZS)
    st.v_cvt_pk_bf16_f32(v(GA), v(GA), v(GA + 1)); st.v_cvt_pk_bf16_f32(v(GA + 1), v(GA + 2), v(GA + 3))
    st.ds_write_b64(aA, v(GA, 2))

def p1b(st):
    AF = AF1
    for i in range(0, 16, 2): pk(st, "fma", aK + i, CK + i, bc(NM), aK + i)
    def vpart(st):
        for i in range(0, 16, 2): pk(st, "fma", aV + i, CV + i, bc(NM), aV + i)
        for i in range(0, 16, 2): pk(st, "mul", aV + i, bc(RS), aV + i)
        for i in range(8): st.v_cvt_pk_bf16_f32(v(aV + i), v(aV + 2 * i), v(aV + 2 * i + 1))
        st.ds_write_b128(aB, v(aV, 4)); st.ds_write_b128(aB, v(aV + 4, 4), mods="offset:16")
    featmap(st, aK, AF, WPH, STT, aQ, LR, mid=vpart)
    st.ds_write_b128(aA, v(STT, 4)); st.ds_write_b128(aA, v(STT + 4, 4), mods="offset:16")
    st.ds_write_b128(aA, v(aQ, 4), mods="offset:32"); st.ds_write_b128(aA, v(aQ + 4, 4), mods="offset:48")
    signal(st)
    TA, TB, ONE, AKV, AZ = 16, 32, 96, 100, 104
    def shadow(st):
        st.v_lshrrev_b32(vT, 4, vL); st.v_lshlrev_b32(vT, 3, vT); st.v_bfe_u32(vU, vL, 2, 2); st.v_add_u32(vT, vT, vU)
        st.v_and_b32(vU, 3, vL); st.v_lshlrev_b32(vU, 3, vU)
        st.s_lshl_b32(sT0, sM, 5); st.s_add_u32(sT0, sT0, L_PH)
        st.v_mul_u32_u24(aR1, 144, vT); st.v_add3_u32(aR1, aR1, vU, sT0)
        st.s_lshl_b32(sT0, sTP, 5); st.s_add_u32(sT0, sT0, L_VB)
        st.v_mul_u32_u24(aR2, 80, vT); st.v_add3_u32(aR2, aR2, vU, sT0)
        ring_next(st, "trq")
    SPL = oi("spl", 1)
    sigwait(st, 12 if SPL else 28, extra=shadow)
    stamp(st, "Kepi+B")
    def kvpart(st):
        for k in range(4):
            for q in range(2):
                st.ds_read_b64_tr_b16(v(TA + 4 * k + 2 * q, 2), aR1, mods=f"offset:{(32*k+4*q)*144}")
                st.ds_read_b64_tr_b16(v(TB + 4 * k + 2 * q, 2), aR2, mods=f"offset:{(32*k+4*q)*80}")
        for i in range(4): st.v_mov_b32(v(ONE + i), sONE)
        if TG:
            for k in range(4):
                st.v_mfma_f32_16x16x32_bf16(v(AZ, 4), v(ONE, 4), v(TA + 4 * k, 4), "0" if k == 0 else v(AZ, 4))
                st.v_mfma_f32_16x16x32_bf16(v(AKV, 4), v(TA + 4 * k, 4), v(TB + 4 * k, 4), "0" if k == 0 else v(AKV, 4))
            P = 108
            st.v_and_b32(v(P + 3), TGM, vNON)
            st.v_and_b32(v(AZ + 1), 0xffff0000, v(AZ)); st.v_sub_f32(v(AZ), v(AZ), v(AZ + 1)); st.v_cvt_pk_bf16_f32(v(P + 2), v(AZ + 1), v(AZ))
            st.v_cvt_pk_bf16_f32(v(AZ + 2), v(AKV), v(AKV + 1)); st.v_cvt_pk_bf16_f32(v(AZ + 3), v(AKV + 2), v(AKV + 3))
            st.v_cvt_pk_bf16_f32(v(P), v(AKV), v(AKV + 1)); st.v_cvt_pk_bf16_f32(v(P + 1), v(AKV + 2), v(AKV + 3))
            st.v_permlane16_swap_b32(v(AZ + 2), v(AZ + 3)); st.v_permlane32_swap_b32(v(AZ + 3), v(P + 2))
            st.s_mov_b32("exec_hi", 0xffff)
            st.buffer_store_dwordx4(v(P, 4), vL16, WS, sKVST, mods="offen " + os_("km", "sc1").replace("+", " "), tset="kv")
            st.s_mov_b32("exec_hi", -1)
            if oi("ksig", 0):
                st.s_lshl_b32(sT3, sW, 2); st.s_add_u32(sT3, sT3, L_SIG + 64); st.v_mov_b32(vT, sT3); st.ds_write_b32(vT, v(125))
        else:
            st.v_lshrrev_b32(vT, 5, vL); st.v_lshlrev_b32(vV, 9, vT); st.v_bfe_u32(vU, vL, 4, 1); st.v_lshl_add_u32(vV, vU, 3, vV)
            st.v_lshlrev_b32(vT, 6, vT); st.v_lshl_add_u32(vT, vU, 4, vT)
            st.v_bfe_u32(vU, vL, 2, 2); st.v_lshl_add_u32(vV, vU, 7, vV); st.v_and_b32(vU, 3, vL); st.v_lshl_add_u32(vV, vU, 4, vV)
            for k in range(4):
                st.v_mfma_f32_16x16x32_bf16(v(AKV, 4), v(TA + 4 * k, 4), v(TB + 4 * k, 4), "0" if k == 0 else v(AKV, 4))
                st.v_mfma_f32_16x16x32_bf16(v(AZ, 4), v(TA + 4 * k, 4), v(ONE, 4), "0" if k == 0 else v(AZ, 4))
            st.v_cvt_pk_bf16_f32(v(AKV), v(AKV), v(AKV + 1)); st.v_cvt_pk_bf16_f32(v(AKV + 1), v(AKV + 2), v(AKV + 3))
            st.buffer_store_dwordx2(v(AKV, 2), vV, WS, sKVST, mods="offen sc1")
            st.buffer_store_dwordx4(v(AZ, 4), vT, WS, sKZ, mods="offen sc1", tset="kv")
    if SPL: sigwait(st, 12, 16, extra=kvpart)
    else: kvpart(st)
    stamp(st, "kv st")
    items = []
    for k in range(16):
        for t in range(2):
            items.append(dict(chunk=0, off=k * 2048, t=t, acc=aQ, b=XF + 4 * (k + 16 * t), first=(k, t) == (0, 0)))
    def kvflag(st):
        dcap(st, "kf0", reg=124)
        st.buffer_store_dword(vNON, "off", WS, sFKVST, mods="sc1", tneed="kv")
        dcap(st, "kf1", reg=125)
    CS = 16
    aPL, aGZ, aGK = aR1, aR2, aB
    f = Stream()
    for i in range(4): f.ds_read_b128(v(CS + 4 * i, 4), aCS, mods=f"offset:{256+16*i}")
    if TG:
        f.v_and_b32(aPL, 15, vL); f.v_mul_u32_u24(aPL, TG_W, aPL)
        f.v_subrev_u32(vU, 256, vL16); f.v_cmp_gt_u32("vcc", 48, vL); f.v_cndmask_b32(aGK, vU, vL16, "vcc")
    else:
        f.v_lshrrev_b32(aPL, 2, vL); f.v_lshlrev_b32(aPL, oi("fks", 7), aPL); f.v_and_b32(vU, 3, vL); f.v_lshl_add_u32(aPL, vU, 2, aPL)
        f.v_lshrrev_b32(aGZ, 4, vL); f.v_mul_u32_u24(aGZ, KV_REC, aGZ); f.v_add_u32(aGZ, aGZ, vFL)
        f.v_lshrrev_b32(aGK, 5, vL); f.v_mul_u32_u24(aGK, KV_REC - 512, aGK); f.v_add_u32(aGK, aGK, vL16)
    fill = Filler()
    gemm(st, items, "trq", AF, 6, 5, ready=[0], hooks={4: lambda st: fill.add(f)} if TG else {4: lambda st: fill.add(f), oi("kvflag", 24): kvflag}, fill=fill, budget=8, pairw=oi("pwq", 0))
    fill.flush(st)
    stamp(st, "Qgemm")
    for i in range(0, 16, 2): pk(st, "fma", aQ + i, CS + i, bc(NM), aQ + i)
    XT = v(XF + 72)
    if TG: gather_tagged(st, AF, aPL, aGK, XT)
    else: gather_flagged(st, AF, aPL, aGZ, aGK, XT)
    if DG: signal(st, None, 64)
    if G.TAG == "f":
        OK = newlab("xok"); L = newlab("xpoll"); D = newlab("xdec")
        st.s_cmp_lg_u32(sPAIR, 0)
        st.mark("save", OK)
        st.s_cbranch_scc1(OK)
        st.s_add_u32(sT0, sNONCE, 14); st.s_add_u32(sT1, sT0, sXC)
        st.v_cmp_ne_u32("vcc", sT1, XT)
        if not OPT.get("slow"): st.s_cbranch_vccz(OK)
        st.label(L)
        st.buffer_load_dword(XT, vFL, WS, sT2, mods="offen sc1")
        st.wait(vm=0)
        st.v_subrev_u32(vT, sT0, XT)
        st.v_cmp_le_u32("vcc", 16, vT)
        st.s_cbranch_vccz(D)
        st.s_sub_u32(sCNT, sCNT, 1)
        st.s_cbranch_scc0(L)
        st.s_mov_b32(sCNT, 0)
        st.label(D)
        st.v_cmp_ne_u32("vcc", sT1, XT)
        st.mark("save", "toslow")
        if OPT.get("slow"): st.s_branch(".Lg_s")
        else: st.s_cbranch_vccnz(".Lg_s")
        st.mark("merge", OK)
        st.label(OK)
    else:
        st.mark("merge", "toslow")
        st.label(".Lg_s")
    if DG: sigwait(st, 12, 64)
    else: barrier(st, "g", drain=True)
    stamp(st, "gather+B")

def p1c(st):
    PHQ = [aK, aK + 4, aV, aV + 4]
    KA, ZA, NUM, DEN = XF, XF + 16, 48, v(64)
    for u in range(4): st.ds_read_b128(v(KA + 4 * u, 4), aR1, mods=f"offset:{576*u}")
    for u in range(4): st.ds_read_b128(v(ZA + 4 * u, 4), aR2, mods=f"offset:{576*u}")
    st.v_mov_b32(DEN, f2u(1e-6)); st.v_mov_b32(v(65), 0)
    st.v_lshrrev_b32(vU, 5, vL); st.v_lshl_add_u32(aA, vU, 9, vL16)
    for u in range(4):
        st.v_mfma_f32_32x32x16_bf16(v(NUM, 16), v(KA + 4 * u, 4), v(PHQ[u], 4), "0" if u == 0 else v(NUM, 16))
        for i in range(4):
            dd = DEN if i % 2 == 0 else v(65)
            st.v_dot2_f32_bf16(dd, v(PHQ[u] + i), v(ZA + 4 * u + i), dd)
    st.v_add_f32(DEN, DEN, v(65))
    st.v_rcp_f32(DEN, DEN)
    for i in range(0, 16, 2): pk(st, "mul", NUM + i, bc(DEN), NUM + i)
    for i in range(8): st.v_cvt_pk_bf16_f32(v(NUM + i), v(NUM + 2 * i), v(NUM + 2 * i + 1))
    st.buffer_store_dwordx4(v(NUM, 4), aA, WS, sOST, mods=f"offen {G.SC}")
    st.buffer_store_dwordx4(v(NUM + 4, 4), aA, WS, sOST, mods=f"offen offset:512 {G.SC}", tset="o")
    ring_next(st, "trn")
    res_init(st, 16)
    st.s_lshl_b32(sT0, sM, 12); st.s_add_u32(sT0, sT0, L_PH); st.v_add_u32(aXW, sT0, vL16)
    if SPEC & 1:
        st.s_mov_b32(sOST, sOST1); st.s_lshr_b32(sMASK, sM, 2)
        for i in range(16): st.v_mov_b32(v(32 + i), 0)
    else: st.buffer_store_dword(vNON, "off", WS, sFJ, mods=f"offset:128 {G.SC}", tneed=None if OPT.get("noack") else "o")
    if TG:
        for r in (sKVST, sKVLD): st.s_add_u32(r, r, TG_P)
        return
    for r in (sKVST, sKVLD, sKZ, sGZ): st.s_add_u32(r, r, KV_P)
    fp = 16 if oi("fkw", 1) else 256 * 128
    st.s_add_u32(sFKVST, sFKVST, fp); st.s_add_u32(sFKVLD, sFKVLD, fp)

def small_items(nsteps, breg, accs=(16, 32)):
    items = []
    for k in range(nsteps):
        for t in ((1, 0) if k == nsteps - 1 else (0, 1)):
            items.append(dict(chunk=k // 8, off=(k % 8) * 4096, t=t, acc=accs[t], b=breg(k), first=k == 0 and t == 1))
    return items
def res_init(st, a):
    for i in range(8):
        st.v_lshlrev_b32(v(a + 2 * i), 16, v(RES + i)); st.v_and_b32(v(a + 2 * i + 1), 0xffff0000, v(RES + i))

def xepi(st, last):
    aB_, T, P = (96, 48, 16) if last else (32, 16, 48)
    aX = aXW
    for i in range(4): st.ds_write_b128(aX, v(aB_ + 4 * i, 4), mods=f"offset:{1024*i}")
    st.v_xor_b32(aX, 4096, aX)
    barrier(st, "X4" if last else "X2", drain=True)
    for i in range(4): st.ds_read_b128(v(P + 4 * i, 4), aX, mods=f"offset:{1024*i}")
    st.v_and_b32(aX, 31, vL); st.v_lshlrev_b32(aX, 4, aX); st.v_lshrrev_b32(vT, 5, vL); st.v_lshl_add_u32(aX, vT, 2, aX)
    for i in range(4):
        for k in (4 * i, 4 * i + 2): pk(st, "add", T + k, T + k, P + k)
        for k in (2 * i, 2 * i + 1): st.v_cvt_pk_bf16_f32(v(RES + k), v(T + 2 * k), v(T + 2 * k + 1))
    LF = newlab("fin")
    if last:
        st.mark("save", LF)
        st.s_cmp_eq_u32(sPAIR, 1); st.s_cbranch_scc1(LF)
    st.buffer_store_dwordx4(v(RES, 4), vL16, XS, sXST, mods=f"offen {G.SC}")
    st.buffer_store_dwordx4(v(RES + 4, 4), vL16, XS, sXST, mods=f"offen offset:1024 {G.SC}")
    S, Q, S2, Q2 = v(T), v(T + 1), v(T + 2), v(T + 3)
    st.v_dot2_f32_bf16(S, v(RES), sONE, 0); st.v_dot2_f32_bf16(Q, v(RES), v(RES), 0)
    st.v_dot2_f32_bf16(S2, v(RES + 1), sONE, 0); st.v_dot2_f32_bf16(Q2, v(RES + 1), v(RES + 1), 0)
    for i in range(2, 8, 2):
        st.v_dot2_f32_bf16(S, v(RES + i), sONE, S); st.v_dot2_f32_bf16(Q, v(RES + i), v(RES + i), Q)
        st.v_dot2_f32_bf16(S2, v(RES + i + 1), sONE, S2); st.v_dot2_f32_bf16(Q2, v(RES + i + 1), v(RES + i + 1), Q2)
    pk(st, "add", T, T, T + 2)
    st.v_permlane32_swap_b32(S, Q); st.v_add_f32(S, S, Q)
    st.buffer_store_dword(S, aX, WS, sSTST, mods=f"offen {G.SC}", tset="x")
    if last and oi("xsig", 0): signal(st, 1, 80)
    (p1a_pre if last else p3_pre)(st)
    st.buffer_store_dword(vNON, "off", WS, sFXST, mods=G.SC, tneed=None if OPT.get("noack") else "x")
    if last:
        st.s_mov_b32(sPAIR, 1)
        st.s_branch(f".Lpair_{G.TAG}")
        st.label(LF); st.mark("restore", LF)
        st.v_and_b32(aX, 31, vL); st.v_lshlrev_b32(aX, 10, aX); st.v_lshrrev_b32(vT, 5, vL); st.v_lshl_add_u32(aX, vT, 4, aX)
        om = os_("om", "").replace("+", " ")
        st.buffer_store_dwordx4(v(RES, 4), aX, OUT, sOUTO, mods="offen " + om)
        st.buffer_store_dwordx4(v(RES + 4, 4), aX, OUT, sOUTO, mods="offen offset:32 " + om)

def tr_use(o, addr, off, acc, b, tmp):
    o.ds_read_b64_tr_b16(v(tmp, 2), addr, mods=f"offset:{off}"); o.ds_read_b64_tr_b16(v(tmp + 2, 2), addr, mods=f"offset:{off+512}")
    return lambda: o.v_mfma_f32_32x32x16_bf16(v(acc, 16), v(tmp, 4), v(b, 4), v(acc, 16))
def prev_chunk(o, vP, d0, d1):
    o.s_sub_u32(sTX, sRING, 0x8000); o.s_and_b32(sTX, sTX, 0x1ffff); o.v_add_u32(d0, sTX, vP); o.v_xor_b32(d1, 64, d0)

def p2(st):
    stamp(st, "o stored")
    items = small_items(16, lambda k: XF + 4 * k); sp = None; pre = oi("pre2", 10); hooks = {1: nxt}
    if SPEC & 1:
        L = frag_loads(sOLD, [XF + 4 * k for k in range(16)], 2048, 2)
        def load(o, k):
            o.s_add_u32(sTX, sOLD, k * 2048); o.buffer_load_dwordx4(v(XF + 4 * k, 4), vL16, WS, sTX, mods=f"offen {SCL}")
        c0 = (v(72), v(73))
        def use(o, k):
            m = [tr_use(o, (c0 if k < 8 else (vA0, vA1))[t], (k % 8) * 4096, (16, 32)[t], XF + 4 * k, 48 + 4 * t) for t in range(2)]
            for f in m: f()
        sp = Spec(16, lambda k: XF + 4 * k, load, use, head=lambda o: prev_chunk(o, vP1, *c0))
        for i, it in enumerate(items): it["first"] = False; it["guard"] = ("chk", i // 2) if i % 2 == 0 else ("vcc",)
        for _ in range(oi("od", 0)): st.s_nop(15)
        gn = oi("gno", 4)
        if gn < 16: sp.probe(st, sOLD, 12)
        for f in L[:pre]: f(st)
        if gn < 16: hooks[0] = lambda st, a=L[:pre]: (sp.gate(st, sOLD, 12, a, gn), stamp(st, "FOpoll"))
        L = L[pre:]; pre = 0
    elif DG:
        L = frag_loads(sHLD, [XF + 4 * k for k in range(16)], 2048, 2)
        def first(st):
            poll2(st, vFL, sFB, 128, oi("gfo", -1))
            stamp(st, "FOpoll")
            for f in L[:pre]: f(st)
        sigwait(st, 12, 80, regs=(124, 125, 48), extra=first)
        stamp(st, "Wo ok")
        L = L[pre:]; pre = 0
        hooks[oi("p2a", 12) + 1] = lambda st: signal(st, None, 96)
    else:
        if "o" not in os_("nopoll", ""): poll2(st, vFL, sFB, 128, oi("gfo", -1))
        L = frag_loads(sHLD, [XF + 4 * k for k in range(16)], 2048, 2)
        stamp(st, "FOpoll")
    gemm(st, items, "trn", 48, 6, 5, ready=[0, 1], loads=L, pre=pre, hooks=hooks, pairw=oi("pw2", 0),
         bars={oi("p2a", 12): ("p2", [])} if oi("p2a", 12) and not DG else None, spec=sp)
    if sp: stamp(st, "P2main"); vstamp(st, "nmo"); sp.fix(st); st.s_mov_b32(sOLD, sOLD1)
    stamp(st, "P2gemm")
    xepi(st, False)

def stream(st, items, af, nslots, depth, hooks, fill, budget, watch=None, slots=None, gw=1, spec=None):
    n = len(items); nr = 0
    gemm_n[0] += 1; tg = f"g{gemm_n[0]}_"
    G_ = (lambda i: gw) if not callable(gw) else gw
    def pump(upto):
        nonlocal nr
        while nr < n and nr <= upto:
            items[nr]["rd"](st, af + 4 * (nr % nslots)); st.l[-1].dst = st.l[-1].dst | {("t", tg + str(nr))}; nr += 1
    pump(depth - 1)
    nextw = 0; err = 0.0
    for i in range(n):
        it = items[i]
        acc = v(it["acc"], 16)
        tn = None
        if i == nextw:
            nextw = i + G_(i); tn = tg + str(min(nextw, nr) - 1)
        st.v_mfma_f32_32x32x16_bf16(acc, v(af + 4 * (i % nslots), 4), v(it["b"], 4), "0" if it["first"] else acc, tneed=tn)
        if tn and it.get("b2"): st.l[-1].src = st.l[-1].src | regs_of(v(it["b2"], 4))
        if spec and it.get("guard"):
            mf = st.l.pop(); L = spec.guard(st, it["guard"], mf); st.l.append(mf); st.label(L)
        n0 = len(st.l)
        for h in hooks.get(i, []): h(st)
        pump(i + depth)
        if slots:
            used = 1 + sum(cost(x) for x in st.l[n0:]) // 4 + (1 if i + 1 == nextw else 0)
            room = slots(i) - used + err
            n1 = len(st.l)
            if room >= 1: fill.take(st, 4 * int(room))
            took = sum(cost(x) for x in st.l[n1:]) // 4
            err = max(-1.0, min(1.0, room - took)) if fill.q else 0.0
        else: fill.take(st, budget(i))
        if watch: watch(i, st.l[n0:])
    assert not fill.q

C1 = -2.0 * math.sqrt(2.0 / math.pi) * LOG2E
def p34(st):
    A = [16, 32, 48, 96]; AF = 64; NMP = 88; DEPTH = oi("dep", 5)
    K1, K3, VE3, NM3 = v(92), v(93), v(94), v(95)
    at = oi("st3", 20)
    L = x_loads(st, STT, at, rot=bool(GR))
    stamp(st, "x stored")
    if "x" not in os_("nopoll", ""): poll2(st, vFL, sFA, 0, oi("gf2", -1))
    stamp(st, "FXpoll2")
    pre = oi("pre3", 10)
    for f in L[:pre]: f(st)
    nxt(st)
    barrier(st, "30")
    stamp(st, "B(30)")
    items = []; hooks = {}
    def hk(i, f): hooks.setdefault(i, []).append(f)
    def wide(a, off, step=0):
        def rd(st, r):
            if step:
                st.s_add_u32(sRING, sRING, 0x8000 * step); st.s_and_b32(sRING, sRING, 0x1ffff); st.v_add_u32(vA0, sRING, vL16)
            st.ds_read_b128(v(r, 4), a, mods=f"offset:{off}")
        return rd
    def mean(r):
        return dict(rd=lambda st, q: st.ds_read_b32(v(q), aCS3, mods=f"offset:{128*r}"), acc=A[r % 4], b=NMP, first=False)
    n2 = oi("n2", 10); k2 = 0; end = {}; use = {}
    def t2(k): return dict(rd=wide(vA1, k * 1024), acc=A[2], b=XF + 4 * k, first=k == 0)
    for k in range(32):
        use[k] = len(items)
        for t in range(2):
            items.append(dict(rd=wide(vA0, t * 16384 + (k % 16) * 1024, int(k == 16 and t == 0)), acc=A[t], b=XF + 4 * k, first=k == 0))
        if k == 15: g5 = len(items) - 1
        if (k + 1) * n2 // 32 > k2: items.append(t2(k2)); k2 += 1
    items += [mean(0), mean(1)]; end[0] = len(items) - 2; end[1] = len(items) - 1
    items += [t2(k) for k in range(k2, 32)] + [mean(2)]; end[2] = len(items) - 1
    for r in range(3, 6):
        items += [dict(rd=wide(vA0, k * 1024, (2 if r == 3 else 1) if k == 0 else 0), acc=A[r % 4], b=XF + 4 * k, first=k == 0) for k in range(32)]
        items.append(mean(r)); end[r] = len(items) - 1
    T5 = end[4] + 1; P4 = len(items)
    HI = [16 + 4 * i for i in range(4)] + [116, 88] + [XF + 4 * i for i in range(2)] + [32 + 4 * i for i in range(3)]
    breg = lambda k: XF + 4 * k if k < 32 else HI[k - 32]
    for n, it in enumerate(small_items(43, breg, (48, 96))):
        def rd(st, r, it=it, n=n):
            if n % 16 == 0: ring_next(st, "trn")
            a = vA1 if it["t"] else vA0
            st.ds_read_b64_tr_b16(v(r, 2), a, mods=f"offset:{it['off']}")
            st.ds_read_b64_tr_b16(v(r + 2, 2), a, mods=f"offset:{it['off']+512}")
        items.append(dict(rd=rd, acc=it["acc"], b=it["b"], first=it["first"]))
    for n, f in enumerate(L[pre:]): hk(2 * n + 1, f)
    fill = Filler()
    f = Stream()
    stats(f, STT, NM3, K1, VE3)
    f.v_and_b32(vU, 0xffff0000, NM3); f.v_sub_f32(NM3, NM3, vU); f.v_cndmask_b32(vU, vU, NM3, sHALF)
    f.v_cvt_pk_bf16_f32(v(NMP), vU, vU)
    f.v_mul_f32(K3, K1, K1); f.v_mul_f32(K1, f2u(C1), K1); f.v_mul_f32(K3, f2u(0.044715), K3); f.v_mul_f32(K3, K3, K1)
    z = Stream()
    for i in range(1, 4): z.v_mov_b32(v(NMP + i), 0)
    z.v_min_u32(aP4, 20, vFL)
    hk(2, lambda st: fill.add(z))
    hk(use[min(31, at + oi("sth3", 2))], lambda st: fill.add(f))
    hk(end[0] - 2, lambda st: fill.flush(st))
    TM = 112
    def epi(r):
        f = Stream(); a = A[r % 4]
        g = lambda i: v(a + i)
        u = lambda i: v(a + 8 + i)
        tm = lambda i: v(TM + i % 4)
        for t in range(16):
            ok = lambda d: 0 <= t - d < 8
            if ok(3): f.v_exp_f32(g(t - 3), g(t - 3))
            if ok(0): f.v_mul_f32(tm(t), g(t), g(t))
            if ok(1): f.v_fma_f32(tm(t - 1), tm(t - 1), K3, K1)
            if ok(0): f.v_mul_f32(u(t), g(t), u(t))
            if ok(5): f.v_rcp_f32(g(t - 5), g(t - 5))
            if ok(2): f.v_mul_f32(g(t - 2), tm(t - 2), g(t - 2))
            if ok(4): f.v_fma_f32(g(t - 4), g(t - 4), VE3, VE3)
            if ok(6): f.v_mul_f32(g(t - 6), g(t - 6), u(t - 6))
            if ok(7) and t % 2 == 0: f.v_cvt_pk_bf16_f32(u((t - 8) // 2), g(t - 8), g(t - 7))
            if t == 12 and r < 5: f.s_add_u32(sHS, sHST, 16384 * r)
        f.buffer_store_dwordx4(v(a + 8, 4), vL16, WS, sHS if r < 5 else sH5, mods=f"offen {G.SC} {os_('hm', '') if oi('hml', 0) <= r < oi('hmr', 6) and not G.SC else ''}", tset=f"h{r}")
        return f
    def flag(r):
        f = Stream()
        f.buffer_store_dword(vNON, "off", WS, sFJ if r < 5 else sF5, mods=f"offset:{256+64*r} {G.SC}", tneed=f"h{r}")
        return f
    e = [epi(r) for r in range(6)]
    ri = Stream(); res_init(ri, 48)
    lag = oi("lag", 3)
    for r in range(6):
        parts = [e[r]] + ([ri] if r == 3 else [])
        hk(end[max(r, 1)] + lag, lambda st, parts=parts: [fill.add(p) for p in parts])
        hk(end[r], lambda st, r=r: stamp(st, f"t{r}"))
    hk(end[3], lambda st: fill.drain_until(st, e[0])); hk(end[4], lambda st: fill.drain_until(st, e[1]))
    hk(end[5] - 1, lambda st: fill.drain_until(st, ri))
    fd = [int(x) for x in os_("fd", "38,20,20,18,16,12").split(",")]; fpos = {}
    def watch(i, l):
        for r in range(6):
            if any(("t", f"h{r}") in x.dst for x in l): fpos[r] = i + fd[r]; hk(i + fd[r], lambda st, r=r: (stamp(st, f"f{r}a"), st.extend(flag(r)), stamp(st, f"f{r}b")))
    b3, b4 = oi("bud3", 16), oi("bud4", 16)
    def bud(i):
        b = oi("bud0", 12) if i < end[1] else b3 if i < P4 - DEPTH else b4
        if b % 4: b += 2 if i % 2 else -2
        return b - (4 if i in hooks and oi("budh", 1) else 0)
    o = oi("b4", 10)
    for i, name in ((g5 + oi("c1d", 4), "3a"), (end[1], "3b"), (end[2], "3c"), (end[3], "3d"), (end[4], "3f"), (end[5], "3g"),
                    (P4 + o, "4a"), (P4 + 16 + o, "4b"), (P4 + 32 + o, "4c"), (P4 + 48 + o, "4d"), (P4 + 64 + o, "4e")):
        hk(i, lambda st, name=name: (stamp(st, f"{name}a"), barrier(st, name), stamp(st, f"{name}b")))
    for i in (16, 32, 48, 64): hk(P4 + i, lambda st, i=i: stamp(st, f"q{i}"))
    HL = frag_loads(sHLD, [breg(k) for k in range(43)], 2048, 2)
    if OPT.get("noH"): HL = [lambda st: None] * 43
    ne = oi("early4", 12)
    ck = [T5 + oi("chkA", 10), P4 + oi("chk2", 0), P4 + oi("chk3", 16), P4 + oi("chk4", 42), P4 + oi("chk5", 65)]
    sl = oi("sl", 12); ev = float(OPT.get("ev4", 2)); pos = []
    for k in range(43):
        g = max(0, k // 8 - 1)
        p = ck[0] + 1 + k * float(OPT.get("ev3", 2)) if k < ne else pos[-1] + ev
        pos.append(max(p, ck[g]) if k < 40 else ck[4])
    pos = [int(p) for p in pos]
    hk(ck[0] - sl - 1, lambda st: (st.v_and_b32(vV, 31, vL), st.v_lshlrev_b32(vV, 2, vV)))
    for g, (addr, off) in enumerate(((vV, 256), (vFL, 384), (vFL, 448), (vFL, 512), (aP4, 576))):
        assert g == 0 or ck[g] - sl > ck[g - 1]
        if OPT.get("nochk"): continue
        hk(ck[g] - sl, lambda st, addr=addr, off=off: st.buffer_load_dword(vS4, addr, WS, sFB, mods=f"offen offset:{off} sc1"))
        hk(ck[g], lambda st, addr=addr, off=off, g=g: (stamp(st, f"k{g}a"), soft_check(st, vS4, addr, sFB, off), stamp(st, f"k{g}b")))
    def last(st):
        assert 5 in fpos and fpos[5] < ck[4]
        nxt(st)
    hk(ck[4], last)
    for k in range(43):
        assert pos[k] < P4 + 2 * k and (k >= 32 or pos[k] >= T5 + k), (k, pos[k])
        hk(pos[k], HL[k])
    hk(pos[32] - 1, lambda st: fill.drain_until(st, e[4]))
    sl_ = None
    if float(OPT.get("sl3", 7)):
        s0_, s3_, s4_ = [float(OPT.get(k, d)) for k, d in (("sl0", 7), ("sl3", 7), ("sl4", 8))]
        sl_ = lambda i: s0_ if i < end[1] else s3_ if i < P4 - DEPTH else s4_
    g0_, g3_, g4_ = oi("gw0", 2), oi("gw3", 2), oi("gw4", 2)
    def gw_(i):
        g = g0_ if i < end[1] else g3_ if i < P4 else g4_
        return min(g, P4 - i) if i < P4 else g
    if g4_ == 4 or oi("gv4", 0):
        for i in range(P4, len(items) - 2, 4): items[i]["b2"] = items[i + 2]["b"]
    stream(st, items, AF, 6, DEPTH, hooks, fill, bud, watch, sl_, gw_)
    if G.TAG == "f": print("T3", end[2] + 1, "T4", end[3] + 1, "T5", T5, "P4", P4, "flags", fpos, "checks", ck, "loads", pos, file=sys.stderr)
    stamp(st, "P4gemm")
    xepi(st, True)

def body(st, first):
    stop = OPT["stop"]
    T = G.TAG
    st.label(f".Lpair_{T}"); st.mark("reset")
    G.SEQ = SEQA; p1a(st)
    G.SEQ = SEQC
    if first:
        st.mark("merge", "from0"); st.label(".Lk_f")
    p1b(st); p1c(st)
    if stop == "p1": st.s_branch(".Lend"); return
    p2(st)
    if stop == "p2": st.s_branch(".Lend"); return
    p34(st)
    stamp(st, "end")
    stamp(st, 63, True)
    if OPT.get("dbg") == "2":
        if OPT.get("wb"):
            st.wait(vm=0); st.raw("    buffer_wbl2 sc0 sc1"); st.raw("    s_waitcnt vmcnt(0)")
        L = newlab("pad")
        st.s_mov_b32(s(87), 7000)
        if OPT.get("early"): st.s_cmp_lt_u32(s(2), int(OPT["early"])); st.s_cselect_b32(s(87), 6000, s(87))
        if OPT.get("cap"):
            if OPT.get("capr"): st.s_sub_u32(s(43), s(43), s(42))
            else: st.s_sub_u32(s(43), s(43), s(86)); st.s_lshr_b32(s(43), s(43), 2)
            st.s_min_u32(s(43), s(43), 40000); st.s_add_u32(s(87), s(87), s(43))
        st.label(L)
        st.s_memrealtime(s(100, 2)); st.wait(lgkm=0); st.s_sub_u32(s(100), s(100), s(42)); st.s_cmp_lt_u32(s(100), s(87)); st.s_cbranch_scc1(L)
    elif OPT.get("dbg"):
        st.s_load_dwordx2(s(44, 2), s(0, 2), 72); st.s_memrealtime(s(100, 2)); st.wait(lgkm=0)
        st.s_and_b32(s(45), s(45), 0xffff); st.s_mov_b32(s(46), 256); st.s_mov_b32(s(47), 0x20000)
        st.s_not_b32(s(42), s(42)); st.v_mov_b32(vT, s(42)); st.v_mov_b32(vU, s(100)); st.s_not_b32(s(100), s(100)); st.v_mov_b32(vV, s(100))
        st.raw("    buffer_atomic_umax v13, off, s[44:47], 0")
        st.raw("    buffer_atomic_umax v14, off, s[44:47], 0 offset:4")
        st.raw("    buffer_atomic_umax v15, off, s[44:47], 0 offset:8")
        st.s_not_b32(s(42), s(42)); st.v_mov_b32(vT, s(42))
        st.raw("    s_nop 4")
        st.raw("    buffer_atomic_umax v13, off, s[44:47], 0 offset:12")
    st.s_or_b32(sT0, s(2), sW); st.s_cmp_lg_u32(sT0, 0); st.s_cbranch_scc1(".Lend")
    st.v_add_u32(vNON, 22, vNON)
    st.buffer_store_dword(vNON, "off", WS, 0, mods=f"offset:{EPOCH} sc1")
    st.s_branch(".Lend")

SEQ0, SEQA, SEQC = [], [], []
def compute(st):
    G.SEQ = SEQ0
    p1a0(st)
    st.mark("save", "from0")
    st.s_branch(".Lk_f")
    G.SC, G.TAG = "", "f"
    body(st, True)

def compute_slow(st):
    G.SC, G.TAG, G.REC = "sc1", "s", False
    body(st, False)

sW8, sQK, sWOb, sGU, sWD5, sWI = s(74), s(75), s(76), s(77), s(78), s(79)
sWDb = [s(80 + i) for i in range(4)]
GU = 64
vKV, vQ, vW, vWR0, vWR1 = v(2), v(4), v(5), v(6), v(7)
vGG = [v(8), v(9), v(10)]; vGL = [v(16), v(17), v(18)]; vGT = v(19)
vC0, vC1, vCW, vCR = v(20), v(21), v(22), v(23)
SEL = 24; CACC = 28
FRS = [36, 40, 44, 48, 52]; WRAW = 56
vDUM = [v(11), v(60), v(61), v(62)]
GSTR = 448
GL = oi("gl", 1)

def LDSW(st):
    for i in reversed(st.l):
        if i.name == "s_barrier" or (i.name == "s_waitcnt" and "lgkmcnt(0)" in i.ops[0]): return False
        if i.kind == "ds": return True
    return False

def POL(srd):
    k = {WQ: "pq", WO_: "po", WD: "pd", WG: "pg", WU: "pg"}.get(srd)
    x = os_(k, "") if k else ""
    return " " + x.replace("+", " ") if x else ""

def loader(st):
    st.v_lshrrev_b32(vT, 3, vL); st.v_bfe_u32(vU, vL, 4, 1); st.v_lshlrev_b32(vU, 2, vU); st.v_and_b32(vV, 7, vL); st.v_xor_b32(vU, vU, vV)
    st.v_mul_u32_u24(vKV, 3072, vT); st.v_and_b32(vV, 3, vU); st.v_lshl_add_u32(vKV, vV, 4, vKV)
    st.v_lshrrev_b32(vV, 2, vU); st.v_mul_u32_u24(vQ, 256 * 3072, vV); st.v_add_u32(vQ, vQ, vKV)
    st.v_lshl_add_u32(vKV, vV, 10, vKV); st.v_add_u32(vKV, 1024, vKV)
    st.v_lshlrev_b32(vW, 10, vT); st.v_lshl_add_u32(vW, vU, 4, vW)
    st.s_lshl_b32(sW8, sM, 13)
    st.s_mul_i32(sQK, sM, 64 * 3072); st.s_lshl_b32(sT0, sJ, 6); st.s_add_u32(sQK, sQK, sT0)
    sKVr = [s(84), s(85)]; sQJ = s(88); vQ0 = v(GU)
    rot(st, s(89), sT1); st.s_add_u32(s(89), s(89), sM)
    st.s_lshl_b32(sQJ, sJ, 6)
    st.s_and_b32(sT1, s(89), 7); st.s_mul_i32(sKVr[0], sT1, 64 * 3072); st.s_add_u32(sKVr[0], sKVr[0], sQJ)
    st.s_and_b32(sWI, sC, 1); st.s_lshl_b32(sWI, sWI, 4); st.s_add_u32(sWI, sWI, sJ); st.s_lshl_b32(sWI, sWI, 2); st.s_add_u32(sWI, sWI, sM)
    if os_("xr", ""):
        st.s_lshr_b32(s(97), sC, 1)
        if oi("xrm", 0) == 1: st.s_and_b32(sT0, sC, 1); st.s_lshl_b32(sT0, sT0, 2); st.s_xor_b32(s(97), s(97), sT0)
        st.s_lshl_b32(s(98), s(97), 10); st.s_xor_b32(s(98), s(98), sW8)
    if not oi("fast0", 1) or E0:
        dcap(st, "l0", "l")
        if not oi("es", 0): st.wait(lgkm=0)
        srds(st, [WQ])
    chunks = []
    for pair in range(2):
        chunks += [("kv", 0), ("kv", 1), ("q", 0), ("wo", 0), ("wo", 1), ("gp", 0), ("gp", 1)] + [("gs", r) for r in range(2, 6)]
        chunks += [("wd", r) for r in range(6)]
    N = len(chunks)
    issued = set()
    SQ = []
    def spf(n):
        for _ in range(min(n, len(SQ))): SQ.pop(0)()
    def squeue(kind):
        if kind[0] == "K":
            i0 = int(kind[2:]) if kind[1:2] == "." else 0
            for i in range(i0, 64):
                def f(i=i):
                    if i == i0:
                        st.s_lshr_b32(s(90), sWI, 4); st.s_mul_i32(s(90), s(90), 3072); st.s_add_u32(s(44), s(46), s(90)); st.s_addc_u32(s(45), s(47), 0)
                        st.s_lshl_b32(s(91), sWI, 7)
                    if i == 32 or (i == i0 and i0 > 32): st.s_add_u32(s(44), s(44), 32 * 24576); st.s_addc_u32(s(45), s(45), 0)
                    st.s_add_u32(s(91), s(91), 128 * oi("krot", 1)); st.s_and_b32(s(91), s(91), 0x780)
                    x = Ins("s_load_dwordx2", [s(86, 2), s(44, 2), s(91)], f"offset:{hex(i % 32 * 24576 + 1024 + 60)}"); x.dst = set(); st.l.append(x)
                SQ.append(f)
            return
        if kind[0] == "e":
            for base in dict(g=(54, 56), d=(58,), o=(50,))[kind[1]]:
                n, tot = (4, 512) if base == 50 else (11, 1376)
                for i in range(n):
                    def f(i=i, base=base, n=n, tot=tot):
                        if i == 0:
                            st.s_mul_i32(s(90), sWI, n); st.s_min_u32(s(90), s(90), tot - n); st.s_lshr_b32(s(91), sC, 1); st.s_mul_i32(s(91), s(91), tot)
                            st.s_add_u32(s(90), s(90), s(91)); st.s_lshl_b32(s(90), s(90), 7); st.s_add_u32(s(44), s(base), s(90)); st.s_addc_u32(s(45), s(base + 1), 0)
                        x = Ins("s_load_dwordx2", [s(86, 2), s(44, 2), hex(i * 128 + 60)]); x.dst = set(); st.l.append(x)
                    SQ.append(f)
            return
        if kind == "ce":
            L = []
            for i in range(12):
                def f(i=i):
                    if i == 0:
                        st.s_lshr_b32(s(90), sWI, 3); st.s_mul_i32(s(91), s(90), 6); st.s_mul_i32(s(90), s(90), 5); st.s_add_u32(s(90), s(90), 6)
                        st.s_min_u32(s(90), s(90), s(91)); st.s_lshl_b32(s(90), s(90), 4); st.s_and_b32(s(91), sWI, 7); st.s_add_u32(s(90), s(90), s(91))
                        st.s_lshl_b32(s(90), s(90), 10); st.s_add_u32(s(100), s(58), s(90)); st.s_addc_u32(s(101), s(59), 0)
                    if i == 10:
                        st.s_cmp_lt_u32(sWI, 48); st.s_cselect_b32(s(90), 0, 16384); st.s_sub_u32(s(100), s(100), s(90)); st.s_subb_u32(s(101), s(101), 0)
                    x = Ins("s_load_dwordx2", [s(86, 2), s(100, 2), hex(i * 8192 + 384 + 60)]); x.dst = set(); st.l.append(x)
                L.append(f)
            SQ[0:0] = L
            return
        if kind[0] == "c":
            base, stride, n, col = dict(q=(46, 3072, 4, [384]), k=(46, 3072, 4, [1408, 2432]), j=(46, 3072, 2, [1408, 2432]), o=(50, 1024, 4, [384]), d=(58, 1024, 11, [384]))[kind[1]]
            L = []
            r = s(92, 2) if kind[1] in "qkj" else s(94, 2)
            for i in range(n):
                for c_ in col:
                    def f(i=i, c_=c_):
                        if i == 0 and c_ == col[0]:
                            st.s_mul_i32(s(90), sWI, stride); st.s_add_u32(s(100), s(base), s(90)); st.s_addc_u32(s(101), s(base + 1), 0)
                        if kind[1] == "d" and i == 10:
                            st.s_min_u32(s(90), sWI, 95); st.s_sub_u32(s(90), sWI, s(90)); st.s_lshl_b32(s(90), s(90), 10)
                            st.s_sub_u32(s(100), s(100), s(90)); st.s_subb_u32(s(101), s(101), 0)
                        if c_ == col[0] and i * 128 * stride >= 1 << 20 and (i - 1) * 128 * stride < 1 << 20: st.s_add_u32(s(100), s(100), 1 << 20); st.s_addc_u32(s(101), s(101), 0)
                        x = Ins("s_load_dwordx2", [s(86, 2), s(100, 2), hex((i * 128 * stride) % (1 << 20) + c_ + 60)]); x.dst = set(); st.l.append(x)
                    L.append(f)
            SQ[0:0] = L
            return
        if kind[0] == "k":
            i0 = 32 if kind == "k2" else int(kind[2:]) if kind[1:2] == "." else 0
            for i in range(i0, 64):
                def f(i=i):
                    if i == i0:
                        st.s_lshr_b32(s(90), sWI, 4); st.s_mul_i32(s(90), s(90), 3072); st.s_and_b32(s(91), sWI, 15); st.s_lshl_b32(s(91), s(91), 7)
                        st.s_add_u32(s(91), s(91), s(90)); st.s_add_u32(s(44), s(46), s(91)); st.s_addc_u32(s(45), s(47), 0)
                    if i == 32 or (i == i0 and i0 > 32): st.s_add_u32(s(44), s(44), 32 * 24576); st.s_addc_u32(s(45), s(45), 0)
                    x = Ins("s_load_dwordx2", [s(86, 2), s(44, 2), hex(i % 32 * 24576 + 1024 + 60)]); x.dst = set(); st.l.append(x)
                SQ.append(f)
            return
        if kind[0] == "q":
            for i in range(32):
                def f(i=i):
                    if i == 0:
                        st.s_lshr_b32(s(90), sWI, 3); st.s_mul_i32(s(90), s(90), 3072); st.s_and_b32(s(91), sWI, 7); st.s_lshl_b32(s(91), s(91), 7)
                        st.s_add_u32(s(91), s(91), s(90)); st.s_add_u32(s(44), s(46), s(91)); st.s_addc_u32(s(45), s(47), 0)
                    if i == 16: st.s_add_u32(s(44), s(44), 16 * 49152); st.s_addc_u32(s(45), s(45), 0)
                    x = Ins("s_load_dwordx2", [s(86, 2), s(44, 2), hex(i % 16 * 49152 + 60)]); x.dst = set(); st.l.append(x)
                SQ.append(f)
            return
        if kind[0] == "h":
            n, o = dict(h0=(16, 0), h1=(27, 32768), h2=(16, 32768), h3=(11, 65536))[kind]
            for i in range(n):
                def f(i=i):
                    if i == 0:
                        st.s_lshl_b32(s(90), sC, 2); st.s_add_u32(s(90), s(90), sM); st.s_mul_i32(s(90), s(90), HB_TB)
                        st.s_mul_i32(s(91), sJ, n * 128); st.s_add_u32(s(90), s(90), s(91)); st.s_add_u32(s(90), s(90), HB + o)
                        st.s_add_u32(s(44), s(4), s(90)); st.s_addc_u32(s(45), s(5), 0)
                    x = Ins("s_load_dwordx2", [s(86, 2), s(44, 2), hex(i * 128 + 60)]); x.dst = set(); st.l.append(x)
                SQ.append(f)
            return
        if kind[0] == "R" and TG:
            st.s_lshl_b32(s(90), sJ, 2); st.s_add_u32(s(90), s(90), sM); st.s_lshl_b32(s(90), s(90), 4); st.s_add_u32(s(90), s(90), sC)
            st.s_mul_i32(s(90), s(90), TG_W); st.s_add_u32(s(90), s(90), KVP + (0 if kind == "R0" else TG_P))
            st.s_add_u32(s(90), s(4), s(90)); st.s_addc_u32(s(91), s(5), 0)
            for i in range(6):
                def f(i=i):
                    x = Ins("s_load_dwordx2", [s(86, 2), s(90, 2), hex(i * 128 + 60)]); x.dst = set(); st.l.append(x)
                SQ.insert(0, f)
            return
        if kind == "R":
            st.s_mul_i32(s(90), sJ, KV_J); st.s_mul_i32(s(91), sC, KV_REC); st.s_add_u32(s(90), s(90), s(91))
            st.s_mul_i32(s(91), sM, 5 * 128); st.s_min_u32(s(91), s(91), 13 * 128); st.s_add_u32(s(90), s(90), s(91)); st.s_add_u32(s(90), s(90), KVP + KV_P)
            st.s_add_u32(s(90), s(4), s(90)); st.s_addc_u32(s(91), s(5), 0)
            for i in range(5):
                def f(i=i):
                    x = Ins("s_load_dwordx2", [s(86, 2), s(90, 2), hex(i * 128 + 60)]); x.dst = set(); st.l.append(x)
                SQ.insert(0, f)
            return
        if kind[0] == "r":
            i0 = 5 if kind == "r1" else 0
            for i in range(i0, 10):
                def f(i=i):
                    if i == i0:
                        st.s_mul_i32(s(90), sJ, KV_J); st.s_mul_i32(s(91), sC, KV_REC); st.s_add_u32(s(90), s(90), s(91))
                        st.s_mul_i32(s(91), sM, 5 * 128); st.s_min_u32(s(91), s(91), 13 * 128); st.s_add_u32(s(90), s(90), s(91)); st.s_add_u32(s(90), s(90), KVP)
                        st.s_add_u32(s(44), s(4), s(90)); st.s_addc_u32(s(45), s(5), 0)
                        st.s_lshl_b32(s(90), sJ, 11); st.s_lshl_b32(s(91), sC, oi("fks", 7)); st.s_add_u32(s(90), s(90), s(91)); st.s_add_u32(s(90), s(90), FKV)
                        st.s_add_u32(s(90), s(4), s(90)); st.s_addc_u32(s(91), s(5), 0)
                    x = Ins("s_load_dwordx2", [s(86, 2), s(44, 2), hex(i % 5 * 128 + i // 5 * KV_P + 60)]); x.dst = set(); st.l.append(x)
                    if i % 5 == 4 and not oi("fkw", 1):
                        x = Ins("s_load_dword", [s(86), s(90, 2), hex(i // 5 * 256 * 128)]); x.dst = set(); st.l.append(x)
                SQ.append(f)
            return
        base, cnt = dict(w=(46, 96), o=(50, 32), d=(58, 86), g=(54, 86), u=(56, 86))[kind[0]]
        if len(kind) > 1: cnt = int(kind[1:])
        for i in range(cnt):
            def f(i=i):
                if i == 0:
                    st.s_lshl_b32(s(91), sWI, 7); st.s_add_u32(s(44), s(base), s(91)); st.s_addc_u32(s(45), s(base + 1), 0)
                if i == 48: st.s_add_u32(s(44), s(44), 48 * 16384); st.s_addc_u32(s(45), s(45), 0)
                x = Ins("s_load_dwordx2", [s(86, 2), s(44, 2), hex(i % 48 * 16384 + 60)]); x.dst = set(); st.l.append(x)
            SQ.append(f)
    PART = [0, 8]
    XR = os_("xr", "")
    sXI, sW8X = s(97), s(98)
    def dma(n, addr, srd, offs):
        slot = (n % 4) * 32768
        xr = dict(kv="k", q="q", wo="o", wd="-")[chunks[n][0]]
        if n >= 17: xr = xr.upper()
        xr = xr in XR
        for i, (base, off, lds) in enumerate(offs):
            if not PART[0] <= i < PART[1]: continue
            if xr:
                step = offs[1][1] - offs[0][1]
                st.s_xor_b32("m0", sW8X, slot + lds[1])
                st.s_xor_b32(sT0, sXI, i); st.s_mul_i32(sT0, sT0, step)
                if offs[0][1]: st.s_add_u32(sT0, sT0, offs[0][1])
                if base != "0": st.s_add_u32(sT0, sT0, base)
            else:
                st.s_add_u32("m0", lds[0], slot + lds[1])
                st.s_add_u32(sT0, base, off)
            st.buffer_load_dwordx4(addr, srd, sT0, mods="offen" + POL(srd) + " lds", tset=f"c{n}" if i == len(offs) - 1 else None)
    def issue(n):
        if n >= N: return
        assert n not in issued
        if PART[1] == 8: issued.add(n)
        kind, a = chunks[n]
        if kind == "kv" and n < 17:
            if a == 1: st.s_xor_b32(sT1, s(89), 4); st.s_and_b32(sT1, sT1, 7); st.s_mul_i32(sKVr[1], sT1, 64 * 3072); st.s_add_u32(sKVr[1], sKVr[1], sQJ)
            dma(n, vKV, WQ, [(sKVr[a], 8 * i * 3072, (sW8, 1024 * i)) for i in range(8)])
        elif kind == "q" and n < 17:
            st.v_add_u32(vT, sKVr[0], vQ); st.v_subrev_u32(vU, 512 * 3072, vT); st.v_min_u32(vQ0, vT, vU)
            dma(n, vQ0, WQ, [("0", 8 * i * 3072, (sW8, 1024 * i)) for i in range(8)])
        elif kind == "kv": dma(n, vKV, WQ, [(sQK, (256 * a + 8 * i) * 3072, (sW8, 1024 * i)) for i in range(8)])
        elif kind == "q": dma(n, vQ, WQ, [(sQK, 8 * i * 3072, (sW8, 1024 * i)) for i in range(8)])
        elif kind == "wo": dma(n, vW, WO_, [(sWOb, (256 * a + 8 * i) * 1024, (sW8, 1024 * i)) for i in range(8)])
        elif kind == "wd" and a < 5: dma(n, vW, WD, [(sWDb[i // 2], (16 * a + 8 * (i % 2)) * 1024, (sW8, 1024 * i)) for i in range(8)])
        elif kind == "wd":
            slot = (n % 4) * 32768
            for e in range(3):
                st.s_mul_i32(sT1, sM, 3); st.s_add_u32(sT1, sT1, e)
                st.s_lshr_b32(sT0, sT1, 1); st.s_mul_i32(sT0, sT0, 96 * 1024); st.s_and_b32(sT2, sT1, 1); st.s_lshl_b32(sT2, sT2, 13)
                st.s_add_u32(sT0, sT0, sT2); st.s_add_u32(sT0, sT0, sWD5)
                st.s_lshl_b32(sT1, sT1, 10); st.s_add_u32("m0", sT1, slot)
                st.buffer_load_dwordx4(vW, WD, sT0, mods="offen" + POL(WD) + " lds", tset=f"c{n}" if e == 2 else None)
        else:
            slot = n % 4; wr = vWR1 if slot >= 2 else vWR0; so = (slot & 1) * 32768
            for t in range(2):
                for k in range(4):
                    g, fr = (4 * a + k, t) if kind == "gp" else (4 * t + k, a)
                    st.ds_write_b128(wr, v(GU + 24 * g + 4 * fr, 4), mods=f"offset:{so + t*16384 + k*(4096 if GR else 1024)}", tset=f"c{n}" if (t, k) == (1, 3) else None)
    FREE = [GU + 24 * g + 4 * fr for h in (0, 2) for g in range(8) for fr in (h, h + 1)]
    def stg(n):
        a = chunks[n][1]
        if n < 17:
            return [48, 52, 56] if a == 5 else [16 + 4 * i for i in range(8)]
        o = {3: 0, 4: 8, 2: 16, 5: 24}[a]
        return FREE[o:o + 8]
    def stage(n):
        kind, a = chunks[n]; assert kind == "wd"
        r = stg(n)
        if a < 5:
            for i in range(8):
                st.s_add_u32(sT0, sWDb[i // 2], (16 * a + 8 * (i % 2)) * 1024)
                st.buffer_load_dwordx4(v(r[i], 4), vW, WD, sT0, mods="offen")
        else:
            for e in range(3):
                st.s_mul_i32(sT1, sM, 3); st.s_add_u32(sT1, sT1, e)
                st.s_lshr_b32(sT0, sT1, 1); st.s_mul_i32(sT0, sT0, 96 * 1024); st.s_and_b32(sT2, sT1, 1); st.s_lshl_b32(sT2, sT2, 13)
                st.s_add_u32(sT0, sT0, sT2); st.s_add_u32(sT0, sT0, sWD5)
                st.buffer_load_dwordx4(v(r[e], 4), vW, WD, sT0, mods="offen")
    def unstage(n):
        kind, a = chunks[n]; r = stg(n); slot = (n % 4) * 32768
        assert n not in issued; issued.add(n)
        if a < 5: st.s_add_u32(sT0, sW8, slot)
        else: st.s_mul_i32(sT0, sM, 3072); st.s_add_u32(sT0, sT0, slot)
        st.v_add_u32(vT, sT0, vL16)
        for i in range(8 if a < 5 else 3): st.ds_write_b128(vT, v(r[i], 4), mods=f"offset:{1024*i}")
    def prologue():
        F0 = oi("fast0", 1)
        if F0:
            if E0:
                srds(st, [WS, WP, WO_, WG, WU, WD, OUT])
                run(E0.split(","), 0)
        else:
            issue(0)
            if oi("kv1first", 1): issue(1)
        if not oi("cfirst", 1):
            st.mark("save", "ld1"); st.s_branch(".Lloader")
            st.label(".Lcomp"); st.mark("reset")
            compute(st)
            st.label(".Lloader"); st.mark("restore", "ld1")
        if not F0 and not oi("kv1first", 1): issue(1)
        def late():
            if not (F0 and E0):
                st.wait(lgkm=0)
                srds(st, [WQ, WS, WP, WO_, WG, WU, WD])
            stamp_base(st)
            if not OPT.get("dcap"): stamp(st, "start", who="l", pair=0)
        if not F0 or E0: late()
        st.s_lshl_b32(sWOb, sM, 16); st.s_lshl_b32(sT0, sCG, 7); st.s_add_u32(sWOb, sWOb, sT0)
        for e in range(4):
            st.s_lshl_b32(sT1, sM, 2); st.s_add_u32(sT1, sT1, e)
            st.s_mul_i32(sT2, sT1, 6); st.s_mul_i32(sT3, sT1, 5); st.s_add_u32(sT3, sT3, 6); st.s_min_u32(sT2, sT2, sT3)
            st.s_lshl_b32(sT2, sT2, 14); st.s_add_u32(sWDb[e], sT2, sT0)
        st.s_add_u32(sWD5, sT0, 80 * 1024)
        st.s_mul_i32(sT2, sJ, 6); st.s_mul_i32(sT3, sJ, 5); st.s_add_u32(sT3, sT3, 6); st.s_min_u32(sT2, sT2, sT3)
        st.s_lshl_b32(sT2, sT2, 5); st.s_mul_i32(sGU, sM, (16 if GR else 64) * 2752); st.s_add_u32(sGU, sGU, sT2)
        if GR: grot(st, s(96), sT2)
        st.s_cmp_eq_u32(sT6, 1); st.s_cselect_b32(sT1, 12, 10)
        st.s_lshl_b32(sT2, sM, 13 if oi("gs3", 0) else 12); st.s_add_u32(sT2, sT2, 98304 if oi("gs3", 0) else 32768)
        for i in range(3):
            st.v_add_u32(vT, 64 * i, vL); st.v_mul_u32_u24(vU, 5462, vT); st.v_lshrrev_b32(vU, 16, vU)
            st.v_mul_u32_u24(vV, 12, vU); st.v_sub_u32(vT, vT, vV)
            st.v_mul_u32_u24(vGG[i], 2752, vU); st.v_lshl_add_u32(vGG[i], vT, 4, vGG[i])
            st.v_cmp_gt_u32("vcc", sT1, vT); st.v_mov_b32(vV, 0x80000000); st.v_cndmask_b32(vGG[i], vV, vGG[i], "vcc")
            st.v_and_b32(vV, 7, vU); st.v_mul_u32_u24(vGL[i], GSTR, vV); st.v_lshrrev_b32(vV, 3, vU); st.v_lshl_add_u32(vGL[i], vV, 12 if oi("gs3", 0) else 14, vGL[i])
            if GL: st.v_lshl_add_u32(vGL[i], vT, 4, vGL[i])
            else:
                st.v_lshrrev_b32(vV, 1, vT); st.v_lshl_add_u32(vGL[i], vV, 6, vGL[i])
                st.v_and_b32(vV, 1, vT); st.v_lshl_add_u32(vGL[i], vV, 4, vGL[i])
            st.v_add_u32(vGL[i], sT2, vGL[i])
        lane_tr(st, vGT, None, "nat", stride=GSTR, hstride=4096 if oi("gs3", 0) else 16384); st.v_add_u32(vGT, sT2, vGT)
        if GL: st.v_bfe_u32(vT, vL, 4, 1); st.v_mul_u32_u24(vT, 192, vT); st.v_add_u32(vGT, vT, vGT)
        lane_tr(st, vC0, vC1, "qkv")
        st.s_lshl_b32(sT0, sM, 10 if GR else 12); st.v_add_u32(vWR0, sT0, vL16); st.v_add_u32(vWR1, 65536, vWR0)
        st.v_bfe_u32(vT, vL, 4, 1); st.v_and_b32(vU, 1, vL); st.v_cmp_eq_u32("vcc", vT, vU)
        st.v_mov_b32(vV, 0x3f803f80)
        for i in range(4): st.v_cndmask_b32(v(SEL + i), 0, vV, "vcc")
        st.v_lshlrev_b32(vCW, 6, vT); st.v_lshl_add_u32(vCW, vU, 5, vCW); st.v_lshrrev_b32(vT, 5, vL); st.v_lshl_add_u32(vCW, vT, 4, vCW)
        if F0 and not E0: late()
    def publish():
        L = newlab("pub")
        st.v_add_u32(vNON, sXC, vNON); st.v_add_u32(vNON, 16, vNON)
        st.s_lshl_b32(sT0, sC, 7); st.s_lshl_b32(sT1, sJ, 2); st.s_add_u32(sT0, sT0, sT1); st.s_add_u32(sT0, sT0, XCCT)
        st.s_cmp_lg_u32(sM, 0); st.mark("save", L); st.s_cbranch_scc1(L)
        st.buffer_store_dword(vNON, "off", WS, sT0, mods="sc1")
        st.mark("merge", L); st.label(L)
    dn = [0]
    def dum():
        dn[0] += 1
        return vDUM[dn[0] % 4]
    def tload(addr, srd, soff):
        i = Ins("buffer_load_dword", [dum(), addr, srd, str(soff)], "offen" + POL(srd)); i.dst = set(); st.l.append(i)
    def touch(kind):
        if kind == "wd":
            st.s_mul_i32(sT0, sWI, 86 * 128); st.v_lshlrev_b32(vT, 7, vL); tload(vT, WD, sT0)
            st.v_min_u32(vU, 21, vL); st.v_lshlrev_b32(vU, 7, vU); st.s_add_u32(sT0, sT0, 8192); tload(vU, WD, sT0)
        elif kind[:2] == "wf":
            n = int(kind[2:]); assert n <= 64
            st.s_mul_i32(sT0, sWI, n * 128); st.v_min_u32(vT, n - 1, vL); st.v_lshlrev_b32(vT, 7, vT); tload(vT, WD, sT0)
        elif kind[:2] == "wd":
            n = int(kind[2:]); c = 86 - n; assert c <= 64
            st.s_mul_i32(sT0, sWI, c * 128); st.s_add_u32(sT0, sT0, n * 16384); st.v_min_u32(vT, c - 1, vL); st.v_lshlrev_b32(vT, 7, vT); tload(vT, WD, sT0)
        elif kind[0] == "e":
            for D in dict(g=(WG, WU), d=(WD,), o=(WO_,))[kind[1]]:
                n, tot = (4, 512) if D == WO_ else (11, 1376)
                st.s_mul_i32(sT0, sWI, n); st.v_min_u32(vT, n - 1, vL); st.v_add_u32(vT, sT0, vT); st.v_min_u32(vT, tot - 1, vT); st.v_lshlrev_b32(vT, 7, vT)
                st.s_lshr_b32(sT0, sC, 1); st.s_mul_i32(sT0, sT0, tot * 128); tload(vT, D, sT0)
        elif kind == "out":
            st.s_lshl_b32(sT0, sC, 4); st.s_add_u32(sT0, sT0, sJ); st.s_lshl_b32(sT0, sT0, 2); st.s_add_u32(sT0, sT0, sM); st.s_lshl_b32(sT0, sT0, 11)
            st.v_lshlrev_b32(vT, 5, vFL); tload(vT, OUT, sT0)
        elif kind in ("g", "u"):
            D = WG if kind == "g" else WU
            st.s_mul_i32(sT0, sWI, 86 * 128); st.v_lshlrev_b32(vT, 7, vL); tload(vT, D, sT0)
            st.v_min_u32(vU, 21, vL); st.v_lshlrev_b32(vU, 7, vU); st.s_add_u32(sT0, sT0, 8192); tload(vU, D, sT0)
        elif kind in ("ga", "gb"):
            st.s_mul_i32(sT0, sWI, 43 * 128); st.v_min_u32(vT, 42, vL); st.v_lshlrev_b32(vT, 7, vT)
            if kind == "gb": st.s_add_u32(sT0, sT0, 256 * 2752)
            tload(vT, WG, sT0); tload(vT, WU, sT0)
        elif kind in ("kv0", "kv1"):
            st.v_bfe_u32(vT, vL, 4, 1); st.v_mul_u32_u24(vT, 3072, vT); st.v_lshl_add_u32(vT, vFL, 5, vT)
            st.s_mul_i32(sT0, sWI, 2 * 3072); st.s_add_u32(sT0, sT0, 1024 + 256 * 3072 * int(kind[2])); tload(vT, WQ, sT0)
        elif kind == "kv":
            st.v_lshrrev_b32(vT, 4, vL); st.v_mul_u32_u24(vT, 3072, vT); st.v_lshl_add_u32(vT, vFL, 5, vT)
            st.s_mul_i32(sT0, sWI, 4 * 3072); st.s_add_u32(sT0, sT0, 1024); tload(vT, WQ, sT0)
        elif kind == "q":
            st.v_bfe_u32(vT, vL, 3, 2); st.v_mul_u32_u24(vT, 3072, vT); st.v_and_b32(vU, 7, vL); st.v_lshl_add_u32(vT, vU, 7, vT)
            st.s_mul_i32(sT0, sWI, 4 * 3072); tload(vT, WQ, sT0)
        elif kind == "wo":
            st.v_and_b32(vT, 31, vL); st.v_lshlrev_b32(vT, 7, vT); st.s_lshl_b32(sT0, sWI, 12); tload(vT, WO_, sT0)
        elif kind == "h":
            st.s_lshl_b32(sT0, sC, 4); st.s_add_u32(sT0, sT0, sJ); st.s_lshl_b32(sT0, sT0, 2); st.s_add_u32(sT0, sT0, sM)
            st.s_mul_i32(sT0, sT0, 43 * 128); st.s_add_u32(sT0, sT0, HB)
            st.v_min_u32(vT, 42, vL); st.v_lshlrev_b32(vT, 7, vT); tload(vT, WS, sT0)
        elif kind in ("h0", "h1", "h2", "h3"):
            n, o = dict(h0=(16, 0), h1=(27, 32768), h2=(16, 32768), h3=(11, 65536))[kind]
            st.s_lshl_b32(sT0, sC, 2); st.s_add_u32(sT0, sT0, sM); st.s_mul_i32(sT0, sT0, HB_TB)
            st.s_mul_i32(sT1, sJ, n * 128); st.s_add_u32(sT0, sT0, sT1); st.s_add_u32(sT0, sT0, HB + o)
            st.v_min_u32(vT, n - 1, vL); st.v_lshlrev_b32(vT, 7, vT); tload(vT, WS, sT0)
        elif kind == "hs":
            st.s_lshl_b32(sT0, sC, 2); st.s_mul_i32(sT0, sT0, HB_TB); st.s_add_u32(sT0, sT0, HB)
            st.s_lshl_b32(sT1, sJ, 2); st.s_add_u32(sT1, sT1, sM); st.s_lshl_b32(sT1, sT1, 1)
            st.v_and_b32(vT, 1, vL); st.v_add_u32(vT, sT1, vT); st.v_min_u32(vT, 4 * HB_TB // 4096 - 1, vT); st.v_lshlrev_b32(vT, 12, vT); tload(vT, WS, sT0)
        elif kind == "x" and XO:
            st.s_lshl_b32(sT0, sC, 4); st.s_add_u32(sT0, sT0, sJ); st.s_lshl_b32(sT0, sT0, 2); st.s_add_u32(sT0, sT0, sM)
            st.s_lshl_b32(sT1, sT0, 11); st.v_lshlrev_b32(vT, 5, vFL); tload(vT, OUT, sT1)
            st.s_lshl_b32(sT2, sT0, 8); st.s_add_u32(sT2, sT2, ST)
            st.s_lshl_b32(sT3, sC, 2); st.s_add_u32(sT3, sT3, sM); st.s_lshl_b32(sT3, sT3, 10); st.s_add_u32(sT3, sT3, FL - 2 * 128)
            st.v_mov_b32(vU, sT2); st.v_mov_b32(vV, sT3); st.v_cmp_le_u32("vcc", 2, vL); st.v_cndmask_b32(vU, vU, vV, "vcc")
            st.v_min_u32(vT, 6, vL); st.v_lshl_add_u32(vT, vT, 7, vU); tload(vT, WS, 0)
        elif kind == "x":
            st.s_lshl_b32(sT0, sC, 4); st.s_add_u32(sT0, sT0, sJ); st.s_lshl_b32(sT0, sT0, 2); st.s_add_u32(sT0, sT0, sM)
            st.s_lshl_b32(sT1, sT0, 11); st.s_add_u32(sT1, sT1, XB)
            st.s_lshl_b32(sT2, sT0, 8); st.s_add_u32(sT2, sT2, ST - 16 * 128)
            st.s_lshl_b32(sT3, sC, 2); st.s_add_u32(sT3, sT3, sM); st.s_lshl_b32(sT3, sT3, 10); st.s_add_u32(sT3, sT3, FL - 18 * 128)
            st.v_mov_b32(vU, sT1); st.v_mov_b32(vV, sT2); st.v_cmp_le_u32("vcc", 16, vL); st.v_cndmask_b32(vU, vU, vV, "vcc")
            st.v_mov_b32(vV, sT3); st.v_cmp_le_u32("vcc", 18, vL); st.v_cndmask_b32(vU, vU, vV, "vcc")
            st.v_min_u32(vT, 22, vL); st.v_lshl_add_u32(vT, vT, 7, vU); tload(vT, WS, 0)
        elif kind == "r1":
            st.s_mul_i32(sT0, sJ, KV_J); st.s_mul_i32(sT1, sC, KV_REC); st.s_add_u32(sT0, sT0, sT1)
            st.s_mul_i32(sT1, sM, 640); st.s_min_u32(sT1, sT1, 13 * 128); st.s_add_u32(sT0, sT0, sT1); st.s_add_u32(sT0, sT0, KVP + KV_P)
            st.v_min_u32(vT, 4, vL); st.v_lshlrev_b32(vT, 7, vT); tload(vT, WS, sT0)
        elif kind == "f":
            st.s_lshl_b32(sT3, sC, 2); st.s_add_u32(sT3, sT3, sM); st.s_lshl_b32(sT3, sT3, 10); st.s_add_u32(sT3, sT3, FL)
            st.v_min_u32(vT, 4, vL); st.v_lshlrev_b32(vT, 7, vT); tload(vT, WS, sT3)
        elif kind == "cs":
            st.s_getpc_b64(s(100, 2))
            L = newlab("pc")
            st.label(L)
            st.raw(f"    s_sub_u32 s100, s100, {L}-{NAME}_kernel")
            st.raw("    s_subb_u32 s101, s101, 0")
            st.v_and_b32(vT, 3, vL); st.v_lshlrev_b32(vT, 14, vT); st.s_lshl_b32(sT0, sWI, 7); st.v_add_u32(vT, sT0, vT)
            st.v_min_u32(vT, f".Lslow-{NAME}_kernel", vT)
            i = Ins("global_load_dword", [dum(), vT, s(100, 2)]); i.dst = set(); st.l.append(i)
        elif kind == "code":
            st.s_getpc_b64(s(100, 2))
            L = newlab("pc")
            st.label(L)
            st.raw(f"    s_sub_u32 s100, s100, {L}-{NAME}_kernel")
            st.raw("    s_subb_u32 s101, s101, 0")
            st.v_lshlrev_b32(vT, 7, vL); st.s_lshl_b32(sT0, sM, 13); st.v_add_u32(vT, sT0, vT)
            i = Ins("global_load_dword", [dum(), vT, s(100, 2)]); i.dst = set(); st.l.append(i)
            st.v_add_u32(vU, 32768, vT); st.v_min_u32(vU, f".Lslow-{NAME}_kernel", vU)
            i = Ins("global_load_dword", [dum(), vU, s(100, 2)]); i.dst = set(); st.l.append(i)
    def claim(kind):
        sm = os_("sm", "")
        def sel(lo, r):
            st.v_mov_b32(vV, r); st.v_cmp_le_u32("vcc", lo, vL); st.v_cndmask_b32(vU, vU, vV, "vcc")
        if kind in ("ox", "x"):
            st.s_lshl_b32(sT0, sC, 2); st.s_add_u32(sT1, sT0, sM); st.s_mul_i32(sT1, sT1, HB_TB); st.s_lshl_b32(sT2, sJ, 11)
            st.s_add_u32(sT1, sT1, sT2); st.s_add_u32(sT1, sT1, HB); st.v_mov_b32(vU, sT1)
            st.s_lshl_b32(sT1, sHF, 1); st.s_add_u32(sT0, sT0, sT1); st.s_lshr_b32(sT1, sM, 1); st.s_add_u32(sT0, sT0, sT1)
            st.s_lshl_b32(sT1, sCG, 1); st.s_and_b32(sT2, sM, 1); st.s_add_u32(sT1, sT1, sT2)
            st.s_lshl_b32(sT2, sT0, 15); st.s_lshl_b32(sT3, sT1, 11); st.s_add_u32(sT2, sT2, sT3); st.s_add_u32(sT2, sT2, XB - 16 * 128)
            sel(16 if kind == "ox" else 0, sT2)
            st.s_lshl_b32(sT2, sT0, 12); st.s_lshl_b32(sT3, sT1, 8); st.s_add_u32(sT2, sT2, sT3); st.s_add_u32(sT2, sT2, ST - 32 * 128)
            sel(32, sT2)
            st.v_min_u32(vT, 33, vL)
            if kind == "x": st.v_max_u32(vT, 16, vT)
            st.v_lshl_add_u32(vT, vT, 7, vU)
        elif kind == "h":
            st.s_lshl_b32(sT0, sC, 2); st.s_add_u32(sT1, sT0, sM); st.s_mul_i32(sT1, sT1, HB_TB); st.s_lshl_b32(sT2, sJ, 10)
            st.s_add_u32(sT1, sT1, sT2); st.s_add_u32(sT1, sT1, HB + 32768)
            st.s_add_u32(sT2, sT6, 2); st.v_lshrrev_b32(vT, 3, vL); st.v_min_u32(vT, sT2, vT); st.v_lshlrev_b32(vT, 14, vT)
            st.v_and_b32(vU, 7, vL); st.v_lshl_add_u32(vT, vU, 7, vT); st.v_add_u32(vT, sT1, vT)
        elif kind == "r":
            sm = "sc1"
            st.s_mul_i32(sT0, sJ, KV_J); st.s_mul_i32(sT1, sC, KV_REC); st.s_add_u32(sT0, sT0, sT1)
            st.s_mul_i32(sT1, sM, 5 * 128); st.s_min_u32(sT1, sT1, 13 * 128); st.s_add_u32(sT0, sT0, sT1); st.s_add_u32(sT0, sT0, KVP)
            st.v_mov_b32(vU, sT0); st.s_add_u32(sT0, sT0, KV_P - 5 * 128); sel(5, sT0)
            assert oi("fks", 7) == 7
            st.s_lshl_b32(sT0, sJ, 11); st.s_lshl_b32(sT1, sC, 7); st.s_add_u32(sT0, sT0, sT1); st.s_add_u32(sT0, sT0, FKV + 32 - 10 * 128)
            sel(10, sT0); st.s_add_u32(sT0, sT0, 256 * 128 - 128); sel(11, sT0)
            st.v_min_u32(vT, 11, vL); st.v_lshl_add_u32(vT, vT, 7, vU)
        st.buffer_store_dword(vL, vT, WS, 0, mods="offen " + sm, tset="w" + kind)
    def fillw(kind):
        sm = os_("fm", "sc1").replace("+", " ").replace("-", "")
        D = v(8, 4)
        if SPEC:
            D = v(52, 4)
            for i in range(4): st.v_mov_b32(v(52 + i), -1)
        def w(addr, soff, off=0, tag=None): st.buffer_store_dwordx4(D, addr, WS, soff, mods=f"offen offset:{off} {sm}", tset=tag)
        if kind == "o":
            st.s_lshl_b32(sT0, sC, 2); st.s_add_u32(sT1, sT0, sM); st.s_mul_i32(sT1, sT1, HB_TB); st.s_lshl_b32(sT2, sJ, 11)
            st.s_add_u32(sT1, sT1, sT2); st.s_add_u32(sT1, sT1, HB); w(vL16, sT1); w(vL16, sT1, 1024, "wo")
        elif kind == "o1":
            st.s_lshl_b32(sT0, sC, 2); st.s_add_u32(sT1, sT0, sM); st.s_lshl_b32(sT1, sT1, 15); st.s_lshl_b32(sT2, sJ, 11)
            st.s_add_u32(sT1, sT1, sT2); st.s_add_u32(sT1, sT1, OB1); w(vL16, sT1); w(vL16, sT1, 1024, "wo1")
        elif kind[0] == "x":
            d = {"x": 0, "x1": X_A, "x2": X_A + X_B}[kind]
            st.s_lshl_b32(sT0, sC, 2)
            st.s_lshl_b32(sT1, sHF, 1); st.s_add_u32(sT0, sT0, sT1); st.s_lshr_b32(sT1, sM, 1); st.s_add_u32(sT0, sT0, sT1)
            st.s_lshl_b32(sT1, sCG, 1); st.s_and_b32(sT2, sM, 1); st.s_add_u32(sT1, sT1, sT2)
            st.s_lshl_b32(sT2, sT0, 15); st.s_lshl_b32(sT3, sT1, 11); st.s_add_u32(sT2, sT2, sT3); st.s_add_u32(sT2, sT2, XB + d)
            w(vL16, sT2); w(vL16, sT2, 1024)
            st.s_lshl_b32(sT2, sT0, 12); st.s_lshl_b32(sT3, sT1, 8); st.s_add_u32(sT2, sT2, sT3); st.s_add_u32(sT2, sT2, ST + d)
            st.v_and_b32(vT, 240, vL16); w(vT, sT2, 0, "w" + kind)
        elif kind == "h":
            st.s_lshl_b32(sT0, sC, 2); st.s_add_u32(sT1, sT0, sM); st.s_mul_i32(sT1, sT1, HB_TB); st.s_lshl_b32(sT2, sJ, 10)
            st.s_add_u32(sT1, sT1, sT2); st.s_add_u32(sT1, sT1, HB + 32768)
            for r in range(2): w(vL16, sT1); st.s_add_u32(sT1, sT1, 16384)
            w(vL16, sT1); st.s_lshl_b32(sT2, sT6, 14); st.s_add_u32(sT1, sT1, sT2); w(vL16, sT1, 0, "wh")
        elif kind in ("r", "r1"):
            st.s_mul_i32(sT0, sJ, KV_J); st.s_mul_i32(sT1, sC, KV_REC); st.s_add_u32(sT0, sT0, sT1)
            st.s_mul_i32(sT1, sM, 640); st.s_min_u32(sT1, sT1, 13 * 128); st.s_add_u32(sT0, sT0, sT1); st.s_add_u32(sT0, sT0, KVP)
            st.v_min_u32(vT, 39 * 16, vL16)
            if kind == "r": w(vT, sT0)
            st.s_add_u32(sT0, sT0, KV_P); w(vT, sT0, 0, "wr")
    gl = []
    for g in range(8):
        k0 = (16 * (g // 4) + (g % 4)) * 16
        for m_, srd in enumerate((WG, WU)):
            for i in range(3):
                def f(g=g, k0=k0, m_=m_, srd=srd, i=i):
                    if i == 0 and GR:
                        st.s_xor_b32(sLD, s(96), g); st.s_mul_i32(sLD, sLD, 64 * 2752); st.s_add_u32(sLD, sLD, sGU)
                    elif i == 0: st.s_add_u32(sLD, sGU, k0 * 2752)
                    st.buffer_load_dwordx4(v(GU + 24 * g + 12 * m_ + 4 * i, 4), vGG[i], srd, sLD, mods="offen" + POL(srd))
                f.g = g
                gl.append(f)
    vGD = vC0; gd_set = []
    def area(a):
        return {"0": 0, "1": 32768, "3": 98304, "2": 65536}[a]
    def gu_dma(g, a):
        assert GR and len([f for f in gl if f.g == g]) == 6
        gl[:] = [f for f in gl if f.g != g]
        st.s_xor_b32(sLD, s(96), g); st.s_mul_i32(sLD, sLD, 64 * 2752); st.s_add_u32(sLD, sLD, sGU)
        for m_, srd in enumerate((WG, WU)):
            for i in range(3):
                st.s_add_u32("m0", sW8, area(a) + 3104 * m_ + 1024 * i)
                st.buffer_load_dwordx4(vGG[i], srd, sLD, mods="offen" + POL(srd) + " lds", tset=f"gd{g}" if (m_, i) == (1, 2) else None)
    def gu_read(g, a, cnt=1):
        if not gd_set:
            gd_set.append(1)
            st.v_bfe_u32(vGD, vL, 2, 2); st.v_mul_u32_u24(vGD, 192, vGD); st.v_lshrrev_b32(vT, 5, vL); st.v_mul_u32_u24(vT, 1536, vT); st.v_add_u32(vGD, vT, vGD)
            st.v_and_b32(vT, 1, vL); st.v_lshl_add_u32(vGD, vT, 4, vGD); st.v_bfe_u32(vT, vL, 1, 1); st.v_lshl_add_u32(vGD, vT, 3, vGD)
            st.v_bfe_u32(vT, vL, 4, 1); st.v_mul_u32_u24(vT, 3104, vT); st.v_add3_u32(vGD, vT, vGD, sW8)
        assert g == tr_next[0]; tr_next[0] += 1
        b = GU + 24 * g; o = area(a); r = vGD
        if o >= 65536: st.v_add_u32(vC1, 65536, vGD); r = vC1; o -= 65536
        for t in range(6):
            for u in range(2): st.ds_read_b64_tr_b16(v(b + 4 * t + 2 * u, 2), r, mods=f"offset:{o + u*768 + t*32}", tneed=f"gd{g}" if (t, u) == (0, 0) else None)
        tsum(g)
    def gu_loads(cnt):
        for _ in range(min(cnt, len(gl))):
            f = gl.pop(0)
            if not OPT.get("noG"): f()
    def colsum(n, steps, first, lo, hi, dst=None):
        L = newlab("cs")
        st.s_sub_u32(sT0, sM, lo); st.s_cmp_ge_u32(sT0, hi - lo); st.mark("save", L); st.s_cbranch_scc1(L)
        nf = len(FRS)
        def rd(k):
            a, off = steps[k]; r = FRS[k % nf]
            st.ds_read_b64_tr_b16(v(r, 2), a, mods=f"offset:{off}"); st.ds_read_b64_tr_b16(v(r + 2, 2), a, mods=f"offset:{off+512}")
        for k in range(nf - 1): rd(k)
        for k in range(len(steps)):
            acc = v(CACC + 4 * (k & 1), 4)
            st.v_mfma_f32_16x16x32_bf16(acc, v(FRS[k % nf], 4), v(SEL, 4), "0" if first and k < 2 else acc)
            if k + nf - 1 < len(steps): rd(k + nf - 1)
        if dst is not None:
            for i in range(4): st.v_add_f32(v(CACC + i), v(CACC + i), v(CACC + 4 + i))
            st.ds_write_b128(dst, v(CACC, 4))
        st.mark("merge", L); st.label(L)
    def transpose(g):
        b = GU + 24 * g
        for m_ in range(2):
            for i in range(3): st.ds_write_b128(vGL[i], v(b + 12 * m_ + 4 * i, 4), mods=f"offset:{(224 if GL else 32)*m_}")
        for t in range(6):
            for u in range(2): st.ds_read_b64_tr_b16(v(b + 4 * t + 2 * u, 2), vGT, mods=f"offset:{u*4*GSTR + t*(32 if GL else 64)}")
    def tsum(g):
        b = GU + 24 * g
        for t in range(6):
            st.v_mfma_f32_16x16x32_bf16(v(CACC + 4 * t, 4), v(b + 4 * t, 4), v(SEL, 4), "0" if g == 0 else v(CACC + 4 * t, 4))
    tr_next = [0]
    def transposes(cnt):
        gs = list(range(tr_next[0], min(8, tr_next[0] + cnt))); tr_next[0] += len(gs)
        for i, g in enumerate(gs):
            transpose(g)
            if i > 0: tsum(gs[i - 1])
        tsum(gs[-1])
    def gu_partial():
        st.s_mul_i32(sT0, sM, 768); st.s_add_u32(sT0, sT0, L_VB); st.v_add_u32(vT, sT0, vCW)
        for i in range(6): st.ds_write_b128(vT, v(CACC + 4 * i, 4), mods=f"offset:{128*i}")
    def gu_reduce():
        st.v_min_u32(vCR, 6 * 128 - 16, vL16)
        st.v_add_u32(vT, L_VB, vCR)
        for w in range(4): st.ds_read_b128(v(CACC + 4 * w, 4), vT, mods=f"offset:{w*768}")
        for i in range(4):
            st.v_add_f32(v(CACC + i), v(CACC + i), v(CACC + 4 + i)); st.v_add_f32(v(CACC + 8 + i), v(CACC + 8 + i), v(CACC + 12 + i))
        for i in range(4): st.v_add_f32(v(CACC + i), v(CACC + i), v(CACC + 8 + i))
        for i in range(4):
            st.v_and_b32(v(CACC + 4 + i), 0xffff0000, v(CACC + i)); st.v_sub_f32(v(CACC + i), v(CACC + i), v(CACC + 4 + i))
            st.v_cvt_pk_bf16_f32(v(CACC + i), v(CACC + 4 + i), v(CACC + i))
        st.v_and_b32(vT, 0x380, vCR); st.v_and_b32(vU, 0x30, vCR); st.v_lshl_add_u32(vT, vU, 1, vT)
        st.v_bfe_u32(vU, vCR, 6, 1); st.v_lshl_add_u32(vT, vU, 4, vT); st.v_add_u32(vT, L_CS + 384, vT)
        st.ds_write_b128(vT, v(CACC, 4))
    def cs_kv(a):
        if a == 0:
            st.s_lshl_b32(sT0, sM, 6); st.v_xor_b32(vCR, sT0, vC0)
        else:
            st.s_lshl_b32(sT0, sM, 7); st.s_add_u32(sT0, sT0, L_CS); st.v_add_u32(vV, sT0, vCW)
        colsum(a, [(vCR, 32768 * a + 2048 * k) for k in range(16)], a == 0, 0, 2, dst=vV if a == 1 else None)
    def cs_own(kind):
        a, b = vCR, vV
        o = dict(k0=0, k1=32768, q=65536)[kind]
        st.s_add_u32(sT0, sW8, o & 65536); st.v_add_u32(a, sT0, vC0); st.v_add_u32(b, sT0, vC1)
        steps = [(r, (o & 65535) + 2048 * k) for k in range(4) for r in (a, b)]
        for k, (r, off) in enumerate(steps):
            f = FRS[k % 5]
            if k >= 5: st.v_mfma_f32_16x16x32_bf16(v(CACC + 4 * ((k - 5) & 1), 4), v(f, 4), v(SEL, 4), "0" if kind != "k1" and k - 5 < 2 else v(CACC + 4 * ((k - 5) & 1), 4))
            st.ds_read_b64_tr_b16(v(f, 2), r, mods=f"offset:{off}", tneed="c2" if kind == "q" and k == 0 else None)
            st.ds_read_b64_tr_b16(v(f + 2, 2), r, mods=f"offset:{off+512}")
        for k in range(3, 8): st.v_mfma_f32_16x16x32_bf16(v(CACC + 4 * (k & 1), 4), v(FRS[k % 5], 4), v(SEL, 4), v(CACC + 4 * (k & 1), 4))
        if kind == "k1":
            st.s_lshl_b32(sT0, sM, 8); st.s_add_u32(sT0, sT0, L_VB); st.v_add_u32(vT, sT0, vCW)
            st.ds_write_b128(vT, v(CACC, 4)); st.ds_write_b128(vT, v(CACC + 4, 4), mods="offset:128")
            signal(st, 1, 96)
        elif kind == "q":
            st.s_lshl_b32(sT0, sM, 7); st.s_add_u32(sT0, sT0, L_CS + 384); st.v_add_u32(vT, sT0, vCW)
            for i in range(4): st.v_add_f32(v(CACC + i), v(CACC + i), v(CACC + 4 + i))
            st.ds_write_b128(vT, v(CACC, 4))
            signal(st, 1, 32)
    def cs_fin(kind):
        L = newlab("cf")
        if kind == "k": st.s_cmp_ge_u32(sM, 2)
        else: st.s_cmp_lg_u32(sM, 2)
        st.mark("save", L); st.s_cbranch_scc1(L)
        st.v_mov_b32(vU, 1); sigwait(st, 12, 112 if kind == "k" else 48, regs=(13, 14, 15))
        if kind == "k": st.s_lshl_b32(sT0, sM, 7); st.v_add_u32(vU, sT0, vCW); st.v_add_u32(vT, L_VB, vU); st.v_add_u32(vU, L_CS, vU)
        else: st.v_add_u32(vT, L_CS + 384, vCW); st.v_add_u32(vU, L_CS + 256, vCW)
        for w in range(4): st.ds_read_b128(v(CACC + 4 * w, 4), vT, mods=f"offset:{w * (256 if kind == 'k' else 128)}")
        for i in range(4):
            st.v_add_f32(v(CACC + i), v(CACC + i), v(CACC + 4 + i)); st.v_add_f32(v(CACC + 8 + i), v(CACC + 8 + i), v(CACC + 12 + i))
        for i in range(4): st.v_add_f32(v(CACC + i), v(CACC + i), v(CACC + 8 + i))
        st.ds_write_b128(vU, v(CACC, 4))
        st.mark("merge", L); st.label(L)
        if kind == "q": signal(st, 1)
    def cs_q():
        st.v_add_u32(vT, 65536, vC0); st.v_add_u32(vU, 65536, vC1); st.v_add_u32(vV, L_CS + 256, vCW)
        colsum(2, [(a, 2048 * k) for k in range(16) for a in (vT, vU)], True, 2, 3, dst=vV)

    need = {"a0": [0], "a1": [1], "g": [3, 4], "30": [5, 6, 7, 8], "3c": [9], "3d": [10], "3f": [11], "4a": [12], "4b": [13], "4c": [14], "4d": [15], "4e": [16]}
    S0 = os_("s0", "start:c1,Qcq,S4;a0:c2,csk0,Qco,S4;a1:csk1,wst,sigA,pub,G8,sigq,G28,wsig,X2,G12,X2,c3,c4,X2,Th0,Tx,X2;g:part,c5,c6,Qk,S21;p2:Th1,S7;X2:c7,c8;")
    S0 += os_("s0b", "30:red,wst,Qcd,S11;3a:c9,Twd,nd;3b:c10,nd;3c:r15,r16;3d:c11,c12;3f:c13,S4;3g:c14,S4;4a:S7;4b:u15,S7;4c:u16,S7;4d:S7;4e:c17;X4:c18,Qco,Qcq,S8")
    S1 = os_("s1", "a2:c2,sig,c3,c4;g:c5,c6;p2:Twf32;X2:c7,c8;")
    S1 += os_("s1b", "3a:c9,Twd32,nd;3b:c10,nd;3c:c11,r15,r16;3d:c12;3f:c13;3g:c14;4b:u15;4c:u16")
    def acts(txt):
        d = {}
        for part in txt.split(";"):
            k, _, l = part.partition(":"); d[k] = l.split(",")
        return d
    DR = [False]
    def run(lst, o):
        for a in lst:
            DR[0] = False
            if a == "q": issue(2)
            elif a == "pub": publish()
            elif a == "wld": st.s_lshl_b32(sT0, sJ, 10); st.buffer_load_dwordx4(v(WRAW, 4), vL16, WP, sT0, mods="offen")
            elif a == "wst":
                st.v_bfe_u32(vT, vL, 3, 2); st.v_mul_u32_u24(vT, 576, vT); st.v_lshrrev_b32(vU, 5, vL); st.v_lshl_add_u32(vT, vU, 7, vT)
                st.v_and_b32(vU, 112, vL16); st.v_add_u32(vT, vT, vU); st.v_add_u32(vT, L_KVB, vT)
                st.ds_write_b128(vT, v(WRAW, 4))
            elif a == "non": st.buffer_load_dword(vNON, "off", WS, 0, mods=f"offset:{EPOCH} sc1")
            elif a == "sig":
                st.l.append(Ins("s_nop", ["0"], tneed=f"c{o+2}")); signal(st, 1 + o // 17)
            elif a == "sigA": signal(st, 1, 16)
            elif a == "sigq":
                L = newlab("sq")
                st.l.append(Ins("s_nop", ["0"], tneed=f"c{o+2}")); signal(st, 1, 32)
                st.s_cmp_lg_u32(sM, 2); st.mark("save", L); st.s_cbranch_scc1(L)
                st.v_mov_b32(vU, 1); sigwait(st, 12, 48, regs=(13, 14, 15))
                st.mark("merge", L); st.label(L)
                cs_q(); signal(st, 1)
            elif a == "wsg": st.v_mov_b32(vU, 1); sigwait(st, 12, 64, regs=(13, 14, 15))
            elif a == "wsk": st.v_mov_b32(vU, 1 + o // 17); sigwait(st, 12, 64, regs=(13, 14, 15))
            elif a == "sigo":
                st.l.append(Ins("s_nop", ["0"], tneed=[f"c{o+3}", f"c{o+4}"])); signal(st, 1 + o // 17, 64)
            elif a == "wsp": st.v_mov_b32(vU, 1 + o // 17); sigwait(st, 12, 96, regs=(13, 14, 15))
            elif a == "sw":
                for r in vGL + [vGT]: st.v_xor_b32(r, 0x10000, r)
            elif a == "wsx": st.v_mov_b32(vU, 1); sigwait(st, 12, 80, regs=(13, 14, 15))
            elif a == "wsig": st.v_mov_b32(vU, 2); sigwait(st, 12, 32, regs=(13, 14, 15))
            elif a in ("ok0", "ok1", "oq"): cs_own(a[1:])
            elif a in ("fk", "fq"): cs_fin(a[1])
            elif a.startswith("csk"): cs_kv(int(a[3]))
            elif a == "csq": cs_q()
            elif a == "part": gu_partial()
            elif a == "red": gu_reduce()
            elif a[0] == "P": st.s_setprio(int(a[1:]))
            elif a == "nd": DR[0] = True
            elif a == "QC": SQ.clear()
            elif a == "wl": st.wait(lgkm=0)
            elif a[0] == "D" and a != "DF": dcap(st, a, "l")
            elif a == "DF": dflush(st, "l")
            elif a[0] == "L":
                k = len(DEF["l"]); r = s([8, 9, 10, 11, 12, 13, 14, 15, 41, 42, 43, 60, 61, 62, 63][k])
                st.s_lshl_b32(s(90), s(2), 2); st.s_add_u32(s(90), s(90), sM)
                if a[1] == "b": st.s_lshl_b32(s(90), s(90), 4); st.s_add_u32(s(90), s(90), k); st.s_lshl_b32(s(90), s(90), 7); b_ = 52
                elif a[1] == "q": st.s_and_b32(s(90), s(90), 511); st.s_mul_i32(s(90), s(90), 3072); st.s_add_u32(s(90), s(90), 128 * int(a[2])); b_ = 46
                elif a[1] == "w": st.s_lshl_b32(s(90), s(90), 4); st.s_add_u32(s(90), s(90), k); st.s_lshl_b32(s(90), s(90), 7); st.s_add_u32(s(90), s(90), 18 << 20); b_ = 4
                elif a[1] == "g": st.s_lshl_b32(s(90), s(90), 10); st.s_add_u32(s(90), s(90), 128 * int(a[2])); b_ = 54
                st.s_add_u32(s(90), s(b_), s(90)); st.s_addc_u32(s(91), s(b_ + 1), 0)
                st.wait(lgkm=0); st.s_memtime(s(100, 2)); st.wait(lgkm=0); st.s_mov_b32(r, s(100))
                st.s_load_dword(s(86), s(90, 2), 0); st.wait(lgkm=0)
                st.s_memtime(s(100, 2)); st.wait(lgkm=0); st.s_sub_u32(r, s(100), r); DEF["l"].append((a + f"_{k}", r))
            elif a[:2] == "WB":
                L = newlab("wb")
                if a == "WB": st.s_or_b32(sT0, sJ, sM)
                else: st.s_mov_b32(sT0, sM)
                st.s_cmp_lg_u32(sT0, 0); st.mark("save", L); st.s_cbranch_scc1(L)
                st.raw("    buffer_wbl2 " + os_("wbm", "sc1").replace("+", " "))
                st.mark("merge", L); st.label(L)
            elif a == "wv": st.wait(vm=0)
            elif a[:2] == "wv": st.wait(vm=int(a[2:]))
            elif a[0] == "Q": squeue(a[1:])
            elif a[0] == "S":
                if LDSW(st): st.wait(lgkm=0)
                DR[0] = True; spf(int(a[1:]))
            elif a[0] == "c" and "-" in a:
                n_, PART[0], PART[1] = [int(x) for x in a[1:].split("-")]
                issue(o + n_); PART[:] = [0, 8]
            elif a[0] == "c": issue(o + int(a[1:]))
            elif a[0] == "r" and a[1:].isdigit(): stage(o + int(a[1:]))
            elif a[0] == "u" and a[1:].isdigit(): unstage(o + int(a[1:]))
            elif a[0] == "@": stamp(st, a, who="l", pair=o // 17)
            elif a[0] == "G": gu_loads(int(a[1:]))
            elif a[0] == "X": transposes(int(a[1:]))
            elif a[0] == "H": gu_dma(int(a[1]), a[3])
            elif a[0] == "Y": gu_read(int(a[1]), a[3])
            elif a[0] == "T": touch(a[1:])
            elif a[0] == "W": claim(a[1:])
            elif a[0] == "F": fillw(a[1:])
            elif a[0] == "N": st.l.append(Ins("s_nop", ["0"], tneed="w" + a[1:]))
            else: raise ValueError(a)
    prologue()
    for pair in range(1 if OPT['stop'] else 2):
        o = 17 * pair; A = acts(S0 if pair == 0 else S1)
        run(A.get("start", []), o)
        for b in (SEQ0 if pair == 0 else SEQA) + SEQC:
            tk = []
            for n in need.get(b, []):
                if o + n == 0 and oi("xd", 0): continue
                assert o + n in issued, (pair, b, n)
                tk.append(f"c{o+n}")
            if not (OPT.get("dcap") and b == "a0" and pair == 0): stamp(st, "<" + b, who="l", pair=pair)
            if not DR[0] and LDSW(st): st.wait(lgkm=0)
            DR[0] = False
            st.l.append(Ins("s_barrier", [], tneed=tk))
            run(A.get(b, []), o)
    assert OPT['stop'] or (not gl and tr_next[0] == 8)
    st.s_branch(".Lend")

def main():
    st = Stream()
    entry(st)
    loader(st)
    st.label(".Lslow")
    compute_slow(st)
    st.extend(OOL)
    st.label(".Lend")
    st.s_endpgm()
    bodyt = finalize(st)
    ref = open(f"cdna_kernels/{NAME}.s.ref").read().split("\n")
    head = [l for l in ref if l.startswith(";") and "@launch" not in l]
    out = "\n".join(head) + f"\n; @launch grid=(256,1,1) block=(512,1,1) lds={LDS_BYTES}\n"
    out += '.amdgcn_target "amdgcn-amd-amdhsa--gfx950"\n' + khead(NAME + "_kernel") + bodyt + kd(NAME + "_kernel")
    path = sys.argv[1] if len(sys.argv) > 1 else f"cdna_kernels/{NAME}.s"
    open(path, "w").write(out)
    stamp_names["opt"] = " ".join(a for a in sys.argv[2:] if not a.startswith(("stamps", "only"))); json.dump(stamp_names, open(path + ".json", "w"))
    n = sum(1 for l in bodyt.split("\n") if l.startswith("    ") and not l.strip().startswith(";"))
    print("wrote", path, "instructions:", n, "barriers:", SEQ0, SEQA, SEQC)

main()
```
